```python
import torch

def _softmax(x, axis=-1):
    return torch.softmax(x, dim=axis)
def _gelu(x):
    return torch.nn.functional.gelu(x, approximate="tanh")
def _silu(x):
    return torch.nn.functional.silu(x)
def _sigmoid(x):
    return torch.sigmoid(x)
def _layernorm(x, axis=-1, eps=1e-5):
    m = x.mean(dim=axis, keepdim=True)
    v = x.var(dim=axis, keepdim=True, unbiased=False)
    return (x - m) / torch.sqrt(v + eps)
def _scatter_add(tgt, idx, src, axis=0):
    return tgt.clone().index_add_(axis, idx, src)
def _segment_sum(src, seg, n):
    out = torch.zeros((n,) + src.shape[1:], dtype=src.dtype)
    return out.index_add_(0, seg, src)
def _pad(x, pw):
    flat = tuple(v for pair in reversed(pw) for v in pair)
    return torch.nn.functional.pad(x, flat)

kernel_name = 'sequential_preLN__spectral_fnet__moe_arch_mod__prompt'

def setup_inputs():

    _w = (lambda a: (lambda t: t.to(torch.bfloat16) if t.is_floating_point() else t)(torch.as_tensor(a)))
    def _A_setup():
        B, S, D = 1, 2048, 512
        ns = torch.arange(S)[:, None] * torch.arange(S)[None, :]
        nd = torch.arange(D)[:, None] * torch.arange(D)[None, :]
        Ws_re = torch.cos(-2.0 * torch.pi * ns / S).to(float)
        Ws_im = torch.sin(-2.0 * torch.pi * ns / S).to(float)
        Wd_re = torch.cos(-2.0 * torch.pi * nd / D).to(float)
        Wd_im = torch.sin(-2.0 * torch.pi * nd / D).to(float)
        return {
            "x": _w((lambda *s: torch.randn(*s, dtype=torch.bfloat16) * 0.1)(B, S, D)),
            "dft_seq_re": _w(Ws_re),
            "dft_seq_im": _w(Ws_im),
            "dft_hid_re": _w(Wd_re),
            "dft_hid_im": _w(Wd_im),
        }
    _A_in = _A_setup()

    def _B_setup():
        B, S, D, F, C = 1, 2048, 512, 1792, 8
        return {
            "x": _w((lambda *s: torch.randn(*s, dtype=torch.bfloat16) * 0.1)(B, S, D)),
            "w_r": _w((lambda *s: torch.randn(*s, dtype=torch.bfloat16) * 1.6)(D)),
            "w_gate": _w((lambda *s: torch.randn(*s, dtype=torch.bfloat16) * 0.8)(D, F)),
            "w_up": _w((lambda *s: torch.randn(*s, dtype=torch.bfloat16) * 0.8)(D, F)),
            "w_down": _w((lambda *s: torch.randn(*s, dtype=torch.bfloat16) * 0.8)(F, D)),
        }
    _B_in = _B_setup()

    return {
        "A_x": _A_in["x"],
        "A_dft_seq_re": _A_in["dft_seq_re"],
        "A_dft_seq_im": _A_in["dft_seq_im"],
        "A_dft_hid_re": _A_in["dft_hid_re"],
        "A_dft_hid_im": _A_in["dft_hid_im"],
        "B_x": _B_in["x"],
        "B_w_r": _B_in["w_r"],
        "B_w_gate": _B_in["w_gate"],
        "B_w_up": _B_in["w_up"],
        "B_w_down": _B_in["w_down"],
    }

def reference(A_x, A_dft_seq_re, A_dft_seq_im, A_dft_hid_re, A_dft_hid_im, B_x, B_w_r, B_w_gate, B_w_up, B_w_down):
    def _A_ref(x, dft_seq_re, dft_seq_im, dft_hid_re, dft_hid_im):
        a = torch.einsum("bsd,ed->bse", x, dft_hid_re)
        b = torch.einsum("bsd,ed->bse", x, dft_hid_im)
        y = torch.einsum("ts,bse->bte", dft_seq_re, a) - torch.einsum("ts,bse->bte", dft_seq_im, b)
        return y

    def _B_ref(x, w_r, w_gate, w_up, w_down):
        B, S, D = x.shape
        C = 8
        r = x @ w_r
        idx = torch.argsort(-r, axis=-1)[:, :C]
        idx_e = (lambda x, n, axis: torch.repeat_interleave(x, n, dim=axis))(idx.reshape(B, C, 1), D, axis=2)
        x_sel = (lambda x, i, axis: torch.take_along_dim(x, i, dim=axis))(x, idx_e, axis=1)
        g = _silu(x_sel @ w_gate)
        u = x_sel @ w_up
        y = (g * u) @ w_down
        r_sel = _sigmoid((lambda x, i, axis: torch.take_along_dim(x, i, dim=axis))(r, idx, axis=1))
        y = y * r_sel.reshape(B, C, 1)
        b_off = (torch.arange(B) * S).reshape(B, 1)
        flat_idx = (idx + b_off).reshape(B * C)
        zero = (x * 0.0).reshape(B * S, D)
        upd = _scatter_add(zero, flat_idx, y.reshape(B * C, D), axis=0)
        return x + upd.reshape(B, S, D)

    x = A_x
    h = x + _A_ref(_layernorm(x, axis=-1), A_dft_seq_re, A_dft_seq_im, A_dft_hid_re, A_dft_hid_im)
    h2 = h + _B_ref(_layernorm(h, axis=-1), B_w_r, B_w_gate, B_w_up, B_w_down)
    return h2
```

```python
import sys

NAME = "sequential_preLN__spectral_fnet__moe_arch_mod__prompt"
L = []
def e(s=""):
    L.append(s)
def lab(s):
    L.append(s + ":")

KA_X, KA_WSRE, KA_WSIM, KA_WDRE, KA_WDIM = 0, 8, 16, 24, 32
KA_WR, KA_WG, KA_WU, KA_WDN, KA_OUT, KA_DBG, KA_WS = 48, 56, 64, 72, 80, 88, 96
WS_YB = 0
WS_Y = 4 << 20
WS_KEY = 8 << 20
WS_STAT = (8 << 20) + 8192
WS_GU = (8 << 20) + 65536
WS_IDX = (8 << 20) + 131072
WS_SIZE = 268435456

def kernel_begin(name):
    e(f".globl {name}")
    e(".p2align 8")
    e(f".type {name},@function")
    lab(name)

KD = []
def kernel_desc(name, vgpr, sgpr=102):
    acc = (vgpr + 3) // 4 * 4
    KD.append(f""".p2align 6
.amdhsa_kernel {name}
  .amdhsa_next_free_vgpr {vgpr}
  .amdhsa_next_free_sgpr {sgpr}
  .amdhsa_accum_offset {acc}
  .amdhsa_group_segment_fixed_size 0
  .amdhsa_kernarg_size 104
  .amdhsa_user_sgpr_count 2
  .amdhsa_user_sgpr_kernarg_segment_ptr 1
  .amdhsa_system_sgpr_workgroup_id_x 1
.end_amdhsa_kernel""")

def srd(d, lo, hi, size):
    e(f"  s_mov_b32 s{d}, s{lo}")
    e(f"  s_mov_b32 s{d+1}, s{hi}")
    e(f"  s_mov_b32 s{d+2}, {size}")
    e(f"  s_mov_b32 s{d+3}, 0x00020000")

def vr(a, n):
    return f"v[{a}:{a+n-1}]"

def reduce8(v):
    e("  s_nop 1")
    e(f"  v_add_f32_dpp v{v}, v{v}, v{v} quad_perm:[1,0,3,2] row_mask:0xf bank_mask:0xf")
    e("  s_nop 1")
    e(f"  v_add_f32_dpp v{v}, v{v}, v{v} quad_perm:[2,3,0,1] row_mask:0xf bank_mask:0xf")
    e("  s_nop 1")
    e(f"  v_add_f32_dpp v{v}, v{v}, v{v} row_half_mirror row_mask:0xf bank_mask:0xf")

def reduce16(v):
    reduce8(v)
    e("  s_nop 1")
    e(f"  v_add_f32_dpp v{v}, v{v}, v{v} row_mirror row_mask:0xf bank_mask:0xf")

def gen_k1():
    name = "k1_kernel"
    kernel_begin(name)
    e("  s_cmp_ge_u32 s2, 256")
    e("  s_cbranch_scc1 k1_done")
    e(f"  s_load_dwordx2 s[4:5], s[0:1], {KA_X}")
    e(f"  s_load_dwordx4 s[8:11], s[0:1], {KA_WDRE}")
    e(f"  s_load_dwordx2 s[6:7], s[0:1], {KA_WS}")
    e("  s_and_b32 s12, s2, 7")
    e("  s_lshr_b32 s13, s2, 3")
    e("  s_and_b32 s14, s13, 3")
    e("  s_lshl_b32 s12, s12, 2")
    e("  s_add_u32 s12, s12, s14")
    e("  s_lshr_b32 s13, s13, 2")
    e("  v_lshrrev_b32 v1, 6, v0")
    e("  v_and_b32 v0, 63, v0")
    e("  v_readfirstlane_b32 s15, v1")
    e("  v_lshrrev_b32 v2, 3, v0")
    e("  v_and_b32 v3, 7, v0")
    e("  s_waitcnt lgkmcnt(0)")
    srd(16, 4, 5, 2048*512*2)
    e("  s_cmp_lt_u32 s13, 4")
    e("  s_cselect_b32 s20, s8, s10")
    e("  s_cselect_b32 s21, s9, s11")
    e(f"  s_mov_b32 s22, {512*512*2}")
    e("  s_mov_b32 s23, 0x00020000")
    srd(24, 6, 7, 4 << 20)
    e("  s_lshl_b32 s28, s12, 6")
    e("  s_lshl_b32 s29, s15, 3")
    e("  s_add_u32 s28, s28, s29")
    e("  v_add_u32 v4, s28, v2")
    e("  v_lshlrev_b32 v4, 10, v4")
    e("  v_lshl_add_u32 v4, v3, 4, v4")
    X = 32
    for j in range(8):
        e(f"  buffer_load_dwordx4 {vr(X+4*j,4)}, v4, s[16:19], 0 offen offset:{128*j}")
    e("  s_and_b32 s30, s13, 3")
    e("  s_lshl_b32 s30, s30, 7")
    for ii in range(2):
        e(f"  s_lshl_b32 s31, s15, 4")
        e(f"  s_add_u32 s31, s31, {8*ii}")
        e(f"  v_add_u32 v7, s31, v2")
        e(f"  v_lshrrev_b32 v8, 1, v7")
        e(f"  v_and_b32 v8, 7, v8")
        e(f"  v_xor_b32 v8, v8, v3")
        e(f"  v_add_u32 v7, s30, v7")
        e(f"  v_lshlrev_b32 v7, 10, v7")
        e(f"  v_lshl_add_u32 v{5+ii}, v8, 4, v7")
    e("  s_lshl_b32 s32, s15, 11")
    def wdma(kb):
        slot = kb % 4
        e(f"  s_mov_b32 s33, {128*kb}")
        for ii in range(2):
            e(f"  s_add_u32 m0, s32, {slot*16384 + ii*1024}")
            e("  s_nop 0")
            e(f"  buffer_load_dwordx4 v{5+ii}, s[20:23], s33 offen lds")
    for kb in range(4):
        wdma(kb)
    e("  s_mov_b32 s34, 0x3f803f80")
    for a in range(4):
        e(f"  v_mov_b32 v{8+a}, 0")
    e("  s_waitcnt vmcnt(8)")
    for i in range(32):
        e(f"  v_dot2_f32_bf16 v{8+i%4}, v{X+i}, s34, v{8+i%4}")
    e("  s_nop 3")
    e("  v_add_f32 v8, v8, v9")
    e("  v_add_f32 v10, v10, v11")
    e("  v_add_f32 v8, v8, v10")
    reduce8(8)
    e("  v_mul_f32 v8, 0x3b000000, v8")
    e("  v_cvt_pk_bf16_f32 v9, v8, v8")
    e("  v_lshlrev_b32 v9, 16, v9")
    e("  v_sub_f32 v10, 0, v9")
    e("  v_mov_b32 v11, v10")
    D = 64
    for a in range(4):
        e(f"  v_mov_b32 v{12+a}, 0")
    for i in range(32):
        e(f"  v_lshlrev_b32 v{D+2*i}, 16, v{X+i}")
        e(f"  v_and_b32 v{D+2*i+1}, 0xffff0000, v{X+i}")
        e(f"  v_pk_add_f32 {vr(D+2*i,2)}, {vr(D+2*i,2)}, v[10:11]")
        q = 12 + 2*(i % 2)
        e(f"  v_pk_fma_f32 {vr(q,2)}, {vr(D+2*i,2)}, {vr(D+2*i,2)}, {vr(q,2)}")
    e("  v_add_f32 v12, v12, v13")
    e("  v_add_f32 v14, v14, v15")
    e("  v_add_f32 v12, v12, v14")
    reduce8(12)
    e("  v_sub_f32 v13, v8, v9")
    e("  v_mul_f32 v13, v13, v13")
    e("  v_mul_f32 v12, 0x3b000000, v12")
    e("  v_sub_f32 v12, v12, v13")
    e("  v_max_f32 v12, 0, v12")
    e("  v_cvt_pk_bf16_f32 v12, v12, v12")
    e("  v_lshlrev_b32 v12, 16, v12")
    e("  v_add_f32 v12, 0x3727c5ac, v12")
    e("  v_cvt_pk_bf16_f32 v12, v12, v12")
    e("  v_lshlrev_b32 v12, 16, v12")
    e("  v_sqrt_f32 v12, v12")
    e("  s_nop 0")
    e("  v_cvt_pk_bf16_f32 v12, v12, v12")
    e("  v_lshlrev_b32 v12, 16, v12")
    e("  v_rcp_f32 v12, v12")
    e("  s_nop 0")
    e("  v_mov_b32 v13, v12")
    for i in range(32):
        e(f"  v_cvt_pk_bf16_f32 v{X+i}, v{D+2*i}, v{D+2*i+1}")
        e(f"  v_lshlrev_b32 v{D+2*i}, 16, v{X+i}")
        e(f"  v_and_b32 v{D+2*i+1}, 0xffff0000, v{X+i}")
        e(f"  v_pk_mul_f32 {vr(D+2*i,2)}, {vr(D+2*i,2)}, v[12:13]")
        e(f"  v_cvt_pk_bf16_f32 v{X+i}, v{D+2*i}, v{D+2*i+1}")
    e("  v_add_u32 v14, s29, v2")
    e("  v_lshrrev_b32 v15, 1, v14")
    e("  v_and_b32 v15, 7, v15")
    e("  v_xor_b32 v15, v15, v3")
    e("  v_lshlrev_b32 v14, 7, v14")
    e("  v_lshl_add_u32 v14, v15, 4, v14")
    e("  v_add_u32 v14, 0x10000, v14")
    for j in range(8):
        e(f"  ds_write_b128 v14, {vr(X+4*j,4)} offset:{8192*j}")
    e("  s_and_b32 s35, s15, 1")
    e("  s_lshr_b32 s36, s15, 1")
    e("  v_and_b32 v16, 31, v0")
    e("  v_lshrrev_b32 v17, 5, v0")
    def fragaddr(dst, sblk, base):
        e(f"  s_lshl_b32 s37, s{sblk}, 5")
        e(f"  v_add_u32 v18, s37, v16")
        e(f"  v_lshrrev_b32 v19, 1, v18")
        e(f"  v_and_b32 v19, 7, v19")
        e(f"  v_xor_b32 v19, v19, v17")
        e(f"  v_lshlrev_b32 v18, 7, v18")
        e(f"  v_lshl_add_u32 v{dst}, v19, 4, v18")
        if base:
            e(f"  v_add_u32 v{dst}, {base}, v{dst}")
        for kk in range(1, 4):
            e(f"  v_xor_b32 v{dst+kk}, {32*kk}, v{dst}")
    fragaddr(20, 35, 0x10000)
    fragaddr(24, 36, 0)
    ACC = 128
    for i in range(16):
        e(f"  v_mov_b32 v{ACC+i}, 0")
    FA, FB = 64, 80
    waits = [6, 4, 4, 4, 4, 4, 2, 0]
    for kb in range(8):
        e(f"  s_waitcnt vmcnt({waits[kb]}) lgkmcnt(0)")
        e("  s_barrier")
        if 1 <= kb <= 4:
            wdma(kb + 3)
        slot = kb % 4
        for kk in range(4):
            e(f"  ds_read_b128 {vr(FA+4*kk,4)}, v{20+kk} offset:{8192*kb}")
            e(f"  ds_read_b128 {vr(FB+4*kk,4)}, v{24+kk} offset:{16384*slot}")
        for kk in range(4):
            e(f"  s_waitcnt lgkmcnt({6-2*kk})")
            e(f"  v_mfma_f32_32x32x16_bf16 {vr(ACC,16)}, {vr(FA+4*kk,4)}, {vr(FB+4*kk,4)}, {vr(ACC,16)}")
    e("  s_lshl_b32 s37, s13, 1")
    e("  s_lshr_b32 s38, s36, 1")
    e("  s_add_u32 s37, s37, s38")
    e("  s_lshl_b32 s37, s37, 5")
    e("  s_add_u32 s37, s37, s12")
    e("  s_lshl_b32 s37, s37, 13")
    e("  s_and_b32 s38, s36, 1")
    e("  s_lshl_b32 s38, s38, 5")
    e("  v_add_u32 v18, s38, v16")
    e("  v_lshrrev_b32 v19, 1, v18")
    e("  v_and_b32 v19, 7, v19")
    e("  s_lshl_b32 s38, s35, 2")
    e("  v_add_u32 v28, s38, v17")
    e("  v_xor_b32 v29, v28, v19")
    e("  v_lshlrev_b32 v18, 7, v18")
    e("  v_lshl_add_u32 v30, v29, 4, v18")
    e("  v_xor_b32 v31, 32, v30")
    e("  s_nop 7")
    P = 96
    for g in range(4):
        e(f"  v_cvt_pk_bf16_f32 v{P+2*g}, v{ACC+4*g}, v{ACC+4*g+1}")
        e(f"  v_cvt_pk_bf16_f32 v{P+2*g+1}, v{ACC+4*g+2}, v{ACC+4*g+3}")
    e("  s_nop 1")
    for p in range(2):
        e(f"  v_permlane32_swap_b32 v{P+4*p}, v{P+4*p+2}")
        e(f"  v_permlane32_swap_b32 v{P+4*p+1}, v{P+4*p+3}")
    e(f"  buffer_store_dwordx4 {vr(P,4)}, v30, s[24:27], s37 offen")
    e(f"  buffer_store_dwordx4 {vr(P+4,4)}, v31, s[24:27], s37 offen")
    lab("k1_done")
    e("  s_endpgm")
    kernel_desc(name, 144)

def gen_k2():
    name = "k2_kernel"
    kernel_begin(name)
    e("  s_cmp_ge_u32 s2, 256")
    e("  s_cbranch_scc1 k2_done")
    e(f"  s_load_dwordx4 s[8:11], s[0:1], {KA_WSRE}")
    e(f"  s_load_dwordx2 s[6:7], s[0:1], {KA_WS}")
    e("  s_and_b32 s12, s2, 7")
    e("  s_lshr_b32 s13, s2, 3")
    e("  s_lshr_b32 s14, s12, 2")
    e("  s_and_b32 s12, s12, 3")
    e("  s_lshl_b32 s12, s12, 2")
    e("  s_lshr_b32 s15, s13, 3")
    e("  s_add_u32 s12, s12, s15")
    e("  s_and_b32 s13, s13, 7")
    e("  v_lshrrev_b32 v1, 6, v0")
    e("  v_and_b32 v0, 63, v0")
    e("  v_readfirstlane_b32 s15, v1")
    e("  v_lshrrev_b32 v2, 3, v0")
    e("  v_and_b32 v3, 7, v0")
    e("  s_waitcnt lgkmcnt(0)")
    e("  s_cmp_eq_u32 s14, 0")
    e("  s_cselect_b32 s16, s8, s10")
    e("  s_cselect_b32 s17, s9, s11")
    e(f"  s_mov_b32 s18, {2048*2048*2}")
    e("  s_mov_b32 s19, 0x00020000")
    srd(20, 6, 7, 8 << 20)
    for ii in range(4):
        e(f"  s_lshl_b32 s24, s15, 5")
        e(f"  s_add_u32 s24, s24, {8*ii}")
        e(f"  v_add_u32 v10, s24, v2")
        e(f"  v_lshrrev_b32 v11, 1, v10")
        e(f"  v_and_b32 v11, 7, v11")
        e(f"  v_xor_b32 v11, v11, v3")
        e(f"  s_lshl_b32 s24, s12, 7")
        e(f"  v_add_u32 v10, s24, v10")
        e(f"  v_lshlrev_b32 v10, 12, v10")
        e(f"  v_lshl_add_u32 v{4+ii}, v11, 4, v10")
    e("  s_lshl_b32 s24, s15, 11")
    e("  v_lshlrev_b32 v8, 4, v0")
    e("  v_add_u32 v8, s24, v8")
    e("  v_add_u32 v9, 1024, v8")
    e("  s_mov_b32 s25, 0")
    e("  s_lshl_b32 s26, s14, 3")
    e("  s_add_u32 s26, s26, s13")
    e("  s_lshl_b32 s26, s26, 18")
    e("  s_lshl_b32 s27, s15, 12")
    e("  s_lshl_b32 s28, s15, 11")
    e("  s_add_u32 s28, s28, 0x10000")
    def dma(slot):
        for ii in range(4):
            e(f"  s_add_u32 m0, s27, {slot*16384 + ii*1024}")
            e("  s_nop 0")
            e(f"  buffer_load_dwordx4 v{4+ii}, s[16:19], s25 offen lds")
        for ii in range(2):
            e(f"  s_add_u32 m0, s28, {slot*8192 + ii*1024}")
            e("  s_nop 0")
            e(f"  buffer_load_dwordx4 v{8+ii}, s[20:23], s26 offen lds")
        e("  s_add_u32 s25, s25, 128")
        e("  s_add_u32 s26, s26, 8192")
    for st in range(3):
        dma(st)
    e("  v_and_b32 v16, 31, v0")
    e("  v_lshrrev_b32 v17, 5, v0")
    e("  s_lshl_b32 s24, s15, 5")
    e("  v_add_u32 v18, s24, v16")
    e("  v_lshrrev_b32 v19, 1, v18")
    e("  v_and_b32 v19, 7, v19")
    e("  v_xor_b32 v19, v19, v17")
    e("  v_lshlrev_b32 v18, 7, v18")
    e("  v_lshl_add_u32 v20, v19, 4, v18")
    for kk in range(1, 4):
        e(f"  v_xor_b32 v{20+kk}, {32*kk}, v20")
    e("  v_lshrrev_b32 v19, 1, v16")
    e("  v_and_b32 v19, 7, v19")
    e("  v_xor_b32 v19, v19, v17")
    e("  v_lshlrev_b32 v18, 7, v16")
    e("  v_lshl_add_u32 v24, v19, 4, v18")
    e("  v_add_u32 v24, 0x10000, v24")
    for kk in range(1, 4):
        e(f"  v_xor_b32 v{24+kk}, {32*kk}, v24")
    ACC = 32
    for i in range(32):
        e(f"  v_mov_b32 v{ACC+i}, 0")
    FW, FY = 64, 80
    def body(slot, wait, issue):
        e(f"  s_waitcnt vmcnt({wait})")
        e("  s_barrier")
        if issue:
            dma((slot + 3) % 4)
        for kk in range(4):
            e(f"  ds_read_b128 {vr(FW+4*kk,4)}, v{20+kk} offset:{16384*slot}")
            e(f"  ds_read_b128 {vr(FY+8*kk,4)}, v{24+kk} offset:{8192*slot}")
            e(f"  ds_read_b128 {vr(FY+8*kk+4,4)}, v{24+kk} offset:{8192*slot+4096}")
        for kk in range(4):
            e(f"  s_waitcnt lgkmcnt({9-3*kk})")
            e(f"  v_mfma_f32_32x32x16_bf16 {vr(ACC,16)}, {vr(FY+8*kk,4)}, {vr(FW+4*kk,4)}, {vr(ACC,16)}")
            e(f"  v_mfma_f32_32x32x16_bf16 {vr(ACC+16,16)}, {vr(FY+8*kk+4,4)}, {vr(FW+4*kk,4)}, {vr(ACC+16,16)}")
    e("  s_mov_b32 s29, 0")
    lab("k2_loop")
    for slot in range(4):
        body(slot, 12, True)
    e("  s_add_u32 s29, s29, 1")
    e("  s_cmp_lt_u32 s29, 7")
    e("  s_cbranch_scc1 k2_loop")
    body(0, 12, True)
    body(1, 12, False)
    body(2, 6, False)
    body(3, 0, False)
    e("  s_lshl_b32 s24, s14, 21")
    e(f"  s_add_u32 s24, s24, {WS_Y}")
    e("  s_lshl_b32 s30, s13, 7")
    e("  s_add_u32 s24, s24, s30")
    e("  s_lshl_b32 s30, s12, 7")
    e("  s_lshl_b32 s31, s15, 5")
    e("  s_add_u32 s30, s30, s31")
    e("  v_add_u32 v18, s30, v16")
    e("  v_lshlrev_b32 v18, 10, v18")
    e("  v_lshl_add_u32 v18, v17, 4, v18")
    e("  s_nop 7")
    P = 64
    for g in range(8):
        e(f"  v_cvt_pk_bf16_f32 v{P+2*g}, v{ACC+4*g}, v{ACC+4*g+1}")
        e(f"  v_cvt_pk_bf16_f32 v{P+2*g+1}, v{ACC+4*g+2}, v{ACC+4*g+3}")
    e("  s_nop 1")
    for p in range(4):
        e(f"  v_permlane32_swap_b32 v{P+4*p}, v{P+4*p+2}")
        e(f"  v_permlane32_swap_b32 v{P+4*p+1}, v{P+4*p+3}")
    for p in range(4):
        e(f"  buffer_store_dwordx4 {vr(P+4*p,4)}, v18, s[20:23], s24 offen offset:{32*p}")
    lab("k2_done")
    e("  s_endpgm")
    kernel_desc(name, 112)

def gen_t1():
    name = "t1_kernel"
    kernel_begin(name)
    e("  s_cmp_ge_u32 s2, 256")
    e("  s_cbranch_scc1 t1_done")
    e(f"  s_load_dwordx2 s[4:5], s[0:1], {KA_X}")
    e(f"  s_load_dwordx2 s[6:7], s[0:1], {KA_WS}")
    e(f"  s_load_dwordx2 s[8:9], s[0:1], {KA_WR}")
    e(f"  s_load_dwordx2 s[10:11], s[0:1], {KA_OUT}")
    e("  v_lshrrev_b32 v1, 4, v0")
    e("  v_and_b32 v2, 15, v0")
    e("  s_lshl_b32 s3, s2, 3")
    e("  v_add_u32 v1, s3, v1")
    e("  v_lshlrev_b32 v3, 10, v1")
    e("  v_lshl_add_u32 v3, v2, 4, v3")
    e("  v_lshlrev_b32 v4, 4, v2")
    e("  s_waitcnt lgkmcnt(0)")
    srd(12, 4, 5, 2 << 20)
    srd(16, 6, 7, 9 << 20)
    srd(20, 8, 9, 1024)
    srd(24, 10, 11, 2 << 20)
    e(f"  s_mov_b32 s28, {WS_Y}")
    e(f"  s_mov_b32 s29, {WS_Y + (2<<20)}")
    YR, YI, XX, WR = 16, 32, 48, 64
    for j in range(4):
        e(f"  buffer_load_dwordx4 {vr(YR+4*j,4)}, v3, s[16:19], s28 offen offset:{256*j}")
        e(f"  buffer_load_dwordx4 {vr(YI+4*j,4)}, v3, s[16:19], s29 offen offset:{256*j}")
        e(f"  buffer_load_dwordx4 {vr(XX+4*j,4)}, v3, s[12:15], 0 offen offset:{256*j}")
    for j in range(4):
        e(f"  buffer_load_dwordx4 {vr(WR+4*j,4)}, v4, s[20:23], 0 offen offset:{256*j}")
    H = 80
    T = 112
    e("  v_mov_b32 v14, 0")
    e("  v_mov_b32 v15, 0")
    for j in range(4):
        e(f"  s_waitcnt vmcnt({4 + 3*(3-j)})")
        for q in range(4):
            i = 4*j + q
            e(f"  v_lshlrev_b32 v{T}, 16, v{YR+i}")
            e(f"  v_and_b32 v{T+1}, 0xffff0000, v{YR+i}")
            e(f"  v_lshlrev_b32 v{T+2}, 16, v{YI+i}")
            e(f"  v_and_b32 v{T+3}, 0xffff0000, v{YI+i}")
            e(f"  v_pk_add_f32 {vr(T,2)}, {vr(T,2)}, {vr(T+2,2)} neg_lo:[0,1] neg_hi:[0,1]")
            e(f"  v_cvt_pk_bf16_f32 v{T}, v{T}, v{T+1}")
            e(f"  v_and_b32 v{T+1}, 0xffff0000, v{T}")
            e(f"  v_lshlrev_b32 v{T}, 16, v{T}")
            e(f"  v_lshlrev_b32 v{T+2}, 16, v{XX+i}")
            e(f"  v_and_b32 v{T+3}, 0xffff0000, v{XX+i}")
            e(f"  v_pk_add_f32 {vr(T,2)}, {vr(T,2)}, {vr(T+2,2)}")
            e(f"  v_cvt_pk_bf16_f32 v{T}, v{T}, v{T+1}")
            e(f"  v_lshlrev_b32 v{H+2*i}, 16, v{T}")
            e(f"  v_and_b32 v{H+2*i+1}, 0xffff0000, v{T}")
            e(f"  v_pk_add_f32 v[14:15], v[14:15], {vr(H+2*i,2)}")
    e("  v_add_f32 v5, v14, v15")
    reduce16(5)
    e("  v_mul_f32 v5, 0x3b000000, v5")
    e("  v_cvt_pk_bf16_f32 v6, v5, v5")
    e("  v_lshlrev_b32 v6, 16, v6")
    e("  v_sub_f32 v8, 0, v6")
    e("  v_mov_b32 v9, v8")
    e("  v_mov_b32 v10, 0")
    e("  v_mov_b32 v11, 0")
    D = 116
    for i in range(16):
        e(f"  v_pk_add_f32 {vr(D+2*i,2)}, {vr(H+2*i,2)}, v[8:9]")
        e(f"  v_pk_fma_f32 v[10:11], {vr(D+2*i,2)}, {vr(D+2*i,2)}, v[10:11]")
    e("  v_add_f32 v10, v10, v11")
    reduce16(10)
    e("  v_sub_f32 v11, v5, v6")
    e("  v_mul_f32 v11, v11, v11")
    e("  v_mul_f32 v10, 0x3b000000, v10")
    e("  v_sub_f32 v10, v10, v11")
    e("  v_max_f32 v10, 0, v10")
    e("  v_cvt_pk_bf16_f32 v10, v10, v10")
    e("  v_lshlrev_b32 v10, 16, v10")
    e("  v_add_f32 v10, 0x3727c5ac, v10")
    e("  v_cvt_pk_bf16_f32 v10, v10, v10")
    e("  v_lshlrev_b32 v10, 16, v10")
    e("  v_sqrt_f32 v10, v10")
    e("  s_nop 0")
    e("  v_cvt_pk_bf16_f32 v10, v10, v10")
    e("  v_lshlrev_b32 v10, 16, v10")
    e("  v_rcp_f32 v10, v10")
    e("  s_nop 0")
    e("  v_mov_b32 v11, v10")
    e("  v_mov_b32 v12, 0")
    e("  s_waitcnt vmcnt(0)")
    O = 16
    for i in range(16):
        e(f"  v_cvt_pk_bf16_f32 v{T}, v{D+2*i}, v{D+2*i+1}")
        e(f"  v_lshlrev_b32 v{D+2*i}, 16, v{T}")
        e(f"  v_and_b32 v{D+2*i+1}, 0xffff0000, v{T}")
        e(f"  v_pk_mul_f32 {vr(D+2*i,2)}, {vr(D+2*i,2)}, v[10:11]")
        e(f"  v_cvt_pk_bf16_f32 v{T}, v{D+2*i}, v{D+2*i+1}")
        e(f"  v_dot2_f32_bf16 v12, v{T}, v{WR+i}, v12")
        e(f"  v_lshlrev_b32 v{D+2*i}, 16, v{T}")
        e(f"  v_and_b32 v{D+2*i+1}, 0xffff0000, v{T}")
        e(f"  v_pk_add_f32 {vr(D+2*i,2)}, {vr(D+2*i,2)}, {vr(H+2*i,2)}")
        e(f"  v_cvt_pk_bf16_f32 v{O+i}, v{D+2*i}, v{D+2*i+1}")
    for j in range(4):
        e(f"  buffer_store_dwordx4 {vr(O+4*j,4)}, v3, s[24:27], 0 offen offset:{256*j}")
    e("  s_nop 3")
    reduce16(12)
    e("  v_cvt_pk_bf16_f32 v12, v12, v12")
    e("  v_lshlrev_b32 v12, 16, v12")
    e("  v_ashrrev_i32 v13, 31, v12")
    e("  v_or_b32 v13, 0x80000000, v13")
    e("  v_xor_b32 v12, v12, v13")
    e("  v_and_b32 v12, 0xffff0000, v12")
    e("  v_sub_u32 v13, 0xffff, v1")
    e("  v_or_b32 v12, v12, v13")
    e("  v_cmp_eq_u32 vcc, 0, v2")
    e("  s_and_saveexec_b64 s[30:31], vcc")
    e("  v_lshlrev_b32 v13, 2, v1")
    e(f"  s_mov_b32 s28, {WS_KEY}")
    e("  buffer_store_dword v12, v13, s[16:19], s28 offen")
    e("  v_lshlrev_b32 v13, 3, v1")
    e("  v_mov_b32 v7, v10")
    e(f"  s_mov_b32 s28, {WS_STAT}")
    e("  buffer_store_dwordx2 v[6:7], v13, s[16:19], s28 offen")
    lab("t1_done")
    e("  s_endpgm")
    kernel_desc(name, 148)

def recompute(YR, YI, XX, nd, NEGM, RINV, HOUT, XNOUT, T):
    for i in range(nd):
        e(f"  v_lshlrev_b32 v{T}, 16, v{YR+i}")
        e(f"  v_and_b32 v{T+1}, 0xffff0000, v{YR+i}")
        e(f"  v_lshlrev_b32 v{T+2}, 16, v{YI+i}")
        e(f"  v_and_b32 v{T+3}, 0xffff0000, v{YI+i}")
        e(f"  v_pk_add_f32 {vr(T,2)}, {vr(T,2)}, {vr(T+2,2)} neg_lo:[0,1] neg_hi:[0,1]")
        e(f"  v_cvt_pk_bf16_f32 v{T}, v{T}, v{T+1}")
        e(f"  v_and_b32 v{T+1}, 0xffff0000, v{T}")
        e(f"  v_lshlrev_b32 v{T}, 16, v{T}")
        e(f"  v_lshlrev_b32 v{T+2}, 16, v{XX+i}")
        e(f"  v_and_b32 v{T+3}, 0xffff0000, v{XX+i}")
        e(f"  v_pk_add_f32 {vr(T,2)}, {vr(T,2)}, {vr(T+2,2)}")
        e(f"  v_cvt_pk_bf16_f32 v{T}, v{T}, v{T+1}")
        e(f"  v_lshlrev_b32 v{HOUT+2*i}, 16, v{T}")
        e(f"  v_and_b32 v{HOUT+2*i+1}, 0xffff0000, v{T}")
        e(f"  v_pk_add_f32 {vr(T,2)}, {vr(HOUT+2*i,2)}, {vr(NEGM,2)}")
        e(f"  v_cvt_pk_bf16_f32 v{T}, v{T}, v{T+1}")
        e(f"  v_and_b32 v{T+1}, 0xffff0000, v{T}")
        e(f"  v_lshlrev_b32 v{T}, 16, v{T}")
        e(f"  v_pk_mul_f32 {vr(T,2)}, {vr(T,2)}, {vr(RINV,2)}")
        e(f"  v_cvt_pk_bf16_f32 v{XNOUT+i}, v{T}, v{T+1}")

XS_STRIDE = 1040
def gen_t2():
    name = "t2_kernel"
    kernel_begin(name)
    LDS_G, LDS_U, LDS_XS, LDS_C = 0, 8192, 16384, 16384 + 8*XS_STRIDE
    e("  s_cmp_ge_u32 s2, 224")
    e("  s_cbranch_scc1 t2_done")
    e(f"  s_load_dwordx2 s[4:5], s[0:1], {KA_X}")
    e(f"  s_load_dwordx2 s[6:7], s[0:1], {KA_WS}")
    e(f"  s_load_dwordx4 s[8:11], s[0:1], {KA_WG}")
    e("  s_and_b32 s3, s2, 7")
    e("  s_mul_i32 s3, s3, 28")
    e("  s_lshr_b32 s12, s2, 3")
    e("  s_add_u32 s3, s3, s12")
    e("  v_mov_b32 v40, v0")
    e("  v_lshrrev_b32 v1, 6, v0")
    e("  v_and_b32 v0, 63, v0")
    e("  v_readfirstlane_b32 s13, v1")
    e("  s_waitcnt lgkmcnt(0)")
    srd(16, 4, 5, 2 << 20)
    srd(20, 6, 7, 9 << 20)
    srd(24, 8, 9, 512*1792*2)
    srd(28, 10, 11, 512*1792*2)
    e("  v_lshlrev_b32 v2, 5, v40")
    e(f"  s_mov_b32 s14, {WS_KEY}")
    e("  buffer_load_dwordx4 v[8:11], v2, s[20:23], s14 offen")
    e("  buffer_load_dwordx4 v[12:15], v2, s[20:23], s14 offen offset:16")
    e("  s_lshl_b32 s15, s3, 4")
    e("  s_movk_i32 s32, 3584")
    for ii in range(2):
        e(f"  s_lshl_b32 s33, s13, 7")
        e(f"  s_add_u32 s33, s33, {64*ii}")
        e(f"  v_add_u32 v3, s33, v0")
        e(f"  v_mul_lo_u32 v3, v3, s32")
        e(f"  s_lshl_b32 s34, s13, 11")
        e(f"  s_add_u32 m0, s34, {LDS_G + 1024*ii}")
        e("  s_nop 0")
        e(f"  buffer_load_dwordx4 v3, s[24:27], s15 offen lds")
        e(f"  s_add_u32 m0, s34, {LDS_U + 1024*ii}")
        e("  s_nop 0")
        e(f"  buffer_load_dwordx4 v3, s[28:31], s15 offen lds")
    e("  s_waitcnt vmcnt(4)")
    e("  v_mov_b32 v20, 0")
    for rnd in range(8):
        e("  v_max3_u32 v16, v8, v9, v10")
        e("  v_max3_u32 v17, v11, v12, v13")
        e("  v_max3_u32 v16, v16, v14, v15")
        e("  v_max_u32 v16, v16, v17")
        e("  s_nop 1")
        e("  v_max_u32_dpp v16, v16, v16 quad_perm:[1,0,3,2] row_mask:0xf bank_mask:0xf")
        e("  s_nop 1")
        e("  v_max_u32_dpp v16, v16, v16 quad_perm:[2,3,0,1] row_mask:0xf bank_mask:0xf")
        e("  s_nop 1")
        e("  v_max_u32_dpp v16, v16, v16 row_half_mirror row_mask:0xf bank_mask:0xf")
        e("  s_nop 1")
        e("  v_max_u32_dpp v16, v16, v16 row_mirror row_mask:0xf bank_mask:0xf")
        e("  s_nop 1")
        e("  v_readlane_b32 s36, v16, 0")
        e("  v_readlane_b32 s37, v16, 16")
        e("  v_readlane_b32 s38, v16, 32")
        e("  v_readlane_b32 s39, v16, 48")
        e("  s_max_u32 s36, s36, s37")
        e("  s_max_u32 s38, s38, s39")
        e("  s_max_u32 s36, s36, s38")
        e(f"  v_writelane_b32 v20, s36, {rnd}")
        if rnd < 7:
            for k in range(8):
                e(f"  v_cmp_ne_u32 vcc, s36, v{8+k}")
                e("  s_nop 1")
                e(f"  v_cndmask_b32 v{8+k}, 0, v{8+k}, vcc")
    e("  s_lshl_b32 s33, s13, 5")
    e(f"  s_add_u32 s33, s33, {LDS_C}")
    e("  v_lshlrev_b32 v3, 2, v0")
    e("  v_add_u32 v3, s33, v3")
    e("  v_cmp_gt_u32 vcc, 8, v0")
    e("  s_and_saveexec_b64 s[40:41], vcc")
    e("  ds_write_b32 v3, v20")
    e("  s_mov_b64 exec, s[40:41]")
    e("  s_waitcnt lgkmcnt(0)")
    e("  s_barrier")
    e("  v_and_b32 v3, 31, v0")
    e("  v_lshlrev_b32 v3, 2, v3")
    e(f"  ds_read_b32 v21, v3 offset:{LDS_C}")
    e("  v_mov_b32 v22, 0")
    e("  s_waitcnt lgkmcnt(0)")
    for i in range(32):
        e(f"  v_readlane_b32 s36, v21, {i}")
        e("  s_nop 1")
        e("  v_cmp_gt_u32 vcc, s36, v21")
        e("  s_nop 1")
        e("  v_addc_co_u32 v22, vcc, 0, v22, vcc")
    e("  v_cmp_gt_u32 vcc, 8, v22")
    e("  v_cmp_gt_u32 s[42:43], 32, v0")
    e("  s_and_b64 vcc, vcc, s[42:43]")
    e("  v_lshlrev_b32 v3, 2, v22")
    e("  s_and_saveexec_b64 s[40:41], vcc")
    e(f"  ds_write_b32 v3, v21 offset:{LDS_C+128}")
    e("  s_mov_b64 exec, s[40:41]")
    e("  s_waitcnt lgkmcnt(0)")
    e("  s_barrier")
    e("  v_lshrrev_b32 v4, 5, v40")
    e("  v_and_b32 v5, 31, v40")
    e("  v_lshlrev_b32 v3, 2, v4")
    e(f"  ds_read_b32 v6, v3 offset:{LDS_C+128}")
    e("  s_waitcnt lgkmcnt(0)")
    e("  s_cmp_lg_u32 s3, 0")
    e("  s_cbranch_scc1 t2_nopub")
    e("  v_cmp_eq_u32 vcc, 0, v5")
    e("  s_and_saveexec_b64 s[40:41], vcc")
    e(f"  s_mov_b32 s14, {WS_IDX}")
    e("  buffer_store_dword v6, v3, s[20:23], s14 offen")
    e("  s_mov_b64 exec, s[40:41]")
    lab("t2_nopub")
    e("  v_and_b32 v6, 0xffff, v6")
    e("  v_sub_u32 v6, 0xffff, v6")
    e("  v_lshlrev_b32 v7, 10, v6")
    e("  v_lshl_add_u32 v7, v5, 4, v7")
    e(f"  s_mov_b32 s14, {WS_Y}")
    e(f"  s_mov_b32 s15, {WS_Y + (2<<20)}")
    YR, YI, XX = 24, 32, 44
    for j in range(2):
        e(f"  buffer_load_dwordx4 {vr(YR+4*j,4)}, v7, s[20:23], s14 offen offset:{512*j}")
        e(f"  buffer_load_dwordx4 {vr(YI+4*j,4)}, v7, s[20:23], s15 offen offset:{512*j}")
        e(f"  buffer_load_dwordx4 {vr(XX+4*j,4)}, v7, s[16:19], 0 offen offset:{512*j}")
    e("  v_lshlrev_b32 v3, 3, v6")
    e(f"  s_mov_b32 s14, {WS_STAT}")
    e("  buffer_load_dwordx2 v[52:53], v3, s[20:23], s14 offen")
    e("  s_waitcnt vmcnt(0)")
    e("  v_sub_f32 v54, 0, v52")
    e("  v_mov_b32 v55, v54")
    e("  v_mov_b32 v52, v53")
    recompute(YR, YI, XX, 8, 54, 52, 64, 80, 56)
    e(f"  v_mul_u32_u24 v3, {XS_STRIDE}, v4")
    e("  v_lshl_add_u32 v3, v5, 4, v3")
    e(f"  ds_write_b128 v3, v[80:83] offset:{LDS_XS}")
    e(f"  ds_write_b128 v3, v[84:87] offset:{LDS_XS+512}")
    e("  s_waitcnt lgkmcnt(0)")
    e("  s_barrier")
    e("  s_cmp_lg_u32 s13, 0")
    e("  s_cbranch_scc1 t2_done")
    e("  v_and_b32 v3, 7, v0")
    e(f"  v_mul_u32_u24 v3, {XS_STRIDE}, v3")
    e("  v_lshrrev_b32 v4, 4, v0")
    e("  v_lshl_add_u32 v3, v4, 4, v3")
    e("  v_and_b32 v5, 15, v0")
    e("  v_lshrrev_b32 v5, 2, v5")
    e("  v_lshl_add_u32 v5, v4, 3, v5")
    e("  v_lshlrev_b32 v5, 4, v5")
    e("  v_and_b32 v6, 1, v0")
    e("  v_lshl_add_u32 v5, v6, 3, v5")
    e("  v_and_b32 v6, 2, v0")
    e("  v_lshl_add_u32 v5, v6, 12, v5")
    for i in range(4):
        e(f"  v_mov_b32 v{8+i}, 0")
    FA, FB = 64, 128
    for st in range(16):
        e(f"  ds_read_b128 {vr(FA+4*st,4)}, v3 offset:{LDS_XS + 64*st}")
        e(f"  ds_read_b64_tr_b16 {vr(FB+4*st,2)}, v5 offset:{512*st}")
        e(f"  ds_read_b64_tr_b16 {vr(FB+4*st+2,2)}, v5 offset:{512*st+64}")
        if st % 4 == 3:
            e("  s_waitcnt lgkmcnt(0)")
            for s2 in range(st-3, st+1):
                e(f"  v_mfma_f32_16x16x32_bf16 v[8:11], {vr(FA+4*s2,4)}, {vr(FB+4*s2,4)}, v[8:11]")
    e("  s_nop 15")
    for i in range(4):
        e(f"  v_cvt_pk_bf16_f32 v{8+i}, v{8+i}, v{8+i}")
        e(f"  v_lshlrev_b32 v{8+i}, 16, v{8+i}")
    e("  s_nop 1")
    for i in range(4):
        e(f"  v_mov_b32_dpp v{12+i}, v{8+i} row_ror:8 row_mask:0xf bank_mask:0xf")
    for i in range(4):
        e(f"  v_mul_f32 v16, 0xbfb8aa3b, v{8+i}")
        e("  v_exp_f32 v16, v16")
        e("  s_nop 0")
        e("  v_add_f32 v16, 1.0, v16")
        e("  v_rcp_f32 v16, v16")
        e("  s_nop 0")
        e(f"  v_mul_f32 v16, v{8+i}, v16")
        e("  v_cvt_pk_bf16_f32 v16, v16, v16")
        e("  v_lshlrev_b32 v16, 16, v16")
        e(f"  v_mul_f32 v16, v16, v{12+i}")
        e(f"  v_cvt_pk_bf16_f32 v{20+i}, v16, v16")
    e("  v_and_b32 v5, 15, v0")
    e("  v_cmp_gt_u32 vcc, 8, v5")
    e("  v_cmp_gt_u32 s[42:43], 32, v0")
    e("  s_and_b64 vcc, vcc, s[42:43]")
    e("  s_and_saveexec_b64 s[40:41], vcc")
    e("  v_lshlrev_b32 v4, 2, v4")
    e("  v_mul_u32_u24 v4, 3584, v4")
    e("  v_lshl_add_u32 v4, v5, 1, v4")
    e("  s_lshl_b32 s15, s3, 4")
    e(f"  s_add_u32 s15, s15, {WS_GU}")
    for i in range(4):
        e(f"  buffer_store_short v{20+i}, v4, s[20:23], s15 offen offset:{3584*i if 3584*i < 4096 else 0}") if False else None
    for i in range(4):
        e(f"  buffer_store_short v{20+i}, v4, s[20:23], s15 offen")
        if i < 3:
            e("  v_add_u32 v4, 3584, v4")
    lab("t2_done")
    e("  s_endpgm")
    kernel_desc(name, 192)

def gen_t3():
    name = "t3_kernel"
    kernel_begin(name)
    LDS_W, LDS_R = 0, 28672
    e("  s_cmp_ge_u32 s2, 64")
    e("  s_cbranch_scc1 t3_done")
    e(f"  s_load_dwordx2 s[4:5], s[0:1], {KA_X}")
    e(f"  s_load_dwordx2 s[6:7], s[0:1], {KA_WS}")
    e(f"  s_load_dwordx4 s[8:11], s[0:1], {KA_WDN}")
    e("  s_and_b32 s3, s2, 7")
    e("  s_lshl_b32 s3, s3, 3")
    e("  s_lshr_b32 s12, s2, 3")
    e("  s_add_u32 s3, s3, s12")
    e("  v_lshrrev_b32 v1, 6, v0")
    e("  v_and_b32 v0, 63, v0")
    e("  v_readfirstlane_b32 s13, v1")
    e("  s_waitcnt lgkmcnt(0)")
    srd(16, 4, 5, 2 << 20)
    srd(20, 6, 7, 9 << 20)
    srd(24, 8, 9, 1792*512*2)
    srd(28, 10, 11, 2 << 20)
    e("  s_lshl_b32 s15, s3, 4")
    e("  s_mul_i32 s33, s13, 448")
    e("  v_add_u32 v3, s33, v0")
    e("  v_lshlrev_b32 v3, 10, v3")
    e("  s_mul_i32 s34, s13, 7168")
    for i in range(7):
        e(f"  s_add_u32 m0, s34, {LDS_W + 1024*i}")
        e("  s_nop 0")
        e(f"  buffer_load_dwordx4 v3, s[24:27], s15 offen lds")
        if i < 6:
            e("  v_add_u32 v3, 0x10000, v3")
    e("  v_and_b32 v4, 7, v0")
    e("  v_mul_u32_u24 v4, 3584, v4")
    e("  v_lshrrev_b32 v5, 4, v0")
    e("  v_lshl_add_u32 v4, v5, 4, v4")
    e("  s_mul_i32 s14, s13, 896")
    e(f"  s_add_u32 s14, s14, {WS_GU}")
    FA = 64
    for st in range(14):
        e(f"  buffer_load_dwordx4 {vr(FA+4*st,4)}, v4, s[20:23], s14 offen offset:{64*st}")
    e("  v_lshlrev_b32 v6, 4, v5")
    e(f"  s_mov_b32 s14, {WS_IDX}")
    e("  buffer_load_dwordx4 v[24:27], v6, s[20:23], s14 offen")
    e("  v_and_b32 v7, 15, v0")
    e("  v_lshrrev_b32 v7, 2, v7")
    e("  v_lshl_add_u32 v7, v5, 3, v7")
    e("  v_lshlrev_b32 v7, 4, v7")
    e("  v_and_b32 v6, 1, v0")
    e("  v_lshl_add_u32 v7, v6, 3, v7")
    e("  v_add_u32 v7, s34, v7")
    for i in range(4):
        e(f"  v_mov_b32 v{8+i}, 0")
    e("  s_waitcnt vmcnt(0)")
    FB = 128
    for st in range(14):
        e(f"  ds_read_b64_tr_b16 {vr(FB+4*st,2)}, v7 offset:{512*st}")
        e(f"  ds_read_b64_tr_b16 {vr(FB+4*st+2,2)}, v7 offset:{512*st+64}")
    e("  s_waitcnt lgkmcnt(0)")
    for st in range(14):
        e(f"  v_mfma_f32_16x16x32_bf16 v[8:11], {vr(FA+4*st,4)}, {vr(FB+4*st,4)}, v[8:11]")
    e("  s_nop 15")
    e("  v_lshlrev_b32 v3, 4, v0")
    e("  s_lshl_b32 s33, s13, 10")
    e("  v_add_u32 v3, s33, v3")
    e(f"  ds_write_b128 v3, v[8:11] offset:{LDS_R}")
    e("  s_waitcnt lgkmcnt(0)")
    e("  s_barrier")
    e("  s_cmp_lg_u32 s13, 0")
    e("  s_cbranch_scc1 t3_done")
    e("  v_lshlrev_b32 v3, 4, v0")
    for w in range(1, 4):
        e(f"  ds_read_b128 {vr(12+4*(w-1),4)}, v3 offset:{LDS_R+1024*w}")
    e("  v_and_b32 v6, 15, v0")
    e("  v_cmp_gt_u32 vcc, 8, v6")
    e("  v_cmp_gt_u32 s[42:43], 32, v0")
    e("  s_and_b64 vcc, vcc, s[42:43]")
    e("  s_and_saveexec_b64 s[40:41], vcc")
    e(f"  s_mov_b32 s36, {WS_Y}")
    e(f"  s_mov_b32 s37, {WS_Y + (2<<20)}")
    e(f"  s_mov_b32 s38, {WS_STAT}")
    for i in range(4):
        e(f"  v_and_b32 v{28+i}, 0xffff, v{24+i}")
        e(f"  v_sub_u32 v{28+i}, 0xffff, v{28+i}")
        e(f"  v_lshlrev_b32 v{32+i}, 3, v{28+i}")
        e(f"  v_lshlrev_b32 v{28+i}, 10, v{28+i}")
        e(f"  v_lshl_add_u32 v{28+i}, v6, 1, v{28+i}")
        e(f"  v_add_u32 v{28+i}, s15, v{28+i}")
        e(f"  buffer_load_ushort v{36+i}, v{28+i}, s[20:23], s36 offen")
        e(f"  buffer_load_ushort v{40+i}, v{28+i}, s[20:23], s37 offen")
        e(f"  buffer_load_ushort v{44+i}, v{28+i}, s[16:19], 0 offen")
        e(f"  buffer_load_dwordx2 {vr(48+2*i,2)}, v{32+i}, s[20:23], s38 offen")
    e("  s_waitcnt lgkmcnt(0)")
    for i in range(4):
        e(f"  v_add_f32 v{8+i}, v{8+i}, v{12+i}")
        e(f"  v_add_f32 v{16+i}, v{16+i}, v{20+i}")
        e(f"  v_add_f32 v{8+i}, v{8+i}, v{16+i}")
        e(f"  v_cvt_pk_bf16_f32 v{8+i}, v{8+i}, v{8+i}")
        e(f"  v_lshlrev_b32 v{8+i}, 16, v{8+i}")
        e(f"  v_and_b32 v60, 0xffff0000, v{24+i}")
        e("  v_ashrrev_i32 v61, 31, v60")
        e("  v_not_b32 v61, v61")
        e("  v_or_b32 v61, 0x80000000, v61")
        e("  v_xor_b32 v60, v60, v61")
        e("  v_and_b32 v60, 0xffff0000, v60")
        e("  v_mul_f32 v60, 0xbfb8aa3b, v60")
        e("  v_exp_f32 v60, v60")
        e("  s_nop 0")
        e("  v_add_f32 v60, 1.0, v60")
        e("  v_rcp_f32 v60, v60")
        e("  s_nop 0")
        e("  v_cvt_pk_bf16_f32 v60, v60, v60")
        e("  v_lshlrev_b32 v60, 16, v60")
        e(f"  v_mul_f32 v{8+i}, v{8+i}, v60")
        e(f"  v_cvt_pk_bf16_f32 v{8+i}, v{8+i}, v{8+i}")
        e(f"  v_lshlrev_b32 v{8+i}, 16, v{8+i}")
    e("  s_waitcnt vmcnt(0)")
    for i in range(4):
        e(f"  v_lshlrev_b32 v{36+i}, 16, v{36+i}")
        e(f"  v_lshlrev_b32 v{40+i}, 16, v{40+i}")
        e(f"  v_lshlrev_b32 v{44+i}, 16, v{44+i}")
        e(f"  v_sub_f32 v60, v{36+i}, v{40+i}")
        e("  v_cvt_pk_bf16_f32 v60, v60, v60")
        e("  v_lshlrev_b32 v60, 16, v60")
        e(f"  v_add_f32 v60, v{44+i}, v60")
        e("  v_cvt_pk_bf16_f32 v60, v60, v60")
        e("  v_lshlrev_b32 v60, 16, v60")
        e(f"  v_sub_f32 v61, v60, v{48+2*i}")
        e("  v_cvt_pk_bf16_f32 v61, v61, v61")
        e("  v_lshlrev_b32 v61, 16, v61")
        e(f"  v_mul_f32 v61, v61, v{49+2*i}")
        e("  v_cvt_pk_bf16_f32 v61, v61, v61")
        e("  v_lshlrev_b32 v61, 16, v61")
        e(f"  v_add_f32 v61, v61, v{8+i}")
        e("  v_cvt_pk_bf16_f32 v61, v61, v61")
        e("  v_lshlrev_b32 v61, 16, v61")
        e("  v_add_f32 v61, v60, v61")
        e("  v_cvt_pk_bf16_f32 v61, v61, v61")
        e(f"  buffer_store_short v61, v{28+i}, s[28:31], 0 offen")
    lab("t3_done")
    e("  s_endpgm")
    kernel_desc(name, 192)

def main():
    hdr = open("cdna_kernels/" + NAME + ".s.ref").read().splitlines()
    out = []
    for ln in hdr:
        if ln.startswith("; @launch"):
            out.append("; @launch kernel=k1_kernel grid=(256,1,1) block=(512,1,1) lds=131072")
            out.append("; @launch kernel=k2_kernel grid=(256,1,1) block=(256,1,1) lds=98304")
            out.append("; @launch kernel=t1_kernel grid=(256,1,1) block=(128,1,1) lds=0")
            out.append("; @launch kernel=t2_kernel grid=(224,1,1) block=(256,1,1) lds=25600")
            out.append("; @launch kernel=t3_kernel grid=(64,1,1) block=(256,1,1) lds=32768")
            break
        out.append(ln)
    out.append('.amdgcn_target "amdgcn-amd-amdhsa--gfx950"')
    out.append(".text")
    gen_k1(); gen_k2(); gen_t1(); gen_t2(); gen_t3()
    out += L
    out.append('.section .rodata,"a"')
    out += KD
    dst = sys.argv[1] if len(sys.argv) > 1 else "cdna_kernels/" + NAME + ".s"
    open(dst, "w").write("\n".join(out) + "\n")

main()
```

```python
import sys, os
OPT = lambda k, d=0: int(os.environ.get(k, d))

NAME = "sequential_preLN__spectral_fnet__moe_arch_mod__prompt"
L = []
def e(s=""):
    L.append(s)
def lab(s):
    L.append(s + ":")

KA_X, KA_WSRE, KA_WSIM, KA_WDRE, KA_WDIM = 0, 8, 16, 24, 32
KA_WR, KA_WG, KA_WU, KA_WDN, KA_OUT, KA_DBG, KA_WS = 48, 56, 64, 72, 80, 88, 96
WS_YB = 0
WS_Y = 4 << 20
WS_KEY = 8 << 20
WS_STAT = (8 << 20) + 8192
WS_GU = (8 << 20) + 65536
WS_IDX = (8 << 20) + 131072
WS_SIZE = 268435456

KIDX = [0]
NV = {"k1_kernel": 160, "k2_kernel": 160, "t1_kernel": 148, "t2_kernel": 192, "t3_kernel": 192, "tf_kernel": 184}
CUR = [0]
def kernel_begin(name):
    CUR[0] = NV[name]
    e(f".globl {name}")
    e(".p2align 8")
    e(f".type {name},@function")
    lab(name)
    if OPT('DIAG'):
        e("  s_memrealtime s[72:73]")
        for i in range(1, 7):
            e(f"  s_mov_b64 s[{72+2*i}:{73+2*i}], 0")
        e(f"  s_load_dwordx2 s[94:95], s[0:1], {KA_WS}")
        e(f"  v_mov_b32 v{CUR[0]}, v0")

def stamp(i):
    if OPT('DIAG'):
        e(f"  s_memrealtime s[{72+2*i}:{73+2*i}]")

def kernel_end():
    if OPT('DIAG'):
        e("  s_waitcnt vmcnt(0) lgkmcnt(0)")
        e("  s_memrealtime s[86:87]")
        e("  s_mov_b32 s88, s94")
        e("  s_mov_b32 s89, s95")
        e("  s_mov_b32 s90, 0x4000000")
        e("  s_mov_b32 s91, 0x00020000")
        e("  s_waitcnt lgkmcnt(0)")
        e("  s_mov_b64 exec, 1")
        for i in range(16):
            e(f"  v_mov_b32 v{i}, s{72+i}")
        e(f"  v_lshrrev_b32 v{CUR[0]+1}, 6, v{CUR[0]}")
        e(f"  v_lshlrev_b32 v{CUR[0]+1}, 6, v{CUR[0]+1}")
        e("  s_lshl_b32 s92, s2, 10")
        e(f"  s_add_u32 s92, s92, {(16 << 20) + KIDX[0] * 0x100000}")
        for i in range(4):
            e(f"  buffer_store_dwordx4 v[{4*i}:{3+4*i}], v{CUR[0]+1}, s[88:91], s92 offen offset:{16*i}")
    KIDX[0] += 1

KD = []
def kernel_desc(name, vgpr, sgpr=102):
    assert vgpr == CUR[0]
    if OPT('DIAG'): vgpr += 2
    acc = (vgpr + 3) // 4 * 4
    KD.append(f""".p2align 6
.amdhsa_kernel {name}
  .amdhsa_next_free_vgpr {vgpr}
  .amdhsa_next_free_sgpr {sgpr}
  .amdhsa_accum_offset {acc}
  .amdhsa_group_segment_fixed_size 0
  .amdhsa_kernarg_size 104
  .amdhsa_user_sgpr_count 2
  .amdhsa_user_sgpr_kernarg_segment_ptr 1
  .amdhsa_system_sgpr_workgroup_id_x 1
.end_amdhsa_kernel""")

def srd(d, lo, hi, size):
    e(f"  s_mov_b32 s{d}, s{lo}")
    e(f"  s_mov_b32 s{d+1}, s{hi}")
    e(f"  s_mov_b32 s{d+2}, {size}")
    e(f"  s_mov_b32 s{d+3}, 0x00020000")

def vr(a, n):
    return f"v[{a}:{a+n-1}]"

def reduce8(v):
    e("  s_nop 1")
    e(f"  v_add_f32_dpp v{v}, v{v}, v{v} quad_perm:[1,0,3,2] row_mask:0xf bank_mask:0xf")
    e("  s_nop 1")
    e(f"  v_add_f32_dpp v{v}, v{v}, v{v} quad_perm:[2,3,0,1] row_mask:0xf bank_mask:0xf")
    e("  s_nop 1")
    e(f"  v_add_f32_dpp v{v}, v{v}, v{v} row_half_mirror row_mask:0xf bank_mask:0xf")

def reduce16(v):
    reduce8(v)
    e("  s_nop 1")
    e(f"  v_add_f32_dpp v{v}, v{v}, v{v} row_mirror row_mask:0xf bank_mask:0xf")

def gen_k1():
    name = "k1_kernel"
    kernel_begin(name)
    e("  s_cmp_ge_u32 s2, 256")
    e("  s_cbranch_scc1 k1_done")
    e(f"  s_load_dwordx2 s[4:5], s[0:1], {KA_X}")
    e(f"  s_load_dwordx4 s[8:11], s[0:1], {KA_WDRE}")
    e(f"  s_load_dwordx2 s[6:7], s[0:1], {KA_WS}")
    e("  s_and_b32 s12, s2, 7")
    e("  s_lshr_b32 s13, s2, 3")
    e("  s_and_b32 s14, s13, 3")
    e("  s_lshl_b32 s12, s12, 2")
    e("  s_add_u32 s12, s12, s14")
    e("  s_lshr_b32 s13, s13, 2")
    e("  v_lshrrev_b32 v1, 6, v0")
    e("  v_and_b32 v0, 63, v0")
    e("  v_readfirstlane_b32 s15, v1")
    e("  v_lshrrev_b32 v2, 3, v0")
    e("  v_and_b32 v3, 7, v0")
    if OPT('K1_PF', 0):
        e(f"  s_load_dwordx4 s[40:43], s[0:1], {KA_WSRE}")
    e("  s_waitcnt lgkmcnt(0)")
    if OPT('K1_PF', 0):
        e("  s_cmp_lg_u32 s15, 8")
        e("  s_cbranch_scc1 k1_main")
        e("  s_and_b32 s44, s2, 7")
        e("  s_cmp_lt_u32 s44, 4")
        e("  s_cselect_b32 s48, s40, s42")
        e("  s_cselect_b32 s49, s41, s43")
        e(f"  s_mov_b32 s50, {2048*2048*2}")
        e("  s_mov_b32 s51, 0x00020000")
        e("  s_and_b32 s44, s44, 3")
        e("  s_lshl_b32 s44, s44, 21")
        e("  s_lshr_b32 s45, s2, 3")
        e("  s_lshl_b32 s45, s45, 16")
        e("  s_add_u32 s44, s44, s45")
        e("  v_lshlrev_b32 v1, 4, v0")
        e("  s_cmp_ge_u32 s2, 9")
        e("  s_cbranch_scc1 k1_nozero")
        srd(52, 6, 7, 9 << 20)
        for q in range(4):
            e(f"  v_mov_b32 v{4+q}, 0")
        e("  s_lshl_b32 s46, s2, 10")
        e(f"  s_add_u32 s46, s46, {WS_KEY}")
        e("  buffer_store_dwordx4 v[4:7], v1, s[52:55], s46 offen")
        lab("k1_nozero")
        e("  s_cmp_lt_u32 s13, 4")
        e("  s_cselect_b32 s56, s8, s10")
        e("  s_cselect_b32 s57, s9, s11")
        e(f"  s_mov_b32 s58, {512*512*2}")
        e("  s_mov_b32 s59, 0x00020000")
        e("  s_and_b32 s46, s13, 3")
        e("  s_lshl_b32 s46, s46, 17")
        for q in range(OPT('K1_CAN', 2)):
            e(f"  buffer_load_dwordx4 v[8:11], v1, s[56:59], s46 offen offset:{q*1024}")
            e("  s_waitcnt vmcnt(0)")
        for q in range(64):
            e(f"  buffer_load_dwordx4 {vr(8+4*(q%32),4)}, v1, s[48:51], s44 offen")
            e("  s_add_u32 s44, s44, 1024")
        e("  s_branch k1_done")
        lab("k1_main")
    srd(16, 4, 5, 2048*512*2)
    e("  s_cmp_lt_u32 s13, 4")
    e("  s_cselect_b32 s20, s8, s10")
    e("  s_cselect_b32 s21, s9, s11")
    e(f"  s_mov_b32 s22, {512*512*2}")
    e("  s_mov_b32 s23, 0x00020000")
    srd(24, 6, 7, 4 << 20)
    e("  s_lshl_b32 s28, s12, 6")
    e("  s_lshl_b32 s29, s15, 3")
    e("  s_add_u32 s28, s28, s29")
    e("  v_add_u32 v4, s28, v2")
    e("  v_lshlrev_b32 v4, 10, v4")
    e("  v_lshl_add_u32 v4, v3, 4, v4")
    X = 32
    for j in range(8):
        e(f"  buffer_load_dwordx4 {vr(X+4*j,4)}, v4, s[16:19], 0 offen offset:{128*j}")
    e("  s_and_b32 s30, s13, 3")
    e("  s_lshl_b32 s30, s30, 7")
    for ii in range(2):
        e(f"  s_lshl_b32 s31, s15, 4")
        e(f"  s_add_u32 s31, s31, {8*ii}")
        e(f"  v_add_u32 v7, s31, v2")
        e(f"  v_lshrrev_b32 v8, 1, v7")
        e(f"  v_and_b32 v8, 7, v8")
        e(f"  v_xor_b32 v8, v8, v3")
        e(f"  v_add_u32 v7, s30, v7")
        e(f"  v_lshlrev_b32 v7, 10, v7")
        e(f"  v_lshl_add_u32 v{5+ii}, v8, 4, v7")
    e("  s_lshl_b32 s32, s15, 11")
    def wdma(kb):
        slot = kb % 4
        e(f"  s_mov_b32 s33, {128*kb}")
        for ii in range(2):
            e(f"  s_add_u32 m0, s32, {slot*16384 + ii*1024}")
            e("  s_nop 0")
            e(f"  buffer_load_dwordx4 v{5+ii}, s[20:23], s33 offen lds")
    for kb in range(4):
        wdma(kb)
    STG = 128
    for kb in (range(4, 8) if OPT('K1_STG') else []):
        e(f"  s_mov_b32 s33, {128*kb}")
        for ii in range(2):
            e(f"  buffer_load_dwordx4 {vr(STG+8*(kb-4)+4*ii,4)}, v{5+ii}, s[20:23], s33 offen")
    e("  s_mov_b32 s34, 0x3f803f80")
    for a in range(4):
        e(f"  v_mov_b32 v{8+a}, 0")
    stamp(1)
    e(f"  s_waitcnt vmcnt({16 if OPT('K1_STG') else 8})")
    stamp(2)
    for i in range(32):
        e(f"  v_dot2_f32_bf16 v{8+i%4}, v{X+i}, s34, v{8+i%4}")
    e("  s_nop 3")
    e("  v_add_f32 v8, v8, v9")
    e("  v_add_f32 v10, v10, v11")
    e("  v_add_f32 v8, v8, v10")
    reduce8(8)
    e("  v_mul_f32 v8, 0x3b000000, v8")
    e("  v_cvt_pk_bf16_f32 v9, v8, v8")
    e("  v_lshlrev_b32 v9, 16, v9")
    e("  v_sub_f32 v10, 0, v9")
    e("  v_mov_b32 v11, v10")
    D = 64
    for a in range(4):
        e(f"  v_mov_b32 v{12+a}, 0")
    for i in range(32):
        e(f"  v_lshlrev_b32 v{D+2*i}, 16, v{X+i}")
        e(f"  v_and_b32 v{D+2*i+1}, 0xffff0000, v{X+i}")
        e(f"  v_pk_add_f32 {vr(D+2*i,2)}, {vr(D+2*i,2)}, v[10:11]")
        q = 12 + 2*(i % 2)
        e(f"  v_pk_fma_f32 {vr(q,2)}, {vr(D+2*i,2)}, {vr(D+2*i,2)}, {vr(q,2)}")
    e("  v_add_f32 v12, v12, v13")
    e("  v_add_f32 v14, v14, v15")
    e("  v_add_f32 v12, v12, v14")
    reduce8(12)
    e("  v_sub_f32 v13, v8, v9")
    e("  v_mul_f32 v13, v13, v13")
    e("  v_mul_f32 v12, 0x3b000000, v12")
    e("  v_sub_f32 v12, v12, v13")
    e("  v_max_f32 v12, 0, v12")
    e("  v_cvt_pk_bf16_f32 v12, v12, v12")
    e("  v_lshlrev_b32 v12, 16, v12")
    e("  v_add_f32 v12, 0x3727c5ac, v12")
    e("  v_cvt_pk_bf16_f32 v12, v12, v12")
    e("  v_lshlrev_b32 v12, 16, v12")
    e("  v_sqrt_f32 v12, v12")
    e("  s_nop 0")
    e("  v_cvt_pk_bf16_f32 v12, v12, v12")
    e("  v_lshlrev_b32 v12, 16, v12")
    e("  v_rcp_f32 v12, v12")
    e("  s_nop 0")
    e("  v_mov_b32 v13, v12")
    for i in range(32):
        e(f"  v_cvt_pk_bf16_f32 v{X+i}, v{D+2*i}, v{D+2*i+1}")
        e(f"  v_lshlrev_b32 v{D+2*i}, 16, v{X+i}")
        e(f"  v_and_b32 v{D+2*i+1}, 0xffff0000, v{X+i}")
        e(f"  v_pk_mul_f32 {vr(D+2*i,2)}, {vr(D+2*i,2)}, v[12:13]")
        e(f"  v_cvt_pk_bf16_f32 v{X+i}, v{D+2*i}, v{D+2*i+1}")
    e("  v_add_u32 v14, s29, v2")
    e("  v_lshrrev_b32 v15, 1, v14")
    e("  v_and_b32 v15, 7, v15")
    e("  v_xor_b32 v15, v15, v3")
    e("  v_lshlrev_b32 v14, 7, v14")
    e("  v_lshl_add_u32 v14, v15, 4, v14")
    e("  v_add_u32 v14, 0x10000, v14")
    for j in range(8):
        e(f"  ds_write_b128 v14, {vr(X+4*j,4)} offset:{8192*j}")
    stamp(3)
    e("  s_and_b32 s35, s15, 1")
    e("  s_lshr_b32 s36, s15, 1")
    e("  v_and_b32 v16, 31, v0")
    e("  v_lshrrev_b32 v17, 5, v0")
    def fragaddr(dst, sblk, base):
        e(f"  s_lshl_b32 s37, s{sblk}, 5")
        e(f"  v_add_u32 v18, s37, v16")
        e(f"  v_lshrrev_b32 v19, 1, v18")
        e(f"  v_and_b32 v19, 7, v19")
        e(f"  v_xor_b32 v19, v19, v17")
        e(f"  v_lshlrev_b32 v18, 7, v18")
        e(f"  v_lshl_add_u32 v{dst}, v19, 4, v18")
        if base:
            e(f"  v_add_u32 v{dst}, {base}, v{dst}")
        for kk in range(1, 4):
            e(f"  v_xor_b32 v{dst+kk}, {32*kk}, v{dst}")
    fragaddr(20, 35, 0x10000)
    fragaddr(24, 36, 0)
    ACC = 96
    for i in range(16):
        e(f"  v_mov_b32 v{ACC+i}, 0")
    e("  v_lshlrev_b32 v28, 4, v0")
    e("  v_add_u32 v28, s32, v28")
    FA, FB = 64, 80
    waits = [14, 6, 4, 2, 0, 0, 0, 0] if OPT('K1_STG') else [6, 4, 4, 4, 4, 4, 2, 0]
    for kb in range(8):
        e(f"  s_waitcnt vmcnt({waits[kb]}) lgkmcnt(0)")
        e("  s_barrier")
        if kb == 0: stamp(4)
        if 1 <= kb <= 4 and not OPT('K1_STG'):
            wdma(kb + 3)
        if 1 <= kb <= 4 and OPT('K1_STG'):
            for ii in range(2):
                e(f"  ds_write_b128 v28, {vr(STG+8*(kb-1)+4*ii,4)} offset:{((kb+3)%4)*16384 + ii*1024}")
        slot = kb % 4
        for kk in range(4):
            e(f"  ds_read_b128 {vr(FA+4*kk,4)}, v{20+kk} offset:{8192*kb}")
            e(f"  ds_read_b128 {vr(FB+4*kk,4)}, v{24+kk} offset:{16384*slot}")
        for kk in range(4):
            e(f"  s_waitcnt lgkmcnt({6-2*kk})")
            e(f"  v_mfma_f32_32x32x16_bf16 {vr(ACC,16)}, {vr(FA+4*kk,4)}, {vr(FB+4*kk,4)}, {vr(ACC,16)}")
    stamp(5)
    e("  s_lshl_b32 s37, s13, 1")
    e("  s_lshr_b32 s38, s36, 1")
    e("  s_add_u32 s37, s37, s38")
    e("  s_lshl_b32 s37, s37, 5")
    e("  s_add_u32 s37, s37, s12")
    e("  s_lshl_b32 s37, s37, 13")
    e("  s_and_b32 s38, s36, 1")
    e("  s_lshl_b32 s38, s38, 5")
    e("  v_add_u32 v18, s38, v16")
    e("  v_lshrrev_b32 v19, 1, v18")
    e("  v_and_b32 v19, 7, v19")
    e("  s_lshl_b32 s38, s35, 2")
    e("  v_add_u32 v29, s38, v17")
    e("  v_xor_b32 v29, v29, v19")
    e("  v_lshlrev_b32 v18, 7, v18")
    e("  v_lshl_add_u32 v30, v29, 4, v18")
    e("  v_xor_b32 v31, 32, v30")
    e("  s_nop 7")
    P = 112
    for g in range(4):
        e(f"  v_cvt_pk_bf16_f32 v{P+2*g}, v{ACC+4*g}, v{ACC+4*g+1}")
        e(f"  v_cvt_pk_bf16_f32 v{P+2*g+1}, v{ACC+4*g+2}, v{ACC+4*g+3}")
    e("  s_nop 1")
    for p in range(2):
        e(f"  v_permlane32_swap_b32 v{P+4*p}, v{P+4*p+2}")
        e(f"  v_permlane32_swap_b32 v{P+4*p+1}, v{P+4*p+3}")
    e(f"  buffer_store_dwordx4 {vr(P,4)}, v30, s[24:27], s37 offen")
    e(f"  buffer_store_dwordx4 {vr(P+4,4)}, v31, s[24:27], s37 offen")
    lab("k1_done")
    kernel_end()
    e("  s_endpgm")
    kernel_desc(name, 160)

K2_NS = OPT('K2_NS', 6)
def gen_k2():
    NS = K2_NS
    name = "k2_kernel"
    kernel_begin(name)
    YBASE = NS * 16384
    e("  s_cmp_ge_u32 s2, 256")
    e("  s_cbranch_scc1 k2_done")
    e(f"  s_load_dwordx4 s[8:11], s[0:1], {KA_WSRE}")
    e(f"  s_load_dwordx2 s[6:7], s[0:1], {KA_WS}")
    e("  s_and_b32 s12, s2, 7")
    e("  s_lshr_b32 s13, s2, 3")
    e("  s_lshr_b32 s14, s12, 2")
    e("  s_and_b32 s12, s12, 3")
    e("  s_lshl_b32 s12, s12, 2")
    e("  s_lshr_b32 s15, s13, 3")
    e("  s_add_u32 s12, s12, s15")
    e("  s_and_b32 s13, s13, 7")
    e("  v_lshrrev_b32 v1, 6, v0")
    e("  v_and_b32 v0, 63, v0")
    e("  v_readfirstlane_b32 s15, v1")
    e("  v_lshrrev_b32 v2, 3, v0")
    e("  v_and_b32 v3, 7, v0")
    e("  s_waitcnt lgkmcnt(0)")
    e("  s_cmp_eq_u32 s14, 0")
    e("  s_cselect_b32 s16, s8, s10")
    e("  s_cselect_b32 s17, s9, s11")
    e(f"  s_mov_b32 s18, {2048*2048*2}")
    e("  s_mov_b32 s19, 0x00020000")
    srd(20, 6, 7, 8 << 20)
    e("  s_cmp_lt_u32 s15, 4")
    e("  s_cbranch_scc1 k2_consumer")
    e("  s_sub_u32 s15, s15, 4")
    for ii in range(4):
        e(f"  s_lshl_b32 s24, s15, 5")
        e(f"  s_add_u32 s24, s24, {8*ii}")
        e(f"  v_add_u32 v10, s24, v2")
        e(f"  v_lshrrev_b32 v11, 1, v10")
        e(f"  v_and_b32 v11, 7, v11")
        e(f"  v_xor_b32 v11, v11, v3")
        e(f"  s_lshl_b32 s24, s12, 7")
        e(f"  v_add_u32 v10, s24, v10")
        e(f"  v_lshlrev_b32 v10, 12, v10")
        e(f"  v_lshl_add_u32 v{4+ii}, v11, 4, v10")
    e("  s_lshl_b32 s24, s15, 11")
    e("  v_lshlrev_b32 v8, 4, v0")
    e("  v_add_u32 v8, s24, v8")
    e("  v_add_u32 v9, 1024, v8")
    e("  s_mov_b32 s25, 0")
    e("  s_lshl_b32 s26, s14, 3")
    e("  s_add_u32 s26, s26, s13")
    e("  s_lshl_b32 s26, s26, 18")
    e("  s_lshl_b32 s27, s15, 12")
    e("  s_lshl_b32 s28, s15, 11")
    e(f"  s_add_u32 s28, s28, {YBASE}")
    def dma(slot):
        for i in range(2):
            e(f"  s_add_u32 m0, s28, {slot*8192 + i*1024}")
            e("  s_nop 0")
            e(f"  buffer_load_dwordx4 v{8+i}, s[20:23], s26 offen lds")
        for i in range(4):
            e(f"  s_add_u32 m0, s27, {slot*16384 + i*1024}")
            e("  s_nop 0")
            e(f"  buffer_load_dwordx4 v{4+i}, s[16:19], s25 offen lds")
        if OPT('K2_ROT', 4):
            e("  s_add_u32 s25, s25, 128")
            e("  s_and_b32 s25, s25, 4095")
            e("  s_lshl_b32 s29, s25, 6")
            e("  s_add_u32 s26, s33, s29")
        else:
            e("  s_add_u32 s25, s25, 128")
            e("  s_add_u32 s26, s26, 8192")
    if OPT('K2_ROT', 4):
        e("  s_mov_b32 s33, s26")
        e(f"  s_mul_i32 s25, s13, {128*OPT('K2_ROT', 4)}")
        e("  s_and_b32 s25, s25, 4095")
        e("  s_lshl_b32 s29, s25, 6")
        e("  s_add_u32 s26, s33, s29")
    for st in range(NS):
        dma(st)
    e(f"  s_waitcnt vmcnt({6*(NS-1)})")
    e("  s_barrier")
    for ks in range(31):
        ahead = min(ks + NS - 1, 31) - (ks + 1)
        e(f"  s_waitcnt vmcnt({6*ahead})")
        if not OPT('K2_NOBAR'): e("  s_barrier")
        if ks == 8: stamp(3)
        if ks == 16: stamp(4)
        if ks == 24: stamp(5)
        if ks + NS < 32:
            dma(ks % NS)
    e("  s_branch k2_done")
    lab("k2_consumer")
    e("  v_and_b32 v16, 31, v0")
    e("  v_lshrrev_b32 v17, 5, v0")
    e("  s_lshl_b32 s24, s15, 5")
    e("  v_add_u32 v18, s24, v16")
    e("  v_lshrrev_b32 v19, 1, v18")
    e("  v_and_b32 v19, 7, v19")
    e("  v_xor_b32 v19, v19, v17")
    e("  v_lshlrev_b32 v18, 7, v18")
    e("  v_lshl_add_u32 v20, v19, 4, v18")
    for kk in range(1, 4):
        e(f"  v_xor_b32 v{20+kk}, {32*kk}, v20")
    for kk in range(4):
        e(f"  v_add_u32 v{28+kk}, 0x10000, v{20+kk}")
    e("  v_lshrrev_b32 v19, 1, v16")
    e("  v_and_b32 v19, 7, v19")
    e("  v_xor_b32 v19, v19, v17")
    e("  v_lshlrev_b32 v18, 7, v16")
    e("  v_lshl_add_u32 v24, v19, 4, v18")
    e(f"  v_add_u32 v24, {YBASE}, v24")
    for kk in range(1, 4):
        e(f"  v_xor_b32 v{24+kk}, {32*kk}, v24")
    ACC = 32
    for i in range(32):
        e(f"  v_mov_b32 v{ACC+i}, 0")
    def FW(st): return 64 + 48 * (st % 2)
    def FY(st): return 80 + 48 * (st % 2)
    def rd(st, kk):
        slot = st % NS
        wb = 20 if slot < 4 else 28
        e(f"  ds_read_b128 {vr(FW(st)+4*kk,4)}, v{wb+kk} offset:{16384*(slot%4)}")
        e(f"  ds_read_b128 {vr(FY(st)+8*kk,4)}, v{24+kk} offset:{8192*slot}")
        e(f"  ds_read_b128 {vr(FY(st)+8*kk+4,4)}, v{24+kk} offset:{8192*slot+4096}")
    stamp(1)
    e("  s_barrier")
    stamp(2)
    for kk in range(4):
        rd(0, kk)
    def mf(st, kk, half):
        e(f"  v_mfma_f32_32x32x16_bf16 {vr(ACC+16*half,16)}, {vr(FY(st)+8*kk+4*half,4)}, {vr(FW(st)+4*kk,4)}, {vr(ACC+16*half,16)}")
    for ks in range(32):
        more = ks + 1 < 32
        e("  s_waitcnt lgkmcnt(0)")
        if more and not OPT('K2_NOBAR'):
            e("  s_barrier")
        if OPT('K2_NOBAR') == 2: continue
        r = (lambda kk: rd(ks + 1, kk)) if more else (lambda kk: None)
        mf(ks, 0, 0); r(0); mf(ks, 0, 1); r(1)
        mf(ks, 1, 0); r(2); mf(ks, 1, 1); r(3)
        mf(ks, 2, 0); mf(ks, 2, 1)
        mf(ks, 3, 0); mf(ks, 3, 1)
    stamp(6)
    e("  s_lshl_b32 s24, s14, 21")
    e(f"  s_add_u32 s24, s24, {WS_Y}")
    e("  s_lshl_b32 s30, s13, 7")
    e("  s_add_u32 s24, s24, s30")
    e("  s_lshl_b32 s30, s12, 7")
    e("  s_lshl_b32 s31, s15, 5")
    e("  s_add_u32 s30, s30, s31")
    e("  v_add_u32 v18, s30, v16")
    e("  v_lshlrev_b32 v18, 10, v18")
    e("  v_lshl_add_u32 v18, v17, 4, v18")
    e("  s_nop 7")
    P = 64
    for g in range(8):
        e(f"  v_cvt_pk_bf16_f32 v{P+2*g}, v{ACC+4*g}, v{ACC+4*g+1}")
        e(f"  v_cvt_pk_bf16_f32 v{P+2*g+1}, v{ACC+4*g+2}, v{ACC+4*g+3}")
    e("  s_nop 1")
    for p in range(4):
        e(f"  v_permlane32_swap_b32 v{P+4*p}, v{P+4*p+2}")
        e(f"  v_permlane32_swap_b32 v{P+4*p+1}, v{P+4*p+3}")
    for p in range(4):
        e(f"  buffer_store_dwordx4 {vr(P+4*p,4)}, v18, s[20:23], s24 offen offset:{32*p}")
    lab("k2_done")
    kernel_end()
    e("  s_endpgm")
    kernel_desc(name, 160)

def gen_t1():
    name = "t1_kernel"
    kernel_begin(name)
    e("  s_cmp_ge_u32 s2, 256")
    e("  s_cbranch_scc1 t1_done")
    e(f"  s_load_dwordx2 s[4:5], s[0:1], {KA_X}")
    e(f"  s_load_dwordx2 s[6:7], s[0:1], {KA_WS}")
    e(f"  s_load_dwordx2 s[8:9], s[0:1], {KA_WR}")
    e(f"  s_load_dwordx2 s[10:11], s[0:1], {KA_OUT}")
    if OPT('T1_PF', 1):
        e(f"  s_load_dwordx4 s[32:35], s[0:1], {KA_WG}")
        e(f"  s_load_dwordx2 s[36:37], s[0:1], {KA_WDN}")
        e("  v_lshrrev_b32 v1, 6, v0")
        e("  s_nop 0")
        e("  v_readfirstlane_b32 s3, v1")
        e("  s_cmp_lg_u32 s3, 2")
        e("  s_cbranch_scc1 t1_main")
        e("  s_waitcnt lgkmcnt(0)")
        srd(40, 32, 33, 512*1792*2)
        srd(44, 34, 35, 512*1792*2)
        srd(48, 36, 37, 1792*512*2)
        e("  v_and_b32 v0, 63, v0")
        e("  s_and_b32 s52, s2, 7")
        e("  s_lshr_b32 s53, s2, 3")
        e("  v_min_u32 v1, 55, v0")
        e("  v_cmp_lt_u32 vcc, 27, v1")
        e("  v_cndmask_b32 v2, 0, 1, vcc")
        e("  v_mul_u32_u24 v3, 28, v2")
        e("  v_sub_u32 v3, v1, v3")
        e("  v_mul_u32_u24 v2, 3584, v2")
        e("  v_lshl_add_u32 v2, v3, 4, v2")
        e("  s_mul_i32 s54, s52, 448")
        e(f"  s_mul_i32 s55, s53, {16*3584}")
        e("  s_add_u32 s54, s54, s55")
        for q in range(8):
            e(f"  buffer_load_dwordx4 {vr(8+8*q,4)}, v2, s[40:43], s54 offen")
            e(f"  buffer_load_dwordx4 {vr(12+8*q,4)}, v2, s[44:47], s54 offen")
            e(f"  s_add_u32 s54, s54, {2*3584}")
        e("  v_lshrrev_b32 v2, 3, v0")
        e("  v_and_b32 v3, 7, v0")
        e("  v_lshlrev_b32 v2, 10, v2")
        e("  v_lshl_add_u32 v2, v3, 4, v2")
        e("  s_lshl_b32 s54, s52, 7")
        e(f"  s_mul_i32 s55, s53, {56*1024}")
        e("  s_add_u32 s54, s54, s55")
        for q in range(7):
            e(f"  buffer_load_dwordx4 {vr(72+4*q,4)}, v2, s[48:51], s54 offen")
            e(f"  s_add_u32 s54, s54, 8192")
        e("  s_branch t1_done")
        lab("t1_main")
    e("  v_lshrrev_b32 v1, 4, v0")
    e("  v_and_b32 v2, 15, v0")
    e("  s_lshl_b32 s3, s2, 3")
    e("  v_add_u32 v1, s3, v1")
    e("  v_lshlrev_b32 v3, 10, v1")
    e("  v_lshl_add_u32 v3, v2, 4, v3")
    e("  v_lshlrev_b32 v4, 4, v2")
    e("  s_waitcnt lgkmcnt(0)")
    srd(12, 4, 5, 2 << 20)
    srd(16, 6, 7, 9 << 20)
    srd(20, 8, 9, 1024)
    srd(24, 10, 11, 2 << 20)
    e(f"  s_mov_b32 s28, {WS_Y}")
    e(f"  s_mov_b32 s29, {WS_Y + (2<<20)}")
    YR, YI, XX, WR = 16, 32, 48, 64
    for j in range(4):
        e(f"  buffer_load_dwordx4 {vr(YR+4*j,4)}, v3, s[16:19], s28 offen offset:{256*j}")
        e(f"  buffer_load_dwordx4 {vr(YI+4*j,4)}, v3, s[16:19], s29 offen offset:{256*j}")
        e(f"  buffer_load_dwordx4 {vr(XX+4*j,4)}, v3, s[12:15], 0 offen offset:{256*j}")
    for j in range(4):
        e(f"  buffer_load_dwordx4 {vr(WR+4*j,4)}, v4, s[20:23], 0 offen offset:{256*j}")
    H = 80
    T = 112
    e("  v_mov_b32 v14, 0")
    e("  v_mov_b32 v15, 0")
    for j in range(4):
        e(f"  s_waitcnt vmcnt({4 + 3*(3-j)})")
        for q in range(4):
            i = 4*j + q
            e(f"  v_lshlrev_b32 v{T}, 16, v{YR+i}")
            e(f"  v_and_b32 v{T+1}, 0xffff0000, v{YR+i}")
            e(f"  v_lshlrev_b32 v{T+2}, 16, v{YI+i}")
            e(f"  v_and_b32 v{T+3}, 0xffff0000, v{YI+i}")
            e(f"  v_pk_add_f32 {vr(T,2)}, {vr(T,2)}, {vr(T+2,2)} neg_lo:[0,1] neg_hi:[0,1]")
            e(f"  v_cvt_pk_bf16_f32 v{T}, v{T}, v{T+1}")
            e(f"  v_and_b32 v{T+1}, 0xffff0000, v{T}")
            e(f"  v_lshlrev_b32 v{T}, 16, v{T}")
            e(f"  v_lshlrev_b32 v{T+2}, 16, v{XX+i}")
            e(f"  v_and_b32 v{T+3}, 0xffff0000, v{XX+i}")
            e(f"  v_pk_add_f32 {vr(T,2)}, {vr(T,2)}, {vr(T+2,2)}")
            e(f"  v_cvt_pk_bf16_f32 v{T}, v{T}, v{T+1}")
            e(f"  v_lshlrev_b32 v{H+2*i}, 16, v{T}")
            e(f"  v_and_b32 v{H+2*i+1}, 0xffff0000, v{T}")
            e(f"  v_pk_add_f32 v[14:15], v[14:15], {vr(H+2*i,2)}")
    e("  v_add_f32 v5, v14, v15")
    reduce16(5)
    e("  v_mul_f32 v5, 0x3b000000, v5")
    e("  v_cvt_pk_bf16_f32 v6, v5, v5")
    e("  v_lshlrev_b32 v6, 16, v6")
    e("  v_sub_f32 v8, 0, v6")
    e("  v_mov_b32 v9, v8")
    e("  v_mov_b32 v10, 0")
    e("  v_mov_b32 v11, 0")
    D = 116
    for i in range(16):
        e(f"  v_pk_add_f32 {vr(D+2*i,2)}, {vr(H+2*i,2)}, v[8:9]")
        e(f"  v_pk_fma_f32 v[10:11], {vr(D+2*i,2)}, {vr(D+2*i,2)}, v[10:11]")
    e("  v_add_f32 v10, v10, v11")
    reduce16(10)
    e("  v_sub_f32 v11, v5, v6")
    e("  v_mul_f32 v11, v11, v11")
    e("  v_mul_f32 v10, 0x3b000000, v10")
    e("  v_sub_f32 v10, v10, v11")
    e("  v_max_f32 v10, 0, v10")
    e("  v_cvt_pk_bf16_f32 v10, v10, v10")
    e("  v_lshlrev_b32 v10, 16, v10")
    e("  v_add_f32 v10, 0x3727c5ac, v10")
    e("  v_cvt_pk_bf16_f32 v10, v10, v10")
    e("  v_lshlrev_b32 v10, 16, v10")
    e("  v_sqrt_f32 v10, v10")
    e("  s_nop 0")
    e("  v_cvt_pk_bf16_f32 v10, v10, v10")
    e("  v_lshlrev_b32 v10, 16, v10")
    e("  v_rcp_f32 v10, v10")
    e("  s_nop 0")
    e("  v_mov_b32 v11, v10")
    e("  v_mov_b32 v12, 0")
    e("  s_waitcnt vmcnt(0)")
    O = 16
    for i in range(16):
        e(f"  v_cvt_pk_bf16_f32 v{T}, v{D+2*i}, v{D+2*i+1}")
        e(f"  v_lshlrev_b32 v{D+2*i}, 16, v{T}")
        e(f"  v_and_b32 v{D+2*i+1}, 0xffff0000, v{T}")
        e(f"  v_pk_mul_f32 {vr(D+2*i,2)}, {vr(D+2*i,2)}, v[10:11]")
        e(f"  v_cvt_pk_bf16_f32 v{T}, v{D+2*i}, v{D+2*i+1}")
        e(f"  v_dot2_f32_bf16 v12, v{T}, v{WR+i}, v12")
        e(f"  v_lshlrev_b32 v{D+2*i}, 16, v{T}")
        e(f"  v_and_b32 v{D+2*i+1}, 0xffff0000, v{T}")
        e(f"  v_pk_add_f32 {vr(D+2*i,2)}, {vr(D+2*i,2)}, {vr(H+2*i,2)}")
        e(f"  v_cvt_pk_bf16_f32 v{O+i}, v{D+2*i}, v{D+2*i+1}")
    for j in range(4):
        e(f"  buffer_store_dwordx4 {vr(O+4*j,4)}, v3, s[24:27], 0 offen offset:{256*j}")
    e("  s_nop 3")
    reduce16(12)
    e("  v_cvt_pk_bf16_f32 v12, v12, v12")
    e("  v_lshlrev_b32 v12, 16, v12")
    e("  v_ashrrev_i32 v13, 31, v12")
    e("  v_or_b32 v13, 0x80000000, v13")
    e("  v_xor_b32 v12, v12, v13")
    e("  v_and_b32 v12, 0xffff0000, v12")
    e("  v_sub_u32 v13, 0xffff, v1")
    e("  v_or_b32 v12, v12, v13")
    e("  v_cmp_eq_u32 vcc, 0, v2")
    e("  s_and_saveexec_b64 s[30:31], vcc")
    e("  v_lshlrev_b32 v13, 2, v1")
    e(f"  s_mov_b32 s28, {WS_KEY}")
    e("  buffer_store_dword v12, v13, s[16:19], s28 offen")
    e("  v_lshlrev_b32 v13, 3, v1")
    e("  v_mov_b32 v7, v10")
    e(f"  s_mov_b32 s28, {WS_STAT}")
    e("  buffer_store_dwordx2 v[6:7], v13, s[16:19], s28 offen")
    lab("t1_done")
    kernel_end()
    e("  s_endpgm")
    kernel_desc(name, 148)

def recompute(YR, YI, XX, nd, NEGM, RINV, HOUT, XNOUT, T):
    for i in range(nd):
        e(f"  v_lshlrev_b32 v{T}, 16, v{YR+i}")
        e(f"  v_and_b32 v{T+1}, 0xffff0000, v{YR+i}")
        e(f"  v_lshlrev_b32 v{T+2}, 16, v{YI+i}")
        e(f"  v_and_b32 v{T+3}, 0xffff0000, v{YI+i}")
        e(f"  v_pk_add_f32 {vr(T,2)}, {vr(T,2)}, {vr(T+2,2)} neg_lo:[0,1] neg_hi:[0,1]")
        e(f"  v_cvt_pk_bf16_f32 v{T}, v{T}, v{T+1}")
        e(f"  v_and_b32 v{T+1}, 0xffff0000, v{T}")
        e(f"  v_lshlrev_b32 v{T}, 16, v{T}")
        e(f"  v_lshlrev_b32 v{T+2}, 16, v{XX+i}")
        e(f"  v_and_b32 v{T+3}, 0xffff0000, v{XX+i}")
        e(f"  v_pk_add_f32 {vr(T,2)}, {vr(T,2)}, {vr(T+2,2)}")
        e(f"  v_cvt_pk_bf16_f32 v{T}, v{T}, v{T+1}")
        e(f"  v_lshlrev_b32 v{HOUT+2*i}, 16, v{T}")
        e(f"  v_and_b32 v{HOUT+2*i+1}, 0xffff0000, v{T}")
        e(f"  v_pk_add_f32 {vr(T,2)}, {vr(HOUT+2*i,2)}, {vr(NEGM,2)}")
        e(f"  v_cvt_pk_bf16_f32 v{T}, v{T}, v{T+1}")
        e(f"  v_and_b32 v{T+1}, 0xffff0000, v{T}")
        e(f"  v_lshlrev_b32 v{T}, 16, v{T}")
        e(f"  v_pk_mul_f32 {vr(T,2)}, {vr(T,2)}, {vr(RINV,2)}")
        e(f"  v_cvt_pk_bf16_f32 v{XNOUT+i}, v{T}, v{T+1}")

XS_STRIDE = 1040
def gen_t2():
    name = "t2_kernel"
    kernel_begin(name)
    LDS_G, LDS_U, LDS_XS, LDS_C = 0, 8192, 16384, 16384 + 8*XS_STRIDE
    e("  s_cmp_ge_u32 s2, 224")
    e("  s_cbranch_scc1 t2_done")
    e(f"  s_load_dwordx2 s[4:5], s[0:1], {KA_X}")
    e(f"  s_load_dwordx2 s[6:7], s[0:1], {KA_WS}")
    e(f"  s_load_dwordx4 s[8:11], s[0:1], {KA_WG}")
    e("  s_and_b32 s3, s2, 7")
    e("  s_mul_i32 s3, s3, 28")
    e("  s_lshr_b32 s12, s2, 3")
    e("  s_add_u32 s3, s3, s12")
    e("  v_mov_b32 v40, v0")
    e("  v_lshrrev_b32 v1, 6, v0")
    e("  v_and_b32 v0, 63, v0")
    e("  v_readfirstlane_b32 s13, v1")
    e("  s_waitcnt lgkmcnt(0)")
    srd(16, 4, 5, 2 << 20)
    srd(20, 6, 7, 9 << 20)
    srd(24, 8, 9, 512*1792*2)
    srd(28, 10, 11, 512*1792*2)
    e("  v_lshlrev_b32 v2, 5, v40")
    e(f"  s_mov_b32 s14, {WS_KEY}")
    e("  buffer_load_dwordx4 v[8:11], v2, s[20:23], s14 offen")
    e("  buffer_load_dwordx4 v[12:15], v2, s[20:23], s14 offen offset:16")
    e("  s_lshl_b32 s15, s3, 4")
    e("  s_movk_i32 s32, 3584")
    for ii in range(2):
        e(f"  s_lshl_b32 s33, s13, 7")
        e(f"  s_add_u32 s33, s33, {64*ii}")
        e(f"  v_add_u32 v3, s33, v0")
        e(f"  v_mul_lo_u32 v3, v3, s32")
        e(f"  s_lshl_b32 s34, s13, 11")
        e(f"  s_add_u32 m0, s34, {LDS_G + 1024*ii}")
        e("  s_nop 0")
        e(f"  buffer_load_dwordx4 v3, s[24:27], s15 offen lds")
        e(f"  s_add_u32 m0, s34, {LDS_U + 1024*ii}")
        e("  s_nop 0")
        e(f"  buffer_load_dwordx4 v3, s[28:31], s15 offen lds")
    e("  s_waitcnt vmcnt(4)")
    e("  v_mov_b32 v20, 0")
    for rnd in range(8):
        e("  v_max3_u32 v16, v8, v9, v10")
        e("  v_max3_u32 v17, v11, v12, v13")
        e("  v_max3_u32 v16, v16, v14, v15")
        e("  v_max_u32 v16, v16, v17")
        e("  s_nop 1")
        e("  v_max_u32_dpp v16, v16, v16 quad_perm:[1,0,3,2] row_mask:0xf bank_mask:0xf")
        e("  s_nop 1")
        e("  v_max_u32_dpp v16, v16, v16 quad_perm:[2,3,0,1] row_mask:0xf bank_mask:0xf")
        e("  s_nop 1")
        e("  v_max_u32_dpp v16, v16, v16 row_half_mirror row_mask:0xf bank_mask:0xf")
        e("  s_nop 1")
        e("  v_max_u32_dpp v16, v16, v16 row_mirror row_mask:0xf bank_mask:0xf")
        e("  s_nop 1")
        e("  v_readlane_b32 s36, v16, 0")
        e("  v_readlane_b32 s37, v16, 16")
        e("  v_readlane_b32 s38, v16, 32")
        e("  v_readlane_b32 s39, v16, 48")
        e("  s_max_u32 s36, s36, s37")
        e("  s_max_u32 s38, s38, s39")
        e("  s_max_u32 s36, s36, s38")
        e(f"  v_writelane_b32 v20, s36, {rnd}")
        if rnd < 7:
            for k in range(8):
                e(f"  v_cmp_ne_u32 vcc, s36, v{8+k}")
                e("  s_nop 1")
                e(f"  v_cndmask_b32 v{8+k}, 0, v{8+k}, vcc")
    e("  s_lshl_b32 s33, s13, 5")
    e(f"  s_add_u32 s33, s33, {LDS_C}")
    e("  v_lshlrev_b32 v3, 2, v0")
    e("  v_add_u32 v3, s33, v3")
    e("  v_cmp_gt_u32 vcc, 8, v0")
    e("  s_and_saveexec_b64 s[40:41], vcc")
    e("  ds_write_b32 v3, v20")
    e("  s_mov_b64 exec, s[40:41]")
    e("  s_waitcnt lgkmcnt(0)")
    e("  s_barrier")
    e("  v_and_b32 v3, 31, v0")
    e("  v_lshlrev_b32 v3, 2, v3")
    e(f"  ds_read_b32 v21, v3 offset:{LDS_C}")
    e("  v_mov_b32 v22, 0")
    e("  s_waitcnt lgkmcnt(0)")
    for i in range(32):
        e(f"  v_readlane_b32 s36, v21, {i}")
        e("  s_nop 1")
        e("  v_cmp_gt_u32 vcc, s36, v21")
        e("  s_nop 1")
        e("  v_addc_co_u32 v22, vcc, 0, v22, vcc")
    e("  v_cmp_gt_u32 vcc, 8, v22")
    e("  v_cmp_gt_u32 s[42:43], 32, v0")
    e("  s_and_b64 vcc, vcc, s[42:43]")
    e("  v_lshlrev_b32 v3, 2, v22")
    e("  s_and_saveexec_b64 s[40:41], vcc")
    e(f"  ds_write_b32 v3, v21 offset:{LDS_C+128}")
    e("  s_mov_b64 exec, s[40:41]")
    e("  s_waitcnt lgkmcnt(0)")
    e("  s_barrier")
    e("  v_lshrrev_b32 v4, 5, v40")
    e("  v_and_b32 v5, 31, v40")
    e("  v_lshlrev_b32 v3, 2, v4")
    e(f"  ds_read_b32 v6, v3 offset:{LDS_C+128}")
    e("  s_waitcnt lgkmcnt(0)")
    e("  s_cmp_lg_u32 s3, 0")
    e("  s_cbranch_scc1 t2_nopub")
    e("  v_cmp_eq_u32 vcc, 0, v5")
    e("  s_and_saveexec_b64 s[40:41], vcc")
    e(f"  s_mov_b32 s14, {WS_IDX}")
    e("  buffer_store_dword v6, v3, s[20:23], s14 offen")
    e("  s_mov_b64 exec, s[40:41]")
    lab("t2_nopub")
    e("  v_and_b32 v6, 0xffff, v6")
    e("  v_sub_u32 v6, 0xffff, v6")
    e("  v_lshlrev_b32 v7, 10, v6")
    e("  v_lshl_add_u32 v7, v5, 4, v7")
    e(f"  s_mov_b32 s14, {WS_Y}")
    e(f"  s_mov_b32 s15, {WS_Y + (2<<20)}")
    YR, YI, XX = 24, 32, 44
    for j in range(2):
        e(f"  buffer_load_dwordx4 {vr(YR+4*j,4)}, v7, s[20:23], s14 offen offset:{512*j}")
        e(f"  buffer_load_dwordx4 {vr(YI+4*j,4)}, v7, s[20:23], s15 offen offset:{512*j}")
        e(f"  buffer_load_dwordx4 {vr(XX+4*j,4)}, v7, s[16:19], 0 offen offset:{512*j}")
    e("  v_lshlrev_b32 v3, 3, v6")
    e(f"  s_mov_b32 s14, {WS_STAT}")
    e("  buffer_load_dwordx2 v[52:53], v3, s[20:23], s14 offen")
    e("  s_waitcnt vmcnt(0)")
    e("  v_sub_f32 v54, 0, v52")
    e("  v_mov_b32 v55, v54")
    e("  v_mov_b32 v52, v53")
    recompute(YR, YI, XX, 8, 54, 52, 64, 80, 56)
    e(f"  v_mul_u32_u24 v3, {XS_STRIDE}, v4")
    e("  v_lshl_add_u32 v3, v5, 4, v3")
    e(f"  ds_write_b128 v3, v[80:83] offset:{LDS_XS}")
    e(f"  ds_write_b128 v3, v[84:87] offset:{LDS_XS+512}")
    e("  s_waitcnt lgkmcnt(0)")
    e("  s_barrier")
    e("  s_cmp_lg_u32 s13, 0")
    e("  s_cbranch_scc1 t2_done")
    e("  v_and_b32 v3, 7, v0")
    e(f"  v_mul_u32_u24 v3, {XS_STRIDE}, v3")
    e("  v_lshrrev_b32 v4, 4, v0")
    e("  v_lshl_add_u32 v3, v4, 4, v3")
    e("  v_and_b32 v5, 15, v0")
    e("  v_lshrrev_b32 v5, 2, v5")
    e("  v_lshl_add_u32 v5, v4, 3, v5")
    e("  v_lshlrev_b32 v5, 4, v5")
    e("  v_and_b32 v6, 1, v0")
    e("  v_lshl_add_u32 v5, v6, 3, v5")
    e("  v_and_b32 v6, 2, v0")
    e("  v_lshl_add_u32 v5, v6, 12, v5")
    for i in range(4):
        e(f"  v_mov_b32 v{8+i}, 0")
    FA, FB = 64, 128
    for st in range(16):
        e(f"  ds_read_b128 {vr(FA+4*st,4)}, v3 offset:{LDS_XS + 64*st}")
        e(f"  ds_read_b64_tr_b16 {vr(FB+4*st,2)}, v5 offset:{512*st}")
        e(f"  ds_read_b64_tr_b16 {vr(FB+4*st+2,2)}, v5 offset:{512*st+64}")
        if st % 4 == 3:
            e("  s_waitcnt lgkmcnt(0)")
            for s2 in range(st-3, st+1):
                e(f"  v_mfma_f32_16x16x32_bf16 v[8:11], {vr(FA+4*s2,4)}, {vr(FB+4*s2,4)}, v[8:11]")
    e("  s_nop 15")
    for i in range(4):
        e(f"  v_cvt_pk_bf16_f32 v{8+i}, v{8+i}, v{8+i}")
        e(f"  v_lshlrev_b32 v{8+i}, 16, v{8+i}")
    e("  s_nop 1")
    for i in range(4):
        e(f"  v_mov_b32_dpp v{12+i}, v{8+i} row_ror:8 row_mask:0xf bank_mask:0xf")
    for i in range(4):
        e(f"  v_mul_f32 v16, 0xbfb8aa3b, v{8+i}")
        e("  v_exp_f32 v16, v16")
        e("  s_nop 0")
        e("  v_add_f32 v16, 1.0, v16")
        e("  v_rcp_f32 v16, v16")
        e("  s_nop 0")
        e(f"  v_mul_f32 v16, v{8+i}, v16")
        e("  v_cvt_pk_bf16_f32 v16, v16, v16")
        e("  v_lshlrev_b32 v16, 16, v16")
        e(f"  v_mul_f32 v16, v16, v{12+i}")
        e(f"  v_cvt_pk_bf16_f32 v{20+i}, v16, v16")
    e("  v_and_b32 v5, 15, v0")
    e("  v_cmp_gt_u32 vcc, 8, v5")
    e("  v_cmp_gt_u32 s[42:43], 32, v0")
    e("  s_and_b64 vcc, vcc, s[42:43]")
    e("  s_and_saveexec_b64 s[40:41], vcc")
    e("  v_lshlrev_b32 v4, 2, v4")
    e("  v_mul_u32_u24 v4, 3584, v4")
    e("  v_lshl_add_u32 v4, v5, 1, v4")
    e("  s_lshl_b32 s15, s3, 4")
    e(f"  s_add_u32 s15, s15, {WS_GU}")
    for i in range(4):
        e(f"  buffer_store_short v{20+i}, v4, s[20:23], s15 offen offset:{3584*i if 3584*i < 4096 else 0}") if False else None
    for i in range(4):
        e(f"  buffer_store_short v{20+i}, v4, s[20:23], s15 offen")
        if i < 3:
            e("  v_add_u32 v4, 3584, v4")
    lab("t2_done")
    kernel_end()
    e("  s_endpgm")
    kernel_desc(name, 192)

def gen_t3():
    name = "t3_kernel"
    kernel_begin(name)
    LDS_W, LDS_R = 0, 28672
    e("  s_cmp_ge_u32 s2, 64")
    e("  s_cbranch_scc1 t3_done")
    e(f"  s_load_dwordx2 s[4:5], s[0:1], {KA_X}")
    e(f"  s_load_dwordx2 s[6:7], s[0:1], {KA_WS}")
    e(f"  s_load_dwordx4 s[8:11], s[0:1], {KA_WDN}")
    e("  s_and_b32 s3, s2, 7")
    e("  s_lshl_b32 s3, s3, 3")
    e("  s_lshr_b32 s12, s2, 3")
    e("  s_add_u32 s3, s3, s12")
    e("  v_lshrrev_b32 v1, 6, v0")
    e("  v_and_b32 v0, 63, v0")
    e("  v_readfirstlane_b32 s13, v1")
    e("  s_waitcnt lgkmcnt(0)")
    srd(16, 4, 5, 2 << 20)
    srd(20, 6, 7, 9 << 20)
    srd(24, 8, 9, 1792*512*2)
    srd(28, 10, 11, 2 << 20)
    e("  s_lshl_b32 s15, s3, 4")
    e("  s_mul_i32 s33, s13, 448")
    e("  v_add_u32 v3, s33, v0")
    e("  v_lshlrev_b32 v3, 10, v3")
    e("  s_mul_i32 s34, s13, 7168")
    for i in range(7):
        e(f"  s_add_u32 m0, s34, {LDS_W + 1024*i}")
        e("  s_nop 0")
        e(f"  buffer_load_dwordx4 v3, s[24:27], s15 offen lds")
        if i < 6:
            e("  v_add_u32 v3, 0x10000, v3")
    e("  v_and_b32 v4, 7, v0")
    e("  v_mul_u32_u24 v4, 3584, v4")
    e("  v_lshrrev_b32 v5, 4, v0")
    e("  v_lshl_add_u32 v4, v5, 4, v4")
    e("  s_mul_i32 s14, s13, 896")
    e(f"  s_add_u32 s14, s14, {WS_GU}")
    FA = 64
    for st in range(14):
        e(f"  buffer_load_dwordx4 {vr(FA+4*st,4)}, v4, s[20:23], s14 offen offset:{64*st}")
    e("  v_lshlrev_b32 v6, 4, v5")
    e(f"  s_mov_b32 s14, {WS_IDX}")
    e("  buffer_load_dwordx4 v[24:27], v6, s[20:23], s14 offen")
    e("  v_and_b32 v7, 15, v0")
    e("  v_lshrrev_b32 v7, 2, v7")
    e("  v_lshl_add_u32 v7, v5, 3, v7")
    e("  v_lshlrev_b32 v7, 4, v7")
    e("  v_and_b32 v6, 1, v0")
    e("  v_lshl_add_u32 v7, v6, 3, v7")
    e("  v_add_u32 v7, s34, v7")
    for i in range(4):
        e(f"  v_mov_b32 v{8+i}, 0")
    e("  s_waitcnt vmcnt(0)")
    FB = 128
    for st in range(14):
        e(f"  ds_read_b64_tr_b16 {vr(FB+4*st,2)}, v7 offset:{512*st}")
        e(f"  ds_read_b64_tr_b16 {vr(FB+4*st+2,2)}, v7 offset:{512*st+64}")
    e("  s_waitcnt lgkmcnt(0)")
    for st in range(14):
        e(f"  v_mfma_f32_16x16x32_bf16 v[8:11], {vr(FA+4*st,4)}, {vr(FB+4*st,4)}, v[8:11]")
    e("  s_nop 15")
    e("  v_lshlrev_b32 v3, 4, v0")
    e("  s_lshl_b32 s33, s13, 10")
    e("  v_add_u32 v3, s33, v3")
    e(f"  ds_write_b128 v3, v[8:11] offset:{LDS_R}")
    e("  s_waitcnt lgkmcnt(0)")
    e("  s_barrier")
    e("  s_cmp_lg_u32 s13, 0")
    e("  s_cbranch_scc1 t3_done")
    e("  v_lshlrev_b32 v3, 4, v0")
    for w in range(1, 4):
        e(f"  ds_read_b128 {vr(12+4*(w-1),4)}, v3 offset:{LDS_R+1024*w}")
    e("  v_and_b32 v6, 15, v0")
    e("  v_cmp_gt_u32 vcc, 8, v6")
    e("  v_cmp_gt_u32 s[42:43], 32, v0")
    e("  s_and_b64 vcc, vcc, s[42:43]")
    e("  s_and_saveexec_b64 s[40:41], vcc")
    e(f"  s_mov_b32 s36, {WS_Y}")
    e(f"  s_mov_b32 s37, {WS_Y + (2<<20)}")
    e(f"  s_mov_b32 s38, {WS_STAT}")
    for i in range(4):
        e(f"  v_and_b32 v{28+i}, 0xffff, v{24+i}")
        e(f"  v_sub_u32 v{28+i}, 0xffff, v{28+i}")
        e(f"  v_lshlrev_b32 v{32+i}, 3, v{28+i}")
        e(f"  v_lshlrev_b32 v{28+i}, 10, v{28+i}")
        e(f"  v_lshl_add_u32 v{28+i}, v6, 1, v{28+i}")
        e(f"  v_add_u32 v{28+i}, s15, v{28+i}")
        e(f"  buffer_load_ushort v{36+i}, v{28+i}, s[20:23], s36 offen")
        e(f"  buffer_load_ushort v{40+i}, v{28+i}, s[20:23], s37 offen")
        e(f"  buffer_load_ushort v{44+i}, v{28+i}, s[16:19], 0 offen")
        e(f"  buffer_load_dwordx2 {vr(48+2*i,2)}, v{32+i}, s[20:23], s38 offen")
    e("  s_waitcnt lgkmcnt(0)")
    for i in range(4):
        e(f"  v_add_f32 v{8+i}, v{8+i}, v{12+i}")
        e(f"  v_add_f32 v{16+i}, v{16+i}, v{20+i}")
        e(f"  v_add_f32 v{8+i}, v{8+i}, v{16+i}")
        e(f"  v_cvt_pk_bf16_f32 v{8+i}, v{8+i}, v{8+i}")
        e(f"  v_lshlrev_b32 v{8+i}, 16, v{8+i}")
        e(f"  v_and_b32 v60, 0xffff0000, v{24+i}")
        e("  v_ashrrev_i32 v61, 31, v60")
        e("  v_not_b32 v61, v61")
        e("  v_or_b32 v61, 0x80000000, v61")
        e("  v_xor_b32 v60, v60, v61")
        e("  v_and_b32 v60, 0xffff0000, v60")
        e("  v_mul_f32 v60, 0xbfb8aa3b, v60")
        e("  v_exp_f32 v60, v60")
        e("  s_nop 0")
        e("  v_add_f32 v60, 1.0, v60")
        e("  v_rcp_f32 v60, v60")
        e("  s_nop 0")
        e("  v_cvt_pk_bf16_f32 v60, v60, v60")
        e("  v_lshlrev_b32 v60, 16, v60")
        e(f"  v_mul_f32 v{8+i}, v{8+i}, v60")
        e(f"  v_cvt_pk_bf16_f32 v{8+i}, v{8+i}, v{8+i}")
        e(f"  v_lshlrev_b32 v{8+i}, 16, v{8+i}")
    e("  s_waitcnt vmcnt(0)")
    for i in range(4):
        e(f"  v_lshlrev_b32 v{36+i}, 16, v{36+i}")
        e(f"  v_lshlrev_b32 v{40+i}, 16, v{40+i}")
        e(f"  v_lshlrev_b32 v{44+i}, 16, v{44+i}")
        e(f"  v_sub_f32 v60, v{36+i}, v{40+i}")
        e("  v_cvt_pk_bf16_f32 v60, v60, v60")
        e("  v_lshlrev_b32 v60, 16, v60")
        e(f"  v_add_f32 v60, v{44+i}, v60")
        e("  v_cvt_pk_bf16_f32 v60, v60, v60")
        e("  v_lshlrev_b32 v60, 16, v60")
        e(f"  v_sub_f32 v61, v60, v{48+2*i}")
        e("  v_cvt_pk_bf16_f32 v61, v61, v61")
        e("  v_lshlrev_b32 v61, 16, v61")
        e(f"  v_mul_f32 v61, v61, v{49+2*i}")
        e("  v_cvt_pk_bf16_f32 v61, v61, v61")
        e("  v_lshlrev_b32 v61, 16, v61")
        e(f"  v_add_f32 v61, v61, v{8+i}")
        e("  v_cvt_pk_bf16_f32 v61, v61, v61")
        e("  v_lshlrev_b32 v61, 16, v61")
        e("  v_add_f32 v61, v60, v61")
        e("  v_cvt_pk_bf16_f32 v61, v61, v61")
        e(f"  buffer_store_short v61, v{28+i}, s[28:31], 0 offen")
    lab("t3_done")
    kernel_end()
    e("  s_endpgm")
    kernel_desc(name, 192)

WS_FLAG = WS_KEY + 8192
def rowmac(first):
    YR, YI, XX, WR, H, T, D = 16, 32, 48, 64, 80, 112, 116
    O = 148
    e("  v_lshlrev_b32 v3, 10, v1")
    e("  v_lshl_add_u32 v3, v2, 4, v3")
    e(f"  s_mov_b32 s52, {WS_Y}")
    e(f"  s_mov_b32 s53, {WS_Y + (2<<20)}")
    for j in range(4):
        e(f"  buffer_load_dwordx4 {vr(YR+4*j,4)}, v3, s[24:27], s52 offen offset:{256*j}")
        e(f"  buffer_load_dwordx4 {vr(YI+4*j,4)}, v3, s[24:27], s53 offen offset:{256*j}")
        e(f"  buffer_load_dwordx4 {vr(XX+4*j,4)}, v3, s[20:23], 0 offen offset:{256*j}")
    nextra = 0
    if first:
        e("  v_lshlrev_b32 v4, 4, v2")
        for j in range(4):
            e(f"  buffer_load_dwordx4 {vr(WR+4*j,4)}, v4, s[28:31], 0 offen offset:{256*j}")
        nextra = 4
    e("  v_mov_b32 v14, 0")
    e("  v_mov_b32 v15, 0")
    for j in range(4):
        e(f"  s_waitcnt vmcnt({nextra + 3*(3-j)})")
        for q in range(4):
            i = 4*j + q
            e(f"  v_lshlrev_b32 v{T}, 16, v{YR+i}")
            e(f"  v_and_b32 v{T+1}, 0xffff0000, v{YR+i}")
            e(f"  v_lshlrev_b32 v{T+2}, 16, v{YI+i}")
            e(f"  v_and_b32 v{T+3}, 0xffff0000, v{YI+i}")
            e(f"  v_pk_add_f32 {vr(T,2)}, {vr(T,2)}, {vr(T+2,2)} neg_lo:[0,1] neg_hi:[0,1]")
            e(f"  v_cvt_pk_bf16_f32 v{T}, v{T}, v{T+1}")
            e(f"  v_and_b32 v{T+1}, 0xffff0000, v{T}")
            e(f"  v_lshlrev_b32 v{T}, 16, v{T}")
            e(f"  v_lshlrev_b32 v{T+2}, 16, v{XX+i}")
            e(f"  v_and_b32 v{T+3}, 0xffff0000, v{XX+i}")
            e(f"  v_pk_add_f32 {vr(T,2)}, {vr(T,2)}, {vr(T+2,2)}")
            e(f"  v_cvt_pk_bf16_f32 v{YI+i}, v{T}, v{T+1}")
            e(f"  v_lshlrev_b32 v{H+2*i}, 16, v{YI+i}")
            e(f"  v_and_b32 v{H+2*i+1}, 0xffff0000, v{YI+i}")
            e(f"  v_pk_add_f32 v[14:15], v[14:15], {vr(H+2*i,2)}")
    e("  v_add_f32 v5, v14, v15")
    reduce16(5)
    e("  v_mul_f32 v5, 0x3b000000, v5")
    e("  v_cvt_pk_bf16_f32 v6, v5, v5")
    e("  v_lshlrev_b32 v6, 16, v6")
    e("  v_sub_f32 v8, 0, v6")
    e("  v_mov_b32 v9, v8")
    e("  v_mov_b32 v10, 0")
    e("  v_mov_b32 v11, 0")
    for i in range(16):
        e(f"  v_pk_add_f32 {vr(D+2*i,2)}, {vr(H+2*i,2)}, v[8:9]")
        e(f"  v_pk_fma_f32 v[10:11], {vr(D+2*i,2)}, {vr(D+2*i,2)}, v[10:11]")
    e("  v_add_f32 v10, v10, v11")
    reduce16(10)
    e("  v_sub_f32 v11, v5, v6")
    e("  v_mul_f32 v11, v11, v11")
    e("  v_mul_f32 v10, 0x3b000000, v10")
    e("  v_sub_f32 v10, v10, v11")
    e("  v_max_f32 v10, 0, v10")
    e("  v_cvt_pk_bf16_f32 v10, v10, v10")
    e("  v_lshlrev_b32 v10, 16, v10")
    e("  v_add_f32 v10, 0x3727c5ac, v10")
    e("  v_cvt_pk_bf16_f32 v10, v10, v10")
    e("  v_lshlrev_b32 v10, 16, v10")
    e("  v_sqrt_f32 v10, v10")
    e("  s_nop 0")
    e("  v_cvt_pk_bf16_f32 v10, v10, v10")
    e("  v_lshlrev_b32 v10, 16, v10")
    e("  v_rcp_f32 v10, v10")
    e("  s_nop 0")
    e("  v_mov_b32 v11, v10")
    if first:
        e("  v_mov_b32 v12, 0")
        e("  s_waitcnt vmcnt(0)")
    for i in range(16):
        e(f"  v_cvt_pk_bf16_f32 v{T}, v{D+2*i}, v{D+2*i+1}")
        e(f"  v_lshlrev_b32 v{D+2*i}, 16, v{T}")
        e(f"  v_and_b32 v{D+2*i+1}, 0xffff0000, v{T}")
        e(f"  v_pk_mul_f32 {vr(D+2*i,2)}, {vr(D+2*i,2)}, v[10:11]")
        e(f"  v_cvt_pk_bf16_f32 v{YR+i}, v{D+2*i}, v{D+2*i+1}")
        if first:
            e(f"  v_dot2_f32_bf16 v12, v{YR+i}, v{WR+i}, v12")
            e(f"  v_lshlrev_b32 v{D+2*i}, 16, v{YR+i}")
            e(f"  v_and_b32 v{D+2*i+1}, 0xffff0000, v{YR+i}")
            e(f"  v_pk_add_f32 {vr(D+2*i,2)}, {vr(D+2*i,2)}, {vr(H+2*i,2)}")
            e(f"  v_cvt_pk_bf16_f32 v{O+i}, v{D+2*i}, v{D+2*i+1}")
    if first:
        e("  s_nop 3")
        reduce16(12)
        e("  v_cvt_pk_bf16_f32 v12, v12, v12")
        e("  v_lshlrev_b32 v12, 16, v12")
        e("  v_ashrrev_i32 v13, 31, v12")
        e("  v_or_b32 v13, 0x80000000, v13")
        e("  v_xor_b32 v12, v12, v13")
        e("  v_and_b32 v12, 0xffff0000, v12")
        e("  v_sub_u32 v13, 0xffff, v1")
        e("  v_or_b32 v12, v12, v13")

def gen_tf():
    name = "tf_kernel"
    kernel_begin(name)
    LDS_G, LDS_U, LDS_WD = 0, 8192, 16384
    LDS_XS = 45056
    LDS_HS = LDS_XS + 8 * XS_STRIDE
    LDS_C = LDS_HS + 8192
    LDS_R = LDS_C + 256
    SPIN = 1 << 22
    e("  s_cmp_ge_u32 s2, 256")
    e("  s_cbranch_scc1 tf_done")
    e(f"  s_load_dwordx2 s[4:5], s[0:1], {KA_X}")
    e(f"  s_load_dwordx2 s[6:7], s[0:1], {KA_WS}")
    e(f"  s_load_dwordx8 s[8:15], s[0:1], {KA_WR}")
    e(f"  s_load_dwordx2 s[16:17], s[0:1], {KA_OUT}")
    e("  s_and_b32 s3, s2, 7")
    e("  s_mul_i32 s49, s3, 28")
    e("  s_lshr_b32 s50, s2, 3")
    e("  s_add_u32 s49, s49, s50")
    e("  s_sub_u32 s50, s50, 24")
    e("  s_lshl_b32 s51, s3, 3")
    e("  s_add_u32 s50, s50, s51")
    e("  v_mov_b32 v180, v0")
    e("  v_lshrrev_b32 v1, 6, v0")
    e("  v_and_b32 v0, 63, v0")
    e("  v_readfirstlane_b32 s48, v1")
    e("  s_waitcnt lgkmcnt(0)")
    srd(20, 4, 5, 2 << 20)
    srd(24, 6, 7, 9 << 20)
    srd(28, 8, 9, 1024)
    srd(32, 10, 11, 512*1792*2)
    srd(36, 12, 13, 512*1792*2)
    srd(40, 14, 15, 1792*512*2)
    srd(44, 16, 17, 2 << 20)
    e("  s_cmp_lt_u32 s48, 2")
    e("  s_cbranch_scc1 tf_p1")
    e("  s_cmp_ge_u32 s2, 224")
    e("  s_cbranch_scc1 tf_nof1")
    e("  s_movk_i32 s52, 3584")
    e("  v_mul_lo_u32 v3, v0, s52")
    e("  s_lshl_b32 s53, s49, 4")
    e("  s_cmp_eq_u32 s48, 2")
    e("  s_cbranch_scc0 tf_dma_u")
    for i in range(8):
        e(f"  s_mov_b32 m0, {LDS_G + 1024*i}")
        e("  s_nop 0")
        e("  buffer_load_dwordx4 v3, s[32:35], s53 offen lds")
        e(f"  s_add_u32 s53, s53, {64*3584}")
    e("  s_branch tf_nof1")
    lab("tf_dma_u")
    for i in range(8):
        e(f"  s_mov_b32 m0, {LDS_U + 1024*i}")
        e("  s_nop 0")
        e("  buffer_load_dwordx4 v3, s[36:39], s53 offen lds")
        e(f"  s_add_u32 s53, s53, {64*3584}")
    lab("tf_nof1")
    e("  s_cmp_lt_u32 s2, 192")
    e("  s_cbranch_scc1 tf_poll1")
    e("  v_lshlrev_b32 v3, 10, v0")
    e("  s_sub_u32 s52, s48, 2")
    e(f"  s_mul_i32 s53, s52, {896*1024}")
    e("  s_lshl_b32 s54, s50, 4")
    e("  s_add_u32 s53, s53, s54")
    e(f"  s_mul_i32 s54, s52, {896*16}")
    for i in range(14):
        e(f"  s_add_u32 m0, s54, {LDS_WD + 1024*i}")
        e("  s_nop 0")
        e("  buffer_load_dwordx4 v3, s[40:43], s53 offen lds")
        e("  s_add_u32 s53, s53, 0x10000")
    e("  s_branch tf_poll1")
    lab("tf_p1")
    e("  v_lshrrev_b32 v1, 4, v180")
    e("  v_and_b32 v2, 15, v0")
    e("  s_lshl_b32 s52, s2, 3")
    e("  v_add_u32 v1, s52, v1")
    e("  v_mov_b32 v181, v1")
    rowmac(True)
    e("  v_cmp_eq_u32 vcc, 0, v2")
    e("  s_and_saveexec_b64 s[56:57], vcc")
    e("  v_lshlrev_b32 v13, 2, v1")
    e(f"  s_mov_b32 s52, {WS_KEY}")
    e("  buffer_store_dword v12, v13, s[24:27], s52 offen sc1")
    e("  s_mov_b64 exec, s[56:57]")
    stamp(1)
    lab("tf_poll1")
    K = 164
    e("  v_lshlrev_b32 v172, 5, v180")
    e(f"  s_mov_b32 s52, {WS_KEY}")
    e("  s_mov_b32 s60, 0")
    lab("tf_poll1_loop")
    e(f"  buffer_load_dwordx4 {vr(K,4)}, v172, s[24:27], s52 offen sc1")
    e(f"  buffer_load_dwordx4 {vr(K+4,4)}, v172, s[24:27], s52 offen offset:16 sc1")
    e("  s_waitcnt vmcnt(0)")
    e(f"  v_min3_u32 v173, v{K}, v{K+1}, v{K+2}")
    e(f"  v_min3_u32 v174, v{K+3}, v{K+4}, v{K+5}")
    e(f"  v_min3_u32 v173, v173, v{K+6}, v{K+7}")
    e("  v_min_u32 v173, v173, v174")
    e("  v_cmp_eq_u32 s[62:63], 0, v173")
    e("  s_nop 3")
    e("  s_cmp_eq_u64 s[62:63], 0")
    e("  s_cbranch_scc1 tf_poll1_ok")
    e("  s_add_u32 s60, s60, 1")
    e(f"  s_cmp_gt_u32 s60, {SPIN}")
    e("  s_cbranch_scc1 tf_poll1_ok")
    e("  s_sleep 1")
    e("  s_branch tf_poll1_loop")
    lab("tf_poll1_ok")
    stamp(2)
    e("  v_mov_b32 v176, 0")
    for rnd in range(8):
        e(f"  v_max3_u32 v173, v{K}, v{K+1}, v{K+2}")
        e(f"  v_max3_u32 v174, v{K+3}, v{K+4}, v{K+5}")
        e(f"  v_max3_u32 v173, v173, v{K+6}, v{K+7}")
        e("  v_max_u32 v173, v173, v174")
        e("  s_nop 1")
        e("  v_max_u32_dpp v173, v173, v173 quad_perm:[1,0,3,2] row_mask:0xf bank_mask:0xf")
        e("  s_nop 1")
        e("  v_max_u32_dpp v173, v173, v173 quad_perm:[2,3,0,1] row_mask:0xf bank_mask:0xf")
        e("  s_nop 1")
        e("  v_max_u32_dpp v173, v173, v173 row_half_mirror row_mask:0xf bank_mask:0xf")
        e("  s_nop 1")
        e("  v_max_u32_dpp v173, v173, v173 row_mirror row_mask:0xf bank_mask:0xf")
        e("  s_nop 1")
        e("  v_readlane_b32 s64, v173, 0")
        e("  v_readlane_b32 s65, v173, 16")
        e("  v_readlane_b32 s66, v173, 32")
        e("  v_readlane_b32 s67, v173, 48")
        e("  s_max_u32 s64, s64, s65")
        e("  s_max_u32 s66, s66, s67")
        e("  s_max_u32 s64, s64, s66")
        e(f"  v_writelane_b32 v176, s64, {rnd}")
        if rnd < 7:
            for k in range(8):
                e(f"  v_cmp_ne_u32 vcc, s64, v{K+k}")
                e("  s_nop 1")
                e(f"  v_cndmask_b32 v{K+k}, 0, v{K+k}, vcc")
    e("  s_lshl_b32 s52, s48, 5")
    e(f"  s_add_u32 s52, s52, {LDS_C}")
    e("  v_lshlrev_b32 v172, 2, v0")
    e("  v_add_u32 v172, s52, v172")
    e("  v_cmp_gt_u32 vcc, 8, v0")
    e("  s_and_saveexec_b64 s[56:57], vcc")
    e("  ds_write_b32 v172, v176")
    e("  s_mov_b64 exec, s[56:57]")
    e("  s_waitcnt lgkmcnt(0)")
    e("  s_barrier")
    e("  v_and_b32 v172, 31, v0")
    e("  v_lshlrev_b32 v172, 2, v172")
    e(f"  ds_read_b32 v177, v172 offset:{LDS_C}")
    e("  v_mov_b32 v178, 0")
    e("  s_waitcnt lgkmcnt(0)")
    for i in range(32):
        e(f"  v_readlane_b32 s64, v177, {i}")
        e("  s_nop 1")
        e("  v_cmp_gt_u32 vcc, s64, v177")
        e("  s_nop 1")
        e("  v_addc_co_u32 v178, vcc, 0, v178, vcc")
    e("  v_cmp_gt_u32 vcc, 8, v178")
    e("  v_cmp_gt_u32 s[58:59], 32, v0")
    e("  s_and_b64 vcc, vcc, s[58:59]")
    e("  v_lshlrev_b32 v172, 2, v178")
    e("  s_and_saveexec_b64 s[56:57], vcc")
    e(f"  ds_write_b32 v172, v177 offset:{LDS_C+128}")
    e("  s_mov_b64 exec, s[56:57]")
    e("  s_waitcnt lgkmcnt(0)")
    e("  s_barrier")
    stamp(3)
    e("  s_cmp_lt_u32 s48, 2")
    e("  s_cbranch_scc1 tf_p2")
    e("  s_waitcnt vmcnt(0)")
    e("  s_branch tf_p2_end")
    lab("tf_p2")
    e("  v_mov_b32 v172, 0")
    e(f"  ds_read_b128 {vr(K,4)}, v172 offset:{LDS_C+128}")
    e(f"  ds_read_b128 {vr(K+4,4)}, v172 offset:{LDS_C+144}")
    e("  v_lshrrev_b32 v173, 4, v180")
    e("  v_lshlrev_b32 v173, 2, v173")
    e(f"  ds_read_b32 v174, v173 offset:{LDS_C+128}")
    e("  v_sub_u32 v175, 0xffff, v181")
    e("  s_waitcnt lgkmcnt(0)")
    e("  s_mov_b64 s[58:59], exec")
    for k in range(8):
        e(f"  v_and_b32 v{K+k}, 0xffff, v{K+k}")
        e(f"  v_cmp_ne_u32 vcc, v{K+k}, v175")
        e("  s_and_b64 s[58:59], s[58:59], vcc")
    e("  v_lshlrev_b32 v3, 10, v181")
    e("  v_lshl_add_u32 v3, v2, 4, v3")
    e("  s_and_saveexec_b64 s[56:57], s[58:59]")
    e("  s_cbranch_execz tf_nostore")
    for j in range(4):
        e(f"  buffer_store_dwordx4 {vr(148+4*j,4)}, v3, s[44:47], 0 offen offset:{256*j}")
    lab("tf_nostore")
    e("  s_mov_b64 exec, s[56:57]")
    e("  v_and_b32 v1, 0xffff, v174")
    e("  v_sub_u32 v1, 0xffff, v1")
    rowmac(False)
    e("  v_lshrrev_b32 v173, 4, v180")
    e(f"  v_mul_u32_u24 v4, {XS_STRIDE}, v173")
    e("  v_lshl_add_u32 v4, v2, 4, v4")
    e("  v_lshlrev_b32 v5, 10, v173")
    e("  v_lshl_add_u32 v5, v2, 4, v5")
    for j in range(4):
        e(f"  ds_write_b128 v4, {vr(16+4*j,4)} offset:{LDS_XS+256*j}")
        e(f"  ds_write_b128 v5, {vr(32+4*j,4)} offset:{LDS_HS+256*j}")
    e("  s_waitcnt lgkmcnt(0)")
    lab("tf_p2_end")
    e("  s_barrier")
    stamp(4)
    e("  s_cmp_lg_u32 s48, 0")
    e("  s_cbranch_scc1 tf_f2")
    e("  s_cmp_ge_u32 s2, 224")
    e("  s_cbranch_scc1 tf_f2")
    e("  v_and_b32 v3, 7, v0")
    e(f"  v_mul_u32_u24 v3, {XS_STRIDE}, v3")
    e("  v_lshrrev_b32 v4, 4, v0")
    e("  v_lshl_add_u32 v3, v4, 4, v3")
    e("  v_and_b32 v5, 15, v0")
    e("  v_lshrrev_b32 v5, 2, v5")
    e("  v_lshl_add_u32 v5, v4, 3, v5")
    e("  v_lshlrev_b32 v5, 4, v5")
    e("  v_and_b32 v6, 1, v0")
    e("  v_lshl_add_u32 v5, v6, 3, v5")
    e("  v_and_b32 v6, 2, v0")
    e("  v_lshl_add_u32 v5, v6, 12, v5")
    for i in range(4):
        e(f"  v_mov_b32 v{8+i}, 0")
    FA, FB = 16, 80
    for st in range(16):
        e(f"  ds_read_b128 {vr(FA+4*st,4)}, v3 offset:{LDS_XS + 64*st}")
        e(f"  ds_read_b64_tr_b16 {vr(FB+4*st,2)}, v5 offset:{512*st}")
        e(f"  ds_read_b64_tr_b16 {vr(FB+4*st+2,2)}, v5 offset:{512*st+64}")
        if st % 4 == 3:
            e("  s_waitcnt lgkmcnt(0)")
            for s2 in range(st-3, st+1):
                e(f"  v_mfma_f32_16x16x32_bf16 v[8:11], {vr(FA+4*s2,4)}, {vr(FB+4*s2,4)}, v[8:11]")
    e("  s_nop 15")
    for i in range(4):
        e(f"  v_cvt_pk_bf16_f32 v{8+i}, v{8+i}, v{8+i}")
        e(f"  v_lshlrev_b32 v{8+i}, 16, v{8+i}")
    e("  s_nop 1")
    for i in range(4):
        e(f"  v_mov_b32_dpp v{12+i}, v{8+i} row_ror:8 row_mask:0xf bank_mask:0xf")
    for i in range(4):
        e(f"  v_mul_f32 v16, 0xbfb8aa3b, v{8+i}")
        e("  v_exp_f32 v16, v16")
        e("  s_nop 0")
        e("  v_add_f32 v16, 1.0, v16")
        e("  v_rcp_f32 v16, v16")
        e("  s_nop 0")
        e(f"  v_mul_f32 v16, v{8+i}, v16")
        e("  v_cvt_pk_bf16_f32 v16, v16, v16")
        e("  v_lshlrev_b32 v16, 16, v16")
        e(f"  v_mul_f32 v16, v16, v{12+i}")
        e(f"  v_cvt_pk_bf16_f32 v{20+i}, v16, v16")
    e("  s_nop 1")
    for i in range(4):
        e(f"  v_mov_b32_dpp v{24+i}, v{20+i} quad_perm:[1,0,3,2] row_mask:0xf bank_mask:0xf")
    for i in range(4):
        e(f"  v_and_b32 v{20+i}, 0xffff, v{20+i}")
        e(f"  v_and_b32 v{24+i}, 0xffff0000, v{24+i}")
        e(f"  v_or_b32 v{20+i}, v{20+i}, v{24+i}")
    e("  v_and_b32 v5, 15, v0")
    e("  v_and_b32 v6, 9, v0")
    e("  v_cmp_eq_u32 vcc, 0, v6")
    e("  v_cmp_gt_u32 s[58:59], 32, v0")
    e("  s_and_b64 vcc, vcc, s[58:59]")
    e("  s_and_saveexec_b64 s[56:57], vcc")
    e("  v_lshlrev_b32 v4, 2, v4")
    e("  v_mul_u32_u24 v4, 3584, v4")
    e("  v_lshl_add_u32 v4, v5, 1, v4")
    e("  s_lshl_b32 s52, s49, 4")
    e(f"  s_add_u32 s52, s52, {WS_GU}")
    for i in range(4):
        e(f"  buffer_store_dword v{20+i}, v4, s[24:27], s52 offen sc1")
        if i < 3:
            e("  v_add_u32 v4, 3584, v4")
    e("  s_waitcnt vmcnt(0)")
    e("  s_mov_b64 exec, 1")
    e("  v_mov_b32 v4, 1")
    e("  v_mov_b32 v5, 0")
    e("  s_lshl_b32 s52, s49, 2")
    e(f"  s_add_u32 s52, s52, {WS_FLAG}")
    e("  buffer_store_dword v4, v5, s[24:27], s52 offen sc1")
    e("  s_mov_b64 exec, s[56:57]")
    stamp(5)
    lab("tf_f2")
    e("  s_cmp_lt_u32 s2, 192")
    e("  s_cbranch_scc1 tf_done")
    e("  v_min_u32 v3, 55, v0")
    e("  v_lshlrev_b32 v3, 2, v3")
    e("  s_mul_i32 s52, s48, 224")
    e(f"  s_add_u32 s52, s52, {WS_FLAG}")
    e("  s_mov_b32 s60, 0")
    lab("tf_poll2_loop")
    e("  buffer_load_dword v4, v3, s[24:27], s52 offen sc1")
    e("  s_waitcnt vmcnt(0)")
    e("  v_cmp_eq_u32 s[62:63], 0, v4")
    e("  s_nop 3")
    e("  s_cmp_eq_u64 s[62:63], 0")
    e("  s_cbranch_scc1 tf_poll2_ok")
    e("  s_add_u32 s60, s60, 1")
    e(f"  s_cmp_gt_u32 s60, {SPIN}")
    e("  s_cbranch_scc1 tf_poll2_ok")
    e("  s_sleep 1")
    e("  s_branch tf_poll2_loop")
    lab("tf_poll2_ok")
    stamp(6)
    e("  v_and_b32 v4, 7, v0")
    e("  v_mul_u32_u24 v4, 3584, v4")
    e("  v_lshrrev_b32 v5, 4, v0")
    e("  v_lshl_add_u32 v4, v5, 4, v4")
    e("  s_mul_i32 s52, s48, 896")
    e(f"  s_add_u32 s52, s52, {WS_GU}")
    FA, FB = 16, 72
    for st in range(14):
        e(f"  buffer_load_dwordx4 {vr(FA+4*st,4)}, v4, s[24:27], s52 offen offset:{64*st} sc1")
    e("  v_and_b32 v7, 15, v0")
    e("  v_lshrrev_b32 v7, 2, v7")
    e("  v_lshl_add_u32 v7, v5, 3, v7")
    e("  v_lshlrev_b32 v7, 4, v7")
    e("  v_and_b32 v6, 1, v0")
    e("  v_lshl_add_u32 v7, v6, 3, v7")
    e("  s_mul_i32 s54, s48, 7168")
    e(f"  s_add_u32 s54, s54, {LDS_WD}")
    e("  v_add_u32 v7, s54, v7")
    for st in range(14):
        e(f"  ds_read_b64_tr_b16 {vr(FB+4*st,2)}, v7 offset:{512*st}")
        e(f"  ds_read_b64_tr_b16 {vr(FB+4*st+2,2)}, v7 offset:{512*st+64}")
    for i in range(4):
        e(f"  v_mov_b32 v{8+i}, 0")
    e("  s_waitcnt vmcnt(0) lgkmcnt(0)")
    for st in range(14):
        e(f"  v_mfma_f32_16x16x32_bf16 v[8:11], {vr(FA+4*st,4)}, {vr(FB+4*st,4)}, v[8:11]")
    e("  s_nop 15")
    e("  v_lshlrev_b32 v3, 4, v0")
    e("  s_lshl_b32 s52, s48, 10")
    e("  v_add_u32 v3, s52, v3")
    e(f"  ds_write_b128 v3, v[8:11] offset:{LDS_R}")
    e("  s_waitcnt lgkmcnt(0)")
    e("  s_barrier")
    e("  s_cmp_lg_u32 s48, 0")
    e("  s_cbranch_scc1 tf_done")
    e("  v_lshlrev_b32 v3, 4, v0")
    for w in range(1, 4):
        e(f"  ds_read_b128 {vr(12+4*(w-1),4)}, v3 offset:{LDS_R+1024*w}")
    e("  v_and_b32 v6, 1, v5")
    e("  v_lshlrev_b32 v6, 4, v6")
    e(f"  ds_read_b128 v[24:27], v6 offset:{LDS_C+128}")
    e("  v_and_b32 v6, 7, v0")
    e("  s_lshl_b32 s52, s50, 4")
    e("  v_lshl_add_u32 v6, v6, 1, s52")
    e("  v_and_b32 v7, 1, v5")
    e("  v_lshlrev_b32 v7, 2, v7")
    for i in range(4):
        e(f"  v_add_u32 v28, {i}, v7")
        e(f"  v_mul_u32_u24 v29, {XS_STRIDE}, v28")
        e("  v_add_u32 v29, v29, v6")
        e(f"  ds_read_u16 v{36+i}, v29 offset:{LDS_XS}")
        e("  v_lshl_add_u32 v29, v28, 10, v6")
        e(f"  ds_read_u16 v{40+i}, v29 offset:{LDS_HS}")
    e("  v_and_b32 v30, 15, v0")
    e("  v_cmp_gt_u32 vcc, 8, v30")
    e("  v_cmp_gt_u32 s[58:59], 32, v0")
    e("  s_and_b64 vcc, vcc, s[58:59]")
    e("  s_waitcnt lgkmcnt(0)")
    e("  s_and_saveexec_b64 s[56:57], vcc")
    for i in range(4):
        e(f"  v_add_f32 v{8+i}, v{8+i}, v{12+i}")
        e(f"  v_add_f32 v{16+i}, v{16+i}, v{20+i}")
        e(f"  v_add_f32 v{8+i}, v{8+i}, v{16+i}")
        e(f"  v_cvt_pk_bf16_f32 v{8+i}, v{8+i}, v{8+i}")
        e(f"  v_lshlrev_b32 v{8+i}, 16, v{8+i}")
        e(f"  v_and_b32 v60, 0xffff0000, v{24+i}")
        e("  v_ashrrev_i32 v61, 31, v60")
        e("  v_not_b32 v61, v61")
        e("  v_or_b32 v61, 0x80000000, v61")
        e("  v_xor_b32 v60, v60, v61")
        e("  v_and_b32 v60, 0xffff0000, v60")
        e("  v_mul_f32 v60, 0xbfb8aa3b, v60")
        e("  v_exp_f32 v60, v60")
        e("  s_nop 0")
        e("  v_add_f32 v60, 1.0, v60")
        e("  v_rcp_f32 v60, v60")
        e("  s_nop 0")
        e("  v_cvt_pk_bf16_f32 v60, v60, v60")
        e("  v_lshlrev_b32 v60, 16, v60")
        e(f"  v_mul_f32 v{8+i}, v{8+i}, v60")
        e(f"  v_cvt_pk_bf16_f32 v{8+i}, v{8+i}, v{8+i}")
        e(f"  v_lshlrev_b32 v{8+i}, 16, v{8+i}")
        e(f"  v_lshlrev_b32 v{36+i}, 16, v{36+i}")
        e(f"  v_lshlrev_b32 v{40+i}, 16, v{40+i}")
        e(f"  v_add_f32 v61, v{36+i}, v{8+i}")
        e("  v_cvt_pk_bf16_f32 v61, v61, v61")
        e("  v_lshlrev_b32 v61, 16, v61")
        e(f"  v_add_f32 v61, v{40+i}, v61")
        e("  v_cvt_pk_bf16_f32 v61, v61, v61")
        e(f"  v_and_b32 v62, 0xffff, v{24+i}")
        e("  v_sub_u32 v62, 0xffff, v62")
        e("  v_lshl_add_u32 v62, v62, 10, v6")
        e("  buffer_store_short v61, v62, s[44:47], 0 offen")
    lab("tf_done")
    kernel_end()
    e("  s_endpgm")
    kernel_desc(name, 184)

def main():
    hdr = open("cdna_kernels/" + NAME + ".s.ref").read().splitlines()
    out = []
    for ln in hdr:
        if ln.startswith("; @launch"):
            out.append("; @launch kernel=k1_kernel grid=(256,1,1) block=(%d,1,1) lds=131072" % (576 if OPT('K1_PF', 0) else 512))
            out.append("; @launch kernel=k2_kernel grid=(256,1,1) block=(%d,1,1) lds=%d" % (512, K2_NS*24576))
            if OPT('TF'):
                out.append("; @launch kernel=tf_kernel grid=(256,1,1) block=(256,1,1) lds=66048")
            else:
                out.append("; @launch kernel=t1_kernel grid=(256,1,1) block=(%d,1,1) lds=0" % (192 if OPT('T1_PF', 1) else 128))
                out.append("; @launch kernel=t2_kernel grid=(224,1,1) block=(256,1,1) lds=25600")
                out.append("; @launch kernel=t3_kernel grid=(64,1,1) block=(256,1,1) lds=32768")
            break
        out.append(ln)
    out.append('.amdgcn_target "amdgcn-amd-amdhsa--gfx950"')
    out.append(".text")
    gen_k1(); gen_k2()
    if OPT('TF'): gen_tf()
    else: gen_t1(); gen_t2(); gen_t3()
    out += L
    out.append('.section .rodata,"a"')
    out += KD
    dst = sys.argv[1] if len(sys.argv) > 1 else "cdna_kernels/" + NAME + ".s"
    open(dst, "w").write("\n".join(out) + "\n")

main()
```

```python
import sys, os
OPT = lambda k, d=0: int(os.environ.get(k, d))

NAME = "sequential_preLN__spectral_fnet__moe_arch_mod__prompt"
L = []
def e(s=""):
    L.append(s)
def lab(s):
    L.append(s + ":")

KA_X, KA_WSRE, KA_WSIM, KA_WDRE, KA_WDIM = 0, 8, 16, 24, 32
KA_WR, KA_WG, KA_WU, KA_WDN, KA_OUT, KA_DBG, KA_WS = 48, 56, 64, 72, 80, 88, 96
WS_YB = 0
WS_Y = 4 << 20
WS_KEY = 8 << 20
WS_STAT = (8 << 20) + 8192
WS_GU = (8 << 20) + 65536
WS_IDX = (8 << 20) + 131072
WS_SIZE = 268435456

KIDX = [0]
NV = {"k1_kernel": 160, "k2_kernel": 160, "t1_kernel": 148, "t2_kernel": 192, "t3_kernel": 192, "tf_kernel": 184}
CUR = [0]
def kernel_begin(name):
    CUR[0] = NV[name]
    e(f".globl {name}")
    e(".p2align 8")
    e(f".type {name},@function")
    lab(name)
    if OPT('DIAG'):
        e("  s_memrealtime s[72:73]")
        for i in range(1, 7):
            e(f"  s_mov_b64 s[{72+2*i}:{73+2*i}], 0")
        e(f"  s_load_dwordx2 s[94:95], s[0:1], {KA_WS}")
        e(f"  v_mov_b32 v{CUR[0]}, v0")

def stamp(i):
    if OPT('DIAG'):
        e(f"  s_memrealtime s[{72+2*i}:{73+2*i}]")

def kernel_end():
    if OPT('DIAG'):
        e("  s_waitcnt vmcnt(0) lgkmcnt(0)")
        e("  s_memrealtime s[86:87]")
        e("  s_mov_b32 s88, s94")
        e("  s_mov_b32 s89, s95")
        e("  s_mov_b32 s90, 0x4000000")
        e("  s_mov_b32 s91, 0x00020000")
        e("  s_waitcnt lgkmcnt(0)")
        e("  s_mov_b64 exec, 1")
        for i in range(16):
            e(f"  v_mov_b32 v{i}, s{72+i}")
        e(f"  v_lshrrev_b32 v{CUR[0]+1}, 6, v{CUR[0]}")
        e(f"  v_lshlrev_b32 v{CUR[0]+1}, 6, v{CUR[0]+1}")
        e("  s_lshl_b32 s92, s2, 10")
        e(f"  s_add_u32 s92, s92, {(16 << 20) + KIDX[0] * 0x100000}")
        for i in range(4):
            e(f"  buffer_store_dwordx4 v[{4*i}:{3+4*i}], v{CUR[0]+1}, s[88:91], s92 offen offset:{16*i}")
    KIDX[0] += 1

KD = []
def kernel_desc(name, vgpr, sgpr=102):
    assert vgpr == CUR[0]
    if OPT('DIAG'): vgpr += 2
    acc = (vgpr + 3) // 4 * 4
    KD.append(f""".p2align 6
.amdhsa_kernel {name}
  .amdhsa_next_free_vgpr {vgpr}
  .amdhsa_next_free_sgpr {sgpr}
  .amdhsa_accum_offset {acc}
  .amdhsa_group_segment_fixed_size 0
  .amdhsa_kernarg_size 104
  .amdhsa_user_sgpr_count 2
  .amdhsa_user_sgpr_kernarg_segment_ptr 1
  .amdhsa_system_sgpr_workgroup_id_x 1
.end_amdhsa_kernel""")

def srd(d, lo, hi, size):
    e(f"  s_mov_b32 s{d}, s{lo}")
    e(f"  s_mov_b32 s{d+1}, s{hi}")
    e(f"  s_mov_b32 s{d+2}, {size}")
    e(f"  s_mov_b32 s{d+3}, 0x00020000")

def vr(a, n):
    return f"v[{a}:{a+n-1}]"

def reduce8(v):
    e("  s_nop 1")
    e(f"  v_add_f32_dpp v{v}, v{v}, v{v} quad_perm:[1,0,3,2] row_mask:0xf bank_mask:0xf")
    e("  s_nop 1")
    e(f"  v_add_f32_dpp v{v}, v{v}, v{v} quad_perm:[2,3,0,1] row_mask:0xf bank_mask:0xf")
    e("  s_nop 1")
    e(f"  v_add_f32_dpp v{v}, v{v}, v{v} row_half_mirror row_mask:0xf bank_mask:0xf")

def reduce16(v):
    reduce8(v)
    e("  s_nop 1")
    e(f"  v_add_f32_dpp v{v}, v{v}, v{v} row_mirror row_mask:0xf bank_mask:0xf")

def gen_k1():
    name = "k1_kernel"
    kernel_begin(name)
    e("  s_cmp_ge_u32 s2, 256")
    e("  s_cbranch_scc1 k1_done")
    e(f"  s_load_dwordx2 s[4:5], s[0:1], {KA_X}")
    e(f"  s_load_dwordx4 s[8:11], s[0:1], {KA_WDRE}")
    e(f"  s_load_dwordx2 s[6:7], s[0:1], {KA_WS}")
    e("  s_and_b32 s12, s2, 7")
    e("  s_lshr_b32 s13, s2, 3")
    e("  s_and_b32 s14, s13, 3")
    e("  s_lshl_b32 s12, s12, 2")
    e("  s_add_u32 s12, s12, s14")
    e("  s_lshr_b32 s13, s13, 2")
    e("  v_lshrrev_b32 v1, 6, v0")
    e("  v_and_b32 v0, 63, v0")
    e("  v_readfirstlane_b32 s15, v1")
    e("  v_lshrrev_b32 v2, 3, v0")
    e("  v_and_b32 v3, 7, v0")
    if OPT('K1_PF', 0) or OPT('K1_PFEND', 0):
        e(f"  s_load_dwordx4 s[40:43], s[0:1], {KA_WSRE}")
    e("  s_waitcnt lgkmcnt(0)")
    if OPT('K1_PF', 0):
        e("  s_cmp_lg_u32 s15, 8")
        e("  s_cbranch_scc1 k1_main")
        e("  s_and_b32 s44, s2, 7")
        e("  s_cmp_lt_u32 s44, 4")
        e("  s_cselect_b32 s48, s40, s42")
        e("  s_cselect_b32 s49, s41, s43")
        e(f"  s_mov_b32 s50, {2048*2048*2}")
        e("  s_mov_b32 s51, 0x00020000")
        e("  s_and_b32 s44, s44, 3")
        e("  s_lshl_b32 s44, s44, 21")
        e("  s_lshr_b32 s45, s2, 3")
        e("  s_lshl_b32 s45, s45, 16")
        e("  s_add_u32 s44, s44, s45")
        e("  v_lshlrev_b32 v1, 4, v0")
        e("  s_cmp_ge_u32 s2, 9")
        e("  s_cbranch_scc1 k1_nozero")
        srd(52, 6, 7, 9 << 20)
        for q in range(4):
            e(f"  v_mov_b32 v{4+q}, 0")
        e("  s_lshl_b32 s46, s2, 10")
        e(f"  s_add_u32 s46, s46, {WS_KEY}")
        e("  buffer_store_dwordx4 v[4:7], v1, s[52:55], s46 offen")
        lab("k1_nozero")
        e("  s_cmp_lt_u32 s13, 4")
        e("  s_cselect_b32 s56, s8, s10")
        e("  s_cselect_b32 s57, s9, s11")
        e(f"  s_mov_b32 s58, {512*512*2}")
        e("  s_mov_b32 s59, 0x00020000")
        e("  s_and_b32 s46, s13, 3")
        e("  s_lshl_b32 s46, s46, 17")
        for q in range(OPT('K1_CAN', 2)):
            e(f"  buffer_load_dwordx4 v[8:11], v1, s[56:59], s46 offen offset:{q*1024}")
            e("  s_waitcnt vmcnt(0)")
        for q in range(64):
            e(f"  buffer_load_dwordx4 {vr(8+4*(q%32),4)}, v1, s[48:51], s44 offen")
            e("  s_add_u32 s44, s44, 1024")
        e("  s_branch k1_done")
        lab("k1_main")
    srd(16, 4, 5, 2048*512*2)
    e("  s_cmp_lt_u32 s13, 4")
    e("  s_cselect_b32 s20, s8, s10")
    e("  s_cselect_b32 s21, s9, s11")
    e(f"  s_mov_b32 s22, {512*512*2}")
    e("  s_mov_b32 s23, 0x00020000")
    srd(24, 6, 7, 4 << 20)
    e("  s_lshl_b32 s28, s12, 6")
    e("  s_lshl_b32 s29, s15, 3")
    e("  s_add_u32 s28, s28, s29")
    e("  v_add_u32 v4, s28, v2")
    e("  v_lshlrev_b32 v4, 10, v4")
    e("  v_lshl_add_u32 v4, v3, 4, v4")
    X = 32
    for j in range(8):
        e(f"  buffer_load_dwordx4 {vr(X+4*j,4)}, v4, s[16:19], 0 offen offset:{128*j}")
    e("  s_and_b32 s30, s13, 3")
    e("  s_lshl_b32 s30, s30, 7")
    for ii in range(2):
        e(f"  s_lshl_b32 s31, s15, 4")
        e(f"  s_add_u32 s31, s31, {8*ii}")
        e(f"  v_add_u32 v7, s31, v2")
        e(f"  v_lshrrev_b32 v8, 1, v7")
        e(f"  v_and_b32 v8, 7, v8")
        e(f"  v_xor_b32 v8, v8, v3")
        e(f"  v_add_u32 v7, s30, v7")
        e(f"  v_lshlrev_b32 v7, 10, v7")
        e(f"  v_lshl_add_u32 v{5+ii}, v8, 4, v7")
    e("  s_lshl_b32 s32, s15, 11")
    def wdma(kb):
        slot = kb % 4
        e(f"  s_mov_b32 s33, {128*kb}")
        for ii in range(2):
            e(f"  s_add_u32 m0, s32, {slot*16384 + ii*1024}")
            e("  s_nop 0")
            e(f"  buffer_load_dwordx4 v{5+ii}, s[20:23], s33 offen lds")
    for kb in range(4):
        wdma(kb)
    STG = 128
    for kb in (range(4, 8) if OPT('K1_STG') else []):
        e(f"  s_mov_b32 s33, {128*kb}")
        for ii in range(2):
            e(f"  buffer_load_dwordx4 {vr(STG+8*(kb-4)+4*ii,4)}, v{5+ii}, s[20:23], s33 offen")
    e("  s_mov_b32 s34, 0x3f803f80")
    for a in range(4):
        e(f"  v_mov_b32 v{8+a}, 0")
    stamp(1)
    e(f"  s_waitcnt vmcnt({16 if OPT('K1_STG') else 8})")
    stamp(2)
    for i in range(32):
        e(f"  v_dot2_f32_bf16 v{8+i%4}, v{X+i}, s34, v{8+i%4}")
    e("  s_nop 3")
    e("  v_add_f32 v8, v8, v9")
    e("  v_add_f32 v10, v10, v11")
    e("  v_add_f32 v8, v8, v10")
    reduce8(8)
    e("  v_mul_f32 v8, 0x3b000000, v8")
    e("  v_cvt_pk_bf16_f32 v9, v8, v8")
    e("  v_lshlrev_b32 v9, 16, v9")
    e("  v_sub_f32 v10, 0, v9")
    e("  v_mov_b32 v11, v10")
    D = 64
    for a in range(4):
        e(f"  v_mov_b32 v{12+a}, 0")
    for i in range(32):
        e(f"  v_lshlrev_b32 v{D+2*i}, 16, v{X+i}")
        e(f"  v_and_b32 v{D+2*i+1}, 0xffff0000, v{X+i}")
        e(f"  v_pk_add_f32 {vr(D+2*i,2)}, {vr(D+2*i,2)}, v[10:11]")
        q = 12 + 2*(i % 2)
        e(f"  v_pk_fma_f32 {vr(q,2)}, {vr(D+2*i,2)}, {vr(D+2*i,2)}, {vr(q,2)}")
    e("  v_add_f32 v12, v12, v13")
    e("  v_add_f32 v14, v14, v15")
    e("  v_add_f32 v12, v12, v14")
    reduce8(12)
    e("  v_sub_f32 v13, v8, v9")
    e("  v_mul_f32 v13, v13, v13")
    e("  v_mul_f32 v12, 0x3b000000, v12")
    e("  v_sub_f32 v12, v12, v13")
    e("  v_max_f32 v12, 0, v12")
    e("  v_cvt_pk_bf16_f32 v12, v12, v12")
    e("  v_lshlrev_b32 v12, 16, v12")
    e("  v_add_f32 v12, 0x3727c5ac, v12")
    e("  v_cvt_pk_bf16_f32 v12, v12, v12")
    e("  v_lshlrev_b32 v12, 16, v12")
    e("  v_sqrt_f32 v12, v12")
    e("  s_nop 0")
    e("  v_cvt_pk_bf16_f32 v12, v12, v12")
    e("  v_lshlrev_b32 v12, 16, v12")
    e("  v_rcp_f32 v12, v12")
    e("  s_nop 0")
    e("  v_mov_b32 v13, v12")
    for i in range(32):
        e(f"  v_cvt_pk_bf16_f32 v{X+i}, v{D+2*i}, v{D+2*i+1}")
        e(f"  v_lshlrev_b32 v{D+2*i}, 16, v{X+i}")
        e(f"  v_and_b32 v{D+2*i+1}, 0xffff0000, v{X+i}")
        e(f"  v_pk_mul_f32 {vr(D+2*i,2)}, {vr(D+2*i,2)}, v[12:13]")
        e(f"  v_cvt_pk_bf16_f32 v{X+i}, v{D+2*i}, v{D+2*i+1}")
    e("  v_add_u32 v14, s29, v2")
    e("  v_lshrrev_b32 v15, 1, v14")
    e("  v_and_b32 v15, 7, v15")
    e("  v_xor_b32 v15, v15, v3")
    e("  v_lshlrev_b32 v14, 7, v14")
    e("  v_lshl_add_u32 v14, v15, 4, v14")
    e("  v_add_u32 v14, 0x10000, v14")
    for j in range(8):
        e(f"  ds_write_b128 v14, {vr(X+4*j,4)} offset:{8192*j}")
    stamp(3)
    e("  s_and_b32 s35, s15, 1")
    e("  s_lshr_b32 s36, s15, 1")
    e("  v_and_b32 v16, 31, v0")
    e("  v_lshrrev_b32 v17, 5, v0")
    def fragaddr(dst, sblk, base):
        e(f"  s_lshl_b32 s37, s{sblk}, 5")
        e(f"  v_add_u32 v18, s37, v16")
        e(f"  v_lshrrev_b32 v19, 1, v18")
        e(f"  v_and_b32 v19, 7, v19")
        e(f"  v_xor_b32 v19, v19, v17")
        e(f"  v_lshlrev_b32 v18, 7, v18")
        e(f"  v_lshl_add_u32 v{dst}, v19, 4, v18")
        if base:
            e(f"  v_add_u32 v{dst}, {base}, v{dst}")
        for kk in range(1, 4):
            e(f"  v_xor_b32 v{dst+kk}, {32*kk}, v{dst}")
    fragaddr(20, 35, 0x10000)
    fragaddr(24, 36, 0)
    ACC = 96
    for i in range(16):
        e(f"  v_mov_b32 v{ACC+i}, 0")
    e("  v_lshlrev_b32 v28, 4, v0")
    e("  v_add_u32 v28, s32, v28")
    FA, FB = 64, 80
    waits = [14, 6, 4, 2, 0, 0, 0, 0] if OPT('K1_STG') else [6, 4, 4, 4, 4, 4, 2, 0]
    for kb in range(8):
        e(f"  s_waitcnt vmcnt({waits[kb]}) lgkmcnt(0)")
        e("  s_barrier")
        if kb == 0: stamp(4)
        if 1 <= kb <= 4 and not OPT('K1_STG'):
            wdma(kb + 3)
        if 1 <= kb <= 4 and OPT('K1_STG'):
            for ii in range(2):
                e(f"  ds_write_b128 v28, {vr(STG+8*(kb-1)+4*ii,4)} offset:{((kb+3)%4)*16384 + ii*1024}")
        slot = kb % 4
        for kk in range(4):
            e(f"  ds_read_b128 {vr(FA+4*kk,4)}, v{20+kk} offset:{8192*kb}")
            e(f"  ds_read_b128 {vr(FB+4*kk,4)}, v{24+kk} offset:{16384*slot}")
        for kk in range(4):
            e(f"  s_waitcnt lgkmcnt({6-2*kk})")
            e(f"  v_mfma_f32_32x32x16_bf16 {vr(ACC,16)}, {vr(FA+4*kk,4)}, {vr(FB+4*kk,4)}, {vr(ACC,16)}")
    stamp(5)
    e("  s_lshl_b32 s37, s13, 1")
    e("  s_lshr_b32 s38, s36, 1")
    e("  s_add_u32 s37, s37, s38")
    e("  s_lshl_b32 s37, s37, 5")
    e("  s_add_u32 s37, s37, s12")
    e("  s_lshl_b32 s37, s37, 13")
    e("  s_and_b32 s38, s36, 1")
    e("  s_lshl_b32 s38, s38, 5")
    e("  v_add_u32 v18, s38, v16")
    e("  v_lshrrev_b32 v19, 1, v18")
    e("  v_and_b32 v19, 7, v19")
    e("  s_lshl_b32 s38, s35, 2")
    e("  v_add_u32 v29, s38, v17")
    e("  v_xor_b32 v29, v29, v19")
    e("  v_lshlrev_b32 v18, 7, v18")
    e("  v_lshl_add_u32 v30, v29, 4, v18")
    e("  v_xor_b32 v31, 32, v30")
    e("  s_nop 7")
    P = 112
    for g in range(4):
        e(f"  v_cvt_pk_bf16_f32 v{P+2*g}, v{ACC+4*g}, v{ACC+4*g+1}")
        e(f"  v_cvt_pk_bf16_f32 v{P+2*g+1}, v{ACC+4*g+2}, v{ACC+4*g+3}")
    e("  s_nop 1")
    for p in range(2):
        e(f"  v_permlane32_swap_b32 v{P+4*p}, v{P+4*p+2}")
        e(f"  v_permlane32_swap_b32 v{P+4*p+1}, v{P+4*p+3}")
    e(f"  buffer_store_dwordx4 {vr(P,4)}, v30, s[24:27], s37 offen")
    e(f"  buffer_store_dwordx4 {vr(P+4,4)}, v31, s[24:27], s37 offen")
    if OPT('K1_PFEND', 0):
        e("  s_and_b32 s44, s2, 7")
        e("  s_cmp_lt_u32 s44, 4")
        e("  s_cselect_b32 s48, s40, s42")
        e("  s_cselect_b32 s49, s41, s43")
        e(f"  s_mov_b32 s50, {2048*2048*2}")
        e("  s_mov_b32 s51, 0x00020000")
        e("  s_and_b32 s44, s44, 3")
        e("  s_lshl_b32 s44, s44, 21")
        e("  s_lshr_b32 s45, s2, 3")
        e("  s_lshl_b32 s45, s45, 16")
        e("  s_add_u32 s44, s44, s45")
        e("  s_lshl_b32 s45, s15, 13")
        e("  s_add_u32 s44, s44, s45")
        e("  v_lshlrev_b32 v1, 4, v0")
        for q in range(8):
            e(f"  buffer_load_dwordx4 {vr(32+4*q,4)}, v1, s[48:51], s44 offen")
            e("  s_add_u32 s44, s44, 1024")
    lab("k1_done")
    kernel_end()
    e("  s_endpgm")
    kernel_desc(name, 160)

K2_NS = OPT('K2_NS', 6)
def gen_k2():
    NS = K2_NS
    name = "k2_kernel"
    kernel_begin(name)
    YBASE = NS * 16384
    e("  s_cmp_ge_u32 s2, 256")
    e("  s_cbranch_scc1 k2_done")
    e(f"  s_load_dwordx4 s[8:11], s[0:1], {KA_WSRE}")
    e(f"  s_load_dwordx2 s[6:7], s[0:1], {KA_WS}")
    e("  s_and_b32 s12, s2, 7")
    e("  s_lshr_b32 s13, s2, 3")
    e("  s_lshr_b32 s14, s12, 2")
    e("  s_and_b32 s12, s12, 3")
    e("  s_lshl_b32 s12, s12, 2")
    e("  s_lshr_b32 s15, s13, 3")
    e("  s_add_u32 s12, s12, s15")
    e("  s_and_b32 s13, s13, 7")
    e("  v_lshrrev_b32 v1, 6, v0")
    e("  v_and_b32 v0, 63, v0")
    e("  v_readfirstlane_b32 s15, v1")
    e("  v_lshrrev_b32 v2, 3, v0")
    e("  v_and_b32 v3, 7, v0")
    e("  s_waitcnt lgkmcnt(0)")
    e("  s_cmp_eq_u32 s14, 0")
    e("  s_cselect_b32 s16, s8, s10")
    e("  s_cselect_b32 s17, s9, s11")
    e(f"  s_mov_b32 s18, {2048*2048*2}")
    e("  s_mov_b32 s19, 0x00020000")
    srd(20, 6, 7, 8 << 20)
    e("  s_cmp_lt_u32 s15, 4")
    e("  s_cbranch_scc1 k2_consumer")
    e("  s_sub_u32 s15, s15, 4")
    for ii in range(4):
        e(f"  s_lshl_b32 s24, s15, 5")
        e(f"  s_add_u32 s24, s24, {8*ii}")
        e(f"  v_add_u32 v10, s24, v2")
        e(f"  v_lshrrev_b32 v11, 1, v10")
        e(f"  v_and_b32 v11, 7, v11")
        e(f"  v_xor_b32 v11, v11, v3")
        e(f"  s_lshl_b32 s24, s12, 7")
        e(f"  v_add_u32 v10, s24, v10")
        e(f"  v_lshlrev_b32 v10, 12, v10")
        e(f"  v_lshl_add_u32 v{4+ii}, v11, 4, v10")
    e("  s_lshl_b32 s24, s15, 11")
    e("  v_lshlrev_b32 v8, 4, v0")
    e("  v_add_u32 v8, s24, v8")
    e("  v_add_u32 v9, 1024, v8")
    e("  s_mov_b32 s25, 0")
    e("  s_lshl_b32 s26, s14, 3")
    e("  s_add_u32 s26, s26, s13")
    e("  s_lshl_b32 s26, s26, 18")
    e("  s_lshl_b32 s27, s15, 12")
    e("  s_lshl_b32 s28, s15, 11")
    e(f"  s_add_u32 s28, s28, {YBASE}")
    def dma(slot):
        for i in range(2):
            e(f"  s_add_u32 m0, s28, {slot*8192 + i*1024}")
            e("  s_nop 0")
            e(f"  buffer_load_dwordx4 v{8+i}, s[20:23], s26 offen lds")
        for i in range(4):
            e(f"  s_add_u32 m0, s27, {slot*16384 + i*1024}")
            e("  s_nop 0")
            e(f"  buffer_load_dwordx4 v{4+i}, s[16:19], s25 offen lds")
        if OPT('K2_ROT', 4):
            e("  s_add_u32 s25, s25, 128")
            e("  s_and_b32 s25, s25, 4095")
            e("  s_lshl_b32 s29, s25, 6")
            e("  s_add_u32 s26, s33, s29")
        else:
            e("  s_add_u32 s25, s25, 128")
            e("  s_add_u32 s26, s26, 8192")
    if OPT('K2_ROT', 4):
        e("  s_mov_b32 s33, s26")
        e(f"  s_mul_i32 s25, s13, {128*OPT('K2_ROT', 4)}")
        e("  s_and_b32 s25, s25, 4095")
        e("  s_lshl_b32 s29, s25, 6")
        e("  s_add_u32 s26, s33, s29")
    for st in range(NS):
        dma(st)
    e(f"  s_waitcnt vmcnt({6*(NS-1)})")
    e("  s_barrier")
    for ks in range(31):
        ahead = min(ks + NS - 1, 31) - (ks + 1)
        e(f"  s_waitcnt vmcnt({6*ahead})")
        if not OPT('K2_NOBAR'): e("  s_barrier")
        if ks == 8: stamp(3)
        if ks == 16: stamp(4)
        if ks == 24: stamp(5)
        if ks + NS < 32:
            dma(ks % NS)
    e("  s_branch k2_done")
    lab("k2_consumer")
    e("  v_and_b32 v16, 31, v0")
    e("  v_lshrrev_b32 v17, 5, v0")
    e("  s_lshl_b32 s24, s15, 5")
    e("  v_add_u32 v18, s24, v16")
    e("  v_lshrrev_b32 v19, 1, v18")
    e("  v_and_b32 v19, 7, v19")
    e("  v_xor_b32 v19, v19, v17")
    e("  v_lshlrev_b32 v18, 7, v18")
    e("  v_lshl_add_u32 v20, v19, 4, v18")
    for kk in range(1, 4):
        e(f"  v_xor_b32 v{20+kk}, {32*kk}, v20")
    for kk in range(4):
        e(f"  v_add_u32 v{28+kk}, 0x10000, v{20+kk}")
    e("  v_lshrrev_b32 v19, 1, v16")
    e("  v_and_b32 v19, 7, v19")
    e("  v_xor_b32 v19, v19, v17")
    e("  v_lshlrev_b32 v18, 7, v16")
    e("  v_lshl_add_u32 v24, v19, 4, v18")
    e(f"  v_add_u32 v24, {YBASE}, v24")
    for kk in range(1, 4):
        e(f"  v_xor_b32 v{24+kk}, {32*kk}, v24")
    ACC = 32
    for i in range(32):
        e(f"  v_mov_b32 v{ACC+i}, 0")
    def FW(st): return 64 + 48 * (st % 2)
    def FY(st): return 80 + 48 * (st % 2)
    def rd(st, kk):
        slot = st % NS
        wb = 20 if slot < 4 else 28
        e(f"  ds_read_b128 {vr(FW(st)+4*kk,4)}, v{wb+kk} offset:{16384*(slot%4)}")
        e(f"  ds_read_b128 {vr(FY(st)+8*kk,4)}, v{24+kk} offset:{8192*slot}")
        e(f"  ds_read_b128 {vr(FY(st)+8*kk+4,4)}, v{24+kk} offset:{8192*slot+4096}")
    stamp(1)
    e("  s_barrier")
    stamp(2)
    for kk in range(4):
        rd(0, kk)
    def mf(st, kk, half):
        e(f"  v_mfma_f32_32x32x16_bf16 {vr(ACC+16*half,16)}, {vr(FY(st)+8*kk+4*half,4)}, {vr(FW(st)+4*kk,4)}, {vr(ACC+16*half,16)}")
    for ks in range(32):
        more = ks + 1 < 32
        e("  s_waitcnt lgkmcnt(0)")
        if more and not OPT('K2_NOBAR'):
            e("  s_barrier")
        if OPT('K2_NOBAR') == 2: continue
        r = (lambda kk: rd(ks + 1, kk)) if more else (lambda kk: None)
        mf(ks, 0, 0); r(0); mf(ks, 0, 1); r(1)
        mf(ks, 1, 0); r(2); mf(ks, 1, 1); r(3)
        mf(ks, 2, 0); mf(ks, 2, 1)
        mf(ks, 3, 0); mf(ks, 3, 1)
    stamp(6)
    e("  s_lshl_b32 s24, s14, 21")
    e(f"  s_add_u32 s24, s24, {WS_Y}")
    e("  s_lshl_b32 s30, s13, 7")
    e("  s_add_u32 s24, s24, s30")
    e("  s_lshl_b32 s30, s12, 7")
    e("  s_lshl_b32 s31, s15, 5")
    e("  s_add_u32 s30, s30, s31")
    e("  v_add_u32 v18, s30, v16")
    e("  v_lshlrev_b32 v18, 10, v18")
    e("  v_lshl_add_u32 v18, v17, 4, v18")
    e("  s_nop 7")
    P = 64
    for g in range(8):
        e(f"  v_cvt_pk_bf16_f32 v{P+2*g}, v{ACC+4*g}, v{ACC+4*g+1}")
        e(f"  v_cvt_pk_bf16_f32 v{P+2*g+1}, v{ACC+4*g+2}, v{ACC+4*g+3}")
    e("  s_nop 1")
    for p in range(4):
        e(f"  v_permlane32_swap_b32 v{P+4*p}, v{P+4*p+2}")
        e(f"  v_permlane32_swap_b32 v{P+4*p+1}, v{P+4*p+3}")
    for p in range(4):
        e(f"  buffer_store_dwordx4 {vr(P+4*p,4)}, v18, s[20:23], s24 offen offset:{32*p}")
    lab("k2_done")
    kernel_end()
    e("  s_endpgm")
    kernel_desc(name, 160)

def gen_t1():
    name = "t1_kernel"
    kernel_begin(name)
    e("  s_cmp_ge_u32 s2, 256")
    e("  s_cbranch_scc1 t1_done")
    e(f"  s_load_dwordx2 s[4:5], s[0:1], {KA_X}")
    e(f"  s_load_dwordx2 s[6:7], s[0:1], {KA_WS}")
    e(f"  s_load_dwordx2 s[8:9], s[0:1], {KA_WR}")
    e(f"  s_load_dwordx2 s[10:11], s[0:1], {KA_OUT}")
    if OPT('T1_PF', 1):
        e(f"  s_load_dwordx4 s[32:35], s[0:1], {KA_WG}")
        e(f"  s_load_dwordx2 s[36:37], s[0:1], {KA_WDN}")
        e("  v_lshrrev_b32 v1, 6, v0")
        e("  s_nop 0")
        e("  v_readfirstlane_b32 s3, v1")
        e("  s_cmp_lg_u32 s3, 2")
        e("  s_cbranch_scc1 t1_main")
        e("  s_waitcnt lgkmcnt(0)")
        srd(40, 32, 33, 512*1792*2)
        srd(44, 34, 35, 512*1792*2)
        srd(48, 36, 37, 1792*512*2)
        e("  v_and_b32 v0, 63, v0")
        e("  s_and_b32 s52, s2, 7")
        e("  s_lshr_b32 s53, s2, 3")
        e("  v_min_u32 v1, 55, v0")
        e("  v_cmp_lt_u32 vcc, 27, v1")
        e("  v_cndmask_b32 v2, 0, 1, vcc")
        e("  v_mul_u32_u24 v3, 28, v2")
        e("  v_sub_u32 v3, v1, v3")
        e("  v_mul_u32_u24 v2, 3584, v2")
        e("  v_lshl_add_u32 v2, v3, 4, v2")
        e("  s_mul_i32 s54, s52, 448")
        e(f"  s_mul_i32 s55, s53, {16*3584}")
        e("  s_add_u32 s54, s54, s55")
        for q in range(8):
            e(f"  buffer_load_dwordx4 {vr(8+8*q,4)}, v2, s[40:43], s54 offen")
            e(f"  buffer_load_dwordx4 {vr(12+8*q,4)}, v2, s[44:47], s54 offen")
            e(f"  s_add_u32 s54, s54, {2*3584}")
        e("  v_lshrrev_b32 v2, 3, v0")
        e("  v_and_b32 v3, 7, v0")
        e("  v_lshlrev_b32 v2, 10, v2")
        e("  v_lshl_add_u32 v2, v3, 4, v2")
        e("  s_lshl_b32 s54, s52, 7")
        e(f"  s_mul_i32 s55, s53, {56*1024}")
        e("  s_add_u32 s54, s54, s55")
        for q in range(7):
            e(f"  buffer_load_dwordx4 {vr(72+4*q,4)}, v2, s[48:51], s54 offen")
            e(f"  s_add_u32 s54, s54, 8192")
        e("  s_branch t1_done")
        lab("t1_main")
    e("  v_lshrrev_b32 v1, 4, v0")
    e("  v_and_b32 v2, 15, v0")
    e("  s_lshl_b32 s3, s2, 3")
    e("  v_add_u32 v1, s3, v1")
    e("  v_lshlrev_b32 v3, 10, v1")
    e("  v_lshl_add_u32 v3, v2, 4, v3")
    e("  v_lshlrev_b32 v4, 4, v2")
    e("  s_waitcnt lgkmcnt(0)")
    srd(12, 4, 5, 2 << 20)
    srd(16, 6, 7, 9 << 20)
    srd(20, 8, 9, 1024)
    srd(24, 10, 11, 2 << 20)
    e(f"  s_mov_b32 s28, {WS_Y}")
    e(f"  s_mov_b32 s29, {WS_Y + (2<<20)}")
    YR, YI, XX, WR = 16, 32, 48, 64
    for j in range(4):
        e(f"  buffer_load_dwordx4 {vr(YR+4*j,4)}, v3, s[16:19], s28 offen offset:{256*j}")
        e(f"  buffer_load_dwordx4 {vr(YI+4*j,4)}, v3, s[16:19], s29 offen offset:{256*j}")
        e(f"  buffer_load_dwordx4 {vr(XX+4*j,4)}, v3, s[12:15], 0 offen offset:{256*j}")
    for j in range(4):
        e(f"  buffer_load_dwordx4 {vr(WR+4*j,4)}, v4, s[20:23], 0 offen offset:{256*j}")
    H = 80
    T = 112
    e("  v_mov_b32 v14, 0")
    e("  v_mov_b32 v15, 0")
    for j in range(4):
        e(f"  s_waitcnt vmcnt({4 + 3*(3-j)})")
        for q in range(4):
            i = 4*j + q
            e(f"  v_lshlrev_b32 v{T}, 16, v{YR+i}")
            e(f"  v_and_b32 v{T+1}, 0xffff0000, v{YR+i}")
            e(f"  v_lshlrev_b32 v{T+2}, 16, v{YI+i}")
            e(f"  v_and_b32 v{T+3}, 0xffff0000, v{YI+i}")
            e(f"  v_pk_add_f32 {vr(T,2)}, {vr(T,2)}, {vr(T+2,2)} neg_lo:[0,1] neg_hi:[0,1]")
            e(f"  v_cvt_pk_bf16_f32 v{T}, v{T}, v{T+1}")
            e(f"  v_and_b32 v{T+1}, 0xffff0000, v{T}")
            e(f"  v_lshlrev_b32 v{T}, 16, v{T}")
            e(f"  v_lshlrev_b32 v{T+2}, 16, v{XX+i}")
            e(f"  v_and_b32 v{T+3}, 0xffff0000, v{XX+i}")
            e(f"  v_pk_add_f32 {vr(T,2)}, {vr(T,2)}, {vr(T+2,2)}")
            e(f"  v_cvt_pk_bf16_f32 v{T}, v{T}, v{T+1}")
            e(f"  v_lshlrev_b32 v{H+2*i}, 16, v{T}")
            e(f"  v_and_b32 v{H+2*i+1}, 0xffff0000, v{T}")
            e(f"  v_pk_add_f32 v[14:15], v[14:15], {vr(H+2*i,2)}")
    e("  v_add_f32 v5, v14, v15")
    reduce16(5)
    e("  v_mul_f32 v5, 0x3b000000, v5")
    e("  v_cvt_pk_bf16_f32 v6, v5, v5")
    e("  v_lshlrev_b32 v6, 16, v6")
    e("  v_sub_f32 v8, 0, v6")
    e("  v_mov_b32 v9, v8")
    e("  v_mov_b32 v10, 0")
    e("  v_mov_b32 v11, 0")
    D = 116
    for i in range(16):
        e(f"  v_pk_add_f32 {vr(D+2*i,2)}, {vr(H+2*i,2)}, v[8:9]")
        e(f"  v_pk_fma_f32 v[10:11], {vr(D+2*i,2)}, {vr(D+2*i,2)}, v[10:11]")
    e("  v_add_f32 v10, v10, v11")
    reduce16(10)
    e("  v_sub_f32 v11, v5, v6")
    e("  v_mul_f32 v11, v11, v11")
    e("  v_mul_f32 v10, 0x3b000000, v10")
    e("  v_sub_f32 v10, v10, v11")
    e("  v_max_f32 v10, 0, v10")
    e("  v_cvt_pk_bf16_f32 v10, v10, v10")
    e("  v_lshlrev_b32 v10, 16, v10")
    e("  v_add_f32 v10, 0x3727c5ac, v10")
    e("  v_cvt_pk_bf16_f32 v10, v10, v10")
    e("  v_lshlrev_b32 v10, 16, v10")
    e("  v_sqrt_f32 v10, v10")
    e("  s_nop 0")
    e("  v_cvt_pk_bf16_f32 v10, v10, v10")
    e("  v_lshlrev_b32 v10, 16, v10")
    e("  v_rcp_f32 v10, v10")
    e("  s_nop 0")
    e("  v_mov_b32 v11, v10")
    e("  v_mov_b32 v12, 0")
    e("  s_waitcnt vmcnt(0)")
    O = 16
    for i in range(16):
        e(f"  v_cvt_pk_bf16_f32 v{T}, v{D+2*i}, v{D+2*i+1}")
        e(f"  v_lshlrev_b32 v{D+2*i}, 16, v{T}")
        e(f"  v_and_b32 v{D+2*i+1}, 0xffff0000, v{T}")
        e(f"  v_pk_mul_f32 {vr(D+2*i,2)}, {vr(D+2*i,2)}, v[10:11]")
        e(f"  v_cvt_pk_bf16_f32 v{T}, v{D+2*i}, v{D+2*i+1}")
        e(f"  v_dot2_f32_bf16 v12, v{T}, v{WR+i}, v12")
        e(f"  v_lshlrev_b32 v{D+2*i}, 16, v{T}")
        e(f"  v_and_b32 v{D+2*i+1}, 0xffff0000, v{T}")
        e(f"  v_pk_add_f32 {vr(D+2*i,2)}, {vr(D+2*i,2)}, {vr(H+2*i,2)}")
        e(f"  v_cvt_pk_bf16_f32 v{O+i}, v{D+2*i}, v{D+2*i+1}")
    for j in range(4):
        e(f"  buffer_store_dwordx4 {vr(O+4*j,4)}, v3, s[24:27], 0 offen offset:{256*j}")
    e("  s_nop 3")
    reduce16(12)
    e("  v_cvt_pk_bf16_f32 v12, v12, v12")
    e("  v_lshlrev_b32 v12, 16, v12")
    e("  v_ashrrev_i32 v13, 31, v12")
    e("  v_or_b32 v13, 0x80000000, v13")
    e("  v_xor_b32 v12, v12, v13")
    e("  v_and_b32 v12, 0xffff0000, v12")
    e("  v_sub_u32 v13, 0xffff, v1")
    e("  v_or_b32 v12, v12, v13")
    e("  v_cmp_eq_u32 vcc, 0, v2")
    e("  s_and_saveexec_b64 s[30:31], vcc")
    e("  v_lshlrev_b32 v13, 2, v1")
    e(f"  s_mov_b32 s28, {WS_KEY}")
    e("  buffer_store_dword v12, v13, s[16:19], s28 offen")
    e("  v_lshlrev_b32 v13, 3, v1")
    e("  v_mov_b32 v7, v10")
    e(f"  s_mov_b32 s28, {WS_STAT}")
    e("  buffer_store_dwordx2 v[6:7], v13, s[16:19], s28 offen")
    lab("t1_done")
    kernel_end()
    e("  s_endpgm")
    kernel_desc(name, 148)

def recompute(YR, YI, XX, nd, NEGM, RINV, HOUT, XNOUT, T):
    for i in range(nd):
        e(f"  v_lshlrev_b32 v{T}, 16, v{YR+i}")
        e(f"  v_and_b32 v{T+1}, 0xffff0000, v{YR+i}")
        e(f"  v_lshlrev_b32 v{T+2}, 16, v{YI+i}")
        e(f"  v_and_b32 v{T+3}, 0xffff0000, v{YI+i}")
        e(f"  v_pk_add_f32 {vr(T,2)}, {vr(T,2)}, {vr(T+2,2)} neg_lo:[0,1] neg_hi:[0,1]")
        e(f"  v_cvt_pk_bf16_f32 v{T}, v{T}, v{T+1}")
        e(f"  v_and_b32 v{T+1}, 0xffff0000, v{T}")
        e(f"  v_lshlrev_b32 v{T}, 16, v{T}")
        e(f"  v_lshlrev_b32 v{T+2}, 16, v{XX+i}")
        e(f"  v_and_b32 v{T+3}, 0xffff0000, v{XX+i}")
        e(f"  v_pk_add_f32 {vr(T,2)}, {vr(T,2)}, {vr(T+2,2)}")
        e(f"  v_cvt_pk_bf16_f32 v{T}, v{T}, v{T+1}")
        e(f"  v_lshlrev_b32 v{HOUT+2*i}, 16, v{T}")
        e(f"  v_and_b32 v{HOUT+2*i+1}, 0xffff0000, v{T}")
        e(f"  v_pk_add_f32 {vr(T,2)}, {vr(HOUT+2*i,2)}, {vr(NEGM,2)}")
        e(f"  v_cvt_pk_bf16_f32 v{T}, v{T}, v{T+1}")
        e(f"  v_and_b32 v{T+1}, 0xffff0000, v{T}")
        e(f"  v_lshlrev_b32 v{T}, 16, v{T}")
        e(f"  v_pk_mul_f32 {vr(T,2)}, {vr(T,2)}, {vr(RINV,2)}")
        e(f"  v_cvt_pk_bf16_f32 v{XNOUT+i}, v{T}, v{T+1}")

XS_STRIDE = 1040
def gen_t2():
    name = "t2_kernel"
    kernel_begin(name)
    LDS_G, LDS_U, LDS_XS, LDS_C = 0, 8192, 16384, 16384 + 8*XS_STRIDE
    e("  s_cmp_ge_u32 s2, 224")
    e("  s_cbranch_scc1 t2_done")
    e(f"  s_load_dwordx2 s[4:5], s[0:1], {KA_X}")
    e(f"  s_load_dwordx2 s[6:7], s[0:1], {KA_WS}")
    e(f"  s_load_dwordx4 s[8:11], s[0:1], {KA_WG}")
    e("  s_and_b32 s3, s2, 7")
    e("  s_mul_i32 s3, s3, 28")
    e("  s_lshr_b32 s12, s2, 3")
    e("  s_add_u32 s3, s3, s12")
    e("  v_mov_b32 v40, v0")
    e("  v_lshrrev_b32 v1, 6, v0")
    e("  v_and_b32 v0, 63, v0")
    e("  v_readfirstlane_b32 s13, v1")
    e("  s_waitcnt lgkmcnt(0)")
    srd(16, 4, 5, 2 << 20)
    srd(20, 6, 7, 9 << 20)
    srd(24, 8, 9, 512*1792*2)
    srd(28, 10, 11, 512*1792*2)
    e("  v_lshlrev_b32 v2, 5, v40")
    e(f"  s_mov_b32 s14, {WS_KEY}")
    e("  buffer_load_dwordx4 v[8:11], v2, s[20:23], s14 offen")
    e("  buffer_load_dwordx4 v[12:15], v2, s[20:23], s14 offen offset:16")
    e("  s_lshl_b32 s15, s3, 4")
    e("  s_movk_i32 s32, 3584")
    for ii in range(2):
        e(f"  s_lshl_b32 s33, s13, 7")
        e(f"  s_add_u32 s33, s33, {64*ii}")
        e(f"  v_add_u32 v3, s33, v0")
        e(f"  v_mul_lo_u32 v3, v3, s32")
        e(f"  s_lshl_b32 s34, s13, 11")
        e(f"  s_add_u32 m0, s34, {LDS_G + 1024*ii}")
        e("  s_nop 0")
        e(f"  buffer_load_dwordx4 v3, s[24:27], s15 offen lds")
        e(f"  s_add_u32 m0, s34, {LDS_U + 1024*ii}")
        e("  s_nop 0")
        e(f"  buffer_load_dwordx4 v3, s[28:31], s15 offen lds")
    e("  s_waitcnt vmcnt(4)")
    e("  v_mov_b32 v20, 0")
    for rnd in range(8):
        e("  v_max3_u32 v16, v8, v9, v10")
        e("  v_max3_u32 v17, v11, v12, v13")
        e("  v_max3_u32 v16, v16, v14, v15")
        e("  v_max_u32 v16, v16, v17")
        e("  s_nop 1")
        e("  v_max_u32_dpp v16, v16, v16 quad_perm:[1,0,3,2] row_mask:0xf bank_mask:0xf")
        e("  s_nop 1")
        e("  v_max_u32_dpp v16, v16, v16 quad_perm:[2,3,0,1] row_mask:0xf bank_mask:0xf")
        e("  s_nop 1")
        e("  v_max_u32_dpp v16, v16, v16 row_half_mirror row_mask:0xf bank_mask:0xf")
        e("  s_nop 1")
        e("  v_max_u32_dpp v16, v16, v16 row_mirror row_mask:0xf bank_mask:0xf")
        e("  s_nop 1")
        e("  v_readlane_b32 s36, v16, 0")
        e("  v_readlane_b32 s37, v16, 16")
        e("  v_readlane_b32 s38, v16, 32")
        e("  v_readlane_b32 s39, v16, 48")
        e("  s_max_u32 s36, s36, s37")
        e("  s_max_u32 s38, s38, s39")
        e("  s_max_u32 s36, s36, s38")
        e(f"  v_writelane_b32 v20, s36, {rnd}")
        if rnd < 7:
            for k in range(8):
                e(f"  v_cmp_ne_u32 vcc, s36, v{8+k}")
                e("  s_nop 1")
                e(f"  v_cndmask_b32 v{8+k}, 0, v{8+k}, vcc")
    e("  s_lshl_b32 s33, s13, 5")
    e(f"  s_add_u32 s33, s33, {LDS_C}")
    e("  v_lshlrev_b32 v3, 2, v0")
    e("  v_add_u32 v3, s33, v3")
    e("  v_cmp_gt_u32 vcc, 8, v0")
    e("  s_and_saveexec_b64 s[40:41], vcc")
    e("  ds_write_b32 v3, v20")
    e("  s_mov_b64 exec, s[40:41]")
    e("  s_waitcnt lgkmcnt(0)")
    e("  s_barrier")
    e("  v_and_b32 v3, 31, v0")
    e("  v_lshlrev_b32 v3, 2, v3")
    e(f"  ds_read_b32 v21, v3 offset:{LDS_C}")
    e("  v_mov_b32 v22, 0")
    e("  s_waitcnt lgkmcnt(0)")
    for i in range(32):
        e(f"  v_readlane_b32 s36, v21, {i}")
        e("  s_nop 1")
        e("  v_cmp_gt_u32 vcc, s36, v21")
        e("  s_nop 1")
        e("  v_addc_co_u32 v22, vcc, 0, v22, vcc")
    e("  v_cmp_gt_u32 vcc, 8, v22")
    e("  v_cmp_gt_u32 s[42:43], 32, v0")
    e("  s_and_b64 vcc, vcc, s[42:43]")
    e("  v_lshlrev_b32 v3, 2, v22")
    e("  s_and_saveexec_b64 s[40:41], vcc")
    e(f"  ds_write_b32 v3, v21 offset:{LDS_C+128}")
    e("  s_mov_b64 exec, s[40:41]")
    e("  s_waitcnt lgkmcnt(0)")
    e("  s_barrier")
    e("  v_lshrrev_b32 v4, 5, v40")
    e("  v_and_b32 v5, 31, v40")
    e("  v_lshlrev_b32 v3, 2, v4")
    e(f"  ds_read_b32 v6, v3 offset:{LDS_C+128}")
    e("  s_waitcnt lgkmcnt(0)")
    e("  s_cmp_lg_u32 s3, 0")
    e("  s_cbranch_scc1 t2_nopub")
    e("  v_cmp_eq_u32 vcc, 0, v5")
    e("  s_and_saveexec_b64 s[40:41], vcc")
    e(f"  s_mov_b32 s14, {WS_IDX}")
    e("  buffer_store_dword v6, v3, s[20:23], s14 offen")
    e("  s_mov_b64 exec, s[40:41]")
    lab("t2_nopub")
    e("  v_and_b32 v6, 0xffff, v6")
    e("  v_sub_u32 v6, 0xffff, v6")
    e("  v_lshlrev_b32 v7, 10, v6")
    e("  v_lshl_add_u32 v7, v5, 4, v7")
    e(f"  s_mov_b32 s14, {WS_Y}")
    e(f"  s_mov_b32 s15, {WS_Y + (2<<20)}")
    YR, YI, XX = 24, 32, 44
    for j in range(2):
        e(f"  buffer_load_dwordx4 {vr(YR+4*j,4)}, v7, s[20:23], s14 offen offset:{512*j}")
        e(f"  buffer_load_dwordx4 {vr(YI+4*j,4)}, v7, s[20:23], s15 offen offset:{512*j}")
        e(f"  buffer_load_dwordx4 {vr(XX+4*j,4)}, v7, s[16:19], 0 offen offset:{512*j}")
    e("  v_lshlrev_b32 v3, 3, v6")
    e(f"  s_mov_b32 s14, {WS_STAT}")
    e("  buffer_load_dwordx2 v[52:53], v3, s[20:23], s14 offen")
    e("  s_waitcnt vmcnt(0)")
    e("  v_sub_f32 v54, 0, v52")
    e("  v_mov_b32 v55, v54")
    e("  v_mov_b32 v52, v53")
    recompute(YR, YI, XX, 8, 54, 52, 64, 80, 56)
    e(f"  v_mul_u32_u24 v3, {XS_STRIDE}, v4")
    e("  v_lshl_add_u32 v3, v5, 4, v3")
    e(f"  ds_write_b128 v3, v[80:83] offset:{LDS_XS}")
    e(f"  ds_write_b128 v3, v[84:87] offset:{LDS_XS+512}")
    e("  s_waitcnt lgkmcnt(0)")
    e("  s_barrier")
    e("  s_cmp_lg_u32 s13, 0")
    e("  s_cbranch_scc1 t2_done")
    e("  v_and_b32 v3, 7, v0")
    e(f"  v_mul_u32_u24 v3, {XS_STRIDE}, v3")
    e("  v_lshrrev_b32 v4, 4, v0")
    e("  v_lshl_add_u32 v3, v4, 4, v3")
    e("  v_and_b32 v5, 15, v0")
    e("  v_lshrrev_b32 v5, 2, v5")
    e("  v_lshl_add_u32 v5, v4, 3, v5")
    e("  v_lshlrev_b32 v5, 4, v5")
    e("  v_and_b32 v6, 1, v0")
    e("  v_lshl_add_u32 v5, v6, 3, v5")
    e("  v_and_b32 v6, 2, v0")
    e("  v_lshl_add_u32 v5, v6, 12, v5")
    for i in range(4):
        e(f"  v_mov_b32 v{8+i}, 0")
    FA, FB = 64, 128
    for st in range(16):
        e(f"  ds_read_b128 {vr(FA+4*st,4)}, v3 offset:{LDS_XS + 64*st}")
        e(f"  ds_read_b64_tr_b16 {vr(FB+4*st,2)}, v5 offset:{512*st}")
        e(f"  ds_read_b64_tr_b16 {vr(FB+4*st+2,2)}, v5 offset:{512*st+64}")
        if st % 4 == 3:
            e("  s_waitcnt lgkmcnt(0)")
            for s2 in range(st-3, st+1):
                e(f"  v_mfma_f32_16x16x32_bf16 v[8:11], {vr(FA+4*s2,4)}, {vr(FB+4*s2,4)}, v[8:11]")
    e("  s_nop 15")
    for i in range(4):
        e(f"  v_cvt_pk_bf16_f32 v{8+i}, v{8+i}, v{8+i}")
        e(f"  v_lshlrev_b32 v{8+i}, 16, v{8+i}")
    e("  s_nop 1")
    for i in range(4):
        e(f"  v_mov_b32_dpp v{12+i}, v{8+i} row_ror:8 row_mask:0xf bank_mask:0xf")
    for i in range(4):
        e(f"  v_mul_f32 v16, 0xbfb8aa3b, v{8+i}")
        e("  v_exp_f32 v16, v16")
        e("  s_nop 0")
        e("  v_add_f32 v16, 1.0, v16")
        e("  v_rcp_f32 v16, v16")
        e("  s_nop 0")
        e(f"  v_mul_f32 v16, v{8+i}, v16")
        e("  v_cvt_pk_bf16_f32 v16, v16, v16")
        e("  v_lshlrev_b32 v16, 16, v16")
        e(f"  v_mul_f32 v16, v16, v{12+i}")
        e(f"  v_cvt_pk_bf16_f32 v{20+i}, v16, v16")
    e("  v_and_b32 v5, 15, v0")
    e("  v_cmp_gt_u32 vcc, 8, v5")
    e("  v_cmp_gt_u32 s[42:43], 32, v0")
    e("  s_and_b64 vcc, vcc, s[42:43]")
    e("  s_and_saveexec_b64 s[40:41], vcc")
    e("  v_lshlrev_b32 v4, 2, v4")
    e("  v_mul_u32_u24 v4, 3584, v4")
    e("  v_lshl_add_u32 v4, v5, 1, v4")
    e("  s_lshl_b32 s15, s3, 4")
    e(f"  s_add_u32 s15, s15, {WS_GU}")
    for i in range(4):
        e(f"  buffer_store_short v{20+i}, v4, s[20:23], s15 offen offset:{3584*i if 3584*i < 4096 else 0}") if False else None
    for i in range(4):
        e(f"  buffer_store_short v{20+i}, v4, s[20:23], s15 offen")
        if i < 3:
            e("  v_add_u32 v4, 3584, v4")
    lab("t2_done")
    kernel_end()
    e("  s_endpgm")
    kernel_desc(name, 192)

def gen_t3():
    name = "t3_kernel"
    kernel_begin(name)
    LDS_W, LDS_R = 0, 28672
    e("  s_cmp_ge_u32 s2, 64")
    e("  s_cbranch_scc1 t3_done")
    e(f"  s_load_dwordx2 s[4:5], s[0:1], {KA_X}")
    e(f"  s_load_dwordx2 s[6:7], s[0:1], {KA_WS}")
    e(f"  s_load_dwordx4 s[8:11], s[0:1], {KA_WDN}")
    e("  s_and_b32 s3, s2, 7")
    e("  s_lshl_b32 s3, s3, 3")
    e("  s_lshr_b32 s12, s2, 3")
    e("  s_add_u32 s3, s3, s12")
    e("  v_lshrrev_b32 v1, 6, v0")
    e("  v_and_b32 v0, 63, v0")
    e("  v_readfirstlane_b32 s13, v1")
    e("  s_waitcnt lgkmcnt(0)")
    srd(16, 4, 5, 2 << 20)
    srd(20, 6, 7, 9 << 20)
    srd(24, 8, 9, 1792*512*2)
    srd(28, 10, 11, 2 << 20)
    e("  s_lshl_b32 s15, s3, 4")
    e("  s_mul_i32 s33, s13, 448")
    e("  v_add_u32 v3, s33, v0")
    e("  v_lshlrev_b32 v3, 10, v3")
    e("  s_mul_i32 s34, s13, 7168")
    for i in range(7):
        e(f"  s_add_u32 m0, s34, {LDS_W + 1024*i}")
        e("  s_nop 0")
        e(f"  buffer_load_dwordx4 v3, s[24:27], s15 offen lds")
        if i < 6:
            e("  v_add_u32 v3, 0x10000, v3")
    e("  v_and_b32 v4, 7, v0")
    e("  v_mul_u32_u24 v4, 3584, v4")
    e("  v_lshrrev_b32 v5, 4, v0")
    e("  v_lshl_add_u32 v4, v5, 4, v4")
    e("  s_mul_i32 s14, s13, 896")
    e(f"  s_add_u32 s14, s14, {WS_GU}")
    FA = 64
    for st in range(14):
        e(f"  buffer_load_dwordx4 {vr(FA+4*st,4)}, v4, s[20:23], s14 offen offset:{64*st}")
    e("  v_lshlrev_b32 v6, 4, v5")
    e(f"  s_mov_b32 s14, {WS_IDX}")
    e("  buffer_load_dwordx4 v[24:27], v6, s[20:23], s14 offen")
    e("  v_and_b32 v7, 15, v0")
    e("  v_lshrrev_b32 v7, 2, v7")
    e("  v_lshl_add_u32 v7, v5, 3, v7")
    e("  v_lshlrev_b32 v7, 4, v7")
    e("  v_and_b32 v6, 1, v0")
    e("  v_lshl_add_u32 v7, v6, 3, v7")
    e("  v_add_u32 v7, s34, v7")
    for i in range(4):
        e(f"  v_mov_b32 v{8+i}, 0")
    e("  s_waitcnt vmcnt(0)")
    FB = 128
    for st in range(14):
        e(f"  ds_read_b64_tr_b16 {vr(FB+4*st,2)}, v7 offset:{512*st}")
        e(f"  ds_read_b64_tr_b16 {vr(FB+4*st+2,2)}, v7 offset:{512*st+64}")
    e("  s_waitcnt lgkmcnt(0)")
    for st in range(14):
        e(f"  v_mfma_f32_16x16x32_bf16 v[8:11], {vr(FA+4*st,4)}, {vr(FB+4*st,4)}, v[8:11]")
    e("  s_nop 15")
    e("  v_lshlrev_b32 v3, 4, v0")
    e("  s_lshl_b32 s33, s13, 10")
    e("  v_add_u32 v3, s33, v3")
    e(f"  ds_write_b128 v3, v[8:11] offset:{LDS_R}")
    e("  s_waitcnt lgkmcnt(0)")
    e("  s_barrier")
    e("  s_cmp_lg_u32 s13, 0")
    e("  s_cbranch_scc1 t3_done")
    e("  v_lshlrev_b32 v3, 4, v0")
    for w in range(1, 4):
        e(f"  ds_read_b128 {vr(12+4*(w-1),4)}, v3 offset:{LDS_R+1024*w}")
    e("  v_and_b32 v6, 15, v0")
    e("  v_cmp_gt_u32 vcc, 8, v6")
    e("  v_cmp_gt_u32 s[42:43], 32, v0")
    e("  s_and_b64 vcc, vcc, s[42:43]")
    e("  s_and_saveexec_b64 s[40:41], vcc")
    e(f"  s_mov_b32 s36, {WS_Y}")
    e(f"  s_mov_b32 s37, {WS_Y + (2<<20)}")
    e(f"  s_mov_b32 s38, {WS_STAT}")
    for i in range(4):
        e(f"  v_and_b32 v{28+i}, 0xffff, v{24+i}")
        e(f"  v_sub_u32 v{28+i}, 0xffff, v{28+i}")
        e(f"  v_lshlrev_b32 v{32+i}, 3, v{28+i}")
        e(f"  v_lshlrev_b32 v{28+i}, 10, v{28+i}")
        e(f"  v_lshl_add_u32 v{28+i}, v6, 1, v{28+i}")
        e(f"  v_add_u32 v{28+i}, s15, v{28+i}")
        e(f"  buffer_load_ushort v{36+i}, v{28+i}, s[20:23], s36 offen")
        e(f"  buffer_load_ushort v{40+i}, v{28+i}, s[20:23], s37 offen")
        e(f"  buffer_load_ushort v{44+i}, v{28+i}, s[16:19], 0 offen")
        e(f"  buffer_load_dwordx2 {vr(48+2*i,2)}, v{32+i}, s[20:23], s38 offen")
    e("  s_waitcnt lgkmcnt(0)")
    for i in range(4):
        e(f"  v_add_f32 v{8+i}, v{8+i}, v{12+i}")
        e(f"  v_add_f32 v{16+i}, v{16+i}, v{20+i}")
        e(f"  v_add_f32 v{8+i}, v{8+i}, v{16+i}")
        e(f"  v_cvt_pk_bf16_f32 v{8+i}, v{8+i}, v{8+i}")
        e(f"  v_lshlrev_b32 v{8+i}, 16, v{8+i}")
        e(f"  v_and_b32 v60, 0xffff0000, v{24+i}")
        e("  v_ashrrev_i32 v61, 31, v60")
        e("  v_not_b32 v61, v61")
        e("  v_or_b32 v61, 0x80000000, v61")
        e("  v_xor_b32 v60, v60, v61")
        e("  v_and_b32 v60, 0xffff0000, v60")
        e("  v_mul_f32 v60, 0xbfb8aa3b, v60")
        e("  v_exp_f32 v60, v60")
        e("  s_nop 0")
        e("  v_add_f32 v60, 1.0, v60")
        e("  v_rcp_f32 v60, v60")
        e("  s_nop 0")
        e("  v_cvt_pk_bf16_f32 v60, v60, v60")
        e("  v_lshlrev_b32 v60, 16, v60")
        e(f"  v_mul_f32 v{8+i}, v{8+i}, v60")
        e(f"  v_cvt_pk_bf16_f32 v{8+i}, v{8+i}, v{8+i}")
        e(f"  v_lshlrev_b32 v{8+i}, 16, v{8+i}")
    e("  s_waitcnt vmcnt(0)")
    for i in range(4):
        e(f"  v_lshlrev_b32 v{36+i}, 16, v{36+i}")
        e(f"  v_lshlrev_b32 v{40+i}, 16, v{40+i}")
        e(f"  v_lshlrev_b32 v{44+i}, 16, v{44+i}")
        e(f"  v_sub_f32 v60, v{36+i}, v{40+i}")
        e("  v_cvt_pk_bf16_f32 v60, v60, v60")
        e("  v_lshlrev_b32 v60, 16, v60")
        e(f"  v_add_f32 v60, v{44+i}, v60")
        e("  v_cvt_pk_bf16_f32 v60, v60, v60")
        e("  v_lshlrev_b32 v60, 16, v60")
        e(f"  v_sub_f32 v61, v60, v{48+2*i}")
        e("  v_cvt_pk_bf16_f32 v61, v61, v61")
        e("  v_lshlrev_b32 v61, 16, v61")
        e(f"  v_mul_f32 v61, v61, v{49+2*i}")
        e("  v_cvt_pk_bf16_f32 v61, v61, v61")
        e("  v_lshlrev_b32 v61, 16, v61")
        e(f"  v_add_f32 v61, v61, v{8+i}")
        e("  v_cvt_pk_bf16_f32 v61, v61, v61")
        e("  v_lshlrev_b32 v61, 16, v61")
        e("  v_add_f32 v61, v60, v61")
        e("  v_cvt_pk_bf16_f32 v61, v61, v61")
        e(f"  buffer_store_short v61, v{28+i}, s[28:31], 0 offen")
    lab("t3_done")
    kernel_end()
    e("  s_endpgm")
    kernel_desc(name, 192)

WS_FLAG = WS_KEY + 8192
def rowmac(first):
    YR, YI, XX, WR, H, T, D = 16, 32, 48, 64, 80, 112, 116
    O = 148
    e("  v_lshlrev_b32 v3, 10, v1")
    e("  v_lshl_add_u32 v3, v2, 4, v3")
    e(f"  s_mov_b32 s52, {WS_Y}")
    e(f"  s_mov_b32 s53, {WS_Y + (2<<20)}")
    for j in range(4):
        e(f"  buffer_load_dwordx4 {vr(YR+4*j,4)}, v3, s[24:27], s52 offen offset:{256*j}")
        e(f"  buffer_load_dwordx4 {vr(YI+4*j,4)}, v3, s[24:27], s53 offen offset:{256*j}")
        e(f"  buffer_load_dwordx4 {vr(XX+4*j,4)}, v3, s[20:23], 0 offen offset:{256*j}")
    nextra = 0
    if first:
        e("  v_lshlrev_b32 v4, 4, v2")
        for j in range(4):
            e(f"  buffer_load_dwordx4 {vr(WR+4*j,4)}, v4, s[28:31], 0 offen offset:{256*j}")
        nextra = 4
    e("  v_mov_b32 v14, 0")
    e("  v_mov_b32 v15, 0")
    for j in range(4):
        e(f"  s_waitcnt vmcnt({nextra + 3*(3-j)})")
        for q in range(4):
            i = 4*j + q
            e(f"  v_lshlrev_b32 v{T}, 16, v{YR+i}")
            e(f"  v_and_b32 v{T+1}, 0xffff0000, v{YR+i}")
            e(f"  v_lshlrev_b32 v{T+2}, 16, v{YI+i}")
            e(f"  v_and_b32 v{T+3}, 0xffff0000, v{YI+i}")
            e(f"  v_pk_add_f32 {vr(T,2)}, {vr(T,2)}, {vr(T+2,2)} neg_lo:[0,1] neg_hi:[0,1]")
            e(f"  v_cvt_pk_bf16_f32 v{T}, v{T}, v{T+1}")
            e(f"  v_and_b32 v{T+1}, 0xffff0000, v{T}")
            e(f"  v_lshlrev_b32 v{T}, 16, v{T}")
            e(f"  v_lshlrev_b32 v{T+2}, 16, v{XX+i}")
            e(f"  v_and_b32 v{T+3}, 0xffff0000, v{XX+i}")
            e(f"  v_pk_add_f32 {vr(T,2)}, {vr(T,2)}, {vr(T+2,2)}")
            e(f"  v_cvt_pk_bf16_f32 v{YI+i}, v{T}, v{T+1}")
            e(f"  v_lshlrev_b32 v{H+2*i}, 16, v{YI+i}")
            e(f"  v_and_b32 v{H+2*i+1}, 0xffff0000, v{YI+i}")
            e(f"  v_pk_add_f32 v[14:15], v[14:15], {vr(H+2*i,2)}")
    e("  v_add_f32 v5, v14, v15")
    reduce16(5)
    e("  v_mul_f32 v5, 0x3b000000, v5")
    e("  v_cvt_pk_bf16_f32 v6, v5, v5")
    e("  v_lshlrev_b32 v6, 16, v6")
    e("  v_sub_f32 v8, 0, v6")
    e("  v_mov_b32 v9, v8")
    e("  v_mov_b32 v10, 0")
    e("  v_mov_b32 v11, 0")
    for i in range(16):
        e(f"  v_pk_add_f32 {vr(D+2*i,2)}, {vr(H+2*i,2)}, v[8:9]")
        e(f"  v_pk_fma_f32 v[10:11], {vr(D+2*i,2)}, {vr(D+2*i,2)}, v[10:11]")
    e("  v_add_f32 v10, v10, v11")
    reduce16(10)
    e("  v_sub_f32 v11, v5, v6")
    e("  v_mul_f32 v11, v11, v11")
    e("  v_mul_f32 v10, 0x3b000000, v10")
    e("  v_sub_f32 v10, v10, v11")
    e("  v_max_f32 v10, 0, v10")
    e("  v_cvt_pk_bf16_f32 v10, v10, v10")
    e("  v_lshlrev_b32 v10, 16, v10")
    e("  v_add_f32 v10, 0x3727c5ac, v10")
    e("  v_cvt_pk_bf16_f32 v10, v10, v10")
    e("  v_lshlrev_b32 v10, 16, v10")
    e("  v_sqrt_f32 v10, v10")
    e("  s_nop 0")
    e("  v_cvt_pk_bf16_f32 v10, v10, v10")
    e("  v_lshlrev_b32 v10, 16, v10")
    e("  v_rcp_f32 v10, v10")
    e("  s_nop 0")
    e("  v_mov_b32 v11, v10")
    if first:
        e("  v_mov_b32 v12, 0")
        e("  s_waitcnt vmcnt(0)")
    for i in range(16):
        e(f"  v_cvt_pk_bf16_f32 v{T}, v{D+2*i}, v{D+2*i+1}")
        e(f"  v_lshlrev_b32 v{D+2*i}, 16, v{T}")
        e(f"  v_and_b32 v{D+2*i+1}, 0xffff0000, v{T}")
        e(f"  v_pk_mul_f32 {vr(D+2*i,2)}, {vr(D+2*i,2)}, v[10:11]")
        e(f"  v_cvt_pk_bf16_f32 v{YR+i}, v{D+2*i}, v{D+2*i+1}")
        if first:
            e(f"  v_dot2_f32_bf16 v12, v{YR+i}, v{WR+i}, v12")
            e(f"  v_lshlrev_b32 v{D+2*i}, 16, v{YR+i}")
            e(f"  v_and_b32 v{D+2*i+1}, 0xffff0000, v{YR+i}")
            e(f"  v_pk_add_f32 {vr(D+2*i,2)}, {vr(D+2*i,2)}, {vr(H+2*i,2)}")
            e(f"  v_cvt_pk_bf16_f32 v{O+i}, v{D+2*i}, v{D+2*i+1}")
    if first:
        e("  s_nop 3")
        reduce16(12)
        e("  v_cvt_pk_bf16_f32 v12, v12, v12")
        e("  v_lshlrev_b32 v12, 16, v12")
        e("  v_ashrrev_i32 v13, 31, v12")
        e("  v_or_b32 v13, 0x80000000, v13")
        e("  v_xor_b32 v12, v12, v13")
        e("  v_and_b32 v12, 0xffff0000, v12")
        e("  v_sub_u32 v13, 0xffff, v1")
        e("  v_or_b32 v12, v12, v13")

def gen_tf():
    name = "tf_kernel"
    kernel_begin(name)
    LDS_G, LDS_U, LDS_WD = 0, 8192, 16384
    LDS_XS = 45056
    LDS_HS = LDS_XS + 8 * XS_STRIDE
    LDS_C = LDS_HS + 8192
    LDS_R = LDS_C + 256
    SPIN = 1 << 22
    e("  s_cmp_ge_u32 s2, 256")
    e("  s_cbranch_scc1 tf_done")
    e(f"  s_load_dwordx2 s[4:5], s[0:1], {KA_X}")
    e(f"  s_load_dwordx2 s[6:7], s[0:1], {KA_WS}")
    e(f"  s_load_dwordx8 s[8:15], s[0:1], {KA_WR}")
    e(f"  s_load_dwordx2 s[16:17], s[0:1], {KA_OUT}")
    e("  s_and_b32 s3, s2, 7")
    e("  s_mul_i32 s49, s3, 28")
    e("  s_lshr_b32 s50, s2, 3")
    e("  s_add_u32 s49, s49, s50")
    e("  s_sub_u32 s50, s50, 24")
    e("  s_lshl_b32 s51, s3, 3")
    e("  s_add_u32 s50, s50, s51")
    e("  v_mov_b32 v180, v0")
    e("  v_lshrrev_b32 v1, 6, v0")
    e("  v_and_b32 v0, 63, v0")
    e("  v_readfirstlane_b32 s48, v1")
    e("  s_waitcnt lgkmcnt(0)")
    srd(20, 4, 5, 2 << 20)
    srd(24, 6, 7, 9 << 20)
    srd(28, 8, 9, 1024)
    srd(32, 10, 11, 512*1792*2)
    srd(36, 12, 13, 512*1792*2)
    srd(40, 14, 15, 1792*512*2)
    srd(44, 16, 17, 2 << 20)
    e("  s_cmp_lt_u32 s48, 2")
    e("  s_cbranch_scc1 tf_p1")
    e("  s_cmp_ge_u32 s2, 224")
    e("  s_cbranch_scc1 tf_nof1")
    e("  s_movk_i32 s52, 3584")
    e("  v_mul_lo_u32 v3, v0, s52")
    e("  s_lshl_b32 s53, s49, 4")
    e("  s_cmp_eq_u32 s48, 2")
    e("  s_cbranch_scc0 tf_dma_u")
    for i in range(8):
        e(f"  s_mov_b32 m0, {LDS_G + 1024*i}")
        e("  s_nop 0")
        e("  buffer_load_dwordx4 v3, s[32:35], s53 offen lds")
        e(f"  s_add_u32 s53, s53, {64*3584}")
    e("  s_branch tf_nof1")
    lab("tf_dma_u")
    for i in range(8):
        e(f"  s_mov_b32 m0, {LDS_U + 1024*i}")
        e("  s_nop 0")
        e("  buffer_load_dwordx4 v3, s[36:39], s53 offen lds")
        e(f"  s_add_u32 s53, s53, {64*3584}")
    lab("tf_nof1")
    e("  s_cmp_lt_u32 s2, 192")
    e("  s_cbranch_scc1 tf_poll1")
    e("  v_lshlrev_b32 v3, 10, v0")
    e("  s_sub_u32 s52, s48, 2")
    e(f"  s_mul_i32 s53, s52, {896*1024}")
    e("  s_lshl_b32 s54, s50, 4")
    e("  s_add_u32 s53, s53, s54")
    e(f"  s_mul_i32 s54, s52, {896*16}")
    for i in range(14):
        e(f"  s_add_u32 m0, s54, {LDS_WD + 1024*i}")
        e("  s_nop 0")
        e("  buffer_load_dwordx4 v3, s[40:43], s53 offen lds")
        e("  s_add_u32 s53, s53, 0x10000")
    e("  s_branch tf_poll1")
    lab("tf_p1")
    e("  v_lshrrev_b32 v1, 4, v180")
    e("  v_and_b32 v2, 15, v0")
    e("  s_lshl_b32 s52, s2, 3")
    e("  v_add_u32 v1, s52, v1")
    e("  v_mov_b32 v181, v1")
    rowmac(True)
    e("  v_cmp_eq_u32 vcc, 0, v2")
    e("  s_and_saveexec_b64 s[56:57], vcc")
    e("  v_lshlrev_b32 v13, 2, v1")
    e(f"  s_mov_b32 s52, {WS_KEY}")
    e("  buffer_store_dword v12, v13, s[24:27], s52 offen sc1")
    e("  s_mov_b64 exec, s[56:57]")
    stamp(1)
    lab("tf_poll1")
    K = 164
    e("  v_lshlrev_b32 v172, 5, v180")
    e(f"  s_mov_b32 s52, {WS_KEY}")
    e("  s_mov_b32 s60, 0")
    lab("tf_poll1_loop")
    e(f"  buffer_load_dwordx4 {vr(K,4)}, v172, s[24:27], s52 offen sc1")
    e(f"  buffer_load_dwordx4 {vr(K+4,4)}, v172, s[24:27], s52 offen offset:16 sc1")
    e("  s_waitcnt vmcnt(0)")
    e(f"  v_min3_u32 v173, v{K}, v{K+1}, v{K+2}")
    e(f"  v_min3_u32 v174, v{K+3}, v{K+4}, v{K+5}")
    e(f"  v_min3_u32 v173, v173, v{K+6}, v{K+7}")
    e("  v_min_u32 v173, v173, v174")
    e("  v_cmp_eq_u32 s[62:63], 0, v173")
    e("  s_nop 3")
    e("  s_cmp_eq_u64 s[62:63], 0")
    e("  s_cbranch_scc1 tf_poll1_ok")
    e("  s_add_u32 s60, s60, 1")
    e(f"  s_cmp_gt_u32 s60, {SPIN}")
    e("  s_cbranch_scc1 tf_poll1_ok")
    e("  s_sleep 1")
    e("  s_branch tf_poll1_loop")
    lab("tf_poll1_ok")
    stamp(2)
    e("  v_mov_b32 v176, 0")
    for rnd in range(8):
        e(f"  v_max3_u32 v173, v{K}, v{K+1}, v{K+2}")
        e(f"  v_max3_u32 v174, v{K+3}, v{K+4}, v{K+5}")
        e(f"  v_max3_u32 v173, v173, v{K+6}, v{K+7}")
        e("  v_max_u32 v173, v173, v174")
        e("  s_nop 1")
        e("  v_max_u32_dpp v173, v173, v173 quad_perm:[1,0,3,2] row_mask:0xf bank_mask:0xf")
        e("  s_nop 1")
        e("  v_max_u32_dpp v173, v173, v173 quad_perm:[2,3,0,1] row_mask:0xf bank_mask:0xf")
        e("  s_nop 1")
        e("  v_max_u32_dpp v173, v173, v173 row_half_mirror row_mask:0xf bank_mask:0xf")
        e("  s_nop 1")
        e("  v_max_u32_dpp v173, v173, v173 row_mirror row_mask:0xf bank_mask:0xf")
        e("  s_nop 1")
        e("  v_readlane_b32 s64, v173, 0")
        e("  v_readlane_b32 s65, v173, 16")
        e("  v_readlane_b32 s66, v173, 32")
        e("  v_readlane_b32 s67, v173, 48")
        e("  s_max_u32 s64, s64, s65")
        e("  s_max_u32 s66, s66, s67")
        e("  s_max_u32 s64, s64, s66")
        e(f"  v_writelane_b32 v176, s64, {rnd}")
        if rnd < 7:
            for k in range(8):
                e(f"  v_cmp_ne_u32 vcc, s64, v{K+k}")
                e("  s_nop 1")
                e(f"  v_cndmask_b32 v{K+k}, 0, v{K+k}, vcc")
    e("  s_lshl_b32 s52, s48, 5")
    e(f"  s_add_u32 s52, s52, {LDS_C}")
    e("  v_lshlrev_b32 v172, 2, v0")
    e("  v_add_u32 v172, s52, v172")
    e("  v_cmp_gt_u32 vcc, 8, v0")
    e("  s_and_saveexec_b64 s[56:57], vcc")
    e("  ds_write_b32 v172, v176")
    e("  s_mov_b64 exec, s[56:57]")
    e("  s_waitcnt lgkmcnt(0)")
    e("  s_barrier")
    e("  v_and_b32 v172, 31, v0")
    e("  v_lshlrev_b32 v172, 2, v172")
    e(f"  ds_read_b32 v177, v172 offset:{LDS_C}")
    e("  v_mov_b32 v178, 0")
    e("  s_waitcnt lgkmcnt(0)")
    for i in range(32):
        e(f"  v_readlane_b32 s64, v177, {i}")
        e("  s_nop 1")
        e("  v_cmp_gt_u32 vcc, s64, v177")
        e("  s_nop 1")
        e("  v_addc_co_u32 v178, vcc, 0, v178, vcc")
    e("  v_cmp_gt_u32 vcc, 8, v178")
    e("  v_cmp_gt_u32 s[58:59], 32, v0")
    e("  s_and_b64 vcc, vcc, s[58:59]")
    e("  v_lshlrev_b32 v172, 2, v178")
    e("  s_and_saveexec_b64 s[56:57], vcc")
    e(f"  ds_write_b32 v172, v177 offset:{LDS_C+128}")
    e("  s_mov_b64 exec, s[56:57]")
    e("  s_waitcnt lgkmcnt(0)")
    e("  s_barrier")
    stamp(3)
    e("  s_cmp_lt_u32 s48, 2")
    e("  s_cbranch_scc1 tf_p2")
    e("  s_waitcnt vmcnt(0)")
    e("  s_branch tf_p2_end")
    lab("tf_p2")
    e("  v_mov_b32 v172, 0")
    e(f"  ds_read_b128 {vr(K,4)}, v172 offset:{LDS_C+128}")
    e(f"  ds_read_b128 {vr(K+4,4)}, v172 offset:{LDS_C+144}")
    e("  v_lshrrev_b32 v173, 4, v180")
    e("  v_lshlrev_b32 v173, 2, v173")
    e(f"  ds_read_b32 v174, v173 offset:{LDS_C+128}")
    e("  v_sub_u32 v175, 0xffff, v181")
    e("  s_waitcnt lgkmcnt(0)")
    e("  s_mov_b64 s[58:59], exec")
    for k in range(8):
        e(f"  v_and_b32 v{K+k}, 0xffff, v{K+k}")
        e(f"  v_cmp_ne_u32 vcc, v{K+k}, v175")
        e("  s_and_b64 s[58:59], s[58:59], vcc")
    e("  v_lshlrev_b32 v3, 10, v181")
    e("  v_lshl_add_u32 v3, v2, 4, v3")
    e("  s_and_saveexec_b64 s[56:57], s[58:59]")
    e("  s_cbranch_execz tf_nostore")
    for j in range(4):
        e(f"  buffer_store_dwordx4 {vr(148+4*j,4)}, v3, s[44:47], 0 offen offset:{256*j}")
    lab("tf_nostore")
    e("  s_mov_b64 exec, s[56:57]")
    e("  v_and_b32 v1, 0xffff, v174")
    e("  v_sub_u32 v1, 0xffff, v1")
    rowmac(False)
    e("  v_lshrrev_b32 v173, 4, v180")
    e(f"  v_mul_u32_u24 v4, {XS_STRIDE}, v173")
    e("  v_lshl_add_u32 v4, v2, 4, v4")
    e("  v_lshlrev_b32 v5, 10, v173")
    e("  v_lshl_add_u32 v5, v2, 4, v5")
    for j in range(4):
        e(f"  ds_write_b128 v4, {vr(16+4*j,4)} offset:{LDS_XS+256*j}")
        e(f"  ds_write_b128 v5, {vr(32+4*j,4)} offset:{LDS_HS+256*j}")
    e("  s_waitcnt lgkmcnt(0)")
    lab("tf_p2_end")
    e("  s_barrier")
    stamp(4)
    e("  s_cmp_lg_u32 s48, 0")
    e("  s_cbranch_scc1 tf_f2")
    e("  s_cmp_ge_u32 s2, 224")
    e("  s_cbranch_scc1 tf_f2")
    e("  v_and_b32 v3, 7, v0")
    e(f"  v_mul_u32_u24 v3, {XS_STRIDE}, v3")
    e("  v_lshrrev_b32 v4, 4, v0")
    e("  v_lshl_add_u32 v3, v4, 4, v3")
    e("  v_and_b32 v5, 15, v0")
    e("  v_lshrrev_b32 v5, 2, v5")
    e("  v_lshl_add_u32 v5, v4, 3, v5")
    e("  v_lshlrev_b32 v5, 4, v5")
    e("  v_and_b32 v6, 1, v0")
    e("  v_lshl_add_u32 v5, v6, 3, v5")
    e("  v_and_b32 v6, 2, v0")
    e("  v_lshl_add_u32 v5, v6, 12, v5")
    for i in range(4):
        e(f"  v_mov_b32 v{8+i}, 0")
    FA, FB = 16, 80
    for st in range(16):
        e(f"  ds_read_b128 {vr(FA+4*st,4)}, v3 offset:{LDS_XS + 64*st}")
        e(f"  ds_read_b64_tr_b16 {vr(FB+4*st,2)}, v5 offset:{512*st}")
        e(f"  ds_read_b64_tr_b16 {vr(FB+4*st+2,2)}, v5 offset:{512*st+64}")
        if st % 4 == 3:
            e("  s_waitcnt lgkmcnt(0)")
            for s2 in range(st-3, st+1):
                e(f"  v_mfma_f32_16x16x32_bf16 v[8:11], {vr(FA+4*s2,4)}, {vr(FB+4*s2,4)}, v[8:11]")
    e("  s_nop 15")
    for i in range(4):
        e(f"  v_cvt_pk_bf16_f32 v{8+i}, v{8+i}, v{8+i}")
        e(f"  v_lshlrev_b32 v{8+i}, 16, v{8+i}")
    e("  s_nop 1")
    for i in range(4):
        e(f"  v_mov_b32_dpp v{12+i}, v{8+i} row_ror:8 row_mask:0xf bank_mask:0xf")
    for i in range(4):
        e(f"  v_mul_f32 v16, 0xbfb8aa3b, v{8+i}")
        e("  v_exp_f32 v16, v16")
        e("  s_nop 0")
        e("  v_add_f32 v16, 1.0, v16")
        e("  v_rcp_f32 v16, v16")
        e("  s_nop 0")
        e(f"  v_mul_f32 v16, v{8+i}, v16")
        e("  v_cvt_pk_bf16_f32 v16, v16, v16")
        e("  v_lshlrev_b32 v16, 16, v16")
        e(f"  v_mul_f32 v16, v16, v{12+i}")
        e(f"  v_cvt_pk_bf16_f32 v{20+i}, v16, v16")
    e("  s_nop 1")
    for i in range(4):
        e(f"  v_mov_b32_dpp v{24+i}, v{20+i} quad_perm:[1,0,3,2] row_mask:0xf bank_mask:0xf")
    for i in range(4):
        e(f"  v_and_b32 v{20+i}, 0xffff, v{20+i}")
        e(f"  v_and_b32 v{24+i}, 0xffff0000, v{24+i}")
        e(f"  v_or_b32 v{20+i}, v{20+i}, v{24+i}")
    e("  v_and_b32 v5, 15, v0")
    e("  v_and_b32 v6, 9, v0")
    e("  v_cmp_eq_u32 vcc, 0, v6")
    e("  v_cmp_gt_u32 s[58:59], 32, v0")
    e("  s_and_b64 vcc, vcc, s[58:59]")
    e("  s_and_saveexec_b64 s[56:57], vcc")
    e("  v_lshlrev_b32 v4, 2, v4")
    e("  v_mul_u32_u24 v4, 3584, v4")
    e("  v_lshl_add_u32 v4, v5, 1, v4")
    e("  s_lshl_b32 s52, s49, 4")
    e(f"  s_add_u32 s52, s52, {WS_GU}")
    for i in range(4):
        e(f"  buffer_store_dword v{20+i}, v4, s[24:27], s52 offen sc1")
        if i < 3:
            e("  v_add_u32 v4, 3584, v4")
    e("  s_waitcnt vmcnt(0)")
    e("  s_mov_b64 exec, 1")
    e("  v_mov_b32 v4, 1")
    e("  v_mov_b32 v5, 0")
    e("  s_lshl_b32 s52, s49, 2")
    e(f"  s_add_u32 s52, s52, {WS_FLAG}")
    e("  buffer_store_dword v4, v5, s[24:27], s52 offen sc1")
    e("  s_mov_b64 exec, s[56:57]")
    stamp(5)
    lab("tf_f2")
    e("  s_cmp_lt_u32 s2, 192")
    e("  s_cbranch_scc1 tf_done")
    e("  v_min_u32 v3, 55, v0")
    e("  v_lshlrev_b32 v3, 2, v3")
    e("  s_mul_i32 s52, s48, 224")
    e(f"  s_add_u32 s52, s52, {WS_FLAG}")
    e("  s_mov_b32 s60, 0")
    lab("tf_poll2_loop")
    e("  buffer_load_dword v4, v3, s[24:27], s52 offen sc1")
    e("  s_waitcnt vmcnt(0)")
    e("  v_cmp_eq_u32 s[62:63], 0, v4")
    e("  s_nop 3")
    e("  s_cmp_eq_u64 s[62:63], 0")
    e("  s_cbranch_scc1 tf_poll2_ok")
    e("  s_add_u32 s60, s60, 1")
    e(f"  s_cmp_gt_u32 s60, {SPIN}")
    e("  s_cbranch_scc1 tf_poll2_ok")
    e("  s_sleep 1")
    e("  s_branch tf_poll2_loop")
    lab("tf_poll2_ok")
    stamp(6)
    e("  v_and_b32 v4, 7, v0")
    e("  v_mul_u32_u24 v4, 3584, v4")
    e("  v_lshrrev_b32 v5, 4, v0")
    e("  v_lshl_add_u32 v4, v5, 4, v4")
    e("  s_mul_i32 s52, s48, 896")
    e(f"  s_add_u32 s52, s52, {WS_GU}")
    FA, FB = 16, 72
    for st in range(14):
        e(f"  buffer_load_dwordx4 {vr(FA+4*st,4)}, v4, s[24:27], s52 offen offset:{64*st} sc1")
    e("  v_and_b32 v7, 15, v0")
    e("  v_lshrrev_b32 v7, 2, v7")
    e("  v_lshl_add_u32 v7, v5, 3, v7")
    e("  v_lshlrev_b32 v7, 4, v7")
    e("  v_and_b32 v6, 1, v0")
    e("  v_lshl_add_u32 v7, v6, 3, v7")
    e("  s_mul_i32 s54, s48, 7168")
    e(f"  s_add_u32 s54, s54, {LDS_WD}")
    e("  v_add_u32 v7, s54, v7")
    for st in range(14):
        e(f"  ds_read_b64_tr_b16 {vr(FB+4*st,2)}, v7 offset:{512*st}")
        e(f"  ds_read_b64_tr_b16 {vr(FB+4*st+2,2)}, v7 offset:{512*st+64}")
    for i in range(4):
        e(f"  v_mov_b32 v{8+i}, 0")
    e("  s_waitcnt vmcnt(0) lgkmcnt(0)")
    for st in range(14):
        e(f"  v_mfma_f32_16x16x32_bf16 v[8:11], {vr(FA+4*st,4)}, {vr(FB+4*st,4)}, v[8:11]")
    e("  s_nop 15")
    e("  v_lshlrev_b32 v3, 4, v0")
    e("  s_lshl_b32 s52, s48, 10")
    e("  v_add_u32 v3, s52, v3")
    e(f"  ds_write_b128 v3, v[8:11] offset:{LDS_R}")
    e("  s_waitcnt lgkmcnt(0)")
    e("  s_barrier")
    e("  s_cmp_lg_u32 s48, 0")
    e("  s_cbranch_scc1 tf_done")
    e("  v_lshlrev_b32 v3, 4, v0")
    for w in range(1, 4):
        e(f"  ds_read_b128 {vr(12+4*(w-1),4)}, v3 offset:{LDS_R+1024*w}")
    e("  v_and_b32 v6, 1, v5")
    e("  v_lshlrev_b32 v6, 4, v6")
    e(f"  ds_read_b128 v[24:27], v6 offset:{LDS_C+128}")
    e("  v_and_b32 v6, 7, v0")
    e("  s_lshl_b32 s52, s50, 4")
    e("  v_lshl_add_u32 v6, v6, 1, s52")
    e("  v_and_b32 v7, 1, v5")
    e("  v_lshlrev_b32 v7, 2, v7")
    for i in range(4):
        e(f"  v_add_u32 v28, {i}, v7")
        e(f"  v_mul_u32_u24 v29, {XS_STRIDE}, v28")
        e("  v_add_u32 v29, v29, v6")
        e(f"  ds_read_u16 v{36+i}, v29 offset:{LDS_XS}")
        e("  v_lshl_add_u32 v29, v28, 10, v6")
        e(f"  ds_read_u16 v{40+i}, v29 offset:{LDS_HS}")
    e("  v_and_b32 v30, 15, v0")
    e("  v_cmp_gt_u32 vcc, 8, v30")
    e("  v_cmp_gt_u32 s[58:59], 32, v0")
    e("  s_and_b64 vcc, vcc, s[58:59]")
    e("  s_waitcnt lgkmcnt(0)")
    e("  s_and_saveexec_b64 s[56:57], vcc")
    for i in range(4):
        e(f"  v_add_f32 v{8+i}, v{8+i}, v{12+i}")
        e(f"  v_add_f32 v{16+i}, v{16+i}, v{20+i}")
        e(f"  v_add_f32 v{8+i}, v{8+i}, v{16+i}")
        e(f"  v_cvt_pk_bf16_f32 v{8+i}, v{8+i}, v{8+i}")
        e(f"  v_lshlrev_b32 v{8+i}, 16, v{8+i}")
        e(f"  v_and_b32 v60, 0xffff0000, v{24+i}")
        e("  v_ashrrev_i32 v61, 31, v60")
        e("  v_not_b32 v61, v61")
        e("  v_or_b32 v61, 0x80000000, v61")
        e("  v_xor_b32 v60, v60, v61")
        e("  v_and_b32 v60, 0xffff0000, v60")
        e("  v_mul_f32 v60, 0xbfb8aa3b, v60")
        e("  v_exp_f32 v60, v60")
        e("  s_nop 0")
        e("  v_add_f32 v60, 1.0, v60")
        e("  v_rcp_f32 v60, v60")
        e("  s_nop 0")
        e("  v_cvt_pk_bf16_f32 v60, v60, v60")
        e("  v_lshlrev_b32 v60, 16, v60")
        e(f"  v_mul_f32 v{8+i}, v{8+i}, v60")
        e(f"  v_cvt_pk_bf16_f32 v{8+i}, v{8+i}, v{8+i}")
        e(f"  v_lshlrev_b32 v{8+i}, 16, v{8+i}")
        e(f"  v_lshlrev_b32 v{36+i}, 16, v{36+i}")
        e(f"  v_lshlrev_b32 v{40+i}, 16, v{40+i}")
        e(f"  v_add_f32 v61, v{36+i}, v{8+i}")
        e("  v_cvt_pk_bf16_f32 v61, v61, v61")
        e("  v_lshlrev_b32 v61, 16, v61")
        e(f"  v_add_f32 v61, v{40+i}, v61")
        e("  v_cvt_pk_bf16_f32 v61, v61, v61")
        e(f"  v_and_b32 v62, 0xffff, v{24+i}")
        e("  v_sub_u32 v62, 0xffff, v62")
        e("  v_lshl_add_u32 v62, v62, 10, v6")
        e("  buffer_store_short v61, v62, s[44:47], 0 offen")
    lab("tf_done")
    kernel_end()
    e("  s_endpgm")
    kernel_desc(name, 184)

def main():
    hdr = open("cdna_kernels/" + NAME + ".s.ref").read().splitlines()
    out = []
    for ln in hdr:
        if ln.startswith("; @launch"):
            out.append("; @launch kernel=k1_kernel grid=(256,1,1) block=(%d,1,1) lds=131072" % (576 if OPT('K1_PF', 0) else 512))
            out.append("; @launch kernel=k2_kernel grid=(256,1,1) block=(%d,1,1) lds=%d" % (512, K2_NS*24576))
            if OPT('TF'):
                out.append("; @launch kernel=tf_kernel grid=(256,1,1) block=(256,1,1) lds=66048")
            else:
                out.append("; @launch kernel=t1_kernel grid=(256,1,1) block=(%d,1,1) lds=0" % (192 if OPT('T1_PF', 1) else 128))
                out.append("; @launch kernel=t2_kernel grid=(224,1,1) block=(256,1,1) lds=25600")
                out.append("; @launch kernel=t3_kernel grid=(64,1,1) block=(256,1,1) lds=32768")
            break
        out.append(ln)
    out.append('.amdgcn_target "amdgcn-amd-amdhsa--gfx950"')
    out.append(".text")
    gen_k1(); gen_k2()
    if OPT('TF'): gen_tf()
    else: gen_t1(); gen_t2(); gen_t3()
    out += L
    out.append('.section .rodata,"a"')
    out += KD
    dst = sys.argv[1] if len(sys.argv) > 1 else "cdna_kernels/" + NAME + ".s"
    open(dst, "w").write("\n".join(out) + "\n")

main()
```

```python
import sys, os
OPT = lambda k, d=0: int(os.environ.get(k, d))

NAME = "sequential_preLN__spectral_fnet__moe_arch_mod__prompt"
L = []
def e(s=""):
    L.append(s)
def lab(s):
    L.append(s + ":")

KA_X, KA_WSRE, KA_WSIM, KA_WDRE, KA_WDIM = 0, 8, 16, 24, 32
KA_WR, KA_WG, KA_WU, KA_WDN, KA_OUT, KA_DBG, KA_WS = 48, 56, 64, 72, 80, 88, 96
WS_YB = 0
WS_Y = 4 << 20
WS_KEY = 8 << 20
WS_STAT = (8 << 20) + 8192
WS_GU = (8 << 20) + 65536
WS_IDX = (8 << 20) + 131072
WS_FLAG = (8 << 20) + 196608
WS_WDB = 10 << 20
WS_SIZE = 268435456

KIDX = [0]
NV = {"k1_kernel": 160, "k2_kernel": 160, "t1_kernel": 148, "t2_kernel": 192, "t3_kernel": 192, "tf_kernel": 184, "t4_kernel": 252}
CUR = [0]
def kernel_begin(name):
    CUR[0] = NV[name]
    e(f".globl {name}")
    e(".p2align 8")
    e(f".type {name},@function")
    lab(name)
    if OPT('DIAG'):
        e("  s_memrealtime s[72:73]")
        for i in range(1, 7):
            e(f"  s_mov_b64 s[{72+2*i}:{73+2*i}], 0")
        e(f"  s_load_dwordx2 s[94:95], s[0:1], {KA_WS}")
        e(f"  v_mov_b32 v{CUR[0]}, v0")

def stamp(i):
    if OPT('DIAG'):
        e(f"  s_memrealtime s[{72+2*i}:{73+2*i}]")

def kernel_end():
    if OPT('DIAG'):
        e("  s_waitcnt vmcnt(0) lgkmcnt(0)")
        e("  s_memrealtime s[86:87]")
        e("  s_mov_b32 s88, s94")
        e("  s_mov_b32 s89, s95")
        e("  s_mov_b32 s90, 0x4000000")
        e("  s_mov_b32 s91, 0x00020000")
        e("  s_waitcnt lgkmcnt(0)")
        e("  s_mov_b64 exec, 1")
        for i in range(16):
            e(f"  v_mov_b32 v{i}, s{72+i}")
        e(f"  v_lshrrev_b32 v{CUR[0]+1}, 6, v{CUR[0]}")
        e(f"  v_lshlrev_b32 v{CUR[0]+1}, 6, v{CUR[0]+1}")
        e("  s_lshl_b32 s92, s2, 10")
        e(f"  s_add_u32 s92, s92, {(16 << 20) + KIDX[0] * 0x100000}")
        for i in range(4):
            e(f"  buffer_store_dwordx4 v[{4*i}:{3+4*i}], v{CUR[0]+1}, s[88:91], s92 offen offset:{16*i}")
    KIDX[0] += 1

KD = []
def kernel_desc(name, vgpr, sgpr=102):
    assert vgpr == CUR[0]
    if OPT('DIAG'): vgpr += 2
    acc = (vgpr + 3) // 4 * 4
    KD.append(f""".p2align 6
.amdhsa_kernel {name}
  .amdhsa_next_free_vgpr {vgpr}
  .amdhsa_next_free_sgpr {sgpr}
  .amdhsa_accum_offset {acc}
  .amdhsa_group_segment_fixed_size 0
  .amdhsa_kernarg_size 104
  .amdhsa_user_sgpr_count 2
  .amdhsa_user_sgpr_kernarg_segment_ptr 1
  .amdhsa_system_sgpr_workgroup_id_x 1
.end_amdhsa_kernel""")

def srd(d, lo, hi, size):
    e(f"  s_mov_b32 s{d}, s{lo}")
    e(f"  s_mov_b32 s{d+1}, s{hi}")
    e(f"  s_mov_b32 s{d+2}, {size}")
    e(f"  s_mov_b32 s{d+3}, 0x00020000")

def vr(a, n):
    return f"v[{a}:{a+n-1}]"

def reduce8(v):
    e("  s_nop 1")
    e(f"  v_add_f32_dpp v{v}, v{v}, v{v} quad_perm:[1,0,3,2] row_mask:0xf bank_mask:0xf")
    e("  s_nop 1")
    e(f"  v_add_f32_dpp v{v}, v{v}, v{v} quad_perm:[2,3,0,1] row_mask:0xf bank_mask:0xf")
    e("  s_nop 1")
    e(f"  v_add_f32_dpp v{v}, v{v}, v{v} row_half_mirror row_mask:0xf bank_mask:0xf")

def reduce16(v):
    reduce8(v)
    e("  s_nop 1")
    e(f"  v_add_f32_dpp v{v}, v{v}, v{v} row_mirror row_mask:0xf bank_mask:0xf")

def gen_k1():
    name = "k1_kernel"
    kernel_begin(name)
    e("  s_cmp_ge_u32 s2, 256")
    e("  s_cbranch_scc1 k1_done")
    e(f"  s_load_dwordx2 s[4:5], s[0:1], {KA_X}")
    e(f"  s_load_dwordx4 s[8:11], s[0:1], {KA_WDRE}")
    e(f"  s_load_dwordx2 s[6:7], s[0:1], {KA_WS}")
    e("  s_and_b32 s12, s2, 7")
    e("  s_lshr_b32 s13, s2, 3")
    e("  s_and_b32 s14, s13, 3")
    e("  s_lshl_b32 s12, s12, 2")
    e("  s_add_u32 s12, s12, s14")
    e("  s_lshr_b32 s13, s13, 2")
    e("  v_lshrrev_b32 v1, 6, v0")
    e("  v_and_b32 v0, 63, v0")
    e("  v_readfirstlane_b32 s15, v1")
    e("  v_lshrrev_b32 v2, 3, v0")
    e("  v_and_b32 v3, 7, v0")
    if OPT('K1_PF', 0) or OPT('K1_PFEND', 0):
        e(f"  s_load_dwordx4 s[40:43], s[0:1], {KA_WSRE}")
    e("  s_waitcnt lgkmcnt(0)")
    if OPT('K1_PF', 0):
        e("  s_cmp_lg_u32 s15, 8")
        e("  s_cbranch_scc1 k1_main")
        e("  s_and_b32 s44, s2, 7")
        e("  s_cmp_lt_u32 s44, 4")
        e("  s_cselect_b32 s48, s40, s42")
        e("  s_cselect_b32 s49, s41, s43")
        e(f"  s_mov_b32 s50, {2048*2048*2}")
        e("  s_mov_b32 s51, 0x00020000")
        e("  s_and_b32 s44, s44, 3")
        e("  s_lshl_b32 s44, s44, 21")
        e("  s_lshr_b32 s45, s2, 3")
        e("  s_lshl_b32 s45, s45, 16")
        e("  s_add_u32 s44, s44, s45")
        e("  v_lshlrev_b32 v1, 4, v0")
        e("  s_cmp_ge_u32 s2, 9")
        e("  s_cbranch_scc1 k1_nozero")
        srd(52, 6, 7, 9 << 20)
        for q in range(4):
            e(f"  v_mov_b32 v{4+q}, 0")
        e("  s_lshl_b32 s46, s2, 10")
        e(f"  s_add_u32 s46, s46, {WS_KEY}")
        e("  buffer_store_dwordx4 v[4:7], v1, s[52:55], s46 offen")
        lab("k1_nozero")
        e("  s_cmp_lt_u32 s13, 4")
        e("  s_cselect_b32 s56, s8, s10")
        e("  s_cselect_b32 s57, s9, s11")
        e(f"  s_mov_b32 s58, {512*512*2}")
        e("  s_mov_b32 s59, 0x00020000")
        e("  s_and_b32 s46, s13, 3")
        e("  s_lshl_b32 s46, s46, 17")
        for q in range(OPT('K1_CAN', 2)):
            e(f"  buffer_load_dwordx4 v[8:11], v1, s[56:59], s46 offen offset:{q*1024}")
            e("  s_waitcnt vmcnt(0)")
        for q in range(64):
            e(f"  buffer_load_dwordx4 {vr(8+4*(q%32),4)}, v1, s[48:51], s44 offen")
            e("  s_add_u32 s44, s44, 1024")
        e("  s_branch k1_done")
        lab("k1_main")
    srd(16, 4, 5, 2048*512*2)
    e("  s_cmp_lt_u32 s13, 4")
    e("  s_cselect_b32 s20, s8, s10")
    e("  s_cselect_b32 s21, s9, s11")
    e(f"  s_mov_b32 s22, {512*512*2}")
    e("  s_mov_b32 s23, 0x00020000")
    srd(24, 6, 7, 4 << 20)
    e("  s_lshl_b32 s28, s12, 6")
    e("  s_lshl_b32 s29, s15, 3")
    e("  s_add_u32 s28, s28, s29")
    e("  v_add_u32 v4, s28, v2")
    e("  v_lshlrev_b32 v4, 10, v4")
    e("  v_lshl_add_u32 v4, v3, 4, v4")
    X = 32
    for j in range(8):
        e(f"  buffer_load_dwordx4 {vr(X+4*j,4)}, v4, s[16:19], 0 offen offset:{128*j}")
    e("  s_and_b32 s30, s13, 3")
    e("  s_lshl_b32 s30, s30, 7")
    for ii in range(2):
        e(f"  s_lshl_b32 s31, s15, 4")
        e(f"  s_add_u32 s31, s31, {8*ii}")
        e(f"  v_add_u32 v7, s31, v2")
        e(f"  v_lshrrev_b32 v8, 1, v7")
        e(f"  v_and_b32 v8, 7, v8")
        e(f"  v_xor_b32 v8, v8, v3")
        e(f"  v_add_u32 v7, s30, v7")
        e(f"  v_lshlrev_b32 v7, 10, v7")
        e(f"  v_lshl_add_u32 v{5+ii}, v8, 4, v7")
    e("  s_lshl_b32 s32, s15, 11")
    def wdma(kb):
        slot = kb % 4
        e(f"  s_mov_b32 s33, {128*kb}")
        for ii in range(2):
            e(f"  s_add_u32 m0, s32, {slot*16384 + ii*1024}")
            e("  s_nop 0")
            e(f"  buffer_load_dwordx4 v{5+ii}, s[20:23], s33 offen lds")
    for kb in range(4):
        wdma(kb)
    STG = 128
    for kb in (range(4, 8) if OPT('K1_STG') else []):
        e(f"  s_mov_b32 s33, {128*kb}")
        for ii in range(2):
            e(f"  buffer_load_dwordx4 {vr(STG+8*(kb-4)+4*ii,4)}, v{5+ii}, s[20:23], s33 offen")
    e("  s_mov_b32 s34, 0x3f803f80")
    for a in range(4):
        e(f"  v_mov_b32 v{8+a}, 0")
    stamp(1)
    e(f"  s_waitcnt vmcnt({16 if OPT('K1_STG') else 8})")
    stamp(2)
    for i in range(32):
        e(f"  v_dot2_f32_bf16 v{8+i%4}, v{X+i}, s34, v{8+i%4}")
    e("  s_nop 3")
    e("  v_add_f32 v8, v8, v9")
    e("  v_add_f32 v10, v10, v11")
    e("  v_add_f32 v8, v8, v10")
    reduce8(8)
    e("  v_mul_f32 v8, 0x3b000000, v8")
    e("  v_cvt_pk_bf16_f32 v9, v8, v8")
    e("  v_lshlrev_b32 v9, 16, v9")
    e("  v_sub_f32 v10, 0, v9")
    e("  v_mov_b32 v11, v10")
    D = 64
    for a in range(4):
        e(f"  v_mov_b32 v{12+a}, 0")
    for i in range(32):
        e(f"  v_lshlrev_b32 v{D+2*i}, 16, v{X+i}")
        e(f"  v_and_b32 v{D+2*i+1}, 0xffff0000, v{X+i}")
        e(f"  v_pk_add_f32 {vr(D+2*i,2)}, {vr(D+2*i,2)}, v[10:11]")
        q = 12 + 2*(i % 2)
        e(f"  v_pk_fma_f32 {vr(q,2)}, {vr(D+2*i,2)}, {vr(D+2*i,2)}, {vr(q,2)}")
    e("  v_add_f32 v12, v12, v13")
    e("  v_add_f32 v14, v14, v15")
    e("  v_add_f32 v12, v12, v14")
    reduce8(12)
    e("  v_sub_f32 v13, v8, v9")
    e("  v_mul_f32 v13, v13, v13")
    e("  v_mul_f32 v12, 0x3b000000, v12")
    e("  v_sub_f32 v12, v12, v13")
    e("  v_max_f32 v12, 0, v12")
    e("  v_cvt_pk_bf16_f32 v12, v12, v12")
    e("  v_lshlrev_b32 v12, 16, v12")
    e("  v_add_f32 v12, 0x3727c5ac, v12")
    e("  v_cvt_pk_bf16_f32 v12, v12, v12")
    e("  v_lshlrev_b32 v12, 16, v12")
    e("  v_sqrt_f32 v12, v12")
    e("  s_nop 0")
    e("  v_cvt_pk_bf16_f32 v12, v12, v12")
    e("  v_lshlrev_b32 v12, 16, v12")
    e("  v_rcp_f32 v12, v12")
    e("  s_nop 0")
    e("  v_mov_b32 v13, v12")
    for i in range(32):
        e(f"  v_cvt_pk_bf16_f32 v{X+i}, v{D+2*i}, v{D+2*i+1}")
        e(f"  v_lshlrev_b32 v{D+2*i}, 16, v{X+i}")
        e(f"  v_and_b32 v{D+2*i+1}, 0xffff0000, v{X+i}")
        e(f"  v_pk_mul_f32 {vr(D+2*i,2)}, {vr(D+2*i,2)}, v[12:13]")
        e(f"  v_cvt_pk_bf16_f32 v{X+i}, v{D+2*i}, v{D+2*i+1}")
    e("  v_add_u32 v14, s29, v2")
    e("  v_lshrrev_b32 v15, 1, v14")
    e("  v_and_b32 v15, 7, v15")
    e("  v_xor_b32 v15, v15, v3")
    e("  v_lshlrev_b32 v14, 7, v14")
    e("  v_lshl_add_u32 v14, v15, 4, v14")
    e("  v_add_u32 v14, 0x10000, v14")
    for j in range(8):
        e(f"  ds_write_b128 v14, {vr(X+4*j,4)} offset:{8192*j}")
    stamp(3)
    e("  s_and_b32 s35, s15, 1")
    e("  s_lshr_b32 s36, s15, 1")
    e("  v_and_b32 v16, 31, v0")
    e("  v_lshrrev_b32 v17, 5, v0")
    def fragaddr(dst, sblk, base):
        e(f"  s_lshl_b32 s37, s{sblk}, 5")
        e(f"  v_add_u32 v18, s37, v16")
        e(f"  v_lshrrev_b32 v19, 1, v18")
        e(f"  v_and_b32 v19, 7, v19")
        e(f"  v_xor_b32 v19, v19, v17")
        e(f"  v_lshlrev_b32 v18, 7, v18")
        e(f"  v_lshl_add_u32 v{dst}, v19, 4, v18")
        if base:
            e(f"  v_add_u32 v{dst}, {base}, v{dst}")
        for kk in range(1, 4):
            e(f"  v_xor_b32 v{dst+kk}, {32*kk}, v{dst}")
    fragaddr(20, 35, 0x10000)
    fragaddr(24, 36, 0)
    ACC = 96
    for i in range(16):
        e(f"  v_mov_b32 v{ACC+i}, 0")
    e("  v_lshlrev_b32 v28, 4, v0")
    e("  v_add_u32 v28, s32, v28")
    FA, FB = 64, 80
    waits = [14, 6, 4, 2, 0, 0, 0, 0] if OPT('K1_STG') else [6, 4, 4, 4, 4, 4, 2, 0]
    for kb in range(8):
        e(f"  s_waitcnt vmcnt({waits[kb]}) lgkmcnt(0)")
        e("  s_barrier")
        if kb == 0: stamp(4)
        if 1 <= kb <= 4 and not OPT('K1_STG'):
            wdma(kb + 3)
        if 1 <= kb <= 4 and OPT('K1_STG'):
            for ii in range(2):
                e(f"  ds_write_b128 v28, {vr(STG+8*(kb-1)+4*ii,4)} offset:{((kb+3)%4)*16384 + ii*1024}")
        slot = kb % 4
        for kk in range(4):
            e(f"  ds_read_b128 {vr(FA+4*kk,4)}, v{20+kk} offset:{8192*kb}")
            e(f"  ds_read_b128 {vr(FB+4*kk,4)}, v{24+kk} offset:{16384*slot}")
        for kk in range(4):
            e(f"  s_waitcnt lgkmcnt({6-2*kk})")
            e(f"  v_mfma_f32_32x32x16_bf16 {vr(ACC,16)}, {vr(FA+4*kk,4)}, {vr(FB+4*kk,4)}, {vr(ACC,16)}")
    stamp(5)
    e("  s_lshl_b32 s37, s13, 1")
    e("  s_lshr_b32 s38, s36, 1")
    e("  s_add_u32 s37, s37, s38")
    e("  s_lshl_b32 s37, s37, 5")
    e("  s_add_u32 s37, s37, s12")
    e("  s_lshl_b32 s37, s37, 13")
    e("  s_and_b32 s38, s36, 1")
    e("  s_lshl_b32 s38, s38, 5")
    e("  v_add_u32 v18, s38, v16")
    e("  v_lshrrev_b32 v19, 1, v18")
    e("  v_and_b32 v19, 7, v19")
    e("  s_lshl_b32 s38, s35, 2")
    e("  v_add_u32 v29, s38, v17")
    e("  v_xor_b32 v29, v29, v19")
    e("  v_lshlrev_b32 v18, 7, v18")
    e("  v_lshl_add_u32 v30, v29, 4, v18")
    e("  v_xor_b32 v31, 32, v30")
    e("  s_nop 7")
    P = 112
    for g in range(4):
        e(f"  v_cvt_pk_bf16_f32 v{P+2*g}, v{ACC+4*g}, v{ACC+4*g+1}")
        e(f"  v_cvt_pk_bf16_f32 v{P+2*g+1}, v{ACC+4*g+2}, v{ACC+4*g+3}")
    e("  s_nop 1")
    for p in range(2):
        e(f"  v_permlane32_swap_b32 v{P+4*p}, v{P+4*p+2}")
        e(f"  v_permlane32_swap_b32 v{P+4*p+1}, v{P+4*p+3}")
    e(f"  buffer_store_dwordx4 {vr(P,4)}, v30, s[24:27], s37 offen")
    e(f"  buffer_store_dwordx4 {vr(P+4,4)}, v31, s[24:27], s37 offen")
    if OPT('K1_PFEND', 0):
        e("  s_and_b32 s44, s2, 7")
        e("  s_cmp_lt_u32 s44, 4")
        e("  s_cselect_b32 s48, s40, s42")
        e("  s_cselect_b32 s49, s41, s43")
        e(f"  s_mov_b32 s50, {2048*2048*2}")
        e("  s_mov_b32 s51, 0x00020000")
        e("  s_and_b32 s44, s44, 3")
        e("  s_lshl_b32 s44, s44, 21")
        e("  s_lshr_b32 s45, s2, 3")
        e("  s_lshl_b32 s45, s45, 16")
        e("  s_add_u32 s44, s44, s45")
        e("  s_lshl_b32 s45, s15, 13")
        e("  s_add_u32 s44, s44, s45")
        e("  v_lshlrev_b32 v1, 4, v0")
        for q in range(8):
            e(f"  buffer_load_dwordx4 {vr(32+4*q,4)}, v1, s[48:51], s44 offen")
            e("  s_add_u32 s44, s44, 1024")
    lab("k1_done")
    kernel_end()
    e("  s_endpgm")
    kernel_desc(name, 160)

K2_NS = OPT('K2_NS', 6)
def gen_k2():
    NS = K2_NS
    name = "k2_kernel"
    kernel_begin(name)
    YBASE = NS * 16384
    e("  s_cmp_ge_u32 s2, 256")
    e("  s_cbranch_scc1 k2_done")
    e(f"  s_load_dwordx4 s[8:11], s[0:1], {KA_WSRE}")
    e(f"  s_load_dwordx2 s[6:7], s[0:1], {KA_WS}")
    e("  s_and_b32 s12, s2, 7")
    e("  s_lshr_b32 s13, s2, 3")
    e("  s_lshr_b32 s14, s12, 2")
    e("  s_and_b32 s12, s12, 3")
    e("  s_lshl_b32 s12, s12, 2")
    e("  s_lshr_b32 s15, s13, 3")
    e("  s_add_u32 s12, s12, s15")
    e("  s_and_b32 s13, s13, 7")
    e("  v_lshrrev_b32 v1, 6, v0")
    e("  v_and_b32 v0, 63, v0")
    e("  v_readfirstlane_b32 s15, v1")
    e("  v_lshrrev_b32 v2, 3, v0")
    e("  v_and_b32 v3, 7, v0")
    e("  s_waitcnt lgkmcnt(0)")
    e("  s_cmp_eq_u32 s14, 0")
    e("  s_cselect_b32 s16, s8, s10")
    e("  s_cselect_b32 s17, s9, s11")
    e(f"  s_mov_b32 s18, {2048*2048*2}")
    e("  s_mov_b32 s19, 0x00020000")
    srd(20, 6, 7, 8 << 20)
    e("  s_cmp_lt_u32 s15, 4")
    e("  s_cbranch_scc1 k2_consumer")
    e("  s_sub_u32 s15, s15, 4")
    for ii in range(4):
        e(f"  s_lshl_b32 s24, s15, 5")
        e(f"  s_add_u32 s24, s24, {8*ii}")
        e(f"  v_add_u32 v10, s24, v2")
        e(f"  v_lshrrev_b32 v11, 1, v10")
        e(f"  v_and_b32 v11, 7, v11")
        e(f"  v_xor_b32 v11, v11, v3")
        e(f"  s_lshl_b32 s24, s12, 7")
        e(f"  v_add_u32 v10, s24, v10")
        e(f"  v_lshlrev_b32 v10, 12, v10")
        e(f"  v_lshl_add_u32 v{4+ii}, v11, 4, v10")
    e("  s_lshl_b32 s24, s15, 11")
    e("  v_lshlrev_b32 v8, 4, v0")
    e("  v_add_u32 v8, s24, v8")
    e("  v_add_u32 v9, 1024, v8")
    e("  s_mov_b32 s25, 0")
    e("  s_lshl_b32 s26, s14, 3")
    e("  s_add_u32 s26, s26, s13")
    e("  s_lshl_b32 s26, s26, 18")
    e("  s_lshl_b32 s27, s15, 12")
    e("  s_lshl_b32 s28, s15, 11")
    e(f"  s_add_u32 s28, s28, {YBASE}")
    def dma(slot):
        for i in range(2):
            e(f"  s_add_u32 m0, s28, {slot*8192 + i*1024}")
            e("  s_nop 0")
            e(f"  buffer_load_dwordx4 v{8+i}, s[20:23], s26 offen lds")
        for i in range(4):
            e(f"  s_add_u32 m0, s27, {slot*16384 + i*1024}")
            e("  s_nop 0")
            e(f"  buffer_load_dwordx4 v{4+i}, s[16:19], s25 offen lds")
        if OPT('K2_ROT', 4):
            e("  s_add_u32 s25, s25, 128")
            e("  s_and_b32 s25, s25, 4095")
            e("  s_lshl_b32 s29, s25, 6")
            e("  s_add_u32 s26, s33, s29")
        else:
            e("  s_add_u32 s25, s25, 128")
            e("  s_add_u32 s26, s26, 8192")
    if OPT('K2_ROT', 4):
        e("  s_mov_b32 s33, s26")
        e(f"  s_mul_i32 s25, s13, {128*OPT('K2_ROT', 4)}")
        e("  s_and_b32 s25, s25, 4095")
        e("  s_lshl_b32 s29, s25, 6")
        e("  s_add_u32 s26, s33, s29")
    for st in range(NS):
        dma(st)
    e(f"  s_waitcnt vmcnt({6*(NS-1)})")
    e("  s_barrier")
    for ks in range(31):
        ahead = min(ks + NS - 1, 31) - (ks + 1)
        e(f"  s_waitcnt vmcnt({6*ahead})")
        if not OPT('K2_NOBAR'): e("  s_barrier")
        if ks == 8: stamp(3)
        if ks == 16: stamp(4)
        if ks == 24: stamp(5)
        if ks + NS < 32:
            dma(ks % NS)
    e("  s_branch k2_done")
    lab("k2_consumer")
    e("  v_and_b32 v16, 31, v0")
    e("  v_lshrrev_b32 v17, 5, v0")
    e("  s_lshl_b32 s24, s15, 5")
    e("  v_add_u32 v18, s24, v16")
    e("  v_lshrrev_b32 v19, 1, v18")
    e("  v_and_b32 v19, 7, v19")
    e("  v_xor_b32 v19, v19, v17")
    e("  v_lshlrev_b32 v18, 7, v18")
    e("  v_lshl_add_u32 v20, v19, 4, v18")
    for kk in range(1, 4):
        e(f"  v_xor_b32 v{20+kk}, {32*kk}, v20")
    for kk in range(4):
        e(f"  v_add_u32 v{28+kk}, 0x10000, v{20+kk}")
    e("  v_lshrrev_b32 v19, 1, v16")
    e("  v_and_b32 v19, 7, v19")
    e("  v_xor_b32 v19, v19, v17")
    e("  v_lshlrev_b32 v18, 7, v16")
    e("  v_lshl_add_u32 v24, v19, 4, v18")
    e(f"  v_add_u32 v24, {YBASE}, v24")
    for kk in range(1, 4):
        e(f"  v_xor_b32 v{24+kk}, {32*kk}, v24")
    ACC = 32
    for i in range(32):
        e(f"  v_mov_b32 v{ACC+i}, 0")
    def FW(st): return 64 + 48 * (st % 2)
    def FY(st): return 80 + 48 * (st % 2)
    def rd(st, kk):
        slot = st % NS
        wb = 20 if slot < 4 else 28
        e(f"  ds_read_b128 {vr(FW(st)+4*kk,4)}, v{wb+kk} offset:{16384*(slot%4)}")
        e(f"  ds_read_b128 {vr(FY(st)+8*kk,4)}, v{24+kk} offset:{8192*slot}")
        e(f"  ds_read_b128 {vr(FY(st)+8*kk+4,4)}, v{24+kk} offset:{8192*slot+4096}")
    stamp(1)
    e("  s_barrier")
    stamp(2)
    for kk in range(4):
        rd(0, kk)
    def mf(st, kk, half):
        e(f"  v_mfma_f32_32x32x16_bf16 {vr(ACC+16*half,16)}, {vr(FY(st)+8*kk+4*half,4)}, {vr(FW(st)+4*kk,4)}, {vr(ACC+16*half,16)}")
    for ks in range(32):
        more = ks + 1 < 32
        e("  s_waitcnt lgkmcnt(0)")
        if more and not OPT('K2_NOBAR'):
            e("  s_barrier")
        if OPT('K2_NOBAR') == 2: continue
        r = (lambda kk: rd(ks + 1, kk)) if more else (lambda kk: None)
        mf(ks, 0, 0); r(0); mf(ks, 0, 1); r(1)
        mf(ks, 1, 0); r(2); mf(ks, 1, 1); r(3)
        mf(ks, 2, 0); mf(ks, 2, 1)
        mf(ks, 3, 0); mf(ks, 3, 1)
    stamp(6)
    e("  s_lshl_b32 s24, s14, 21")
    e(f"  s_add_u32 s24, s24, {WS_Y}")
    e("  s_lshl_b32 s30, s13, 7")
    e("  s_add_u32 s24, s24, s30")
    e("  s_lshl_b32 s30, s12, 7")
    e("  s_lshl_b32 s31, s15, 5")
    e("  s_add_u32 s30, s30, s31")
    e("  v_add_u32 v18, s30, v16")
    e("  v_lshlrev_b32 v18, 10, v18")
    e("  v_lshl_add_u32 v18, v17, 4, v18")
    e("  s_nop 7")
    P = 64
    for g in range(8):
        e(f"  v_cvt_pk_bf16_f32 v{P+2*g}, v{ACC+4*g}, v{ACC+4*g+1}")
        e(f"  v_cvt_pk_bf16_f32 v{P+2*g+1}, v{ACC+4*g+2}, v{ACC+4*g+3}")
    e("  s_nop 1")
    for p in range(4):
        e(f"  v_permlane32_swap_b32 v{P+4*p}, v{P+4*p+2}")
        e(f"  v_permlane32_swap_b32 v{P+4*p+1}, v{P+4*p+3}")
    for p in range(4):
        e(f"  buffer_store_dwordx4 {vr(P+4*p,4)}, v18, s[20:23], s24 offen offset:{32*p}")
    lab("k2_done")
    kernel_end()
    e("  s_endpgm")
    kernel_desc(name, 160)

def gen_t1():
    name = "t1_kernel"
    kernel_begin(name)
    e("  s_cmp_ge_u32 s2, 256")
    e("  s_cbranch_scc1 t1_done")
    e(f"  s_load_dwordx2 s[4:5], s[0:1], {KA_X}")
    e(f"  s_load_dwordx2 s[6:7], s[0:1], {KA_WS}")
    e(f"  s_load_dwordx2 s[8:9], s[0:1], {KA_WR}")
    e(f"  s_load_dwordx2 s[10:11], s[0:1], {KA_OUT}")
    if OPT('T1_PF', 1):
        e(f"  s_load_dwordx4 s[32:35], s[0:1], {KA_WG}")
        e(f"  s_load_dwordx2 s[36:37], s[0:1], {KA_WDN}")
        e("  v_lshrrev_b32 v1, 6, v0")
        e("  s_nop 0")
        e("  v_readfirstlane_b32 s3, v1")
        e("  s_cmp_lg_u32 s3, 2")
        e("  s_cbranch_scc1 t1_main")
        e("  s_waitcnt lgkmcnt(0)")
        srd(40, 32, 33, 512*1792*2)
        srd(44, 34, 35, 512*1792*2)
        srd(48, 36, 37, 1792*512*2)
        e("  v_and_b32 v0, 63, v0")
        e("  s_and_b32 s52, s2, 7")
        e("  s_lshr_b32 s53, s2, 3")
        e("  v_min_u32 v1, 55, v0")
        e("  v_cmp_lt_u32 vcc, 27, v1")
        e("  v_cndmask_b32 v2, 0, 1, vcc")
        e("  v_mul_u32_u24 v3, 28, v2")
        e("  v_sub_u32 v3, v1, v3")
        e("  v_mul_u32_u24 v2, 3584, v2")
        e("  v_lshl_add_u32 v2, v3, 4, v2")
        e("  s_mul_i32 s54, s52, 448")
        e(f"  s_mul_i32 s55, s53, {16*3584}")
        e("  s_add_u32 s54, s54, s55")
        for q in range(8):
            e(f"  buffer_load_dwordx4 {vr(8+8*q,4)}, v2, s[40:43], s54 offen")
            e(f"  buffer_load_dwordx4 {vr(12+8*q,4)}, v2, s[44:47], s54 offen")
            e(f"  s_add_u32 s54, s54, {2*3584}")
        srd(56, 6, 7, 12 << 20)
        e("  v_lshlrev_b32 v2, 4, v0")
        e("  s_cmp_ge_u32 s2, 28")
        e("  s_cbranch_scc1 t1_nozero")
        for q in range(4):
            e(f"  v_mov_b32 v{4+q}, -1")
        e("  s_lshl_b32 s54, s2, 10")
        e(f"  s_add_u32 s54, s54, {WS_GU}")
        e("  buffer_store_dwordx4 v[4:7], v2, s[56:59], s54 offen")
        lab("t1_nozero")
        e("  s_mul_i32 s54, s2, 7168")
        for q in range(7):
            e(f"  buffer_load_dwordx4 {vr(72+4*q,4)}, v2, s[48:51], s54 offen offset:{1024*(q%4)}") if q < 4 else None
        e("  s_add_u32 s55, s54, 4096")
        for q in range(4, 7):
            e(f"  buffer_load_dwordx4 {vr(72+4*q,4)}, v2, s[48:51], s55 offen offset:{1024*(q%4)}")
        e("  v_mul_u32_u24 v3, 28672, v0")
        e("  s_mul_i32 s54, s2, 112")
        e(f"  s_add_u32 s54, s54, {WS_WDB}")
        for q in range(7):
            if q == 0: e("  s_waitcnt vmcnt(0)")
            e(f"  buffer_store_dwordx4 {vr(72+4*q,4)}, v3, s[56:59], s54 offen offset:{16*q}")
        e("  s_branch t1_done")
        lab("t1_main")
    e("  v_lshrrev_b32 v1, 4, v0")
    e("  v_and_b32 v2, 15, v0")
    e("  s_lshl_b32 s3, s2, 3")
    e("  v_add_u32 v1, s3, v1")
    e("  v_lshlrev_b32 v3, 10, v1")
    e("  v_lshl_add_u32 v3, v2, 4, v3")
    e("  v_lshlrev_b32 v4, 4, v2")
    e("  s_waitcnt lgkmcnt(0)")
    srd(12, 4, 5, 2 << 20)
    srd(16, 6, 7, 9 << 20)
    srd(20, 8, 9, 1024)
    srd(24, 10, 11, 2 << 20)
    e(f"  s_mov_b32 s28, {WS_Y}")
    e(f"  s_mov_b32 s29, {WS_Y + (2<<20)}")
    YR, YI, XX, WR = 16, 32, 48, 64
    for j in range(4):
        e(f"  buffer_load_dwordx4 {vr(YR+4*j,4)}, v3, s[16:19], s28 offen offset:{256*j}")
        e(f"  buffer_load_dwordx4 {vr(YI+4*j,4)}, v3, s[16:19], s29 offen offset:{256*j}")
        e(f"  buffer_load_dwordx4 {vr(XX+4*j,4)}, v3, s[12:15], 0 offen offset:{256*j}")
    for j in range(4):
        e(f"  buffer_load_dwordx4 {vr(WR+4*j,4)}, v4, s[20:23], 0 offen offset:{256*j}")
    H = 80
    T = 112
    e("  v_mov_b32 v14, 0")
    e("  v_mov_b32 v15, 0")
    for j in range(4):
        e(f"  s_waitcnt vmcnt({4 + 3*(3-j)})")
        for q in range(4):
            i = 4*j + q
            e(f"  v_lshlrev_b32 v{T}, 16, v{YR+i}")
            e(f"  v_and_b32 v{T+1}, 0xffff0000, v{YR+i}")
            e(f"  v_lshlrev_b32 v{T+2}, 16, v{YI+i}")
            e(f"  v_and_b32 v{T+3}, 0xffff0000, v{YI+i}")
            e(f"  v_pk_add_f32 {vr(T,2)}, {vr(T,2)}, {vr(T+2,2)} neg_lo:[0,1] neg_hi:[0,1]")
            e(f"  v_cvt_pk_bf16_f32 v{T}, v{T}, v{T+1}")
            e(f"  v_and_b32 v{T+1}, 0xffff0000, v{T}")
            e(f"  v_lshlrev_b32 v{T}, 16, v{T}")
            e(f"  v_lshlrev_b32 v{T+2}, 16, v{XX+i}")
            e(f"  v_and_b32 v{T+3}, 0xffff0000, v{XX+i}")
            e(f"  v_pk_add_f32 {vr(T,2)}, {vr(T,2)}, {vr(T+2,2)}")
            e(f"  v_cvt_pk_bf16_f32 v{T}, v{T}, v{T+1}")
            e(f"  v_lshlrev_b32 v{H+2*i}, 16, v{T}")
            e(f"  v_and_b32 v{H+2*i+1}, 0xffff0000, v{T}")
            e(f"  v_pk_add_f32 v[14:15], v[14:15], {vr(H+2*i,2)}")
    e("  v_add_f32 v5, v14, v15")
    reduce16(5)
    e("  v_mul_f32 v5, 0x3b000000, v5")
    e("  v_cvt_pk_bf16_f32 v6, v5, v5")
    e("  v_lshlrev_b32 v6, 16, v6")
    e("  v_sub_f32 v8, 0, v6")
    e("  v_mov_b32 v9, v8")
    e("  v_mov_b32 v10, 0")
    e("  v_mov_b32 v11, 0")
    D = 116
    for i in range(16):
        e(f"  v_pk_add_f32 {vr(D+2*i,2)}, {vr(H+2*i,2)}, v[8:9]")
        e(f"  v_pk_fma_f32 v[10:11], {vr(D+2*i,2)}, {vr(D+2*i,2)}, v[10:11]")
    e("  v_add_f32 v10, v10, v11")
    reduce16(10)
    e("  v_sub_f32 v11, v5, v6")
    e("  v_mul_f32 v11, v11, v11")
    e("  v_mul_f32 v10, 0x3b000000, v10")
    e("  v_sub_f32 v10, v10, v11")
    e("  v_max_f32 v10, 0, v10")
    e("  v_cvt_pk_bf16_f32 v10, v10, v10")
    e("  v_lshlrev_b32 v10, 16, v10")
    e("  v_add_f32 v10, 0x3727c5ac, v10")
    e("  v_cvt_pk_bf16_f32 v10, v10, v10")
    e("  v_lshlrev_b32 v10, 16, v10")
    e("  v_sqrt_f32 v10, v10")
    e("  s_nop 0")
    e("  v_cvt_pk_bf16_f32 v10, v10, v10")
    e("  v_lshlrev_b32 v10, 16, v10")
    e("  v_rcp_f32 v10, v10")
    e("  s_nop 0")
    e("  v_mov_b32 v11, v10")
    e("  v_mov_b32 v12, 0")
    e("  s_waitcnt vmcnt(0)")
    O = 16
    for i in range(16):
        e(f"  v_cvt_pk_bf16_f32 v{T}, v{D+2*i}, v{D+2*i+1}")
        e(f"  v_lshlrev_b32 v{D+2*i}, 16, v{T}")
        e(f"  v_and_b32 v{D+2*i+1}, 0xffff0000, v{T}")
        e(f"  v_pk_mul_f32 {vr(D+2*i,2)}, {vr(D+2*i,2)}, v[10:11]")
        e(f"  v_cvt_pk_bf16_f32 v{T}, v{D+2*i}, v{D+2*i+1}")
        e(f"  v_dot2_f32_bf16 v12, v{T}, v{WR+i}, v12")
        e(f"  v_lshlrev_b32 v{D+2*i}, 16, v{T}")
        e(f"  v_and_b32 v{D+2*i+1}, 0xffff0000, v{T}")
        e(f"  v_pk_add_f32 {vr(D+2*i,2)}, {vr(D+2*i,2)}, {vr(H+2*i,2)}")
        e(f"  v_cvt_pk_bf16_f32 v{O+i}, v{D+2*i}, v{D+2*i+1}")
    for j in range(4):
        e(f"  buffer_store_dwordx4 {vr(O+4*j,4)}, v3, s[24:27], 0 offen offset:{256*j}")
    e("  s_nop 3")
    reduce16(12)
    e("  v_cvt_pk_bf16_f32 v12, v12, v12")
    e("  v_lshlrev_b32 v12, 16, v12")
    e("  v_ashrrev_i32 v13, 31, v12")
    e("  v_or_b32 v13, 0x80000000, v13")
    e("  v_xor_b32 v12, v12, v13")
    e("  v_and_b32 v12, 0xffff0000, v12")
    e("  v_sub_u32 v13, 0xffff, v1")
    e("  v_or_b32 v12, v12, v13")
    e("  v_cmp_eq_u32 vcc, 0, v2")
    e("  s_and_saveexec_b64 s[30:31], vcc")
    e("  v_lshlrev_b32 v13, 2, v1")
    e(f"  s_mov_b32 s28, {WS_KEY}")
    e("  buffer_store_dword v12, v13, s[16:19], s28 offen")
    e("  v_lshlrev_b32 v13, 3, v1")
    e("  v_mov_b32 v7, v10")
    e(f"  s_mov_b32 s28, {WS_STAT}")
    e("  buffer_store_dwordx2 v[6:7], v13, s[16:19], s28 offen")
    lab("t1_done")
    kernel_end()
    e("  s_endpgm")
    kernel_desc(name, 148)

def recompute(YR, YI, XX, nd, NEGM, RINV, HOUT, XNOUT, T):
    for i in range(nd):
        e(f"  v_lshlrev_b32 v{T}, 16, v{YR+i}")
        e(f"  v_and_b32 v{T+1}, 0xffff0000, v{YR+i}")
        e(f"  v_lshlrev_b32 v{T+2}, 16, v{YI+i}")
        e(f"  v_and_b32 v{T+3}, 0xffff0000, v{YI+i}")
        e(f"  v_pk_add_f32 {vr(T,2)}, {vr(T,2)}, {vr(T+2,2)} neg_lo:[0,1] neg_hi:[0,1]")
        e(f"  v_cvt_pk_bf16_f32 v{T}, v{T}, v{T+1}")
        e(f"  v_and_b32 v{T+1}, 0xffff0000, v{T}")
        e(f"  v_lshlrev_b32 v{T}, 16, v{T}")
        e(f"  v_lshlrev_b32 v{T+2}, 16, v{XX+i}")
        e(f"  v_and_b32 v{T+3}, 0xffff0000, v{XX+i}")
        e(f"  v_pk_add_f32 {vr(T,2)}, {vr(T,2)}, {vr(T+2,2)}")
        e(f"  v_cvt_pk_bf16_f32 v{T}, v{T}, v{T+1}")
        e(f"  v_lshlrev_b32 v{HOUT+2*i}, 16, v{T}")
        e(f"  v_and_b32 v{HOUT+2*i+1}, 0xffff0000, v{T}")
        e(f"  v_pk_add_f32 {vr(T,2)}, {vr(HOUT+2*i,2)}, {vr(NEGM,2)}")
        e(f"  v_cvt_pk_bf16_f32 v{T}, v{T}, v{T+1}")
        e(f"  v_and_b32 v{T+1}, 0xffff0000, v{T}")
        e(f"  v_lshlrev_b32 v{T}, 16, v{T}")
        e(f"  v_pk_mul_f32 {vr(T,2)}, {vr(T,2)}, {vr(RINV,2)}")
        e(f"  v_cvt_pk_bf16_f32 v{XNOUT+i}, v{T}, v{T+1}")

XS_STRIDE = 1040
def gen_t2():
    name = "t2_kernel"
    kernel_begin(name)
    LDS_G, LDS_U, LDS_XS, LDS_C = 0, 8192, 16384, 16384 + 8*XS_STRIDE
    e("  s_cmp_ge_u32 s2, 224")
    e("  s_cbranch_scc1 t2_done")
    e(f"  s_load_dwordx2 s[4:5], s[0:1], {KA_X}")
    e(f"  s_load_dwordx2 s[6:7], s[0:1], {KA_WS}")
    e(f"  s_load_dwordx4 s[8:11], s[0:1], {KA_WG}")
    e("  s_and_b32 s3, s2, 7")
    e("  s_mul_i32 s3, s3, 28")
    e("  s_lshr_b32 s12, s2, 3")
    e("  s_add_u32 s3, s3, s12")
    e("  v_mov_b32 v40, v0")
    e("  v_lshrrev_b32 v1, 6, v0")
    e("  v_and_b32 v0, 63, v0")
    e("  v_readfirstlane_b32 s13, v1")
    e("  s_waitcnt lgkmcnt(0)")
    srd(16, 4, 5, 2 << 20)
    srd(20, 6, 7, 9 << 20)
    srd(24, 8, 9, 512*1792*2)
    srd(28, 10, 11, 512*1792*2)
    e("  v_lshlrev_b32 v2, 5, v40")
    e(f"  s_mov_b32 s14, {WS_KEY}")
    e("  buffer_load_dwordx4 v[8:11], v2, s[20:23], s14 offen")
    e("  buffer_load_dwordx4 v[12:15], v2, s[20:23], s14 offen offset:16")
    e("  s_lshl_b32 s15, s3, 4")
    e("  s_movk_i32 s32, 3584")
    for ii in range(2):
        e(f"  s_lshl_b32 s33, s13, 7")
        e(f"  s_add_u32 s33, s33, {64*ii}")
        e(f"  v_add_u32 v3, s33, v0")
        e(f"  v_mul_lo_u32 v3, v3, s32")
        e(f"  s_lshl_b32 s34, s13, 11")
        e(f"  s_add_u32 m0, s34, {LDS_G + 1024*ii}")
        e("  s_nop 0")
        e(f"  buffer_load_dwordx4 v3, s[24:27], s15 offen lds")
        e(f"  s_add_u32 m0, s34, {LDS_U + 1024*ii}")
        e("  s_nop 0")
        e(f"  buffer_load_dwordx4 v3, s[28:31], s15 offen lds")
    stamp(1)
    e("  s_waitcnt vmcnt(4)")
    stamp(2)
    e("  v_mov_b32 v20, 0")
    for rnd in range(8):
        e("  v_max3_u32 v16, v8, v9, v10")
        e("  v_max3_u32 v17, v11, v12, v13")
        e("  v_max3_u32 v16, v16, v14, v15")
        e("  v_max_u32 v16, v16, v17")
        e("  s_nop 1")
        e("  v_max_u32_dpp v16, v16, v16 quad_perm:[1,0,3,2] row_mask:0xf bank_mask:0xf")
        e("  s_nop 1")
        e("  v_max_u32_dpp v16, v16, v16 quad_perm:[2,3,0,1] row_mask:0xf bank_mask:0xf")
        e("  s_nop 1")
        e("  v_max_u32_dpp v16, v16, v16 row_half_mirror row_mask:0xf bank_mask:0xf")
        e("  s_nop 1")
        e("  v_max_u32_dpp v16, v16, v16 row_mirror row_mask:0xf bank_mask:0xf")
        e("  s_nop 1")
        e("  v_readlane_b32 s36, v16, 0")
        e("  v_readlane_b32 s37, v16, 16")
        e("  v_readlane_b32 s38, v16, 32")
        e("  v_readlane_b32 s39, v16, 48")
        e("  s_max_u32 s36, s36, s37")
        e("  s_max_u32 s38, s38, s39")
        e("  s_max_u32 s36, s36, s38")
        e(f"  v_writelane_b32 v20, s36, {rnd}")
        if rnd < 7:
            for k in range(8):
                e(f"  v_cmp_ne_u32 vcc, s36, v{8+k}")
                e("  s_nop 1")
                e(f"  v_cndmask_b32 v{8+k}, 0, v{8+k}, vcc")
    e("  s_lshl_b32 s33, s13, 5")
    e(f"  s_add_u32 s33, s33, {LDS_C}")
    e("  v_lshlrev_b32 v3, 2, v0")
    e("  v_add_u32 v3, s33, v3")
    e("  v_cmp_gt_u32 vcc, 8, v0")
    e("  s_and_saveexec_b64 s[40:41], vcc")
    e("  ds_write_b32 v3, v20")
    e("  s_mov_b64 exec, s[40:41]")
    e("  s_waitcnt lgkmcnt(0)")
    e("  s_barrier")
    e("  v_and_b32 v3, 31, v0")
    e("  v_lshlrev_b32 v3, 2, v3")
    e(f"  ds_read_b32 v21, v3 offset:{LDS_C}")
    e("  v_mov_b32 v22, 0")
    e("  s_waitcnt lgkmcnt(0)")
    for i in range(32):
        e(f"  v_readlane_b32 s36, v21, {i}")
        e("  s_nop 1")
        e("  v_cmp_gt_u32 vcc, s36, v21")
        e("  s_nop 1")
        e("  v_addc_co_u32 v22, vcc, 0, v22, vcc")
    e("  v_cmp_gt_u32 vcc, 8, v22")
    e("  v_cmp_gt_u32 s[42:43], 32, v0")
    e("  s_and_b64 vcc, vcc, s[42:43]")
    e("  v_lshlrev_b32 v3, 2, v22")
    e("  s_and_saveexec_b64 s[40:41], vcc")
    e(f"  ds_write_b32 v3, v21 offset:{LDS_C+128}")
    e("  s_mov_b64 exec, s[40:41]")
    e("  s_waitcnt lgkmcnt(0)")
    e("  s_barrier")
    stamp(3)
    e("  v_lshrrev_b32 v4, 5, v40")
    e("  v_and_b32 v5, 31, v40")
    e("  v_lshlrev_b32 v3, 2, v4")
    e(f"  ds_read_b32 v6, v3 offset:{LDS_C+128}")
    e("  s_waitcnt lgkmcnt(0)")
    e("  s_cmp_lg_u32 s3, 0")
    e("  s_cbranch_scc1 t2_nopub")
    e("  v_cmp_eq_u32 vcc, 0, v5")
    e("  s_and_saveexec_b64 s[40:41], vcc")
    e(f"  s_mov_b32 s14, {WS_IDX}")
    e("  buffer_store_dword v6, v3, s[20:23], s14 offen")
    e("  s_mov_b64 exec, s[40:41]")
    lab("t2_nopub")
    e("  v_and_b32 v6, 0xffff, v6")
    e("  v_sub_u32 v6, 0xffff, v6")
    e("  v_lshlrev_b32 v7, 10, v6")
    e("  v_lshl_add_u32 v7, v5, 4, v7")
    e(f"  s_mov_b32 s14, {WS_Y}")
    e(f"  s_mov_b32 s15, {WS_Y + (2<<20)}")
    YR, YI, XX = 24, 32, 44
    for j in range(2):
        e(f"  buffer_load_dwordx4 {vr(YR+4*j,4)}, v7, s[20:23], s14 offen offset:{512*j}")
        e(f"  buffer_load_dwordx4 {vr(YI+4*j,4)}, v7, s[20:23], s15 offen offset:{512*j}")
        e(f"  buffer_load_dwordx4 {vr(XX+4*j,4)}, v7, s[16:19], 0 offen offset:{512*j}")
    e("  v_lshlrev_b32 v3, 3, v6")
    e(f"  s_mov_b32 s14, {WS_STAT}")
    e("  buffer_load_dwordx2 v[52:53], v3, s[20:23], s14 offen")
    e("  s_waitcnt vmcnt(0)")
    stamp(4)
    e("  v_sub_f32 v54, 0, v52")
    e("  v_mov_b32 v55, v54")
    e("  v_mov_b32 v52, v53")
    recompute(YR, YI, XX, 8, 54, 52, 64, 80, 56)
    e(f"  v_mul_u32_u24 v3, {XS_STRIDE}, v4")
    e("  v_lshl_add_u32 v3, v5, 4, v3")
    e(f"  ds_write_b128 v3, v[80:83] offset:{LDS_XS}")
    e(f"  ds_write_b128 v3, v[84:87] offset:{LDS_XS+512}")
    e("  s_waitcnt lgkmcnt(0)")
    e("  s_barrier")
    e("  s_cmp_lg_u32 s13, 0")
    e("  s_cbranch_scc1 t2_done")
    stamp(5)
    e("  v_and_b32 v3, 7, v0")
    e(f"  v_mul_u32_u24 v3, {XS_STRIDE}, v3")
    e("  v_lshrrev_b32 v4, 4, v0")
    e("  v_lshl_add_u32 v3, v4, 4, v3")
    e("  v_and_b32 v5, 15, v0")
    e("  v_lshrrev_b32 v5, 2, v5")
    e("  v_lshl_add_u32 v5, v4, 3, v5")
    e("  v_lshlrev_b32 v5, 4, v5")
    e("  v_and_b32 v6, 1, v0")
    e("  v_lshl_add_u32 v5, v6, 3, v5")
    e("  v_and_b32 v6, 2, v0")
    e("  v_lshl_add_u32 v5, v6, 12, v5")
    for i in range(4):
        e(f"  v_mov_b32 v{8+i}, 0")
    FA, FB = 64, 128
    for st in range(16):
        e(f"  ds_read_b128 {vr(FA+4*st,4)}, v3 offset:{LDS_XS + 64*st}")
        e(f"  ds_read_b64_tr_b16 {vr(FB+4*st,2)}, v5 offset:{512*st}")
        e(f"  ds_read_b64_tr_b16 {vr(FB+4*st+2,2)}, v5 offset:{512*st+64}")
        if st % 4 == 3:
            e("  s_waitcnt lgkmcnt(0)")
            for s2 in range(st-3, st+1):
                e(f"  v_mfma_f32_16x16x32_bf16 v[8:11], {vr(FA+4*s2,4)}, {vr(FB+4*s2,4)}, v[8:11]")
    e("  s_nop 15")
    for i in range(4):
        e(f"  v_cvt_pk_bf16_f32 v{8+i}, v{8+i}, v{8+i}")
        e(f"  v_lshlrev_b32 v{8+i}, 16, v{8+i}")
    e("  s_nop 1")
    for i in range(4):
        e(f"  v_mov_b32_dpp v{12+i}, v{8+i} row_ror:8 row_mask:0xf bank_mask:0xf")
    for i in range(4):
        e(f"  v_mul_f32 v16, 0xbfb8aa3b, v{8+i}")
        e("  v_exp_f32 v16, v16")
        e("  s_nop 0")
        e("  v_add_f32 v16, 1.0, v16")
        e("  v_rcp_f32 v16, v16")
        e("  s_nop 0")
        e(f"  v_mul_f32 v16, v{8+i}, v16")
        e("  v_cvt_pk_bf16_f32 v16, v16, v16")
        e("  v_lshlrev_b32 v16, 16, v16")
        e(f"  v_mul_f32 v16, v16, v{12+i}")
        e(f"  v_cvt_pk_bf16_f32 v{20+i}, v16, v16")
    stamp(6)
    e("  v_and_b32 v5, 15, v0")
    e("  v_cmp_gt_u32 vcc, 8, v5")
    e("  v_cmp_gt_u32 s[42:43], 32, v0")
    e("  s_and_b64 vcc, vcc, s[42:43]")
    e("  s_and_saveexec_b64 s[40:41], vcc")
    e("  v_lshlrev_b32 v4, 2, v4")
    e("  v_mul_u32_u24 v4, 3584, v4")
    e("  v_lshl_add_u32 v4, v5, 1, v4")
    e("  s_lshl_b32 s15, s3, 4")
    e(f"  s_add_u32 s15, s15, {WS_GU}")
    for i in range(4):
        e(f"  buffer_store_short v{20+i}, v4, s[20:23], s15 offen offset:{3584*i if 3584*i < 4096 else 0}") if False else None
    for i in range(4):
        e(f"  buffer_store_short v{20+i}, v4, s[20:23], s15 offen")
        if i < 3:
            e("  v_add_u32 v4, 3584, v4")
    lab("t2_done")
    kernel_end()
    e("  s_endpgm")
    kernel_desc(name, 192)

def gen_t3():
    name = "t3_kernel"
    kernel_begin(name)
    LDS_W, LDS_R = 0, 28672
    e("  s_cmp_ge_u32 s2, 64")
    e("  s_cbranch_scc1 t3_done")
    e(f"  s_load_dwordx2 s[4:5], s[0:1], {KA_X}")
    e(f"  s_load_dwordx2 s[6:7], s[0:1], {KA_WS}")
    e(f"  s_load_dwordx2 s[10:11], s[0:1], {KA_OUT}")
    e("  s_mov_b32 s3, s2")
    e("  v_lshrrev_b32 v1, 6, v0")
    e("  v_and_b32 v0, 63, v0")
    e("  v_readfirstlane_b32 s13, v1")
    e("  v_lshrrev_b32 v5, 4, v0")
    e("  s_waitcnt lgkmcnt(0)")
    srd(16, 4, 5, 2 << 20)
    srd(20, 6, 7, 12 << 20)
    srd(28, 10, 11, 2 << 20)
    e("  v_and_b32 v6, 1, v5")
    e("  v_lshlrev_b32 v6, 4, v6")
    e(f"  s_mov_b32 s14, {WS_IDX}")
    e("  buffer_load_dwordx4 v[24:27], v6, s[20:23], s14 offen")
    e("  s_lshl_b32 s15, s3, 4")
    e("  v_lshlrev_b32 v3, 4, v0")
    e("  s_mul_i32 s34, s13, 7168")
    e("  s_mul_i32 s33, s3, 28672")
    e("  s_add_u32 s33, s33, s34")
    e(f"  s_add_u32 s33, s33, {WS_WDB}")
    for i in range(7):
        e(f"  s_add_u32 m0, s34, {LDS_W + 1024*i}")
        e("  s_nop 0")
        e(f"  buffer_load_dwordx4 v3, s[20:23], s33 offen lds")
        e("  s_add_u32 s33, s33, 1024")
    e("  v_and_b32 v4, 7, v0")
    e("  v_mul_u32_u24 v4, 3584, v4")
    e("  v_lshl_add_u32 v4, v5, 4, v4")
    e("  s_mul_i32 s14, s13, 896")
    e(f"  s_add_u32 s14, s14, {WS_GU}")
    FA = 64
    for st in range(14):
        e(f"  buffer_load_dwordx4 {vr(FA+4*st,4)}, v4, s[20:23], s14 offen offset:{64*st}")
    for i in range(4):
        e(f"  v_mov_b32 v{28+i}, 0")
    e("  s_cmp_lg_u32 s13, 0")
    e("  s_cbranch_scc1 t3_noepi")
    e("  s_waitcnt vmcnt(21)")
    e("  v_and_b32 v6, 7, v0")
    e(f"  s_mov_b32 s36, {WS_Y}")
    e(f"  s_mov_b32 s37, {WS_Y + (2<<20)}")
    e(f"  s_mov_b32 s38, {WS_STAT}")
    for i in range(4):
        e(f"  v_and_b32 v{28+i}, 0xffff, v{24+i}")
        e(f"  v_sub_u32 v{28+i}, 0xffff, v{28+i}")
        e(f"  v_lshlrev_b32 v{32+i}, 3, v{28+i}")
        e(f"  v_lshlrev_b32 v{28+i}, 10, v{28+i}")
        e(f"  v_lshl_add_u32 v{28+i}, v6, 1, v{28+i}")
        e(f"  v_add_u32 v{28+i}, s15, v{28+i}")
        e(f"  buffer_load_ushort v{36+i}, v{28+i}, s[20:23], s36 offen")
        e(f"  buffer_load_ushort v{40+i}, v{28+i}, s[20:23], s37 offen")
        e(f"  buffer_load_ushort v{44+i}, v{28+i}, s[16:19], 0 offen")
        e(f"  buffer_load_dwordx2 {vr(48+2*i,2)}, v{32+i}, s[20:23], s38 offen")
    lab("t3_noepi")
    e("  v_and_b32 v7, 15, v0")
    e("  v_lshrrev_b32 v7, 2, v7")
    e("  v_lshl_add_u32 v7, v5, 3, v7")
    e("  v_lshlrev_b32 v7, 4, v7")
    e("  v_and_b32 v60, 1, v0")
    e("  v_lshl_add_u32 v7, v60, 3, v7")
    e("  v_add_u32 v7, s34, v7")
    for i in range(4):
        e(f"  v_mov_b32 v{8+i}, 0")
    stamp(1)
    e("  s_waitcnt vmcnt(0)")
    stamp(2)
    FB = 128
    for st in range(14):
        e(f"  ds_read_b64_tr_b16 {vr(FB+4*st,2)}, v7 offset:{512*st}")
        e(f"  ds_read_b64_tr_b16 {vr(FB+4*st+2,2)}, v7 offset:{512*st+64}")
    e("  s_waitcnt lgkmcnt(0)")
    for st in range(14):
        e(f"  v_mfma_f32_16x16x32_bf16 v[8:11], {vr(FA+4*st,4)}, {vr(FB+4*st,4)}, v[8:11]")
    e("  s_nop 15")
    stamp(3)
    e("  v_lshlrev_b32 v3, 4, v0")
    e("  s_lshl_b32 s33, s13, 10")
    e("  v_add_u32 v3, s33, v3")
    e(f"  ds_write_b128 v3, v[8:11] offset:{LDS_R}")
    e("  s_waitcnt lgkmcnt(0)")
    e("  s_barrier")
    e("  s_cmp_lg_u32 s13, 0")
    e("  s_cbranch_scc1 t3_done")
    e("  v_lshlrev_b32 v3, 4, v0")
    for w in range(1, 4):
        e(f"  ds_read_b128 {vr(12+4*(w-1),4)}, v3 offset:{LDS_R+1024*w}")
    stamp(4)
    e("  v_and_b32 v6, 15, v0")
    e("  v_cmp_gt_u32 vcc, 8, v6")
    e("  v_cmp_gt_u32 s[42:43], 32, v0")
    e("  s_and_b64 vcc, vcc, s[42:43]")
    e("  s_and_saveexec_b64 s[40:41], vcc")
    e("  s_waitcnt lgkmcnt(0)")
    for i in range(4):
        e(f"  v_add_f32 v{8+i}, v{8+i}, v{12+i}")
        e(f"  v_add_f32 v{16+i}, v{16+i}, v{20+i}")
        e(f"  v_add_f32 v{8+i}, v{8+i}, v{16+i}")
        e(f"  v_cvt_pk_bf16_f32 v{8+i}, v{8+i}, v{8+i}")
        e(f"  v_lshlrev_b32 v{8+i}, 16, v{8+i}")
        e(f"  v_and_b32 v60, 0xffff0000, v{24+i}")
        e("  v_ashrrev_i32 v61, 31, v60")
        e("  v_not_b32 v61, v61")
        e("  v_or_b32 v61, 0x80000000, v61")
        e("  v_xor_b32 v60, v60, v61")
        e("  v_and_b32 v60, 0xffff0000, v60")
        e("  v_mul_f32 v60, 0xbfb8aa3b, v60")
        e("  v_exp_f32 v60, v60")
        e("  s_nop 0")
        e("  v_add_f32 v60, 1.0, v60")
        e("  v_rcp_f32 v60, v60")
        e("  s_nop 0")
        e("  v_cvt_pk_bf16_f32 v60, v60, v60")
        e("  v_lshlrev_b32 v60, 16, v60")
        e(f"  v_mul_f32 v{8+i}, v{8+i}, v60")
        e(f"  v_cvt_pk_bf16_f32 v{8+i}, v{8+i}, v{8+i}")
        e(f"  v_lshlrev_b32 v{8+i}, 16, v{8+i}")
        e(f"  v_lshlrev_b32 v{36+i}, 16, v{36+i}")
        e(f"  v_lshlrev_b32 v{40+i}, 16, v{40+i}")
        e(f"  v_lshlrev_b32 v{44+i}, 16, v{44+i}")
        e(f"  v_sub_f32 v60, v{36+i}, v{40+i}")
        e("  v_cvt_pk_bf16_f32 v60, v60, v60")
        e("  v_lshlrev_b32 v60, 16, v60")
        e(f"  v_add_f32 v60, v{44+i}, v60")
        e("  v_cvt_pk_bf16_f32 v60, v60, v60")
        e("  v_lshlrev_b32 v60, 16, v60")
        e(f"  v_sub_f32 v61, v60, v{48+2*i}")
        e("  v_cvt_pk_bf16_f32 v61, v61, v61")
        e("  v_lshlrev_b32 v61, 16, v61")
        e(f"  v_mul_f32 v61, v61, v{49+2*i}")
        e("  v_cvt_pk_bf16_f32 v61, v61, v61")
        e("  v_lshlrev_b32 v61, 16, v61")
        e(f"  v_add_f32 v61, v61, v{8+i}")
        e("  v_cvt_pk_bf16_f32 v61, v61, v61")
        e("  v_lshlrev_b32 v61, 16, v61")
        e("  v_add_f32 v61, v60, v61")
        e("  v_cvt_pk_bf16_f32 v61, v61, v61")
        e(f"  buffer_store_short v61, v{28+i}, s[28:31], 0 offen")
    lab("t3_done")
    kernel_end()
    e("  s_endpgm")
    kernel_desc(name, 192)

SORT8 = [(0,1),(2,3),(4,5),(6,7),(0,2),(1,3),(4,6),(5,7),(1,2),(5,6),(0,4),(1,5),(2,6),(3,7),(2,4),(3,5),(1,2),(3,4),(5,6)]
def top8(keys, free, LDS_C):
    K = list(keys); F = list(free)
    for (i, j) in SORT8:
        hi, lo = F.pop(), F.pop()
        e(f"  v_max_u32 v{hi}, v{K[i]}, v{K[j]}")
        e(f"  v_min_u32 v{lo}, v{K[i]}, v{K[j]}")
        F.append(K[i]); F.append(K[j]); K[i] = hi; K[j] = lo
    t, coll = F.pop(), F.pop()
    e(f"  v_mov_b32 v{coll}, 0")
    pend = []
    def fill(n):
        for _ in range(n):
            if pend: e(pend.pop(0))
            else: e("  s_nop 0")
    for rnd in range(8):
        fill(2)
        e(f"  v_max_u32_dpp v{t}, v{K[0]}, v{K[0]} quad_perm:[1,0,3,2] row_mask:0xf bank_mask:0xf")
        fill(2)
        e(f"  v_max_u32_dpp v{t}, v{t}, v{t} quad_perm:[2,3,0,1] row_mask:0xf bank_mask:0xf")
        fill(2)
        e(f"  v_max_u32_dpp v{t}, v{t}, v{t} row_half_mirror row_mask:0xf bank_mask:0xf")
        fill(2)
        e(f"  v_max_u32_dpp v{t}, v{t}, v{t} row_mirror row_mask:0xf bank_mask:0xf")
        while pend: e(pend.pop(0))
        e("  s_nop 0")
        e(f"  v_readlane_b32 s36, v{t}, 0")
        e(f"  v_readlane_b32 s37, v{t}, 16")
        e(f"  v_readlane_b32 s38, v{t}, 32")
        e(f"  v_readlane_b32 s39, v{t}, 48")
        e("  s_max_u32 s36, s36, s37")
        e("  s_max_u32 s38, s38, s39")
        e("  s_max_u32 s36, s36, s38")
        e(f"  v_writelane_b32 v{coll}, s36, {rnd}")
        if rnd < 7:
            e(f"  v_cmp_eq_u32 vcc, s36, v{K[0]}")
            e("  s_nop 1")
            e(f"  v_cndmask_b32 v{K[0]}, v{K[0]}, v{K[1]}, vcc")
            for k in range(1, 7 - rnd):
                pend.append(f"  v_cndmask_b32 v{K[k]}, v{K[k]}, v{K[k+1]}, vcc")
    e("  s_lshl_b32 s33, s13, 5")
    e(f"  s_add_u32 s33, s33, {LDS_C}")
    e(f"  v_lshlrev_b32 v{t}, 2, v0")
    e(f"  v_add_u32 v{t}, s33, v{t}")
    e("  v_cmp_gt_u32 vcc, 8, v0")
    e("  s_and_saveexec_b64 s[40:41], vcc")
    e(f"  ds_write_b32 v{t}, v{coll}")
    e("  s_mov_b64 exec, s[40:41]")
    e("  s_waitcnt lgkmcnt(0)")
    e("  s_barrier")
    return t, coll

def gen_t4():
    name = "t4_kernel"
    kernel_begin(name)
    LDS_C, LDS_R, LDS_WD = 0, 256, 8704
    LDS_G, LDS_U, LDS_XS = 8704, 8704 + 8192, 8704 + 16384
    SPIN = 1 << 22
    e("  s_cmp_ge_u32 s2, 240")
    e("  s_cbranch_scc1 t4_done")
    e(f"  s_load_dwordx2 s[4:5], s[0:1], {KA_X}")
    e(f"  s_load_dwordx2 s[6:7], s[0:1], {KA_WS}")
    e(f"  s_load_dwordx4 s[8:11], s[0:1], {KA_WG}")
    e(f"  s_load_dwordx2 s[44:45], s[0:1], {KA_OUT}")
    e("  s_and_b32 s3, s2, 7")
    e("  s_mul_i32 s3, s3, 28")
    e("  s_lshr_b32 s12, s2, 3")
    e("  s_add_u32 s3, s3, s12")
    e("  v_mov_b32 v40, v0")
    e("  v_lshrrev_b32 v1, 6, v0")
    e("  v_and_b32 v0, 63, v0")
    e("  v_readfirstlane_b32 s13, v1")
    e("  s_waitcnt lgkmcnt(0)")
    srd(16, 4, 5, 2 << 20)
    srd(20, 6, 7, 12 << 20)
    srd(24, 8, 9, 512*1792*2)
    srd(28, 10, 11, 512*1792*2)
    srd(48, 44, 45, 2 << 20)
    e("  v_lshlrev_b32 v2, 5, v40")
    e(f"  s_mov_b32 s14, {WS_KEY}")
    e("  buffer_load_dwordx4 v[8:11], v2, s[20:23], s14 offen")
    e("  buffer_load_dwordx4 v[12:15], v2, s[20:23], s14 offen offset:16")
    e("  s_cmp_ge_u32 s2, 224")
    e("  s_cbranch_scc1 t4_dma2")
    e("  s_lshl_b32 s15, s3, 4")
    e("  s_movk_i32 s32, 3584")
    for ii in range(2):
        e(f"  s_lshl_b32 s33, s13, 7")
        e(f"  s_add_u32 s33, s33, {64*ii}")
        e(f"  v_add_u32 v3, s33, v0")
        e(f"  v_mul_lo_u32 v3, v3, s32")
        e(f"  s_lshl_b32 s34, s13, 11")
        e(f"  s_add_u32 m0, s34, {LDS_G + 1024*ii}")
        e("  s_nop 0")
        e(f"  buffer_load_dwordx4 v3, s[24:27], s15 offen lds")
        e(f"  s_add_u32 m0, s34, {LDS_U + 1024*ii}")
        e("  s_nop 0")
        e(f"  buffer_load_dwordx4 v3, s[28:31], s15 offen lds")
    e("  s_waitcnt vmcnt(4)")
    e("  s_branch t4_top")
    lab("t4_dma2")
    e("  s_sub_u32 s46, s2, 224")
    e("  v_lshlrev_b32 v3, 4, v0")
    e("  s_mul_i32 s34, s13, 7168")
    e(f"  s_mul_i32 s33, s46, {4*28672}")
    e("  s_add_u32 s33, s33, s34")
    e(f"  s_add_u32 s33, s33, {WS_WDB}")
    for dsl in range(4):
        for i in range(7):
            e(f"  s_add_u32 m0, s34, {LDS_WD + dsl*28672 + 1024*i}")
            e("  s_nop 0")
            e(f"  buffer_load_dwordx4 v3, s[20:23], s33 offen lds")
            e(f"  s_add_u32 s33, s33, {1024 if i < 6 else 28672 - 6*1024}")
    e("  s_waitcnt vmcnt(28)")
    lab("t4_top")
    stamp(1)
    t, coll = top8(range(8, 16), range(16, 24), LDS_C)
    e("  v_and_b32 v3, 31, v0")
    e("  v_lshlrev_b32 v3, 2, v3")
    e(f"  ds_read_b32 v24, v3 offset:{LDS_C}")
    e("  v_mov_b32 v4, 0")
    for q in range(8):
        e(f"  ds_read_b128 {vr(56+4*q,4)}, v4 offset:{LDS_C+16*q}")
    e("  v_mov_b32 v25, 0")
    e("  s_waitcnt lgkmcnt(0)")
    sp = [60, 62, 64, 66]
    for i in range(32 + 3):
        if i < 32:
            e(f"  v_cmp_gt_u32 s[{sp[i%4]}:{sp[i%4]+1}], v{56+i}, v24")
        if i >= 3:
            j = i - 3
            e(f"  v_addc_co_u32 v25, vcc, 0, v25, s[{sp[j%4]}:{sp[j%4]+1}]")
    e("  v_cmp_gt_u32 vcc, 8, v25")
    e("  v_cmp_gt_u32 s[42:43], 32, v0")
    e("  s_and_b64 vcc, vcc, s[42:43]")
    e("  v_lshlrev_b32 v3, 2, v25")
    e("  s_and_saveexec_b64 s[40:41], vcc")
    e(f"  ds_write_b32 v3, v24 offset:{LDS_C+128}")
    e("  s_mov_b64 exec, s[40:41]")
    e("  s_waitcnt lgkmcnt(0)")
    e("  s_barrier")
    stamp(2)
    e("  s_cmp_ge_u32 s2, 224")
    e("  s_cbranch_scc1 t4_f2")
    e("  v_lshrrev_b32 v4, 5, v40")
    e("  v_and_b32 v5, 31, v40")
    e("  v_lshlrev_b32 v3, 2, v4")
    e(f"  ds_read_b32 v6, v3 offset:{LDS_C+128}")
    e("  s_waitcnt lgkmcnt(0)")
    e("  v_and_b32 v6, 0xffff, v6")
    e("  v_sub_u32 v6, 0xffff, v6")
    e("  v_lshlrev_b32 v7, 10, v6")
    e("  v_lshl_add_u32 v7, v5, 4, v7")
    e(f"  s_mov_b32 s14, {WS_Y}")
    e(f"  s_mov_b32 s15, {WS_Y + (2<<20)}")
    YR, YI, XX = 24, 32, 44
    for j in range(2):
        e(f"  buffer_load_dwordx4 {vr(YR+4*j,4)}, v7, s[20:23], s14 offen offset:{512*j}")
        e(f"  buffer_load_dwordx4 {vr(YI+4*j,4)}, v7, s[20:23], s15 offen offset:{512*j}")
        e(f"  buffer_load_dwordx4 {vr(XX+4*j,4)}, v7, s[16:19], 0 offen offset:{512*j}")
    e("  v_lshlrev_b32 v3, 3, v6")
    e(f"  s_mov_b32 s14, {WS_STAT}")
    e("  buffer_load_dwordx2 v[52:53], v3, s[20:23], s14 offen")
    e("  s_waitcnt vmcnt(0)")
    stamp(3)
    e("  v_sub_f32 v54, 0, v52")
    e("  v_mov_b32 v55, v54")
    e("  v_mov_b32 v52, v53")
    recompute(YR, YI, XX, 8, 54, 52, 64, 80, 56)
    e(f"  v_mul_u32_u24 v3, {XS_STRIDE}, v4")
    e("  v_lshl_add_u32 v3, v5, 4, v3")
    e(f"  ds_write_b128 v3, v[80:83] offset:{LDS_XS}")
    e(f"  ds_write_b128 v3, v[84:87] offset:{LDS_XS+512}")
    e("  s_waitcnt lgkmcnt(0)")
    e("  s_barrier")
    e("  s_cmp_lg_u32 s13, 0")
    e("  s_cbranch_scc1 t4_done")
    e("  v_and_b32 v3, 7, v0")
    e(f"  v_mul_u32_u24 v3, {XS_STRIDE}, v3")
    e("  v_lshrrev_b32 v4, 4, v0")
    e("  v_lshl_add_u32 v3, v4, 4, v3")
    e("  v_and_b32 v5, 15, v0")
    e("  v_lshrrev_b32 v5, 2, v5")
    e("  v_lshl_add_u32 v5, v4, 3, v5")
    e("  v_lshlrev_b32 v5, 4, v5")
    e("  v_and_b32 v6, 1, v0")
    e("  v_lshl_add_u32 v5, v6, 3, v5")
    e("  v_and_b32 v6, 2, v0")
    e("  v_lshl_add_u32 v5, v6, 12, v5")
    for i in range(4):
        e(f"  v_mov_b32 v{8+i}, 0")
    FA, FB = 64, 128
    for st in range(16):
        e(f"  ds_read_b128 {vr(FA+4*st,4)}, v3 offset:{LDS_XS + 64*st}")
        e(f"  ds_read_b64_tr_b16 {vr(FB+4*st,2)}, v5 offset:{LDS_G+512*st}")
        e(f"  ds_read_b64_tr_b16 {vr(FB+4*st+2,2)}, v5 offset:{LDS_G+512*st+64}")
        if st % 4 == 3:
            e("  s_waitcnt lgkmcnt(0)")
            for s2 in range(st-3, st+1):
                e(f"  v_mfma_f32_16x16x32_bf16 v[8:11], {vr(FA+4*s2,4)}, {vr(FB+4*s2,4)}, v[8:11]")
    e("  s_nop 15")
    for i in range(4):
        e(f"  v_cvt_pk_bf16_f32 v{8+i}, v{8+i}, v{8+i}")
        e(f"  v_lshlrev_b32 v{8+i}, 16, v{8+i}")
    e("  s_nop 1")
    for i in range(4):
        e(f"  v_mov_b32_dpp v{12+i}, v{8+i} row_ror:8 row_mask:0xf bank_mask:0xf")
    for i in range(4):
        e(f"  v_mul_f32 v16, 0xbfb8aa3b, v{8+i}")
        e("  v_exp_f32 v16, v16")
        e("  s_nop 0")
        e("  v_add_f32 v16, 1.0, v16")
        e("  v_rcp_f32 v16, v16")
        e("  s_nop 0")
        e(f"  v_mul_f32 v16, v{8+i}, v16")
        e("  v_cvt_pk_bf16_f32 v16, v16, v16")
        e("  v_lshlrev_b32 v16, 16, v16")
        e(f"  v_mul_f32 v16, v16, v{12+i}")
        e(f"  v_cvt_pk_bf16_f32 v{20+i}, v16, v16")
    e("  s_nop 1")
    for i in range(4):
        e(f"  v_mov_b32_dpp v{24+i}, v{20+i} quad_perm:[1,0,3,2] row_mask:0xf bank_mask:0xf")
    for i in range(4):
        e(f"  v_and_b32 v{20+i}, 0xffff, v{20+i}")
        e(f"  v_and_b32 v{24+i}, 0xffff0000, v{24+i}")
        e(f"  v_or_b32 v{20+i}, v{20+i}, v{24+i}")
    for i in range(4):
        e(f"  v_min_u32 v{20+i}, 0xfffeffff, v{20+i}")
    stamp(4)
    e("  v_and_b32 v5, 15, v0")
    e("  v_lshlrev_b32 v4, 2, v4")
    e("  v_mul_u32_u24 v4, 3584, v4")
    e("  v_lshl_add_u32 v4, v5, 1, v4")
    e("  v_and_b32 v6, 9, v0")
    e("  v_cmp_eq_u32 vcc, 0, v6")
    e("  v_cmp_gt_u32 s[42:43], 32, v0")
    e("  s_and_b64 vcc, vcc, s[42:43]")
    e("  s_and_saveexec_b64 s[40:41], vcc")
    e("  s_lshl_b32 s15, s3, 4")
    e(f"  s_add_u32 s15, s15, {WS_GU}")
    for i in range(4):
        e(f"  buffer_store_dword v{20+i}, v4, s[20:23], s15 offen sc1")
        if i < 3:
            e("  v_add_u32 v4, 3584, v4")
    e("  s_branch t4_done")
    lab("t4_f2")
    e("  v_lshrrev_b32 v5, 4, v0")
    e("  v_and_b32 v6, 1, v5")
    e("  v_lshlrev_b32 v6, 4, v6")
    e(f"  ds_read_b128 v[24:27], v6 offset:{LDS_C+128}")
    e("  v_and_b32 v6, 15, v0")
    e("  s_lshl_b32 s15, s46, 6")
    e("  s_waitcnt lgkmcnt(0)")
    for i in range(4):
        e(f"  v_and_b32 v{28+i}, 0xffff, v{24+i}")
        e(f"  v_sub_u32 v{28+i}, 0xffff, v{28+i}")
        e(f"  v_lshlrev_b32 v{32+i}, 3, v{28+i}")
        e(f"  v_lshlrev_b32 v{28+i}, 10, v{28+i}")
        e(f"  v_lshl_add_u32 v{28+i}, v6, 1, v{28+i}")
        e(f"  v_add_u32 v{28+i}, s15, v{28+i}")
    e("  s_cmp_lg_u32 s13, 0")
    e("  s_cbranch_scc1 t4_noepi")
    e(f"  s_mov_b32 s36, {WS_Y}")
    e(f"  s_mov_b32 s37, {WS_Y + (2<<20)}")
    e(f"  s_mov_b32 s38, {WS_STAT}")
    for a in range(2):
        for i in range(4):
            e(f"  buffer_load_ushort v{192+12*a+i}, v{28+i}, s[20:23], s36 offen offset:{32*a}")
            e(f"  buffer_load_ushort v{196+12*a+i}, v{28+i}, s[20:23], s37 offen offset:{32*a}")
            e(f"  buffer_load_ushort v{200+12*a+i}, v{28+i}, s[16:19], 0 offen offset:{32*a}")
    for i in range(4):
        e(f"  buffer_load_dwordx2 {vr(48+2*i,2)}, v{32+i}, s[20:23], s38 offen")
    lab("t4_noepi")
    e("  v_lshrrev_b32 v7, 2, v6")
    e("  v_lshl_add_u32 v7, v5, 3, v7")
    e("  v_lshlrev_b32 v7, 4, v7")
    e("  v_and_b32 v60, 1, v0")
    e("  v_lshl_add_u32 v7, v60, 3, v7")
    e("  v_and_b32 v60, 2, v0")
    e("  v_mul_u32_u24 v60, 14336, v60")
    e("  v_add_u32 v7, v60, v7")
    e("  v_add_u32 v7, s34, v7")
    e(f"  v_add_u32 v61, {2*28672}, v7")
    e("  s_waitcnt vmcnt(0)")
    FB0, FB1 = 72, 128
    for st in range(14):
        e(f"  ds_read_b64_tr_b16 {vr(FB0+4*st,2)}, v7 offset:{LDS_WD+512*st}")
        e(f"  ds_read_b64_tr_b16 {vr(FB0+4*st+2,2)}, v7 offset:{LDS_WD+512*st+64}")
        e(f"  ds_read_b64_tr_b16 {vr(FB1+4*st,2)}, v61 offset:{LDS_WD+512*st}")
        e(f"  ds_read_b64_tr_b16 {vr(FB1+4*st+2,2)}, v61 offset:{LDS_WD+512*st+64}")
        if st % 3 == 2: e("  s_waitcnt lgkmcnt(0)")
    for i in range(8):
        e(f"  v_mov_b32 v{8+i}, 0")
    stamp(3)
    e("  v_and_b32 v4, 7, v0")
    e("  v_mul_u32_u24 v4, 3584, v4")
    e("  v_lshl_add_u32 v4, v5, 4, v4")
    e("  s_mul_i32 s14, s13, 896")
    e(f"  s_add_u32 s14, s14, {WS_GU}")
    regs = [216+4*i for i in range(9)] + [36, 40, 44, 56, 64]
    e("  s_mov_b32 s53, 0")
    lab("t4_poll")
    for st in range(14):
        e(f"  buffer_load_dwordx4 {vr(regs[st],4)}, v4, s[20:23], s14 offen offset:{64*st} sc1")
    e("  v_mov_b32 v3, 0")
    for st in range(14):
        e(f"  s_waitcnt vmcnt({13-st})")
        e(f"  v_max3_u32 v3, v3, v{regs[st]}, v{regs[st]+1}")
        e(f"  v_max3_u32 v3, v3, v{regs[st]+2}, v{regs[st]+3}")
    e("  v_cmp_eq_u32 s[54:55], -1, v3")
    e("  s_nop 3")
    e("  s_cmp_eq_u64 s[54:55], 0")
    e("  s_cbranch_scc1 t4_poll_ok")
    e("  s_add_u32 s53, s53, 1")
    e(f"  s_cmp_gt_u32 s53, {SPIN}")
    e("  s_cbranch_scc1 t4_poll_ok")
    e("  s_branch t4_poll")
    lab("t4_poll_ok")
    stamp(5)
    e("  s_waitcnt lgkmcnt(0)")
    for st in range(14):
        e(f"  v_mfma_f32_16x16x32_bf16 v[8:11], {vr(regs[st],4)}, {vr(FB0+4*st,4)}, v[8:11]")
        e(f"  v_mfma_f32_16x16x32_bf16 v[12:15], {vr(regs[st],4)}, {vr(FB1+4*st,4)}, v[12:15]")
    e("  s_nop 15")
    stamp(6)
    e("  v_lshlrev_b32 v3, 4, v0")
    e("  s_lshl_b32 s33, s13, 11")
    e("  v_add_u32 v3, s33, v3")
    e(f"  ds_write_b128 v3, v[8:11] offset:{LDS_R}")
    e(f"  ds_write_b128 v3, v[12:15] offset:{LDS_R+1024}")
    e("  s_waitcnt lgkmcnt(0)")
    e("  s_barrier")
    e("  s_cmp_lg_u32 s13, 0")
    e("  s_cbranch_scc1 t4_done")
    e("  v_lshlrev_b32 v3, 4, v0")
    for w in range(1, 4):
        for a in range(2):
            e(f"  ds_read_b128 {vr(72+8*(w-1)+4*a,4)}, v3 offset:{LDS_R+2048*w+1024*a}")
    e("  v_cmp_gt_u32 vcc, 32, v0")
    e("  s_and_saveexec_b64 s[40:41], vcc")
    for i in range(4):
        e(f"  v_and_b32 v60, 0xffff0000, v{24+i}")
        e("  v_ashrrev_i32 v61, 31, v60")
        e("  v_not_b32 v61, v61")
        e("  v_or_b32 v61, 0x80000000, v61")
        e("  v_xor_b32 v60, v60, v61")
        e("  v_and_b32 v60, 0xffff0000, v60")
        e("  v_mul_f32 v60, 0xbfb8aa3b, v60")
        e("  v_exp_f32 v60, v60")
        e("  s_nop 0")
        e("  v_add_f32 v60, 1.0, v60")
        e("  v_rcp_f32 v60, v60")
        e("  s_nop 0")
        e("  v_cvt_pk_bf16_f32 v60, v60, v60")
        e(f"  v_lshlrev_b32 v{24+i}, 16, v60")
    e("  s_waitcnt lgkmcnt(0)")
    for a in range(2):
        for i in range(4):
            y = 8 + 4*a + i
            e(f"  v_add_f32 v{y}, v{y}, v{72+4*a+i}")
            e(f"  v_add_f32 v60, v{80+4*a+i}, v{88+4*a+i}")
            e(f"  v_add_f32 v{y}, v{y}, v60")
            e(f"  v_cvt_pk_bf16_f32 v{y}, v{y}, v{y}")
            e(f"  v_lshlrev_b32 v{y}, 16, v{y}")
            e(f"  v_mul_f32 v{y}, v{y}, v{24+i}")
            e(f"  v_cvt_pk_bf16_f32 v{y}, v{y}, v{y}")
            e(f"  v_lshlrev_b32 v{y}, 16, v{y}")
            r0, r1, r2 = 192+12*a+i, 196+12*a+i, 200+12*a+i
            e(f"  v_lshlrev_b32 v{r0}, 16, v{r0}")
            e(f"  v_lshlrev_b32 v{r1}, 16, v{r1}")
            e(f"  v_lshlrev_b32 v{r2}, 16, v{r2}")
            e(f"  v_sub_f32 v60, v{r0}, v{r1}")
            e("  v_cvt_pk_bf16_f32 v60, v60, v60")
            e("  v_lshlrev_b32 v60, 16, v60")
            e(f"  v_add_f32 v60, v{r2}, v60")
            e("  v_cvt_pk_bf16_f32 v60, v60, v60")
            e("  v_lshlrev_b32 v60, 16, v60")
            e(f"  v_sub_f32 v61, v60, v{48+2*i}")
            e("  v_cvt_pk_bf16_f32 v61, v61, v61")
            e("  v_lshlrev_b32 v61, 16, v61")
            e(f"  v_mul_f32 v61, v61, v{49+2*i}")
            e("  v_cvt_pk_bf16_f32 v61, v61, v61")
            e("  v_lshlrev_b32 v61, 16, v61")
            e(f"  v_add_f32 v61, v61, v{y}")
            e("  v_cvt_pk_bf16_f32 v61, v61, v61")
            e("  v_lshlrev_b32 v61, 16, v61")
            e("  v_add_f32 v61, v60, v61")
            e("  v_cvt_pk_bf16_f32 v61, v61, v61")
            e(f"  buffer_store_short v61, v{28+i}, s[48:51], 0 offen offset:{32*a}")
    lab("t4_done")
    kernel_end()
    e("  s_endpgm")
    kernel_desc(name, 252)

def rowmac(first):
    YR, YI, XX, WR, H, T, D = 16, 32, 48, 64, 80, 112, 116
    O = 148
    e("  v_lshlrev_b32 v3, 10, v1")
    e("  v_lshl_add_u32 v3, v2, 4, v3")
    e(f"  s_mov_b32 s52, {WS_Y}")
    e(f"  s_mov_b32 s53, {WS_Y + (2<<20)}")
    for j in range(4):
        e(f"  buffer_load_dwordx4 {vr(YR+4*j,4)}, v3, s[24:27], s52 offen offset:{256*j}")
        e(f"  buffer_load_dwordx4 {vr(YI+4*j,4)}, v3, s[24:27], s53 offen offset:{256*j}")
        e(f"  buffer_load_dwordx4 {vr(XX+4*j,4)}, v3, s[20:23], 0 offen offset:{256*j}")
    nextra = 0
    if first:
        e("  v_lshlrev_b32 v4, 4, v2")
        for j in range(4):
            e(f"  buffer_load_dwordx4 {vr(WR+4*j,4)}, v4, s[28:31], 0 offen offset:{256*j}")
        nextra = 4
    e("  v_mov_b32 v14, 0")
    e("  v_mov_b32 v15, 0")
    for j in range(4):
        e(f"  s_waitcnt vmcnt({nextra + 3*(3-j)})")
        for q in range(4):
            i = 4*j + q
            e(f"  v_lshlrev_b32 v{T}, 16, v{YR+i}")
            e(f"  v_and_b32 v{T+1}, 0xffff0000, v{YR+i}")
            e(f"  v_lshlrev_b32 v{T+2}, 16, v{YI+i}")
            e(f"  v_and_b32 v{T+3}, 0xffff0000, v{YI+i}")
            e(f"  v_pk_add_f32 {vr(T,2)}, {vr(T,2)}, {vr(T+2,2)} neg_lo:[0,1] neg_hi:[0,1]")
            e(f"  v_cvt_pk_bf16_f32 v{T}, v{T}, v{T+1}")
            e(f"  v_and_b32 v{T+1}, 0xffff0000, v{T}")
            e(f"  v_lshlrev_b32 v{T}, 16, v{T}")
            e(f"  v_lshlrev_b32 v{T+2}, 16, v{XX+i}")
            e(f"  v_and_b32 v{T+3}, 0xffff0000, v{XX+i}")
            e(f"  v_pk_add_f32 {vr(T,2)}, {vr(T,2)}, {vr(T+2,2)}")
            e(f"  v_cvt_pk_bf16_f32 v{YI+i}, v{T}, v{T+1}")
            e(f"  v_lshlrev_b32 v{H+2*i}, 16, v{YI+i}")
            e(f"  v_and_b32 v{H+2*i+1}, 0xffff0000, v{YI+i}")
            e(f"  v_pk_add_f32 v[14:15], v[14:15], {vr(H+2*i,2)}")
    e("  v_add_f32 v5, v14, v15")
    reduce16(5)
    e("  v_mul_f32 v5, 0x3b000000, v5")
    e("  v_cvt_pk_bf16_f32 v6, v5, v5")
    e("  v_lshlrev_b32 v6, 16, v6")
    e("  v_sub_f32 v8, 0, v6")
    e("  v_mov_b32 v9, v8")
    e("  v_mov_b32 v10, 0")
    e("  v_mov_b32 v11, 0")
    for i in range(16):
        e(f"  v_pk_add_f32 {vr(D+2*i,2)}, {vr(H+2*i,2)}, v[8:9]")
        e(f"  v_pk_fma_f32 v[10:11], {vr(D+2*i,2)}, {vr(D+2*i,2)}, v[10:11]")
    e("  v_add_f32 v10, v10, v11")
    reduce16(10)
    e("  v_sub_f32 v11, v5, v6")
    e("  v_mul_f32 v11, v11, v11")
    e("  v_mul_f32 v10, 0x3b000000, v10")
    e("  v_sub_f32 v10, v10, v11")
    e("  v_max_f32 v10, 0, v10")
    e("  v_cvt_pk_bf16_f32 v10, v10, v10")
    e("  v_lshlrev_b32 v10, 16, v10")
    e("  v_add_f32 v10, 0x3727c5ac, v10")
    e("  v_cvt_pk_bf16_f32 v10, v10, v10")
    e("  v_lshlrev_b32 v10, 16, v10")
    e("  v_sqrt_f32 v10, v10")
    e("  s_nop 0")
    e("  v_cvt_pk_bf16_f32 v10, v10, v10")
    e("  v_lshlrev_b32 v10, 16, v10")
    e("  v_rcp_f32 v10, v10")
    e("  s_nop 0")
    e("  v_mov_b32 v11, v10")
    if first:
        e("  v_mov_b32 v12, 0")
        e("  s_waitcnt vmcnt(0)")
    for i in range(16):
        e(f"  v_cvt_pk_bf16_f32 v{T}, v{D+2*i}, v{D+2*i+1}")
        e(f"  v_lshlrev_b32 v{D+2*i}, 16, v{T}")
        e(f"  v_and_b32 v{D+2*i+1}, 0xffff0000, v{T}")
        e(f"  v_pk_mul_f32 {vr(D+2*i,2)}, {vr(D+2*i,2)}, v[10:11]")
        e(f"  v_cvt_pk_bf16_f32 v{YR+i}, v{D+2*i}, v{D+2*i+1}")
        if first:
            e(f"  v_dot2_f32_bf16 v12, v{YR+i}, v{WR+i}, v12")
            e(f"  v_lshlrev_b32 v{D+2*i}, 16, v{YR+i}")
            e(f"  v_and_b32 v{D+2*i+1}, 0xffff0000, v{YR+i}")
            e(f"  v_pk_add_f32 {vr(D+2*i,2)}, {vr(D+2*i,2)}, {vr(H+2*i,2)}")
            e(f"  v_cvt_pk_bf16_f32 v{O+i}, v{D+2*i}, v{D+2*i+1}")
    if first:
        e("  s_nop 3")
        reduce16(12)
        e("  v_cvt_pk_bf16_f32 v12, v12, v12")
        e("  v_lshlrev_b32 v12, 16, v12")
        e("  v_ashrrev_i32 v13, 31, v12")
        e("  v_or_b32 v13, 0x80000000, v13")
        e("  v_xor_b32 v12, v12, v13")
        e("  v_and_b32 v12, 0xffff0000, v12")
        e("  v_sub_u32 v13, 0xffff, v1")
        e("  v_or_b32 v12, v12, v13")

def gen_tf():
    name = "tf_kernel"
    kernel_begin(name)
    LDS_G, LDS_U, LDS_WD = 0, 8192, 16384
    LDS_XS = 45056
    LDS_HS = LDS_XS + 8 * XS_STRIDE
    LDS_C = LDS_HS + 8192
    LDS_R = LDS_C + 256
    SPIN = 1 << 22
    e("  s_cmp_ge_u32 s2, 256")
    e("  s_cbranch_scc1 tf_done")
    e(f"  s_load_dwordx2 s[4:5], s[0:1], {KA_X}")
    e(f"  s_load_dwordx2 s[6:7], s[0:1], {KA_WS}")
    e(f"  s_load_dwordx8 s[8:15], s[0:1], {KA_WR}")
    e(f"  s_load_dwordx2 s[16:17], s[0:1], {KA_OUT}")
    e("  s_and_b32 s3, s2, 7")
    e("  s_mul_i32 s49, s3, 28")
    e("  s_lshr_b32 s50, s2, 3")
    e("  s_add_u32 s49, s49, s50")
    e("  s_sub_u32 s50, s50, 24")
    e("  s_lshl_b32 s51, s3, 3")
    e("  s_add_u32 s50, s50, s51")
    e("  v_mov_b32 v180, v0")
    e("  v_lshrrev_b32 v1, 6, v0")
    e("  v_and_b32 v0, 63, v0")
    e("  v_readfirstlane_b32 s48, v1")
    e("  s_waitcnt lgkmcnt(0)")
    srd(20, 4, 5, 2 << 20)
    srd(24, 6, 7, 9 << 20)
    srd(28, 8, 9, 1024)
    srd(32, 10, 11, 512*1792*2)
    srd(36, 12, 13, 512*1792*2)
    srd(40, 14, 15, 1792*512*2)
    srd(44, 16, 17, 2 << 20)
    e("  s_cmp_lt_u32 s48, 2")
    e("  s_cbranch_scc1 tf_p1")
    e("  s_cmp_ge_u32 s2, 224")
    e("  s_cbranch_scc1 tf_nof1")
    e("  s_movk_i32 s52, 3584")
    e("  v_mul_lo_u32 v3, v0, s52")
    e("  s_lshl_b32 s53, s49, 4")
    e("  s_cmp_eq_u32 s48, 2")
    e("  s_cbranch_scc0 tf_dma_u")
    for i in range(8):
        e(f"  s_mov_b32 m0, {LDS_G + 1024*i}")
        e("  s_nop 0")
        e("  buffer_load_dwordx4 v3, s[32:35], s53 offen lds")
        e(f"  s_add_u32 s53, s53, {64*3584}")
    e("  s_branch tf_nof1")
    lab("tf_dma_u")
    for i in range(8):
        e(f"  s_mov_b32 m0, {LDS_U + 1024*i}")
        e("  s_nop 0")
        e("  buffer_load_dwordx4 v3, s[36:39], s53 offen lds")
        e(f"  s_add_u32 s53, s53, {64*3584}")
    lab("tf_nof1")
    e("  s_cmp_lt_u32 s2, 192")
    e("  s_cbranch_scc1 tf_poll1")
    e("  v_lshlrev_b32 v3, 10, v0")
    e("  s_sub_u32 s52, s48, 2")
    e(f"  s_mul_i32 s53, s52, {896*1024}")
    e("  s_lshl_b32 s54, s50, 4")
    e("  s_add_u32 s53, s53, s54")
    e(f"  s_mul_i32 s54, s52, {896*16}")
    for i in range(14):
        e(f"  s_add_u32 m0, s54, {LDS_WD + 1024*i}")
        e("  s_nop 0")
        e("  buffer_load_dwordx4 v3, s[40:43], s53 offen lds")
        e("  s_add_u32 s53, s53, 0x10000")
    e("  s_branch tf_poll1")
    lab("tf_p1")
    e("  v_lshrrev_b32 v1, 4, v180")
    e("  v_and_b32 v2, 15, v0")
    e("  s_lshl_b32 s52, s2, 3")
    e("  v_add_u32 v1, s52, v1")
    e("  v_mov_b32 v181, v1")
    rowmac(True)
    e("  v_cmp_eq_u32 vcc, 0, v2")
    e("  s_and_saveexec_b64 s[56:57], vcc")
    e("  v_lshlrev_b32 v13, 2, v1")
    e(f"  s_mov_b32 s52, {WS_KEY}")
    e("  buffer_store_dword v12, v13, s[24:27], s52 offen sc1")
    e("  s_mov_b64 exec, s[56:57]")
    stamp(1)
    lab("tf_poll1")
    K = 164
    e("  v_lshlrev_b32 v172, 5, v180")
    e(f"  s_mov_b32 s52, {WS_KEY}")
    e("  s_mov_b32 s60, 0")
    lab("tf_poll1_loop")
    e(f"  buffer_load_dwordx4 {vr(K,4)}, v172, s[24:27], s52 offen sc1")
    e(f"  buffer_load_dwordx4 {vr(K+4,4)}, v172, s[24:27], s52 offen offset:16 sc1")
    e("  s_waitcnt vmcnt(0)")
    e(f"  v_min3_u32 v173, v{K}, v{K+1}, v{K+2}")
    e(f"  v_min3_u32 v174, v{K+3}, v{K+4}, v{K+5}")
    e(f"  v_min3_u32 v173, v173, v{K+6}, v{K+7}")
    e("  v_min_u32 v173, v173, v174")
    e("  v_cmp_eq_u32 s[62:63], 0, v173")
    e("  s_nop 3")
    e("  s_cmp_eq_u64 s[62:63], 0")
    e("  s_cbranch_scc1 tf_poll1_ok")
    e("  s_add_u32 s60, s60, 1")
    e(f"  s_cmp_gt_u32 s60, {SPIN}")
    e("  s_cbranch_scc1 tf_poll1_ok")
    e("  s_sleep 1")
    e("  s_branch tf_poll1_loop")
    lab("tf_poll1_ok")
    stamp(2)
    e("  v_mov_b32 v176, 0")
    for rnd in range(8):
        e(f"  v_max3_u32 v173, v{K}, v{K+1}, v{K+2}")
        e(f"  v_max3_u32 v174, v{K+3}, v{K+4}, v{K+5}")
        e(f"  v_max3_u32 v173, v173, v{K+6}, v{K+7}")
        e("  v_max_u32 v173, v173, v174")
        e("  s_nop 1")
        e("  v_max_u32_dpp v173, v173, v173 quad_perm:[1,0,3,2] row_mask:0xf bank_mask:0xf")
        e("  s_nop 1")
        e("  v_max_u32_dpp v173, v173, v173 quad_perm:[2,3,0,1] row_mask:0xf bank_mask:0xf")
        e("  s_nop 1")
        e("  v_max_u32_dpp v173, v173, v173 row_half_mirror row_mask:0xf bank_mask:0xf")
        e("  s_nop 1")
        e("  v_max_u32_dpp v173, v173, v173 row_mirror row_mask:0xf bank_mask:0xf")
        e("  s_nop 1")
        e("  v_readlane_b32 s64, v173, 0")
        e("  v_readlane_b32 s65, v173, 16")
        e("  v_readlane_b32 s66, v173, 32")
        e("  v_readlane_b32 s67, v173, 48")
        e("  s_max_u32 s64, s64, s65")
        e("  s_max_u32 s66, s66, s67")
        e("  s_max_u32 s64, s64, s66")
        e(f"  v_writelane_b32 v176, s64, {rnd}")
        if rnd < 7:
            for k in range(8):
                e(f"  v_cmp_ne_u32 vcc, s64, v{K+k}")
                e("  s_nop 1")
                e(f"  v_cndmask_b32 v{K+k}, 0, v{K+k}, vcc")
    e("  s_lshl_b32 s52, s48, 5")
    e(f"  s_add_u32 s52, s52, {LDS_C}")
    e("  v_lshlrev_b32 v172, 2, v0")
    e("  v_add_u32 v172, s52, v172")
    e("  v_cmp_gt_u32 vcc, 8, v0")
    e("  s_and_saveexec_b64 s[56:57], vcc")
    e("  ds_write_b32 v172, v176")
    e("  s_mov_b64 exec, s[56:57]")
    e("  s_waitcnt lgkmcnt(0)")
    e("  s_barrier")
    e("  v_and_b32 v172, 31, v0")
    e("  v_lshlrev_b32 v172, 2, v172")
    e(f"  ds_read_b32 v177, v172 offset:{LDS_C}")
    e("  v_mov_b32 v178, 0")
    e("  s_waitcnt lgkmcnt(0)")
    for i in range(32):
        e(f"  v_readlane_b32 s64, v177, {i}")
        e("  s_nop 1")
        e("  v_cmp_gt_u32 vcc, s64, v177")
        e("  s_nop 1")
        e("  v_addc_co_u32 v178, vcc, 0, v178, vcc")
    e("  v_cmp_gt_u32 vcc, 8, v178")
    e("  v_cmp_gt_u32 s[58:59], 32, v0")
    e("  s_and_b64 vcc, vcc, s[58:59]")
    e("  v_lshlrev_b32 v172, 2, v178")
    e("  s_and_saveexec_b64 s[56:57], vcc")
    e(f"  ds_write_b32 v172, v177 offset:{LDS_C+128}")
    e("  s_mov_b64 exec, s[56:57]")
    e("  s_waitcnt lgkmcnt(0)")
    e("  s_barrier")
    stamp(3)
    e("  s_cmp_lt_u32 s48, 2")
    e("  s_cbranch_scc1 tf_p2")
    e("  s_waitcnt vmcnt(0)")
    e("  s_branch tf_p2_end")
    lab("tf_p2")
    e("  v_mov_b32 v172, 0")
    e(f"  ds_read_b128 {vr(K,4)}, v172 offset:{LDS_C+128}")
    e(f"  ds_read_b128 {vr(K+4,4)}, v172 offset:{LDS_C+144}")
    e("  v_lshrrev_b32 v173, 4, v180")
    e("  v_lshlrev_b32 v173, 2, v173")
    e(f"  ds_read_b32 v174, v173 offset:{LDS_C+128}")
    e("  v_sub_u32 v175, 0xffff, v181")
    e("  s_waitcnt lgkmcnt(0)")
    e("  s_mov_b64 s[58:59], exec")
    for k in range(8):
        e(f"  v_and_b32 v{K+k}, 0xffff, v{K+k}")
        e(f"  v_cmp_ne_u32 vcc, v{K+k}, v175")
        e("  s_and_b64 s[58:59], s[58:59], vcc")
    e("  v_lshlrev_b32 v3, 10, v181")
    e("  v_lshl_add_u32 v3, v2, 4, v3")
    e("  s_and_saveexec_b64 s[56:57], s[58:59]")
    e("  s_cbranch_execz tf_nostore")
    for j in range(4):
        e(f"  buffer_store_dwordx4 {vr(148+4*j,4)}, v3, s[44:47], 0 offen offset:{256*j}")
    lab("tf_nostore")
    e("  s_mov_b64 exec, s[56:57]")
    e("  v_and_b32 v1, 0xffff, v174")
    e("  v_sub_u32 v1, 0xffff, v1")
    rowmac(False)
    e("  v_lshrrev_b32 v173, 4, v180")
    e(f"  v_mul_u32_u24 v4, {XS_STRIDE}, v173")
    e("  v_lshl_add_u32 v4, v2, 4, v4")
    e("  v_lshlrev_b32 v5, 10, v173")
    e("  v_lshl_add_u32 v5, v2, 4, v5")
    for j in range(4):
        e(f"  ds_write_b128 v4, {vr(16+4*j,4)} offset:{LDS_XS+256*j}")
        e(f"  ds_write_b128 v5, {vr(32+4*j,4)} offset:{LDS_HS+256*j}")
    e("  s_waitcnt lgkmcnt(0)")
    lab("tf_p2_end")
    e("  s_barrier")
    stamp(4)
    e("  s_cmp_lg_u32 s48, 0")
    e("  s_cbranch_scc1 tf_f2")
    e("  s_cmp_ge_u32 s2, 224")
    e("  s_cbranch_scc1 tf_f2")
    e("  v_and_b32 v3, 7, v0")
    e(f"  v_mul_u32_u24 v3, {XS_STRIDE}, v3")
    e("  v_lshrrev_b32 v4, 4, v0")
    e("  v_lshl_add_u32 v3, v4, 4, v3")
    e("  v_and_b32 v5, 15, v0")
    e("  v_lshrrev_b32 v5, 2, v5")
    e("  v_lshl_add_u32 v5, v4, 3, v5")
    e("  v_lshlrev_b32 v5, 4, v5")
    e("  v_and_b32 v6, 1, v0")
    e("  v_lshl_add_u32 v5, v6, 3, v5")
    e("  v_and_b32 v6, 2, v0")
    e("  v_lshl_add_u32 v5, v6, 12, v5")
    for i in range(4):
        e(f"  v_mov_b32 v{8+i}, 0")
    FA, FB = 16, 80
    for st in range(16):
        e(f"  ds_read_b128 {vr(FA+4*st,4)}, v3 offset:{LDS_XS + 64*st}")
        e(f"  ds_read_b64_tr_b16 {vr(FB+4*st,2)}, v5 offset:{512*st}")
        e(f"  ds_read_b64_tr_b16 {vr(FB+4*st+2,2)}, v5 offset:{512*st+64}")
        if st % 4 == 3:
            e("  s_waitcnt lgkmcnt(0)")
            for s2 in range(st-3, st+1):
                e(f"  v_mfma_f32_16x16x32_bf16 v[8:11], {vr(FA+4*s2,4)}, {vr(FB+4*s2,4)}, v[8:11]")
    e("  s_nop 15")
    for i in range(4):
        e(f"  v_cvt_pk_bf16_f32 v{8+i}, v{8+i}, v{8+i}")
        e(f"  v_lshlrev_b32 v{8+i}, 16, v{8+i}")
    e("  s_nop 1")
    for i in range(4):
        e(f"  v_mov_b32_dpp v{12+i}, v{8+i} row_ror:8 row_mask:0xf bank_mask:0xf")
    for i in range(4):
        e(f"  v_mul_f32 v16, 0xbfb8aa3b, v{8+i}")
        e("  v_exp_f32 v16, v16")
        e("  s_nop 0")
        e("  v_add_f32 v16, 1.0, v16")
        e("  v_rcp_f32 v16, v16")
        e("  s_nop 0")
        e(f"  v_mul_f32 v16, v{8+i}, v16")
        e("  v_cvt_pk_bf16_f32 v16, v16, v16")
        e("  v_lshlrev_b32 v16, 16, v16")
        e(f"  v_mul_f32 v16, v16, v{12+i}")
        e(f"  v_cvt_pk_bf16_f32 v{20+i}, v16, v16")
    e("  s_nop 1")
    for i in range(4):
        e(f"  v_mov_b32_dpp v{24+i}, v{20+i} quad_perm:[1,0,3,2] row_mask:0xf bank_mask:0xf")
    for i in range(4):
        e(f"  v_and_b32 v{20+i}, 0xffff, v{20+i}")
        e(f"  v_and_b32 v{24+i}, 0xffff0000, v{24+i}")
        e(f"  v_or_b32 v{20+i}, v{20+i}, v{24+i}")
    e("  v_and_b32 v5, 15, v0")
    e("  v_and_b32 v6, 9, v0")
    e("  v_cmp_eq_u32 vcc, 0, v6")
    e("  v_cmp_gt_u32 s[58:59], 32, v0")
    e("  s_and_b64 vcc, vcc, s[58:59]")
    e("  s_and_saveexec_b64 s[56:57], vcc")
    e("  v_lshlrev_b32 v4, 2, v4")
    e("  v_mul_u32_u24 v4, 3584, v4")
    e("  v_lshl_add_u32 v4, v5, 1, v4")
    e("  s_lshl_b32 s52, s49, 4")
    e(f"  s_add_u32 s52, s52, {WS_GU}")
    for i in range(4):
        e(f"  buffer_store_dword v{20+i}, v4, s[24:27], s52 offen sc1")
        if i < 3:
            e("  v_add_u32 v4, 3584, v4")
    e("  s_waitcnt vmcnt(0)")
    e("  s_mov_b64 exec, 1")
    e("  v_mov_b32 v4, 1")
    e("  v_mov_b32 v5, 0")
    e("  s_lshl_b32 s52, s49, 2")
    e(f"  s_add_u32 s52, s52, {WS_FLAG}")
    e("  buffer_store_dword v4, v5, s[24:27], s52 offen sc1")
    e("  s_mov_b64 exec, s[56:57]")
    stamp(5)
    lab("tf_f2")
    e("  s_cmp_lt_u32 s2, 192")
    e("  s_cbranch_scc1 tf_done")
    e("  v_min_u32 v3, 55, v0")
    e("  v_lshlrev_b32 v3, 2, v3")
    e("  s_mul_i32 s52, s48, 224")
    e(f"  s_add_u32 s52, s52, {WS_FLAG}")
    e("  s_mov_b32 s60, 0")
    lab("tf_poll2_loop")
    e("  buffer_load_dword v4, v3, s[24:27], s52 offen sc1")
    e("  s_waitcnt vmcnt(0)")
    e("  v_cmp_eq_u32 s[62:63], 0, v4")
    e("  s_nop 3")
    e("  s_cmp_eq_u64 s[62:63], 0")
    e("  s_cbranch_scc1 tf_poll2_ok")
    e("  s_add_u32 s60, s60, 1")
    e(f"  s_cmp_gt_u32 s60, {SPIN}")
    e("  s_cbranch_scc1 tf_poll2_ok")
    e("  s_sleep 1")
    e("  s_branch tf_poll2_loop")
    lab("tf_poll2_ok")
    stamp(6)
    e("  v_and_b32 v4, 7, v0")
    e("  v_mul_u32_u24 v4, 3584, v4")
    e("  v_lshrrev_b32 v5, 4, v0")
    e("  v_lshl_add_u32 v4, v5, 4, v4")
    e("  s_mul_i32 s52, s48, 896")
    e(f"  s_add_u32 s52, s52, {WS_GU}")
    FA, FB = 16, 72
    for st in range(14):
        e(f"  buffer_load_dwordx4 {vr(FA+4*st,4)}, v4, s[24:27], s52 offen offset:{64*st} sc1")
    e("  v_and_b32 v7, 15, v0")
    e("  v_lshrrev_b32 v7, 2, v7")
    e("  v_lshl_add_u32 v7, v5, 3, v7")
    e("  v_lshlrev_b32 v7, 4, v7")
    e("  v_and_b32 v6, 1, v0")
    e("  v_lshl_add_u32 v7, v6, 3, v7")
    e("  s_mul_i32 s54, s48, 7168")
    e(f"  s_add_u32 s54, s54, {LDS_WD}")
    e("  v_add_u32 v7, s54, v7")
    for st in range(14):
        e(f"  ds_read_b64_tr_b16 {vr(FB+4*st,2)}, v7 offset:{512*st}")
        e(f"  ds_read_b64_tr_b16 {vr(FB+4*st+2,2)}, v7 offset:{512*st+64}")
    for i in range(4):
        e(f"  v_mov_b32 v{8+i}, 0")
    e("  s_waitcnt vmcnt(0) lgkmcnt(0)")
    for st in range(14):
        e(f"  v_mfma_f32_16x16x32_bf16 v[8:11], {vr(FA+4*st,4)}, {vr(FB+4*st,4)}, v[8:11]")
    e("  s_nop 15")
    e("  v_lshlrev_b32 v3, 4, v0")
    e("  s_lshl_b32 s52, s48, 10")
    e("  v_add_u32 v3, s52, v3")
    e(f"  ds_write_b128 v3, v[8:11] offset:{LDS_R}")
    e("  s_waitcnt lgkmcnt(0)")
    e("  s_barrier")
    e("  s_cmp_lg_u32 s48, 0")
    e("  s_cbranch_scc1 tf_done")
    e("  v_lshlrev_b32 v3, 4, v0")
    for w in range(1, 4):
        e(f"  ds_read_b128 {vr(12+4*(w-1),4)}, v3 offset:{LDS_R+1024*w}")
    e("  v_and_b32 v6, 1, v5")
    e("  v_lshlrev_b32 v6, 4, v6")
    e(f"  ds_read_b128 v[24:27], v6 offset:{LDS_C+128}")
    e("  v_and_b32 v6, 7, v0")
    e("  s_lshl_b32 s52, s50, 4")
    e("  v_lshl_add_u32 v6, v6, 1, s52")
    e("  v_and_b32 v7, 1, v5")
    e("  v_lshlrev_b32 v7, 2, v7")
    for i in range(4):
        e(f"  v_add_u32 v28, {i}, v7")
        e(f"  v_mul_u32_u24 v29, {XS_STRIDE}, v28")
        e("  v_add_u32 v29, v29, v6")
        e(f"  ds_read_u16 v{36+i}, v29 offset:{LDS_XS}")
        e("  v_lshl_add_u32 v29, v28, 10, v6")
        e(f"  ds_read_u16 v{40+i}, v29 offset:{LDS_HS}")
    e("  v_and_b32 v30, 15, v0")
    e("  v_cmp_gt_u32 vcc, 8, v30")
    e("  v_cmp_gt_u32 s[58:59], 32, v0")
    e("  s_and_b64 vcc, vcc, s[58:59]")
    e("  s_waitcnt lgkmcnt(0)")
    e("  s_and_saveexec_b64 s[56:57], vcc")
    for i in range(4):
        e(f"  v_add_f32 v{8+i}, v{8+i}, v{12+i}")
        e(f"  v_add_f32 v{16+i}, v{16+i}, v{20+i}")
        e(f"  v_add_f32 v{8+i}, v{8+i}, v{16+i}")
        e(f"  v_cvt_pk_bf16_f32 v{8+i}, v{8+i}, v{8+i}")
        e(f"  v_lshlrev_b32 v{8+i}, 16, v{8+i}")
        e(f"  v_and_b32 v60, 0xffff0000, v{24+i}")
        e("  v_ashrrev_i32 v61, 31, v60")
        e("  v_not_b32 v61, v61")
        e("  v_or_b32 v61, 0x80000000, v61")
        e("  v_xor_b32 v60, v60, v61")
        e("  v_and_b32 v60, 0xffff0000, v60")
        e("  v_mul_f32 v60, 0xbfb8aa3b, v60")
        e("  v_exp_f32 v60, v60")
        e("  s_nop 0")
        e("  v_add_f32 v60, 1.0, v60")
        e("  v_rcp_f32 v60, v60")
        e("  s_nop 0")
        e("  v_cvt_pk_bf16_f32 v60, v60, v60")
        e("  v_lshlrev_b32 v60, 16, v60")
        e(f"  v_mul_f32 v{8+i}, v{8+i}, v60")
        e(f"  v_cvt_pk_bf16_f32 v{8+i}, v{8+i}, v{8+i}")
        e(f"  v_lshlrev_b32 v{8+i}, 16, v{8+i}")
        e(f"  v_lshlrev_b32 v{36+i}, 16, v{36+i}")
        e(f"  v_lshlrev_b32 v{40+i}, 16, v{40+i}")
        e(f"  v_add_f32 v61, v{36+i}, v{8+i}")
        e("  v_cvt_pk_bf16_f32 v61, v61, v61")
        e("  v_lshlrev_b32 v61, 16, v61")
        e(f"  v_add_f32 v61, v{40+i}, v61")
        e("  v_cvt_pk_bf16_f32 v61, v61, v61")
        e(f"  v_and_b32 v62, 0xffff, v{24+i}")
        e("  v_sub_u32 v62, 0xffff, v62")
        e("  v_lshl_add_u32 v62, v62, 10, v6")
        e("  buffer_store_short v61, v62, s[44:47], 0 offen")
    lab("tf_done")
    kernel_end()
    e("  s_endpgm")
    kernel_desc(name, 184)

def main():
    hdr = open("cdna_kernels/" + NAME + ".s.ref").read().splitlines()
    out = []
    for ln in hdr:
        if ln.startswith("; @launch"):
            out.append("; @launch kernel=k1_kernel grid=(256,1,1) block=(%d,1,1) lds=131072" % (576 if OPT('K1_PF', 0) else 512))
            out.append("; @launch kernel=k2_kernel grid=(256,1,1) block=(%d,1,1) lds=%d" % (512, K2_NS*24576))
            if OPT('TF'):
                out.append("; @launch kernel=tf_kernel grid=(256,1,1) block=(256,1,1) lds=66048")
            else:
                out.append("; @launch kernel=t1_kernel grid=(256,1,1) block=(%d,1,1) lds=0" % (192 if OPT('T1_PF', 1) else 128))
                if OPT('T4', 1):
                    out.append("; @launch kernel=t4_kernel grid=(240,1,1) block=(256,1,1) lds=123392")
                else:
                    out.append("; @launch kernel=t2_kernel grid=(224,1,1) block=(256,1,1) lds=25600")
                    out.append("; @launch kernel=t3_kernel grid=(64,1,1) block=(256,1,1) lds=32768")
            break
        out.append(ln)
    out.append('.amdgcn_target "amdgcn-amd-amdhsa--gfx950"')
    out.append(".text")
    gen_k1(); gen_k2()
    if OPT('TF'): gen_tf()
    elif OPT('T4', 1): gen_t1(); gen_t4()
    else: gen_t1(); gen_t2(); gen_t3()
    out += L
    out.append('.section .rodata,"a"')
    out += KD
    dst = sys.argv[1] if len(sys.argv) > 1 else "cdna_kernels/" + NAME + ".s"
    open(dst, "w").write("\n".join(out) + "\n")

main()
```

```python
import sys, os
OPT = lambda k, d=0: int(os.environ.get(k, d))

NAME = "sequential_preLN__spectral_fnet__moe_arch_mod__prompt"
L = []
def e(s=""):
    L.append(s)
def lab(s):
    L.append(s + ":")

KA_X, KA_WSRE, KA_WSIM, KA_WDRE, KA_WDIM = 0, 8, 16, 24, 32
KA_WR, KA_WG, KA_WU, KA_WDN, KA_OUT, KA_DBG, KA_WS = 48, 56, 64, 72, 80, 88, 96
WS_YB = 0
WS_Y = 4 << 20
WS_KEY = 8 << 20
WS_STAT = (8 << 20) + 8192
WS_GU = (8 << 20) + 65536
WS_IDX = (8 << 20) + 131072
WS_FLAG = (8 << 20) + 196608
WS_WDB = 10 << 20
WS_SIZE = 268435456

KIDX = [0]
NV = {"k1_kernel": 160, "k2_kernel": 160, "t1_kernel": 148, "t2_kernel": 192, "t3_kernel": 192, "tf_kernel": 184, "t4_kernel": 252}
CUR = [0]
def kernel_begin(name):
    CUR[0] = NV[name]
    e(f".globl {name}")
    e(".p2align 8")
    e(f".type {name},@function")
    lab(name)
    if OPT('DIAG'):
        e("  s_memrealtime s[72:73]")
        for i in range(1, 7):
            e(f"  s_mov_b64 s[{72+2*i}:{73+2*i}], 0")
        e(f"  s_load_dwordx2 s[94:95], s[0:1], {KA_WS}")
        e(f"  v_mov_b32 v{CUR[0]}, v0")

def stamp(i):
    if OPT('DIAG'):
        e(f"  s_memrealtime s[{72+2*i}:{73+2*i}]")

def kernel_end():
    if OPT('DIAG'):
        e("  s_waitcnt vmcnt(0) lgkmcnt(0)")
        e("  s_memrealtime s[86:87]")
        e("  s_mov_b32 s88, s94")
        e("  s_mov_b32 s89, s95")
        e("  s_mov_b32 s90, 0x4000000")
        e("  s_mov_b32 s91, 0x00020000")
        e("  s_waitcnt lgkmcnt(0)")
        e("  s_mov_b64 exec, 1")
        for i in range(16):
            e(f"  v_mov_b32 v{i}, s{72+i}")
        e(f"  v_lshrrev_b32 v{CUR[0]+1}, 6, v{CUR[0]}")
        e(f"  v_lshlrev_b32 v{CUR[0]+1}, 6, v{CUR[0]+1}")
        e("  s_lshl_b32 s92, s2, 10")
        e(f"  s_add_u32 s92, s92, {(16 << 20) + KIDX[0] * 0x100000}")
        for i in range(4):
            e(f"  buffer_store_dwordx4 v[{4*i}:{3+4*i}], v{CUR[0]+1}, s[88:91], s92 offen offset:{16*i}")
    KIDX[0] += 1

KD = []
def kernel_desc(name, vgpr, sgpr=102):
    assert vgpr == CUR[0]
    if OPT('DIAG'): vgpr += 2
    acc = (vgpr + 3) // 4 * 4
    KD.append(f""".p2align 6
.amdhsa_kernel {name}
  .amdhsa_next_free_vgpr {vgpr}
  .amdhsa_next_free_sgpr {sgpr}
  .amdhsa_accum_offset {acc}
  .amdhsa_group_segment_fixed_size 0
  .amdhsa_kernarg_size 104
  .amdhsa_user_sgpr_count 2
  .amdhsa_user_sgpr_kernarg_segment_ptr 1
  .amdhsa_system_sgpr_workgroup_id_x 1
.end_amdhsa_kernel""")

def srd(d, lo, hi, size):
    e(f"  s_mov_b32 s{d}, s{lo}")
    e(f"  s_mov_b32 s{d+1}, s{hi}")
    e(f"  s_mov_b32 s{d+2}, {size}")
    e(f"  s_mov_b32 s{d+3}, 0x00020000")

def vr(a, n):
    return f"v[{a}:{a+n-1}]"

def reduce8(v):
    e("  s_nop 1")
    e(f"  v_add_f32_dpp v{v}, v{v}, v{v} quad_perm:[1,0,3,2] row_mask:0xf bank_mask:0xf")
    e("  s_nop 1")
    e(f"  v_add_f32_dpp v{v}, v{v}, v{v} quad_perm:[2,3,0,1] row_mask:0xf bank_mask:0xf")
    e("  s_nop 1")
    e(f"  v_add_f32_dpp v{v}, v{v}, v{v} row_half_mirror row_mask:0xf bank_mask:0xf")

def reduce16(v):
    reduce8(v)
    e("  s_nop 1")
    e(f"  v_add_f32_dpp v{v}, v{v}, v{v} row_mirror row_mask:0xf bank_mask:0xf")

def gen_k1():
    name = "k1_kernel"
    kernel_begin(name)
    e("  s_cmp_ge_u32 s2, 256")
    e("  s_cbranch_scc1 k1_done")
    e(f"  s_load_dwordx2 s[4:5], s[0:1], {KA_X}")
    e(f"  s_load_dwordx4 s[8:11], s[0:1], {KA_WDRE}")
    e(f"  s_load_dwordx2 s[6:7], s[0:1], {KA_WS}")
    e("  s_and_b32 s12, s2, 7")
    e("  s_lshr_b32 s13, s2, 3")
    e("  s_and_b32 s14, s13, 3")
    e("  s_lshl_b32 s12, s12, 2")
    e("  s_add_u32 s12, s12, s14")
    e("  s_lshr_b32 s13, s13, 2")
    e("  v_lshrrev_b32 v1, 6, v0")
    e("  v_and_b32 v0, 63, v0")
    e("  v_readfirstlane_b32 s15, v1")
    e("  v_lshrrev_b32 v2, 3, v0")
    e("  v_and_b32 v3, 7, v0")
    if OPT('K1_PF', 1) or OPT('K1_PFEND', 0):
        e(f"  s_load_dwordx4 s[40:43], s[0:1], {KA_WSRE}")
    e("  s_waitcnt lgkmcnt(0)")
    if OPT('K1_PF', 1):
        e("  s_cmp_lg_u32 s15, 8")
        e("  s_cbranch_scc1 k1_main")
        e("  s_and_b32 s44, s2, 7")
        e("  s_cmp_lt_u32 s44, 4")
        e("  s_cselect_b32 s48, s40, s42")
        e("  s_cselect_b32 s49, s41, s43")
        e(f"  s_mov_b32 s50, {2048*2048*2}")
        e("  s_mov_b32 s51, 0x00020000")
        e("  s_and_b32 s44, s44, 3")
        e("  s_lshl_b32 s44, s44, 21")
        e("  s_lshr_b32 s45, s2, 3")
        e("  s_lshl_b32 s45, s45, 16")
        e("  s_add_u32 s44, s44, s45")
        e("  v_lshlrev_b32 v1, 4, v0")
        e("  s_cmp_ge_u32 s2, 9")
        e("  s_cbranch_scc1 k1_nozero")
        srd(52, 6, 7, 9 << 20)
        for q in range(4):
            e(f"  v_mov_b32 v{4+q}, 0")
        e("  s_lshl_b32 s46, s2, 10")
        e(f"  s_add_u32 s46, s46, {WS_KEY}")
        e("  buffer_store_dwordx4 v[4:7], v1, s[52:55], s46 offen")
        lab("k1_nozero")
        e("  s_cmp_lt_u32 s13, 4")
        e("  s_cselect_b32 s56, s8, s10")
        e("  s_cselect_b32 s57, s9, s11")
        e(f"  s_mov_b32 s58, {512*512*2}")
        e("  s_mov_b32 s59, 0x00020000")
        e("  s_and_b32 s46, s13, 3")
        e("  s_lshl_b32 s46, s46, 17")
        for q in range(OPT('K1_CAN', 0)):
            e(f"  buffer_load_dwordx4 v[8:11], v1, s[56:59], s46 offen offset:{q*1024}")
            e("  s_waitcnt vmcnt(0)")
        for q in range(64):
            e(f"  buffer_load_dwordx4 {vr(8+4*(q%32),4)}, v1, s[48:51], s44 offen")
            e("  s_add_u32 s44, s44, 1024")
        e("  s_branch k1_done")
        lab("k1_main")
    srd(16, 4, 5, 2048*512*2)
    e("  s_cmp_lt_u32 s13, 4")
    e("  s_cselect_b32 s20, s8, s10")
    e("  s_cselect_b32 s21, s9, s11")
    e(f"  s_mov_b32 s22, {512*512*2}")
    e("  s_mov_b32 s23, 0x00020000")
    srd(24, 6, 7, 4 << 20)
    e("  s_lshl_b32 s28, s12, 6")
    e("  s_lshl_b32 s29, s15, 3")
    e("  s_add_u32 s28, s28, s29")
    e("  v_add_u32 v4, s28, v2")
    e("  v_lshlrev_b32 v4, 10, v4")
    e("  v_lshl_add_u32 v4, v3, 4, v4")
    X = 32
    for j in range(8):
        e(f"  buffer_load_dwordx4 {vr(X+4*j,4)}, v4, s[16:19], 0 offen offset:{128*j}")
    e("  s_and_b32 s30, s13, 3")
    e("  s_lshl_b32 s30, s30, 7")
    for ii in range(2):
        e(f"  s_lshl_b32 s31, s15, 4")
        e(f"  s_add_u32 s31, s31, {8*ii}")
        e(f"  v_add_u32 v7, s31, v2")
        e(f"  v_lshrrev_b32 v8, 1, v7")
        e(f"  v_and_b32 v8, 7, v8")
        e(f"  v_xor_b32 v8, v8, v3")
        e(f"  v_add_u32 v7, s30, v7")
        e(f"  v_lshlrev_b32 v7, 10, v7")
        e(f"  v_lshl_add_u32 v{5+ii}, v8, 4, v7")
    e("  s_lshl_b32 s32, s15, 11")
    def wdma(kb):
        slot = kb % 4
        e(f"  s_mov_b32 s33, {128*kb}")
        for ii in range(2):
            e(f"  s_add_u32 m0, s32, {slot*16384 + ii*1024}")
            e("  s_nop 0")
            e(f"  buffer_load_dwordx4 v{5+ii}, s[20:23], s33 offen lds")
    for kb in range(4):
        wdma(kb)
    STG = 128
    for kb in (range(4, 8) if OPT('K1_STG') else []):
        e(f"  s_mov_b32 s33, {128*kb}")
        for ii in range(2):
            e(f"  buffer_load_dwordx4 {vr(STG+8*(kb-4)+4*ii,4)}, v{5+ii}, s[20:23], s33 offen")
    e("  s_mov_b32 s34, 0x3f803f80")
    for a in range(4):
        e(f"  v_mov_b32 v{8+a}, 0")
    stamp(1)
    e(f"  s_waitcnt vmcnt({16 if OPT('K1_STG') else 8})")
    stamp(2)
    for i in range(32):
        e(f"  v_dot2_f32_bf16 v{8+i%4}, v{X+i}, s34, v{8+i%4}")
    e("  s_nop 3")
    e("  v_add_f32 v8, v8, v9")
    e("  v_add_f32 v10, v10, v11")
    e("  v_add_f32 v8, v8, v10")
    reduce8(8)
    e("  v_mul_f32 v8, 0x3b000000, v8")
    e("  v_cvt_pk_bf16_f32 v9, v8, v8")
    e("  v_lshlrev_b32 v9, 16, v9")
    e("  v_sub_f32 v10, 0, v9")
    e("  v_mov_b32 v11, v10")
    D = 64
    for a in range(4):
        e(f"  v_mov_b32 v{12+a}, 0")
    for i in range(32):
        e(f"  v_lshlrev_b32 v{D+2*i}, 16, v{X+i}")
        e(f"  v_and_b32 v{D+2*i+1}, 0xffff0000, v{X+i}")
        e(f"  v_pk_add_f32 {vr(D+2*i,2)}, {vr(D+2*i,2)}, v[10:11]")
        q = 12 + 2*(i % 2)
        e(f"  v_pk_fma_f32 {vr(q,2)}, {vr(D+2*i,2)}, {vr(D+2*i,2)}, {vr(q,2)}")
    e("  v_add_f32 v12, v12, v13")
    e("  v_add_f32 v14, v14, v15")
    e("  v_add_f32 v12, v12, v14")
    reduce8(12)
    e("  v_sub_f32 v13, v8, v9")
    e("  v_mul_f32 v13, v13, v13")
    e("  v_mul_f32 v12, 0x3b000000, v12")
    e("  v_sub_f32 v12, v12, v13")
    e("  v_max_f32 v12, 0, v12")
    e("  v_cvt_pk_bf16_f32 v12, v12, v12")
    e("  v_lshlrev_b32 v12, 16, v12")
    e("  v_add_f32 v12, 0x3727c5ac, v12")
    e("  v_cvt_pk_bf16_f32 v12, v12, v12")
    e("  v_lshlrev_b32 v12, 16, v12")
    e("  v_sqrt_f32 v12, v12")
    e("  s_nop 0")
    e("  v_cvt_pk_bf16_f32 v12, v12, v12")
    e("  v_lshlrev_b32 v12, 16, v12")
    e("  v_rcp_f32 v12, v12")
    e("  s_nop 0")
    e("  v_mov_b32 v13, v12")
    for i in range(32):
        e(f"  v_cvt_pk_bf16_f32 v{X+i}, v{D+2*i}, v{D+2*i+1}")
        e(f"  v_lshlrev_b32 v{D+2*i}, 16, v{X+i}")
        e(f"  v_and_b32 v{D+2*i+1}, 0xffff0000, v{X+i}")
        e(f"  v_pk_mul_f32 {vr(D+2*i,2)}, {vr(D+2*i,2)}, v[12:13]")
        e(f"  v_cvt_pk_bf16_f32 v{X+i}, v{D+2*i}, v{D+2*i+1}")
    e("  v_add_u32 v14, s29, v2")
    e("  v_lshrrev_b32 v15, 1, v14")
    e("  v_and_b32 v15, 7, v15")
    e("  v_xor_b32 v15, v15, v3")
    e("  v_lshlrev_b32 v14, 7, v14")
    e("  v_lshl_add_u32 v14, v15, 4, v14")
    e("  v_add_u32 v14, 0x10000, v14")
    for j in range(8):
        e(f"  ds_write_b128 v14, {vr(X+4*j,4)} offset:{8192*j}")
    stamp(3)
    e("  s_and_b32 s35, s15, 1")
    e("  s_lshr_b32 s36, s15, 1")
    e("  v_and_b32 v16, 31, v0")
    e("  v_lshrrev_b32 v17, 5, v0")
    def fragaddr(dst, sblk, base):
        e(f"  s_lshl_b32 s37, s{sblk}, 5")
        e(f"  v_add_u32 v18, s37, v16")
        e(f"  v_lshrrev_b32 v19, 1, v18")
        e(f"  v_and_b32 v19, 7, v19")
        e(f"  v_xor_b32 v19, v19, v17")
        e(f"  v_lshlrev_b32 v18, 7, v18")
        e(f"  v_lshl_add_u32 v{dst}, v19, 4, v18")
        if base:
            e(f"  v_add_u32 v{dst}, {base}, v{dst}")
        for kk in range(1, 4):
            e(f"  v_xor_b32 v{dst+kk}, {32*kk}, v{dst}")
    fragaddr(20, 35, 0x10000)
    fragaddr(24, 36, 0)
    ACC = 96
    for i in range(16):
        e(f"  v_mov_b32 v{ACC+i}, 0")
    e("  v_lshlrev_b32 v28, 4, v0")
    e("  v_add_u32 v28, s32, v28")
    FA, FB = 64, 80
    waits = [14, 6, 4, 2, 0, 0, 0, 0] if OPT('K1_STG') else [6, 4, 4, 4, 4, 4, 2, 0]
    for kb in range(8):
        e(f"  s_waitcnt vmcnt({waits[kb]}) lgkmcnt(0)")
        e("  s_barrier")
        if kb == 0: stamp(4)
        if 1 <= kb <= 4 and not OPT('K1_STG'):
            wdma(kb + 3)
        if 1 <= kb <= 4 and OPT('K1_STG'):
            for ii in range(2):
                e(f"  ds_write_b128 v28, {vr(STG+8*(kb-1)+4*ii,4)} offset:{((kb+3)%4)*16384 + ii*1024}")
        slot = kb % 4
        for kk in range(4):
            e(f"  ds_read_b128 {vr(FA+4*kk,4)}, v{20+kk} offset:{8192*kb}")
            e(f"  ds_read_b128 {vr(FB+4*kk,4)}, v{24+kk} offset:{16384*slot}")
        for kk in range(4):
            e(f"  s_waitcnt lgkmcnt({6-2*kk})")
            e(f"  v_mfma_f32_32x32x16_bf16 {vr(ACC,16)}, {vr(FA+4*kk,4)}, {vr(FB+4*kk,4)}, {vr(ACC,16)}")
    stamp(5)
    e("  s_lshl_b32 s37, s13, 1")
    e("  s_lshr_b32 s38, s36, 1")
    e("  s_add_u32 s37, s37, s38")
    e("  s_lshl_b32 s37, s37, 5")
    e("  s_add_u32 s37, s37, s12")
    e("  s_lshl_b32 s37, s37, 13")
    e("  s_and_b32 s38, s36, 1")
    e("  s_lshl_b32 s38, s38, 5")
    e("  v_add_u32 v18, s38, v16")
    e("  v_lshrrev_b32 v19, 1, v18")
    e("  v_and_b32 v19, 7, v19")
    e("  s_lshl_b32 s38, s35, 2")
    e("  v_add_u32 v29, s38, v17")
    e("  v_xor_b32 v29, v29, v19")
    e("  v_lshlrev_b32 v18, 7, v18")
    e("  v_lshl_add_u32 v30, v29, 4, v18")
    e("  v_xor_b32 v31, 32, v30")
    e("  s_nop 7")
    P = 112
    for g in range(4):
        e(f"  v_cvt_pk_bf16_f32 v{P+2*g}, v{ACC+4*g}, v{ACC+4*g+1}")
        e(f"  v_cvt_pk_bf16_f32 v{P+2*g+1}, v{ACC+4*g+2}, v{ACC+4*g+3}")
    e("  s_nop 1")
    for p in range(2):
        e(f"  v_permlane32_swap_b32 v{P+4*p}, v{P+4*p+2}")
        e(f"  v_permlane32_swap_b32 v{P+4*p+1}, v{P+4*p+3}")
    e(f"  buffer_store_dwordx4 {vr(P,4)}, v30, s[24:27], s37 offen")
    e(f"  buffer_store_dwordx4 {vr(P+4,4)}, v31, s[24:27], s37 offen")
    if OPT('K1_PFEND', 0):
        e("  s_and_b32 s44, s2, 7")
        e("  s_cmp_lt_u32 s44, 4")
        e("  s_cselect_b32 s48, s40, s42")
        e("  s_cselect_b32 s49, s41, s43")
        e(f"  s_mov_b32 s50, {2048*2048*2}")
        e("  s_mov_b32 s51, 0x00020000")
        e("  s_and_b32 s44, s44, 3")
        e("  s_lshl_b32 s44, s44, 21")
        e("  s_lshr_b32 s45, s2, 3")
        e("  s_lshl_b32 s45, s45, 16")
        e("  s_add_u32 s44, s44, s45")
        e("  s_lshl_b32 s45, s15, 13")
        e("  s_add_u32 s44, s44, s45")
        e("  v_lshlrev_b32 v1, 4, v0")
        for q in range(8):
            e(f"  buffer_load_dwordx4 {vr(32+4*q,4)}, v1, s[48:51], s44 offen")
            e("  s_add_u32 s44, s44, 1024")
    lab("k1_done")
    kernel_end()
    e("  s_endpgm")
    kernel_desc(name, 160)

K2_NS = OPT('K2_NS', 6)
def gen_k2():
    NS = K2_NS
    name = "k2_kernel"
    kernel_begin(name)
    YBASE = NS * 16384
    e("  s_cmp_ge_u32 s2, 256")
    e("  s_cbranch_scc1 k2_done")
    e(f"  s_load_dwordx4 s[8:11], s[0:1], {KA_WSRE}")
    e(f"  s_load_dwordx2 s[6:7], s[0:1], {KA_WS}")
    e(f"  s_load_dwordx2 s[34:35], s[0:1], {KA_WDN}")
    e("  s_and_b32 s12, s2, 7")
    e("  s_lshr_b32 s13, s2, 3")
    e("  s_lshr_b32 s14, s12, 2")
    e("  s_and_b32 s12, s12, 3")
    e("  s_lshl_b32 s12, s12, 2")
    e("  s_lshr_b32 s15, s13, 3")
    e("  s_add_u32 s12, s12, s15")
    e("  s_and_b32 s13, s13, 7")
    e("  v_lshrrev_b32 v1, 6, v0")
    e("  v_and_b32 v0, 63, v0")
    e("  v_readfirstlane_b32 s15, v1")
    e("  v_lshrrev_b32 v2, 3, v0")
    e("  v_and_b32 v3, 7, v0")
    e("  s_waitcnt lgkmcnt(0)")
    e("  s_cmp_eq_u32 s14, 0")
    e("  s_cselect_b32 s16, s8, s10")
    e("  s_cselect_b32 s17, s9, s11")
    e(f"  s_mov_b32 s18, {2048*2048*2}")
    e("  s_mov_b32 s19, 0x00020000")
    srd(20, 6, 7, 8 << 20)
    e("  s_cmp_lt_u32 s15, 4")
    e("  s_cbranch_scc1 k2_consumer")
    e("  s_cmp_lt_u32 s15, 8")
    e("  s_cbranch_scc1 k2_loader")
    srd(36, 34, 35, 1792*512*2)
    srd(40, 6, 7, 12 << 20)
    e("  v_lshlrev_b32 v2, 4, v0")
    e("  s_mul_i32 s44, s2, 7168")
    for q in range(7):
        e(f"  buffer_load_dwordx4 {vr(8+4*q,4)}, v2, s[36:39], s44 offen")
        e("  s_add_u32 s44, s44, 1024")
    e("  s_cmp_ge_u32 s2, 28")
    e("  s_cbranch_scc1 k2_nomark")
    for q in range(4):
        e(f"  v_mov_b32 v{4+q}, -1")
    e("  s_lshl_b32 s44, s2, 10")
    e(f"  s_add_u32 s44, s44, {WS_GU}")
    e("  buffer_store_dwordx4 v[4:7], v2, s[40:43], s44 offen")
    lab("k2_nomark")
    e("  v_mul_u32_u24 v3, 28672, v0")
    e("  s_mul_i32 s44, s2, 112")
    e(f"  s_add_u32 s44, s44, {WS_WDB}")
    e("  s_waitcnt vmcnt(0)")
    for q in range(7):
        e(f"  buffer_store_dwordx4 {vr(8+4*q,4)}, v3, s[40:43], s44 offen offset:{16*q}")
    e("  s_branch k2_done")
    lab("k2_loader")
    e("  s_sub_u32 s15, s15, 4")
    for ii in range(4):
        e(f"  s_lshl_b32 s24, s15, 5")
        e(f"  s_add_u32 s24, s24, {8*ii}")
        e(f"  v_add_u32 v10, s24, v2")
        e(f"  v_lshrrev_b32 v11, 1, v10")
        e(f"  v_and_b32 v11, 7, v11")
        e(f"  v_xor_b32 v11, v11, v3")
        e(f"  s_lshl_b32 s24, s12, 7")
        e(f"  v_add_u32 v10, s24, v10")
        e(f"  v_lshlrev_b32 v10, 12, v10")
        e(f"  v_lshl_add_u32 v{4+ii}, v11, 4, v10")
    e("  s_lshl_b32 s24, s15, 11")
    e("  v_lshlrev_b32 v8, 4, v0")
    e("  v_add_u32 v8, s24, v8")
    e("  v_add_u32 v9, 1024, v8")
    e("  s_mov_b32 s25, 0")
    e("  s_lshl_b32 s26, s14, 3")
    e("  s_add_u32 s26, s26, s13")
    e("  s_lshl_b32 s26, s26, 18")
    e("  s_lshl_b32 s27, s15, 12")
    e("  s_lshl_b32 s28, s15, 11")
    e(f"  s_add_u32 s28, s28, {YBASE}")
    def dma(slot):
        for i in range(2):
            e(f"  s_add_u32 m0, s28, {slot*8192 + i*1024}")
            e("  s_nop 0")
            e(f"  buffer_load_dwordx4 v{8+i}, s[20:23], s26 offen lds")
        for i in range(4):
            e(f"  s_add_u32 m0, s27, {slot*16384 + i*1024}")
            e("  s_nop 0")
            e(f"  buffer_load_dwordx4 v{4+i}, s[16:19], s25 offen lds")
        if OPT('K2_ROT', 4):
            e("  s_add_u32 s25, s25, 128")
            e("  s_and_b32 s25, s25, 4095")
            e("  s_lshl_b32 s29, s25, 6")
            e("  s_add_u32 s26, s33, s29")
        else:
            e("  s_add_u32 s25, s25, 128")
            e("  s_add_u32 s26, s26, 8192")
    if OPT('K2_ROT', 4):
        e("  s_mov_b32 s33, s26")
        e(f"  s_mul_i32 s25, s13, {128*OPT('K2_ROT', 4)}")
        e("  s_and_b32 s25, s25, 4095")
        e("  s_lshl_b32 s29, s25, 6")
        e("  s_add_u32 s26, s33, s29")
    for st in range(NS):
        dma(st)
    e(f"  s_waitcnt vmcnt({6*(NS-1)})")
    e("  s_barrier")
    for ks in range(31):
        ahead = min(ks + NS - 1, 31) - (ks + 1)
        e(f"  s_waitcnt vmcnt({6*ahead})")
        if not OPT('K2_NOBAR'): e("  s_barrier")
        if ks == 8: stamp(3)
        if ks == 16: stamp(4)
        if ks == 24: stamp(5)
        if ks + NS < 32:
            dma(ks % NS)
    e("  s_branch k2_done")
    lab("k2_consumer")
    e("  v_and_b32 v16, 31, v0")
    e("  v_lshrrev_b32 v17, 5, v0")
    e("  s_lshl_b32 s24, s15, 5")
    e("  v_add_u32 v18, s24, v16")
    e("  v_lshrrev_b32 v19, 1, v18")
    e("  v_and_b32 v19, 7, v19")
    e("  v_xor_b32 v19, v19, v17")
    e("  v_lshlrev_b32 v18, 7, v18")
    e("  v_lshl_add_u32 v20, v19, 4, v18")
    for kk in range(1, 4):
        e(f"  v_xor_b32 v{20+kk}, {32*kk}, v20")
    for kk in range(4):
        e(f"  v_add_u32 v{28+kk}, 0x10000, v{20+kk}")
    e("  v_lshrrev_b32 v19, 1, v16")
    e("  v_and_b32 v19, 7, v19")
    e("  v_xor_b32 v19, v19, v17")
    e("  v_lshlrev_b32 v18, 7, v16")
    e("  v_lshl_add_u32 v24, v19, 4, v18")
    e(f"  v_add_u32 v24, {YBASE}, v24")
    for kk in range(1, 4):
        e(f"  v_xor_b32 v{24+kk}, {32*kk}, v24")
    ACC = 32
    for i in range(32):
        e(f"  v_mov_b32 v{ACC+i}, 0")
    def FW(st): return 64 + 48 * (st % 2)
    def FY(st): return 80 + 48 * (st % 2)
    def rd(st, kk):
        slot = st % NS
        wb = 20 if slot < 4 else 28
        e(f"  ds_read_b128 {vr(FW(st)+4*kk,4)}, v{wb+kk} offset:{16384*(slot%4)}")
        e(f"  ds_read_b128 {vr(FY(st)+8*kk,4)}, v{24+kk} offset:{8192*slot}")
        e(f"  ds_read_b128 {vr(FY(st)+8*kk+4,4)}, v{24+kk} offset:{8192*slot+4096}")
    stamp(1)
    e("  s_barrier")
    stamp(2)
    for kk in range(4):
        rd(0, kk)
    def mf(st, kk, half):
        e(f"  v_mfma_f32_32x32x16_bf16 {vr(ACC+16*half,16)}, {vr(FY(st)+8*kk+4*half,4)}, {vr(FW(st)+4*kk,4)}, {vr(ACC+16*half,16)}")
    for ks in range(32):
        more = ks + 1 < 32
        e("  s_waitcnt lgkmcnt(0)")
        if more and not OPT('K2_NOBAR'):
            e("  s_barrier")
        if OPT('K2_NOBAR') == 2: continue
        r = (lambda kk: rd(ks + 1, kk)) if more else (lambda kk: None)
        mf(ks, 0, 0); r(0); mf(ks, 0, 1); r(1)
        mf(ks, 1, 0); r(2); mf(ks, 1, 1); r(3)
        mf(ks, 2, 0); mf(ks, 2, 1)
        mf(ks, 3, 0); mf(ks, 3, 1)
    stamp(6)
    e("  s_lshl_b32 s24, s14, 21")
    e(f"  s_add_u32 s24, s24, {WS_Y}")
    e("  s_lshl_b32 s30, s13, 7")
    e("  s_add_u32 s24, s24, s30")
    e("  s_lshl_b32 s30, s12, 7")
    e("  s_lshl_b32 s31, s15, 5")
    e("  s_add_u32 s30, s30, s31")
    e("  v_add_u32 v18, s30, v16")
    e("  v_lshlrev_b32 v18, 10, v18")
    e("  v_lshl_add_u32 v18, v17, 4, v18")
    e("  s_nop 7")
    P = 64
    for g in range(8):
        e(f"  v_cvt_pk_bf16_f32 v{P+2*g}, v{ACC+4*g}, v{ACC+4*g+1}")
        e(f"  v_cvt_pk_bf16_f32 v{P+2*g+1}, v{ACC+4*g+2}, v{ACC+4*g+3}")
    e("  s_nop 1")
    for p in range(4):
        e(f"  v_permlane32_swap_b32 v{P+4*p}, v{P+4*p+2}")
        e(f"  v_permlane32_swap_b32 v{P+4*p+1}, v{P+4*p+3}")
    for p in range(4):
        e(f"  buffer_store_dwordx4 {vr(P+4*p,4)}, v18, s[20:23], s24 offen offset:{32*p}")
    lab("k2_done")
    kernel_end()
    e("  s_endpgm")
    kernel_desc(name, 160)

def gen_t1():
    name = "t1_kernel"
    kernel_begin(name)
    e("  s_cmp_ge_u32 s2, 256")
    e("  s_cbranch_scc1 t1_done")
    e(f"  s_load_dwordx2 s[4:5], s[0:1], {KA_X}")
    e(f"  s_load_dwordx2 s[6:7], s[0:1], {KA_WS}")
    e(f"  s_load_dwordx2 s[8:9], s[0:1], {KA_WR}")
    e(f"  s_load_dwordx2 s[10:11], s[0:1], {KA_OUT}")
    if OPT('T1_PF', 1):
        e(f"  s_load_dwordx4 s[32:35], s[0:1], {KA_WG}")
        e("  v_lshrrev_b32 v1, 6, v0")
        e("  s_nop 0")
        e("  v_readfirstlane_b32 s3, v1")
        e("  s_cmp_lg_u32 s3, 2")
        e("  s_cbranch_scc1 t1_main")
        e("  s_waitcnt lgkmcnt(0)")
        srd(40, 32, 33, 512*1792*2)
        srd(44, 34, 35, 512*1792*2)
        e("  v_and_b32 v0, 63, v0")
        e("  s_and_b32 s52, s2, 7")
        e("  s_lshr_b32 s53, s2, 3")
        e("  v_min_u32 v1, 55, v0")
        e("  v_cmp_lt_u32 vcc, 27, v1")
        e("  v_cndmask_b32 v2, 0, 1, vcc")
        e("  v_mul_u32_u24 v3, 28, v2")
        e("  v_sub_u32 v3, v1, v3")
        e("  v_mul_u32_u24 v2, 3584, v2")
        e("  v_lshl_add_u32 v2, v3, 4, v2")
        e("  s_mul_i32 s54, s52, 448")
        e(f"  s_mul_i32 s55, s53, {16*3584}")
        e("  s_add_u32 s54, s54, s55")
        for q in range(8):
            e(f"  buffer_load_dwordx4 {vr(8+8*q,4)}, v2, s[40:43], s54 offen")
            e(f"  buffer_load_dwordx4 {vr(12+8*q,4)}, v2, s[44:47], s54 offen")
            e(f"  s_add_u32 s54, s54, {2*3584}")
        e("  s_branch t1_done")
        lab("t1_main")
    e("  v_lshrrev_b32 v1, 4, v0")
    e("  v_and_b32 v2, 15, v0")
    e("  s_lshl_b32 s3, s2, 3")
    e("  v_add_u32 v1, s3, v1")
    e("  v_lshlrev_b32 v3, 10, v1")
    e("  v_lshl_add_u32 v3, v2, 4, v3")
    e("  v_lshlrev_b32 v4, 4, v2")
    e("  s_waitcnt lgkmcnt(0)")
    srd(12, 4, 5, 2 << 20)
    srd(16, 6, 7, 9 << 20)
    srd(20, 8, 9, 1024)
    srd(24, 10, 11, 2 << 20)
    e(f"  s_mov_b32 s28, {WS_Y}")
    e(f"  s_mov_b32 s29, {WS_Y + (2<<20)}")
    YR, YI, XX, WR = 16, 32, 48, 64
    for j in range(4):
        e(f"  buffer_load_dwordx4 {vr(YR+4*j,4)}, v3, s[16:19], s28 offen offset:{256*j}")
        e(f"  buffer_load_dwordx4 {vr(YI+4*j,4)}, v3, s[16:19], s29 offen offset:{256*j}")
        e(f"  buffer_load_dwordx4 {vr(XX+4*j,4)}, v3, s[12:15], 0 offen offset:{256*j}")
    for j in range(4):
        e(f"  buffer_load_dwordx4 {vr(WR+4*j,4)}, v4, s[20:23], 0 offen offset:{256*j}")
    H = 80
    T = 112
    e("  v_mov_b32 v14, 0")
    e("  v_mov_b32 v15, 0")
    for j in range(4):
        e(f"  s_waitcnt vmcnt({4 + 3*(3-j)})")
        for q in range(4):
            i = 4*j + q
            e(f"  v_lshlrev_b32 v{T}, 16, v{YR+i}")
            e(f"  v_and_b32 v{T+1}, 0xffff0000, v{YR+i}")
            e(f"  v_lshlrev_b32 v{T+2}, 16, v{YI+i}")
            e(f"  v_and_b32 v{T+3}, 0xffff0000, v{YI+i}")
            e(f"  v_pk_add_f32 {vr(T,2)}, {vr(T,2)}, {vr(T+2,2)} neg_lo:[0,1] neg_hi:[0,1]")
            e(f"  v_cvt_pk_bf16_f32 v{T}, v{T}, v{T+1}")
            e(f"  v_and_b32 v{T+1}, 0xffff0000, v{T}")
            e(f"  v_lshlrev_b32 v{T}, 16, v{T}")
            e(f"  v_lshlrev_b32 v{T+2}, 16, v{XX+i}")
            e(f"  v_and_b32 v{T+3}, 0xffff0000, v{XX+i}")
            e(f"  v_pk_add_f32 {vr(T,2)}, {vr(T,2)}, {vr(T+2,2)}")
            e(f"  v_cvt_pk_bf16_f32 v{T}, v{T}, v{T+1}")
            e(f"  v_lshlrev_b32 v{H+2*i}, 16, v{T}")
            e(f"  v_and_b32 v{H+2*i+1}, 0xffff0000, v{T}")
            e(f"  v_pk_add_f32 v[14:15], v[14:15], {vr(H+2*i,2)}")
    e("  v_add_f32 v5, v14, v15")
    reduce16(5)
    e("  v_mul_f32 v5, 0x3b000000, v5")
    e("  v_cvt_pk_bf16_f32 v6, v5, v5")
    e("  v_lshlrev_b32 v6, 16, v6")
    e("  v_sub_f32 v8, 0, v6")
    e("  v_mov_b32 v9, v8")
    e("  v_mov_b32 v10, 0")
    e("  v_mov_b32 v11, 0")
    D = 116
    for i in range(16):
        e(f"  v_pk_add_f32 {vr(D+2*i,2)}, {vr(H+2*i,2)}, v[8:9]")
        e(f"  v_pk_fma_f32 v[10:11], {vr(D+2*i,2)}, {vr(D+2*i,2)}, v[10:11]")
    e("  v_add_f32 v10, v10, v11")
    reduce16(10)
    e("  v_sub_f32 v11, v5, v6")
    e("  v_mul_f32 v11, v11, v11")
    e("  v_mul_f32 v10, 0x3b000000, v10")
    e("  v_sub_f32 v10, v10, v11")
    e("  v_max_f32 v10, 0, v10")
    e("  v_cvt_pk_bf16_f32 v10, v10, v10")
    e("  v_lshlrev_b32 v10, 16, v10")
    e("  v_add_f32 v10, 0x3727c5ac, v10")
    e("  v_cvt_pk_bf16_f32 v10, v10, v10")
    e("  v_lshlrev_b32 v10, 16, v10")
    e("  v_sqrt_f32 v10, v10")
    e("  s_nop 0")
    e("  v_cvt_pk_bf16_f32 v10, v10, v10")
    e("  v_lshlrev_b32 v10, 16, v10")
    e("  v_rcp_f32 v10, v10")
    e("  s_nop 0")
    e("  v_mov_b32 v11, v10")
    e("  v_mov_b32 v12, 0")
    e("  s_waitcnt vmcnt(0)")
    O = 16
    for i in range(16):
        e(f"  v_cvt_pk_bf16_f32 v{T}, v{D+2*i}, v{D+2*i+1}")
        e(f"  v_lshlrev_b32 v{D+2*i}, 16, v{T}")
        e(f"  v_and_b32 v{D+2*i+1}, 0xffff0000, v{T}")
        e(f"  v_pk_mul_f32 {vr(D+2*i,2)}, {vr(D+2*i,2)}, v[10:11]")
        e(f"  v_cvt_pk_bf16_f32 v{T}, v{D+2*i}, v{D+2*i+1}")
        e(f"  v_dot2_f32_bf16 v12, v{T}, v{WR+i}, v12")
        e(f"  v_lshlrev_b32 v{D+2*i}, 16, v{T}")
        e(f"  v_and_b32 v{D+2*i+1}, 0xffff0000, v{T}")
        e(f"  v_pk_add_f32 {vr(D+2*i,2)}, {vr(D+2*i,2)}, {vr(H+2*i,2)}")
        e(f"  v_cvt_pk_bf16_f32 v{O+i}, v{D+2*i}, v{D+2*i+1}")
    for j in range(4):
        e(f"  buffer_store_dwordx4 {vr(O+4*j,4)}, v3, s[24:27], 0 offen offset:{256*j}")
    e("  s_nop 3")
    reduce16(12)
    e("  v_cvt_pk_bf16_f32 v12, v12, v12")
    e("  v_lshlrev_b32 v12, 16, v12")
    e("  v_ashrrev_i32 v13, 31, v12")
    e("  v_or_b32 v13, 0x80000000, v13")
    e("  v_xor_b32 v12, v12, v13")
    e("  v_and_b32 v12, 0xffff0000, v12")
    e("  v_sub_u32 v13, 0xffff, v1")
    e("  v_or_b32 v12, v12, v13")
    e("  v_cmp_eq_u32 vcc, 0, v2")
    e("  s_and_saveexec_b64 s[30:31], vcc")
    e("  v_lshlrev_b32 v13, 2, v1")
    e(f"  s_mov_b32 s28, {WS_KEY}")
    e("  buffer_store_dword v12, v13, s[16:19], s28 offen")
    e("  v_lshlrev_b32 v13, 3, v1")
    e("  v_mov_b32 v7, v10")
    e(f"  s_mov_b32 s28, {WS_STAT}")
    e("  buffer_store_dwordx2 v[6:7], v13, s[16:19], s28 offen")
    lab("t1_done")
    kernel_end()
    e("  s_endpgm")
    kernel_desc(name, 148)

def recompute(YR, YI, XX, nd, NEGM, RINV, HOUT, XNOUT, T):
    for i in range(nd):
        e(f"  v_lshlrev_b32 v{T}, 16, v{YR+i}")
        e(f"  v_and_b32 v{T+1}, 0xffff0000, v{YR+i}")
        e(f"  v_lshlrev_b32 v{T+2}, 16, v{YI+i}")
        e(f"  v_and_b32 v{T+3}, 0xffff0000, v{YI+i}")
        e(f"  v_pk_add_f32 {vr(T,2)}, {vr(T,2)}, {vr(T+2,2)} neg_lo:[0,1] neg_hi:[0,1]")
        e(f"  v_cvt_pk_bf16_f32 v{T}, v{T}, v{T+1}")
        e(f"  v_and_b32 v{T+1}, 0xffff0000, v{T}")
        e(f"  v_lshlrev_b32 v{T}, 16, v{T}")
        e(f"  v_lshlrev_b32 v{T+2}, 16, v{XX+i}")
        e(f"  v_and_b32 v{T+3}, 0xffff0000, v{XX+i}")
        e(f"  v_pk_add_f32 {vr(T,2)}, {vr(T,2)}, {vr(T+2,2)}")
        e(f"  v_cvt_pk_bf16_f32 v{T}, v{T}, v{T+1}")
        e(f"  v_lshlrev_b32 v{HOUT+2*i}, 16, v{T}")
        e(f"  v_and_b32 v{HOUT+2*i+1}, 0xffff0000, v{T}")
        e(f"  v_pk_add_f32 {vr(T,2)}, {vr(HOUT+2*i,2)}, {vr(NEGM,2)}")
        e(f"  v_cvt_pk_bf16_f32 v{T}, v{T}, v{T+1}")
        e(f"  v_and_b32 v{T+1}, 0xffff0000, v{T}")
        e(f"  v_lshlrev_b32 v{T}, 16, v{T}")
        e(f"  v_pk_mul_f32 {vr(T,2)}, {vr(T,2)}, {vr(RINV,2)}")
        e(f"  v_cvt_pk_bf16_f32 v{XNOUT+i}, v{T}, v{T+1}")

XS_STRIDE = 1040
def gen_t2():
    name = "t2_kernel"
    kernel_begin(name)
    LDS_G, LDS_U, LDS_XS, LDS_C = 0, 8192, 16384, 16384 + 8*XS_STRIDE
    e("  s_cmp_ge_u32 s2, 224")
    e("  s_cbranch_scc1 t2_done")
    e(f"  s_load_dwordx2 s[4:5], s[0:1], {KA_X}")
    e(f"  s_load_dwordx2 s[6:7], s[0:1], {KA_WS}")
    e(f"  s_load_dwordx4 s[8:11], s[0:1], {KA_WG}")
    e("  s_and_b32 s3, s2, 7")
    e("  s_mul_i32 s3, s3, 28")
    e("  s_lshr_b32 s12, s2, 3")
    e("  s_add_u32 s3, s3, s12")
    e("  v_mov_b32 v40, v0")
    e("  v_lshrrev_b32 v1, 6, v0")
    e("  v_and_b32 v0, 63, v0")
    e("  v_readfirstlane_b32 s13, v1")
    e("  s_waitcnt lgkmcnt(0)")
    srd(16, 4, 5, 2 << 20)
    srd(20, 6, 7, 9 << 20)
    srd(24, 8, 9, 512*1792*2)
    srd(28, 10, 11, 512*1792*2)
    e("  v_lshlrev_b32 v2, 5, v40")
    e(f"  s_mov_b32 s14, {WS_KEY}")
    e("  buffer_load_dwordx4 v[8:11], v2, s[20:23], s14 offen")
    e("  buffer_load_dwordx4 v[12:15], v2, s[20:23], s14 offen offset:16")
    e("  s_lshl_b32 s15, s3, 4")
    e("  s_movk_i32 s32, 3584")
    for ii in range(2):
        e(f"  s_lshl_b32 s33, s13, 7")
        e(f"  s_add_u32 s33, s33, {64*ii}")
        e(f"  v_add_u32 v3, s33, v0")
        e(f"  v_mul_lo_u32 v3, v3, s32")
        e(f"  s_lshl_b32 s34, s13, 11")
        e(f"  s_add_u32 m0, s34, {LDS_G + 1024*ii}")
        e("  s_nop 0")
        e(f"  buffer_load_dwordx4 v3, s[24:27], s15 offen lds")
        e(f"  s_add_u32 m0, s34, {LDS_U + 1024*ii}")
        e("  s_nop 0")
        e(f"  buffer_load_dwordx4 v3, s[28:31], s15 offen lds")
    stamp(1)
    e("  s_waitcnt vmcnt(4)")
    stamp(2)
    e("  v_mov_b32 v20, 0")
    for rnd in range(8):
        e("  v_max3_u32 v16, v8, v9, v10")
        e("  v_max3_u32 v17, v11, v12, v13")
        e("  v_max3_u32 v16, v16, v14, v15")
        e("  v_max_u32 v16, v16, v17")
        e("  s_nop 1")
        e("  v_max_u32_dpp v16, v16, v16 quad_perm:[1,0,3,2] row_mask:0xf bank_mask:0xf")
        e("  s_nop 1")
        e("  v_max_u32_dpp v16, v16, v16 quad_perm:[2,3,0,1] row_mask:0xf bank_mask:0xf")
        e("  s_nop 1")
        e("  v_max_u32_dpp v16, v16, v16 row_half_mirror row_mask:0xf bank_mask:0xf")
        e("  s_nop 1")
        e("  v_max_u32_dpp v16, v16, v16 row_mirror row_mask:0xf bank_mask:0xf")
        e("  s_nop 1")
        e("  v_readlane_b32 s36, v16, 0")
        e("  v_readlane_b32 s37, v16, 16")
        e("  v_readlane_b32 s38, v16, 32")
        e("  v_readlane_b32 s39, v16, 48")
        e("  s_max_u32 s36, s36, s37")
        e("  s_max_u32 s38, s38, s39")
        e("  s_max_u32 s36, s36, s38")
        e(f"  v_writelane_b32 v20, s36, {rnd}")
        if rnd < 7:
            for k in range(8):
                e(f"  v_cmp_ne_u32 vcc, s36, v{8+k}")
                e("  s_nop 1")
                e(f"  v_cndmask_b32 v{8+k}, 0, v{8+k}, vcc")
    e("  s_lshl_b32 s33, s13, 5")
    e(f"  s_add_u32 s33, s33, {LDS_C}")
    e("  v_lshlrev_b32 v3, 2, v0")
    e("  v_add_u32 v3, s33, v3")
    e("  v_cmp_gt_u32 vcc, 8, v0")
    e("  s_and_saveexec_b64 s[40:41], vcc")
    e("  ds_write_b32 v3, v20")
    e("  s_mov_b64 exec, s[40:41]")
    e("  s_waitcnt lgkmcnt(0)")
    e("  s_barrier")
    e("  v_and_b32 v3, 31, v0")
    e("  v_lshlrev_b32 v3, 2, v3")
    e(f"  ds_read_b32 v21, v3 offset:{LDS_C}")
    e("  v_mov_b32 v22, 0")
    e("  s_waitcnt lgkmcnt(0)")
    for i in range(32):
        e(f"  v_readlane_b32 s36, v21, {i}")
        e("  s_nop 1")
        e("  v_cmp_gt_u32 vcc, s36, v21")
        e("  s_nop 1")
        e("  v_addc_co_u32 v22, vcc, 0, v22, vcc")
    e("  v_cmp_gt_u32 vcc, 8, v22")
    e("  v_cmp_gt_u32 s[42:43], 32, v0")
    e("  s_and_b64 vcc, vcc, s[42:43]")
    e("  v_lshlrev_b32 v3, 2, v22")
    e("  s_and_saveexec_b64 s[40:41], vcc")
    e(f"  ds_write_b32 v3, v21 offset:{LDS_C+128}")
    e("  s_mov_b64 exec, s[40:41]")
    e("  s_waitcnt lgkmcnt(0)")
    e("  s_barrier")
    stamp(3)
    e("  v_lshrrev_b32 v4, 5, v40")
    e("  v_and_b32 v5, 31, v40")
    e("  v_lshlrev_b32 v3, 2, v4")
    e(f"  ds_read_b32 v6, v3 offset:{LDS_C+128}")
    e("  s_waitcnt lgkmcnt(0)")
    e("  s_cmp_lg_u32 s3, 0")
    e("  s_cbranch_scc1 t2_nopub")
    e("  v_cmp_eq_u32 vcc, 0, v5")
    e("  s_and_saveexec_b64 s[40:41], vcc")
    e(f"  s_mov_b32 s14, {WS_IDX}")
    e("  buffer_store_dword v6, v3, s[20:23], s14 offen")
    e("  s_mov_b64 exec, s[40:41]")
    lab("t2_nopub")
    e("  v_and_b32 v6, 0xffff, v6")
    e("  v_sub_u32 v6, 0xffff, v6")
    e("  v_lshlrev_b32 v7, 10, v6")
    e("  v_lshl_add_u32 v7, v5, 4, v7")
    e(f"  s_mov_b32 s14, {WS_Y}")
    e(f"  s_mov_b32 s15, {WS_Y + (2<<20)}")
    YR, YI, XX = 24, 32, 44
    for j in range(2):
        e(f"  buffer_load_dwordx4 {vr(YR+4*j,4)}, v7, s[20:23], s14 offen offset:{512*j}")
        e(f"  buffer_load_dwordx4 {vr(YI+4*j,4)}, v7, s[20:23], s15 offen offset:{512*j}")
        e(f"  buffer_load_dwordx4 {vr(XX+4*j,4)}, v7, s[16:19], 0 offen offset:{512*j}")
    e("  v_lshlrev_b32 v3, 3, v6")
    e(f"  s_mov_b32 s14, {WS_STAT}")
    e("  buffer_load_dwordx2 v[52:53], v3, s[20:23], s14 offen")
    e("  s_waitcnt vmcnt(0)")
    stamp(4)
    e("  v_sub_f32 v54, 0, v52")
    e("  v_mov_b32 v55, v54")
    e("  v_mov_b32 v52, v53")
    recompute(YR, YI, XX, 8, 54, 52, 64, 80, 56)
    e(f"  v_mul_u32_u24 v3, {XS_STRIDE}, v4")
    e("  v_lshl_add_u32 v3, v5, 4, v3")
    e(f"  ds_write_b128 v3, v[80:83] offset:{LDS_XS}")
    e(f"  ds_write_b128 v3, v[84:87] offset:{LDS_XS+512}")
    e("  s_waitcnt lgkmcnt(0)")
    e("  s_barrier")
    e("  s_cmp_lg_u32 s13, 0")
    e("  s_cbranch_scc1 t2_done")
    stamp(5)
    e("  v_and_b32 v3, 7, v0")
    e(f"  v_mul_u32_u24 v3, {XS_STRIDE}, v3")
    e("  v_lshrrev_b32 v4, 4, v0")
    e("  v_lshl_add_u32 v3, v4, 4, v3")
    e("  v_and_b32 v5, 15, v0")
    e("  v_lshrrev_b32 v5, 2, v5")
    e("  v_lshl_add_u32 v5, v4, 3, v5")
    e("  v_lshlrev_b32 v5, 4, v5")
    e("  v_and_b32 v6, 1, v0")
    e("  v_lshl_add_u32 v5, v6, 3, v5")
    e("  v_and_b32 v6, 2, v0")
    e("  v_lshl_add_u32 v5, v6, 12, v5")
    for i in range(4):
        e(f"  v_mov_b32 v{8+i}, 0")
    FA, FB = 64, 128
    for st in range(16):
        e(f"  ds_read_b128 {vr(FA+4*st,4)}, v3 offset:{LDS_XS + 64*st}")
        e(f"  ds_read_b64_tr_b16 {vr(FB+4*st,2)}, v5 offset:{512*st}")
        e(f"  ds_read_b64_tr_b16 {vr(FB+4*st+2,2)}, v5 offset:{512*st+64}")
        if st % 4 == 3:
            e("  s_waitcnt lgkmcnt(0)")
            for s2 in range(st-3, st+1):
                e(f"  v_mfma_f32_16x16x32_bf16 v[8:11], {vr(FA+4*s2,4)}, {vr(FB+4*s2,4)}, v[8:11]")
    e("  s_nop 15")
    for i in range(4):
        e(f"  v_cvt_pk_bf16_f32 v{8+i}, v{8+i}, v{8+i}")
        e(f"  v_lshlrev_b32 v{8+i}, 16, v{8+i}")
    e("  s_nop 1")
    for i in range(4):
        e(f"  v_mov_b32_dpp v{12+i}, v{8+i} row_ror:8 row_mask:0xf bank_mask:0xf")
    for i in range(4):
        e(f"  v_mul_f32 v16, 0xbfb8aa3b, v{8+i}")
        e("  v_exp_f32 v16, v16")
        e("  s_nop 0")
        e("  v_add_f32 v16, 1.0, v16")
        e("  v_rcp_f32 v16, v16")
        e("  s_nop 0")
        e(f"  v_mul_f32 v16, v{8+i}, v16")
        e("  v_cvt_pk_bf16_f32 v16, v16, v16")
        e("  v_lshlrev_b32 v16, 16, v16")
        e(f"  v_mul_f32 v16, v16, v{12+i}")
        e(f"  v_cvt_pk_bf16_f32 v{20+i}, v16, v16")
    stamp(6)
    e("  v_and_b32 v5, 15, v0")
    e("  v_cmp_gt_u32 vcc, 8, v5")
    e("  v_cmp_gt_u32 s[42:43], 32, v0")
    e("  s_and_b64 vcc, vcc, s[42:43]")
    e("  s_and_saveexec_b64 s[40:41], vcc")
    e("  v_lshlrev_b32 v4, 2, v4")
    e("  v_mul_u32_u24 v4, 3584, v4")
    e("  v_lshl_add_u32 v4, v5, 1, v4")
    e("  s_lshl_b32 s15, s3, 4")
    e(f"  s_add_u32 s15, s15, {WS_GU}")
    for i in range(4):
        e(f"  buffer_store_short v{20+i}, v4, s[20:23], s15 offen offset:{3584*i if 3584*i < 4096 else 0}") if False else None
    for i in range(4):
        e(f"  buffer_store_short v{20+i}, v4, s[20:23], s15 offen")
        if i < 3:
            e("  v_add_u32 v4, 3584, v4")
    lab("t2_done")
    kernel_end()
    e("  s_endpgm")
    kernel_desc(name, 192)

def gen_t3():
    name = "t3_kernel"
    kernel_begin(name)
    LDS_W, LDS_R = 0, 28672
    e("  s_cmp_ge_u32 s2, 64")
    e("  s_cbranch_scc1 t3_done")
    e(f"  s_load_dwordx2 s[4:5], s[0:1], {KA_X}")
    e(f"  s_load_dwordx2 s[6:7], s[0:1], {KA_WS}")
    e(f"  s_load_dwordx2 s[10:11], s[0:1], {KA_OUT}")
    e("  s_mov_b32 s3, s2")
    e("  v_lshrrev_b32 v1, 6, v0")
    e("  v_and_b32 v0, 63, v0")
    e("  v_readfirstlane_b32 s13, v1")
    e("  v_lshrrev_b32 v5, 4, v0")
    e("  s_waitcnt lgkmcnt(0)")
    srd(16, 4, 5, 2 << 20)
    srd(20, 6, 7, 12 << 20)
    srd(28, 10, 11, 2 << 20)
    e("  v_and_b32 v6, 1, v5")
    e("  v_lshlrev_b32 v6, 4, v6")
    e(f"  s_mov_b32 s14, {WS_IDX}")
    e("  buffer_load_dwordx4 v[24:27], v6, s[20:23], s14 offen")
    e("  s_lshl_b32 s15, s3, 4")
    e("  v_lshlrev_b32 v3, 4, v0")
    e("  s_mul_i32 s34, s13, 7168")
    e("  s_mul_i32 s33, s3, 28672")
    e("  s_add_u32 s33, s33, s34")
    e(f"  s_add_u32 s33, s33, {WS_WDB}")
    for i in range(7):
        e(f"  s_add_u32 m0, s34, {LDS_W + 1024*i}")
        e("  s_nop 0")
        e(f"  buffer_load_dwordx4 v3, s[20:23], s33 offen lds")
        e("  s_add_u32 s33, s33, 1024")
    e("  v_and_b32 v4, 7, v0")
    e("  v_mul_u32_u24 v4, 3584, v4")
    e("  v_lshl_add_u32 v4, v5, 4, v4")
    e("  s_mul_i32 s14, s13, 896")
    e(f"  s_add_u32 s14, s14, {WS_GU}")
    FA = 64
    for st in range(14):
        e(f"  buffer_load_dwordx4 {vr(FA+4*st,4)}, v4, s[20:23], s14 offen offset:{64*st}")
    for i in range(4):
        e(f"  v_mov_b32 v{28+i}, 0")
    e("  s_cmp_lg_u32 s13, 0")
    e("  s_cbranch_scc1 t3_noepi")
    e("  s_waitcnt vmcnt(21)")
    e("  v_and_b32 v6, 7, v0")
    e(f"  s_mov_b32 s36, {WS_Y}")
    e(f"  s_mov_b32 s37, {WS_Y + (2<<20)}")
    e(f"  s_mov_b32 s38, {WS_STAT}")
    for i in range(4):
        e(f"  v_and_b32 v{28+i}, 0xffff, v{24+i}")
        e(f"  v_sub_u32 v{28+i}, 0xffff, v{28+i}")
        e(f"  v_lshlrev_b32 v{32+i}, 3, v{28+i}")
        e(f"  v_lshlrev_b32 v{28+i}, 10, v{28+i}")
        e(f"  v_lshl_add_u32 v{28+i}, v6, 1, v{28+i}")
        e(f"  v_add_u32 v{28+i}, s15, v{28+i}")
        e(f"  buffer_load_ushort v{36+i}, v{28+i}, s[20:23], s36 offen")
        e(f"  buffer_load_ushort v{40+i}, v{28+i}, s[20:23], s37 offen")
        e(f"  buffer_load_ushort v{44+i}, v{28+i}, s[16:19], 0 offen")
        e(f"  buffer_load_dwordx2 {vr(48+2*i,2)}, v{32+i}, s[20:23], s38 offen")
    lab("t3_noepi")
    e("  v_and_b32 v7, 15, v0")
    e("  v_lshrrev_b32 v7, 2, v7")
    e("  v_lshl_add_u32 v7, v5, 3, v7")
    e("  v_lshlrev_b32 v7, 4, v7")
    e("  v_and_b32 v60, 1, v0")
    e("  v_lshl_add_u32 v7, v60, 3, v7")
    e("  v_add_u32 v7, s34, v7")
    for i in range(4):
        e(f"  v_mov_b32 v{8+i}, 0")
    stamp(1)
    e("  s_waitcnt vmcnt(0)")
    stamp(2)
    FB = 128
    for st in range(14):
        e(f"  ds_read_b64_tr_b16 {vr(FB+4*st,2)}, v7 offset:{512*st}")
        e(f"  ds_read_b64_tr_b16 {vr(FB+4*st+2,2)}, v7 offset:{512*st+64}")
    e("  s_waitcnt lgkmcnt(0)")
    for st in range(14):
        e(f"  v_mfma_f32_16x16x32_bf16 v[8:11], {vr(FA+4*st,4)}, {vr(FB+4*st,4)}, v[8:11]")
    e("  s_nop 15")
    stamp(3)
    e("  v_lshlrev_b32 v3, 4, v0")
    e("  s_lshl_b32 s33, s13, 10")
    e("  v_add_u32 v3, s33, v3")
    e(f"  ds_write_b128 v3, v[8:11] offset:{LDS_R}")
    e("  s_waitcnt lgkmcnt(0)")
    e("  s_barrier")
    e("  s_cmp_lg_u32 s13, 0")
    e("  s_cbranch_scc1 t3_done")
    e("  v_lshlrev_b32 v3, 4, v0")
    for w in range(1, 4):
        e(f"  ds_read_b128 {vr(12+4*(w-1),4)}, v3 offset:{LDS_R+1024*w}")
    stamp(4)
    e("  v_and_b32 v6, 15, v0")
    e("  v_cmp_gt_u32 vcc, 8, v6")
    e("  v_cmp_gt_u32 s[42:43], 32, v0")
    e("  s_and_b64 vcc, vcc, s[42:43]")
    e("  s_and_saveexec_b64 s[40:41], vcc")
    e("  s_waitcnt lgkmcnt(0)")
    for i in range(4):
        e(f"  v_add_f32 v{8+i}, v{8+i}, v{12+i}")
        e(f"  v_add_f32 v{16+i}, v{16+i}, v{20+i}")
        e(f"  v_add_f32 v{8+i}, v{8+i}, v{16+i}")
        e(f"  v_cvt_pk_bf16_f32 v{8+i}, v{8+i}, v{8+i}")
        e(f"  v_lshlrev_b32 v{8+i}, 16, v{8+i}")
        e(f"  v_and_b32 v60, 0xffff0000, v{24+i}")
        e("  v_ashrrev_i32 v61, 31, v60")
        e("  v_not_b32 v61, v61")
        e("  v_or_b32 v61, 0x80000000, v61")
        e("  v_xor_b32 v60, v60, v61")
        e("  v_and_b32 v60, 0xffff0000, v60")
        e("  v_mul_f32 v60, 0xbfb8aa3b, v60")
        e("  v_exp_f32 v60, v60")
        e("  s_nop 0")
        e("  v_add_f32 v60, 1.0, v60")
        e("  v_rcp_f32 v60, v60")
        e("  s_nop 0")
        e("  v_cvt_pk_bf16_f32 v60, v60, v60")
        e("  v_lshlrev_b32 v60, 16, v60")
        e(f"  v_mul_f32 v{8+i}, v{8+i}, v60")
        e(f"  v_cvt_pk_bf16_f32 v{8+i}, v{8+i}, v{8+i}")
        e(f"  v_lshlrev_b32 v{8+i}, 16, v{8+i}")
        e(f"  v_lshlrev_b32 v{36+i}, 16, v{36+i}")
        e(f"  v_lshlrev_b32 v{40+i}, 16, v{40+i}")
        e(f"  v_lshlrev_b32 v{44+i}, 16, v{44+i}")
        e(f"  v_sub_f32 v60, v{36+i}, v{40+i}")
        e("  v_cvt_pk_bf16_f32 v60, v60, v60")
        e("  v_lshlrev_b32 v60, 16, v60")
        e(f"  v_add_f32 v60, v{44+i}, v60")
        e("  v_cvt_pk_bf16_f32 v60, v60, v60")
        e("  v_lshlrev_b32 v60, 16, v60")
        e(f"  v_sub_f32 v61, v60, v{48+2*i}")
        e("  v_cvt_pk_bf16_f32 v61, v61, v61")
        e("  v_lshlrev_b32 v61, 16, v61")
        e(f"  v_mul_f32 v61, v61, v{49+2*i}")
        e("  v_cvt_pk_bf16_f32 v61, v61, v61")
        e("  v_lshlrev_b32 v61, 16, v61")
        e(f"  v_add_f32 v61, v61, v{8+i}")
        e("  v_cvt_pk_bf16_f32 v61, v61, v61")
        e("  v_lshlrev_b32 v61, 16, v61")
        e("  v_add_f32 v61, v60, v61")
        e("  v_cvt_pk_bf16_f32 v61, v61, v61")
        e(f"  buffer_store_short v61, v{28+i}, s[28:31], 0 offen")
    lab("t3_done")
    kernel_end()
    e("  s_endpgm")
    kernel_desc(name, 192)

SORT8 = [(0,1),(2,3),(4,5),(6,7),(0,2),(1,3),(4,6),(5,7),(1,2),(5,6),(0,4),(1,5),(2,6),(3,7),(2,4),(3,5),(1,2),(3,4),(5,6)]
def top8(keys, free, LDS_C):
    K = list(keys); F = list(free)
    for (i, j) in SORT8:
        hi, lo = F.pop(), F.pop()
        e(f"  v_max_u32 v{hi}, v{K[i]}, v{K[j]}")
        e(f"  v_min_u32 v{lo}, v{K[i]}, v{K[j]}")
        F.append(K[i]); F.append(K[j]); K[i] = hi; K[j] = lo
    t, coll = F.pop(), F.pop()
    e(f"  v_mov_b32 v{coll}, 0")
    pend = []
    def fill(n):
        for _ in range(n):
            if pend: e(pend.pop(0))
            else: e("  s_nop 0")
    for rnd in range(8):
        fill(2)
        e(f"  v_max_u32_dpp v{t}, v{K[0]}, v{K[0]} quad_perm:[1,0,3,2] row_mask:0xf bank_mask:0xf")
        fill(2)
        e(f"  v_max_u32_dpp v{t}, v{t}, v{t} quad_perm:[2,3,0,1] row_mask:0xf bank_mask:0xf")
        fill(2)
        e(f"  v_max_u32_dpp v{t}, v{t}, v{t} row_half_mirror row_mask:0xf bank_mask:0xf")
        fill(2)
        e(f"  v_max_u32_dpp v{t}, v{t}, v{t} row_mirror row_mask:0xf bank_mask:0xf")
        while pend: e(pend.pop(0))
        e("  s_nop 0")
        e(f"  v_readlane_b32 s36, v{t}, 0")
        e(f"  v_readlane_b32 s37, v{t}, 16")
        e(f"  v_readlane_b32 s38, v{t}, 32")
        e(f"  v_readlane_b32 s39, v{t}, 48")
        e("  s_max_u32 s36, s36, s37")
        e("  s_max_u32 s38, s38, s39")
        e("  s_max_u32 s36, s36, s38")
        e(f"  v_writelane_b32 v{coll}, s36, {rnd}")
        if rnd < 7:
            e(f"  v_cmp_eq_u32 vcc, s36, v{K[0]}")
            e("  s_nop 1")
            e(f"  v_cndmask_b32 v{K[0]}, v{K[0]}, v{K[1]}, vcc")
            for k in range(1, 7 - rnd):
                pend.append(f"  v_cndmask_b32 v{K[k]}, v{K[k]}, v{K[k+1]}, vcc")
    e("  s_lshl_b32 s33, s13, 5")
    e(f"  s_add_u32 s33, s33, {LDS_C}")
    e(f"  v_lshlrev_b32 v{t}, 2, v0")
    e(f"  v_add_u32 v{t}, s33, v{t}")
    e("  v_cmp_gt_u32 vcc, 8, v0")
    e("  s_and_saveexec_b64 s[40:41], vcc")
    e(f"  ds_write_b32 v{t}, v{coll}")
    e("  s_mov_b64 exec, s[40:41]")
    e("  s_waitcnt lgkmcnt(0)")
    e("  s_barrier")
    return t, coll

def gen_t4():
    name = "t4_kernel"
    kernel_begin(name)
    LDS_C, LDS_R, LDS_WD = 0, 256, 8704
    LDS_G, LDS_U, LDS_XS = 8704, 8704 + 8192, 8704 + 16384
    SPIN = 1 << 22
    e("  s_cmp_ge_u32 s2, 240")
    e("  s_cbranch_scc1 t4_done")
    e(f"  s_load_dwordx2 s[4:5], s[0:1], {KA_X}")
    e(f"  s_load_dwordx2 s[6:7], s[0:1], {KA_WS}")
    e(f"  s_load_dwordx4 s[8:11], s[0:1], {KA_WG}")
    e(f"  s_load_dwordx2 s[44:45], s[0:1], {KA_OUT}")
    e("  s_and_b32 s3, s2, 7")
    e("  s_mul_i32 s3, s3, 28")
    e("  s_lshr_b32 s12, s2, 3")
    e("  s_add_u32 s3, s3, s12")
    e("  v_mov_b32 v40, v0")
    e("  v_lshrrev_b32 v1, 6, v0")
    e("  v_and_b32 v0, 63, v0")
    e("  v_readfirstlane_b32 s13, v1")
    e("  s_waitcnt lgkmcnt(0)")
    srd(16, 4, 5, 2 << 20)
    srd(20, 6, 7, 12 << 20)
    srd(24, 8, 9, 512*1792*2)
    srd(28, 10, 11, 512*1792*2)
    srd(48, 44, 45, 2 << 20)
    e("  v_lshlrev_b32 v2, 5, v40")
    e(f"  s_mov_b32 s14, {WS_KEY}")
    e("  buffer_load_dwordx4 v[8:11], v2, s[20:23], s14 offen")
    e("  buffer_load_dwordx4 v[12:15], v2, s[20:23], s14 offen offset:16")
    e("  s_cmp_ge_u32 s2, 224")
    e("  s_cbranch_scc1 t4_dma2")
    e("  s_lshl_b32 s15, s3, 4")
    e("  s_movk_i32 s32, 3584")
    for ii in range(2):
        e(f"  s_lshl_b32 s33, s13, 7")
        e(f"  s_add_u32 s33, s33, {64*ii}")
        e(f"  v_add_u32 v3, s33, v0")
        e(f"  v_mul_lo_u32 v3, v3, s32")
        e(f"  s_lshl_b32 s34, s13, 11")
        e(f"  s_add_u32 m0, s34, {LDS_G + 1024*ii}")
        e("  s_nop 0")
        e(f"  buffer_load_dwordx4 v3, s[24:27], s15 offen lds")
        e(f"  s_add_u32 m0, s34, {LDS_U + 1024*ii}")
        e("  s_nop 0")
        e(f"  buffer_load_dwordx4 v3, s[28:31], s15 offen lds")
    e("  s_waitcnt vmcnt(4)")
    e("  s_branch t4_top")
    lab("t4_dma2")
    e("  s_sub_u32 s46, s2, 224")
    e("  v_lshlrev_b32 v3, 4, v0")
    e("  s_mul_i32 s34, s13, 7168")
    e(f"  s_mul_i32 s33, s46, {4*28672}")
    e("  s_add_u32 s33, s33, s34")
    e(f"  s_add_u32 s33, s33, {WS_WDB}")
    for dsl in range(4):
        for i in range(7):
            e(f"  s_add_u32 m0, s34, {LDS_WD + dsl*28672 + 1024*i}")
            e("  s_nop 0")
            e(f"  buffer_load_dwordx4 v3, s[20:23], s33 offen lds")
            e(f"  s_add_u32 s33, s33, {1024 if i < 6 else 28672 - 6*1024}")
    e("  s_waitcnt vmcnt(28)")
    lab("t4_top")
    stamp(1)
    t, coll = top8(range(8, 16), range(16, 24), LDS_C)
    e("  v_and_b32 v3, 31, v0")
    e("  v_lshlrev_b32 v3, 2, v3")
    e(f"  ds_read_b32 v24, v3 offset:{LDS_C}")
    e("  v_mov_b32 v4, 0")
    for q in range(8):
        e(f"  ds_read_b128 {vr(56+4*q,4)}, v4 offset:{LDS_C+16*q}")
    e("  v_mov_b32 v25, 0")
    e("  s_waitcnt lgkmcnt(0)")
    sp = [60, 62, 64, 66]
    for i in range(32 + 3):
        if i < 32:
            e(f"  v_cmp_gt_u32 s[{sp[i%4]}:{sp[i%4]+1}], v{56+i}, v24")
        if i >= 3:
            j = i - 3
            e(f"  v_addc_co_u32 v25, vcc, 0, v25, s[{sp[j%4]}:{sp[j%4]+1}]")
    e("  v_cmp_gt_u32 vcc, 8, v25")
    e("  v_cmp_gt_u32 s[42:43], 32, v0")
    e("  s_and_b64 vcc, vcc, s[42:43]")
    e("  v_lshlrev_b32 v3, 2, v25")
    e("  s_and_saveexec_b64 s[40:41], vcc")
    e(f"  ds_write_b32 v3, v24 offset:{LDS_C+128}")
    e("  s_mov_b64 exec, s[40:41]")
    e("  s_waitcnt lgkmcnt(0)")
    e("  s_barrier")
    stamp(2)
    e("  s_cmp_ge_u32 s2, 224")
    e("  s_cbranch_scc1 t4_f2")
    e("  v_lshrrev_b32 v4, 5, v40")
    e("  v_and_b32 v5, 31, v40")
    e("  v_lshlrev_b32 v3, 2, v4")
    e(f"  ds_read_b32 v6, v3 offset:{LDS_C+128}")
    e("  s_waitcnt lgkmcnt(0)")
    e("  v_and_b32 v6, 0xffff, v6")
    e("  v_sub_u32 v6, 0xffff, v6")
    e("  v_lshlrev_b32 v7, 10, v6")
    e("  v_lshl_add_u32 v7, v5, 4, v7")
    e(f"  s_mov_b32 s14, {WS_Y}")
    e(f"  s_mov_b32 s15, {WS_Y + (2<<20)}")
    YR, YI, XX = 24, 32, 44
    for j in range(2):
        e(f"  buffer_load_dwordx4 {vr(YR+4*j,4)}, v7, s[20:23], s14 offen offset:{512*j}")
        e(f"  buffer_load_dwordx4 {vr(YI+4*j,4)}, v7, s[20:23], s15 offen offset:{512*j}")
        e(f"  buffer_load_dwordx4 {vr(XX+4*j,4)}, v7, s[16:19], 0 offen offset:{512*j}")
    e("  v_lshlrev_b32 v3, 3, v6")
    e(f"  s_mov_b32 s14, {WS_STAT}")
    e("  buffer_load_dwordx2 v[52:53], v3, s[20:23], s14 offen")
    e("  s_waitcnt vmcnt(0)")
    stamp(3)
    e("  v_sub_f32 v54, 0, v52")
    e("  v_mov_b32 v55, v54")
    e("  v_mov_b32 v52, v53")
    recompute(YR, YI, XX, 8, 54, 52, 64, 80, 56)
    e(f"  v_mul_u32_u24 v3, {XS_STRIDE}, v4")
    e("  v_lshl_add_u32 v3, v5, 4, v3")
    e(f"  ds_write_b128 v3, v[80:83] offset:{LDS_XS}")
    e(f"  ds_write_b128 v3, v[84:87] offset:{LDS_XS+512}")
    e("  s_waitcnt lgkmcnt(0)")
    e("  s_barrier")
    e("  s_cmp_lg_u32 s13, 0")
    e("  s_cbranch_scc1 t4_done")
    e("  v_and_b32 v3, 7, v0")
    e(f"  v_mul_u32_u24 v3, {XS_STRIDE}, v3")
    e("  v_lshrrev_b32 v4, 4, v0")
    e("  v_lshl_add_u32 v3, v4, 4, v3")
    e("  v_and_b32 v5, 15, v0")
    e("  v_lshrrev_b32 v5, 2, v5")
    e("  v_lshl_add_u32 v5, v4, 3, v5")
    e("  v_lshlrev_b32 v5, 4, v5")
    e("  v_and_b32 v6, 1, v0")
    e("  v_lshl_add_u32 v5, v6, 3, v5")
    e("  v_and_b32 v6, 2, v0")
    e("  v_lshl_add_u32 v5, v6, 12, v5")
    for i in range(4):
        e(f"  v_mov_b32 v{8+i}, 0")
    FA, FB = 64, 128
    for st in range(16):
        e(f"  ds_read_b128 {vr(FA+4*st,4)}, v3 offset:{LDS_XS + 64*st}")
        e(f"  ds_read_b64_tr_b16 {vr(FB+4*st,2)}, v5 offset:{LDS_G+512*st}")
        e(f"  ds_read_b64_tr_b16 {vr(FB+4*st+2,2)}, v5 offset:{LDS_G+512*st+64}")
        if st % 4 == 3:
            e("  s_waitcnt lgkmcnt(0)")
            for s2 in range(st-3, st+1):
                e(f"  v_mfma_f32_16x16x32_bf16 v[8:11], {vr(FA+4*s2,4)}, {vr(FB+4*s2,4)}, v[8:11]")
    e("  s_nop 15")
    for i in range(4):
        e(f"  v_cvt_pk_bf16_f32 v{8+i}, v{8+i}, v{8+i}")
        e(f"  v_lshlrev_b32 v{8+i}, 16, v{8+i}")
    e("  s_nop 1")
    for i in range(4):
        e(f"  v_mov_b32_dpp v{12+i}, v{8+i} row_ror:8 row_mask:0xf bank_mask:0xf")
    for i in range(4):
        e(f"  v_mul_f32 v16, 0xbfb8aa3b, v{8+i}")
        e("  v_exp_f32 v16, v16")
        e("  s_nop 0")
        e("  v_add_f32 v16, 1.0, v16")
        e("  v_rcp_f32 v16, v16")
        e("  s_nop 0")
        e(f"  v_mul_f32 v16, v{8+i}, v16")
        e("  v_cvt_pk_bf16_f32 v16, v16, v16")
        e("  v_lshlrev_b32 v16, 16, v16")
        e(f"  v_mul_f32 v16, v16, v{12+i}")
        e(f"  v_cvt_pk_bf16_f32 v{20+i}, v16, v16")
    e("  s_nop 1")
    for i in range(4):
        e(f"  v_mov_b32_dpp v{24+i}, v{20+i} quad_perm:[1,0,3,2] row_mask:0xf bank_mask:0xf")
    for i in range(4):
        e(f"  v_and_b32 v{20+i}, 0xffff, v{20+i}")
        e(f"  v_and_b32 v{24+i}, 0xffff0000, v{24+i}")
        e(f"  v_or_b32 v{20+i}, v{20+i}, v{24+i}")
    for i in range(4):
        e(f"  v_min_u32 v{20+i}, 0xfffeffff, v{20+i}")
    stamp(4)
    e("  v_and_b32 v5, 15, v0")
    e("  v_lshlrev_b32 v4, 6, v4")
    e("  v_lshl_add_u32 v4, v5, 1, v4")
    e("  v_lshlrev_b32 v7, 4, v0")
    e("  v_and_b32 v6, 9, v0")
    e("  v_cmp_eq_u32 vcc, 0, v6")
    e("  v_cmp_gt_u32 s[42:43], 32, v0")
    e("  s_and_b64 vcc, vcc, s[42:43]")
    e("  s_and_saveexec_b64 s[40:41], vcc")
    for i in range(4):
        e(f"  ds_write_b32 v4, v{20+i} offset:{LDS_R+16*i}")
    e("  s_mov_b64 exec, 0xff")
    e("  s_waitcnt lgkmcnt(0)")
    e(f"  ds_read_b128 v[24:27], v7 offset:{LDS_R}")
    e("  s_lshl_b32 s15, s3, 7")
    e(f"  s_add_u32 s15, s15, {WS_GU}")
    e("  s_waitcnt lgkmcnt(0)")
    e("  buffer_store_dwordx4 v[24:27], v7, s[20:23], s15 offen sc1")
    e("  s_branch t4_done")
    lab("t4_f2")
    e("  v_lshrrev_b32 v5, 4, v0")
    e("  v_and_b32 v6, 1, v5")
    e("  v_lshlrev_b32 v6, 4, v6")
    e(f"  ds_read_b128 v[24:27], v6 offset:{LDS_C+128}")
    e("  v_and_b32 v6, 15, v0")
    e("  s_lshl_b32 s15, s46, 6")
    e("  s_waitcnt lgkmcnt(0)")
    for i in range(4):
        e(f"  v_and_b32 v{28+i}, 0xffff, v{24+i}")
        e(f"  v_sub_u32 v{28+i}, 0xffff, v{28+i}")
        e(f"  v_lshlrev_b32 v{32+i}, 3, v{28+i}")
        e(f"  v_lshlrev_b32 v{28+i}, 10, v{28+i}")
        e(f"  v_lshl_add_u32 v{28+i}, v6, 1, v{28+i}")
        e(f"  v_add_u32 v{28+i}, s15, v{28+i}")
    e("  s_cmp_lg_u32 s13, 0")
    e("  s_cbranch_scc1 t4_noepi")
    e(f"  s_mov_b32 s36, {WS_Y}")
    e(f"  s_mov_b32 s37, {WS_Y + (2<<20)}")
    e(f"  s_mov_b32 s38, {WS_STAT}")
    for a in range(2):
        for i in range(4):
            e(f"  buffer_load_ushort v{192+12*a+i}, v{28+i}, s[20:23], s36 offen offset:{32*a}")
            e(f"  buffer_load_ushort v{196+12*a+i}, v{28+i}, s[20:23], s37 offen offset:{32*a}")
            e(f"  buffer_load_ushort v{200+12*a+i}, v{28+i}, s[16:19], 0 offen offset:{32*a}")
    for i in range(4):
        e(f"  buffer_load_dwordx2 {vr(48+2*i,2)}, v{32+i}, s[20:23], s38 offen")
    lab("t4_noepi")
    e("  v_lshrrev_b32 v7, 2, v6")
    e("  v_lshl_add_u32 v7, v5, 3, v7")
    e("  v_lshlrev_b32 v7, 4, v7")
    e("  v_and_b32 v60, 1, v0")
    e("  v_lshl_add_u32 v7, v60, 3, v7")
    e("  v_and_b32 v60, 2, v0")
    e("  v_mul_u32_u24 v60, 14336, v60")
    e("  v_add_u32 v7, v60, v7")
    e("  v_add_u32 v7, s34, v7")
    e(f"  v_add_u32 v61, {2*28672}, v7")
    e("  s_waitcnt vmcnt(0)")
    FB0, FB1 = 72, 128
    for st in range(14):
        e(f"  ds_read_b64_tr_b16 {vr(FB0+4*st,2)}, v7 offset:{LDS_WD+512*st}")
        e(f"  ds_read_b64_tr_b16 {vr(FB0+4*st+2,2)}, v7 offset:{LDS_WD+512*st+64}")
        e(f"  ds_read_b64_tr_b16 {vr(FB1+4*st,2)}, v61 offset:{LDS_WD+512*st}")
        e(f"  ds_read_b64_tr_b16 {vr(FB1+4*st+2,2)}, v61 offset:{LDS_WD+512*st+64}")
        if st % 3 == 2: e("  s_waitcnt lgkmcnt(0)")
    for i in range(8):
        e(f"  v_mov_b32 v{8+i}, 0")
    for i in range(4):
        e(f"  v_and_b32 v60, 0xffff0000, v{24+i}")
        e("  v_ashrrev_i32 v62, 31, v60")
        e("  v_not_b32 v62, v62")
        e("  v_or_b32 v62, 0x80000000, v62")
        e("  v_xor_b32 v60, v60, v62")
        e("  v_and_b32 v60, 0xffff0000, v60")
        e("  v_mul_f32 v60, 0xbfb8aa3b, v60")
        e("  v_exp_f32 v60, v60")
        e("  s_nop 0")
        e("  v_add_f32 v60, 1.0, v60")
        e("  v_rcp_f32 v60, v60")
        e("  s_nop 0")
        e("  v_cvt_pk_bf16_f32 v60, v60, v60")
        e(f"  v_lshlrev_b32 v{24+i}, 16, v60")
    for a in range(2):
        for i in range(4):
            r0, r1, r2 = 192+12*a+i, 196+12*a+i, 200+12*a+i
            e(f"  v_lshlrev_b32 v{r0}, 16, v{r0}")
            e(f"  v_lshlrev_b32 v{r1}, 16, v{r1}")
            e(f"  v_lshlrev_b32 v{r2}, 16, v{r2}")
            e(f"  v_sub_f32 v60, v{r0}, v{r1}")
            e("  v_cvt_pk_bf16_f32 v60, v60, v60")
            e("  v_lshlrev_b32 v60, 16, v60")
            e(f"  v_add_f32 v60, v{r2}, v60")
            e("  v_cvt_pk_bf16_f32 v60, v60, v60")
            e(f"  v_lshlrev_b32 v{r0}, 16, v60")
            e(f"  v_sub_f32 v62, v{r0}, v{48+2*i}")
            e("  v_cvt_pk_bf16_f32 v62, v62, v62")
            e("  v_lshlrev_b32 v62, 16, v62")
            e(f"  v_mul_f32 v62, v62, v{49+2*i}")
            e("  v_cvt_pk_bf16_f32 v62, v62, v62")
            e(f"  v_lshlrev_b32 v{r1}, 16, v62")
    stamp(3)
    e("  v_and_b32 v4, 7, v0")
    e("  v_lshlrev_b32 v4, 4, v4")
    e("  v_lshl_add_u32 v4, v5, 7, v4")
    e("  s_mul_i32 s14, s13, 7168")
    e(f"  s_add_u32 s14, s14, {WS_GU}")
    regs = [216+4*i for i in range(9)] + [36, 40, 44, 56, 64]
    e("  v_add_u32 v62, 4096, v4")
    e("  s_mov_b32 s53, 0")
    lab("t4_poll")
    for st in range(14):
        e(f"  buffer_load_dwordx4 {vr(regs[st],4)}, v4, s[20:23], s14 offen offset:{512*st if st < 8 else 0} sc1") if st < 8 else e(f"  buffer_load_dwordx4 {vr(regs[st],4)}, v62, s[20:23], s14 offen offset:{512*(st-8)} sc1")
    e("  v_mov_b32 v3, 0")
    for st in range(14):
        e(f"  s_waitcnt vmcnt({13-st})")
        e(f"  v_max3_u32 v3, v3, v{regs[st]}, v{regs[st]+1}")
        e(f"  v_max3_u32 v3, v3, v{regs[st]+2}, v{regs[st]+3}")
    e("  v_cmp_eq_u32 s[54:55], -1, v3")
    e("  s_nop 3")
    e("  s_cmp_eq_u64 s[54:55], 0")
    e("  s_cbranch_scc1 t4_poll_ok")
    e("  s_add_u32 s53, s53, 1")
    e(f"  s_cmp_gt_u32 s53, {SPIN}")
    e("  s_cbranch_scc1 t4_poll_ok")
    e("  s_branch t4_poll")
    lab("t4_poll_ok")
    stamp(5)
    e("  s_waitcnt lgkmcnt(0)")
    for st in range(14):
        e(f"  v_mfma_f32_16x16x32_bf16 v[8:11], {vr(regs[st],4)}, {vr(FB0+4*st,4)}, v[8:11]")
        e(f"  v_mfma_f32_16x16x32_bf16 v[12:15], {vr(regs[st],4)}, {vr(FB1+4*st,4)}, v[12:15]")
    e("  s_nop 15")
    stamp(6)
    e("  v_lshlrev_b32 v3, 4, v0")
    e("  s_lshl_b32 s33, s13, 11")
    e("  v_add_u32 v3, s33, v3")
    e(f"  ds_write_b128 v3, v[8:11] offset:{LDS_R}")
    e(f"  ds_write_b128 v3, v[12:15] offset:{LDS_R+1024}")
    e("  s_waitcnt lgkmcnt(0)")
    e("  s_barrier")
    e("  s_cmp_lg_u32 s13, 0")
    e("  s_cbranch_scc1 t4_done")
    e("  v_lshlrev_b32 v3, 4, v0")
    for w in range(1, 4):
        for a in range(2):
            e(f"  ds_read_b128 {vr(72+8*(w-1)+4*a,4)}, v3 offset:{LDS_R+2048*w+1024*a}")
    e("  v_cmp_gt_u32 vcc, 32, v0")
    e("  s_and_saveexec_b64 s[40:41], vcc")
    e("  s_waitcnt lgkmcnt(0)")
    for a in range(2):
        for i in range(4):
            y = 8 + 4*a + i
            e(f"  v_add_f32 v{y}, v{y}, v{72+4*a+i}")
            e(f"  v_add_f32 v60, v{80+4*a+i}, v{88+4*a+i}")
            e(f"  v_add_f32 v{y}, v{y}, v60")
            e(f"  v_cvt_pk_bf16_f32 v{y}, v{y}, v{y}")
            e(f"  v_lshlrev_b32 v{y}, 16, v{y}")
            e(f"  v_mul_f32 v{y}, v{y}, v{24+i}")
            e(f"  v_cvt_pk_bf16_f32 v{y}, v{y}, v{y}")
            e(f"  v_lshlrev_b32 v{y}, 16, v{y}")
            e(f"  v_add_f32 v61, v{196+12*a+i}, v{y}")
            e("  v_cvt_pk_bf16_f32 v61, v61, v61")
            e("  v_lshlrev_b32 v61, 16, v61")
            e(f"  v_add_f32 v61, v{192+12*a+i}, v61")
            e("  v_cvt_pk_bf16_f32 v61, v61, v61")
            e(f"  buffer_store_short v61, v{28+i}, s[48:51], 0 offen offset:{32*a}")
    lab("t4_done")
    kernel_end()
    e("  s_endpgm")
    kernel_desc(name, 252)

def rowmac(first):
    YR, YI, XX, WR, H, T, D = 16, 32, 48, 64, 80, 112, 116
    O = 148
    e("  v_lshlrev_b32 v3, 10, v1")
    e("  v_lshl_add_u32 v3, v2, 4, v3")
    e(f"  s_mov_b32 s52, {WS_Y}")
    e(f"  s_mov_b32 s53, {WS_Y + (2<<20)}")
    for j in range(4):
        e(f"  buffer_load_dwordx4 {vr(YR+4*j,4)}, v3, s[24:27], s52 offen offset:{256*j}")
        e(f"  buffer_load_dwordx4 {vr(YI+4*j,4)}, v3, s[24:27], s53 offen offset:{256*j}")
        e(f"  buffer_load_dwordx4 {vr(XX+4*j,4)}, v3, s[20:23], 0 offen offset:{256*j}")
    nextra = 0
    if first:
        e("  v_lshlrev_b32 v4, 4, v2")
        for j in range(4):
            e(f"  buffer_load_dwordx4 {vr(WR+4*j,4)}, v4, s[28:31], 0 offen offset:{256*j}")
        nextra = 4
    e("  v_mov_b32 v14, 0")
    e("  v_mov_b32 v15, 0")
    for j in range(4):
        e(f"  s_waitcnt vmcnt({nextra + 3*(3-j)})")
        for q in range(4):
            i = 4*j + q
            e(f"  v_lshlrev_b32 v{T}, 16, v{YR+i}")
            e(f"  v_and_b32 v{T+1}, 0xffff0000, v{YR+i}")
            e(f"  v_lshlrev_b32 v{T+2}, 16, v{YI+i}")
            e(f"  v_and_b32 v{T+3}, 0xffff0000, v{YI+i}")
            e(f"  v_pk_add_f32 {vr(T,2)}, {vr(T,2)}, {vr(T+2,2)} neg_lo:[0,1] neg_hi:[0,1]")
            e(f"  v_cvt_pk_bf16_f32 v{T}, v{T}, v{T+1}")
            e(f"  v_and_b32 v{T+1}, 0xffff0000, v{T}")
            e(f"  v_lshlrev_b32 v{T}, 16, v{T}")
            e(f"  v_lshlrev_b32 v{T+2}, 16, v{XX+i}")
            e(f"  v_and_b32 v{T+3}, 0xffff0000, v{XX+i}")
            e(f"  v_pk_add_f32 {vr(T,2)}, {vr(T,2)}, {vr(T+2,2)}")
            e(f"  v_cvt_pk_bf16_f32 v{YI+i}, v{T}, v{T+1}")
            e(f"  v_lshlrev_b32 v{H+2*i}, 16, v{YI+i}")
            e(f"  v_and_b32 v{H+2*i+1}, 0xffff0000, v{YI+i}")
            e(f"  v_pk_add_f32 v[14:15], v[14:15], {vr(H+2*i,2)}")
    e("  v_add_f32 v5, v14, v15")
    reduce16(5)
    e("  v_mul_f32 v5, 0x3b000000, v5")
    e("  v_cvt_pk_bf16_f32 v6, v5, v5")
    e("  v_lshlrev_b32 v6, 16, v6")
    e("  v_sub_f32 v8, 0, v6")
    e("  v_mov_b32 v9, v8")
    e("  v_mov_b32 v10, 0")
    e("  v_mov_b32 v11, 0")
    for i in range(16):
        e(f"  v_pk_add_f32 {vr(D+2*i,2)}, {vr(H+2*i,2)}, v[8:9]")
        e(f"  v_pk_fma_f32 v[10:11], {vr(D+2*i,2)}, {vr(D+2*i,2)}, v[10:11]")
    e("  v_add_f32 v10, v10, v11")
    reduce16(10)
    e("  v_sub_f32 v11, v5, v6")
    e("  v_mul_f32 v11, v11, v11")
    e("  v_mul_f32 v10, 0x3b000000, v10")
    e("  v_sub_f32 v10, v10, v11")
    e("  v_max_f32 v10, 0, v10")
    e("  v_cvt_pk_bf16_f32 v10, v10, v10")
    e("  v_lshlrev_b32 v10, 16, v10")
    e("  v_add_f32 v10, 0x3727c5ac, v10")
    e("  v_cvt_pk_bf16_f32 v10, v10, v10")
    e("  v_lshlrev_b32 v10, 16, v10")
    e("  v_sqrt_f32 v10, v10")
    e("  s_nop 0")
    e("  v_cvt_pk_bf16_f32 v10, v10, v10")
    e("  v_lshlrev_b32 v10, 16, v10")
    e("  v_rcp_f32 v10, v10")
    e("  s_nop 0")
    e("  v_mov_b32 v11, v10")
    if first:
        e("  v_mov_b32 v12, 0")
        e("  s_waitcnt vmcnt(0)")
    for i in range(16):
        e(f"  v_cvt_pk_bf16_f32 v{T}, v{D+2*i}, v{D+2*i+1}")
        e(f"  v_lshlrev_b32 v{D+2*i}, 16, v{T}")
        e(f"  v_and_b32 v{D+2*i+1}, 0xffff0000, v{T}")
        e(f"  v_pk_mul_f32 {vr(D+2*i,2)}, {vr(D+2*i,2)}, v[10:11]")
        e(f"  v_cvt_pk_bf16_f32 v{YR+i}, v{D+2*i}, v{D+2*i+1}")
        if first:
            e(f"  v_dot2_f32_bf16 v12, v{YR+i}, v{WR+i}, v12")
            e(f"  v_lshlrev_b32 v{D+2*i}, 16, v{YR+i}")
            e(f"  v_and_b32 v{D+2*i+1}, 0xffff0000, v{YR+i}")
            e(f"  v_pk_add_f32 {vr(D+2*i,2)}, {vr(D+2*i,2)}, {vr(H+2*i,2)}")
            e(f"  v_cvt_pk_bf16_f32 v{O+i}, v{D+2*i}, v{D+2*i+1}")
    if first:
        e("  s_nop 3")
        reduce16(12)
        e("  v_cvt_pk_bf16_f32 v12, v12, v12")
        e("  v_lshlrev_b32 v12, 16, v12")
        e("  v_ashrrev_i32 v13, 31, v12")
        e("  v_or_b32 v13, 0x80000000, v13")
        e("  v_xor_b32 v12, v12, v13")
        e("  v_and_b32 v12, 0xffff0000, v12")
        e("  v_sub_u32 v13, 0xffff, v1")
        e("  v_or_b32 v12, v12, v13")

def gen_tf():
    name = "tf_kernel"
    kernel_begin(name)
    LDS_G, LDS_U, LDS_WD = 0, 8192, 16384
    LDS_XS = 45056
    LDS_HS = LDS_XS + 8 * XS_STRIDE
    LDS_C = LDS_HS + 8192
    LDS_R = LDS_C + 256
    SPIN = 1 << 22
    e("  s_cmp_ge_u32 s2, 256")
    e("  s_cbranch_scc1 tf_done")
    e(f"  s_load_dwordx2 s[4:5], s[0:1], {KA_X}")
    e(f"  s_load_dwordx2 s[6:7], s[0:1], {KA_WS}")
    e(f"  s_load_dwordx8 s[8:15], s[0:1], {KA_WR}")
    e(f"  s_load_dwordx2 s[16:17], s[0:1], {KA_OUT}")
    e("  s_and_b32 s3, s2, 7")
    e("  s_mul_i32 s49, s3, 28")
    e("  s_lshr_b32 s50, s2, 3")
    e("  s_add_u32 s49, s49, s50")
    e("  s_sub_u32 s50, s50, 24")
    e("  s_lshl_b32 s51, s3, 3")
    e("  s_add_u32 s50, s50, s51")
    e("  v_mov_b32 v180, v0")
    e("  v_lshrrev_b32 v1, 6, v0")
    e("  v_and_b32 v0, 63, v0")
    e("  v_readfirstlane_b32 s48, v1")
    e("  s_waitcnt lgkmcnt(0)")
    srd(20, 4, 5, 2 << 20)
    srd(24, 6, 7, 9 << 20)
    srd(28, 8, 9, 1024)
    srd(32, 10, 11, 512*1792*2)
    srd(36, 12, 13, 512*1792*2)
    srd(40, 14, 15, 1792*512*2)
    srd(44, 16, 17, 2 << 20)
    e("  s_cmp_lt_u32 s48, 2")
    e("  s_cbranch_scc1 tf_p1")
    e("  s_cmp_ge_u32 s2, 224")
    e("  s_cbranch_scc1 tf_nof1")
    e("  s_movk_i32 s52, 3584")
    e("  v_mul_lo_u32 v3, v0, s52")
    e("  s_lshl_b32 s53, s49, 4")
    e("  s_cmp_eq_u32 s48, 2")
    e("  s_cbranch_scc0 tf_dma_u")
    for i in range(8):
        e(f"  s_mov_b32 m0, {LDS_G + 1024*i}")
        e("  s_nop 0")
        e("  buffer_load_dwordx4 v3, s[32:35], s53 offen lds")
        e(f"  s_add_u32 s53, s53, {64*3584}")
    e("  s_branch tf_nof1")
    lab("tf_dma_u")
    for i in range(8):
        e(f"  s_mov_b32 m0, {LDS_U + 1024*i}")
        e("  s_nop 0")
        e("  buffer_load_dwordx4 v3, s[36:39], s53 offen lds")
        e(f"  s_add_u32 s53, s53, {64*3584}")
    lab("tf_nof1")
    e("  s_cmp_lt_u32 s2, 192")
    e("  s_cbranch_scc1 tf_poll1")
    e("  v_lshlrev_b32 v3, 10, v0")
    e("  s_sub_u32 s52, s48, 2")
    e(f"  s_mul_i32 s53, s52, {896*1024}")
    e("  s_lshl_b32 s54, s50, 4")
    e("  s_add_u32 s53, s53, s54")
    e(f"  s_mul_i32 s54, s52, {896*16}")
    for i in range(14):
        e(f"  s_add_u32 m0, s54, {LDS_WD + 1024*i}")
        e("  s_nop 0")
        e("  buffer_load_dwordx4 v3, s[40:43], s53 offen lds")
        e("  s_add_u32 s53, s53, 0x10000")
    e("  s_branch tf_poll1")
    lab("tf_p1")
    e("  v_lshrrev_b32 v1, 4, v180")
    e("  v_and_b32 v2, 15, v0")
    e("  s_lshl_b32 s52, s2, 3")
    e("  v_add_u32 v1, s52, v1")
    e("  v_mov_b32 v181, v1")
    rowmac(True)
    e("  v_cmp_eq_u32 vcc, 0, v2")
    e("  s_and_saveexec_b64 s[56:57], vcc")
    e("  v_lshlrev_b32 v13, 2, v1")
    e(f"  s_mov_b32 s52, {WS_KEY}")
    e("  buffer_store_dword v12, v13, s[24:27], s52 offen sc1")
    e("  s_mov_b64 exec, s[56:57]")
    stamp(1)
    lab("tf_poll1")
    K = 164
    e("  v_lshlrev_b32 v172, 5, v180")
    e(f"  s_mov_b32 s52, {WS_KEY}")
    e("  s_mov_b32 s60, 0")
    lab("tf_poll1_loop")
    e(f"  buffer_load_dwordx4 {vr(K,4)}, v172, s[24:27], s52 offen sc1")
    e(f"  buffer_load_dwordx4 {vr(K+4,4)}, v172, s[24:27], s52 offen offset:16 sc1")
    e("  s_waitcnt vmcnt(0)")
    e(f"  v_min3_u32 v173, v{K}, v{K+1}, v{K+2}")
    e(f"  v_min3_u32 v174, v{K+3}, v{K+4}, v{K+5}")
    e(f"  v_min3_u32 v173, v173, v{K+6}, v{K+7}")
    e("  v_min_u32 v173, v173, v174")
    e("  v_cmp_eq_u32 s[62:63], 0, v173")
    e("  s_nop 3")
    e("  s_cmp_eq_u64 s[62:63], 0")
    e("  s_cbranch_scc1 tf_poll1_ok")
    e("  s_add_u32 s60, s60, 1")
    e(f"  s_cmp_gt_u32 s60, {SPIN}")
    e("  s_cbranch_scc1 tf_poll1_ok")
    e("  s_sleep 1")
    e("  s_branch tf_poll1_loop")
    lab("tf_poll1_ok")
    stamp(2)
    e("  v_mov_b32 v176, 0")
    for rnd in range(8):
        e(f"  v_max3_u32 v173, v{K}, v{K+1}, v{K+2}")
        e(f"  v_max3_u32 v174, v{K+3}, v{K+4}, v{K+5}")
        e(f"  v_max3_u32 v173, v173, v{K+6}, v{K+7}")
        e("  v_max_u32 v173, v173, v174")
        e("  s_nop 1")
        e("  v_max_u32_dpp v173, v173, v173 quad_perm:[1,0,3,2] row_mask:0xf bank_mask:0xf")
        e("  s_nop 1")
        e("  v_max_u32_dpp v173, v173, v173 quad_perm:[2,3,0,1] row_mask:0xf bank_mask:0xf")
        e("  s_nop 1")
        e("  v_max_u32_dpp v173, v173, v173 row_half_mirror row_mask:0xf bank_mask:0xf")
        e("  s_nop 1")
        e("  v_max_u32_dpp v173, v173, v173 row_mirror row_mask:0xf bank_mask:0xf")
        e("  s_nop 1")
        e("  v_readlane_b32 s64, v173, 0")
        e("  v_readlane_b32 s65, v173, 16")
        e("  v_readlane_b32 s66, v173, 32")
        e("  v_readlane_b32 s67, v173, 48")
        e("  s_max_u32 s64, s64, s65")
        e("  s_max_u32 s66, s66, s67")
        e("  s_max_u32 s64, s64, s66")
        e(f"  v_writelane_b32 v176, s64, {rnd}")
        if rnd < 7:
            for k in range(8):
                e(f"  v_cmp_ne_u32 vcc, s64, v{K+k}")
                e("  s_nop 1")
                e(f"  v_cndmask_b32 v{K+k}, 0, v{K+k}, vcc")
    e("  s_lshl_b32 s52, s48, 5")
    e(f"  s_add_u32 s52, s52, {LDS_C}")
    e("  v_lshlrev_b32 v172, 2, v0")
    e("  v_add_u32 v172, s52, v172")
    e("  v_cmp_gt_u32 vcc, 8, v0")
    e("  s_and_saveexec_b64 s[56:57], vcc")
    e("  ds_write_b32 v172, v176")
    e("  s_mov_b64 exec, s[56:57]")
    e("  s_waitcnt lgkmcnt(0)")
    e("  s_barrier")
    e("  v_and_b32 v172, 31, v0")
    e("  v_lshlrev_b32 v172, 2, v172")
    e(f"  ds_read_b32 v177, v172 offset:{LDS_C}")
    e("  v_mov_b32 v178, 0")
    e("  s_waitcnt lgkmcnt(0)")
    for i in range(32):
        e(f"  v_readlane_b32 s64, v177, {i}")
        e("  s_nop 1")
        e("  v_cmp_gt_u32 vcc, s64, v177")
        e("  s_nop 1")
        e("  v_addc_co_u32 v178, vcc, 0, v178, vcc")
    e("  v_cmp_gt_u32 vcc, 8, v178")
    e("  v_cmp_gt_u32 s[58:59], 32, v0")
    e("  s_and_b64 vcc, vcc, s[58:59]")
    e("  v_lshlrev_b32 v172, 2, v178")
    e("  s_and_saveexec_b64 s[56:57], vcc")
    e(f"  ds_write_b32 v172, v177 offset:{LDS_C+128}")
    e("  s_mov_b64 exec, s[56:57]")
    e("  s_waitcnt lgkmcnt(0)")
    e("  s_barrier")
    stamp(3)
    e("  s_cmp_lt_u32 s48, 2")
    e("  s_cbranch_scc1 tf_p2")
    e("  s_waitcnt vmcnt(0)")
    e("  s_branch tf_p2_end")
    lab("tf_p2")
    e("  v_mov_b32 v172, 0")
    e(f"  ds_read_b128 {vr(K,4)}, v172 offset:{LDS_C+128}")
    e(f"  ds_read_b128 {vr(K+4,4)}, v172 offset:{LDS_C+144}")
    e("  v_lshrrev_b32 v173, 4, v180")
    e("  v_lshlrev_b32 v173, 2, v173")
    e(f"  ds_read_b32 v174, v173 offset:{LDS_C+128}")
    e("  v_sub_u32 v175, 0xffff, v181")
    e("  s_waitcnt lgkmcnt(0)")
    e("  s_mov_b64 s[58:59], exec")
    for k in range(8):
        e(f"  v_and_b32 v{K+k}, 0xffff, v{K+k}")
        e(f"  v_cmp_ne_u32 vcc, v{K+k}, v175")
        e("  s_and_b64 s[58:59], s[58:59], vcc")
    e("  v_lshlrev_b32 v3, 10, v181")
    e("  v_lshl_add_u32 v3, v2, 4, v3")
    e("  s_and_saveexec_b64 s[56:57], s[58:59]")
    e("  s_cbranch_execz tf_nostore")
    for j in range(4):
        e(f"  buffer_store_dwordx4 {vr(148+4*j,4)}, v3, s[44:47], 0 offen offset:{256*j}")
    lab("tf_nostore")
    e("  s_mov_b64 exec, s[56:57]")
    e("  v_and_b32 v1, 0xffff, v174")
    e("  v_sub_u32 v1, 0xffff, v1")
    rowmac(False)
    e("  v_lshrrev_b32 v173, 4, v180")
    e(f"  v_mul_u32_u24 v4, {XS_STRIDE}, v173")
    e("  v_lshl_add_u32 v4, v2, 4, v4")
    e("  v_lshlrev_b32 v5, 10, v173")
    e("  v_lshl_add_u32 v5, v2, 4, v5")
    for j in range(4):
        e(f"  ds_write_b128 v4, {vr(16+4*j,4)} offset:{LDS_XS+256*j}")
        e(f"  ds_write_b128 v5, {vr(32+4*j,4)} offset:{LDS_HS+256*j}")
    e("  s_waitcnt lgkmcnt(0)")
    lab("tf_p2_end")
    e("  s_barrier")
    stamp(4)
    e("  s_cmp_lg_u32 s48, 0")
    e("  s_cbranch_scc1 tf_f2")
    e("  s_cmp_ge_u32 s2, 224")
    e("  s_cbranch_scc1 tf_f2")
    e("  v_and_b32 v3, 7, v0")
    e(f"  v_mul_u32_u24 v3, {XS_STRIDE}, v3")
    e("  v_lshrrev_b32 v4, 4, v0")
    e("  v_lshl_add_u32 v3, v4, 4, v3")
    e("  v_and_b32 v5, 15, v0")
    e("  v_lshrrev_b32 v5, 2, v5")
    e("  v_lshl_add_u32 v5, v4, 3, v5")
    e("  v_lshlrev_b32 v5, 4, v5")
    e("  v_and_b32 v6, 1, v0")
    e("  v_lshl_add_u32 v5, v6, 3, v5")
    e("  v_and_b32 v6, 2, v0")
    e("  v_lshl_add_u32 v5, v6, 12, v5")
    for i in range(4):
        e(f"  v_mov_b32 v{8+i}, 0")
    FA, FB = 16, 80
    for st in range(16):
        e(f"  ds_read_b128 {vr(FA+4*st,4)}, v3 offset:{LDS_XS + 64*st}")
        e(f"  ds_read_b64_tr_b16 {vr(FB+4*st,2)}, v5 offset:{512*st}")
        e(f"  ds_read_b64_tr_b16 {vr(FB+4*st+2,2)}, v5 offset:{512*st+64}")
        if st % 4 == 3:
            e("  s_waitcnt lgkmcnt(0)")
            for s2 in range(st-3, st+1):
                e(f"  v_mfma_f32_16x16x32_bf16 v[8:11], {vr(FA+4*s2,4)}, {vr(FB+4*s2,4)}, v[8:11]")
    e("  s_nop 15")
    for i in range(4):
        e(f"  v_cvt_pk_bf16_f32 v{8+i}, v{8+i}, v{8+i}")
        e(f"  v_lshlrev_b32 v{8+i}, 16, v{8+i}")
    e("  s_nop 1")
    for i in range(4):
        e(f"  v_mov_b32_dpp v{12+i}, v{8+i} row_ror:8 row_mask:0xf bank_mask:0xf")
    for i in range(4):
        e(f"  v_mul_f32 v16, 0xbfb8aa3b, v{8+i}")
        e("  v_exp_f32 v16, v16")
        e("  s_nop 0")
        e("  v_add_f32 v16, 1.0, v16")
        e("  v_rcp_f32 v16, v16")
        e("  s_nop 0")
        e(f"  v_mul_f32 v16, v{8+i}, v16")
        e("  v_cvt_pk_bf16_f32 v16, v16, v16")
        e("  v_lshlrev_b32 v16, 16, v16")
        e(f"  v_mul_f32 v16, v16, v{12+i}")
        e(f"  v_cvt_pk_bf16_f32 v{20+i}, v16, v16")
    e("  s_nop 1")
    for i in range(4):
        e(f"  v_mov_b32_dpp v{24+i}, v{20+i} quad_perm:[1,0,3,2] row_mask:0xf bank_mask:0xf")
    for i in range(4):
        e(f"  v_and_b32 v{20+i}, 0xffff, v{20+i}")
        e(f"  v_and_b32 v{24+i}, 0xffff0000, v{24+i}")
        e(f"  v_or_b32 v{20+i}, v{20+i}, v{24+i}")
    e("  v_and_b32 v5, 15, v0")
    e("  v_and_b32 v6, 9, v0")
    e("  v_cmp_eq_u32 vcc, 0, v6")
    e("  v_cmp_gt_u32 s[58:59], 32, v0")
    e("  s_and_b64 vcc, vcc, s[58:59]")
    e("  s_and_saveexec_b64 s[56:57], vcc")
    e("  v_lshlrev_b32 v4, 2, v4")
    e("  v_mul_u32_u24 v4, 3584, v4")
    e("  v_lshl_add_u32 v4, v5, 1, v4")
    e("  s_lshl_b32 s52, s49, 4")
    e(f"  s_add_u32 s52, s52, {WS_GU}")
    for i in range(4):
        e(f"  buffer_store_dword v{20+i}, v4, s[24:27], s52 offen sc1")
        if i < 3:
            e("  v_add_u32 v4, 3584, v4")
    e("  s_waitcnt vmcnt(0)")
    e("  s_mov_b64 exec, 1")
    e("  v_mov_b32 v4, 1")
    e("  v_mov_b32 v5, 0")
    e("  s_lshl_b32 s52, s49, 2")
    e(f"  s_add_u32 s52, s52, {WS_FLAG}")
    e("  buffer_store_dword v4, v5, s[24:27], s52 offen sc1")
    e("  s_mov_b64 exec, s[56:57]")
    stamp(5)
    lab("tf_f2")
    e("  s_cmp_lt_u32 s2, 192")
    e("  s_cbranch_scc1 tf_done")
    e("  v_min_u32 v3, 55, v0")
    e("  v_lshlrev_b32 v3, 2, v3")
    e("  s_mul_i32 s52, s48, 224")
    e(f"  s_add_u32 s52, s52, {WS_FLAG}")
    e("  s_mov_b32 s60, 0")
    lab("tf_poll2_loop")
    e("  buffer_load_dword v4, v3, s[24:27], s52 offen sc1")
    e("  s_waitcnt vmcnt(0)")
    e("  v_cmp_eq_u32 s[62:63], 0, v4")
    e("  s_nop 3")
    e("  s_cmp_eq_u64 s[62:63], 0")
    e("  s_cbranch_scc1 tf_poll2_ok")
    e("  s_add_u32 s60, s60, 1")
    e(f"  s_cmp_gt_u32 s60, {SPIN}")
    e("  s_cbranch_scc1 tf_poll2_ok")
    e("  s_sleep 1")
    e("  s_branch tf_poll2_loop")
    lab("tf_poll2_ok")
    stamp(6)
    e("  v_and_b32 v4, 7, v0")
    e("  v_mul_u32_u24 v4, 3584, v4")
    e("  v_lshrrev_b32 v5, 4, v0")
    e("  v_lshl_add_u32 v4, v5, 4, v4")
    e("  s_mul_i32 s52, s48, 896")
    e(f"  s_add_u32 s52, s52, {WS_GU}")
    FA, FB = 16, 72
    for st in range(14):
        e(f"  buffer_load_dwordx4 {vr(FA+4*st,4)}, v4, s[24:27], s52 offen offset:{64*st} sc1")
    e("  v_and_b32 v7, 15, v0")
    e("  v_lshrrev_b32 v7, 2, v7")
    e("  v_lshl_add_u32 v7, v5, 3, v7")
    e("  v_lshlrev_b32 v7, 4, v7")
    e("  v_and_b32 v6, 1, v0")
    e("  v_lshl_add_u32 v7, v6, 3, v7")
    e("  s_mul_i32 s54, s48, 7168")
    e(f"  s_add_u32 s54, s54, {LDS_WD}")
    e("  v_add_u32 v7, s54, v7")
    for st in range(14):
        e(f"  ds_read_b64_tr_b16 {vr(FB+4*st,2)}, v7 offset:{512*st}")
        e(f"  ds_read_b64_tr_b16 {vr(FB+4*st+2,2)}, v7 offset:{512*st+64}")
    for i in range(4):
        e(f"  v_mov_b32 v{8+i}, 0")
    e("  s_waitcnt vmcnt(0) lgkmcnt(0)")
    for st in range(14):
        e(f"  v_mfma_f32_16x16x32_bf16 v[8:11], {vr(FA+4*st,4)}, {vr(FB+4*st,4)}, v[8:11]")
    e("  s_nop 15")
    e("  v_lshlrev_b32 v3, 4, v0")
    e("  s_lshl_b32 s52, s48, 10")
    e("  v_add_u32 v3, s52, v3")
    e(f"  ds_write_b128 v3, v[8:11] offset:{LDS_R}")
    e("  s_waitcnt lgkmcnt(0)")
    e("  s_barrier")
    e("  s_cmp_lg_u32 s48, 0")
    e("  s_cbranch_scc1 tf_done")
    e("  v_lshlrev_b32 v3, 4, v0")
    for w in range(1, 4):
        e(f"  ds_read_b128 {vr(12+4*(w-1),4)}, v3 offset:{LDS_R+1024*w}")
    e("  v_and_b32 v6, 1, v5")
    e("  v_lshlrev_b32 v6, 4, v6")
    e(f"  ds_read_b128 v[24:27], v6 offset:{LDS_C+128}")
    e("  v_and_b32 v6, 7, v0")
    e("  s_lshl_b32 s52, s50, 4")
    e("  v_lshl_add_u32 v6, v6, 1, s52")
    e("  v_and_b32 v7, 1, v5")
    e("  v_lshlrev_b32 v7, 2, v7")
    for i in range(4):
        e(f"  v_add_u32 v28, {i}, v7")
        e(f"  v_mul_u32_u24 v29, {XS_STRIDE}, v28")
        e("  v_add_u32 v29, v29, v6")
        e(f"  ds_read_u16 v{36+i}, v29 offset:{LDS_XS}")
        e("  v_lshl_add_u32 v29, v28, 10, v6")
        e(f"  ds_read_u16 v{40+i}, v29 offset:{LDS_HS}")
    e("  v_and_b32 v30, 15, v0")
    e("  v_cmp_gt_u32 vcc, 8, v30")
    e("  v_cmp_gt_u32 s[58:59], 32, v0")
    e("  s_and_b64 vcc, vcc, s[58:59]")
    e("  s_waitcnt lgkmcnt(0)")
    e("  s_and_saveexec_b64 s[56:57], vcc")
    for i in range(4):
        e(f"  v_add_f32 v{8+i}, v{8+i}, v{12+i}")
        e(f"  v_add_f32 v{16+i}, v{16+i}, v{20+i}")
        e(f"  v_add_f32 v{8+i}, v{8+i}, v{16+i}")
        e(f"  v_cvt_pk_bf16_f32 v{8+i}, v{8+i}, v{8+i}")
        e(f"  v_lshlrev_b32 v{8+i}, 16, v{8+i}")
        e(f"  v_and_b32 v60, 0xffff0000, v{24+i}")
        e("  v_ashrrev_i32 v61, 31, v60")
        e("  v_not_b32 v61, v61")
        e("  v_or_b32 v61, 0x80000000, v61")
        e("  v_xor_b32 v60, v60, v61")
        e("  v_and_b32 v60, 0xffff0000, v60")
        e("  v_mul_f32 v60, 0xbfb8aa3b, v60")
        e("  v_exp_f32 v60, v60")
        e("  s_nop 0")
        e("  v_add_f32 v60, 1.0, v60")
        e("  v_rcp_f32 v60, v60")
        e("  s_nop 0")
        e("  v_cvt_pk_bf16_f32 v60, v60, v60")
        e("  v_lshlrev_b32 v60, 16, v60")
        e(f"  v_mul_f32 v{8+i}, v{8+i}, v60")
        e(f"  v_cvt_pk_bf16_f32 v{8+i}, v{8+i}, v{8+i}")
        e(f"  v_lshlrev_b32 v{8+i}, 16, v{8+i}")
        e(f"  v_lshlrev_b32 v{36+i}, 16, v{36+i}")
        e(f"  v_lshlrev_b32 v{40+i}, 16, v{40+i}")
        e(f"  v_add_f32 v61, v{36+i}, v{8+i}")
        e("  v_cvt_pk_bf16_f32 v61, v61, v61")
        e("  v_lshlrev_b32 v61, 16, v61")
        e(f"  v_add_f32 v61, v{40+i}, v61")
        e("  v_cvt_pk_bf16_f32 v61, v61, v61")
        e(f"  v_and_b32 v62, 0xffff, v{24+i}")
        e("  v_sub_u32 v62, 0xffff, v62")
        e("  v_lshl_add_u32 v62, v62, 10, v6")
        e("  buffer_store_short v61, v62, s[44:47], 0 offen")
    lab("tf_done")
    kernel_end()
    e("  s_endpgm")
    kernel_desc(name, 184)

def main():
    hdr = open("cdna_kernels/" + NAME + ".s.ref").read().splitlines()
    out = []
    for ln in hdr:
        if ln.startswith("; @launch"):
            out.append("; @launch kernel=k1_kernel grid=(256,1,1) block=(%d,1,1) lds=131072" % (576 if OPT('K1_PF', 1) else 512))
            out.append("; @launch kernel=k2_kernel grid=(256,1,1) block=(%d,1,1) lds=%d" % (576, K2_NS*24576))
            if OPT('TF'):
                out.append("; @launch kernel=tf_kernel grid=(256,1,1) block=(256,1,1) lds=66048")
            else:
                out.append("; @launch kernel=t1_kernel grid=(256,1,1) block=(%d,1,1) lds=0" % (192 if OPT('T1_PF', 1) else 128))
                if OPT('T4', 1):
                    out.append("; @launch kernel=t4_kernel grid=(240,1,1) block=(256,1,1) lds=123392")
                else:
                    out.append("; @launch kernel=t2_kernel grid=(224,1,1) block=(256,1,1) lds=25600")
                    out.append("; @launch kernel=t3_kernel grid=(64,1,1) block=(256,1,1) lds=32768")
            break
        out.append(ln)
    out.append('.amdgcn_target "amdgcn-amd-amdhsa--gfx950"')
    out.append(".text")
    gen_k1(); gen_k2()
    if OPT('TF'): gen_tf()
    elif OPT('T4', 1): gen_t1(); gen_t4()
    else: gen_t1(); gen_t2(); gen_t3()
    out += L
    out.append('.section .rodata,"a"')
    out += KD
    dst = sys.argv[1] if len(sys.argv) > 1 else "cdna_kernels/" + NAME + ".s"
    open(dst, "w").write("\n".join(out) + "\n")

main()
```

```python
import sys, os
OPT = lambda k, d=0: int(os.environ.get(k, d))

NAME = "sequential_preLN__spectral_fnet__moe_arch_mod__prompt"
L = []
def e(s=""):
    L.append(s)
def lab(s):
    L.append(s + ":")

KA_X, KA_WSRE, KA_WSIM, KA_WDRE, KA_WDIM = 0, 8, 16, 24, 32
KA_WR, KA_WG, KA_WU, KA_WDN, KA_OUT, KA_DBG, KA_WS = 48, 56, 64, 72, 80, 88, 96
WS_YB = 0
WS_Y = 4 << 20
WS_KEY = 8 << 20
WS_STAT = (8 << 20) + 8192
WS_GU = (8 << 20) + 65536
WS_IDX = (8 << 20) + 131072
WS_FLAG = (8 << 20) + 196608
WS_WDB = 10 << 20
WS_SIZE = 268435456

KIDX = [0]
NV = {"k1_kernel": 160, "k2_kernel": 160, "t1_kernel": 148, "t2_kernel": 192, "t3_kernel": 192, "tf_kernel": 184, "t4_kernel": 252}
CUR = [0]
def kernel_begin(name):
    CUR[0] = NV[name]
    e(f".globl {name}")
    e(".p2align 8")
    e(f".type {name},@function")
    lab(name)
    if OPT('DIAG'):
        e("  s_memrealtime s[72:73]")
        for i in range(1, 7):
            e(f"  s_mov_b64 s[{72+2*i}:{73+2*i}], 0")
        e(f"  s_load_dwordx2 s[94:95], s[0:1], {KA_WS}")
        e(f"  v_mov_b32 v{CUR[0]}, v0")

def stamp(i):
    if OPT('DIAG'):
        e(f"  s_memrealtime s[{72+2*i}:{73+2*i}]")

def kernel_end():
    if OPT('DIAG'):
        e("  s_waitcnt vmcnt(0) lgkmcnt(0)")
        e("  s_memrealtime s[86:87]")
        e("  s_mov_b32 s88, s94")
        e("  s_mov_b32 s89, s95")
        e("  s_mov_b32 s90, 0x4000000")
        e("  s_mov_b32 s91, 0x00020000")
        e("  s_waitcnt lgkmcnt(0)")
        e("  s_mov_b64 exec, 1")
        for i in range(16):
            e(f"  v_mov_b32 v{i}, s{72+i}")
        e(f"  v_lshrrev_b32 v{CUR[0]+1}, 6, v{CUR[0]}")
        e(f"  v_lshlrev_b32 v{CUR[0]+1}, 6, v{CUR[0]+1}")
        e("  s_lshl_b32 s92, s2, 10")
        e(f"  s_add_u32 s92, s92, {(16 << 20) + KIDX[0] * 0x100000}")
        for i in range(4):
            e(f"  buffer_store_dwordx4 v[{4*i}:{3+4*i}], v{CUR[0]+1}, s[88:91], s92 offen offset:{16*i}")
    KIDX[0] += 1

KD = []
def kernel_desc(name, vgpr, sgpr=102):
    assert vgpr == CUR[0]
    if OPT('DIAG'): vgpr += 2
    acc = (vgpr + 3) // 4 * 4
    KD.append(f""".p2align 6
.amdhsa_kernel {name}
  .amdhsa_next_free_vgpr {vgpr}
  .amdhsa_next_free_sgpr {sgpr}
  .amdhsa_accum_offset {acc}
  .amdhsa_group_segment_fixed_size 0
  .amdhsa_kernarg_size 104
  .amdhsa_user_sgpr_count 2
  .amdhsa_user_sgpr_kernarg_segment_ptr 1
  .amdhsa_system_sgpr_workgroup_id_x 1
.end_amdhsa_kernel""")

def srd(d, lo, hi, size):
    e(f"  s_mov_b32 s{d}, s{lo}")
    e(f"  s_mov_b32 s{d+1}, s{hi}")
    e(f"  s_mov_b32 s{d+2}, {size}")
    e(f"  s_mov_b32 s{d+3}, 0x00020000")

def vr(a, n):
    return f"v[{a}:{a+n-1}]"

def reduce8(v):
    e("  s_nop 1")
    e(f"  v_add_f32_dpp v{v}, v{v}, v{v} quad_perm:[1,0,3,2] row_mask:0xf bank_mask:0xf")
    e("  s_nop 1")
    e(f"  v_add_f32_dpp v{v}, v{v}, v{v} quad_perm:[2,3,0,1] row_mask:0xf bank_mask:0xf")
    e("  s_nop 1")
    e(f"  v_add_f32_dpp v{v}, v{v}, v{v} row_half_mirror row_mask:0xf bank_mask:0xf")

def reduce16(v):
    reduce8(v)
    e("  s_nop 1")
    e(f"  v_add_f32_dpp v{v}, v{v}, v{v} row_mirror row_mask:0xf bank_mask:0xf")

def gen_k1():
    name = "k1_kernel"
    kernel_begin(name)
    e("  s_cmp_ge_u32 s2, 256")
    e("  s_cbranch_scc1 k1_done")
    e(f"  s_load_dwordx2 s[4:5], s[0:1], {KA_X}")
    e(f"  s_load_dwordx4 s[8:11], s[0:1], {KA_WDRE}")
    e(f"  s_load_dwordx2 s[6:7], s[0:1], {KA_WS}")
    e("  s_and_b32 s12, s2, 7")
    e("  s_lshr_b32 s13, s2, 3")
    e("  s_and_b32 s14, s13, 3")
    e("  s_lshl_b32 s12, s12, 2")
    e("  s_add_u32 s12, s12, s14")
    e("  s_lshr_b32 s13, s13, 2")
    e("  v_lshrrev_b32 v1, 6, v0")
    e("  v_and_b32 v0, 63, v0")
    e("  v_readfirstlane_b32 s15, v1")
    e("  v_lshrrev_b32 v2, 3, v0")
    e("  v_and_b32 v3, 7, v0")
    if OPT('K1_PF', 1) or OPT('K1_PFEND', 0):
        e(f"  s_load_dwordx4 s[40:43], s[0:1], {KA_WSRE}")
    e("  s_waitcnt lgkmcnt(0)")
    if OPT('K1_PF', 1):
        e("  s_cmp_lg_u32 s15, 8")
        e("  s_cbranch_scc1 k1_main")
        e("  s_and_b32 s44, s2, 7")
        e("  s_cmp_lt_u32 s44, 4")
        e("  s_cselect_b32 s48, s40, s42")
        e("  s_cselect_b32 s49, s41, s43")
        e(f"  s_mov_b32 s50, {2048*2048*2}")
        e("  s_mov_b32 s51, 0x00020000")
        e("  s_and_b32 s44, s44, 3")
        e("  s_lshl_b32 s44, s44, 21")
        e("  s_lshr_b32 s45, s2, 3")
        e("  s_lshl_b32 s45, s45, 16")
        e("  s_add_u32 s44, s44, s45")
        e("  v_lshlrev_b32 v1, 4, v0")
        e("  s_cmp_ge_u32 s2, 1")
        e("  s_cbranch_scc1 k1_nozero")
        srd(52, 6, 7, 9 << 20)
        for q in range(4):
            e(f"  v_mov_b32 v{4+q}, 0")
        e(f"  s_mov_b32 s46, {WS_FLAG}")
        e("  buffer_store_dwordx4 v[4:7], v1, s[52:55], s46 offen")
        lab("k1_nozero")
        e("  s_cmp_lt_u32 s13, 4")
        e("  s_cselect_b32 s56, s8, s10")
        e("  s_cselect_b32 s57, s9, s11")
        e(f"  s_mov_b32 s58, {512*512*2}")
        e("  s_mov_b32 s59, 0x00020000")
        e("  s_and_b32 s46, s13, 3")
        e("  s_lshl_b32 s46, s46, 17")
        for q in range(OPT('K1_CAN', 0)):
            e(f"  buffer_load_dwordx4 v[8:11], v1, s[56:59], s46 offen offset:{q*1024}")
            e("  s_waitcnt vmcnt(0)")
        for q in range(64):
            e(f"  buffer_load_dwordx4 {vr(8+4*(q%32),4)}, v1, s[48:51], s44 offen")
            e("  s_add_u32 s44, s44, 1024")
        e("  s_branch k1_done")
        lab("k1_main")
    srd(16, 4, 5, 2048*512*2)
    e("  s_cmp_lt_u32 s13, 4")
    e("  s_cselect_b32 s20, s8, s10")
    e("  s_cselect_b32 s21, s9, s11")
    e(f"  s_mov_b32 s22, {512*512*2}")
    e("  s_mov_b32 s23, 0x00020000")
    srd(24, 6, 7, 4 << 20)
    e("  s_lshl_b32 s28, s12, 6")
    e("  s_lshl_b32 s29, s15, 3")
    e("  s_add_u32 s28, s28, s29")
    e("  v_add_u32 v4, s28, v2")
    e("  v_lshlrev_b32 v4, 10, v4")
    e("  v_lshl_add_u32 v4, v3, 4, v4")
    X = 32
    for j in range(8):
        e(f"  buffer_load_dwordx4 {vr(X+4*j,4)}, v4, s[16:19], 0 offen offset:{128*j}")
    e("  s_and_b32 s30, s13, 3")
    e("  s_lshl_b32 s30, s30, 7")
    for ii in range(2):
        e(f"  s_lshl_b32 s31, s15, 4")
        e(f"  s_add_u32 s31, s31, {8*ii}")
        e(f"  v_add_u32 v7, s31, v2")
        e(f"  v_lshrrev_b32 v8, 1, v7")
        e(f"  v_and_b32 v8, 7, v8")
        e(f"  v_xor_b32 v8, v8, v3")
        e(f"  v_add_u32 v7, s30, v7")
        e(f"  v_lshlrev_b32 v7, 10, v7")
        e(f"  v_lshl_add_u32 v{5+ii}, v8, 4, v7")
    e("  s_lshl_b32 s32, s15, 11")
    def wdma(kb):
        slot = kb % 4
        e(f"  s_mov_b32 s33, {128*kb}")
        for ii in range(2):
            e(f"  s_add_u32 m0, s32, {slot*16384 + ii*1024}")
            e("  s_nop 0")
            e(f"  buffer_load_dwordx4 v{5+ii}, s[20:23], s33 offen lds")
    for kb in range(4):
        wdma(kb)
    STG = 128
    for kb in (range(4, 8) if OPT('K1_STG') else []):
        e(f"  s_mov_b32 s33, {128*kb}")
        for ii in range(2):
            e(f"  buffer_load_dwordx4 {vr(STG+8*(kb-4)+4*ii,4)}, v{5+ii}, s[20:23], s33 offen")
    e("  s_mov_b32 s34, 0x3f803f80")
    for a in range(4):
        e(f"  v_mov_b32 v{8+a}, 0")
    stamp(1)
    e(f"  s_waitcnt vmcnt({16 if OPT('K1_STG') else 8})")
    stamp(2)
    for i in range(32):
        e(f"  v_dot2_f32_bf16 v{8+i%4}, v{X+i}, s34, v{8+i%4}")
    e("  s_nop 3")
    e("  v_add_f32 v8, v8, v9")
    e("  v_add_f32 v10, v10, v11")
    e("  v_add_f32 v8, v8, v10")
    reduce8(8)
    e("  v_mul_f32 v8, 0x3b000000, v8")
    e("  v_cvt_pk_bf16_f32 v9, v8, v8")
    e("  v_lshlrev_b32 v9, 16, v9")
    e("  v_sub_f32 v10, 0, v9")
    e("  v_mov_b32 v11, v10")
    D = 64
    for a in range(4):
        e(f"  v_mov_b32 v{12+a}, 0")
    for i in range(32):
        e(f"  v_lshlrev_b32 v{D+2*i}, 16, v{X+i}")
        e(f"  v_and_b32 v{D+2*i+1}, 0xffff0000, v{X+i}")
        e(f"  v_pk_add_f32 {vr(D+2*i,2)}, {vr(D+2*i,2)}, v[10:11]")
        q = 12 + 2*(i % 2)
        e(f"  v_pk_fma_f32 {vr(q,2)}, {vr(D+2*i,2)}, {vr(D+2*i,2)}, {vr(q,2)}")
    e("  v_add_f32 v12, v12, v13")
    e("  v_add_f32 v14, v14, v15")
    e("  v_add_f32 v12, v12, v14")
    reduce8(12)
    e("  v_sub_f32 v13, v8, v9")
    e("  v_mul_f32 v13, v13, v13")
    e("  v_mul_f32 v12, 0x3b000000, v12")
    e("  v_sub_f32 v12, v12, v13")
    e("  v_max_f32 v12, 0, v12")
    e("  v_cvt_pk_bf16_f32 v12, v12, v12")
    e("  v_lshlrev_b32 v12, 16, v12")
    e("  v_add_f32 v12, 0x3727c5ac, v12")
    e("  v_cvt_pk_bf16_f32 v12, v12, v12")
    e("  v_lshlrev_b32 v12, 16, v12")
    e("  v_sqrt_f32 v12, v12")
    e("  s_nop 0")
    e("  v_cvt_pk_bf16_f32 v12, v12, v12")
    e("  v_lshlrev_b32 v12, 16, v12")
    e("  v_rcp_f32 v12, v12")
    e("  s_nop 0")
    e("  v_mov_b32 v13, v12")
    for i in range(32):
        e(f"  v_cvt_pk_bf16_f32 v{X+i}, v{D+2*i}, v{D+2*i+1}")
        e(f"  v_lshlrev_b32 v{D+2*i}, 16, v{X+i}")
        e(f"  v_and_b32 v{D+2*i+1}, 0xffff0000, v{X+i}")
        e(f"  v_pk_mul_f32 {vr(D+2*i,2)}, {vr(D+2*i,2)}, v[12:13]")
        e(f"  v_cvt_pk_bf16_f32 v{X+i}, v{D+2*i}, v{D+2*i+1}")
    e("  v_add_u32 v14, s29, v2")
    e("  v_lshrrev_b32 v15, 1, v14")
    e("  v_and_b32 v15, 7, v15")
    e("  v_xor_b32 v15, v15, v3")
    e("  v_lshlrev_b32 v14, 7, v14")
    e("  v_lshl_add_u32 v14, v15, 4, v14")
    e("  v_add_u32 v14, 0x10000, v14")
    for j in range(8):
        e(f"  ds_write_b128 v14, {vr(X+4*j,4)} offset:{8192*j}")
    stamp(3)
    e("  s_and_b32 s35, s15, 1")
    e("  s_lshr_b32 s36, s15, 1")
    e("  v_and_b32 v16, 31, v0")
    e("  v_lshrrev_b32 v17, 5, v0")
    def fragaddr(dst, sblk, base):
        e(f"  s_lshl_b32 s37, s{sblk}, 5")
        e(f"  v_add_u32 v18, s37, v16")
        e(f"  v_lshrrev_b32 v19, 1, v18")
        e(f"  v_and_b32 v19, 7, v19")
        e(f"  v_xor_b32 v19, v19, v17")
        e(f"  v_lshlrev_b32 v18, 7, v18")
        e(f"  v_lshl_add_u32 v{dst}, v19, 4, v18")
        if base:
            e(f"  v_add_u32 v{dst}, {base}, v{dst}")
        for kk in range(1, 4):
            e(f"  v_xor_b32 v{dst+kk}, {32*kk}, v{dst}")
    fragaddr(20, 35, 0x10000)
    fragaddr(24, 36, 0)
    ACC = 96
    for i in range(16):
        e(f"  v_mov_b32 v{ACC+i}, 0")
    e("  v_lshlrev_b32 v28, 4, v0")
    e("  v_add_u32 v28, s32, v28")
    FA, FB = 64, 80
    waits = [14, 6, 4, 2, 0, 0, 0, 0] if OPT('K1_STG') else [6, 4, 4, 4, 4, 4, 2, 0]
    for kb in range(8):
        e(f"  s_waitcnt vmcnt({waits[kb]}) lgkmcnt(0)")
        e("  s_barrier")
        if kb == 0: stamp(4)
        if 1 <= kb <= 4 and not OPT('K1_STG'):
            wdma(kb + 3)
        if 1 <= kb <= 4 and OPT('K1_STG'):
            for ii in range(2):
                e(f"  ds_write_b128 v28, {vr(STG+8*(kb-1)+4*ii,4)} offset:{((kb+3)%4)*16384 + ii*1024}")
        slot = kb % 4
        for kk in range(4):
            e(f"  ds_read_b128 {vr(FA+4*kk,4)}, v{20+kk} offset:{8192*kb}")
            e(f"  ds_read_b128 {vr(FB+4*kk,4)}, v{24+kk} offset:{16384*slot}")
        for kk in range(4):
            e(f"  s_waitcnt lgkmcnt({6-2*kk})")
            e(f"  v_mfma_f32_32x32x16_bf16 {vr(ACC,16)}, {vr(FA+4*kk,4)}, {vr(FB+4*kk,4)}, {vr(ACC,16)}")
    stamp(5)
    e("  s_lshl_b32 s37, s13, 1")
    e("  s_lshr_b32 s38, s36, 1")
    e("  s_add_u32 s37, s37, s38")
    e("  s_lshl_b32 s37, s37, 5")
    e("  s_add_u32 s37, s37, s12")
    e("  s_lshl_b32 s37, s37, 13")
    e("  s_and_b32 s38, s36, 1")
    e("  s_lshl_b32 s38, s38, 5")
    e("  v_add_u32 v18, s38, v16")
    e("  v_lshrrev_b32 v19, 1, v18")
    e("  v_and_b32 v19, 7, v19")
    e("  s_lshl_b32 s38, s35, 2")
    e("  v_add_u32 v29, s38, v17")
    e("  v_xor_b32 v29, v29, v19")
    e("  v_lshlrev_b32 v18, 7, v18")
    e("  v_lshl_add_u32 v30, v29, 4, v18")
    e("  v_xor_b32 v31, 32, v30")
    e("  s_nop 7")
    P = 112
    for g in range(4):
        e(f"  v_cvt_pk_bf16_f32 v{P+2*g}, v{ACC+4*g}, v{ACC+4*g+1}")
        e(f"  v_cvt_pk_bf16_f32 v{P+2*g+1}, v{ACC+4*g+2}, v{ACC+4*g+3}")
    e("  s_nop 1")
    for p in range(2):
        e(f"  v_permlane32_swap_b32 v{P+4*p}, v{P+4*p+2}")
        e(f"  v_permlane32_swap_b32 v{P+4*p+1}, v{P+4*p+3}")
    e(f"  buffer_store_dwordx4 {vr(P,4)}, v30, s[24:27], s37 offen")
    e(f"  buffer_store_dwordx4 {vr(P+4,4)}, v31, s[24:27], s37 offen")
    if OPT('K1_PFEND', 0):
        e("  s_and_b32 s44, s2, 7")
        e("  s_cmp_lt_u32 s44, 4")
        e("  s_cselect_b32 s48, s40, s42")
        e("  s_cselect_b32 s49, s41, s43")
        e(f"  s_mov_b32 s50, {2048*2048*2}")
        e("  s_mov_b32 s51, 0x00020000")
        e("  s_and_b32 s44, s44, 3")
        e("  s_lshl_b32 s44, s44, 21")
        e("  s_lshr_b32 s45, s2, 3")
        e("  s_lshl_b32 s45, s45, 16")
        e("  s_add_u32 s44, s44, s45")
        e("  s_lshl_b32 s45, s15, 13")
        e("  s_add_u32 s44, s44, s45")
        e("  v_lshlrev_b32 v1, 4, v0")
        for q in range(8):
            e(f"  buffer_load_dwordx4 {vr(32+4*q,4)}, v1, s[48:51], s44 offen")
            e("  s_add_u32 s44, s44, 1024")
    lab("k1_done")
    kernel_end()
    e("  s_endpgm")
    kernel_desc(name, 160)

def k2_epilogue_plain(ACC):
    e("  s_lshl_b32 s24, s14, 21")
    e(f"  s_add_u32 s24, s24, {WS_Y}")
    e("  s_lshl_b32 s30, s13, 7")
    e("  s_add_u32 s24, s24, s30")
    e("  s_lshl_b32 s30, s12, 7")
    e("  s_lshl_b32 s31, s15, 5")
    e("  s_add_u32 s30, s30, s31")
    e("  v_add_u32 v18, s30, v16")
    e("  v_lshlrev_b32 v18, 10, v18")
    e("  v_lshl_add_u32 v18, v17, 4, v18")
    e("  s_nop 7")
    P = 64
    for g in range(8):
        e(f"  v_cvt_pk_bf16_f32 v{P+2*g}, v{ACC+4*g}, v{ACC+4*g+1}")
        e(f"  v_cvt_pk_bf16_f32 v{P+2*g+1}, v{ACC+4*g+2}, v{ACC+4*g+3}")
    e("  s_nop 1")
    for p in range(4):
        e(f"  v_permlane32_swap_b32 v{P+4*p}, v{P+4*p+2}")
        e(f"  v_permlane32_swap_b32 v{P+4*p+1}, v{P+4*p+3}")
    for p in range(4):
        e(f"  buffer_store_dwordx4 {vr(P+4*p,4)}, v18, s[20:23], s24 offen offset:{32*p}")

def k2_epilogue_fused(ACC):
    TB = 49152
    e("  s_nop 7")
    P = 64
    for g in range(8):
        e(f"  v_cvt_pk_bf16_f32 v{P+2*g}, v{ACC+4*g}, v{ACC+4*g+1}")
        e(f"  v_cvt_pk_bf16_f32 v{P+2*g+1}, v{ACC+4*g+2}, v{ACC+4*g+3}")
    e("  s_mul_i32 s30, s15, 4608")
    e(f"  s_add_u32 s30, s30, {TB}")
    e("  v_mul_u32_u24 v18, 144, v16")
    e("  v_lshl_add_u32 v18, v17, 3, v18")
    e("  v_add_u32 v18, s30, v18")
    for g in range(8):
        e(f"  ds_write_b64 v18, {vr(P+2*g,2)} offset:{16*g}")
    e("  v_lshrrev_b32 v19, 3, v0")
    e("  v_and_b32 v22, 7, v0")
    e("  v_mul_u32_u24 v20, 144, v19")
    e("  v_lshl_add_u32 v20, v22, 4, v20")
    e("  v_add_u32 v20, s30, v20")
    e("  s_waitcnt lgkmcnt(0)")
    for q in range(4):
        e(f"  ds_read_b128 {vr(80+4*q,4)}, v20 offset:{8*144*q}")
    e("  s_lshl_b32 s24, s14, 21")
    e(f"  s_add_u32 s24, s24, {WS_Y}")
    e("  s_lshl_b32 s30, s13, 7")
    e("  s_add_u32 s24, s24, s30")
    e("  s_lshl_b32 s30, s12, 7")
    e("  s_lshl_b32 s31, s15, 5")
    e("  s_add_u32 s30, s30, s31")
    e("  v_add_u32 v21, s30, v19")
    e("  v_lshlrev_b32 v21, 10, v21")
    e("  v_lshl_add_u32 v21, v22, 4, v21")
    for q in range(4):
        e(f"  s_waitcnt lgkmcnt({3-q})")
        e(f"  buffer_store_dwordx4 {vr(80+4*q,4)}, v21, s[20:23], s24 offen sc1")
        if q < 3: e("  v_add_u32 v21, 0x2000, v21")
    e("  s_waitcnt vmcnt(0)")
    e("  s_barrier")
    e(f"  s_load_dwordx2 s[4:5], s[0:1], {KA_X}")
    e(f"  s_load_dwordx8 s[56:63], s[0:1], {KA_WR}")
    e(f"  s_load_dwordx2 s[64:65], s[0:1], {KA_OUT}")
    srd(24, 6, 7, 12 << 20)
    e("  s_lshl_b32 s48, s14, 3")
    e("  s_add_u32 s48, s48, s13")
    e("  s_cmp_lg_u32 s15, 0")
    e("  s_cbranch_scc1 k2_noflag")
    e("  s_lshl_b32 s49, s12, 6")
    e("  s_lshl_b32 s50, s48, 2")
    e("  s_add_u32 s49, s49, s50")
    e(f"  s_add_u32 s49, s49, {WS_FLAG}")
    e("  v_mov_b32 v4, 1")
    e("  v_mov_b32 v5, 0")
    e("  s_mov_b64 s[50:51], exec")
    e("  s_mov_b64 exec, 1")
    e("  buffer_store_dword v4, v5, s[24:27], s49 offen sc1")
    e("  s_mov_b64 exec, s[50:51]")
    lab("k2_noflag")
    e("  s_waitcnt lgkmcnt(0)")
    e("  s_cmp_lt_u32 s15, 2")
    e("  s_cbranch_scc1 k2_t1")
    e("  s_cmp_eq_u32 s15, 2")
    e("  s_cselect_b32 s40, s58, s60")
    e("  s_cselect_b32 s41, s59, s61")
    e(f"  s_mov_b32 s42, {512*1792*2}")
    e("  s_mov_b32 s43, 0x00020000")
    e("  s_and_b32 s52, s2, 7")
    e("  s_lshr_b32 s53, s2, 3")
    e("  v_min_u32 v1, 55, v0")
    e("  v_cmp_lt_u32 vcc, 27, v1")
    e("  s_nop 1")
    e("  v_cndmask_b32 v2, 0, 1, vcc")
    e("  v_mul_u32_u24 v3, 28, v2")
    e("  v_sub_u32 v3, v1, v3")
    e("  v_mul_u32_u24 v2, 3584, v2")
    e("  v_lshl_add_u32 v2, v3, 4, v2")
    e("  s_mul_i32 s54, s52, 448")
    e(f"  s_mul_i32 s55, s53, {16*3584}")
    e("  s_add_u32 s54, s54, s55")
    for q in range(8):
        e(f"  buffer_load_dwordx4 {vr(8+4*q,4)}, v2, s[40:43], s54 offen")
        e(f"  s_add_u32 s54, s54, {2*3584}")
    e("  s_branch k2_done")
    lab("k2_t1")
    srd(20, 4, 5, 2 << 20)
    srd(28, 56, 57, 1024)
    srd(44, 64, 65, 2 << 20)
    e("  v_and_b32 v3, 15, v0")
    e("  v_lshlrev_b32 v3, 2, v3")
    e("  s_lshl_b32 s49, s12, 6")
    e(f"  s_add_u32 s49, s49, {WS_FLAG}")
    e("  s_mov_b32 s53, 0")
    lab("k2_poll")
    e("  buffer_load_dword v4, v3, s[24:27], s49 offen sc1")
    e("  s_waitcnt vmcnt(0)")
    e("  v_cmp_eq_u32 s[54:55], 0, v4")
    e("  s_nop 3")
    e("  s_cmp_eq_u64 s[54:55], 0")
    e("  s_cbranch_scc1 k2_poll_ok")
    e("  s_add_u32 s53, s53, 1")
    e(f"  s_cmp_gt_u32 s53, {1 << 22}")
    e("  s_cbranch_scc1 k2_poll_ok")
    e("  s_branch k2_poll")
    lab("k2_poll_ok")
    e("  v_lshrrev_b32 v1, 4, v0")
    e("  v_and_b32 v2, 15, v0")
    e("  s_lshl_b32 s52, s12, 7")
    e("  s_lshl_b32 s53, s48, 3")
    e("  s_add_u32 s52, s52, s53")
    e("  s_lshl_b32 s53, s15, 2")
    e("  s_add_u32 s52, s52, s53")
    e("  v_add_u32 v1, s52, v1")
    rowmac(True, O=148 - 0, sc1=True)
    for j in range(4):
        e(f"  buffer_store_dwordx4 {vr(ROW_O+4*j,4)}, v3, s[44:47], 0 offen offset:{256*j}")
    e("  v_cmp_eq_u32 vcc, 0, v2")
    e("  s_and_saveexec_b64 s[50:51], vcc")
    e("  v_lshlrev_b32 v13, 2, v1")
    e(f"  s_mov_b32 s52, {WS_KEY}")
    e("  buffer_store_dword v12, v13, s[24:27], s52 offen")
    e("  v_lshlrev_b32 v13, 3, v1")
    e("  v_mov_b32 v7, v10")
    e(f"  s_mov_b32 s52, {WS_STAT}")
    e("  buffer_store_dwordx2 v[6:7], v13, s[24:27], s52 offen")

K2_NS = OPT('K2_NS', 6)
def gen_k2():
    NS = K2_NS
    name = "k2_kernel"
    kernel_begin(name)
    YBASE = NS * 16384
    e("  s_cmp_ge_u32 s2, 256")
    e("  s_cbranch_scc1 k2_done")
    e(f"  s_load_dwordx4 s[8:11], s[0:1], {KA_WSRE}")
    e(f"  s_load_dwordx2 s[6:7], s[0:1], {KA_WS}")
    e(f"  s_load_dwordx2 s[34:35], s[0:1], {KA_WDN}")
    e("  s_and_b32 s12, s2, 7")
    e("  s_lshr_b32 s13, s2, 3")
    e("  s_lshr_b32 s14, s12, 2")
    e("  s_and_b32 s12, s12, 3")
    e("  s_lshl_b32 s12, s12, 2")
    e("  s_lshr_b32 s15, s13, 3")
    e("  s_add_u32 s12, s12, s15")
    e("  s_and_b32 s13, s13, 7")
    e("  v_lshrrev_b32 v1, 6, v0")
    e("  v_and_b32 v0, 63, v0")
    e("  v_readfirstlane_b32 s15, v1")
    e("  v_lshrrev_b32 v2, 3, v0")
    e("  v_and_b32 v3, 7, v0")
    e("  s_waitcnt lgkmcnt(0)")
    e("  s_cmp_eq_u32 s14, 0")
    e("  s_cselect_b32 s16, s8, s10")
    e("  s_cselect_b32 s17, s9, s11")
    e(f"  s_mov_b32 s18, {2048*2048*2}")
    e("  s_mov_b32 s19, 0x00020000")
    srd(20, 6, 7, 8 << 20)
    e("  s_cmp_lt_u32 s15, 4")
    e("  s_cbranch_scc1 k2_consumer")
    e("  s_cmp_lt_u32 s15, 8")
    e("  s_cbranch_scc1 k2_loader")
    srd(36, 34, 35, 1792*512*2)
    srd(40, 6, 7, 12 << 20)
    e("  v_lshlrev_b32 v2, 4, v0")
    e("  s_mul_i32 s44, s2, 7168")
    for q in range(7):
        e(f"  buffer_load_dwordx4 {vr(8+4*q,4)}, v2, s[36:39], s44 offen")
        e("  s_add_u32 s44, s44, 1024")
    e("  s_cmp_ge_u32 s2, 28")
    e("  s_cbranch_scc1 k2_nomark")
    for q in range(4):
        e(f"  v_mov_b32 v{4+q}, -1")
    e("  s_lshl_b32 s44, s2, 10")
    e(f"  s_add_u32 s44, s44, {WS_GU}")
    e("  buffer_store_dwordx4 v[4:7], v2, s[40:43], s44 offen")
    lab("k2_nomark")
    e("  v_mul_u32_u24 v3, 28672, v0")
    e("  s_mul_i32 s44, s2, 112")
    e(f"  s_add_u32 s44, s44, {WS_WDB}")
    e("  s_waitcnt vmcnt(0)")
    for q in range(7):
        e(f"  buffer_store_dwordx4 {vr(8+4*q,4)}, v3, s[40:43], s44 offen offset:{16*q}")
    e("  s_branch k2_done")
    lab("k2_loader")
    e("  s_sub_u32 s15, s15, 4")
    for ii in range(4):
        e(f"  s_lshl_b32 s24, s15, 5")
        e(f"  s_add_u32 s24, s24, {8*ii}")
        e(f"  v_add_u32 v10, s24, v2")
        e(f"  v_lshrrev_b32 v11, 1, v10")
        e(f"  v_and_b32 v11, 7, v11")
        e(f"  v_xor_b32 v11, v11, v3")
        e(f"  s_lshl_b32 s24, s12, 7")
        e(f"  v_add_u32 v10, s24, v10")
        e(f"  v_lshlrev_b32 v10, 12, v10")
        e(f"  v_lshl_add_u32 v{4+ii}, v11, 4, v10")
    e("  s_lshl_b32 s24, s15, 11")
    e("  v_lshlrev_b32 v8, 4, v0")
    e("  v_add_u32 v8, s24, v8")
    e("  v_add_u32 v9, 1024, v8")
    e("  s_mov_b32 s25, 0")
    e("  s_lshl_b32 s26, s14, 3")
    e("  s_add_u32 s26, s26, s13")
    e("  s_lshl_b32 s26, s26, 18")
    e("  s_lshl_b32 s27, s15, 12")
    e("  s_lshl_b32 s28, s15, 11")
    e(f"  s_add_u32 s28, s28, {YBASE}")
    def dma(slot):
        for i in range(2):
            e(f"  s_add_u32 m0, s28, {slot*8192 + i*1024}")
            e("  s_nop 0")
            e(f"  buffer_load_dwordx4 v{8+i}, s[20:23], s26 offen lds")
        for i in range(4):
            e(f"  s_add_u32 m0, s27, {slot*16384 + i*1024}")
            e("  s_nop 0")
            e(f"  buffer_load_dwordx4 v{4+i}, s[16:19], s25 offen lds")
        if OPT('K2_ROT', 4):
            e("  s_add_u32 s25, s25, 128")
            e("  s_and_b32 s25, s25, 4095")
            e("  s_lshl_b32 s29, s25, 6")
            e("  s_add_u32 s26, s33, s29")
        else:
            e("  s_add_u32 s25, s25, 128")
            e("  s_add_u32 s26, s26, 8192")
    if OPT('K2_ROT', 4):
        e("  s_mov_b32 s33, s26")
        e(f"  s_mul_i32 s25, s13, {128*OPT('K2_ROT', 4)}")
        e("  s_and_b32 s25, s25, 4095")
        e("  s_lshl_b32 s29, s25, 6")
        e("  s_add_u32 s26, s33, s29")
    for st in range(NS):
        dma(st)
    e(f"  s_waitcnt vmcnt({6*(NS-1)})")
    e("  s_barrier")
    for ks in range(31):
        ahead = min(ks + NS - 1, 31) - (ks + 1)
        e(f"  s_waitcnt vmcnt({6*ahead})")
        if not OPT('K2_NOBAR'): e("  s_barrier")
        if ks == 8: stamp(3)
        if ks == 16: stamp(4)
        if ks == 24: stamp(5)
        if ks + NS < 32:
            dma(ks % NS)
    e("  s_branch k2_done")
    lab("k2_consumer")
    e("  v_and_b32 v16, 31, v0")
    e("  v_lshrrev_b32 v17, 5, v0")
    e("  s_lshl_b32 s24, s15, 5")
    e("  v_add_u32 v18, s24, v16")
    e("  v_lshrrev_b32 v19, 1, v18")
    e("  v_and_b32 v19, 7, v19")
    e("  v_xor_b32 v19, v19, v17")
    e("  v_lshlrev_b32 v18, 7, v18")
    e("  v_lshl_add_u32 v20, v19, 4, v18")
    for kk in range(1, 4):
        e(f"  v_xor_b32 v{20+kk}, {32*kk}, v20")
    for kk in range(4):
        e(f"  v_add_u32 v{28+kk}, 0x10000, v{20+kk}")
    e("  v_lshrrev_b32 v19, 1, v16")
    e("  v_and_b32 v19, 7, v19")
    e("  v_xor_b32 v19, v19, v17")
    e("  v_lshlrev_b32 v18, 7, v16")
    e("  v_lshl_add_u32 v24, v19, 4, v18")
    e(f"  v_add_u32 v24, {YBASE}, v24")
    for kk in range(1, 4):
        e(f"  v_xor_b32 v{24+kk}, {32*kk}, v24")
    ACC = 32
    for i in range(32):
        e(f"  v_mov_b32 v{ACC+i}, 0")
    def FW(st): return 64 + 48 * (st % 2)
    def FY(st): return 80 + 48 * (st % 2)
    def rd(st, kk):
        slot = st % NS
        wb = 20 if slot < 4 else 28
        e(f"  ds_read_b128 {vr(FW(st)+4*kk,4)}, v{wb+kk} offset:{16384*(slot%4)}")
        e(f"  ds_read_b128 {vr(FY(st)+8*kk,4)}, v{24+kk} offset:{8192*slot}")
        e(f"  ds_read_b128 {vr(FY(st)+8*kk+4,4)}, v{24+kk} offset:{8192*slot+4096}")
    stamp(1)
    e("  s_barrier")
    stamp(2)
    for kk in range(4):
        rd(0, kk)
    def mf(st, kk, half):
        e(f"  v_mfma_f32_32x32x16_bf16 {vr(ACC+16*half,16)}, {vr(FY(st)+8*kk+4*half,4)}, {vr(FW(st)+4*kk,4)}, {vr(ACC+16*half,16)}")
    for ks in range(32):
        more = ks + 1 < 32
        e("  s_waitcnt lgkmcnt(0)")
        if more and not OPT('K2_NOBAR'):
            e("  s_barrier")
        if OPT('K2_NOBAR') == 2: continue
        r = (lambda kk: rd(ks + 1, kk)) if more else (lambda kk: None)
        mf(ks, 0, 0); r(0); mf(ks, 0, 1); r(1)
        mf(ks, 1, 0); r(2); mf(ks, 1, 1); r(3)
        mf(ks, 2, 0); mf(ks, 2, 1)
        mf(ks, 3, 0); mf(ks, 3, 1)
    stamp(6)
    if not OPT('K2T1', 1):
        k2_epilogue_plain(ACC)
    else:
        k2_epilogue_fused(ACC)
    lab("k2_done")
    kernel_end()
    e("  s_endpgm")
    kernel_desc(name, 160)

def gen_t1():
    name = "t1_kernel"
    kernel_begin(name)
    e("  s_cmp_ge_u32 s2, 256")
    e("  s_cbranch_scc1 t1_done")
    e(f"  s_load_dwordx2 s[4:5], s[0:1], {KA_X}")
    e(f"  s_load_dwordx2 s[6:7], s[0:1], {KA_WS}")
    e(f"  s_load_dwordx2 s[8:9], s[0:1], {KA_WR}")
    e(f"  s_load_dwordx2 s[10:11], s[0:1], {KA_OUT}")
    if OPT('T1_PF', 1):
        e(f"  s_load_dwordx4 s[32:35], s[0:1], {KA_WG}")
        e("  v_lshrrev_b32 v1, 6, v0")
        e("  s_nop 0")
        e("  v_readfirstlane_b32 s3, v1")
        e("  s_cmp_lg_u32 s3, 2")
        e("  s_cbranch_scc1 t1_main")
        e("  s_waitcnt lgkmcnt(0)")
        srd(40, 32, 33, 512*1792*2)
        srd(44, 34, 35, 512*1792*2)
        e("  v_and_b32 v0, 63, v0")
        e("  s_and_b32 s52, s2, 7")
        e("  s_lshr_b32 s53, s2, 3")
        e("  v_min_u32 v1, 55, v0")
        e("  v_cmp_lt_u32 vcc, 27, v1")
        e("  v_cndmask_b32 v2, 0, 1, vcc")
        e("  v_mul_u32_u24 v3, 28, v2")
        e("  v_sub_u32 v3, v1, v3")
        e("  v_mul_u32_u24 v2, 3584, v2")
        e("  v_lshl_add_u32 v2, v3, 4, v2")
        e("  s_mul_i32 s54, s52, 448")
        e(f"  s_mul_i32 s55, s53, {16*3584}")
        e("  s_add_u32 s54, s54, s55")
        for q in range(8):
            e(f"  buffer_load_dwordx4 {vr(8+8*q,4)}, v2, s[40:43], s54 offen")
            e(f"  buffer_load_dwordx4 {vr(12+8*q,4)}, v2, s[44:47], s54 offen")
            e(f"  s_add_u32 s54, s54, {2*3584}")
        e("  s_branch t1_done")
        lab("t1_main")
    e("  v_lshrrev_b32 v1, 4, v0")
    e("  v_and_b32 v2, 15, v0")
    e("  s_lshl_b32 s3, s2, 3")
    e("  v_add_u32 v1, s3, v1")
    e("  v_lshlrev_b32 v3, 10, v1")
    e("  v_lshl_add_u32 v3, v2, 4, v3")
    e("  v_lshlrev_b32 v4, 4, v2")
    e("  s_waitcnt lgkmcnt(0)")
    srd(12, 4, 5, 2 << 20)
    srd(16, 6, 7, 9 << 20)
    srd(20, 8, 9, 1024)
    srd(24, 10, 11, 2 << 20)
    e(f"  s_mov_b32 s28, {WS_Y}")
    e(f"  s_mov_b32 s29, {WS_Y + (2<<20)}")
    YR, YI, XX, WR = 16, 32, 48, 64
    for j in range(4):
        e(f"  buffer_load_dwordx4 {vr(YR+4*j,4)}, v3, s[16:19], s28 offen offset:{256*j}")
        e(f"  buffer_load_dwordx4 {vr(YI+4*j,4)}, v3, s[16:19], s29 offen offset:{256*j}")
        e(f"  buffer_load_dwordx4 {vr(XX+4*j,4)}, v3, s[12:15], 0 offen offset:{256*j}")
    for j in range(4):
        e(f"  buffer_load_dwordx4 {vr(WR+4*j,4)}, v4, s[20:23], 0 offen offset:{256*j}")
    H = 80
    T = 112
    e("  v_mov_b32 v14, 0")
    e("  v_mov_b32 v15, 0")
    for j in range(4):
        e(f"  s_waitcnt vmcnt({4 + 3*(3-j)})")
        for q in range(4):
            i = 4*j + q
            e(f"  v_lshlrev_b32 v{T}, 16, v{YR+i}")
            e(f"  v_and_b32 v{T+1}, 0xffff0000, v{YR+i}")
            e(f"  v_lshlrev_b32 v{T+2}, 16, v{YI+i}")
            e(f"  v_and_b32 v{T+3}, 0xffff0000, v{YI+i}")
            e(f"  v_pk_add_f32 {vr(T,2)}, {vr(T,2)}, {vr(T+2,2)} neg_lo:[0,1] neg_hi:[0,1]")
            e(f"  v_cvt_pk_bf16_f32 v{T}, v{T}, v{T+1}")
            e(f"  v_and_b32 v{T+1}, 0xffff0000, v{T}")
            e(f"  v_lshlrev_b32 v{T}, 16, v{T}")
            e(f"  v_lshlrev_b32 v{T+2}, 16, v{XX+i}")
            e(f"  v_and_b32 v{T+3}, 0xffff0000, v{XX+i}")
            e(f"  v_pk_add_f32 {vr(T,2)}, {vr(T,2)}, {vr(T+2,2)}")
            e(f"  v_cvt_pk_bf16_f32 v{T}, v{T}, v{T+1}")
            e(f"  v_lshlrev_b32 v{H+2*i}, 16, v{T}")
            e(f"  v_and_b32 v{H+2*i+1}, 0xffff0000, v{T}")
            e(f"  v_pk_add_f32 v[14:15], v[14:15], {vr(H+2*i,2)}")
    e("  v_add_f32 v5, v14, v15")
    reduce16(5)
    e("  v_mul_f32 v5, 0x3b000000, v5")
    e("  v_cvt_pk_bf16_f32 v6, v5, v5")
    e("  v_lshlrev_b32 v6, 16, v6")
    e("  v_sub_f32 v8, 0, v6")
    e("  v_mov_b32 v9, v8")
    e("  v_mov_b32 v10, 0")
    e("  v_mov_b32 v11, 0")
    D = 116
    for i in range(16):
        e(f"  v_pk_add_f32 {vr(D+2*i,2)}, {vr(H+2*i,2)}, v[8:9]")
        e(f"  v_pk_fma_f32 v[10:11], {vr(D+2*i,2)}, {vr(D+2*i,2)}, v[10:11]")
    e("  v_add_f32 v10, v10, v11")
    reduce16(10)
    e("  v_sub_f32 v11, v5, v6")
    e("  v_mul_f32 v11, v11, v11")
    e("  v_mul_f32 v10, 0x3b000000, v10")
    e("  v_sub_f32 v10, v10, v11")
    e("  v_max_f32 v10, 0, v10")
    e("  v_cvt_pk_bf16_f32 v10, v10, v10")
    e("  v_lshlrev_b32 v10, 16, v10")
    e("  v_add_f32 v10, 0x3727c5ac, v10")
    e("  v_cvt_pk_bf16_f32 v10, v10, v10")
    e("  v_lshlrev_b32 v10, 16, v10")
    e("  v_sqrt_f32 v10, v10")
    e("  s_nop 0")
    e("  v_cvt_pk_bf16_f32 v10, v10, v10")
    e("  v_lshlrev_b32 v10, 16, v10")
    e("  v_rcp_f32 v10, v10")
    e("  s_nop 0")
    e("  v_mov_b32 v11, v10")
    e("  v_mov_b32 v12, 0")
    e("  s_waitcnt vmcnt(0)")
    O = 16
    for i in range(16):
        e(f"  v_cvt_pk_bf16_f32 v{T}, v{D+2*i}, v{D+2*i+1}")
        e(f"  v_lshlrev_b32 v{D+2*i}, 16, v{T}")
        e(f"  v_and_b32 v{D+2*i+1}, 0xffff0000, v{T}")
        e(f"  v_pk_mul_f32 {vr(D+2*i,2)}, {vr(D+2*i,2)}, v[10:11]")
        e(f"  v_cvt_pk_bf16_f32 v{T}, v{D+2*i}, v{D+2*i+1}")
        e(f"  v_dot2_f32_bf16 v12, v{T}, v{WR+i}, v12")
        e(f"  v_lshlrev_b32 v{D+2*i}, 16, v{T}")
        e(f"  v_and_b32 v{D+2*i+1}, 0xffff0000, v{T}")
        e(f"  v_pk_add_f32 {vr(D+2*i,2)}, {vr(D+2*i,2)}, {vr(H+2*i,2)}")
        e(f"  v_cvt_pk_bf16_f32 v{O+i}, v{D+2*i}, v{D+2*i+1}")
    for j in range(4):
        e(f"  buffer_store_dwordx4 {vr(O+4*j,4)}, v3, s[24:27], 0 offen offset:{256*j}")
    e("  s_nop 3")
    reduce16(12)
    e("  v_cvt_pk_bf16_f32 v12, v12, v12")
    e("  v_lshlrev_b32 v12, 16, v12")
    e("  v_ashrrev_i32 v13, 31, v12")
    e("  v_or_b32 v13, 0x80000000, v13")
    e("  v_xor_b32 v12, v12, v13")
    e("  v_and_b32 v12, 0xffff0000, v12")
    e("  v_sub_u32 v13, 0xffff, v1")
    e("  v_or_b32 v12, v12, v13")
    e("  v_cmp_eq_u32 vcc, 0, v2")
    e("  s_and_saveexec_b64 s[30:31], vcc")
    e("  v_lshlrev_b32 v13, 2, v1")
    e(f"  s_mov_b32 s28, {WS_KEY}")
    e("  buffer_store_dword v12, v13, s[16:19], s28 offen")
    e("  v_lshlrev_b32 v13, 3, v1")
    e("  v_mov_b32 v7, v10")
    e(f"  s_mov_b32 s28, {WS_STAT}")
    e("  buffer_store_dwordx2 v[6:7], v13, s[16:19], s28 offen")
    lab("t1_done")
    kernel_end()
    e("  s_endpgm")
    kernel_desc(name, 148)

def recompute(YR, YI, XX, nd, NEGM, RINV, HOUT, XNOUT, T):
    for i in range(nd):
        e(f"  v_lshlrev_b32 v{T}, 16, v{YR+i}")
        e(f"  v_and_b32 v{T+1}, 0xffff0000, v{YR+i}")
        e(f"  v_lshlrev_b32 v{T+2}, 16, v{YI+i}")
        e(f"  v_and_b32 v{T+3}, 0xffff0000, v{YI+i}")
        e(f"  v_pk_add_f32 {vr(T,2)}, {vr(T,2)}, {vr(T+2,2)} neg_lo:[0,1] neg_hi:[0,1]")
        e(f"  v_cvt_pk_bf16_f32 v{T}, v{T}, v{T+1}")
        e(f"  v_and_b32 v{T+1}, 0xffff0000, v{T}")
        e(f"  v_lshlrev_b32 v{T}, 16, v{T}")
        e(f"  v_lshlrev_b32 v{T+2}, 16, v{XX+i}")
        e(f"  v_and_b32 v{T+3}, 0xffff0000, v{XX+i}")
        e(f"  v_pk_add_f32 {vr(T,2)}, {vr(T,2)}, {vr(T+2,2)}")
        e(f"  v_cvt_pk_bf16_f32 v{T}, v{T}, v{T+1}")
        e(f"  v_lshlrev_b32 v{HOUT+2*i}, 16, v{T}")
        e(f"  v_and_b32 v{HOUT+2*i+1}, 0xffff0000, v{T}")
        e(f"  v_pk_add_f32 {vr(T,2)}, {vr(HOUT+2*i,2)}, {vr(NEGM,2)}")
        e(f"  v_cvt_pk_bf16_f32 v{T}, v{T}, v{T+1}")
        e(f"  v_and_b32 v{T+1}, 0xffff0000, v{T}")
        e(f"  v_lshlrev_b32 v{T}, 16, v{T}")
        e(f"  v_pk_mul_f32 {vr(T,2)}, {vr(T,2)}, {vr(RINV,2)}")
        e(f"  v_cvt_pk_bf16_f32 v{XNOUT+i}, v{T}, v{T+1}")

XS_STRIDE = 1040
def gen_t2():
    name = "t2_kernel"
    kernel_begin(name)
    LDS_G, LDS_U, LDS_XS, LDS_C = 0, 8192, 16384, 16384 + 8*XS_STRIDE
    e("  s_cmp_ge_u32 s2, 224")
    e("  s_cbranch_scc1 t2_done")
    e(f"  s_load_dwordx2 s[4:5], s[0:1], {KA_X}")
    e(f"  s_load_dwordx2 s[6:7], s[0:1], {KA_WS}")
    e(f"  s_load_dwordx4 s[8:11], s[0:1], {KA_WG}")
    e("  s_and_b32 s3, s2, 7")
    e("  s_mul_i32 s3, s3, 28")
    e("  s_lshr_b32 s12, s2, 3")
    e("  s_add_u32 s3, s3, s12")
    e("  v_mov_b32 v40, v0")
    e("  v_lshrrev_b32 v1, 6, v0")
    e("  v_and_b32 v0, 63, v0")
    e("  v_readfirstlane_b32 s13, v1")
    e("  s_waitcnt lgkmcnt(0)")
    srd(16, 4, 5, 2 << 20)
    srd(20, 6, 7, 9 << 20)
    srd(24, 8, 9, 512*1792*2)
    srd(28, 10, 11, 512*1792*2)
    e("  v_lshlrev_b32 v2, 5, v40")
    e(f"  s_mov_b32 s14, {WS_KEY}")
    e("  buffer_load_dwordx4 v[8:11], v2, s[20:23], s14 offen")
    e("  buffer_load_dwordx4 v[12:15], v2, s[20:23], s14 offen offset:16")
    e("  s_lshl_b32 s15, s3, 4")
    e("  s_movk_i32 s32, 3584")
    for ii in range(2):
        e(f"  s_lshl_b32 s33, s13, 7")
        e(f"  s_add_u32 s33, s33, {64*ii}")
        e(f"  v_add_u32 v3, s33, v0")
        e(f"  v_mul_lo_u32 v3, v3, s32")
        e(f"  s_lshl_b32 s34, s13, 11")
        e(f"  s_add_u32 m0, s34, {LDS_G + 1024*ii}")
        e("  s_nop 0")
        e(f"  buffer_load_dwordx4 v3, s[24:27], s15 offen lds")
        e(f"  s_add_u32 m0, s34, {LDS_U + 1024*ii}")
        e("  s_nop 0")
        e(f"  buffer_load_dwordx4 v3, s[28:31], s15 offen lds")
    stamp(1)
    e("  s_waitcnt vmcnt(4)")
    stamp(2)
    e("  v_mov_b32 v20, 0")
    for rnd in range(8):
        e("  v_max3_u32 v16, v8, v9, v10")
        e("  v_max3_u32 v17, v11, v12, v13")
        e("  v_max3_u32 v16, v16, v14, v15")
        e("  v_max_u32 v16, v16, v17")
        e("  s_nop 1")
        e("  v_max_u32_dpp v16, v16, v16 quad_perm:[1,0,3,2] row_mask:0xf bank_mask:0xf")
        e("  s_nop 1")
        e("  v_max_u32_dpp v16, v16, v16 quad_perm:[2,3,0,1] row_mask:0xf bank_mask:0xf")
        e("  s_nop 1")
        e("  v_max_u32_dpp v16, v16, v16 row_half_mirror row_mask:0xf bank_mask:0xf")
        e("  s_nop 1")
        e("  v_max_u32_dpp v16, v16, v16 row_mirror row_mask:0xf bank_mask:0xf")
        e("  s_nop 1")
        e("  v_readlane_b32 s36, v16, 0")
        e("  v_readlane_b32 s37, v16, 16")
        e("  v_readlane_b32 s38, v16, 32")
        e("  v_readlane_b32 s39, v16, 48")
        e("  s_max_u32 s36, s36, s37")
        e("  s_max_u32 s38, s38, s39")
        e("  s_max_u32 s36, s36, s38")
        e(f"  v_writelane_b32 v20, s36, {rnd}")
        if rnd < 7:
            for k in range(8):
                e(f"  v_cmp_ne_u32 vcc, s36, v{8+k}")
                e("  s_nop 1")
                e(f"  v_cndmask_b32 v{8+k}, 0, v{8+k}, vcc")
    e("  s_lshl_b32 s33, s13, 5")
    e(f"  s_add_u32 s33, s33, {LDS_C}")
    e("  v_lshlrev_b32 v3, 2, v0")
    e("  v_add_u32 v3, s33, v3")
    e("  v_cmp_gt_u32 vcc, 8, v0")
    e("  s_and_saveexec_b64 s[40:41], vcc")
    e("  ds_write_b32 v3, v20")
    e("  s_mov_b64 exec, s[40:41]")
    e("  s_waitcnt lgkmcnt(0)")
    e("  s_barrier")
    e("  v_and_b32 v3, 31, v0")
    e("  v_lshlrev_b32 v3, 2, v3")
    e(f"  ds_read_b32 v21, v3 offset:{LDS_C}")
    e("  v_mov_b32 v22, 0")
    e("  s_waitcnt lgkmcnt(0)")
    for i in range(32):
        e(f"  v_readlane_b32 s36, v21, {i}")
        e("  s_nop 1")
        e("  v_cmp_gt_u32 vcc, s36, v21")
        e("  s_nop 1")
        e("  v_addc_co_u32 v22, vcc, 0, v22, vcc")
    e("  v_cmp_gt_u32 vcc, 8, v22")
    e("  v_cmp_gt_u32 s[42:43], 32, v0")
    e("  s_and_b64 vcc, vcc, s[42:43]")
    e("  v_lshlrev_b32 v3, 2, v22")
    e("  s_and_saveexec_b64 s[40:41], vcc")
    e(f"  ds_write_b32 v3, v21 offset:{LDS_C+128}")
    e("  s_mov_b64 exec, s[40:41]")
    e("  s_waitcnt lgkmcnt(0)")
    e("  s_barrier")
    stamp(3)
    e("  v_lshrrev_b32 v4, 5, v40")
    e("  v_and_b32 v5, 31, v40")
    e("  v_lshlrev_b32 v3, 2, v4")
    e(f"  ds_read_b32 v6, v3 offset:{LDS_C+128}")
    e("  s_waitcnt lgkmcnt(0)")
    e("  s_cmp_lg_u32 s3, 0")
    e("  s_cbranch_scc1 t2_nopub")
    e("  v_cmp_eq_u32 vcc, 0, v5")
    e("  s_and_saveexec_b64 s[40:41], vcc")
    e(f"  s_mov_b32 s14, {WS_IDX}")
    e("  buffer_store_dword v6, v3, s[20:23], s14 offen")
    e("  s_mov_b64 exec, s[40:41]")
    lab("t2_nopub")
    e("  v_and_b32 v6, 0xffff, v6")
    e("  v_sub_u32 v6, 0xffff, v6")
    e("  v_lshlrev_b32 v7, 10, v6")
    e("  v_lshl_add_u32 v7, v5, 4, v7")
    e(f"  s_mov_b32 s14, {WS_Y}")
    e(f"  s_mov_b32 s15, {WS_Y + (2<<20)}")
    YR, YI, XX = 24, 32, 44
    for j in range(2):
        e(f"  buffer_load_dwordx4 {vr(YR+4*j,4)}, v7, s[20:23], s14 offen offset:{512*j}")
        e(f"  buffer_load_dwordx4 {vr(YI+4*j,4)}, v7, s[20:23], s15 offen offset:{512*j}")
        e(f"  buffer_load_dwordx4 {vr(XX+4*j,4)}, v7, s[16:19], 0 offen offset:{512*j}")
    e("  v_lshlrev_b32 v3, 3, v6")
    e(f"  s_mov_b32 s14, {WS_STAT}")
    e("  buffer_load_dwordx2 v[52:53], v3, s[20:23], s14 offen")
    e("  s_waitcnt vmcnt(0)")
    stamp(4)
    e("  v_sub_f32 v54, 0, v52")
    e("  v_mov_b32 v55, v54")
    e("  v_mov_b32 v52, v53")
    recompute(YR, YI, XX, 8, 54, 52, 64, 80, 56)
    e(f"  v_mul_u32_u24 v3, {XS_STRIDE}, v4")
    e("  v_lshl_add_u32 v3, v5, 4, v3")
    e(f"  ds_write_b128 v3, v[80:83] offset:{LDS_XS}")
    e(f"  ds_write_b128 v3, v[84:87] offset:{LDS_XS+512}")
    e("  s_waitcnt lgkmcnt(0)")
    e("  s_barrier")
    e("  s_cmp_lg_u32 s13, 0")
    e("  s_cbranch_scc1 t2_done")
    stamp(5)
    e("  v_and_b32 v3, 7, v0")
    e(f"  v_mul_u32_u24 v3, {XS_STRIDE}, v3")
    e("  v_lshrrev_b32 v4, 4, v0")
    e("  v_lshl_add_u32 v3, v4, 4, v3")
    e("  v_and_b32 v5, 15, v0")
    e("  v_lshrrev_b32 v5, 2, v5")
    e("  v_lshl_add_u32 v5, v4, 3, v5")
    e("  v_lshlrev_b32 v5, 4, v5")
    e("  v_and_b32 v6, 1, v0")
    e("  v_lshl_add_u32 v5, v6, 3, v5")
    e("  v_and_b32 v6, 2, v0")
    e("  v_lshl_add_u32 v5, v6, 12, v5")
    for i in range(4):
        e(f"  v_mov_b32 v{8+i}, 0")
    FA, FB = 64, 128
    for st in range(16):
        e(f"  ds_read_b128 {vr(FA+4*st,4)}, v3 offset:{LDS_XS + 64*st}")
        e(f"  ds_read_b64_tr_b16 {vr(FB+4*st,2)}, v5 offset:{512*st}")
        e(f"  ds_read_b64_tr_b16 {vr(FB+4*st+2,2)}, v5 offset:{512*st+64}")
        if st % 4 == 3:
            e("  s_waitcnt lgkmcnt(0)")
            for s2 in range(st-3, st+1):
                e(f"  v_mfma_f32_16x16x32_bf16 v[8:11], {vr(FA+4*s2,4)}, {vr(FB+4*s2,4)}, v[8:11]")
    e("  s_nop 15")
    for i in range(4):
        e(f"  v_cvt_pk_bf16_f32 v{8+i}, v{8+i}, v{8+i}")
        e(f"  v_lshlrev_b32 v{8+i}, 16, v{8+i}")
    e("  s_nop 1")
    for i in range(4):
        e(f"  v_mov_b32_dpp v{12+i}, v{8+i} row_ror:8 row_mask:0xf bank_mask:0xf")
    for i in range(4):
        e(f"  v_mul_f32 v16, 0xbfb8aa3b, v{8+i}")
        e("  v_exp_f32 v16, v16")
        e("  s_nop 0")
        e("  v_add_f32 v16, 1.0, v16")
        e("  v_rcp_f32 v16, v16")
        e("  s_nop 0")
        e(f"  v_mul_f32 v16, v{8+i}, v16")
        e("  v_cvt_pk_bf16_f32 v16, v16, v16")
        e("  v_lshlrev_b32 v16, 16, v16")
        e(f"  v_mul_f32 v16, v16, v{12+i}")
        e(f"  v_cvt_pk_bf16_f32 v{20+i}, v16, v16")
    stamp(6)
    e("  v_and_b32 v5, 15, v0")
    e("  v_cmp_gt_u32 vcc, 8, v5")
    e("  v_cmp_gt_u32 s[42:43], 32, v0")
    e("  s_and_b64 vcc, vcc, s[42:43]")
    e("  s_and_saveexec_b64 s[40:41], vcc")
    e("  v_lshlrev_b32 v4, 2, v4")
    e("  v_mul_u32_u24 v4, 3584, v4")
    e("  v_lshl_add_u32 v4, v5, 1, v4")
    e("  s_lshl_b32 s15, s3, 4")
    e(f"  s_add_u32 s15, s15, {WS_GU}")
    for i in range(4):
        e(f"  buffer_store_short v{20+i}, v4, s[20:23], s15 offen offset:{3584*i if 3584*i < 4096 else 0}") if False else None
    for i in range(4):
        e(f"  buffer_store_short v{20+i}, v4, s[20:23], s15 offen")
        if i < 3:
            e("  v_add_u32 v4, 3584, v4")
    lab("t2_done")
    kernel_end()
    e("  s_endpgm")
    kernel_desc(name, 192)

def gen_t3():
    name = "t3_kernel"
    kernel_begin(name)
    LDS_W, LDS_R = 0, 28672
    e("  s_cmp_ge_u32 s2, 64")
    e("  s_cbranch_scc1 t3_done")
    e(f"  s_load_dwordx2 s[4:5], s[0:1], {KA_X}")
    e(f"  s_load_dwordx2 s[6:7], s[0:1], {KA_WS}")
    e(f"  s_load_dwordx2 s[10:11], s[0:1], {KA_OUT}")
    e("  s_mov_b32 s3, s2")
    e("  v_lshrrev_b32 v1, 6, v0")
    e("  v_and_b32 v0, 63, v0")
    e("  v_readfirstlane_b32 s13, v1")
    e("  v_lshrrev_b32 v5, 4, v0")
    e("  s_waitcnt lgkmcnt(0)")
    srd(16, 4, 5, 2 << 20)
    srd(20, 6, 7, 12 << 20)
    srd(28, 10, 11, 2 << 20)
    e("  v_and_b32 v6, 1, v5")
    e("  v_lshlrev_b32 v6, 4, v6")
    e(f"  s_mov_b32 s14, {WS_IDX}")
    e("  buffer_load_dwordx4 v[24:27], v6, s[20:23], s14 offen")
    e("  s_lshl_b32 s15, s3, 4")
    e("  v_lshlrev_b32 v3, 4, v0")
    e("  s_mul_i32 s34, s13, 7168")
    e("  s_mul_i32 s33, s3, 28672")
    e("  s_add_u32 s33, s33, s34")
    e(f"  s_add_u32 s33, s33, {WS_WDB}")
    for i in range(7):
        e(f"  s_add_u32 m0, s34, {LDS_W + 1024*i}")
        e("  s_nop 0")
        e(f"  buffer_load_dwordx4 v3, s[20:23], s33 offen lds")
        e("  s_add_u32 s33, s33, 1024")
    e("  v_and_b32 v4, 7, v0")
    e("  v_mul_u32_u24 v4, 3584, v4")
    e("  v_lshl_add_u32 v4, v5, 4, v4")
    e("  s_mul_i32 s14, s13, 896")
    e(f"  s_add_u32 s14, s14, {WS_GU}")
    FA = 64
    for st in range(14):
        e(f"  buffer_load_dwordx4 {vr(FA+4*st,4)}, v4, s[20:23], s14 offen offset:{64*st}")
    for i in range(4):
        e(f"  v_mov_b32 v{28+i}, 0")
    e("  s_cmp_lg_u32 s13, 0")
    e("  s_cbranch_scc1 t3_noepi")
    e("  s_waitcnt vmcnt(21)")
    e("  v_and_b32 v6, 7, v0")
    e(f"  s_mov_b32 s36, {WS_Y}")
    e(f"  s_mov_b32 s37, {WS_Y + (2<<20)}")
    e(f"  s_mov_b32 s38, {WS_STAT}")
    for i in range(4):
        e(f"  v_and_b32 v{28+i}, 0xffff, v{24+i}")
        e(f"  v_sub_u32 v{28+i}, 0xffff, v{28+i}")
        e(f"  v_lshlrev_b32 v{32+i}, 3, v{28+i}")
        e(f"  v_lshlrev_b32 v{28+i}, 10, v{28+i}")
        e(f"  v_lshl_add_u32 v{28+i}, v6, 1, v{28+i}")
        e(f"  v_add_u32 v{28+i}, s15, v{28+i}")
        e(f"  buffer_load_ushort v{36+i}, v{28+i}, s[20:23], s36 offen")
        e(f"  buffer_load_ushort v{40+i}, v{28+i}, s[20:23], s37 offen")
        e(f"  buffer_load_ushort v{44+i}, v{28+i}, s[16:19], 0 offen")
        e(f"  buffer_load_dwordx2 {vr(48+2*i,2)}, v{32+i}, s[20:23], s38 offen")
    lab("t3_noepi")
    e("  v_and_b32 v7, 15, v0")
    e("  v_lshrrev_b32 v7, 2, v7")
    e("  v_lshl_add_u32 v7, v5, 3, v7")
    e("  v_lshlrev_b32 v7, 4, v7")
    e("  v_and_b32 v60, 1, v0")
    e("  v_lshl_add_u32 v7, v60, 3, v7")
    e("  v_add_u32 v7, s34, v7")
    for i in range(4):
        e(f"  v_mov_b32 v{8+i}, 0")
    stamp(1)
    e("  s_waitcnt vmcnt(0)")
    stamp(2)
    FB = 128
    for st in range(14):
        e(f"  ds_read_b64_tr_b16 {vr(FB+4*st,2)}, v7 offset:{512*st}")
        e(f"  ds_read_b64_tr_b16 {vr(FB+4*st+2,2)}, v7 offset:{512*st+64}")
    e("  s_waitcnt lgkmcnt(0)")
    for st in range(14):
        e(f"  v_mfma_f32_16x16x32_bf16 v[8:11], {vr(FA+4*st,4)}, {vr(FB+4*st,4)}, v[8:11]")
    e("  s_nop 15")
    stamp(3)
    e("  v_lshlrev_b32 v3, 4, v0")
    e("  s_lshl_b32 s33, s13, 10")
    e("  v_add_u32 v3, s33, v3")
    e(f"  ds_write_b128 v3, v[8:11] offset:{LDS_R}")
    e("  s_waitcnt lgkmcnt(0)")
    e("  s_barrier")
    e("  s_cmp_lg_u32 s13, 0")
    e("  s_cbranch_scc1 t3_done")
    e("  v_lshlrev_b32 v3, 4, v0")
    for w in range(1, 4):
        e(f"  ds_read_b128 {vr(12+4*(w-1),4)}, v3 offset:{LDS_R+1024*w}")
    stamp(4)
    e("  v_and_b32 v6, 15, v0")
    e("  v_cmp_gt_u32 vcc, 8, v6")
    e("  v_cmp_gt_u32 s[42:43], 32, v0")
    e("  s_and_b64 vcc, vcc, s[42:43]")
    e("  s_and_saveexec_b64 s[40:41], vcc")
    e("  s_waitcnt lgkmcnt(0)")
    for i in range(4):
        e(f"  v_add_f32 v{8+i}, v{8+i}, v{12+i}")
        e(f"  v_add_f32 v{16+i}, v{16+i}, v{20+i}")
        e(f"  v_add_f32 v{8+i}, v{8+i}, v{16+i}")
        e(f"  v_cvt_pk_bf16_f32 v{8+i}, v{8+i}, v{8+i}")
        e(f"  v_lshlrev_b32 v{8+i}, 16, v{8+i}")
        e(f"  v_and_b32 v60, 0xffff0000, v{24+i}")
        e("  v_ashrrev_i32 v61, 31, v60")
        e("  v_not_b32 v61, v61")
        e("  v_or_b32 v61, 0x80000000, v61")
        e("  v_xor_b32 v60, v60, v61")
        e("  v_and_b32 v60, 0xffff0000, v60")
        e("  v_mul_f32 v60, 0xbfb8aa3b, v60")
        e("  v_exp_f32 v60, v60")
        e("  s_nop 0")
        e("  v_add_f32 v60, 1.0, v60")
        e("  v_rcp_f32 v60, v60")
        e("  s_nop 0")
        e("  v_cvt_pk_bf16_f32 v60, v60, v60")
        e("  v_lshlrev_b32 v60, 16, v60")
        e(f"  v_mul_f32 v{8+i}, v{8+i}, v60")
        e(f"  v_cvt_pk_bf16_f32 v{8+i}, v{8+i}, v{8+i}")
        e(f"  v_lshlrev_b32 v{8+i}, 16, v{8+i}")
        e(f"  v_lshlrev_b32 v{36+i}, 16, v{36+i}")
        e(f"  v_lshlrev_b32 v{40+i}, 16, v{40+i}")
        e(f"  v_lshlrev_b32 v{44+i}, 16, v{44+i}")
        e(f"  v_sub_f32 v60, v{36+i}, v{40+i}")
        e("  v_cvt_pk_bf16_f32 v60, v60, v60")
        e("  v_lshlrev_b32 v60, 16, v60")
        e(f"  v_add_f32 v60, v{44+i}, v60")
        e("  v_cvt_pk_bf16_f32 v60, v60, v60")
        e("  v_lshlrev_b32 v60, 16, v60")
        e(f"  v_sub_f32 v61, v60, v{48+2*i}")
        e("  v_cvt_pk_bf16_f32 v61, v61, v61")
        e("  v_lshlrev_b32 v61, 16, v61")
        e(f"  v_mul_f32 v61, v61, v{49+2*i}")
        e("  v_cvt_pk_bf16_f32 v61, v61, v61")
        e("  v_lshlrev_b32 v61, 16, v61")
        e(f"  v_add_f32 v61, v61, v{8+i}")
        e("  v_cvt_pk_bf16_f32 v61, v61, v61")
        e("  v_lshlrev_b32 v61, 16, v61")
        e("  v_add_f32 v61, v60, v61")
        e("  v_cvt_pk_bf16_f32 v61, v61, v61")
        e(f"  buffer_store_short v61, v{28+i}, s[28:31], 0 offen")
    lab("t3_done")
    kernel_end()
    e("  s_endpgm")
    kernel_desc(name, 192)

SORT8 = [(0,1),(2,3),(4,5),(6,7),(0,2),(1,3),(4,6),(5,7),(1,2),(5,6),(0,4),(1,5),(2,6),(3,7),(2,4),(3,5),(1,2),(3,4),(5,6)]
def top8(keys, free, LDS_C):
    K = list(keys); F = list(free)
    for (i, j) in SORT8:
        hi, lo = F.pop(), F.pop()
        e(f"  v_max_u32 v{hi}, v{K[i]}, v{K[j]}")
        e(f"  v_min_u32 v{lo}, v{K[i]}, v{K[j]}")
        F.append(K[i]); F.append(K[j]); K[i] = hi; K[j] = lo
    t, coll = F.pop(), F.pop()
    e(f"  v_mov_b32 v{coll}, 0")
    pend = []
    def fill(n):
        for _ in range(n):
            if pend: e(pend.pop(0))
            else: e("  s_nop 0")
    for rnd in range(8):
        fill(2)
        e(f"  v_max_u32_dpp v{t}, v{K[0]}, v{K[0]} quad_perm:[1,0,3,2] row_mask:0xf bank_mask:0xf")
        fill(2)
        e(f"  v_max_u32_dpp v{t}, v{t}, v{t} quad_perm:[2,3,0,1] row_mask:0xf bank_mask:0xf")
        fill(2)
        e(f"  v_max_u32_dpp v{t}, v{t}, v{t} row_half_mirror row_mask:0xf bank_mask:0xf")
        fill(2)
        e(f"  v_max_u32_dpp v{t}, v{t}, v{t} row_mirror row_mask:0xf bank_mask:0xf")
        while pend: e(pend.pop(0))
        e("  s_nop 0")
        e(f"  v_readlane_b32 s36, v{t}, 0")
        e(f"  v_readlane_b32 s37, v{t}, 16")
        e(f"  v_readlane_b32 s38, v{t}, 32")
        e(f"  v_readlane_b32 s39, v{t}, 48")
        e("  s_max_u32 s36, s36, s37")
        e("  s_max_u32 s38, s38, s39")
        e("  s_max_u32 s36, s36, s38")
        e(f"  v_writelane_b32 v{coll}, s36, {rnd}")
        if rnd < 7:
            e(f"  v_cmp_eq_u32 vcc, s36, v{K[0]}")
            e("  s_nop 1")
            e(f"  v_cndmask_b32 v{K[0]}, v{K[0]}, v{K[1]}, vcc")
            for k in range(1, 7 - rnd):
                pend.append(f"  v_cndmask_b32 v{K[k]}, v{K[k]}, v{K[k+1]}, vcc")
    e("  s_lshl_b32 s33, s13, 5")
    e(f"  s_add_u32 s33, s33, {LDS_C}")
    e(f"  v_lshlrev_b32 v{t}, 2, v0")
    e(f"  v_add_u32 v{t}, s33, v{t}")
    e("  v_cmp_gt_u32 vcc, 8, v0")
    e("  s_and_saveexec_b64 s[40:41], vcc")
    e(f"  ds_write_b32 v{t}, v{coll}")
    e("  s_mov_b64 exec, s[40:41]")
    e("  s_waitcnt lgkmcnt(0)")
    e("  s_barrier")
    return t, coll

def gen_t4():
    name = "t4_kernel"
    kernel_begin(name)
    LDS_C, LDS_R, LDS_WD = 0, 256, 8704
    LDS_G, LDS_U, LDS_XS = 8704, 8704 + 8192, 8704 + 16384
    SPIN = 1 << 22
    e("  s_cmp_ge_u32 s2, 240")
    e("  s_cbranch_scc1 t4_done")
    e(f"  s_load_dwordx2 s[4:5], s[0:1], {KA_X}")
    e(f"  s_load_dwordx2 s[6:7], s[0:1], {KA_WS}")
    e(f"  s_load_dwordx4 s[8:11], s[0:1], {KA_WG}")
    e(f"  s_load_dwordx2 s[44:45], s[0:1], {KA_OUT}")
    e("  s_and_b32 s3, s2, 7")
    e("  s_mul_i32 s3, s3, 28")
    e("  s_lshr_b32 s12, s2, 3")
    e("  s_add_u32 s3, s3, s12")
    e("  v_mov_b32 v40, v0")
    e("  v_lshrrev_b32 v1, 6, v0")
    e("  v_and_b32 v0, 63, v0")
    e("  v_readfirstlane_b32 s13, v1")
    e("  s_waitcnt lgkmcnt(0)")
    srd(16, 4, 5, 2 << 20)
    srd(20, 6, 7, 12 << 20)
    srd(24, 8, 9, 512*1792*2)
    srd(28, 10, 11, 512*1792*2)
    srd(48, 44, 45, 2 << 20)
    e("  v_lshlrev_b32 v2, 5, v40")
    e(f"  s_mov_b32 s14, {WS_KEY}")
    e("  buffer_load_dwordx4 v[8:11], v2, s[20:23], s14 offen")
    e("  buffer_load_dwordx4 v[12:15], v2, s[20:23], s14 offen offset:16")
    e("  s_cmp_ge_u32 s2, 224")
    e("  s_cbranch_scc1 t4_dma2")
    e("  s_lshl_b32 s15, s3, 4")
    e("  s_movk_i32 s32, 3584")
    for ii in range(2):
        e(f"  s_lshl_b32 s33, s13, 7")
        e(f"  s_add_u32 s33, s33, {64*ii}")
        e(f"  v_add_u32 v3, s33, v0")
        e(f"  v_mul_lo_u32 v3, v3, s32")
        e(f"  s_lshl_b32 s34, s13, 11")
        e(f"  s_add_u32 m0, s34, {LDS_G + 1024*ii}")
        e("  s_nop 0")
        e(f"  buffer_load_dwordx4 v3, s[24:27], s15 offen lds")
        e(f"  s_add_u32 m0, s34, {LDS_U + 1024*ii}")
        e("  s_nop 0")
        e(f"  buffer_load_dwordx4 v3, s[28:31], s15 offen lds")
    e("  s_waitcnt vmcnt(4)")
    e("  s_branch t4_top")
    lab("t4_dma2")
    e("  s_sub_u32 s46, s2, 224")
    e("  v_lshlrev_b32 v3, 4, v0")
    e("  s_mul_i32 s34, s13, 7168")
    e(f"  s_mul_i32 s33, s46, {4*28672}")
    e("  s_add_u32 s33, s33, s34")
    e(f"  s_add_u32 s33, s33, {WS_WDB}")
    for dsl in range(4):
        for i in range(7):
            e(f"  s_add_u32 m0, s34, {LDS_WD + dsl*28672 + 1024*i}")
            e("  s_nop 0")
            e(f"  buffer_load_dwordx4 v3, s[20:23], s33 offen lds")
            e(f"  s_add_u32 s33, s33, {1024 if i < 6 else 28672 - 6*1024}")
    e("  s_waitcnt vmcnt(28)")
    lab("t4_top")
    stamp(1)
    t, coll = top8(range(8, 16), range(16, 24), LDS_C)
    e("  v_and_b32 v3, 31, v0")
    e("  v_lshlrev_b32 v3, 2, v3")
    e(f"  ds_read_b32 v24, v3 offset:{LDS_C}")
    e("  v_mov_b32 v4, 0")
    for q in range(8):
        e(f"  ds_read_b128 {vr(56+4*q,4)}, v4 offset:{LDS_C+16*q}")
    e("  v_mov_b32 v25, 0")
    e("  s_waitcnt lgkmcnt(0)")
    sp = [60, 62, 64, 66]
    for i in range(32 + 3):
        if i < 32:
            e(f"  v_cmp_gt_u32 s[{sp[i%4]}:{sp[i%4]+1}], v{56+i}, v24")
        if i >= 3:
            j = i - 3
            e(f"  v_addc_co_u32 v25, vcc, 0, v25, s[{sp[j%4]}:{sp[j%4]+1}]")
    e("  v_cmp_gt_u32 vcc, 8, v25")
    e("  v_cmp_gt_u32 s[42:43], 32, v0")
    e("  s_and_b64 vcc, vcc, s[42:43]")
    e("  v_lshlrev_b32 v3, 2, v25")
    e("  s_and_saveexec_b64 s[40:41], vcc")
    e(f"  ds_write_b32 v3, v24 offset:{LDS_C+128}")
    e("  s_mov_b64 exec, s[40:41]")
    e("  s_waitcnt lgkmcnt(0)")
    e("  s_barrier")
    stamp(2)
    e("  s_cmp_ge_u32 s2, 224")
    e("  s_cbranch_scc1 t4_f2")
    e("  v_lshrrev_b32 v4, 5, v40")
    e("  v_and_b32 v5, 31, v40")
    e("  v_lshlrev_b32 v3, 2, v4")
    e(f"  ds_read_b32 v6, v3 offset:{LDS_C+128}")
    e("  s_waitcnt lgkmcnt(0)")
    e("  v_and_b32 v6, 0xffff, v6")
    e("  v_sub_u32 v6, 0xffff, v6")
    e("  v_lshlrev_b32 v7, 10, v6")
    e("  v_lshl_add_u32 v7, v5, 4, v7")
    e(f"  s_mov_b32 s14, {WS_Y}")
    e(f"  s_mov_b32 s15, {WS_Y + (2<<20)}")
    YR, YI, XX = 24, 32, 44
    for j in range(2):
        e(f"  buffer_load_dwordx4 {vr(YR+4*j,4)}, v7, s[20:23], s14 offen offset:{512*j}")
        e(f"  buffer_load_dwordx4 {vr(YI+4*j,4)}, v7, s[20:23], s15 offen offset:{512*j}")
        e(f"  buffer_load_dwordx4 {vr(XX+4*j,4)}, v7, s[16:19], 0 offen offset:{512*j}")
    e("  v_lshlrev_b32 v3, 3, v6")
    e(f"  s_mov_b32 s14, {WS_STAT}")
    e("  buffer_load_dwordx2 v[52:53], v3, s[20:23], s14 offen")
    e("  s_waitcnt vmcnt(0)")
    stamp(3)
    e("  v_sub_f32 v54, 0, v52")
    e("  v_mov_b32 v55, v54")
    e("  v_mov_b32 v52, v53")
    recompute(YR, YI, XX, 8, 54, 52, 64, 80, 56)
    e(f"  v_mul_u32_u24 v3, {XS_STRIDE}, v4")
    e("  v_lshl_add_u32 v3, v5, 4, v3")
    e(f"  ds_write_b128 v3, v[80:83] offset:{LDS_XS}")
    e(f"  ds_write_b128 v3, v[84:87] offset:{LDS_XS+512}")
    e("  s_waitcnt lgkmcnt(0)")
    e("  s_barrier")
    e("  s_cmp_lg_u32 s13, 0")
    e("  s_cbranch_scc1 t4_done")
    e("  v_and_b32 v3, 7, v0")
    e(f"  v_mul_u32_u24 v3, {XS_STRIDE}, v3")
    e("  v_lshrrev_b32 v4, 4, v0")
    e("  v_lshl_add_u32 v3, v4, 4, v3")
    e("  v_and_b32 v5, 15, v0")
    e("  v_lshrrev_b32 v5, 2, v5")
    e("  v_lshl_add_u32 v5, v4, 3, v5")
    e("  v_lshlrev_b32 v5, 4, v5")
    e("  v_and_b32 v6, 1, v0")
    e("  v_lshl_add_u32 v5, v6, 3, v5")
    e("  v_and_b32 v6, 2, v0")
    e("  v_lshl_add_u32 v5, v6, 12, v5")
    for i in range(4):
        e(f"  v_mov_b32 v{8+i}, 0")
    FA, FB = 64, 128
    for st in range(16):
        e(f"  ds_read_b128 {vr(FA+4*st,4)}, v3 offset:{LDS_XS + 64*st}")
        e(f"  ds_read_b64_tr_b16 {vr(FB+4*st,2)}, v5 offset:{LDS_G+512*st}")
        e(f"  ds_read_b64_tr_b16 {vr(FB+4*st+2,2)}, v5 offset:{LDS_G+512*st+64}")
        if st % 4 == 3:
            e("  s_waitcnt lgkmcnt(0)")
            for s2 in range(st-3, st+1):
                e(f"  v_mfma_f32_16x16x32_bf16 v[8:11], {vr(FA+4*s2,4)}, {vr(FB+4*s2,4)}, v[8:11]")
    e("  s_nop 15")
    for i in range(4):
        e(f"  v_cvt_pk_bf16_f32 v{8+i}, v{8+i}, v{8+i}")
        e(f"  v_lshlrev_b32 v{8+i}, 16, v{8+i}")
    e("  s_nop 1")
    for i in range(4):
        e(f"  v_mov_b32_dpp v{12+i}, v{8+i} row_ror:8 row_mask:0xf bank_mask:0xf")
    for i in range(4):
        e(f"  v_mul_f32 v16, 0xbfb8aa3b, v{8+i}")
        e("  v_exp_f32 v16, v16")
        e("  s_nop 0")
        e("  v_add_f32 v16, 1.0, v16")
        e("  v_rcp_f32 v16, v16")
        e("  s_nop 0")
        e(f"  v_mul_f32 v16, v{8+i}, v16")
        e("  v_cvt_pk_bf16_f32 v16, v16, v16")
        e("  v_lshlrev_b32 v16, 16, v16")
        e(f"  v_mul_f32 v16, v16, v{12+i}")
        e(f"  v_cvt_pk_bf16_f32 v{20+i}, v16, v16")
    e("  s_nop 1")
    for i in range(4):
        e(f"  v_mov_b32_dpp v{24+i}, v{20+i} quad_perm:[1,0,3,2] row_mask:0xf bank_mask:0xf")
    for i in range(4):
        e(f"  v_and_b32 v{20+i}, 0xffff, v{20+i}")
        e(f"  v_and_b32 v{24+i}, 0xffff0000, v{24+i}")
        e(f"  v_or_b32 v{20+i}, v{20+i}, v{24+i}")
    for i in range(4):
        e(f"  v_min_u32 v{20+i}, 0xfffeffff, v{20+i}")
    stamp(4)
    e("  v_and_b32 v5, 15, v0")
    e("  v_lshlrev_b32 v4, 6, v4")
    e("  v_lshl_add_u32 v4, v5, 1, v4")
    e("  v_lshlrev_b32 v7, 4, v0")
    e("  v_and_b32 v6, 9, v0")
    e("  v_cmp_eq_u32 vcc, 0, v6")
    e("  v_cmp_gt_u32 s[42:43], 32, v0")
    e("  s_and_b64 vcc, vcc, s[42:43]")
    e("  s_and_saveexec_b64 s[40:41], vcc")
    for i in range(4):
        e(f"  ds_write_b32 v4, v{20+i} offset:{LDS_R+16*i}")
    e("  s_mov_b64 exec, 0xff")
    e("  s_waitcnt lgkmcnt(0)")
    e(f"  ds_read_b128 v[24:27], v7 offset:{LDS_R}")
    e("  s_lshl_b32 s15, s3, 7")
    e(f"  s_add_u32 s15, s15, {WS_GU}")
    e("  s_waitcnt lgkmcnt(0)")
    e("  buffer_store_dwordx4 v[24:27], v7, s[20:23], s15 offen sc1")
    e("  s_branch t4_done")
    lab("t4_f2")
    e("  v_lshrrev_b32 v5, 4, v0")
    e("  v_and_b32 v6, 1, v5")
    e("  v_lshlrev_b32 v6, 4, v6")
    e(f"  ds_read_b128 v[24:27], v6 offset:{LDS_C+128}")
    e("  v_and_b32 v6, 15, v0")
    e("  s_lshl_b32 s15, s46, 6")
    e("  s_waitcnt lgkmcnt(0)")
    for i in range(4):
        e(f"  v_and_b32 v{28+i}, 0xffff, v{24+i}")
        e(f"  v_sub_u32 v{28+i}, 0xffff, v{28+i}")
        e(f"  v_lshlrev_b32 v{32+i}, 3, v{28+i}")
        e(f"  v_lshlrev_b32 v{28+i}, 10, v{28+i}")
        e(f"  v_lshl_add_u32 v{28+i}, v6, 1, v{28+i}")
        e(f"  v_add_u32 v{28+i}, s15, v{28+i}")
    e("  s_cmp_lg_u32 s13, 0")
    e("  s_cbranch_scc1 t4_noepi")
    e(f"  s_mov_b32 s36, {WS_Y}")
    e(f"  s_mov_b32 s37, {WS_Y + (2<<20)}")
    e(f"  s_mov_b32 s38, {WS_STAT}")
    for a in range(2):
        for i in range(4):
            e(f"  buffer_load_ushort v{192+12*a+i}, v{28+i}, s[20:23], s36 offen offset:{32*a}")
            e(f"  buffer_load_ushort v{196+12*a+i}, v{28+i}, s[20:23], s37 offen offset:{32*a}")
            e(f"  buffer_load_ushort v{200+12*a+i}, v{28+i}, s[16:19], 0 offen offset:{32*a}")
    for i in range(4):
        e(f"  buffer_load_dwordx2 {vr(48+2*i,2)}, v{32+i}, s[20:23], s38 offen")
    lab("t4_noepi")
    e("  v_lshrrev_b32 v7, 2, v6")
    e("  v_lshl_add_u32 v7, v5, 3, v7")
    e("  v_lshlrev_b32 v7, 4, v7")
    e("  v_and_b32 v60, 1, v0")
    e("  v_lshl_add_u32 v7, v60, 3, v7")
    e("  v_and_b32 v60, 2, v0")
    e("  v_mul_u32_u24 v60, 14336, v60")
    e("  v_add_u32 v7, v60, v7")
    e("  v_add_u32 v7, s34, v7")
    e(f"  v_add_u32 v61, {2*28672}, v7")
    e("  s_waitcnt vmcnt(0)")
    FB0, FB1 = 72, 128
    for st in range(14):
        e(f"  ds_read_b64_tr_b16 {vr(FB0+4*st,2)}, v7 offset:{LDS_WD+512*st}")
        e(f"  ds_read_b64_tr_b16 {vr(FB0+4*st+2,2)}, v7 offset:{LDS_WD+512*st+64}")
        e(f"  ds_read_b64_tr_b16 {vr(FB1+4*st,2)}, v61 offset:{LDS_WD+512*st}")
        e(f"  ds_read_b64_tr_b16 {vr(FB1+4*st+2,2)}, v61 offset:{LDS_WD+512*st+64}")
        if st % 3 == 2: e("  s_waitcnt lgkmcnt(0)")
    for i in range(8):
        e(f"  v_mov_b32 v{8+i}, 0")
    for i in range(4):
        e(f"  v_and_b32 v60, 0xffff0000, v{24+i}")
        e("  v_ashrrev_i32 v62, 31, v60")
        e("  v_not_b32 v62, v62")
        e("  v_or_b32 v62, 0x80000000, v62")
        e("  v_xor_b32 v60, v60, v62")
        e("  v_and_b32 v60, 0xffff0000, v60")
        e("  v_mul_f32 v60, 0xbfb8aa3b, v60")
        e("  v_exp_f32 v60, v60")
        e("  s_nop 0")
        e("  v_add_f32 v60, 1.0, v60")
        e("  v_rcp_f32 v60, v60")
        e("  s_nop 0")
        e("  v_cvt_pk_bf16_f32 v60, v60, v60")
        e(f"  v_lshlrev_b32 v{24+i}, 16, v60")
    for a in range(2):
        for i in range(4):
            r0, r1, r2 = 192+12*a+i, 196+12*a+i, 200+12*a+i
            e(f"  v_lshlrev_b32 v{r0}, 16, v{r0}")
            e(f"  v_lshlrev_b32 v{r1}, 16, v{r1}")
            e(f"  v_lshlrev_b32 v{r2}, 16, v{r2}")
            e(f"  v_sub_f32 v60, v{r0}, v{r1}")
            e("  v_cvt_pk_bf16_f32 v60, v60, v60")
            e("  v_lshlrev_b32 v60, 16, v60")
            e(f"  v_add_f32 v60, v{r2}, v60")
            e("  v_cvt_pk_bf16_f32 v60, v60, v60")
            e(f"  v_lshlrev_b32 v{r0}, 16, v60")
            e(f"  v_sub_f32 v62, v{r0}, v{48+2*i}")
            e("  v_cvt_pk_bf16_f32 v62, v62, v62")
            e("  v_lshlrev_b32 v62, 16, v62")
            e(f"  v_mul_f32 v62, v62, v{49+2*i}")
            e("  v_cvt_pk_bf16_f32 v62, v62, v62")
            e(f"  v_lshlrev_b32 v{r1}, 16, v62")
    stamp(3)
    e("  v_and_b32 v4, 7, v0")
    e("  v_lshlrev_b32 v4, 4, v4")
    e("  v_lshl_add_u32 v4, v5, 7, v4")
    e("  s_mul_i32 s14, s13, 7168")
    e(f"  s_add_u32 s14, s14, {WS_GU}")
    regs = [216+4*i for i in range(9)] + [36, 40, 44, 56, 64]
    e("  v_add_u32 v62, 4096, v4")
    e("  s_mov_b32 s53, 0")
    lab("t4_poll")
    for st in range(14):
        e(f"  buffer_load_dwordx4 {vr(regs[st],4)}, v4, s[20:23], s14 offen offset:{512*st if st < 8 else 0} sc1") if st < 8 else e(f"  buffer_load_dwordx4 {vr(regs[st],4)}, v62, s[20:23], s14 offen offset:{512*(st-8)} sc1")
    e("  v_mov_b32 v3, 0")
    for st in range(14):
        e(f"  s_waitcnt vmcnt({13-st})")
        e(f"  v_max3_u32 v3, v3, v{regs[st]}, v{regs[st]+1}")
        e(f"  v_max3_u32 v3, v3, v{regs[st]+2}, v{regs[st]+3}")
    e("  v_cmp_eq_u32 s[54:55], -1, v3")
    e("  s_nop 3")
    e("  s_cmp_eq_u64 s[54:55], 0")
    e("  s_cbranch_scc1 t4_poll_ok")
    e("  s_add_u32 s53, s53, 1")
    e(f"  s_cmp_gt_u32 s53, {SPIN}")
    e("  s_cbranch_scc1 t4_poll_ok")
    e("  s_branch t4_poll")
    lab("t4_poll_ok")
    stamp(5)
    e("  s_waitcnt lgkmcnt(0)")
    for st in range(14):
        e(f"  v_mfma_f32_16x16x32_bf16 v[8:11], {vr(regs[st],4)}, {vr(FB0+4*st,4)}, v[8:11]")
        e(f"  v_mfma_f32_16x16x32_bf16 v[12:15], {vr(regs[st],4)}, {vr(FB1+4*st,4)}, v[12:15]")
    e("  s_nop 15")
    stamp(6)
    e("  v_lshlrev_b32 v3, 4, v0")
    e("  s_lshl_b32 s33, s13, 11")
    e("  v_add_u32 v3, s33, v3")
    e(f"  ds_write_b128 v3, v[8:11] offset:{LDS_R}")
    e(f"  ds_write_b128 v3, v[12:15] offset:{LDS_R+1024}")
    e("  s_waitcnt lgkmcnt(0)")
    e("  s_barrier")
    e("  s_cmp_lg_u32 s13, 0")
    e("  s_cbranch_scc1 t4_done")
    e("  v_lshlrev_b32 v3, 4, v0")
    for w in range(1, 4):
        for a in range(2):
            e(f"  ds_read_b128 {vr(72+8*(w-1)+4*a,4)}, v3 offset:{LDS_R+2048*w+1024*a}")
    e("  v_cmp_gt_u32 vcc, 32, v0")
    e("  s_and_saveexec_b64 s[40:41], vcc")
    e("  s_waitcnt lgkmcnt(0)")
    for a in range(2):
        for i in range(4):
            y = 8 + 4*a + i
            e(f"  v_add_f32 v{y}, v{y}, v{72+4*a+i}")
            e(f"  v_add_f32 v60, v{80+4*a+i}, v{88+4*a+i}")
            e(f"  v_add_f32 v{y}, v{y}, v60")
            e(f"  v_cvt_pk_bf16_f32 v{y}, v{y}, v{y}")
            e(f"  v_lshlrev_b32 v{y}, 16, v{y}")
            e(f"  v_mul_f32 v{y}, v{y}, v{24+i}")
            e(f"  v_cvt_pk_bf16_f32 v{y}, v{y}, v{y}")
            e(f"  v_lshlrev_b32 v{y}, 16, v{y}")
            e(f"  v_add_f32 v61, v{196+12*a+i}, v{y}")
            e("  v_cvt_pk_bf16_f32 v61, v61, v61")
            e("  v_lshlrev_b32 v61, 16, v61")
            e(f"  v_add_f32 v61, v{192+12*a+i}, v61")
            e("  v_cvt_pk_bf16_f32 v61, v61, v61")
            e(f"  buffer_store_short v61, v{28+i}, s[48:51], 0 offen offset:{32*a}")
    lab("t4_done")
    kernel_end()
    e("  s_endpgm")
    kernel_desc(name, 252)

ROW_O = 48
def rowmac(first, O=148, sc1=False):
    YR, YI, XX, WR, H, T, D = 16, 32, 48, 64, 80, 112, 116
    if sc1: O = ROW_O
    SC = " sc1" if sc1 else ""
    e("  v_lshlrev_b32 v3, 10, v1")
    e("  v_lshl_add_u32 v3, v2, 4, v3")
    e(f"  s_mov_b32 s52, {WS_Y}")
    e(f"  s_mov_b32 s53, {WS_Y + (2<<20)}")
    for j in range(4):
        e(f"  buffer_load_dwordx4 {vr(YR+4*j,4)}, v3, s[24:27], s52 offen offset:{256*j}{SC}")
        e(f"  buffer_load_dwordx4 {vr(YI+4*j,4)}, v3, s[24:27], s53 offen offset:{256*j}{SC}")
        e(f"  buffer_load_dwordx4 {vr(XX+4*j,4)}, v3, s[20:23], 0 offen offset:{256*j}")
    nextra = 0
    if first:
        e("  v_lshlrev_b32 v4, 4, v2")
        for j in range(4):
            e(f"  buffer_load_dwordx4 {vr(WR+4*j,4)}, v4, s[28:31], 0 offen offset:{256*j}")
        nextra = 4
    e("  v_mov_b32 v14, 0")
    e("  v_mov_b32 v15, 0")
    for j in range(4):
        e(f"  s_waitcnt vmcnt({nextra + 3*(3-j)})")
        for q in range(4):
            i = 4*j + q
            e(f"  v_lshlrev_b32 v{T}, 16, v{YR+i}")
            e(f"  v_and_b32 v{T+1}, 0xffff0000, v{YR+i}")
            e(f"  v_lshlrev_b32 v{T+2}, 16, v{YI+i}")
            e(f"  v_and_b32 v{T+3}, 0xffff0000, v{YI+i}")
            e(f"  v_pk_add_f32 {vr(T,2)}, {vr(T,2)}, {vr(T+2,2)} neg_lo:[0,1] neg_hi:[0,1]")
            e(f"  v_cvt_pk_bf16_f32 v{T}, v{T}, v{T+1}")
            e(f"  v_and_b32 v{T+1}, 0xffff0000, v{T}")
            e(f"  v_lshlrev_b32 v{T}, 16, v{T}")
            e(f"  v_lshlrev_b32 v{T+2}, 16, v{XX+i}")
            e(f"  v_and_b32 v{T+3}, 0xffff0000, v{XX+i}")
            e(f"  v_pk_add_f32 {vr(T,2)}, {vr(T,2)}, {vr(T+2,2)}")
            e(f"  v_cvt_pk_bf16_f32 v{YI+i}, v{T}, v{T+1}")
            e(f"  v_lshlrev_b32 v{H+2*i}, 16, v{YI+i}")
            e(f"  v_and_b32 v{H+2*i+1}, 0xffff0000, v{YI+i}")
            e(f"  v_pk_add_f32 v[14:15], v[14:15], {vr(H+2*i,2)}")
    e("  v_add_f32 v5, v14, v15")
    reduce16(5)
    e("  v_mul_f32 v5, 0x3b000000, v5")
    e("  v_cvt_pk_bf16_f32 v6, v5, v5")
    e("  v_lshlrev_b32 v6, 16, v6")
    e("  v_sub_f32 v8, 0, v6")
    e("  v_mov_b32 v9, v8")
    e("  v_mov_b32 v10, 0")
    e("  v_mov_b32 v11, 0")
    for i in range(16):
        e(f"  v_pk_add_f32 {vr(D+2*i,2)}, {vr(H+2*i,2)}, v[8:9]")
        e(f"  v_pk_fma_f32 v[10:11], {vr(D+2*i,2)}, {vr(D+2*i,2)}, v[10:11]")
    e("  v_add_f32 v10, v10, v11")
    reduce16(10)
    e("  v_sub_f32 v11, v5, v6")
    e("  v_mul_f32 v11, v11, v11")
    e("  v_mul_f32 v10, 0x3b000000, v10")
    e("  v_sub_f32 v10, v10, v11")
    e("  v_max_f32 v10, 0, v10")
    e("  v_cvt_pk_bf16_f32 v10, v10, v10")
    e("  v_lshlrev_b32 v10, 16, v10")
    e("  v_add_f32 v10, 0x3727c5ac, v10")
    e("  v_cvt_pk_bf16_f32 v10, v10, v10")
    e("  v_lshlrev_b32 v10, 16, v10")
    e("  v_sqrt_f32 v10, v10")
    e("  s_nop 0")
    e("  v_cvt_pk_bf16_f32 v10, v10, v10")
    e("  v_lshlrev_b32 v10, 16, v10")
    e("  v_rcp_f32 v10, v10")
    e("  s_nop 0")
    e("  v_mov_b32 v11, v10")
    if first:
        e("  v_mov_b32 v12, 0")
        e("  s_waitcnt vmcnt(0)")
    for i in range(16):
        e(f"  v_cvt_pk_bf16_f32 v{T}, v{D+2*i}, v{D+2*i+1}")
        e(f"  v_lshlrev_b32 v{D+2*i}, 16, v{T}")
        e(f"  v_and_b32 v{D+2*i+1}, 0xffff0000, v{T}")
        e(f"  v_pk_mul_f32 {vr(D+2*i,2)}, {vr(D+2*i,2)}, v[10:11]")
        e(f"  v_cvt_pk_bf16_f32 v{YR+i}, v{D+2*i}, v{D+2*i+1}")
        if first:
            e(f"  v_dot2_f32_bf16 v12, v{YR+i}, v{WR+i}, v12")
            e(f"  v_lshlrev_b32 v{D+2*i}, 16, v{YR+i}")
            e(f"  v_and_b32 v{D+2*i+1}, 0xffff0000, v{YR+i}")
            e(f"  v_pk_add_f32 {vr(D+2*i,2)}, {vr(D+2*i,2)}, {vr(H+2*i,2)}")
            e(f"  v_cvt_pk_bf16_f32 v{O+i}, v{D+2*i}, v{D+2*i+1}")
    if first:
        e("  s_nop 3")
        reduce16(12)
        e("  v_cvt_pk_bf16_f32 v12, v12, v12")
        e("  v_lshlrev_b32 v12, 16, v12")
        e("  v_ashrrev_i32 v13, 31, v12")
        e("  v_or_b32 v13, 0x80000000, v13")
        e("  v_xor_b32 v12, v12, v13")
        e("  v_and_b32 v12, 0xffff0000, v12")
        e("  v_sub_u32 v13, 0xffff, v1")
        e("  v_or_b32 v12, v12, v13")

def gen_tf():
    name = "tf_kernel"
    kernel_begin(name)
    LDS_G, LDS_U, LDS_WD = 0, 8192, 16384
    LDS_XS = 45056
    LDS_HS = LDS_XS + 8 * XS_STRIDE
    LDS_C = LDS_HS + 8192
    LDS_R = LDS_C + 256
    SPIN = 1 << 22
    e("  s_cmp_ge_u32 s2, 256")
    e("  s_cbranch_scc1 tf_done")
    e(f"  s_load_dwordx2 s[4:5], s[0:1], {KA_X}")
    e(f"  s_load_dwordx2 s[6:7], s[0:1], {KA_WS}")
    e(f"  s_load_dwordx8 s[8:15], s[0:1], {KA_WR}")
    e(f"  s_load_dwordx2 s[16:17], s[0:1], {KA_OUT}")
    e("  s_and_b32 s3, s2, 7")
    e("  s_mul_i32 s49, s3, 28")
    e("  s_lshr_b32 s50, s2, 3")
    e("  s_add_u32 s49, s49, s50")
    e("  s_sub_u32 s50, s50, 24")
    e("  s_lshl_b32 s51, s3, 3")
    e("  s_add_u32 s50, s50, s51")
    e("  v_mov_b32 v180, v0")
    e("  v_lshrrev_b32 v1, 6, v0")
    e("  v_and_b32 v0, 63, v0")
    e("  v_readfirstlane_b32 s48, v1")
    e("  s_waitcnt lgkmcnt(0)")
    srd(20, 4, 5, 2 << 20)
    srd(24, 6, 7, 9 << 20)
    srd(28, 8, 9, 1024)
    srd(32, 10, 11, 512*1792*2)
    srd(36, 12, 13, 512*1792*2)
    srd(40, 14, 15, 1792*512*2)
    srd(44, 16, 17, 2 << 20)
    e("  s_cmp_lt_u32 s48, 2")
    e("  s_cbranch_scc1 tf_p1")
    e("  s_cmp_ge_u32 s2, 224")
    e("  s_cbranch_scc1 tf_nof1")
    e("  s_movk_i32 s52, 3584")
    e("  v_mul_lo_u32 v3, v0, s52")
    e("  s_lshl_b32 s53, s49, 4")
    e("  s_cmp_eq_u32 s48, 2")
    e("  s_cbranch_scc0 tf_dma_u")
    for i in range(8):
        e(f"  s_mov_b32 m0, {LDS_G + 1024*i}")
        e("  s_nop 0")
        e("  buffer_load_dwordx4 v3, s[32:35], s53 offen lds")
        e(f"  s_add_u32 s53, s53, {64*3584}")
    e("  s_branch tf_nof1")
    lab("tf_dma_u")
    for i in range(8):
        e(f"  s_mov_b32 m0, {LDS_U + 1024*i}")
        e("  s_nop 0")
        e("  buffer_load_dwordx4 v3, s[36:39], s53 offen lds")
        e(f"  s_add_u32 s53, s53, {64*3584}")
    lab("tf_nof1")
    e("  s_cmp_lt_u32 s2, 192")
    e("  s_cbranch_scc1 tf_poll1")
    e("  v_lshlrev_b32 v3, 10, v0")
    e("  s_sub_u32 s52, s48, 2")
    e(f"  s_mul_i32 s53, s52, {896*1024}")
    e("  s_lshl_b32 s54, s50, 4")
    e("  s_add_u32 s53, s53, s54")
    e(f"  s_mul_i32 s54, s52, {896*16}")
    for i in range(14):
        e(f"  s_add_u32 m0, s54, {LDS_WD + 1024*i}")
        e("  s_nop 0")
        e("  buffer_load_dwordx4 v3, s[40:43], s53 offen lds")
        e("  s_add_u32 s53, s53, 0x10000")
    e("  s_branch tf_poll1")
    lab("tf_p1")
    e("  v_lshrrev_b32 v1, 4, v180")
    e("  v_and_b32 v2, 15, v0")
    e("  s_lshl_b32 s52, s2, 3")
    e("  v_add_u32 v1, s52, v1")
    e("  v_mov_b32 v181, v1")
    rowmac(True)
    e("  v_cmp_eq_u32 vcc, 0, v2")
    e("  s_and_saveexec_b64 s[56:57], vcc")
    e("  v_lshlrev_b32 v13, 2, v1")
    e(f"  s_mov_b32 s52, {WS_KEY}")
    e("  buffer_store_dword v12, v13, s[24:27], s52 offen sc1")
    e("  s_mov_b64 exec, s[56:57]")
    stamp(1)
    lab("tf_poll1")
    K = 164
    e("  v_lshlrev_b32 v172, 5, v180")
    e(f"  s_mov_b32 s52, {WS_KEY}")
    e("  s_mov_b32 s60, 0")
    lab("tf_poll1_loop")
    e(f"  buffer_load_dwordx4 {vr(K,4)}, v172, s[24:27], s52 offen sc1")
    e(f"  buffer_load_dwordx4 {vr(K+4,4)}, v172, s[24:27], s52 offen offset:16 sc1")
    e("  s_waitcnt vmcnt(0)")
    e(f"  v_min3_u32 v173, v{K}, v{K+1}, v{K+2}")
    e(f"  v_min3_u32 v174, v{K+3}, v{K+4}, v{K+5}")
    e(f"  v_min3_u32 v173, v173, v{K+6}, v{K+7}")
    e("  v_min_u32 v173, v173, v174")
    e("  v_cmp_eq_u32 s[62:63], 0, v173")
    e("  s_nop 3")
    e("  s_cmp_eq_u64 s[62:63], 0")
    e("  s_cbranch_scc1 tf_poll1_ok")
    e("  s_add_u32 s60, s60, 1")
    e(f"  s_cmp_gt_u32 s60, {SPIN}")
    e("  s_cbranch_scc1 tf_poll1_ok")
    e("  s_sleep 1")
    e("  s_branch tf_poll1_loop")
    lab("tf_poll1_ok")
    stamp(2)
    e("  v_mov_b32 v176, 0")
    for rnd in range(8):
        e(f"  v_max3_u32 v173, v{K}, v{K+1}, v{K+2}")
        e(f"  v_max3_u32 v174, v{K+3}, v{K+4}, v{K+5}")
        e(f"  v_max3_u32 v173, v173, v{K+6}, v{K+7}")
        e("  v_max_u32 v173, v173, v174")
        e("  s_nop 1")
        e("  v_max_u32_dpp v173, v173, v173 quad_perm:[1,0,3,2] row_mask:0xf bank_mask:0xf")
        e("  s_nop 1")
        e("  v_max_u32_dpp v173, v173, v173 quad_perm:[2,3,0,1] row_mask:0xf bank_mask:0xf")
        e("  s_nop 1")
        e("  v_max_u32_dpp v173, v173, v173 row_half_mirror row_mask:0xf bank_mask:0xf")
        e("  s_nop 1")
        e("  v_max_u32_dpp v173, v173, v173 row_mirror row_mask:0xf bank_mask:0xf")
        e("  s_nop 1")
        e("  v_readlane_b32 s64, v173, 0")
        e("  v_readlane_b32 s65, v173, 16")
        e("  v_readlane_b32 s66, v173, 32")
        e("  v_readlane_b32 s67, v173, 48")
        e("  s_max_u32 s64, s64, s65")
        e("  s_max_u32 s66, s66, s67")
        e("  s_max_u32 s64, s64, s66")
        e(f"  v_writelane_b32 v176, s64, {rnd}")
        if rnd < 7:
            for k in range(8):
                e(f"  v_cmp_ne_u32 vcc, s64, v{K+k}")
                e("  s_nop 1")
                e(f"  v_cndmask_b32 v{K+k}, 0, v{K+k}, vcc")
    e("  s_lshl_b32 s52, s48, 5")
    e(f"  s_add_u32 s52, s52, {LDS_C}")
    e("  v_lshlrev_b32 v172, 2, v0")
    e("  v_add_u32 v172, s52, v172")
    e("  v_cmp_gt_u32 vcc, 8, v0")
    e("  s_and_saveexec_b64 s[56:57], vcc")
    e("  ds_write_b32 v172, v176")
    e("  s_mov_b64 exec, s[56:57]")
    e("  s_waitcnt lgkmcnt(0)")
    e("  s_barrier")
    e("  v_and_b32 v172, 31, v0")
    e("  v_lshlrev_b32 v172, 2, v172")
    e(f"  ds_read_b32 v177, v172 offset:{LDS_C}")
    e("  v_mov_b32 v178, 0")
    e("  s_waitcnt lgkmcnt(0)")
    for i in range(32):
        e(f"  v_readlane_b32 s64, v177, {i}")
        e("  s_nop 1")
        e("  v_cmp_gt_u32 vcc, s64, v177")
        e("  s_nop 1")
        e("  v_addc_co_u32 v178, vcc, 0, v178, vcc")
    e("  v_cmp_gt_u32 vcc, 8, v178")
    e("  v_cmp_gt_u32 s[58:59], 32, v0")
    e("  s_and_b64 vcc, vcc, s[58:59]")
    e("  v_lshlrev_b32 v172, 2, v178")
    e("  s_and_saveexec_b64 s[56:57], vcc")
    e(f"  ds_write_b32 v172, v177 offset:{LDS_C+128}")
    e("  s_mov_b64 exec, s[56:57]")
    e("  s_waitcnt lgkmcnt(0)")
    e("  s_barrier")
    stamp(3)
    e("  s_cmp_lt_u32 s48, 2")
    e("  s_cbranch_scc1 tf_p2")
    e("  s_waitcnt vmcnt(0)")
    e("  s_branch tf_p2_end")
    lab("tf_p2")
    e("  v_mov_b32 v172, 0")
    e(f"  ds_read_b128 {vr(K,4)}, v172 offset:{LDS_C+128}")
    e(f"  ds_read_b128 {vr(K+4,4)}, v172 offset:{LDS_C+144}")
    e("  v_lshrrev_b32 v173, 4, v180")
    e("  v_lshlrev_b32 v173, 2, v173")
    e(f"  ds_read_b32 v174, v173 offset:{LDS_C+128}")
    e("  v_sub_u32 v175, 0xffff, v181")
    e("  s_waitcnt lgkmcnt(0)")
    e("  s_mov_b64 s[58:59], exec")
    for k in range(8):
        e(f"  v_and_b32 v{K+k}, 0xffff, v{K+k}")
        e(f"  v_cmp_ne_u32 vcc, v{K+k}, v175")
        e("  s_and_b64 s[58:59], s[58:59], vcc")
    e("  v_lshlrev_b32 v3, 10, v181")
    e("  v_lshl_add_u32 v3, v2, 4, v3")
    e("  s_and_saveexec_b64 s[56:57], s[58:59]")
    e("  s_cbranch_execz tf_nostore")
    for j in range(4):
        e(f"  buffer_store_dwordx4 {vr(148+4*j,4)}, v3, s[44:47], 0 offen offset:{256*j}")
    lab("tf_nostore")
    e("  s_mov_b64 exec, s[56:57]")
    e("  v_and_b32 v1, 0xffff, v174")
    e("  v_sub_u32 v1, 0xffff, v1")
    rowmac(False)
    e("  v_lshrrev_b32 v173, 4, v180")
    e(f"  v_mul_u32_u24 v4, {XS_STRIDE}, v173")
    e("  v_lshl_add_u32 v4, v2, 4, v4")
    e("  v_lshlrev_b32 v5, 10, v173")
    e("  v_lshl_add_u32 v5, v2, 4, v5")
    for j in range(4):
        e(f"  ds_write_b128 v4, {vr(16+4*j,4)} offset:{LDS_XS+256*j}")
        e(f"  ds_write_b128 v5, {vr(32+4*j,4)} offset:{LDS_HS+256*j}")
    e("  s_waitcnt lgkmcnt(0)")
    lab("tf_p2_end")
    e("  s_barrier")
    stamp(4)
    e("  s_cmp_lg_u32 s48, 0")
    e("  s_cbranch_scc1 tf_f2")
    e("  s_cmp_ge_u32 s2, 224")
    e("  s_cbranch_scc1 tf_f2")
    e("  v_and_b32 v3, 7, v0")
    e(f"  v_mul_u32_u24 v3, {XS_STRIDE}, v3")
    e("  v_lshrrev_b32 v4, 4, v0")
    e("  v_lshl_add_u32 v3, v4, 4, v3")
    e("  v_and_b32 v5, 15, v0")
    e("  v_lshrrev_b32 v5, 2, v5")
    e("  v_lshl_add_u32 v5, v4, 3, v5")
    e("  v_lshlrev_b32 v5, 4, v5")
    e("  v_and_b32 v6, 1, v0")
    e("  v_lshl_add_u32 v5, v6, 3, v5")
    e("  v_and_b32 v6, 2, v0")
    e("  v_lshl_add_u32 v5, v6, 12, v5")
    for i in range(4):
        e(f"  v_mov_b32 v{8+i}, 0")
    FA, FB = 16, 80
    for st in range(16):
        e(f"  ds_read_b128 {vr(FA+4*st,4)}, v3 offset:{LDS_XS + 64*st}")
        e(f"  ds_read_b64_tr_b16 {vr(FB+4*st,2)}, v5 offset:{512*st}")
        e(f"  ds_read_b64_tr_b16 {vr(FB+4*st+2,2)}, v5 offset:{512*st+64}")
        if st % 4 == 3:
            e("  s_waitcnt lgkmcnt(0)")
            for s2 in range(st-3, st+1):
                e(f"  v_mfma_f32_16x16x32_bf16 v[8:11], {vr(FA+4*s2,4)}, {vr(FB+4*s2,4)}, v[8:11]")
    e("  s_nop 15")
    for i in range(4):
        e(f"  v_cvt_pk_bf16_f32 v{8+i}, v{8+i}, v{8+i}")
        e(f"  v_lshlrev_b32 v{8+i}, 16, v{8+i}")
    e("  s_nop 1")
    for i in range(4):
        e(f"  v_mov_b32_dpp v{12+i}, v{8+i} row_ror:8 row_mask:0xf bank_mask:0xf")
    for i in range(4):
        e(f"  v_mul_f32 v16, 0xbfb8aa3b, v{8+i}")
        e("  v_exp_f32 v16, v16")
        e("  s_nop 0")
        e("  v_add_f32 v16, 1.0, v16")
        e("  v_rcp_f32 v16, v16")
        e("  s_nop 0")
        e(f"  v_mul_f32 v16, v{8+i}, v16")
        e("  v_cvt_pk_bf16_f32 v16, v16, v16")
        e("  v_lshlrev_b32 v16, 16, v16")
        e(f"  v_mul_f32 v16, v16, v{12+i}")
        e(f"  v_cvt_pk_bf16_f32 v{20+i}, v16, v16")
    e("  s_nop 1")
    for i in range(4):
        e(f"  v_mov_b32_dpp v{24+i}, v{20+i} quad_perm:[1,0,3,2] row_mask:0xf bank_mask:0xf")
    for i in range(4):
        e(f"  v_and_b32 v{20+i}, 0xffff, v{20+i}")
        e(f"  v_and_b32 v{24+i}, 0xffff0000, v{24+i}")
        e(f"  v_or_b32 v{20+i}, v{20+i}, v{24+i}")
    e("  v_and_b32 v5, 15, v0")
    e("  v_and_b32 v6, 9, v0")
    e("  v_cmp_eq_u32 vcc, 0, v6")
    e("  v_cmp_gt_u32 s[58:59], 32, v0")
    e("  s_and_b64 vcc, vcc, s[58:59]")
    e("  s_and_saveexec_b64 s[56:57], vcc")
    e("  v_lshlrev_b32 v4, 2, v4")
    e("  v_mul_u32_u24 v4, 3584, v4")
    e("  v_lshl_add_u32 v4, v5, 1, v4")
    e("  s_lshl_b32 s52, s49, 4")
    e(f"  s_add_u32 s52, s52, {WS_GU}")
    for i in range(4):
        e(f"  buffer_store_dword v{20+i}, v4, s[24:27], s52 offen sc1")
        if i < 3:
            e("  v_add_u32 v4, 3584, v4")
    e("  s_waitcnt vmcnt(0)")
    e("  s_mov_b64 exec, 1")
    e("  v_mov_b32 v4, 1")
    e("  v_mov_b32 v5, 0")
    e("  s_lshl_b32 s52, s49, 2")
    e(f"  s_add_u32 s52, s52, {WS_FLAG}")
    e("  buffer_store_dword v4, v5, s[24:27], s52 offen sc1")
    e("  s_mov_b64 exec, s[56:57]")
    stamp(5)
    lab("tf_f2")
    e("  s_cmp_lt_u32 s2, 192")
    e("  s_cbranch_scc1 tf_done")
    e("  v_min_u32 v3, 55, v0")
    e("  v_lshlrev_b32 v3, 2, v3")
    e("  s_mul_i32 s52, s48, 224")
    e(f"  s_add_u32 s52, s52, {WS_FLAG}")
    e("  s_mov_b32 s60, 0")
    lab("tf_poll2_loop")
    e("  buffer_load_dword v4, v3, s[24:27], s52 offen sc1")
    e("  s_waitcnt vmcnt(0)")
    e("  v_cmp_eq_u32 s[62:63], 0, v4")
    e("  s_nop 3")
    e("  s_cmp_eq_u64 s[62:63], 0")
    e("  s_cbranch_scc1 tf_poll2_ok")
    e("  s_add_u32 s60, s60, 1")
    e(f"  s_cmp_gt_u32 s60, {SPIN}")
    e("  s_cbranch_scc1 tf_poll2_ok")
    e("  s_sleep 1")
    e("  s_branch tf_poll2_loop")
    lab("tf_poll2_ok")
    stamp(6)
    e("  v_and_b32 v4, 7, v0")
    e("  v_mul_u32_u24 v4, 3584, v4")
    e("  v_lshrrev_b32 v5, 4, v0")
    e("  v_lshl_add_u32 v4, v5, 4, v4")
    e("  s_mul_i32 s52, s48, 896")
    e(f"  s_add_u32 s52, s52, {WS_GU}")
    FA, FB = 16, 72
    for st in range(14):
        e(f"  buffer_load_dwordx4 {vr(FA+4*st,4)}, v4, s[24:27], s52 offen offset:{64*st} sc1")
    e("  v_and_b32 v7, 15, v0")
    e("  v_lshrrev_b32 v7, 2, v7")
    e("  v_lshl_add_u32 v7, v5, 3, v7")
    e("  v_lshlrev_b32 v7, 4, v7")
    e("  v_and_b32 v6, 1, v0")
    e("  v_lshl_add_u32 v7, v6, 3, v7")
    e("  s_mul_i32 s54, s48, 7168")
    e(f"  s_add_u32 s54, s54, {LDS_WD}")
    e("  v_add_u32 v7, s54, v7")
    for st in range(14):
        e(f"  ds_read_b64_tr_b16 {vr(FB+4*st,2)}, v7 offset:{512*st}")
        e(f"  ds_read_b64_tr_b16 {vr(FB+4*st+2,2)}, v7 offset:{512*st+64}")
    for i in range(4):
        e(f"  v_mov_b32 v{8+i}, 0")
    e("  s_waitcnt vmcnt(0) lgkmcnt(0)")
    for st in range(14):
        e(f"  v_mfma_f32_16x16x32_bf16 v[8:11], {vr(FA+4*st,4)}, {vr(FB+4*st,4)}, v[8:11]")
    e("  s_nop 15")
    e("  v_lshlrev_b32 v3, 4, v0")
    e("  s_lshl_b32 s52, s48, 10")
    e("  v_add_u32 v3, s52, v3")
    e(f"  ds_write_b128 v3, v[8:11] offset:{LDS_R}")
    e("  s_waitcnt lgkmcnt(0)")
    e("  s_barrier")
    e("  s_cmp_lg_u32 s48, 0")
    e("  s_cbranch_scc1 tf_done")
    e("  v_lshlrev_b32 v3, 4, v0")
    for w in range(1, 4):
        e(f"  ds_read_b128 {vr(12+4*(w-1),4)}, v3 offset:{LDS_R+1024*w}")
    e("  v_and_b32 v6, 1, v5")
    e("  v_lshlrev_b32 v6, 4, v6")
    e(f"  ds_read_b128 v[24:27], v6 offset:{LDS_C+128}")
    e("  v_and_b32 v6, 7, v0")
    e("  s_lshl_b32 s52, s50, 4")
    e("  v_lshl_add_u32 v6, v6, 1, s52")
    e("  v_and_b32 v7, 1, v5")
    e("  v_lshlrev_b32 v7, 2, v7")
    for i in range(4):
        e(f"  v_add_u32 v28, {i}, v7")
        e(f"  v_mul_u32_u24 v29, {XS_STRIDE}, v28")
        e("  v_add_u32 v29, v29, v6")
        e(f"  ds_read_u16 v{36+i}, v29 offset:{LDS_XS}")
        e("  v_lshl_add_u32 v29, v28, 10, v6")
        e(f"  ds_read_u16 v{40+i}, v29 offset:{LDS_HS}")
    e("  v_and_b32 v30, 15, v0")
    e("  v_cmp_gt_u32 vcc, 8, v30")
    e("  v_cmp_gt_u32 s[58:59], 32, v0")
    e("  s_and_b64 vcc, vcc, s[58:59]")
    e("  s_waitcnt lgkmcnt(0)")
    e("  s_and_saveexec_b64 s[56:57], vcc")
    for i in range(4):
        e(f"  v_add_f32 v{8+i}, v{8+i}, v{12+i}")
        e(f"  v_add_f32 v{16+i}, v{16+i}, v{20+i}")
        e(f"  v_add_f32 v{8+i}, v{8+i}, v{16+i}")
        e(f"  v_cvt_pk_bf16_f32 v{8+i}, v{8+i}, v{8+i}")
        e(f"  v_lshlrev_b32 v{8+i}, 16, v{8+i}")
        e(f"  v_and_b32 v60, 0xffff0000, v{24+i}")
        e("  v_ashrrev_i32 v61, 31, v60")
        e("  v_not_b32 v61, v61")
        e("  v_or_b32 v61, 0x80000000, v61")
        e("  v_xor_b32 v60, v60, v61")
        e("  v_and_b32 v60, 0xffff0000, v60")
        e("  v_mul_f32 v60, 0xbfb8aa3b, v60")
        e("  v_exp_f32 v60, v60")
        e("  s_nop 0")
        e("  v_add_f32 v60, 1.0, v60")
        e("  v_rcp_f32 v60, v60")
        e("  s_nop 0")
        e("  v_cvt_pk_bf16_f32 v60, v60, v60")
        e("  v_lshlrev_b32 v60, 16, v60")
        e(f"  v_mul_f32 v{8+i}, v{8+i}, v60")
        e(f"  v_cvt_pk_bf16_f32 v{8+i}, v{8+i}, v{8+i}")
        e(f"  v_lshlrev_b32 v{8+i}, 16, v{8+i}")
        e(f"  v_lshlrev_b32 v{36+i}, 16, v{36+i}")
        e(f"  v_lshlrev_b32 v{40+i}, 16, v{40+i}")
        e(f"  v_add_f32 v61, v{36+i}, v{8+i}")
        e("  v_cvt_pk_bf16_f32 v61, v61, v61")
        e("  v_lshlrev_b32 v61, 16, v61")
        e(f"  v_add_f32 v61, v{40+i}, v61")
        e("  v_cvt_pk_bf16_f32 v61, v61, v61")
        e(f"  v_and_b32 v62, 0xffff, v{24+i}")
        e("  v_sub_u32 v62, 0xffff, v62")
        e("  v_lshl_add_u32 v62, v62, 10, v6")
        e("  buffer_store_short v61, v62, s[44:47], 0 offen")
    lab("tf_done")
    kernel_end()
    e("  s_endpgm")
    kernel_desc(name, 184)

def main():
    hdr = open("cdna_kernels/" + NAME + ".s.ref").read().splitlines()
    out = []
    for ln in hdr:
        if ln.startswith("; @launch"):
            out.append("; @launch kernel=k1_kernel grid=(256,1,1) block=(%d,1,1) lds=131072" % (576 if OPT('K1_PF', 1) else 512))
            out.append("; @launch kernel=k2_kernel grid=(256,1,1) block=(%d,1,1) lds=%d" % (576, K2_NS*24576))
            if OPT('TF'):
                out.append("; @launch kernel=tf_kernel grid=(256,1,1) block=(256,1,1) lds=66048")
            else:
                if not OPT('K2T1', 1):
                    out.append("; @launch kernel=t1_kernel grid=(256,1,1) block=(%d,1,1) lds=0" % (192 if OPT('T1_PF', 1) else 128))
                if OPT('T4', 1):
                    out.append("; @launch kernel=t4_kernel grid=(240,1,1) block=(256,1,1) lds=123392")
                else:
                    out.append("; @launch kernel=t2_kernel grid=(224,1,1) block=(256,1,1) lds=25600")
                    out.append("; @launch kernel=t3_kernel grid=(64,1,1) block=(256,1,1) lds=32768")
            break
        out.append(ln)
    out.append('.amdgcn_target "amdgcn-amd-amdhsa--gfx950"')
    out.append(".text")
    gen_k1(); gen_k2()
    if OPT('TF'): gen_tf()
    elif OPT('T4', 1):
        if not OPT('K2T1', 1): gen_t1()
        gen_t4()
    else: gen_t1(); gen_t2(); gen_t3()
    out += L
    out.append('.section .rodata,"a"')
    out += KD
    dst = sys.argv[1] if len(sys.argv) > 1 else "cdna_kernels/" + NAME + ".s"
    open(dst, "w").write("\n".join(out) + "\n")

main()
```

```python
import sys, os
OPT = lambda k, d=0: int(os.environ.get(k, d))

NAME = "sequential_preLN__spectral_fnet__moe_arch_mod__prompt"
L = []
def e(s=""):
    L.append(s)
def lab(s):
    L.append(s + ":")

KA_X, KA_WSRE, KA_WSIM, KA_WDRE, KA_WDIM = 0, 8, 16, 24, 32
KA_WR, KA_WG, KA_WU, KA_WDN, KA_OUT, KA_DBG, KA_WS = 48, 56, 64, 72, 80, 88, 96
WS_YB = 0
WS_Y = 4 << 20
WS_KEY = 8 << 20
WS_STAT = (8 << 20) + 8192
WS_GU = (8 << 20) + 65536
WS_IDX = (8 << 20) + 131072
WS_FLAG = (8 << 20) + 196608
WS_WDB = 10 << 20
WS_SIZE = 268435456

KIDX = [0]
NV = {"k1_kernel": 160, "k2_kernel": 160, "t1_kernel": 148, "t2_kernel": 192, "t3_kernel": 192, "tf_kernel": 184, "t4_kernel": 252}
CUR = [0]
def kernel_begin(name):
    CUR[0] = NV[name]
    e(f".globl {name}")
    e(".p2align 8")
    e(f".type {name},@function")
    lab(name)
    if OPT('DIAG'):
        e("  s_memrealtime s[72:73]")
        for i in range(1, 7):
            e(f"  s_mov_b64 s[{72+2*i}:{73+2*i}], 0")
        e(f"  s_load_dwordx2 s[94:95], s[0:1], {KA_WS}")
        e(f"  v_mov_b32 v{CUR[0]}, v0")

def stamp(i):
    if OPT('DIAG'):
        e(f"  s_memrealtime s[{72+2*i}:{73+2*i}]")

def kernel_end():
    if OPT('DIAG'):
        e("  s_waitcnt vmcnt(0) lgkmcnt(0)")
        e("  s_memrealtime s[86:87]")
        e("  s_mov_b32 s88, s94")
        e("  s_mov_b32 s89, s95")
        e("  s_mov_b32 s90, 0x4000000")
        e("  s_mov_b32 s91, 0x00020000")
        e("  s_waitcnt lgkmcnt(0)")
        e("  s_mov_b64 exec, 1")
        for i in range(16):
            e(f"  v_mov_b32 v{i}, s{72+i}")
        e(f"  v_lshrrev_b32 v{CUR[0]+1}, 6, v{CUR[0]}")
        e(f"  v_lshlrev_b32 v{CUR[0]+1}, 6, v{CUR[0]+1}")
        e("  s_lshl_b32 s92, s2, 10")
        e(f"  s_add_u32 s92, s92, {(16 << 20) + KIDX[0] * 0x100000}")
        for i in range(4):
            e(f"  buffer_store_dwordx4 v[{4*i}:{3+4*i}], v{CUR[0]+1}, s[88:91], s92 offen offset:{16*i}")
    KIDX[0] += 1

KD = []
def kernel_desc(name, vgpr, sgpr=102):
    assert vgpr == CUR[0]
    if OPT('DIAG'): vgpr += 2
    acc = (vgpr + 3) // 4 * 4
    KD.append(f""".p2align 6
.amdhsa_kernel {name}
  .amdhsa_next_free_vgpr {vgpr}
  .amdhsa_next_free_sgpr {sgpr}
  .amdhsa_accum_offset {acc}
  .amdhsa_group_segment_fixed_size 0
  .amdhsa_kernarg_size 104
  .amdhsa_user_sgpr_count 2
  .amdhsa_user_sgpr_kernarg_segment_ptr 1
  .amdhsa_system_sgpr_workgroup_id_x 1
.end_amdhsa_kernel""")

def srd(d, lo, hi, size):
    e(f"  s_mov_b32 s{d}, s{lo}")
    e(f"  s_mov_b32 s{d+1}, s{hi}")
    e(f"  s_mov_b32 s{d+2}, {size}")
    e(f"  s_mov_b32 s{d+3}, 0x00020000")

def vr(a, n):
    return f"v[{a}:{a+n-1}]"

def reduce8(v):
    e("  s_nop 1")
    e(f"  v_add_f32_dpp v{v}, v{v}, v{v} quad_perm:[1,0,3,2] row_mask:0xf bank_mask:0xf")
    e("  s_nop 1")
    e(f"  v_add_f32_dpp v{v}, v{v}, v{v} quad_perm:[2,3,0,1] row_mask:0xf bank_mask:0xf")
    e("  s_nop 1")
    e(f"  v_add_f32_dpp v{v}, v{v}, v{v} row_half_mirror row_mask:0xf bank_mask:0xf")

def reduce16(v):
    reduce8(v)
    e("  s_nop 1")
    e(f"  v_add_f32_dpp v{v}, v{v}, v{v} row_mirror row_mask:0xf bank_mask:0xf")

def gen_k1():
    name = "k1_kernel"
    kernel_begin(name)
    e("  s_cmp_ge_u32 s2, 256")
    e("  s_cbranch_scc1 k1_done")
    e(f"  s_load_dwordx2 s[4:5], s[0:1], {KA_X}")
    e(f"  s_load_dwordx4 s[8:11], s[0:1], {KA_WDRE}")
    e(f"  s_load_dwordx2 s[6:7], s[0:1], {KA_WS}")
    e("  s_and_b32 s12, s2, 7")
    e("  s_lshr_b32 s13, s2, 3")
    e("  s_and_b32 s14, s13, 3")
    e("  s_lshl_b32 s12, s12, 2")
    e("  s_add_u32 s12, s12, s14")
    e("  s_lshr_b32 s13, s13, 2")
    e("  v_lshrrev_b32 v1, 6, v0")
    e("  v_and_b32 v0, 63, v0")
    e("  v_readfirstlane_b32 s15, v1")
    e("  v_lshrrev_b32 v2, 3, v0")
    e("  v_and_b32 v3, 7, v0")
    if OPT('K1_PF', 1) or OPT('K1_PFEND', 0):
        e(f"  s_load_dwordx4 s[40:43], s[0:1], {KA_WSRE}")
    e("  s_waitcnt lgkmcnt(0)")
    if OPT('K1_PF', 1):
        e("  s_cmp_lg_u32 s15, 8")
        e("  s_cbranch_scc1 k1_main")
        e("  s_and_b32 s44, s2, 7")
        e("  s_cmp_lt_u32 s44, 4")
        e("  s_cselect_b32 s48, s40, s42")
        e("  s_cselect_b32 s49, s41, s43")
        e(f"  s_mov_b32 s50, {2048*2048*2}")
        e("  s_mov_b32 s51, 0x00020000")
        e("  s_and_b32 s44, s44, 3")
        e("  s_lshl_b32 s44, s44, 21")
        e("  s_lshr_b32 s45, s2, 3")
        e("  s_lshl_b32 s45, s45, 16")
        e("  s_add_u32 s44, s44, s45")
        e("  v_lshlrev_b32 v1, 4, v0")
        e("  s_cmp_lt_u32 s13, 4")
        e("  s_cselect_b32 s56, s8, s10")
        e("  s_cselect_b32 s57, s9, s11")
        e(f"  s_mov_b32 s58, {512*512*2}")
        e("  s_mov_b32 s59, 0x00020000")
        e("  s_and_b32 s46, s13, 3")
        e("  s_lshl_b32 s46, s46, 17")
        for q in range(OPT('K1_CAN', 0)):
            e(f"  buffer_load_dwordx4 v[8:11], v1, s[56:59], s46 offen offset:{q*1024}")
            e("  s_waitcnt vmcnt(0)")
        for q in range(64):
            e(f"  buffer_load_dwordx4 {vr(8+4*(q%32),4)}, v1, s[48:51], s44 offen")
            e("  s_add_u32 s44, s44, 1024")
        e("  s_branch k1_done")
        lab("k1_main")
    srd(16, 4, 5, 2048*512*2)
    e("  s_cmp_lt_u32 s13, 4")
    e("  s_cselect_b32 s20, s8, s10")
    e("  s_cselect_b32 s21, s9, s11")
    e(f"  s_mov_b32 s22, {512*512*2}")
    e("  s_mov_b32 s23, 0x00020000")
    srd(24, 6, 7, 9 << 20)
    e("  s_or_b32 s46, s2, s15")
    e("  s_cmp_lg_u32 s46, 0")
    e("  s_cbranch_scc1 k1_nozero")
    for q in range(4):
        e(f"  v_mov_b32 v{4+q}, 0")
    e("  v_lshlrev_b32 v8, 4, v0")
    e(f"  s_mov_b32 s46, {WS_FLAG}")
    e("  buffer_store_dwordx4 v[4:7], v8, s[24:27], s46 offen")
    e("  s_waitcnt vmcnt(0)")
    lab("k1_nozero")
    e("  s_lshl_b32 s28, s12, 6")
    e("  s_lshl_b32 s29, s15, 3")
    e("  s_add_u32 s28, s28, s29")
    e("  v_add_u32 v4, s28, v2")
    e("  v_lshlrev_b32 v4, 10, v4")
    e("  v_lshl_add_u32 v4, v3, 4, v4")
    X = 32
    for j in range(8):
        e(f"  buffer_load_dwordx4 {vr(X+4*j,4)}, v4, s[16:19], 0 offen offset:{128*j}")
    e("  s_and_b32 s30, s13, 3")
    e("  s_lshl_b32 s30, s30, 7")
    for ii in range(2):
        e(f"  s_lshl_b32 s31, s15, 4")
        e(f"  s_add_u32 s31, s31, {8*ii}")
        e(f"  v_add_u32 v7, s31, v2")
        e(f"  v_lshrrev_b32 v8, 1, v7")
        e(f"  v_and_b32 v8, 7, v8")
        e(f"  v_xor_b32 v8, v8, v3")
        e(f"  v_add_u32 v7, s30, v7")
        e(f"  v_lshlrev_b32 v7, 10, v7")
        e(f"  v_lshl_add_u32 v{5+ii}, v8, 4, v7")
    e("  s_lshl_b32 s32, s15, 11")
    def wdma(kb):
        slot = kb % 4
        e(f"  s_mov_b32 s33, {128*kb}")
        for ii in range(2):
            e(f"  s_add_u32 m0, s32, {slot*16384 + ii*1024}")
            e("  s_nop 0")
            e(f"  buffer_load_dwordx4 v{5+ii}, s[20:23], s33 offen lds")
    for kb in range(4):
        wdma(kb)
    STG = 128
    for kb in (range(4, 8) if OPT('K1_STG') else []):
        e(f"  s_mov_b32 s33, {128*kb}")
        for ii in range(2):
            e(f"  buffer_load_dwordx4 {vr(STG+8*(kb-4)+4*ii,4)}, v{5+ii}, s[20:23], s33 offen")
    e("  s_mov_b32 s34, 0x3f803f80")
    for a in range(4):
        e(f"  v_mov_b32 v{8+a}, 0")
    stamp(1)
    e(f"  s_waitcnt vmcnt({16 if OPT('K1_STG') else 8})")
    stamp(2)
    for i in range(32):
        e(f"  v_dot2_f32_bf16 v{8+i%4}, v{X+i}, s34, v{8+i%4}")
    e("  s_nop 3")
    e("  v_add_f32 v8, v8, v9")
    e("  v_add_f32 v10, v10, v11")
    e("  v_add_f32 v8, v8, v10")
    reduce8(8)
    e("  v_mul_f32 v8, 0x3b000000, v8")
    e("  v_cvt_pk_bf16_f32 v9, v8, v8")
    e("  v_lshlrev_b32 v9, 16, v9")
    e("  v_sub_f32 v10, 0, v9")
    e("  v_mov_b32 v11, v10")
    D = 64
    for a in range(4):
        e(f"  v_mov_b32 v{12+a}, 0")
    for i in range(32):
        e(f"  v_lshlrev_b32 v{D+2*i}, 16, v{X+i}")
        e(f"  v_and_b32 v{D+2*i+1}, 0xffff0000, v{X+i}")
        e(f"  v_pk_add_f32 {vr(D+2*i,2)}, {vr(D+2*i,2)}, v[10:11]")
        q = 12 + 2*(i % 2)
        e(f"  v_pk_fma_f32 {vr(q,2)}, {vr(D+2*i,2)}, {vr(D+2*i,2)}, {vr(q,2)}")
    e("  v_add_f32 v12, v12, v13")
    e("  v_add_f32 v14, v14, v15")
    e("  v_add_f32 v12, v12, v14")
    reduce8(12)
    e("  v_sub_f32 v13, v8, v9")
    e("  v_mul_f32 v13, v13, v13")
    e("  v_mul_f32 v12, 0x3b000000, v12")
    e("  v_sub_f32 v12, v12, v13")
    e("  v_max_f32 v12, 0, v12")
    e("  v_cvt_pk_bf16_f32 v12, v12, v12")
    e("  v_lshlrev_b32 v12, 16, v12")
    e("  v_add_f32 v12, 0x3727c5ac, v12")
    e("  v_cvt_pk_bf16_f32 v12, v12, v12")
    e("  v_lshlrev_b32 v12, 16, v12")
    e("  v_sqrt_f32 v12, v12")
    e("  s_nop 0")
    e("  v_cvt_pk_bf16_f32 v12, v12, v12")
    e("  v_lshlrev_b32 v12, 16, v12")
    e("  v_rcp_f32 v12, v12")
    e("  s_nop 0")
    e("  v_mov_b32 v13, v12")
    for i in range(32):
        e(f"  v_cvt_pk_bf16_f32 v{X+i}, v{D+2*i}, v{D+2*i+1}")
        e(f"  v_lshlrev_b32 v{D+2*i}, 16, v{X+i}")
        e(f"  v_and_b32 v{D+2*i+1}, 0xffff0000, v{X+i}")
        e(f"  v_pk_mul_f32 {vr(D+2*i,2)}, {vr(D+2*i,2)}, v[12:13]")
        e(f"  v_cvt_pk_bf16_f32 v{X+i}, v{D+2*i}, v{D+2*i+1}")
    e("  v_add_u32 v14, s29, v2")
    e("  v_lshrrev_b32 v15, 1, v14")
    e("  v_and_b32 v15, 7, v15")
    e("  v_xor_b32 v15, v15, v3")
    e("  v_lshlrev_b32 v14, 7, v14")
    e("  v_lshl_add_u32 v14, v15, 4, v14")
    e("  v_add_u32 v14, 0x10000, v14")
    for j in range(8):
        e(f"  ds_write_b128 v14, {vr(X+4*j,4)} offset:{8192*j}")
    stamp(3)
    e("  s_and_b32 s35, s15, 1")
    e("  s_lshr_b32 s36, s15, 1")
    e("  v_and_b32 v16, 31, v0")
    e("  v_lshrrev_b32 v17, 5, v0")
    def fragaddr(dst, sblk, base):
        e(f"  s_lshl_b32 s37, s{sblk}, 5")
        e(f"  v_add_u32 v18, s37, v16")
        e(f"  v_lshrrev_b32 v19, 1, v18")
        e(f"  v_and_b32 v19, 7, v19")
        e(f"  v_xor_b32 v19, v19, v17")
        e(f"  v_lshlrev_b32 v18, 7, v18")
        e(f"  v_lshl_add_u32 v{dst}, v19, 4, v18")
        if base:
            e(f"  v_add_u32 v{dst}, {base}, v{dst}")
        for kk in range(1, 4):
            e(f"  v_xor_b32 v{dst+kk}, {32*kk}, v{dst}")
    fragaddr(20, 35, 0x10000)
    fragaddr(24, 36, 0)
    ACC = 96
    for i in range(16):
        e(f"  v_mov_b32 v{ACC+i}, 0")
    e("  v_lshlrev_b32 v28, 4, v0")
    e("  v_add_u32 v28, s32, v28")
    FA, FB = 64, 80
    waits = [14, 6, 4, 2, 0, 0, 0, 0] if OPT('K1_STG') else [6, 4, 4, 4, 4, 4, 2, 0]
    for kb in range(8):
        e(f"  s_waitcnt vmcnt({waits[kb]}) lgkmcnt(0)")
        e("  s_barrier")
        if kb == 0: stamp(4)
        if 1 <= kb <= 4 and not OPT('K1_STG'):
            wdma(kb + 3)
        if 1 <= kb <= 4 and OPT('K1_STG'):
            for ii in range(2):
                e(f"  ds_write_b128 v28, {vr(STG+8*(kb-1)+4*ii,4)} offset:{((kb+3)%4)*16384 + ii*1024}")
        slot = kb % 4
        for kk in range(4):
            e(f"  ds_read_b128 {vr(FA+4*kk,4)}, v{20+kk} offset:{8192*kb}")
            e(f"  ds_read_b128 {vr(FB+4*kk,4)}, v{24+kk} offset:{16384*slot}")
        for kk in range(4):
            e(f"  s_waitcnt lgkmcnt({6-2*kk})")
            e(f"  v_mfma_f32_32x32x16_bf16 {vr(ACC,16)}, {vr(FA+4*kk,4)}, {vr(FB+4*kk,4)}, {vr(ACC,16)}")
    stamp(5)
    e("  s_lshl_b32 s37, s13, 1")
    e("  s_lshr_b32 s38, s36, 1")
    e("  s_add_u32 s37, s37, s38")
    e("  s_lshl_b32 s37, s37, 5")
    e("  s_add_u32 s37, s37, s12")
    e("  s_lshl_b32 s37, s37, 13")
    e("  s_and_b32 s38, s36, 1")
    e("  s_lshl_b32 s38, s38, 5")
    e("  v_add_u32 v18, s38, v16")
    e("  v_lshrrev_b32 v19, 1, v18")
    e("  v_and_b32 v19, 7, v19")
    e("  s_lshl_b32 s38, s35, 2")
    e("  v_add_u32 v29, s38, v17")
    e("  v_xor_b32 v29, v29, v19")
    e("  v_lshlrev_b32 v18, 7, v18")
    e("  v_lshl_add_u32 v30, v29, 4, v18")
    e("  v_xor_b32 v31, 32, v30")
    e("  s_nop 7")
    P = 112
    for g in range(4):
        e(f"  v_cvt_pk_bf16_f32 v{P+2*g}, v{ACC+4*g}, v{ACC+4*g+1}")
        e(f"  v_cvt_pk_bf16_f32 v{P+2*g+1}, v{ACC+4*g+2}, v{ACC+4*g+3}")
    e("  s_nop 1")
    for p in range(2):
        e(f"  v_permlane32_swap_b32 v{P+4*p}, v{P+4*p+2}")
        e(f"  v_permlane32_swap_b32 v{P+4*p+1}, v{P+4*p+3}")
    e(f"  buffer_store_dwordx4 {vr(P,4)}, v30, s[24:27], s37 offen")
    e(f"  buffer_store_dwordx4 {vr(P+4,4)}, v31, s[24:27], s37 offen")
    if OPT('K1_PFEND', 0):
        e("  s_and_b32 s44, s2, 7")
        e("  s_cmp_lt_u32 s44, 4")
        e("  s_cselect_b32 s48, s40, s42")
        e("  s_cselect_b32 s49, s41, s43")
        e(f"  s_mov_b32 s50, {2048*2048*2}")
        e("  s_mov_b32 s51, 0x00020000")
        e("  s_and_b32 s44, s44, 3")
        e("  s_lshl_b32 s44, s44, 21")
        e("  s_lshr_b32 s45, s2, 3")
        e("  s_lshl_b32 s45, s45, 16")
        e("  s_add_u32 s44, s44, s45")
        e("  s_lshl_b32 s45, s15, 13")
        e("  s_add_u32 s44, s44, s45")
        e("  v_lshlrev_b32 v1, 4, v0")
        for q in range(8):
            e(f"  buffer_load_dwordx4 {vr(32+4*q,4)}, v1, s[48:51], s44 offen")
            e("  s_add_u32 s44, s44, 1024")
    lab("k1_done")
    kernel_end()
    e("  s_endpgm")
    kernel_desc(name, 160)

def k2_epilogue_plain(ACC):
    e("  s_lshl_b32 s24, s14, 21")
    e(f"  s_add_u32 s24, s24, {WS_Y}")
    e("  s_lshl_b32 s30, s13, 7")
    e("  s_add_u32 s24, s24, s30")
    e("  s_lshl_b32 s30, s12, 7")
    e("  s_lshl_b32 s31, s15, 5")
    e("  s_add_u32 s30, s30, s31")
    e("  v_add_u32 v18, s30, v16")
    e("  v_lshlrev_b32 v18, 10, v18")
    e("  v_lshl_add_u32 v18, v17, 4, v18")
    e("  s_nop 7")
    P = 64
    for g in range(8):
        e(f"  v_cvt_pk_bf16_f32 v{P+2*g}, v{ACC+4*g}, v{ACC+4*g+1}")
        e(f"  v_cvt_pk_bf16_f32 v{P+2*g+1}, v{ACC+4*g+2}, v{ACC+4*g+3}")
    e("  s_nop 1")
    for p in range(4):
        e(f"  v_permlane32_swap_b32 v{P+4*p}, v{P+4*p+2}")
        e(f"  v_permlane32_swap_b32 v{P+4*p+1}, v{P+4*p+3}")
    for p in range(4):
        e(f"  buffer_store_dwordx4 {vr(P+4*p,4)}, v18, s[20:23], s24 offen offset:{32*p}")

def k2_epilogue_fused(ACC):
    TB = 49152
    e("  s_nop 7")
    P = 64
    for g in range(8):
        e(f"  v_cvt_pk_bf16_f32 v{P+2*g}, v{ACC+4*g}, v{ACC+4*g+1}")
        e(f"  v_cvt_pk_bf16_f32 v{P+2*g+1}, v{ACC+4*g+2}, v{ACC+4*g+3}")
    e("  s_mul_i32 s30, s15, 4608")
    e(f"  s_add_u32 s30, s30, {TB}")
    e("  v_mul_u32_u24 v18, 144, v16")
    e("  v_lshl_add_u32 v18, v17, 3, v18")
    e("  v_add_u32 v18, s30, v18")
    for g in range(8):
        e(f"  ds_write_b64 v18, {vr(P+2*g,2)} offset:{16*g}")
    e("  v_lshrrev_b32 v19, 3, v0")
    e("  v_and_b32 v22, 7, v0")
    e("  v_mul_u32_u24 v20, 144, v19")
    e("  v_lshl_add_u32 v20, v22, 4, v20")
    e("  v_add_u32 v20, s30, v20")
    e("  s_waitcnt lgkmcnt(0)")
    for q in range(4):
        e(f"  ds_read_b128 {vr(80+4*q,4)}, v20 offset:{8*144*q}")
    e("  s_lshl_b32 s24, s14, 21")
    e(f"  s_add_u32 s24, s24, {WS_Y}")
    e("  s_lshl_b32 s30, s13, 7")
    e("  s_add_u32 s24, s24, s30")
    e("  s_lshl_b32 s30, s12, 7")
    e("  s_lshl_b32 s31, s15, 5")
    e("  s_add_u32 s30, s30, s31")
    e("  v_add_u32 v21, s30, v19")
    e("  v_lshlrev_b32 v21, 10, v21")
    e("  v_lshl_add_u32 v21, v22, 4, v21")
    for q in range(4):
        e(f"  s_waitcnt lgkmcnt({3-q})")
        e(f"  buffer_store_dwordx4 {vr(80+4*q,4)}, v21, s[20:23], s24 offen sc1")
        if q < 3: e("  v_add_u32 v21, 0x2000, v21")
    e("  s_waitcnt vmcnt(0)")
    stamp(1)
    e("  s_barrier")
    stamp(2)
    e(f"  s_load_dwordx2 s[4:5], s[0:1], {KA_X}")
    e(f"  s_load_dwordx8 s[56:63], s[0:1], {KA_WR}")
    e(f"  s_load_dwordx2 s[64:65], s[0:1], {KA_OUT}")
    srd(24, 6, 7, 12 << 20)
    e("  s_lshl_b32 s48, s14, 3")
    e("  s_add_u32 s48, s48, s13")
    e("  s_cmp_lg_u32 s15, 0")
    e("  s_cbranch_scc1 k2_noflag")
    e("  s_lshl_b32 s49, s12, 6")
    e("  s_lshl_b32 s50, s48, 2")
    e("  s_add_u32 s49, s49, s50")
    e(f"  s_add_u32 s49, s49, {WS_FLAG}")
    e("  v_mov_b32 v4, 1")
    e("  v_mov_b32 v5, 0")
    e("  s_mov_b64 s[50:51], exec")
    e("  s_mov_b64 exec, 1")
    e("  buffer_store_dword v4, v5, s[24:27], s49 offen sc1")
    e("  s_mov_b64 exec, s[50:51]")
    lab("k2_noflag")
    e("  s_waitcnt lgkmcnt(0)")
    e("  s_cmp_lt_u32 s15, 2")
    e("  s_cbranch_scc1 k2_t1")
    e("  s_cmp_eq_u32 s15, 2")
    e("  s_cselect_b32 s40, s58, s60")
    e("  s_cselect_b32 s41, s59, s61")
    e(f"  s_mov_b32 s42, {512*1792*2}")
    e("  s_mov_b32 s43, 0x00020000")
    e("  s_and_b32 s52, s2, 7")
    e("  s_lshr_b32 s53, s2, 3")
    e("  v_min_u32 v1, 55, v0")
    e("  v_cmp_lt_u32 vcc, 27, v1")
    e("  s_nop 1")
    e("  v_cndmask_b32 v2, 0, 1, vcc")
    e("  v_mul_u32_u24 v3, 28, v2")
    e("  v_sub_u32 v3, v1, v3")
    e("  v_mul_u32_u24 v2, 3584, v2")
    e("  v_lshl_add_u32 v2, v3, 4, v2")
    e("  s_mul_i32 s54, s52, 448")
    e(f"  s_mul_i32 s55, s53, {16*3584}")
    e("  s_add_u32 s54, s54, s55")
    for q in range(8):
        e(f"  buffer_load_dwordx4 {vr(8+4*q,4)}, v2, s[40:43], s54 offen")
        e(f"  s_add_u32 s54, s54, {2*3584}")
    e("  s_branch k2_done")
    lab("k2_t1")
    srd(20, 4, 5, 2 << 20)
    srd(28, 56, 57, 1024)
    srd(44, 64, 65, 2 << 20)
    e("  v_and_b32 v3, 15, v0")
    e("  v_lshlrev_b32 v3, 2, v3")
    e("  s_lshl_b32 s49, s12, 6")
    e(f"  s_add_u32 s49, s49, {WS_FLAG}")
    e("  s_mov_b32 s53, 0")
    lab("k2_poll")
    e("  buffer_load_dword v4, v3, s[24:27], s49 offen sc1")
    e("  s_waitcnt vmcnt(0)")
    e("  v_cmp_eq_u32 s[54:55], 0, v4")
    e("  s_nop 3")
    e("  s_cmp_eq_u64 s[54:55], 0")
    e("  s_cbranch_scc1 k2_poll_ok")
    e("  s_add_u32 s53, s53, 1")
    e(f"  s_cmp_gt_u32 s53, {1 << 22}")
    e("  s_cbranch_scc1 k2_poll_ok")
    e("  s_branch k2_poll")
    lab("k2_poll_ok")
    stamp(3)
    e("  v_lshrrev_b32 v1, 4, v0")
    e("  v_and_b32 v2, 15, v0")
    e("  s_lshl_b32 s52, s12, 7")
    e("  s_lshl_b32 s53, s48, 3")
    e("  s_add_u32 s52, s52, s53")
    e("  s_lshl_b32 s53, s15, 2")
    e("  s_add_u32 s52, s52, s53")
    e("  v_add_u32 v1, s52, v1")
    rowmac(True, O=148 - 0, sc1=True)
    stamp(4)
    for j in range(4):
        e(f"  buffer_store_dwordx4 {vr(ROW_O+4*j,4)}, v3, s[44:47], 0 offen offset:{256*j}")
    e("  v_cmp_eq_u32 vcc, 0, v2")
    e("  s_and_saveexec_b64 s[50:51], vcc")
    e("  v_lshlrev_b32 v13, 2, v1")
    e(f"  s_mov_b32 s52, {WS_KEY}")
    e("  buffer_store_dword v12, v13, s[24:27], s52 offen")
    e("  v_lshlrev_b32 v13, 3, v1")
    e("  v_mov_b32 v7, v10")
    e(f"  s_mov_b32 s52, {WS_STAT}")
    e("  buffer_store_dwordx2 v[6:7], v13, s[24:27], s52 offen")

K2_NS = OPT('K2_NS', 6)
def gen_k2():
    NS = K2_NS
    name = "k2_kernel"
    kernel_begin(name)
    YBASE = NS * 16384
    e("  s_cmp_ge_u32 s2, 256")
    e("  s_cbranch_scc1 k2_done")
    e(f"  s_load_dwordx4 s[8:11], s[0:1], {KA_WSRE}")
    e(f"  s_load_dwordx2 s[6:7], s[0:1], {KA_WS}")
    e(f"  s_load_dwordx2 s[34:35], s[0:1], {KA_WDN}")
    e("  s_and_b32 s12, s2, 7")
    e("  s_lshr_b32 s13, s2, 3")
    e("  s_lshr_b32 s14, s12, 2")
    e("  s_and_b32 s12, s12, 3")
    e("  s_lshl_b32 s12, s12, 2")
    e("  s_lshr_b32 s15, s13, 3")
    e("  s_add_u32 s12, s12, s15")
    e("  s_and_b32 s13, s13, 7")
    e("  v_lshrrev_b32 v1, 6, v0")
    e("  v_and_b32 v0, 63, v0")
    e("  v_readfirstlane_b32 s15, v1")
    e("  v_lshrrev_b32 v2, 3, v0")
    e("  v_and_b32 v3, 7, v0")
    e("  s_waitcnt lgkmcnt(0)")
    e("  s_cmp_eq_u32 s14, 0")
    e("  s_cselect_b32 s16, s8, s10")
    e("  s_cselect_b32 s17, s9, s11")
    e(f"  s_mov_b32 s18, {2048*2048*2}")
    e("  s_mov_b32 s19, 0x00020000")
    srd(20, 6, 7, 8 << 20)
    e("  s_cmp_lt_u32 s15, 4")
    e("  s_cbranch_scc1 k2_consumer")
    e("  s_cmp_lt_u32 s15, 8")
    e("  s_cbranch_scc1 k2_loader")
    srd(36, 34, 35, 1792*512*2)
    srd(40, 6, 7, 12 << 20)
    e("  v_lshlrev_b32 v2, 4, v0")
    e("  s_mul_i32 s44, s2, 7168")
    for q in range(7):
        e(f"  buffer_load_dwordx4 {vr(8+4*q,4)}, v2, s[36:39], s44 offen")
        e("  s_add_u32 s44, s44, 1024")
    e("  s_cmp_ge_u32 s2, 28")
    e("  s_cbranch_scc1 k2_nomark")
    for q in range(4):
        e(f"  v_mov_b32 v{4+q}, -1")
    e("  s_lshl_b32 s44, s2, 10")
    e(f"  s_add_u32 s44, s44, {WS_GU}")
    e("  buffer_store_dwordx4 v[4:7], v2, s[40:43], s44 offen")
    lab("k2_nomark")
    e("  v_mul_u32_u24 v3, 28672, v0")
    e("  s_mul_i32 s44, s2, 112")
    e(f"  s_add_u32 s44, s44, {WS_WDB}")
    e("  s_waitcnt vmcnt(0)")
    for q in range(7):
        e(f"  buffer_store_dwordx4 {vr(8+4*q,4)}, v3, s[40:43], s44 offen offset:{16*q}")
    e("  s_branch k2_done")
    lab("k2_loader")
    e("  s_sub_u32 s15, s15, 4")
    for ii in range(4):
        e(f"  s_lshl_b32 s24, s15, 5")
        e(f"  s_add_u32 s24, s24, {8*ii}")
        e(f"  v_add_u32 v10, s24, v2")
        e(f"  v_lshrrev_b32 v11, 1, v10")
        e(f"  v_and_b32 v11, 7, v11")
        e(f"  v_xor_b32 v11, v11, v3")
        e(f"  s_lshl_b32 s24, s12, 7")
        e(f"  v_add_u32 v10, s24, v10")
        e(f"  v_lshlrev_b32 v10, 12, v10")
        e(f"  v_lshl_add_u32 v{4+ii}, v11, 4, v10")
    e("  s_lshl_b32 s24, s15, 11")
    e("  v_lshlrev_b32 v8, 4, v0")
    e("  v_add_u32 v8, s24, v8")
    e("  v_add_u32 v9, 1024, v8")
    e("  s_mov_b32 s25, 0")
    e("  s_lshl_b32 s26, s14, 3")
    e("  s_add_u32 s26, s26, s13")
    e("  s_lshl_b32 s26, s26, 18")
    e("  s_lshl_b32 s27, s15, 12")
    e("  s_lshl_b32 s28, s15, 11")
    e(f"  s_add_u32 s28, s28, {YBASE}")
    def dma(slot):
        for i in range(2):
            e(f"  s_add_u32 m0, s28, {slot*8192 + i*1024}")
            e("  s_nop 0")
            e(f"  buffer_load_dwordx4 v{8+i}, s[20:23], s26 offen lds")
        for i in range(4):
            e(f"  s_add_u32 m0, s27, {slot*16384 + i*1024}")
            e("  s_nop 0")
            e(f"  buffer_load_dwordx4 v{4+i}, s[16:19], s25 offen lds")
        if OPT('K2_ROT', 4):
            e("  s_add_u32 s25, s25, 128")
            e("  s_and_b32 s25, s25, 4095")
            e("  s_lshl_b32 s29, s25, 6")
            e("  s_add_u32 s26, s33, s29")
        else:
            e("  s_add_u32 s25, s25, 128")
            e("  s_add_u32 s26, s26, 8192")
    if OPT('K2_ROT', 4):
        e("  s_mov_b32 s33, s26")
        e(f"  s_mul_i32 s25, s13, {128*OPT('K2_ROT', 4)}")
        e("  s_and_b32 s25, s25, 4095")
        e("  s_lshl_b32 s29, s25, 6")
        e("  s_add_u32 s26, s33, s29")
    for st in range(NS):
        dma(st)
    e(f"  s_waitcnt vmcnt({6*(NS-1)})")
    e("  s_barrier")
    for ks in range(31):
        ahead = min(ks + NS - 1, 31) - (ks + 1)
        e(f"  s_waitcnt vmcnt({6*ahead})")
        if not OPT('K2_NOBAR'): e("  s_barrier")
        if ks + NS < 32:
            dma(ks % NS)
    e("  s_branch k2_done")
    lab("k2_consumer")
    e("  v_and_b32 v16, 31, v0")
    e("  v_lshrrev_b32 v17, 5, v0")
    e("  s_lshl_b32 s24, s15, 5")
    e("  v_add_u32 v18, s24, v16")
    e("  v_lshrrev_b32 v19, 1, v18")
    e("  v_and_b32 v19, 7, v19")
    e("  v_xor_b32 v19, v19, v17")
    e("  v_lshlrev_b32 v18, 7, v18")
    e("  v_lshl_add_u32 v20, v19, 4, v18")
    for kk in range(1, 4):
        e(f"  v_xor_b32 v{20+kk}, {32*kk}, v20")
    for kk in range(4):
        e(f"  v_add_u32 v{28+kk}, 0x10000, v{20+kk}")
    e("  v_lshrrev_b32 v19, 1, v16")
    e("  v_and_b32 v19, 7, v19")
    e("  v_xor_b32 v19, v19, v17")
    e("  v_lshlrev_b32 v18, 7, v16")
    e("  v_lshl_add_u32 v24, v19, 4, v18")
    e(f"  v_add_u32 v24, {YBASE}, v24")
    for kk in range(1, 4):
        e(f"  v_xor_b32 v{24+kk}, {32*kk}, v24")
    ACC = 32
    for i in range(32):
        e(f"  v_mov_b32 v{ACC+i}, 0")
    def FW(st): return 64 + 48 * (st % 2)
    def FY(st): return 80 + 48 * (st % 2)
    def rd(st, kk):
        slot = st % NS
        wb = 20 if slot < 4 else 28
        e(f"  ds_read_b128 {vr(FW(st)+4*kk,4)}, v{wb+kk} offset:{16384*(slot%4)}")
        e(f"  ds_read_b128 {vr(FY(st)+8*kk,4)}, v{24+kk} offset:{8192*slot}")
        e(f"  ds_read_b128 {vr(FY(st)+8*kk+4,4)}, v{24+kk} offset:{8192*slot+4096}")
    e("  s_barrier")
    for kk in range(4):
        rd(0, kk)
    def mf(st, kk, half):
        e(f"  v_mfma_f32_32x32x16_bf16 {vr(ACC+16*half,16)}, {vr(FY(st)+8*kk+4*half,4)}, {vr(FW(st)+4*kk,4)}, {vr(ACC+16*half,16)}")
    for ks in range(32):
        more = ks + 1 < 32
        e("  s_waitcnt lgkmcnt(0)")
        if more and not OPT('K2_NOBAR'):
            e("  s_barrier")
        if OPT('K2_NOBAR') == 2: continue
        r = (lambda kk: rd(ks + 1, kk)) if more else (lambda kk: None)
        mf(ks, 0, 0); r(0); mf(ks, 0, 1); r(1)
        mf(ks, 1, 0); r(2); mf(ks, 1, 1); r(3)
        mf(ks, 2, 0); mf(ks, 2, 1)
        mf(ks, 3, 0); mf(ks, 3, 1)
    stamp(6)
    if not OPT('K2T1', 1):
        k2_epilogue_plain(ACC)
    else:
        k2_epilogue_fused(ACC)
    lab("k2_done")
    kernel_end()
    e("  s_endpgm")
    kernel_desc(name, 160)

def gen_t1():
    name = "t1_kernel"
    kernel_begin(name)
    e("  s_cmp_ge_u32 s2, 256")
    e("  s_cbranch_scc1 t1_done")
    e(f"  s_load_dwordx2 s[4:5], s[0:1], {KA_X}")
    e(f"  s_load_dwordx2 s[6:7], s[0:1], {KA_WS}")
    e(f"  s_load_dwordx2 s[8:9], s[0:1], {KA_WR}")
    e(f"  s_load_dwordx2 s[10:11], s[0:1], {KA_OUT}")
    if OPT('T1_PF', 1):
        e(f"  s_load_dwordx4 s[32:35], s[0:1], {KA_WG}")
        e("  v_lshrrev_b32 v1, 6, v0")
        e("  s_nop 0")
        e("  v_readfirstlane_b32 s3, v1")
        e("  s_cmp_lg_u32 s3, 2")
        e("  s_cbranch_scc1 t1_main")
        e("  s_waitcnt lgkmcnt(0)")
        srd(40, 32, 33, 512*1792*2)
        srd(44, 34, 35, 512*1792*2)
        e("  v_and_b32 v0, 63, v0")
        e("  s_and_b32 s52, s2, 7")
        e("  s_lshr_b32 s53, s2, 3")
        e("  v_min_u32 v1, 55, v0")
        e("  v_cmp_lt_u32 vcc, 27, v1")
        e("  v_cndmask_b32 v2, 0, 1, vcc")
        e("  v_mul_u32_u24 v3, 28, v2")
        e("  v_sub_u32 v3, v1, v3")
        e("  v_mul_u32_u24 v2, 3584, v2")
        e("  v_lshl_add_u32 v2, v3, 4, v2")
        e("  s_mul_i32 s54, s52, 448")
        e(f"  s_mul_i32 s55, s53, {16*3584}")
        e("  s_add_u32 s54, s54, s55")
        for q in range(8):
            e(f"  buffer_load_dwordx4 {vr(8+8*q,4)}, v2, s[40:43], s54 offen")
            e(f"  buffer_load_dwordx4 {vr(12+8*q,4)}, v2, s[44:47], s54 offen")
            e(f"  s_add_u32 s54, s54, {2*3584}")
        e("  s_branch t1_done")
        lab("t1_main")
    e("  v_lshrrev_b32 v1, 4, v0")
    e("  v_and_b32 v2, 15, v0")
    e("  s_lshl_b32 s3, s2, 3")
    e("  v_add_u32 v1, s3, v1")
    e("  v_lshlrev_b32 v3, 10, v1")
    e("  v_lshl_add_u32 v3, v2, 4, v3")
    e("  v_lshlrev_b32 v4, 4, v2")
    e("  s_waitcnt lgkmcnt(0)")
    srd(12, 4, 5, 2 << 20)
    srd(16, 6, 7, 9 << 20)
    srd(20, 8, 9, 1024)
    srd(24, 10, 11, 2 << 20)
    e(f"  s_mov_b32 s28, {WS_Y}")
    e(f"  s_mov_b32 s29, {WS_Y + (2<<20)}")
    YR, YI, XX, WR = 16, 32, 48, 64
    for j in range(4):
        e(f"  buffer_load_dwordx4 {vr(YR+4*j,4)}, v3, s[16:19], s28 offen offset:{256*j}")
        e(f"  buffer_load_dwordx4 {vr(YI+4*j,4)}, v3, s[16:19], s29 offen offset:{256*j}")
        e(f"  buffer_load_dwordx4 {vr(XX+4*j,4)}, v3, s[12:15], 0 offen offset:{256*j}")
    for j in range(4):
        e(f"  buffer_load_dwordx4 {vr(WR+4*j,4)}, v4, s[20:23], 0 offen offset:{256*j}")
    H = 80
    T = 112
    e("  v_mov_b32 v14, 0")
    e("  v_mov_b32 v15, 0")
    for j in range(4):
        e(f"  s_waitcnt vmcnt({4 + 3*(3-j)})")
        for q in range(4):
            i = 4*j + q
            e(f"  v_lshlrev_b32 v{T}, 16, v{YR+i}")
            e(f"  v_and_b32 v{T+1}, 0xffff0000, v{YR+i}")
            e(f"  v_lshlrev_b32 v{T+2}, 16, v{YI+i}")
            e(f"  v_and_b32 v{T+3}, 0xffff0000, v{YI+i}")
            e(f"  v_pk_add_f32 {vr(T,2)}, {vr(T,2)}, {vr(T+2,2)} neg_lo:[0,1] neg_hi:[0,1]")
            e(f"  v_cvt_pk_bf16_f32 v{T}, v{T}, v{T+1}")
            e(f"  v_and_b32 v{T+1}, 0xffff0000, v{T}")
            e(f"  v_lshlrev_b32 v{T}, 16, v{T}")
            e(f"  v_lshlrev_b32 v{T+2}, 16, v{XX+i}")
            e(f"  v_and_b32 v{T+3}, 0xffff0000, v{XX+i}")
            e(f"  v_pk_add_f32 {vr(T,2)}, {vr(T,2)}, {vr(T+2,2)}")
            e(f"  v_cvt_pk_bf16_f32 v{T}, v{T}, v{T+1}")
            e(f"  v_lshlrev_b32 v{H+2*i}, 16, v{T}")
            e(f"  v_and_b32 v{H+2*i+1}, 0xffff0000, v{T}")
            e(f"  v_pk_add_f32 v[14:15], v[14:15], {vr(H+2*i,2)}")
    e("  v_add_f32 v5, v14, v15")
    reduce16(5)
    e("  v_mul_f32 v5, 0x3b000000, v5")
    e("  v_cvt_pk_bf16_f32 v6, v5, v5")
    e("  v_lshlrev_b32 v6, 16, v6")
    e("  v_sub_f32 v8, 0, v6")
    e("  v_mov_b32 v9, v8")
    e("  v_mov_b32 v10, 0")
    e("  v_mov_b32 v11, 0")
    D = 116
    for i in range(16):
        e(f"  v_pk_add_f32 {vr(D+2*i,2)}, {vr(H+2*i,2)}, v[8:9]")
        e(f"  v_pk_fma_f32 v[10:11], {vr(D+2*i,2)}, {vr(D+2*i,2)}, v[10:11]")
    e("  v_add_f32 v10, v10, v11")
    reduce16(10)
    e("  v_sub_f32 v11, v5, v6")
    e("  v_mul_f32 v11, v11, v11")
    e("  v_mul_f32 v10, 0x3b000000, v10")
    e("  v_sub_f32 v10, v10, v11")
    e("  v_max_f32 v10, 0, v10")
    e("  v_cvt_pk_bf16_f32 v10, v10, v10")
    e("  v_lshlrev_b32 v10, 16, v10")
    e("  v_add_f32 v10, 0x3727c5ac, v10")
    e("  v_cvt_pk_bf16_f32 v10, v10, v10")
    e("  v_lshlrev_b32 v10, 16, v10")
    e("  v_sqrt_f32 v10, v10")
    e("  s_nop 0")
    e("  v_cvt_pk_bf16_f32 v10, v10, v10")
    e("  v_lshlrev_b32 v10, 16, v10")
    e("  v_rcp_f32 v10, v10")
    e("  s_nop 0")
    e("  v_mov_b32 v11, v10")
    e("  v_mov_b32 v12, 0")
    e("  s_waitcnt vmcnt(0)")
    O = 16
    for i in range(16):
        e(f"  v_cvt_pk_bf16_f32 v{T}, v{D+2*i}, v{D+2*i+1}")
        e(f"  v_lshlrev_b32 v{D+2*i}, 16, v{T}")
        e(f"  v_and_b32 v{D+2*i+1}, 0xffff0000, v{T}")
        e(f"  v_pk_mul_f32 {vr(D+2*i,2)}, {vr(D+2*i,2)}, v[10:11]")
        e(f"  v_cvt_pk_bf16_f32 v{T}, v{D+2*i}, v{D+2*i+1}")
        e(f"  v_dot2_f32_bf16 v12, v{T}, v{WR+i}, v12")
        e(f"  v_lshlrev_b32 v{D+2*i}, 16, v{T}")
        e(f"  v_and_b32 v{D+2*i+1}, 0xffff0000, v{T}")
        e(f"  v_pk_add_f32 {vr(D+2*i,2)}, {vr(D+2*i,2)}, {vr(H+2*i,2)}")
        e(f"  v_cvt_pk_bf16_f32 v{O+i}, v{D+2*i}, v{D+2*i+1}")
    for j in range(4):
        e(f"  buffer_store_dwordx4 {vr(O+4*j,4)}, v3, s[24:27], 0 offen offset:{256*j}")
    e("  s_nop 3")
    reduce16(12)
    e("  v_cvt_pk_bf16_f32 v12, v12, v12")
    e("  v_lshlrev_b32 v12, 16, v12")
    e("  v_ashrrev_i32 v13, 31, v12")
    e("  v_or_b32 v13, 0x80000000, v13")
    e("  v_xor_b32 v12, v12, v13")
    e("  v_and_b32 v12, 0xffff0000, v12")
    e("  v_sub_u32 v13, 0xffff, v1")
    e("  v_or_b32 v12, v12, v13")
    e("  v_cmp_eq_u32 vcc, 0, v2")
    e("  s_and_saveexec_b64 s[30:31], vcc")
    e("  v_lshlrev_b32 v13, 2, v1")
    e(f"  s_mov_b32 s28, {WS_KEY}")
    e("  buffer_store_dword v12, v13, s[16:19], s28 offen")
    e("  v_lshlrev_b32 v13, 3, v1")
    e("  v_mov_b32 v7, v10")
    e(f"  s_mov_b32 s28, {WS_STAT}")
    e("  buffer_store_dwordx2 v[6:7], v13, s[16:19], s28 offen")
    lab("t1_done")
    kernel_end()
    e("  s_endpgm")
    kernel_desc(name, 148)

def recompute(YR, YI, XX, nd, NEGM, RINV, HOUT, XNOUT, T):
    for i in range(nd):
        e(f"  v_lshlrev_b32 v{T}, 16, v{YR+i}")
        e(f"  v_and_b32 v{T+1}, 0xffff0000, v{YR+i}")
        e(f"  v_lshlrev_b32 v{T+2}, 16, v{YI+i}")
        e(f"  v_and_b32 v{T+3}, 0xffff0000, v{YI+i}")
        e(f"  v_pk_add_f32 {vr(T,2)}, {vr(T,2)}, {vr(T+2,2)} neg_lo:[0,1] neg_hi:[0,1]")
        e(f"  v_cvt_pk_bf16_f32 v{T}, v{T}, v{T+1}")
        e(f"  v_and_b32 v{T+1}, 0xffff0000, v{T}")
        e(f"  v_lshlrev_b32 v{T}, 16, v{T}")
        e(f"  v_lshlrev_b32 v{T+2}, 16, v{XX+i}")
        e(f"  v_and_b32 v{T+3}, 0xffff0000, v{XX+i}")
        e(f"  v_pk_add_f32 {vr(T,2)}, {vr(T,2)}, {vr(T+2,2)}")
        e(f"  v_cvt_pk_bf16_f32 v{T}, v{T}, v{T+1}")
        e(f"  v_lshlrev_b32 v{HOUT+2*i}, 16, v{T}")
        e(f"  v_and_b32 v{HOUT+2*i+1}, 0xffff0000, v{T}")
        e(f"  v_pk_add_f32 {vr(T,2)}, {vr(HOUT+2*i,2)}, {vr(NEGM,2)}")
        e(f"  v_cvt_pk_bf16_f32 v{T}, v{T}, v{T+1}")
        e(f"  v_and_b32 v{T+1}, 0xffff0000, v{T}")
        e(f"  v_lshlrev_b32 v{T}, 16, v{T}")
        e(f"  v_pk_mul_f32 {vr(T,2)}, {vr(T,2)}, {vr(RINV,2)}")
        e(f"  v_cvt_pk_bf16_f32 v{XNOUT+i}, v{T}, v{T+1}")

XS_STRIDE = 1040
def gen_t2():
    name = "t2_kernel"
    kernel_begin(name)
    LDS_G, LDS_U, LDS_XS, LDS_C = 0, 8192, 16384, 16384 + 8*XS_STRIDE
    e("  s_cmp_ge_u32 s2, 224")
    e("  s_cbranch_scc1 t2_done")
    e(f"  s_load_dwordx2 s[4:5], s[0:1], {KA_X}")
    e(f"  s_load_dwordx2 s[6:7], s[0:1], {KA_WS}")
    e(f"  s_load_dwordx4 s[8:11], s[0:1], {KA_WG}")
    e("  s_and_b32 s3, s2, 7")
    e("  s_mul_i32 s3, s3, 28")
    e("  s_lshr_b32 s12, s2, 3")
    e("  s_add_u32 s3, s3, s12")
    e("  v_mov_b32 v40, v0")
    e("  v_lshrrev_b32 v1, 6, v0")
    e("  v_and_b32 v0, 63, v0")
    e("  v_readfirstlane_b32 s13, v1")
    e("  s_waitcnt lgkmcnt(0)")
    srd(16, 4, 5, 2 << 20)
    srd(20, 6, 7, 9 << 20)
    srd(24, 8, 9, 512*1792*2)
    srd(28, 10, 11, 512*1792*2)
    e("  v_lshlrev_b32 v2, 5, v40")
    e(f"  s_mov_b32 s14, {WS_KEY}")
    e("  buffer_load_dwordx4 v[8:11], v2, s[20:23], s14 offen")
    e("  buffer_load_dwordx4 v[12:15], v2, s[20:23], s14 offen offset:16")
    e("  s_lshl_b32 s15, s3, 4")
    e("  s_movk_i32 s32, 3584")
    for ii in range(2):
        e(f"  s_lshl_b32 s33, s13, 7")
        e(f"  s_add_u32 s33, s33, {64*ii}")
        e(f"  v_add_u32 v3, s33, v0")
        e(f"  v_mul_lo_u32 v3, v3, s32")
        e(f"  s_lshl_b32 s34, s13, 11")
        e(f"  s_add_u32 m0, s34, {LDS_G + 1024*ii}")
        e("  s_nop 0")
        e(f"  buffer_load_dwordx4 v3, s[24:27], s15 offen lds")
        e(f"  s_add_u32 m0, s34, {LDS_U + 1024*ii}")
        e("  s_nop 0")
        e(f"  buffer_load_dwordx4 v3, s[28:31], s15 offen lds")
    stamp(1)
    e("  s_waitcnt vmcnt(4)")
    stamp(2)
    e("  v_mov_b32 v20, 0")
    for rnd in range(8):
        e("  v_max3_u32 v16, v8, v9, v10")
        e("  v_max3_u32 v17, v11, v12, v13")
        e("  v_max3_u32 v16, v16, v14, v15")
        e("  v_max_u32 v16, v16, v17")
        e("  s_nop 1")
        e("  v_max_u32_dpp v16, v16, v16 quad_perm:[1,0,3,2] row_mask:0xf bank_mask:0xf")
        e("  s_nop 1")
        e("  v_max_u32_dpp v16, v16, v16 quad_perm:[2,3,0,1] row_mask:0xf bank_mask:0xf")
        e("  s_nop 1")
        e("  v_max_u32_dpp v16, v16, v16 row_half_mirror row_mask:0xf bank_mask:0xf")
        e("  s_nop 1")
        e("  v_max_u32_dpp v16, v16, v16 row_mirror row_mask:0xf bank_mask:0xf")
        e("  s_nop 1")
        e("  v_readlane_b32 s36, v16, 0")
        e("  v_readlane_b32 s37, v16, 16")
        e("  v_readlane_b32 s38, v16, 32")
        e("  v_readlane_b32 s39, v16, 48")
        e("  s_max_u32 s36, s36, s37")
        e("  s_max_u32 s38, s38, s39")
        e("  s_max_u32 s36, s36, s38")
        e(f"  v_writelane_b32 v20, s36, {rnd}")
        if rnd < 7:
            for k in range(8):
                e(f"  v_cmp_ne_u32 vcc, s36, v{8+k}")
                e("  s_nop 1")
                e(f"  v_cndmask_b32 v{8+k}, 0, v{8+k}, vcc")
    e("  s_lshl_b32 s33, s13, 5")
    e(f"  s_add_u32 s33, s33, {LDS_C}")
    e("  v_lshlrev_b32 v3, 2, v0")
    e("  v_add_u32 v3, s33, v3")
    e("  v_cmp_gt_u32 vcc, 8, v0")
    e("  s_and_saveexec_b64 s[40:41], vcc")
    e("  ds_write_b32 v3, v20")
    e("  s_mov_b64 exec, s[40:41]")
    e("  s_waitcnt lgkmcnt(0)")
    e("  s_barrier")
    e("  v_and_b32 v3, 31, v0")
    e("  v_lshlrev_b32 v3, 2, v3")
    e(f"  ds_read_b32 v21, v3 offset:{LDS_C}")
    e("  v_mov_b32 v22, 0")
    e("  s_waitcnt lgkmcnt(0)")
    for i in range(32):
        e(f"  v_readlane_b32 s36, v21, {i}")
        e("  s_nop 1")
        e("  v_cmp_gt_u32 vcc, s36, v21")
        e("  s_nop 1")
        e("  v_addc_co_u32 v22, vcc, 0, v22, vcc")
    e("  v_cmp_gt_u32 vcc, 8, v22")
    e("  v_cmp_gt_u32 s[42:43], 32, v0")
    e("  s_and_b64 vcc, vcc, s[42:43]")
    e("  v_lshlrev_b32 v3, 2, v22")
    e("  s_and_saveexec_b64 s[40:41], vcc")
    e(f"  ds_write_b32 v3, v21 offset:{LDS_C+128}")
    e("  s_mov_b64 exec, s[40:41]")
    e("  s_waitcnt lgkmcnt(0)")
    e("  s_barrier")
    stamp(3)
    e("  v_lshrrev_b32 v4, 5, v40")
    e("  v_and_b32 v5, 31, v40")
    e("  v_lshlrev_b32 v3, 2, v4")
    e(f"  ds_read_b32 v6, v3 offset:{LDS_C+128}")
    e("  s_waitcnt lgkmcnt(0)")
    e("  s_cmp_lg_u32 s3, 0")
    e("  s_cbranch_scc1 t2_nopub")
    e("  v_cmp_eq_u32 vcc, 0, v5")
    e("  s_and_saveexec_b64 s[40:41], vcc")
    e(f"  s_mov_b32 s14, {WS_IDX}")
    e("  buffer_store_dword v6, v3, s[20:23], s14 offen")
    e("  s_mov_b64 exec, s[40:41]")
    lab("t2_nopub")
    e("  v_and_b32 v6, 0xffff, v6")
    e("  v_sub_u32 v6, 0xffff, v6")
    e("  v_lshlrev_b32 v7, 10, v6")
    e("  v_lshl_add_u32 v7, v5, 4, v7")
    e(f"  s_mov_b32 s14, {WS_Y}")
    e(f"  s_mov_b32 s15, {WS_Y + (2<<20)}")
    YR, YI, XX = 24, 32, 44
    for j in range(2):
        e(f"  buffer_load_dwordx4 {vr(YR+4*j,4)}, v7, s[20:23], s14 offen offset:{512*j}")
        e(f"  buffer_load_dwordx4 {vr(YI+4*j,4)}, v7, s[20:23], s15 offen offset:{512*j}")
        e(f"  buffer_load_dwordx4 {vr(XX+4*j,4)}, v7, s[16:19], 0 offen offset:{512*j}")
    e("  v_lshlrev_b32 v3, 3, v6")
    e(f"  s_mov_b32 s14, {WS_STAT}")
    e("  buffer_load_dwordx2 v[52:53], v3, s[20:23], s14 offen")
    e("  s_waitcnt vmcnt(0)")
    stamp(4)
    e("  v_sub_f32 v54, 0, v52")
    e("  v_mov_b32 v55, v54")
    e("  v_mov_b32 v52, v53")
    recompute(YR, YI, XX, 8, 54, 52, 64, 80, 56)
    e(f"  v_mul_u32_u24 v3, {XS_STRIDE}, v4")
    e("  v_lshl_add_u32 v3, v5, 4, v3")
    e(f"  ds_write_b128 v3, v[80:83] offset:{LDS_XS}")
    e(f"  ds_write_b128 v3, v[84:87] offset:{LDS_XS+512}")
    e("  s_waitcnt lgkmcnt(0)")
    e("  s_barrier")
    e("  s_cmp_lg_u32 s13, 0")
    e("  s_cbranch_scc1 t2_done")
    stamp(5)
    e("  v_and_b32 v3, 7, v0")
    e(f"  v_mul_u32_u24 v3, {XS_STRIDE}, v3")
    e("  v_lshrrev_b32 v4, 4, v0")
    e("  v_lshl_add_u32 v3, v4, 4, v3")
    e("  v_and_b32 v5, 15, v0")
    e("  v_lshrrev_b32 v5, 2, v5")
    e("  v_lshl_add_u32 v5, v4, 3, v5")
    e("  v_lshlrev_b32 v5, 4, v5")
    e("  v_and_b32 v6, 1, v0")
    e("  v_lshl_add_u32 v5, v6, 3, v5")
    e("  v_and_b32 v6, 2, v0")
    e("  v_lshl_add_u32 v5, v6, 12, v5")
    for i in range(4):
        e(f"  v_mov_b32 v{8+i}, 0")
    FA, FB = 64, 128
    for st in range(16):
        e(f"  ds_read_b128 {vr(FA+4*st,4)}, v3 offset:{LDS_XS + 64*st}")
        e(f"  ds_read_b64_tr_b16 {vr(FB+4*st,2)}, v5 offset:{512*st}")
        e(f"  ds_read_b64_tr_b16 {vr(FB+4*st+2,2)}, v5 offset:{512*st+64}")
        if st % 4 == 3:
            e("  s_waitcnt lgkmcnt(0)")
            for s2 in range(st-3, st+1):
                e(f"  v_mfma_f32_16x16x32_bf16 v[8:11], {vr(FA+4*s2,4)}, {vr(FB+4*s2,4)}, v[8:11]")
    e("  s_nop 15")
    for i in range(4):
        e(f"  v_cvt_pk_bf16_f32 v{8+i}, v{8+i}, v{8+i}")
        e(f"  v_lshlrev_b32 v{8+i}, 16, v{8+i}")
    e("  s_nop 1")
    for i in range(4):
        e(f"  v_mov_b32_dpp v{12+i}, v{8+i} row_ror:8 row_mask:0xf bank_mask:0xf")
    for i in range(4):
        e(f"  v_mul_f32 v16, 0xbfb8aa3b, v{8+i}")
        e("  v_exp_f32 v16, v16")
        e("  s_nop 0")
        e("  v_add_f32 v16, 1.0, v16")
        e("  v_rcp_f32 v16, v16")
        e("  s_nop 0")
        e(f"  v_mul_f32 v16, v{8+i}, v16")
        e("  v_cvt_pk_bf16_f32 v16, v16, v16")
        e("  v_lshlrev_b32 v16, 16, v16")
        e(f"  v_mul_f32 v16, v16, v{12+i}")
        e(f"  v_cvt_pk_bf16_f32 v{20+i}, v16, v16")
    stamp(6)
    e("  v_and_b32 v5, 15, v0")
    e("  v_cmp_gt_u32 vcc, 8, v5")
    e("  v_cmp_gt_u32 s[42:43], 32, v0")
    e("  s_and_b64 vcc, vcc, s[42:43]")
    e("  s_and_saveexec_b64 s[40:41], vcc")
    e("  v_lshlrev_b32 v4, 2, v4")
    e("  v_mul_u32_u24 v4, 3584, v4")
    e("  v_lshl_add_u32 v4, v5, 1, v4")
    e("  s_lshl_b32 s15, s3, 4")
    e(f"  s_add_u32 s15, s15, {WS_GU}")
    for i in range(4):
        e(f"  buffer_store_short v{20+i}, v4, s[20:23], s15 offen offset:{3584*i if 3584*i < 4096 else 0}") if False else None
    for i in range(4):
        e(f"  buffer_store_short v{20+i}, v4, s[20:23], s15 offen")
        if i < 3:
            e("  v_add_u32 v4, 3584, v4")
    lab("t2_done")
    kernel_end()
    e("  s_endpgm")
    kernel_desc(name, 192)

def gen_t3():
    name = "t3_kernel"
    kernel_begin(name)
    LDS_W, LDS_R = 0, 28672
    e("  s_cmp_ge_u32 s2, 64")
    e("  s_cbranch_scc1 t3_done")
    e(f"  s_load_dwordx2 s[4:5], s[0:1], {KA_X}")
    e(f"  s_load_dwordx2 s[6:7], s[0:1], {KA_WS}")
    e(f"  s_load_dwordx2 s[10:11], s[0:1], {KA_OUT}")
    e("  s_mov_b32 s3, s2")
    e("  v_lshrrev_b32 v1, 6, v0")
    e("  v_and_b32 v0, 63, v0")
    e("  v_readfirstlane_b32 s13, v1")
    e("  v_lshrrev_b32 v5, 4, v0")
    e("  s_waitcnt lgkmcnt(0)")
    srd(16, 4, 5, 2 << 20)
    srd(20, 6, 7, 12 << 20)
    srd(28, 10, 11, 2 << 20)
    e("  v_and_b32 v6, 1, v5")
    e("  v_lshlrev_b32 v6, 4, v6")
    e(f"  s_mov_b32 s14, {WS_IDX}")
    e("  buffer_load_dwordx4 v[24:27], v6, s[20:23], s14 offen")
    e("  s_lshl_b32 s15, s3, 4")
    e("  v_lshlrev_b32 v3, 4, v0")
    e("  s_mul_i32 s34, s13, 7168")
    e("  s_mul_i32 s33, s3, 28672")
    e("  s_add_u32 s33, s33, s34")
    e(f"  s_add_u32 s33, s33, {WS_WDB}")
    for i in range(7):
        e(f"  s_add_u32 m0, s34, {LDS_W + 1024*i}")
        e("  s_nop 0")
        e(f"  buffer_load_dwordx4 v3, s[20:23], s33 offen lds")
        e("  s_add_u32 s33, s33, 1024")
    e("  v_and_b32 v4, 7, v0")
    e("  v_mul_u32_u24 v4, 3584, v4")
    e("  v_lshl_add_u32 v4, v5, 4, v4")
    e("  s_mul_i32 s14, s13, 896")
    e(f"  s_add_u32 s14, s14, {WS_GU}")
    FA = 64
    for st in range(14):
        e(f"  buffer_load_dwordx4 {vr(FA+4*st,4)}, v4, s[20:23], s14 offen offset:{64*st}")
    for i in range(4):
        e(f"  v_mov_b32 v{28+i}, 0")
    e("  s_cmp_lg_u32 s13, 0")
    e("  s_cbranch_scc1 t3_noepi")
    e("  s_waitcnt vmcnt(21)")
    e("  v_and_b32 v6, 7, v0")
    e(f"  s_mov_b32 s36, {WS_Y}")
    e(f"  s_mov_b32 s37, {WS_Y + (2<<20)}")
    e(f"  s_mov_b32 s38, {WS_STAT}")
    for i in range(4):
        e(f"  v_and_b32 v{28+i}, 0xffff, v{24+i}")
        e(f"  v_sub_u32 v{28+i}, 0xffff, v{28+i}")
        e(f"  v_lshlrev_b32 v{32+i}, 3, v{28+i}")
        e(f"  v_lshlrev_b32 v{28+i}, 10, v{28+i}")
        e(f"  v_lshl_add_u32 v{28+i}, v6, 1, v{28+i}")
        e(f"  v_add_u32 v{28+i}, s15, v{28+i}")
        e(f"  buffer_load_ushort v{36+i}, v{28+i}, s[20:23], s36 offen")
        e(f"  buffer_load_ushort v{40+i}, v{28+i}, s[20:23], s37 offen")
        e(f"  buffer_load_ushort v{44+i}, v{28+i}, s[16:19], 0 offen")
        e(f"  buffer_load_dwordx2 {vr(48+2*i,2)}, v{32+i}, s[20:23], s38 offen")
    lab("t3_noepi")
    e("  v_and_b32 v7, 15, v0")
    e("  v_lshrrev_b32 v7, 2, v7")
    e("  v_lshl_add_u32 v7, v5, 3, v7")
    e("  v_lshlrev_b32 v7, 4, v7")
    e("  v_and_b32 v60, 1, v0")
    e("  v_lshl_add_u32 v7, v60, 3, v7")
    e("  v_add_u32 v7, s34, v7")
    for i in range(4):
        e(f"  v_mov_b32 v{8+i}, 0")
    stamp(1)
    e("  s_waitcnt vmcnt(0)")
    stamp(2)
    FB = 128
    for st in range(14):
        e(f"  ds_read_b64_tr_b16 {vr(FB+4*st,2)}, v7 offset:{512*st}")
        e(f"  ds_read_b64_tr_b16 {vr(FB+4*st+2,2)}, v7 offset:{512*st+64}")
    e("  s_waitcnt lgkmcnt(0)")
    for st in range(14):
        e(f"  v_mfma_f32_16x16x32_bf16 v[8:11], {vr(FA+4*st,4)}, {vr(FB+4*st,4)}, v[8:11]")
    e("  s_nop 15")
    stamp(3)
    e("  v_lshlrev_b32 v3, 4, v0")
    e("  s_lshl_b32 s33, s13, 10")
    e("  v_add_u32 v3, s33, v3")
    e(f"  ds_write_b128 v3, v[8:11] offset:{LDS_R}")
    e("  s_waitcnt lgkmcnt(0)")
    e("  s_barrier")
    e("  s_cmp_lg_u32 s13, 0")
    e("  s_cbranch_scc1 t3_done")
    e("  v_lshlrev_b32 v3, 4, v0")
    for w in range(1, 4):
        e(f"  ds_read_b128 {vr(12+4*(w-1),4)}, v3 offset:{LDS_R+1024*w}")
    stamp(4)
    e("  v_and_b32 v6, 15, v0")
    e("  v_cmp_gt_u32 vcc, 8, v6")
    e("  v_cmp_gt_u32 s[42:43], 32, v0")
    e("  s_and_b64 vcc, vcc, s[42:43]")
    e("  s_and_saveexec_b64 s[40:41], vcc")
    e("  s_waitcnt lgkmcnt(0)")
    for i in range(4):
        e(f"  v_add_f32 v{8+i}, v{8+i}, v{12+i}")
        e(f"  v_add_f32 v{16+i}, v{16+i}, v{20+i}")
        e(f"  v_add_f32 v{8+i}, v{8+i}, v{16+i}")
        e(f"  v_cvt_pk_bf16_f32 v{8+i}, v{8+i}, v{8+i}")
        e(f"  v_lshlrev_b32 v{8+i}, 16, v{8+i}")
        e(f"  v_and_b32 v60, 0xffff0000, v{24+i}")
        e("  v_ashrrev_i32 v61, 31, v60")
        e("  v_not_b32 v61, v61")
        e("  v_or_b32 v61, 0x80000000, v61")
        e("  v_xor_b32 v60, v60, v61")
        e("  v_and_b32 v60, 0xffff0000, v60")
        e("  v_mul_f32 v60, 0xbfb8aa3b, v60")
        e("  v_exp_f32 v60, v60")
        e("  s_nop 0")
        e("  v_add_f32 v60, 1.0, v60")
        e("  v_rcp_f32 v60, v60")
        e("  s_nop 0")
        e("  v_cvt_pk_bf16_f32 v60, v60, v60")
        e("  v_lshlrev_b32 v60, 16, v60")
        e(f"  v_mul_f32 v{8+i}, v{8+i}, v60")
        e(f"  v_cvt_pk_bf16_f32 v{8+i}, v{8+i}, v{8+i}")
        e(f"  v_lshlrev_b32 v{8+i}, 16, v{8+i}")
        e(f"  v_lshlrev_b32 v{36+i}, 16, v{36+i}")
        e(f"  v_lshlrev_b32 v{40+i}, 16, v{40+i}")
        e(f"  v_lshlrev_b32 v{44+i}, 16, v{44+i}")
        e(f"  v_sub_f32 v60, v{36+i}, v{40+i}")
        e("  v_cvt_pk_bf16_f32 v60, v60, v60")
        e("  v_lshlrev_b32 v60, 16, v60")
        e(f"  v_add_f32 v60, v{44+i}, v60")
        e("  v_cvt_pk_bf16_f32 v60, v60, v60")
        e("  v_lshlrev_b32 v60, 16, v60")
        e(f"  v_sub_f32 v61, v60, v{48+2*i}")
        e("  v_cvt_pk_bf16_f32 v61, v61, v61")
        e("  v_lshlrev_b32 v61, 16, v61")
        e(f"  v_mul_f32 v61, v61, v{49+2*i}")
        e("  v_cvt_pk_bf16_f32 v61, v61, v61")
        e("  v_lshlrev_b32 v61, 16, v61")
        e(f"  v_add_f32 v61, v61, v{8+i}")
        e("  v_cvt_pk_bf16_f32 v61, v61, v61")
        e("  v_lshlrev_b32 v61, 16, v61")
        e("  v_add_f32 v61, v60, v61")
        e("  v_cvt_pk_bf16_f32 v61, v61, v61")
        e(f"  buffer_store_short v61, v{28+i}, s[28:31], 0 offen")
    lab("t3_done")
    kernel_end()
    e("  s_endpgm")
    kernel_desc(name, 192)

SORT8 = [(0,1),(2,3),(4,5),(6,7),(0,2),(1,3),(4,6),(5,7),(1,2),(5,6),(0,4),(1,5),(2,6),(3,7),(2,4),(3,5),(1,2),(3,4),(5,6)]
def top8(keys, free, LDS_C):
    K = list(keys); F = list(free)
    for (i, j) in SORT8:
        hi, lo = F.pop(), F.pop()
        e(f"  v_max_u32 v{hi}, v{K[i]}, v{K[j]}")
        e(f"  v_min_u32 v{lo}, v{K[i]}, v{K[j]}")
        F.append(K[i]); F.append(K[j]); K[i] = hi; K[j] = lo
    t, coll = F.pop(), F.pop()
    e(f"  v_mov_b32 v{coll}, 0")
    pend = []
    def fill(n):
        for _ in range(n):
            if pend: e(pend.pop(0))
            else: e("  s_nop 0")
    for rnd in range(8):
        fill(2)
        e(f"  v_max_u32_dpp v{t}, v{K[0]}, v{K[0]} quad_perm:[1,0,3,2] row_mask:0xf bank_mask:0xf")
        fill(2)
        e(f"  v_max_u32_dpp v{t}, v{t}, v{t} quad_perm:[2,3,0,1] row_mask:0xf bank_mask:0xf")
        fill(2)
        e(f"  v_max_u32_dpp v{t}, v{t}, v{t} row_half_mirror row_mask:0xf bank_mask:0xf")
        fill(2)
        e(f"  v_max_u32_dpp v{t}, v{t}, v{t} row_mirror row_mask:0xf bank_mask:0xf")
        while pend: e(pend.pop(0))
        e("  s_nop 0")
        e(f"  v_readlane_b32 s36, v{t}, 0")
        e(f"  v_readlane_b32 s37, v{t}, 16")
        e(f"  v_readlane_b32 s38, v{t}, 32")
        e(f"  v_readlane_b32 s39, v{t}, 48")
        e("  s_max_u32 s36, s36, s37")
        e("  s_max_u32 s38, s38, s39")
        e("  s_max_u32 s36, s36, s38")
        e(f"  v_writelane_b32 v{coll}, s36, {rnd}")
        if rnd < 7:
            e(f"  v_cmp_eq_u32 vcc, s36, v{K[0]}")
            e("  s_nop 1")
            e(f"  v_cndmask_b32 v{K[0]}, v{K[0]}, v{K[1]}, vcc")
            for k in range(1, 7 - rnd):
                pend.append(f"  v_cndmask_b32 v{K[k]}, v{K[k]}, v{K[k+1]}, vcc")
    e("  s_lshl_b32 s33, s13, 5")
    e(f"  s_add_u32 s33, s33, {LDS_C}")
    e(f"  v_lshlrev_b32 v{t}, 2, v0")
    e(f"  v_add_u32 v{t}, s33, v{t}")
    e("  v_cmp_gt_u32 vcc, 8, v0")
    e("  s_and_saveexec_b64 s[40:41], vcc")
    e(f"  ds_write_b32 v{t}, v{coll}")
    e("  s_mov_b64 exec, s[40:41]")
    e("  s_waitcnt lgkmcnt(0)")
    e("  s_barrier")
    return t, coll

def gen_t4():
    name = "t4_kernel"
    kernel_begin(name)
    LDS_C, LDS_R, LDS_WD = 0, 256, 8704
    LDS_G, LDS_U, LDS_XS = 8704, 8704 + 8192, 8704 + 16384
    SPIN = 1 << 22
    e("  s_cmp_ge_u32 s2, 240")
    e("  s_cbranch_scc1 t4_done")
    e(f"  s_load_dwordx2 s[4:5], s[0:1], {KA_X}")
    e(f"  s_load_dwordx2 s[6:7], s[0:1], {KA_WS}")
    e(f"  s_load_dwordx4 s[8:11], s[0:1], {KA_WG}")
    e(f"  s_load_dwordx2 s[44:45], s[0:1], {KA_OUT}")
    e("  s_and_b32 s3, s2, 7")
    e("  s_mul_i32 s3, s3, 28")
    e("  s_lshr_b32 s12, s2, 3")
    e("  s_add_u32 s3, s3, s12")
    e("  v_mov_b32 v40, v0")
    e("  v_lshrrev_b32 v1, 6, v0")
    e("  v_and_b32 v0, 63, v0")
    e("  v_readfirstlane_b32 s13, v1")
    e("  s_waitcnt lgkmcnt(0)")
    srd(16, 4, 5, 2 << 20)
    srd(20, 6, 7, 12 << 20)
    srd(24, 8, 9, 512*1792*2)
    srd(28, 10, 11, 512*1792*2)
    srd(48, 44, 45, 2 << 20)
    e("  v_lshlrev_b32 v2, 5, v40")
    e(f"  s_mov_b32 s14, {WS_KEY}")
    e("  buffer_load_dwordx4 v[8:11], v2, s[20:23], s14 offen")
    e("  buffer_load_dwordx4 v[12:15], v2, s[20:23], s14 offen offset:16")
    e("  s_cmp_ge_u32 s2, 224")
    e("  s_cbranch_scc1 t4_dma2")
    e("  s_lshl_b32 s15, s3, 4")
    e("  s_movk_i32 s32, 3584")
    for ii in range(2):
        e(f"  s_lshl_b32 s33, s13, 7")
        e(f"  s_add_u32 s33, s33, {64*ii}")
        e(f"  v_add_u32 v3, s33, v0")
        e(f"  v_mul_lo_u32 v3, v3, s32")
        e(f"  s_lshl_b32 s34, s13, 11")
        e(f"  s_add_u32 m0, s34, {LDS_G + 1024*ii}")
        e("  s_nop 0")
        e(f"  buffer_load_dwordx4 v3, s[24:27], s15 offen lds")
        e(f"  s_add_u32 m0, s34, {LDS_U + 1024*ii}")
        e("  s_nop 0")
        e(f"  buffer_load_dwordx4 v3, s[28:31], s15 offen lds")
    e("  s_waitcnt vmcnt(4)")
    e("  s_branch t4_top")
    lab("t4_dma2")
    e("  s_sub_u32 s46, s2, 224")
    e("  v_lshlrev_b32 v3, 4, v0")
    e("  s_mul_i32 s34, s13, 7168")
    e(f"  s_mul_i32 s33, s46, {4*28672}")
    e("  s_add_u32 s33, s33, s34")
    e(f"  s_add_u32 s33, s33, {WS_WDB}")
    for dsl in range(4):
        for i in range(7):
            e(f"  s_add_u32 m0, s34, {LDS_WD + dsl*28672 + 1024*i}")
            e("  s_nop 0")
            e(f"  buffer_load_dwordx4 v3, s[20:23], s33 offen lds")
            e(f"  s_add_u32 s33, s33, {1024 if i < 6 else 28672 - 6*1024}")
    e("  s_waitcnt vmcnt(28)")
    lab("t4_top")
    stamp(1)
    t, coll = top8(range(8, 16), range(16, 24), LDS_C)
    e("  v_and_b32 v3, 31, v0")
    e("  v_lshlrev_b32 v3, 2, v3")
    e(f"  ds_read_b32 v24, v3 offset:{LDS_C}")
    e("  v_mov_b32 v4, 0")
    for q in range(8):
        e(f"  ds_read_b128 {vr(56+4*q,4)}, v4 offset:{LDS_C+16*q}")
    e("  v_mov_b32 v25, 0")
    e("  s_waitcnt lgkmcnt(0)")
    sp = [60, 62, 64, 66]
    for i in range(32 + 3):
        if i < 32:
            e(f"  v_cmp_gt_u32 s[{sp[i%4]}:{sp[i%4]+1}], v{56+i}, v24")
        if i >= 3:
            j = i - 3
            e(f"  v_addc_co_u32 v25, vcc, 0, v25, s[{sp[j%4]}:{sp[j%4]+1}]")
    e("  v_cmp_gt_u32 vcc, 8, v25")
    e("  v_cmp_gt_u32 s[42:43], 32, v0")
    e("  s_and_b64 vcc, vcc, s[42:43]")
    e("  v_lshlrev_b32 v3, 2, v25")
    e("  s_and_saveexec_b64 s[40:41], vcc")
    e(f"  ds_write_b32 v3, v24 offset:{LDS_C+128}")
    e("  s_mov_b64 exec, s[40:41]")
    e("  s_waitcnt lgkmcnt(0)")
    e("  s_barrier")
    stamp(2)
    e("  s_cmp_ge_u32 s2, 224")
    e("  s_cbranch_scc1 t4_f2")
    e("  v_lshrrev_b32 v4, 5, v40")
    e("  v_and_b32 v5, 31, v40")
    e("  v_lshlrev_b32 v3, 2, v4")
    e(f"  ds_read_b32 v6, v3 offset:{LDS_C+128}")
    e("  s_waitcnt lgkmcnt(0)")
    e("  v_and_b32 v6, 0xffff, v6")
    e("  v_sub_u32 v6, 0xffff, v6")
    e("  v_lshlrev_b32 v7, 10, v6")
    e("  v_lshl_add_u32 v7, v5, 4, v7")
    e(f"  s_mov_b32 s14, {WS_Y}")
    e(f"  s_mov_b32 s15, {WS_Y + (2<<20)}")
    YR, YI, XX = 24, 32, 44
    for j in range(2):
        e(f"  buffer_load_dwordx4 {vr(YR+4*j,4)}, v7, s[20:23], s14 offen offset:{512*j}")
        e(f"  buffer_load_dwordx4 {vr(YI+4*j,4)}, v7, s[20:23], s15 offen offset:{512*j}")
        e(f"  buffer_load_dwordx4 {vr(XX+4*j,4)}, v7, s[16:19], 0 offen offset:{512*j}")
    e("  v_lshlrev_b32 v3, 3, v6")
    e(f"  s_mov_b32 s14, {WS_STAT}")
    e("  buffer_load_dwordx2 v[52:53], v3, s[20:23], s14 offen")
    e("  s_waitcnt vmcnt(0)")
    stamp(3)
    e("  v_sub_f32 v54, 0, v52")
    e("  v_mov_b32 v55, v54")
    e("  v_mov_b32 v52, v53")
    recompute(YR, YI, XX, 8, 54, 52, 64, 80, 56)
    e(f"  v_mul_u32_u24 v3, {XS_STRIDE}, v4")
    e("  v_lshl_add_u32 v3, v5, 4, v3")
    e(f"  ds_write_b128 v3, v[80:83] offset:{LDS_XS}")
    e(f"  ds_write_b128 v3, v[84:87] offset:{LDS_XS+512}")
    e("  s_waitcnt lgkmcnt(0)")
    e("  s_barrier")
    e("  s_cmp_lg_u32 s13, 0")
    e("  s_cbranch_scc1 t4_done")
    e("  v_and_b32 v3, 7, v0")
    e(f"  v_mul_u32_u24 v3, {XS_STRIDE}, v3")
    e("  v_lshrrev_b32 v4, 4, v0")
    e("  v_lshl_add_u32 v3, v4, 4, v3")
    e("  v_and_b32 v5, 15, v0")
    e("  v_lshrrev_b32 v5, 2, v5")
    e("  v_lshl_add_u32 v5, v4, 3, v5")
    e("  v_lshlrev_b32 v5, 4, v5")
    e("  v_and_b32 v6, 1, v0")
    e("  v_lshl_add_u32 v5, v6, 3, v5")
    e("  v_and_b32 v6, 2, v0")
    e("  v_lshl_add_u32 v5, v6, 12, v5")
    for i in range(4):
        e(f"  v_mov_b32 v{8+i}, 0")
    FA, FB = 64, 128
    for st in range(16):
        e(f"  ds_read_b128 {vr(FA+4*st,4)}, v3 offset:{LDS_XS + 64*st}")
        e(f"  ds_read_b64_tr_b16 {vr(FB+4*st,2)}, v5 offset:{LDS_G+512*st}")
        e(f"  ds_read_b64_tr_b16 {vr(FB+4*st+2,2)}, v5 offset:{LDS_G+512*st+64}")
        if st % 4 == 3:
            e("  s_waitcnt lgkmcnt(0)")
            for s2 in range(st-3, st+1):
                e(f"  v_mfma_f32_16x16x32_bf16 v[8:11], {vr(FA+4*s2,4)}, {vr(FB+4*s2,4)}, v[8:11]")
    e("  s_nop 15")
    for i in range(4):
        e(f"  v_cvt_pk_bf16_f32 v{8+i}, v{8+i}, v{8+i}")
        e(f"  v_lshlrev_b32 v{8+i}, 16, v{8+i}")
    e("  s_nop 1")
    for i in range(4):
        e(f"  v_mov_b32_dpp v{12+i}, v{8+i} row_ror:8 row_mask:0xf bank_mask:0xf")
    for i in range(4):
        e(f"  v_mul_f32 v16, 0xbfb8aa3b, v{8+i}")
        e("  v_exp_f32 v16, v16")
        e("  s_nop 0")
        e("  v_add_f32 v16, 1.0, v16")
        e("  v_rcp_f32 v16, v16")
        e("  s_nop 0")
        e(f"  v_mul_f32 v16, v{8+i}, v16")
        e("  v_cvt_pk_bf16_f32 v16, v16, v16")
        e("  v_lshlrev_b32 v16, 16, v16")
        e(f"  v_mul_f32 v16, v16, v{12+i}")
        e(f"  v_cvt_pk_bf16_f32 v{20+i}, v16, v16")
    e("  s_nop 1")
    for i in range(4):
        e(f"  v_mov_b32_dpp v{24+i}, v{20+i} quad_perm:[1,0,3,2] row_mask:0xf bank_mask:0xf")
    for i in range(4):
        e(f"  v_and_b32 v{20+i}, 0xffff, v{20+i}")
        e(f"  v_and_b32 v{24+i}, 0xffff0000, v{24+i}")
        e(f"  v_or_b32 v{20+i}, v{20+i}, v{24+i}")
    for i in range(4):
        e(f"  v_min_u32 v{20+i}, 0xfffeffff, v{20+i}")
    stamp(4)
    e("  v_and_b32 v5, 15, v0")
    e("  v_lshlrev_b32 v4, 6, v4")
    e("  v_lshl_add_u32 v4, v5, 1, v4")
    e("  v_lshlrev_b32 v7, 4, v0")
    e("  v_and_b32 v6, 9, v0")
    e("  v_cmp_eq_u32 vcc, 0, v6")
    e("  v_cmp_gt_u32 s[42:43], 32, v0")
    e("  s_and_b64 vcc, vcc, s[42:43]")
    e("  s_and_saveexec_b64 s[40:41], vcc")
    for i in range(4):
        e(f"  ds_write_b32 v4, v{20+i} offset:{LDS_R+16*i}")
    e("  s_mov_b64 exec, 0xff")
    e("  s_waitcnt lgkmcnt(0)")
    e(f"  ds_read_b128 v[24:27], v7 offset:{LDS_R}")
    e("  s_lshl_b32 s15, s3, 7")
    e(f"  s_add_u32 s15, s15, {WS_GU}")
    e("  s_waitcnt lgkmcnt(0)")
    e("  buffer_store_dwordx4 v[24:27], v7, s[20:23], s15 offen sc1")
    e("  s_branch t4_done")
    lab("t4_f2")
    e("  v_lshrrev_b32 v5, 4, v0")
    e("  v_and_b32 v6, 1, v5")
    e("  v_lshlrev_b32 v6, 4, v6")
    e(f"  ds_read_b128 v[24:27], v6 offset:{LDS_C+128}")
    e("  v_and_b32 v6, 15, v0")
    e("  s_lshl_b32 s15, s46, 6")
    e("  s_waitcnt lgkmcnt(0)")
    for i in range(4):
        e(f"  v_and_b32 v{28+i}, 0xffff, v{24+i}")
        e(f"  v_sub_u32 v{28+i}, 0xffff, v{28+i}")
        e(f"  v_lshlrev_b32 v{32+i}, 3, v{28+i}")
        e(f"  v_lshlrev_b32 v{28+i}, 10, v{28+i}")
        e(f"  v_lshl_add_u32 v{28+i}, v6, 1, v{28+i}")
        e(f"  v_add_u32 v{28+i}, s15, v{28+i}")
    e("  s_cmp_lg_u32 s13, 0")
    e("  s_cbranch_scc1 t4_noepi")
    e(f"  s_mov_b32 s36, {WS_Y}")
    e(f"  s_mov_b32 s37, {WS_Y + (2<<20)}")
    e(f"  s_mov_b32 s38, {WS_STAT}")
    for a in range(2):
        for i in range(4):
            e(f"  buffer_load_ushort v{192+12*a+i}, v{28+i}, s[20:23], s36 offen offset:{32*a}")
            e(f"  buffer_load_ushort v{196+12*a+i}, v{28+i}, s[20:23], s37 offen offset:{32*a}")
            e(f"  buffer_load_ushort v{200+12*a+i}, v{28+i}, s[16:19], 0 offen offset:{32*a}")
    for i in range(4):
        e(f"  buffer_load_dwordx2 {vr(48+2*i,2)}, v{32+i}, s[20:23], s38 offen")
    lab("t4_noepi")
    e("  v_lshrrev_b32 v7, 2, v6")
    e("  v_lshl_add_u32 v7, v5, 3, v7")
    e("  v_lshlrev_b32 v7, 4, v7")
    e("  v_and_b32 v60, 1, v0")
    e("  v_lshl_add_u32 v7, v60, 3, v7")
    e("  v_and_b32 v60, 2, v0")
    e("  v_mul_u32_u24 v60, 14336, v60")
    e("  v_add_u32 v7, v60, v7")
    e("  v_add_u32 v7, s34, v7")
    e(f"  v_add_u32 v61, {2*28672}, v7")
    e("  s_waitcnt vmcnt(0)")
    FB0, FB1 = 72, 128
    for st in range(14):
        e(f"  ds_read_b64_tr_b16 {vr(FB0+4*st,2)}, v7 offset:{LDS_WD+512*st}")
        e(f"  ds_read_b64_tr_b16 {vr(FB0+4*st+2,2)}, v7 offset:{LDS_WD+512*st+64}")
        e(f"  ds_read_b64_tr_b16 {vr(FB1+4*st,2)}, v61 offset:{LDS_WD+512*st}")
        e(f"  ds_read_b64_tr_b16 {vr(FB1+4*st+2,2)}, v61 offset:{LDS_WD+512*st+64}")
        if st % 3 == 2: e("  s_waitcnt lgkmcnt(0)")
    for i in range(8):
        e(f"  v_mov_b32 v{8+i}, 0")
    for i in range(4):
        e(f"  v_and_b32 v60, 0xffff0000, v{24+i}")
        e("  v_ashrrev_i32 v62, 31, v60")
        e("  v_not_b32 v62, v62")
        e("  v_or_b32 v62, 0x80000000, v62")
        e("  v_xor_b32 v60, v60, v62")
        e("  v_and_b32 v60, 0xffff0000, v60")
        e("  v_mul_f32 v60, 0xbfb8aa3b, v60")
        e("  v_exp_f32 v60, v60")
        e("  s_nop 0")
        e("  v_add_f32 v60, 1.0, v60")
        e("  v_rcp_f32 v60, v60")
        e("  s_nop 0")
        e("  v_cvt_pk_bf16_f32 v60, v60, v60")
        e(f"  v_lshlrev_b32 v{24+i}, 16, v60")
    for a in range(2):
        for i in range(4):
            r0, r1, r2 = 192+12*a+i, 196+12*a+i, 200+12*a+i
            e(f"  v_lshlrev_b32 v{r0}, 16, v{r0}")
            e(f"  v_lshlrev_b32 v{r1}, 16, v{r1}")
            e(f"  v_lshlrev_b32 v{r2}, 16, v{r2}")
            e(f"  v_sub_f32 v60, v{r0}, v{r1}")
            e("  v_cvt_pk_bf16_f32 v60, v60, v60")
            e("  v_lshlrev_b32 v60, 16, v60")
            e(f"  v_add_f32 v60, v{r2}, v60")
            e("  v_cvt_pk_bf16_f32 v60, v60, v60")
            e(f"  v_lshlrev_b32 v{r0}, 16, v60")
            e(f"  v_sub_f32 v62, v{r0}, v{48+2*i}")
            e("  v_cvt_pk_bf16_f32 v62, v62, v62")
            e("  v_lshlrev_b32 v62, 16, v62")
            e(f"  v_mul_f32 v62, v62, v{49+2*i}")
            e("  v_cvt_pk_bf16_f32 v62, v62, v62")
            e(f"  v_lshlrev_b32 v{r1}, 16, v62")
    stamp(3)
    e("  v_and_b32 v4, 7, v0")
    e("  v_lshlrev_b32 v4, 4, v4")
    e("  v_lshl_add_u32 v4, v5, 7, v4")
    e("  s_mul_i32 s14, s13, 7168")
    e(f"  s_add_u32 s14, s14, {WS_GU}")
    regs = [216+4*i for i in range(9)] + [36, 40, 44, 56, 64]
    e("  v_add_u32 v62, 4096, v4")
    e("  s_mov_b32 s53, 0")
    lab("t4_poll")
    for st in range(14):
        e(f"  buffer_load_dwordx4 {vr(regs[st],4)}, v4, s[20:23], s14 offen offset:{512*st if st < 8 else 0} sc1") if st < 8 else e(f"  buffer_load_dwordx4 {vr(regs[st],4)}, v62, s[20:23], s14 offen offset:{512*(st-8)} sc1")
    e("  v_mov_b32 v3, 0")
    for st in range(14):
        e(f"  s_waitcnt vmcnt({13-st})")
        e(f"  v_max3_u32 v3, v3, v{regs[st]}, v{regs[st]+1}")
        e(f"  v_max3_u32 v3, v3, v{regs[st]+2}, v{regs[st]+3}")
    e("  v_cmp_eq_u32 s[54:55], -1, v3")
    e("  s_nop 3")
    e("  s_cmp_eq_u64 s[54:55], 0")
    e("  s_cbranch_scc1 t4_poll_ok")
    e("  s_add_u32 s53, s53, 1")
    e(f"  s_cmp_gt_u32 s53, {SPIN}")
    e("  s_cbranch_scc1 t4_poll_ok")
    e("  s_branch t4_poll")
    lab("t4_poll_ok")
    stamp(5)
    e("  s_waitcnt lgkmcnt(0)")
    for st in range(14):
        e(f"  v_mfma_f32_16x16x32_bf16 v[8:11], {vr(regs[st],4)}, {vr(FB0+4*st,4)}, v[8:11]")
        e(f"  v_mfma_f32_16x16x32_bf16 v[12:15], {vr(regs[st],4)}, {vr(FB1+4*st,4)}, v[12:15]")
    e("  s_nop 15")
    stamp(6)
    e("  v_lshlrev_b32 v3, 4, v0")
    e("  s_lshl_b32 s33, s13, 11")
    e("  v_add_u32 v3, s33, v3")
    e(f"  ds_write_b128 v3, v[8:11] offset:{LDS_R}")
    e(f"  ds_write_b128 v3, v[12:15] offset:{LDS_R+1024}")
    e("  s_waitcnt lgkmcnt(0)")
    e("  s_barrier")
    e("  s_cmp_lg_u32 s13, 0")
    e("  s_cbranch_scc1 t4_done")
    e("  v_lshlrev_b32 v3, 4, v0")
    for w in range(1, 4):
        for a in range(2):
            e(f"  ds_read_b128 {vr(72+8*(w-1)+4*a,4)}, v3 offset:{LDS_R+2048*w+1024*a}")
    e("  v_cmp_gt_u32 vcc, 32, v0")
    e("  s_and_saveexec_b64 s[40:41], vcc")
    e("  s_waitcnt lgkmcnt(0)")
    for a in range(2):
        for i in range(4):
            y = 8 + 4*a + i
            e(f"  v_add_f32 v{y}, v{y}, v{72+4*a+i}")
            e(f"  v_add_f32 v60, v{80+4*a+i}, v{88+4*a+i}")
            e(f"  v_add_f32 v{y}, v{y}, v60")
            e(f"  v_cvt_pk_bf16_f32 v{y}, v{y}, v{y}")
            e(f"  v_lshlrev_b32 v{y}, 16, v{y}")
            e(f"  v_mul_f32 v{y}, v{y}, v{24+i}")
            e(f"  v_cvt_pk_bf16_f32 v{y}, v{y}, v{y}")
            e(f"  v_lshlrev_b32 v{y}, 16, v{y}")
            e(f"  v_add_f32 v61, v{196+12*a+i}, v{y}")
            e("  v_cvt_pk_bf16_f32 v61, v61, v61")
            e("  v_lshlrev_b32 v61, 16, v61")
            e(f"  v_add_f32 v61, v{192+12*a+i}, v61")
            e("  v_cvt_pk_bf16_f32 v61, v61, v61")
            e(f"  buffer_store_short v61, v{28+i}, s[48:51], 0 offen offset:{32*a}")
    lab("t4_done")
    kernel_end()
    e("  s_endpgm")
    kernel_desc(name, 252)

ROW_O = 48
def rowmac(first, O=148, sc1=False):
    YR, YI, XX, WR, H, T, D = 16, 32, 48, 64, 80, 112, 116
    if sc1: O = ROW_O
    SC = " sc1" if sc1 else ""
    e("  v_lshlrev_b32 v3, 10, v1")
    e("  v_lshl_add_u32 v3, v2, 4, v3")
    e(f"  s_mov_b32 s52, {WS_Y}")
    e(f"  s_mov_b32 s53, {WS_Y + (2<<20)}")
    for j in range(4):
        e(f"  buffer_load_dwordx4 {vr(YR+4*j,4)}, v3, s[24:27], s52 offen offset:{256*j}{SC}")
        e(f"  buffer_load_dwordx4 {vr(YI+4*j,4)}, v3, s[24:27], s53 offen offset:{256*j}{SC}")
        e(f"  buffer_load_dwordx4 {vr(XX+4*j,4)}, v3, s[20:23], 0 offen offset:{256*j}")
    nextra = 0
    if first:
        e("  v_lshlrev_b32 v4, 4, v2")
        for j in range(4):
            e(f"  buffer_load_dwordx4 {vr(WR+4*j,4)}, v4, s[28:31], 0 offen offset:{256*j}")
        nextra = 4
    e("  v_mov_b32 v14, 0")
    e("  v_mov_b32 v15, 0")
    for j in range(4):
        e(f"  s_waitcnt vmcnt({nextra + 3*(3-j)})")
        for q in range(4):
            i = 4*j + q
            e(f"  v_lshlrev_b32 v{T}, 16, v{YR+i}")
            e(f"  v_and_b32 v{T+1}, 0xffff0000, v{YR+i}")
            e(f"  v_lshlrev_b32 v{T+2}, 16, v{YI+i}")
            e(f"  v_and_b32 v{T+3}, 0xffff0000, v{YI+i}")
            e(f"  v_pk_add_f32 {vr(T,2)}, {vr(T,2)}, {vr(T+2,2)} neg_lo:[0,1] neg_hi:[0,1]")
            e(f"  v_cvt_pk_bf16_f32 v{T}, v{T}, v{T+1}")
            e(f"  v_and_b32 v{T+1}, 0xffff0000, v{T}")
            e(f"  v_lshlrev_b32 v{T}, 16, v{T}")
            e(f"  v_lshlrev_b32 v{T+2}, 16, v{XX+i}")
            e(f"  v_and_b32 v{T+3}, 0xffff0000, v{XX+i}")
            e(f"  v_pk_add_f32 {vr(T,2)}, {vr(T,2)}, {vr(T+2,2)}")
            e(f"  v_cvt_pk_bf16_f32 v{YI+i}, v{T}, v{T+1}")
            e(f"  v_lshlrev_b32 v{H+2*i}, 16, v{YI+i}")
            e(f"  v_and_b32 v{H+2*i+1}, 0xffff0000, v{YI+i}")
            e(f"  v_pk_add_f32 v[14:15], v[14:15], {vr(H+2*i,2)}")
    e("  v_add_f32 v5, v14, v15")
    reduce16(5)
    e("  v_mul_f32 v5, 0x3b000000, v5")
    e("  v_cvt_pk_bf16_f32 v6, v5, v5")
    e("  v_lshlrev_b32 v6, 16, v6")
    e("  v_sub_f32 v8, 0, v6")
    e("  v_mov_b32 v9, v8")
    e("  v_mov_b32 v10, 0")
    e("  v_mov_b32 v11, 0")
    for i in range(16):
        e(f"  v_pk_add_f32 {vr(D+2*i,2)}, {vr(H+2*i,2)}, v[8:9]")
        e(f"  v_pk_fma_f32 v[10:11], {vr(D+2*i,2)}, {vr(D+2*i,2)}, v[10:11]")
    e("  v_add_f32 v10, v10, v11")
    reduce16(10)
    e("  v_sub_f32 v11, v5, v6")
    e("  v_mul_f32 v11, v11, v11")
    e("  v_mul_f32 v10, 0x3b000000, v10")
    e("  v_sub_f32 v10, v10, v11")
    e("  v_max_f32 v10, 0, v10")
    e("  v_cvt_pk_bf16_f32 v10, v10, v10")
    e("  v_lshlrev_b32 v10, 16, v10")
    e("  v_add_f32 v10, 0x3727c5ac, v10")
    e("  v_cvt_pk_bf16_f32 v10, v10, v10")
    e("  v_lshlrev_b32 v10, 16, v10")
    e("  v_sqrt_f32 v10, v10")
    e("  s_nop 0")
    e("  v_cvt_pk_bf16_f32 v10, v10, v10")
    e("  v_lshlrev_b32 v10, 16, v10")
    e("  v_rcp_f32 v10, v10")
    e("  s_nop 0")
    e("  v_mov_b32 v11, v10")
    if first:
        e("  v_mov_b32 v12, 0")
        e("  s_waitcnt vmcnt(0)")
    for i in range(16):
        e(f"  v_cvt_pk_bf16_f32 v{T}, v{D+2*i}, v{D+2*i+1}")
        e(f"  v_lshlrev_b32 v{D+2*i}, 16, v{T}")
        e(f"  v_and_b32 v{D+2*i+1}, 0xffff0000, v{T}")
        e(f"  v_pk_mul_f32 {vr(D+2*i,2)}, {vr(D+2*i,2)}, v[10:11]")
        e(f"  v_cvt_pk_bf16_f32 v{YR+i}, v{D+2*i}, v{D+2*i+1}")
        if first:
            e(f"  v_dot2_f32_bf16 v12, v{YR+i}, v{WR+i}, v12")
            e(f"  v_lshlrev_b32 v{D+2*i}, 16, v{YR+i}")
            e(f"  v_and_b32 v{D+2*i+1}, 0xffff0000, v{YR+i}")
            e(f"  v_pk_add_f32 {vr(D+2*i,2)}, {vr(D+2*i,2)}, {vr(H+2*i,2)}")
            e(f"  v_cvt_pk_bf16_f32 v{O+i}, v{D+2*i}, v{D+2*i+1}")
    if first:
        e("  s_nop 3")
        reduce16(12)
        e("  v_cvt_pk_bf16_f32 v12, v12, v12")
        e("  v_lshlrev_b32 v12, 16, v12")
        e("  v_ashrrev_i32 v13, 31, v12")
        e("  v_or_b32 v13, 0x80000000, v13")
        e("  v_xor_b32 v12, v12, v13")
        e("  v_and_b32 v12, 0xffff0000, v12")
        e("  v_sub_u32 v13, 0xffff, v1")
        e("  v_or_b32 v12, v12, v13")

def gen_tf():
    name = "tf_kernel"
    kernel_begin(name)
    LDS_G, LDS_U, LDS_WD = 0, 8192, 16384
    LDS_XS = 45056
    LDS_HS = LDS_XS + 8 * XS_STRIDE
    LDS_C = LDS_HS + 8192
    LDS_R = LDS_C + 256
    SPIN = 1 << 22
    e("  s_cmp_ge_u32 s2, 256")
    e("  s_cbranch_scc1 tf_done")
    e(f"  s_load_dwordx2 s[4:5], s[0:1], {KA_X}")
    e(f"  s_load_dwordx2 s[6:7], s[0:1], {KA_WS}")
    e(f"  s_load_dwordx8 s[8:15], s[0:1], {KA_WR}")
    e(f"  s_load_dwordx2 s[16:17], s[0:1], {KA_OUT}")
    e("  s_and_b32 s3, s2, 7")
    e("  s_mul_i32 s49, s3, 28")
    e("  s_lshr_b32 s50, s2, 3")
    e("  s_add_u32 s49, s49, s50")
    e("  s_sub_u32 s50, s50, 24")
    e("  s_lshl_b32 s51, s3, 3")
    e("  s_add_u32 s50, s50, s51")
    e("  v_mov_b32 v180, v0")
    e("  v_lshrrev_b32 v1, 6, v0")
    e("  v_and_b32 v0, 63, v0")
    e("  v_readfirstlane_b32 s48, v1")
    e("  s_waitcnt lgkmcnt(0)")
    srd(20, 4, 5, 2 << 20)
    srd(24, 6, 7, 9 << 20)
    srd(28, 8, 9, 1024)
    srd(32, 10, 11, 512*1792*2)
    srd(36, 12, 13, 512*1792*2)
    srd(40, 14, 15, 1792*512*2)
    srd(44, 16, 17, 2 << 20)
    e("  s_cmp_lt_u32 s48, 2")
    e("  s_cbranch_scc1 tf_p1")
    e("  s_cmp_ge_u32 s2, 224")
    e("  s_cbranch_scc1 tf_nof1")
    e("  s_movk_i32 s52, 3584")
    e("  v_mul_lo_u32 v3, v0, s52")
    e("  s_lshl_b32 s53, s49, 4")
    e("  s_cmp_eq_u32 s48, 2")
    e("  s_cbranch_scc0 tf_dma_u")
    for i in range(8):
        e(f"  s_mov_b32 m0, {LDS_G + 1024*i}")
        e("  s_nop 0")
        e("  buffer_load_dwordx4 v3, s[32:35], s53 offen lds")
        e(f"  s_add_u32 s53, s53, {64*3584}")
    e("  s_branch tf_nof1")
    lab("tf_dma_u")
    for i in range(8):
        e(f"  s_mov_b32 m0, {LDS_U + 1024*i}")
        e("  s_nop 0")
        e("  buffer_load_dwordx4 v3, s[36:39], s53 offen lds")
        e(f"  s_add_u32 s53, s53, {64*3584}")
    lab("tf_nof1")
    e("  s_cmp_lt_u32 s2, 192")
    e("  s_cbranch_scc1 tf_poll1")
    e("  v_lshlrev_b32 v3, 10, v0")
    e("  s_sub_u32 s52, s48, 2")
    e(f"  s_mul_i32 s53, s52, {896*1024}")
    e("  s_lshl_b32 s54, s50, 4")
    e("  s_add_u32 s53, s53, s54")
    e(f"  s_mul_i32 s54, s52, {896*16}")
    for i in range(14):
        e(f"  s_add_u32 m0, s54, {LDS_WD + 1024*i}")
        e("  s_nop 0")
        e("  buffer_load_dwordx4 v3, s[40:43], s53 offen lds")
        e("  s_add_u32 s53, s53, 0x10000")
    e("  s_branch tf_poll1")
    lab("tf_p1")
    e("  v_lshrrev_b32 v1, 4, v180")
    e("  v_and_b32 v2, 15, v0")
    e("  s_lshl_b32 s52, s2, 3")
    e("  v_add_u32 v1, s52, v1")
    e("  v_mov_b32 v181, v1")
    rowmac(True)
    e("  v_cmp_eq_u32 vcc, 0, v2")
    e("  s_and_saveexec_b64 s[56:57], vcc")
    e("  v_lshlrev_b32 v13, 2, v1")
    e(f"  s_mov_b32 s52, {WS_KEY}")
    e("  buffer_store_dword v12, v13, s[24:27], s52 offen sc1")
    e("  s_mov_b64 exec, s[56:57]")
    stamp(1)
    lab("tf_poll1")
    K = 164
    e("  v_lshlrev_b32 v172, 5, v180")
    e(f"  s_mov_b32 s52, {WS_KEY}")
    e("  s_mov_b32 s60, 0")
    lab("tf_poll1_loop")
    e(f"  buffer_load_dwordx4 {vr(K,4)}, v172, s[24:27], s52 offen sc1")
    e(f"  buffer_load_dwordx4 {vr(K+4,4)}, v172, s[24:27], s52 offen offset:16 sc1")
    e("  s_waitcnt vmcnt(0)")
    e(f"  v_min3_u32 v173, v{K}, v{K+1}, v{K+2}")
    e(f"  v_min3_u32 v174, v{K+3}, v{K+4}, v{K+5}")
    e(f"  v_min3_u32 v173, v173, v{K+6}, v{K+7}")
    e("  v_min_u32 v173, v173, v174")
    e("  v_cmp_eq_u32 s[62:63], 0, v173")
    e("  s_nop 3")
    e("  s_cmp_eq_u64 s[62:63], 0")
    e("  s_cbranch_scc1 tf_poll1_ok")
    e("  s_add_u32 s60, s60, 1")
    e(f"  s_cmp_gt_u32 s60, {SPIN}")
    e("  s_cbranch_scc1 tf_poll1_ok")
    e("  s_sleep 1")
    e("  s_branch tf_poll1_loop")
    lab("tf_poll1_ok")
    stamp(2)
    e("  v_mov_b32 v176, 0")
    for rnd in range(8):
        e(f"  v_max3_u32 v173, v{K}, v{K+1}, v{K+2}")
        e(f"  v_max3_u32 v174, v{K+3}, v{K+4}, v{K+5}")
        e(f"  v_max3_u32 v173, v173, v{K+6}, v{K+7}")
        e("  v_max_u32 v173, v173, v174")
        e("  s_nop 1")
        e("  v_max_u32_dpp v173, v173, v173 quad_perm:[1,0,3,2] row_mask:0xf bank_mask:0xf")
        e("  s_nop 1")
        e("  v_max_u32_dpp v173, v173, v173 quad_perm:[2,3,0,1] row_mask:0xf bank_mask:0xf")
        e("  s_nop 1")
        e("  v_max_u32_dpp v173, v173, v173 row_half_mirror row_mask:0xf bank_mask:0xf")
        e("  s_nop 1")
        e("  v_max_u32_dpp v173, v173, v173 row_mirror row_mask:0xf bank_mask:0xf")
        e("  s_nop 1")
        e("  v_readlane_b32 s64, v173, 0")
        e("  v_readlane_b32 s65, v173, 16")
        e("  v_readlane_b32 s66, v173, 32")
        e("  v_readlane_b32 s67, v173, 48")
        e("  s_max_u32 s64, s64, s65")
        e("  s_max_u32 s66, s66, s67")
        e("  s_max_u32 s64, s64, s66")
        e(f"  v_writelane_b32 v176, s64, {rnd}")
        if rnd < 7:
            for k in range(8):
                e(f"  v_cmp_ne_u32 vcc, s64, v{K+k}")
                e("  s_nop 1")
                e(f"  v_cndmask_b32 v{K+k}, 0, v{K+k}, vcc")
    e("  s_lshl_b32 s52, s48, 5")
    e(f"  s_add_u32 s52, s52, {LDS_C}")
    e("  v_lshlrev_b32 v172, 2, v0")
    e("  v_add_u32 v172, s52, v172")
    e("  v_cmp_gt_u32 vcc, 8, v0")
    e("  s_and_saveexec_b64 s[56:57], vcc")
    e("  ds_write_b32 v172, v176")
    e("  s_mov_b64 exec, s[56:57]")
    e("  s_waitcnt lgkmcnt(0)")
    e("  s_barrier")
    e("  v_and_b32 v172, 31, v0")
    e("  v_lshlrev_b32 v172, 2, v172")
    e(f"  ds_read_b32 v177, v172 offset:{LDS_C}")
    e("  v_mov_b32 v178, 0")
    e("  s_waitcnt lgkmcnt(0)")
    for i in range(32):
        e(f"  v_readlane_b32 s64, v177, {i}")
        e("  s_nop 1")
        e("  v_cmp_gt_u32 vcc, s64, v177")
        e("  s_nop 1")
        e("  v_addc_co_u32 v178, vcc, 0, v178, vcc")
    e("  v_cmp_gt_u32 vcc, 8, v178")
    e("  v_cmp_gt_u32 s[58:59], 32, v0")
    e("  s_and_b64 vcc, vcc, s[58:59]")
    e("  v_lshlrev_b32 v172, 2, v178")
    e("  s_and_saveexec_b64 s[56:57], vcc")
    e(f"  ds_write_b32 v172, v177 offset:{LDS_C+128}")
    e("  s_mov_b64 exec, s[56:57]")
    e("  s_waitcnt lgkmcnt(0)")
    e("  s_barrier")
    stamp(3)
    e("  s_cmp_lt_u32 s48, 2")
    e("  s_cbranch_scc1 tf_p2")
    e("  s_waitcnt vmcnt(0)")
    e("  s_branch tf_p2_end")
    lab("tf_p2")
    e("  v_mov_b32 v172, 0")
    e(f"  ds_read_b128 {vr(K,4)}, v172 offset:{LDS_C+128}")
    e(f"  ds_read_b128 {vr(K+4,4)}, v172 offset:{LDS_C+144}")
    e("  v_lshrrev_b32 v173, 4, v180")
    e("  v_lshlrev_b32 v173, 2, v173")
    e(f"  ds_read_b32 v174, v173 offset:{LDS_C+128}")
    e("  v_sub_u32 v175, 0xffff, v181")
    e("  s_waitcnt lgkmcnt(0)")
    e("  s_mov_b64 s[58:59], exec")
    for k in range(8):
        e(f"  v_and_b32 v{K+k}, 0xffff, v{K+k}")
        e(f"  v_cmp_ne_u32 vcc, v{K+k}, v175")
        e("  s_and_b64 s[58:59], s[58:59], vcc")
    e("  v_lshlrev_b32 v3, 10, v181")
    e("  v_lshl_add_u32 v3, v2, 4, v3")
    e("  s_and_saveexec_b64 s[56:57], s[58:59]")
    e("  s_cbranch_execz tf_nostore")
    for j in range(4):
        e(f"  buffer_store_dwordx4 {vr(148+4*j,4)}, v3, s[44:47], 0 offen offset:{256*j}")
    lab("tf_nostore")
    e("  s_mov_b64 exec, s[56:57]")
    e("  v_and_b32 v1, 0xffff, v174")
    e("  v_sub_u32 v1, 0xffff, v1")
    rowmac(False)
    e("  v_lshrrev_b32 v173, 4, v180")
    e(f"  v_mul_u32_u24 v4, {XS_STRIDE}, v173")
    e("  v_lshl_add_u32 v4, v2, 4, v4")
    e("  v_lshlrev_b32 v5, 10, v173")
    e("  v_lshl_add_u32 v5, v2, 4, v5")
    for j in range(4):
        e(f"  ds_write_b128 v4, {vr(16+4*j,4)} offset:{LDS_XS+256*j}")
        e(f"  ds_write_b128 v5, {vr(32+4*j,4)} offset:{LDS_HS+256*j}")
    e("  s_waitcnt lgkmcnt(0)")
    lab("tf_p2_end")
    e("  s_barrier")
    stamp(4)
    e("  s_cmp_lg_u32 s48, 0")
    e("  s_cbranch_scc1 tf_f2")
    e("  s_cmp_ge_u32 s2, 224")
    e("  s_cbranch_scc1 tf_f2")
    e("  v_and_b32 v3, 7, v0")
    e(f"  v_mul_u32_u24 v3, {XS_STRIDE}, v3")
    e("  v_lshrrev_b32 v4, 4, v0")
    e("  v_lshl_add_u32 v3, v4, 4, v3")
    e("  v_and_b32 v5, 15, v0")
    e("  v_lshrrev_b32 v5, 2, v5")
    e("  v_lshl_add_u32 v5, v4, 3, v5")
    e("  v_lshlrev_b32 v5, 4, v5")
    e("  v_and_b32 v6, 1, v0")
    e("  v_lshl_add_u32 v5, v6, 3, v5")
    e("  v_and_b32 v6, 2, v0")
    e("  v_lshl_add_u32 v5, v6, 12, v5")
    for i in range(4):
        e(f"  v_mov_b32 v{8+i}, 0")
    FA, FB = 16, 80
    for st in range(16):
        e(f"  ds_read_b128 {vr(FA+4*st,4)}, v3 offset:{LDS_XS + 64*st}")
        e(f"  ds_read_b64_tr_b16 {vr(FB+4*st,2)}, v5 offset:{512*st}")
        e(f"  ds_read_b64_tr_b16 {vr(FB+4*st+2,2)}, v5 offset:{512*st+64}")
        if st % 4 == 3:
            e("  s_waitcnt lgkmcnt(0)")
            for s2 in range(st-3, st+1):
                e(f"  v_mfma_f32_16x16x32_bf16 v[8:11], {vr(FA+4*s2,4)}, {vr(FB+4*s2,4)}, v[8:11]")
    e("  s_nop 15")
    for i in range(4):
        e(f"  v_cvt_pk_bf16_f32 v{8+i}, v{8+i}, v{8+i}")
        e(f"  v_lshlrev_b32 v{8+i}, 16, v{8+i}")
    e("  s_nop 1")
    for i in range(4):
        e(f"  v_mov_b32_dpp v{12+i}, v{8+i} row_ror:8 row_mask:0xf bank_mask:0xf")
    for i in range(4):
        e(f"  v_mul_f32 v16, 0xbfb8aa3b, v{8+i}")
        e("  v_exp_f32 v16, v16")
        e("  s_nop 0")
        e("  v_add_f32 v16, 1.0, v16")
        e("  v_rcp_f32 v16, v16")
        e("  s_nop 0")
        e(f"  v_mul_f32 v16, v{8+i}, v16")
        e("  v_cvt_pk_bf16_f32 v16, v16, v16")
        e("  v_lshlrev_b32 v16, 16, v16")
        e(f"  v_mul_f32 v16, v16, v{12+i}")
        e(f"  v_cvt_pk_bf16_f32 v{20+i}, v16, v16")
    e("  s_nop 1")
    for i in range(4):
        e(f"  v_mov_b32_dpp v{24+i}, v{20+i} quad_perm:[1,0,3,2] row_mask:0xf bank_mask:0xf")
    for i in range(4):
        e(f"  v_and_b32 v{20+i}, 0xffff, v{20+i}")
        e(f"  v_and_b32 v{24+i}, 0xffff0000, v{24+i}")
        e(f"  v_or_b32 v{20+i}, v{20+i}, v{24+i}")
    e("  v_and_b32 v5, 15, v0")
    e("  v_and_b32 v6, 9, v0")
    e("  v_cmp_eq_u32 vcc, 0, v6")
    e("  v_cmp_gt_u32 s[58:59], 32, v0")
    e("  s_and_b64 vcc, vcc, s[58:59]")
    e("  s_and_saveexec_b64 s[56:57], vcc")
    e("  v_lshlrev_b32 v4, 2, v4")
    e("  v_mul_u32_u24 v4, 3584, v4")
    e("  v_lshl_add_u32 v4, v5, 1, v4")
    e("  s_lshl_b32 s52, s49, 4")
    e(f"  s_add_u32 s52, s52, {WS_GU}")
    for i in range(4):
        e(f"  buffer_store_dword v{20+i}, v4, s[24:27], s52 offen sc1")
        if i < 3:
            e("  v_add_u32 v4, 3584, v4")
    e("  s_waitcnt vmcnt(0)")
    e("  s_mov_b64 exec, 1")
    e("  v_mov_b32 v4, 1")
    e("  v_mov_b32 v5, 0")
    e("  s_lshl_b32 s52, s49, 2")
    e(f"  s_add_u32 s52, s52, {WS_FLAG}")
    e("  buffer_store_dword v4, v5, s[24:27], s52 offen sc1")
    e("  s_mov_b64 exec, s[56:57]")
    stamp(5)
    lab("tf_f2")
    e("  s_cmp_lt_u32 s2, 192")
    e("  s_cbranch_scc1 tf_done")
    e("  v_min_u32 v3, 55, v0")
    e("  v_lshlrev_b32 v3, 2, v3")
    e("  s_mul_i32 s52, s48, 224")
    e(f"  s_add_u32 s52, s52, {WS_FLAG}")
    e("  s_mov_b32 s60, 0")
    lab("tf_poll2_loop")
    e("  buffer_load_dword v4, v3, s[24:27], s52 offen sc1")
    e("  s_waitcnt vmcnt(0)")
    e("  v_cmp_eq_u32 s[62:63], 0, v4")
    e("  s_nop 3")
    e("  s_cmp_eq_u64 s[62:63], 0")
    e("  s_cbranch_scc1 tf_poll2_ok")
    e("  s_add_u32 s60, s60, 1")
    e(f"  s_cmp_gt_u32 s60, {SPIN}")
    e("  s_cbranch_scc1 tf_poll2_ok")
    e("  s_sleep 1")
    e("  s_branch tf_poll2_loop")
    lab("tf_poll2_ok")
    stamp(6)
    e("  v_and_b32 v4, 7, v0")
    e("  v_mul_u32_u24 v4, 3584, v4")
    e("  v_lshrrev_b32 v5, 4, v0")
    e("  v_lshl_add_u32 v4, v5, 4, v4")
    e("  s_mul_i32 s52, s48, 896")
    e(f"  s_add_u32 s52, s52, {WS_GU}")
    FA, FB = 16, 72
    for st in range(14):
        e(f"  buffer_load_dwordx4 {vr(FA+4*st,4)}, v4, s[24:27], s52 offen offset:{64*st} sc1")
    e("  v_and_b32 v7, 15, v0")
    e("  v_lshrrev_b32 v7, 2, v7")
    e("  v_lshl_add_u32 v7, v5, 3, v7")
    e("  v_lshlrev_b32 v7, 4, v7")
    e("  v_and_b32 v6, 1, v0")
    e("  v_lshl_add_u32 v7, v6, 3, v7")
    e("  s_mul_i32 s54, s48, 7168")
    e(f"  s_add_u32 s54, s54, {LDS_WD}")
    e("  v_add_u32 v7, s54, v7")
    for st in range(14):
        e(f"  ds_read_b64_tr_b16 {vr(FB+4*st,2)}, v7 offset:{512*st}")
        e(f"  ds_read_b64_tr_b16 {vr(FB+4*st+2,2)}, v7 offset:{512*st+64}")
    for i in range(4):
        e(f"  v_mov_b32 v{8+i}, 0")
    e("  s_waitcnt vmcnt(0) lgkmcnt(0)")
    for st in range(14):
        e(f"  v_mfma_f32_16x16x32_bf16 v[8:11], {vr(FA+4*st,4)}, {vr(FB+4*st,4)}, v[8:11]")
    e("  s_nop 15")
    e("  v_lshlrev_b32 v3, 4, v0")
    e("  s_lshl_b32 s52, s48, 10")
    e("  v_add_u32 v3, s52, v3")
    e(f"  ds_write_b128 v3, v[8:11] offset:{LDS_R}")
    e("  s_waitcnt lgkmcnt(0)")
    e("  s_barrier")
    e("  s_cmp_lg_u32 s48, 0")
    e("  s_cbranch_scc1 tf_done")
    e("  v_lshlrev_b32 v3, 4, v0")
    for w in range(1, 4):
        e(f"  ds_read_b128 {vr(12+4*(w-1),4)}, v3 offset:{LDS_R+1024*w}")
    e("  v_and_b32 v6, 1, v5")
    e("  v_lshlrev_b32 v6, 4, v6")
    e(f"  ds_read_b128 v[24:27], v6 offset:{LDS_C+128}")
    e("  v_and_b32 v6, 7, v0")
    e("  s_lshl_b32 s52, s50, 4")
    e("  v_lshl_add_u32 v6, v6, 1, s52")
    e("  v_and_b32 v7, 1, v5")
    e("  v_lshlrev_b32 v7, 2, v7")
    for i in range(4):
        e(f"  v_add_u32 v28, {i}, v7")
        e(f"  v_mul_u32_u24 v29, {XS_STRIDE}, v28")
        e("  v_add_u32 v29, v29, v6")
        e(f"  ds_read_u16 v{36+i}, v29 offset:{LDS_XS}")
        e("  v_lshl_add_u32 v29, v28, 10, v6")
        e(f"  ds_read_u16 v{40+i}, v29 offset:{LDS_HS}")
    e("  v_and_b32 v30, 15, v0")
    e("  v_cmp_gt_u32 vcc, 8, v30")
    e("  v_cmp_gt_u32 s[58:59], 32, v0")
    e("  s_and_b64 vcc, vcc, s[58:59]")
    e("  s_waitcnt lgkmcnt(0)")
    e("  s_and_saveexec_b64 s[56:57], vcc")
    for i in range(4):
        e(f"  v_add_f32 v{8+i}, v{8+i}, v{12+i}")
        e(f"  v_add_f32 v{16+i}, v{16+i}, v{20+i}")
        e(f"  v_add_f32 v{8+i}, v{8+i}, v{16+i}")
        e(f"  v_cvt_pk_bf16_f32 v{8+i}, v{8+i}, v{8+i}")
        e(f"  v_lshlrev_b32 v{8+i}, 16, v{8+i}")
        e(f"  v_and_b32 v60, 0xffff0000, v{24+i}")
        e("  v_ashrrev_i32 v61, 31, v60")
        e("  v_not_b32 v61, v61")
        e("  v_or_b32 v61, 0x80000000, v61")
        e("  v_xor_b32 v60, v60, v61")
        e("  v_and_b32 v60, 0xffff0000, v60")
        e("  v_mul_f32 v60, 0xbfb8aa3b, v60")
        e("  v_exp_f32 v60, v60")
        e("  s_nop 0")
        e("  v_add_f32 v60, 1.0, v60")
        e("  v_rcp_f32 v60, v60")
        e("  s_nop 0")
        e("  v_cvt_pk_bf16_f32 v60, v60, v60")
        e("  v_lshlrev_b32 v60, 16, v60")
        e(f"  v_mul_f32 v{8+i}, v{8+i}, v60")
        e(f"  v_cvt_pk_bf16_f32 v{8+i}, v{8+i}, v{8+i}")
        e(f"  v_lshlrev_b32 v{8+i}, 16, v{8+i}")
        e(f"  v_lshlrev_b32 v{36+i}, 16, v{36+i}")
        e(f"  v_lshlrev_b32 v{40+i}, 16, v{40+i}")
        e(f"  v_add_f32 v61, v{36+i}, v{8+i}")
        e("  v_cvt_pk_bf16_f32 v61, v61, v61")
        e("  v_lshlrev_b32 v61, 16, v61")
        e(f"  v_add_f32 v61, v{40+i}, v61")
        e("  v_cvt_pk_bf16_f32 v61, v61, v61")
        e(f"  v_and_b32 v62, 0xffff, v{24+i}")
        e("  v_sub_u32 v62, 0xffff, v62")
        e("  v_lshl_add_u32 v62, v62, 10, v6")
        e("  buffer_store_short v61, v62, s[44:47], 0 offen")
    lab("tf_done")
    kernel_end()
    e("  s_endpgm")
    kernel_desc(name, 184)

def main():
    hdr = open("cdna_kernels/" + NAME + ".s.ref").read().splitlines()
    out = []
    for ln in hdr:
        if ln.startswith("; @launch"):
            out.append("; @launch kernel=k1_kernel grid=(256,1,1) block=(%d,1,1) lds=131072" % (576 if OPT('K1_PF', 1) else 512))
            out.append("; @launch kernel=k2_kernel grid=(256,1,1) block=(%d,1,1) lds=%d" % (576, K2_NS*24576))
            if OPT('TF'):
                out.append("; @launch kernel=tf_kernel grid=(256,1,1) block=(256,1,1) lds=66048")
            else:
                if not OPT('K2T1', 1):
                    out.append("; @launch kernel=t1_kernel grid=(256,1,1) block=(%d,1,1) lds=0" % (192 if OPT('T1_PF', 1) else 128))
                if OPT('T4', 1):
                    out.append("; @launch kernel=t4_kernel grid=(240,1,1) block=(256,1,1) lds=123392")
                else:
                    out.append("; @launch kernel=t2_kernel grid=(224,1,1) block=(256,1,1) lds=25600")
                    out.append("; @launch kernel=t3_kernel grid=(64,1,1) block=(256,1,1) lds=32768")
            break
        out.append(ln)
    out.append('.amdgcn_target "amdgcn-amd-amdhsa--gfx950"')
    out.append(".text")
    gen_k1(); gen_k2()
    if OPT('TF'): gen_tf()
    elif OPT('T4', 1):
        if not OPT('K2T1', 1): gen_t1()
        gen_t4()
    else: gen_t1(); gen_t2(); gen_t3()
    out += L
    out.append('.section .rodata,"a"')
    out += KD
    dst = sys.argv[1] if len(sys.argv) > 1 else "cdna_kernels/" + NAME + ".s"
    open(dst, "w").write("\n".join(out) + "\n")

main()
```

```python
import sys, os
OPT = lambda k, d=0: int(os.environ.get(k, d))

NAME = "sequential_preLN__spectral_fnet__moe_arch_mod__prompt"
L = []
def e(s=""):
    L.append(s)
def lab(s):
    L.append(s + ":")

KA_X, KA_WSRE, KA_WSIM, KA_WDRE, KA_WDIM = 0, 8, 16, 24, 32
KA_WR, KA_WG, KA_WU, KA_WDN, KA_OUT, KA_DBG, KA_WS = 48, 56, 64, 72, 80, 88, 96
WS_YB = 0
WS_Y = 4 << 20
WS_KEY = 8 << 20
WS_STAT = (8 << 20) + 8192
WS_GU = (8 << 20) + 65536
WS_IDX = (8 << 20) + 131072
WS_FLAG = (8 << 20) + 196608
WS_WDB = 10 << 20
WS_SIZE = 268435456

KIDX = [0]
NV = {"k1_kernel": 160, "k2_kernel": 160, "t1_kernel": 148, "t2_kernel": 192, "t3_kernel": 192, "tf_kernel": 184, "t4_kernel": 252}
CUR = [0]
def kernel_begin(name):
    CUR[0] = NV[name]
    e(f".globl {name}")
    e(".p2align 8")
    e(f".type {name},@function")
    lab(name)
    if OPT('DIAG'):
        e("  s_memrealtime s[72:73]")
        for i in range(1, 7):
            e(f"  s_mov_b64 s[{72+2*i}:{73+2*i}], 0")
        e(f"  s_load_dwordx2 s[94:95], s[0:1], {KA_WS}")
        e(f"  v_mov_b32 v{CUR[0]}, v0")

def stamp(i):
    if OPT('DIAG'):
        e(f"  s_memrealtime s[{72+2*i}:{73+2*i}]")

def kernel_end():
    if OPT('DIAG'):
        e("  s_waitcnt vmcnt(0) lgkmcnt(0)")
        e("  s_memrealtime s[86:87]")
        e("  s_mov_b32 s88, s94")
        e("  s_mov_b32 s89, s95")
        e("  s_mov_b32 s90, 0x4000000")
        e("  s_mov_b32 s91, 0x00020000")
        e("  s_waitcnt lgkmcnt(0)")
        e("  s_mov_b64 exec, 1")
        for i in range(16):
            e(f"  v_mov_b32 v{i}, s{72+i}")
        e(f"  v_lshrrev_b32 v{CUR[0]+1}, 6, v{CUR[0]}")
        e(f"  v_lshlrev_b32 v{CUR[0]+1}, 6, v{CUR[0]+1}")
        e("  s_lshl_b32 s92, s2, 10")
        e(f"  s_add_u32 s92, s92, {(16 << 20) + KIDX[0] * 0x100000}")
        for i in range(4):
            e(f"  buffer_store_dwordx4 v[{4*i}:{3+4*i}], v{CUR[0]+1}, s[88:91], s92 offen offset:{16*i}")
    KIDX[0] += 1

KD = []
def kernel_desc(name, vgpr, sgpr=102):
    assert vgpr == CUR[0]
    if OPT('DIAG'): vgpr += 2
    acc = (vgpr + 3) // 4 * 4
    KD.append(f""".p2align 6
.amdhsa_kernel {name}
  .amdhsa_next_free_vgpr {vgpr}
  .amdhsa_next_free_sgpr {sgpr}
  .amdhsa_accum_offset {acc}
  .amdhsa_group_segment_fixed_size 0
  .amdhsa_kernarg_size 104
  .amdhsa_user_sgpr_count 2
  .amdhsa_user_sgpr_kernarg_segment_ptr 1
  .amdhsa_system_sgpr_workgroup_id_x 1
.end_amdhsa_kernel""")

def srd(d, lo, hi, size):
    e(f"  s_mov_b32 s{d}, s{lo}")
    e(f"  s_mov_b32 s{d+1}, s{hi}")
    e(f"  s_mov_b32 s{d+2}, {size}")
    e(f"  s_mov_b32 s{d+3}, 0x00020000")

def vr(a, n):
    return f"v[{a}:{a+n-1}]"

def reduce8(v):
    e("  s_nop 1")
    e(f"  v_add_f32_dpp v{v}, v{v}, v{v} quad_perm:[1,0,3,2] row_mask:0xf bank_mask:0xf")
    e("  s_nop 1")
    e(f"  v_add_f32_dpp v{v}, v{v}, v{v} quad_perm:[2,3,0,1] row_mask:0xf bank_mask:0xf")
    e("  s_nop 1")
    e(f"  v_add_f32_dpp v{v}, v{v}, v{v} row_half_mirror row_mask:0xf bank_mask:0xf")

def reduce16(v):
    reduce8(v)
    e("  s_nop 1")
    e(f"  v_add_f32_dpp v{v}, v{v}, v{v} row_mirror row_mask:0xf bank_mask:0xf")

def gen_k1():
    name = "k1_kernel"
    kernel_begin(name)
    e("  s_cmp_ge_u32 s2, 256")
    e("  s_cbranch_scc1 k1_done")
    e(f"  s_load_dwordx2 s[4:5], s[0:1], {KA_X}")
    e(f"  s_load_dwordx4 s[8:11], s[0:1], {KA_WDRE}")
    e(f"  s_load_dwordx2 s[6:7], s[0:1], {KA_WS}")
    e("  s_and_b32 s12, s2, 7")
    e("  s_lshr_b32 s13, s2, 3")
    e("  s_and_b32 s14, s13, 3")
    e("  s_lshl_b32 s12, s12, 2")
    e("  s_add_u32 s12, s12, s14")
    e("  s_lshr_b32 s13, s13, 2")
    e("  v_lshrrev_b32 v1, 6, v0")
    e("  v_and_b32 v0, 63, v0")
    e("  v_readfirstlane_b32 s15, v1")
    e("  v_lshrrev_b32 v2, 3, v0")
    e("  v_and_b32 v3, 7, v0")
    if OPT('K1_PF', 0) or OPT('K1_PFEND', 0):
        e(f"  s_load_dwordx4 s[40:43], s[0:1], {KA_WSRE}")
    e("  s_waitcnt lgkmcnt(0)")
    if OPT('K1_PF', 0):
        e("  s_cmp_lg_u32 s15, 8")
        e("  s_cbranch_scc1 k1_main")
        e("  s_and_b32 s44, s2, 7")
        e("  s_cmp_lt_u32 s44, 4")
        e("  s_cselect_b32 s48, s40, s42")
        e("  s_cselect_b32 s49, s41, s43")
        e(f"  s_mov_b32 s50, {2048*2048*2}")
        e("  s_mov_b32 s51, 0x00020000")
        e("  s_and_b32 s44, s44, 3")
        e("  s_lshl_b32 s44, s44, 21")
        e("  s_lshr_b32 s45, s2, 3")
        e("  s_lshl_b32 s45, s45, 16")
        e("  s_add_u32 s44, s44, s45")
        e("  v_lshlrev_b32 v1, 4, v0")
        e("  s_cmp_lt_u32 s13, 4")
        e("  s_cselect_b32 s56, s8, s10")
        e("  s_cselect_b32 s57, s9, s11")
        e(f"  s_mov_b32 s58, {512*512*2}")
        e("  s_mov_b32 s59, 0x00020000")
        e("  s_and_b32 s46, s13, 3")
        e("  s_lshl_b32 s46, s46, 17")
        for q in range(OPT('K1_CAN', 0)):
            e(f"  buffer_load_dwordx4 v[8:11], v1, s[56:59], s46 offen offset:{q*1024}")
            e("  s_waitcnt vmcnt(0)")
        for q in range(64):
            e(f"  buffer_load_dwordx4 {vr(8+4*(q%32),4)}, v1, s[48:51], s44 offen")
            e("  s_add_u32 s44, s44, 1024")
        e("  s_branch k1_done")
        lab("k1_main")
    srd(16, 4, 5, 2048*512*2)
    e("  s_cmp_lt_u32 s13, 4")
    e("  s_cselect_b32 s20, s8, s10")
    e("  s_cselect_b32 s21, s9, s11")
    e(f"  s_mov_b32 s22, {512*512*2}")
    e("  s_mov_b32 s23, 0x00020000")
    srd(24, 6, 7, 9 << 20)
    e("  s_or_b32 s46, s2, s15")
    e("  s_cmp_lg_u32 s46, 0")
    e("  s_cbranch_scc1 k1_nozero")
    for q in range(4):
        e(f"  v_mov_b32 v{4+q}, 0")
    e("  v_lshlrev_b32 v8, 4, v0")
    e(f"  s_mov_b32 s46, {WS_FLAG}")
    e("  buffer_store_dwordx4 v[4:7], v8, s[24:27], s46 offen")
    e("  s_waitcnt vmcnt(0)")
    lab("k1_nozero")
    e("  s_lshl_b32 s28, s12, 6")
    e("  s_lshl_b32 s29, s15, 3")
    e("  s_add_u32 s28, s28, s29")
    e("  v_add_u32 v4, s28, v2")
    e("  v_lshlrev_b32 v4, 10, v4")
    e("  v_lshl_add_u32 v4, v3, 4, v4")
    X = 32
    for j in range(8):
        e(f"  buffer_load_dwordx4 {vr(X+4*j,4)}, v4, s[16:19], 0 offen offset:{128*j}")
    e("  s_and_b32 s30, s13, 3")
    e("  s_lshl_b32 s30, s30, 7")
    for ii in range(2):
        e(f"  s_lshl_b32 s31, s15, 4")
        e(f"  s_add_u32 s31, s31, {8*ii}")
        e(f"  v_add_u32 v7, s31, v2")
        e(f"  v_lshrrev_b32 v8, 1, v7")
        e(f"  v_and_b32 v8, 7, v8")
        e(f"  v_xor_b32 v8, v8, v3")
        e(f"  v_add_u32 v7, s30, v7")
        e(f"  v_lshlrev_b32 v7, 10, v7")
        e(f"  v_lshl_add_u32 v{5+ii}, v8, 4, v7")
    e("  s_lshl_b32 s32, s15, 11")
    def wdma(kb):
        slot = kb % 4
        e(f"  s_mov_b32 s33, {128*kb}")
        for ii in range(2):
            e(f"  s_add_u32 m0, s32, {slot*16384 + ii*1024}")
            e("  s_nop 0")
            e(f"  buffer_load_dwordx4 v{5+ii}, s[20:23], s33 offen lds")
    for kb in range(4):
        wdma(kb)
    STG = 128
    for kb in (range(4, 8) if OPT('K1_STG') else []):
        e(f"  s_mov_b32 s33, {128*kb}")
        for ii in range(2):
            e(f"  buffer_load_dwordx4 {vr(STG+8*(kb-4)+4*ii,4)}, v{5+ii}, s[20:23], s33 offen")
    e("  s_mov_b32 s34, 0x3f803f80")
    for a in range(4):
        e(f"  v_mov_b32 v{8+a}, 0")
    stamp(1)
    e(f"  s_waitcnt vmcnt({16 if OPT('K1_STG') else 8})")
    stamp(2)
    for i in range(32):
        e(f"  v_dot2_f32_bf16 v{8+i%4}, v{X+i}, s34, v{8+i%4}")
    e("  s_nop 3")
    e("  v_add_f32 v8, v8, v9")
    e("  v_add_f32 v10, v10, v11")
    e("  v_add_f32 v8, v8, v10")
    reduce8(8)
    e("  v_mul_f32 v8, 0x3b000000, v8")
    e("  v_cvt_pk_bf16_f32 v9, v8, v8")
    e("  v_lshlrev_b32 v9, 16, v9")
    e("  v_sub_f32 v10, 0, v9")
    e("  v_mov_b32 v11, v10")
    D = 64
    for a in range(4):
        e(f"  v_mov_b32 v{12+a}, 0")
    for i in range(32):
        e(f"  v_lshlrev_b32 v{D+2*i}, 16, v{X+i}")
        e(f"  v_and_b32 v{D+2*i+1}, 0xffff0000, v{X+i}")
        e(f"  v_pk_add_f32 {vr(D+2*i,2)}, {vr(D+2*i,2)}, v[10:11]")
        q = 12 + 2*(i % 2)
        e(f"  v_pk_fma_f32 {vr(q,2)}, {vr(D+2*i,2)}, {vr(D+2*i,2)}, {vr(q,2)}")
    e("  v_add_f32 v12, v12, v13")
    e("  v_add_f32 v14, v14, v15")
    e("  v_add_f32 v12, v12, v14")
    reduce8(12)
    e("  v_sub_f32 v13, v8, v9")
    e("  v_mul_f32 v13, v13, v13")
    e("  v_mul_f32 v12, 0x3b000000, v12")
    e("  v_sub_f32 v12, v12, v13")
    e("  v_max_f32 v12, 0, v12")
    e("  v_cvt_pk_bf16_f32 v12, v12, v12")
    e("  v_lshlrev_b32 v12, 16, v12")
    e("  v_add_f32 v12, 0x3727c5ac, v12")
    e("  v_cvt_pk_bf16_f32 v12, v12, v12")
    e("  v_lshlrev_b32 v12, 16, v12")
    e("  v_sqrt_f32 v12, v12")
    e("  s_nop 0")
    e("  v_cvt_pk_bf16_f32 v12, v12, v12")
    e("  v_lshlrev_b32 v12, 16, v12")
    e("  v_rcp_f32 v12, v12")
    e("  s_nop 0")
    e("  v_mov_b32 v13, v12")
    for i in range(32):
        e(f"  v_cvt_pk_bf16_f32 v{X+i}, v{D+2*i}, v{D+2*i+1}")
        e(f"  v_lshlrev_b32 v{D+2*i}, 16, v{X+i}")
        e(f"  v_and_b32 v{D+2*i+1}, 0xffff0000, v{X+i}")
        e(f"  v_pk_mul_f32 {vr(D+2*i,2)}, {vr(D+2*i,2)}, v[12:13]")
        e(f"  v_cvt_pk_bf16_f32 v{X+i}, v{D+2*i}, v{D+2*i+1}")
    e("  v_add_u32 v14, s29, v2")
    e("  v_lshrrev_b32 v15, 1, v14")
    e("  v_and_b32 v15, 7, v15")
    e("  v_xor_b32 v15, v15, v3")
    e("  v_lshlrev_b32 v14, 7, v14")
    e("  v_lshl_add_u32 v14, v15, 4, v14")
    e("  v_add_u32 v14, 0x10000, v14")
    for j in range(8):
        e(f"  ds_write_b128 v14, {vr(X+4*j,4)} offset:{8192*j}")
    stamp(3)
    e("  s_and_b32 s35, s15, 1")
    e("  s_lshr_b32 s36, s15, 1")
    e("  v_and_b32 v16, 31, v0")
    e("  v_lshrrev_b32 v17, 5, v0")
    def fragaddr(dst, sblk, base):
        e(f"  s_lshl_b32 s37, s{sblk}, 5")
        e(f"  v_add_u32 v18, s37, v16")
        e(f"  v_lshrrev_b32 v19, 1, v18")
        e(f"  v_and_b32 v19, 7, v19")
        e(f"  v_xor_b32 v19, v19, v17")
        e(f"  v_lshlrev_b32 v18, 7, v18")
        e(f"  v_lshl_add_u32 v{dst}, v19, 4, v18")
        if base:
            e(f"  v_add_u32 v{dst}, {base}, v{dst}")
        for kk in range(1, 4):
            e(f"  v_xor_b32 v{dst+kk}, {32*kk}, v{dst}")
    fragaddr(20, 35, 0x10000)
    fragaddr(24, 36, 0)
    ACC = 96
    for i in range(16):
        e(f"  v_mov_b32 v{ACC+i}, 0")
    e("  v_lshlrev_b32 v28, 4, v0")
    e("  v_add_u32 v28, s32, v28")
    FA, FB = 64, 80
    waits = [14, 6, 4, 2, 0, 0, 0, 0] if OPT('K1_STG') else [6, 4, 4, 4, 4, 4, 2, 0]
    for kb in range(8):
        e(f"  s_waitcnt vmcnt({waits[kb]}) lgkmcnt(0)")
        e("  s_barrier")
        if kb == 0: stamp(4)
        if 1 <= kb <= 4 and not OPT('K1_STG'):
            wdma(kb + 3)
        if 1 <= kb <= 4 and OPT('K1_STG'):
            for ii in range(2):
                e(f"  ds_write_b128 v28, {vr(STG+8*(kb-1)+4*ii,4)} offset:{((kb+3)%4)*16384 + ii*1024}")
        slot = kb % 4
        for kk in range(4):
            e(f"  ds_read_b128 {vr(FA+4*kk,4)}, v{20+kk} offset:{8192*kb}")
            e(f"  ds_read_b128 {vr(FB+4*kk,4)}, v{24+kk} offset:{16384*slot}")
        for kk in range(4):
            e(f"  s_waitcnt lgkmcnt({6-2*kk})")
            e(f"  v_mfma_f32_32x32x16_bf16 {vr(ACC,16)}, {vr(FA+4*kk,4)}, {vr(FB+4*kk,4)}, {vr(ACC,16)}")
    stamp(5)
    e("  s_lshl_b32 s37, s13, 1")
    e("  s_lshr_b32 s38, s36, 1")
    e("  s_add_u32 s37, s37, s38")
    e("  s_lshl_b32 s37, s37, 5")
    e("  s_add_u32 s37, s37, s12")
    e("  s_lshl_b32 s37, s37, 13")
    e("  s_and_b32 s38, s36, 1")
    e("  s_lshl_b32 s38, s38, 5")
    e("  v_add_u32 v18, s38, v16")
    e("  v_lshrrev_b32 v19, 1, v18")
    e("  v_and_b32 v19, 7, v19")
    e("  s_lshl_b32 s38, s35, 2")
    e("  v_add_u32 v29, s38, v17")
    e("  v_xor_b32 v29, v29, v19")
    e("  v_lshlrev_b32 v18, 7, v18")
    e("  v_lshl_add_u32 v30, v29, 4, v18")
    e("  v_xor_b32 v31, 32, v30")
    e("  s_nop 7")
    P = 112
    for g in range(4):
        e(f"  v_cvt_pk_bf16_f32 v{P+2*g}, v{ACC+4*g}, v{ACC+4*g+1}")
        e(f"  v_cvt_pk_bf16_f32 v{P+2*g+1}, v{ACC+4*g+2}, v{ACC+4*g+3}")
    e("  s_nop 1")
    for p in range(2):
        e(f"  v_permlane32_swap_b32 v{P+4*p}, v{P+4*p+2}")
        e(f"  v_permlane32_swap_b32 v{P+4*p+1}, v{P+4*p+3}")
    e(f"  buffer_store_dwordx4 {vr(P,4)}, v30, s[24:27], s37 offen")
    e(f"  buffer_store_dwordx4 {vr(P+4,4)}, v31, s[24:27], s37 offen")
    if OPT('K1_PFEND', 0):
        e("  s_and_b32 s44, s2, 7")
        e("  s_cmp_lt_u32 s44, 4")
        e("  s_cselect_b32 s48, s40, s42")
        e("  s_cselect_b32 s49, s41, s43")
        e(f"  s_mov_b32 s50, {2048*2048*2}")
        e("  s_mov_b32 s51, 0x00020000")
        e("  s_and_b32 s44, s44, 3")
        e("  s_lshl_b32 s44, s44, 21")
        e("  s_lshr_b32 s45, s2, 3")
        e("  s_lshl_b32 s45, s45, 16")
        e("  s_add_u32 s44, s44, s45")
        e("  s_lshl_b32 s45, s15, 13")
        e("  s_add_u32 s44, s44, s45")
        e("  v_lshlrev_b32 v1, 4, v0")
        for q in range(8):
            e(f"  buffer_load_dwordx4 {vr(32+4*q,4)}, v1, s[48:51], s44 offen")
            e("  s_add_u32 s44, s44, 1024")
    lab("k1_done")
    kernel_end()
    e("  s_endpgm")
    kernel_desc(name, 160)

def k2_epilogue_plain(ACC):
    e("  s_lshl_b32 s24, s14, 21")
    e(f"  s_add_u32 s24, s24, {WS_Y}")
    e("  s_lshl_b32 s30, s13, 7")
    e("  s_add_u32 s24, s24, s30")
    e("  s_lshl_b32 s30, s12, 7")
    e("  s_lshl_b32 s31, s15, 5")
    e("  s_add_u32 s30, s30, s31")
    e("  v_add_u32 v18, s30, v16")
    e("  v_lshlrev_b32 v18, 10, v18")
    e("  v_lshl_add_u32 v18, v17, 4, v18")
    e("  s_nop 7")
    P = 64
    for g in range(8):
        e(f"  v_cvt_pk_bf16_f32 v{P+2*g}, v{ACC+4*g}, v{ACC+4*g+1}")
        e(f"  v_cvt_pk_bf16_f32 v{P+2*g+1}, v{ACC+4*g+2}, v{ACC+4*g+3}")
    e("  s_nop 1")
    for p in range(4):
        e(f"  v_permlane32_swap_b32 v{P+4*p}, v{P+4*p+2}")
        e(f"  v_permlane32_swap_b32 v{P+4*p+1}, v{P+4*p+3}")
    for p in range(4):
        e(f"  buffer_store_dwordx4 {vr(P+4*p,4)}, v18, s[20:23], s24 offen offset:{32*p}")

ROW_O = 48
def reduce32(v, t):
    reduce16(v)
    e("  s_nop 1")
    e(f"  ds_swizzle_b32 v{t}, v{v} offset:0x401F")
    e("  s_waitcnt lgkmcnt(0)")
    e(f"  v_add_f32 v{v}, v{v}, v{t}")

def rowmac32_pre():
    XX, WR = 48, 64
    e("  v_lshlrev_b32 v3, 10, v1")
    e("  v_lshl_add_u32 v3, v2, 4, v3")
    e("  v_lshlrev_b32 v4, 4, v2")
    for j in range(2):
        e(f"  buffer_load_dwordx4 {vr(XX+4*j,4)}, v3, s[20:23], 0 offen offset:{512*j}")
        e(f"  buffer_load_dwordx4 {vr(WR+4*j,4)}, v4, s[28:31], 0 offen offset:{512*j}")

def rowmac32():
    YR, YI, XX, WR, H, T, D = 16, 32, 48, 64, 80, 112, 116
    O = ROW_O
    e(f"  s_mov_b32 s52, {WS_Y}")
    e(f"  s_mov_b32 s53, {WS_Y + (2<<20)}")
    for j in range(2):
        e(f"  buffer_load_dwordx4 {vr(YR+4*j,4)}, v3, s[24:27], s52 offen offset:{512*j} sc1")
        e(f"  buffer_load_dwordx4 {vr(YI+4*j,4)}, v3, s[24:27], s53 offen offset:{512*j} sc1")
    e("  v_mov_b32 v14, 0")
    e("  v_mov_b32 v15, 0")
    for j in range(2):
        e(f"  s_waitcnt vmcnt({2*(1-j)})")
        for q in range(4):
            i = 4*j + q
            e(f"  v_lshlrev_b32 v{T}, 16, v{YR+i}")
            e(f"  v_and_b32 v{T+1}, 0xffff0000, v{YR+i}")
            e(f"  v_lshlrev_b32 v{T+2}, 16, v{YI+i}")
            e(f"  v_and_b32 v{T+3}, 0xffff0000, v{YI+i}")
            e(f"  v_pk_add_f32 {vr(T,2)}, {vr(T,2)}, {vr(T+2,2)} neg_lo:[0,1] neg_hi:[0,1]")
            e(f"  v_cvt_pk_bf16_f32 v{T}, v{T}, v{T+1}")
            e(f"  v_and_b32 v{T+1}, 0xffff0000, v{T}")
            e(f"  v_lshlrev_b32 v{T}, 16, v{T}")
            e(f"  v_lshlrev_b32 v{T+2}, 16, v{XX+i}")
            e(f"  v_and_b32 v{T+3}, 0xffff0000, v{XX+i}")
            e(f"  v_pk_add_f32 {vr(T,2)}, {vr(T,2)}, {vr(T+2,2)}")
            e(f"  v_cvt_pk_bf16_f32 v{T}, v{T}, v{T+1}")
            e(f"  v_lshlrev_b32 v{H+2*i}, 16, v{T}")
            e(f"  v_and_b32 v{H+2*i+1}, 0xffff0000, v{T}")
            e(f"  v_pk_add_f32 v[14:15], v[14:15], {vr(H+2*i,2)}")
    e("  v_add_f32 v5, v14, v15")
    reduce32(5, 13)
    e("  v_mul_f32 v5, 0x3b000000, v5")
    e("  v_cvt_pk_bf16_f32 v6, v5, v5")
    e("  v_lshlrev_b32 v6, 16, v6")
    e("  v_sub_f32 v8, 0, v6")
    e("  v_mov_b32 v9, v8")
    e("  v_mov_b32 v10, 0")
    e("  v_mov_b32 v11, 0")
    for i in range(8):
        e(f"  v_pk_add_f32 {vr(D+2*i,2)}, {vr(H+2*i,2)}, v[8:9]")
        e(f"  v_pk_fma_f32 v[10:11], {vr(D+2*i,2)}, {vr(D+2*i,2)}, v[10:11]")
    e("  v_add_f32 v10, v10, v11")
    reduce32(10, 13)
    e("  v_sub_f32 v11, v5, v6")
    e("  v_mul_f32 v11, v11, v11")
    e("  v_mul_f32 v10, 0x3b000000, v10")
    e("  v_sub_f32 v10, v10, v11")
    e("  v_max_f32 v10, 0, v10")
    e("  v_cvt_pk_bf16_f32 v10, v10, v10")
    e("  v_lshlrev_b32 v10, 16, v10")
    e("  v_add_f32 v10, 0x3727c5ac, v10")
    e("  v_cvt_pk_bf16_f32 v10, v10, v10")
    e("  v_lshlrev_b32 v10, 16, v10")
    e("  v_sqrt_f32 v10, v10")
    e("  s_nop 0")
    e("  v_cvt_pk_bf16_f32 v10, v10, v10")
    e("  v_lshlrev_b32 v10, 16, v10")
    e("  v_rcp_f32 v10, v10")
    e("  s_nop 0")
    e("  v_mov_b32 v11, v10")
    e("  v_mov_b32 v12, 0")
    for i in range(8):
        e(f"  v_cvt_pk_bf16_f32 v{T}, v{D+2*i}, v{D+2*i+1}")
        e(f"  v_lshlrev_b32 v{D+2*i}, 16, v{T}")
        e(f"  v_and_b32 v{D+2*i+1}, 0xffff0000, v{T}")
        e(f"  v_pk_mul_f32 {vr(D+2*i,2)}, {vr(D+2*i,2)}, v[10:11]")
        e(f"  v_cvt_pk_bf16_f32 v{T}, v{D+2*i}, v{D+2*i+1}")
        e(f"  v_dot2_f32_bf16 v12, v{T}, v{WR+i}, v12")
        e(f"  v_lshlrev_b32 v{D+2*i}, 16, v{T}")
        e(f"  v_and_b32 v{D+2*i+1}, 0xffff0000, v{T}")
        e(f"  v_pk_add_f32 {vr(D+2*i,2)}, {vr(D+2*i,2)}, {vr(H+2*i,2)}")
        e(f"  v_cvt_pk_bf16_f32 v{O+i}, v{D+2*i}, v{D+2*i+1}")
    for j in range(2):
        e(f"  buffer_store_dwordx4 {vr(O+4*j,4)}, v3, s[44:47], 0 offen offset:{512*j}")
    e("  s_nop 3")
    reduce32(12, 13)
    e("  v_cvt_pk_bf16_f32 v12, v12, v12")
    e("  v_lshlrev_b32 v12, 16, v12")
    e("  v_ashrrev_i32 v13, 31, v12")
    e("  v_or_b32 v13, 0x80000000, v13")
    e("  v_xor_b32 v12, v12, v13")
    e("  v_and_b32 v12, 0xffff0000, v12")
    e("  v_sub_u32 v13, 0xffff, v1")
    e("  v_or_b32 v12, v12, v13")

def k2_epilogue_fused(ACC):
    TB = 49152
    e("  s_nop 7")
    P = 64
    for g in range(8):
        e(f"  v_cvt_pk_bf16_f32 v{P+2*g}, v{ACC+4*g}, v{ACC+4*g+1}")
        e(f"  v_cvt_pk_bf16_f32 v{P+2*g+1}, v{ACC+4*g+2}, v{ACC+4*g+3}")
    e("  s_mul_i32 s30, s15, 4608")
    e(f"  s_add_u32 s30, s30, {TB}")
    e("  v_mul_u32_u24 v18, 144, v16")
    e("  v_lshl_add_u32 v18, v17, 3, v18")
    e("  v_add_u32 v18, s30, v18")
    for g in range(8):
        e(f"  ds_write_b64 v18, {vr(P+2*g,2)} offset:{16*g}")
    e("  v_lshrrev_b32 v19, 3, v0")
    e("  v_and_b32 v22, 7, v0")
    e("  v_mul_u32_u24 v20, 144, v19")
    e("  v_lshl_add_u32 v20, v22, 4, v20")
    e("  v_add_u32 v20, s30, v20")
    e("  s_waitcnt lgkmcnt(0)")
    for q in range(4):
        e(f"  ds_read_b128 {vr(80+4*q,4)}, v20 offset:{8*144*q}")
    e("  s_lshl_b32 s24, s14, 21")
    e(f"  s_add_u32 s24, s24, {WS_Y}")
    e("  s_lshl_b32 s30, s13, 7")
    e("  s_add_u32 s24, s24, s30")
    e("  s_lshl_b32 s30, s12, 7")
    e("  s_lshl_b32 s31, s15, 5")
    e("  s_add_u32 s30, s30, s31")
    e("  v_add_u32 v21, s30, v19")
    e("  v_lshlrev_b32 v21, 10, v21")
    e("  v_lshl_add_u32 v21, v22, 4, v21")
    for q in range(4):
        e(f"  s_waitcnt lgkmcnt({3-q})")
        e(f"  buffer_store_dwordx4 {vr(80+4*q,4)}, v21, s[20:23], s24 offen sc1")
        if q < 3: e("  v_add_u32 v21, 0x2000, v21")
    e("  s_waitcnt vmcnt(0)")
    stamp(1)
    e("  s_barrier")
    stamp(2)
    e(f"  s_load_dwordx2 s[4:5], s[0:1], {KA_X}")
    e(f"  s_load_dwordx8 s[56:63], s[0:1], {KA_WR}")
    e(f"  s_load_dwordx2 s[64:65], s[0:1], {KA_OUT}")
    srd(24, 6, 7, 12 << 20)
    e("  s_lshl_b32 s48, s14, 3")
    e("  s_add_u32 s48, s48, s13")
    e("  s_cmp_lg_u32 s15, 0")
    e("  s_cbranch_scc1 k2_noflag")
    e("  s_lshl_b32 s49, s12, 6")
    e("  s_lshl_b32 s50, s48, 2")
    e("  s_add_u32 s49, s49, s50")
    e(f"  s_add_u32 s49, s49, {WS_FLAG}")
    e("  v_mov_b32 v4, 1")
    e("  v_mov_b32 v5, 0")
    e("  s_mov_b64 s[50:51], exec")
    e("  s_mov_b64 exec, 1")
    e("  buffer_store_dword v4, v5, s[24:27], s49 offen sc1")
    e("  s_mov_b64 exec, s[50:51]")
    lab("k2_noflag")
    e("  s_waitcnt lgkmcnt(0)")
    srd(20, 4, 5, 2 << 20)
    srd(28, 56, 57, 1024)
    srd(44, 64, 65, 2 << 20)
    e("  v_lshrrev_b32 v1, 5, v0")
    e("  v_and_b32 v2, 31, v0")
    e("  s_lshl_b32 s52, s12, 7")
    e("  s_lshl_b32 s53, s48, 3")
    e("  s_add_u32 s52, s52, s53")
    e("  s_lshl_b32 s53, s15, 1")
    e("  s_add_u32 s52, s52, s53")
    e("  v_add_u32 v1, s52, v1")
    rowmac32_pre()
    e("  v_and_b32 v7, 15, v0")
    e("  v_lshlrev_b32 v7, 2, v7")
    e("  s_lshl_b32 s49, s12, 6")
    e(f"  s_add_u32 s49, s49, {WS_FLAG}")
    e("  s_mov_b32 s53, 0")
    lab("k2_poll")
    e("  buffer_load_dword v4, v7, s[24:27], s49 offen sc1")
    e("  s_waitcnt vmcnt(0)")
    e("  v_cmp_eq_u32 s[54:55], 0, v4")
    e("  s_nop 3")
    e("  s_cmp_eq_u64 s[54:55], 0")
    e("  s_cbranch_scc1 k2_poll_ok")
    e("  s_add_u32 s53, s53, 1")
    e(f"  s_cmp_gt_u32 s53, {1 << 22}")
    e("  s_cbranch_scc1 k2_poll_ok")
    e("  s_branch k2_poll")
    lab("k2_poll_ok")
    stamp(3)
    rowmac32()
    stamp(4)
    e("  v_lshlrev_b32 v13, 2, v1")
    e("  v_lshlrev_b32 v14, 3, v1")
    e("  v_mov_b32 v7, v10")
    e("  v_cmp_eq_u32 vcc, 0, v2")
    e("  s_and_saveexec_b64 s[50:51], vcc")
    e(f"  s_mov_b32 s52, {WS_KEY}")
    e("  buffer_store_dword v12, v13, s[24:27], s52 offen")
    e(f"  s_mov_b32 s52, {WS_STAT}")
    e("  buffer_store_dwordx2 v[6:7], v14, s[24:27], s52 offen")
    e("  s_mov_b64 exec, s[50:51]")
    e("  s_cmp_ge_u32 s15, 2")
    e("  s_cbranch_scc1 k2_done")
    e("  s_cmp_eq_u32 s15, 0")
    e("  s_cselect_b32 s40, s58, s60")
    e("  s_cselect_b32 s41, s59, s61")
    e(f"  s_mov_b32 s42, {512*1792*2}")
    e("  s_mov_b32 s43, 0x00020000")
    e("  s_and_b32 s52, s2, 7")
    e("  s_lshr_b32 s53, s2, 3")
    e("  v_min_u32 v1, 55, v0")
    e("  v_cmp_lt_u32 vcc, 27, v1")
    e("  s_nop 1")
    e("  v_cndmask_b32 v2, 0, 1, vcc")
    e("  v_mul_u32_u24 v3, 28, v2")
    e("  v_sub_u32 v3, v1, v3")
    e("  v_mul_u32_u24 v2, 3584, v2")
    e("  v_lshl_add_u32 v2, v3, 4, v2")
    e("  s_mul_i32 s54, s52, 448")
    e(f"  s_mul_i32 s55, s53, {16*3584}")
    e("  s_add_u32 s54, s54, s55")
    for q in range(8):
        e(f"  buffer_load_dwordx4 {vr(80+4*q,4)}, v2, s[40:43], s54 offen")
        e(f"  s_add_u32 s54, s54, {2*3584}")

K2_NS = OPT('K2_NS', 6)
def gen_k2():
    NS = K2_NS
    name = "k2_kernel"
    kernel_begin(name)
    YBASE = NS * 16384
    e("  s_cmp_ge_u32 s2, 256")
    e("  s_cbranch_scc1 k2_done")
    e(f"  s_load_dwordx4 s[8:11], s[0:1], {KA_WSRE}")
    e(f"  s_load_dwordx2 s[6:7], s[0:1], {KA_WS}")
    e(f"  s_load_dwordx2 s[34:35], s[0:1], {KA_WDN}")
    e("  s_and_b32 s12, s2, 7")
    e("  s_lshr_b32 s13, s2, 3")
    e("  s_lshr_b32 s14, s12, 2")
    e("  s_and_b32 s12, s12, 3")
    e("  s_lshl_b32 s12, s12, 2")
    e("  s_lshr_b32 s15, s13, 3")
    e("  s_add_u32 s12, s12, s15")
    e("  s_and_b32 s13, s13, 7")
    e("  v_lshrrev_b32 v1, 6, v0")
    e("  v_and_b32 v0, 63, v0")
    e("  v_readfirstlane_b32 s15, v1")
    e("  v_lshrrev_b32 v2, 3, v0")
    e("  v_and_b32 v3, 7, v0")
    e("  s_waitcnt lgkmcnt(0)")
    e("  s_cmp_eq_u32 s14, 0")
    e("  s_cselect_b32 s16, s8, s10")
    e("  s_cselect_b32 s17, s9, s11")
    e(f"  s_mov_b32 s18, {2048*2048*2}")
    e("  s_mov_b32 s19, 0x00020000")
    srd(20, 6, 7, 8 << 20)
    e("  s_cmp_lt_u32 s15, 4")
    e("  s_cbranch_scc1 k2_consumer")
    e("  s_cmp_lt_u32 s15, 8")
    e("  s_cbranch_scc1 k2_loader")
    srd(36, 34, 35, 1792*512*2)
    srd(40, 6, 7, 12 << 20)
    e("  v_lshlrev_b32 v2, 4, v0")
    e("  s_mul_i32 s44, s2, 7168")
    for q in range(7):
        e(f"  buffer_load_dwordx4 {vr(8+4*q,4)}, v2, s[36:39], s44 offen")
        e("  s_add_u32 s44, s44, 1024")
    e("  s_cmp_ge_u32 s2, 28")
    e("  s_cbranch_scc1 k2_nomark")
    for q in range(4):
        e(f"  v_mov_b32 v{4+q}, -1")
    e("  s_lshl_b32 s44, s2, 10")
    e(f"  s_add_u32 s44, s44, {WS_GU}")
    e("  buffer_store_dwordx4 v[4:7], v2, s[40:43], s44 offen")
    lab("k2_nomark")
    e("  v_mul_u32_u24 v3, 28672, v0")
    e("  s_mul_i32 s44, s2, 112")
    e(f"  s_add_u32 s44, s44, {WS_WDB}")
    e("  s_waitcnt vmcnt(0)")
    for q in range(7):
        e(f"  buffer_store_dwordx4 {vr(8+4*q,4)}, v3, s[40:43], s44 offen offset:{16*q}")
    e("  s_branch k2_done")
    lab("k2_loader")
    e("  s_sub_u32 s15, s15, 4")
    for ii in range(4):
        e(f"  s_lshl_b32 s24, s15, 5")
        e(f"  s_add_u32 s24, s24, {8*ii}")
        e(f"  v_add_u32 v10, s24, v2")
        e(f"  v_lshrrev_b32 v11, 1, v10")
        e(f"  v_and_b32 v11, 7, v11")
        e(f"  v_xor_b32 v11, v11, v3")
        e(f"  s_lshl_b32 s24, s12, 7")
        e(f"  v_add_u32 v10, s24, v10")
        e(f"  v_lshlrev_b32 v10, 12, v10")
        e(f"  v_lshl_add_u32 v{4+ii}, v11, 4, v10")
    e("  s_lshl_b32 s24, s15, 11")
    e("  v_lshlrev_b32 v8, 4, v0")
    e("  v_add_u32 v8, s24, v8")
    e("  v_add_u32 v9, 1024, v8")
    e("  s_mov_b32 s25, 0")
    e("  s_lshl_b32 s26, s14, 3")
    e("  s_add_u32 s26, s26, s13")
    e("  s_lshl_b32 s26, s26, 18")
    e("  s_lshl_b32 s27, s15, 12")
    e("  s_lshl_b32 s28, s15, 11")
    e(f"  s_add_u32 s28, s28, {YBASE}")
    def dma(slot):
        for i in range(2):
            e(f"  s_add_u32 m0, s28, {slot*8192 + i*1024}")
            e("  s_nop 0")
            e(f"  buffer_load_dwordx4 v{8+i}, s[20:23], s26 offen lds")
        for i in range(4):
            e(f"  s_add_u32 m0, s27, {slot*16384 + i*1024}")
            e("  s_nop 0")
            e(f"  buffer_load_dwordx4 v{4+i}, s[16:19], s25 offen lds")
        if OPT('K2_ROT', 4):
            e("  s_add_u32 s25, s25, 128")
            e("  s_and_b32 s25, s25, 4095")
            e("  s_lshl_b32 s29, s25, 6")
            e("  s_add_u32 s26, s33, s29")
        else:
            e("  s_add_u32 s25, s25, 128")
            e("  s_add_u32 s26, s26, 8192")
    if OPT('K2_ROT', 4):
        e("  s_mov_b32 s33, s26")
        e(f"  s_mul_i32 s25, s13, {128*OPT('K2_ROT', 4)}")
        e("  s_and_b32 s25, s25, 4095")
        e("  s_lshl_b32 s29, s25, 6")
        e("  s_add_u32 s26, s33, s29")
    for st in range(NS):
        dma(st)
    e(f"  s_waitcnt vmcnt({6*(NS-1)})")
    e("  s_barrier")
    for ks in range(31):
        ahead = min(ks + NS - 1, 31) - (ks + 1)
        e(f"  s_waitcnt vmcnt({6*ahead})")
        if not OPT('K2_NOBAR'): e("  s_barrier")
        if ks + NS < 32:
            dma(ks % NS)
    e("  s_branch k2_done")
    lab("k2_consumer")
    e("  v_and_b32 v16, 31, v0")
    e("  v_lshrrev_b32 v17, 5, v0")
    e("  s_lshl_b32 s24, s15, 5")
    e("  v_add_u32 v18, s24, v16")
    e("  v_lshrrev_b32 v19, 1, v18")
    e("  v_and_b32 v19, 7, v19")
    e("  v_xor_b32 v19, v19, v17")
    e("  v_lshlrev_b32 v18, 7, v18")
    e("  v_lshl_add_u32 v20, v19, 4, v18")
    for kk in range(1, 4):
        e(f"  v_xor_b32 v{20+kk}, {32*kk}, v20")
    for kk in range(4):
        e(f"  v_add_u32 v{28+kk}, 0x10000, v{20+kk}")
    e("  v_lshrrev_b32 v19, 1, v16")
    e("  v_and_b32 v19, 7, v19")
    e("  v_xor_b32 v19, v19, v17")
    e("  v_lshlrev_b32 v18, 7, v16")
    e("  v_lshl_add_u32 v24, v19, 4, v18")
    e(f"  v_add_u32 v24, {YBASE}, v24")
    for kk in range(1, 4):
        e(f"  v_xor_b32 v{24+kk}, {32*kk}, v24")
    ACC = 32
    for i in range(32):
        e(f"  v_mov_b32 v{ACC+i}, 0")
    def FW(st): return 64 + 48 * (st % 2)
    def FY(st): return 80 + 48 * (st % 2)
    def rd(st, kk):
        slot = st % NS
        wb = 20 if slot < 4 else 28
        e(f"  ds_read_b128 {vr(FW(st)+4*kk,4)}, v{wb+kk} offset:{16384*(slot%4)}")
        e(f"  ds_read_b128 {vr(FY(st)+8*kk,4)}, v{24+kk} offset:{8192*slot}")
        e(f"  ds_read_b128 {vr(FY(st)+8*kk+4,4)}, v{24+kk} offset:{8192*slot+4096}")
    e("  s_barrier")
    for kk in range(4):
        rd(0, kk)
    def mf(st, kk, half):
        e(f"  v_mfma_f32_32x32x16_bf16 {vr(ACC+16*half,16)}, {vr(FY(st)+8*kk+4*half,4)}, {vr(FW(st)+4*kk,4)}, {vr(ACC+16*half,16)}")
    for ks in range(32):
        more = ks + 1 < 32
        e("  s_waitcnt lgkmcnt(0)")
        if more and not OPT('K2_NOBAR'):
            e("  s_barrier")
        if OPT('K2_NOBAR') == 2: continue
        r = (lambda kk: rd(ks + 1, kk)) if more else (lambda kk: None)
        mf(ks, 0, 0); r(0); mf(ks, 0, 1); r(1)
        mf(ks, 1, 0); r(2); mf(ks, 1, 1); r(3)
        mf(ks, 2, 0); mf(ks, 2, 1)
        mf(ks, 3, 0); mf(ks, 3, 1)
    stamp(6)
    if not OPT('K2T1', 1):
        k2_epilogue_plain(ACC)
    else:
        k2_epilogue_fused(ACC)
    lab("k2_done")
    kernel_end()
    e("  s_endpgm")
    kernel_desc(name, 160)

def gen_t1():
    name = "t1_kernel"
    kernel_begin(name)
    e("  s_cmp_ge_u32 s2, 256")
    e("  s_cbranch_scc1 t1_done")
    e(f"  s_load_dwordx2 s[4:5], s[0:1], {KA_X}")
    e(f"  s_load_dwordx2 s[6:7], s[0:1], {KA_WS}")
    e(f"  s_load_dwordx2 s[8:9], s[0:1], {KA_WR}")
    e(f"  s_load_dwordx2 s[10:11], s[0:1], {KA_OUT}")
    if OPT('T1_PF', 1):
        e(f"  s_load_dwordx4 s[32:35], s[0:1], {KA_WG}")
        e("  v_lshrrev_b32 v1, 6, v0")
        e("  s_nop 0")
        e("  v_readfirstlane_b32 s3, v1")
        e("  s_cmp_lg_u32 s3, 2")
        e("  s_cbranch_scc1 t1_main")
        e("  s_waitcnt lgkmcnt(0)")
        srd(40, 32, 33, 512*1792*2)
        srd(44, 34, 35, 512*1792*2)
        e("  v_and_b32 v0, 63, v0")
        e("  s_and_b32 s52, s2, 7")
        e("  s_lshr_b32 s53, s2, 3")
        e("  v_min_u32 v1, 55, v0")
        e("  v_cmp_lt_u32 vcc, 27, v1")
        e("  v_cndmask_b32 v2, 0, 1, vcc")
        e("  v_mul_u32_u24 v3, 28, v2")
        e("  v_sub_u32 v3, v1, v3")
        e("  v_mul_u32_u24 v2, 3584, v2")
        e("  v_lshl_add_u32 v2, v3, 4, v2")
        e("  s_mul_i32 s54, s52, 448")
        e(f"  s_mul_i32 s55, s53, {16*3584}")
        e("  s_add_u32 s54, s54, s55")
        for q in range(8):
            e(f"  buffer_load_dwordx4 {vr(8+8*q,4)}, v2, s[40:43], s54 offen")
            e(f"  buffer_load_dwordx4 {vr(12+8*q,4)}, v2, s[44:47], s54 offen")
            e(f"  s_add_u32 s54, s54, {2*3584}")
        e("  s_branch t1_done")
        lab("t1_main")
    e("  v_lshrrev_b32 v1, 4, v0")
    e("  v_and_b32 v2, 15, v0")
    e("  s_lshl_b32 s3, s2, 3")
    e("  v_add_u32 v1, s3, v1")
    e("  v_lshlrev_b32 v3, 10, v1")
    e("  v_lshl_add_u32 v3, v2, 4, v3")
    e("  v_lshlrev_b32 v4, 4, v2")
    e("  s_waitcnt lgkmcnt(0)")
    srd(12, 4, 5, 2 << 20)
    srd(16, 6, 7, 9 << 20)
    srd(20, 8, 9, 1024)
    srd(24, 10, 11, 2 << 20)
    e(f"  s_mov_b32 s28, {WS_Y}")
    e(f"  s_mov_b32 s29, {WS_Y + (2<<20)}")
    YR, YI, XX, WR = 16, 32, 48, 64
    for j in range(4):
        e(f"  buffer_load_dwordx4 {vr(YR+4*j,4)}, v3, s[16:19], s28 offen offset:{256*j}")
        e(f"  buffer_load_dwordx4 {vr(YI+4*j,4)}, v3, s[16:19], s29 offen offset:{256*j}")
        e(f"  buffer_load_dwordx4 {vr(XX+4*j,4)}, v3, s[12:15], 0 offen offset:{256*j}")
    for j in range(4):
        e(f"  buffer_load_dwordx4 {vr(WR+4*j,4)}, v4, s[20:23], 0 offen offset:{256*j}")
    H = 80
    T = 112
    e("  v_mov_b32 v14, 0")
    e("  v_mov_b32 v15, 0")
    for j in range(4):
        e(f"  s_waitcnt vmcnt({4 + 3*(3-j)})")
        for q in range(4):
            i = 4*j + q
            e(f"  v_lshlrev_b32 v{T}, 16, v{YR+i}")
            e(f"  v_and_b32 v{T+1}, 0xffff0000, v{YR+i}")
            e(f"  v_lshlrev_b32 v{T+2}, 16, v{YI+i}")
            e(f"  v_and_b32 v{T+3}, 0xffff0000, v{YI+i}")
            e(f"  v_pk_add_f32 {vr(T,2)}, {vr(T,2)}, {vr(T+2,2)} neg_lo:[0,1] neg_hi:[0,1]")
            e(f"  v_cvt_pk_bf16_f32 v{T}, v{T}, v{T+1}")
            e(f"  v_and_b32 v{T+1}, 0xffff0000, v{T}")
            e(f"  v_lshlrev_b32 v{T}, 16, v{T}")
            e(f"  v_lshlrev_b32 v{T+2}, 16, v{XX+i}")
            e(f"  v_and_b32 v{T+3}, 0xffff0000, v{XX+i}")
            e(f"  v_pk_add_f32 {vr(T,2)}, {vr(T,2)}, {vr(T+2,2)}")
            e(f"  v_cvt_pk_bf16_f32 v{T}, v{T}, v{T+1}")
            e(f"  v_lshlrev_b32 v{H+2*i}, 16, v{T}")
            e(f"  v_and_b32 v{H+2*i+1}, 0xffff0000, v{T}")
            e(f"  v_pk_add_f32 v[14:15], v[14:15], {vr(H+2*i,2)}")
    e("  v_add_f32 v5, v14, v15")
    reduce16(5)
    e("  v_mul_f32 v5, 0x3b000000, v5")
    e("  v_cvt_pk_bf16_f32 v6, v5, v5")
    e("  v_lshlrev_b32 v6, 16, v6")
    e("  v_sub_f32 v8, 0, v6")
    e("  v_mov_b32 v9, v8")
    e("  v_mov_b32 v10, 0")
    e("  v_mov_b32 v11, 0")
    D = 116
    for i in range(16):
        e(f"  v_pk_add_f32 {vr(D+2*i,2)}, {vr(H+2*i,2)}, v[8:9]")
        e(f"  v_pk_fma_f32 v[10:11], {vr(D+2*i,2)}, {vr(D+2*i,2)}, v[10:11]")
    e("  v_add_f32 v10, v10, v11")
    reduce16(10)
    e("  v_sub_f32 v11, v5, v6")
    e("  v_mul_f32 v11, v11, v11")
    e("  v_mul_f32 v10, 0x3b000000, v10")
    e("  v_sub_f32 v10, v10, v11")
    e("  v_max_f32 v10, 0, v10")
    e("  v_cvt_pk_bf16_f32 v10, v10, v10")
    e("  v_lshlrev_b32 v10, 16, v10")
    e("  v_add_f32 v10, 0x3727c5ac, v10")
    e("  v_cvt_pk_bf16_f32 v10, v10, v10")
    e("  v_lshlrev_b32 v10, 16, v10")
    e("  v_sqrt_f32 v10, v10")
    e("  s_nop 0")
    e("  v_cvt_pk_bf16_f32 v10, v10, v10")
    e("  v_lshlrev_b32 v10, 16, v10")
    e("  v_rcp_f32 v10, v10")
    e("  s_nop 0")
    e("  v_mov_b32 v11, v10")
    e("  v_mov_b32 v12, 0")
    e("  s_waitcnt vmcnt(0)")
    O = 16
    for i in range(16):
        e(f"  v_cvt_pk_bf16_f32 v{T}, v{D+2*i}, v{D+2*i+1}")
        e(f"  v_lshlrev_b32 v{D+2*i}, 16, v{T}")
        e(f"  v_and_b32 v{D+2*i+1}, 0xffff0000, v{T}")
        e(f"  v_pk_mul_f32 {vr(D+2*i,2)}, {vr(D+2*i,2)}, v[10:11]")
        e(f"  v_cvt_pk_bf16_f32 v{T}, v{D+2*i}, v{D+2*i+1}")
        e(f"  v_dot2_f32_bf16 v12, v{T}, v{WR+i}, v12")
        e(f"  v_lshlrev_b32 v{D+2*i}, 16, v{T}")
        e(f"  v_and_b32 v{D+2*i+1}, 0xffff0000, v{T}")
        e(f"  v_pk_add_f32 {vr(D+2*i,2)}, {vr(D+2*i,2)}, {vr(H+2*i,2)}")
        e(f"  v_cvt_pk_bf16_f32 v{O+i}, v{D+2*i}, v{D+2*i+1}")
    for j in range(4):
        e(f"  buffer_store_dwordx4 {vr(O+4*j,4)}, v3, s[24:27], 0 offen offset:{256*j}")
    e("  s_nop 3")
    reduce16(12)
    e("  v_cvt_pk_bf16_f32 v12, v12, v12")
    e("  v_lshlrev_b32 v12, 16, v12")
    e("  v_ashrrev_i32 v13, 31, v12")
    e("  v_or_b32 v13, 0x80000000, v13")
    e("  v_xor_b32 v12, v12, v13")
    e("  v_and_b32 v12, 0xffff0000, v12")
    e("  v_sub_u32 v13, 0xffff, v1")
    e("  v_or_b32 v12, v12, v13")
    e("  v_cmp_eq_u32 vcc, 0, v2")
    e("  s_and_saveexec_b64 s[30:31], vcc")
    e("  v_lshlrev_b32 v13, 2, v1")
    e(f"  s_mov_b32 s28, {WS_KEY}")
    e("  buffer_store_dword v12, v13, s[16:19], s28 offen")
    e("  v_lshlrev_b32 v13, 3, v1")
    e("  v_mov_b32 v7, v10")
    e(f"  s_mov_b32 s28, {WS_STAT}")
    e("  buffer_store_dwordx2 v[6:7], v13, s[16:19], s28 offen")
    lab("t1_done")
    kernel_end()
    e("  s_endpgm")
    kernel_desc(name, 148)

def recompute(YR, YI, XX, nd, NEGM, RINV, HOUT, XNOUT, T):
    for i in range(nd):
        e(f"  v_lshlrev_b32 v{T}, 16, v{YR+i}")
        e(f"  v_and_b32 v{T+1}, 0xffff0000, v{YR+i}")
        e(f"  v_lshlrev_b32 v{T+2}, 16, v{YI+i}")
        e(f"  v_and_b32 v{T+3}, 0xffff0000, v{YI+i}")
        e(f"  v_pk_add_f32 {vr(T,2)}, {vr(T,2)}, {vr(T+2,2)} neg_lo:[0,1] neg_hi:[0,1]")
        e(f"  v_cvt_pk_bf16_f32 v{T}, v{T}, v{T+1}")
        e(f"  v_and_b32 v{T+1}, 0xffff0000, v{T}")
        e(f"  v_lshlrev_b32 v{T}, 16, v{T}")
        e(f"  v_lshlrev_b32 v{T+2}, 16, v{XX+i}")
        e(f"  v_and_b32 v{T+3}, 0xffff0000, v{XX+i}")
        e(f"  v_pk_add_f32 {vr(T,2)}, {vr(T,2)}, {vr(T+2,2)}")
        e(f"  v_cvt_pk_bf16_f32 v{T}, v{T}, v{T+1}")
        e(f"  v_lshlrev_b32 v{HOUT+2*i}, 16, v{T}")
        e(f"  v_and_b32 v{HOUT+2*i+1}, 0xffff0000, v{T}")
        e(f"  v_pk_add_f32 {vr(T,2)}, {vr(HOUT+2*i,2)}, {vr(NEGM,2)}")
        e(f"  v_cvt_pk_bf16_f32 v{T}, v{T}, v{T+1}")
        e(f"  v_and_b32 v{T+1}, 0xffff0000, v{T}")
        e(f"  v_lshlrev_b32 v{T}, 16, v{T}")
        e(f"  v_pk_mul_f32 {vr(T,2)}, {vr(T,2)}, {vr(RINV,2)}")
        e(f"  v_cvt_pk_bf16_f32 v{XNOUT+i}, v{T}, v{T+1}")

XS_STRIDE = 1040
def gen_t2():
    name = "t2_kernel"
    kernel_begin(name)
    LDS_G, LDS_U, LDS_XS, LDS_C = 0, 8192, 16384, 16384 + 8*XS_STRIDE
    e("  s_cmp_ge_u32 s2, 224")
    e("  s_cbranch_scc1 t2_done")
    e(f"  s_load_dwordx2 s[4:5], s[0:1], {KA_X}")
    e(f"  s_load_dwordx2 s[6:7], s[0:1], {KA_WS}")
    e(f"  s_load_dwordx4 s[8:11], s[0:1], {KA_WG}")
    e("  s_and_b32 s3, s2, 7")
    e("  s_mul_i32 s3, s3, 28")
    e("  s_lshr_b32 s12, s2, 3")
    e("  s_add_u32 s3, s3, s12")
    e("  v_mov_b32 v40, v0")
    e("  v_lshrrev_b32 v1, 6, v0")
    e("  v_and_b32 v0, 63, v0")
    e("  v_readfirstlane_b32 s13, v1")
    e("  s_waitcnt lgkmcnt(0)")
    srd(16, 4, 5, 2 << 20)
    srd(20, 6, 7, 9 << 20)
    srd(24, 8, 9, 512*1792*2)
    srd(28, 10, 11, 512*1792*2)
    e("  v_lshlrev_b32 v2, 5, v40")
    e(f"  s_mov_b32 s14, {WS_KEY}")
    e("  buffer_load_dwordx4 v[8:11], v2, s[20:23], s14 offen")
    e("  buffer_load_dwordx4 v[12:15], v2, s[20:23], s14 offen offset:16")
    e("  s_lshl_b32 s15, s3, 4")
    e("  s_movk_i32 s32, 3584")
    for ii in range(2):
        e(f"  s_lshl_b32 s33, s13, 7")
        e(f"  s_add_u32 s33, s33, {64*ii}")
        e(f"  v_add_u32 v3, s33, v0")
        e(f"  v_mul_lo_u32 v3, v3, s32")
        e(f"  s_lshl_b32 s34, s13, 11")
        e(f"  s_add_u32 m0, s34, {LDS_G + 1024*ii}")
        e("  s_nop 0")
        e(f"  buffer_load_dwordx4 v3, s[24:27], s15 offen lds")
        e(f"  s_add_u32 m0, s34, {LDS_U + 1024*ii}")
        e("  s_nop 0")
        e(f"  buffer_load_dwordx4 v3, s[28:31], s15 offen lds")
    stamp(1)
    e("  s_waitcnt vmcnt(4)")
    stamp(2)
    e("  v_mov_b32 v20, 0")
    for rnd in range(8):
        e("  v_max3_u32 v16, v8, v9, v10")
        e("  v_max3_u32 v17, v11, v12, v13")
        e("  v_max3_u32 v16, v16, v14, v15")
        e("  v_max_u32 v16, v16, v17")
        e("  s_nop 1")
        e("  v_max_u32_dpp v16, v16, v16 quad_perm:[1,0,3,2] row_mask:0xf bank_mask:0xf")
        e("  s_nop 1")
        e("  v_max_u32_dpp v16, v16, v16 quad_perm:[2,3,0,1] row_mask:0xf bank_mask:0xf")
        e("  s_nop 1")
        e("  v_max_u32_dpp v16, v16, v16 row_half_mirror row_mask:0xf bank_mask:0xf")
        e("  s_nop 1")
        e("  v_max_u32_dpp v16, v16, v16 row_mirror row_mask:0xf bank_mask:0xf")
        e("  s_nop 1")
        e("  v_readlane_b32 s36, v16, 0")
        e("  v_readlane_b32 s37, v16, 16")
        e("  v_readlane_b32 s38, v16, 32")
        e("  v_readlane_b32 s39, v16, 48")
        e("  s_max_u32 s36, s36, s37")
        e("  s_max_u32 s38, s38, s39")
        e("  s_max_u32 s36, s36, s38")
        e(f"  v_writelane_b32 v20, s36, {rnd}")
        if rnd < 7:
            for k in range(8):
                e(f"  v_cmp_ne_u32 vcc, s36, v{8+k}")
                e("  s_nop 1")
                e(f"  v_cndmask_b32 v{8+k}, 0, v{8+k}, vcc")
    e("  s_lshl_b32 s33, s13, 5")
    e(f"  s_add_u32 s33, s33, {LDS_C}")
    e("  v_lshlrev_b32 v3, 2, v0")
    e("  v_add_u32 v3, s33, v3")
    e("  v_cmp_gt_u32 vcc, 8, v0")
    e("  s_and_saveexec_b64 s[40:41], vcc")
    e("  ds_write_b32 v3, v20")
    e("  s_mov_b64 exec, s[40:41]")
    e("  s_waitcnt lgkmcnt(0)")
    e("  s_barrier")
    e("  v_and_b32 v3, 31, v0")
    e("  v_lshlrev_b32 v3, 2, v3")
    e(f"  ds_read_b32 v21, v3 offset:{LDS_C}")
    e("  v_mov_b32 v22, 0")
    e("  s_waitcnt lgkmcnt(0)")
    for i in range(32):
        e(f"  v_readlane_b32 s36, v21, {i}")
        e("  s_nop 1")
        e("  v_cmp_gt_u32 vcc, s36, v21")
        e("  s_nop 1")
        e("  v_addc_co_u32 v22, vcc, 0, v22, vcc")
    e("  v_cmp_gt_u32 vcc, 8, v22")
    e("  v_cmp_gt_u32 s[42:43], 32, v0")
    e("  s_and_b64 vcc, vcc, s[42:43]")
    e("  v_lshlrev_b32 v3, 2, v22")
    e("  s_and_saveexec_b64 s[40:41], vcc")
    e(f"  ds_write_b32 v3, v21 offset:{LDS_C+128}")
    e("  s_mov_b64 exec, s[40:41]")
    e("  s_waitcnt lgkmcnt(0)")
    e("  s_barrier")
    stamp(3)
    e("  v_lshrrev_b32 v4, 5, v40")
    e("  v_and_b32 v5, 31, v40")
    e("  v_lshlrev_b32 v3, 2, v4")
    e(f"  ds_read_b32 v6, v3 offset:{LDS_C+128}")
    e("  s_waitcnt lgkmcnt(0)")
    e("  s_cmp_lg_u32 s3, 0")
    e("  s_cbranch_scc1 t2_nopub")
    e("  v_cmp_eq_u32 vcc, 0, v5")
    e("  s_and_saveexec_b64 s[40:41], vcc")
    e(f"  s_mov_b32 s14, {WS_IDX}")
    e("  buffer_store_dword v6, v3, s[20:23], s14 offen")
    e("  s_mov_b64 exec, s[40:41]")
    lab("t2_nopub")
    e("  v_and_b32 v6, 0xffff, v6")
    e("  v_sub_u32 v6, 0xffff, v6")
    e("  v_lshlrev_b32 v7, 10, v6")
    e("  v_lshl_add_u32 v7, v5, 4, v7")
    e(f"  s_mov_b32 s14, {WS_Y}")
    e(f"  s_mov_b32 s15, {WS_Y + (2<<20)}")
    YR, YI, XX = 24, 32, 44
    for j in range(2):
        e(f"  buffer_load_dwordx4 {vr(YR+4*j,4)}, v7, s[20:23], s14 offen offset:{512*j}")
        e(f"  buffer_load_dwordx4 {vr(YI+4*j,4)}, v7, s[20:23], s15 offen offset:{512*j}")
        e(f"  buffer_load_dwordx4 {vr(XX+4*j,4)}, v7, s[16:19], 0 offen offset:{512*j}")
    e("  v_lshlrev_b32 v3, 3, v6")
    e(f"  s_mov_b32 s14, {WS_STAT}")
    e("  buffer_load_dwordx2 v[52:53], v3, s[20:23], s14 offen")
    e("  s_waitcnt vmcnt(0)")
    stamp(4)
    e("  v_sub_f32 v54, 0, v52")
    e("  v_mov_b32 v55, v54")
    e("  v_mov_b32 v52, v53")
    recompute(YR, YI, XX, 8, 54, 52, 64, 80, 56)
    e(f"  v_mul_u32_u24 v3, {XS_STRIDE}, v4")
    e("  v_lshl_add_u32 v3, v5, 4, v3")
    e(f"  ds_write_b128 v3, v[80:83] offset:{LDS_XS}")
    e(f"  ds_write_b128 v3, v[84:87] offset:{LDS_XS+512}")
    e("  s_waitcnt lgkmcnt(0)")
    e("  s_barrier")
    e("  s_cmp_lg_u32 s13, 0")
    e("  s_cbranch_scc1 t2_done")
    stamp(5)
    e("  v_and_b32 v3, 7, v0")
    e(f"  v_mul_u32_u24 v3, {XS_STRIDE}, v3")
    e("  v_lshrrev_b32 v4, 4, v0")
    e("  v_lshl_add_u32 v3, v4, 4, v3")
    e("  v_and_b32 v5, 15, v0")
    e("  v_lshrrev_b32 v5, 2, v5")
    e("  v_lshl_add_u32 v5, v4, 3, v5")
    e("  v_lshlrev_b32 v5, 4, v5")
    e("  v_and_b32 v6, 1, v0")
    e("  v_lshl_add_u32 v5, v6, 3, v5")
    e("  v_and_b32 v6, 2, v0")
    e("  v_lshl_add_u32 v5, v6, 12, v5")
    for i in range(4):
        e(f"  v_mov_b32 v{8+i}, 0")
    FA, FB = 64, 128
    for st in range(16):
        e(f"  ds_read_b128 {vr(FA+4*st,4)}, v3 offset:{LDS_XS + 64*st}")
        e(f"  ds_read_b64_tr_b16 {vr(FB+4*st,2)}, v5 offset:{512*st}")
        e(f"  ds_read_b64_tr_b16 {vr(FB+4*st+2,2)}, v5 offset:{512*st+64}")
        if st % 4 == 3:
            e("  s_waitcnt lgkmcnt(0)")
            for s2 in range(st-3, st+1):
                e(f"  v_mfma_f32_16x16x32_bf16 v[8:11], {vr(FA+4*s2,4)}, {vr(FB+4*s2,4)}, v[8:11]")
    e("  s_nop 15")
    for i in range(4):
        e(f"  v_cvt_pk_bf16_f32 v{8+i}, v{8+i}, v{8+i}")
        e(f"  v_lshlrev_b32 v{8+i}, 16, v{8+i}")
    e("  s_nop 1")
    for i in range(4):
        e(f"  v_mov_b32_dpp v{12+i}, v{8+i} row_ror:8 row_mask:0xf bank_mask:0xf")
    for i in range(4):
        e(f"  v_mul_f32 v16, 0xbfb8aa3b, v{8+i}")
        e("  v_exp_f32 v16, v16")
        e("  s_nop 0")
        e("  v_add_f32 v16, 1.0, v16")
        e("  v_rcp_f32 v16, v16")
        e("  s_nop 0")
        e(f"  v_mul_f32 v16, v{8+i}, v16")
        e("  v_cvt_pk_bf16_f32 v16, v16, v16")
        e("  v_lshlrev_b32 v16, 16, v16")
        e(f"  v_mul_f32 v16, v16, v{12+i}")
        e(f"  v_cvt_pk_bf16_f32 v{20+i}, v16, v16")
    stamp(6)
    e("  v_and_b32 v5, 15, v0")
    e("  v_cmp_gt_u32 vcc, 8, v5")
    e("  v_cmp_gt_u32 s[42:43], 32, v0")
    e("  s_and_b64 vcc, vcc, s[42:43]")
    e("  s_and_saveexec_b64 s[40:41], vcc")
    e("  v_lshlrev_b32 v4, 2, v4")
    e("  v_mul_u32_u24 v4, 3584, v4")
    e("  v_lshl_add_u32 v4, v5, 1, v4")
    e("  s_lshl_b32 s15, s3, 4")
    e(f"  s_add_u32 s15, s15, {WS_GU}")
    for i in range(4):
        e(f"  buffer_store_short v{20+i}, v4, s[20:23], s15 offen offset:{3584*i if 3584*i < 4096 else 0}") if False else None
    for i in range(4):
        e(f"  buffer_store_short v{20+i}, v4, s[20:23], s15 offen")
        if i < 3:
            e("  v_add_u32 v4, 3584, v4")
    lab("t2_done")
    kernel_end()
    e("  s_endpgm")
    kernel_desc(name, 192)

def gen_t3():
    name = "t3_kernel"
    kernel_begin(name)
    LDS_W, LDS_R = 0, 28672
    e("  s_cmp_ge_u32 s2, 64")
    e("  s_cbranch_scc1 t3_done")
    e(f"  s_load_dwordx2 s[4:5], s[0:1], {KA_X}")
    e(f"  s_load_dwordx2 s[6:7], s[0:1], {KA_WS}")
    e(f"  s_load_dwordx2 s[10:11], s[0:1], {KA_OUT}")
    e("  s_mov_b32 s3, s2")
    e("  v_lshrrev_b32 v1, 6, v0")
    e("  v_and_b32 v0, 63, v0")
    e("  v_readfirstlane_b32 s13, v1")
    e("  v_lshrrev_b32 v5, 4, v0")
    e("  s_waitcnt lgkmcnt(0)")
    srd(16, 4, 5, 2 << 20)
    srd(20, 6, 7, 12 << 20)
    srd(28, 10, 11, 2 << 20)
    e("  v_and_b32 v6, 1, v5")
    e("  v_lshlrev_b32 v6, 4, v6")
    e(f"  s_mov_b32 s14, {WS_IDX}")
    e("  buffer_load_dwordx4 v[24:27], v6, s[20:23], s14 offen")
    e("  s_lshl_b32 s15, s3, 4")
    e("  v_lshlrev_b32 v3, 4, v0")
    e("  s_mul_i32 s34, s13, 7168")
    e("  s_mul_i32 s33, s3, 28672")
    e("  s_add_u32 s33, s33, s34")
    e(f"  s_add_u32 s33, s33, {WS_WDB}")
    for i in range(7):
        e(f"  s_add_u32 m0, s34, {LDS_W + 1024*i}")
        e("  s_nop 0")
        e(f"  buffer_load_dwordx4 v3, s[20:23], s33 offen lds")
        e("  s_add_u32 s33, s33, 1024")
    e("  v_and_b32 v4, 7, v0")
    e("  v_mul_u32_u24 v4, 3584, v4")
    e("  v_lshl_add_u32 v4, v5, 4, v4")
    e("  s_mul_i32 s14, s13, 896")
    e(f"  s_add_u32 s14, s14, {WS_GU}")
    FA = 64
    for st in range(14):
        e(f"  buffer_load_dwordx4 {vr(FA+4*st,4)}, v4, s[20:23], s14 offen offset:{64*st}")
    for i in range(4):
        e(f"  v_mov_b32 v{28+i}, 0")
    e("  s_cmp_lg_u32 s13, 0")
    e("  s_cbranch_scc1 t3_noepi")
    e("  s_waitcnt vmcnt(21)")
    e("  v_and_b32 v6, 7, v0")
    e(f"  s_mov_b32 s36, {WS_Y}")
    e(f"  s_mov_b32 s37, {WS_Y + (2<<20)}")
    e(f"  s_mov_b32 s38, {WS_STAT}")
    for i in range(4):
        e(f"  v_and_b32 v{28+i}, 0xffff, v{24+i}")
        e(f"  v_sub_u32 v{28+i}, 0xffff, v{28+i}")
        e(f"  v_lshlrev_b32 v{32+i}, 3, v{28+i}")
        e(f"  v_lshlrev_b32 v{28+i}, 10, v{28+i}")
        e(f"  v_lshl_add_u32 v{28+i}, v6, 1, v{28+i}")
        e(f"  v_add_u32 v{28+i}, s15, v{28+i}")
        e(f"  buffer_load_ushort v{36+i}, v{28+i}, s[20:23], s36 offen")
        e(f"  buffer_load_ushort v{40+i}, v{28+i}, s[20:23], s37 offen")
        e(f"  buffer_load_ushort v{44+i}, v{28+i}, s[16:19], 0 offen")
        e(f"  buffer_load_dwordx2 {vr(48+2*i,2)}, v{32+i}, s[20:23], s38 offen")
    lab("t3_noepi")
    e("  v_and_b32 v7, 15, v0")
    e("  v_lshrrev_b32 v7, 2, v7")
    e("  v_lshl_add_u32 v7, v5, 3, v7")
    e("  v_lshlrev_b32 v7, 4, v7")
    e("  v_and_b32 v60, 1, v0")
    e("  v_lshl_add_u32 v7, v60, 3, v7")
    e("  v_add_u32 v7, s34, v7")
    for i in range(4):
        e(f"  v_mov_b32 v{8+i}, 0")
    stamp(1)
    e("  s_waitcnt vmcnt(0)")
    stamp(2)
    FB = 128
    for st in range(14):
        e(f"  ds_read_b64_tr_b16 {vr(FB+4*st,2)}, v7 offset:{512*st}")
        e(f"  ds_read_b64_tr_b16 {vr(FB+4*st+2,2)}, v7 offset:{512*st+64}")
    e("  s_waitcnt lgkmcnt(0)")
    for st in range(14):
        e(f"  v_mfma_f32_16x16x32_bf16 v[8:11], {vr(FA+4*st,4)}, {vr(FB+4*st,4)}, v[8:11]")
    e("  s_nop 15")
    stamp(3)
    e("  v_lshlrev_b32 v3, 4, v0")
    e("  s_lshl_b32 s33, s13, 10")
    e("  v_add_u32 v3, s33, v3")
    e(f"  ds_write_b128 v3, v[8:11] offset:{LDS_R}")
    e("  s_waitcnt lgkmcnt(0)")
    e("  s_barrier")
    e("  s_cmp_lg_u32 s13, 0")
    e("  s_cbranch_scc1 t3_done")
    e("  v_lshlrev_b32 v3, 4, v0")
    for w in range(1, 4):
        e(f"  ds_read_b128 {vr(12+4*(w-1),4)}, v3 offset:{LDS_R+1024*w}")
    stamp(4)
    e("  v_and_b32 v6, 15, v0")
    e("  v_cmp_gt_u32 vcc, 8, v6")
    e("  v_cmp_gt_u32 s[42:43], 32, v0")
    e("  s_and_b64 vcc, vcc, s[42:43]")
    e("  s_and_saveexec_b64 s[40:41], vcc")
    e("  s_waitcnt lgkmcnt(0)")
    for i in range(4):
        e(f"  v_add_f32 v{8+i}, v{8+i}, v{12+i}")
        e(f"  v_add_f32 v{16+i}, v{16+i}, v{20+i}")
        e(f"  v_add_f32 v{8+i}, v{8+i}, v{16+i}")
        e(f"  v_cvt_pk_bf16_f32 v{8+i}, v{8+i}, v{8+i}")
        e(f"  v_lshlrev_b32 v{8+i}, 16, v{8+i}")
        e(f"  v_and_b32 v60, 0xffff0000, v{24+i}")
        e("  v_ashrrev_i32 v61, 31, v60")
        e("  v_not_b32 v61, v61")
        e("  v_or_b32 v61, 0x80000000, v61")
        e("  v_xor_b32 v60, v60, v61")
        e("  v_and_b32 v60, 0xffff0000, v60")
        e("  v_mul_f32 v60, 0xbfb8aa3b, v60")
        e("  v_exp_f32 v60, v60")
        e("  s_nop 0")
        e("  v_add_f32 v60, 1.0, v60")
        e("  v_rcp_f32 v60, v60")
        e("  s_nop 0")
        e("  v_cvt_pk_bf16_f32 v60, v60, v60")
        e("  v_lshlrev_b32 v60, 16, v60")
        e(f"  v_mul_f32 v{8+i}, v{8+i}, v60")
        e(f"  v_cvt_pk_bf16_f32 v{8+i}, v{8+i}, v{8+i}")
        e(f"  v_lshlrev_b32 v{8+i}, 16, v{8+i}")
        e(f"  v_lshlrev_b32 v{36+i}, 16, v{36+i}")
        e(f"  v_lshlrev_b32 v{40+i}, 16, v{40+i}")
        e(f"  v_lshlrev_b32 v{44+i}, 16, v{44+i}")
        e(f"  v_sub_f32 v60, v{36+i}, v{40+i}")
        e("  v_cvt_pk_bf16_f32 v60, v60, v60")
        e("  v_lshlrev_b32 v60, 16, v60")
        e(f"  v_add_f32 v60, v{44+i}, v60")
        e("  v_cvt_pk_bf16_f32 v60, v60, v60")
        e("  v_lshlrev_b32 v60, 16, v60")
        e(f"  v_sub_f32 v61, v60, v{48+2*i}")
        e("  v_cvt_pk_bf16_f32 v61, v61, v61")
        e("  v_lshlrev_b32 v61, 16, v61")
        e(f"  v_mul_f32 v61, v61, v{49+2*i}")
        e("  v_cvt_pk_bf16_f32 v61, v61, v61")
        e("  v_lshlrev_b32 v61, 16, v61")
        e(f"  v_add_f32 v61, v61, v{8+i}")
        e("  v_cvt_pk_bf16_f32 v61, v61, v61")
        e("  v_lshlrev_b32 v61, 16, v61")
        e("  v_add_f32 v61, v60, v61")
        e("  v_cvt_pk_bf16_f32 v61, v61, v61")
        e(f"  buffer_store_short v61, v{28+i}, s[28:31], 0 offen")
    lab("t3_done")
    kernel_end()
    e("  s_endpgm")
    kernel_desc(name, 192)

SORT8 = [(0,1),(2,3),(4,5),(6,7),(0,2),(1,3),(4,6),(5,7),(1,2),(5,6),(0,4),(1,5),(2,6),(3,7),(2,4),(3,5),(1,2),(3,4),(5,6)]
def top8(keys, free, LDS_C):
    K = list(keys); F = list(free)
    for (i, j) in SORT8:
        hi, lo = F.pop(), F.pop()
        e(f"  v_max_u32 v{hi}, v{K[i]}, v{K[j]}")
        e(f"  v_min_u32 v{lo}, v{K[i]}, v{K[j]}")
        F.append(K[i]); F.append(K[j]); K[i] = hi; K[j] = lo
    t, coll = F.pop(), F.pop()
    e(f"  v_mov_b32 v{coll}, 0")
    pend = []
    def fill(n):
        for _ in range(n):
            if pend: e(pend.pop(0))
            else: e("  s_nop 0")
    for rnd in range(8):
        fill(2)
        e(f"  v_max_u32_dpp v{t}, v{K[0]}, v{K[0]} quad_perm:[1,0,3,2] row_mask:0xf bank_mask:0xf")
        fill(2)
        e(f"  v_max_u32_dpp v{t}, v{t}, v{t} quad_perm:[2,3,0,1] row_mask:0xf bank_mask:0xf")
        fill(2)
        e(f"  v_max_u32_dpp v{t}, v{t}, v{t} row_half_mirror row_mask:0xf bank_mask:0xf")
        fill(2)
        e(f"  v_max_u32_dpp v{t}, v{t}, v{t} row_mirror row_mask:0xf bank_mask:0xf")
        while pend: e(pend.pop(0))
        e("  s_nop 0")
        e(f"  v_readlane_b32 s36, v{t}, 0")
        e(f"  v_readlane_b32 s37, v{t}, 16")
        e(f"  v_readlane_b32 s38, v{t}, 32")
        e(f"  v_readlane_b32 s39, v{t}, 48")
        e("  s_max_u32 s36, s36, s37")
        e("  s_max_u32 s38, s38, s39")
        e("  s_max_u32 s36, s36, s38")
        e(f"  v_writelane_b32 v{coll}, s36, {rnd}")
        if rnd < 7:
            e(f"  v_cmp_eq_u32 vcc, s36, v{K[0]}")
            e("  s_nop 1")
            e(f"  v_cndmask_b32 v{K[0]}, v{K[0]}, v{K[1]}, vcc")
            for k in range(1, 7 - rnd):
                pend.append(f"  v_cndmask_b32 v{K[k]}, v{K[k]}, v{K[k+1]}, vcc")
    e("  s_lshl_b32 s33, s13, 5")
    e(f"  s_add_u32 s33, s33, {LDS_C}")
    e(f"  v_lshlrev_b32 v{t}, 2, v0")
    e(f"  v_add_u32 v{t}, s33, v{t}")
    e("  v_cmp_gt_u32 vcc, 8, v0")
    e("  s_and_saveexec_b64 s[40:41], vcc")
    e(f"  ds_write_b32 v{t}, v{coll}")
    e("  s_mov_b64 exec, s[40:41]")
    e("  s_waitcnt lgkmcnt(0)")
    e("  s_barrier")
    return t, coll

def gen_t4():
    name = "t4_kernel"
    kernel_begin(name)
    LDS_C, LDS_R, LDS_WD = 0, 256, 8704
    LDS_G, LDS_U, LDS_XS = 8704, 8704 + 8192, 8704 + 16384
    SPIN = 1 << 22
    e("  s_cmp_ge_u32 s2, 240")
    e("  s_cbranch_scc1 t4_done")
    e(f"  s_load_dwordx2 s[4:5], s[0:1], {KA_X}")
    e(f"  s_load_dwordx2 s[6:7], s[0:1], {KA_WS}")
    e(f"  s_load_dwordx4 s[8:11], s[0:1], {KA_WG}")
    e(f"  s_load_dwordx2 s[44:45], s[0:1], {KA_OUT}")
    e("  s_and_b32 s3, s2, 7")
    e("  s_mul_i32 s3, s3, 28")
    e("  s_lshr_b32 s12, s2, 3")
    e("  s_add_u32 s3, s3, s12")
    e("  v_mov_b32 v40, v0")
    e("  v_lshrrev_b32 v1, 6, v0")
    e("  v_and_b32 v0, 63, v0")
    e("  v_readfirstlane_b32 s13, v1")
    e("  s_waitcnt lgkmcnt(0)")
    srd(16, 4, 5, 2 << 20)
    srd(20, 6, 7, 12 << 20)
    srd(24, 8, 9, 512*1792*2)
    srd(28, 10, 11, 512*1792*2)
    srd(48, 44, 45, 2 << 20)
    e("  v_lshlrev_b32 v2, 5, v40")
    e(f"  s_mov_b32 s14, {WS_KEY}")
    e("  buffer_load_dwordx4 v[8:11], v2, s[20:23], s14 offen")
    e("  buffer_load_dwordx4 v[12:15], v2, s[20:23], s14 offen offset:16")
    e("  s_cmp_ge_u32 s2, 224")
    e("  s_cbranch_scc1 t4_dma2")
    e("  s_lshl_b32 s15, s3, 4")
    e("  s_movk_i32 s32, 3584")
    for ii in range(2):
        e(f"  s_lshl_b32 s33, s13, 7")
        e(f"  s_add_u32 s33, s33, {64*ii}")
        e(f"  v_add_u32 v3, s33, v0")
        e(f"  v_mul_lo_u32 v3, v3, s32")
        e(f"  s_lshl_b32 s34, s13, 11")
        e(f"  s_add_u32 m0, s34, {LDS_G + 1024*ii}")
        e("  s_nop 0")
        e(f"  buffer_load_dwordx4 v3, s[24:27], s15 offen lds")
        e(f"  s_add_u32 m0, s34, {LDS_U + 1024*ii}")
        e("  s_nop 0")
        e(f"  buffer_load_dwordx4 v3, s[28:31], s15 offen lds")
    e("  s_waitcnt vmcnt(4)")
    e("  s_branch t4_top")
    lab("t4_dma2")
    e("  s_sub_u32 s46, s2, 224")
    e("  v_lshlrev_b32 v3, 4, v0")
    e("  s_mul_i32 s34, s13, 7168")
    e(f"  s_mul_i32 s33, s46, {4*28672}")
    e("  s_add_u32 s33, s33, s34")
    e(f"  s_add_u32 s33, s33, {WS_WDB}")
    for dsl in range(4):
        for i in range(7):
            e(f"  s_add_u32 m0, s34, {LDS_WD + dsl*28672 + 1024*i}")
            e("  s_nop 0")
            e(f"  buffer_load_dwordx4 v3, s[20:23], s33 offen lds")
            e(f"  s_add_u32 s33, s33, {1024 if i < 6 else 28672 - 6*1024}")
    e("  s_waitcnt vmcnt(28)")
    lab("t4_top")
    stamp(1)
    t, coll = top8(range(8, 16), range(16, 24), LDS_C)
    e("  v_and_b32 v3, 31, v0")
    e("  v_lshlrev_b32 v3, 2, v3")
    e(f"  ds_read_b32 v24, v3 offset:{LDS_C}")
    e("  v_mov_b32 v4, 0")
    for q in range(8):
        e(f"  ds_read_b128 {vr(56+4*q,4)}, v4 offset:{LDS_C+16*q}")
    e("  v_mov_b32 v25, 0")
    e("  s_waitcnt lgkmcnt(0)")
    sp = [60, 62, 64, 66]
    for i in range(32 + 3):
        if i < 32:
            e(f"  v_cmp_gt_u32 s[{sp[i%4]}:{sp[i%4]+1}], v{56+i}, v24")
        if i >= 3:
            j = i - 3
            e(f"  v_addc_co_u32 v25, vcc, 0, v25, s[{sp[j%4]}:{sp[j%4]+1}]")
    e("  v_cmp_gt_u32 vcc, 8, v25")
    e("  v_cmp_gt_u32 s[42:43], 32, v0")
    e("  s_and_b64 vcc, vcc, s[42:43]")
    e("  v_lshlrev_b32 v3, 2, v25")
    e("  s_and_saveexec_b64 s[40:41], vcc")
    e(f"  ds_write_b32 v3, v24 offset:{LDS_C+128}")
    e("  s_mov_b64 exec, s[40:41]")
    e("  s_waitcnt lgkmcnt(0)")
    e("  s_barrier")
    stamp(2)
    e("  s_cmp_ge_u32 s2, 224")
    e("  s_cbranch_scc1 t4_f2")
    e("  v_lshrrev_b32 v4, 5, v40")
    e("  v_and_b32 v5, 31, v40")
    e("  v_lshlrev_b32 v3, 2, v4")
    e(f"  ds_read_b32 v6, v3 offset:{LDS_C+128}")
    e("  s_waitcnt lgkmcnt(0)")
    e("  v_and_b32 v6, 0xffff, v6")
    e("  v_sub_u32 v6, 0xffff, v6")
    e("  v_lshlrev_b32 v7, 10, v6")
    e("  v_lshl_add_u32 v7, v5, 4, v7")
    e(f"  s_mov_b32 s14, {WS_Y}")
    e(f"  s_mov_b32 s15, {WS_Y + (2<<20)}")
    YR, YI, XX = 24, 32, 44
    for j in range(2):
        e(f"  buffer_load_dwordx4 {vr(YR+4*j,4)}, v7, s[20:23], s14 offen offset:{512*j}")
        e(f"  buffer_load_dwordx4 {vr(YI+4*j,4)}, v7, s[20:23], s15 offen offset:{512*j}")
        e(f"  buffer_load_dwordx4 {vr(XX+4*j,4)}, v7, s[16:19], 0 offen offset:{512*j}")
    e("  v_lshlrev_b32 v3, 3, v6")
    e(f"  s_mov_b32 s14, {WS_STAT}")
    e("  buffer_load_dwordx2 v[52:53], v3, s[20:23], s14 offen")
    e("  s_waitcnt vmcnt(0)")
    stamp(3)
    e("  v_sub_f32 v54, 0, v52")
    e("  v_mov_b32 v55, v54")
    e("  v_mov_b32 v52, v53")
    recompute(YR, YI, XX, 8, 54, 52, 64, 80, 56)
    e(f"  v_mul_u32_u24 v3, {XS_STRIDE}, v4")
    e("  v_lshl_add_u32 v3, v5, 4, v3")
    e(f"  ds_write_b128 v3, v[80:83] offset:{LDS_XS}")
    e(f"  ds_write_b128 v3, v[84:87] offset:{LDS_XS+512}")
    e("  s_waitcnt lgkmcnt(0)")
    e("  s_barrier")
    e("  s_cmp_lg_u32 s13, 0")
    e("  s_cbranch_scc1 t4_done")
    e("  v_and_b32 v3, 7, v0")
    e(f"  v_mul_u32_u24 v3, {XS_STRIDE}, v3")
    e("  v_lshrrev_b32 v4, 4, v0")
    e("  v_lshl_add_u32 v3, v4, 4, v3")
    e("  v_and_b32 v5, 15, v0")
    e("  v_lshrrev_b32 v5, 2, v5")
    e("  v_lshl_add_u32 v5, v4, 3, v5")
    e("  v_lshlrev_b32 v5, 4, v5")
    e("  v_and_b32 v6, 1, v0")
    e("  v_lshl_add_u32 v5, v6, 3, v5")
    e("  v_and_b32 v6, 2, v0")
    e("  v_lshl_add_u32 v5, v6, 12, v5")
    for i in range(4):
        e(f"  v_mov_b32 v{8+i}, 0")
    FA, FB = 64, 128
    for st in range(16):
        e(f"  ds_read_b128 {vr(FA+4*st,4)}, v3 offset:{LDS_XS + 64*st}")
        e(f"  ds_read_b64_tr_b16 {vr(FB+4*st,2)}, v5 offset:{LDS_G+512*st}")
        e(f"  ds_read_b64_tr_b16 {vr(FB+4*st+2,2)}, v5 offset:{LDS_G+512*st+64}")
        if st % 4 == 3:
            e("  s_waitcnt lgkmcnt(0)")
            for s2 in range(st-3, st+1):
                e(f"  v_mfma_f32_16x16x32_bf16 v[8:11], {vr(FA+4*s2,4)}, {vr(FB+4*s2,4)}, v[8:11]")
    e("  s_nop 15")
    for i in range(4):
        e(f"  v_cvt_pk_bf16_f32 v{8+i}, v{8+i}, v{8+i}")
        e(f"  v_lshlrev_b32 v{8+i}, 16, v{8+i}")
    e("  s_nop 1")
    for i in range(4):
        e(f"  v_mov_b32_dpp v{12+i}, v{8+i} row_ror:8 row_mask:0xf bank_mask:0xf")
    for i in range(4):
        e(f"  v_mul_f32 v16, 0xbfb8aa3b, v{8+i}")
        e("  v_exp_f32 v16, v16")
        e("  s_nop 0")
        e("  v_add_f32 v16, 1.0, v16")
        e("  v_rcp_f32 v16, v16")
        e("  s_nop 0")
        e(f"  v_mul_f32 v16, v{8+i}, v16")
        e("  v_cvt_pk_bf16_f32 v16, v16, v16")
        e("  v_lshlrev_b32 v16, 16, v16")
        e(f"  v_mul_f32 v16, v16, v{12+i}")
        e(f"  v_cvt_pk_bf16_f32 v{20+i}, v16, v16")
    e("  s_nop 1")
    for i in range(4):
        e(f"  v_mov_b32_dpp v{24+i}, v{20+i} quad_perm:[1,0,3,2] row_mask:0xf bank_mask:0xf")
    for i in range(4):
        e(f"  v_and_b32 v{20+i}, 0xffff, v{20+i}")
        e(f"  v_and_b32 v{24+i}, 0xffff0000, v{24+i}")
        e(f"  v_or_b32 v{20+i}, v{20+i}, v{24+i}")
    for i in range(4):
        e(f"  v_min_u32 v{20+i}, 0xfffeffff, v{20+i}")
    stamp(4)
    e("  v_and_b32 v5, 15, v0")
    e("  v_lshlrev_b32 v4, 6, v4")
    e("  v_lshl_add_u32 v4, v5, 1, v4")
    e("  v_lshlrev_b32 v7, 4, v0")
    e("  v_and_b32 v6, 9, v0")
    e("  v_cmp_eq_u32 vcc, 0, v6")
    e("  v_cmp_gt_u32 s[42:43], 32, v0")
    e("  s_and_b64 vcc, vcc, s[42:43]")
    e("  s_and_saveexec_b64 s[40:41], vcc")
    for i in range(4):
        e(f"  ds_write_b32 v4, v{20+i} offset:{LDS_R+16*i}")
    e("  s_mov_b64 exec, 0xff")
    e("  s_waitcnt lgkmcnt(0)")
    e(f"  ds_read_b128 v[24:27], v7 offset:{LDS_R}")
    e("  s_lshl_b32 s15, s3, 7")
    e(f"  s_add_u32 s15, s15, {WS_GU}")
    e("  s_waitcnt lgkmcnt(0)")
    e("  buffer_store_dwordx4 v[24:27], v7, s[20:23], s15 offen sc1")
    e("  s_branch t4_done")
    lab("t4_f2")
    e("  v_lshrrev_b32 v5, 4, v0")
    e("  v_and_b32 v6, 1, v5")
    e("  v_lshlrev_b32 v6, 4, v6")
    e(f"  ds_read_b128 v[24:27], v6 offset:{LDS_C+128}")
    e("  v_and_b32 v6, 15, v0")
    e("  s_lshl_b32 s15, s46, 6")
    e("  s_waitcnt lgkmcnt(0)")
    for i in range(4):
        e(f"  v_and_b32 v{28+i}, 0xffff, v{24+i}")
        e(f"  v_sub_u32 v{28+i}, 0xffff, v{28+i}")
        e(f"  v_lshlrev_b32 v{32+i}, 3, v{28+i}")
        e(f"  v_lshlrev_b32 v{28+i}, 10, v{28+i}")
        e(f"  v_lshl_add_u32 v{28+i}, v6, 1, v{28+i}")
        e(f"  v_add_u32 v{28+i}, s15, v{28+i}")
    e("  s_cmp_lg_u32 s13, 0")
    e("  s_cbranch_scc1 t4_noepi")
    e(f"  s_mov_b32 s36, {WS_Y}")
    e(f"  s_mov_b32 s37, {WS_Y + (2<<20)}")
    e(f"  s_mov_b32 s38, {WS_STAT}")
    for a in range(2):
        for i in range(4):
            e(f"  buffer_load_ushort v{192+12*a+i}, v{28+i}, s[20:23], s36 offen offset:{32*a}")
            e(f"  buffer_load_ushort v{196+12*a+i}, v{28+i}, s[20:23], s37 offen offset:{32*a}")
            e(f"  buffer_load_ushort v{200+12*a+i}, v{28+i}, s[16:19], 0 offen offset:{32*a}")
    for i in range(4):
        e(f"  buffer_load_dwordx2 {vr(48+2*i,2)}, v{32+i}, s[20:23], s38 offen")
    lab("t4_noepi")
    e("  v_lshrrev_b32 v7, 2, v6")
    e("  v_lshl_add_u32 v7, v5, 3, v7")
    e("  v_lshlrev_b32 v7, 4, v7")
    e("  v_and_b32 v60, 1, v0")
    e("  v_lshl_add_u32 v7, v60, 3, v7")
    e("  v_and_b32 v60, 2, v0")
    e("  v_mul_u32_u24 v60, 14336, v60")
    e("  v_add_u32 v7, v60, v7")
    e("  v_add_u32 v7, s34, v7")
    e(f"  v_add_u32 v61, {2*28672}, v7")
    e("  s_waitcnt vmcnt(0)")
    FB0, FB1 = 72, 128
    for st in range(14):
        e(f"  ds_read_b64_tr_b16 {vr(FB0+4*st,2)}, v7 offset:{LDS_WD+512*st}")
        e(f"  ds_read_b64_tr_b16 {vr(FB0+4*st+2,2)}, v7 offset:{LDS_WD+512*st+64}")
        e(f"  ds_read_b64_tr_b16 {vr(FB1+4*st,2)}, v61 offset:{LDS_WD+512*st}")
        e(f"  ds_read_b64_tr_b16 {vr(FB1+4*st+2,2)}, v61 offset:{LDS_WD+512*st+64}")
        if st % 3 == 2: e("  s_waitcnt lgkmcnt(0)")
    for i in range(8):
        e(f"  v_mov_b32 v{8+i}, 0")
    for i in range(4):
        e(f"  v_and_b32 v60, 0xffff0000, v{24+i}")
        e("  v_ashrrev_i32 v62, 31, v60")
        e("  v_not_b32 v62, v62")
        e("  v_or_b32 v62, 0x80000000, v62")
        e("  v_xor_b32 v60, v60, v62")
        e("  v_and_b32 v60, 0xffff0000, v60")
        e("  v_mul_f32 v60, 0xbfb8aa3b, v60")
        e("  v_exp_f32 v60, v60")
        e("  s_nop 0")
        e("  v_add_f32 v60, 1.0, v60")
        e("  v_rcp_f32 v60, v60")
        e("  s_nop 0")
        e("  v_cvt_pk_bf16_f32 v60, v60, v60")
        e(f"  v_lshlrev_b32 v{24+i}, 16, v60")
    for a in range(2):
        for i in range(4):
            r0, r1, r2 = 192+12*a+i, 196+12*a+i, 200+12*a+i
            e(f"  v_lshlrev_b32 v{r0}, 16, v{r0}")
            e(f"  v_lshlrev_b32 v{r1}, 16, v{r1}")
            e(f"  v_lshlrev_b32 v{r2}, 16, v{r2}")
            e(f"  v_sub_f32 v60, v{r0}, v{r1}")
            e("  v_cvt_pk_bf16_f32 v60, v60, v60")
            e("  v_lshlrev_b32 v60, 16, v60")
            e(f"  v_add_f32 v60, v{r2}, v60")
            e("  v_cvt_pk_bf16_f32 v60, v60, v60")
            e(f"  v_lshlrev_b32 v{r0}, 16, v60")
            e(f"  v_sub_f32 v62, v{r0}, v{48+2*i}")
            e("  v_cvt_pk_bf16_f32 v62, v62, v62")
            e("  v_lshlrev_b32 v62, 16, v62")
            e(f"  v_mul_f32 v62, v62, v{49+2*i}")
            e("  v_cvt_pk_bf16_f32 v62, v62, v62")
            e(f"  v_lshlrev_b32 v{r1}, 16, v62")
    stamp(3)
    e("  v_and_b32 v4, 7, v0")
    e("  v_lshlrev_b32 v4, 4, v4")
    e("  v_lshl_add_u32 v4, v5, 7, v4")
    e("  s_mul_i32 s14, s13, 7168")
    e(f"  s_add_u32 s14, s14, {WS_GU}")
    regs = [216+4*i for i in range(9)] + [36, 40, 44, 56, 64]
    e("  v_add_u32 v62, 4096, v4")
    e("  s_mov_b32 s53, 0")
    lab("t4_poll")
    for st in range(14):
        e(f"  buffer_load_dwordx4 {vr(regs[st],4)}, v4, s[20:23], s14 offen offset:{512*st if st < 8 else 0} sc1") if st < 8 else e(f"  buffer_load_dwordx4 {vr(regs[st],4)}, v62, s[20:23], s14 offen offset:{512*(st-8)} sc1")
    e("  v_mov_b32 v3, 0")
    for st in range(14):
        e(f"  s_waitcnt vmcnt({13-st})")
        e(f"  v_max3_u32 v3, v3, v{regs[st]}, v{regs[st]+1}")
        e(f"  v_max3_u32 v3, v3, v{regs[st]+2}, v{regs[st]+3}")
    e("  v_cmp_eq_u32 s[54:55], -1, v3")
    e("  s_nop 3")
    e("  s_cmp_eq_u64 s[54:55], 0")
    e("  s_cbranch_scc1 t4_poll_ok")
    e("  s_add_u32 s53, s53, 1")
    e(f"  s_cmp_gt_u32 s53, {SPIN}")
    e("  s_cbranch_scc1 t4_poll_ok")
    e("  s_branch t4_poll")
    lab("t4_poll_ok")
    stamp(5)
    e("  s_waitcnt lgkmcnt(0)")
    for st in range(14):
        e(f"  v_mfma_f32_16x16x32_bf16 v[8:11], {vr(regs[st],4)}, {vr(FB0+4*st,4)}, v[8:11]")
        e(f"  v_mfma_f32_16x16x32_bf16 v[12:15], {vr(regs[st],4)}, {vr(FB1+4*st,4)}, v[12:15]")
    e("  s_nop 15")
    stamp(6)
    e("  v_lshlrev_b32 v3, 4, v0")
    e("  s_lshl_b32 s33, s13, 11")
    e("  v_add_u32 v3, s33, v3")
    e(f"  ds_write_b128 v3, v[8:11] offset:{LDS_R}")
    e(f"  ds_write_b128 v3, v[12:15] offset:{LDS_R+1024}")
    e("  s_waitcnt lgkmcnt(0)")
    e("  s_barrier")
    e("  s_cmp_lg_u32 s13, 0")
    e("  s_cbranch_scc1 t4_done")
    e("  v_lshlrev_b32 v3, 4, v0")
    for w in range(1, 4):
        for a in range(2):
            e(f"  ds_read_b128 {vr(72+8*(w-1)+4*a,4)}, v3 offset:{LDS_R+2048*w+1024*a}")
    e("  v_cmp_gt_u32 vcc, 32, v0")
    e("  s_and_saveexec_b64 s[40:41], vcc")
    e("  s_waitcnt lgkmcnt(0)")
    for a in range(2):
        for i in range(4):
            y = 8 + 4*a + i
            e(f"  v_add_f32 v{y}, v{y}, v{72+4*a+i}")
            e(f"  v_add_f32 v60, v{80+4*a+i}, v{88+4*a+i}")
            e(f"  v_add_f32 v{y}, v{y}, v60")
            e(f"  v_cvt_pk_bf16_f32 v{y}, v{y}, v{y}")
            e(f"  v_lshlrev_b32 v{y}, 16, v{y}")
            e(f"  v_mul_f32 v{y}, v{y}, v{24+i}")
            e(f"  v_cvt_pk_bf16_f32 v{y}, v{y}, v{y}")
            e(f"  v_lshlrev_b32 v{y}, 16, v{y}")
            e(f"  v_add_f32 v61, v{196+12*a+i}, v{y}")
            e("  v_cvt_pk_bf16_f32 v61, v61, v61")
            e("  v_lshlrev_b32 v61, 16, v61")
            e(f"  v_add_f32 v61, v{192+12*a+i}, v61")
            e("  v_cvt_pk_bf16_f32 v61, v61, v61")
            e(f"  buffer_store_short v61, v{28+i}, s[48:51], 0 offen offset:{32*a}")
    lab("t4_done")
    kernel_end()
    e("  s_endpgm")
    kernel_desc(name, 252)

ROW_O = 48
def rowmac(first, O=148, sc1=False):
    YR, YI, XX, WR, H, T, D = 16, 32, 48, 64, 80, 112, 116
    if sc1: O = ROW_O
    SC = " sc1" if sc1 else ""
    e("  v_lshlrev_b32 v3, 10, v1")
    e("  v_lshl_add_u32 v3, v2, 4, v3")
    e(f"  s_mov_b32 s52, {WS_Y}")
    e(f"  s_mov_b32 s53, {WS_Y + (2<<20)}")
    for j in range(4):
        e(f"  buffer_load_dwordx4 {vr(YR+4*j,4)}, v3, s[24:27], s52 offen offset:{256*j}{SC}")
        e(f"  buffer_load_dwordx4 {vr(YI+4*j,4)}, v3, s[24:27], s53 offen offset:{256*j}{SC}")
        e(f"  buffer_load_dwordx4 {vr(XX+4*j,4)}, v3, s[20:23], 0 offen offset:{256*j}")
    nextra = 0
    if first:
        e("  v_lshlrev_b32 v4, 4, v2")
        for j in range(4):
            e(f"  buffer_load_dwordx4 {vr(WR+4*j,4)}, v4, s[28:31], 0 offen offset:{256*j}")
        nextra = 4
    e("  v_mov_b32 v14, 0")
    e("  v_mov_b32 v15, 0")
    for j in range(4):
        e(f"  s_waitcnt vmcnt({nextra + 3*(3-j)})")
        for q in range(4):
            i = 4*j + q
            e(f"  v_lshlrev_b32 v{T}, 16, v{YR+i}")
            e(f"  v_and_b32 v{T+1}, 0xffff0000, v{YR+i}")
            e(f"  v_lshlrev_b32 v{T+2}, 16, v{YI+i}")
            e(f"  v_and_b32 v{T+3}, 0xffff0000, v{YI+i}")
            e(f"  v_pk_add_f32 {vr(T,2)}, {vr(T,2)}, {vr(T+2,2)} neg_lo:[0,1] neg_hi:[0,1]")
            e(f"  v_cvt_pk_bf16_f32 v{T}, v{T}, v{T+1}")
            e(f"  v_and_b32 v{T+1}, 0xffff0000, v{T}")
            e(f"  v_lshlrev_b32 v{T}, 16, v{T}")
            e(f"  v_lshlrev_b32 v{T+2}, 16, v{XX+i}")
            e(f"  v_and_b32 v{T+3}, 0xffff0000, v{XX+i}")
            e(f"  v_pk_add_f32 {vr(T,2)}, {vr(T,2)}, {vr(T+2,2)}")
            e(f"  v_cvt_pk_bf16_f32 v{YI+i}, v{T}, v{T+1}")
            e(f"  v_lshlrev_b32 v{H+2*i}, 16, v{YI+i}")
            e(f"  v_and_b32 v{H+2*i+1}, 0xffff0000, v{YI+i}")
            e(f"  v_pk_add_f32 v[14:15], v[14:15], {vr(H+2*i,2)}")
    e("  v_add_f32 v5, v14, v15")
    reduce16(5)
    e("  v_mul_f32 v5, 0x3b000000, v5")
    e("  v_cvt_pk_bf16_f32 v6, v5, v5")
    e("  v_lshlrev_b32 v6, 16, v6")
    e("  v_sub_f32 v8, 0, v6")
    e("  v_mov_b32 v9, v8")
    e("  v_mov_b32 v10, 0")
    e("  v_mov_b32 v11, 0")
    for i in range(16):
        e(f"  v_pk_add_f32 {vr(D+2*i,2)}, {vr(H+2*i,2)}, v[8:9]")
        e(f"  v_pk_fma_f32 v[10:11], {vr(D+2*i,2)}, {vr(D+2*i,2)}, v[10:11]")
    e("  v_add_f32 v10, v10, v11")
    reduce16(10)
    e("  v_sub_f32 v11, v5, v6")
    e("  v_mul_f32 v11, v11, v11")
    e("  v_mul_f32 v10, 0x3b000000, v10")
    e("  v_sub_f32 v10, v10, v11")
    e("  v_max_f32 v10, 0, v10")
    e("  v_cvt_pk_bf16_f32 v10, v10, v10")
    e("  v_lshlrev_b32 v10, 16, v10")
    e("  v_add_f32 v10, 0x3727c5ac, v10")
    e("  v_cvt_pk_bf16_f32 v10, v10, v10")
    e("  v_lshlrev_b32 v10, 16, v10")
    e("  v_sqrt_f32 v10, v10")
    e("  s_nop 0")
    e("  v_cvt_pk_bf16_f32 v10, v10, v10")
    e("  v_lshlrev_b32 v10, 16, v10")
    e("  v_rcp_f32 v10, v10")
    e("  s_nop 0")
    e("  v_mov_b32 v11, v10")
    if first:
        e("  v_mov_b32 v12, 0")
        e("  s_waitcnt vmcnt(0)")
    for i in range(16):
        e(f"  v_cvt_pk_bf16_f32 v{T}, v{D+2*i}, v{D+2*i+1}")
        e(f"  v_lshlrev_b32 v{D+2*i}, 16, v{T}")
        e(f"  v_and_b32 v{D+2*i+1}, 0xffff0000, v{T}")
        e(f"  v_pk_mul_f32 {vr(D+2*i,2)}, {vr(D+2*i,2)}, v[10:11]")
        e(f"  v_cvt_pk_bf16_f32 v{YR+i}, v{D+2*i}, v{D+2*i+1}")
        if first:
            e(f"  v_dot2_f32_bf16 v12, v{YR+i}, v{WR+i}, v12")
            e(f"  v_lshlrev_b32 v{D+2*i}, 16, v{YR+i}")
            e(f"  v_and_b32 v{D+2*i+1}, 0xffff0000, v{YR+i}")
            e(f"  v_pk_add_f32 {vr(D+2*i,2)}, {vr(D+2*i,2)}, {vr(H+2*i,2)}")
            e(f"  v_cvt_pk_bf16_f32 v{O+i}, v{D+2*i}, v{D+2*i+1}")
    if first:
        e("  s_nop 3")
        reduce16(12)
        e("  v_cvt_pk_bf16_f32 v12, v12, v12")
        e("  v_lshlrev_b32 v12, 16, v12")
        e("  v_ashrrev_i32 v13, 31, v12")
        e("  v_or_b32 v13, 0x80000000, v13")
        e("  v_xor_b32 v12, v12, v13")
        e("  v_and_b32 v12, 0xffff0000, v12")
        e("  v_sub_u32 v13, 0xffff, v1")
        e("  v_or_b32 v12, v12, v13")

def gen_tf():
    name = "tf_kernel"
    kernel_begin(name)
    LDS_G, LDS_U, LDS_WD = 0, 8192, 16384
    LDS_XS = 45056
    LDS_HS = LDS_XS + 8 * XS_STRIDE
    LDS_C = LDS_HS + 8192
    LDS_R = LDS_C + 256
    SPIN = 1 << 22
    e("  s_cmp_ge_u32 s2, 256")
    e("  s_cbranch_scc1 tf_done")
    e(f"  s_load_dwordx2 s[4:5], s[0:1], {KA_X}")
    e(f"  s_load_dwordx2 s[6:7], s[0:1], {KA_WS}")
    e(f"  s_load_dwordx8 s[8:15], s[0:1], {KA_WR}")
    e(f"  s_load_dwordx2 s[16:17], s[0:1], {KA_OUT}")
    e("  s_and_b32 s3, s2, 7")
    e("  s_mul_i32 s49, s3, 28")
    e("  s_lshr_b32 s50, s2, 3")
    e("  s_add_u32 s49, s49, s50")
    e("  s_sub_u32 s50, s50, 24")
    e("  s_lshl_b32 s51, s3, 3")
    e("  s_add_u32 s50, s50, s51")
    e("  v_mov_b32 v180, v0")
    e("  v_lshrrev_b32 v1, 6, v0")
    e("  v_and_b32 v0, 63, v0")
    e("  v_readfirstlane_b32 s48, v1")
    e("  s_waitcnt lgkmcnt(0)")
    srd(20, 4, 5, 2 << 20)
    srd(24, 6, 7, 9 << 20)
    srd(28, 8, 9, 1024)
    srd(32, 10, 11, 512*1792*2)
    srd(36, 12, 13, 512*1792*2)
    srd(40, 14, 15, 1792*512*2)
    srd(44, 16, 17, 2 << 20)
    e("  s_cmp_lt_u32 s48, 2")
    e("  s_cbranch_scc1 tf_p1")
    e("  s_cmp_ge_u32 s2, 224")
    e("  s_cbranch_scc1 tf_nof1")
    e("  s_movk_i32 s52, 3584")
    e("  v_mul_lo_u32 v3, v0, s52")
    e("  s_lshl_b32 s53, s49, 4")
    e("  s_cmp_eq_u32 s48, 2")
    e("  s_cbranch_scc0 tf_dma_u")
    for i in range(8):
        e(f"  s_mov_b32 m0, {LDS_G + 1024*i}")
        e("  s_nop 0")
        e("  buffer_load_dwordx4 v3, s[32:35], s53 offen lds")
        e(f"  s_add_u32 s53, s53, {64*3584}")
    e("  s_branch tf_nof1")
    lab("tf_dma_u")
    for i in range(8):
        e(f"  s_mov_b32 m0, {LDS_U + 1024*i}")
        e("  s_nop 0")
        e("  buffer_load_dwordx4 v3, s[36:39], s53 offen lds")
        e(f"  s_add_u32 s53, s53, {64*3584}")
    lab("tf_nof1")
    e("  s_cmp_lt_u32 s2, 192")
    e("  s_cbranch_scc1 tf_poll1")
    e("  v_lshlrev_b32 v3, 10, v0")
    e("  s_sub_u32 s52, s48, 2")
    e(f"  s_mul_i32 s53, s52, {896*1024}")
    e("  s_lshl_b32 s54, s50, 4")
    e("  s_add_u32 s53, s53, s54")
    e(f"  s_mul_i32 s54, s52, {896*16}")
    for i in range(14):
        e(f"  s_add_u32 m0, s54, {LDS_WD + 1024*i}")
        e("  s_nop 0")
        e("  buffer_load_dwordx4 v3, s[40:43], s53 offen lds")
        e("  s_add_u32 s53, s53, 0x10000")
    e("  s_branch tf_poll1")
    lab("tf_p1")
    e("  v_lshrrev_b32 v1, 4, v180")
    e("  v_and_b32 v2, 15, v0")
    e("  s_lshl_b32 s52, s2, 3")
    e("  v_add_u32 v1, s52, v1")
    e("  v_mov_b32 v181, v1")
    rowmac(True)
    e("  v_cmp_eq_u32 vcc, 0, v2")
    e("  s_and_saveexec_b64 s[56:57], vcc")
    e("  v_lshlrev_b32 v13, 2, v1")
    e(f"  s_mov_b32 s52, {WS_KEY}")
    e("  buffer_store_dword v12, v13, s[24:27], s52 offen sc1")
    e("  s_mov_b64 exec, s[56:57]")
    stamp(1)
    lab("tf_poll1")
    K = 164
    e("  v_lshlrev_b32 v172, 5, v180")
    e(f"  s_mov_b32 s52, {WS_KEY}")
    e("  s_mov_b32 s60, 0")
    lab("tf_poll1_loop")
    e(f"  buffer_load_dwordx4 {vr(K,4)}, v172, s[24:27], s52 offen sc1")
    e(f"  buffer_load_dwordx4 {vr(K+4,4)}, v172, s[24:27], s52 offen offset:16 sc1")
    e("  s_waitcnt vmcnt(0)")
    e(f"  v_min3_u32 v173, v{K}, v{K+1}, v{K+2}")
    e(f"  v_min3_u32 v174, v{K+3}, v{K+4}, v{K+5}")
    e(f"  v_min3_u32 v173, v173, v{K+6}, v{K+7}")
    e("  v_min_u32 v173, v173, v174")
    e("  v_cmp_eq_u32 s[62:63], 0, v173")
    e("  s_nop 3")
    e("  s_cmp_eq_u64 s[62:63], 0")
    e("  s_cbranch_scc1 tf_poll1_ok")
    e("  s_add_u32 s60, s60, 1")
    e(f"  s_cmp_gt_u32 s60, {SPIN}")
    e("  s_cbranch_scc1 tf_poll1_ok")
    e("  s_sleep 1")
    e("  s_branch tf_poll1_loop")
    lab("tf_poll1_ok")
    stamp(2)
    e("  v_mov_b32 v176, 0")
    for rnd in range(8):
        e(f"  v_max3_u32 v173, v{K}, v{K+1}, v{K+2}")
        e(f"  v_max3_u32 v174, v{K+3}, v{K+4}, v{K+5}")
        e(f"  v_max3_u32 v173, v173, v{K+6}, v{K+7}")
        e("  v_max_u32 v173, v173, v174")
        e("  s_nop 1")
        e("  v_max_u32_dpp v173, v173, v173 quad_perm:[1,0,3,2] row_mask:0xf bank_mask:0xf")
        e("  s_nop 1")
        e("  v_max_u32_dpp v173, v173, v173 quad_perm:[2,3,0,1] row_mask:0xf bank_mask:0xf")
        e("  s_nop 1")
        e("  v_max_u32_dpp v173, v173, v173 row_half_mirror row_mask:0xf bank_mask:0xf")
        e("  s_nop 1")
        e("  v_max_u32_dpp v173, v173, v173 row_mirror row_mask:0xf bank_mask:0xf")
        e("  s_nop 1")
        e("  v_readlane_b32 s64, v173, 0")
        e("  v_readlane_b32 s65, v173, 16")
        e("  v_readlane_b32 s66, v173, 32")
        e("  v_readlane_b32 s67, v173, 48")
        e("  s_max_u32 s64, s64, s65")
        e("  s_max_u32 s66, s66, s67")
        e("  s_max_u32 s64, s64, s66")
        e(f"  v_writelane_b32 v176, s64, {rnd}")
        if rnd < 7:
            for k in range(8):
                e(f"  v_cmp_ne_u32 vcc, s64, v{K+k}")
                e("  s_nop 1")
                e(f"  v_cndmask_b32 v{K+k}, 0, v{K+k}, vcc")
    e("  s_lshl_b32 s52, s48, 5")
    e(f"  s_add_u32 s52, s52, {LDS_C}")
    e("  v_lshlrev_b32 v172, 2, v0")
    e("  v_add_u32 v172, s52, v172")
    e("  v_cmp_gt_u32 vcc, 8, v0")
    e("  s_and_saveexec_b64 s[56:57], vcc")
    e("  ds_write_b32 v172, v176")
    e("  s_mov_b64 exec, s[56:57]")
    e("  s_waitcnt lgkmcnt(0)")
    e("  s_barrier")
    e("  v_and_b32 v172, 31, v0")
    e("  v_lshlrev_b32 v172, 2, v172")
    e(f"  ds_read_b32 v177, v172 offset:{LDS_C}")
    e("  v_mov_b32 v178, 0")
    e("  s_waitcnt lgkmcnt(0)")
    for i in range(32):
        e(f"  v_readlane_b32 s64, v177, {i}")
        e("  s_nop 1")
        e("  v_cmp_gt_u32 vcc, s64, v177")
        e("  s_nop 1")
        e("  v_addc_co_u32 v178, vcc, 0, v178, vcc")
    e("  v_cmp_gt_u32 vcc, 8, v178")
    e("  v_cmp_gt_u32 s[58:59], 32, v0")
    e("  s_and_b64 vcc, vcc, s[58:59]")
    e("  v_lshlrev_b32 v172, 2, v178")
    e("  s_and_saveexec_b64 s[56:57], vcc")
    e(f"  ds_write_b32 v172, v177 offset:{LDS_C+128}")
    e("  s_mov_b64 exec, s[56:57]")
    e("  s_waitcnt lgkmcnt(0)")
    e("  s_barrier")
    stamp(3)
    e("  s_cmp_lt_u32 s48, 2")
    e("  s_cbranch_scc1 tf_p2")
    e("  s_waitcnt vmcnt(0)")
    e("  s_branch tf_p2_end")
    lab("tf_p2")
    e("  v_mov_b32 v172, 0")
    e(f"  ds_read_b128 {vr(K,4)}, v172 offset:{LDS_C+128}")
    e(f"  ds_read_b128 {vr(K+4,4)}, v172 offset:{LDS_C+144}")
    e("  v_lshrrev_b32 v173, 4, v180")
    e("  v_lshlrev_b32 v173, 2, v173")
    e(f"  ds_read_b32 v174, v173 offset:{LDS_C+128}")
    e("  v_sub_u32 v175, 0xffff, v181")
    e("  s_waitcnt lgkmcnt(0)")
    e("  s_mov_b64 s[58:59], exec")
    for k in range(8):
        e(f"  v_and_b32 v{K+k}, 0xffff, v{K+k}")
        e(f"  v_cmp_ne_u32 vcc, v{K+k}, v175")
        e("  s_and_b64 s[58:59], s[58:59], vcc")
    e("  v_lshlrev_b32 v3, 10, v181")
    e("  v_lshl_add_u32 v3, v2, 4, v3")
    e("  s_and_saveexec_b64 s[56:57], s[58:59]")
    e("  s_cbranch_execz tf_nostore")
    for j in range(4):
        e(f"  buffer_store_dwordx4 {vr(148+4*j,4)}, v3, s[44:47], 0 offen offset:{256*j}")
    lab("tf_nostore")
    e("  s_mov_b64 exec, s[56:57]")
    e("  v_and_b32 v1, 0xffff, v174")
    e("  v_sub_u32 v1, 0xffff, v1")
    rowmac(False)
    e("  v_lshrrev_b32 v173, 4, v180")
    e(f"  v_mul_u32_u24 v4, {XS_STRIDE}, v173")
    e("  v_lshl_add_u32 v4, v2, 4, v4")
    e("  v_lshlrev_b32 v5, 10, v173")
    e("  v_lshl_add_u32 v5, v2, 4, v5")
    for j in range(4):
        e(f"  ds_write_b128 v4, {vr(16+4*j,4)} offset:{LDS_XS+256*j}")
        e(f"  ds_write_b128 v5, {vr(32+4*j,4)} offset:{LDS_HS+256*j}")
    e("  s_waitcnt lgkmcnt(0)")
    lab("tf_p2_end")
    e("  s_barrier")
    stamp(4)
    e("  s_cmp_lg_u32 s48, 0")
    e("  s_cbranch_scc1 tf_f2")
    e("  s_cmp_ge_u32 s2, 224")
    e("  s_cbranch_scc1 tf_f2")
    e("  v_and_b32 v3, 7, v0")
    e(f"  v_mul_u32_u24 v3, {XS_STRIDE}, v3")
    e("  v_lshrrev_b32 v4, 4, v0")
    e("  v_lshl_add_u32 v3, v4, 4, v3")
    e("  v_and_b32 v5, 15, v0")
    e("  v_lshrrev_b32 v5, 2, v5")
    e("  v_lshl_add_u32 v5, v4, 3, v5")
    e("  v_lshlrev_b32 v5, 4, v5")
    e("  v_and_b32 v6, 1, v0")
    e("  v_lshl_add_u32 v5, v6, 3, v5")
    e("  v_and_b32 v6, 2, v0")
    e("  v_lshl_add_u32 v5, v6, 12, v5")
    for i in range(4):
        e(f"  v_mov_b32 v{8+i}, 0")
    FA, FB = 16, 80
    for st in range(16):
        e(f"  ds_read_b128 {vr(FA+4*st,4)}, v3 offset:{LDS_XS + 64*st}")
        e(f"  ds_read_b64_tr_b16 {vr(FB+4*st,2)}, v5 offset:{512*st}")
        e(f"  ds_read_b64_tr_b16 {vr(FB+4*st+2,2)}, v5 offset:{512*st+64}")
        if st % 4 == 3:
            e("  s_waitcnt lgkmcnt(0)")
            for s2 in range(st-3, st+1):
                e(f"  v_mfma_f32_16x16x32_bf16 v[8:11], {vr(FA+4*s2,4)}, {vr(FB+4*s2,4)}, v[8:11]")
    e("  s_nop 15")
    for i in range(4):
        e(f"  v_cvt_pk_bf16_f32 v{8+i}, v{8+i}, v{8+i}")
        e(f"  v_lshlrev_b32 v{8+i}, 16, v{8+i}")
    e("  s_nop 1")
    for i in range(4):
        e(f"  v_mov_b32_dpp v{12+i}, v{8+i} row_ror:8 row_mask:0xf bank_mask:0xf")
    for i in range(4):
        e(f"  v_mul_f32 v16, 0xbfb8aa3b, v{8+i}")
        e("  v_exp_f32 v16, v16")
        e("  s_nop 0")
        e("  v_add_f32 v16, 1.0, v16")
        e("  v_rcp_f32 v16, v16")
        e("  s_nop 0")
        e(f"  v_mul_f32 v16, v{8+i}, v16")
        e("  v_cvt_pk_bf16_f32 v16, v16, v16")
        e("  v_lshlrev_b32 v16, 16, v16")
        e(f"  v_mul_f32 v16, v16, v{12+i}")
        e(f"  v_cvt_pk_bf16_f32 v{20+i}, v16, v16")
    e("  s_nop 1")
    for i in range(4):
        e(f"  v_mov_b32_dpp v{24+i}, v{20+i} quad_perm:[1,0,3,2] row_mask:0xf bank_mask:0xf")
    for i in range(4):
        e(f"  v_and_b32 v{20+i}, 0xffff, v{20+i}")
        e(f"  v_and_b32 v{24+i}, 0xffff0000, v{24+i}")
        e(f"  v_or_b32 v{20+i}, v{20+i}, v{24+i}")
    e("  v_and_b32 v5, 15, v0")
    e("  v_and_b32 v6, 9, v0")
    e("  v_cmp_eq_u32 vcc, 0, v6")
    e("  v_cmp_gt_u32 s[58:59], 32, v0")
    e("  s_and_b64 vcc, vcc, s[58:59]")
    e("  s_and_saveexec_b64 s[56:57], vcc")
    e("  v_lshlrev_b32 v4, 2, v4")
    e("  v_mul_u32_u24 v4, 3584, v4")
    e("  v_lshl_add_u32 v4, v5, 1, v4")
    e("  s_lshl_b32 s52, s49, 4")
    e(f"  s_add_u32 s52, s52, {WS_GU}")
    for i in range(4):
        e(f"  buffer_store_dword v{20+i}, v4, s[24:27], s52 offen sc1")
        if i < 3:
            e("  v_add_u32 v4, 3584, v4")
    e("  s_waitcnt vmcnt(0)")
    e("  s_mov_b64 exec, 1")
    e("  v_mov_b32 v4, 1")
    e("  v_mov_b32 v5, 0")
    e("  s_lshl_b32 s52, s49, 2")
    e(f"  s_add_u32 s52, s52, {WS_FLAG}")
    e("  buffer_store_dword v4, v5, s[24:27], s52 offen sc1")
    e("  s_mov_b64 exec, s[56:57]")
    stamp(5)
    lab("tf_f2")
    e("  s_cmp_lt_u32 s2, 192")
    e("  s_cbranch_scc1 tf_done")
    e("  v_min_u32 v3, 55, v0")
    e("  v_lshlrev_b32 v3, 2, v3")
    e("  s_mul_i32 s52, s48, 224")
    e(f"  s_add_u32 s52, s52, {WS_FLAG}")
    e("  s_mov_b32 s60, 0")
    lab("tf_poll2_loop")
    e("  buffer_load_dword v4, v3, s[24:27], s52 offen sc1")
    e("  s_waitcnt vmcnt(0)")
    e("  v_cmp_eq_u32 s[62:63], 0, v4")
    e("  s_nop 3")
    e("  s_cmp_eq_u64 s[62:63], 0")
    e("  s_cbranch_scc1 tf_poll2_ok")
    e("  s_add_u32 s60, s60, 1")
    e(f"  s_cmp_gt_u32 s60, {SPIN}")
    e("  s_cbranch_scc1 tf_poll2_ok")
    e("  s_sleep 1")
    e("  s_branch tf_poll2_loop")
    lab("tf_poll2_ok")
    stamp(6)
    e("  v_and_b32 v4, 7, v0")
    e("  v_mul_u32_u24 v4, 3584, v4")
    e("  v_lshrrev_b32 v5, 4, v0")
    e("  v_lshl_add_u32 v4, v5, 4, v4")
    e("  s_mul_i32 s52, s48, 896")
    e(f"  s_add_u32 s52, s52, {WS_GU}")
    FA, FB = 16, 72
    for st in range(14):
        e(f"  buffer_load_dwordx4 {vr(FA+4*st,4)}, v4, s[24:27], s52 offen offset:{64*st} sc1")
    e("  v_and_b32 v7, 15, v0")
    e("  v_lshrrev_b32 v7, 2, v7")
    e("  v_lshl_add_u32 v7, v5, 3, v7")
    e("  v_lshlrev_b32 v7, 4, v7")
    e("  v_and_b32 v6, 1, v0")
    e("  v_lshl_add_u32 v7, v6, 3, v7")
    e("  s_mul_i32 s54, s48, 7168")
    e(f"  s_add_u32 s54, s54, {LDS_WD}")
    e("  v_add_u32 v7, s54, v7")
    for st in range(14):
        e(f"  ds_read_b64_tr_b16 {vr(FB+4*st,2)}, v7 offset:{512*st}")
        e(f"  ds_read_b64_tr_b16 {vr(FB+4*st+2,2)}, v7 offset:{512*st+64}")
    for i in range(4):
        e(f"  v_mov_b32 v{8+i}, 0")
    e("  s_waitcnt vmcnt(0) lgkmcnt(0)")
    for st in range(14):
        e(f"  v_mfma_f32_16x16x32_bf16 v[8:11], {vr(FA+4*st,4)}, {vr(FB+4*st,4)}, v[8:11]")
    e("  s_nop 15")
    e("  v_lshlrev_b32 v3, 4, v0")
    e("  s_lshl_b32 s52, s48, 10")
    e("  v_add_u32 v3, s52, v3")
    e(f"  ds_write_b128 v3, v[8:11] offset:{LDS_R}")
    e("  s_waitcnt lgkmcnt(0)")
    e("  s_barrier")
    e("  s_cmp_lg_u32 s48, 0")
    e("  s_cbranch_scc1 tf_done")
    e("  v_lshlrev_b32 v3, 4, v0")
    for w in range(1, 4):
        e(f"  ds_read_b128 {vr(12+4*(w-1),4)}, v3 offset:{LDS_R+1024*w}")
    e("  v_and_b32 v6, 1, v5")
    e("  v_lshlrev_b32 v6, 4, v6")
    e(f"  ds_read_b128 v[24:27], v6 offset:{LDS_C+128}")
    e("  v_and_b32 v6, 7, v0")
    e("  s_lshl_b32 s52, s50, 4")
    e("  v_lshl_add_u32 v6, v6, 1, s52")
    e("  v_and_b32 v7, 1, v5")
    e("  v_lshlrev_b32 v7, 2, v7")
    for i in range(4):
        e(f"  v_add_u32 v28, {i}, v7")
        e(f"  v_mul_u32_u24 v29, {XS_STRIDE}, v28")
        e("  v_add_u32 v29, v29, v6")
        e(f"  ds_read_u16 v{36+i}, v29 offset:{LDS_XS}")
        e("  v_lshl_add_u32 v29, v28, 10, v6")
        e(f"  ds_read_u16 v{40+i}, v29 offset:{LDS_HS}")
    e("  v_and_b32 v30, 15, v0")
    e("  v_cmp_gt_u32 vcc, 8, v30")
    e("  v_cmp_gt_u32 s[58:59], 32, v0")
    e("  s_and_b64 vcc, vcc, s[58:59]")
    e("  s_waitcnt lgkmcnt(0)")
    e("  s_and_saveexec_b64 s[56:57], vcc")
    for i in range(4):
        e(f"  v_add_f32 v{8+i}, v{8+i}, v{12+i}")
        e(f"  v_add_f32 v{16+i}, v{16+i}, v{20+i}")
        e(f"  v_add_f32 v{8+i}, v{8+i}, v{16+i}")
        e(f"  v_cvt_pk_bf16_f32 v{8+i}, v{8+i}, v{8+i}")
        e(f"  v_lshlrev_b32 v{8+i}, 16, v{8+i}")
        e(f"  v_and_b32 v60, 0xffff0000, v{24+i}")
        e("  v_ashrrev_i32 v61, 31, v60")
        e("  v_not_b32 v61, v61")
        e("  v_or_b32 v61, 0x80000000, v61")
        e("  v_xor_b32 v60, v60, v61")
        e("  v_and_b32 v60, 0xffff0000, v60")
        e("  v_mul_f32 v60, 0xbfb8aa3b, v60")
        e("  v_exp_f32 v60, v60")
        e("  s_nop 0")
        e("  v_add_f32 v60, 1.0, v60")
        e("  v_rcp_f32 v60, v60")
        e("  s_nop 0")
        e("  v_cvt_pk_bf16_f32 v60, v60, v60")
        e("  v_lshlrev_b32 v60, 16, v60")
        e(f"  v_mul_f32 v{8+i}, v{8+i}, v60")
        e(f"  v_cvt_pk_bf16_f32 v{8+i}, v{8+i}, v{8+i}")
        e(f"  v_lshlrev_b32 v{8+i}, 16, v{8+i}")
        e(f"  v_lshlrev_b32 v{36+i}, 16, v{36+i}")
        e(f"  v_lshlrev_b32 v{40+i}, 16, v{40+i}")
        e(f"  v_add_f32 v61, v{36+i}, v{8+i}")
        e("  v_cvt_pk_bf16_f32 v61, v61, v61")
        e("  v_lshlrev_b32 v61, 16, v61")
        e(f"  v_add_f32 v61, v{40+i}, v61")
        e("  v_cvt_pk_bf16_f32 v61, v61, v61")
        e(f"  v_and_b32 v62, 0xffff, v{24+i}")
        e("  v_sub_u32 v62, 0xffff, v62")
        e("  v_lshl_add_u32 v62, v62, 10, v6")
        e("  buffer_store_short v61, v62, s[44:47], 0 offen")
    lab("tf_done")
    kernel_end()
    e("  s_endpgm")
    kernel_desc(name, 184)

def main():
    hdr = open("cdna_kernels/" + NAME + ".s.ref").read().splitlines()
    out = []
    for ln in hdr:
        if ln.startswith("; @launch"):
            out.append("; @launch kernel=k1_kernel grid=(256,1,1) block=(%d,1,1) lds=131072" % (576 if OPT('K1_PF', 0) else 512))
            out.append("; @launch kernel=k2_kernel grid=(256,1,1) block=(%d,1,1) lds=%d" % (576, K2_NS*24576))
            if OPT('TF'):
                out.append("; @launch kernel=tf_kernel grid=(256,1,1) block=(256,1,1) lds=66048")
            else:
                if not OPT('K2T1', 1):
                    out.append("; @launch kernel=t1_kernel grid=(256,1,1) block=(%d,1,1) lds=0" % (192 if OPT('T1_PF', 1) else 128))
                if OPT('T4', 1):
                    out.append("; @launch kernel=t4_kernel grid=(240,1,1) block=(256,1,1) lds=123392")
                else:
                    out.append("; @launch kernel=t2_kernel grid=(224,1,1) block=(256,1,1) lds=25600")
                    out.append("; @launch kernel=t3_kernel grid=(64,1,1) block=(256,1,1) lds=32768")
            break
        out.append(ln)
    out.append('.amdgcn_target "amdgcn-amd-amdhsa--gfx950"')
    out.append(".text")
    gen_k1(); gen_k2()
    if OPT('TF'): gen_tf()
    elif OPT('T4', 1):
        if not OPT('K2T1', 1): gen_t1()
        gen_t4()
    else: gen_t1(); gen_t2(); gen_t3()
    out += L
    out.append('.section .rodata,"a"')
    out += KD
    dst = sys.argv[1] if len(sys.argv) > 1 else "cdna_kernels/" + NAME + ".s"
    open(dst, "w").write("\n".join(out) + "\n")

main()
```

```python
import sys, os
OPT = lambda k, d=0: int(os.environ.get(k, d))

NAME = "sequential_preLN__spectral_fnet__moe_arch_mod__prompt"
L = []
def e(s=""):
    L.append(s)
def lab(s):
    L.append(s + ":")

KA_X, KA_WSRE, KA_WSIM, KA_WDRE, KA_WDIM = 0, 8, 16, 24, 32
KA_WR, KA_WG, KA_WU, KA_WDN, KA_OUT, KA_DBG, KA_WS = 48, 56, 64, 72, 80, 88, 96
WS_YB = 0
WS_Y = 4 << 20
WS_KEY = 8 << 20
WS_STAT = (8 << 20) + 8192
WS_GU = (8 << 20) + 65536
WS_IDX = (8 << 20) + 131072
WS_FLAG = (8 << 20) + 196608
WS_FA = WS_FLAG + 4096
WS_WDB = 10 << 20
WS_SIZE = 268435456

KIDX = [0]
NV = {"k1_kernel": 160, "k2_kernel": 160, "t1_kernel": 148, "t2_kernel": 192, "t3_kernel": 192, "tf_kernel": 184, "t4_kernel": 252, "f_kernel": 160}
FUSE = OPT("FUSE", 1)
CUR = [0]
def kernel_begin(name):
    CUR[0] = NV[name]
    e(f".globl {name}")
    e(".p2align 8")
    e(f".type {name},@function")
    lab(name)
    if OPT('DIAG'):
        e("  s_memrealtime s[72:73]")
        for i in range(1, 7):
            e(f"  s_mov_b64 s[{72+2*i}:{73+2*i}], 0")
        e(f"  s_load_dwordx2 s[94:95], s[0:1], {KA_WS}")
        e(f"  v_mov_b32 v{CUR[0]}, v0")

def stamp(i):
    if OPT('DIAG'):
        e(f"  s_memrealtime s[{72+2*i}:{73+2*i}]")

def kernel_end():
    if OPT('DIAG'):
        e("  s_waitcnt vmcnt(0) lgkmcnt(0)")
        e("  s_memrealtime s[86:87]")
        e("  s_mov_b32 s88, s94")
        e("  s_mov_b32 s89, s95")
        e("  s_mov_b32 s90, 0x4000000")
        e("  s_mov_b32 s91, 0x00020000")
        e("  s_waitcnt lgkmcnt(0)")
        e("  s_mov_b64 exec, 1")
        for i in range(16):
            e(f"  v_mov_b32 v{i}, s{72+i}")
        e(f"  v_lshrrev_b32 v{CUR[0]+1}, 6, v{CUR[0]}")
        e(f"  v_lshlrev_b32 v{CUR[0]+1}, 6, v{CUR[0]+1}")
        e("  s_lshl_b32 s92, s2, 10")
        e(f"  s_add_u32 s92, s92, {(16 << 20) + KIDX[0] * 0x100000}")
        for i in range(4):
            e(f"  buffer_store_dwordx4 v[{4*i}:{3+4*i}], v{CUR[0]+1}, s[88:91], s92 offen offset:{16*i}")
    KIDX[0] += 1

KD = []
def kernel_desc(name, vgpr, sgpr=102):
    assert vgpr == CUR[0]
    if OPT('DIAG'): vgpr += 2
    acc = (vgpr + 3) // 4 * 4
    KD.append(f""".p2align 6
.amdhsa_kernel {name}
  .amdhsa_next_free_vgpr {vgpr}
  .amdhsa_next_free_sgpr {sgpr}
  .amdhsa_accum_offset {acc}
  .amdhsa_group_segment_fixed_size 0
  .amdhsa_kernarg_size 104
  .amdhsa_user_sgpr_count 2
  .amdhsa_user_sgpr_kernarg_segment_ptr 1
  .amdhsa_system_sgpr_workgroup_id_x 1
.end_amdhsa_kernel""")

def srd(d, lo, hi, size):
    e(f"  s_mov_b32 s{d}, s{lo}")
    e(f"  s_mov_b32 s{d+1}, s{hi}")
    e(f"  s_mov_b32 s{d+2}, {size}")
    e(f"  s_mov_b32 s{d+3}, 0x00020000")

def vr(a, n):
    return f"v[{a}:{a+n-1}]"

def reduce8(v):
    e("  s_nop 1")
    e(f"  v_add_f32_dpp v{v}, v{v}, v{v} quad_perm:[1,0,3,2] row_mask:0xf bank_mask:0xf")
    e("  s_nop 1")
    e(f"  v_add_f32_dpp v{v}, v{v}, v{v} quad_perm:[2,3,0,1] row_mask:0xf bank_mask:0xf")
    e("  s_nop 1")
    e(f"  v_add_f32_dpp v{v}, v{v}, v{v} row_half_mirror row_mask:0xf bank_mask:0xf")

def reduce16(v):
    reduce8(v)
    e("  s_nop 1")
    e(f"  v_add_f32_dpp v{v}, v{v}, v{v} row_mirror row_mask:0xf bank_mask:0xf")

def helper_wave():
    srd(36, 34, 35, 1792*512*2)
    srd(40, 6, 7, 12 << 20)
    e("  v_lshlrev_b32 v2, 4, v0")
    e("  s_mul_i32 s44, s2, 7168")
    for q in range(7):
        e(f"  buffer_load_dwordx4 {vr(8+4*q,4)}, v2, s[36:39], s44 offen")
        e("  s_add_u32 s44, s44, 1024")
    e("  s_cmp_ge_u32 s2, 28")
    e("  s_cbranch_scc1 k2_nomark")
    for q in range(4):
        e(f"  v_mov_b32 v{4+q}, -1")
    e("  s_lshl_b32 s44, s2, 10")
    e(f"  s_add_u32 s44, s44, {WS_GU}")
    e("  buffer_store_dwordx4 v[4:7], v2, s[40:43], s44 offen")
    lab("k2_nomark")
    e("  v_mul_u32_u24 v3, 28672, v0")
    e("  s_mul_i32 s44, s2, 112")
    e(f"  s_add_u32 s44, s44, {WS_WDB}")
    e("  s_waitcnt vmcnt(0)")
    for q in range(7):
        e(f"  buffer_store_dwordx4 {vr(8+4*q,4)}, v3, s[40:43], s44 offen offset:{16*q}")
    e("  s_branch k2_done")

def get_epoch(tag):
    e("  v_mov_b32 v158, 0")
    e("  s_mov_b32 s69, 0")
    lab(f"ep_{tag}")
    e("  buffer_load_dword v159, v158, s[96:99], 0 offen sc1")
    e("  s_waitcnt vmcnt(0)")
    e("  v_readfirstlane_b32 s68, v159")
    e("  s_add_u32 s69, s69, 1")
    e(f"  s_cmp_gt_u32 s69, {1 << 22}")
    e(f"  s_cbranch_scc1 ep_{tag}_ok")
    e("  s_cmp_eq_u32 s68, 0")
    e(f"  s_cbranch_scc1 ep_{tag}")
    lab(f"ep_{tag}_ok")

def gen_k1():
    name = "f_kernel" if FUSE else "k1_kernel"
    kernel_begin(name)
    e("  s_cmp_ge_u32 s2, 256")
    e(f"  s_cbranch_scc1 {'k2_done' if FUSE else 'k1_done'}")
    e(f"  s_load_dwordx2 s[4:5], s[0:1], {KA_X}")
    e(f"  s_load_dwordx4 s[8:11], s[0:1], {KA_WDRE}")
    e(f"  s_load_dwordx2 s[6:7], s[0:1], {KA_WS}")
    if FUSE:
        e(f"  s_load_dwordx2 s[66:67], s[0:1], {KA_DBG}")
        e(f"  s_load_dwordx2 s[34:35], s[0:1], {KA_WDN}")
    e("  s_and_b32 s12, s2, 7")
    e("  s_lshr_b32 s13, s2, 3")
    e("  s_and_b32 s14, s13, 3")
    e("  s_lshl_b32 s12, s12, 2")
    e("  s_add_u32 s12, s12, s14")
    e("  s_lshr_b32 s13, s13, 2")
    e("  v_lshrrev_b32 v1, 6, v0")
    e("  v_and_b32 v0, 63, v0")
    e("  v_readfirstlane_b32 s15, v1")
    e("  v_lshrrev_b32 v2, 3, v0")
    e("  v_and_b32 v3, 7, v0")
    if OPT('K1_PF', 0) or OPT('K1_PFEND', 0):
        e(f"  s_load_dwordx4 s[40:43], s[0:1], {KA_WSRE}")
    e("  s_waitcnt lgkmcnt(0)")
    if OPT('K1_PF', 0):
        e("  s_cmp_lg_u32 s15, 8")
        e("  s_cbranch_scc1 k1_main")
        e("  s_and_b32 s44, s2, 7")
        e("  s_cmp_lt_u32 s44, 4")
        e("  s_cselect_b32 s48, s40, s42")
        e("  s_cselect_b32 s49, s41, s43")
        e(f"  s_mov_b32 s50, {2048*2048*2}")
        e("  s_mov_b32 s51, 0x00020000")
        e("  s_and_b32 s44, s44, 3")
        e("  s_lshl_b32 s44, s44, 21")
        e("  s_lshr_b32 s45, s2, 3")
        e("  s_lshl_b32 s45, s45, 16")
        e("  s_add_u32 s44, s44, s45")
        e("  v_lshlrev_b32 v1, 4, v0")
        e("  s_cmp_lt_u32 s13, 4")
        e("  s_cselect_b32 s56, s8, s10")
        e("  s_cselect_b32 s57, s9, s11")
        e(f"  s_mov_b32 s58, {512*512*2}")
        e("  s_mov_b32 s59, 0x00020000")
        e("  s_and_b32 s46, s13, 3")
        e("  s_lshl_b32 s46, s46, 17")
        for q in range(OPT('K1_CAN', 0)):
            e(f"  buffer_load_dwordx4 v[8:11], v1, s[56:59], s46 offen offset:{q*1024}")
            e("  s_waitcnt vmcnt(0)")
        for q in range(64):
            e(f"  buffer_load_dwordx4 {vr(8+4*(q%32),4)}, v1, s[48:51], s44 offen")
            e("  s_add_u32 s44, s44, 1024")
        e("  s_branch k1_done")
        lab("k1_main")
    if FUSE:
        srd(96, 66, 67, 256)
        e("  s_cmp_lg_u32 s15, 8")
        e("  s_cbranch_scc1 f_main")
        e("  s_cmp_lg_u32 s2, 0")
        e("  s_cbranch_scc1 f_noepoch")
        e("  s_memrealtime s[40:41]")
        e("  s_waitcnt lgkmcnt(0)")
        e("  s_or_b32 s40, s40, 1")
        e("  v_mov_b32 v4, s40")
        e("  v_mov_b32 v5, 0")
        e("  s_mov_b64 s[42:43], exec")
        e("  s_mov_b64 exec, 1")
        e("  buffer_store_dword v4, v5, s[96:99], 0 offen sc1")
        e("  s_mov_b64 exec, s[42:43]")
        lab("f_noepoch")
        helper_wave()
        lab("f_main")
    srd(16, 4, 5, 2048*512*2)
    e("  s_cmp_lt_u32 s13, 4")
    e("  s_cselect_b32 s20, s8, s10")
    e("  s_cselect_b32 s21, s9, s11")
    e(f"  s_mov_b32 s22, {512*512*2}")
    e("  s_mov_b32 s23, 0x00020000")
    srd(24, 6, 7, 9 << 20)
    if not FUSE:
        e("  s_or_b32 s46, s2, s15")
        e("  s_cmp_lg_u32 s46, 0")
        e("  s_cbranch_scc1 k1_nozero")
        for q in range(4):
            e(f"  v_mov_b32 v{4+q}, 0")
        e("  v_lshlrev_b32 v8, 4, v0")
        e(f"  s_mov_b32 s46, {WS_FLAG}")
        e("  buffer_store_dwordx4 v[4:7], v8, s[24:27], s46 offen")
        lab("k1_nozero")
    e("  s_lshl_b32 s28, s12, 6")
    e("  s_lshl_b32 s29, s15, 3")
    e("  s_add_u32 s28, s28, s29")
    e("  v_add_u32 v4, s28, v2")
    e("  v_lshlrev_b32 v4, 10, v4")
    e("  v_lshl_add_u32 v4, v3, 4, v4")
    X = 32
    for j in range(8):
        e(f"  buffer_load_dwordx4 {vr(X+4*j,4)}, v4, s[16:19], 0 offen offset:{128*j}")
    e("  s_and_b32 s30, s13, 3")
    e("  s_lshl_b32 s30, s30, 7")
    for ii in range(2):
        e(f"  s_lshl_b32 s31, s15, 4")
        e(f"  s_add_u32 s31, s31, {8*ii}")
        e(f"  v_add_u32 v7, s31, v2")
        e(f"  v_lshrrev_b32 v8, 1, v7")
        e(f"  v_and_b32 v8, 7, v8")
        e(f"  v_xor_b32 v8, v8, v3")
        e(f"  v_add_u32 v7, s30, v7")
        e(f"  v_lshlrev_b32 v7, 10, v7")
        e(f"  v_lshl_add_u32 v{5+ii}, v8, 4, v7")
    e("  s_lshl_b32 s32, s15, 11")
    def wdma(kb):
        slot = kb % 4
        e(f"  s_mov_b32 s33, {128*kb}")
        for ii in range(2):
            e(f"  s_add_u32 m0, s32, {slot*16384 + ii*1024}")
            e("  s_nop 0")
            e(f"  buffer_load_dwordx4 v{5+ii}, s[20:23], s33 offen lds")
    for kb in range(4):
        wdma(kb)
    e("  s_mov_b32 s34, 0x3f803f80")
    for a in range(4):
        e(f"  v_mov_b32 v{8+a}, 0")
    stamp(1)
    e("  s_waitcnt vmcnt(8)")
    stamp(2)
    for i in range(32):
        e(f"  v_dot2_f32_bf16 v{8+i%4}, v{X+i}, s34, v{8+i%4}")
    e("  s_nop 3")
    e("  v_add_f32 v8, v8, v9")
    e("  v_add_f32 v10, v10, v11")
    e("  v_add_f32 v8, v8, v10")
    reduce8(8)
    e("  v_mul_f32 v8, 0x3b000000, v8")
    e("  v_cvt_pk_bf16_f32 v9, v8, v8")
    e("  v_lshlrev_b32 v9, 16, v9")
    e("  v_sub_f32 v10, 0, v9")
    e("  v_mov_b32 v11, v10")
    D = 64
    for a in range(4):
        e(f"  v_mov_b32 v{12+a}, 0")
    for i in range(32):
        e(f"  v_lshlrev_b32 v{D+2*i}, 16, v{X+i}")
        e(f"  v_and_b32 v{D+2*i+1}, 0xffff0000, v{X+i}")
        e(f"  v_pk_add_f32 {vr(D+2*i,2)}, {vr(D+2*i,2)}, v[10:11]")
        q = 12 + 2*(i % 2)
        e(f"  v_pk_fma_f32 {vr(q,2)}, {vr(D+2*i,2)}, {vr(D+2*i,2)}, {vr(q,2)}")
    e("  v_add_f32 v12, v12, v13")
    e("  v_add_f32 v14, v14, v15")
    e("  v_add_f32 v12, v12, v14")
    reduce8(12)
    e("  v_sub_f32 v13, v8, v9")
    e("  v_mul_f32 v13, v13, v13")
    e("  v_mul_f32 v12, 0x3b000000, v12")
    e("  v_sub_f32 v12, v12, v13")
    e("  v_max_f32 v12, 0, v12")
    e("  v_cvt_pk_bf16_f32 v12, v12, v12")
    e("  v_lshlrev_b32 v12, 16, v12")
    e("  v_add_f32 v12, 0x3727c5ac, v12")
    e("  v_cvt_pk_bf16_f32 v12, v12, v12")
    e("  v_lshlrev_b32 v12, 16, v12")
    e("  v_sqrt_f32 v12, v12")
    e("  s_nop 0")
    e("  v_cvt_pk_bf16_f32 v12, v12, v12")
    e("  v_lshlrev_b32 v12, 16, v12")
    e("  v_rcp_f32 v12, v12")
    e("  s_nop 0")
    e("  v_mov_b32 v13, v12")
    for i in range(32):
        e(f"  v_cvt_pk_bf16_f32 v{X+i}, v{D+2*i}, v{D+2*i+1}")
        e(f"  v_lshlrev_b32 v{D+2*i}, 16, v{X+i}")
        e(f"  v_and_b32 v{D+2*i+1}, 0xffff0000, v{X+i}")
        e(f"  v_pk_mul_f32 {vr(D+2*i,2)}, {vr(D+2*i,2)}, v[12:13]")
        e(f"  v_cvt_pk_bf16_f32 v{X+i}, v{D+2*i}, v{D+2*i+1}")
    e("  v_add_u32 v14, s29, v2")
    e("  v_lshrrev_b32 v15, 1, v14")
    e("  v_and_b32 v15, 7, v15")
    e("  v_xor_b32 v15, v15, v3")
    e("  v_lshlrev_b32 v14, 7, v14")
    e("  v_lshl_add_u32 v14, v15, 4, v14")
    e("  v_add_u32 v14, 0x10000, v14")
    for j in range(8):
        e(f"  ds_write_b128 v14, {vr(X+4*j,4)} offset:{8192*j}")
    stamp(3)
    e("  s_and_b32 s35, s15, 1")
    e("  s_lshr_b32 s36, s15, 1")
    e("  v_and_b32 v16, 31, v0")
    e("  v_lshrrev_b32 v17, 5, v0")
    def fragaddr(dst, sblk, base):
        e(f"  s_lshl_b32 s37, s{sblk}, 5")
        e(f"  v_add_u32 v18, s37, v16")
        e(f"  v_lshrrev_b32 v19, 1, v18")
        e(f"  v_and_b32 v19, 7, v19")
        e(f"  v_xor_b32 v19, v19, v17")
        e(f"  v_lshlrev_b32 v18, 7, v18")
        e(f"  v_lshl_add_u32 v{dst}, v19, 4, v18")
        if base:
            e(f"  v_add_u32 v{dst}, {base}, v{dst}")
        for kk in range(1, 4):
            e(f"  v_xor_b32 v{dst+kk}, {32*kk}, v{dst}")
    fragaddr(20, 35, 0x10000)
    fragaddr(24, 36, 0)
    ACC = 96
    for i in range(16):
        e(f"  v_mov_b32 v{ACC+i}, 0")
    FA, FB = 64, 80
    waits = [6, 4, 4, 4, 4, 4, 2, 0]
    for kb in range(8):
        e(f"  s_waitcnt vmcnt({waits[kb]}) lgkmcnt(0)")
        e("  s_barrier")
        if kb == 0: stamp(4)
        if 1 <= kb <= 4:
            wdma(kb + 3)
        slot = kb % 4
        for kk in range(4):
            e(f"  ds_read_b128 {vr(FA+4*kk,4)}, v{20+kk} offset:{8192*kb}")
            e(f"  ds_read_b128 {vr(FB+4*kk,4)}, v{24+kk} offset:{16384*slot}")
        for kk in range(4):
            e(f"  s_waitcnt lgkmcnt({6-2*kk})")
            e(f"  v_mfma_f32_32x32x16_bf16 {vr(ACC,16)}, {vr(FA+4*kk,4)}, {vr(FB+4*kk,4)}, {vr(ACC,16)}")
    stamp(5)
    e("  s_lshl_b32 s37, s13, 1")
    e("  s_lshr_b32 s38, s36, 1")
    e("  s_add_u32 s37, s37, s38")
    e("  s_lshl_b32 s37, s37, 5")
    e("  s_add_u32 s37, s37, s12")
    e("  s_lshl_b32 s37, s37, 13")
    e("  s_and_b32 s38, s36, 1")
    e("  s_lshl_b32 s38, s38, 5")
    e("  v_add_u32 v18, s38, v16")
    e("  v_lshrrev_b32 v19, 1, v18")
    e("  v_and_b32 v19, 7, v19")
    e("  s_lshl_b32 s38, s35, 2")
    e("  v_add_u32 v29, s38, v17")
    e("  v_xor_b32 v29, v29, v19")
    e("  v_lshlrev_b32 v18, 7, v18")
    e("  v_lshl_add_u32 v30, v29, 4, v18")
    e("  v_xor_b32 v31, 32, v30")
    e("  s_nop 7")
    P = 112
    for g in range(4):
        e(f"  v_cvt_pk_bf16_f32 v{P+2*g}, v{ACC+4*g}, v{ACC+4*g+1}")
        e(f"  v_cvt_pk_bf16_f32 v{P+2*g+1}, v{ACC+4*g+2}, v{ACC+4*g+3}")
    e("  s_nop 1")
    for p in range(2):
        e(f"  v_permlane32_swap_b32 v{P+4*p}, v{P+4*p+2}")
        e(f"  v_permlane32_swap_b32 v{P+4*p+1}, v{P+4*p+3}")
    if not FUSE:
        e(f"  buffer_store_dwordx4 {vr(P,4)}, v30, s[24:27], s37 offen")
        e(f"  buffer_store_dwordx4 {vr(P+4,4)}, v31, s[24:27], s37 offen")
        lab("k1_done")
        kernel_end()
        e("  s_endpgm")
        kernel_desc(name, 160)
        return
    TR = 131072
    e(f"  s_load_dwordx4 s[8:11], s[0:1], {KA_WSRE}")
    e("  s_lshr_b32 s38, s36, 1")
    e("  s_lshl_b32 s38, s38, 13")
    e(f"  s_add_u32 s38, s38, {TR}")
    e("  v_add_u32 v30, s38, v30")
    e("  v_add_u32 v31, s38, v31")
    e(f"  ds_write_b128 v30, {vr(P,4)}")
    e(f"  ds_write_b128 v31, {vr(P+4,4)}")
    e("  v_lshlrev_b32 v29, 4, v0")
    e("  s_lshl_b32 s38, s15, 11")
    e(f"  s_add_u32 s39, s38, {TR}")
    e("  v_add_u32 v28, s39, v29")
    e("  s_waitcnt lgkmcnt(0)")
    e("  s_barrier")
    e("  ds_read_b128 v[64:67], v28")
    e("  ds_read_b128 v[68:71], v28 offset:1024")
    e("  s_lshl_b32 s37, s13, 1")
    e("  s_lshr_b32 s39, s15, 2")
    e("  s_add_u32 s37, s37, s39")
    e("  s_lshl_b32 s37, s37, 5")
    e("  s_add_u32 s37, s37, s12")
    e("  s_lshl_b32 s37, s37, 13")
    e("  s_and_b32 s39, s15, 3")
    e("  s_lshl_b32 s39, s39, 11")
    e("  s_add_u32 s37, s37, s39")
    e("  s_waitcnt lgkmcnt(1)")
    e("  buffer_store_dwordx4 v[64:67], v29, s[24:27], s37 offen sc1")
    e("  s_waitcnt lgkmcnt(0)")
    e("  buffer_store_dwordx4 v[68:71], v29, s[24:27], s37 offen offset:1024 sc1")
    e("  s_lshl_b32 s70, s13, 5")
    e("  s_add_u32 s70, s70, s12")
    e("  s_lshl_b32 s70, s70, 2")
    e(f"  s_add_u32 s70, s70, {WS_FA}")

def k2_epilogue_plain(ACC):
    e("  s_lshl_b32 s24, s14, 21")
    e(f"  s_add_u32 s24, s24, {WS_Y}")
    e("  s_lshl_b32 s30, s13, 7")
    e("  s_add_u32 s24, s24, s30")
    e("  s_lshl_b32 s30, s12, 7")
    e("  s_lshl_b32 s31, s15, 5")
    e("  s_add_u32 s30, s30, s31")
    e("  v_add_u32 v18, s30, v16")
    e("  v_lshlrev_b32 v18, 10, v18")
    e("  v_lshl_add_u32 v18, v17, 4, v18")
    e("  s_nop 7")
    P = 64
    for g in range(8):
        e(f"  v_cvt_pk_bf16_f32 v{P+2*g}, v{ACC+4*g}, v{ACC+4*g+1}")
        e(f"  v_cvt_pk_bf16_f32 v{P+2*g+1}, v{ACC+4*g+2}, v{ACC+4*g+3}")
    e("  s_nop 1")
    for p in range(4):
        e(f"  v_permlane32_swap_b32 v{P+4*p}, v{P+4*p+2}")
        e(f"  v_permlane32_swap_b32 v{P+4*p+1}, v{P+4*p+3}")
    for p in range(4):
        e(f"  buffer_store_dwordx4 {vr(P+4*p,4)}, v18, s[20:23], s24 offen offset:{32*p}")

ROW_O = 48
def reduce32(v, t):
    reduce16(v)
    e("  s_nop 1")
    e(f"  ds_swizzle_b32 v{t}, v{v} offset:0x401F")
    e("  s_waitcnt lgkmcnt(0)")
    e(f"  v_add_f32 v{v}, v{v}, v{t}")

def rowmac32_pre():
    XX, WR = 48, 64
    e("  v_lshlrev_b32 v3, 10, v1")
    e("  v_lshl_add_u32 v3, v2, 4, v3")
    e("  v_lshlrev_b32 v4, 4, v2")
    for j in range(2):
        e(f"  buffer_load_dwordx4 {vr(XX+4*j,4)}, v3, s[20:23], 0 offen offset:{512*j}")
        e(f"  buffer_load_dwordx4 {vr(WR+4*j,4)}, v4, s[28:31], 0 offen offset:{512*j}")

def rowmac32():
    YR, YI, XX, WR, H, T, D = 16, 32, 48, 64, 80, 112, 116
    O = ROW_O
    e(f"  s_mov_b32 s52, {WS_Y}")
    e(f"  s_mov_b32 s53, {WS_Y + (2<<20)}")
    for j in range(2):
        e(f"  buffer_load_dwordx4 {vr(YR+4*j,4)}, v3, s[24:27], s52 offen offset:{512*j} sc1")
        e(f"  buffer_load_dwordx4 {vr(YI+4*j,4)}, v3, s[24:27], s53 offen offset:{512*j} sc1")
    e("  v_mov_b32 v14, 0")
    e("  v_mov_b32 v15, 0")
    for j in range(2):
        e(f"  s_waitcnt vmcnt({2*(1-j)})")
        for q in range(4):
            i = 4*j + q
            e(f"  v_lshlrev_b32 v{T}, 16, v{YR+i}")
            e(f"  v_and_b32 v{T+1}, 0xffff0000, v{YR+i}")
            e(f"  v_lshlrev_b32 v{T+2}, 16, v{YI+i}")
            e(f"  v_and_b32 v{T+3}, 0xffff0000, v{YI+i}")
            e(f"  v_pk_add_f32 {vr(T,2)}, {vr(T,2)}, {vr(T+2,2)} neg_lo:[0,1] neg_hi:[0,1]")
            e(f"  v_cvt_pk_bf16_f32 v{T}, v{T}, v{T+1}")
            e(f"  v_and_b32 v{T+1}, 0xffff0000, v{T}")
            e(f"  v_lshlrev_b32 v{T}, 16, v{T}")
            e(f"  v_lshlrev_b32 v{T+2}, 16, v{XX+i}")
            e(f"  v_and_b32 v{T+3}, 0xffff0000, v{XX+i}")
            e(f"  v_pk_add_f32 {vr(T,2)}, {vr(T,2)}, {vr(T+2,2)}")
            e(f"  v_cvt_pk_bf16_f32 v{T}, v{T}, v{T+1}")
            e(f"  v_lshlrev_b32 v{H+2*i}, 16, v{T}")
            e(f"  v_and_b32 v{H+2*i+1}, 0xffff0000, v{T}")
            e(f"  v_pk_add_f32 v[14:15], v[14:15], {vr(H+2*i,2)}")
    e("  v_add_f32 v5, v14, v15")
    reduce32(5, 13)
    e("  v_mul_f32 v5, 0x3b000000, v5")
    e("  v_cvt_pk_bf16_f32 v6, v5, v5")
    e("  v_lshlrev_b32 v6, 16, v6")
    e("  v_sub_f32 v8, 0, v6")
    e("  v_mov_b32 v9, v8")
    e("  v_mov_b32 v10, 0")
    e("  v_mov_b32 v11, 0")
    for i in range(8):
        e(f"  v_pk_add_f32 {vr(D+2*i,2)}, {vr(H+2*i,2)}, v[8:9]")
        e(f"  v_pk_fma_f32 v[10:11], {vr(D+2*i,2)}, {vr(D+2*i,2)}, v[10:11]")
    e("  v_add_f32 v10, v10, v11")
    reduce32(10, 13)
    e("  v_sub_f32 v11, v5, v6")
    e("  v_mul_f32 v11, v11, v11")
    e("  v_mul_f32 v10, 0x3b000000, v10")
    e("  v_sub_f32 v10, v10, v11")
    e("  v_max_f32 v10, 0, v10")
    e("  v_cvt_pk_bf16_f32 v10, v10, v10")
    e("  v_lshlrev_b32 v10, 16, v10")
    e("  v_add_f32 v10, 0x3727c5ac, v10")
    e("  v_cvt_pk_bf16_f32 v10, v10, v10")
    e("  v_lshlrev_b32 v10, 16, v10")
    e("  v_sqrt_f32 v10, v10")
    e("  s_nop 0")
    e("  v_cvt_pk_bf16_f32 v10, v10, v10")
    e("  v_lshlrev_b32 v10, 16, v10")
    e("  v_rcp_f32 v10, v10")
    e("  s_nop 0")
    e("  v_mov_b32 v11, v10")
    e("  v_mov_b32 v12, 0")
    for i in range(8):
        e(f"  v_cvt_pk_bf16_f32 v{T}, v{D+2*i}, v{D+2*i+1}")
        e(f"  v_lshlrev_b32 v{D+2*i}, 16, v{T}")
        e(f"  v_and_b32 v{D+2*i+1}, 0xffff0000, v{T}")
        e(f"  v_pk_mul_f32 {vr(D+2*i,2)}, {vr(D+2*i,2)}, v[10:11]")
        e(f"  v_cvt_pk_bf16_f32 v{T}, v{D+2*i}, v{D+2*i+1}")
        e(f"  v_dot2_f32_bf16 v12, v{T}, v{WR+i}, v12")
        e(f"  v_lshlrev_b32 v{D+2*i}, 16, v{T}")
        e(f"  v_and_b32 v{D+2*i+1}, 0xffff0000, v{T}")
        e(f"  v_pk_add_f32 {vr(D+2*i,2)}, {vr(D+2*i,2)}, {vr(H+2*i,2)}")
        e(f"  v_cvt_pk_bf16_f32 v{O+i}, v{D+2*i}, v{D+2*i+1}")
    for j in range(2):
        e(f"  buffer_store_dwordx4 {vr(O+4*j,4)}, v3, s[44:47], 0 offen offset:{512*j}")
    e("  s_nop 3")
    reduce32(12, 13)
    e("  v_cvt_pk_bf16_f32 v12, v12, v12")
    e("  v_lshlrev_b32 v12, 16, v12")
    e("  v_ashrrev_i32 v13, 31, v12")
    e("  v_or_b32 v13, 0x80000000, v13")
    e("  v_xor_b32 v12, v12, v13")
    e("  v_and_b32 v12, 0xffff0000, v12")
    e("  v_sub_u32 v13, 0xffff, v1")
    e("  v_or_b32 v12, v12, v13")

def k2_epilogue_fused(ACC):
    TB = 49152
    e("  s_nop 7")
    P = 64
    for g in range(8):
        e(f"  v_cvt_pk_bf16_f32 v{P+2*g}, v{ACC+4*g}, v{ACC+4*g+1}")
        e(f"  v_cvt_pk_bf16_f32 v{P+2*g+1}, v{ACC+4*g+2}, v{ACC+4*g+3}")
    e("  s_mul_i32 s30, s15, 4608")
    e(f"  s_add_u32 s30, s30, {TB}")
    e("  v_mul_u32_u24 v18, 144, v16")
    e("  v_lshl_add_u32 v18, v17, 3, v18")
    e("  v_add_u32 v18, s30, v18")
    for g in range(8):
        e(f"  ds_write_b64 v18, {vr(P+2*g,2)} offset:{16*g}")
    e("  v_lshrrev_b32 v19, 3, v0")
    e("  v_and_b32 v22, 7, v0")
    e("  v_mul_u32_u24 v20, 144, v19")
    e("  v_lshl_add_u32 v20, v22, 4, v20")
    e("  v_add_u32 v20, s30, v20")
    e("  s_waitcnt lgkmcnt(0)")
    for q in range(4):
        e(f"  ds_read_b128 {vr(80+4*q,4)}, v20 offset:{8*144*q}")
    e("  s_lshl_b32 s24, s14, 21")
    e(f"  s_add_u32 s24, s24, {WS_Y}")
    e("  s_lshl_b32 s30, s13, 7")
    e("  s_add_u32 s24, s24, s30")
    e("  s_lshl_b32 s30, s12, 7")
    e("  s_lshl_b32 s31, s15, 5")
    e("  s_add_u32 s30, s30, s31")
    e("  v_add_u32 v21, s30, v19")
    e("  v_lshlrev_b32 v21, 10, v21")
    e("  v_lshl_add_u32 v21, v22, 4, v21")
    for q in range(4):
        e(f"  s_waitcnt lgkmcnt({3-q})")
        e(f"  buffer_store_dwordx4 {vr(80+4*q,4)}, v21, s[20:23], s24 offen sc1")
        if q < 3: e("  v_add_u32 v21, 0x2000, v21")
    e("  s_waitcnt vmcnt(0)")
    stamp(1)
    e("  s_barrier")
    stamp(2)
    e(f"  s_load_dwordx2 s[4:5], s[0:1], {KA_X}")
    e(f"  s_load_dwordx8 s[56:63], s[0:1], {KA_WR}")
    e(f"  s_load_dwordx2 s[64:65], s[0:1], {KA_OUT}")
    srd(24, 6, 7, 12 << 20)
    e("  s_lshl_b32 s48, s14, 3")
    e("  s_add_u32 s48, s48, s13")
    e("  s_cmp_lg_u32 s15, 0")
    e("  s_cbranch_scc1 k2_noflag")
    e("  s_lshl_b32 s49, s12, 6")
    e("  s_lshl_b32 s50, s48, 2")
    e("  s_add_u32 s49, s49, s50")
    e(f"  s_add_u32 s49, s49, {WS_FLAG}")
    e("  v_mov_b32 v4, s68" if FUSE else "  v_mov_b32 v4, 1")
    e("  v_mov_b32 v5, 0")
    e("  s_mov_b64 s[50:51], exec")
    e("  s_mov_b64 exec, 1")
    e("  buffer_store_dword v4, v5, s[24:27], s49 offen sc1")
    e("  s_mov_b64 exec, s[50:51]")
    lab("k2_noflag")
    e("  s_waitcnt lgkmcnt(0)")
    srd(20, 4, 5, 2 << 20)
    srd(28, 56, 57, 1024)
    srd(44, 64, 65, 2 << 20)
    e("  v_lshrrev_b32 v1, 5, v0")
    e("  v_and_b32 v2, 31, v0")
    e("  s_lshl_b32 s52, s12, 7")
    e("  s_lshl_b32 s53, s48, 3")
    e("  s_add_u32 s52, s52, s53")
    e("  s_lshl_b32 s53, s15, 1")
    e("  s_add_u32 s52, s52, s53")
    e("  v_add_u32 v1, s52, v1")
    rowmac32_pre()
    e("  v_and_b32 v7, 15, v0")
    e("  v_lshlrev_b32 v7, 2, v7")
    e("  s_lshl_b32 s49, s12, 6")
    e(f"  s_add_u32 s49, s49, {WS_FLAG}")
    e("  s_mov_b32 s53, 0")
    lab("k2_poll")
    e("  buffer_load_dword v4, v7, s[24:27], s49 offen sc1")
    e("  s_waitcnt vmcnt(0)")
    e("  v_cmp_ne_u32 s[54:55], s68, v4" if FUSE else "  v_cmp_eq_u32 s[54:55], 0, v4")
    e("  s_nop 3")
    e("  s_cmp_eq_u64 s[54:55], 0")
    e("  s_cbranch_scc1 k2_poll_ok")
    e("  s_add_u32 s53, s53, 1")
    e(f"  s_cmp_gt_u32 s53, {1 << 22}")
    e("  s_cbranch_scc1 k2_poll_ok")
    e("  s_branch k2_poll")
    lab("k2_poll_ok")
    stamp(3)
    rowmac32()
    stamp(4)
    e("  v_lshlrev_b32 v13, 2, v1")
    e("  v_lshlrev_b32 v14, 3, v1")
    e("  v_mov_b32 v7, v10")
    e("  v_cmp_eq_u32 vcc, 0, v2")
    e("  s_and_saveexec_b64 s[50:51], vcc")
    e(f"  s_mov_b32 s52, {WS_KEY}")
    e("  buffer_store_dword v12, v13, s[24:27], s52 offen")
    e(f"  s_mov_b32 s52, {WS_STAT}")
    e("  buffer_store_dwordx2 v[6:7], v14, s[24:27], s52 offen")
    e("  s_mov_b64 exec, s[50:51]")
    if OPT('K2_NOGU'): return
    e("  s_cmp_ge_u32 s15, 2")
    e("  s_cbranch_scc1 k2_done")
    e("  s_cmp_eq_u32 s15, 0")
    e("  s_cselect_b32 s40, s58, s60")
    e("  s_cselect_b32 s41, s59, s61")
    e(f"  s_mov_b32 s42, {512*1792*2}")
    e("  s_mov_b32 s43, 0x00020000")
    e("  s_and_b32 s52, s2, 7")
    e("  s_lshr_b32 s53, s2, 3")
    e("  v_min_u32 v1, 55, v0")
    e("  v_cmp_lt_u32 vcc, 27, v1")
    e("  s_nop 1")
    e("  v_cndmask_b32 v2, 0, 1, vcc")
    e("  v_mul_u32_u24 v3, 28, v2")
    e("  v_sub_u32 v3, v1, v3")
    e("  v_mul_u32_u24 v2, 3584, v2")
    e("  v_lshl_add_u32 v2, v3, 4, v2")
    e("  s_mul_i32 s54, s52, 448")
    e(f"  s_mul_i32 s55, s53, {16*3584}")
    e("  s_add_u32 s54, s54, s55")
    for q in range(8):
        e(f"  buffer_load_dwordx4 {vr(80+4*q,4)}, v2, s[40:43], s54 offen")
        e(f"  s_add_u32 s54, s54, {2*3584}")

K2_NS = OPT('K2_NS', 6)
def gen_k2():
    NS = K2_NS
    name = "f_kernel" if FUSE else "k2_kernel"
    YBASE = NS * 16384
    if not FUSE:
        kernel_begin(name)
        e("  s_cmp_ge_u32 s2, 256")
        e("  s_cbranch_scc1 k2_done")
        e(f"  s_load_dwordx4 s[8:11], s[0:1], {KA_WSRE}")
        e(f"  s_load_dwordx2 s[6:7], s[0:1], {KA_WS}")
        e(f"  s_load_dwordx2 s[34:35], s[0:1], {KA_WDN}")
    else:
        e("  s_mov_b32 s71, s15")
    e("  s_and_b32 s12, s2, 7")
    e("  s_lshr_b32 s13, s2, 3")
    e("  s_lshr_b32 s14, s12, 2")
    e("  s_and_b32 s12, s12, 3")
    e("  s_lshl_b32 s12, s12, 2")
    e("  s_lshr_b32 s15, s13, 3")
    e("  s_add_u32 s12, s12, s15")
    e("  s_and_b32 s13, s13, 7")
    if FUSE:
        e("  s_mov_b32 s15, s71")
    else:
        e("  v_lshrrev_b32 v1, 6, v0")
        e("  v_and_b32 v0, 63, v0")
        e("  v_readfirstlane_b32 s15, v1")
    e("  v_lshrrev_b32 v2, 3, v0")
    e("  v_and_b32 v3, 7, v0")
    e("  s_waitcnt lgkmcnt(0)")
    e("  s_cmp_eq_u32 s14, 0")
    e("  s_cselect_b32 s16, s8, s10")
    e("  s_cselect_b32 s17, s9, s11")
    e(f"  s_mov_b32 s18, {2048*2048*2}")
    e("  s_mov_b32 s19, 0x00020000")
    srd(20, 6, 7, 9 << 20)
    e("  s_cmp_lt_u32 s15, 4")
    e("  s_cbranch_scc1 k2_consumer")
    if not FUSE:
        e("  s_cmp_lt_u32 s15, 8")
        e("  s_cbranch_scc1 k2_loader")
    if not FUSE: helper_wave()
    lab("k2_loader")
    e("  s_sub_u32 s15, s15, 4")
    for ii in range(4):
        e(f"  s_lshl_b32 s24, s15, 5")
        e(f"  s_add_u32 s24, s24, {8*ii}")
        e(f"  v_add_u32 v10, s24, v2")
        e(f"  v_lshrrev_b32 v11, 1, v10")
        e(f"  v_and_b32 v11, 7, v11")
        e(f"  v_xor_b32 v11, v11, v3")
        e(f"  s_lshl_b32 s24, s12, 7")
        e(f"  v_add_u32 v10, s24, v10")
        e(f"  v_lshlrev_b32 v10, 12, v10")
        e(f"  v_lshl_add_u32 v{4+ii}, v11, 4, v10")
    e("  s_lshl_b32 s24, s15, 11")
    e("  v_lshlrev_b32 v8, 4, v0")
    e("  v_add_u32 v8, s24, v8")
    e("  v_add_u32 v9, 1024, v8")
    e("  s_mov_b32 s25, 0")
    e("  s_lshl_b32 s26, s14, 3")
    e("  s_add_u32 s26, s26, s13")
    e("  s_lshl_b32 s26, s26, 18")
    e("  s_lshl_b32 s27, s15, 12")
    e("  s_lshl_b32 s28, s15, 11")
    e(f"  s_add_u32 s28, s28, {YBASE}")
    YSC = " sc1" if FUSE else ""
    def dmaY(slot, so="s26"):
        for i in range(2):
            e(f"  s_add_u32 m0, s28, {slot*8192 + i*1024}")
            e("  s_nop 0")
            e(f"  buffer_load_dwordx4 v{8+i}, s[20:23], {so} offen{YSC} lds")
    def dmaW(slot):
        for i in range(4):
            e(f"  s_add_u32 m0, s27, {slot*16384 + i*1024}")
            e("  s_nop 0")
            e(f"  buffer_load_dwordx4 v{4+i}, s[16:19], s25 offen lds")
    def adv():
        e("  s_add_u32 s25, s25, 128")
        e("  s_and_b32 s25, s25, 4095")
        e("  s_lshl_b32 s29, s25, 6")
        e("  s_add_u32 s26, s33, s29")
    def dma(slot):
        dmaY(slot); dmaW(slot); adv()
    e("  s_mov_b32 s33, s26")
    e(f"  s_mul_i32 s25, s13, {128*OPT('K2_ROT', 4)}")
    e("  s_and_b32 s25, s25, 4095")
    e("  s_lshl_b32 s29, s25, 6")
    e("  s_add_u32 s26, s33, s29")
    if not FUSE:
        for st in range(NS):
            dma(st)
        e(f"  s_waitcnt vmcnt({6*(NS-1)})")
        e("  s_barrier")
        for ks in range(31):
            ahead = min(ks + NS - 1, 31) - (ks + 1)
            e(f"  s_waitcnt vmcnt({6*ahead})")
            e("  s_barrier")
            if ks + NS < 32:
                dma(ks % NS)
    else:
        e("  s_mov_b32 s30, s25")
        for st in range(NS):
            dmaW(st); adv()
        e(f"  s_waitcnt vmcnt({4*NS})")
        e("  s_barrier")
        get_epoch("ld")
        e("  s_lshl_b32 s31, s14, 2")
        e("  s_lshr_b32 s32, s13, 1")
        e("  s_add_u32 s31, s31, s32")
        e("  s_lshl_b32 s31, s31, 7")
        e(f"  s_add_u32 s31, s31, {WS_FA}")
        e("  v_and_b32 v10, 31, v0")
        e("  v_lshlrev_b32 v10, 2, v10")
        e("  s_mov_b32 s69, 0")
        lab("f_pollA")
        e("  buffer_load_dword v11, v10, s[20:23], s31 offen sc1")
        e("  s_waitcnt vmcnt(0)")
        e("  v_cmp_ne_u32 s[36:37], s68, v11")
        e("  s_nop 3")
        e("  s_cmp_eq_u64 s[36:37], 0")
        e("  s_cbranch_scc1 f_pollA_ok")
        e("  s_add_u32 s69, s69, 1")
        e(f"  s_cmp_gt_u32 s69, {1 << 22}")
        e("  s_cbranch_scc1 f_pollA_ok")
        e("  s_branch f_pollA")
        lab("f_pollA_ok")
        stamp(1)
        for st in range(NS):
            e("  s_lshl_b32 s29, s30, 6")
            e("  s_add_u32 s31, s33, s29")
            dmaY(st, "s31")
            e("  s_add_u32 s30, s30, 128")
            e("  s_and_b32 s30, s30, 4095")
        e(f"  s_waitcnt vmcnt({2*(NS-1)})")
        e("  s_barrier")
        for ks in range(31):
            if ks + 1 <= NS - 1:
                allowed = 2 * (NS - 1 - (ks + 1)) + 6 * ks
            else:
                allowed = 6 * (min(ks + NS - 1, 31) - (ks + 1))
            e(f"  s_waitcnt vmcnt({allowed})")
            e("  s_barrier")
            if ks + NS < 32:
                dma(ks % NS)
    e("  s_branch k2_done")
    lab("k2_consumer")
    if FUSE:
        get_epoch("co")
        e("  s_barrier")
        e("  s_cmp_lg_u32 s15, 0")
        e("  s_cbranch_scc1 f_noflagA")
        e("  v_mov_b32 v4, s68")
        e("  v_mov_b32 v5, 0")
        e("  s_mov_b64 s[36:37], exec")
        e("  s_mov_b64 exec, 1")
        e("  buffer_store_dword v4, v5, s[20:23], s70 offen sc1")
        e("  s_mov_b64 exec, s[36:37]")
        lab("f_noflagA")
    e("  v_and_b32 v16, 31, v0")
    e("  v_lshrrev_b32 v17, 5, v0")
    e("  s_lshl_b32 s24, s15, 5")
    e("  v_add_u32 v18, s24, v16")
    e("  v_lshrrev_b32 v19, 1, v18")
    e("  v_and_b32 v19, 7, v19")
    e("  v_xor_b32 v19, v19, v17")
    e("  v_lshlrev_b32 v18, 7, v18")
    e("  v_lshl_add_u32 v20, v19, 4, v18")
    for kk in range(1, 4):
        e(f"  v_xor_b32 v{20+kk}, {32*kk}, v20")
    for kk in range(4):
        e(f"  v_add_u32 v{28+kk}, 0x10000, v{20+kk}")
    e("  v_lshrrev_b32 v19, 1, v16")
    e("  v_and_b32 v19, 7, v19")
    e("  v_xor_b32 v19, v19, v17")
    e("  v_lshlrev_b32 v18, 7, v16")
    e("  v_lshl_add_u32 v24, v19, 4, v18")
    e(f"  v_add_u32 v24, {YBASE}, v24")
    for kk in range(1, 4):
        e(f"  v_xor_b32 v{24+kk}, {32*kk}, v24")
    ACC = 32
    for i in range(32):
        e(f"  v_mov_b32 v{ACC+i}, 0")
    def FW(st): return 64 + 48 * (st % 2)
    def FY(st): return 80 + 48 * (st % 2)
    def rd(st, kk):
        slot = st % NS
        wb = 20 if slot < 4 else 28
        e(f"  ds_read_b128 {vr(FW(st)+4*kk,4)}, v{wb+kk} offset:{16384*(slot%4)}")
        e(f"  ds_read_b128 {vr(FY(st)+8*kk,4)}, v{24+kk} offset:{8192*slot}")
        e(f"  ds_read_b128 {vr(FY(st)+8*kk+4,4)}, v{24+kk} offset:{8192*slot+4096}")
    e("  s_barrier")
    for kk in range(4):
        rd(0, kk)
    def mf(st, kk, half):
        e(f"  v_mfma_f32_32x32x16_bf16 {vr(ACC+16*half,16)}, {vr(FY(st)+8*kk+4*half,4)}, {vr(FW(st)+4*kk,4)}, {vr(ACC+16*half,16)}")
    for ks in range(32):
        more = ks + 1 < 32
        e("  s_waitcnt lgkmcnt(0)")
        if more and not OPT('K2_NOBAR'):
            e("  s_barrier")
        if OPT('K2_NOBAR') == 2: continue
        r = (lambda kk: rd(ks + 1, kk)) if more else (lambda kk: None)
        mf(ks, 0, 0); r(0); mf(ks, 0, 1); r(1)
        mf(ks, 1, 0); r(2); mf(ks, 1, 1); r(3)
        mf(ks, 2, 0); mf(ks, 2, 1)
        mf(ks, 3, 0); mf(ks, 3, 1)
    stamp(6)
    if not OPT('K2T1', 1):
        k2_epilogue_plain(ACC)
    else:
        k2_epilogue_fused(ACC)
    lab("k2_done")
    kernel_end()
    e("  s_endpgm")
    kernel_desc(name, 160)

def gen_t1():
    name = "t1_kernel"
    kernel_begin(name)
    e("  s_cmp_ge_u32 s2, 256")
    e("  s_cbranch_scc1 t1_done")
    e(f"  s_load_dwordx2 s[4:5], s[0:1], {KA_X}")
    e(f"  s_load_dwordx2 s[6:7], s[0:1], {KA_WS}")
    e(f"  s_load_dwordx2 s[8:9], s[0:1], {KA_WR}")
    e(f"  s_load_dwordx2 s[10:11], s[0:1], {KA_OUT}")
    if OPT('T1_PF', 1):
        e(f"  s_load_dwordx4 s[32:35], s[0:1], {KA_WG}")
        e("  v_lshrrev_b32 v1, 6, v0")
        e("  s_nop 0")
        e("  v_readfirstlane_b32 s3, v1")
        e("  s_cmp_lg_u32 s3, 2")
        e("  s_cbranch_scc1 t1_main")
        e("  s_waitcnt lgkmcnt(0)")
        srd(40, 32, 33, 512*1792*2)
        srd(44, 34, 35, 512*1792*2)
        e("  v_and_b32 v0, 63, v0")
        e("  s_and_b32 s52, s2, 7")
        e("  s_lshr_b32 s53, s2, 3")
        e("  v_min_u32 v1, 55, v0")
        e("  v_cmp_lt_u32 vcc, 27, v1")
        e("  v_cndmask_b32 v2, 0, 1, vcc")
        e("  v_mul_u32_u24 v3, 28, v2")
        e("  v_sub_u32 v3, v1, v3")
        e("  v_mul_u32_u24 v2, 3584, v2")
        e("  v_lshl_add_u32 v2, v3, 4, v2")
        e("  s_mul_i32 s54, s52, 448")
        e(f"  s_mul_i32 s55, s53, {16*3584}")
        e("  s_add_u32 s54, s54, s55")
        for q in range(8):
            e(f"  buffer_load_dwordx4 {vr(8+8*q,4)}, v2, s[40:43], s54 offen")
            e(f"  buffer_load_dwordx4 {vr(12+8*q,4)}, v2, s[44:47], s54 offen")
            e(f"  s_add_u32 s54, s54, {2*3584}")
        e("  s_branch t1_done")
        lab("t1_main")
    e("  v_lshrrev_b32 v1, 4, v0")
    e("  v_and_b32 v2, 15, v0")
    e("  s_lshl_b32 s3, s2, 3")
    e("  v_add_u32 v1, s3, v1")
    e("  v_lshlrev_b32 v3, 10, v1")
    e("  v_lshl_add_u32 v3, v2, 4, v3")
    e("  v_lshlrev_b32 v4, 4, v2")
    e("  s_waitcnt lgkmcnt(0)")
    srd(12, 4, 5, 2 << 20)
    srd(16, 6, 7, 9 << 20)
    srd(20, 8, 9, 1024)
    srd(24, 10, 11, 2 << 20)
    e(f"  s_mov_b32 s28, {WS_Y}")
    e(f"  s_mov_b32 s29, {WS_Y + (2<<20)}")
    YR, YI, XX, WR = 16, 32, 48, 64
    for j in range(4):
        e(f"  buffer_load_dwordx4 {vr(YR+4*j,4)}, v3, s[16:19], s28 offen offset:{256*j}")
        e(f"  buffer_load_dwordx4 {vr(YI+4*j,4)}, v3, s[16:19], s29 offen offset:{256*j}")
        e(f"  buffer_load_dwordx4 {vr(XX+4*j,4)}, v3, s[12:15], 0 offen offset:{256*j}")
    for j in range(4):
        e(f"  buffer_load_dwordx4 {vr(WR+4*j,4)}, v4, s[20:23], 0 offen offset:{256*j}")
    H = 80
    T = 112
    e("  v_mov_b32 v14, 0")
    e("  v_mov_b32 v15, 0")
    for j in range(4):
        e(f"  s_waitcnt vmcnt({4 + 3*(3-j)})")
        for q in range(4):
            i = 4*j + q
            e(f"  v_lshlrev_b32 v{T}, 16, v{YR+i}")
            e(f"  v_and_b32 v{T+1}, 0xffff0000, v{YR+i}")
            e(f"  v_lshlrev_b32 v{T+2}, 16, v{YI+i}")
            e(f"  v_and_b32 v{T+3}, 0xffff0000, v{YI+i}")
            e(f"  v_pk_add_f32 {vr(T,2)}, {vr(T,2)}, {vr(T+2,2)} neg_lo:[0,1] neg_hi:[0,1]")
            e(f"  v_cvt_pk_bf16_f32 v{T}, v{T}, v{T+1}")
            e(f"  v_and_b32 v{T+1}, 0xffff0000, v{T}")
            e(f"  v_lshlrev_b32 v{T}, 16, v{T}")
            e(f"  v_lshlrev_b32 v{T+2}, 16, v{XX+i}")
            e(f"  v_and_b32 v{T+3}, 0xffff0000, v{XX+i}")
            e(f"  v_pk_add_f32 {vr(T,2)}, {vr(T,2)}, {vr(T+2,2)}")
            e(f"  v_cvt_pk_bf16_f32 v{T}, v{T}, v{T+1}")
            e(f"  v_lshlrev_b32 v{H+2*i}, 16, v{T}")
            e(f"  v_and_b32 v{H+2*i+1}, 0xffff0000, v{T}")
            e(f"  v_pk_add_f32 v[14:15], v[14:15], {vr(H+2*i,2)}")
    e("  v_add_f32 v5, v14, v15")
    reduce16(5)
    e("  v_mul_f32 v5, 0x3b000000, v5")
    e("  v_cvt_pk_bf16_f32 v6, v5, v5")
    e("  v_lshlrev_b32 v6, 16, v6")
    e("  v_sub_f32 v8, 0, v6")
    e("  v_mov_b32 v9, v8")
    e("  v_mov_b32 v10, 0")
    e("  v_mov_b32 v11, 0")
    D = 116
    for i in range(16):
        e(f"  v_pk_add_f32 {vr(D+2*i,2)}, {vr(H+2*i,2)}, v[8:9]")
        e(f"  v_pk_fma_f32 v[10:11], {vr(D+2*i,2)}, {vr(D+2*i,2)}, v[10:11]")
    e("  v_add_f32 v10, v10, v11")
    reduce16(10)
    e("  v_sub_f32 v11, v5, v6")
    e("  v_mul_f32 v11, v11, v11")
    e("  v_mul_f32 v10, 0x3b000000, v10")
    e("  v_sub_f32 v10, v10, v11")
    e("  v_max_f32 v10, 0, v10")
    e("  v_cvt_pk_bf16_f32 v10, v10, v10")
    e("  v_lshlrev_b32 v10, 16, v10")
    e("  v_add_f32 v10, 0x3727c5ac, v10")
    e("  v_cvt_pk_bf16_f32 v10, v10, v10")
    e("  v_lshlrev_b32 v10, 16, v10")
    e("  v_sqrt_f32 v10, v10")
    e("  s_nop 0")
    e("  v_cvt_pk_bf16_f32 v10, v10, v10")
    e("  v_lshlrev_b32 v10, 16, v10")
    e("  v_rcp_f32 v10, v10")
    e("  s_nop 0")
    e("  v_mov_b32 v11, v10")
    e("  v_mov_b32 v12, 0")
    e("  s_waitcnt vmcnt(0)")
    O = 16
    for i in range(16):
        e(f"  v_cvt_pk_bf16_f32 v{T}, v{D+2*i}, v{D+2*i+1}")
        e(f"  v_lshlrev_b32 v{D+2*i}, 16, v{T}")
        e(f"  v_and_b32 v{D+2*i+1}, 0xffff0000, v{T}")
        e(f"  v_pk_mul_f32 {vr(D+2*i,2)}, {vr(D+2*i,2)}, v[10:11]")
        e(f"  v_cvt_pk_bf16_f32 v{T}, v{D+2*i}, v{D+2*i+1}")
        e(f"  v_dot2_f32_bf16 v12, v{T}, v{WR+i}, v12")
        e(f"  v_lshlrev_b32 v{D+2*i}, 16, v{T}")
        e(f"  v_and_b32 v{D+2*i+1}, 0xffff0000, v{T}")
        e(f"  v_pk_add_f32 {vr(D+2*i,2)}, {vr(D+2*i,2)}, {vr(H+2*i,2)}")
        e(f"  v_cvt_pk_bf16_f32 v{O+i}, v{D+2*i}, v{D+2*i+1}")
    for j in range(4):
        e(f"  buffer_store_dwordx4 {vr(O+4*j,4)}, v3, s[24:27], 0 offen offset:{256*j}")
    e("  s_nop 3")
    reduce16(12)
    e("  v_cvt_pk_bf16_f32 v12, v12, v12")
    e("  v_lshlrev_b32 v12, 16, v12")
    e("  v_ashrrev_i32 v13, 31, v12")
    e("  v_or_b32 v13, 0x80000000, v13")
    e("  v_xor_b32 v12, v12, v13")
    e("  v_and_b32 v12, 0xffff0000, v12")
    e("  v_sub_u32 v13, 0xffff, v1")
    e("  v_or_b32 v12, v12, v13")
    e("  v_cmp_eq_u32 vcc, 0, v2")
    e("  s_and_saveexec_b64 s[30:31], vcc")
    e("  v_lshlrev_b32 v13, 2, v1")
    e(f"  s_mov_b32 s28, {WS_KEY}")
    e("  buffer_store_dword v12, v13, s[16:19], s28 offen")
    e("  v_lshlrev_b32 v13, 3, v1")
    e("  v_mov_b32 v7, v10")
    e(f"  s_mov_b32 s28, {WS_STAT}")
    e("  buffer_store_dwordx2 v[6:7], v13, s[16:19], s28 offen")
    lab("t1_done")
    kernel_end()
    e("  s_endpgm")
    kernel_desc(name, 148)

def recompute(YR, YI, XX, nd, NEGM, RINV, HOUT, XNOUT, T):
    for i in range(nd):
        e(f"  v_lshlrev_b32 v{T}, 16, v{YR+i}")
        e(f"  v_and_b32 v{T+1}, 0xffff0000, v{YR+i}")
        e(f"  v_lshlrev_b32 v{T+2}, 16, v{YI+i}")
        e(f"  v_and_b32 v{T+3}, 0xffff0000, v{YI+i}")
        e(f"  v_pk_add_f32 {vr(T,2)}, {vr(T,2)}, {vr(T+2,2)} neg_lo:[0,1] neg_hi:[0,1]")
        e(f"  v_cvt_pk_bf16_f32 v{T}, v{T}, v{T+1}")
        e(f"  v_and_b32 v{T+1}, 0xffff0000, v{T}")
        e(f"  v_lshlrev_b32 v{T}, 16, v{T}")
        e(f"  v_lshlrev_b32 v{T+2}, 16, v{XX+i}")
        e(f"  v_and_b32 v{T+3}, 0xffff0000, v{XX+i}")
        e(f"  v_pk_add_f32 {vr(T,2)}, {vr(T,2)}, {vr(T+2,2)}")
        e(f"  v_cvt_pk_bf16_f32 v{T}, v{T}, v{T+1}")
        e(f"  v_lshlrev_b32 v{HOUT+2*i}, 16, v{T}")
        e(f"  v_and_b32 v{HOUT+2*i+1}, 0xffff0000, v{T}")
        e(f"  v_pk_add_f32 {vr(T,2)}, {vr(HOUT+2*i,2)}, {vr(NEGM,2)}")
        e(f"  v_cvt_pk_bf16_f32 v{T}, v{T}, v{T+1}")
        e(f"  v_and_b32 v{T+1}, 0xffff0000, v{T}")
        e(f"  v_lshlrev_b32 v{T}, 16, v{T}")
        e(f"  v_pk_mul_f32 {vr(T,2)}, {vr(T,2)}, {vr(RINV,2)}")
        e(f"  v_cvt_pk_bf16_f32 v{XNOUT+i}, v{T}, v{T+1}")

XS_STRIDE = 1040
def gen_t2():
    name = "t2_kernel"
    kernel_begin(name)
    LDS_G, LDS_U, LDS_XS, LDS_C = 0, 8192, 16384, 16384 + 8*XS_STRIDE
    e("  s_cmp_ge_u32 s2, 224")
    e("  s_cbranch_scc1 t2_done")
    e(f"  s_load_dwordx2 s[4:5], s[0:1], {KA_X}")
    e(f"  s_load_dwordx2 s[6:7], s[0:1], {KA_WS}")
    e(f"  s_load_dwordx4 s[8:11], s[0:1], {KA_WG}")
    e("  s_and_b32 s3, s2, 7")
    e("  s_mul_i32 s3, s3, 28")
    e("  s_lshr_b32 s12, s2, 3")
    e("  s_add_u32 s3, s3, s12")
    e("  v_mov_b32 v40, v0")
    e("  v_lshrrev_b32 v1, 6, v0")
    e("  v_and_b32 v0, 63, v0")
    e("  v_readfirstlane_b32 s13, v1")
    e("  s_waitcnt lgkmcnt(0)")
    srd(16, 4, 5, 2 << 20)
    srd(20, 6, 7, 9 << 20)
    srd(24, 8, 9, 512*1792*2)
    srd(28, 10, 11, 512*1792*2)
    e("  v_lshlrev_b32 v2, 5, v40")
    e(f"  s_mov_b32 s14, {WS_KEY}")
    e("  buffer_load_dwordx4 v[8:11], v2, s[20:23], s14 offen")
    e("  buffer_load_dwordx4 v[12:15], v2, s[20:23], s14 offen offset:16")
    e("  s_lshl_b32 s15, s3, 4")
    e("  s_movk_i32 s32, 3584")
    for ii in range(2):
        e(f"  s_lshl_b32 s33, s13, 7")
        e(f"  s_add_u32 s33, s33, {64*ii}")
        e(f"  v_add_u32 v3, s33, v0")
        e(f"  v_mul_lo_u32 v3, v3, s32")
        e(f"  s_lshl_b32 s34, s13, 11")
        e(f"  s_add_u32 m0, s34, {LDS_G + 1024*ii}")
        e("  s_nop 0")
        e(f"  buffer_load_dwordx4 v3, s[24:27], s15 offen lds")
        e(f"  s_add_u32 m0, s34, {LDS_U + 1024*ii}")
        e("  s_nop 0")
        e(f"  buffer_load_dwordx4 v3, s[28:31], s15 offen lds")
    stamp(1)
    e("  s_waitcnt vmcnt(4)")
    stamp(2)
    e("  v_mov_b32 v20, 0")
    for rnd in range(8):
        e("  v_max3_u32 v16, v8, v9, v10")
        e("  v_max3_u32 v17, v11, v12, v13")
        e("  v_max3_u32 v16, v16, v14, v15")
        e("  v_max_u32 v16, v16, v17")
        e("  s_nop 1")
        e("  v_max_u32_dpp v16, v16, v16 quad_perm:[1,0,3,2] row_mask:0xf bank_mask:0xf")
        e("  s_nop 1")
        e("  v_max_u32_dpp v16, v16, v16 quad_perm:[2,3,0,1] row_mask:0xf bank_mask:0xf")
        e("  s_nop 1")
        e("  v_max_u32_dpp v16, v16, v16 row_half_mirror row_mask:0xf bank_mask:0xf")
        e("  s_nop 1")
        e("  v_max_u32_dpp v16, v16, v16 row_mirror row_mask:0xf bank_mask:0xf")
        e("  s_nop 1")
        e("  v_readlane_b32 s36, v16, 0")
        e("  v_readlane_b32 s37, v16, 16")
        e("  v_readlane_b32 s38, v16, 32")
        e("  v_readlane_b32 s39, v16, 48")
        e("  s_max_u32 s36, s36, s37")
        e("  s_max_u32 s38, s38, s39")
        e("  s_max_u32 s36, s36, s38")
        e(f"  v_writelane_b32 v20, s36, {rnd}")
        if rnd < 7:
            for k in range(8):
                e(f"  v_cmp_ne_u32 vcc, s36, v{8+k}")
                e("  s_nop 1")
                e(f"  v_cndmask_b32 v{8+k}, 0, v{8+k}, vcc")
    e("  s_lshl_b32 s33, s13, 5")
    e(f"  s_add_u32 s33, s33, {LDS_C}")
    e("  v_lshlrev_b32 v3, 2, v0")
    e("  v_add_u32 v3, s33, v3")
    e("  v_cmp_gt_u32 vcc, 8, v0")
    e("  s_and_saveexec_b64 s[40:41], vcc")
    e("  ds_write_b32 v3, v20")
    e("  s_mov_b64 exec, s[40:41]")
    e("  s_waitcnt lgkmcnt(0)")
    e("  s_barrier")
    e("  v_and_b32 v3, 31, v0")
    e("  v_lshlrev_b32 v3, 2, v3")
    e(f"  ds_read_b32 v21, v3 offset:{LDS_C}")
    e("  v_mov_b32 v22, 0")
    e("  s_waitcnt lgkmcnt(0)")
    for i in range(32):
        e(f"  v_readlane_b32 s36, v21, {i}")
        e("  s_nop 1")
        e("  v_cmp_gt_u32 vcc, s36, v21")
        e("  s_nop 1")
        e("  v_addc_co_u32 v22, vcc, 0, v22, vcc")
    e("  v_cmp_gt_u32 vcc, 8, v22")
    e("  v_cmp_gt_u32 s[42:43], 32, v0")
    e("  s_and_b64 vcc, vcc, s[42:43]")
    e("  v_lshlrev_b32 v3, 2, v22")
    e("  s_and_saveexec_b64 s[40:41], vcc")
    e(f"  ds_write_b32 v3, v21 offset:{LDS_C+128}")
    e("  s_mov_b64 exec, s[40:41]")
    e("  s_waitcnt lgkmcnt(0)")
    e("  s_barrier")
    stamp(3)
    e("  v_lshrrev_b32 v4, 5, v40")
    e("  v_and_b32 v5, 31, v40")
    e("  v_lshlrev_b32 v3, 2, v4")
    e(f"  ds_read_b32 v6, v3 offset:{LDS_C+128}")
    e("  s_waitcnt lgkmcnt(0)")
    e("  s_cmp_lg_u32 s3, 0")
    e("  s_cbranch_scc1 t2_nopub")
    e("  v_cmp_eq_u32 vcc, 0, v5")
    e("  s_and_saveexec_b64 s[40:41], vcc")
    e(f"  s_mov_b32 s14, {WS_IDX}")
    e("  buffer_store_dword v6, v3, s[20:23], s14 offen")
    e("  s_mov_b64 exec, s[40:41]")
    lab("t2_nopub")
    e("  v_and_b32 v6, 0xffff, v6")
    e("  v_sub_u32 v6, 0xffff, v6")
    e("  v_lshlrev_b32 v7, 10, v6")
    e("  v_lshl_add_u32 v7, v5, 4, v7")
    e(f"  s_mov_b32 s14, {WS_Y}")
    e(f"  s_mov_b32 s15, {WS_Y + (2<<20)}")
    YR, YI, XX = 24, 32, 44
    for j in range(2):
        e(f"  buffer_load_dwordx4 {vr(YR+4*j,4)}, v7, s[20:23], s14 offen offset:{512*j}")
        e(f"  buffer_load_dwordx4 {vr(YI+4*j,4)}, v7, s[20:23], s15 offen offset:{512*j}")
        e(f"  buffer_load_dwordx4 {vr(XX+4*j,4)}, v7, s[16:19], 0 offen offset:{512*j}")
    e("  v_lshlrev_b32 v3, 3, v6")
    e(f"  s_mov_b32 s14, {WS_STAT}")
    e("  buffer_load_dwordx2 v[52:53], v3, s[20:23], s14 offen")
    e("  s_waitcnt vmcnt(0)")
    stamp(4)
    e("  v_sub_f32 v54, 0, v52")
    e("  v_mov_b32 v55, v54")
    e("  v_mov_b32 v52, v53")
    recompute(YR, YI, XX, 8, 54, 52, 64, 80, 56)
    e(f"  v_mul_u32_u24 v3, {XS_STRIDE}, v4")
    e("  v_lshl_add_u32 v3, v5, 4, v3")
    e(f"  ds_write_b128 v3, v[80:83] offset:{LDS_XS}")
    e(f"  ds_write_b128 v3, v[84:87] offset:{LDS_XS+512}")
    e("  s_waitcnt lgkmcnt(0)")
    e("  s_barrier")
    e("  s_cmp_lg_u32 s13, 0")
    e("  s_cbranch_scc1 t2_done")
    stamp(5)
    e("  v_and_b32 v3, 7, v0")
    e(f"  v_mul_u32_u24 v3, {XS_STRIDE}, v3")
    e("  v_lshrrev_b32 v4, 4, v0")
    e("  v_lshl_add_u32 v3, v4, 4, v3")
    e("  v_and_b32 v5, 15, v0")
    e("  v_lshrrev_b32 v5, 2, v5")
    e("  v_lshl_add_u32 v5, v4, 3, v5")
    e("  v_lshlrev_b32 v5, 4, v5")
    e("  v_and_b32 v6, 1, v0")
    e("  v_lshl_add_u32 v5, v6, 3, v5")
    e("  v_and_b32 v6, 2, v0")
    e("  v_lshl_add_u32 v5, v6, 12, v5")
    for i in range(4):
        e(f"  v_mov_b32 v{8+i}, 0")
    FA, FB = 64, 128
    for st in range(16):
        e(f"  ds_read_b128 {vr(FA+4*st,4)}, v3 offset:{LDS_XS + 64*st}")
        e(f"  ds_read_b64_tr_b16 {vr(FB+4*st,2)}, v5 offset:{512*st}")
        e(f"  ds_read_b64_tr_b16 {vr(FB+4*st+2,2)}, v5 offset:{512*st+64}")
        if st % 4 == 3:
            e("  s_waitcnt lgkmcnt(0)")
            for s2 in range(st-3, st+1):
                e(f"  v_mfma_f32_16x16x32_bf16 v[8:11], {vr(FA+4*s2,4)}, {vr(FB+4*s2,4)}, v[8:11]")
    e("  s_nop 15")
    for i in range(4):
        e(f"  v_cvt_pk_bf16_f32 v{8+i}, v{8+i}, v{8+i}")
        e(f"  v_lshlrev_b32 v{8+i}, 16, v{8+i}")
    e("  s_nop 1")
    for i in range(4):
        e(f"  v_mov_b32_dpp v{12+i}, v{8+i} row_ror:8 row_mask:0xf bank_mask:0xf")
    for i in range(4):
        e(f"  v_mul_f32 v16, 0xbfb8aa3b, v{8+i}")
        e("  v_exp_f32 v16, v16")
        e("  s_nop 0")
        e("  v_add_f32 v16, 1.0, v16")
        e("  v_rcp_f32 v16, v16")
        e("  s_nop 0")
        e(f"  v_mul_f32 v16, v{8+i}, v16")
        e("  v_cvt_pk_bf16_f32 v16, v16, v16")
        e("  v_lshlrev_b32 v16, 16, v16")
        e(f"  v_mul_f32 v16, v16, v{12+i}")
        e(f"  v_cvt_pk_bf16_f32 v{20+i}, v16, v16")
    stamp(6)
    e("  v_and_b32 v5, 15, v0")
    e("  v_cmp_gt_u32 vcc, 8, v5")
    e("  v_cmp_gt_u32 s[42:43], 32, v0")
    e("  s_and_b64 vcc, vcc, s[42:43]")
    e("  s_and_saveexec_b64 s[40:41], vcc")
    e("  v_lshlrev_b32 v4, 2, v4")
    e("  v_mul_u32_u24 v4, 3584, v4")
    e("  v_lshl_add_u32 v4, v5, 1, v4")
    e("  s_lshl_b32 s15, s3, 4")
    e(f"  s_add_u32 s15, s15, {WS_GU}")
    for i in range(4):
        e(f"  buffer_store_short v{20+i}, v4, s[20:23], s15 offen offset:{3584*i if 3584*i < 4096 else 0}") if False else None
    for i in range(4):
        e(f"  buffer_store_short v{20+i}, v4, s[20:23], s15 offen")
        if i < 3:
            e("  v_add_u32 v4, 3584, v4")
    lab("t2_done")
    kernel_end()
    e("  s_endpgm")
    kernel_desc(name, 192)

def gen_t3():
    name = "t3_kernel"
    kernel_begin(name)
    LDS_W, LDS_R = 0, 28672
    e("  s_cmp_ge_u32 s2, 64")
    e("  s_cbranch_scc1 t3_done")
    e(f"  s_load_dwordx2 s[4:5], s[0:1], {KA_X}")
    e(f"  s_load_dwordx2 s[6:7], s[0:1], {KA_WS}")
    e(f"  s_load_dwordx2 s[10:11], s[0:1], {KA_OUT}")
    e("  s_mov_b32 s3, s2")
    e("  v_lshrrev_b32 v1, 6, v0")
    e("  v_and_b32 v0, 63, v0")
    e("  v_readfirstlane_b32 s13, v1")
    e("  v_lshrrev_b32 v5, 4, v0")
    e("  s_waitcnt lgkmcnt(0)")
    srd(16, 4, 5, 2 << 20)
    srd(20, 6, 7, 12 << 20)
    srd(28, 10, 11, 2 << 20)
    e("  v_and_b32 v6, 1, v5")
    e("  v_lshlrev_b32 v6, 4, v6")
    e(f"  s_mov_b32 s14, {WS_IDX}")
    e("  buffer_load_dwordx4 v[24:27], v6, s[20:23], s14 offen")
    e("  s_lshl_b32 s15, s3, 4")
    e("  v_lshlrev_b32 v3, 4, v0")
    e("  s_mul_i32 s34, s13, 7168")
    e("  s_mul_i32 s33, s3, 28672")
    e("  s_add_u32 s33, s33, s34")
    e(f"  s_add_u32 s33, s33, {WS_WDB}")
    for i in range(7):
        e(f"  s_add_u32 m0, s34, {LDS_W + 1024*i}")
        e("  s_nop 0")
        e(f"  buffer_load_dwordx4 v3, s[20:23], s33 offen lds")
        e("  s_add_u32 s33, s33, 1024")
    e("  v_and_b32 v4, 7, v0")
    e("  v_mul_u32_u24 v4, 3584, v4")
    e("  v_lshl_add_u32 v4, v5, 4, v4")
    e("  s_mul_i32 s14, s13, 896")
    e(f"  s_add_u32 s14, s14, {WS_GU}")
    FA = 64
    for st in range(14):
        e(f"  buffer_load_dwordx4 {vr(FA+4*st,4)}, v4, s[20:23], s14 offen offset:{64*st}")
    for i in range(4):
        e(f"  v_mov_b32 v{28+i}, 0")
    e("  s_cmp_lg_u32 s13, 0")
    e("  s_cbranch_scc1 t3_noepi")
    e("  s_waitcnt vmcnt(21)")
    e("  v_and_b32 v6, 7, v0")
    e(f"  s_mov_b32 s36, {WS_Y}")
    e(f"  s_mov_b32 s37, {WS_Y + (2<<20)}")
    e(f"  s_mov_b32 s38, {WS_STAT}")
    for i in range(4):
        e(f"  v_and_b32 v{28+i}, 0xffff, v{24+i}")
        e(f"  v_sub_u32 v{28+i}, 0xffff, v{28+i}")
        e(f"  v_lshlrev_b32 v{32+i}, 3, v{28+i}")
        e(f"  v_lshlrev_b32 v{28+i}, 10, v{28+i}")
        e(f"  v_lshl_add_u32 v{28+i}, v6, 1, v{28+i}")
        e(f"  v_add_u32 v{28+i}, s15, v{28+i}")
        e(f"  buffer_load_ushort v{36+i}, v{28+i}, s[20:23], s36 offen")
        e(f"  buffer_load_ushort v{40+i}, v{28+i}, s[20:23], s37 offen")
        e(f"  buffer_load_ushort v{44+i}, v{28+i}, s[16:19], 0 offen")
        e(f"  buffer_load_dwordx2 {vr(48+2*i,2)}, v{32+i}, s[20:23], s38 offen")
    lab("t3_noepi")
    e("  v_and_b32 v7, 15, v0")
    e("  v_lshrrev_b32 v7, 2, v7")
    e("  v_lshl_add_u32 v7, v5, 3, v7")
    e("  v_lshlrev_b32 v7, 4, v7")
    e("  v_and_b32 v60, 1, v0")
    e("  v_lshl_add_u32 v7, v60, 3, v7")
    e("  v_add_u32 v7, s34, v7")
    for i in range(4):
        e(f"  v_mov_b32 v{8+i}, 0")
    stamp(1)
    e("  s_waitcnt vmcnt(0)")
    stamp(2)
    FB = 128
    for st in range(14):
        e(f"  ds_read_b64_tr_b16 {vr(FB+4*st,2)}, v7 offset:{512*st}")
        e(f"  ds_read_b64_tr_b16 {vr(FB+4*st+2,2)}, v7 offset:{512*st+64}")
    e("  s_waitcnt lgkmcnt(0)")
    for st in range(14):
        e(f"  v_mfma_f32_16x16x32_bf16 v[8:11], {vr(FA+4*st,4)}, {vr(FB+4*st,4)}, v[8:11]")
    e("  s_nop 15")
    stamp(3)
    e("  v_lshlrev_b32 v3, 4, v0")
    e("  s_lshl_b32 s33, s13, 10")
    e("  v_add_u32 v3, s33, v3")
    e(f"  ds_write_b128 v3, v[8:11] offset:{LDS_R}")
    e("  s_waitcnt lgkmcnt(0)")
    e("  s_barrier")
    e("  s_cmp_lg_u32 s13, 0")
    e("  s_cbranch_scc1 t3_done")
    e("  v_lshlrev_b32 v3, 4, v0")
    for w in range(1, 4):
        e(f"  ds_read_b128 {vr(12+4*(w-1),4)}, v3 offset:{LDS_R+1024*w}")
    stamp(4)
    e("  v_and_b32 v6, 15, v0")
    e("  v_cmp_gt_u32 vcc, 8, v6")
    e("  v_cmp_gt_u32 s[42:43], 32, v0")
    e("  s_and_b64 vcc, vcc, s[42:43]")
    e("  s_and_saveexec_b64 s[40:41], vcc")
    e("  s_waitcnt lgkmcnt(0)")
    for i in range(4):
        e(f"  v_add_f32 v{8+i}, v{8+i}, v{12+i}")
        e(f"  v_add_f32 v{16+i}, v{16+i}, v{20+i}")
        e(f"  v_add_f32 v{8+i}, v{8+i}, v{16+i}")
        e(f"  v_cvt_pk_bf16_f32 v{8+i}, v{8+i}, v{8+i}")
        e(f"  v_lshlrev_b32 v{8+i}, 16, v{8+i}")
        e(f"  v_and_b32 v60, 0xffff0000, v{24+i}")
        e("  v_ashrrev_i32 v61, 31, v60")
        e("  v_not_b32 v61, v61")
        e("  v_or_b32 v61, 0x80000000, v61")
        e("  v_xor_b32 v60, v60, v61")
        e("  v_and_b32 v60, 0xffff0000, v60")
        e("  v_mul_f32 v60, 0xbfb8aa3b, v60")
        e("  v_exp_f32 v60, v60")
        e("  s_nop 0")
        e("  v_add_f32 v60, 1.0, v60")
        e("  v_rcp_f32 v60, v60")
        e("  s_nop 0")
        e("  v_cvt_pk_bf16_f32 v60, v60, v60")
        e("  v_lshlrev_b32 v60, 16, v60")
        e(f"  v_mul_f32 v{8+i}, v{8+i}, v60")
        e(f"  v_cvt_pk_bf16_f32 v{8+i}, v{8+i}, v{8+i}")
        e(f"  v_lshlrev_b32 v{8+i}, 16, v{8+i}")
        e(f"  v_lshlrev_b32 v{36+i}, 16, v{36+i}")
        e(f"  v_lshlrev_b32 v{40+i}, 16, v{40+i}")
        e(f"  v_lshlrev_b32 v{44+i}, 16, v{44+i}")
        e(f"  v_sub_f32 v60, v{36+i}, v{40+i}")
        e("  v_cvt_pk_bf16_f32 v60, v60, v60")
        e("  v_lshlrev_b32 v60, 16, v60")
        e(f"  v_add_f32 v60, v{44+i}, v60")
        e("  v_cvt_pk_bf16_f32 v60, v60, v60")
        e("  v_lshlrev_b32 v60, 16, v60")
        e(f"  v_sub_f32 v61, v60, v{48+2*i}")
        e("  v_cvt_pk_bf16_f32 v61, v61, v61")
        e("  v_lshlrev_b32 v61, 16, v61")
        e(f"  v_mul_f32 v61, v61, v{49+2*i}")
        e("  v_cvt_pk_bf16_f32 v61, v61, v61")
        e("  v_lshlrev_b32 v61, 16, v61")
        e(f"  v_add_f32 v61, v61, v{8+i}")
        e("  v_cvt_pk_bf16_f32 v61, v61, v61")
        e("  v_lshlrev_b32 v61, 16, v61")
        e("  v_add_f32 v61, v60, v61")
        e("  v_cvt_pk_bf16_f32 v61, v61, v61")
        e(f"  buffer_store_short v61, v{28+i}, s[28:31], 0 offen")
    lab("t3_done")
    kernel_end()
    e("  s_endpgm")
    kernel_desc(name, 192)

SORT8 = [(0,1),(2,3),(4,5),(6,7),(0,2),(1,3),(4,6),(5,7),(1,2),(5,6),(0,4),(1,5),(2,6),(3,7),(2,4),(3,5),(1,2),(3,4),(5,6)]
def top8(keys, free, LDS_C):
    K = list(keys); F = list(free)
    for (i, j) in SORT8:
        hi, lo = F.pop(), F.pop()
        e(f"  v_max_u32 v{hi}, v{K[i]}, v{K[j]}")
        e(f"  v_min_u32 v{lo}, v{K[i]}, v{K[j]}")
        F.append(K[i]); F.append(K[j]); K[i] = hi; K[j] = lo
    t, coll = F.pop(), F.pop()
    e(f"  v_mov_b32 v{coll}, 0")
    pend = []
    def fill(n):
        for _ in range(n):
            if pend: e(pend.pop(0))
            else: e("  s_nop 0")
    for rnd in range(8):
        fill(2)
        e(f"  v_max_u32_dpp v{t}, v{K[0]}, v{K[0]} quad_perm:[1,0,3,2] row_mask:0xf bank_mask:0xf")
        fill(2)
        e(f"  v_max_u32_dpp v{t}, v{t}, v{t} quad_perm:[2,3,0,1] row_mask:0xf bank_mask:0xf")
        fill(2)
        e(f"  v_max_u32_dpp v{t}, v{t}, v{t} row_half_mirror row_mask:0xf bank_mask:0xf")
        fill(2)
        e(f"  v_max_u32_dpp v{t}, v{t}, v{t} row_mirror row_mask:0xf bank_mask:0xf")
        while pend: e(pend.pop(0))
        e("  s_nop 0")
        e(f"  v_readlane_b32 s36, v{t}, 0")
        e(f"  v_readlane_b32 s37, v{t}, 16")
        e(f"  v_readlane_b32 s38, v{t}, 32")
        e(f"  v_readlane_b32 s39, v{t}, 48")
        e("  s_max_u32 s36, s36, s37")
        e("  s_max_u32 s38, s38, s39")
        e("  s_max_u32 s36, s36, s38")
        e(f"  v_writelane_b32 v{coll}, s36, {rnd}")
        if rnd < 7:
            e(f"  v_cmp_eq_u32 vcc, s36, v{K[0]}")
            e("  s_nop 1")
            e(f"  v_cndmask_b32 v{K[0]}, v{K[0]}, v{K[1]}, vcc")
            for k in range(1, 7 - rnd):
                pend.append(f"  v_cndmask_b32 v{K[k]}, v{K[k]}, v{K[k+1]}, vcc")
    e("  s_lshl_b32 s33, s13, 5")
    e(f"  s_add_u32 s33, s33, {LDS_C}")
    e(f"  v_lshlrev_b32 v{t}, 2, v0")
    e(f"  v_add_u32 v{t}, s33, v{t}")
    e("  v_cmp_gt_u32 vcc, 8, v0")
    e("  s_and_saveexec_b64 s[40:41], vcc")
    e(f"  ds_write_b32 v{t}, v{coll}")
    e("  s_mov_b64 exec, s[40:41]")
    e("  s_waitcnt lgkmcnt(0)")
    e("  s_barrier")
    return t, coll

def gen_t4():
    name = "t4_kernel"
    kernel_begin(name)
    LDS_C, LDS_R, LDS_WD = 0, 256, 8704
    LDS_G, LDS_U, LDS_XS = 8704, 8704 + 8192, 8704 + 16384
    SPIN = 1 << 22
    e("  s_cmp_ge_u32 s2, 240")
    e("  s_cbranch_scc1 t4_done")
    e(f"  s_load_dwordx2 s[4:5], s[0:1], {KA_X}")
    e(f"  s_load_dwordx2 s[6:7], s[0:1], {KA_WS}")
    e(f"  s_load_dwordx4 s[8:11], s[0:1], {KA_WG}")
    e(f"  s_load_dwordx2 s[44:45], s[0:1], {KA_OUT}")
    e("  s_and_b32 s3, s2, 7")
    e("  s_mul_i32 s3, s3, 28")
    e("  s_lshr_b32 s12, s2, 3")
    e("  s_add_u32 s3, s3, s12")
    e("  v_mov_b32 v40, v0")
    e("  v_lshrrev_b32 v1, 6, v0")
    e("  v_and_b32 v0, 63, v0")
    e("  v_readfirstlane_b32 s13, v1")
    e("  s_waitcnt lgkmcnt(0)")
    srd(16, 4, 5, 2 << 20)
    srd(20, 6, 7, 12 << 20)
    srd(24, 8, 9, 512*1792*2)
    srd(28, 10, 11, 512*1792*2)
    srd(48, 44, 45, 2 << 20)
    e("  v_lshlrev_b32 v2, 5, v40")
    e(f"  s_mov_b32 s14, {WS_KEY}")
    e("  buffer_load_dwordx4 v[8:11], v2, s[20:23], s14 offen")
    e("  buffer_load_dwordx4 v[12:15], v2, s[20:23], s14 offen offset:16")
    e("  s_cmp_ge_u32 s2, 224")
    e("  s_cbranch_scc1 t4_dma2")
    e("  s_lshl_b32 s15, s3, 4")
    e("  s_movk_i32 s32, 3584")
    for ii in range(2):
        e(f"  s_lshl_b32 s33, s13, 7")
        e(f"  s_add_u32 s33, s33, {64*ii}")
        e(f"  v_add_u32 v3, s33, v0")
        e(f"  v_mul_lo_u32 v3, v3, s32")
        e(f"  s_lshl_b32 s34, s13, 11")
        e(f"  s_add_u32 m0, s34, {LDS_G + 1024*ii}")
        e("  s_nop 0")
        e(f"  buffer_load_dwordx4 v3, s[24:27], s15 offen lds")
        e(f"  s_add_u32 m0, s34, {LDS_U + 1024*ii}")
        e("  s_nop 0")
        e(f"  buffer_load_dwordx4 v3, s[28:31], s15 offen lds")
    e("  s_waitcnt vmcnt(4)")
    e("  s_branch t4_top")
    lab("t4_dma2")
    e("  s_sub_u32 s46, s2, 224")
    e("  v_lshlrev_b32 v3, 4, v0")
    e("  s_mul_i32 s34, s13, 7168")
    e(f"  s_mul_i32 s33, s46, {4*28672}")
    e("  s_add_u32 s33, s33, s34")
    e(f"  s_add_u32 s33, s33, {WS_WDB}")
    for dsl in range(4):
        for i in range(7):
            e(f"  s_add_u32 m0, s34, {LDS_WD + dsl*28672 + 1024*i}")
            e("  s_nop 0")
            e(f"  buffer_load_dwordx4 v3, s[20:23], s33 offen lds")
            e(f"  s_add_u32 s33, s33, {1024 if i < 6 else 28672 - 6*1024}")
    e("  s_waitcnt vmcnt(28)")
    lab("t4_top")
    stamp(1)
    t, coll = top8(range(8, 16), range(16, 24), LDS_C)
    e("  v_and_b32 v3, 31, v0")
    e("  v_lshlrev_b32 v3, 2, v3")
    e(f"  ds_read_b32 v24, v3 offset:{LDS_C}")
    e("  v_mov_b32 v4, 0")
    for q in range(8):
        e(f"  ds_read_b128 {vr(56+4*q,4)}, v4 offset:{LDS_C+16*q}")
    e("  v_mov_b32 v25, 0")
    e("  s_waitcnt lgkmcnt(0)")
    sp = [60, 62, 64, 66]
    for i in range(32 + 3):
        if i < 32:
            e(f"  v_cmp_gt_u32 s[{sp[i%4]}:{sp[i%4]+1}], v{56+i}, v24")
        if i >= 3:
            j = i - 3
            e(f"  v_addc_co_u32 v25, vcc, 0, v25, s[{sp[j%4]}:{sp[j%4]+1}]")
    e("  v_cmp_gt_u32 vcc, 8, v25")
    e("  v_cmp_gt_u32 s[42:43], 32, v0")
    e("  s_and_b64 vcc, vcc, s[42:43]")
    e("  v_lshlrev_b32 v3, 2, v25")
    e("  s_and_saveexec_b64 s[40:41], vcc")
    e(f"  ds_write_b32 v3, v24 offset:{LDS_C+128}")
    e("  s_mov_b64 exec, s[40:41]")
    e("  s_waitcnt lgkmcnt(0)")
    e("  s_barrier")
    stamp(2)
    e("  s_cmp_ge_u32 s2, 224")
    e("  s_cbranch_scc1 t4_f2")
    e("  v_lshrrev_b32 v4, 5, v40")
    e("  v_and_b32 v5, 31, v40")
    e("  v_lshlrev_b32 v3, 2, v4")
    e(f"  ds_read_b32 v6, v3 offset:{LDS_C+128}")
    e("  s_waitcnt lgkmcnt(0)")
    e("  v_and_b32 v6, 0xffff, v6")
    e("  v_sub_u32 v6, 0xffff, v6")
    e("  v_lshlrev_b32 v7, 10, v6")
    e("  v_lshl_add_u32 v7, v5, 4, v7")
    e(f"  s_mov_b32 s14, {WS_Y}")
    e(f"  s_mov_b32 s15, {WS_Y + (2<<20)}")
    YR, YI, XX = 24, 32, 44
    for j in range(2):
        e(f"  buffer_load_dwordx4 {vr(YR+4*j,4)}, v7, s[20:23], s14 offen offset:{512*j}")
        e(f"  buffer_load_dwordx4 {vr(YI+4*j,4)}, v7, s[20:23], s15 offen offset:{512*j}")
        e(f"  buffer_load_dwordx4 {vr(XX+4*j,4)}, v7, s[16:19], 0 offen offset:{512*j}")
    e("  v_lshlrev_b32 v3, 3, v6")
    e(f"  s_mov_b32 s14, {WS_STAT}")
    e("  buffer_load_dwordx2 v[52:53], v3, s[20:23], s14 offen")
    e("  s_waitcnt vmcnt(0)")
    stamp(3)
    e("  v_sub_f32 v54, 0, v52")
    e("  v_mov_b32 v55, v54")
    e("  v_mov_b32 v52, v53")
    recompute(YR, YI, XX, 8, 54, 52, 64, 80, 56)
    e(f"  v_mul_u32_u24 v3, {XS_STRIDE}, v4")
    e("  v_lshl_add_u32 v3, v5, 4, v3")
    e(f"  ds_write_b128 v3, v[80:83] offset:{LDS_XS}")
    e(f"  ds_write_b128 v3, v[84:87] offset:{LDS_XS+512}")
    e("  s_waitcnt lgkmcnt(0)")
    e("  s_barrier")
    e("  s_cmp_lg_u32 s13, 0")
    e("  s_cbranch_scc1 t4_done")
    e("  v_and_b32 v3, 7, v0")
    e(f"  v_mul_u32_u24 v3, {XS_STRIDE}, v3")
    e("  v_lshrrev_b32 v4, 4, v0")
    e("  v_lshl_add_u32 v3, v4, 4, v3")
    e("  v_and_b32 v5, 15, v0")
    e("  v_lshrrev_b32 v5, 2, v5")
    e("  v_lshl_add_u32 v5, v4, 3, v5")
    e("  v_lshlrev_b32 v5, 4, v5")
    e("  v_and_b32 v6, 1, v0")
    e("  v_lshl_add_u32 v5, v6, 3, v5")
    e("  v_and_b32 v6, 2, v0")
    e("  v_lshl_add_u32 v5, v6, 12, v5")
    for i in range(4):
        e(f"  v_mov_b32 v{8+i}, 0")
    FA, FB = 64, 128
    for st in range(16):
        e(f"  ds_read_b128 {vr(FA+4*st,4)}, v3 offset:{LDS_XS + 64*st}")
        e(f"  ds_read_b64_tr_b16 {vr(FB+4*st,2)}, v5 offset:{LDS_G+512*st}")
        e(f"  ds_read_b64_tr_b16 {vr(FB+4*st+2,2)}, v5 offset:{LDS_G+512*st+64}")
        if st % 4 == 3:
            e("  s_waitcnt lgkmcnt(0)")
            for s2 in range(st-3, st+1):
                e(f"  v_mfma_f32_16x16x32_bf16 v[8:11], {vr(FA+4*s2,4)}, {vr(FB+4*s2,4)}, v[8:11]")
    e("  s_nop 15")
    for i in range(4):
        e(f"  v_cvt_pk_bf16_f32 v{8+i}, v{8+i}, v{8+i}")
        e(f"  v_lshlrev_b32 v{8+i}, 16, v{8+i}")
    e("  s_nop 1")
    for i in range(4):
        e(f"  v_mov_b32_dpp v{12+i}, v{8+i} row_ror:8 row_mask:0xf bank_mask:0xf")
    for i in range(4):
        e(f"  v_mul_f32 v16, 0xbfb8aa3b, v{8+i}")
        e("  v_exp_f32 v16, v16")
        e("  s_nop 0")
        e("  v_add_f32 v16, 1.0, v16")
        e("  v_rcp_f32 v16, v16")
        e("  s_nop 0")
        e(f"  v_mul_f32 v16, v{8+i}, v16")
        e("  v_cvt_pk_bf16_f32 v16, v16, v16")
        e("  v_lshlrev_b32 v16, 16, v16")
        e(f"  v_mul_f32 v16, v16, v{12+i}")
        e(f"  v_cvt_pk_bf16_f32 v{20+i}, v16, v16")
    e("  s_nop 1")
    for i in range(4):
        e(f"  v_mov_b32_dpp v{24+i}, v{20+i} quad_perm:[1,0,3,2] row_mask:0xf bank_mask:0xf")
    for i in range(4):
        e(f"  v_and_b32 v{20+i}, 0xffff, v{20+i}")
        e(f"  v_and_b32 v{24+i}, 0xffff0000, v{24+i}")
        e(f"  v_or_b32 v{20+i}, v{20+i}, v{24+i}")
    for i in range(4):
        e(f"  v_min_u32 v{20+i}, 0xfffeffff, v{20+i}")
    stamp(4)
    e("  v_and_b32 v5, 15, v0")
    e("  v_lshlrev_b32 v4, 6, v4")
    e("  v_lshl_add_u32 v4, v5, 1, v4")
    e("  v_lshlrev_b32 v7, 4, v0")
    e("  v_and_b32 v6, 9, v0")
    e("  v_cmp_eq_u32 vcc, 0, v6")
    e("  v_cmp_gt_u32 s[42:43], 32, v0")
    e("  s_and_b64 vcc, vcc, s[42:43]")
    e("  s_and_saveexec_b64 s[40:41], vcc")
    for i in range(4):
        e(f"  ds_write_b32 v4, v{20+i} offset:{LDS_R+16*i}")
    e("  s_mov_b64 exec, 0xff")
    e("  s_waitcnt lgkmcnt(0)")
    e(f"  ds_read_b128 v[24:27], v7 offset:{LDS_R}")
    e("  s_lshl_b32 s15, s3, 7")
    e(f"  s_add_u32 s15, s15, {WS_GU}")
    e("  s_waitcnt lgkmcnt(0)")
    e("  buffer_store_dwordx4 v[24:27], v7, s[20:23], s15 offen sc1")
    e("  s_branch t4_done")
    lab("t4_f2")
    e("  v_lshrrev_b32 v5, 4, v0")
    e("  v_and_b32 v6, 1, v5")
    e("  v_lshlrev_b32 v6, 4, v6")
    e(f"  ds_read_b128 v[24:27], v6 offset:{LDS_C+128}")
    e("  v_and_b32 v6, 15, v0")
    e("  s_lshl_b32 s15, s46, 6")
    e("  s_waitcnt lgkmcnt(0)")
    for i in range(4):
        e(f"  v_and_b32 v{28+i}, 0xffff, v{24+i}")
        e(f"  v_sub_u32 v{28+i}, 0xffff, v{28+i}")
        e(f"  v_lshlrev_b32 v{32+i}, 3, v{28+i}")
        e(f"  v_lshlrev_b32 v{28+i}, 10, v{28+i}")
        e(f"  v_lshl_add_u32 v{28+i}, v6, 1, v{28+i}")
        e(f"  v_add_u32 v{28+i}, s15, v{28+i}")
    e("  s_cmp_lg_u32 s13, 0")
    e("  s_cbranch_scc1 t4_noepi")
    e(f"  s_mov_b32 s36, {WS_Y}")
    e(f"  s_mov_b32 s37, {WS_Y + (2<<20)}")
    e(f"  s_mov_b32 s38, {WS_STAT}")
    for a in range(2):
        for i in range(4):
            e(f"  buffer_load_ushort v{192+12*a+i}, v{28+i}, s[20:23], s36 offen offset:{32*a}")
            e(f"  buffer_load_ushort v{196+12*a+i}, v{28+i}, s[20:23], s37 offen offset:{32*a}")
            e(f"  buffer_load_ushort v{200+12*a+i}, v{28+i}, s[16:19], 0 offen offset:{32*a}")
    for i in range(4):
        e(f"  buffer_load_dwordx2 {vr(48+2*i,2)}, v{32+i}, s[20:23], s38 offen")
    lab("t4_noepi")
    e("  v_lshrrev_b32 v7, 2, v6")
    e("  v_lshl_add_u32 v7, v5, 3, v7")
    e("  v_lshlrev_b32 v7, 4, v7")
    e("  v_and_b32 v60, 1, v0")
    e("  v_lshl_add_u32 v7, v60, 3, v7")
    e("  v_and_b32 v60, 2, v0")
    e("  v_mul_u32_u24 v60, 14336, v60")
    e("  v_add_u32 v7, v60, v7")
    e("  v_add_u32 v7, s34, v7")
    e(f"  v_add_u32 v61, {2*28672}, v7")
    e("  s_waitcnt vmcnt(0)")
    FB0, FB1 = 72, 128
    for st in range(14):
        e(f"  ds_read_b64_tr_b16 {vr(FB0+4*st,2)}, v7 offset:{LDS_WD+512*st}")
        e(f"  ds_read_b64_tr_b16 {vr(FB0+4*st+2,2)}, v7 offset:{LDS_WD+512*st+64}")
        e(f"  ds_read_b64_tr_b16 {vr(FB1+4*st,2)}, v61 offset:{LDS_WD+512*st}")
        e(f"  ds_read_b64_tr_b16 {vr(FB1+4*st+2,2)}, v61 offset:{LDS_WD+512*st+64}")
        if st % 3 == 2: e("  s_waitcnt lgkmcnt(0)")
    for i in range(8):
        e(f"  v_mov_b32 v{8+i}, 0")
    for i in range(4):
        e(f"  v_and_b32 v60, 0xffff0000, v{24+i}")
        e("  v_ashrrev_i32 v62, 31, v60")
        e("  v_not_b32 v62, v62")
        e("  v_or_b32 v62, 0x80000000, v62")
        e("  v_xor_b32 v60, v60, v62")
        e("  v_and_b32 v60, 0xffff0000, v60")
        e("  v_mul_f32 v60, 0xbfb8aa3b, v60")
        e("  v_exp_f32 v60, v60")
        e("  s_nop 0")
        e("  v_add_f32 v60, 1.0, v60")
        e("  v_rcp_f32 v60, v60")
        e("  s_nop 0")
        e("  v_cvt_pk_bf16_f32 v60, v60, v60")
        e(f"  v_lshlrev_b32 v{24+i}, 16, v60")
    for a in range(2):
        for i in range(4):
            r0, r1, r2 = 192+12*a+i, 196+12*a+i, 200+12*a+i
            e(f"  v_lshlrev_b32 v{r0}, 16, v{r0}")
            e(f"  v_lshlrev_b32 v{r1}, 16, v{r1}")
            e(f"  v_lshlrev_b32 v{r2}, 16, v{r2}")
            e(f"  v_sub_f32 v60, v{r0}, v{r1}")
            e("  v_cvt_pk_bf16_f32 v60, v60, v60")
            e("  v_lshlrev_b32 v60, 16, v60")
            e(f"  v_add_f32 v60, v{r2}, v60")
            e("  v_cvt_pk_bf16_f32 v60, v60, v60")
            e(f"  v_lshlrev_b32 v{r0}, 16, v60")
            e(f"  v_sub_f32 v62, v{r0}, v{48+2*i}")
            e("  v_cvt_pk_bf16_f32 v62, v62, v62")
            e("  v_lshlrev_b32 v62, 16, v62")
            e(f"  v_mul_f32 v62, v62, v{49+2*i}")
            e("  v_cvt_pk_bf16_f32 v62, v62, v62")
            e(f"  v_lshlrev_b32 v{r1}, 16, v62")
    stamp(3)
    e("  v_and_b32 v4, 7, v0")
    e("  v_lshlrev_b32 v4, 4, v4")
    e("  v_lshl_add_u32 v4, v5, 7, v4")
    e("  s_mul_i32 s14, s13, 7168")
    e(f"  s_add_u32 s14, s14, {WS_GU}")
    regs = [216+4*i for i in range(9)] + [36, 40, 44, 56, 64]
    e("  v_add_u32 v62, 4096, v4")
    e("  s_mov_b32 s53, 0")
    lab("t4_poll")
    for st in range(14):
        e(f"  buffer_load_dwordx4 {vr(regs[st],4)}, v4, s[20:23], s14 offen offset:{512*st if st < 8 else 0} sc1") if st < 8 else e(f"  buffer_load_dwordx4 {vr(regs[st],4)}, v62, s[20:23], s14 offen offset:{512*(st-8)} sc1")
    e("  v_mov_b32 v3, 0")
    for st in range(14):
        e(f"  s_waitcnt vmcnt({13-st})")
        e(f"  v_max3_u32 v3, v3, v{regs[st]}, v{regs[st]+1}")
        e(f"  v_max3_u32 v3, v3, v{regs[st]+2}, v{regs[st]+3}")
    e("  v_cmp_eq_u32 s[54:55], -1, v3")
    e("  s_nop 3")
    e("  s_cmp_eq_u64 s[54:55], 0")
    e("  s_cbranch_scc1 t4_poll_ok")
    e("  s_add_u32 s53, s53, 1")
    e(f"  s_cmp_gt_u32 s53, {SPIN}")
    e("  s_cbranch_scc1 t4_poll_ok")
    e("  s_branch t4_poll")
    lab("t4_poll_ok")
    stamp(5)
    e("  s_waitcnt lgkmcnt(0)")
    for st in range(14):
        e(f"  v_mfma_f32_16x16x32_bf16 v[8:11], {vr(regs[st],4)}, {vr(FB0+4*st,4)}, v[8:11]")
        e(f"  v_mfma_f32_16x16x32_bf16 v[12:15], {vr(regs[st],4)}, {vr(FB1+4*st,4)}, v[12:15]")
    e("  s_nop 15")
    stamp(6)
    e("  v_lshlrev_b32 v3, 4, v0")
    e("  s_lshl_b32 s33, s13, 11")
    e("  v_add_u32 v3, s33, v3")
    e(f"  ds_write_b128 v3, v[8:11] offset:{LDS_R}")
    e(f"  ds_write_b128 v3, v[12:15] offset:{LDS_R+1024}")
    e("  s_waitcnt lgkmcnt(0)")
    e("  s_barrier")
    e("  s_cmp_lg_u32 s13, 0")
    e("  s_cbranch_scc1 t4_done")
    e("  v_lshlrev_b32 v3, 4, v0")
    for w in range(1, 4):
        for a in range(2):
            e(f"  ds_read_b128 {vr(72+8*(w-1)+4*a,4)}, v3 offset:{LDS_R+2048*w+1024*a}")
    e("  v_cmp_gt_u32 vcc, 32, v0")
    e("  s_and_saveexec_b64 s[40:41], vcc")
    e("  s_waitcnt lgkmcnt(0)")
    for a in range(2):
        for i in range(4):
            y = 8 + 4*a + i
            e(f"  v_add_f32 v{y}, v{y}, v{72+4*a+i}")
            e(f"  v_add_f32 v60, v{80+4*a+i}, v{88+4*a+i}")
            e(f"  v_add_f32 v{y}, v{y}, v60")
            e(f"  v_cvt_pk_bf16_f32 v{y}, v{y}, v{y}")
            e(f"  v_lshlrev_b32 v{y}, 16, v{y}")
            e(f"  v_mul_f32 v{y}, v{y}, v{24+i}")
            e(f"  v_cvt_pk_bf16_f32 v{y}, v{y}, v{y}")
            e(f"  v_lshlrev_b32 v{y}, 16, v{y}")
            e(f"  v_add_f32 v61, v{196+12*a+i}, v{y}")
            e("  v_cvt_pk_bf16_f32 v61, v61, v61")
            e("  v_lshlrev_b32 v61, 16, v61")
            e(f"  v_add_f32 v61, v{192+12*a+i}, v61")
            e("  v_cvt_pk_bf16_f32 v61, v61, v61")
            e(f"  buffer_store_short v61, v{28+i}, s[48:51], 0 offen offset:{32*a}")
    lab("t4_done")
    kernel_end()
    e("  s_endpgm")
    kernel_desc(name, 252)

ROW_O = 48
def rowmac(first, O=148, sc1=False):
    YR, YI, XX, WR, H, T, D = 16, 32, 48, 64, 80, 112, 116
    if sc1: O = ROW_O
    SC = " sc1" if sc1 else ""
    e("  v_lshlrev_b32 v3, 10, v1")
    e("  v_lshl_add_u32 v3, v2, 4, v3")
    e(f"  s_mov_b32 s52, {WS_Y}")
    e(f"  s_mov_b32 s53, {WS_Y + (2<<20)}")
    for j in range(4):
        e(f"  buffer_load_dwordx4 {vr(YR+4*j,4)}, v3, s[24:27], s52 offen offset:{256*j}{SC}")
        e(f"  buffer_load_dwordx4 {vr(YI+4*j,4)}, v3, s[24:27], s53 offen offset:{256*j}{SC}")
        e(f"  buffer_load_dwordx4 {vr(XX+4*j,4)}, v3, s[20:23], 0 offen offset:{256*j}")
    nextra = 0
    if first:
        e("  v_lshlrev_b32 v4, 4, v2")
        for j in range(4):
            e(f"  buffer_load_dwordx4 {vr(WR+4*j,4)}, v4, s[28:31], 0 offen offset:{256*j}")
        nextra = 4
    e("  v_mov_b32 v14, 0")
    e("  v_mov_b32 v15, 0")
    for j in range(4):
        e(f"  s_waitcnt vmcnt({nextra + 3*(3-j)})")
        for q in range(4):
            i = 4*j + q
            e(f"  v_lshlrev_b32 v{T}, 16, v{YR+i}")
            e(f"  v_and_b32 v{T+1}, 0xffff0000, v{YR+i}")
            e(f"  v_lshlrev_b32 v{T+2}, 16, v{YI+i}")
            e(f"  v_and_b32 v{T+3}, 0xffff0000, v{YI+i}")
            e(f"  v_pk_add_f32 {vr(T,2)}, {vr(T,2)}, {vr(T+2,2)} neg_lo:[0,1] neg_hi:[0,1]")
            e(f"  v_cvt_pk_bf16_f32 v{T}, v{T}, v{T+1}")
            e(f"  v_and_b32 v{T+1}, 0xffff0000, v{T}")
            e(f"  v_lshlrev_b32 v{T}, 16, v{T}")
            e(f"  v_lshlrev_b32 v{T+2}, 16, v{XX+i}")
            e(f"  v_and_b32 v{T+3}, 0xffff0000, v{XX+i}")
            e(f"  v_pk_add_f32 {vr(T,2)}, {vr(T,2)}, {vr(T+2,2)}")
            e(f"  v_cvt_pk_bf16_f32 v{YI+i}, v{T}, v{T+1}")
            e(f"  v_lshlrev_b32 v{H+2*i}, 16, v{YI+i}")
            e(f"  v_and_b32 v{H+2*i+1}, 0xffff0000, v{YI+i}")
            e(f"  v_pk_add_f32 v[14:15], v[14:15], {vr(H+2*i,2)}")
    e("  v_add_f32 v5, v14, v15")
    reduce16(5)
    e("  v_mul_f32 v5, 0x3b000000, v5")
    e("  v_cvt_pk_bf16_f32 v6, v5, v5")
    e("  v_lshlrev_b32 v6, 16, v6")
    e("  v_sub_f32 v8, 0, v6")
    e("  v_mov_b32 v9, v8")
    e("  v_mov_b32 v10, 0")
    e("  v_mov_b32 v11, 0")
    for i in range(16):
        e(f"  v_pk_add_f32 {vr(D+2*i,2)}, {vr(H+2*i,2)}, v[8:9]")
        e(f"  v_pk_fma_f32 v[10:11], {vr(D+2*i,2)}, {vr(D+2*i,2)}, v[10:11]")
    e("  v_add_f32 v10, v10, v11")
    reduce16(10)
    e("  v_sub_f32 v11, v5, v6")
    e("  v_mul_f32 v11, v11, v11")
    e("  v_mul_f32 v10, 0x3b000000, v10")
    e("  v_sub_f32 v10, v10, v11")
    e("  v_max_f32 v10, 0, v10")
    e("  v_cvt_pk_bf16_f32 v10, v10, v10")
    e("  v_lshlrev_b32 v10, 16, v10")
    e("  v_add_f32 v10, 0x3727c5ac, v10")
    e("  v_cvt_pk_bf16_f32 v10, v10, v10")
    e("  v_lshlrev_b32 v10, 16, v10")
    e("  v_sqrt_f32 v10, v10")
    e("  s_nop 0")
    e("  v_cvt_pk_bf16_f32 v10, v10, v10")
    e("  v_lshlrev_b32 v10, 16, v10")
    e("  v_rcp_f32 v10, v10")
    e("  s_nop 0")
    e("  v_mov_b32 v11, v10")
    if first:
        e("  v_mov_b32 v12, 0")
        e("  s_waitcnt vmcnt(0)")
    for i in range(16):
        e(f"  v_cvt_pk_bf16_f32 v{T}, v{D+2*i}, v{D+2*i+1}")
        e(f"  v_lshlrev_b32 v{D+2*i}, 16, v{T}")
        e(f"  v_and_b32 v{D+2*i+1}, 0xffff0000, v{T}")
        e(f"  v_pk_mul_f32 {vr(D+2*i,2)}, {vr(D+2*i,2)}, v[10:11]")
        e(f"  v_cvt_pk_bf16_f32 v{YR+i}, v{D+2*i}, v{D+2*i+1}")
        if first:
            e(f"  v_dot2_f32_bf16 v12, v{YR+i}, v{WR+i}, v12")
            e(f"  v_lshlrev_b32 v{D+2*i}, 16, v{YR+i}")
            e(f"  v_and_b32 v{D+2*i+1}, 0xffff0000, v{YR+i}")
            e(f"  v_pk_add_f32 {vr(D+2*i,2)}, {vr(D+2*i,2)}, {vr(H+2*i,2)}")
            e(f"  v_cvt_pk_bf16_f32 v{O+i}, v{D+2*i}, v{D+2*i+1}")
    if first:
        e("  s_nop 3")
        reduce16(12)
        e("  v_cvt_pk_bf16_f32 v12, v12, v12")
        e("  v_lshlrev_b32 v12, 16, v12")
        e("  v_ashrrev_i32 v13, 31, v12")
        e("  v_or_b32 v13, 0x80000000, v13")
        e("  v_xor_b32 v12, v12, v13")
        e("  v_and_b32 v12, 0xffff0000, v12")
        e("  v_sub_u32 v13, 0xffff, v1")
        e("  v_or_b32 v12, v12, v13")

def gen_tf():
    name = "tf_kernel"
    kernel_begin(name)
    LDS_G, LDS_U, LDS_WD = 0, 8192, 16384
    LDS_XS = 45056
    LDS_HS = LDS_XS + 8 * XS_STRIDE
    LDS_C = LDS_HS + 8192
    LDS_R = LDS_C + 256
    SPIN = 1 << 22
    e("  s_cmp_ge_u32 s2, 256")
    e("  s_cbranch_scc1 tf_done")
    e(f"  s_load_dwordx2 s[4:5], s[0:1], {KA_X}")
    e(f"  s_load_dwordx2 s[6:7], s[0:1], {KA_WS}")
    e(f"  s_load_dwordx8 s[8:15], s[0:1], {KA_WR}")
    e(f"  s_load_dwordx2 s[16:17], s[0:1], {KA_OUT}")
    e("  s_and_b32 s3, s2, 7")
    e("  s_mul_i32 s49, s3, 28")
    e("  s_lshr_b32 s50, s2, 3")
    e("  s_add_u32 s49, s49, s50")
    e("  s_sub_u32 s50, s50, 24")
    e("  s_lshl_b32 s51, s3, 3")
    e("  s_add_u32 s50, s50, s51")
    e("  v_mov_b32 v180, v0")
    e("  v_lshrrev_b32 v1, 6, v0")
    e("  v_and_b32 v0, 63, v0")
    e("  v_readfirstlane_b32 s48, v1")
    e("  s_waitcnt lgkmcnt(0)")
    srd(20, 4, 5, 2 << 20)
    srd(24, 6, 7, 9 << 20)
    srd(28, 8, 9, 1024)
    srd(32, 10, 11, 512*1792*2)
    srd(36, 12, 13, 512*1792*2)
    srd(40, 14, 15, 1792*512*2)
    srd(44, 16, 17, 2 << 20)
    e("  s_cmp_lt_u32 s48, 2")
    e("  s_cbranch_scc1 tf_p1")
    e("  s_cmp_ge_u32 s2, 224")
    e("  s_cbranch_scc1 tf_nof1")
    e("  s_movk_i32 s52, 3584")
    e("  v_mul_lo_u32 v3, v0, s52")
    e("  s_lshl_b32 s53, s49, 4")
    e("  s_cmp_eq_u32 s48, 2")
    e("  s_cbranch_scc0 tf_dma_u")
    for i in range(8):
        e(f"  s_mov_b32 m0, {LDS_G + 1024*i}")
        e("  s_nop 0")
        e("  buffer_load_dwordx4 v3, s[32:35], s53 offen lds")
        e(f"  s_add_u32 s53, s53, {64*3584}")
    e("  s_branch tf_nof1")
    lab("tf_dma_u")
    for i in range(8):
        e(f"  s_mov_b32 m0, {LDS_U + 1024*i}")
        e("  s_nop 0")
        e("  buffer_load_dwordx4 v3, s[36:39], s53 offen lds")
        e(f"  s_add_u32 s53, s53, {64*3584}")
    lab("tf_nof1")
    e("  s_cmp_lt_u32 s2, 192")
    e("  s_cbranch_scc1 tf_poll1")
    e("  v_lshlrev_b32 v3, 10, v0")
    e("  s_sub_u32 s52, s48, 2")
    e(f"  s_mul_i32 s53, s52, {896*1024}")
    e("  s_lshl_b32 s54, s50, 4")
    e("  s_add_u32 s53, s53, s54")
    e(f"  s_mul_i32 s54, s52, {896*16}")
    for i in range(14):
        e(f"  s_add_u32 m0, s54, {LDS_WD + 1024*i}")
        e("  s_nop 0")
        e("  buffer_load_dwordx4 v3, s[40:43], s53 offen lds")
        e("  s_add_u32 s53, s53, 0x10000")
    e("  s_branch tf_poll1")
    lab("tf_p1")
    e("  v_lshrrev_b32 v1, 4, v180")
    e("  v_and_b32 v2, 15, v0")
    e("  s_lshl_b32 s52, s2, 3")
    e("  v_add_u32 v1, s52, v1")
    e("  v_mov_b32 v181, v1")
    rowmac(True)
    e("  v_cmp_eq_u32 vcc, 0, v2")
    e("  s_and_saveexec_b64 s[56:57], vcc")
    e("  v_lshlrev_b32 v13, 2, v1")
    e(f"  s_mov_b32 s52, {WS_KEY}")
    e("  buffer_store_dword v12, v13, s[24:27], s52 offen sc1")
    e("  s_mov_b64 exec, s[56:57]")
    stamp(1)
    lab("tf_poll1")
    K = 164
    e("  v_lshlrev_b32 v172, 5, v180")
    e(f"  s_mov_b32 s52, {WS_KEY}")
    e("  s_mov_b32 s60, 0")
    lab("tf_poll1_loop")
    e(f"  buffer_load_dwordx4 {vr(K,4)}, v172, s[24:27], s52 offen sc1")
    e(f"  buffer_load_dwordx4 {vr(K+4,4)}, v172, s[24:27], s52 offen offset:16 sc1")
    e("  s_waitcnt vmcnt(0)")
    e(f"  v_min3_u32 v173, v{K}, v{K+1}, v{K+2}")
    e(f"  v_min3_u32 v174, v{K+3}, v{K+4}, v{K+5}")
    e(f"  v_min3_u32 v173, v173, v{K+6}, v{K+7}")
    e("  v_min_u32 v173, v173, v174")
    e("  v_cmp_eq_u32 s[62:63], 0, v173")
    e("  s_nop 3")
    e("  s_cmp_eq_u64 s[62:63], 0")
    e("  s_cbranch_scc1 tf_poll1_ok")
    e("  s_add_u32 s60, s60, 1")
    e(f"  s_cmp_gt_u32 s60, {SPIN}")
    e("  s_cbranch_scc1 tf_poll1_ok")
    e("  s_sleep 1")
    e("  s_branch tf_poll1_loop")
    lab("tf_poll1_ok")
    stamp(2)
    e("  v_mov_b32 v176, 0")
    for rnd in range(8):
        e(f"  v_max3_u32 v173, v{K}, v{K+1}, v{K+2}")
        e(f"  v_max3_u32 v174, v{K+3}, v{K+4}, v{K+5}")
        e(f"  v_max3_u32 v173, v173, v{K+6}, v{K+7}")
        e("  v_max_u32 v173, v173, v174")
        e("  s_nop 1")
        e("  v_max_u32_dpp v173, v173, v173 quad_perm:[1,0,3,2] row_mask:0xf bank_mask:0xf")
        e("  s_nop 1")
        e("  v_max_u32_dpp v173, v173, v173 quad_perm:[2,3,0,1] row_mask:0xf bank_mask:0xf")
        e("  s_nop 1")
        e("  v_max_u32_dpp v173, v173, v173 row_half_mirror row_mask:0xf bank_mask:0xf")
        e("  s_nop 1")
        e("  v_max_u32_dpp v173, v173, v173 row_mirror row_mask:0xf bank_mask:0xf")
        e("  s_nop 1")
        e("  v_readlane_b32 s64, v173, 0")
        e("  v_readlane_b32 s65, v173, 16")
        e("  v_readlane_b32 s66, v173, 32")
        e("  v_readlane_b32 s67, v173, 48")
        e("  s_max_u32 s64, s64, s65")
        e("  s_max_u32 s66, s66, s67")
        e("  s_max_u32 s64, s64, s66")
        e(f"  v_writelane_b32 v176, s64, {rnd}")
        if rnd < 7:
            for k in range(8):
                e(f"  v_cmp_ne_u32 vcc, s64, v{K+k}")
                e("  s_nop 1")
                e(f"  v_cndmask_b32 v{K+k}, 0, v{K+k}, vcc")
    e("  s_lshl_b32 s52, s48, 5")
    e(f"  s_add_u32 s52, s52, {LDS_C}")
    e("  v_lshlrev_b32 v172, 2, v0")
    e("  v_add_u32 v172, s52, v172")
    e("  v_cmp_gt_u32 vcc, 8, v0")
    e("  s_and_saveexec_b64 s[56:57], vcc")
    e("  ds_write_b32 v172, v176")
    e("  s_mov_b64 exec, s[56:57]")
    e("  s_waitcnt lgkmcnt(0)")
    e("  s_barrier")
    e("  v_and_b32 v172, 31, v0")
    e("  v_lshlrev_b32 v172, 2, v172")
    e(f"  ds_read_b32 v177, v172 offset:{LDS_C}")
    e("  v_mov_b32 v178, 0")
    e("  s_waitcnt lgkmcnt(0)")
    for i in range(32):
        e(f"  v_readlane_b32 s64, v177, {i}")
        e("  s_nop 1")
        e("  v_cmp_gt_u32 vcc, s64, v177")
        e("  s_nop 1")
        e("  v_addc_co_u32 v178, vcc, 0, v178, vcc")
    e("  v_cmp_gt_u32 vcc, 8, v178")
    e("  v_cmp_gt_u32 s[58:59], 32, v0")
    e("  s_and_b64 vcc, vcc, s[58:59]")
    e("  v_lshlrev_b32 v172, 2, v178")
    e("  s_and_saveexec_b64 s[56:57], vcc")
    e(f"  ds_write_b32 v172, v177 offset:{LDS_C+128}")
    e("  s_mov_b64 exec, s[56:57]")
    e("  s_waitcnt lgkmcnt(0)")
    e("  s_barrier")
    stamp(3)
    e("  s_cmp_lt_u32 s48, 2")
    e("  s_cbranch_scc1 tf_p2")
    e("  s_waitcnt vmcnt(0)")
    e("  s_branch tf_p2_end")
    lab("tf_p2")
    e("  v_mov_b32 v172, 0")
    e(f"  ds_read_b128 {vr(K,4)}, v172 offset:{LDS_C+128}")
    e(f"  ds_read_b128 {vr(K+4,4)}, v172 offset:{LDS_C+144}")
    e("  v_lshrrev_b32 v173, 4, v180")
    e("  v_lshlrev_b32 v173, 2, v173")
    e(f"  ds_read_b32 v174, v173 offset:{LDS_C+128}")
    e("  v_sub_u32 v175, 0xffff, v181")
    e("  s_waitcnt lgkmcnt(0)")
    e("  s_mov_b64 s[58:59], exec")
    for k in range(8):
        e(f"  v_and_b32 v{K+k}, 0xffff, v{K+k}")
        e(f"  v_cmp_ne_u32 vcc, v{K+k}, v175")
        e("  s_and_b64 s[58:59], s[58:59], vcc")
    e("  v_lshlrev_b32 v3, 10, v181")
    e("  v_lshl_add_u32 v3, v2, 4, v3")
    e("  s_and_saveexec_b64 s[56:57], s[58:59]")
    e("  s_cbranch_execz tf_nostore")
    for j in range(4):
        e(f"  buffer_store_dwordx4 {vr(148+4*j,4)}, v3, s[44:47], 0 offen offset:{256*j}")
    lab("tf_nostore")
    e("  s_mov_b64 exec, s[56:57]")
    e("  v_and_b32 v1, 0xffff, v174")
    e("  v_sub_u32 v1, 0xffff, v1")
    rowmac(False)
    e("  v_lshrrev_b32 v173, 4, v180")
    e(f"  v_mul_u32_u24 v4, {XS_STRIDE}, v173")
    e("  v_lshl_add_u32 v4, v2, 4, v4")
    e("  v_lshlrev_b32 v5, 10, v173")
    e("  v_lshl_add_u32 v5, v2, 4, v5")
    for j in range(4):
        e(f"  ds_write_b128 v4, {vr(16+4*j,4)} offset:{LDS_XS+256*j}")
        e(f"  ds_write_b128 v5, {vr(32+4*j,4)} offset:{LDS_HS+256*j}")
    e("  s_waitcnt lgkmcnt(0)")
    lab("tf_p2_end")
    e("  s_barrier")
    stamp(4)
    e("  s_cmp_lg_u32 s48, 0")
    e("  s_cbranch_scc1 tf_f2")
    e("  s_cmp_ge_u32 s2, 224")
    e("  s_cbranch_scc1 tf_f2")
    e("  v_and_b32 v3, 7, v0")
    e(f"  v_mul_u32_u24 v3, {XS_STRIDE}, v3")
    e("  v_lshrrev_b32 v4, 4, v0")
    e("  v_lshl_add_u32 v3, v4, 4, v3")
    e("  v_and_b32 v5, 15, v0")
    e("  v_lshrrev_b32 v5, 2, v5")
    e("  v_lshl_add_u32 v5, v4, 3, v5")
    e("  v_lshlrev_b32 v5, 4, v5")
    e("  v_and_b32 v6, 1, v0")
    e("  v_lshl_add_u32 v5, v6, 3, v5")
    e("  v_and_b32 v6, 2, v0")
    e("  v_lshl_add_u32 v5, v6, 12, v5")
    for i in range(4):
        e(f"  v_mov_b32 v{8+i}, 0")
    FA, FB = 16, 80
    for st in range(16):
        e(f"  ds_read_b128 {vr(FA+4*st,4)}, v3 offset:{LDS_XS + 64*st}")
        e(f"  ds_read_b64_tr_b16 {vr(FB+4*st,2)}, v5 offset:{512*st}")
        e(f"  ds_read_b64_tr_b16 {vr(FB+4*st+2,2)}, v5 offset:{512*st+64}")
        if st % 4 == 3:
            e("  s_waitcnt lgkmcnt(0)")
            for s2 in range(st-3, st+1):
                e(f"  v_mfma_f32_16x16x32_bf16 v[8:11], {vr(FA+4*s2,4)}, {vr(FB+4*s2,4)}, v[8:11]")
    e("  s_nop 15")
    for i in range(4):
        e(f"  v_cvt_pk_bf16_f32 v{8+i}, v{8+i}, v{8+i}")
        e(f"  v_lshlrev_b32 v{8+i}, 16, v{8+i}")
    e("  s_nop 1")
    for i in range(4):
        e(f"  v_mov_b32_dpp v{12+i}, v{8+i} row_ror:8 row_mask:0xf bank_mask:0xf")
    for i in range(4):
        e(f"  v_mul_f32 v16, 0xbfb8aa3b, v{8+i}")
        e("  v_exp_f32 v16, v16")
        e("  s_nop 0")
        e("  v_add_f32 v16, 1.0, v16")
        e("  v_rcp_f32 v16, v16")
        e("  s_nop 0")
        e(f"  v_mul_f32 v16, v{8+i}, v16")
        e("  v_cvt_pk_bf16_f32 v16, v16, v16")
        e("  v_lshlrev_b32 v16, 16, v16")
        e(f"  v_mul_f32 v16, v16, v{12+i}")
        e(f"  v_cvt_pk_bf16_f32 v{20+i}, v16, v16")
    e("  s_nop 1")
    for i in range(4):
        e(f"  v_mov_b32_dpp v{24+i}, v{20+i} quad_perm:[1,0,3,2] row_mask:0xf bank_mask:0xf")
    for i in range(4):
        e(f"  v_and_b32 v{20+i}, 0xffff, v{20+i}")
        e(f"  v_and_b32 v{24+i}, 0xffff0000, v{24+i}")
        e(f"  v_or_b32 v{20+i}, v{20+i}, v{24+i}")
    e("  v_and_b32 v5, 15, v0")
    e("  v_and_b32 v6, 9, v0")
    e("  v_cmp_eq_u32 vcc, 0, v6")
    e("  v_cmp_gt_u32 s[58:59], 32, v0")
    e("  s_and_b64 vcc, vcc, s[58:59]")
    e("  s_and_saveexec_b64 s[56:57], vcc")
    e("  v_lshlrev_b32 v4, 2, v4")
    e("  v_mul_u32_u24 v4, 3584, v4")
    e("  v_lshl_add_u32 v4, v5, 1, v4")
    e("  s_lshl_b32 s52, s49, 4")
    e(f"  s_add_u32 s52, s52, {WS_GU}")
    for i in range(4):
        e(f"  buffer_store_dword v{20+i}, v4, s[24:27], s52 offen sc1")
        if i < 3:
            e("  v_add_u32 v4, 3584, v4")
    e("  s_waitcnt vmcnt(0)")
    e("  s_mov_b64 exec, 1")
    e("  v_mov_b32 v4, 1")
    e("  v_mov_b32 v5, 0")
    e("  s_lshl_b32 s52, s49, 2")
    e(f"  s_add_u32 s52, s52, {WS_FLAG}")
    e("  buffer_store_dword v4, v5, s[24:27], s52 offen sc1")
    e("  s_mov_b64 exec, s[56:57]")
    stamp(5)
    lab("tf_f2")
    e("  s_cmp_lt_u32 s2, 192")
    e("  s_cbranch_scc1 tf_done")
    e("  v_min_u32 v3, 55, v0")
    e("  v_lshlrev_b32 v3, 2, v3")
    e("  s_mul_i32 s52, s48, 224")
    e(f"  s_add_u32 s52, s52, {WS_FLAG}")
    e("  s_mov_b32 s60, 0")
    lab("tf_poll2_loop")
    e("  buffer_load_dword v4, v3, s[24:27], s52 offen sc1")
    e("  s_waitcnt vmcnt(0)")
    e("  v_cmp_eq_u32 s[62:63], 0, v4")
    e("  s_nop 3")
    e("  s_cmp_eq_u64 s[62:63], 0")
    e("  s_cbranch_scc1 tf_poll2_ok")
    e("  s_add_u32 s60, s60, 1")
    e(f"  s_cmp_gt_u32 s60, {SPIN}")
    e("  s_cbranch_scc1 tf_poll2_ok")
    e("  s_sleep 1")
    e("  s_branch tf_poll2_loop")
    lab("tf_poll2_ok")
    stamp(6)
    e("  v_and_b32 v4, 7, v0")
    e("  v_mul_u32_u24 v4, 3584, v4")
    e("  v_lshrrev_b32 v5, 4, v0")
    e("  v_lshl_add_u32 v4, v5, 4, v4")
    e("  s_mul_i32 s52, s48, 896")
    e(f"  s_add_u32 s52, s52, {WS_GU}")
    FA, FB = 16, 72
    for st in range(14):
        e(f"  buffer_load_dwordx4 {vr(FA+4*st,4)}, v4, s[24:27], s52 offen offset:{64*st} sc1")
    e("  v_and_b32 v7, 15, v0")
    e("  v_lshrrev_b32 v7, 2, v7")
    e("  v_lshl_add_u32 v7, v5, 3, v7")
    e("  v_lshlrev_b32 v7, 4, v7")
    e("  v_and_b32 v6, 1, v0")
    e("  v_lshl_add_u32 v7, v6, 3, v7")
    e("  s_mul_i32 s54, s48, 7168")
    e(f"  s_add_u32 s54, s54, {LDS_WD}")
    e("  v_add_u32 v7, s54, v7")
    for st in range(14):
        e(f"  ds_read_b64_tr_b16 {vr(FB+4*st,2)}, v7 offset:{512*st}")
        e(f"  ds_read_b64_tr_b16 {vr(FB+4*st+2,2)}, v7 offset:{512*st+64}")
    for i in range(4):
        e(f"  v_mov_b32 v{8+i}, 0")
    e("  s_waitcnt vmcnt(0) lgkmcnt(0)")
    for st in range(14):
        e(f"  v_mfma_f32_16x16x32_bf16 v[8:11], {vr(FA+4*st,4)}, {vr(FB+4*st,4)}, v[8:11]")
    e("  s_nop 15")
    e("  v_lshlrev_b32 v3, 4, v0")
    e("  s_lshl_b32 s52, s48, 10")
    e("  v_add_u32 v3, s52, v3")
    e(f"  ds_write_b128 v3, v[8:11] offset:{LDS_R}")
    e("  s_waitcnt lgkmcnt(0)")
    e("  s_barrier")
    e("  s_cmp_lg_u32 s48, 0")
    e("  s_cbranch_scc1 tf_done")
    e("  v_lshlrev_b32 v3, 4, v0")
    for w in range(1, 4):
        e(f"  ds_read_b128 {vr(12+4*(w-1),4)}, v3 offset:{LDS_R+1024*w}")
    e("  v_and_b32 v6, 1, v5")
    e("  v_lshlrev_b32 v6, 4, v6")
    e(f"  ds_read_b128 v[24:27], v6 offset:{LDS_C+128}")
    e("  v_and_b32 v6, 7, v0")
    e("  s_lshl_b32 s52, s50, 4")
    e("  v_lshl_add_u32 v6, v6, 1, s52")
    e("  v_and_b32 v7, 1, v5")
    e("  v_lshlrev_b32 v7, 2, v7")
    for i in range(4):
        e(f"  v_add_u32 v28, {i}, v7")
        e(f"  v_mul_u32_u24 v29, {XS_STRIDE}, v28")
        e("  v_add_u32 v29, v29, v6")
        e(f"  ds_read_u16 v{36+i}, v29 offset:{LDS_XS}")
        e("  v_lshl_add_u32 v29, v28, 10, v6")
        e(f"  ds_read_u16 v{40+i}, v29 offset:{LDS_HS}")
    e("  v_and_b32 v30, 15, v0")
    e("  v_cmp_gt_u32 vcc, 8, v30")
    e("  v_cmp_gt_u32 s[58:59], 32, v0")
    e("  s_and_b64 vcc, vcc, s[58:59]")
    e("  s_waitcnt lgkmcnt(0)")
    e("  s_and_saveexec_b64 s[56:57], vcc")
    for i in range(4):
        e(f"  v_add_f32 v{8+i}, v{8+i}, v{12+i}")
        e(f"  v_add_f32 v{16+i}, v{16+i}, v{20+i}")
        e(f"  v_add_f32 v{8+i}, v{8+i}, v{16+i}")
        e(f"  v_cvt_pk_bf16_f32 v{8+i}, v{8+i}, v{8+i}")
        e(f"  v_lshlrev_b32 v{8+i}, 16, v{8+i}")
        e(f"  v_and_b32 v60, 0xffff0000, v{24+i}")
        e("  v_ashrrev_i32 v61, 31, v60")
        e("  v_not_b32 v61, v61")
        e("  v_or_b32 v61, 0x80000000, v61")
        e("  v_xor_b32 v60, v60, v61")
        e("  v_and_b32 v60, 0xffff0000, v60")
        e("  v_mul_f32 v60, 0xbfb8aa3b, v60")
        e("  v_exp_f32 v60, v60")
        e("  s_nop 0")
        e("  v_add_f32 v60, 1.0, v60")
        e("  v_rcp_f32 v60, v60")
        e("  s_nop 0")
        e("  v_cvt_pk_bf16_f32 v60, v60, v60")
        e("  v_lshlrev_b32 v60, 16, v60")
        e(f"  v_mul_f32 v{8+i}, v{8+i}, v60")
        e(f"  v_cvt_pk_bf16_f32 v{8+i}, v{8+i}, v{8+i}")
        e(f"  v_lshlrev_b32 v{8+i}, 16, v{8+i}")
        e(f"  v_lshlrev_b32 v{36+i}, 16, v{36+i}")
        e(f"  v_lshlrev_b32 v{40+i}, 16, v{40+i}")
        e(f"  v_add_f32 v61, v{36+i}, v{8+i}")
        e("  v_cvt_pk_bf16_f32 v61, v61, v61")
        e("  v_lshlrev_b32 v61, 16, v61")
        e(f"  v_add_f32 v61, v{40+i}, v61")
        e("  v_cvt_pk_bf16_f32 v61, v61, v61")
        e(f"  v_and_b32 v62, 0xffff, v{24+i}")
        e("  v_sub_u32 v62, 0xffff, v62")
        e("  v_lshl_add_u32 v62, v62, 10, v6")
        e("  buffer_store_short v61, v62, s[44:47], 0 offen")
    lab("tf_done")
    kernel_end()
    e("  s_endpgm")
    kernel_desc(name, 184)

def main():
    hdr = open("cdna_kernels/" + NAME + ".s.ref").read().splitlines()
    out = []
    for ln in hdr:
        if ln.startswith("; @launch"):
            if FUSE:
                out.append("; @launch kernel=f_kernel grid=(256,1,1) block=(576,1,1) lds=%d" % (K2_NS*24576))
            else:
                out.append("; @launch kernel=k1_kernel grid=(256,1,1) block=(%d,1,1) lds=131072" % (576 if OPT('K1_PF', 0) else 512))
                out.append("; @launch kernel=k2_kernel grid=(256,1,1) block=(%d,1,1) lds=%d" % (576, K2_NS*24576))
            if OPT('TF'):
                out.append("; @launch kernel=tf_kernel grid=(256,1,1) block=(256,1,1) lds=66048")
            else:
                if not OPT('K2T1', 1):
                    out.append("; @launch kernel=t1_kernel grid=(256,1,1) block=(%d,1,1) lds=0" % (192 if OPT('T1_PF', 1) else 128))
                if OPT('T4', 1):
                    out.append("; @launch kernel=t4_kernel grid=(240,1,1) block=(256,1,1) lds=123392")
                else:
                    out.append("; @launch kernel=t2_kernel grid=(224,1,1) block=(256,1,1) lds=25600")
                    out.append("; @launch kernel=t3_kernel grid=(64,1,1) block=(256,1,1) lds=32768")
            break
        out.append(ln)
    out.append('.amdgcn_target "amdgcn-amd-amdhsa--gfx950"')
    out.append(".text")
    gen_k1(); gen_k2()
    if OPT('TF'): gen_tf()
    elif OPT('T4', 1):
        if not OPT('K2T1', 1): gen_t1()
        gen_t4()
    else: gen_t1(); gen_t2(); gen_t3()
    out += L
    out.append('.section .rodata,"a"')
    out += KD
    dst = sys.argv[1] if len(sys.argv) > 1 else "cdna_kernels/" + NAME + ".s"
    open(dst, "w").write("\n".join(out) + "\n")

main()
```

```python
import sys, os
OPT = lambda k, d=0: int(os.environ.get(k, d))

NAME = "sequential_preLN__spectral_fnet__moe_arch_mod__prompt"
L = []
def e(s=""):
    L.append(s)
def lab(s):
    L.append(s + ":")

KA_X, KA_WSRE, KA_WSIM, KA_WDRE, KA_WDIM = 0, 8, 16, 24, 32
KA_WR, KA_WG, KA_WU, KA_WDN, KA_OUT, KA_DBG, KA_WS = 48, 56, 64, 72, 80, 88, 96
WS_YB = 0
WS_Y = 4 << 20
WS_KEY = 8 << 20
WS_STAT = (8 << 20) + 8192
WS_GU = (8 << 20) + 65536
WS_IDX = (8 << 20) + 131072
WS_FLAG = (8 << 20) + 196608
WS_FA = WS_FLAG + 4096
WS_WDB = 10 << 20
WS_SIZE = 268435456

KIDX = [0]
NV = {"k1_kernel": 160, "k2_kernel": 160, "t1_kernel": 148, "t2_kernel": 192, "t3_kernel": 192, "tf_kernel": 184, "t4_kernel": 252, "f_kernel": 160}
FUSE = OPT("FUSE", 1)
CUR = [0]
def kernel_begin(name):
    CUR[0] = NV[name]
    e(f".globl {name}")
    e(".p2align 8")
    e(f".type {name},@function")
    lab(name)
    if OPT('DIAG'):
        e("  s_memrealtime s[72:73]")
        for i in range(1, 7):
            e(f"  s_mov_b64 s[{72+2*i}:{73+2*i}], 0")
        e(f"  s_load_dwordx2 s[94:95], s[0:1], {KA_WS}")
        e(f"  v_mov_b32 v{CUR[0]}, v0")

def stamp(i):
    if OPT('DIAG'):
        e(f"  s_memrealtime s[{72+2*i}:{73+2*i}]")

def kernel_end():
    if OPT('DIAG'):
        e("  s_waitcnt vmcnt(0) lgkmcnt(0)")
        e("  s_memrealtime s[86:87]")
        e("  s_mov_b32 s88, s94")
        e("  s_mov_b32 s89, s95")
        e("  s_mov_b32 s90, 0x4000000")
        e("  s_mov_b32 s91, 0x00020000")
        e("  s_waitcnt lgkmcnt(0)")
        e("  s_mov_b64 exec, 1")
        for i in range(16):
            e(f"  v_mov_b32 v{i}, s{72+i}")
        e(f"  v_lshrrev_b32 v{CUR[0]+1}, 6, v{CUR[0]}")
        e(f"  v_lshlrev_b32 v{CUR[0]+1}, 6, v{CUR[0]+1}")
        e("  s_lshl_b32 s92, s2, 10")
        e(f"  s_add_u32 s92, s92, {(16 << 20) + KIDX[0] * 0x100000}")
        for i in range(4):
            e(f"  buffer_store_dwordx4 v[{4*i}:{3+4*i}], v{CUR[0]+1}, s[88:91], s92 offen offset:{16*i}")
    KIDX[0] += 1

KD = []
def kernel_desc(name, vgpr, sgpr=102):
    assert vgpr == CUR[0]
    if OPT('DIAG'): vgpr += 2
    acc = (vgpr + 3) // 4 * 4
    KD.append(f""".p2align 6
.amdhsa_kernel {name}
  .amdhsa_next_free_vgpr {vgpr}
  .amdhsa_next_free_sgpr {sgpr}
  .amdhsa_accum_offset {acc}
  .amdhsa_group_segment_fixed_size 0
  .amdhsa_kernarg_size 104
  .amdhsa_user_sgpr_count 2
  .amdhsa_user_sgpr_kernarg_segment_ptr 1
  .amdhsa_system_sgpr_workgroup_id_x 1
.end_amdhsa_kernel""")

def srd(d, lo, hi, size):
    e(f"  s_mov_b32 s{d}, s{lo}")
    e(f"  s_mov_b32 s{d+1}, s{hi}")
    e(f"  s_mov_b32 s{d+2}, {size}")
    e(f"  s_mov_b32 s{d+3}, 0x00020000")

def vr(a, n):
    return f"v[{a}:{a+n-1}]"

def reduce8(v):
    e("  s_nop 1")
    e(f"  v_add_f32_dpp v{v}, v{v}, v{v} quad_perm:[1,0,3,2] row_mask:0xf bank_mask:0xf")
    e("  s_nop 1")
    e(f"  v_add_f32_dpp v{v}, v{v}, v{v} quad_perm:[2,3,0,1] row_mask:0xf bank_mask:0xf")
    e("  s_nop 1")
    e(f"  v_add_f32_dpp v{v}, v{v}, v{v} row_half_mirror row_mask:0xf bank_mask:0xf")

def reduce16(v):
    reduce8(v)
    e("  s_nop 1")
    e(f"  v_add_f32_dpp v{v}, v{v}, v{v} row_mirror row_mask:0xf bank_mask:0xf")

def helper_wave():
    srd(36, 34, 35, 1792*512*2)
    srd(40, 6, 7, 12 << 20)
    e("  v_lshlrev_b32 v2, 4, v0")
    e("  s_mul_i32 s44, s2, 7168")
    for q in range(7):
        e(f"  buffer_load_dwordx4 {vr(8+4*q,4)}, v2, s[36:39], s44 offen")
        e("  s_add_u32 s44, s44, 1024")
    e("  s_cmp_ge_u32 s2, 28")
    e("  s_cbranch_scc1 k2_nomark")
    for q in range(4):
        e(f"  v_mov_b32 v{4+q}, -1")
    e("  s_lshl_b32 s44, s2, 10")
    e(f"  s_add_u32 s44, s44, {WS_GU}")
    e("  buffer_store_dwordx4 v[4:7], v2, s[40:43], s44 offen")
    lab("k2_nomark")
    e("  v_mul_u32_u24 v3, 28672, v0")
    e("  s_mul_i32 s44, s2, 112")
    e(f"  s_add_u32 s44, s44, {WS_WDB}")
    e("  s_waitcnt vmcnt(0)")
    for q in range(7):
        e(f"  buffer_store_dwordx4 {vr(8+4*q,4)}, v3, s[40:43], s44 offen offset:{16*q}")
    e("  s_branch k2_done")

def get_epoch(tag):
    e("  v_mov_b32 v158, 0")
    e("  s_mov_b32 s69, 0")
    lab(f"ep_{tag}")
    e("  buffer_load_dword v159, v158, s[96:99], 0 offen sc1")
    e("  s_waitcnt vmcnt(0)")
    e("  v_readfirstlane_b32 s68, v159")
    e("  s_add_u32 s69, s69, 1")
    e(f"  s_cmp_gt_u32 s69, {1 << 22}")
    e(f"  s_cbranch_scc1 ep_{tag}_ok")
    e("  s_cmp_eq_u32 s68, 0")
    e(f"  s_cbranch_scc1 ep_{tag}")
    lab(f"ep_{tag}_ok")

def gen_k1():
    name = "f_kernel" if FUSE else "k1_kernel"
    kernel_begin(name)
    e("  s_cmp_ge_u32 s2, 256")
    e(f"  s_cbranch_scc1 {'k2_done' if FUSE else 'k1_done'}")
    e(f"  s_load_dwordx2 s[4:5], s[0:1], {KA_X}")
    e(f"  s_load_dwordx4 s[8:11], s[0:1], {KA_WDRE}")
    e(f"  s_load_dwordx2 s[6:7], s[0:1], {KA_WS}")
    if FUSE:
        e(f"  s_load_dwordx2 s[66:67], s[0:1], {KA_DBG}")
        e(f"  s_load_dwordx2 s[34:35], s[0:1], {KA_WDN}")
    e("  s_and_b32 s12, s2, 7")
    e("  s_lshr_b32 s13, s2, 3")
    e("  s_and_b32 s14, s13, 3")
    e("  s_lshl_b32 s12, s12, 2")
    e("  s_add_u32 s12, s12, s14")
    e("  s_lshr_b32 s13, s13, 2")
    e("  v_lshrrev_b32 v1, 6, v0")
    e("  v_and_b32 v0, 63, v0")
    e("  v_readfirstlane_b32 s15, v1")
    e("  v_lshrrev_b32 v2, 3, v0")
    e("  v_and_b32 v3, 7, v0")
    if OPT('K1_PF', 0) or OPT('K1_PFEND', 0):
        e(f"  s_load_dwordx4 s[40:43], s[0:1], {KA_WSRE}")
    e("  s_waitcnt lgkmcnt(0)")
    if OPT('K1_PF', 0):
        e("  s_cmp_lg_u32 s15, 8")
        e("  s_cbranch_scc1 k1_main")
        e("  s_and_b32 s44, s2, 7")
        e("  s_cmp_lt_u32 s44, 4")
        e("  s_cselect_b32 s48, s40, s42")
        e("  s_cselect_b32 s49, s41, s43")
        e(f"  s_mov_b32 s50, {2048*2048*2}")
        e("  s_mov_b32 s51, 0x00020000")
        e("  s_and_b32 s44, s44, 3")
        e("  s_lshl_b32 s44, s44, 21")
        e("  s_lshr_b32 s45, s2, 3")
        e("  s_lshl_b32 s45, s45, 16")
        e("  s_add_u32 s44, s44, s45")
        e("  v_lshlrev_b32 v1, 4, v0")
        e("  s_cmp_lt_u32 s13, 4")
        e("  s_cselect_b32 s56, s8, s10")
        e("  s_cselect_b32 s57, s9, s11")
        e(f"  s_mov_b32 s58, {512*512*2}")
        e("  s_mov_b32 s59, 0x00020000")
        e("  s_and_b32 s46, s13, 3")
        e("  s_lshl_b32 s46, s46, 17")
        for q in range(OPT('K1_CAN', 0)):
            e(f"  buffer_load_dwordx4 v[8:11], v1, s[56:59], s46 offen offset:{q*1024}")
            e("  s_waitcnt vmcnt(0)")
        for q in range(64):
            e(f"  buffer_load_dwordx4 {vr(8+4*(q%32),4)}, v1, s[48:51], s44 offen")
            e("  s_add_u32 s44, s44, 1024")
        e("  s_branch k1_done")
        lab("k1_main")
    if FUSE:
        srd(96, 66, 67, 256)
        e("  s_cmp_lg_u32 s15, 8")
        e("  s_cbranch_scc1 f_main")
        e("  s_cmp_lg_u32 s2, 0")
        e("  s_cbranch_scc1 f_noepoch")
        e("  s_memrealtime s[40:41]")
        e("  s_waitcnt lgkmcnt(0)")
        e("  s_or_b32 s40, s40, 1")
        e("  v_mov_b32 v4, s40")
        e("  v_mov_b32 v5, 0")
        e("  s_mov_b64 s[42:43], exec")
        e("  s_mov_b64 exec, 1")
        e("  buffer_store_dword v4, v5, s[96:99], 0 offen sc1")
        e("  s_mov_b64 exec, s[42:43]")
        lab("f_noepoch")
        if OPT('F_PF', 1):
            e(f"  s_load_dwordx4 s[40:43], s[0:1], {KA_WSRE}")
            e("  s_and_b32 s44, s2, 7")
            e("  s_waitcnt lgkmcnt(0)")
            e("  s_cmp_lt_u32 s44, 4")
            e("  s_cselect_b32 s48, s40, s42")
            e("  s_cselect_b32 s49, s41, s43")
            e(f"  s_mov_b32 s50, {2048*2048*2}")
            e("  s_mov_b32 s51, 0x00020000")
            e("  s_and_b32 s44, s44, 3")
            e("  s_lshl_b32 s44, s44, 21")
            e("  s_lshr_b32 s45, s2, 3")
            e("  s_lshl_b32 s45, s45, 16")
            e("  s_add_u32 s44, s44, s45")
            e("  v_lshlrev_b32 v1, 4, v0")
            for q in range(64):
                e(f"  buffer_load_dwordx4 {vr(40+4*(q%24),4)}, v1, s[48:51], s44 offen")
                e("  s_add_u32 s44, s44, 1024")
        helper_wave()
        lab("f_main")
    srd(16, 4, 5, 2048*512*2)
    e("  s_cmp_lt_u32 s13, 4")
    e("  s_cselect_b32 s20, s8, s10")
    e("  s_cselect_b32 s21, s9, s11")
    e(f"  s_mov_b32 s22, {512*512*2}")
    e("  s_mov_b32 s23, 0x00020000")
    srd(24, 6, 7, 9 << 20)
    if not FUSE:
        e("  s_or_b32 s46, s2, s15")
        e("  s_cmp_lg_u32 s46, 0")
        e("  s_cbranch_scc1 k1_nozero")
        for q in range(4):
            e(f"  v_mov_b32 v{4+q}, 0")
        e("  v_lshlrev_b32 v8, 4, v0")
        e(f"  s_mov_b32 s46, {WS_FLAG}")
        e("  buffer_store_dwordx4 v[4:7], v8, s[24:27], s46 offen")
        lab("k1_nozero")
    e("  s_lshl_b32 s28, s12, 6")
    e("  s_lshl_b32 s29, s15, 3")
    e("  s_add_u32 s28, s28, s29")
    e("  v_add_u32 v4, s28, v2")
    e("  v_lshlrev_b32 v4, 10, v4")
    e("  v_lshl_add_u32 v4, v3, 4, v4")
    X = 32
    for j in range(8):
        e(f"  buffer_load_dwordx4 {vr(X+4*j,4)}, v4, s[16:19], 0 offen offset:{128*j}")
    e("  s_and_b32 s30, s13, 3")
    e("  s_lshl_b32 s30, s30, 7")
    for ii in range(2):
        e(f"  s_lshl_b32 s31, s15, 4")
        e(f"  s_add_u32 s31, s31, {8*ii}")
        e(f"  v_add_u32 v7, s31, v2")
        e(f"  v_lshrrev_b32 v8, 1, v7")
        e(f"  v_and_b32 v8, 7, v8")
        e(f"  v_xor_b32 v8, v8, v3")
        e(f"  v_add_u32 v7, s30, v7")
        e(f"  v_lshlrev_b32 v7, 10, v7")
        e(f"  v_lshl_add_u32 v{5+ii}, v8, 4, v7")
    e("  s_lshl_b32 s32, s15, 11")
    def wdma(kb):
        slot = kb % 4
        e(f"  s_mov_b32 s33, {128*kb}")
        for ii in range(2):
            e(f"  s_add_u32 m0, s32, {slot*16384 + ii*1024}")
            e("  s_nop 0")
            e(f"  buffer_load_dwordx4 v{5+ii}, s[20:23], s33 offen lds")
    for kb in range(4):
        wdma(kb)
    e("  s_mov_b32 s34, 0x3f803f80")
    for a in range(4):
        e(f"  v_mov_b32 v{8+a}, 0")
    e("  s_waitcnt vmcnt(8)")
    for i in range(32):
        e(f"  v_dot2_f32_bf16 v{8+i%4}, v{X+i}, s34, v{8+i%4}")
    e("  s_nop 3")
    e("  v_add_f32 v8, v8, v9")
    e("  v_add_f32 v10, v10, v11")
    e("  v_add_f32 v8, v8, v10")
    reduce8(8)
    e("  v_mul_f32 v8, 0x3b000000, v8")
    e("  v_cvt_pk_bf16_f32 v9, v8, v8")
    e("  v_lshlrev_b32 v9, 16, v9")
    e("  v_sub_f32 v10, 0, v9")
    e("  v_mov_b32 v11, v10")
    D = 64
    for a in range(4):
        e(f"  v_mov_b32 v{12+a}, 0")
    for i in range(32):
        e(f"  v_lshlrev_b32 v{D+2*i}, 16, v{X+i}")
        e(f"  v_and_b32 v{D+2*i+1}, 0xffff0000, v{X+i}")
        e(f"  v_pk_add_f32 {vr(D+2*i,2)}, {vr(D+2*i,2)}, v[10:11]")
        q = 12 + 2*(i % 2)
        e(f"  v_pk_fma_f32 {vr(q,2)}, {vr(D+2*i,2)}, {vr(D+2*i,2)}, {vr(q,2)}")
    e("  v_add_f32 v12, v12, v13")
    e("  v_add_f32 v14, v14, v15")
    e("  v_add_f32 v12, v12, v14")
    reduce8(12)
    e("  v_sub_f32 v13, v8, v9")
    e("  v_mul_f32 v13, v13, v13")
    e("  v_mul_f32 v12, 0x3b000000, v12")
    e("  v_sub_f32 v12, v12, v13")
    e("  v_max_f32 v12, 0, v12")
    e("  v_cvt_pk_bf16_f32 v12, v12, v12")
    e("  v_lshlrev_b32 v12, 16, v12")
    e("  v_add_f32 v12, 0x3727c5ac, v12")
    e("  v_cvt_pk_bf16_f32 v12, v12, v12")
    e("  v_lshlrev_b32 v12, 16, v12")
    e("  v_sqrt_f32 v12, v12")
    e("  s_nop 0")
    e("  v_cvt_pk_bf16_f32 v12, v12, v12")
    e("  v_lshlrev_b32 v12, 16, v12")
    e("  v_rcp_f32 v12, v12")
    e("  s_nop 0")
    e("  v_mov_b32 v13, v12")
    for i in range(32):
        e(f"  v_cvt_pk_bf16_f32 v{X+i}, v{D+2*i}, v{D+2*i+1}")
        e(f"  v_lshlrev_b32 v{D+2*i}, 16, v{X+i}")
        e(f"  v_and_b32 v{D+2*i+1}, 0xffff0000, v{X+i}")
        e(f"  v_pk_mul_f32 {vr(D+2*i,2)}, {vr(D+2*i,2)}, v[12:13]")
        e(f"  v_cvt_pk_bf16_f32 v{X+i}, v{D+2*i}, v{D+2*i+1}")
    e("  v_add_u32 v14, s29, v2")
    e("  v_lshrrev_b32 v15, 1, v14")
    e("  v_and_b32 v15, 7, v15")
    e("  v_xor_b32 v15, v15, v3")
    e("  v_lshlrev_b32 v14, 7, v14")
    e("  v_lshl_add_u32 v14, v15, 4, v14")
    e("  v_add_u32 v14, 0x10000, v14")
    for j in range(8):
        e(f"  ds_write_b128 v14, {vr(X+4*j,4)} offset:{8192*j}")
    e("  s_and_b32 s35, s15, 1")
    e("  s_lshr_b32 s36, s15, 1")
    e("  v_and_b32 v16, 31, v0")
    e("  v_lshrrev_b32 v17, 5, v0")
    def fragaddr(dst, sblk, base):
        e(f"  s_lshl_b32 s37, s{sblk}, 5")
        e(f"  v_add_u32 v18, s37, v16")
        e(f"  v_lshrrev_b32 v19, 1, v18")
        e(f"  v_and_b32 v19, 7, v19")
        e(f"  v_xor_b32 v19, v19, v17")
        e(f"  v_lshlrev_b32 v18, 7, v18")
        e(f"  v_lshl_add_u32 v{dst}, v19, 4, v18")
        if base:
            e(f"  v_add_u32 v{dst}, {base}, v{dst}")
        for kk in range(1, 4):
            e(f"  v_xor_b32 v{dst+kk}, {32*kk}, v{dst}")
    fragaddr(20, 35, 0x10000)
    fragaddr(24, 36, 0)
    ACC = 96
    for i in range(16):
        e(f"  v_mov_b32 v{ACC+i}, 0")
    FA, FB = 64, 80
    waits = [6, 4, 4, 4, 4, 4, 2, 0]
    for kb in range(8):
        e(f"  s_waitcnt vmcnt({waits[kb]}) lgkmcnt(0)")
        e("  s_barrier")
        if 1 <= kb <= 4:
            wdma(kb + 3)
        slot = kb % 4
        for kk in range(4):
            e(f"  ds_read_b128 {vr(FA+4*kk,4)}, v{20+kk} offset:{8192*kb}")
            e(f"  ds_read_b128 {vr(FB+4*kk,4)}, v{24+kk} offset:{16384*slot}")
        for kk in range(4):
            e(f"  s_waitcnt lgkmcnt({6-2*kk})")
            e(f"  v_mfma_f32_32x32x16_bf16 {vr(ACC,16)}, {vr(FA+4*kk,4)}, {vr(FB+4*kk,4)}, {vr(ACC,16)}")
    stamp(5)
    e("  s_lshl_b32 s37, s13, 1")
    e("  s_lshr_b32 s38, s36, 1")
    e("  s_add_u32 s37, s37, s38")
    e("  s_lshl_b32 s37, s37, 5")
    e("  s_add_u32 s37, s37, s12")
    e("  s_lshl_b32 s37, s37, 13")
    e("  s_and_b32 s38, s36, 1")
    e("  s_lshl_b32 s38, s38, 5")
    e("  v_add_u32 v18, s38, v16")
    e("  v_lshrrev_b32 v19, 1, v18")
    e("  v_and_b32 v19, 7, v19")
    e("  s_lshl_b32 s38, s35, 2")
    e("  v_add_u32 v29, s38, v17")
    e("  v_xor_b32 v29, v29, v19")
    e("  v_lshlrev_b32 v18, 7, v18")
    e("  v_lshl_add_u32 v30, v29, 4, v18")
    e("  v_xor_b32 v31, 32, v30")
    e("  s_nop 7")
    P = 112
    for g in range(4):
        e(f"  v_cvt_pk_bf16_f32 v{P+2*g}, v{ACC+4*g}, v{ACC+4*g+1}")
        e(f"  v_cvt_pk_bf16_f32 v{P+2*g+1}, v{ACC+4*g+2}, v{ACC+4*g+3}")
    e("  s_nop 1")
    for p in range(2):
        e(f"  v_permlane32_swap_b32 v{P+4*p}, v{P+4*p+2}")
        e(f"  v_permlane32_swap_b32 v{P+4*p+1}, v{P+4*p+3}")
    if not FUSE:
        e(f"  buffer_store_dwordx4 {vr(P,4)}, v30, s[24:27], s37 offen")
        e(f"  buffer_store_dwordx4 {vr(P+4,4)}, v31, s[24:27], s37 offen")
        lab("k1_done")
        kernel_end()
        e("  s_endpgm")
        kernel_desc(name, 160)
        return
    TR = 131072
    e(f"  s_load_dwordx4 s[8:11], s[0:1], {KA_WSRE}")
    e("  s_lshr_b32 s38, s36, 1")
    e("  s_lshl_b32 s38, s38, 13")
    e(f"  s_add_u32 s38, s38, {TR}")
    e("  v_add_u32 v30, s38, v30")
    e("  v_add_u32 v31, s38, v31")
    e(f"  ds_write_b128 v30, {vr(P,4)}")
    e(f"  ds_write_b128 v31, {vr(P+4,4)}")
    e("  v_lshlrev_b32 v29, 4, v0")
    e("  s_lshl_b32 s38, s15, 11")
    e(f"  s_add_u32 s39, s38, {TR}")
    e("  v_add_u32 v28, s39, v29")
    e("  s_waitcnt lgkmcnt(0)")
    e("  s_barrier")
    e("  ds_read_b128 v[64:67], v28")
    e("  ds_read_b128 v[68:71], v28 offset:1024")
    e("  s_lshl_b32 s37, s13, 1")
    e("  s_lshr_b32 s39, s15, 2")
    e("  s_add_u32 s37, s37, s39")
    e("  s_lshl_b32 s37, s37, 5")
    e("  s_add_u32 s37, s37, s12")
    e("  s_lshl_b32 s37, s37, 13")
    e("  s_and_b32 s39, s15, 3")
    e("  s_lshl_b32 s39, s39, 11")
    e("  s_add_u32 s37, s37, s39")
    e("  s_waitcnt lgkmcnt(1)")
    e("  buffer_store_dwordx4 v[64:67], v29, s[24:27], s37 offen sc1")
    e("  s_waitcnt lgkmcnt(0)")
    e("  buffer_store_dwordx4 v[68:71], v29, s[24:27], s37 offen offset:1024 sc1")
    e("  s_lshl_b32 s70, s13, 5")
    e("  s_add_u32 s70, s70, s12")
    e("  s_lshl_b32 s70, s70, 2")
    e(f"  s_add_u32 s70, s70, {WS_FA}")

def k2_epilogue_plain(ACC):
    e("  s_lshl_b32 s24, s14, 21")
    e(f"  s_add_u32 s24, s24, {WS_Y}")
    e("  s_lshl_b32 s30, s13, 7")
    e("  s_add_u32 s24, s24, s30")
    e("  s_lshl_b32 s30, s12, 7")
    e("  s_lshl_b32 s31, s15, 5")
    e("  s_add_u32 s30, s30, s31")
    e("  v_add_u32 v18, s30, v16")
    e("  v_lshlrev_b32 v18, 10, v18")
    e("  v_lshl_add_u32 v18, v17, 4, v18")
    e("  s_nop 7")
    P = 64
    for g in range(8):
        e(f"  v_cvt_pk_bf16_f32 v{P+2*g}, v{ACC+4*g}, v{ACC+4*g+1}")
        e(f"  v_cvt_pk_bf16_f32 v{P+2*g+1}, v{ACC+4*g+2}, v{ACC+4*g+3}")
    e("  s_nop 1")
    for p in range(4):
        e(f"  v_permlane32_swap_b32 v{P+4*p}, v{P+4*p+2}")
        e(f"  v_permlane32_swap_b32 v{P+4*p+1}, v{P+4*p+3}")
    for p in range(4):
        e(f"  buffer_store_dwordx4 {vr(P+4*p,4)}, v18, s[20:23], s24 offen offset:{32*p}")

ROW_O = 48
def reduce32(v, t):
    reduce16(v)
    e("  s_nop 1")
    e(f"  ds_swizzle_b32 v{t}, v{v} offset:0x401F")
    e("  s_waitcnt lgkmcnt(0)")
    e(f"  v_add_f32 v{v}, v{v}, v{t}")

def rowmac32_pre():
    XX, WR = 48, 64
    e("  v_lshlrev_b32 v3, 10, v1")
    e("  v_lshl_add_u32 v3, v2, 4, v3")
    e("  v_lshlrev_b32 v4, 4, v2")
    for j in range(2):
        e(f"  buffer_load_dwordx4 {vr(XX+4*j,4)}, v3, s[20:23], 0 offen offset:{512*j}")
        e(f"  buffer_load_dwordx4 {vr(WR+4*j,4)}, v4, s[28:31], 0 offen offset:{512*j}")

def rowmac32():
    YR, YI, XX, WR, H, T, D = 16, 32, 48, 64, 80, 112, 116
    O = ROW_O
    e(f"  s_mov_b32 s52, {WS_Y}")
    e(f"  s_mov_b32 s53, {WS_Y + (2<<20)}")
    for j in range(2):
        e(f"  buffer_load_dwordx4 {vr(YR+4*j,4)}, v3, s[24:27], s52 offen offset:{512*j} sc1")
        e(f"  buffer_load_dwordx4 {vr(YI+4*j,4)}, v3, s[24:27], s53 offen offset:{512*j} sc1")
    e("  v_mov_b32 v14, 0")
    e("  v_mov_b32 v15, 0")
    for j in range(2):
        e(f"  s_waitcnt vmcnt({2*(1-j)})")
        for q in range(4):
            i = 4*j + q
            e(f"  v_lshlrev_b32 v{T}, 16, v{YR+i}")
            e(f"  v_and_b32 v{T+1}, 0xffff0000, v{YR+i}")
            e(f"  v_lshlrev_b32 v{T+2}, 16, v{YI+i}")
            e(f"  v_and_b32 v{T+3}, 0xffff0000, v{YI+i}")
            e(f"  v_pk_add_f32 {vr(T,2)}, {vr(T,2)}, {vr(T+2,2)} neg_lo:[0,1] neg_hi:[0,1]")
            e(f"  v_cvt_pk_bf16_f32 v{T}, v{T}, v{T+1}")
            e(f"  v_and_b32 v{T+1}, 0xffff0000, v{T}")
            e(f"  v_lshlrev_b32 v{T}, 16, v{T}")
            e(f"  v_lshlrev_b32 v{T+2}, 16, v{XX+i}")
            e(f"  v_and_b32 v{T+3}, 0xffff0000, v{XX+i}")
            e(f"  v_pk_add_f32 {vr(T,2)}, {vr(T,2)}, {vr(T+2,2)}")
            e(f"  v_cvt_pk_bf16_f32 v{T}, v{T}, v{T+1}")
            e(f"  v_lshlrev_b32 v{H+2*i}, 16, v{T}")
            e(f"  v_and_b32 v{H+2*i+1}, 0xffff0000, v{T}")
            e(f"  v_pk_add_f32 v[14:15], v[14:15], {vr(H+2*i,2)}")
    e("  v_add_f32 v5, v14, v15")
    reduce32(5, 13)
    e("  v_mul_f32 v5, 0x3b000000, v5")
    e("  v_cvt_pk_bf16_f32 v6, v5, v5")
    e("  v_lshlrev_b32 v6, 16, v6")
    e("  v_sub_f32 v8, 0, v6")
    e("  v_mov_b32 v9, v8")
    e("  v_mov_b32 v10, 0")
    e("  v_mov_b32 v11, 0")
    for i in range(8):
        e(f"  v_pk_add_f32 {vr(D+2*i,2)}, {vr(H+2*i,2)}, v[8:9]")
        e(f"  v_pk_fma_f32 v[10:11], {vr(D+2*i,2)}, {vr(D+2*i,2)}, v[10:11]")
    e("  v_add_f32 v10, v10, v11")
    reduce32(10, 13)
    e("  v_sub_f32 v11, v5, v6")
    e("  v_mul_f32 v11, v11, v11")
    e("  v_mul_f32 v10, 0x3b000000, v10")
    e("  v_sub_f32 v10, v10, v11")
    e("  v_max_f32 v10, 0, v10")
    e("  v_cvt_pk_bf16_f32 v10, v10, v10")
    e("  v_lshlrev_b32 v10, 16, v10")
    e("  v_add_f32 v10, 0x3727c5ac, v10")
    e("  v_cvt_pk_bf16_f32 v10, v10, v10")
    e("  v_lshlrev_b32 v10, 16, v10")
    e("  v_sqrt_f32 v10, v10")
    e("  s_nop 0")
    e("  v_cvt_pk_bf16_f32 v10, v10, v10")
    e("  v_lshlrev_b32 v10, 16, v10")
    e("  v_rcp_f32 v10, v10")
    e("  s_nop 0")
    e("  v_mov_b32 v11, v10")
    e("  v_mov_b32 v12, 0")
    for i in range(8):
        e(f"  v_cvt_pk_bf16_f32 v{T}, v{D+2*i}, v{D+2*i+1}")
        e(f"  v_lshlrev_b32 v{D+2*i}, 16, v{T}")
        e(f"  v_and_b32 v{D+2*i+1}, 0xffff0000, v{T}")
        e(f"  v_pk_mul_f32 {vr(D+2*i,2)}, {vr(D+2*i,2)}, v[10:11]")
        e(f"  v_cvt_pk_bf16_f32 v{T}, v{D+2*i}, v{D+2*i+1}")
        e(f"  v_dot2_f32_bf16 v12, v{T}, v{WR+i}, v12")
        e(f"  v_lshlrev_b32 v{D+2*i}, 16, v{T}")
        e(f"  v_and_b32 v{D+2*i+1}, 0xffff0000, v{T}")
        e(f"  v_pk_add_f32 {vr(D+2*i,2)}, {vr(D+2*i,2)}, {vr(H+2*i,2)}")
        e(f"  v_cvt_pk_bf16_f32 v{O+i}, v{D+2*i}, v{D+2*i+1}")
    for j in range(2):
        e(f"  buffer_store_dwordx4 {vr(O+4*j,4)}, v3, s[44:47], 0 offen offset:{512*j}")
    e("  s_nop 3")
    reduce32(12, 13)
    e("  v_cvt_pk_bf16_f32 v12, v12, v12")
    e("  v_lshlrev_b32 v12, 16, v12")
    e("  v_ashrrev_i32 v13, 31, v12")
    e("  v_or_b32 v13, 0x80000000, v13")
    e("  v_xor_b32 v12, v12, v13")
    e("  v_and_b32 v12, 0xffff0000, v12")
    e("  v_sub_u32 v13, 0xffff, v1")
    e("  v_or_b32 v12, v12, v13")

def k2_epilogue_fused(ACC):
    TB = 49152
    e("  s_nop 7")
    P = 64
    for g in range(8):
        e(f"  v_cvt_pk_bf16_f32 v{P+2*g}, v{ACC+4*g}, v{ACC+4*g+1}")
        e(f"  v_cvt_pk_bf16_f32 v{P+2*g+1}, v{ACC+4*g+2}, v{ACC+4*g+3}")
    e("  s_mul_i32 s30, s15, 4608")
    e(f"  s_add_u32 s30, s30, {TB}")
    e("  v_mul_u32_u24 v18, 144, v16")
    e("  v_lshl_add_u32 v18, v17, 3, v18")
    e("  v_add_u32 v18, s30, v18")
    for g in range(8):
        e(f"  ds_write_b64 v18, {vr(P+2*g,2)} offset:{16*g}")
    e("  v_lshrrev_b32 v19, 3, v0")
    e("  v_and_b32 v22, 7, v0")
    e("  v_mul_u32_u24 v20, 144, v19")
    e("  v_lshl_add_u32 v20, v22, 4, v20")
    e("  v_add_u32 v20, s30, v20")
    e("  s_waitcnt lgkmcnt(0)")
    for q in range(4):
        e(f"  ds_read_b128 {vr(80+4*q,4)}, v20 offset:{8*144*q}")
    e("  s_lshl_b32 s24, s14, 21")
    e(f"  s_add_u32 s24, s24, {WS_Y}")
    e("  s_lshl_b32 s30, s13, 7")
    e("  s_add_u32 s24, s24, s30")
    e("  s_lshl_b32 s30, s12, 7")
    e("  s_lshl_b32 s31, s15, 5")
    e("  s_add_u32 s30, s30, s31")
    e("  v_add_u32 v21, s30, v19")
    e("  v_lshlrev_b32 v21, 10, v21")
    e("  v_lshl_add_u32 v21, v22, 4, v21")
    for q in range(4):
        e(f"  s_waitcnt lgkmcnt({3-q})")
        e(f"  buffer_store_dwordx4 {vr(80+4*q,4)}, v21, s[20:23], s24 offen sc1")
        if q < 3: e("  v_add_u32 v21, 0x2000, v21")
    e("  s_waitcnt vmcnt(0)")
    e("  s_barrier")
    e(f"  s_load_dwordx2 s[4:5], s[0:1], {KA_X}")
    e(f"  s_load_dwordx8 s[56:63], s[0:1], {KA_WR}")
    e(f"  s_load_dwordx2 s[64:65], s[0:1], {KA_OUT}")
    srd(24, 6, 7, 12 << 20)
    e("  s_lshl_b32 s48, s14, 3")
    e("  s_add_u32 s48, s48, s13")
    e("  s_cmp_lg_u32 s15, 0")
    e("  s_cbranch_scc1 k2_noflag")
    e("  s_lshl_b32 s49, s12, 6")
    e("  s_lshl_b32 s50, s48, 2")
    e("  s_add_u32 s49, s49, s50")
    e(f"  s_add_u32 s49, s49, {WS_FLAG}")
    e("  v_mov_b32 v4, s68" if FUSE else "  v_mov_b32 v4, 1")
    e("  v_mov_b32 v5, 0")
    e("  s_mov_b64 s[50:51], exec")
    e("  s_mov_b64 exec, 1")
    e("  buffer_store_dword v4, v5, s[24:27], s49 offen sc1")
    e("  s_mov_b64 exec, s[50:51]")
    lab("k2_noflag")
    e("  s_waitcnt lgkmcnt(0)")
    srd(20, 4, 5, 2 << 20)
    srd(28, 56, 57, 1024)
    srd(44, 64, 65, 2 << 20)
    e("  v_lshrrev_b32 v1, 5, v0")
    e("  v_and_b32 v2, 31, v0")
    e("  s_lshl_b32 s52, s12, 7")
    e("  s_lshl_b32 s53, s48, 3")
    e("  s_add_u32 s52, s52, s53")
    e("  s_lshl_b32 s53, s15, 1")
    e("  s_add_u32 s52, s52, s53")
    e("  v_add_u32 v1, s52, v1")
    rowmac32_pre()
    e("  v_and_b32 v7, 15, v0")
    e("  v_lshlrev_b32 v7, 2, v7")
    e("  s_lshl_b32 s49, s12, 6")
    e(f"  s_add_u32 s49, s49, {WS_FLAG}")
    e("  s_mov_b32 s53, 0")
    lab("k2_poll")
    e("  buffer_load_dword v4, v7, s[24:27], s49 offen sc1")
    e("  s_waitcnt vmcnt(0)")
    e("  v_cmp_ne_u32 s[54:55], s68, v4" if FUSE else "  v_cmp_eq_u32 s[54:55], 0, v4")
    e("  s_nop 3")
    e("  s_cmp_eq_u64 s[54:55], 0")
    e("  s_cbranch_scc1 k2_poll_ok")
    e("  s_add_u32 s53, s53, 1")
    e(f"  s_cmp_gt_u32 s53, {1 << 22}")
    e("  s_cbranch_scc1 k2_poll_ok")
    e("  s_branch k2_poll")
    lab("k2_poll_ok")
    stamp(3)
    rowmac32()
    stamp(4)
    e("  v_lshlrev_b32 v13, 2, v1")
    e("  v_lshlrev_b32 v14, 3, v1")
    e("  v_mov_b32 v7, v10")
    e("  v_cmp_eq_u32 vcc, 0, v2")
    e("  s_and_saveexec_b64 s[50:51], vcc")
    e(f"  s_mov_b32 s52, {WS_KEY}")
    e("  buffer_store_dword v12, v13, s[24:27], s52 offen")
    e(f"  s_mov_b32 s52, {WS_STAT}")
    e("  buffer_store_dwordx2 v[6:7], v14, s[24:27], s52 offen")
    e("  s_mov_b64 exec, s[50:51]")
    if OPT('K2_NOGU'): return
    e("  s_cmp_ge_u32 s15, 2")
    e("  s_cbranch_scc1 k2_done")
    e("  s_cmp_eq_u32 s15, 0")
    e("  s_cselect_b32 s40, s58, s60")
    e("  s_cselect_b32 s41, s59, s61")
    e(f"  s_mov_b32 s42, {512*1792*2}")
    e("  s_mov_b32 s43, 0x00020000")
    e("  s_and_b32 s52, s2, 7")
    e("  s_lshr_b32 s53, s2, 3")
    e("  v_min_u32 v1, 55, v0")
    e("  v_cmp_lt_u32 vcc, 27, v1")
    e("  s_nop 1")
    e("  v_cndmask_b32 v2, 0, 1, vcc")
    e("  v_mul_u32_u24 v3, 28, v2")
    e("  v_sub_u32 v3, v1, v3")
    e("  v_mul_u32_u24 v2, 3584, v2")
    e("  v_lshl_add_u32 v2, v3, 4, v2")
    e("  s_mul_i32 s54, s52, 448")
    e(f"  s_mul_i32 s55, s53, {16*3584}")
    e("  s_add_u32 s54, s54, s55")
    for q in range(8):
        e(f"  buffer_load_dwordx4 {vr(80+4*q,4)}, v2, s[40:43], s54 offen")
        e(f"  s_add_u32 s54, s54, {2*3584}")

K2_NS = OPT('K2_NS', 6)
def gen_k2():
    NS = K2_NS
    name = "f_kernel" if FUSE else "k2_kernel"
    YBASE = NS * 16384
    if not FUSE:
        kernel_begin(name)
        e("  s_cmp_ge_u32 s2, 256")
        e("  s_cbranch_scc1 k2_done")
        e(f"  s_load_dwordx4 s[8:11], s[0:1], {KA_WSRE}")
        e(f"  s_load_dwordx2 s[6:7], s[0:1], {KA_WS}")
        e(f"  s_load_dwordx2 s[34:35], s[0:1], {KA_WDN}")
    else:
        e("  s_mov_b32 s71, s15")
    e("  s_and_b32 s12, s2, 7")
    e("  s_lshr_b32 s13, s2, 3")
    e("  s_lshr_b32 s14, s12, 2")
    e("  s_and_b32 s12, s12, 3")
    e("  s_lshl_b32 s12, s12, 2")
    e("  s_lshr_b32 s15, s13, 3")
    e("  s_add_u32 s12, s12, s15")
    e("  s_and_b32 s13, s13, 7")
    if FUSE:
        e("  s_mov_b32 s15, s71")
    else:
        e("  v_lshrrev_b32 v1, 6, v0")
        e("  v_and_b32 v0, 63, v0")
        e("  v_readfirstlane_b32 s15, v1")
    e("  v_lshrrev_b32 v2, 3, v0")
    e("  v_and_b32 v3, 7, v0")
    e("  s_waitcnt lgkmcnt(0)")
    e("  s_cmp_eq_u32 s14, 0")
    e("  s_cselect_b32 s16, s8, s10")
    e("  s_cselect_b32 s17, s9, s11")
    e(f"  s_mov_b32 s18, {2048*2048*2}")
    e("  s_mov_b32 s19, 0x00020000")
    srd(20, 6, 7, 9 << 20)
    e("  s_cmp_lt_u32 s15, 4")
    e("  s_cbranch_scc1 k2_consumer")
    if not FUSE:
        e("  s_cmp_lt_u32 s15, 8")
        e("  s_cbranch_scc1 k2_loader")
    if not FUSE: helper_wave()
    lab("k2_loader")
    e("  s_sub_u32 s15, s15, 4")
    for ii in range(4):
        e(f"  s_lshl_b32 s24, s15, 5")
        e(f"  s_add_u32 s24, s24, {8*ii}")
        e(f"  v_add_u32 v10, s24, v2")
        e(f"  v_lshrrev_b32 v11, 1, v10")
        e(f"  v_and_b32 v11, 7, v11")
        e(f"  v_xor_b32 v11, v11, v3")
        e(f"  s_lshl_b32 s24, s12, 7")
        e(f"  v_add_u32 v10, s24, v10")
        e(f"  v_lshlrev_b32 v10, 12, v10")
        e(f"  v_lshl_add_u32 v{4+ii}, v11, 4, v10")
    e("  s_lshl_b32 s24, s15, 11")
    e("  v_lshlrev_b32 v8, 4, v0")
    e("  v_add_u32 v8, s24, v8")
    e("  v_add_u32 v9, 1024, v8")
    e("  s_mov_b32 s25, 0")
    e("  s_lshl_b32 s26, s14, 3")
    e("  s_add_u32 s26, s26, s13")
    e("  s_lshl_b32 s26, s26, 18")
    e("  s_lshl_b32 s27, s15, 12")
    e("  s_lshl_b32 s28, s15, 11")
    e(f"  s_add_u32 s28, s28, {YBASE}")
    YSC = " sc1" if FUSE else ""
    def dmaY(slot, so="s26"):
        for i in range(2):
            e(f"  s_add_u32 m0, s28, {slot*8192 + i*1024}")
            e("  s_nop 0")
            e(f"  buffer_load_dwordx4 v{8+i}, s[20:23], {so} offen{YSC} lds")
    def dmaW(slot):
        for i in range(4):
            e(f"  s_add_u32 m0, s27, {slot*16384 + i*1024}")
            e("  s_nop 0")
            e(f"  buffer_load_dwordx4 v{4+i}, s[16:19], s25 offen lds")
    def adv():
        e("  s_add_u32 s25, s25, 128")
        e("  s_and_b32 s25, s25, 4095")
        e("  s_lshl_b32 s29, s25, 6")
        e("  s_add_u32 s26, s33, s29")
    def dma(slot):
        dmaY(slot); dmaW(slot); adv()
    e("  s_mov_b32 s33, s26")
    e(f"  s_mul_i32 s25, s13, {128*OPT('K2_ROT', 4)}")
    e("  s_and_b32 s25, s25, 4095")
    e("  s_lshl_b32 s29, s25, 6")
    e("  s_add_u32 s26, s33, s29")
    if not FUSE:
        for st in range(NS):
            dma(st)
        e(f"  s_waitcnt vmcnt({6*(NS-1)})")
        e("  s_barrier")
        for ks in range(31):
            ahead = min(ks + NS - 1, 31) - (ks + 1)
            e(f"  s_waitcnt vmcnt({6*ahead})")
            e("  s_barrier")
            if ks + NS < 32:
                dma(ks % NS)
    else:
        e("  s_mov_b32 s30, s25")
        for st in range(NS):
            dmaW(st); adv()
        e(f"  s_waitcnt vmcnt({4*NS})")
        e("  s_barrier")
        get_epoch("ld")
        e("  s_lshl_b32 s31, s14, 2")
        e("  s_lshr_b32 s32, s13, 1")
        e("  s_add_u32 s31, s31, s32")
        e("  s_lshl_b32 s31, s31, 7")
        e(f"  s_add_u32 s31, s31, {WS_FA}")
        e("  v_and_b32 v10, 31, v0")
        e("  v_lshlrev_b32 v10, 2, v10")
        e("  s_mov_b32 s69, 0")
        lab("f_pollA")
        e("  buffer_load_dword v11, v10, s[20:23], s31 offen sc1")
        e("  s_waitcnt vmcnt(0)")
        e("  v_cmp_ne_u32 s[36:37], s68, v11")
        e("  s_nop 3")
        e("  s_cmp_eq_u64 s[36:37], 0")
        e("  s_cbranch_scc1 f_pollA_ok")
        e("  s_add_u32 s69, s69, 1")
        e(f"  s_cmp_gt_u32 s69, {1 << 22}")
        e("  s_cbranch_scc1 f_pollA_ok")
        e("  s_branch f_pollA")
        lab("f_pollA_ok")
        stamp(1)
        for st in range(NS):
            e("  s_lshl_b32 s29, s30, 6")
            e("  s_add_u32 s31, s33, s29")
            dmaY(st, "s31")
            e("  s_add_u32 s30, s30, 128")
            e("  s_and_b32 s30, s30, 4095")
        e(f"  s_waitcnt vmcnt({2*(NS-1)})")
        e("  s_barrier")
        for ks in range(31):
            if ks + 1 <= NS - 1:
                allowed = 2 * (NS - 1 - (ks + 1)) + 6 * ks
            else:
                allowed = 6 * (min(ks + NS - 1, 31) - (ks + 1))
            e(f"  s_waitcnt vmcnt({allowed})")
            e("  s_barrier")
            if ks + NS < 32:
                dma(ks % NS)
    e("  s_branch k2_done")
    lab("k2_consumer")
    if FUSE:
        get_epoch("co")
        e("  s_barrier")
        e("  s_cmp_lg_u32 s15, 0")
        e("  s_cbranch_scc1 f_noflagA")
        e("  v_mov_b32 v4, s68")
        e("  v_mov_b32 v5, 0")
        e("  s_mov_b64 s[36:37], exec")
        e("  s_mov_b64 exec, 1")
        e("  buffer_store_dword v4, v5, s[20:23], s70 offen sc1")
        e("  s_mov_b64 exec, s[36:37]")
        lab("f_noflagA")
    e("  v_and_b32 v16, 31, v0")
    e("  v_lshrrev_b32 v17, 5, v0")
    e("  s_lshl_b32 s24, s15, 5")
    e("  v_add_u32 v18, s24, v16")
    e("  v_lshrrev_b32 v19, 1, v18")
    e("  v_and_b32 v19, 7, v19")
    e("  v_xor_b32 v19, v19, v17")
    e("  v_lshlrev_b32 v18, 7, v18")
    e("  v_lshl_add_u32 v20, v19, 4, v18")
    for kk in range(1, 4):
        e(f"  v_xor_b32 v{20+kk}, {32*kk}, v20")
    for kk in range(4):
        e(f"  v_add_u32 v{28+kk}, 0x10000, v{20+kk}")
    e("  v_lshrrev_b32 v19, 1, v16")
    e("  v_and_b32 v19, 7, v19")
    e("  v_xor_b32 v19, v19, v17")
    e("  v_lshlrev_b32 v18, 7, v16")
    e("  v_lshl_add_u32 v24, v19, 4, v18")
    e(f"  v_add_u32 v24, {YBASE}, v24")
    for kk in range(1, 4):
        e(f"  v_xor_b32 v{24+kk}, {32*kk}, v24")
    ACC = 32
    for i in range(32):
        e(f"  v_mov_b32 v{ACC+i}, 0")
    def FW(st): return 64 + 48 * (st % 2)
    def FY(st): return 80 + 48 * (st % 2)
    def rd(st, kk):
        slot = st % NS
        wb = 20 if slot < 4 else 28
        e(f"  ds_read_b128 {vr(FW(st)+4*kk,4)}, v{wb+kk} offset:{16384*(slot%4)}")
        e(f"  ds_read_b128 {vr(FY(st)+8*kk,4)}, v{24+kk} offset:{8192*slot}")
        e(f"  ds_read_b128 {vr(FY(st)+8*kk+4,4)}, v{24+kk} offset:{8192*slot+4096}")
    e("  s_barrier")
    stamp(2)
    for kk in range(4):
        rd(0, kk)
    def mf(st, kk, half):
        e(f"  v_mfma_f32_32x32x16_bf16 {vr(ACC+16*half,16)}, {vr(FY(st)+8*kk+4*half,4)}, {vr(FW(st)+4*kk,4)}, {vr(ACC+16*half,16)}")
    for ks in range(32):
        more = ks + 1 < 32
        e("  s_waitcnt lgkmcnt(0)")
        if more and not OPT('K2_NOBAR'):
            e("  s_barrier")
        if OPT('K2_NOBAR') == 2: continue
        r = (lambda kk: rd(ks + 1, kk)) if more else (lambda kk: None)
        mf(ks, 0, 0); r(0); mf(ks, 0, 1); r(1)
        mf(ks, 1, 0); r(2); mf(ks, 1, 1); r(3)
        mf(ks, 2, 0); mf(ks, 2, 1)
        mf(ks, 3, 0); mf(ks, 3, 1)
    stamp(6)
    if not OPT('K2T1', 1):
        k2_epilogue_plain(ACC)
    else:
        k2_epilogue_fused(ACC)
    lab("k2_done")
    kernel_end()
    e("  s_endpgm")
    kernel_desc(name, 160)

def gen_t1():
    name = "t1_kernel"
    kernel_begin(name)
    e("  s_cmp_ge_u32 s2, 256")
    e("  s_cbranch_scc1 t1_done")
    e(f"  s_load_dwordx2 s[4:5], s[0:1], {KA_X}")
    e(f"  s_load_dwordx2 s[6:7], s[0:1], {KA_WS}")
    e(f"  s_load_dwordx2 s[8:9], s[0:1], {KA_WR}")
    e(f"  s_load_dwordx2 s[10:11], s[0:1], {KA_OUT}")
    if OPT('T1_PF', 1):
        e(f"  s_load_dwordx4 s[32:35], s[0:1], {KA_WG}")
        e("  v_lshrrev_b32 v1, 6, v0")
        e("  s_nop 0")
        e("  v_readfirstlane_b32 s3, v1")
        e("  s_cmp_lg_u32 s3, 2")
        e("  s_cbranch_scc1 t1_main")
        e("  s_waitcnt lgkmcnt(0)")
        srd(40, 32, 33, 512*1792*2)
        srd(44, 34, 35, 512*1792*2)
        e("  v_and_b32 v0, 63, v0")
        e("  s_and_b32 s52, s2, 7")
        e("  s_lshr_b32 s53, s2, 3")
        e("  v_min_u32 v1, 55, v0")
        e("  v_cmp_lt_u32 vcc, 27, v1")
        e("  v_cndmask_b32 v2, 0, 1, vcc")
        e("  v_mul_u32_u24 v3, 28, v2")
        e("  v_sub_u32 v3, v1, v3")
        e("  v_mul_u32_u24 v2, 3584, v2")
        e("  v_lshl_add_u32 v2, v3, 4, v2")
        e("  s_mul_i32 s54, s52, 448")
        e(f"  s_mul_i32 s55, s53, {16*3584}")
        e("  s_add_u32 s54, s54, s55")
        for q in range(8):
            e(f"  buffer_load_dwordx4 {vr(8+8*q,4)}, v2, s[40:43], s54 offen")
            e(f"  buffer_load_dwordx4 {vr(12+8*q,4)}, v2, s[44:47], s54 offen")
            e(f"  s_add_u32 s54, s54, {2*3584}")
        e("  s_branch t1_done")
        lab("t1_main")
    e("  v_lshrrev_b32 v1, 4, v0")
    e("  v_and_b32 v2, 15, v0")
    e("  s_lshl_b32 s3, s2, 3")
    e("  v_add_u32 v1, s3, v1")
    e("  v_lshlrev_b32 v3, 10, v1")
    e("  v_lshl_add_u32 v3, v2, 4, v3")
    e("  v_lshlrev_b32 v4, 4, v2")
    e("  s_waitcnt lgkmcnt(0)")
    srd(12, 4, 5, 2 << 20)
    srd(16, 6, 7, 9 << 20)
    srd(20, 8, 9, 1024)
    srd(24, 10, 11, 2 << 20)
    e(f"  s_mov_b32 s28, {WS_Y}")
    e(f"  s_mov_b32 s29, {WS_Y + (2<<20)}")
    YR, YI, XX, WR = 16, 32, 48, 64
    for j in range(4):
        e(f"  buffer_load_dwordx4 {vr(YR+4*j,4)}, v3, s[16:19], s28 offen offset:{256*j}")
        e(f"  buffer_load_dwordx4 {vr(YI+4*j,4)}, v3, s[16:19], s29 offen offset:{256*j}")
        e(f"  buffer_load_dwordx4 {vr(XX+4*j,4)}, v3, s[12:15], 0 offen offset:{256*j}")
    for j in range(4):
        e(f"  buffer_load_dwordx4 {vr(WR+4*j,4)}, v4, s[20:23], 0 offen offset:{256*j}")
    H = 80
    T = 112
    e("  v_mov_b32 v14, 0")
    e("  v_mov_b32 v15, 0")
    for j in range(4):
        e(f"  s_waitcnt vmcnt({4 + 3*(3-j)})")
        for q in range(4):
            i = 4*j + q
            e(f"  v_lshlrev_b32 v{T}, 16, v{YR+i}")
            e(f"  v_and_b32 v{T+1}, 0xffff0000, v{YR+i}")
            e(f"  v_lshlrev_b32 v{T+2}, 16, v{YI+i}")
            e(f"  v_and_b32 v{T+3}, 0xffff0000, v{YI+i}")
            e(f"  v_pk_add_f32 {vr(T,2)}, {vr(T,2)}, {vr(T+2,2)} neg_lo:[0,1] neg_hi:[0,1]")
            e(f"  v_cvt_pk_bf16_f32 v{T}, v{T}, v{T+1}")
            e(f"  v_and_b32 v{T+1}, 0xffff0000, v{T}")
            e(f"  v_lshlrev_b32 v{T}, 16, v{T}")
            e(f"  v_lshlrev_b32 v{T+2}, 16, v{XX+i}")
            e(f"  v_and_b32 v{T+3}, 0xffff0000, v{XX+i}")
            e(f"  v_pk_add_f32 {vr(T,2)}, {vr(T,2)}, {vr(T+2,2)}")
            e(f"  v_cvt_pk_bf16_f32 v{T}, v{T}, v{T+1}")
            e(f"  v_lshlrev_b32 v{H+2*i}, 16, v{T}")
            e(f"  v_and_b32 v{H+2*i+1}, 0xffff0000, v{T}")
            e(f"  v_pk_add_f32 v[14:15], v[14:15], {vr(H+2*i,2)}")
    e("  v_add_f32 v5, v14, v15")
    reduce16(5)
    e("  v_mul_f32 v5, 0x3b000000, v5")
    e("  v_cvt_pk_bf16_f32 v6, v5, v5")
    e("  v_lshlrev_b32 v6, 16, v6")
    e("  v_sub_f32 v8, 0, v6")
    e("  v_mov_b32 v9, v8")
    e("  v_mov_b32 v10, 0")
    e("  v_mov_b32 v11, 0")
    D = 116
    for i in range(16):
        e(f"  v_pk_add_f32 {vr(D+2*i,2)}, {vr(H+2*i,2)}, v[8:9]")
        e(f"  v_pk_fma_f32 v[10:11], {vr(D+2*i,2)}, {vr(D+2*i,2)}, v[10:11]")
    e("  v_add_f32 v10, v10, v11")
    reduce16(10)
    e("  v_sub_f32 v11, v5, v6")
    e("  v_mul_f32 v11, v11, v11")
    e("  v_mul_f32 v10, 0x3b000000, v10")
    e("  v_sub_f32 v10, v10, v11")
    e("  v_max_f32 v10, 0, v10")
    e("  v_cvt_pk_bf16_f32 v10, v10, v10")
    e("  v_lshlrev_b32 v10, 16, v10")
    e("  v_add_f32 v10, 0x3727c5ac, v10")
    e("  v_cvt_pk_bf16_f32 v10, v10, v10")
    e("  v_lshlrev_b32 v10, 16, v10")
    e("  v_sqrt_f32 v10, v10")
    e("  s_nop 0")
    e("  v_cvt_pk_bf16_f32 v10, v10, v10")
    e("  v_lshlrev_b32 v10, 16, v10")
    e("  v_rcp_f32 v10, v10")
    e("  s_nop 0")
    e("  v_mov_b32 v11, v10")
    e("  v_mov_b32 v12, 0")
    e("  s_waitcnt vmcnt(0)")
    O = 16
    for i in range(16):
        e(f"  v_cvt_pk_bf16_f32 v{T}, v{D+2*i}, v{D+2*i+1}")
        e(f"  v_lshlrev_b32 v{D+2*i}, 16, v{T}")
        e(f"  v_and_b32 v{D+2*i+1}, 0xffff0000, v{T}")
        e(f"  v_pk_mul_f32 {vr(D+2*i,2)}, {vr(D+2*i,2)}, v[10:11]")
        e(f"  v_cvt_pk_bf16_f32 v{T}, v{D+2*i}, v{D+2*i+1}")
        e(f"  v_dot2_f32_bf16 v12, v{T}, v{WR+i}, v12")
        e(f"  v_lshlrev_b32 v{D+2*i}, 16, v{T}")
        e(f"  v_and_b32 v{D+2*i+1}, 0xffff0000, v{T}")
        e(f"  v_pk_add_f32 {vr(D+2*i,2)}, {vr(D+2*i,2)}, {vr(H+2*i,2)}")
        e(f"  v_cvt_pk_bf16_f32 v{O+i}, v{D+2*i}, v{D+2*i+1}")
    for j in range(4):
        e(f"  buffer_store_dwordx4 {vr(O+4*j,4)}, v3, s[24:27], 0 offen offset:{256*j}")
    e("  s_nop 3")
    reduce16(12)
    e("  v_cvt_pk_bf16_f32 v12, v12, v12")
    e("  v_lshlrev_b32 v12, 16, v12")
    e("  v_ashrrev_i32 v13, 31, v12")
    e("  v_or_b32 v13, 0x80000000, v13")
    e("  v_xor_b32 v12, v12, v13")
    e("  v_and_b32 v12, 0xffff0000, v12")
    e("  v_sub_u32 v13, 0xffff, v1")
    e("  v_or_b32 v12, v12, v13")
    e("  v_cmp_eq_u32 vcc, 0, v2")
    e("  s_and_saveexec_b64 s[30:31], vcc")
    e("  v_lshlrev_b32 v13, 2, v1")
    e(f"  s_mov_b32 s28, {WS_KEY}")
    e("  buffer_store_dword v12, v13, s[16:19], s28 offen")
    e("  v_lshlrev_b32 v13, 3, v1")
    e("  v_mov_b32 v7, v10")
    e(f"  s_mov_b32 s28, {WS_STAT}")
    e("  buffer_store_dwordx2 v[6:7], v13, s[16:19], s28 offen")
    lab("t1_done")
    kernel_end()
    e("  s_endpgm")
    kernel_desc(name, 148)

def recompute(YR, YI, XX, nd, NEGM, RINV, HOUT, XNOUT, T):
    for i in range(nd):
        e(f"  v_lshlrev_b32 v{T}, 16, v{YR+i}")
        e(f"  v_and_b32 v{T+1}, 0xffff0000, v{YR+i}")
        e(f"  v_lshlrev_b32 v{T+2}, 16, v{YI+i}")
        e(f"  v_and_b32 v{T+3}, 0xffff0000, v{YI+i}")
        e(f"  v_pk_add_f32 {vr(T,2)}, {vr(T,2)}, {vr(T+2,2)} neg_lo:[0,1] neg_hi:[0,1]")
        e(f"  v_cvt_pk_bf16_f32 v{T}, v{T}, v{T+1}")
        e(f"  v_and_b32 v{T+1}, 0xffff0000, v{T}")
        e(f"  v_lshlrev_b32 v{T}, 16, v{T}")
        e(f"  v_lshlrev_b32 v{T+2}, 16, v{XX+i}")
        e(f"  v_and_b32 v{T+3}, 0xffff0000, v{XX+i}")
        e(f"  v_pk_add_f32 {vr(T,2)}, {vr(T,2)}, {vr(T+2,2)}")
        e(f"  v_cvt_pk_bf16_f32 v{T}, v{T}, v{T+1}")
        e(f"  v_lshlrev_b32 v{HOUT+2*i}, 16, v{T}")
        e(f"  v_and_b32 v{HOUT+2*i+1}, 0xffff0000, v{T}")
        e(f"  v_pk_add_f32 {vr(T,2)}, {vr(HOUT+2*i,2)}, {vr(NEGM,2)}")
        e(f"  v_cvt_pk_bf16_f32 v{T}, v{T}, v{T+1}")
        e(f"  v_and_b32 v{T+1}, 0xffff0000, v{T}")
        e(f"  v_lshlrev_b32 v{T}, 16, v{T}")
        e(f"  v_pk_mul_f32 {vr(T,2)}, {vr(T,2)}, {vr(RINV,2)}")
        e(f"  v_cvt_pk_bf16_f32 v{XNOUT+i}, v{T}, v{T+1}")

XS_STRIDE = 1040
def gen_t2():
    name = "t2_kernel"
    kernel_begin(name)
    LDS_G, LDS_U, LDS_XS, LDS_C = 0, 8192, 16384, 16384 + 8*XS_STRIDE
    e("  s_cmp_ge_u32 s2, 224")
    e("  s_cbranch_scc1 t2_done")
    e(f"  s_load_dwordx2 s[4:5], s[0:1], {KA_X}")
    e(f"  s_load_dwordx2 s[6:7], s[0:1], {KA_WS}")
    e(f"  s_load_dwordx4 s[8:11], s[0:1], {KA_WG}")
    e("  s_and_b32 s3, s2, 7")
    e("  s_mul_i32 s3, s3, 28")
    e("  s_lshr_b32 s12, s2, 3")
    e("  s_add_u32 s3, s3, s12")
    e("  v_mov_b32 v40, v0")
    e("  v_lshrrev_b32 v1, 6, v0")
    e("  v_and_b32 v0, 63, v0")
    e("  v_readfirstlane_b32 s13, v1")
    e("  s_waitcnt lgkmcnt(0)")
    srd(16, 4, 5, 2 << 20)
    srd(20, 6, 7, 9 << 20)
    srd(24, 8, 9, 512*1792*2)
    srd(28, 10, 11, 512*1792*2)
    e("  v_lshlrev_b32 v2, 5, v40")
    e(f"  s_mov_b32 s14, {WS_KEY}")
    e("  buffer_load_dwordx4 v[8:11], v2, s[20:23], s14 offen")
    e("  buffer_load_dwordx4 v[12:15], v2, s[20:23], s14 offen offset:16")
    e("  s_lshl_b32 s15, s3, 4")
    e("  s_movk_i32 s32, 3584")
    for ii in range(2):
        e(f"  s_lshl_b32 s33, s13, 7")
        e(f"  s_add_u32 s33, s33, {64*ii}")
        e(f"  v_add_u32 v3, s33, v0")
        e(f"  v_mul_lo_u32 v3, v3, s32")
        e(f"  s_lshl_b32 s34, s13, 11")
        e(f"  s_add_u32 m0, s34, {LDS_G + 1024*ii}")
        e("  s_nop 0")
        e(f"  buffer_load_dwordx4 v3, s[24:27], s15 offen lds")
        e(f"  s_add_u32 m0, s34, {LDS_U + 1024*ii}")
        e("  s_nop 0")
        e(f"  buffer_load_dwordx4 v3, s[28:31], s15 offen lds")
    stamp(1)
    e("  s_waitcnt vmcnt(4)")
    stamp(2)
    e("  v_mov_b32 v20, 0")
    for rnd in range(8):
        e("  v_max3_u32 v16, v8, v9, v10")
        e("  v_max3_u32 v17, v11, v12, v13")
        e("  v_max3_u32 v16, v16, v14, v15")
        e("  v_max_u32 v16, v16, v17")
        e("  s_nop 1")
        e("  v_max_u32_dpp v16, v16, v16 quad_perm:[1,0,3,2] row_mask:0xf bank_mask:0xf")
        e("  s_nop 1")
        e("  v_max_u32_dpp v16, v16, v16 quad_perm:[2,3,0,1] row_mask:0xf bank_mask:0xf")
        e("  s_nop 1")
        e("  v_max_u32_dpp v16, v16, v16 row_half_mirror row_mask:0xf bank_mask:0xf")
        e("  s_nop 1")
        e("  v_max_u32_dpp v16, v16, v16 row_mirror row_mask:0xf bank_mask:0xf")
        e("  s_nop 1")
        e("  v_readlane_b32 s36, v16, 0")
        e("  v_readlane_b32 s37, v16, 16")
        e("  v_readlane_b32 s38, v16, 32")
        e("  v_readlane_b32 s39, v16, 48")
        e("  s_max_u32 s36, s36, s37")
        e("  s_max_u32 s38, s38, s39")
        e("  s_max_u32 s36, s36, s38")
        e(f"  v_writelane_b32 v20, s36, {rnd}")
        if rnd < 7:
            for k in range(8):
                e(f"  v_cmp_ne_u32 vcc, s36, v{8+k}")
                e("  s_nop 1")
                e(f"  v_cndmask_b32 v{8+k}, 0, v{8+k}, vcc")
    e("  s_lshl_b32 s33, s13, 5")
    e(f"  s_add_u32 s33, s33, {LDS_C}")
    e("  v_lshlrev_b32 v3, 2, v0")
    e("  v_add_u32 v3, s33, v3")
    e("  v_cmp_gt_u32 vcc, 8, v0")
    e("  s_and_saveexec_b64 s[40:41], vcc")
    e("  ds_write_b32 v3, v20")
    e("  s_mov_b64 exec, s[40:41]")
    e("  s_waitcnt lgkmcnt(0)")
    e("  s_barrier")
    e("  v_and_b32 v3, 31, v0")
    e("  v_lshlrev_b32 v3, 2, v3")
    e(f"  ds_read_b32 v21, v3 offset:{LDS_C}")
    e("  v_mov_b32 v22, 0")
    e("  s_waitcnt lgkmcnt(0)")
    for i in range(32):
        e(f"  v_readlane_b32 s36, v21, {i}")
        e("  s_nop 1")
        e("  v_cmp_gt_u32 vcc, s36, v21")
        e("  s_nop 1")
        e("  v_addc_co_u32 v22, vcc, 0, v22, vcc")
    e("  v_cmp_gt_u32 vcc, 8, v22")
    e("  v_cmp_gt_u32 s[42:43], 32, v0")
    e("  s_and_b64 vcc, vcc, s[42:43]")
    e("  v_lshlrev_b32 v3, 2, v22")
    e("  s_and_saveexec_b64 s[40:41], vcc")
    e(f"  ds_write_b32 v3, v21 offset:{LDS_C+128}")
    e("  s_mov_b64 exec, s[40:41]")
    e("  s_waitcnt lgkmcnt(0)")
    e("  s_barrier")
    stamp(3)
    e("  v_lshrrev_b32 v4, 5, v40")
    e("  v_and_b32 v5, 31, v40")
    e("  v_lshlrev_b32 v3, 2, v4")
    e(f"  ds_read_b32 v6, v3 offset:{LDS_C+128}")
    e("  s_waitcnt lgkmcnt(0)")
    e("  s_cmp_lg_u32 s3, 0")
    e("  s_cbranch_scc1 t2_nopub")
    e("  v_cmp_eq_u32 vcc, 0, v5")
    e("  s_and_saveexec_b64 s[40:41], vcc")
    e(f"  s_mov_b32 s14, {WS_IDX}")
    e("  buffer_store_dword v6, v3, s[20:23], s14 offen")
    e("  s_mov_b64 exec, s[40:41]")
    lab("t2_nopub")
    e("  v_and_b32 v6, 0xffff, v6")
    e("  v_sub_u32 v6, 0xffff, v6")
    e("  v_lshlrev_b32 v7, 10, v6")
    e("  v_lshl_add_u32 v7, v5, 4, v7")
    e(f"  s_mov_b32 s14, {WS_Y}")
    e(f"  s_mov_b32 s15, {WS_Y + (2<<20)}")
    YR, YI, XX = 24, 32, 44
    for j in range(2):
        e(f"  buffer_load_dwordx4 {vr(YR+4*j,4)}, v7, s[20:23], s14 offen offset:{512*j}")
        e(f"  buffer_load_dwordx4 {vr(YI+4*j,4)}, v7, s[20:23], s15 offen offset:{512*j}")
        e(f"  buffer_load_dwordx4 {vr(XX+4*j,4)}, v7, s[16:19], 0 offen offset:{512*j}")
    e("  v_lshlrev_b32 v3, 3, v6")
    e(f"  s_mov_b32 s14, {WS_STAT}")
    e("  buffer_load_dwordx2 v[52:53], v3, s[20:23], s14 offen")
    e("  s_waitcnt vmcnt(0)")
    stamp(4)
    e("  v_sub_f32 v54, 0, v52")
    e("  v_mov_b32 v55, v54")
    e("  v_mov_b32 v52, v53")
    recompute(YR, YI, XX, 8, 54, 52, 64, 80, 56)
    e(f"  v_mul_u32_u24 v3, {XS_STRIDE}, v4")
    e("  v_lshl_add_u32 v3, v5, 4, v3")
    e(f"  ds_write_b128 v3, v[80:83] offset:{LDS_XS}")
    e(f"  ds_write_b128 v3, v[84:87] offset:{LDS_XS+512}")
    e("  s_waitcnt lgkmcnt(0)")
    e("  s_barrier")
    e("  s_cmp_lg_u32 s13, 0")
    e("  s_cbranch_scc1 t2_done")
    stamp(5)
    e("  v_and_b32 v3, 7, v0")
    e(f"  v_mul_u32_u24 v3, {XS_STRIDE}, v3")
    e("  v_lshrrev_b32 v4, 4, v0")
    e("  v_lshl_add_u32 v3, v4, 4, v3")
    e("  v_and_b32 v5, 15, v0")
    e("  v_lshrrev_b32 v5, 2, v5")
    e("  v_lshl_add_u32 v5, v4, 3, v5")
    e("  v_lshlrev_b32 v5, 4, v5")
    e("  v_and_b32 v6, 1, v0")
    e("  v_lshl_add_u32 v5, v6, 3, v5")
    e("  v_and_b32 v6, 2, v0")
    e("  v_lshl_add_u32 v5, v6, 12, v5")
    for i in range(4):
        e(f"  v_mov_b32 v{8+i}, 0")
    FA, FB = 64, 128
    for st in range(16):
        e(f"  ds_read_b128 {vr(FA+4*st,4)}, v3 offset:{LDS_XS + 64*st}")
        e(f"  ds_read_b64_tr_b16 {vr(FB+4*st,2)}, v5 offset:{512*st}")
        e(f"  ds_read_b64_tr_b16 {vr(FB+4*st+2,2)}, v5 offset:{512*st+64}")
        if st % 4 == 3:
            e("  s_waitcnt lgkmcnt(0)")
            for s2 in range(st-3, st+1):
                e(f"  v_mfma_f32_16x16x32_bf16 v[8:11], {vr(FA+4*s2,4)}, {vr(FB+4*s2,4)}, v[8:11]")
    e("  s_nop 15")
    for i in range(4):
        e(f"  v_cvt_pk_bf16_f32 v{8+i}, v{8+i}, v{8+i}")
        e(f"  v_lshlrev_b32 v{8+i}, 16, v{8+i}")
    e("  s_nop 1")
    for i in range(4):
        e(f"  v_mov_b32_dpp v{12+i}, v{8+i} row_ror:8 row_mask:0xf bank_mask:0xf")
    for i in range(4):
        e(f"  v_mul_f32 v16, 0xbfb8aa3b, v{8+i}")
        e("  v_exp_f32 v16, v16")
        e("  s_nop 0")
        e("  v_add_f32 v16, 1.0, v16")
        e("  v_rcp_f32 v16, v16")
        e("  s_nop 0")
        e(f"  v_mul_f32 v16, v{8+i}, v16")
        e("  v_cvt_pk_bf16_f32 v16, v16, v16")
        e("  v_lshlrev_b32 v16, 16, v16")
        e(f"  v_mul_f32 v16, v16, v{12+i}")
        e(f"  v_cvt_pk_bf16_f32 v{20+i}, v16, v16")
    stamp(6)
    e("  v_and_b32 v5, 15, v0")
    e("  v_cmp_gt_u32 vcc, 8, v5")
    e("  v_cmp_gt_u32 s[42:43], 32, v0")
    e("  s_and_b64 vcc, vcc, s[42:43]")
    e("  s_and_saveexec_b64 s[40:41], vcc")
    e("  v_lshlrev_b32 v4, 2, v4")
    e("  v_mul_u32_u24 v4, 3584, v4")
    e("  v_lshl_add_u32 v4, v5, 1, v4")
    e("  s_lshl_b32 s15, s3, 4")
    e(f"  s_add_u32 s15, s15, {WS_GU}")
    for i in range(4):
        e(f"  buffer_store_short v{20+i}, v4, s[20:23], s15 offen offset:{3584*i if 3584*i < 4096 else 0}") if False else None
    for i in range(4):
        e(f"  buffer_store_short v{20+i}, v4, s[20:23], s15 offen")
        if i < 3:
            e("  v_add_u32 v4, 3584, v4")
    lab("t2_done")
    kernel_end()
    e("  s_endpgm")
    kernel_desc(name, 192)

def gen_t3():
    name = "t3_kernel"
    kernel_begin(name)
    LDS_W, LDS_R = 0, 28672
    e("  s_cmp_ge_u32 s2, 64")
    e("  s_cbranch_scc1 t3_done")
    e(f"  s_load_dwordx2 s[4:5], s[0:1], {KA_X}")
    e(f"  s_load_dwordx2 s[6:7], s[0:1], {KA_WS}")
    e(f"  s_load_dwordx2 s[10:11], s[0:1], {KA_OUT}")
    e("  s_mov_b32 s3, s2")
    e("  v_lshrrev_b32 v1, 6, v0")
    e("  v_and_b32 v0, 63, v0")
    e("  v_readfirstlane_b32 s13, v1")
    e("  v_lshrrev_b32 v5, 4, v0")
    e("  s_waitcnt lgkmcnt(0)")
    srd(16, 4, 5, 2 << 20)
    srd(20, 6, 7, 12 << 20)
    srd(28, 10, 11, 2 << 20)
    e("  v_and_b32 v6, 1, v5")
    e("  v_lshlrev_b32 v6, 4, v6")
    e(f"  s_mov_b32 s14, {WS_IDX}")
    e("  buffer_load_dwordx4 v[24:27], v6, s[20:23], s14 offen")
    e("  s_lshl_b32 s15, s3, 4")
    e("  v_lshlrev_b32 v3, 4, v0")
    e("  s_mul_i32 s34, s13, 7168")
    e("  s_mul_i32 s33, s3, 28672")
    e("  s_add_u32 s33, s33, s34")
    e(f"  s_add_u32 s33, s33, {WS_WDB}")
    for i in range(7):
        e(f"  s_add_u32 m0, s34, {LDS_W + 1024*i}")
        e("  s_nop 0")
        e(f"  buffer_load_dwordx4 v3, s[20:23], s33 offen lds")
        e("  s_add_u32 s33, s33, 1024")
    e("  v_and_b32 v4, 7, v0")
    e("  v_mul_u32_u24 v4, 3584, v4")
    e("  v_lshl_add_u32 v4, v5, 4, v4")
    e("  s_mul_i32 s14, s13, 896")
    e(f"  s_add_u32 s14, s14, {WS_GU}")
    FA = 64
    for st in range(14):
        e(f"  buffer_load_dwordx4 {vr(FA+4*st,4)}, v4, s[20:23], s14 offen offset:{64*st}")
    for i in range(4):
        e(f"  v_mov_b32 v{28+i}, 0")
    e("  s_cmp_lg_u32 s13, 0")
    e("  s_cbranch_scc1 t3_noepi")
    e("  s_waitcnt vmcnt(21)")
    e("  v_and_b32 v6, 7, v0")
    e(f"  s_mov_b32 s36, {WS_Y}")
    e(f"  s_mov_b32 s37, {WS_Y + (2<<20)}")
    e(f"  s_mov_b32 s38, {WS_STAT}")
    for i in range(4):
        e(f"  v_and_b32 v{28+i}, 0xffff, v{24+i}")
        e(f"  v_sub_u32 v{28+i}, 0xffff, v{28+i}")
        e(f"  v_lshlrev_b32 v{32+i}, 3, v{28+i}")
        e(f"  v_lshlrev_b32 v{28+i}, 10, v{28+i}")
        e(f"  v_lshl_add_u32 v{28+i}, v6, 1, v{28+i}")
        e(f"  v_add_u32 v{28+i}, s15, v{28+i}")
        e(f"  buffer_load_ushort v{36+i}, v{28+i}, s[20:23], s36 offen")
        e(f"  buffer_load_ushort v{40+i}, v{28+i}, s[20:23], s37 offen")
        e(f"  buffer_load_ushort v{44+i}, v{28+i}, s[16:19], 0 offen")
        e(f"  buffer_load_dwordx2 {vr(48+2*i,2)}, v{32+i}, s[20:23], s38 offen")
    lab("t3_noepi")
    e("  v_and_b32 v7, 15, v0")
    e("  v_lshrrev_b32 v7, 2, v7")
    e("  v_lshl_add_u32 v7, v5, 3, v7")
    e("  v_lshlrev_b32 v7, 4, v7")
    e("  v_and_b32 v60, 1, v0")
    e("  v_lshl_add_u32 v7, v60, 3, v7")
    e("  v_add_u32 v7, s34, v7")
    for i in range(4):
        e(f"  v_mov_b32 v{8+i}, 0")
    stamp(1)
    e("  s_waitcnt vmcnt(0)")
    stamp(2)
    FB = 128
    for st in range(14):
        e(f"  ds_read_b64_tr_b16 {vr(FB+4*st,2)}, v7 offset:{512*st}")
        e(f"  ds_read_b64_tr_b16 {vr(FB+4*st+2,2)}, v7 offset:{512*st+64}")
    e("  s_waitcnt lgkmcnt(0)")
    for st in range(14):
        e(f"  v_mfma_f32_16x16x32_bf16 v[8:11], {vr(FA+4*st,4)}, {vr(FB+4*st,4)}, v[8:11]")
    e("  s_nop 15")
    stamp(3)
    e("  v_lshlrev_b32 v3, 4, v0")
    e("  s_lshl_b32 s33, s13, 10")
    e("  v_add_u32 v3, s33, v3")
    e(f"  ds_write_b128 v3, v[8:11] offset:{LDS_R}")
    e("  s_waitcnt lgkmcnt(0)")
    e("  s_barrier")
    e("  s_cmp_lg_u32 s13, 0")
    e("  s_cbranch_scc1 t3_done")
    e("  v_lshlrev_b32 v3, 4, v0")
    for w in range(1, 4):
        e(f"  ds_read_b128 {vr(12+4*(w-1),4)}, v3 offset:{LDS_R+1024*w}")
    stamp(4)
    e("  v_and_b32 v6, 15, v0")
    e("  v_cmp_gt_u32 vcc, 8, v6")
    e("  v_cmp_gt_u32 s[42:43], 32, v0")
    e("  s_and_b64 vcc, vcc, s[42:43]")
    e("  s_and_saveexec_b64 s[40:41], vcc")
    e("  s_waitcnt lgkmcnt(0)")
    for i in range(4):
        e(f"  v_add_f32 v{8+i}, v{8+i}, v{12+i}")
        e(f"  v_add_f32 v{16+i}, v{16+i}, v{20+i}")
        e(f"  v_add_f32 v{8+i}, v{8+i}, v{16+i}")
        e(f"  v_cvt_pk_bf16_f32 v{8+i}, v{8+i}, v{8+i}")
        e(f"  v_lshlrev_b32 v{8+i}, 16, v{8+i}")
        e(f"  v_and_b32 v60, 0xffff0000, v{24+i}")
        e("  v_ashrrev_i32 v61, 31, v60")
        e("  v_not_b32 v61, v61")
        e("  v_or_b32 v61, 0x80000000, v61")
        e("  v_xor_b32 v60, v60, v61")
        e("  v_and_b32 v60, 0xffff0000, v60")
        e("  v_mul_f32 v60, 0xbfb8aa3b, v60")
        e("  v_exp_f32 v60, v60")
        e("  s_nop 0")
        e("  v_add_f32 v60, 1.0, v60")
        e("  v_rcp_f32 v60, v60")
        e("  s_nop 0")
        e("  v_cvt_pk_bf16_f32 v60, v60, v60")
        e("  v_lshlrev_b32 v60, 16, v60")
        e(f"  v_mul_f32 v{8+i}, v{8+i}, v60")
        e(f"  v_cvt_pk_bf16_f32 v{8+i}, v{8+i}, v{8+i}")
        e(f"  v_lshlrev_b32 v{8+i}, 16, v{8+i}")
        e(f"  v_lshlrev_b32 v{36+i}, 16, v{36+i}")
        e(f"  v_lshlrev_b32 v{40+i}, 16, v{40+i}")
        e(f"  v_lshlrev_b32 v{44+i}, 16, v{44+i}")
        e(f"  v_sub_f32 v60, v{36+i}, v{40+i}")
        e("  v_cvt_pk_bf16_f32 v60, v60, v60")
        e("  v_lshlrev_b32 v60, 16, v60")
        e(f"  v_add_f32 v60, v{44+i}, v60")
        e("  v_cvt_pk_bf16_f32 v60, v60, v60")
        e("  v_lshlrev_b32 v60, 16, v60")
        e(f"  v_sub_f32 v61, v60, v{48+2*i}")
        e("  v_cvt_pk_bf16_f32 v61, v61, v61")
        e("  v_lshlrev_b32 v61, 16, v61")
        e(f"  v_mul_f32 v61, v61, v{49+2*i}")
        e("  v_cvt_pk_bf16_f32 v61, v61, v61")
        e("  v_lshlrev_b32 v61, 16, v61")
        e(f"  v_add_f32 v61, v61, v{8+i}")
        e("  v_cvt_pk_bf16_f32 v61, v61, v61")
        e("  v_lshlrev_b32 v61, 16, v61")
        e("  v_add_f32 v61, v60, v61")
        e("  v_cvt_pk_bf16_f32 v61, v61, v61")
        e(f"  buffer_store_short v61, v{28+i}, s[28:31], 0 offen")
    lab("t3_done")
    kernel_end()
    e("  s_endpgm")
    kernel_desc(name, 192)

SORT8 = [(0,1),(2,3),(4,5),(6,7),(0,2),(1,3),(4,6),(5,7),(1,2),(5,6),(0,4),(1,5),(2,6),(3,7),(2,4),(3,5),(1,2),(3,4),(5,6)]
def top8(keys, free, LDS_C):
    K = list(keys); F = list(free)
    for (i, j) in SORT8:
        hi, lo = F.pop(), F.pop()
        e(f"  v_max_u32 v{hi}, v{K[i]}, v{K[j]}")
        e(f"  v_min_u32 v{lo}, v{K[i]}, v{K[j]}")
        F.append(K[i]); F.append(K[j]); K[i] = hi; K[j] = lo
    t, coll = F.pop(), F.pop()
    e(f"  v_mov_b32 v{coll}, 0")
    pend = []
    def fill(n):
        for _ in range(n):
            if pend: e(pend.pop(0))
            else: e("  s_nop 0")
    for rnd in range(8):
        fill(2)
        e(f"  v_max_u32_dpp v{t}, v{K[0]}, v{K[0]} quad_perm:[1,0,3,2] row_mask:0xf bank_mask:0xf")
        fill(2)
        e(f"  v_max_u32_dpp v{t}, v{t}, v{t} quad_perm:[2,3,0,1] row_mask:0xf bank_mask:0xf")
        fill(2)
        e(f"  v_max_u32_dpp v{t}, v{t}, v{t} row_half_mirror row_mask:0xf bank_mask:0xf")
        fill(2)
        e(f"  v_max_u32_dpp v{t}, v{t}, v{t} row_mirror row_mask:0xf bank_mask:0xf")
        while pend: e(pend.pop(0))
        e("  s_nop 0")
        e(f"  v_readlane_b32 s36, v{t}, 0")
        e(f"  v_readlane_b32 s37, v{t}, 16")
        e(f"  v_readlane_b32 s38, v{t}, 32")
        e(f"  v_readlane_b32 s39, v{t}, 48")
        e("  s_max_u32 s36, s36, s37")
        e("  s_max_u32 s38, s38, s39")
        e("  s_max_u32 s36, s36, s38")
        e(f"  v_writelane_b32 v{coll}, s36, {rnd}")
        if rnd < 7:
            e(f"  v_cmp_eq_u32 vcc, s36, v{K[0]}")
            e("  s_nop 1")
            e(f"  v_cndmask_b32 v{K[0]}, v{K[0]}, v{K[1]}, vcc")
            for k in range(1, 7 - rnd):
                pend.append(f"  v_cndmask_b32 v{K[k]}, v{K[k]}, v{K[k+1]}, vcc")
    e("  s_lshl_b32 s33, s13, 5")
    e(f"  s_add_u32 s33, s33, {LDS_C}")
    e(f"  v_lshlrev_b32 v{t}, 2, v0")
    e(f"  v_add_u32 v{t}, s33, v{t}")
    e("  v_cmp_gt_u32 vcc, 8, v0")
    e("  s_and_saveexec_b64 s[40:41], vcc")
    e(f"  ds_write_b32 v{t}, v{coll}")
    e("  s_mov_b64 exec, s[40:41]")
    e("  s_waitcnt lgkmcnt(0)")
    e("  s_barrier")
    return t, coll

def gen_t4():
    name = "t4_kernel"
    kernel_begin(name)
    LDS_C, LDS_R, LDS_WD = 0, 256, 8704
    LDS_G, LDS_U, LDS_XS = 8704, 8704 + 8192, 8704 + 16384
    SPIN = 1 << 22
    e("  s_cmp_ge_u32 s2, 240")
    e("  s_cbranch_scc1 t4_done")
    e(f"  s_load_dwordx2 s[4:5], s[0:1], {KA_X}")
    e(f"  s_load_dwordx2 s[6:7], s[0:1], {KA_WS}")
    e(f"  s_load_dwordx4 s[8:11], s[0:1], {KA_WG}")
    e(f"  s_load_dwordx2 s[44:45], s[0:1], {KA_OUT}")
    e("  s_and_b32 s3, s2, 7")
    e("  s_mul_i32 s3, s3, 28")
    e("  s_lshr_b32 s12, s2, 3")
    e("  s_add_u32 s3, s3, s12")
    e("  v_mov_b32 v40, v0")
    e("  v_lshrrev_b32 v1, 6, v0")
    e("  v_and_b32 v0, 63, v0")
    e("  v_readfirstlane_b32 s13, v1")
    e("  s_waitcnt lgkmcnt(0)")
    srd(16, 4, 5, 2 << 20)
    srd(20, 6, 7, 12 << 20)
    srd(24, 8, 9, 512*1792*2)
    srd(28, 10, 11, 512*1792*2)
    srd(48, 44, 45, 2 << 20)
    e("  v_lshlrev_b32 v2, 5, v40")
    e(f"  s_mov_b32 s14, {WS_KEY}")
    e("  buffer_load_dwordx4 v[8:11], v2, s[20:23], s14 offen")
    e("  buffer_load_dwordx4 v[12:15], v2, s[20:23], s14 offen offset:16")
    e("  s_cmp_ge_u32 s2, 224")
    e("  s_cbranch_scc1 t4_dma2")
    e("  s_lshl_b32 s15, s3, 4")
    e("  s_movk_i32 s32, 3584")
    for ii in range(2):
        e(f"  s_lshl_b32 s33, s13, 7")
        e(f"  s_add_u32 s33, s33, {64*ii}")
        e(f"  v_add_u32 v3, s33, v0")
        e(f"  v_mul_lo_u32 v3, v3, s32")
        e(f"  s_lshl_b32 s34, s13, 11")
        e(f"  s_add_u32 m0, s34, {LDS_G + 1024*ii}")
        e("  s_nop 0")
        e(f"  buffer_load_dwordx4 v3, s[24:27], s15 offen lds")
        e(f"  s_add_u32 m0, s34, {LDS_U + 1024*ii}")
        e("  s_nop 0")
        e(f"  buffer_load_dwordx4 v3, s[28:31], s15 offen lds")
    e("  s_waitcnt vmcnt(4)")
    e("  s_branch t4_top")
    lab("t4_dma2")
    e("  s_sub_u32 s46, s2, 224")
    e("  v_lshlrev_b32 v3, 4, v0")
    e("  s_mul_i32 s34, s13, 7168")
    e(f"  s_mul_i32 s33, s46, {4*28672}")
    e("  s_add_u32 s33, s33, s34")
    e(f"  s_add_u32 s33, s33, {WS_WDB}")
    for dsl in range(4):
        for i in range(7):
            e(f"  s_add_u32 m0, s34, {LDS_WD + dsl*28672 + 1024*i}")
            e("  s_nop 0")
            e(f"  buffer_load_dwordx4 v3, s[20:23], s33 offen lds")
            e(f"  s_add_u32 s33, s33, {1024 if i < 6 else 28672 - 6*1024}")
    e("  s_waitcnt vmcnt(28)")
    lab("t4_top")
    stamp(1)
    t, coll = top8(range(8, 16), range(16, 24), LDS_C)
    e("  v_and_b32 v3, 31, v0")
    e("  v_lshlrev_b32 v3, 2, v3")
    e(f"  ds_read_b32 v24, v3 offset:{LDS_C}")
    e("  v_mov_b32 v4, 0")
    for q in range(8):
        e(f"  ds_read_b128 {vr(56+4*q,4)}, v4 offset:{LDS_C+16*q}")
    e("  v_mov_b32 v25, 0")
    e("  s_waitcnt lgkmcnt(0)")
    sp = [60, 62, 64, 66]
    for i in range(32 + 3):
        if i < 32:
            e(f"  v_cmp_gt_u32 s[{sp[i%4]}:{sp[i%4]+1}], v{56+i}, v24")
        if i >= 3:
            j = i - 3
            e(f"  v_addc_co_u32 v25, vcc, 0, v25, s[{sp[j%4]}:{sp[j%4]+1}]")
    e("  v_cmp_gt_u32 vcc, 8, v25")
    e("  v_cmp_gt_u32 s[42:43], 32, v0")
    e("  s_and_b64 vcc, vcc, s[42:43]")
    e("  v_lshlrev_b32 v3, 2, v25")
    e("  s_and_saveexec_b64 s[40:41], vcc")
    e(f"  ds_write_b32 v3, v24 offset:{LDS_C+128}")
    e("  s_mov_b64 exec, s[40:41]")
    e("  s_waitcnt lgkmcnt(0)")
    e("  s_barrier")
    stamp(2)
    e("  s_cmp_ge_u32 s2, 224")
    e("  s_cbranch_scc1 t4_f2")
    e("  v_lshrrev_b32 v4, 5, v40")
    e("  v_and_b32 v5, 31, v40")
    e("  v_lshlrev_b32 v3, 2, v4")
    e(f"  ds_read_b32 v6, v3 offset:{LDS_C+128}")
    e("  s_waitcnt lgkmcnt(0)")
    e("  v_and_b32 v6, 0xffff, v6")
    e("  v_sub_u32 v6, 0xffff, v6")
    e("  v_lshlrev_b32 v7, 10, v6")
    e("  v_lshl_add_u32 v7, v5, 4, v7")
    e(f"  s_mov_b32 s14, {WS_Y}")
    e(f"  s_mov_b32 s15, {WS_Y + (2<<20)}")
    YR, YI, XX = 24, 32, 44
    for j in range(2):
        e(f"  buffer_load_dwordx4 {vr(YR+4*j,4)}, v7, s[20:23], s14 offen offset:{512*j}")
        e(f"  buffer_load_dwordx4 {vr(YI+4*j,4)}, v7, s[20:23], s15 offen offset:{512*j}")
        e(f"  buffer_load_dwordx4 {vr(XX+4*j,4)}, v7, s[16:19], 0 offen offset:{512*j}")
    e("  v_lshlrev_b32 v3, 3, v6")
    e(f"  s_mov_b32 s14, {WS_STAT}")
    e("  buffer_load_dwordx2 v[52:53], v3, s[20:23], s14 offen")
    e("  s_waitcnt vmcnt(0)")
    stamp(3)
    e("  v_sub_f32 v54, 0, v52")
    e("  v_mov_b32 v55, v54")
    e("  v_mov_b32 v52, v53")
    recompute(YR, YI, XX, 8, 54, 52, 64, 80, 56)
    e(f"  v_mul_u32_u24 v3, {XS_STRIDE}, v4")
    e("  v_lshl_add_u32 v3, v5, 4, v3")
    e(f"  ds_write_b128 v3, v[80:83] offset:{LDS_XS}")
    e(f"  ds_write_b128 v3, v[84:87] offset:{LDS_XS+512}")
    e("  s_waitcnt lgkmcnt(0)")
    e("  s_barrier")
    e("  s_cmp_lg_u32 s13, 0")
    e("  s_cbranch_scc1 t4_done")
    e("  v_and_b32 v3, 7, v0")
    e(f"  v_mul_u32_u24 v3, {XS_STRIDE}, v3")
    e("  v_lshrrev_b32 v4, 4, v0")
    e("  v_lshl_add_u32 v3, v4, 4, v3")
    e("  v_and_b32 v5, 15, v0")
    e("  v_lshrrev_b32 v5, 2, v5")
    e("  v_lshl_add_u32 v5, v4, 3, v5")
    e("  v_lshlrev_b32 v5, 4, v5")
    e("  v_and_b32 v6, 1, v0")
    e("  v_lshl_add_u32 v5, v6, 3, v5")
    e("  v_and_b32 v6, 2, v0")
    e("  v_lshl_add_u32 v5, v6, 12, v5")
    for i in range(4):
        e(f"  v_mov_b32 v{8+i}, 0")
    FA, FB = 64, 128
    for st in range(16):
        e(f"  ds_read_b128 {vr(FA+4*st,4)}, v3 offset:{LDS_XS + 64*st}")
        e(f"  ds_read_b64_tr_b16 {vr(FB+4*st,2)}, v5 offset:{LDS_G+512*st}")
        e(f"  ds_read_b64_tr_b16 {vr(FB+4*st+2,2)}, v5 offset:{LDS_G+512*st+64}")
        if st % 4 == 3:
            e("  s_waitcnt lgkmcnt(0)")
            for s2 in range(st-3, st+1):
                e(f"  v_mfma_f32_16x16x32_bf16 v[8:11], {vr(FA+4*s2,4)}, {vr(FB+4*s2,4)}, v[8:11]")
    e("  s_nop 15")
    for i in range(4):
        e(f"  v_cvt_pk_bf16_f32 v{8+i}, v{8+i}, v{8+i}")
        e(f"  v_lshlrev_b32 v{8+i}, 16, v{8+i}")
    e("  s_nop 1")
    for i in range(4):
        e(f"  v_mov_b32_dpp v{12+i}, v{8+i} row_ror:8 row_mask:0xf bank_mask:0xf")
    for i in range(4):
        e(f"  v_mul_f32 v16, 0xbfb8aa3b, v{8+i}")
        e("  v_exp_f32 v16, v16")
        e("  s_nop 0")
        e("  v_add_f32 v16, 1.0, v16")
        e("  v_rcp_f32 v16, v16")
        e("  s_nop 0")
        e(f"  v_mul_f32 v16, v{8+i}, v16")
        e("  v_cvt_pk_bf16_f32 v16, v16, v16")
        e("  v_lshlrev_b32 v16, 16, v16")
        e(f"  v_mul_f32 v16, v16, v{12+i}")
        e(f"  v_cvt_pk_bf16_f32 v{20+i}, v16, v16")
    e("  s_nop 1")
    for i in range(4):
        e(f"  v_mov_b32_dpp v{24+i}, v{20+i} quad_perm:[1,0,3,2] row_mask:0xf bank_mask:0xf")
    for i in range(4):
        e(f"  v_and_b32 v{20+i}, 0xffff, v{20+i}")
        e(f"  v_and_b32 v{24+i}, 0xffff0000, v{24+i}")
        e(f"  v_or_b32 v{20+i}, v{20+i}, v{24+i}")
    for i in range(4):
        e(f"  v_min_u32 v{20+i}, 0xfffeffff, v{20+i}")
    stamp(4)
    e("  v_and_b32 v5, 15, v0")
    e("  v_lshlrev_b32 v4, 6, v4")
    e("  v_lshl_add_u32 v4, v5, 1, v4")
    e("  v_lshlrev_b32 v7, 4, v0")
    e("  v_and_b32 v6, 9, v0")
    e("  v_cmp_eq_u32 vcc, 0, v6")
    e("  v_cmp_gt_u32 s[42:43], 32, v0")
    e("  s_and_b64 vcc, vcc, s[42:43]")
    e("  s_and_saveexec_b64 s[40:41], vcc")
    for i in range(4):
        e(f"  ds_write_b32 v4, v{20+i} offset:{LDS_R+16*i}")
    e("  s_mov_b64 exec, 0xff")
    e("  s_waitcnt lgkmcnt(0)")
    e(f"  ds_read_b128 v[24:27], v7 offset:{LDS_R}")
    e("  s_lshl_b32 s15, s3, 7")
    e(f"  s_add_u32 s15, s15, {WS_GU}")
    e("  s_waitcnt lgkmcnt(0)")
    e("  buffer_store_dwordx4 v[24:27], v7, s[20:23], s15 offen sc1")
    e("  s_branch t4_done")
    lab("t4_f2")
    e("  v_lshrrev_b32 v5, 4, v0")
    e("  v_and_b32 v6, 1, v5")
    e("  v_lshlrev_b32 v6, 4, v6")
    e(f"  ds_read_b128 v[24:27], v6 offset:{LDS_C+128}")
    e("  v_and_b32 v6, 15, v0")
    e("  s_lshl_b32 s15, s46, 6")
    e("  s_waitcnt lgkmcnt(0)")
    for i in range(4):
        e(f"  v_and_b32 v{28+i}, 0xffff, v{24+i}")
        e(f"  v_sub_u32 v{28+i}, 0xffff, v{28+i}")
        e(f"  v_lshlrev_b32 v{32+i}, 3, v{28+i}")
        e(f"  v_lshlrev_b32 v{28+i}, 10, v{28+i}")
        e(f"  v_lshl_add_u32 v{28+i}, v6, 1, v{28+i}")
        e(f"  v_add_u32 v{28+i}, s15, v{28+i}")
    e("  s_cmp_lg_u32 s13, 0")
    e("  s_cbranch_scc1 t4_noepi")
    e(f"  s_mov_b32 s36, {WS_Y}")
    e(f"  s_mov_b32 s37, {WS_Y + (2<<20)}")
    e(f"  s_mov_b32 s38, {WS_STAT}")
    for a in range(2):
        for i in range(4):
            e(f"  buffer_load_ushort v{192+12*a+i}, v{28+i}, s[20:23], s36 offen offset:{32*a}")
            e(f"  buffer_load_ushort v{196+12*a+i}, v{28+i}, s[20:23], s37 offen offset:{32*a}")
            e(f"  buffer_load_ushort v{200+12*a+i}, v{28+i}, s[16:19], 0 offen offset:{32*a}")
    for i in range(4):
        e(f"  buffer_load_dwordx2 {vr(48+2*i,2)}, v{32+i}, s[20:23], s38 offen")
    lab("t4_noepi")
    e("  v_lshrrev_b32 v7, 2, v6")
    e("  v_lshl_add_u32 v7, v5, 3, v7")
    e("  v_lshlrev_b32 v7, 4, v7")
    e("  v_and_b32 v60, 1, v0")
    e("  v_lshl_add_u32 v7, v60, 3, v7")
    e("  v_and_b32 v60, 2, v0")
    e("  v_mul_u32_u24 v60, 14336, v60")
    e("  v_add_u32 v7, v60, v7")
    e("  v_add_u32 v7, s34, v7")
    e(f"  v_add_u32 v61, {2*28672}, v7")
    e("  s_waitcnt vmcnt(0)")
    FB0, FB1 = 72, 128
    for st in range(14):
        e(f"  ds_read_b64_tr_b16 {vr(FB0+4*st,2)}, v7 offset:{LDS_WD+512*st}")
        e(f"  ds_read_b64_tr_b16 {vr(FB0+4*st+2,2)}, v7 offset:{LDS_WD+512*st+64}")
        e(f"  ds_read_b64_tr_b16 {vr(FB1+4*st,2)}, v61 offset:{LDS_WD+512*st}")
        e(f"  ds_read_b64_tr_b16 {vr(FB1+4*st+2,2)}, v61 offset:{LDS_WD+512*st+64}")
        if st % 3 == 2: e("  s_waitcnt lgkmcnt(0)")
    for i in range(8):
        e(f"  v_mov_b32 v{8+i}, 0")
    for i in range(4):
        e(f"  v_and_b32 v60, 0xffff0000, v{24+i}")
        e("  v_ashrrev_i32 v62, 31, v60")
        e("  v_not_b32 v62, v62")
        e("  v_or_b32 v62, 0x80000000, v62")
        e("  v_xor_b32 v60, v60, v62")
        e("  v_and_b32 v60, 0xffff0000, v60")
        e("  v_mul_f32 v60, 0xbfb8aa3b, v60")
        e("  v_exp_f32 v60, v60")
        e("  s_nop 0")
        e("  v_add_f32 v60, 1.0, v60")
        e("  v_rcp_f32 v60, v60")
        e("  s_nop 0")
        e("  v_cvt_pk_bf16_f32 v60, v60, v60")
        e(f"  v_lshlrev_b32 v{24+i}, 16, v60")
    for a in range(2):
        for i in range(4):
            r0, r1, r2 = 192+12*a+i, 196+12*a+i, 200+12*a+i
            e(f"  v_lshlrev_b32 v{r0}, 16, v{r0}")
            e(f"  v_lshlrev_b32 v{r1}, 16, v{r1}")
            e(f"  v_lshlrev_b32 v{r2}, 16, v{r2}")
            e(f"  v_sub_f32 v60, v{r0}, v{r1}")
            e("  v_cvt_pk_bf16_f32 v60, v60, v60")
            e("  v_lshlrev_b32 v60, 16, v60")
            e(f"  v_add_f32 v60, v{r2}, v60")
            e("  v_cvt_pk_bf16_f32 v60, v60, v60")
            e(f"  v_lshlrev_b32 v{r0}, 16, v60")
            e(f"  v_sub_f32 v62, v{r0}, v{48+2*i}")
            e("  v_cvt_pk_bf16_f32 v62, v62, v62")
            e("  v_lshlrev_b32 v62, 16, v62")
            e(f"  v_mul_f32 v62, v62, v{49+2*i}")
            e("  v_cvt_pk_bf16_f32 v62, v62, v62")
            e(f"  v_lshlrev_b32 v{r1}, 16, v62")
    stamp(3)
    e("  v_and_b32 v4, 7, v0")
    e("  v_lshlrev_b32 v4, 4, v4")
    e("  v_lshl_add_u32 v4, v5, 7, v4")
    e("  s_mul_i32 s14, s13, 7168")
    e(f"  s_add_u32 s14, s14, {WS_GU}")
    regs = [216+4*i for i in range(9)] + [36, 40, 44, 56, 64]
    e("  v_add_u32 v62, 4096, v4")
    e("  s_mov_b32 s53, 0")
    lab("t4_poll")
    for st in range(14):
        e(f"  buffer_load_dwordx4 {vr(regs[st],4)}, v4, s[20:23], s14 offen offset:{512*st if st < 8 else 0} sc1") if st < 8 else e(f"  buffer_load_dwordx4 {vr(regs[st],4)}, v62, s[20:23], s14 offen offset:{512*(st-8)} sc1")
    e("  v_mov_b32 v3, 0")
    for st in range(14):
        e(f"  s_waitcnt vmcnt({13-st})")
        e(f"  v_max3_u32 v3, v3, v{regs[st]}, v{regs[st]+1}")
        e(f"  v_max3_u32 v3, v3, v{regs[st]+2}, v{regs[st]+3}")
    e("  v_cmp_eq_u32 s[54:55], -1, v3")
    e("  s_nop 3")
    e("  s_cmp_eq_u64 s[54:55], 0")
    e("  s_cbranch_scc1 t4_poll_ok")
    e("  s_add_u32 s53, s53, 1")
    e(f"  s_cmp_gt_u32 s53, {SPIN}")
    e("  s_cbranch_scc1 t4_poll_ok")
    e("  s_branch t4_poll")
    lab("t4_poll_ok")
    stamp(5)
    e("  s_waitcnt lgkmcnt(0)")
    for st in range(14):
        e(f"  v_mfma_f32_16x16x32_bf16 v[8:11], {vr(regs[st],4)}, {vr(FB0+4*st,4)}, v[8:11]")
        e(f"  v_mfma_f32_16x16x32_bf16 v[12:15], {vr(regs[st],4)}, {vr(FB1+4*st,4)}, v[12:15]")
    e("  s_nop 15")
    stamp(6)
    e("  v_lshlrev_b32 v3, 4, v0")
    e("  s_lshl_b32 s33, s13, 11")
    e("  v_add_u32 v3, s33, v3")
    e(f"  ds_write_b128 v3, v[8:11] offset:{LDS_R}")
    e(f"  ds_write_b128 v3, v[12:15] offset:{LDS_R+1024}")
    e("  s_waitcnt lgkmcnt(0)")
    e("  s_barrier")
    e("  s_cmp_lg_u32 s13, 0")
    e("  s_cbranch_scc1 t4_done")
    e("  v_lshlrev_b32 v3, 4, v0")
    for w in range(1, 4):
        for a in range(2):
            e(f"  ds_read_b128 {vr(72+8*(w-1)+4*a,4)}, v3 offset:{LDS_R+2048*w+1024*a}")
    e("  v_cmp_gt_u32 vcc, 32, v0")
    e("  s_and_saveexec_b64 s[40:41], vcc")
    e("  s_waitcnt lgkmcnt(0)")
    for a in range(2):
        for i in range(4):
            y = 8 + 4*a + i
            e(f"  v_add_f32 v{y}, v{y}, v{72+4*a+i}")
            e(f"  v_add_f32 v60, v{80+4*a+i}, v{88+4*a+i}")
            e(f"  v_add_f32 v{y}, v{y}, v60")
            e(f"  v_cvt_pk_bf16_f32 v{y}, v{y}, v{y}")
            e(f"  v_lshlrev_b32 v{y}, 16, v{y}")
            e(f"  v_mul_f32 v{y}, v{y}, v{24+i}")
            e(f"  v_cvt_pk_bf16_f32 v{y}, v{y}, v{y}")
            e(f"  v_lshlrev_b32 v{y}, 16, v{y}")
            e(f"  v_add_f32 v61, v{196+12*a+i}, v{y}")
            e("  v_cvt_pk_bf16_f32 v61, v61, v61")
            e("  v_lshlrev_b32 v61, 16, v61")
            e(f"  v_add_f32 v61, v{192+12*a+i}, v61")
            e("  v_cvt_pk_bf16_f32 v61, v61, v61")
            e(f"  buffer_store_short v61, v{28+i}, s[48:51], 0 offen offset:{32*a}")
    lab("t4_done")
    kernel_end()
    e("  s_endpgm")
    kernel_desc(name, 252)

ROW_O = 48
def rowmac(first, O=148, sc1=False):
    YR, YI, XX, WR, H, T, D = 16, 32, 48, 64, 80, 112, 116
    if sc1: O = ROW_O
    SC = " sc1" if sc1 else ""
    e("  v_lshlrev_b32 v3, 10, v1")
    e("  v_lshl_add_u32 v3, v2, 4, v3")
    e(f"  s_mov_b32 s52, {WS_Y}")
    e(f"  s_mov_b32 s53, {WS_Y + (2<<20)}")
    for j in range(4):
        e(f"  buffer_load_dwordx4 {vr(YR+4*j,4)}, v3, s[24:27], s52 offen offset:{256*j}{SC}")
        e(f"  buffer_load_dwordx4 {vr(YI+4*j,4)}, v3, s[24:27], s53 offen offset:{256*j}{SC}")
        e(f"  buffer_load_dwordx4 {vr(XX+4*j,4)}, v3, s[20:23], 0 offen offset:{256*j}")
    nextra = 0
    if first:
        e("  v_lshlrev_b32 v4, 4, v2")
        for j in range(4):
            e(f"  buffer_load_dwordx4 {vr(WR+4*j,4)}, v4, s[28:31], 0 offen offset:{256*j}")
        nextra = 4
    e("  v_mov_b32 v14, 0")
    e("  v_mov_b32 v15, 0")
    for j in range(4):
        e(f"  s_waitcnt vmcnt({nextra + 3*(3-j)})")
        for q in range(4):
            i = 4*j + q
            e(f"  v_lshlrev_b32 v{T}, 16, v{YR+i}")
            e(f"  v_and_b32 v{T+1}, 0xffff0000, v{YR+i}")
            e(f"  v_lshlrev_b32 v{T+2}, 16, v{YI+i}")
            e(f"  v_and_b32 v{T+3}, 0xffff0000, v{YI+i}")
            e(f"  v_pk_add_f32 {vr(T,2)}, {vr(T,2)}, {vr(T+2,2)} neg_lo:[0,1] neg_hi:[0,1]")
            e(f"  v_cvt_pk_bf16_f32 v{T}, v{T}, v{T+1}")
            e(f"  v_and_b32 v{T+1}, 0xffff0000, v{T}")
            e(f"  v_lshlrev_b32 v{T}, 16, v{T}")
            e(f"  v_lshlrev_b32 v{T+2}, 16, v{XX+i}")
            e(f"  v_and_b32 v{T+3}, 0xffff0000, v{XX+i}")
            e(f"  v_pk_add_f32 {vr(T,2)}, {vr(T,2)}, {vr(T+2,2)}")
            e(f"  v_cvt_pk_bf16_f32 v{YI+i}, v{T}, v{T+1}")
            e(f"  v_lshlrev_b32 v{H+2*i}, 16, v{YI+i}")
            e(f"  v_and_b32 v{H+2*i+1}, 0xffff0000, v{YI+i}")
            e(f"  v_pk_add_f32 v[14:15], v[14:15], {vr(H+2*i,2)}")
    e("  v_add_f32 v5, v14, v15")
    reduce16(5)
    e("  v_mul_f32 v5, 0x3b000000, v5")
    e("  v_cvt_pk_bf16_f32 v6, v5, v5")
    e("  v_lshlrev_b32 v6, 16, v6")
    e("  v_sub_f32 v8, 0, v6")
    e("  v_mov_b32 v9, v8")
    e("  v_mov_b32 v10, 0")
    e("  v_mov_b32 v11, 0")
    for i in range(16):
        e(f"  v_pk_add_f32 {vr(D+2*i,2)}, {vr(H+2*i,2)}, v[8:9]")
        e(f"  v_pk_fma_f32 v[10:11], {vr(D+2*i,2)}, {vr(D+2*i,2)}, v[10:11]")
    e("  v_add_f32 v10, v10, v11")
    reduce16(10)
    e("  v_sub_f32 v11, v5, v6")
    e("  v_mul_f32 v11, v11, v11")
    e("  v_mul_f32 v10, 0x3b000000, v10")
    e("  v_sub_f32 v10, v10, v11")
    e("  v_max_f32 v10, 0, v10")
    e("  v_cvt_pk_bf16_f32 v10, v10, v10")
    e("  v_lshlrev_b32 v10, 16, v10")
    e("  v_add_f32 v10, 0x3727c5ac, v10")
    e("  v_cvt_pk_bf16_f32 v10, v10, v10")
    e("  v_lshlrev_b32 v10, 16, v10")
    e("  v_sqrt_f32 v10, v10")
    e("  s_nop 0")
    e("  v_cvt_pk_bf16_f32 v10, v10, v10")
    e("  v_lshlrev_b32 v10, 16, v10")
    e("  v_rcp_f32 v10, v10")
    e("  s_nop 0")
    e("  v_mov_b32 v11, v10")
    if first:
        e("  v_mov_b32 v12, 0")
        e("  s_waitcnt vmcnt(0)")
    for i in range(16):
        e(f"  v_cvt_pk_bf16_f32 v{T}, v{D+2*i}, v{D+2*i+1}")
        e(f"  v_lshlrev_b32 v{D+2*i}, 16, v{T}")
        e(f"  v_and_b32 v{D+2*i+1}, 0xffff0000, v{T}")
        e(f"  v_pk_mul_f32 {vr(D+2*i,2)}, {vr(D+2*i,2)}, v[10:11]")
        e(f"  v_cvt_pk_bf16_f32 v{YR+i}, v{D+2*i}, v{D+2*i+1}")
        if first:
            e(f"  v_dot2_f32_bf16 v12, v{YR+i}, v{WR+i}, v12")
            e(f"  v_lshlrev_b32 v{D+2*i}, 16, v{YR+i}")
            e(f"  v_and_b32 v{D+2*i+1}, 0xffff0000, v{YR+i}")
            e(f"  v_pk_add_f32 {vr(D+2*i,2)}, {vr(D+2*i,2)}, {vr(H+2*i,2)}")
            e(f"  v_cvt_pk_bf16_f32 v{O+i}, v{D+2*i}, v{D+2*i+1}")
    if first:
        e("  s_nop 3")
        reduce16(12)
        e("  v_cvt_pk_bf16_f32 v12, v12, v12")
        e("  v_lshlrev_b32 v12, 16, v12")
        e("  v_ashrrev_i32 v13, 31, v12")
        e("  v_or_b32 v13, 0x80000000, v13")
        e("  v_xor_b32 v12, v12, v13")
        e("  v_and_b32 v12, 0xffff0000, v12")
        e("  v_sub_u32 v13, 0xffff, v1")
        e("  v_or_b32 v12, v12, v13")

def gen_tf():
    name = "tf_kernel"
    kernel_begin(name)
    LDS_G, LDS_U, LDS_WD = 0, 8192, 16384
    LDS_XS = 45056
    LDS_HS = LDS_XS + 8 * XS_STRIDE
    LDS_C = LDS_HS + 8192
    LDS_R = LDS_C + 256
    SPIN = 1 << 22
    e("  s_cmp_ge_u32 s2, 256")
    e("  s_cbranch_scc1 tf_done")
    e(f"  s_load_dwordx2 s[4:5], s[0:1], {KA_X}")
    e(f"  s_load_dwordx2 s[6:7], s[0:1], {KA_WS}")
    e(f"  s_load_dwordx8 s[8:15], s[0:1], {KA_WR}")
    e(f"  s_load_dwordx2 s[16:17], s[0:1], {KA_OUT}")
    e("  s_and_b32 s3, s2, 7")
    e("  s_mul_i32 s49, s3, 28")
    e("  s_lshr_b32 s50, s2, 3")
    e("  s_add_u32 s49, s49, s50")
    e("  s_sub_u32 s50, s50, 24")
    e("  s_lshl_b32 s51, s3, 3")
    e("  s_add_u32 s50, s50, s51")
    e("  v_mov_b32 v180, v0")
    e("  v_lshrrev_b32 v1, 6, v0")
    e("  v_and_b32 v0, 63, v0")
    e("  v_readfirstlane_b32 s48, v1")
    e("  s_waitcnt lgkmcnt(0)")
    srd(20, 4, 5, 2 << 20)
    srd(24, 6, 7, 9 << 20)
    srd(28, 8, 9, 1024)
    srd(32, 10, 11, 512*1792*2)
    srd(36, 12, 13, 512*1792*2)
    srd(40, 14, 15, 1792*512*2)
    srd(44, 16, 17, 2 << 20)
    e("  s_cmp_lt_u32 s48, 2")
    e("  s_cbranch_scc1 tf_p1")
    e("  s_cmp_ge_u32 s2, 224")
    e("  s_cbranch_scc1 tf_nof1")
    e("  s_movk_i32 s52, 3584")
    e("  v_mul_lo_u32 v3, v0, s52")
    e("  s_lshl_b32 s53, s49, 4")
    e("  s_cmp_eq_u32 s48, 2")
    e("  s_cbranch_scc0 tf_dma_u")
    for i in range(8):
        e(f"  s_mov_b32 m0, {LDS_G + 1024*i}")
        e("  s_nop 0")
        e("  buffer_load_dwordx4 v3, s[32:35], s53 offen lds")
        e(f"  s_add_u32 s53, s53, {64*3584}")
    e("  s_branch tf_nof1")
    lab("tf_dma_u")
    for i in range(8):
        e(f"  s_mov_b32 m0, {LDS_U + 1024*i}")
        e("  s_nop 0")
        e("  buffer_load_dwordx4 v3, s[36:39], s53 offen lds")
        e(f"  s_add_u32 s53, s53, {64*3584}")
    lab("tf_nof1")
    e("  s_cmp_lt_u32 s2, 192")
    e("  s_cbranch_scc1 tf_poll1")
    e("  v_lshlrev_b32 v3, 10, v0")
    e("  s_sub_u32 s52, s48, 2")
    e(f"  s_mul_i32 s53, s52, {896*1024}")
    e("  s_lshl_b32 s54, s50, 4")
    e("  s_add_u32 s53, s53, s54")
    e(f"  s_mul_i32 s54, s52, {896*16}")
    for i in range(14):
        e(f"  s_add_u32 m0, s54, {LDS_WD + 1024*i}")
        e("  s_nop 0")
        e("  buffer_load_dwordx4 v3, s[40:43], s53 offen lds")
        e("  s_add_u32 s53, s53, 0x10000")
    e("  s_branch tf_poll1")
    lab("tf_p1")
    e("  v_lshrrev_b32 v1, 4, v180")
    e("  v_and_b32 v2, 15, v0")
    e("  s_lshl_b32 s52, s2, 3")
    e("  v_add_u32 v1, s52, v1")
    e("  v_mov_b32 v181, v1")
    rowmac(True)
    e("  v_cmp_eq_u32 vcc, 0, v2")
    e("  s_and_saveexec_b64 s[56:57], vcc")
    e("  v_lshlrev_b32 v13, 2, v1")
    e(f"  s_mov_b32 s52, {WS_KEY}")
    e("  buffer_store_dword v12, v13, s[24:27], s52 offen sc1")
    e("  s_mov_b64 exec, s[56:57]")
    stamp(1)
    lab("tf_poll1")
    K = 164
    e("  v_lshlrev_b32 v172, 5, v180")
    e(f"  s_mov_b32 s52, {WS_KEY}")
    e("  s_mov_b32 s60, 0")
    lab("tf_poll1_loop")
    e(f"  buffer_load_dwordx4 {vr(K,4)}, v172, s[24:27], s52 offen sc1")
    e(f"  buffer_load_dwordx4 {vr(K+4,4)}, v172, s[24:27], s52 offen offset:16 sc1")
    e("  s_waitcnt vmcnt(0)")
    e(f"  v_min3_u32 v173, v{K}, v{K+1}, v{K+2}")
    e(f"  v_min3_u32 v174, v{K+3}, v{K+4}, v{K+5}")
    e(f"  v_min3_u32 v173, v173, v{K+6}, v{K+7}")
    e("  v_min_u32 v173, v173, v174")
    e("  v_cmp_eq_u32 s[62:63], 0, v173")
    e("  s_nop 3")
    e("  s_cmp_eq_u64 s[62:63], 0")
    e("  s_cbranch_scc1 tf_poll1_ok")
    e("  s_add_u32 s60, s60, 1")
    e(f"  s_cmp_gt_u32 s60, {SPIN}")
    e("  s_cbranch_scc1 tf_poll1_ok")
    e("  s_sleep 1")
    e("  s_branch tf_poll1_loop")
    lab("tf_poll1_ok")
    stamp(2)
    e("  v_mov_b32 v176, 0")
    for rnd in range(8):
        e(f"  v_max3_u32 v173, v{K}, v{K+1}, v{K+2}")
        e(f"  v_max3_u32 v174, v{K+3}, v{K+4}, v{K+5}")
        e(f"  v_max3_u32 v173, v173, v{K+6}, v{K+7}")
        e("  v_max_u32 v173, v173, v174")
        e("  s_nop 1")
        e("  v_max_u32_dpp v173, v173, v173 quad_perm:[1,0,3,2] row_mask:0xf bank_mask:0xf")
        e("  s_nop 1")
        e("  v_max_u32_dpp v173, v173, v173 quad_perm:[2,3,0,1] row_mask:0xf bank_mask:0xf")
        e("  s_nop 1")
        e("  v_max_u32_dpp v173, v173, v173 row_half_mirror row_mask:0xf bank_mask:0xf")
        e("  s_nop 1")
        e("  v_max_u32_dpp v173, v173, v173 row_mirror row_mask:0xf bank_mask:0xf")
        e("  s_nop 1")
        e("  v_readlane_b32 s64, v173, 0")
        e("  v_readlane_b32 s65, v173, 16")
        e("  v_readlane_b32 s66, v173, 32")
        e("  v_readlane_b32 s67, v173, 48")
        e("  s_max_u32 s64, s64, s65")
        e("  s_max_u32 s66, s66, s67")
        e("  s_max_u32 s64, s64, s66")
        e(f"  v_writelane_b32 v176, s64, {rnd}")
        if rnd < 7:
            for k in range(8):
                e(f"  v_cmp_ne_u32 vcc, s64, v{K+k}")
                e("  s_nop 1")
                e(f"  v_cndmask_b32 v{K+k}, 0, v{K+k}, vcc")
    e("  s_lshl_b32 s52, s48, 5")
    e(f"  s_add_u32 s52, s52, {LDS_C}")
    e("  v_lshlrev_b32 v172, 2, v0")
    e("  v_add_u32 v172, s52, v172")
    e("  v_cmp_gt_u32 vcc, 8, v0")
    e("  s_and_saveexec_b64 s[56:57], vcc")
    e("  ds_write_b32 v172, v176")
    e("  s_mov_b64 exec, s[56:57]")
    e("  s_waitcnt lgkmcnt(0)")
    e("  s_barrier")
    e("  v_and_b32 v172, 31, v0")
    e("  v_lshlrev_b32 v172, 2, v172")
    e(f"  ds_read_b32 v177, v172 offset:{LDS_C}")
    e("  v_mov_b32 v178, 0")
    e("  s_waitcnt lgkmcnt(0)")
    for i in range(32):
        e(f"  v_readlane_b32 s64, v177, {i}")
        e("  s_nop 1")
        e("  v_cmp_gt_u32 vcc, s64, v177")
        e("  s_nop 1")
        e("  v_addc_co_u32 v178, vcc, 0, v178, vcc")
    e("  v_cmp_gt_u32 vcc, 8, v178")
    e("  v_cmp_gt_u32 s[58:59], 32, v0")
    e("  s_and_b64 vcc, vcc, s[58:59]")
    e("  v_lshlrev_b32 v172, 2, v178")
    e("  s_and_saveexec_b64 s[56:57], vcc")
    e(f"  ds_write_b32 v172, v177 offset:{LDS_C+128}")
    e("  s_mov_b64 exec, s[56:57]")
    e("  s_waitcnt lgkmcnt(0)")
    e("  s_barrier")
    stamp(3)
    e("  s_cmp_lt_u32 s48, 2")
    e("  s_cbranch_scc1 tf_p2")
    e("  s_waitcnt vmcnt(0)")
    e("  s_branch tf_p2_end")
    lab("tf_p2")
    e("  v_mov_b32 v172, 0")
    e(f"  ds_read_b128 {vr(K,4)}, v172 offset:{LDS_C+128}")
    e(f"  ds_read_b128 {vr(K+4,4)}, v172 offset:{LDS_C+144}")
    e("  v_lshrrev_b32 v173, 4, v180")
    e("  v_lshlrev_b32 v173, 2, v173")
    e(f"  ds_read_b32 v174, v173 offset:{LDS_C+128}")
    e("  v_sub_u32 v175, 0xffff, v181")
    e("  s_waitcnt lgkmcnt(0)")
    e("  s_mov_b64 s[58:59], exec")
    for k in range(8):
        e(f"  v_and_b32 v{K+k}, 0xffff, v{K+k}")
        e(f"  v_cmp_ne_u32 vcc, v{K+k}, v175")
        e("  s_and_b64 s[58:59], s[58:59], vcc")
    e("  v_lshlrev_b32 v3, 10, v181")
    e("  v_lshl_add_u32 v3, v2, 4, v3")
    e("  s_and_saveexec_b64 s[56:57], s[58:59]")
    e("  s_cbranch_execz tf_nostore")
    for j in range(4):
        e(f"  buffer_store_dwordx4 {vr(148+4*j,4)}, v3, s[44:47], 0 offen offset:{256*j}")
    lab("tf_nostore")
    e("  s_mov_b64 exec, s[56:57]")
    e("  v_and_b32 v1, 0xffff, v174")
    e("  v_sub_u32 v1, 0xffff, v1")
    rowmac(False)
    e("  v_lshrrev_b32 v173, 4, v180")
    e(f"  v_mul_u32_u24 v4, {XS_STRIDE}, v173")
    e("  v_lshl_add_u32 v4, v2, 4, v4")
    e("  v_lshlrev_b32 v5, 10, v173")
    e("  v_lshl_add_u32 v5, v2, 4, v5")
    for j in range(4):
        e(f"  ds_write_b128 v4, {vr(16+4*j,4)} offset:{LDS_XS+256*j}")
        e(f"  ds_write_b128 v5, {vr(32+4*j,4)} offset:{LDS_HS+256*j}")
    e("  s_waitcnt lgkmcnt(0)")
    lab("tf_p2_end")
    e("  s_barrier")
    stamp(4)
    e("  s_cmp_lg_u32 s48, 0")
    e("  s_cbranch_scc1 tf_f2")
    e("  s_cmp_ge_u32 s2, 224")
    e("  s_cbranch_scc1 tf_f2")
    e("  v_and_b32 v3, 7, v0")
    e(f"  v_mul_u32_u24 v3, {XS_STRIDE}, v3")
    e("  v_lshrrev_b32 v4, 4, v0")
    e("  v_lshl_add_u32 v3, v4, 4, v3")
    e("  v_and_b32 v5, 15, v0")
    e("  v_lshrrev_b32 v5, 2, v5")
    e("  v_lshl_add_u32 v5, v4, 3, v5")
    e("  v_lshlrev_b32 v5, 4, v5")
    e("  v_and_b32 v6, 1, v0")
    e("  v_lshl_add_u32 v5, v6, 3, v5")
    e("  v_and_b32 v6, 2, v0")
    e("  v_lshl_add_u32 v5, v6, 12, v5")
    for i in range(4):
        e(f"  v_mov_b32 v{8+i}, 0")
    FA, FB = 16, 80
    for st in range(16):
        e(f"  ds_read_b128 {vr(FA+4*st,4)}, v3 offset:{LDS_XS + 64*st}")
        e(f"  ds_read_b64_tr_b16 {vr(FB+4*st,2)}, v5 offset:{512*st}")
        e(f"  ds_read_b64_tr_b16 {vr(FB+4*st+2,2)}, v5 offset:{512*st+64}")
        if st % 4 == 3:
            e("  s_waitcnt lgkmcnt(0)")
            for s2 in range(st-3, st+1):
                e(f"  v_mfma_f32_16x16x32_bf16 v[8:11], {vr(FA+4*s2,4)}, {vr(FB+4*s2,4)}, v[8:11]")
    e("  s_nop 15")
    for i in range(4):
        e(f"  v_cvt_pk_bf16_f32 v{8+i}, v{8+i}, v{8+i}")
        e(f"  v_lshlrev_b32 v{8+i}, 16, v{8+i}")
    e("  s_nop 1")
    for i in range(4):
        e(f"  v_mov_b32_dpp v{12+i}, v{8+i} row_ror:8 row_mask:0xf bank_mask:0xf")
    for i in range(4):
        e(f"  v_mul_f32 v16, 0xbfb8aa3b, v{8+i}")
        e("  v_exp_f32 v16, v16")
        e("  s_nop 0")
        e("  v_add_f32 v16, 1.0, v16")
        e("  v_rcp_f32 v16, v16")
        e("  s_nop 0")
        e(f"  v_mul_f32 v16, v{8+i}, v16")
        e("  v_cvt_pk_bf16_f32 v16, v16, v16")
        e("  v_lshlrev_b32 v16, 16, v16")
        e(f"  v_mul_f32 v16, v16, v{12+i}")
        e(f"  v_cvt_pk_bf16_f32 v{20+i}, v16, v16")
    e("  s_nop 1")
    for i in range(4):
        e(f"  v_mov_b32_dpp v{24+i}, v{20+i} quad_perm:[1,0,3,2] row_mask:0xf bank_mask:0xf")
    for i in range(4):
        e(f"  v_and_b32 v{20+i}, 0xffff, v{20+i}")
        e(f"  v_and_b32 v{24+i}, 0xffff0000, v{24+i}")
        e(f"  v_or_b32 v{20+i}, v{20+i}, v{24+i}")
    e("  v_and_b32 v5, 15, v0")
    e("  v_and_b32 v6, 9, v0")
    e("  v_cmp_eq_u32 vcc, 0, v6")
    e("  v_cmp_gt_u32 s[58:59], 32, v0")
    e("  s_and_b64 vcc, vcc, s[58:59]")
    e("  s_and_saveexec_b64 s[56:57], vcc")
    e("  v_lshlrev_b32 v4, 2, v4")
    e("  v_mul_u32_u24 v4, 3584, v4")
    e("  v_lshl_add_u32 v4, v5, 1, v4")
    e("  s_lshl_b32 s52, s49, 4")
    e(f"  s_add_u32 s52, s52, {WS_GU}")
    for i in range(4):
        e(f"  buffer_store_dword v{20+i}, v4, s[24:27], s52 offen sc1")
        if i < 3:
            e("  v_add_u32 v4, 3584, v4")
    e("  s_waitcnt vmcnt(0)")
    e("  s_mov_b64 exec, 1")
    e("  v_mov_b32 v4, 1")
    e("  v_mov_b32 v5, 0")
    e("  s_lshl_b32 s52, s49, 2")
    e(f"  s_add_u32 s52, s52, {WS_FLAG}")
    e("  buffer_store_dword v4, v5, s[24:27], s52 offen sc1")
    e("  s_mov_b64 exec, s[56:57]")
    stamp(5)
    lab("tf_f2")
    e("  s_cmp_lt_u32 s2, 192")
    e("  s_cbranch_scc1 tf_done")
    e("  v_min_u32 v3, 55, v0")
    e("  v_lshlrev_b32 v3, 2, v3")
    e("  s_mul_i32 s52, s48, 224")
    e(f"  s_add_u32 s52, s52, {WS_FLAG}")
    e("  s_mov_b32 s60, 0")
    lab("tf_poll2_loop")
    e("  buffer_load_dword v4, v3, s[24:27], s52 offen sc1")
    e("  s_waitcnt vmcnt(0)")
    e("  v_cmp_eq_u32 s[62:63], 0, v4")
    e("  s_nop 3")
    e("  s_cmp_eq_u64 s[62:63], 0")
    e("  s_cbranch_scc1 tf_poll2_ok")
    e("  s_add_u32 s60, s60, 1")
    e(f"  s_cmp_gt_u32 s60, {SPIN}")
    e("  s_cbranch_scc1 tf_poll2_ok")
    e("  s_sleep 1")
    e("  s_branch tf_poll2_loop")
    lab("tf_poll2_ok")
    stamp(6)
    e("  v_and_b32 v4, 7, v0")
    e("  v_mul_u32_u24 v4, 3584, v4")
    e("  v_lshrrev_b32 v5, 4, v0")
    e("  v_lshl_add_u32 v4, v5, 4, v4")
    e("  s_mul_i32 s52, s48, 896")
    e(f"  s_add_u32 s52, s52, {WS_GU}")
    FA, FB = 16, 72
    for st in range(14):
        e(f"  buffer_load_dwordx4 {vr(FA+4*st,4)}, v4, s[24:27], s52 offen offset:{64*st} sc1")
    e("  v_and_b32 v7, 15, v0")
    e("  v_lshrrev_b32 v7, 2, v7")
    e("  v_lshl_add_u32 v7, v5, 3, v7")
    e("  v_lshlrev_b32 v7, 4, v7")
    e("  v_and_b32 v6, 1, v0")
    e("  v_lshl_add_u32 v7, v6, 3, v7")
    e("  s_mul_i32 s54, s48, 7168")
    e(f"  s_add_u32 s54, s54, {LDS_WD}")
    e("  v_add_u32 v7, s54, v7")
    for st in range(14):
        e(f"  ds_read_b64_tr_b16 {vr(FB+4*st,2)}, v7 offset:{512*st}")
        e(f"  ds_read_b64_tr_b16 {vr(FB+4*st+2,2)}, v7 offset:{512*st+64}")
    for i in range(4):
        e(f"  v_mov_b32 v{8+i}, 0")
    e("  s_waitcnt vmcnt(0) lgkmcnt(0)")
    for st in range(14):
        e(f"  v_mfma_f32_16x16x32_bf16 v[8:11], {vr(FA+4*st,4)}, {vr(FB+4*st,4)}, v[8:11]")
    e("  s_nop 15")
    e("  v_lshlrev_b32 v3, 4, v0")
    e("  s_lshl_b32 s52, s48, 10")
    e("  v_add_u32 v3, s52, v3")
    e(f"  ds_write_b128 v3, v[8:11] offset:{LDS_R}")
    e("  s_waitcnt lgkmcnt(0)")
    e("  s_barrier")
    e("  s_cmp_lg_u32 s48, 0")
    e("  s_cbranch_scc1 tf_done")
    e("  v_lshlrev_b32 v3, 4, v0")
    for w in range(1, 4):
        e(f"  ds_read_b128 {vr(12+4*(w-1),4)}, v3 offset:{LDS_R+1024*w}")
    e("  v_and_b32 v6, 1, v5")
    e("  v_lshlrev_b32 v6, 4, v6")
    e(f"  ds_read_b128 v[24:27], v6 offset:{LDS_C+128}")
    e("  v_and_b32 v6, 7, v0")
    e("  s_lshl_b32 s52, s50, 4")
    e("  v_lshl_add_u32 v6, v6, 1, s52")
    e("  v_and_b32 v7, 1, v5")
    e("  v_lshlrev_b32 v7, 2, v7")
    for i in range(4):
        e(f"  v_add_u32 v28, {i}, v7")
        e(f"  v_mul_u32_u24 v29, {XS_STRIDE}, v28")
        e("  v_add_u32 v29, v29, v6")
        e(f"  ds_read_u16 v{36+i}, v29 offset:{LDS_XS}")
        e("  v_lshl_add_u32 v29, v28, 10, v6")
        e(f"  ds_read_u16 v{40+i}, v29 offset:{LDS_HS}")
    e("  v_and_b32 v30, 15, v0")
    e("  v_cmp_gt_u32 vcc, 8, v30")
    e("  v_cmp_gt_u32 s[58:59], 32, v0")
    e("  s_and_b64 vcc, vcc, s[58:59]")
    e("  s_waitcnt lgkmcnt(0)")
    e("  s_and_saveexec_b64 s[56:57], vcc")
    for i in range(4):
        e(f"  v_add_f32 v{8+i}, v{8+i}, v{12+i}")
        e(f"  v_add_f32 v{16+i}, v{16+i}, v{20+i}")
        e(f"  v_add_f32 v{8+i}, v{8+i}, v{16+i}")
        e(f"  v_cvt_pk_bf16_f32 v{8+i}, v{8+i}, v{8+i}")
        e(f"  v_lshlrev_b32 v{8+i}, 16, v{8+i}")
        e(f"  v_and_b32 v60, 0xffff0000, v{24+i}")
        e("  v_ashrrev_i32 v61, 31, v60")
        e("  v_not_b32 v61, v61")
        e("  v_or_b32 v61, 0x80000000, v61")
        e("  v_xor_b32 v60, v60, v61")
        e("  v_and_b32 v60, 0xffff0000, v60")
        e("  v_mul_f32 v60, 0xbfb8aa3b, v60")
        e("  v_exp_f32 v60, v60")
        e("  s_nop 0")
        e("  v_add_f32 v60, 1.0, v60")
        e("  v_rcp_f32 v60, v60")
        e("  s_nop 0")
        e("  v_cvt_pk_bf16_f32 v60, v60, v60")
        e("  v_lshlrev_b32 v60, 16, v60")
        e(f"  v_mul_f32 v{8+i}, v{8+i}, v60")
        e(f"  v_cvt_pk_bf16_f32 v{8+i}, v{8+i}, v{8+i}")
        e(f"  v_lshlrev_b32 v{8+i}, 16, v{8+i}")
        e(f"  v_lshlrev_b32 v{36+i}, 16, v{36+i}")
        e(f"  v_lshlrev_b32 v{40+i}, 16, v{40+i}")
        e(f"  v_add_f32 v61, v{36+i}, v{8+i}")
        e("  v_cvt_pk_bf16_f32 v61, v61, v61")
        e("  v_lshlrev_b32 v61, 16, v61")
        e(f"  v_add_f32 v61, v{40+i}, v61")
        e("  v_cvt_pk_bf16_f32 v61, v61, v61")
        e(f"  v_and_b32 v62, 0xffff, v{24+i}")
        e("  v_sub_u32 v62, 0xffff, v62")
        e("  v_lshl_add_u32 v62, v62, 10, v6")
        e("  buffer_store_short v61, v62, s[44:47], 0 offen")
    lab("tf_done")
    kernel_end()
    e("  s_endpgm")
    kernel_desc(name, 184)

def main():
    hdr = open("cdna_kernels/" + NAME + ".s.ref").read().splitlines()
    out = []
    for ln in hdr:
        if ln.startswith("; @launch"):
            if FUSE:
                out.append("; @launch kernel=f_kernel grid=(256,1,1) block=(576,1,1) lds=%d" % (K2_NS*24576))
            else:
                out.append("; @launch kernel=k1_kernel grid=(256,1,1) block=(%d,1,1) lds=131072" % (576 if OPT('K1_PF', 0) else 512))
                out.append("; @launch kernel=k2_kernel grid=(256,1,1) block=(%d,1,1) lds=%d" % (576, K2_NS*24576))
            if OPT('TF'):
                out.append("; @launch kernel=tf_kernel grid=(256,1,1) block=(256,1,1) lds=66048")
            else:
                if not OPT('K2T1', 1):
                    out.append("; @launch kernel=t1_kernel grid=(256,1,1) block=(%d,1,1) lds=0" % (192 if OPT('T1_PF', 1) else 128))
                if OPT('T4', 1):
                    out.append("; @launch kernel=t4_kernel grid=(240,1,1) block=(256,1,1) lds=123392")
                else:
                    out.append("; @launch kernel=t2_kernel grid=(224,1,1) block=(256,1,1) lds=25600")
                    out.append("; @launch kernel=t3_kernel grid=(64,1,1) block=(256,1,1) lds=32768")
            break
        out.append(ln)
    out.append('.amdgcn_target "amdgcn-amd-amdhsa--gfx950"')
    out.append(".text")
    gen_k1(); gen_k2()
    if OPT('TF'): gen_tf()
    elif OPT('T4', 1):
        if not OPT('K2T1', 1): gen_t1()
        gen_t4()
    else: gen_t1(); gen_t2(); gen_t3()
    out += L
    out.append('.section .rodata,"a"')
    out += KD
    dst = sys.argv[1] if len(sys.argv) > 1 else "cdna_kernels/" + NAME + ".s"
    open(dst, "w").write("\n".join(out) + "\n")

main()
```

```python
import sys, os
OPT = lambda k, d=0: int(os.environ.get(k, d))

NAME = "sequential_preLN__spectral_fnet__moe_arch_mod__prompt"
L = []
def e(s=""):
    L.append(s)
def lab(s):
    L.append(s + ":")

KA_X, KA_WSRE, KA_WSIM, KA_WDRE, KA_WDIM = 0, 8, 16, 24, 32
KA_WR, KA_WG, KA_WU, KA_WDN, KA_OUT, KA_DBG, KA_WS = 48, 56, 64, 72, 80, 88, 96
WS_YB = 0
WS_Y = 4 << 20
WS_KEY = 8 << 20
WS_STAT = (8 << 20) + 8192
WS_GU = (8 << 20) + 65536
WS_IDX = (8 << 20) + 131072
WS_FLAG = (8 << 20) + 196608
WS_FA = WS_FLAG + 4096
WS_WDB = 10 << 20
WS_SIZE = 268435456

KIDX = [0]
NV = {"k1_kernel": 160, "k2_kernel": 160, "t1_kernel": 148, "t2_kernel": 192, "t3_kernel": 192, "tf_kernel": 184, "t4_kernel": 252, "f_kernel": 160}
FUSE = OPT("FUSE", 1)
K2_NS = OPT("K2_NS", 6)
CUR = [0]
def kernel_begin(name):
    CUR[0] = NV[name]
    e(f".globl {name}")
    e(".p2align 8")
    e(f".type {name},@function")
    lab(name)
    if OPT('DIAG'):
        e("  s_memrealtime s[72:73]")
        for i in range(1, 7):
            e(f"  s_mov_b64 s[{72+2*i}:{73+2*i}], 0")
        e(f"  s_load_dwordx2 s[94:95], s[0:1], {KA_WS}")
        e(f"  v_mov_b32 v{CUR[0]}, v0")

def stamp(i):
    if OPT('DIAG'):
        e(f"  s_memrealtime s[{72+2*i}:{73+2*i}]")

def kernel_end():
    if OPT('DIAG'):
        e("  s_waitcnt vmcnt(0) lgkmcnt(0)")
        e("  s_memrealtime s[86:87]")
        e("  s_mov_b32 s88, s94")
        e("  s_mov_b32 s89, s95")
        e("  s_mov_b32 s90, 0x4000000")
        e("  s_mov_b32 s91, 0x00020000")
        e("  s_waitcnt lgkmcnt(0)")
        e("  s_mov_b64 exec, 1")
        for i in range(16):
            e(f"  v_mov_b32 v{i}, s{72+i}")
        e(f"  v_lshrrev_b32 v{CUR[0]+1}, 6, v{CUR[0]}")
        e(f"  v_lshlrev_b32 v{CUR[0]+1}, 6, v{CUR[0]+1}")
        e("  s_lshl_b32 s92, s2, 10")
        e(f"  s_add_u32 s92, s92, {(16 << 20) + KIDX[0] * 0x100000}")
        for i in range(4):
            e(f"  buffer_store_dwordx4 v[{4*i}:{3+4*i}], v{CUR[0]+1}, s[88:91], s92 offen offset:{16*i}")
    KIDX[0] += 1

KD = []
def kernel_desc(name, vgpr, sgpr=102):
    assert vgpr == CUR[0]
    if OPT('DIAG'): vgpr += 2
    acc = (vgpr + 3) // 4 * 4
    KD.append(f""".p2align 6
.amdhsa_kernel {name}
  .amdhsa_next_free_vgpr {vgpr}
  .amdhsa_next_free_sgpr {sgpr}
  .amdhsa_accum_offset {acc}
  .amdhsa_group_segment_fixed_size 0
  .amdhsa_kernarg_size 104
  .amdhsa_user_sgpr_count 2
  .amdhsa_user_sgpr_kernarg_segment_ptr 1
  .amdhsa_system_sgpr_workgroup_id_x 1
.end_amdhsa_kernel""")

def srd(d, lo, hi, size):
    e(f"  s_mov_b32 s{d}, s{lo}")
    e(f"  s_mov_b32 s{d+1}, s{hi}")
    e(f"  s_mov_b32 s{d+2}, {size}")
    e(f"  s_mov_b32 s{d+3}, 0x00020000")

def vr(a, n):
    return f"v[{a}:{a+n-1}]"

def reduce8(v):
    e("  s_nop 1")
    e(f"  v_add_f32_dpp v{v}, v{v}, v{v} quad_perm:[1,0,3,2] row_mask:0xf bank_mask:0xf")
    e("  s_nop 1")
    e(f"  v_add_f32_dpp v{v}, v{v}, v{v} quad_perm:[2,3,0,1] row_mask:0xf bank_mask:0xf")
    e("  s_nop 1")
    e(f"  v_add_f32_dpp v{v}, v{v}, v{v} row_half_mirror row_mask:0xf bank_mask:0xf")

def reduce16(v):
    reduce8(v)
    e("  s_nop 1")
    e(f"  v_add_f32_dpp v{v}, v{v}, v{v} row_mirror row_mask:0xf bank_mask:0xf")

def helper_wave():
    srd(36, 34, 35, 1792*512*2)
    srd(40, 6, 7, 12 << 20)
    e("  v_lshlrev_b32 v2, 4, v0")
    e("  s_mul_i32 s44, s2, 7168")
    for q in range(7):
        e(f"  buffer_load_dwordx4 {vr(8+4*q,4)}, v2, s[36:39], s44 offen")
        e("  s_add_u32 s44, s44, 1024")
    e("  s_cmp_ge_u32 s2, 28")
    e("  s_cbranch_scc1 k2_nomark")
    for q in range(4):
        e(f"  v_mov_b32 v{4+q}, -1")
    e("  s_lshl_b32 s44, s2, 10")
    e(f"  s_add_u32 s44, s44, {WS_GU}")
    e("  buffer_store_dwordx4 v[4:7], v2, s[40:43], s44 offen")
    lab("k2_nomark")
    e("  v_mul_u32_u24 v3, 28672, v0")
    e("  s_mul_i32 s44, s2, 112")
    e(f"  s_add_u32 s44, s44, {WS_WDB}")
    e("  s_waitcnt vmcnt(0)")
    for q in range(7):
        e(f"  buffer_store_dwordx4 {vr(8+4*q,4)}, v3, s[40:43], s44 offen offset:{16*q}")
    e("  s_branch k2_done")

def get_epoch(tag):
    e("  v_mov_b32 v158, 0")
    e("  s_mov_b32 s69, 0")
    lab(f"ep_{tag}")
    e("  buffer_load_dword v159, v158, s[96:99], 0 offen sc1")
    e("  s_waitcnt vmcnt(0)")
    e("  v_readfirstlane_b32 s68, v159")
    e("  s_add_u32 s69, s69, 1")
    e(f"  s_cmp_gt_u32 s69, {1 << 22}")
    e(f"  s_cbranch_scc1 ep_{tag}_ok")
    e("  s_cmp_eq_u32 s68, 0")
    e(f"  s_cbranch_scc1 ep_{tag}")
    lab(f"ep_{tag}_ok")

def gen_k1():
    name = "f_kernel" if FUSE else "k1_kernel"
    kernel_begin(name)
    e("  s_cmp_ge_u32 s2, 256")
    e(f"  s_cbranch_scc1 {'k2_done' if FUSE else 'k1_done'}")
    e(f"  s_load_dwordx2 s[4:5], s[0:1], {KA_X}")
    e(f"  s_load_dwordx4 s[8:11], s[0:1], {KA_WDRE}")
    e(f"  s_load_dwordx2 s[6:7], s[0:1], {KA_WS}")
    if FUSE:
        e(f"  s_load_dwordx2 s[66:67], s[0:1], {KA_DBG}")
        e(f"  s_load_dwordx2 s[34:35], s[0:1], {KA_WDN}")
    e("  s_and_b32 s12, s2, 7")
    e("  s_lshr_b32 s13, s2, 3")
    e("  s_and_b32 s14, s13, 3")
    e("  s_lshl_b32 s12, s12, 2")
    e("  s_add_u32 s12, s12, s14")
    e("  s_lshr_b32 s13, s13, 2")
    e("  v_lshrrev_b32 v1, 6, v0")
    e("  v_and_b32 v0, 63, v0")
    e("  v_readfirstlane_b32 s15, v1")
    e("  v_lshrrev_b32 v2, 3, v0")
    e("  v_and_b32 v3, 7, v0")
    if OPT('K1_PF', 0) or OPT('K1_PFEND', 0):
        e(f"  s_load_dwordx4 s[40:43], s[0:1], {KA_WSRE}")
    e("  s_waitcnt lgkmcnt(0)")
    if OPT('K1_PF', 0):
        e("  s_cmp_lg_u32 s15, 8")
        e("  s_cbranch_scc1 k1_main")
        e("  s_and_b32 s44, s2, 7")
        e("  s_cmp_lt_u32 s44, 4")
        e("  s_cselect_b32 s48, s40, s42")
        e("  s_cselect_b32 s49, s41, s43")
        e(f"  s_mov_b32 s50, {2048*2048*2}")
        e("  s_mov_b32 s51, 0x00020000")
        e("  s_and_b32 s44, s44, 3")
        e("  s_lshl_b32 s44, s44, 21")
        e("  s_lshr_b32 s45, s2, 3")
        e("  s_lshl_b32 s45, s45, 16")
        e("  s_add_u32 s44, s44, s45")
        e("  v_lshlrev_b32 v1, 4, v0")
        e("  s_cmp_lt_u32 s13, 4")
        e("  s_cselect_b32 s56, s8, s10")
        e("  s_cselect_b32 s57, s9, s11")
        e(f"  s_mov_b32 s58, {512*512*2}")
        e("  s_mov_b32 s59, 0x00020000")
        e("  s_and_b32 s46, s13, 3")
        e("  s_lshl_b32 s46, s46, 17")
        for q in range(OPT('K1_CAN', 0)):
            e(f"  buffer_load_dwordx4 v[8:11], v1, s[56:59], s46 offen offset:{q*1024}")
            e("  s_waitcnt vmcnt(0)")
        for q in range(64):
            e(f"  buffer_load_dwordx4 {vr(8+4*(q%32),4)}, v1, s[48:51], s44 offen")
            e("  s_add_u32 s44, s44, 1024")
        e("  s_branch k1_done")
        lab("k1_main")
    if FUSE:
        srd(96, 66, 67, 256)
        e("  s_cmp_lg_u32 s15, 8")
        e("  s_cbranch_scc1 f_main")
        e("  s_cmp_lg_u32 s2, 0")
        e("  s_cbranch_scc1 f_noepoch")
        e("  s_memrealtime s[40:41]")
        e("  s_waitcnt lgkmcnt(0)")
        e("  s_or_b32 s40, s40, 1")
        e("  v_mov_b32 v4, s40")
        e("  v_mov_b32 v5, 0")
        e("  s_mov_b64 s[42:43], exec")
        e("  s_mov_b64 exec, 1")
        e("  buffer_store_dword v4, v5, s[96:99], 0 offen sc1")
        e("  s_mov_b64 exec, s[42:43]")
        lab("f_noepoch")
        if OPT('F_PF', 0):
            e(f"  s_load_dwordx4 s[40:43], s[0:1], {KA_WSRE}")
            e("  s_and_b32 s44, s2, 7")
            e("  s_waitcnt lgkmcnt(0)")
            e("  s_cmp_lt_u32 s44, 4")
            e("  s_cselect_b32 s48, s40, s42")
            e("  s_cselect_b32 s49, s41, s43")
            e(f"  s_mov_b32 s50, {2048*2048*2}")
            e("  s_mov_b32 s51, 0x00020000")
            e("  s_and_b32 s44, s44, 3")
            e("  s_lshl_b32 s44, s44, 21")
            e("  s_lshr_b32 s45, s2, 3")
            e("  s_lshl_b32 s45, s45, 16")
            e("  s_add_u32 s44, s44, s45")
            e("  v_lshlrev_b32 v1, 4, v0")
            for q in range(64):
                e(f"  buffer_load_dwordx4 {vr(40+4*(q%24),4)}, v1, s[48:51], s44 offen")
                e("  s_add_u32 s44, s44, 1024")
        helper_wave()
        lab("f_main")
    srd(16, 4, 5, 2048*512*2)
    e("  s_cmp_lt_u32 s13, 4")
    e("  s_cselect_b32 s20, s8, s10")
    e("  s_cselect_b32 s21, s9, s11")
    e(f"  s_mov_b32 s22, {512*512*2}")
    e("  s_mov_b32 s23, 0x00020000")
    srd(24, 6, 7, 9 << 20)
    if not FUSE:
        e("  s_or_b32 s46, s2, s15")
        e("  s_cmp_lg_u32 s46, 0")
        e("  s_cbranch_scc1 k1_nozero")
        for q in range(4):
            e(f"  v_mov_b32 v{4+q}, 0")
        e("  v_lshlrev_b32 v8, 4, v0")
        e(f"  s_mov_b32 s46, {WS_FLAG}")
        e("  buffer_store_dwordx4 v[4:7], v8, s[24:27], s46 offen")
        lab("k1_nozero")
    e("  s_lshl_b32 s28, s12, 6")
    e("  s_lshl_b32 s29, s15, 3")
    e("  s_add_u32 s28, s28, s29")
    e("  v_add_u32 v4, s28, v2")
    e("  v_lshlrev_b32 v4, 10, v4")
    e("  v_lshl_add_u32 v4, v3, 4, v4")
    X = 32
    for j in range(8):
        e(f"  buffer_load_dwordx4 {vr(X+4*j,4)}, v4, s[16:19], 0 offen offset:{128*j}")
    e("  s_and_b32 s30, s13, 3")
    e("  s_lshl_b32 s30, s30, 7")
    for ii in range(2):
        e(f"  s_lshl_b32 s31, s15, 4")
        e(f"  s_add_u32 s31, s31, {8*ii}")
        e(f"  v_add_u32 v7, s31, v2")
        e(f"  v_lshrrev_b32 v8, 1, v7")
        e(f"  v_and_b32 v8, 7, v8")
        e(f"  v_xor_b32 v8, v8, v3")
        e(f"  v_add_u32 v7, s30, v7")
        e(f"  v_lshlrev_b32 v7, 10, v7")
        e(f"  v_lshl_add_u32 v{5+ii}, v8, 4, v7")
    e("  s_lshl_b32 s32, s15, 11")
    def wdma(kb):
        slot = kb % 4
        e(f"  s_mov_b32 s33, {128*kb}")
        for ii in range(2):
            e(f"  s_add_u32 m0, s32, {slot*16384 + ii*1024}")
            e("  s_nop 0")
            e(f"  buffer_load_dwordx4 v{5+ii}, s[20:23], s33 offen lds")
    for kb in range(4):
        wdma(kb)
    e("  s_mov_b32 s34, 0x3f803f80")
    for a in range(4):
        e(f"  v_mov_b32 v{8+a}, 0")
    e("  s_waitcnt vmcnt(8)")
    for i in range(32):
        e(f"  v_dot2_f32_bf16 v{8+i%4}, v{X+i}, s34, v{8+i%4}")
    e("  s_nop 3")
    e("  v_add_f32 v8, v8, v9")
    e("  v_add_f32 v10, v10, v11")
    e("  v_add_f32 v8, v8, v10")
    reduce8(8)
    e("  v_mul_f32 v8, 0x3b000000, v8")
    e("  v_cvt_pk_bf16_f32 v9, v8, v8")
    e("  v_lshlrev_b32 v9, 16, v9")
    e("  v_sub_f32 v10, 0, v9")
    e("  v_mov_b32 v11, v10")
    D = 64
    for a in range(4):
        e(f"  v_mov_b32 v{12+a}, 0")
    for i in range(32):
        e(f"  v_lshlrev_b32 v{D+2*i}, 16, v{X+i}")
        e(f"  v_and_b32 v{D+2*i+1}, 0xffff0000, v{X+i}")
        e(f"  v_pk_add_f32 {vr(D+2*i,2)}, {vr(D+2*i,2)}, v[10:11]")
        q = 12 + 2*(i % 2)
        e(f"  v_pk_fma_f32 {vr(q,2)}, {vr(D+2*i,2)}, {vr(D+2*i,2)}, {vr(q,2)}")
    e("  v_add_f32 v12, v12, v13")
    e("  v_add_f32 v14, v14, v15")
    e("  v_add_f32 v12, v12, v14")
    reduce8(12)
    e("  v_sub_f32 v13, v8, v9")
    e("  v_mul_f32 v13, v13, v13")
    e("  v_mul_f32 v12, 0x3b000000, v12")
    e("  v_sub_f32 v12, v12, v13")
    e("  v_max_f32 v12, 0, v12")
    e("  v_cvt_pk_bf16_f32 v12, v12, v12")
    e("  v_lshlrev_b32 v12, 16, v12")
    e("  v_add_f32 v12, 0x3727c5ac, v12")
    e("  v_cvt_pk_bf16_f32 v12, v12, v12")
    e("  v_lshlrev_b32 v12, 16, v12")
    e("  v_sqrt_f32 v12, v12")
    e("  s_nop 0")
    e("  v_cvt_pk_bf16_f32 v12, v12, v12")
    e("  v_lshlrev_b32 v12, 16, v12")
    e("  v_rcp_f32 v12, v12")
    e("  s_nop 0")
    e("  v_mov_b32 v13, v12")
    for i in range(32):
        e(f"  v_cvt_pk_bf16_f32 v{X+i}, v{D+2*i}, v{D+2*i+1}")
        e(f"  v_lshlrev_b32 v{D+2*i}, 16, v{X+i}")
        e(f"  v_and_b32 v{D+2*i+1}, 0xffff0000, v{X+i}")
        e(f"  v_pk_mul_f32 {vr(D+2*i,2)}, {vr(D+2*i,2)}, v[12:13]")
        e(f"  v_cvt_pk_bf16_f32 v{X+i}, v{D+2*i}, v{D+2*i+1}")
    e("  v_add_u32 v14, s29, v2")
    e("  v_lshrrev_b32 v15, 1, v14")
    e("  v_and_b32 v15, 7, v15")
    e("  v_xor_b32 v15, v15, v3")
    e("  v_lshlrev_b32 v14, 7, v14")
    e("  v_lshl_add_u32 v14, v15, 4, v14")
    e("  v_add_u32 v14, 0x10000, v14")
    for j in range(8):
        e(f"  ds_write_b128 v14, {vr(X+4*j,4)} offset:{8192*j}")
    e("  s_and_b32 s35, s15, 1")
    e("  s_lshr_b32 s36, s15, 1")
    e("  v_and_b32 v16, 31, v0")
    e("  v_lshrrev_b32 v17, 5, v0")
    def fragaddr(dst, sblk, base):
        e(f"  s_lshl_b32 s37, s{sblk}, 5")
        e(f"  v_add_u32 v18, s37, v16")
        e(f"  v_lshrrev_b32 v19, 1, v18")
        e(f"  v_and_b32 v19, 7, v19")
        e(f"  v_xor_b32 v19, v19, v17")
        e(f"  v_lshlrev_b32 v18, 7, v18")
        e(f"  v_lshl_add_u32 v{dst}, v19, 4, v18")
        if base:
            e(f"  v_add_u32 v{dst}, {base}, v{dst}")
        for kk in range(1, 4):
            e(f"  v_xor_b32 v{dst+kk}, {32*kk}, v{dst}")
    fragaddr(20, 35, 0x10000)
    fragaddr(24, 36, 0)
    ACC = 96
    for i in range(16):
        e(f"  v_mov_b32 v{ACC+i}, 0")
    FA, FB = 64, 80
    waits = [6, 4, 4, 4, 4, 4, 2, 0]
    for kb in range(8):
        e(f"  s_waitcnt vmcnt({waits[kb]}) lgkmcnt(0)")
        e("  s_barrier")
        if 1 <= kb <= 4:
            wdma(kb + 3)
        slot = kb % 4
        for kk in range(4):
            e(f"  ds_read_b128 {vr(FA+4*kk,4)}, v{20+kk} offset:{8192*kb}")
            e(f"  ds_read_b128 {vr(FB+4*kk,4)}, v{24+kk} offset:{16384*slot}")
        for kk in range(4):
            e(f"  s_waitcnt lgkmcnt({6-2*kk})")
            e(f"  v_mfma_f32_32x32x16_bf16 {vr(ACC,16)}, {vr(FA+4*kk,4)}, {vr(FB+4*kk,4)}, {vr(ACC,16)}")
    stamp(5)
    e("  s_lshl_b32 s37, s13, 1")
    e("  s_lshr_b32 s38, s36, 1")
    e("  s_add_u32 s37, s37, s38")
    e("  s_lshl_b32 s37, s37, 5")
    e("  s_add_u32 s37, s37, s12")
    e("  s_lshl_b32 s37, s37, 13")
    e("  s_and_b32 s38, s36, 1")
    e("  s_lshl_b32 s38, s38, 5")
    e("  v_add_u32 v18, s38, v16")
    e("  v_lshrrev_b32 v19, 1, v18")
    e("  v_and_b32 v19, 7, v19")
    e("  s_lshl_b32 s38, s35, 2")
    e("  v_add_u32 v29, s38, v17")
    e("  v_xor_b32 v29, v29, v19")
    e("  v_lshlrev_b32 v18, 7, v18")
    e("  v_lshl_add_u32 v30, v29, 4, v18")
    e("  v_xor_b32 v31, 32, v30")
    e("  s_nop 7")
    P = 112
    for g in range(4):
        e(f"  v_cvt_pk_bf16_f32 v{P+2*g}, v{ACC+4*g}, v{ACC+4*g+1}")
        e(f"  v_cvt_pk_bf16_f32 v{P+2*g+1}, v{ACC+4*g+2}, v{ACC+4*g+3}")
    e("  s_nop 1")
    for p in range(2):
        e(f"  v_permlane32_swap_b32 v{P+4*p}, v{P+4*p+2}")
        e(f"  v_permlane32_swap_b32 v{P+4*p+1}, v{P+4*p+3}")
    if not FUSE:
        e(f"  buffer_store_dwordx4 {vr(P,4)}, v30, s[24:27], s37 offen")
        e(f"  buffer_store_dwordx4 {vr(P+4,4)}, v31, s[24:27], s37 offen")
        lab("k1_done")
        kernel_end()
        e("  s_endpgm")
        kernel_desc(name, 160)
        return
    TR = 131072
    e(f"  s_load_dwordx4 s[8:11], s[0:1], {KA_WSRE}")
    e("  s_lshr_b32 s38, s36, 1")
    e("  s_lshl_b32 s38, s38, 13")
    e(f"  s_add_u32 s38, s38, {TR}")
    e("  v_add_u32 v30, s38, v30")
    e("  v_add_u32 v31, s38, v31")
    e(f"  ds_write_b128 v30, {vr(P,4)}")
    e(f"  ds_write_b128 v31, {vr(P+4,4)}")
    e("  v_lshlrev_b32 v29, 4, v0")
    e("  s_lshl_b32 s38, s15, 11")
    e(f"  s_add_u32 s39, s38, {TR}")
    e("  v_add_u32 v28, s39, v29")
    e("  s_waitcnt lgkmcnt(0)")
    e("  s_barrier")
    e("  ds_read_b128 v[64:67], v28")
    e("  ds_read_b128 v[68:71], v28 offset:1024")
    e("  s_lshl_b32 s37, s13, 1")
    e("  s_lshr_b32 s39, s15, 2")
    e("  s_add_u32 s37, s37, s39")
    e("  s_lshl_b32 s37, s37, 5")
    e("  s_add_u32 s37, s37, s12")
    e("  s_lshl_b32 s37, s37, 13")
    e("  s_and_b32 s39, s15, 3")
    e("  s_lshl_b32 s39, s39, 11")
    e("  s_add_u32 s37, s37, s39")
    e("  s_waitcnt lgkmcnt(1)")
    e("  buffer_store_dwordx4 v[64:67], v29, s[24:27], s37 offen sc1")
    e("  s_waitcnt lgkmcnt(0)")
    e("  buffer_store_dwordx4 v[68:71], v29, s[24:27], s37 offen offset:1024 sc1")
    e("  s_lshl_b32 s70, s13, 5")
    e("  s_add_u32 s70, s70, s12")
    e("  s_lshl_b32 s70, s70, 2")
    e(f"  s_add_u32 s70, s70, {WS_FA}")

def k2_epilogue_plain(ACC):
    e("  s_lshl_b32 s24, s14, 21")
    e(f"  s_add_u32 s24, s24, {WS_Y}")
    e("  s_lshl_b32 s30, s13, 7")
    e("  s_add_u32 s24, s24, s30")
    e("  s_lshl_b32 s30, s12, 7")
    e("  s_lshl_b32 s31, s15, 5")
    e("  s_add_u32 s30, s30, s31")
    e("  v_add_u32 v18, s30, v16")
    e("  v_lshlrev_b32 v18, 10, v18")
    e("  v_lshl_add_u32 v18, v17, 4, v18")
    e("  s_nop 7")
    P = 64
    for g in range(8):
        e(f"  v_cvt_pk_bf16_f32 v{P+2*g}, v{ACC+4*g}, v{ACC+4*g+1}")
        e(f"  v_cvt_pk_bf16_f32 v{P+2*g+1}, v{ACC+4*g+2}, v{ACC+4*g+3}")
    e("  s_nop 1")
    for p in range(4):
        e(f"  v_permlane32_swap_b32 v{P+4*p}, v{P+4*p+2}")
        e(f"  v_permlane32_swap_b32 v{P+4*p+1}, v{P+4*p+3}")
    for p in range(4):
        e(f"  buffer_store_dwordx4 {vr(P+4*p,4)}, v18, s[20:23], s24 offen offset:{32*p}")

ROW_O = 48
def reduce32(v, t):
    reduce16(v)
    e("  s_nop 1")
    e(f"  ds_swizzle_b32 v{t}, v{v} offset:0x401F")
    e("  s_waitcnt lgkmcnt(0)")
    e(f"  v_add_f32 v{v}, v{v}, v{t}")

def rowmac32_pre():
    XX, WR = 48, 64
    e("  v_lshlrev_b32 v3, 10, v1")
    e("  v_lshl_add_u32 v3, v2, 4, v3")
    e("  v_lshlrev_b32 v4, 4, v2")
    for j in range(2):
        e(f"  buffer_load_dwordx4 {vr(XX+4*j,4)}, v3, s[20:23], 0 offen offset:{512*j}")
        e(f"  buffer_load_dwordx4 {vr(WR+4*j,4)}, v4, s[28:31], 0 offen offset:{512*j}")

def rowmac32():
    YR, YI, XX, WR, H, T, D = 16, 32, 48, 64, 80, 112, 116
    O = ROW_O
    e(f"  s_mov_b32 s52, {WS_Y}")
    e(f"  s_mov_b32 s53, {WS_Y + (2<<20)}")
    for j in range(2):
        e(f"  buffer_load_dwordx4 {vr(YR+4*j,4)}, v3, s[24:27], s52 offen offset:{512*j} sc1")
        e(f"  buffer_load_dwordx4 {vr(YI+4*j,4)}, v3, s[24:27], s53 offen offset:{512*j} sc1")
    e("  v_mov_b32 v14, 0")
    e("  v_mov_b32 v15, 0")
    for j in range(2):
        e(f"  s_waitcnt vmcnt({2*(1-j)})")
        for q in range(4):
            i = 4*j + q
            e(f"  v_lshlrev_b32 v{T}, 16, v{YR+i}")
            e(f"  v_and_b32 v{T+1}, 0xffff0000, v{YR+i}")
            e(f"  v_lshlrev_b32 v{T+2}, 16, v{YI+i}")
            e(f"  v_and_b32 v{T+3}, 0xffff0000, v{YI+i}")
            e(f"  v_pk_add_f32 {vr(T,2)}, {vr(T,2)}, {vr(T+2,2)} neg_lo:[0,1] neg_hi:[0,1]")
            e(f"  v_cvt_pk_bf16_f32 v{T}, v{T}, v{T+1}")
            e(f"  v_and_b32 v{T+1}, 0xffff0000, v{T}")
            e(f"  v_lshlrev_b32 v{T}, 16, v{T}")
            e(f"  v_lshlrev_b32 v{T+2}, 16, v{XX+i}")
            e(f"  v_and_b32 v{T+3}, 0xffff0000, v{XX+i}")
            e(f"  v_pk_add_f32 {vr(T,2)}, {vr(T,2)}, {vr(T+2,2)}")
            e(f"  v_cvt_pk_bf16_f32 v{T}, v{T}, v{T+1}")
            e(f"  v_lshlrev_b32 v{H+2*i}, 16, v{T}")
            e(f"  v_and_b32 v{H+2*i+1}, 0xffff0000, v{T}")
            e(f"  v_pk_add_f32 v[14:15], v[14:15], {vr(H+2*i,2)}")
    e("  v_add_f32 v5, v14, v15")
    reduce32(5, 13)
    e("  v_mul_f32 v5, 0x3b000000, v5")
    e("  v_cvt_pk_bf16_f32 v6, v5, v5")
    e("  v_lshlrev_b32 v6, 16, v6")
    e("  v_sub_f32 v8, 0, v6")
    e("  v_mov_b32 v9, v8")
    e("  v_mov_b32 v10, 0")
    e("  v_mov_b32 v11, 0")
    for i in range(8):
        e(f"  v_pk_add_f32 {vr(D+2*i,2)}, {vr(H+2*i,2)}, v[8:9]")
        e(f"  v_pk_fma_f32 v[10:11], {vr(D+2*i,2)}, {vr(D+2*i,2)}, v[10:11]")
    e("  v_add_f32 v10, v10, v11")
    reduce32(10, 13)
    e("  v_sub_f32 v11, v5, v6")
    e("  v_mul_f32 v11, v11, v11")
    e("  v_mul_f32 v10, 0x3b000000, v10")
    e("  v_sub_f32 v10, v10, v11")
    e("  v_max_f32 v10, 0, v10")
    e("  v_cvt_pk_bf16_f32 v10, v10, v10")
    e("  v_lshlrev_b32 v10, 16, v10")
    e("  v_add_f32 v10, 0x3727c5ac, v10")
    e("  v_cvt_pk_bf16_f32 v10, v10, v10")
    e("  v_lshlrev_b32 v10, 16, v10")
    e("  v_sqrt_f32 v10, v10")
    e("  s_nop 0")
    e("  v_cvt_pk_bf16_f32 v10, v10, v10")
    e("  v_lshlrev_b32 v10, 16, v10")
    e("  v_rcp_f32 v10, v10")
    e("  s_nop 0")
    e("  v_mov_b32 v11, v10")
    e("  v_mov_b32 v12, 0")
    for i in range(8):
        e(f"  v_cvt_pk_bf16_f32 v{T}, v{D+2*i}, v{D+2*i+1}")
        e(f"  v_lshlrev_b32 v{D+2*i}, 16, v{T}")
        e(f"  v_and_b32 v{D+2*i+1}, 0xffff0000, v{T}")
        e(f"  v_pk_mul_f32 {vr(D+2*i,2)}, {vr(D+2*i,2)}, v[10:11]")
        e(f"  v_cvt_pk_bf16_f32 v{T}, v{D+2*i}, v{D+2*i+1}")
        e(f"  v_dot2_f32_bf16 v12, v{T}, v{WR+i}, v12")
        e(f"  v_lshlrev_b32 v{D+2*i}, 16, v{T}")
        e(f"  v_and_b32 v{D+2*i+1}, 0xffff0000, v{T}")
        e(f"  v_pk_add_f32 {vr(D+2*i,2)}, {vr(D+2*i,2)}, {vr(H+2*i,2)}")
        e(f"  v_cvt_pk_bf16_f32 v{O+i}, v{D+2*i}, v{D+2*i+1}")
    for j in range(2):
        e(f"  buffer_store_dwordx4 {vr(O+4*j,4)}, v3, s[44:47], 0 offen offset:{512*j}")
    e("  s_nop 3")
    reduce32(12, 13)
    e("  v_cvt_pk_bf16_f32 v12, v12, v12")
    e("  v_lshlrev_b32 v12, 16, v12")
    e("  v_ashrrev_i32 v13, 31, v12")
    e("  v_or_b32 v13, 0x80000000, v13")
    e("  v_xor_b32 v12, v12, v13")
    e("  v_and_b32 v12, 0xffff0000, v12")
    e("  v_sub_u32 v13, 0xffff, v1")
    e("  v_or_b32 v12, v12, v13")

def k2_epilogue_fused(ACC):
    TB = 49152
    e("  s_nop 7")
    P = 64
    for g in range(8):
        e(f"  v_cvt_pk_bf16_f32 v{P+2*g}, v{ACC+4*g}, v{ACC+4*g+1}")
        e(f"  v_cvt_pk_bf16_f32 v{P+2*g+1}, v{ACC+4*g+2}, v{ACC+4*g+3}")
    e("  s_mul_i32 s30, s15, 4608")
    e(f"  s_add_u32 s30, s30, {TB}")
    e("  v_mul_u32_u24 v18, 144, v16")
    e("  v_lshl_add_u32 v18, v17, 3, v18")
    e("  v_add_u32 v18, s30, v18")
    for g in range(8):
        e(f"  ds_write_b64 v18, {vr(P+2*g,2)} offset:{16*g}")
    e("  v_lshrrev_b32 v19, 3, v0")
    e("  v_and_b32 v22, 7, v0")
    e("  v_mul_u32_u24 v20, 144, v19")
    e("  v_lshl_add_u32 v20, v22, 4, v20")
    e("  v_add_u32 v20, s30, v20")
    e("  s_waitcnt lgkmcnt(0)")
    for q in range(4):
        e(f"  ds_read_b128 {vr(80+4*q,4)}, v20 offset:{8*144*q}")
    e("  s_lshl_b32 s24, s14, 21")
    e(f"  s_add_u32 s24, s24, {WS_Y}")
    e("  s_lshl_b32 s30, s13, 7")
    e("  s_add_u32 s24, s24, s30")
    e("  s_lshl_b32 s30, s12, 7")
    e("  s_lshl_b32 s31, s15, 5")
    e("  s_add_u32 s30, s30, s31")
    e("  v_add_u32 v21, s30, v19")
    e("  v_lshlrev_b32 v21, 10, v21")
    e("  v_lshl_add_u32 v21, v22, 4, v21")
    for q in range(4):
        e(f"  s_waitcnt lgkmcnt({3-q})")
        e(f"  buffer_store_dwordx4 {vr(80+4*q,4)}, v21, s[20:23], s24 offen sc1")
        if q < 3: e("  v_add_u32 v21, 0x2000, v21")
    e("  s_waitcnt vmcnt(0)")
    e("  s_barrier")
    e(f"  s_load_dwordx2 s[4:5], s[0:1], {KA_X}")
    e(f"  s_load_dwordx8 s[56:63], s[0:1], {KA_WR}")
    e(f"  s_load_dwordx2 s[64:65], s[0:1], {KA_OUT}")
    srd(24, 6, 7, 12 << 20)
    e("  s_lshl_b32 s48, s14, 3")
    e("  s_add_u32 s48, s48, s13")
    e("  s_cmp_lg_u32 s15, 0")
    e("  s_cbranch_scc1 k2_noflag")
    e("  s_lshl_b32 s49, s12, 6")
    e("  s_lshl_b32 s50, s48, 2")
    e("  s_add_u32 s49, s49, s50")
    e(f"  s_add_u32 s49, s49, {WS_FLAG}")
    e("  v_mov_b32 v4, s68" if FUSE else "  v_mov_b32 v4, 1")
    e("  v_mov_b32 v5, 0")
    e("  s_mov_b64 s[50:51], exec")
    e("  s_mov_b64 exec, 1")
    e("  buffer_store_dword v4, v5, s[24:27], s49 offen sc1")
    e("  s_mov_b64 exec, s[50:51]")
    lab("k2_noflag")
    e("  s_waitcnt lgkmcnt(0)")
    srd(20, 4, 5, 2 << 20)
    srd(28, 56, 57, 1024)
    srd(44, 64, 65, 2 << 20)
    e("  v_lshrrev_b32 v1, 5, v0")
    e("  v_and_b32 v2, 31, v0")
    e("  s_lshl_b32 s52, s12, 7")
    e("  s_lshl_b32 s53, s48, 3")
    e("  s_add_u32 s52, s52, s53")
    e("  s_lshl_b32 s53, s15, 1")
    e("  s_add_u32 s52, s52, s53")
    e("  v_add_u32 v1, s52, v1")
    rowmac32_pre()
    e("  v_and_b32 v7, 15, v0")
    e("  v_lshlrev_b32 v7, 2, v7")
    e("  s_lshl_b32 s49, s12, 6")
    e(f"  s_add_u32 s49, s49, {WS_FLAG}")
    e("  s_mov_b32 s53, 0")
    lab("k2_poll")
    e("  buffer_load_dword v4, v7, s[24:27], s49 offen sc1")
    e("  s_waitcnt vmcnt(0)")
    e("  v_cmp_ne_u32 s[54:55], s68, v4" if FUSE else "  v_cmp_eq_u32 s[54:55], 0, v4")
    e("  s_nop 3")
    e("  s_cmp_eq_u64 s[54:55], 0")
    e("  s_cbranch_scc1 k2_poll_ok")
    e("  s_add_u32 s53, s53, 1")
    e(f"  s_cmp_gt_u32 s53, {1 << 22}")
    e("  s_cbranch_scc1 k2_poll_ok")
    e("  s_branch k2_poll")
    lab("k2_poll_ok")
    stamp(3)
    rowmac32()
    stamp(4)
    e("  v_lshlrev_b32 v13, 2, v1")
    e("  v_lshlrev_b32 v14, 3, v1")
    e("  v_mov_b32 v7, v10")
    e("  v_cmp_eq_u32 vcc, 0, v2")
    e("  s_and_saveexec_b64 s[50:51], vcc")
    e(f"  s_mov_b32 s52, {WS_KEY}")
    e("  buffer_store_dword v12, v13, s[24:27], s52 offen")
    e(f"  s_mov_b32 s52, {WS_STAT}")
    e("  buffer_store_dwordx2 v[6:7], v14, s[24:27], s52 offen")
    e("  s_mov_b64 exec, s[50:51]")
    if OPT('K2_NOGU'): return
    e("  s_cmp_ge_u32 s15, 2")
    e("  s_cbranch_scc1 k2_done")
    e("  s_cmp_eq_u32 s15, 0")
    e("  s_cselect_b32 s40, s58, s60")
    e("  s_cselect_b32 s41, s59, s61")
    e(f"  s_mov_b32 s42, {512*1792*2}")
    e("  s_mov_b32 s43, 0x00020000")
    e("  s_and_b32 s52, s2, 7")
    e("  s_lshr_b32 s53, s2, 3")
    e("  v_min_u32 v1, 55, v0")
    e("  v_cmp_lt_u32 vcc, 27, v1")
    e("  s_nop 1")
    e("  v_cndmask_b32 v2, 0, 1, vcc")
    e("  v_mul_u32_u24 v3, 28, v2")
    e("  v_sub_u32 v3, v1, v3")
    e("  v_mul_u32_u24 v2, 3584, v2")
    e("  v_lshl_add_u32 v2, v3, 4, v2")
    e("  s_mul_i32 s54, s52, 448")
    e(f"  s_mul_i32 s55, s53, {16*3584}")
    e("  s_add_u32 s54, s54, s55")
    for q in range(8):
        e(f"  buffer_load_dwordx4 {vr(80+4*q,4)}, v2, s[40:43], s54 offen")
        e(f"  s_add_u32 s54, s54, {2*3584}")

def gen_k2():
    NS = K2_NS
    name = "f_kernel" if FUSE else "k2_kernel"
    YBASE = NS * 16384
    if not FUSE:
        kernel_begin(name)
        e("  s_cmp_ge_u32 s2, 256")
        e("  s_cbranch_scc1 k2_done")
        e(f"  s_load_dwordx4 s[8:11], s[0:1], {KA_WSRE}")
        e(f"  s_load_dwordx2 s[6:7], s[0:1], {KA_WS}")
        e(f"  s_load_dwordx2 s[34:35], s[0:1], {KA_WDN}")
    else:
        e("  s_mov_b32 s71, s15")
    e("  s_and_b32 s12, s2, 7")
    e("  s_lshr_b32 s13, s2, 3")
    e("  s_lshr_b32 s14, s12, 2")
    e("  s_and_b32 s12, s12, 3")
    e("  s_lshl_b32 s12, s12, 2")
    e("  s_lshr_b32 s15, s13, 3")
    e("  s_add_u32 s12, s12, s15")
    e("  s_and_b32 s13, s13, 7")
    if FUSE:
        e("  s_mov_b32 s15, s71")
    else:
        e("  v_lshrrev_b32 v1, 6, v0")
        e("  v_and_b32 v0, 63, v0")
        e("  v_readfirstlane_b32 s15, v1")
    e("  v_lshrrev_b32 v2, 3, v0")
    e("  v_and_b32 v3, 7, v0")
    e("  s_waitcnt lgkmcnt(0)")
    e("  s_cmp_eq_u32 s14, 0")
    e("  s_cselect_b32 s16, s8, s10")
    e("  s_cselect_b32 s17, s9, s11")
    e(f"  s_mov_b32 s18, {2048*2048*2}")
    e("  s_mov_b32 s19, 0x00020000")
    srd(20, 6, 7, 9 << 20)
    e("  s_cmp_lt_u32 s15, 4")
    e("  s_cbranch_scc1 k2_consumer")
    if not FUSE:
        e("  s_cmp_lt_u32 s15, 8")
        e("  s_cbranch_scc1 k2_loader")
    if not FUSE: helper_wave()
    lab("k2_loader")
    e("  s_sub_u32 s15, s15, 4")
    for ii in range(4):
        e(f"  s_lshl_b32 s24, s15, 5")
        e(f"  s_add_u32 s24, s24, {8*ii}")
        e(f"  v_add_u32 v10, s24, v2")
        e(f"  v_lshrrev_b32 v11, 1, v10")
        e(f"  v_and_b32 v11, 7, v11")
        e(f"  v_xor_b32 v11, v11, v3")
        e(f"  s_lshl_b32 s24, s12, 7")
        e(f"  v_add_u32 v10, s24, v10")
        e(f"  v_lshlrev_b32 v10, 12, v10")
        e(f"  v_lshl_add_u32 v{4+ii}, v11, 4, v10")
    e("  s_lshl_b32 s24, s15, 11")
    e("  v_lshlrev_b32 v8, 4, v0")
    e("  v_add_u32 v8, s24, v8")
    e("  v_add_u32 v9, 1024, v8")
    e("  s_mov_b32 s25, 0")
    e("  s_lshl_b32 s26, s14, 3")
    e("  s_add_u32 s26, s26, s13")
    e("  s_lshl_b32 s26, s26, 18")
    e("  s_lshl_b32 s27, s15, 12")
    e("  s_lshl_b32 s28, s15, 11")
    e(f"  s_add_u32 s28, s28, {YBASE}")
    YSC = " sc1" if FUSE else ""
    def dmaY(slot, so="s26"):
        for i in range(2):
            e(f"  s_add_u32 m0, s28, {slot*8192 + i*1024}")
            e("  s_nop 0")
            e(f"  buffer_load_dwordx4 v{8+i}, s[20:23], {so} offen{YSC} lds")
    def dmaW(slot):
        for i in range(4):
            e(f"  s_add_u32 m0, s27, {slot*16384 + i*1024}")
            e("  s_nop 0")
            e(f"  buffer_load_dwordx4 v{4+i}, s[16:19], s25 offen lds")
    def adv():
        e("  s_add_u32 s25, s25, 128")
        e("  s_and_b32 s25, s25, 4095")
        e("  s_lshl_b32 s29, s25, 6")
        e("  s_add_u32 s26, s33, s29")
    def dma(slot):
        dmaY(slot); dmaW(slot); adv()
    e("  s_mov_b32 s33, s26")
    e(f"  s_mul_i32 s25, s13, {128*OPT('K2_ROT', 4)}")
    e("  s_and_b32 s25, s25, 4095")
    e("  s_lshl_b32 s29, s25, 6")
    e("  s_add_u32 s26, s33, s29")
    if not FUSE:
        for st in range(NS):
            dma(st)
        e(f"  s_waitcnt vmcnt({6*(NS-1)})")
        e("  s_barrier")
        for ks in range(31):
            ahead = min(ks + NS - 1, 31) - (ks + 1)
            e(f"  s_waitcnt vmcnt({6*ahead})")
            e("  s_barrier")
            if ks + NS < 32:
                dma(ks % NS)
    else:
        e("  s_mov_b32 s30, s25")
        e("  s_waitcnt vmcnt(0)")
        e("  s_barrier")
        for st in range(NS):
            dmaW(st); adv()
        e("  s_barrier")
        for st in range(NS):
            e("  s_lshl_b32 s29, s30, 6")
            e("  s_add_u32 s31, s33, s29")
            dmaY(st, "s31")
            e("  s_add_u32 s30, s30, 128")
            e("  s_and_b32 s30, s30, 4095")
        e(f"  s_waitcnt vmcnt({2*(NS-1)})")
        e("  s_barrier")
        for ks in range(31):
            if ks + 1 <= NS - 1:
                allowed = 2 * (NS - 1 - (ks + 1)) + 6 * ks
            else:
                allowed = 6 * (min(ks + NS - 1, 31) - (ks + 1))
            e(f"  s_waitcnt vmcnt({allowed})")
            e("  s_barrier")
            if ks + NS < 32:
                dma(ks % NS)
    e("  s_branch k2_done")
    lab("k2_consumer")
    if FUSE:
        e("  s_cmp_lg_u32 s15, 0")
        e("  s_cbranch_scc1 f_noep")
        get_epoch("co")
        e("  v_mov_b32 v4, s68")
        e(f"  v_mov_b32 v5, {K2_NS*24576}")
        e("  ds_write_b32 v5, v4")
        e("  s_waitcnt lgkmcnt(0)")
        lab("f_noep")
        e("  s_waitcnt vmcnt(0)")
        e("  s_barrier")
        e("  s_cmp_lg_u32 s15, 0")
        e("  s_cbranch_scc1 f_noflagA")
        e("  v_mov_b32 v4, s68")
        e("  v_mov_b32 v5, 0")
        e("  s_mov_b64 s[36:37], exec")
        e("  s_mov_b64 exec, 1")
        e("  buffer_store_dword v4, v5, s[20:23], s70 offen sc1")
        e("  s_mov_b64 exec, s[36:37]")
        lab("f_noflagA")
        e(f"  v_mov_b32 v158, {K2_NS*24576}")
        e("  ds_read_b32 v159, v158")
        e("  s_waitcnt lgkmcnt(0)")
        e("  v_readfirstlane_b32 s68, v159")
        e("  s_cmp_lg_u32 s15, 1")
        e("  s_cbranch_scc1 f_pollA_ok")
        e("  s_lshl_b32 s31, s14, 2")
        e("  s_lshr_b32 s32, s13, 1")
        e("  s_add_u32 s31, s31, s32")
        e("  s_lshl_b32 s31, s31, 7")
        e(f"  s_add_u32 s31, s31, {WS_FA}")
        e("  v_and_b32 v10, 31, v0")
        e("  v_lshlrev_b32 v10, 2, v10")
        e("  s_mov_b32 s69, 0")
        lab("f_pollA")
        e("  buffer_load_dword v11, v10, s[20:23], s31 offen sc1")
        e("  s_waitcnt vmcnt(0)")
        e("  v_cmp_ne_u32 s[36:37], s68, v11")
        e("  s_nop 3")
        e("  s_cmp_eq_u64 s[36:37], 0")
        e("  s_cbranch_scc1 f_pollA_ok")
        e("  s_add_u32 s69, s69, 1")
        e(f"  s_cmp_gt_u32 s69, {1 << 22}")
        e("  s_cbranch_scc1 f_pollA_ok")
        e("  s_branch f_pollA")
        lab("f_pollA_ok")
        stamp(1)
        e("  s_barrier")
    e("  v_and_b32 v16, 31, v0")
    e("  v_lshrrev_b32 v17, 5, v0")
    e("  s_lshl_b32 s24, s15, 5")
    e("  v_add_u32 v18, s24, v16")
    e("  v_lshrrev_b32 v19, 1, v18")
    e("  v_and_b32 v19, 7, v19")
    e("  v_xor_b32 v19, v19, v17")
    e("  v_lshlrev_b32 v18, 7, v18")
    e("  v_lshl_add_u32 v20, v19, 4, v18")
    for kk in range(1, 4):
        e(f"  v_xor_b32 v{20+kk}, {32*kk}, v20")
    for kk in range(4):
        e(f"  v_add_u32 v{28+kk}, 0x10000, v{20+kk}")
    e("  v_lshrrev_b32 v19, 1, v16")
    e("  v_and_b32 v19, 7, v19")
    e("  v_xor_b32 v19, v19, v17")
    e("  v_lshlrev_b32 v18, 7, v16")
    e("  v_lshl_add_u32 v24, v19, 4, v18")
    e(f"  v_add_u32 v24, {YBASE}, v24")
    for kk in range(1, 4):
        e(f"  v_xor_b32 v{24+kk}, {32*kk}, v24")
    ACC = 32
    for i in range(32):
        e(f"  v_mov_b32 v{ACC+i}, 0")
    def FW(st): return 64 + 48 * (st % 2)
    def FY(st): return 80 + 48 * (st % 2)
    def rd(st, kk):
        slot = st % NS
        wb = 20 if slot < 4 else 28
        e(f"  ds_read_b128 {vr(FW(st)+4*kk,4)}, v{wb+kk} offset:{16384*(slot%4)}")
        e(f"  ds_read_b128 {vr(FY(st)+8*kk,4)}, v{24+kk} offset:{8192*slot}")
        e(f"  ds_read_b128 {vr(FY(st)+8*kk+4,4)}, v{24+kk} offset:{8192*slot+4096}")
    e("  s_barrier")
    stamp(2)
    for kk in range(4):
        rd(0, kk)
    def mf(st, kk, half):
        e(f"  v_mfma_f32_32x32x16_bf16 {vr(ACC+16*half,16)}, {vr(FY(st)+8*kk+4*half,4)}, {vr(FW(st)+4*kk,4)}, {vr(ACC+16*half,16)}")
    for ks in range(32):
        more = ks + 1 < 32
        e("  s_waitcnt lgkmcnt(0)")
        if more and not OPT('K2_NOBAR'):
            e("  s_barrier")
        if OPT('K2_NOBAR') == 2: continue
        r = (lambda kk: rd(ks + 1, kk)) if more else (lambda kk: None)
        mf(ks, 0, 0); r(0); mf(ks, 0, 1); r(1)
        mf(ks, 1, 0); r(2); mf(ks, 1, 1); r(3)
        mf(ks, 2, 0); mf(ks, 2, 1)
        mf(ks, 3, 0); mf(ks, 3, 1)
    stamp(6)
    if not OPT('K2T1', 1):
        k2_epilogue_plain(ACC)
    else:
        k2_epilogue_fused(ACC)
    lab("k2_done")
    kernel_end()
    e("  s_endpgm")
    kernel_desc(name, 160)

def gen_t1():
    name = "t1_kernel"
    kernel_begin(name)
    e("  s_cmp_ge_u32 s2, 256")
    e("  s_cbranch_scc1 t1_done")
    e(f"  s_load_dwordx2 s[4:5], s[0:1], {KA_X}")
    e(f"  s_load_dwordx2 s[6:7], s[0:1], {KA_WS}")
    e(f"  s_load_dwordx2 s[8:9], s[0:1], {KA_WR}")
    e(f"  s_load_dwordx2 s[10:11], s[0:1], {KA_OUT}")
    if OPT('T1_PF', 1):
        e(f"  s_load_dwordx4 s[32:35], s[0:1], {KA_WG}")
        e("  v_lshrrev_b32 v1, 6, v0")
        e("  s_nop 0")
        e("  v_readfirstlane_b32 s3, v1")
        e("  s_cmp_lg_u32 s3, 2")
        e("  s_cbranch_scc1 t1_main")
        e("  s_waitcnt lgkmcnt(0)")
        srd(40, 32, 33, 512*1792*2)
        srd(44, 34, 35, 512*1792*2)
        e("  v_and_b32 v0, 63, v0")
        e("  s_and_b32 s52, s2, 7")
        e("  s_lshr_b32 s53, s2, 3")
        e("  v_min_u32 v1, 55, v0")
        e("  v_cmp_lt_u32 vcc, 27, v1")
        e("  v_cndmask_b32 v2, 0, 1, vcc")
        e("  v_mul_u32_u24 v3, 28, v2")
        e("  v_sub_u32 v3, v1, v3")
        e("  v_mul_u32_u24 v2, 3584, v2")
        e("  v_lshl_add_u32 v2, v3, 4, v2")
        e("  s_mul_i32 s54, s52, 448")
        e(f"  s_mul_i32 s55, s53, {16*3584}")
        e("  s_add_u32 s54, s54, s55")
        for q in range(8):
            e(f"  buffer_load_dwordx4 {vr(8+8*q,4)}, v2, s[40:43], s54 offen")
            e(f"  buffer_load_dwordx4 {vr(12+8*q,4)}, v2, s[44:47], s54 offen")
            e(f"  s_add_u32 s54, s54, {2*3584}")
        e("  s_branch t1_done")
        lab("t1_main")
    e("  v_lshrrev_b32 v1, 4, v0")
    e("  v_and_b32 v2, 15, v0")
    e("  s_lshl_b32 s3, s2, 3")
    e("  v_add_u32 v1, s3, v1")
    e("  v_lshlrev_b32 v3, 10, v1")
    e("  v_lshl_add_u32 v3, v2, 4, v3")
    e("  v_lshlrev_b32 v4, 4, v2")
    e("  s_waitcnt lgkmcnt(0)")
    srd(12, 4, 5, 2 << 20)
    srd(16, 6, 7, 9 << 20)
    srd(20, 8, 9, 1024)
    srd(24, 10, 11, 2 << 20)
    e(f"  s_mov_b32 s28, {WS_Y}")
    e(f"  s_mov_b32 s29, {WS_Y + (2<<20)}")
    YR, YI, XX, WR = 16, 32, 48, 64
    for j in range(4):
        e(f"  buffer_load_dwordx4 {vr(YR+4*j,4)}, v3, s[16:19], s28 offen offset:{256*j}")
        e(f"  buffer_load_dwordx4 {vr(YI+4*j,4)}, v3, s[16:19], s29 offen offset:{256*j}")
        e(f"  buffer_load_dwordx4 {vr(XX+4*j,4)}, v3, s[12:15], 0 offen offset:{256*j}")
    for j in range(4):
        e(f"  buffer_load_dwordx4 {vr(WR+4*j,4)}, v4, s[20:23], 0 offen offset:{256*j}")
    H = 80
    T = 112
    e("  v_mov_b32 v14, 0")
    e("  v_mov_b32 v15, 0")
    for j in range(4):
        e(f"  s_waitcnt vmcnt({4 + 3*(3-j)})")
        for q in range(4):
            i = 4*j + q
            e(f"  v_lshlrev_b32 v{T}, 16, v{YR+i}")
            e(f"  v_and_b32 v{T+1}, 0xffff0000, v{YR+i}")
            e(f"  v_lshlrev_b32 v{T+2}, 16, v{YI+i}")
            e(f"  v_and_b32 v{T+3}, 0xffff0000, v{YI+i}")
            e(f"  v_pk_add_f32 {vr(T,2)}, {vr(T,2)}, {vr(T+2,2)} neg_lo:[0,1] neg_hi:[0,1]")
            e(f"  v_cvt_pk_bf16_f32 v{T}, v{T}, v{T+1}")
            e(f"  v_and_b32 v{T+1}, 0xffff0000, v{T}")
            e(f"  v_lshlrev_b32 v{T}, 16, v{T}")
            e(f"  v_lshlrev_b32 v{T+2}, 16, v{XX+i}")
            e(f"  v_and_b32 v{T+3}, 0xffff0000, v{XX+i}")
            e(f"  v_pk_add_f32 {vr(T,2)}, {vr(T,2)}, {vr(T+2,2)}")
            e(f"  v_cvt_pk_bf16_f32 v{T}, v{T}, v{T+1}")
            e(f"  v_lshlrev_b32 v{H+2*i}, 16, v{T}")
            e(f"  v_and_b32 v{H+2*i+1}, 0xffff0000, v{T}")
            e(f"  v_pk_add_f32 v[14:15], v[14:15], {vr(H+2*i,2)}")
    e("  v_add_f32 v5, v14, v15")
    reduce16(5)
    e("  v_mul_f32 v5, 0x3b000000, v5")
    e("  v_cvt_pk_bf16_f32 v6, v5, v5")
    e("  v_lshlrev_b32 v6, 16, v6")
    e("  v_sub_f32 v8, 0, v6")
    e("  v_mov_b32 v9, v8")
    e("  v_mov_b32 v10, 0")
    e("  v_mov_b32 v11, 0")
    D = 116
    for i in range(16):
        e(f"  v_pk_add_f32 {vr(D+2*i,2)}, {vr(H+2*i,2)}, v[8:9]")
        e(f"  v_pk_fma_f32 v[10:11], {vr(D+2*i,2)}, {vr(D+2*i,2)}, v[10:11]")
    e("  v_add_f32 v10, v10, v11")
    reduce16(10)
    e("  v_sub_f32 v11, v5, v6")
    e("  v_mul_f32 v11, v11, v11")
    e("  v_mul_f32 v10, 0x3b000000, v10")
    e("  v_sub_f32 v10, v10, v11")
    e("  v_max_f32 v10, 0, v10")
    e("  v_cvt_pk_bf16_f32 v10, v10, v10")
    e("  v_lshlrev_b32 v10, 16, v10")
    e("  v_add_f32 v10, 0x3727c5ac, v10")
    e("  v_cvt_pk_bf16_f32 v10, v10, v10")
    e("  v_lshlrev_b32 v10, 16, v10")
    e("  v_sqrt_f32 v10, v10")
    e("  s_nop 0")
    e("  v_cvt_pk_bf16_f32 v10, v10, v10")
    e("  v_lshlrev_b32 v10, 16, v10")
    e("  v_rcp_f32 v10, v10")
    e("  s_nop 0")
    e("  v_mov_b32 v11, v10")
    e("  v_mov_b32 v12, 0")
    e("  s_waitcnt vmcnt(0)")
    O = 16
    for i in range(16):
        e(f"  v_cvt_pk_bf16_f32 v{T}, v{D+2*i}, v{D+2*i+1}")
        e(f"  v_lshlrev_b32 v{D+2*i}, 16, v{T}")
        e(f"  v_and_b32 v{D+2*i+1}, 0xffff0000, v{T}")
        e(f"  v_pk_mul_f32 {vr(D+2*i,2)}, {vr(D+2*i,2)}, v[10:11]")
        e(f"  v_cvt_pk_bf16_f32 v{T}, v{D+2*i}, v{D+2*i+1}")
        e(f"  v_dot2_f32_bf16 v12, v{T}, v{WR+i}, v12")
        e(f"  v_lshlrev_b32 v{D+2*i}, 16, v{T}")
        e(f"  v_and_b32 v{D+2*i+1}, 0xffff0000, v{T}")
        e(f"  v_pk_add_f32 {vr(D+2*i,2)}, {vr(D+2*i,2)}, {vr(H+2*i,2)}")
        e(f"  v_cvt_pk_bf16_f32 v{O+i}, v{D+2*i}, v{D+2*i+1}")
    for j in range(4):
        e(f"  buffer_store_dwordx4 {vr(O+4*j,4)}, v3, s[24:27], 0 offen offset:{256*j}")
    e("  s_nop 3")
    reduce16(12)
    e("  v_cvt_pk_bf16_f32 v12, v12, v12")
    e("  v_lshlrev_b32 v12, 16, v12")
    e("  v_ashrrev_i32 v13, 31, v12")
    e("  v_or_b32 v13, 0x80000000, v13")
    e("  v_xor_b32 v12, v12, v13")
    e("  v_and_b32 v12, 0xffff0000, v12")
    e("  v_sub_u32 v13, 0xffff, v1")
    e("  v_or_b32 v12, v12, v13")
    e("  v_cmp_eq_u32 vcc, 0, v2")
    e("  s_and_saveexec_b64 s[30:31], vcc")
    e("  v_lshlrev_b32 v13, 2, v1")
    e(f"  s_mov_b32 s28, {WS_KEY}")
    e("  buffer_store_dword v12, v13, s[16:19], s28 offen")
    e("  v_lshlrev_b32 v13, 3, v1")
    e("  v_mov_b32 v7, v10")
    e(f"  s_mov_b32 s28, {WS_STAT}")
    e("  buffer_store_dwordx2 v[6:7], v13, s[16:19], s28 offen")
    lab("t1_done")
    kernel_end()
    e("  s_endpgm")
    kernel_desc(name, 148)

def recompute(YR, YI, XX, nd, NEGM, RINV, HOUT, XNOUT, T):
    for i in range(nd):
        e(f"  v_lshlrev_b32 v{T}, 16, v{YR+i}")
        e(f"  v_and_b32 v{T+1}, 0xffff0000, v{YR+i}")
        e(f"  v_lshlrev_b32 v{T+2}, 16, v{YI+i}")
        e(f"  v_and_b32 v{T+3}, 0xffff0000, v{YI+i}")
        e(f"  v_pk_add_f32 {vr(T,2)}, {vr(T,2)}, {vr(T+2,2)} neg_lo:[0,1] neg_hi:[0,1]")
        e(f"  v_cvt_pk_bf16_f32 v{T}, v{T}, v{T+1}")
        e(f"  v_and_b32 v{T+1}, 0xffff0000, v{T}")
        e(f"  v_lshlrev_b32 v{T}, 16, v{T}")
        e(f"  v_lshlrev_b32 v{T+2}, 16, v{XX+i}")
        e(f"  v_and_b32 v{T+3}, 0xffff0000, v{XX+i}")
        e(f"  v_pk_add_f32 {vr(T,2)}, {vr(T,2)}, {vr(T+2,2)}")
        e(f"  v_cvt_pk_bf16_f32 v{T}, v{T}, v{T+1}")
        e(f"  v_lshlrev_b32 v{HOUT+2*i}, 16, v{T}")
        e(f"  v_and_b32 v{HOUT+2*i+1}, 0xffff0000, v{T}")
        e(f"  v_pk_add_f32 {vr(T,2)}, {vr(HOUT+2*i,2)}, {vr(NEGM,2)}")
        e(f"  v_cvt_pk_bf16_f32 v{T}, v{T}, v{T+1}")
        e(f"  v_and_b32 v{T+1}, 0xffff0000, v{T}")
        e(f"  v_lshlrev_b32 v{T}, 16, v{T}")
        e(f"  v_pk_mul_f32 {vr(T,2)}, {vr(T,2)}, {vr(RINV,2)}")
        e(f"  v_cvt_pk_bf16_f32 v{XNOUT+i}, v{T}, v{T+1}")

XS_STRIDE = 1040
def gen_t2():
    name = "t2_kernel"
    kernel_begin(name)
    LDS_G, LDS_U, LDS_XS, LDS_C = 0, 8192, 16384, 16384 + 8*XS_STRIDE
    e("  s_cmp_ge_u32 s2, 224")
    e("  s_cbranch_scc1 t2_done")
    e(f"  s_load_dwordx2 s[4:5], s[0:1], {KA_X}")
    e(f"  s_load_dwordx2 s[6:7], s[0:1], {KA_WS}")
    e(f"  s_load_dwordx4 s[8:11], s[0:1], {KA_WG}")
    e("  s_and_b32 s3, s2, 7")
    e("  s_mul_i32 s3, s3, 28")
    e("  s_lshr_b32 s12, s2, 3")
    e("  s_add_u32 s3, s3, s12")
    e("  v_mov_b32 v40, v0")
    e("  v_lshrrev_b32 v1, 6, v0")
    e("  v_and_b32 v0, 63, v0")
    e("  v_readfirstlane_b32 s13, v1")
    e("  s_waitcnt lgkmcnt(0)")
    srd(16, 4, 5, 2 << 20)
    srd(20, 6, 7, 9 << 20)
    srd(24, 8, 9, 512*1792*2)
    srd(28, 10, 11, 512*1792*2)
    e("  v_lshlrev_b32 v2, 5, v40")
    e(f"  s_mov_b32 s14, {WS_KEY}")
    e("  buffer_load_dwordx4 v[8:11], v2, s[20:23], s14 offen")
    e("  buffer_load_dwordx4 v[12:15], v2, s[20:23], s14 offen offset:16")
    e("  s_lshl_b32 s15, s3, 4")
    e("  s_movk_i32 s32, 3584")
    for ii in range(2):
        e(f"  s_lshl_b32 s33, s13, 7")
        e(f"  s_add_u32 s33, s33, {64*ii}")
        e(f"  v_add_u32 v3, s33, v0")
        e(f"  v_mul_lo_u32 v3, v3, s32")
        e(f"  s_lshl_b32 s34, s13, 11")
        e(f"  s_add_u32 m0, s34, {LDS_G + 1024*ii}")
        e("  s_nop 0")
        e(f"  buffer_load_dwordx4 v3, s[24:27], s15 offen lds")
        e(f"  s_add_u32 m0, s34, {LDS_U + 1024*ii}")
        e("  s_nop 0")
        e(f"  buffer_load_dwordx4 v3, s[28:31], s15 offen lds")
    stamp(1)
    e("  s_waitcnt vmcnt(4)")
    stamp(2)
    e("  v_mov_b32 v20, 0")
    for rnd in range(8):
        e("  v_max3_u32 v16, v8, v9, v10")
        e("  v_max3_u32 v17, v11, v12, v13")
        e("  v_max3_u32 v16, v16, v14, v15")
        e("  v_max_u32 v16, v16, v17")
        e("  s_nop 1")
        e("  v_max_u32_dpp v16, v16, v16 quad_perm:[1,0,3,2] row_mask:0xf bank_mask:0xf")
        e("  s_nop 1")
        e("  v_max_u32_dpp v16, v16, v16 quad_perm:[2,3,0,1] row_mask:0xf bank_mask:0xf")
        e("  s_nop 1")
        e("  v_max_u32_dpp v16, v16, v16 row_half_mirror row_mask:0xf bank_mask:0xf")
        e("  s_nop 1")
        e("  v_max_u32_dpp v16, v16, v16 row_mirror row_mask:0xf bank_mask:0xf")
        e("  s_nop 1")
        e("  v_readlane_b32 s36, v16, 0")
        e("  v_readlane_b32 s37, v16, 16")
        e("  v_readlane_b32 s38, v16, 32")
        e("  v_readlane_b32 s39, v16, 48")
        e("  s_max_u32 s36, s36, s37")
        e("  s_max_u32 s38, s38, s39")
        e("  s_max_u32 s36, s36, s38")
        e(f"  v_writelane_b32 v20, s36, {rnd}")
        if rnd < 7:
            for k in range(8):
                e(f"  v_cmp_ne_u32 vcc, s36, v{8+k}")
                e("  s_nop 1")
                e(f"  v_cndmask_b32 v{8+k}, 0, v{8+k}, vcc")
    e("  s_lshl_b32 s33, s13, 5")
    e(f"  s_add_u32 s33, s33, {LDS_C}")
    e("  v_lshlrev_b32 v3, 2, v0")
    e("  v_add_u32 v3, s33, v3")
    e("  v_cmp_gt_u32 vcc, 8, v0")
    e("  s_and_saveexec_b64 s[40:41], vcc")
    e("  ds_write_b32 v3, v20")
    e("  s_mov_b64 exec, s[40:41]")
    e("  s_waitcnt lgkmcnt(0)")
    e("  s_barrier")
    e("  v_and_b32 v3, 31, v0")
    e("  v_lshlrev_b32 v3, 2, v3")
    e(f"  ds_read_b32 v21, v3 offset:{LDS_C}")
    e("  v_mov_b32 v22, 0")
    e("  s_waitcnt lgkmcnt(0)")
    for i in range(32):
        e(f"  v_readlane_b32 s36, v21, {i}")
        e("  s_nop 1")
        e("  v_cmp_gt_u32 vcc, s36, v21")
        e("  s_nop 1")
        e("  v_addc_co_u32 v22, vcc, 0, v22, vcc")
    e("  v_cmp_gt_u32 vcc, 8, v22")
    e("  v_cmp_gt_u32 s[42:43], 32, v0")
    e("  s_and_b64 vcc, vcc, s[42:43]")
    e("  v_lshlrev_b32 v3, 2, v22")
    e("  s_and_saveexec_b64 s[40:41], vcc")
    e(f"  ds_write_b32 v3, v21 offset:{LDS_C+128}")
    e("  s_mov_b64 exec, s[40:41]")
    e("  s_waitcnt lgkmcnt(0)")
    e("  s_barrier")
    stamp(3)
    e("  v_lshrrev_b32 v4, 5, v40")
    e("  v_and_b32 v5, 31, v40")
    e("  v_lshlrev_b32 v3, 2, v4")
    e(f"  ds_read_b32 v6, v3 offset:{LDS_C+128}")
    e("  s_waitcnt lgkmcnt(0)")
    e("  s_cmp_lg_u32 s3, 0")
    e("  s_cbranch_scc1 t2_nopub")
    e("  v_cmp_eq_u32 vcc, 0, v5")
    e("  s_and_saveexec_b64 s[40:41], vcc")
    e(f"  s_mov_b32 s14, {WS_IDX}")
    e("  buffer_store_dword v6, v3, s[20:23], s14 offen")
    e("  s_mov_b64 exec, s[40:41]")
    lab("t2_nopub")
    e("  v_and_b32 v6, 0xffff, v6")
    e("  v_sub_u32 v6, 0xffff, v6")
    e("  v_lshlrev_b32 v7, 10, v6")
    e("  v_lshl_add_u32 v7, v5, 4, v7")
    e(f"  s_mov_b32 s14, {WS_Y}")
    e(f"  s_mov_b32 s15, {WS_Y + (2<<20)}")
    YR, YI, XX = 24, 32, 44
    for j in range(2):
        e(f"  buffer_load_dwordx4 {vr(YR+4*j,4)}, v7, s[20:23], s14 offen offset:{512*j}")
        e(f"  buffer_load_dwordx4 {vr(YI+4*j,4)}, v7, s[20:23], s15 offen offset:{512*j}")
        e(f"  buffer_load_dwordx4 {vr(XX+4*j,4)}, v7, s[16:19], 0 offen offset:{512*j}")
    e("  v_lshlrev_b32 v3, 3, v6")
    e(f"  s_mov_b32 s14, {WS_STAT}")
    e("  buffer_load_dwordx2 v[52:53], v3, s[20:23], s14 offen")
    e("  s_waitcnt vmcnt(0)")
    stamp(4)
    e("  v_sub_f32 v54, 0, v52")
    e("  v_mov_b32 v55, v54")
    e("  v_mov_b32 v52, v53")
    recompute(YR, YI, XX, 8, 54, 52, 64, 80, 56)
    e(f"  v_mul_u32_u24 v3, {XS_STRIDE}, v4")
    e("  v_lshl_add_u32 v3, v5, 4, v3")
    e(f"  ds_write_b128 v3, v[80:83] offset:{LDS_XS}")
    e(f"  ds_write_b128 v3, v[84:87] offset:{LDS_XS+512}")
    e("  s_waitcnt lgkmcnt(0)")
    e("  s_barrier")
    e("  s_cmp_lg_u32 s13, 0")
    e("  s_cbranch_scc1 t2_done")
    stamp(5)
    e("  v_and_b32 v3, 7, v0")
    e(f"  v_mul_u32_u24 v3, {XS_STRIDE}, v3")
    e("  v_lshrrev_b32 v4, 4, v0")
    e("  v_lshl_add_u32 v3, v4, 4, v3")
    e("  v_and_b32 v5, 15, v0")
    e("  v_lshrrev_b32 v5, 2, v5")
    e("  v_lshl_add_u32 v5, v4, 3, v5")
    e("  v_lshlrev_b32 v5, 4, v5")
    e("  v_and_b32 v6, 1, v0")
    e("  v_lshl_add_u32 v5, v6, 3, v5")
    e("  v_and_b32 v6, 2, v0")
    e("  v_lshl_add_u32 v5, v6, 12, v5")
    for i in range(4):
        e(f"  v_mov_b32 v{8+i}, 0")
    FA, FB = 64, 128
    for st in range(16):
        e(f"  ds_read_b128 {vr(FA+4*st,4)}, v3 offset:{LDS_XS + 64*st}")
        e(f"  ds_read_b64_tr_b16 {vr(FB+4*st,2)}, v5 offset:{512*st}")
        e(f"  ds_read_b64_tr_b16 {vr(FB+4*st+2,2)}, v5 offset:{512*st+64}")
        if st % 4 == 3:
            e("  s_waitcnt lgkmcnt(0)")
            for s2 in range(st-3, st+1):
                e(f"  v_mfma_f32_16x16x32_bf16 v[8:11], {vr(FA+4*s2,4)}, {vr(FB+4*s2,4)}, v[8:11]")
    e("  s_nop 15")
    for i in range(4):
        e(f"  v_cvt_pk_bf16_f32 v{8+i}, v{8+i}, v{8+i}")
        e(f"  v_lshlrev_b32 v{8+i}, 16, v{8+i}")
    e("  s_nop 1")
    for i in range(4):
        e(f"  v_mov_b32_dpp v{12+i}, v{8+i} row_ror:8 row_mask:0xf bank_mask:0xf")
    for i in range(4):
        e(f"  v_mul_f32 v16, 0xbfb8aa3b, v{8+i}")
        e("  v_exp_f32 v16, v16")
        e("  s_nop 0")
        e("  v_add_f32 v16, 1.0, v16")
        e("  v_rcp_f32 v16, v16")
        e("  s_nop 0")
        e(f"  v_mul_f32 v16, v{8+i}, v16")
        e("  v_cvt_pk_bf16_f32 v16, v16, v16")
        e("  v_lshlrev_b32 v16, 16, v16")
        e(f"  v_mul_f32 v16, v16, v{12+i}")
        e(f"  v_cvt_pk_bf16_f32 v{20+i}, v16, v16")
    stamp(6)
    e("  v_and_b32 v5, 15, v0")
    e("  v_cmp_gt_u32 vcc, 8, v5")
    e("  v_cmp_gt_u32 s[42:43], 32, v0")
    e("  s_and_b64 vcc, vcc, s[42:43]")
    e("  s_and_saveexec_b64 s[40:41], vcc")
    e("  v_lshlrev_b32 v4, 2, v4")
    e("  v_mul_u32_u24 v4, 3584, v4")
    e("  v_lshl_add_u32 v4, v5, 1, v4")
    e("  s_lshl_b32 s15, s3, 4")
    e(f"  s_add_u32 s15, s15, {WS_GU}")
    for i in range(4):
        e(f"  buffer_store_short v{20+i}, v4, s[20:23], s15 offen offset:{3584*i if 3584*i < 4096 else 0}") if False else None
    for i in range(4):
        e(f"  buffer_store_short v{20+i}, v4, s[20:23], s15 offen")
        if i < 3:
            e("  v_add_u32 v4, 3584, v4")
    lab("t2_done")
    kernel_end()
    e("  s_endpgm")
    kernel_desc(name, 192)

def gen_t3():
    name = "t3_kernel"
    kernel_begin(name)
    LDS_W, LDS_R = 0, 28672
    e("  s_cmp_ge_u32 s2, 64")
    e("  s_cbranch_scc1 t3_done")
    e(f"  s_load_dwordx2 s[4:5], s[0:1], {KA_X}")
    e(f"  s_load_dwordx2 s[6:7], s[0:1], {KA_WS}")
    e(f"  s_load_dwordx2 s[10:11], s[0:1], {KA_OUT}")
    e("  s_mov_b32 s3, s2")
    e("  v_lshrrev_b32 v1, 6, v0")
    e("  v_and_b32 v0, 63, v0")
    e("  v_readfirstlane_b32 s13, v1")
    e("  v_lshrrev_b32 v5, 4, v0")
    e("  s_waitcnt lgkmcnt(0)")
    srd(16, 4, 5, 2 << 20)
    srd(20, 6, 7, 12 << 20)
    srd(28, 10, 11, 2 << 20)
    e("  v_and_b32 v6, 1, v5")
    e("  v_lshlrev_b32 v6, 4, v6")
    e(f"  s_mov_b32 s14, {WS_IDX}")
    e("  buffer_load_dwordx4 v[24:27], v6, s[20:23], s14 offen")
    e("  s_lshl_b32 s15, s3, 4")
    e("  v_lshlrev_b32 v3, 4, v0")
    e("  s_mul_i32 s34, s13, 7168")
    e("  s_mul_i32 s33, s3, 28672")
    e("  s_add_u32 s33, s33, s34")
    e(f"  s_add_u32 s33, s33, {WS_WDB}")
    for i in range(7):
        e(f"  s_add_u32 m0, s34, {LDS_W + 1024*i}")
        e("  s_nop 0")
        e(f"  buffer_load_dwordx4 v3, s[20:23], s33 offen lds")
        e("  s_add_u32 s33, s33, 1024")
    e("  v_and_b32 v4, 7, v0")
    e("  v_mul_u32_u24 v4, 3584, v4")
    e("  v_lshl_add_u32 v4, v5, 4, v4")
    e("  s_mul_i32 s14, s13, 896")
    e(f"  s_add_u32 s14, s14, {WS_GU}")
    FA = 64
    for st in range(14):
        e(f"  buffer_load_dwordx4 {vr(FA+4*st,4)}, v4, s[20:23], s14 offen offset:{64*st}")
    for i in range(4):
        e(f"  v_mov_b32 v{28+i}, 0")
    e("  s_cmp_lg_u32 s13, 0")
    e("  s_cbranch_scc1 t3_noepi")
    e("  s_waitcnt vmcnt(21)")
    e("  v_and_b32 v6, 7, v0")
    e(f"  s_mov_b32 s36, {WS_Y}")
    e(f"  s_mov_b32 s37, {WS_Y + (2<<20)}")
    e(f"  s_mov_b32 s38, {WS_STAT}")
    for i in range(4):
        e(f"  v_and_b32 v{28+i}, 0xffff, v{24+i}")
        e(f"  v_sub_u32 v{28+i}, 0xffff, v{28+i}")
        e(f"  v_lshlrev_b32 v{32+i}, 3, v{28+i}")
        e(f"  v_lshlrev_b32 v{28+i}, 10, v{28+i}")
        e(f"  v_lshl_add_u32 v{28+i}, v6, 1, v{28+i}")
        e(f"  v_add_u32 v{28+i}, s15, v{28+i}")
        e(f"  buffer_load_ushort v{36+i}, v{28+i}, s[20:23], s36 offen")
        e(f"  buffer_load_ushort v{40+i}, v{28+i}, s[20:23], s37 offen")
        e(f"  buffer_load_ushort v{44+i}, v{28+i}, s[16:19], 0 offen")
        e(f"  buffer_load_dwordx2 {vr(48+2*i,2)}, v{32+i}, s[20:23], s38 offen")
    lab("t3_noepi")
    e("  v_and_b32 v7, 15, v0")
    e("  v_lshrrev_b32 v7, 2, v7")
    e("  v_lshl_add_u32 v7, v5, 3, v7")
    e("  v_lshlrev_b32 v7, 4, v7")
    e("  v_and_b32 v60, 1, v0")
    e("  v_lshl_add_u32 v7, v60, 3, v7")
    e("  v_add_u32 v7, s34, v7")
    for i in range(4):
        e(f"  v_mov_b32 v{8+i}, 0")
    stamp(1)
    e("  s_waitcnt vmcnt(0)")
    stamp(2)
    FB = 128
    for st in range(14):
        e(f"  ds_read_b64_tr_b16 {vr(FB+4*st,2)}, v7 offset:{512*st}")
        e(f"  ds_read_b64_tr_b16 {vr(FB+4*st+2,2)}, v7 offset:{512*st+64}")
    e("  s_waitcnt lgkmcnt(0)")
    for st in range(14):
        e(f"  v_mfma_f32_16x16x32_bf16 v[8:11], {vr(FA+4*st,4)}, {vr(FB+4*st,4)}, v[8:11]")
    e("  s_nop 15")
    stamp(3)
    e("  v_lshlrev_b32 v3, 4, v0")
    e("  s_lshl_b32 s33, s13, 10")
    e("  v_add_u32 v3, s33, v3")
    e(f"  ds_write_b128 v3, v[8:11] offset:{LDS_R}")
    e("  s_waitcnt lgkmcnt(0)")
    e("  s_barrier")
    e("  s_cmp_lg_u32 s13, 0")
    e("  s_cbranch_scc1 t3_done")
    e("  v_lshlrev_b32 v3, 4, v0")
    for w in range(1, 4):
        e(f"  ds_read_b128 {vr(12+4*(w-1),4)}, v3 offset:{LDS_R+1024*w}")
    stamp(4)
    e("  v_and_b32 v6, 15, v0")
    e("  v_cmp_gt_u32 vcc, 8, v6")
    e("  v_cmp_gt_u32 s[42:43], 32, v0")
    e("  s_and_b64 vcc, vcc, s[42:43]")
    e("  s_and_saveexec_b64 s[40:41], vcc")
    e("  s_waitcnt lgkmcnt(0)")
    for i in range(4):
        e(f"  v_add_f32 v{8+i}, v{8+i}, v{12+i}")
        e(f"  v_add_f32 v{16+i}, v{16+i}, v{20+i}")
        e(f"  v_add_f32 v{8+i}, v{8+i}, v{16+i}")
        e(f"  v_cvt_pk_bf16_f32 v{8+i}, v{8+i}, v{8+i}")
        e(f"  v_lshlrev_b32 v{8+i}, 16, v{8+i}")
        e(f"  v_and_b32 v60, 0xffff0000, v{24+i}")
        e("  v_ashrrev_i32 v61, 31, v60")
        e("  v_not_b32 v61, v61")
        e("  v_or_b32 v61, 0x80000000, v61")
        e("  v_xor_b32 v60, v60, v61")
        e("  v_and_b32 v60, 0xffff0000, v60")
        e("  v_mul_f32 v60, 0xbfb8aa3b, v60")
        e("  v_exp_f32 v60, v60")
        e("  s_nop 0")
        e("  v_add_f32 v60, 1.0, v60")
        e("  v_rcp_f32 v60, v60")
        e("  s_nop 0")
        e("  v_cvt_pk_bf16_f32 v60, v60, v60")
        e("  v_lshlrev_b32 v60, 16, v60")
        e(f"  v_mul_f32 v{8+i}, v{8+i}, v60")
        e(f"  v_cvt_pk_bf16_f32 v{8+i}, v{8+i}, v{8+i}")
        e(f"  v_lshlrev_b32 v{8+i}, 16, v{8+i}")
        e(f"  v_lshlrev_b32 v{36+i}, 16, v{36+i}")
        e(f"  v_lshlrev_b32 v{40+i}, 16, v{40+i}")
        e(f"  v_lshlrev_b32 v{44+i}, 16, v{44+i}")
        e(f"  v_sub_f32 v60, v{36+i}, v{40+i}")
        e("  v_cvt_pk_bf16_f32 v60, v60, v60")
        e("  v_lshlrev_b32 v60, 16, v60")
        e(f"  v_add_f32 v60, v{44+i}, v60")
        e("  v_cvt_pk_bf16_f32 v60, v60, v60")
        e("  v_lshlrev_b32 v60, 16, v60")
        e(f"  v_sub_f32 v61, v60, v{48+2*i}")
        e("  v_cvt_pk_bf16_f32 v61, v61, v61")
        e("  v_lshlrev_b32 v61, 16, v61")
        e(f"  v_mul_f32 v61, v61, v{49+2*i}")
        e("  v_cvt_pk_bf16_f32 v61, v61, v61")
        e("  v_lshlrev_b32 v61, 16, v61")
        e(f"  v_add_f32 v61, v61, v{8+i}")
        e("  v_cvt_pk_bf16_f32 v61, v61, v61")
        e("  v_lshlrev_b32 v61, 16, v61")
        e("  v_add_f32 v61, v60, v61")
        e("  v_cvt_pk_bf16_f32 v61, v61, v61")
        e(f"  buffer_store_short v61, v{28+i}, s[28:31], 0 offen")
    lab("t3_done")
    kernel_end()
    e("  s_endpgm")
    kernel_desc(name, 192)

SORT8 = [(0,1),(2,3),(4,5),(6,7),(0,2),(1,3),(4,6),(5,7),(1,2),(5,6),(0,4),(1,5),(2,6),(3,7),(2,4),(3,5),(1,2),(3,4),(5,6)]
def top8(keys, free, LDS_C):
    K = list(keys); F = list(free)
    for (i, j) in SORT8:
        hi, lo = F.pop(), F.pop()
        e(f"  v_max_u32 v{hi}, v{K[i]}, v{K[j]}")
        e(f"  v_min_u32 v{lo}, v{K[i]}, v{K[j]}")
        F.append(K[i]); F.append(K[j]); K[i] = hi; K[j] = lo
    t, coll = F.pop(), F.pop()
    e(f"  v_mov_b32 v{coll}, 0")
    pend = []
    def fill(n):
        for _ in range(n):
            if pend: e(pend.pop(0))
            else: e("  s_nop 0")
    for rnd in range(8):
        fill(2)
        e(f"  v_max_u32_dpp v{t}, v{K[0]}, v{K[0]} quad_perm:[1,0,3,2] row_mask:0xf bank_mask:0xf")
        fill(2)
        e(f"  v_max_u32_dpp v{t}, v{t}, v{t} quad_perm:[2,3,0,1] row_mask:0xf bank_mask:0xf")
        fill(2)
        e(f"  v_max_u32_dpp v{t}, v{t}, v{t} row_half_mirror row_mask:0xf bank_mask:0xf")
        fill(2)
        e(f"  v_max_u32_dpp v{t}, v{t}, v{t} row_mirror row_mask:0xf bank_mask:0xf")
        while pend: e(pend.pop(0))
        e("  s_nop 0")
        e(f"  v_readlane_b32 s36, v{t}, 0")
        e(f"  v_readlane_b32 s37, v{t}, 16")
        e(f"  v_readlane_b32 s38, v{t}, 32")
        e(f"  v_readlane_b32 s39, v{t}, 48")
        e("  s_max_u32 s36, s36, s37")
        e("  s_max_u32 s38, s38, s39")
        e("  s_max_u32 s36, s36, s38")
        e(f"  v_writelane_b32 v{coll}, s36, {rnd}")
        if rnd < 7:
            e(f"  v_cmp_eq_u32 vcc, s36, v{K[0]}")
            e("  s_nop 1")
            e(f"  v_cndmask_b32 v{K[0]}, v{K[0]}, v{K[1]}, vcc")
            for k in range(1, 7 - rnd):
                pend.append(f"  v_cndmask_b32 v{K[k]}, v{K[k]}, v{K[k+1]}, vcc")
    e("  s_lshl_b32 s33, s13, 5")
    e(f"  s_add_u32 s33, s33, {LDS_C}")
    e(f"  v_lshlrev_b32 v{t}, 2, v0")
    e(f"  v_add_u32 v{t}, s33, v{t}")
    e("  v_cmp_gt_u32 vcc, 8, v0")
    e("  s_and_saveexec_b64 s[40:41], vcc")
    e(f"  ds_write_b32 v{t}, v{coll}")
    e("  s_mov_b64 exec, s[40:41]")
    e("  s_waitcnt lgkmcnt(0)")
    e("  s_barrier")
    return t, coll

def gen_t4():
    name = "t4_kernel"
    kernel_begin(name)
    LDS_C, LDS_R, LDS_WD = 0, 256, 8704
    LDS_G, LDS_U, LDS_XS = 8704, 8704 + 8192, 8704 + 16384
    SPIN = 1 << 22
    e("  s_cmp_ge_u32 s2, 240")
    e("  s_cbranch_scc1 t4_done")
    e(f"  s_load_dwordx2 s[4:5], s[0:1], {KA_X}")
    e(f"  s_load_dwordx2 s[6:7], s[0:1], {KA_WS}")
    e(f"  s_load_dwordx4 s[8:11], s[0:1], {KA_WG}")
    e(f"  s_load_dwordx2 s[44:45], s[0:1], {KA_OUT}")
    e("  s_and_b32 s3, s2, 7")
    e("  s_mul_i32 s3, s3, 28")
    e("  s_lshr_b32 s12, s2, 3")
    e("  s_add_u32 s3, s3, s12")
    e("  v_mov_b32 v40, v0")
    e("  v_lshrrev_b32 v1, 6, v0")
    e("  v_and_b32 v0, 63, v0")
    e("  v_readfirstlane_b32 s13, v1")
    e("  s_waitcnt lgkmcnt(0)")
    srd(16, 4, 5, 2 << 20)
    srd(20, 6, 7, 12 << 20)
    srd(24, 8, 9, 512*1792*2)
    srd(28, 10, 11, 512*1792*2)
    srd(48, 44, 45, 2 << 20)
    e("  v_lshlrev_b32 v2, 5, v40")
    e(f"  s_mov_b32 s14, {WS_KEY}")
    e("  buffer_load_dwordx4 v[8:11], v2, s[20:23], s14 offen")
    e("  buffer_load_dwordx4 v[12:15], v2, s[20:23], s14 offen offset:16")
    e("  s_cmp_ge_u32 s2, 224")
    e("  s_cbranch_scc1 t4_dma2")
    e("  s_lshl_b32 s15, s3, 4")
    e("  s_movk_i32 s32, 3584")
    for ii in range(2):
        e(f"  s_lshl_b32 s33, s13, 7")
        e(f"  s_add_u32 s33, s33, {64*ii}")
        e(f"  v_add_u32 v3, s33, v0")
        e(f"  v_mul_lo_u32 v3, v3, s32")
        e(f"  s_lshl_b32 s34, s13, 11")
        e(f"  s_add_u32 m0, s34, {LDS_G + 1024*ii}")
        e("  s_nop 0")
        e(f"  buffer_load_dwordx4 v3, s[24:27], s15 offen lds")
        e(f"  s_add_u32 m0, s34, {LDS_U + 1024*ii}")
        e("  s_nop 0")
        e(f"  buffer_load_dwordx4 v3, s[28:31], s15 offen lds")
    e("  s_waitcnt vmcnt(4)")
    e("  s_branch t4_top")
    lab("t4_dma2")
    e("  s_sub_u32 s46, s2, 224")
    e("  v_lshlrev_b32 v3, 4, v0")
    e("  s_mul_i32 s34, s13, 7168")
    e(f"  s_mul_i32 s33, s46, {4*28672}")
    e("  s_add_u32 s33, s33, s34")
    e(f"  s_add_u32 s33, s33, {WS_WDB}")
    for dsl in range(4):
        for i in range(7):
            e(f"  s_add_u32 m0, s34, {LDS_WD + dsl*28672 + 1024*i}")
            e("  s_nop 0")
            e(f"  buffer_load_dwordx4 v3, s[20:23], s33 offen lds")
            e(f"  s_add_u32 s33, s33, {1024 if i < 6 else 28672 - 6*1024}")
    e("  s_waitcnt vmcnt(28)")
    lab("t4_top")
    stamp(1)
    t, coll = top8(range(8, 16), range(16, 24), LDS_C)
    e("  v_and_b32 v3, 31, v0")
    e("  v_lshlrev_b32 v3, 2, v3")
    e(f"  ds_read_b32 v24, v3 offset:{LDS_C}")
    e("  v_mov_b32 v4, 0")
    for q in range(8):
        e(f"  ds_read_b128 {vr(56+4*q,4)}, v4 offset:{LDS_C+16*q}")
    e("  v_mov_b32 v25, 0")
    e("  s_waitcnt lgkmcnt(0)")
    sp = [60, 62, 64, 66]
    for i in range(32 + 3):
        if i < 32:
            e(f"  v_cmp_gt_u32 s[{sp[i%4]}:{sp[i%4]+1}], v{56+i}, v24")
        if i >= 3:
            j = i - 3
            e(f"  v_addc_co_u32 v25, vcc, 0, v25, s[{sp[j%4]}:{sp[j%4]+1}]")
    e("  v_cmp_gt_u32 vcc, 8, v25")
    e("  v_cmp_gt_u32 s[42:43], 32, v0")
    e("  s_and_b64 vcc, vcc, s[42:43]")
    e("  v_lshlrev_b32 v3, 2, v25")
    e("  s_and_saveexec_b64 s[40:41], vcc")
    e(f"  ds_write_b32 v3, v24 offset:{LDS_C+128}")
    e("  s_mov_b64 exec, s[40:41]")
    e("  s_waitcnt lgkmcnt(0)")
    e("  s_barrier")
    stamp(2)
    e("  s_cmp_ge_u32 s2, 224")
    e("  s_cbranch_scc1 t4_f2")
    e("  v_lshrrev_b32 v4, 5, v40")
    e("  v_and_b32 v5, 31, v40")
    e("  v_lshlrev_b32 v3, 2, v4")
    e(f"  ds_read_b32 v6, v3 offset:{LDS_C+128}")
    e("  s_waitcnt lgkmcnt(0)")
    e("  v_and_b32 v6, 0xffff, v6")
    e("  v_sub_u32 v6, 0xffff, v6")
    e("  v_lshlrev_b32 v7, 10, v6")
    e("  v_lshl_add_u32 v7, v5, 4, v7")
    e(f"  s_mov_b32 s14, {WS_Y}")
    e(f"  s_mov_b32 s15, {WS_Y + (2<<20)}")
    YR, YI, XX = 24, 32, 44
    for j in range(2):
        e(f"  buffer_load_dwordx4 {vr(YR+4*j,4)}, v7, s[20:23], s14 offen offset:{512*j}")
        e(f"  buffer_load_dwordx4 {vr(YI+4*j,4)}, v7, s[20:23], s15 offen offset:{512*j}")
        e(f"  buffer_load_dwordx4 {vr(XX+4*j,4)}, v7, s[16:19], 0 offen offset:{512*j}")
    e("  v_lshlrev_b32 v3, 3, v6")
    e(f"  s_mov_b32 s14, {WS_STAT}")
    e("  buffer_load_dwordx2 v[52:53], v3, s[20:23], s14 offen")
    e("  s_waitcnt vmcnt(0)")
    stamp(3)
    e("  v_sub_f32 v54, 0, v52")
    e("  v_mov_b32 v55, v54")
    e("  v_mov_b32 v52, v53")
    recompute(YR, YI, XX, 8, 54, 52, 64, 80, 56)
    e(f"  v_mul_u32_u24 v3, {XS_STRIDE}, v4")
    e("  v_lshl_add_u32 v3, v5, 4, v3")
    e(f"  ds_write_b128 v3, v[80:83] offset:{LDS_XS}")
    e(f"  ds_write_b128 v3, v[84:87] offset:{LDS_XS+512}")
    e("  s_waitcnt lgkmcnt(0)")
    e("  s_barrier")
    e("  s_cmp_lg_u32 s13, 0")
    e("  s_cbranch_scc1 t4_done")
    e("  v_and_b32 v3, 7, v0")
    e(f"  v_mul_u32_u24 v3, {XS_STRIDE}, v3")
    e("  v_lshrrev_b32 v4, 4, v0")
    e("  v_lshl_add_u32 v3, v4, 4, v3")
    e("  v_and_b32 v5, 15, v0")
    e("  v_lshrrev_b32 v5, 2, v5")
    e("  v_lshl_add_u32 v5, v4, 3, v5")
    e("  v_lshlrev_b32 v5, 4, v5")
    e("  v_and_b32 v6, 1, v0")
    e("  v_lshl_add_u32 v5, v6, 3, v5")
    e("  v_and_b32 v6, 2, v0")
    e("  v_lshl_add_u32 v5, v6, 12, v5")
    for i in range(4):
        e(f"  v_mov_b32 v{8+i}, 0")
    FA, FB = 64, 128
    for st in range(16):
        e(f"  ds_read_b128 {vr(FA+4*st,4)}, v3 offset:{LDS_XS + 64*st}")
        e(f"  ds_read_b64_tr_b16 {vr(FB+4*st,2)}, v5 offset:{LDS_G+512*st}")
        e(f"  ds_read_b64_tr_b16 {vr(FB+4*st+2,2)}, v5 offset:{LDS_G+512*st+64}")
        if st % 4 == 3:
            e("  s_waitcnt lgkmcnt(0)")
            for s2 in range(st-3, st+1):
                e(f"  v_mfma_f32_16x16x32_bf16 v[8:11], {vr(FA+4*s2,4)}, {vr(FB+4*s2,4)}, v[8:11]")
    e("  s_nop 15")
    for i in range(4):
        e(f"  v_cvt_pk_bf16_f32 v{8+i}, v{8+i}, v{8+i}")
        e(f"  v_lshlrev_b32 v{8+i}, 16, v{8+i}")
    e("  s_nop 1")
    for i in range(4):
        e(f"  v_mov_b32_dpp v{12+i}, v{8+i} row_ror:8 row_mask:0xf bank_mask:0xf")
    for i in range(4):
        e(f"  v_mul_f32 v16, 0xbfb8aa3b, v{8+i}")
        e("  v_exp_f32 v16, v16")
        e("  s_nop 0")
        e("  v_add_f32 v16, 1.0, v16")
        e("  v_rcp_f32 v16, v16")
        e("  s_nop 0")
        e(f"  v_mul_f32 v16, v{8+i}, v16")
        e("  v_cvt_pk_bf16_f32 v16, v16, v16")
        e("  v_lshlrev_b32 v16, 16, v16")
        e(f"  v_mul_f32 v16, v16, v{12+i}")
        e(f"  v_cvt_pk_bf16_f32 v{20+i}, v16, v16")
    e("  s_nop 1")
    for i in range(4):
        e(f"  v_mov_b32_dpp v{24+i}, v{20+i} quad_perm:[1,0,3,2] row_mask:0xf bank_mask:0xf")
    for i in range(4):
        e(f"  v_and_b32 v{20+i}, 0xffff, v{20+i}")
        e(f"  v_and_b32 v{24+i}, 0xffff0000, v{24+i}")
        e(f"  v_or_b32 v{20+i}, v{20+i}, v{24+i}")
    for i in range(4):
        e(f"  v_min_u32 v{20+i}, 0xfffeffff, v{20+i}")
    stamp(4)
    e("  v_and_b32 v5, 15, v0")
    e("  v_lshlrev_b32 v4, 6, v4")
    e("  v_lshl_add_u32 v4, v5, 1, v4")
    e("  v_lshlrev_b32 v7, 4, v0")
    e("  v_and_b32 v6, 9, v0")
    e("  v_cmp_eq_u32 vcc, 0, v6")
    e("  v_cmp_gt_u32 s[42:43], 32, v0")
    e("  s_and_b64 vcc, vcc, s[42:43]")
    e("  s_and_saveexec_b64 s[40:41], vcc")
    for i in range(4):
        e(f"  ds_write_b32 v4, v{20+i} offset:{LDS_R+16*i}")
    e("  s_mov_b64 exec, 0xff")
    e("  s_waitcnt lgkmcnt(0)")
    e(f"  ds_read_b128 v[24:27], v7 offset:{LDS_R}")
    e("  s_lshl_b32 s15, s3, 7")
    e(f"  s_add_u32 s15, s15, {WS_GU}")
    e("  s_waitcnt lgkmcnt(0)")
    e("  buffer_store_dwordx4 v[24:27], v7, s[20:23], s15 offen sc1")
    e("  s_branch t4_done")
    lab("t4_f2")
    e("  v_lshrrev_b32 v5, 4, v0")
    e("  v_and_b32 v6, 1, v5")
    e("  v_lshlrev_b32 v6, 4, v6")
    e(f"  ds_read_b128 v[24:27], v6 offset:{LDS_C+128}")
    e("  v_and_b32 v6, 15, v0")
    e("  s_lshl_b32 s15, s46, 6")
    e("  s_waitcnt lgkmcnt(0)")
    for i in range(4):
        e(f"  v_and_b32 v{28+i}, 0xffff, v{24+i}")
        e(f"  v_sub_u32 v{28+i}, 0xffff, v{28+i}")
        e(f"  v_lshlrev_b32 v{32+i}, 3, v{28+i}")
        e(f"  v_lshlrev_b32 v{28+i}, 10, v{28+i}")
        e(f"  v_lshl_add_u32 v{28+i}, v6, 1, v{28+i}")
        e(f"  v_add_u32 v{28+i}, s15, v{28+i}")
    e("  s_cmp_lg_u32 s13, 0")
    e("  s_cbranch_scc1 t4_noepi")
    e(f"  s_mov_b32 s36, {WS_Y}")
    e(f"  s_mov_b32 s37, {WS_Y + (2<<20)}")
    e(f"  s_mov_b32 s38, {WS_STAT}")
    for a in range(2):
        for i in range(4):
            e(f"  buffer_load_ushort v{192+12*a+i}, v{28+i}, s[20:23], s36 offen offset:{32*a}")
            e(f"  buffer_load_ushort v{196+12*a+i}, v{28+i}, s[20:23], s37 offen offset:{32*a}")
            e(f"  buffer_load_ushort v{200+12*a+i}, v{28+i}, s[16:19], 0 offen offset:{32*a}")
    for i in range(4):
        e(f"  buffer_load_dwordx2 {vr(48+2*i,2)}, v{32+i}, s[20:23], s38 offen")
    lab("t4_noepi")
    e("  v_lshrrev_b32 v7, 2, v6")
    e("  v_lshl_add_u32 v7, v5, 3, v7")
    e("  v_lshlrev_b32 v7, 4, v7")
    e("  v_and_b32 v60, 1, v0")
    e("  v_lshl_add_u32 v7, v60, 3, v7")
    e("  v_and_b32 v60, 2, v0")
    e("  v_mul_u32_u24 v60, 14336, v60")
    e("  v_add_u32 v7, v60, v7")
    e("  v_add_u32 v7, s34, v7")
    e(f"  v_add_u32 v61, {2*28672}, v7")
    e("  s_waitcnt vmcnt(0)")
    FB0, FB1 = 72, 128
    for st in range(14):
        e(f"  ds_read_b64_tr_b16 {vr(FB0+4*st,2)}, v7 offset:{LDS_WD+512*st}")
        e(f"  ds_read_b64_tr_b16 {vr(FB0+4*st+2,2)}, v7 offset:{LDS_WD+512*st+64}")
        e(f"  ds_read_b64_tr_b16 {vr(FB1+4*st,2)}, v61 offset:{LDS_WD+512*st}")
        e(f"  ds_read_b64_tr_b16 {vr(FB1+4*st+2,2)}, v61 offset:{LDS_WD+512*st+64}")
        if st % 3 == 2: e("  s_waitcnt lgkmcnt(0)")
    for i in range(8):
        e(f"  v_mov_b32 v{8+i}, 0")
    for i in range(4):
        e(f"  v_and_b32 v60, 0xffff0000, v{24+i}")
        e("  v_ashrrev_i32 v62, 31, v60")
        e("  v_not_b32 v62, v62")
        e("  v_or_b32 v62, 0x80000000, v62")
        e("  v_xor_b32 v60, v60, v62")
        e("  v_and_b32 v60, 0xffff0000, v60")
        e("  v_mul_f32 v60, 0xbfb8aa3b, v60")
        e("  v_exp_f32 v60, v60")
        e("  s_nop 0")
        e("  v_add_f32 v60, 1.0, v60")
        e("  v_rcp_f32 v60, v60")
        e("  s_nop 0")
        e("  v_cvt_pk_bf16_f32 v60, v60, v60")
        e(f"  v_lshlrev_b32 v{24+i}, 16, v60")
    for a in range(2):
        for i in range(4):
            r0, r1, r2 = 192+12*a+i, 196+12*a+i, 200+12*a+i
            e(f"  v_lshlrev_b32 v{r0}, 16, v{r0}")
            e(f"  v_lshlrev_b32 v{r1}, 16, v{r1}")
            e(f"  v_lshlrev_b32 v{r2}, 16, v{r2}")
            e(f"  v_sub_f32 v60, v{r0}, v{r1}")
            e("  v_cvt_pk_bf16_f32 v60, v60, v60")
            e("  v_lshlrev_b32 v60, 16, v60")
            e(f"  v_add_f32 v60, v{r2}, v60")
            e("  v_cvt_pk_bf16_f32 v60, v60, v60")
            e(f"  v_lshlrev_b32 v{r0}, 16, v60")
            e(f"  v_sub_f32 v62, v{r0}, v{48+2*i}")
            e("  v_cvt_pk_bf16_f32 v62, v62, v62")
            e("  v_lshlrev_b32 v62, 16, v62")
            e(f"  v_mul_f32 v62, v62, v{49+2*i}")
            e("  v_cvt_pk_bf16_f32 v62, v62, v62")
            e(f"  v_lshlrev_b32 v{r1}, 16, v62")
    stamp(3)
    e("  v_and_b32 v4, 7, v0")
    e("  v_lshlrev_b32 v4, 4, v4")
    e("  v_lshl_add_u32 v4, v5, 7, v4")
    e("  s_mul_i32 s14, s13, 7168")
    e(f"  s_add_u32 s14, s14, {WS_GU}")
    regs = [216+4*i for i in range(9)] + [36, 40, 44, 56, 64]
    e("  v_add_u32 v62, 4096, v4")
    e("  s_mov_b32 s53, 0")
    lab("t4_poll")
    for st in range(14):
        e(f"  buffer_load_dwordx4 {vr(regs[st],4)}, v4, s[20:23], s14 offen offset:{512*st if st < 8 else 0} sc1") if st < 8 else e(f"  buffer_load_dwordx4 {vr(regs[st],4)}, v62, s[20:23], s14 offen offset:{512*(st-8)} sc1")
    e("  v_mov_b32 v3, 0")
    for st in range(14):
        e(f"  s_waitcnt vmcnt({13-st})")
        e(f"  v_max3_u32 v3, v3, v{regs[st]}, v{regs[st]+1}")
        e(f"  v_max3_u32 v3, v3, v{regs[st]+2}, v{regs[st]+3}")
    e("  v_cmp_eq_u32 s[54:55], -1, v3")
    e("  s_nop 3")
    e("  s_cmp_eq_u64 s[54:55], 0")
    e("  s_cbranch_scc1 t4_poll_ok")
    e("  s_add_u32 s53, s53, 1")
    e(f"  s_cmp_gt_u32 s53, {SPIN}")
    e("  s_cbranch_scc1 t4_poll_ok")
    e("  s_branch t4_poll")
    lab("t4_poll_ok")
    stamp(5)
    e("  s_waitcnt lgkmcnt(0)")
    for st in range(14):
        e(f"  v_mfma_f32_16x16x32_bf16 v[8:11], {vr(regs[st],4)}, {vr(FB0+4*st,4)}, v[8:11]")
        e(f"  v_mfma_f32_16x16x32_bf16 v[12:15], {vr(regs[st],4)}, {vr(FB1+4*st,4)}, v[12:15]")
    e("  s_nop 15")
    stamp(6)
    e("  v_lshlrev_b32 v3, 4, v0")
    e("  s_lshl_b32 s33, s13, 11")
    e("  v_add_u32 v3, s33, v3")
    e(f"  ds_write_b128 v3, v[8:11] offset:{LDS_R}")
    e(f"  ds_write_b128 v3, v[12:15] offset:{LDS_R+1024}")
    e("  s_waitcnt lgkmcnt(0)")
    e("  s_barrier")
    e("  s_cmp_lg_u32 s13, 0")
    e("  s_cbranch_scc1 t4_done")
    e("  v_lshlrev_b32 v3, 4, v0")
    for w in range(1, 4):
        for a in range(2):
            e(f"  ds_read_b128 {vr(72+8*(w-1)+4*a,4)}, v3 offset:{LDS_R+2048*w+1024*a}")
    e("  v_cmp_gt_u32 vcc, 32, v0")
    e("  s_and_saveexec_b64 s[40:41], vcc")
    e("  s_waitcnt lgkmcnt(0)")
    for a in range(2):
        for i in range(4):
            y = 8 + 4*a + i
            e(f"  v_add_f32 v{y}, v{y}, v{72+4*a+i}")
            e(f"  v_add_f32 v60, v{80+4*a+i}, v{88+4*a+i}")
            e(f"  v_add_f32 v{y}, v{y}, v60")
            e(f"  v_cvt_pk_bf16_f32 v{y}, v{y}, v{y}")
            e(f"  v_lshlrev_b32 v{y}, 16, v{y}")
            e(f"  v_mul_f32 v{y}, v{y}, v{24+i}")
            e(f"  v_cvt_pk_bf16_f32 v{y}, v{y}, v{y}")
            e(f"  v_lshlrev_b32 v{y}, 16, v{y}")
            e(f"  v_add_f32 v61, v{196+12*a+i}, v{y}")
            e("  v_cvt_pk_bf16_f32 v61, v61, v61")
            e("  v_lshlrev_b32 v61, 16, v61")
            e(f"  v_add_f32 v61, v{192+12*a+i}, v61")
            e("  v_cvt_pk_bf16_f32 v61, v61, v61")
            e(f"  buffer_store_short v61, v{28+i}, s[48:51], 0 offen offset:{32*a}")
    lab("t4_done")
    kernel_end()
    e("  s_endpgm")
    kernel_desc(name, 252)

ROW_O = 48
def rowmac(first, O=148, sc1=False):
    YR, YI, XX, WR, H, T, D = 16, 32, 48, 64, 80, 112, 116
    if sc1: O = ROW_O
    SC = " sc1" if sc1 else ""
    e("  v_lshlrev_b32 v3, 10, v1")
    e("  v_lshl_add_u32 v3, v2, 4, v3")
    e(f"  s_mov_b32 s52, {WS_Y}")
    e(f"  s_mov_b32 s53, {WS_Y + (2<<20)}")
    for j in range(4):
        e(f"  buffer_load_dwordx4 {vr(YR+4*j,4)}, v3, s[24:27], s52 offen offset:{256*j}{SC}")
        e(f"  buffer_load_dwordx4 {vr(YI+4*j,4)}, v3, s[24:27], s53 offen offset:{256*j}{SC}")
        e(f"  buffer_load_dwordx4 {vr(XX+4*j,4)}, v3, s[20:23], 0 offen offset:{256*j}")
    nextra = 0
    if first:
        e("  v_lshlrev_b32 v4, 4, v2")
        for j in range(4):
            e(f"  buffer_load_dwordx4 {vr(WR+4*j,4)}, v4, s[28:31], 0 offen offset:{256*j}")
        nextra = 4
    e("  v_mov_b32 v14, 0")
    e("  v_mov_b32 v15, 0")
    for j in range(4):
        e(f"  s_waitcnt vmcnt({nextra + 3*(3-j)})")
        for q in range(4):
            i = 4*j + q
            e(f"  v_lshlrev_b32 v{T}, 16, v{YR+i}")
            e(f"  v_and_b32 v{T+1}, 0xffff0000, v{YR+i}")
            e(f"  v_lshlrev_b32 v{T+2}, 16, v{YI+i}")
            e(f"  v_and_b32 v{T+3}, 0xffff0000, v{YI+i}")
            e(f"  v_pk_add_f32 {vr(T,2)}, {vr(T,2)}, {vr(T+2,2)} neg_lo:[0,1] neg_hi:[0,1]")
            e(f"  v_cvt_pk_bf16_f32 v{T}, v{T}, v{T+1}")
            e(f"  v_and_b32 v{T+1}, 0xffff0000, v{T}")
            e(f"  v_lshlrev_b32 v{T}, 16, v{T}")
            e(f"  v_lshlrev_b32 v{T+2}, 16, v{XX+i}")
            e(f"  v_and_b32 v{T+3}, 0xffff0000, v{XX+i}")
            e(f"  v_pk_add_f32 {vr(T,2)}, {vr(T,2)}, {vr(T+2,2)}")
            e(f"  v_cvt_pk_bf16_f32 v{YI+i}, v{T}, v{T+1}")
            e(f"  v_lshlrev_b32 v{H+2*i}, 16, v{YI+i}")
            e(f"  v_and_b32 v{H+2*i+1}, 0xffff0000, v{YI+i}")
            e(f"  v_pk_add_f32 v[14:15], v[14:15], {vr(H+2*i,2)}")
    e("  v_add_f32 v5, v14, v15")
    reduce16(5)
    e("  v_mul_f32 v5, 0x3b000000, v5")
    e("  v_cvt_pk_bf16_f32 v6, v5, v5")
    e("  v_lshlrev_b32 v6, 16, v6")
    e("  v_sub_f32 v8, 0, v6")
    e("  v_mov_b32 v9, v8")
    e("  v_mov_b32 v10, 0")
    e("  v_mov_b32 v11, 0")
    for i in range(16):
        e(f"  v_pk_add_f32 {vr(D+2*i,2)}, {vr(H+2*i,2)}, v[8:9]")
        e(f"  v_pk_fma_f32 v[10:11], {vr(D+2*i,2)}, {vr(D+2*i,2)}, v[10:11]")
    e("  v_add_f32 v10, v10, v11")
    reduce16(10)
    e("  v_sub_f32 v11, v5, v6")
    e("  v_mul_f32 v11, v11, v11")
    e("  v_mul_f32 v10, 0x3b000000, v10")
    e("  v_sub_f32 v10, v10, v11")
    e("  v_max_f32 v10, 0, v10")
    e("  v_cvt_pk_bf16_f32 v10, v10, v10")
    e("  v_lshlrev_b32 v10, 16, v10")
    e("  v_add_f32 v10, 0x3727c5ac, v10")
    e("  v_cvt_pk_bf16_f32 v10, v10, v10")
    e("  v_lshlrev_b32 v10, 16, v10")
    e("  v_sqrt_f32 v10, v10")
    e("  s_nop 0")
    e("  v_cvt_pk_bf16_f32 v10, v10, v10")
    e("  v_lshlrev_b32 v10, 16, v10")
    e("  v_rcp_f32 v10, v10")
    e("  s_nop 0")
    e("  v_mov_b32 v11, v10")
    if first:
        e("  v_mov_b32 v12, 0")
        e("  s_waitcnt vmcnt(0)")
    for i in range(16):
        e(f"  v_cvt_pk_bf16_f32 v{T}, v{D+2*i}, v{D+2*i+1}")
        e(f"  v_lshlrev_b32 v{D+2*i}, 16, v{T}")
        e(f"  v_and_b32 v{D+2*i+1}, 0xffff0000, v{T}")
        e(f"  v_pk_mul_f32 {vr(D+2*i,2)}, {vr(D+2*i,2)}, v[10:11]")
        e(f"  v_cvt_pk_bf16_f32 v{YR+i}, v{D+2*i}, v{D+2*i+1}")
        if first:
            e(f"  v_dot2_f32_bf16 v12, v{YR+i}, v{WR+i}, v12")
            e(f"  v_lshlrev_b32 v{D+2*i}, 16, v{YR+i}")
            e(f"  v_and_b32 v{D+2*i+1}, 0xffff0000, v{YR+i}")
            e(f"  v_pk_add_f32 {vr(D+2*i,2)}, {vr(D+2*i,2)}, {vr(H+2*i,2)}")
            e(f"  v_cvt_pk_bf16_f32 v{O+i}, v{D+2*i}, v{D+2*i+1}")
    if first:
        e("  s_nop 3")
        reduce16(12)
        e("  v_cvt_pk_bf16_f32 v12, v12, v12")
        e("  v_lshlrev_b32 v12, 16, v12")
        e("  v_ashrrev_i32 v13, 31, v12")
        e("  v_or_b32 v13, 0x80000000, v13")
        e("  v_xor_b32 v12, v12, v13")
        e("  v_and_b32 v12, 0xffff0000, v12")
        e("  v_sub_u32 v13, 0xffff, v1")
        e("  v_or_b32 v12, v12, v13")

def gen_tf():
    name = "tf_kernel"
    kernel_begin(name)
    LDS_G, LDS_U, LDS_WD = 0, 8192, 16384
    LDS_XS = 45056
    LDS_HS = LDS_XS + 8 * XS_STRIDE
    LDS_C = LDS_HS + 8192
    LDS_R = LDS_C + 256
    SPIN = 1 << 22
    e("  s_cmp_ge_u32 s2, 256")
    e("  s_cbranch_scc1 tf_done")
    e(f"  s_load_dwordx2 s[4:5], s[0:1], {KA_X}")
    e(f"  s_load_dwordx2 s[6:7], s[0:1], {KA_WS}")
    e(f"  s_load_dwordx8 s[8:15], s[0:1], {KA_WR}")
    e(f"  s_load_dwordx2 s[16:17], s[0:1], {KA_OUT}")
    e("  s_and_b32 s3, s2, 7")
    e("  s_mul_i32 s49, s3, 28")
    e("  s_lshr_b32 s50, s2, 3")
    e("  s_add_u32 s49, s49, s50")
    e("  s_sub_u32 s50, s50, 24")
    e("  s_lshl_b32 s51, s3, 3")
    e("  s_add_u32 s50, s50, s51")
    e("  v_mov_b32 v180, v0")
    e("  v_lshrrev_b32 v1, 6, v0")
    e("  v_and_b32 v0, 63, v0")
    e("  v_readfirstlane_b32 s48, v1")
    e("  s_waitcnt lgkmcnt(0)")
    srd(20, 4, 5, 2 << 20)
    srd(24, 6, 7, 9 << 20)
    srd(28, 8, 9, 1024)
    srd(32, 10, 11, 512*1792*2)
    srd(36, 12, 13, 512*1792*2)
    srd(40, 14, 15, 1792*512*2)
    srd(44, 16, 17, 2 << 20)
    e("  s_cmp_lt_u32 s48, 2")
    e("  s_cbranch_scc1 tf_p1")
    e("  s_cmp_ge_u32 s2, 224")
    e("  s_cbranch_scc1 tf_nof1")
    e("  s_movk_i32 s52, 3584")
    e("  v_mul_lo_u32 v3, v0, s52")
    e("  s_lshl_b32 s53, s49, 4")
    e("  s_cmp_eq_u32 s48, 2")
    e("  s_cbranch_scc0 tf_dma_u")
    for i in range(8):
        e(f"  s_mov_b32 m0, {LDS_G + 1024*i}")
        e("  s_nop 0")
        e("  buffer_load_dwordx4 v3, s[32:35], s53 offen lds")
        e(f"  s_add_u32 s53, s53, {64*3584}")
    e("  s_branch tf_nof1")
    lab("tf_dma_u")
    for i in range(8):
        e(f"  s_mov_b32 m0, {LDS_U + 1024*i}")
        e("  s_nop 0")
        e("  buffer_load_dwordx4 v3, s[36:39], s53 offen lds")
        e(f"  s_add_u32 s53, s53, {64*3584}")
    lab("tf_nof1")
    e("  s_cmp_lt_u32 s2, 192")
    e("  s_cbranch_scc1 tf_poll1")
    e("  v_lshlrev_b32 v3, 10, v0")
    e("  s_sub_u32 s52, s48, 2")
    e(f"  s_mul_i32 s53, s52, {896*1024}")
    e("  s_lshl_b32 s54, s50, 4")
    e("  s_add_u32 s53, s53, s54")
    e(f"  s_mul_i32 s54, s52, {896*16}")
    for i in range(14):
        e(f"  s_add_u32 m0, s54, {LDS_WD + 1024*i}")
        e("  s_nop 0")
        e("  buffer_load_dwordx4 v3, s[40:43], s53 offen lds")
        e("  s_add_u32 s53, s53, 0x10000")
    e("  s_branch tf_poll1")
    lab("tf_p1")
    e("  v_lshrrev_b32 v1, 4, v180")
    e("  v_and_b32 v2, 15, v0")
    e("  s_lshl_b32 s52, s2, 3")
    e("  v_add_u32 v1, s52, v1")
    e("  v_mov_b32 v181, v1")
    rowmac(True)
    e("  v_cmp_eq_u32 vcc, 0, v2")
    e("  s_and_saveexec_b64 s[56:57], vcc")
    e("  v_lshlrev_b32 v13, 2, v1")
    e(f"  s_mov_b32 s52, {WS_KEY}")
    e("  buffer_store_dword v12, v13, s[24:27], s52 offen sc1")
    e("  s_mov_b64 exec, s[56:57]")
    stamp(1)
    lab("tf_poll1")
    K = 164
    e("  v_lshlrev_b32 v172, 5, v180")
    e(f"  s_mov_b32 s52, {WS_KEY}")
    e("  s_mov_b32 s60, 0")
    lab("tf_poll1_loop")
    e(f"  buffer_load_dwordx4 {vr(K,4)}, v172, s[24:27], s52 offen sc1")
    e(f"  buffer_load_dwordx4 {vr(K+4,4)}, v172, s[24:27], s52 offen offset:16 sc1")
    e("  s_waitcnt vmcnt(0)")
    e(f"  v_min3_u32 v173, v{K}, v{K+1}, v{K+2}")
    e(f"  v_min3_u32 v174, v{K+3}, v{K+4}, v{K+5}")
    e(f"  v_min3_u32 v173, v173, v{K+6}, v{K+7}")
    e("  v_min_u32 v173, v173, v174")
    e("  v_cmp_eq_u32 s[62:63], 0, v173")
    e("  s_nop 3")
    e("  s_cmp_eq_u64 s[62:63], 0")
    e("  s_cbranch_scc1 tf_poll1_ok")
    e("  s_add_u32 s60, s60, 1")
    e(f"  s_cmp_gt_u32 s60, {SPIN}")
    e("  s_cbranch_scc1 tf_poll1_ok")
    e("  s_sleep 1")
    e("  s_branch tf_poll1_loop")
    lab("tf_poll1_ok")
    stamp(2)
    e("  v_mov_b32 v176, 0")
    for rnd in range(8):
        e(f"  v_max3_u32 v173, v{K}, v{K+1}, v{K+2}")
        e(f"  v_max3_u32 v174, v{K+3}, v{K+4}, v{K+5}")
        e(f"  v_max3_u32 v173, v173, v{K+6}, v{K+7}")
        e("  v_max_u32 v173, v173, v174")
        e("  s_nop 1")
        e("  v_max_u32_dpp v173, v173, v173 quad_perm:[1,0,3,2] row_mask:0xf bank_mask:0xf")
        e("  s_nop 1")
        e("  v_max_u32_dpp v173, v173, v173 quad_perm:[2,3,0,1] row_mask:0xf bank_mask:0xf")
        e("  s_nop 1")
        e("  v_max_u32_dpp v173, v173, v173 row_half_mirror row_mask:0xf bank_mask:0xf")
        e("  s_nop 1")
        e("  v_max_u32_dpp v173, v173, v173 row_mirror row_mask:0xf bank_mask:0xf")
        e("  s_nop 1")
        e("  v_readlane_b32 s64, v173, 0")
        e("  v_readlane_b32 s65, v173, 16")
        e("  v_readlane_b32 s66, v173, 32")
        e("  v_readlane_b32 s67, v173, 48")
        e("  s_max_u32 s64, s64, s65")
        e("  s_max_u32 s66, s66, s67")
        e("  s_max_u32 s64, s64, s66")
        e(f"  v_writelane_b32 v176, s64, {rnd}")
        if rnd < 7:
            for k in range(8):
                e(f"  v_cmp_ne_u32 vcc, s64, v{K+k}")
                e("  s_nop 1")
                e(f"  v_cndmask_b32 v{K+k}, 0, v{K+k}, vcc")
    e("  s_lshl_b32 s52, s48, 5")
    e(f"  s_add_u32 s52, s52, {LDS_C}")
    e("  v_lshlrev_b32 v172, 2, v0")
    e("  v_add_u32 v172, s52, v172")
    e("  v_cmp_gt_u32 vcc, 8, v0")
    e("  s_and_saveexec_b64 s[56:57], vcc")
    e("  ds_write_b32 v172, v176")
    e("  s_mov_b64 exec, s[56:57]")
    e("  s_waitcnt lgkmcnt(0)")
    e("  s_barrier")
    e("  v_and_b32 v172, 31, v0")
    e("  v_lshlrev_b32 v172, 2, v172")
    e(f"  ds_read_b32 v177, v172 offset:{LDS_C}")
    e("  v_mov_b32 v178, 0")
    e("  s_waitcnt lgkmcnt(0)")
    for i in range(32):
        e(f"  v_readlane_b32 s64, v177, {i}")
        e("  s_nop 1")
        e("  v_cmp_gt_u32 vcc, s64, v177")
        e("  s_nop 1")
        e("  v_addc_co_u32 v178, vcc, 0, v178, vcc")
    e("  v_cmp_gt_u32 vcc, 8, v178")
    e("  v_cmp_gt_u32 s[58:59], 32, v0")
    e("  s_and_b64 vcc, vcc, s[58:59]")
    e("  v_lshlrev_b32 v172, 2, v178")
    e("  s_and_saveexec_b64 s[56:57], vcc")
    e(f"  ds_write_b32 v172, v177 offset:{LDS_C+128}")
    e("  s_mov_b64 exec, s[56:57]")
    e("  s_waitcnt lgkmcnt(0)")
    e("  s_barrier")
    stamp(3)
    e("  s_cmp_lt_u32 s48, 2")
    e("  s_cbranch_scc1 tf_p2")
    e("  s_waitcnt vmcnt(0)")
    e("  s_branch tf_p2_end")
    lab("tf_p2")
    e("  v_mov_b32 v172, 0")
    e(f"  ds_read_b128 {vr(K,4)}, v172 offset:{LDS_C+128}")
    e(f"  ds_read_b128 {vr(K+4,4)}, v172 offset:{LDS_C+144}")
    e("  v_lshrrev_b32 v173, 4, v180")
    e("  v_lshlrev_b32 v173, 2, v173")
    e(f"  ds_read_b32 v174, v173 offset:{LDS_C+128}")
    e("  v_sub_u32 v175, 0xffff, v181")
    e("  s_waitcnt lgkmcnt(0)")
    e("  s_mov_b64 s[58:59], exec")
    for k in range(8):
        e(f"  v_and_b32 v{K+k}, 0xffff, v{K+k}")
        e(f"  v_cmp_ne_u32 vcc, v{K+k}, v175")
        e("  s_and_b64 s[58:59], s[58:59], vcc")
    e("  v_lshlrev_b32 v3, 10, v181")
    e("  v_lshl_add_u32 v3, v2, 4, v3")
    e("  s_and_saveexec_b64 s[56:57], s[58:59]")
    e("  s_cbranch_execz tf_nostore")
    for j in range(4):
        e(f"  buffer_store_dwordx4 {vr(148+4*j,4)}, v3, s[44:47], 0 offen offset:{256*j}")
    lab("tf_nostore")
    e("  s_mov_b64 exec, s[56:57]")
    e("  v_and_b32 v1, 0xffff, v174")
    e("  v_sub_u32 v1, 0xffff, v1")
    rowmac(False)
    e("  v_lshrrev_b32 v173, 4, v180")
    e(f"  v_mul_u32_u24 v4, {XS_STRIDE}, v173")
    e("  v_lshl_add_u32 v4, v2, 4, v4")
    e("  v_lshlrev_b32 v5, 10, v173")
    e("  v_lshl_add_u32 v5, v2, 4, v5")
    for j in range(4):
        e(f"  ds_write_b128 v4, {vr(16+4*j,4)} offset:{LDS_XS+256*j}")
        e(f"  ds_write_b128 v5, {vr(32+4*j,4)} offset:{LDS_HS+256*j}")
    e("  s_waitcnt lgkmcnt(0)")
    lab("tf_p2_end")
    e("  s_barrier")
    stamp(4)
    e("  s_cmp_lg_u32 s48, 0")
    e("  s_cbranch_scc1 tf_f2")
    e("  s_cmp_ge_u32 s2, 224")
    e("  s_cbranch_scc1 tf_f2")
    e("  v_and_b32 v3, 7, v0")
    e(f"  v_mul_u32_u24 v3, {XS_STRIDE}, v3")
    e("  v_lshrrev_b32 v4, 4, v0")
    e("  v_lshl_add_u32 v3, v4, 4, v3")
    e("  v_and_b32 v5, 15, v0")
    e("  v_lshrrev_b32 v5, 2, v5")
    e("  v_lshl_add_u32 v5, v4, 3, v5")
    e("  v_lshlrev_b32 v5, 4, v5")
    e("  v_and_b32 v6, 1, v0")
    e("  v_lshl_add_u32 v5, v6, 3, v5")
    e("  v_and_b32 v6, 2, v0")
    e("  v_lshl_add_u32 v5, v6, 12, v5")
    for i in range(4):
        e(f"  v_mov_b32 v{8+i}, 0")
    FA, FB = 16, 80
    for st in range(16):
        e(f"  ds_read_b128 {vr(FA+4*st,4)}, v3 offset:{LDS_XS + 64*st}")
        e(f"  ds_read_b64_tr_b16 {vr(FB+4*st,2)}, v5 offset:{512*st}")
        e(f"  ds_read_b64_tr_b16 {vr(FB+4*st+2,2)}, v5 offset:{512*st+64}")
        if st % 4 == 3:
            e("  s_waitcnt lgkmcnt(0)")
            for s2 in range(st-3, st+1):
                e(f"  v_mfma_f32_16x16x32_bf16 v[8:11], {vr(FA+4*s2,4)}, {vr(FB+4*s2,4)}, v[8:11]")
    e("  s_nop 15")
    for i in range(4):
        e(f"  v_cvt_pk_bf16_f32 v{8+i}, v{8+i}, v{8+i}")
        e(f"  v_lshlrev_b32 v{8+i}, 16, v{8+i}")
    e("  s_nop 1")
    for i in range(4):
        e(f"  v_mov_b32_dpp v{12+i}, v{8+i} row_ror:8 row_mask:0xf bank_mask:0xf")
    for i in range(4):
        e(f"  v_mul_f32 v16, 0xbfb8aa3b, v{8+i}")
        e("  v_exp_f32 v16, v16")
        e("  s_nop 0")
        e("  v_add_f32 v16, 1.0, v16")
        e("  v_rcp_f32 v16, v16")
        e("  s_nop 0")
        e(f"  v_mul_f32 v16, v{8+i}, v16")
        e("  v_cvt_pk_bf16_f32 v16, v16, v16")
        e("  v_lshlrev_b32 v16, 16, v16")
        e(f"  v_mul_f32 v16, v16, v{12+i}")
        e(f"  v_cvt_pk_bf16_f32 v{20+i}, v16, v16")
    e("  s_nop 1")
    for i in range(4):
        e(f"  v_mov_b32_dpp v{24+i}, v{20+i} quad_perm:[1,0,3,2] row_mask:0xf bank_mask:0xf")
    for i in range(4):
        e(f"  v_and_b32 v{20+i}, 0xffff, v{20+i}")
        e(f"  v_and_b32 v{24+i}, 0xffff0000, v{24+i}")
        e(f"  v_or_b32 v{20+i}, v{20+i}, v{24+i}")
    e("  v_and_b32 v5, 15, v0")
    e("  v_and_b32 v6, 9, v0")
    e("  v_cmp_eq_u32 vcc, 0, v6")
    e("  v_cmp_gt_u32 s[58:59], 32, v0")
    e("  s_and_b64 vcc, vcc, s[58:59]")
    e("  s_and_saveexec_b64 s[56:57], vcc")
    e("  v_lshlrev_b32 v4, 2, v4")
    e("  v_mul_u32_u24 v4, 3584, v4")
    e("  v_lshl_add_u32 v4, v5, 1, v4")
    e("  s_lshl_b32 s52, s49, 4")
    e(f"  s_add_u32 s52, s52, {WS_GU}")
    for i in range(4):
        e(f"  buffer_store_dword v{20+i}, v4, s[24:27], s52 offen sc1")
        if i < 3:
            e("  v_add_u32 v4, 3584, v4")
    e("  s_waitcnt vmcnt(0)")
    e("  s_mov_b64 exec, 1")
    e("  v_mov_b32 v4, 1")
    e("  v_mov_b32 v5, 0")
    e("  s_lshl_b32 s52, s49, 2")
    e(f"  s_add_u32 s52, s52, {WS_FLAG}")
    e("  buffer_store_dword v4, v5, s[24:27], s52 offen sc1")
    e("  s_mov_b64 exec, s[56:57]")
    stamp(5)
    lab("tf_f2")
    e("  s_cmp_lt_u32 s2, 192")
    e("  s_cbranch_scc1 tf_done")
    e("  v_min_u32 v3, 55, v0")
    e("  v_lshlrev_b32 v3, 2, v3")
    e("  s_mul_i32 s52, s48, 224")
    e(f"  s_add_u32 s52, s52, {WS_FLAG}")
    e("  s_mov_b32 s60, 0")
    lab("tf_poll2_loop")
    e("  buffer_load_dword v4, v3, s[24:27], s52 offen sc1")
    e("  s_waitcnt vmcnt(0)")
    e("  v_cmp_eq_u32 s[62:63], 0, v4")
    e("  s_nop 3")
    e("  s_cmp_eq_u64 s[62:63], 0")
    e("  s_cbranch_scc1 tf_poll2_ok")
    e("  s_add_u32 s60, s60, 1")
    e(f"  s_cmp_gt_u32 s60, {SPIN}")
    e("  s_cbranch_scc1 tf_poll2_ok")
    e("  s_sleep 1")
    e("  s_branch tf_poll2_loop")
    lab("tf_poll2_ok")
    stamp(6)
    e("  v_and_b32 v4, 7, v0")
    e("  v_mul_u32_u24 v4, 3584, v4")
    e("  v_lshrrev_b32 v5, 4, v0")
    e("  v_lshl_add_u32 v4, v5, 4, v4")
    e("  s_mul_i32 s52, s48, 896")
    e(f"  s_add_u32 s52, s52, {WS_GU}")
    FA, FB = 16, 72
    for st in range(14):
        e(f"  buffer_load_dwordx4 {vr(FA+4*st,4)}, v4, s[24:27], s52 offen offset:{64*st} sc1")
    e("  v_and_b32 v7, 15, v0")
    e("  v_lshrrev_b32 v7, 2, v7")
    e("  v_lshl_add_u32 v7, v5, 3, v7")
    e("  v_lshlrev_b32 v7, 4, v7")
    e("  v_and_b32 v6, 1, v0")
    e("  v_lshl_add_u32 v7, v6, 3, v7")
    e("  s_mul_i32 s54, s48, 7168")
    e(f"  s_add_u32 s54, s54, {LDS_WD}")
    e("  v_add_u32 v7, s54, v7")
    for st in range(14):
        e(f"  ds_read_b64_tr_b16 {vr(FB+4*st,2)}, v7 offset:{512*st}")
        e(f"  ds_read_b64_tr_b16 {vr(FB+4*st+2,2)}, v7 offset:{512*st+64}")
    for i in range(4):
        e(f"  v_mov_b32 v{8+i}, 0")
    e("  s_waitcnt vmcnt(0) lgkmcnt(0)")
    for st in range(14):
        e(f"  v_mfma_f32_16x16x32_bf16 v[8:11], {vr(FA+4*st,4)}, {vr(FB+4*st,4)}, v[8:11]")
    e("  s_nop 15")
    e("  v_lshlrev_b32 v3, 4, v0")
    e("  s_lshl_b32 s52, s48, 10")
    e("  v_add_u32 v3, s52, v3")
    e(f"  ds_write_b128 v3, v[8:11] offset:{LDS_R}")
    e("  s_waitcnt lgkmcnt(0)")
    e("  s_barrier")
    e("  s_cmp_lg_u32 s48, 0")
    e("  s_cbranch_scc1 tf_done")
    e("  v_lshlrev_b32 v3, 4, v0")
    for w in range(1, 4):
        e(f"  ds_read_b128 {vr(12+4*(w-1),4)}, v3 offset:{LDS_R+1024*w}")
    e("  v_and_b32 v6, 1, v5")
    e("  v_lshlrev_b32 v6, 4, v6")
    e(f"  ds_read_b128 v[24:27], v6 offset:{LDS_C+128}")
    e("  v_and_b32 v6, 7, v0")
    e("  s_lshl_b32 s52, s50, 4")
    e("  v_lshl_add_u32 v6, v6, 1, s52")
    e("  v_and_b32 v7, 1, v5")
    e("  v_lshlrev_b32 v7, 2, v7")
    for i in range(4):
        e(f"  v_add_u32 v28, {i}, v7")
        e(f"  v_mul_u32_u24 v29, {XS_STRIDE}, v28")
        e("  v_add_u32 v29, v29, v6")
        e(f"  ds_read_u16 v{36+i}, v29 offset:{LDS_XS}")
        e("  v_lshl_add_u32 v29, v28, 10, v6")
        e(f"  ds_read_u16 v{40+i}, v29 offset:{LDS_HS}")
    e("  v_and_b32 v30, 15, v0")
    e("  v_cmp_gt_u32 vcc, 8, v30")
    e("  v_cmp_gt_u32 s[58:59], 32, v0")
    e("  s_and_b64 vcc, vcc, s[58:59]")
    e("  s_waitcnt lgkmcnt(0)")
    e("  s_and_saveexec_b64 s[56:57], vcc")
    for i in range(4):
        e(f"  v_add_f32 v{8+i}, v{8+i}, v{12+i}")
        e(f"  v_add_f32 v{16+i}, v{16+i}, v{20+i}")
        e(f"  v_add_f32 v{8+i}, v{8+i}, v{16+i}")
        e(f"  v_cvt_pk_bf16_f32 v{8+i}, v{8+i}, v{8+i}")
        e(f"  v_lshlrev_b32 v{8+i}, 16, v{8+i}")
        e(f"  v_and_b32 v60, 0xffff0000, v{24+i}")
        e("  v_ashrrev_i32 v61, 31, v60")
        e("  v_not_b32 v61, v61")
        e("  v_or_b32 v61, 0x80000000, v61")
        e("  v_xor_b32 v60, v60, v61")
        e("  v_and_b32 v60, 0xffff0000, v60")
        e("  v_mul_f32 v60, 0xbfb8aa3b, v60")
        e("  v_exp_f32 v60, v60")
        e("  s_nop 0")
        e("  v_add_f32 v60, 1.0, v60")
        e("  v_rcp_f32 v60, v60")
        e("  s_nop 0")
        e("  v_cvt_pk_bf16_f32 v60, v60, v60")
        e("  v_lshlrev_b32 v60, 16, v60")
        e(f"  v_mul_f32 v{8+i}, v{8+i}, v60")
        e(f"  v_cvt_pk_bf16_f32 v{8+i}, v{8+i}, v{8+i}")
        e(f"  v_lshlrev_b32 v{8+i}, 16, v{8+i}")
        e(f"  v_lshlrev_b32 v{36+i}, 16, v{36+i}")
        e(f"  v_lshlrev_b32 v{40+i}, 16, v{40+i}")
        e(f"  v_add_f32 v61, v{36+i}, v{8+i}")
        e("  v_cvt_pk_bf16_f32 v61, v61, v61")
        e("  v_lshlrev_b32 v61, 16, v61")
        e(f"  v_add_f32 v61, v{40+i}, v61")
        e("  v_cvt_pk_bf16_f32 v61, v61, v61")
        e(f"  v_and_b32 v62, 0xffff, v{24+i}")
        e("  v_sub_u32 v62, 0xffff, v62")
        e("  v_lshl_add_u32 v62, v62, 10, v6")
        e("  buffer_store_short v61, v62, s[44:47], 0 offen")
    lab("tf_done")
    kernel_end()
    e("  s_endpgm")
    kernel_desc(name, 184)

def main():
    hdr = open("cdna_kernels/" + NAME + ".s.ref").read().splitlines()
    out = []
    for ln in hdr:
        if ln.startswith("; @launch"):
            if FUSE:
                out.append("; @launch kernel=f_kernel grid=(256,1,1) block=(576,1,1) lds=%d" % (K2_NS*24576 + 256))
            else:
                out.append("; @launch kernel=k1_kernel grid=(256,1,1) block=(%d,1,1) lds=131072" % (576 if OPT('K1_PF', 0) else 512))
                out.append("; @launch kernel=k2_kernel grid=(256,1,1) block=(%d,1,1) lds=%d" % (576, K2_NS*24576))
            if OPT('TF'):
                out.append("; @launch kernel=tf_kernel grid=(256,1,1) block=(256,1,1) lds=66048")
            else:
                if not OPT('K2T1', 1):
                    out.append("; @launch kernel=t1_kernel grid=(256,1,1) block=(%d,1,1) lds=0" % (192 if OPT('T1_PF', 1) else 128))
                if OPT('T4', 1):
                    out.append("; @launch kernel=t4_kernel grid=(240,1,1) block=(256,1,1) lds=123392")
                else:
                    out.append("; @launch kernel=t2_kernel grid=(224,1,1) block=(256,1,1) lds=25600")
                    out.append("; @launch kernel=t3_kernel grid=(64,1,1) block=(256,1,1) lds=32768")
            break
        out.append(ln)
    out.append('.amdgcn_target "amdgcn-amd-amdhsa--gfx950"')
    out.append(".text")
    gen_k1(); gen_k2()
    if OPT('TF'): gen_tf()
    elif OPT('T4', 1):
        if not OPT('K2T1', 1): gen_t1()
        gen_t4()
    else: gen_t1(); gen_t2(); gen_t3()
    out += L
    out.append('.section .rodata,"a"')
    out += KD
    dst = sys.argv[1] if len(sys.argv) > 1 else "cdna_kernels/" + NAME + ".s"
    open(dst, "w").write("\n".join(out) + "\n")

main()
```

```python
import sys, os
OPT = lambda k, d=0: int(os.environ.get(k, d))

NAME = "sequential_preLN__spectral_fnet__moe_arch_mod__prompt"
L = []
def e(s=""):
    L.append(s)
def lab(s):
    L.append(s + ":")

KA_X, KA_WSRE, KA_WSIM, KA_WDRE, KA_WDIM = 0, 8, 16, 24, 32
KA_WR, KA_WG, KA_WU, KA_WDN, KA_OUT, KA_DBG, KA_WS = 48, 56, 64, 72, 80, 88, 96
WS_YB = 0
WS_Y = 4 << 20
WS_KEY = 8 << 20
WS_STAT = (8 << 20) + 8192
WS_GU = (8 << 20) + 65536
WS_IDX = (8 << 20) + 131072
WS_FLAG = (8 << 20) + 196608
WS_FA = WS_FLAG + 4096
WS_REC = (9 << 20)
WS_SEL = (9 << 20) + 65536
WS_WDB = 10 << 20
WS_SIZE = 268435456

KIDX = [0]
NV = {"k1_kernel": 160, "k2_kernel": 160, "t1_kernel": 148, "t2_kernel": 192, "t3_kernel": 192, "tf_kernel": 184, "t4_kernel": 252, "f_kernel": 164}
FUSE = OPT("FUSE", 1)
K2_NS = OPT("K2_NS", 6)
MEGA = OPT("MEGA", 1) and FUSE
CUR = [0]
def kernel_begin(name):
    CUR[0] = NV[name]
    e(f".globl {name}")
    e(".p2align 8")
    e(f".type {name},@function")
    lab(name)
    if OPT('DIAG'):
        e("  s_memrealtime s[72:73]")
        for i in range(1, 7):
            e(f"  s_mov_b64 s[{72+2*i}:{73+2*i}], 0")
        e(f"  s_load_dwordx2 s[94:95], s[0:1], {KA_WS}")
        e(f"  v_mov_b32 v{CUR[0]}, v0")

HS = [0]
def hstamp(k, wg=0):
    if not OPT('HSTAMP'): return
    HS[0] += 1
    e(f"  s_cmp_lg_u32 s2, {wg}")
    e(f"  s_cbranch_scc1 hs_{HS[0]}")
    e("  s_cmp_lg_u32 s15, 0")
    e(f"  s_cbranch_scc1 hs_{HS[0]}")
    e("  s_memrealtime s[72:73]")
    e("  s_waitcnt lgkmcnt(0)")
    e("  v_mov_b32 v162, s72")
    e(f"  v_mov_b32 v163, {4*k}")
    e("  s_mov_b64 s[74:75], exec")
    e("  s_mov_b64 exec, 1")
    e("  buffer_store_dword v162, v163, s[96:99], 0 offen")
    e("  s_mov_b64 exec, s[74:75]")
    lab(f"hs_{HS[0]}")

def stamp(i):
    if OPT('DIAG'):
        e(f"  s_memrealtime s[{72+2*i}:{73+2*i}]")
    if OPT('HSTAMP') and CUR[0] == 164: hstamp(i)

def kernel_end():
    if OPT('DIAG'):
        e("  s_waitcnt vmcnt(0) lgkmcnt(0)")
        e("  s_memrealtime s[86:87]")
        e("  s_mov_b32 s88, s94")
        e("  s_mov_b32 s89, s95")
        e("  s_mov_b32 s90, 0x4000000")
        e("  s_mov_b32 s91, 0x00020000")
        e("  s_waitcnt lgkmcnt(0)")
        e("  s_mov_b64 exec, 1")
        for i in range(16):
            e(f"  v_mov_b32 v{i}, s{72+i}")
        e(f"  v_lshrrev_b32 v{CUR[0]+1}, 6, v{CUR[0]}")
        e(f"  v_lshlrev_b32 v{CUR[0]+1}, 6, v{CUR[0]+1}")
        e("  s_lshl_b32 s92, s2, 10")
        e(f"  s_add_u32 s92, s92, {(16 << 20) + KIDX[0] * 0x100000}")
        for i in range(4):
            e(f"  buffer_store_dwordx4 v[{4*i}:{3+4*i}], v{CUR[0]+1}, s[88:91], s92 offen offset:{16*i}")
    KIDX[0] += 1

KD = []
def kernel_desc(name, vgpr, sgpr=102):
    assert vgpr == CUR[0]
    if OPT('DIAG'): vgpr += 2
    acc = (vgpr + 3) // 4 * 4
    KD.append(f""".p2align 6
.amdhsa_kernel {name}
  .amdhsa_next_free_vgpr {vgpr}
  .amdhsa_next_free_sgpr {sgpr}
  .amdhsa_accum_offset {acc}
  .amdhsa_group_segment_fixed_size 0
  .amdhsa_kernarg_size 104
  .amdhsa_user_sgpr_count 2
  .amdhsa_user_sgpr_kernarg_segment_ptr 1
  .amdhsa_system_sgpr_workgroup_id_x 1
.end_amdhsa_kernel""")

def srd(d, lo, hi, size):
    e(f"  s_mov_b32 s{d}, s{lo}")
    e(f"  s_mov_b32 s{d+1}, s{hi}")
    e(f"  s_mov_b32 s{d+2}, {size}")
    e(f"  s_mov_b32 s{d+3}, 0x00020000")

def vr(a, n):
    return f"v[{a}:{a+n-1}]"

def reduce8(v):
    e("  s_nop 1")
    e(f"  v_add_f32_dpp v{v}, v{v}, v{v} quad_perm:[1,0,3,2] row_mask:0xf bank_mask:0xf")
    e("  s_nop 1")
    e(f"  v_add_f32_dpp v{v}, v{v}, v{v} quad_perm:[2,3,0,1] row_mask:0xf bank_mask:0xf")
    e("  s_nop 1")
    e(f"  v_add_f32_dpp v{v}, v{v}, v{v} row_half_mirror row_mask:0xf bank_mask:0xf")

def reduce16(v):
    reduce8(v)
    e("  s_nop 1")
    e(f"  v_add_f32_dpp v{v}, v{v}, v{v} row_mirror row_mask:0xf bank_mask:0xf")

def helper_wave():
    srd(36, 34, 35, 1792*512*2)
    srd(40, 6, 7, 12 << 20)
    e("  v_lshlrev_b32 v2, 4, v0")
    e("  s_mul_i32 s44, s2, 7168")
    for q in range(7):
        e(f"  buffer_load_dwordx4 {vr(8+4*q,4)}, v2, s[36:39], s44 offen")
        e("  s_add_u32 s44, s44, 1024")
    e("  s_cmp_ge_u32 s2, 28")
    e("  s_cbranch_scc1 k2_nomark")
    for q in range(4):
        e(f"  v_mov_b32 v{4+q}, -1")
    e("  s_lshl_b32 s44, s2, 10")
    e(f"  s_add_u32 s44, s44, {WS_GU}")
    e("  buffer_store_dwordx4 v[4:7], v2, s[40:43], s44 offen" + (" sc1" if MEGA else ""))
    lab("k2_nomark")
    e("  v_mul_u32_u24 v3, 28672, v0")
    e("  s_mul_i32 s44, s2, 112")
    e(f"  s_add_u32 s44, s44, {WS_WDB}")
    e("  s_waitcnt vmcnt(0)")
    for q in range(7):
        e(f"  buffer_store_dwordx4 {vr(8+4*q,4)}, v3, s[40:43], s44 offen offset:{16*q}" + (" sc1" if MEGA else ""))
    if MEGA: e("  s_waitcnt vmcnt(0)")
    e("  s_branch k2_done")

def get_epoch(tag):
    e("  v_mov_b32 v158, 0")
    e("  s_mov_b32 s69, 0")
    lab(f"ep_{tag}")
    e("  buffer_load_dword v159, v158, s[96:99], 0 offen sc1")
    e("  s_waitcnt vmcnt(0)")
    e("  v_readfirstlane_b32 s68, v159")
    e("  s_add_u32 s69, s69, 1")
    e(f"  s_cmp_gt_u32 s69, {1 << 22}")
    e(f"  s_cbranch_scc1 ep_{tag}_ok")
    e("  s_cmp_eq_u32 s68, 0")
    e(f"  s_cbranch_scc1 ep_{tag}")
    lab(f"ep_{tag}_ok")

def gen_k1():
    name = "f_kernel" if FUSE else "k1_kernel"
    kernel_begin(name)
    e("  s_cmp_ge_u32 s2, 256")
    e(f"  s_cbranch_scc1 {'k2_done' if FUSE else 'k1_done'}")
    e(f"  s_load_dwordx2 s[4:5], s[0:1], {KA_X}")
    e(f"  s_load_dwordx4 s[8:11], s[0:1], {KA_WDRE}")
    e(f"  s_load_dwordx2 s[6:7], s[0:1], {KA_WS}")
    if FUSE:
        e(f"  s_load_dwordx4 s[52:55], s[0:1], {KA_WSRE}")
        e(f"  s_load_dwordx2 s[66:67], s[0:1], {KA_DBG}")
        e(f"  s_load_dwordx2 s[34:35], s[0:1], {KA_WDN}")
    e("  s_and_b32 s12, s2, 7")
    e("  s_lshr_b32 s13, s2, 3")
    e("  s_and_b32 s14, s13, 3")
    e("  s_lshl_b32 s12, s12, 2")
    e("  s_add_u32 s12, s12, s14")
    e("  s_lshr_b32 s13, s13, 2")
    e("  v_lshrrev_b32 v1, 6, v0")
    e("  v_and_b32 v0, 63, v0")
    e("  v_readfirstlane_b32 s15, v1")
    e("  v_lshrrev_b32 v2, 3, v0")
    e("  v_and_b32 v3, 7, v0")
    if OPT('K1_PF', 0) or OPT('K1_PFEND', 0):
        e(f"  s_load_dwordx4 s[40:43], s[0:1], {KA_WSRE}")
    e("  s_waitcnt lgkmcnt(0)")
    if OPT('K1_PF', 0):
        e("  s_cmp_lg_u32 s15, 8")
        e("  s_cbranch_scc1 k1_main")
        e("  s_and_b32 s44, s2, 7")
        e("  s_cmp_lt_u32 s44, 4")
        e("  s_cselect_b32 s48, s40, s42")
        e("  s_cselect_b32 s49, s41, s43")
        e(f"  s_mov_b32 s50, {2048*2048*2}")
        e("  s_mov_b32 s51, 0x00020000")
        e("  s_and_b32 s44, s44, 3")
        e("  s_lshl_b32 s44, s44, 21")
        e("  s_lshr_b32 s45, s2, 3")
        e("  s_lshl_b32 s45, s45, 16")
        e("  s_add_u32 s44, s44, s45")
        e("  v_lshlrev_b32 v1, 4, v0")
        e("  s_cmp_lt_u32 s13, 4")
        e("  s_cselect_b32 s56, s8, s10")
        e("  s_cselect_b32 s57, s9, s11")
        e(f"  s_mov_b32 s58, {512*512*2}")
        e("  s_mov_b32 s59, 0x00020000")
        e("  s_and_b32 s46, s13, 3")
        e("  s_lshl_b32 s46, s46, 17")
        for q in range(OPT('K1_CAN', 0)):
            e(f"  buffer_load_dwordx4 v[8:11], v1, s[56:59], s46 offen offset:{q*1024}")
            e("  s_waitcnt vmcnt(0)")
        for q in range(64):
            e(f"  buffer_load_dwordx4 {vr(8+4*(q%32),4)}, v1, s[48:51], s44 offen")
            e("  s_add_u32 s44, s44, 1024")
        e("  s_branch k1_done")
        lab("k1_main")
    if FUSE:
        srd(96, 66, 67, 256)
        e("  s_cmp_lg_u32 s15, 8")
        e("  s_cbranch_scc1 f_main")
        e("  s_cmp_lg_u32 s2, 0")
        e("  s_cbranch_scc1 f_noepoch")
        e("  s_memrealtime s[40:41]")
        e("  s_waitcnt lgkmcnt(0)")
        e("  s_or_b32 s40, s40, 1")
        e("  v_mov_b32 v4, s40")
        e("  v_mov_b32 v5, 0")
        e("  s_mov_b64 s[42:43], exec")
        e("  s_mov_b64 exec, 1")
        e("  buffer_store_dword v4, v5, s[96:99], 0 offen sc1")
        e("  s_mov_b64 exec, s[42:43]")
        lab("f_noepoch")
        if OPT('F_PF', 0):
            e(f"  s_load_dwordx4 s[40:43], s[0:1], {KA_WSRE}")
            e("  s_and_b32 s44, s2, 7")
            e("  s_waitcnt lgkmcnt(0)")
            e("  s_cmp_lt_u32 s44, 4")
            e("  s_cselect_b32 s48, s40, s42")
            e("  s_cselect_b32 s49, s41, s43")
            e(f"  s_mov_b32 s50, {2048*2048*2}")
            e("  s_mov_b32 s51, 0x00020000")
            e("  s_and_b32 s44, s44, 3")
            e("  s_lshl_b32 s44, s44, 21")
            e("  s_lshr_b32 s45, s2, 3")
            e("  s_lshl_b32 s45, s45, 16")
            e("  s_add_u32 s44, s44, s45")
            e("  v_lshlrev_b32 v1, 4, v0")
            for q in range(64):
                e(f"  buffer_load_dwordx4 {vr(40+4*(q%24),4)}, v1, s[48:51], s44 offen")
                e("  s_add_u32 s44, s44, 1024")
        helper_wave()
        lab("f_main")
        hstamp(7)
    srd(16, 4, 5, 2048*512*2)
    e("  s_cmp_lt_u32 s13, 4")
    e("  s_cselect_b32 s20, s8, s10")
    e("  s_cselect_b32 s21, s9, s11")
    e(f"  s_mov_b32 s22, {512*512*2}")
    e("  s_mov_b32 s23, 0x00020000")
    srd(24, 6, 7, 9 << 20)
    if not FUSE:
        e("  s_or_b32 s46, s2, s15")
        e("  s_cmp_lg_u32 s46, 0")
        e("  s_cbranch_scc1 k1_nozero")
        for q in range(4):
            e(f"  v_mov_b32 v{4+q}, 0")
        e("  v_lshlrev_b32 v8, 4, v0")
        e(f"  s_mov_b32 s46, {WS_FLAG}")
        e("  buffer_store_dwordx4 v[4:7], v8, s[24:27], s46 offen")
        lab("k1_nozero")
    e("  s_lshl_b32 s28, s12, 6")
    e("  s_lshl_b32 s29, s15, 3")
    e("  s_add_u32 s28, s28, s29")
    e("  v_add_u32 v4, s28, v2")
    e("  v_lshlrev_b32 v4, 10, v4")
    e("  v_lshl_add_u32 v4, v3, 4, v4")
    X = 32
    for j in range(8):
        e(f"  buffer_load_dwordx4 {vr(X+4*j,4)}, v4, s[16:19], 0 offen offset:{128*j}")
    e("  s_and_b32 s30, s13, 3")
    e("  s_lshl_b32 s30, s30, 7")
    for ii in range(2):
        e(f"  s_lshl_b32 s31, s15, 4")
        e(f"  s_add_u32 s31, s31, {8*ii}")
        e(f"  v_add_u32 v7, s31, v2")
        e(f"  v_lshrrev_b32 v8, 1, v7")
        e(f"  v_and_b32 v8, 7, v8")
        e(f"  v_xor_b32 v8, v8, v3")
        e(f"  v_add_u32 v7, s30, v7")
        e(f"  v_lshlrev_b32 v7, 10, v7")
        e(f"  v_lshl_add_u32 v{5+ii}, v8, 4, v7")
    e("  s_lshl_b32 s32, s15, 11")
    def wdma(kb):
        slot = kb % 4
        e(f"  s_mov_b32 s33, {128*kb}")
        for ii in range(2):
            e(f"  s_add_u32 m0, s32, {slot*16384 + ii*1024}")
            e("  s_nop 0")
            e(f"  buffer_load_dwordx4 v{5+ii}, s[20:23], s33 offen lds")
    for kb in range(4):
        wdma(kb)
    PFM = OPT('F_PFM', 0)
    STG = 128
    if PFM:
        for kb in range(4, 8):
            e(f"  s_mov_b32 s33, {128*kb}")
            for ii in range(2):
                e(f"  buffer_load_dwordx4 {vr(STG+8*(kb-4)+4*ii,4)}, v{5+ii}, s[20:23], s33 offen")
        e("  s_and_b32 s44, s2, 7")
        e("  s_cmp_lt_u32 s44, 4")
        e("  s_cselect_b32 s48, s52, s54")
        e("  s_cselect_b32 s49, s53, s55")
        e(f"  s_mov_b32 s50, {2048*2048*2}")
        e("  s_mov_b32 s51, 0x00020000")
        e("  s_and_b32 s44, s44, 3")
        e("  s_lshl_b32 s44, s44, 21")
        e("  s_lshr_b32 s45, s2, 3")
        e("  s_lshl_b32 s45, s45, 16")
        e("  s_add_u32 s44, s44, s45")
        e("  s_lshl_b32 s45, s15, 13")
        e("  s_add_u32 s44, s44, s45")
        e("  v_lshlrev_b32 v7, 4, v0")
        for q in range(8):
            e(f"  buffer_load_dwordx4 v[160:163], v7, s[48:51], s44 offen")
            e("  s_add_u32 s44, s44, 1024")
    e("  s_mov_b32 s34, 0x3f803f80")
    for a in range(4):
        e(f"  v_mov_b32 v{8+a}, 0")
    e(f"  s_waitcnt vmcnt({24 if PFM else 8})")
    for i in range(32):
        e(f"  v_dot2_f32_bf16 v{8+i%4}, v{X+i}, s34, v{8+i%4}")
    e("  s_nop 3")
    e("  v_add_f32 v8, v8, v9")
    e("  v_add_f32 v10, v10, v11")
    e("  v_add_f32 v8, v8, v10")
    reduce8(8)
    e("  v_mul_f32 v8, 0x3b000000, v8")
    e("  v_cvt_pk_bf16_f32 v9, v8, v8")
    e("  v_lshlrev_b32 v9, 16, v9")
    e("  v_sub_f32 v10, 0, v9")
    e("  v_mov_b32 v11, v10")
    D = 64
    for a in range(4):
        e(f"  v_mov_b32 v{12+a}, 0")
    for i in range(32):
        e(f"  v_lshlrev_b32 v{D+2*i}, 16, v{X+i}")
        e(f"  v_and_b32 v{D+2*i+1}, 0xffff0000, v{X+i}")
        e(f"  v_pk_add_f32 {vr(D+2*i,2)}, {vr(D+2*i,2)}, v[10:11]")
        q = 12 + 2*(i % 2)
        e(f"  v_pk_fma_f32 {vr(q,2)}, {vr(D+2*i,2)}, {vr(D+2*i,2)}, {vr(q,2)}")
    e("  v_add_f32 v12, v12, v13")
    e("  v_add_f32 v14, v14, v15")
    e("  v_add_f32 v12, v12, v14")
    reduce8(12)
    e("  v_sub_f32 v13, v8, v9")
    e("  v_mul_f32 v13, v13, v13")
    e("  v_mul_f32 v12, 0x3b000000, v12")
    e("  v_sub_f32 v12, v12, v13")
    e("  v_max_f32 v12, 0, v12")
    e("  v_cvt_pk_bf16_f32 v12, v12, v12")
    e("  v_lshlrev_b32 v12, 16, v12")
    e("  v_add_f32 v12, 0x3727c5ac, v12")
    e("  v_cvt_pk_bf16_f32 v12, v12, v12")
    e("  v_lshlrev_b32 v12, 16, v12")
    e("  v_sqrt_f32 v12, v12")
    e("  s_nop 0")
    e("  v_cvt_pk_bf16_f32 v12, v12, v12")
    e("  v_lshlrev_b32 v12, 16, v12")
    e("  v_rcp_f32 v12, v12")
    e("  s_nop 0")
    e("  v_mov_b32 v13, v12")
    for i in range(32):
        e(f"  v_cvt_pk_bf16_f32 v{X+i}, v{D+2*i}, v{D+2*i+1}")
        e(f"  v_lshlrev_b32 v{D+2*i}, 16, v{X+i}")
        e(f"  v_and_b32 v{D+2*i+1}, 0xffff0000, v{X+i}")
        e(f"  v_pk_mul_f32 {vr(D+2*i,2)}, {vr(D+2*i,2)}, v[12:13]")
        e(f"  v_cvt_pk_bf16_f32 v{X+i}, v{D+2*i}, v{D+2*i+1}")
    e("  v_add_u32 v14, s29, v2")
    e("  v_lshrrev_b32 v15, 1, v14")
    e("  v_and_b32 v15, 7, v15")
    e("  v_xor_b32 v15, v15, v3")
    e("  v_lshlrev_b32 v14, 7, v14")
    e("  v_lshl_add_u32 v14, v15, 4, v14")
    e("  v_add_u32 v14, 0x10000, v14")
    for j in range(8):
        e(f"  ds_write_b128 v14, {vr(X+4*j,4)} offset:{8192*j}")
    e("  s_and_b32 s35, s15, 1")
    e("  s_lshr_b32 s36, s15, 1")
    e("  v_and_b32 v16, 31, v0")
    e("  v_lshrrev_b32 v17, 5, v0")
    def fragaddr(dst, sblk, base):
        e(f"  s_lshl_b32 s37, s{sblk}, 5")
        e(f"  v_add_u32 v18, s37, v16")
        e(f"  v_lshrrev_b32 v19, 1, v18")
        e(f"  v_and_b32 v19, 7, v19")
        e(f"  v_xor_b32 v19, v19, v17")
        e(f"  v_lshlrev_b32 v18, 7, v18")
        e(f"  v_lshl_add_u32 v{dst}, v19, 4, v18")
        if base:
            e(f"  v_add_u32 v{dst}, {base}, v{dst}")
        for kk in range(1, 4):
            e(f"  v_xor_b32 v{dst+kk}, {32*kk}, v{dst}")
    fragaddr(20, 35, 0x10000)
    fragaddr(24, 36, 0)
    ACC = 96
    for i in range(16):
        e(f"  v_mov_b32 v{ACC+i}, 0")
    FA, FB = 64, 80
    waits = [22, 14, 12, 10, 8, 8, 8, 8] if PFM else [6, 4, 4, 4, 4, 4, 2, 0]
    if PFM:
        e("  v_lshlrev_b32 v28, 4, v0")
        e("  v_add_u32 v28, s32, v28")
    for kb in range(8):
        e(f"  s_waitcnt vmcnt({waits[kb]}) lgkmcnt(0)")
        e("  s_barrier")
        if 1 <= kb <= 4 and PFM:
            for ii in range(2):
                e(f"  ds_write_b128 v28, {vr(STG+8*(kb-1)+4*ii,4)} offset:{((kb+3)%4)*16384 + ii*1024}")
        elif 1 <= kb <= 4:
            wdma(kb + 3)
        slot = kb % 4
        for kk in range(4):
            e(f"  ds_read_b128 {vr(FA+4*kk,4)}, v{20+kk} offset:{8192*kb}")
            e(f"  ds_read_b128 {vr(FB+4*kk,4)}, v{24+kk} offset:{16384*slot}")
        for kk in range(4):
            e(f"  s_waitcnt lgkmcnt({6-2*kk})")
            e(f"  v_mfma_f32_32x32x16_bf16 {vr(ACC,16)}, {vr(FA+4*kk,4)}, {vr(FB+4*kk,4)}, {vr(ACC,16)}")
    stamp(5)
    e("  s_lshl_b32 s37, s13, 1")
    e("  s_lshr_b32 s38, s36, 1")
    e("  s_add_u32 s37, s37, s38")
    e("  s_lshl_b32 s37, s37, 5")
    e("  s_add_u32 s37, s37, s12")
    e("  s_lshl_b32 s37, s37, 13")
    e("  s_and_b32 s38, s36, 1")
    e("  s_lshl_b32 s38, s38, 5")
    e("  v_add_u32 v18, s38, v16")
    e("  v_lshrrev_b32 v19, 1, v18")
    e("  v_and_b32 v19, 7, v19")
    e("  s_lshl_b32 s38, s35, 2")
    e("  v_add_u32 v29, s38, v17")
    e("  v_xor_b32 v29, v29, v19")
    e("  v_lshlrev_b32 v18, 7, v18")
    e("  v_lshl_add_u32 v30, v29, 4, v18")
    e("  v_xor_b32 v31, 32, v30")
    e("  s_nop 7")
    P = 112
    for g in range(4):
        e(f"  v_cvt_pk_bf16_f32 v{P+2*g}, v{ACC+4*g}, v{ACC+4*g+1}")
        e(f"  v_cvt_pk_bf16_f32 v{P+2*g+1}, v{ACC+4*g+2}, v{ACC+4*g+3}")
    e("  s_nop 1")
    for p in range(2):
        e(f"  v_permlane32_swap_b32 v{P+4*p}, v{P+4*p+2}")
        e(f"  v_permlane32_swap_b32 v{P+4*p+1}, v{P+4*p+3}")
    if not FUSE:
        e(f"  buffer_store_dwordx4 {vr(P,4)}, v30, s[24:27], s37 offen")
        e(f"  buffer_store_dwordx4 {vr(P+4,4)}, v31, s[24:27], s37 offen")
        lab("k1_done")
        kernel_end()
        e("  s_endpgm")
        kernel_desc(name, 160)
        return
    TR = 131072
    e(f"  s_load_dwordx4 s[8:11], s[0:1], {KA_WSRE}")
    e("  s_lshr_b32 s38, s36, 1")
    e("  s_lshl_b32 s38, s38, 13")
    e(f"  s_add_u32 s38, s38, {TR}")
    e("  v_add_u32 v30, s38, v30")
    e("  v_add_u32 v31, s38, v31")
    e(f"  ds_write_b128 v30, {vr(P,4)}")
    e(f"  ds_write_b128 v31, {vr(P+4,4)}")
    e("  v_lshlrev_b32 v29, 4, v0")
    e("  s_lshl_b32 s38, s15, 11")
    e(f"  s_add_u32 s39, s38, {TR}")
    e("  v_add_u32 v28, s39, v29")
    e("  s_waitcnt lgkmcnt(0)")
    e("  s_barrier")
    e("  ds_read_b128 v[64:67], v28")
    e("  ds_read_b128 v[68:71], v28 offset:1024")
    e("  s_lshl_b32 s37, s13, 1")
    e("  s_lshr_b32 s39, s15, 2")
    e("  s_add_u32 s37, s37, s39")
    e("  s_lshl_b32 s37, s37, 5")
    e("  s_add_u32 s37, s37, s12")
    e("  s_lshl_b32 s37, s37, 13")
    e("  s_and_b32 s39, s15, 3")
    e("  s_lshl_b32 s39, s39, 11")
    e("  s_add_u32 s37, s37, s39")
    e("  s_waitcnt lgkmcnt(1)")
    e("  buffer_store_dwordx4 v[64:67], v29, s[24:27], s37 offen sc1")
    e("  s_waitcnt lgkmcnt(0)")
    e("  buffer_store_dwordx4 v[68:71], v29, s[24:27], s37 offen offset:1024 sc1")
    e("  s_lshl_b32 s70, s13, 5")
    e("  s_add_u32 s70, s70, s12")
    e("  s_lshl_b32 s70, s70, 2")
    e(f"  s_add_u32 s70, s70, {WS_FA}")

def k2_epilogue_plain(ACC):
    e("  s_lshl_b32 s24, s14, 21")
    e(f"  s_add_u32 s24, s24, {WS_Y}")
    e("  s_lshl_b32 s30, s13, 7")
    e("  s_add_u32 s24, s24, s30")
    e("  s_lshl_b32 s30, s12, 7")
    e("  s_lshl_b32 s31, s15, 5")
    e("  s_add_u32 s30, s30, s31")
    e("  v_add_u32 v18, s30, v16")
    e("  v_lshlrev_b32 v18, 10, v18")
    e("  v_lshl_add_u32 v18, v17, 4, v18")
    e("  s_nop 7")
    P = 64
    for g in range(8):
        e(f"  v_cvt_pk_bf16_f32 v{P+2*g}, v{ACC+4*g}, v{ACC+4*g+1}")
        e(f"  v_cvt_pk_bf16_f32 v{P+2*g+1}, v{ACC+4*g+2}, v{ACC+4*g+3}")
    e("  s_nop 1")
    for p in range(4):
        e(f"  v_permlane32_swap_b32 v{P+4*p}, v{P+4*p+2}")
        e(f"  v_permlane32_swap_b32 v{P+4*p+1}, v{P+4*p+3}")
    for p in range(4):
        e(f"  buffer_store_dwordx4 {vr(P+4*p,4)}, v18, s[20:23], s24 offen offset:{32*p}")

ROW_O = 48
def reduce32(v, t):
    reduce16(v)
    e("  s_nop 1")
    e(f"  ds_swizzle_b32 v{t}, v{v} offset:0x401F")
    e("  s_waitcnt lgkmcnt(0)")
    e(f"  v_add_f32 v{v}, v{v}, v{t}")

def rowmac32_pre():
    XX, WR = 48, 64
    e("  v_lshlrev_b32 v3, 10, v1")
    e("  v_lshl_add_u32 v3, v2, 4, v3")
    e("  v_lshlrev_b32 v4, 4, v2")
    for j in range(2):
        e(f"  buffer_load_dwordx4 {vr(XX+4*j,4)}, v3, s[20:23], 0 offen offset:{512*j}")
        e(f"  buffer_load_dwordx4 {vr(WR+4*j,4)}, v4, s[28:31], 0 offen offset:{512*j}")

def rowmac32():
    YR, YI, XX, WR, H, T, D = 16, 32, 48, 64, 80, 112, 116
    O = ROW_O
    e(f"  s_mov_b32 s52, {WS_Y}")
    e(f"  s_mov_b32 s53, {WS_Y + (2<<20)}")
    for j in range(2):
        e(f"  buffer_load_dwordx4 {vr(YR+4*j,4)}, v3, s[24:27], s52 offen offset:{512*j} sc1")
        e(f"  buffer_load_dwordx4 {vr(YI+4*j,4)}, v3, s[24:27], s53 offen offset:{512*j} sc1")
    e("  v_mov_b32 v14, 0")
    e("  v_mov_b32 v15, 0")
    for j in range(2):
        e(f"  s_waitcnt vmcnt({2*(1-j)})")
        for q in range(4):
            i = 4*j + q
            e(f"  v_lshlrev_b32 v{T}, 16, v{YR+i}")
            e(f"  v_and_b32 v{T+1}, 0xffff0000, v{YR+i}")
            e(f"  v_lshlrev_b32 v{T+2}, 16, v{YI+i}")
            e(f"  v_and_b32 v{T+3}, 0xffff0000, v{YI+i}")
            e(f"  v_pk_add_f32 {vr(T,2)}, {vr(T,2)}, {vr(T+2,2)} neg_lo:[0,1] neg_hi:[0,1]")
            e(f"  v_cvt_pk_bf16_f32 v{T}, v{T}, v{T+1}")
            e(f"  v_and_b32 v{T+1}, 0xffff0000, v{T}")
            e(f"  v_lshlrev_b32 v{T}, 16, v{T}")
            e(f"  v_lshlrev_b32 v{T+2}, 16, v{XX+i}")
            e(f"  v_and_b32 v{T+3}, 0xffff0000, v{XX+i}")
            e(f"  v_pk_add_f32 {vr(T,2)}, {vr(T,2)}, {vr(T+2,2)}")
            e(f"  v_cvt_pk_bf16_f32 v{T}, v{T}, v{T+1}")
            e(f"  v_lshlrev_b32 v{H+2*i}, 16, v{T}")
            e(f"  v_and_b32 v{H+2*i+1}, 0xffff0000, v{T}")
            e(f"  v_pk_add_f32 v[14:15], v[14:15], {vr(H+2*i,2)}")
    e("  v_add_f32 v5, v14, v15")
    reduce32(5, 13)
    e("  v_mul_f32 v5, 0x3b000000, v5")
    e("  v_cvt_pk_bf16_f32 v6, v5, v5")
    e("  v_lshlrev_b32 v6, 16, v6")
    e("  v_sub_f32 v8, 0, v6")
    e("  v_mov_b32 v9, v8")
    e("  v_mov_b32 v10, 0")
    e("  v_mov_b32 v11, 0")
    for i in range(8):
        e(f"  v_pk_add_f32 {vr(D+2*i,2)}, {vr(H+2*i,2)}, v[8:9]")
        e(f"  v_pk_fma_f32 v[10:11], {vr(D+2*i,2)}, {vr(D+2*i,2)}, v[10:11]")
    e("  v_add_f32 v10, v10, v11")
    reduce32(10, 13)
    e("  v_sub_f32 v11, v5, v6")
    e("  v_mul_f32 v11, v11, v11")
    e("  v_mul_f32 v10, 0x3b000000, v10")
    e("  v_sub_f32 v10, v10, v11")
    e("  v_max_f32 v10, 0, v10")
    e("  v_cvt_pk_bf16_f32 v10, v10, v10")
    e("  v_lshlrev_b32 v10, 16, v10")
    e("  v_add_f32 v10, 0x3727c5ac, v10")
    e("  v_cvt_pk_bf16_f32 v10, v10, v10")
    e("  v_lshlrev_b32 v10, 16, v10")
    e("  v_sqrt_f32 v10, v10")
    e("  s_nop 0")
    e("  v_cvt_pk_bf16_f32 v10, v10, v10")
    e("  v_lshlrev_b32 v10, 16, v10")
    e("  v_rcp_f32 v10, v10")
    e("  s_nop 0")
    e("  v_mov_b32 v11, v10")
    e("  v_mov_b32 v12, 0")
    for i in range(8):
        e(f"  v_cvt_pk_bf16_f32 v{T}, v{D+2*i}, v{D+2*i+1}")
        e(f"  v_lshlrev_b32 v{D+2*i}, 16, v{T}")
        e(f"  v_and_b32 v{D+2*i+1}, 0xffff0000, v{T}")
        e(f"  v_pk_mul_f32 {vr(D+2*i,2)}, {vr(D+2*i,2)}, v[10:11]")
        e(f"  v_cvt_pk_bf16_f32 v{T}, v{D+2*i}, v{D+2*i+1}")
        e(f"  v_dot2_f32_bf16 v12, v{T}, v{WR+i}, v12")
        e(f"  v_lshlrev_b32 v{D+2*i}, 16, v{T}")
        e(f"  v_and_b32 v{D+2*i+1}, 0xffff0000, v{T}")
        e(f"  v_pk_add_f32 {vr(D+2*i,2)}, {vr(D+2*i,2)}, {vr(H+2*i,2)}")
        e(f"  v_cvt_pk_bf16_f32 v{O+i}, v{D+2*i}, v{D+2*i+1}")
    if not MEGA:
        for j in range(2):
            e(f"  buffer_store_dwordx4 {vr(O+4*j,4)}, v3, s[44:47], 0 offen offset:{512*j}")
    e("  s_nop 3")
    reduce32(12, 13)
    e("  v_cvt_pk_bf16_f32 v12, v12, v12")
    e("  v_lshlrev_b32 v12, 16, v12")
    e("  v_ashrrev_i32 v13, 31, v12")
    e("  v_or_b32 v13, 0x80000000, v13")
    e("  v_xor_b32 v12, v12, v13")
    e("  v_and_b32 v12, 0xffff0000, v12")
    e("  v_sub_u32 v13, 0xffff, v1")
    e("  v_or_b32 v12, v12, v13")

MT_C, MT_R, MT_WD = 0, 256, 8704
MT_G, MT_U, MT_XS = 8704, 8704 + 8192, 8704 + 16384
def poll_end(lbl):
    e("  s_nop 3")
    e("  s_cmp_eq_u64 s[54:55], 0")
    e(f"  s_cbranch_scc1 {lbl}_ok")
    e("  s_add_u32 s53, s53, 1")
    e(f"  s_cmp_gt_u32 s53, {1 << 22}")
    e(f"  s_cbranch_scc1 {lbl}_ok")
    e(f"  s_branch {lbl}")
    lab(f"{lbl}_ok")

def mega_gu_dma():
    e("  s_and_b32 s3, s2, 7")
    e("  s_mul_i32 s3, s3, 28")
    e("  s_lshr_b32 s32, s2, 3")
    e("  s_add_u32 s3, s3, s32")
    e("  s_cmp_ge_u32 s2, 224")
    e("  s_cbranch_scc1 mt_nogu")
    srd(16, 58, 59, 512*1792*2)
    srd(8, 60, 61, 512*1792*2)
    e("  s_lshl_b32 s35, s3, 4")
    e("  s_movk_i32 s32, 3584")
    for ii in range(2):
        e(f"  s_lshl_b32 s33, s15, 7")
        e(f"  s_add_u32 s33, s33, {64*ii}")
        e(f"  v_add_u32 v8, s33, v0")
        e(f"  v_mul_lo_u32 v8, v8, s32")
        e(f"  s_lshl_b32 s34, s15, 11")
        e(f"  s_add_u32 m0, s34, {MT_G + 1024*ii}")
        e("  s_nop 0")
        e(f"  buffer_load_dwordx4 v8, s[16:19], s35 offen lds")
        e(f"  s_add_u32 m0, s34, {MT_U + 1024*ii}")
        e("  s_nop 0")
        e(f"  buffer_load_dwordx4 v8, s[8:11], s35 offen lds")
    lab("mt_nogu")

def mega_tail():
    C = MT_C
    for i in range(8):
        e(f"  v_mov_b32 v{152+i}, v{48+i}")
    e("  v_mov_b32 v151, v1")
    e("  v_mov_b32 v150, v3")
    e("  v_lshl_add_u32 v40, s15, 6, v0")
    e("  v_mov_b32 v16, v12")
    e("  v_mov_b32 v17, v6")
    e("  v_mov_b32 v18, v10")
    e("  v_mov_b32 v19, s68")
    e("  v_lshlrev_b32 v13, 4, v1")
    e("  v_cmp_eq_u32 vcc, 0, v2")
    e("  s_and_saveexec_b64 s[50:51], vcc")
    e(f"  s_mov_b32 s52, {WS_REC}")
    e("  buffer_store_dwordx4 v[16:19], v13, s[24:27], s52 offen sc1")
    e("  s_mov_b64 exec, s[50:51]")
    e("  s_cmp_lg_u32 s2, 255")
    e("  s_cbranch_scc1 mt_nosel")
    e("  v_lshlrev_b32 v13, 4, v40")
    e("  s_mov_b32 s53, 0")
    lab("mt_prec")
    for i in range(8):
        e(f"  s_mov_b32 s52, {WS_REC + 4096*i}")
        e(f"  buffer_load_dwordx4 {vr(64+4*i,4)}, v13, s[24:27], s52 offen sc1")
    e("  v_mov_b32 v14, 0")
    for i in range(8):
        e(f"  s_waitcnt vmcnt({7-i})")
        e(f"  v_xor_b32 v15, s68, v{67+4*i}")
        e("  v_or_b32 v14, v14, v15")
    e("  v_cmp_ne_u32 s[54:55], 0, v14")
    poll_end("mt_prec")
    top8([64+4*i for i in range(8)], range(16, 24), C, "s15")
    e("  v_and_b32 v3, 31, v0")
    e("  v_lshlrev_b32 v3, 2, v3")
    e(f"  ds_read_b32 v24, v3 offset:{C}")
    e("  v_mov_b32 v4, 0")
    for q in range(8):
        e(f"  ds_read_b128 {vr(96+4*q,4)}, v4 offset:{C+16*q}")
    e("  v_mov_b32 v25, 0")
    e("  s_waitcnt lgkmcnt(0)")
    sp = [32, 34, 36, 38]
    for i in range(32 + 3):
        if i < 32:
            e(f"  v_cmp_gt_u32 s[{sp[i%4]}:{sp[i%4]+1}], v{96+i}, v24")
        if i >= 3:
            j = i - 3
            e(f"  v_addc_co_u32 v25, vcc, 0, v25, s[{sp[j%4]}:{sp[j%4]+1}]")
    e("  s_cmp_lg_u32 s15, 0")
    e("  s_cbranch_scc1 mt_nosel")
    e("  v_lshlrev_b32 v3, 3, v25")
    e("  v_mov_b32 v26, v24")
    e("  v_mov_b32 v27, s68")
    e("  v_cmp_gt_u32 vcc, 8, v25")
    e("  v_cmp_gt_u32 s[42:43], 32, v0")
    e("  s_and_b64 vcc, vcc, s[42:43]")
    e("  s_and_saveexec_b64 s[50:51], vcc")
    e(f"  s_mov_b32 s52, {WS_SEL}")
    e("  buffer_store_dwordx2 v[26:27], v3, s[24:27], s52 offen sc1")
    e("  s_mov_b64 exec, s[50:51]")
    lab("mt_nosel")
    e("  s_cmp_lg_u32 s15, 0")
    e("  s_cbranch_scc1 mt_selbar")
    e("  v_and_b32 v3, 7, v0")
    e("  v_lshlrev_b32 v4, 3, v3")
    e("  v_lshlrev_b32 v3, 2, v3")
    e(f"  s_mov_b32 s52, {WS_SEL}")
    e("  s_mov_b32 s53, 0")
    lab("mt_psel")
    e("  buffer_load_dwordx2 v[26:27], v4, s[24:27], s52 offen sc1")
    e("  s_waitcnt vmcnt(0)")
    e("  v_cmp_ne_u32 s[54:55], s68, v27")
    poll_end("mt_psel")
    e(f"  ds_write_b32 v3, v26 offset:{C+128}")
    e("  s_waitcnt lgkmcnt(0)")
    lab("mt_selbar")
    e("  s_barrier")
    stamp(5)
    e("  v_mov_b32 v4, 0")
    e(f"  ds_read_b128 v[16:19], v4 offset:{C+128}")
    e(f"  ds_read_b128 v[20:23], v4 offset:{C+144}")
    e("  v_sub_u32 v5, 0xffff, v151")
    e("  s_waitcnt lgkmcnt(0)")
    e("  s_mov_b64 s[42:43], exec")
    for k in range(8):
        e(f"  v_and_b32 v{16+k}, 0xffff, v{16+k}")
        e(f"  v_cmp_ne_u32 vcc, v{16+k}, v5")
        e("  s_and_b64 s[42:43], s[42:43], vcc")
    e("  s_and_saveexec_b64 s[50:51], s[42:43]")
    e("  s_cbranch_execz mt_nostore")
    for j in range(2):
        e(f"  buffer_store_dwordx4 {vr(152+4*j,4)}, v150, s[44:47], 0 offen offset:{512*j}")
    lab("mt_nostore")
    e("  s_mov_b64 exec, s[50:51]")
    e("  s_cmp_ge_u32 s2, 240")
    e("  s_cbranch_scc1 k2_done")
    e("  s_cmp_ge_u32 s2, 224")
    e("  s_cbranch_scc1 mt_f2")
    e("  v_lshrrev_b32 v4, 5, v40")
    e("  v_and_b32 v5, 31, v40")
    e("  v_lshlrev_b32 v3, 2, v4")
    e(f"  ds_read_b32 v6, v3 offset:{C+128}")
    e("  s_waitcnt lgkmcnt(0)")
    e("  v_and_b32 v6, 0xffff, v6")
    e("  v_sub_u32 v6, 0xffff, v6")
    e("  v_lshlrev_b32 v7, 10, v6")
    e("  v_lshl_add_u32 v7, v5, 4, v7")
    e(f"  s_mov_b32 s52, {WS_Y}")
    e(f"  s_mov_b32 s53, {WS_Y + (2<<20)}")
    YR, YI, XX = 16, 24, 32
    for j in range(2):
        e(f"  buffer_load_dwordx4 {vr(YR+4*j,4)}, v7, s[24:27], s52 offen offset:{512*j} sc1")
        e(f"  buffer_load_dwordx4 {vr(YI+4*j,4)}, v7, s[24:27], s53 offen offset:{512*j} sc1")
        e(f"  buffer_load_dwordx4 {vr(XX+4*j,4)}, v7, s[20:23], 0 offen offset:{512*j}")
    e("  v_lshlrev_b32 v3, 4, v6")
    e(f"  s_mov_b32 s52, {WS_REC}")
    e("  buffer_load_dwordx4 v[44:47], v3, s[24:27], s52 offen sc1")
    e("  s_waitcnt vmcnt(0)")
    e("  v_sub_f32 v54, 0, v45")
    e("  v_mov_b32 v55, v54")
    e("  v_mov_b32 v52, v46")
    e("  v_mov_b32 v53, v46")
    recompute(YR, YI, XX, 8, 54, 52, 64, 80, 56)
    e(f"  v_mul_u32_u24 v3, {XS_STRIDE}, v4")
    e("  v_lshl_add_u32 v3, v5, 4, v3")
    e(f"  ds_write_b128 v3, v[80:83] offset:{MT_XS}")
    e(f"  ds_write_b128 v3, v[84:87] offset:{MT_XS+512}")
    e("  s_waitcnt lgkmcnt(0)")
    e("  s_barrier")
    e("  s_cmp_lg_u32 s15, 0")
    e("  s_cbranch_scc1 k2_done")
    e("  v_and_b32 v3, 7, v0")
    e(f"  v_mul_u32_u24 v3, {XS_STRIDE}, v3")
    e("  v_lshrrev_b32 v4, 4, v0")
    e("  v_lshl_add_u32 v3, v4, 4, v3")
    e("  v_and_b32 v5, 15, v0")
    e("  v_lshrrev_b32 v5, 2, v5")
    e("  v_lshl_add_u32 v5, v4, 3, v5")
    e("  v_lshlrev_b32 v5, 4, v5")
    e("  v_and_b32 v6, 1, v0")
    e("  v_lshl_add_u32 v5, v6, 3, v5")
    e("  v_and_b32 v6, 2, v0")
    e("  v_lshl_add_u32 v5, v6, 12, v5")
    for i in range(4):
        e(f"  v_mov_b32 v{8+i}, 0")
    FA, FB = 16, 80
    for st in range(16):
        e(f"  ds_read_b128 {vr(FA+4*st,4)}, v3 offset:{MT_XS + 64*st}")
        e(f"  ds_read_b64_tr_b16 {vr(FB+4*st,2)}, v5 offset:{MT_G+512*st}")
        e(f"  ds_read_b64_tr_b16 {vr(FB+4*st+2,2)}, v5 offset:{MT_G+512*st+64}")
        if st % 4 == 3:
            e("  s_waitcnt lgkmcnt(0)")
            for s2 in range(st-3, st+1):
                e(f"  v_mfma_f32_16x16x32_bf16 v[8:11], {vr(FA+4*s2,4)}, {vr(FB+4*s2,4)}, v[8:11]")
    e("  s_nop 15")
    for i in range(4):
        e(f"  v_cvt_pk_bf16_f32 v{8+i}, v{8+i}, v{8+i}")
        e(f"  v_lshlrev_b32 v{8+i}, 16, v{8+i}")
    e("  s_nop 1")
    for i in range(4):
        e(f"  v_mov_b32_dpp v{12+i}, v{8+i} row_ror:8 row_mask:0xf bank_mask:0xf")
    for i in range(4):
        e(f"  v_mul_f32 v16, 0xbfb8aa3b, v{8+i}")
        e("  v_exp_f32 v16, v16")
        e("  s_nop 0")
        e("  v_add_f32 v16, 1.0, v16")
        e("  v_rcp_f32 v16, v16")
        e("  s_nop 0")
        e(f"  v_mul_f32 v16, v{8+i}, v16")
        e("  v_cvt_pk_bf16_f32 v16, v16, v16")
        e("  v_lshlrev_b32 v16, 16, v16")
        e(f"  v_mul_f32 v16, v16, v{12+i}")
        e(f"  v_cvt_pk_bf16_f32 v{20+i}, v16, v16")
    e("  s_nop 1")
    for i in range(4):
        e(f"  v_mov_b32_dpp v{24+i}, v{20+i} quad_perm:[1,0,3,2] row_mask:0xf bank_mask:0xf")
    for i in range(4):
        e(f"  v_and_b32 v{20+i}, 0xffff, v{20+i}")
        e(f"  v_and_b32 v{24+i}, 0xffff0000, v{24+i}")
        e(f"  v_or_b32 v{20+i}, v{20+i}, v{24+i}")
        e(f"  v_min_u32 v{20+i}, 0xfffeffff, v{20+i}")
    e("  v_and_b32 v5, 15, v0")
    e("  v_lshlrev_b32 v4, 6, v4")
    e("  v_lshl_add_u32 v4, v5, 1, v4")
    e("  v_lshlrev_b32 v7, 4, v0")
    e("  v_and_b32 v6, 9, v0")
    e("  v_cmp_eq_u32 vcc, 0, v6")
    e("  v_cmp_gt_u32 s[42:43], 32, v0")
    e("  s_and_b64 vcc, vcc, s[42:43]")
    e("  s_and_saveexec_b64 s[50:51], vcc")
    for i in range(4):
        e(f"  ds_write_b32 v4, v{20+i} offset:{MT_R+16*i}")
    e("  s_mov_b64 exec, 0xff")
    e("  s_waitcnt lgkmcnt(0)")
    e(f"  ds_read_b128 v[24:27], v7 offset:{MT_R}")
    e("  s_lshl_b32 s35, s3, 7")
    e(f"  s_add_u32 s35, s35, {WS_GU}")
    e("  s_waitcnt lgkmcnt(0)")
    e("  buffer_store_dwordx4 v[24:27], v7, s[24:27], s35 offen sc1")
    e("  s_mov_b64 exec, -1")
    hstamp(8)
    e("  s_branch k2_done")
    lab("mt_f2")
    e("  s_sub_u32 s49, s2, 224")
    e("  v_lshlrev_b32 v3, 4, v0")
    e("  s_mul_i32 s34, s15, 7168")
    e(f"  s_mul_i32 s33, s49, {4*28672}")
    e("  s_add_u32 s33, s33, s34")
    e(f"  s_add_u32 s33, s33, {WS_WDB}")
    for dsl in range(4):
        for i in range(7):
            e(f"  s_add_u32 m0, s34, {MT_WD + dsl*28672 + 1024*i}")
            e("  s_nop 0")
            e(f"  buffer_load_dwordx4 v3, s[24:27], s33 offen sc1 lds")
            e(f"  s_add_u32 s33, s33, {1024 if i < 6 else 28672 - 6*1024}")
    e("  v_lshrrev_b32 v5, 4, v0")
    e("  v_and_b32 v6, 1, v5")
    e("  v_lshlrev_b32 v6, 4, v6")
    e(f"  ds_read_b128 v[24:27], v6 offset:{C+128}")
    e("  v_and_b32 v6, 15, v0")
    e("  s_lshl_b32 s35, s49, 6")
    e("  s_waitcnt lgkmcnt(0)")
    for i in range(4):
        e(f"  v_and_b32 v{28+i}, 0xffff, v{24+i}")
        e(f"  v_sub_u32 v{28+i}, 0xffff, v{28+i}")
        e(f"  v_lshlrev_b32 v{32+i}, 4, v{28+i}")
        e(f"  v_lshlrev_b32 v{28+i}, 10, v{28+i}")
        e(f"  v_lshl_add_u32 v{28+i}, v6, 1, v{28+i}")
        e(f"  v_add_u32 v{28+i}, s35, v{28+i}")
    E0 = 136
    e("  s_cmp_lg_u32 s15, 0")
    e("  s_cbranch_scc1 mt_noepi")
    e(f"  s_mov_b32 s36, {WS_Y}")
    e(f"  s_mov_b32 s37, {WS_Y + (2<<20)}")
    e(f"  s_mov_b32 s38, {WS_REC}")
    for a in range(2):
        for i in range(4):
            e(f"  buffer_load_ushort v{E0+12*a+i}, v{28+i}, s[24:27], s36 offen offset:{32*a} sc1")
            e(f"  buffer_load_ushort v{E0+4+12*a+i}, v{28+i}, s[24:27], s37 offen offset:{32*a} sc1")
            e(f"  buffer_load_ushort v{E0+8+12*a+i}, v{28+i}, s[20:23], 0 offen offset:{32*a}")
    for i in range(4):
        e(f"  buffer_load_dwordx4 {vr(36+4*i,4)}, v{32+i}, s[24:27], s38 offen sc1")
    lab("mt_noepi")
    e("  v_lshrrev_b32 v7, 2, v6")
    e("  v_lshl_add_u32 v7, v5, 3, v7")
    e("  v_lshlrev_b32 v7, 4, v7")
    e("  v_and_b32 v60, 1, v0")
    e("  v_lshl_add_u32 v7, v60, 3, v7")
    e("  v_and_b32 v60, 2, v0")
    e("  v_mul_u32_u24 v60, 14336, v60")
    e("  v_add_u32 v7, v60, v7")
    e("  v_add_u32 v7, s34, v7")
    e(f"  v_add_u32 v61, {2*28672}, v7")
    for i in range(8):
        e(f"  v_mov_b32 v{8+i}, 0")
    e("  s_waitcnt vmcnt(0)")
    for i in range(4):
        e(f"  v_and_b32 v60, 0xffff0000, v{24+i}")
        e("  v_ashrrev_i32 v62, 31, v60")
        e("  v_not_b32 v62, v62")
        e("  v_or_b32 v62, 0x80000000, v62")
        e("  v_xor_b32 v60, v60, v62")
        e("  v_and_b32 v60, 0xffff0000, v60")
        e("  v_mul_f32 v60, 0xbfb8aa3b, v60")
        e("  v_exp_f32 v60, v60")
        e("  s_nop 0")
        e("  v_add_f32 v60, 1.0, v60")
        e("  v_rcp_f32 v60, v60")
        e("  s_nop 0")
        e("  v_cvt_pk_bf16_f32 v60, v60, v60")
        e(f"  v_lshlrev_b32 v{24+i}, 16, v60")
    for a in range(2):
        for i in range(4):
            r0, r1, r2 = E0+12*a+i, E0+4+12*a+i, E0+8+12*a+i
            e(f"  v_lshlrev_b32 v{r0}, 16, v{r0}")
            e(f"  v_lshlrev_b32 v{r1}, 16, v{r1}")
            e(f"  v_lshlrev_b32 v{r2}, 16, v{r2}")
            e(f"  v_sub_f32 v60, v{r0}, v{r1}")
            e("  v_cvt_pk_bf16_f32 v60, v60, v60")
            e("  v_lshlrev_b32 v60, 16, v60")
            e(f"  v_add_f32 v60, v{r2}, v60")
            e("  v_cvt_pk_bf16_f32 v60, v60, v60")
            e(f"  v_lshlrev_b32 v{r0}, 16, v60")
            e(f"  v_sub_f32 v62, v{r0}, v{37+4*i}")
            e("  v_cvt_pk_bf16_f32 v62, v62, v62")
            e("  v_lshlrev_b32 v62, 16, v62")
            e(f"  v_mul_f32 v62, v62, v{38+4*i}")
            e("  v_cvt_pk_bf16_f32 v62, v62, v62")
            e(f"  v_lshlrev_b32 v{r1}, 16, v62")
    e("  v_and_b32 v4, 7, v0")
    e("  v_lshlrev_b32 v4, 4, v4")
    e("  v_lshl_add_u32 v4, v5, 7, v4")
    e("  v_add_u32 v62, 4096, v4")
    e("  s_mul_i32 s52, s15, 7168")
    e(f"  s_add_u32 s52, s52, {WS_GU}")
    FA = 64
    e("  s_mov_b32 s53, 0")
    lab("mt_pgu")
    for st in range(14):
        if st < 8:
            e(f"  buffer_load_dwordx4 {vr(FA+4*st,4)}, v4, s[24:27], s52 offen offset:{512*st} sc1")
        else:
            e(f"  buffer_load_dwordx4 {vr(FA+4*st,4)}, v62, s[24:27], s52 offen offset:{512*(st-8)} sc1")
    e("  v_mov_b32 v3, 0")
    for st in range(14):
        e(f"  s_waitcnt vmcnt({13-st})")
        e(f"  v_max3_u32 v3, v3, v{FA+4*st}, v{FA+4*st+1}")
        e(f"  v_max3_u32 v3, v3, v{FA+4*st+2}, v{FA+4*st+3}")
    e("  v_cmp_eq_u32 s[54:55], -1, v3")
    poll_end("mt_pgu")
    hstamp(9, 224)
    def rdB(st):
        b = 120 + 8 * (st % 2)
        e(f"  ds_read_b64_tr_b16 {vr(b,2)}, v7 offset:{MT_WD+512*st}")
        e(f"  ds_read_b64_tr_b16 {vr(b+2,2)}, v7 offset:{MT_WD+512*st+64}")
        e(f"  ds_read_b64_tr_b16 {vr(b+4,2)}, v61 offset:{MT_WD+512*st}")
        e(f"  ds_read_b64_tr_b16 {vr(b+6,2)}, v61 offset:{MT_WD+512*st+64}")
    rdB(0)
    for st in range(14):
        b = 120 + 8 * (st % 2)
        if st < 13:
            rdB(st + 1)
            e("  s_waitcnt lgkmcnt(4)")
        else:
            e("  s_waitcnt lgkmcnt(0)")
        e(f"  v_mfma_f32_16x16x32_bf16 v[8:11], {vr(FA+4*st,4)}, {vr(b,4)}, v[8:11]")
        e(f"  v_mfma_f32_16x16x32_bf16 v[12:15], {vr(FA+4*st,4)}, {vr(b+4,4)}, v[12:15]")
        e("  s_nop 3")
    e("  s_nop 15")
    e("  v_lshlrev_b32 v3, 4, v0")
    e("  s_lshl_b32 s33, s15, 11")
    e("  v_add_u32 v3, s33, v3")
    e(f"  ds_write_b128 v3, v[8:11] offset:{MT_R}")
    e(f"  ds_write_b128 v3, v[12:15] offset:{MT_R+1024}")
    e("  s_waitcnt lgkmcnt(0)")
    e("  s_barrier")
    e("  s_cmp_lg_u32 s15, 0")
    e("  s_cbranch_scc1 k2_done")
    e("  v_lshlrev_b32 v3, 4, v0")
    for w in range(1, 4):
        for a in range(2):
            e(f"  ds_read_b128 {vr(72+8*(w-1)+4*a,4)}, v3 offset:{MT_R+2048*w+1024*a}")
    e("  v_cmp_gt_u32 vcc, 32, v0")
    e("  s_and_saveexec_b64 s[50:51], vcc")
    e("  s_waitcnt lgkmcnt(0)")
    for a in range(2):
        for i in range(4):
            y = 8 + 4*a + i
            e(f"  v_add_f32 v{y}, v{y}, v{72+4*a+i}")
            e(f"  v_add_f32 v60, v{80+4*a+i}, v{88+4*a+i}")
            e(f"  v_add_f32 v{y}, v{y}, v60")
            e(f"  v_cvt_pk_bf16_f32 v{y}, v{y}, v{y}")
            e(f"  v_lshlrev_b32 v{y}, 16, v{y}")
            e(f"  v_mul_f32 v{y}, v{y}, v{24+i}")
            e(f"  v_cvt_pk_bf16_f32 v{y}, v{y}, v{y}")
            e(f"  v_lshlrev_b32 v{y}, 16, v{y}")
            e(f"  v_add_f32 v61, v{E0+4+12*a+i}, v{y}")
            e("  v_cvt_pk_bf16_f32 v61, v61, v61")
            e("  v_lshlrev_b32 v61, 16, v61")
            e(f"  v_add_f32 v61, v{E0+12*a+i}, v61")
            e("  v_cvt_pk_bf16_f32 v61, v61, v61")
            e(f"  buffer_store_short v61, v{28+i}, s[44:47], 0 offen offset:{32*a}")
    e("  s_mov_b64 exec, -1")
    hstamp(10, 224)

def k2_epilogue_fused(ACC):
    TB = 49152
    e("  s_nop 7")
    P = 64
    for g in range(8):
        e(f"  v_cvt_pk_bf16_f32 v{P+2*g}, v{ACC+4*g}, v{ACC+4*g+1}")
        e(f"  v_cvt_pk_bf16_f32 v{P+2*g+1}, v{ACC+4*g+2}, v{ACC+4*g+3}")
    e("  s_mul_i32 s30, s15, 4608")
    e(f"  s_add_u32 s30, s30, {TB}")
    e("  v_mul_u32_u24 v18, 144, v16")
    e("  v_lshl_add_u32 v18, v17, 3, v18")
    e("  v_add_u32 v18, s30, v18")
    for g in range(8):
        e(f"  ds_write_b64 v18, {vr(P+2*g,2)} offset:{16*g}")
    e("  v_lshrrev_b32 v19, 3, v0")
    e("  v_and_b32 v22, 7, v0")
    e("  v_mul_u32_u24 v20, 144, v19")
    e("  v_lshl_add_u32 v20, v22, 4, v20")
    e("  v_add_u32 v20, s30, v20")
    e("  s_waitcnt lgkmcnt(0)")
    for q in range(4):
        e(f"  ds_read_b128 {vr(80+4*q,4)}, v20 offset:{8*144*q}")
    e("  s_lshl_b32 s24, s14, 21")
    e(f"  s_add_u32 s24, s24, {WS_Y}")
    e("  s_lshl_b32 s30, s13, 7")
    e("  s_add_u32 s24, s24, s30")
    e("  s_lshl_b32 s30, s12, 7")
    e("  s_lshl_b32 s31, s15, 5")
    e("  s_add_u32 s30, s30, s31")
    e("  v_add_u32 v21, s30, v19")
    e("  v_lshlrev_b32 v21, 10, v21")
    e("  v_lshl_add_u32 v21, v22, 4, v21")
    for q in range(4):
        e(f"  s_waitcnt lgkmcnt({3-q})")
        e(f"  buffer_store_dwordx4 {vr(80+4*q,4)}, v21, s[20:23], s24 offen sc1")
        if q < 3: e("  v_add_u32 v21, 0x2000, v21")
    e("  s_waitcnt vmcnt(0)")
    e("  s_barrier")
    e(f"  s_load_dwordx2 s[4:5], s[0:1], {KA_X}")
    e(f"  s_load_dwordx8 s[56:63], s[0:1], {KA_WR}")
    e(f"  s_load_dwordx2 s[64:65], s[0:1], {KA_OUT}")
    srd(24, 6, 7, 12 << 20)
    e("  s_lshl_b32 s48, s14, 3")
    e("  s_add_u32 s48, s48, s13")
    e("  s_cmp_lg_u32 s15, 0")
    e("  s_cbranch_scc1 k2_noflag")
    e("  s_lshl_b32 s49, s12, 6")
    e("  s_lshl_b32 s50, s48, 2")
    e("  s_add_u32 s49, s49, s50")
    e(f"  s_add_u32 s49, s49, {WS_FLAG}")
    e("  v_mov_b32 v4, s68" if FUSE else "  v_mov_b32 v4, 1")
    e("  v_mov_b32 v5, 0")
    e("  s_mov_b64 s[50:51], exec")
    e("  s_mov_b64 exec, 1")
    e("  buffer_store_dword v4, v5, s[24:27], s49 offen sc1")
    e("  s_mov_b64 exec, s[50:51]")
    lab("k2_noflag")
    e("  s_waitcnt lgkmcnt(0)")
    srd(20, 4, 5, 2 << 20)
    srd(28, 56, 57, 1024)
    srd(44, 64, 65, 2 << 20)
    e("  v_lshrrev_b32 v1, 5, v0")
    e("  v_and_b32 v2, 31, v0")
    e("  s_lshl_b32 s52, s12, 7")
    e("  s_lshl_b32 s53, s48, 3")
    e("  s_add_u32 s52, s52, s53")
    e("  s_lshl_b32 s53, s15, 1")
    e("  s_add_u32 s52, s52, s53")
    e("  v_add_u32 v1, s52, v1")
    rowmac32_pre()
    if MEGA: mega_gu_dma()
    e("  v_and_b32 v7, 15, v0")
    e("  v_lshlrev_b32 v7, 2, v7")
    e("  s_lshl_b32 s49, s12, 6")
    e(f"  s_add_u32 s49, s49, {WS_FLAG}")
    e("  s_mov_b32 s53, 0")
    lab("k2_poll")
    e("  buffer_load_dword v4, v7, s[24:27], s49 offen sc1")
    e("  s_waitcnt vmcnt(0)")
    e("  v_cmp_ne_u32 s[54:55], s68, v4" if FUSE else "  v_cmp_eq_u32 s[54:55], 0, v4")
    e("  s_nop 3")
    e("  s_cmp_eq_u64 s[54:55], 0")
    e("  s_cbranch_scc1 k2_poll_ok")
    e("  s_add_u32 s53, s53, 1")
    e(f"  s_cmp_gt_u32 s53, {1 << 22}")
    e("  s_cbranch_scc1 k2_poll_ok")
    e("  s_branch k2_poll")
    lab("k2_poll_ok")
    stamp(3)
    rowmac32()
    stamp(4)
    if MEGA:
        mega_tail()
        return
    e("  v_lshlrev_b32 v13, 2, v1")
    e("  v_lshlrev_b32 v14, 3, v1")
    e("  v_mov_b32 v7, v10")
    e("  v_cmp_eq_u32 vcc, 0, v2")
    e("  s_and_saveexec_b64 s[50:51], vcc")
    e(f"  s_mov_b32 s52, {WS_KEY}")
    e("  buffer_store_dword v12, v13, s[24:27], s52 offen")
    e(f"  s_mov_b32 s52, {WS_STAT}")
    e("  buffer_store_dwordx2 v[6:7], v14, s[24:27], s52 offen")
    e("  s_mov_b64 exec, s[50:51]")
    if OPT('K2_NOGU'): return
    e("  s_cmp_ge_u32 s15, 2")
    e("  s_cbranch_scc1 k2_done")
    e("  s_cmp_eq_u32 s15, 0")
    e("  s_cselect_b32 s40, s58, s60")
    e("  s_cselect_b32 s41, s59, s61")
    e(f"  s_mov_b32 s42, {512*1792*2}")
    e("  s_mov_b32 s43, 0x00020000")
    e("  s_and_b32 s52, s2, 7")
    e("  s_lshr_b32 s53, s2, 3")
    e("  v_min_u32 v1, 55, v0")
    e("  v_cmp_lt_u32 vcc, 27, v1")
    e("  s_nop 1")
    e("  v_cndmask_b32 v2, 0, 1, vcc")
    e("  v_mul_u32_u24 v3, 28, v2")
    e("  v_sub_u32 v3, v1, v3")
    e("  v_mul_u32_u24 v2, 3584, v2")
    e("  v_lshl_add_u32 v2, v3, 4, v2")
    e("  s_mul_i32 s54, s52, 448")
    e(f"  s_mul_i32 s55, s53, {16*3584}")
    e("  s_add_u32 s54, s54, s55")
    for q in range(8):
        e(f"  buffer_load_dwordx4 {vr(80+4*q,4)}, v2, s[40:43], s54 offen")
        e(f"  s_add_u32 s54, s54, {2*3584}")

def gen_k2():
    NS = K2_NS
    name = "f_kernel" if FUSE else "k2_kernel"
    YBASE = NS * 16384
    if not FUSE:
        kernel_begin(name)
        e("  s_cmp_ge_u32 s2, 256")
        e("  s_cbranch_scc1 k2_done")
        e(f"  s_load_dwordx4 s[8:11], s[0:1], {KA_WSRE}")
        e(f"  s_load_dwordx2 s[6:7], s[0:1], {KA_WS}")
        e(f"  s_load_dwordx2 s[34:35], s[0:1], {KA_WDN}")
    else:
        e("  s_mov_b32 s71, s15")
    e("  s_and_b32 s12, s2, 7")
    e("  s_lshr_b32 s13, s2, 3")
    e("  s_lshr_b32 s14, s12, 2")
    e("  s_and_b32 s12, s12, 3")
    e("  s_lshl_b32 s12, s12, 2")
    e("  s_lshr_b32 s15, s13, 3")
    e("  s_add_u32 s12, s12, s15")
    e("  s_and_b32 s13, s13, 7")
    if FUSE:
        e("  s_mov_b32 s15, s71")
    else:
        e("  v_lshrrev_b32 v1, 6, v0")
        e("  v_and_b32 v0, 63, v0")
        e("  v_readfirstlane_b32 s15, v1")
    e("  v_lshrrev_b32 v2, 3, v0")
    e("  v_and_b32 v3, 7, v0")
    e("  s_waitcnt lgkmcnt(0)")
    e("  s_cmp_eq_u32 s14, 0")
    e("  s_cselect_b32 s16, s8, s10")
    e("  s_cselect_b32 s17, s9, s11")
    e(f"  s_mov_b32 s18, {2048*2048*2}")
    e("  s_mov_b32 s19, 0x00020000")
    srd(20, 6, 7, 9 << 20)
    e("  s_cmp_lt_u32 s15, 4")
    e("  s_cbranch_scc1 k2_consumer")
    if not FUSE:
        e("  s_cmp_lt_u32 s15, 8")
        e("  s_cbranch_scc1 k2_loader")
    if not FUSE: helper_wave()
    lab("k2_loader")
    e("  s_sub_u32 s15, s15, 4")
    for ii in range(4):
        e(f"  s_lshl_b32 s24, s15, 5")
        e(f"  s_add_u32 s24, s24, {8*ii}")
        e(f"  v_add_u32 v10, s24, v2")
        e(f"  v_lshrrev_b32 v11, 1, v10")
        e(f"  v_and_b32 v11, 7, v11")
        e(f"  v_xor_b32 v11, v11, v3")
        e(f"  s_lshl_b32 s24, s12, 7")
        e(f"  v_add_u32 v10, s24, v10")
        e(f"  v_lshlrev_b32 v10, 12, v10")
        e(f"  v_lshl_add_u32 v{4+ii}, v11, 4, v10")
    e("  s_lshl_b32 s24, s15, 11")
    e("  v_lshlrev_b32 v8, 4, v0")
    e("  v_add_u32 v8, s24, v8")
    e("  v_add_u32 v9, 1024, v8")
    e("  s_mov_b32 s25, 0")
    e("  s_lshl_b32 s26, s14, 3")
    e("  s_add_u32 s26, s26, s13")
    e("  s_lshl_b32 s26, s26, 18")
    e("  s_lshl_b32 s27, s15, 12")
    e("  s_lshl_b32 s28, s15, 11")
    e(f"  s_add_u32 s28, s28, {YBASE}")
    YSC = " sc1" if FUSE else ""
    def dmaY(slot, so="s26"):
        for i in range(2):
            e(f"  s_add_u32 m0, s28, {slot*8192 + i*1024}")
            e("  s_nop 0")
            e(f"  buffer_load_dwordx4 v{8+i}, s[20:23], {so} offen{YSC} lds")
    def dmaW(slot):
        for i in range(4):
            e(f"  s_add_u32 m0, s27, {slot*16384 + i*1024}")
            e("  s_nop 0")
            e(f"  buffer_load_dwordx4 v{4+i}, s[16:19], s25 offen lds")
    def adv():
        e("  s_add_u32 s25, s25, 128")
        e("  s_and_b32 s25, s25, 4095")
        e("  s_lshl_b32 s29, s25, 6")
        e("  s_add_u32 s26, s33, s29")
    def dma(slot):
        dmaY(slot); dmaW(slot); adv()
    e("  s_mov_b32 s33, s26")
    e(f"  s_mul_i32 s25, s13, {128*OPT('K2_ROT', 4)}")
    e("  s_and_b32 s25, s25, 4095")
    e("  s_lshl_b32 s29, s25, 6")
    e("  s_add_u32 s26, s33, s29")
    if not FUSE:
        for st in range(NS):
            dma(st)
        e(f"  s_waitcnt vmcnt({6*(NS-1)})")
        e("  s_barrier")
        for ks in range(31):
            ahead = min(ks + NS - 1, 31) - (ks + 1)
            e(f"  s_waitcnt vmcnt({6*ahead})")
            e("  s_barrier")
            if ks + NS < 32:
                dma(ks % NS)
    else:
        e("  s_mov_b32 s30, s25")
        e("  s_waitcnt vmcnt(0)")
        e("  s_barrier")
        for st in range(NS):
            dmaW(st); adv()
        e("  s_barrier")
        for st in range(NS):
            e("  s_lshl_b32 s29, s30, 6")
            e("  s_add_u32 s31, s33, s29")
            dmaY(st, "s31")
            e("  s_add_u32 s30, s30, 128")
            e("  s_and_b32 s30, s30, 4095")
        e(f"  s_waitcnt vmcnt({2*(NS-1)})")
        e("  s_barrier")
        for ks in range(31):
            if ks + 1 <= NS - 1:
                allowed = 2 * (NS - 1 - (ks + 1)) + 6 * ks
            else:
                allowed = 6 * (min(ks + NS - 1, 31) - (ks + 1))
            e(f"  s_waitcnt vmcnt({allowed})")
            e("  s_barrier")
            if ks + NS < 32:
                dma(ks % NS)
    e("  s_branch k2_done")
    lab("k2_consumer")
    if FUSE:
        e("  s_cmp_lg_u32 s15, 0")
        e("  s_cbranch_scc1 f_noep")
        get_epoch("co")
        e("  v_mov_b32 v4, s68")
        e(f"  v_mov_b32 v5, {K2_NS*24576}")
        e("  ds_write_b32 v5, v4")
        e("  s_waitcnt lgkmcnt(0)")
        lab("f_noep")
        e("  s_waitcnt vmcnt(0)")
        e("  s_barrier")
        e("  s_cmp_lg_u32 s15, 0")
        e("  s_cbranch_scc1 f_noflagA")
        e("  v_mov_b32 v4, s68")
        e("  v_mov_b32 v5, 0")
        e("  s_mov_b64 s[36:37], exec")
        e("  s_mov_b64 exec, 1")
        e("  buffer_store_dword v4, v5, s[20:23], s70 offen sc1")
        e("  s_mov_b64 exec, s[36:37]")
        lab("f_noflagA")
        e(f"  v_mov_b32 v158, {K2_NS*24576}")
        e("  ds_read_b32 v159, v158")
        e("  s_waitcnt lgkmcnt(0)")
        e("  v_readfirstlane_b32 s68, v159")
        e("  s_cmp_lg_u32 s15, 1")
        e("  s_cbranch_scc1 f_pollA_ok")
        e("  s_lshl_b32 s31, s14, 2")
        e("  s_lshr_b32 s32, s13, 1")
        e("  s_add_u32 s31, s31, s32")
        e("  s_lshl_b32 s31, s31, 7")
        e(f"  s_add_u32 s31, s31, {WS_FA}")
        e("  v_and_b32 v10, 31, v0")
        e("  v_lshlrev_b32 v10, 2, v10")
        e("  s_mov_b32 s69, 0")
        lab("f_pollA")
        e("  buffer_load_dword v11, v10, s[20:23], s31 offen sc1")
        e("  s_waitcnt vmcnt(0)")
        e("  v_cmp_ne_u32 s[36:37], s68, v11")
        e("  s_nop 3")
        e("  s_cmp_eq_u64 s[36:37], 0")
        e("  s_cbranch_scc1 f_pollA_ok")
        e("  s_add_u32 s69, s69, 1")
        e(f"  s_cmp_gt_u32 s69, {1 << 22}")
        e("  s_cbranch_scc1 f_pollA_ok")
        e("  s_branch f_pollA")
        lab("f_pollA_ok")
        stamp(1)
        e("  s_barrier")
    e("  v_and_b32 v16, 31, v0")
    e("  v_lshrrev_b32 v17, 5, v0")
    e("  s_lshl_b32 s24, s15, 5")
    e("  v_add_u32 v18, s24, v16")
    e("  v_lshrrev_b32 v19, 1, v18")
    e("  v_and_b32 v19, 7, v19")
    e("  v_xor_b32 v19, v19, v17")
    e("  v_lshlrev_b32 v18, 7, v18")
    e("  v_lshl_add_u32 v20, v19, 4, v18")
    for kk in range(1, 4):
        e(f"  v_xor_b32 v{20+kk}, {32*kk}, v20")
    for kk in range(4):
        e(f"  v_add_u32 v{28+kk}, 0x10000, v{20+kk}")
    e("  v_lshrrev_b32 v19, 1, v16")
    e("  v_and_b32 v19, 7, v19")
    e("  v_xor_b32 v19, v19, v17")
    e("  v_lshlrev_b32 v18, 7, v16")
    e("  v_lshl_add_u32 v24, v19, 4, v18")
    e(f"  v_add_u32 v24, {YBASE}, v24")
    for kk in range(1, 4):
        e(f"  v_xor_b32 v{24+kk}, {32*kk}, v24")
    ACC = 32
    for i in range(32):
        e(f"  v_mov_b32 v{ACC+i}, 0")
    def FW(st): return 64 + 48 * (st % 2)
    def FY(st): return 80 + 48 * (st % 2)
    def rd(st, kk):
        slot = st % NS
        wb = 20 if slot < 4 else 28
        e(f"  ds_read_b128 {vr(FW(st)+4*kk,4)}, v{wb+kk} offset:{16384*(slot%4)}")
        e(f"  ds_read_b128 {vr(FY(st)+8*kk,4)}, v{24+kk} offset:{8192*slot}")
        e(f"  ds_read_b128 {vr(FY(st)+8*kk+4,4)}, v{24+kk} offset:{8192*slot+4096}")
    e("  s_barrier")
    stamp(2)
    for kk in range(4):
        rd(0, kk)
    def mf(st, kk, half):
        e(f"  v_mfma_f32_32x32x16_bf16 {vr(ACC+16*half,16)}, {vr(FY(st)+8*kk+4*half,4)}, {vr(FW(st)+4*kk,4)}, {vr(ACC+16*half,16)}")
    for ks in range(32):
        more = ks + 1 < 32
        e("  s_waitcnt lgkmcnt(0)")
        if more and not OPT('K2_NOBAR'):
            e("  s_barrier")
        if OPT('K2_NOBAR') == 2: continue
        r = (lambda kk: rd(ks + 1, kk)) if more else (lambda kk: None)
        mf(ks, 0, 0); r(0); mf(ks, 0, 1); r(1)
        mf(ks, 1, 0); r(2); mf(ks, 1, 1); r(3)
        mf(ks, 2, 0); mf(ks, 2, 1)
        mf(ks, 3, 0); mf(ks, 3, 1)
    stamp(6)
    if not OPT('K2T1', 1):
        k2_epilogue_plain(ACC)
    else:
        k2_epilogue_fused(ACC)
    lab("k2_done")
    kernel_end()
    e("  s_endpgm")
    kernel_desc(name, 164 if FUSE else 160)

def gen_t1():
    name = "t1_kernel"
    kernel_begin(name)
    e("  s_cmp_ge_u32 s2, 256")
    e("  s_cbranch_scc1 t1_done")
    e(f"  s_load_dwordx2 s[4:5], s[0:1], {KA_X}")
    e(f"  s_load_dwordx2 s[6:7], s[0:1], {KA_WS}")
    e(f"  s_load_dwordx2 s[8:9], s[0:1], {KA_WR}")
    e(f"  s_load_dwordx2 s[10:11], s[0:1], {KA_OUT}")
    if OPT('T1_PF', 1):
        e(f"  s_load_dwordx4 s[32:35], s[0:1], {KA_WG}")
        e("  v_lshrrev_b32 v1, 6, v0")
        e("  s_nop 0")
        e("  v_readfirstlane_b32 s3, v1")
        e("  s_cmp_lg_u32 s3, 2")
        e("  s_cbranch_scc1 t1_main")
        e("  s_waitcnt lgkmcnt(0)")
        srd(40, 32, 33, 512*1792*2)
        srd(44, 34, 35, 512*1792*2)
        e("  v_and_b32 v0, 63, v0")
        e("  s_and_b32 s52, s2, 7")
        e("  s_lshr_b32 s53, s2, 3")
        e("  v_min_u32 v1, 55, v0")
        e("  v_cmp_lt_u32 vcc, 27, v1")
        e("  v_cndmask_b32 v2, 0, 1, vcc")
        e("  v_mul_u32_u24 v3, 28, v2")
        e("  v_sub_u32 v3, v1, v3")
        e("  v_mul_u32_u24 v2, 3584, v2")
        e("  v_lshl_add_u32 v2, v3, 4, v2")
        e("  s_mul_i32 s54, s52, 448")
        e(f"  s_mul_i32 s55, s53, {16*3584}")
        e("  s_add_u32 s54, s54, s55")
        for q in range(8):
            e(f"  buffer_load_dwordx4 {vr(8+8*q,4)}, v2, s[40:43], s54 offen")
            e(f"  buffer_load_dwordx4 {vr(12+8*q,4)}, v2, s[44:47], s54 offen")
            e(f"  s_add_u32 s54, s54, {2*3584}")
        e("  s_branch t1_done")
        lab("t1_main")
    e("  v_lshrrev_b32 v1, 4, v0")
    e("  v_and_b32 v2, 15, v0")
    e("  s_lshl_b32 s3, s2, 3")
    e("  v_add_u32 v1, s3, v1")
    e("  v_lshlrev_b32 v3, 10, v1")
    e("  v_lshl_add_u32 v3, v2, 4, v3")
    e("  v_lshlrev_b32 v4, 4, v2")
    e("  s_waitcnt lgkmcnt(0)")
    srd(12, 4, 5, 2 << 20)
    srd(16, 6, 7, 9 << 20)
    srd(20, 8, 9, 1024)
    srd(24, 10, 11, 2 << 20)
    e(f"  s_mov_b32 s28, {WS_Y}")
    e(f"  s_mov_b32 s29, {WS_Y + (2<<20)}")
    YR, YI, XX, WR = 16, 32, 48, 64
    for j in range(4):
        e(f"  buffer_load_dwordx4 {vr(YR+4*j,4)}, v3, s[16:19], s28 offen offset:{256*j}")
        e(f"  buffer_load_dwordx4 {vr(YI+4*j,4)}, v3, s[16:19], s29 offen offset:{256*j}")
        e(f"  buffer_load_dwordx4 {vr(XX+4*j,4)}, v3, s[12:15], 0 offen offset:{256*j}")
    for j in range(4):
        e(f"  buffer_load_dwordx4 {vr(WR+4*j,4)}, v4, s[20:23], 0 offen offset:{256*j}")
    H = 80
    T = 112
    e("  v_mov_b32 v14, 0")
    e("  v_mov_b32 v15, 0")
    for j in range(4):
        e(f"  s_waitcnt vmcnt({4 + 3*(3-j)})")
        for q in range(4):
            i = 4*j + q
            e(f"  v_lshlrev_b32 v{T}, 16, v{YR+i}")
            e(f"  v_and_b32 v{T+1}, 0xffff0000, v{YR+i}")
            e(f"  v_lshlrev_b32 v{T+2}, 16, v{YI+i}")
            e(f"  v_and_b32 v{T+3}, 0xffff0000, v{YI+i}")
            e(f"  v_pk_add_f32 {vr(T,2)}, {vr(T,2)}, {vr(T+2,2)} neg_lo:[0,1] neg_hi:[0,1]")
            e(f"  v_cvt_pk_bf16_f32 v{T}, v{T}, v{T+1}")
            e(f"  v_and_b32 v{T+1}, 0xffff0000, v{T}")
            e(f"  v_lshlrev_b32 v{T}, 16, v{T}")
            e(f"  v_lshlrev_b32 v{T+2}, 16, v{XX+i}")
            e(f"  v_and_b32 v{T+3}, 0xffff0000, v{XX+i}")
            e(f"  v_pk_add_f32 {vr(T,2)}, {vr(T,2)}, {vr(T+2,2)}")
            e(f"  v_cvt_pk_bf16_f32 v{T}, v{T}, v{T+1}")
            e(f"  v_lshlrev_b32 v{H+2*i}, 16, v{T}")
            e(f"  v_and_b32 v{H+2*i+1}, 0xffff0000, v{T}")
            e(f"  v_pk_add_f32 v[14:15], v[14:15], {vr(H+2*i,2)}")
    e("  v_add_f32 v5, v14, v15")
    reduce16(5)
    e("  v_mul_f32 v5, 0x3b000000, v5")
    e("  v_cvt_pk_bf16_f32 v6, v5, v5")
    e("  v_lshlrev_b32 v6, 16, v6")
    e("  v_sub_f32 v8, 0, v6")
    e("  v_mov_b32 v9, v8")
    e("  v_mov_b32 v10, 0")
    e("  v_mov_b32 v11, 0")
    D = 116
    for i in range(16):
        e(f"  v_pk_add_f32 {vr(D+2*i,2)}, {vr(H+2*i,2)}, v[8:9]")
        e(f"  v_pk_fma_f32 v[10:11], {vr(D+2*i,2)}, {vr(D+2*i,2)}, v[10:11]")
    e("  v_add_f32 v10, v10, v11")
    reduce16(10)
    e("  v_sub_f32 v11, v5, v6")
    e("  v_mul_f32 v11, v11, v11")
    e("  v_mul_f32 v10, 0x3b000000, v10")
    e("  v_sub_f32 v10, v10, v11")
    e("  v_max_f32 v10, 0, v10")
    e("  v_cvt_pk_bf16_f32 v10, v10, v10")
    e("  v_lshlrev_b32 v10, 16, v10")
    e("  v_add_f32 v10, 0x3727c5ac, v10")
    e("  v_cvt_pk_bf16_f32 v10, v10, v10")
    e("  v_lshlrev_b32 v10, 16, v10")
    e("  v_sqrt_f32 v10, v10")
    e("  s_nop 0")
    e("  v_cvt_pk_bf16_f32 v10, v10, v10")
    e("  v_lshlrev_b32 v10, 16, v10")
    e("  v_rcp_f32 v10, v10")
    e("  s_nop 0")
    e("  v_mov_b32 v11, v10")
    e("  v_mov_b32 v12, 0")
    e("  s_waitcnt vmcnt(0)")
    O = 16
    for i in range(16):
        e(f"  v_cvt_pk_bf16_f32 v{T}, v{D+2*i}, v{D+2*i+1}")
        e(f"  v_lshlrev_b32 v{D+2*i}, 16, v{T}")
        e(f"  v_and_b32 v{D+2*i+1}, 0xffff0000, v{T}")
        e(f"  v_pk_mul_f32 {vr(D+2*i,2)}, {vr(D+2*i,2)}, v[10:11]")
        e(f"  v_cvt_pk_bf16_f32 v{T}, v{D+2*i}, v{D+2*i+1}")
        e(f"  v_dot2_f32_bf16 v12, v{T}, v{WR+i}, v12")
        e(f"  v_lshlrev_b32 v{D+2*i}, 16, v{T}")
        e(f"  v_and_b32 v{D+2*i+1}, 0xffff0000, v{T}")
        e(f"  v_pk_add_f32 {vr(D+2*i,2)}, {vr(D+2*i,2)}, {vr(H+2*i,2)}")
        e(f"  v_cvt_pk_bf16_f32 v{O+i}, v{D+2*i}, v{D+2*i+1}")
    for j in range(4):
        e(f"  buffer_store_dwordx4 {vr(O+4*j,4)}, v3, s[24:27], 0 offen offset:{256*j}")
    e("  s_nop 3")
    reduce16(12)
    e("  v_cvt_pk_bf16_f32 v12, v12, v12")
    e("  v_lshlrev_b32 v12, 16, v12")
    e("  v_ashrrev_i32 v13, 31, v12")
    e("  v_or_b32 v13, 0x80000000, v13")
    e("  v_xor_b32 v12, v12, v13")
    e("  v_and_b32 v12, 0xffff0000, v12")
    e("  v_sub_u32 v13, 0xffff, v1")
    e("  v_or_b32 v12, v12, v13")
    e("  v_cmp_eq_u32 vcc, 0, v2")
    e("  s_and_saveexec_b64 s[30:31], vcc")
    e("  v_lshlrev_b32 v13, 2, v1")
    e(f"  s_mov_b32 s28, {WS_KEY}")
    e("  buffer_store_dword v12, v13, s[16:19], s28 offen")
    e("  v_lshlrev_b32 v13, 3, v1")
    e("  v_mov_b32 v7, v10")
    e(f"  s_mov_b32 s28, {WS_STAT}")
    e("  buffer_store_dwordx2 v[6:7], v13, s[16:19], s28 offen")
    lab("t1_done")
    kernel_end()
    e("  s_endpgm")
    kernel_desc(name, 148)

def recompute(YR, YI, XX, nd, NEGM, RINV, HOUT, XNOUT, T):
    for i in range(nd):
        e(f"  v_lshlrev_b32 v{T}, 16, v{YR+i}")
        e(f"  v_and_b32 v{T+1}, 0xffff0000, v{YR+i}")
        e(f"  v_lshlrev_b32 v{T+2}, 16, v{YI+i}")
        e(f"  v_and_b32 v{T+3}, 0xffff0000, v{YI+i}")
        e(f"  v_pk_add_f32 {vr(T,2)}, {vr(T,2)}, {vr(T+2,2)} neg_lo:[0,1] neg_hi:[0,1]")
        e(f"  v_cvt_pk_bf16_f32 v{T}, v{T}, v{T+1}")
        e(f"  v_and_b32 v{T+1}, 0xffff0000, v{T}")
        e(f"  v_lshlrev_b32 v{T}, 16, v{T}")
        e(f"  v_lshlrev_b32 v{T+2}, 16, v{XX+i}")
        e(f"  v_and_b32 v{T+3}, 0xffff0000, v{XX+i}")
        e(f"  v_pk_add_f32 {vr(T,2)}, {vr(T,2)}, {vr(T+2,2)}")
        e(f"  v_cvt_pk_bf16_f32 v{T}, v{T}, v{T+1}")
        e(f"  v_lshlrev_b32 v{HOUT+2*i}, 16, v{T}")
        e(f"  v_and_b32 v{HOUT+2*i+1}, 0xffff0000, v{T}")
        e(f"  v_pk_add_f32 {vr(T,2)}, {vr(HOUT+2*i,2)}, {vr(NEGM,2)}")
        e(f"  v_cvt_pk_bf16_f32 v{T}, v{T}, v{T+1}")
        e(f"  v_and_b32 v{T+1}, 0xffff0000, v{T}")
        e(f"  v_lshlrev_b32 v{T}, 16, v{T}")
        e(f"  v_pk_mul_f32 {vr(T,2)}, {vr(T,2)}, {vr(RINV,2)}")
        e(f"  v_cvt_pk_bf16_f32 v{XNOUT+i}, v{T}, v{T+1}")

XS_STRIDE = 1040
def gen_t2():
    name = "t2_kernel"
    kernel_begin(name)
    LDS_G, LDS_U, LDS_XS, LDS_C = 0, 8192, 16384, 16384 + 8*XS_STRIDE
    e("  s_cmp_ge_u32 s2, 224")
    e("  s_cbranch_scc1 t2_done")
    e(f"  s_load_dwordx2 s[4:5], s[0:1], {KA_X}")
    e(f"  s_load_dwordx2 s[6:7], s[0:1], {KA_WS}")
    e(f"  s_load_dwordx4 s[8:11], s[0:1], {KA_WG}")
    e("  s_and_b32 s3, s2, 7")
    e("  s_mul_i32 s3, s3, 28")
    e("  s_lshr_b32 s12, s2, 3")
    e("  s_add_u32 s3, s3, s12")
    e("  v_mov_b32 v40, v0")
    e("  v_lshrrev_b32 v1, 6, v0")
    e("  v_and_b32 v0, 63, v0")
    e("  v_readfirstlane_b32 s13, v1")
    e("  s_waitcnt lgkmcnt(0)")
    srd(16, 4, 5, 2 << 20)
    srd(20, 6, 7, 9 << 20)
    srd(24, 8, 9, 512*1792*2)
    srd(28, 10, 11, 512*1792*2)
    e("  v_lshlrev_b32 v2, 5, v40")
    e(f"  s_mov_b32 s14, {WS_KEY}")
    e("  buffer_load_dwordx4 v[8:11], v2, s[20:23], s14 offen")
    e("  buffer_load_dwordx4 v[12:15], v2, s[20:23], s14 offen offset:16")
    e("  s_lshl_b32 s15, s3, 4")
    e("  s_movk_i32 s32, 3584")
    for ii in range(2):
        e(f"  s_lshl_b32 s33, s13, 7")
        e(f"  s_add_u32 s33, s33, {64*ii}")
        e(f"  v_add_u32 v3, s33, v0")
        e(f"  v_mul_lo_u32 v3, v3, s32")
        e(f"  s_lshl_b32 s34, s13, 11")
        e(f"  s_add_u32 m0, s34, {LDS_G + 1024*ii}")
        e("  s_nop 0")
        e(f"  buffer_load_dwordx4 v3, s[24:27], s15 offen lds")
        e(f"  s_add_u32 m0, s34, {LDS_U + 1024*ii}")
        e("  s_nop 0")
        e(f"  buffer_load_dwordx4 v3, s[28:31], s15 offen lds")
    stamp(1)
    e("  s_waitcnt vmcnt(4)")
    stamp(2)
    e("  v_mov_b32 v20, 0")
    for rnd in range(8):
        e("  v_max3_u32 v16, v8, v9, v10")
        e("  v_max3_u32 v17, v11, v12, v13")
        e("  v_max3_u32 v16, v16, v14, v15")
        e("  v_max_u32 v16, v16, v17")
        e("  s_nop 1")
        e("  v_max_u32_dpp v16, v16, v16 quad_perm:[1,0,3,2] row_mask:0xf bank_mask:0xf")
        e("  s_nop 1")
        e("  v_max_u32_dpp v16, v16, v16 quad_perm:[2,3,0,1] row_mask:0xf bank_mask:0xf")
        e("  s_nop 1")
        e("  v_max_u32_dpp v16, v16, v16 row_half_mirror row_mask:0xf bank_mask:0xf")
        e("  s_nop 1")
        e("  v_max_u32_dpp v16, v16, v16 row_mirror row_mask:0xf bank_mask:0xf")
        e("  s_nop 1")
        e("  v_readlane_b32 s36, v16, 0")
        e("  v_readlane_b32 s37, v16, 16")
        e("  v_readlane_b32 s38, v16, 32")
        e("  v_readlane_b32 s39, v16, 48")
        e("  s_max_u32 s36, s36, s37")
        e("  s_max_u32 s38, s38, s39")
        e("  s_max_u32 s36, s36, s38")
        e(f"  v_writelane_b32 v20, s36, {rnd}")
        if rnd < 7:
            for k in range(8):
                e(f"  v_cmp_ne_u32 vcc, s36, v{8+k}")
                e("  s_nop 1")
                e(f"  v_cndmask_b32 v{8+k}, 0, v{8+k}, vcc")
    e("  s_lshl_b32 s33, s13, 5")
    e(f"  s_add_u32 s33, s33, {LDS_C}")
    e("  v_lshlrev_b32 v3, 2, v0")
    e("  v_add_u32 v3, s33, v3")
    e("  v_cmp_gt_u32 vcc, 8, v0")
    e("  s_and_saveexec_b64 s[40:41], vcc")
    e("  ds_write_b32 v3, v20")
    e("  s_mov_b64 exec, s[40:41]")
    e("  s_waitcnt lgkmcnt(0)")
    e("  s_barrier")
    e("  v_and_b32 v3, 31, v0")
    e("  v_lshlrev_b32 v3, 2, v3")
    e(f"  ds_read_b32 v21, v3 offset:{LDS_C}")
    e("  v_mov_b32 v22, 0")
    e("  s_waitcnt lgkmcnt(0)")
    for i in range(32):
        e(f"  v_readlane_b32 s36, v21, {i}")
        e("  s_nop 1")
        e("  v_cmp_gt_u32 vcc, s36, v21")
        e("  s_nop 1")
        e("  v_addc_co_u32 v22, vcc, 0, v22, vcc")
    e("  v_cmp_gt_u32 vcc, 8, v22")
    e("  v_cmp_gt_u32 s[42:43], 32, v0")
    e("  s_and_b64 vcc, vcc, s[42:43]")
    e("  v_lshlrev_b32 v3, 2, v22")
    e("  s_and_saveexec_b64 s[40:41], vcc")
    e(f"  ds_write_b32 v3, v21 offset:{LDS_C+128}")
    e("  s_mov_b64 exec, s[40:41]")
    e("  s_waitcnt lgkmcnt(0)")
    e("  s_barrier")
    stamp(3)
    e("  v_lshrrev_b32 v4, 5, v40")
    e("  v_and_b32 v5, 31, v40")
    e("  v_lshlrev_b32 v3, 2, v4")
    e(f"  ds_read_b32 v6, v3 offset:{LDS_C+128}")
    e("  s_waitcnt lgkmcnt(0)")
    e("  s_cmp_lg_u32 s3, 0")
    e("  s_cbranch_scc1 t2_nopub")
    e("  v_cmp_eq_u32 vcc, 0, v5")
    e("  s_and_saveexec_b64 s[40:41], vcc")
    e(f"  s_mov_b32 s14, {WS_IDX}")
    e("  buffer_store_dword v6, v3, s[20:23], s14 offen")
    e("  s_mov_b64 exec, s[40:41]")
    lab("t2_nopub")
    e("  v_and_b32 v6, 0xffff, v6")
    e("  v_sub_u32 v6, 0xffff, v6")
    e("  v_lshlrev_b32 v7, 10, v6")
    e("  v_lshl_add_u32 v7, v5, 4, v7")
    e(f"  s_mov_b32 s14, {WS_Y}")
    e(f"  s_mov_b32 s15, {WS_Y + (2<<20)}")
    YR, YI, XX = 24, 32, 44
    for j in range(2):
        e(f"  buffer_load_dwordx4 {vr(YR+4*j,4)}, v7, s[20:23], s14 offen offset:{512*j}")
        e(f"  buffer_load_dwordx4 {vr(YI+4*j,4)}, v7, s[20:23], s15 offen offset:{512*j}")
        e(f"  buffer_load_dwordx4 {vr(XX+4*j,4)}, v7, s[16:19], 0 offen offset:{512*j}")
    e("  v_lshlrev_b32 v3, 3, v6")
    e(f"  s_mov_b32 s14, {WS_STAT}")
    e("  buffer_load_dwordx2 v[52:53], v3, s[20:23], s14 offen")
    e("  s_waitcnt vmcnt(0)")
    stamp(4)
    e("  v_sub_f32 v54, 0, v52")
    e("  v_mov_b32 v55, v54")
    e("  v_mov_b32 v52, v53")
    recompute(YR, YI, XX, 8, 54, 52, 64, 80, 56)
    e(f"  v_mul_u32_u24 v3, {XS_STRIDE}, v4")
    e("  v_lshl_add_u32 v3, v5, 4, v3")
    e(f"  ds_write_b128 v3, v[80:83] offset:{LDS_XS}")
    e(f"  ds_write_b128 v3, v[84:87] offset:{LDS_XS+512}")
    e("  s_waitcnt lgkmcnt(0)")
    e("  s_barrier")
    e("  s_cmp_lg_u32 s13, 0")
    e("  s_cbranch_scc1 t2_done")
    stamp(5)
    e("  v_and_b32 v3, 7, v0")
    e(f"  v_mul_u32_u24 v3, {XS_STRIDE}, v3")
    e("  v_lshrrev_b32 v4, 4, v0")
    e("  v_lshl_add_u32 v3, v4, 4, v3")
    e("  v_and_b32 v5, 15, v0")
    e("  v_lshrrev_b32 v5, 2, v5")
    e("  v_lshl_add_u32 v5, v4, 3, v5")
    e("  v_lshlrev_b32 v5, 4, v5")
    e("  v_and_b32 v6, 1, v0")
    e("  v_lshl_add_u32 v5, v6, 3, v5")
    e("  v_and_b32 v6, 2, v0")
    e("  v_lshl_add_u32 v5, v6, 12, v5")
    for i in range(4):
        e(f"  v_mov_b32 v{8+i}, 0")
    FA, FB = 64, 128
    for st in range(16):
        e(f"  ds_read_b128 {vr(FA+4*st,4)}, v3 offset:{LDS_XS + 64*st}")
        e(f"  ds_read_b64_tr_b16 {vr(FB+4*st,2)}, v5 offset:{512*st}")
        e(f"  ds_read_b64_tr_b16 {vr(FB+4*st+2,2)}, v5 offset:{512*st+64}")
        if st % 4 == 3:
            e("  s_waitcnt lgkmcnt(0)")
            for s2 in range(st-3, st+1):
                e(f"  v_mfma_f32_16x16x32_bf16 v[8:11], {vr(FA+4*s2,4)}, {vr(FB+4*s2,4)}, v[8:11]")
    e("  s_nop 15")
    for i in range(4):
        e(f"  v_cvt_pk_bf16_f32 v{8+i}, v{8+i}, v{8+i}")
        e(f"  v_lshlrev_b32 v{8+i}, 16, v{8+i}")
    e("  s_nop 1")
    for i in range(4):
        e(f"  v_mov_b32_dpp v{12+i}, v{8+i} row_ror:8 row_mask:0xf bank_mask:0xf")
    for i in range(4):
        e(f"  v_mul_f32 v16, 0xbfb8aa3b, v{8+i}")
        e("  v_exp_f32 v16, v16")
        e("  s_nop 0")
        e("  v_add_f32 v16, 1.0, v16")
        e("  v_rcp_f32 v16, v16")
        e("  s_nop 0")
        e(f"  v_mul_f32 v16, v{8+i}, v16")
        e("  v_cvt_pk_bf16_f32 v16, v16, v16")
        e("  v_lshlrev_b32 v16, 16, v16")
        e(f"  v_mul_f32 v16, v16, v{12+i}")
        e(f"  v_cvt_pk_bf16_f32 v{20+i}, v16, v16")
    stamp(6)
    e("  v_and_b32 v5, 15, v0")
    e("  v_cmp_gt_u32 vcc, 8, v5")
    e("  v_cmp_gt_u32 s[42:43], 32, v0")
    e("  s_and_b64 vcc, vcc, s[42:43]")
    e("  s_and_saveexec_b64 s[40:41], vcc")
    e("  v_lshlrev_b32 v4, 2, v4")
    e("  v_mul_u32_u24 v4, 3584, v4")
    e("  v_lshl_add_u32 v4, v5, 1, v4")
    e("  s_lshl_b32 s15, s3, 4")
    e(f"  s_add_u32 s15, s15, {WS_GU}")
    for i in range(4):
        e(f"  buffer_store_short v{20+i}, v4, s[20:23], s15 offen offset:{3584*i if 3584*i < 4096 else 0}") if False else None
    for i in range(4):
        e(f"  buffer_store_short v{20+i}, v4, s[20:23], s15 offen")
        if i < 3:
            e("  v_add_u32 v4, 3584, v4")
    lab("t2_done")
    kernel_end()
    e("  s_endpgm")
    kernel_desc(name, 192)

def gen_t3():
    name = "t3_kernel"
    kernel_begin(name)
    LDS_W, LDS_R = 0, 28672
    e("  s_cmp_ge_u32 s2, 64")
    e("  s_cbranch_scc1 t3_done")
    e(f"  s_load_dwordx2 s[4:5], s[0:1], {KA_X}")
    e(f"  s_load_dwordx2 s[6:7], s[0:1], {KA_WS}")
    e(f"  s_load_dwordx2 s[10:11], s[0:1], {KA_OUT}")
    e("  s_mov_b32 s3, s2")
    e("  v_lshrrev_b32 v1, 6, v0")
    e("  v_and_b32 v0, 63, v0")
    e("  v_readfirstlane_b32 s13, v1")
    e("  v_lshrrev_b32 v5, 4, v0")
    e("  s_waitcnt lgkmcnt(0)")
    srd(16, 4, 5, 2 << 20)
    srd(20, 6, 7, 12 << 20)
    srd(28, 10, 11, 2 << 20)
    e("  v_and_b32 v6, 1, v5")
    e("  v_lshlrev_b32 v6, 4, v6")
    e(f"  s_mov_b32 s14, {WS_IDX}")
    e("  buffer_load_dwordx4 v[24:27], v6, s[20:23], s14 offen")
    e("  s_lshl_b32 s15, s3, 4")
    e("  v_lshlrev_b32 v3, 4, v0")
    e("  s_mul_i32 s34, s13, 7168")
    e("  s_mul_i32 s33, s3, 28672")
    e("  s_add_u32 s33, s33, s34")
    e(f"  s_add_u32 s33, s33, {WS_WDB}")
    for i in range(7):
        e(f"  s_add_u32 m0, s34, {LDS_W + 1024*i}")
        e("  s_nop 0")
        e(f"  buffer_load_dwordx4 v3, s[20:23], s33 offen lds")
        e("  s_add_u32 s33, s33, 1024")
    e("  v_and_b32 v4, 7, v0")
    e("  v_mul_u32_u24 v4, 3584, v4")
    e("  v_lshl_add_u32 v4, v5, 4, v4")
    e("  s_mul_i32 s14, s13, 896")
    e(f"  s_add_u32 s14, s14, {WS_GU}")
    FA = 64
    for st in range(14):
        e(f"  buffer_load_dwordx4 {vr(FA+4*st,4)}, v4, s[20:23], s14 offen offset:{64*st}")
    for i in range(4):
        e(f"  v_mov_b32 v{28+i}, 0")
    e("  s_cmp_lg_u32 s13, 0")
    e("  s_cbranch_scc1 t3_noepi")
    e("  s_waitcnt vmcnt(21)")
    e("  v_and_b32 v6, 7, v0")
    e(f"  s_mov_b32 s36, {WS_Y}")
    e(f"  s_mov_b32 s37, {WS_Y + (2<<20)}")
    e(f"  s_mov_b32 s38, {WS_STAT}")
    for i in range(4):
        e(f"  v_and_b32 v{28+i}, 0xffff, v{24+i}")
        e(f"  v_sub_u32 v{28+i}, 0xffff, v{28+i}")
        e(f"  v_lshlrev_b32 v{32+i}, 3, v{28+i}")
        e(f"  v_lshlrev_b32 v{28+i}, 10, v{28+i}")
        e(f"  v_lshl_add_u32 v{28+i}, v6, 1, v{28+i}")
        e(f"  v_add_u32 v{28+i}, s15, v{28+i}")
        e(f"  buffer_load_ushort v{36+i}, v{28+i}, s[20:23], s36 offen")
        e(f"  buffer_load_ushort v{40+i}, v{28+i}, s[20:23], s37 offen")
        e(f"  buffer_load_ushort v{44+i}, v{28+i}, s[16:19], 0 offen")
        e(f"  buffer_load_dwordx2 {vr(48+2*i,2)}, v{32+i}, s[20:23], s38 offen")
    lab("t3_noepi")
    e("  v_and_b32 v7, 15, v0")
    e("  v_lshrrev_b32 v7, 2, v7")
    e("  v_lshl_add_u32 v7, v5, 3, v7")
    e("  v_lshlrev_b32 v7, 4, v7")
    e("  v_and_b32 v60, 1, v0")
    e("  v_lshl_add_u32 v7, v60, 3, v7")
    e("  v_add_u32 v7, s34, v7")
    for i in range(4):
        e(f"  v_mov_b32 v{8+i}, 0")
    stamp(1)
    e("  s_waitcnt vmcnt(0)")
    stamp(2)
    FB = 128
    for st in range(14):
        e(f"  ds_read_b64_tr_b16 {vr(FB+4*st,2)}, v7 offset:{512*st}")
        e(f"  ds_read_b64_tr_b16 {vr(FB+4*st+2,2)}, v7 offset:{512*st+64}")
    e("  s_waitcnt lgkmcnt(0)")
    for st in range(14):
        e(f"  v_mfma_f32_16x16x32_bf16 v[8:11], {vr(FA+4*st,4)}, {vr(FB+4*st,4)}, v[8:11]")
    e("  s_nop 15")
    stamp(3)
    e("  v_lshlrev_b32 v3, 4, v0")
    e("  s_lshl_b32 s33, s13, 10")
    e("  v_add_u32 v3, s33, v3")
    e(f"  ds_write_b128 v3, v[8:11] offset:{LDS_R}")
    e("  s_waitcnt lgkmcnt(0)")
    e("  s_barrier")
    e("  s_cmp_lg_u32 s13, 0")
    e("  s_cbranch_scc1 t3_done")
    e("  v_lshlrev_b32 v3, 4, v0")
    for w in range(1, 4):
        e(f"  ds_read_b128 {vr(12+4*(w-1),4)}, v3 offset:{LDS_R+1024*w}")
    stamp(4)
    e("  v_and_b32 v6, 15, v0")
    e("  v_cmp_gt_u32 vcc, 8, v6")
    e("  v_cmp_gt_u32 s[42:43], 32, v0")
    e("  s_and_b64 vcc, vcc, s[42:43]")
    e("  s_and_saveexec_b64 s[40:41], vcc")
    e("  s_waitcnt lgkmcnt(0)")
    for i in range(4):
        e(f"  v_add_f32 v{8+i}, v{8+i}, v{12+i}")
        e(f"  v_add_f32 v{16+i}, v{16+i}, v{20+i}")
        e(f"  v_add_f32 v{8+i}, v{8+i}, v{16+i}")
        e(f"  v_cvt_pk_bf16_f32 v{8+i}, v{8+i}, v{8+i}")
        e(f"  v_lshlrev_b32 v{8+i}, 16, v{8+i}")
        e(f"  v_and_b32 v60, 0xffff0000, v{24+i}")
        e("  v_ashrrev_i32 v61, 31, v60")
        e("  v_not_b32 v61, v61")
        e("  v_or_b32 v61, 0x80000000, v61")
        e("  v_xor_b32 v60, v60, v61")
        e("  v_and_b32 v60, 0xffff0000, v60")
        e("  v_mul_f32 v60, 0xbfb8aa3b, v60")
        e("  v_exp_f32 v60, v60")
        e("  s_nop 0")
        e("  v_add_f32 v60, 1.0, v60")
        e("  v_rcp_f32 v60, v60")
        e("  s_nop 0")
        e("  v_cvt_pk_bf16_f32 v60, v60, v60")
        e("  v_lshlrev_b32 v60, 16, v60")
        e(f"  v_mul_f32 v{8+i}, v{8+i}, v60")
        e(f"  v_cvt_pk_bf16_f32 v{8+i}, v{8+i}, v{8+i}")
        e(f"  v_lshlrev_b32 v{8+i}, 16, v{8+i}")
        e(f"  v_lshlrev_b32 v{36+i}, 16, v{36+i}")
        e(f"  v_lshlrev_b32 v{40+i}, 16, v{40+i}")
        e(f"  v_lshlrev_b32 v{44+i}, 16, v{44+i}")
        e(f"  v_sub_f32 v60, v{36+i}, v{40+i}")
        e("  v_cvt_pk_bf16_f32 v60, v60, v60")
        e("  v_lshlrev_b32 v60, 16, v60")
        e(f"  v_add_f32 v60, v{44+i}, v60")
        e("  v_cvt_pk_bf16_f32 v60, v60, v60")
        e("  v_lshlrev_b32 v60, 16, v60")
        e(f"  v_sub_f32 v61, v60, v{48+2*i}")
        e("  v_cvt_pk_bf16_f32 v61, v61, v61")
        e("  v_lshlrev_b32 v61, 16, v61")
        e(f"  v_mul_f32 v61, v61, v{49+2*i}")
        e("  v_cvt_pk_bf16_f32 v61, v61, v61")
        e("  v_lshlrev_b32 v61, 16, v61")
        e(f"  v_add_f32 v61, v61, v{8+i}")
        e("  v_cvt_pk_bf16_f32 v61, v61, v61")
        e("  v_lshlrev_b32 v61, 16, v61")
        e("  v_add_f32 v61, v60, v61")
        e("  v_cvt_pk_bf16_f32 v61, v61, v61")
        e(f"  buffer_store_short v61, v{28+i}, s[28:31], 0 offen")
    lab("t3_done")
    kernel_end()
    e("  s_endpgm")
    kernel_desc(name, 192)

SORT8 = [(0,1),(2,3),(4,5),(6,7),(0,2),(1,3),(4,6),(5,7),(1,2),(5,6),(0,4),(1,5),(2,6),(3,7),(2,4),(3,5),(1,2),(3,4),(5,6)]
def top8(keys, free, LDS_C, wreg="s13"):
    K = list(keys); F = list(free)
    for (i, j) in SORT8:
        hi, lo = F.pop(), F.pop()
        e(f"  v_max_u32 v{hi}, v{K[i]}, v{K[j]}")
        e(f"  v_min_u32 v{lo}, v{K[i]}, v{K[j]}")
        F.append(K[i]); F.append(K[j]); K[i] = hi; K[j] = lo
    t, coll = F.pop(), F.pop()
    e(f"  v_mov_b32 v{coll}, 0")
    pend = []
    def fill(n):
        for _ in range(n):
            if pend: e(pend.pop(0))
            else: e("  s_nop 0")
    for rnd in range(8):
        fill(2)
        e(f"  v_max_u32_dpp v{t}, v{K[0]}, v{K[0]} quad_perm:[1,0,3,2] row_mask:0xf bank_mask:0xf")
        fill(2)
        e(f"  v_max_u32_dpp v{t}, v{t}, v{t} quad_perm:[2,3,0,1] row_mask:0xf bank_mask:0xf")
        fill(2)
        e(f"  v_max_u32_dpp v{t}, v{t}, v{t} row_half_mirror row_mask:0xf bank_mask:0xf")
        fill(2)
        e(f"  v_max_u32_dpp v{t}, v{t}, v{t} row_mirror row_mask:0xf bank_mask:0xf")
        while pend: e(pend.pop(0))
        e("  s_nop 0")
        e(f"  v_readlane_b32 s36, v{t}, 0")
        e(f"  v_readlane_b32 s37, v{t}, 16")
        e(f"  v_readlane_b32 s38, v{t}, 32")
        e(f"  v_readlane_b32 s39, v{t}, 48")
        e("  s_max_u32 s36, s36, s37")
        e("  s_max_u32 s38, s38, s39")
        e("  s_max_u32 s36, s36, s38")
        e(f"  v_writelane_b32 v{coll}, s36, {rnd}")
        if rnd < 7:
            e(f"  v_cmp_eq_u32 vcc, s36, v{K[0]}")
            e("  s_nop 1")
            e(f"  v_cndmask_b32 v{K[0]}, v{K[0]}, v{K[1]}, vcc")
            for k in range(1, 7 - rnd):
                pend.append(f"  v_cndmask_b32 v{K[k]}, v{K[k]}, v{K[k+1]}, vcc")
    e(f"  s_lshl_b32 s33, {wreg}, 5")
    e(f"  s_add_u32 s33, s33, {LDS_C}")
    e(f"  v_lshlrev_b32 v{t}, 2, v0")
    e(f"  v_add_u32 v{t}, s33, v{t}")
    e("  v_cmp_gt_u32 vcc, 8, v0")
    e("  s_and_saveexec_b64 s[40:41], vcc")
    e(f"  ds_write_b32 v{t}, v{coll}")
    e("  s_mov_b64 exec, s[40:41]")
    e("  s_waitcnt lgkmcnt(0)")
    e("  s_barrier")
    return t, coll

def gen_t4():
    name = "t4_kernel"
    kernel_begin(name)
    LDS_C, LDS_R, LDS_WD = 0, 256, 8704
    LDS_G, LDS_U, LDS_XS = 8704, 8704 + 8192, 8704 + 16384
    SPIN = 1 << 22
    e("  s_cmp_ge_u32 s2, 240")
    e("  s_cbranch_scc1 t4_done")
    e(f"  s_load_dwordx2 s[4:5], s[0:1], {KA_X}")
    e(f"  s_load_dwordx2 s[6:7], s[0:1], {KA_WS}")
    e(f"  s_load_dwordx4 s[8:11], s[0:1], {KA_WG}")
    e(f"  s_load_dwordx2 s[44:45], s[0:1], {KA_OUT}")
    e("  s_and_b32 s3, s2, 7")
    e("  s_mul_i32 s3, s3, 28")
    e("  s_lshr_b32 s12, s2, 3")
    e("  s_add_u32 s3, s3, s12")
    e("  v_mov_b32 v40, v0")
    e("  v_lshrrev_b32 v1, 6, v0")
    e("  v_and_b32 v0, 63, v0")
    e("  v_readfirstlane_b32 s13, v1")
    e("  s_waitcnt lgkmcnt(0)")
    srd(16, 4, 5, 2 << 20)
    srd(20, 6, 7, 12 << 20)
    srd(24, 8, 9, 512*1792*2)
    srd(28, 10, 11, 512*1792*2)
    srd(48, 44, 45, 2 << 20)
    e("  v_lshlrev_b32 v2, 5, v40")
    e(f"  s_mov_b32 s14, {WS_KEY}")
    e("  buffer_load_dwordx4 v[8:11], v2, s[20:23], s14 offen")
    e("  buffer_load_dwordx4 v[12:15], v2, s[20:23], s14 offen offset:16")
    e("  s_cmp_ge_u32 s2, 224")
    e("  s_cbranch_scc1 t4_dma2")
    e("  s_lshl_b32 s15, s3, 4")
    e("  s_movk_i32 s32, 3584")
    for ii in range(2):
        e(f"  s_lshl_b32 s33, s13, 7")
        e(f"  s_add_u32 s33, s33, {64*ii}")
        e(f"  v_add_u32 v3, s33, v0")
        e(f"  v_mul_lo_u32 v3, v3, s32")
        e(f"  s_lshl_b32 s34, s13, 11")
        e(f"  s_add_u32 m0, s34, {LDS_G + 1024*ii}")
        e("  s_nop 0")
        e(f"  buffer_load_dwordx4 v3, s[24:27], s15 offen lds")
        e(f"  s_add_u32 m0, s34, {LDS_U + 1024*ii}")
        e("  s_nop 0")
        e(f"  buffer_load_dwordx4 v3, s[28:31], s15 offen lds")
    e("  s_waitcnt vmcnt(4)")
    e("  s_branch t4_top")
    lab("t4_dma2")
    e("  s_sub_u32 s46, s2, 224")
    e("  v_lshlrev_b32 v3, 4, v0")
    e("  s_mul_i32 s34, s13, 7168")
    e(f"  s_mul_i32 s33, s46, {4*28672}")
    e("  s_add_u32 s33, s33, s34")
    e(f"  s_add_u32 s33, s33, {WS_WDB}")
    for dsl in range(4):
        for i in range(7):
            e(f"  s_add_u32 m0, s34, {LDS_WD + dsl*28672 + 1024*i}")
            e("  s_nop 0")
            e(f"  buffer_load_dwordx4 v3, s[20:23], s33 offen lds")
            e(f"  s_add_u32 s33, s33, {1024 if i < 6 else 28672 - 6*1024}")
    e("  s_waitcnt vmcnt(28)")
    lab("t4_top")
    stamp(1)
    t, coll = top8(range(8, 16), range(16, 24), LDS_C)
    e("  v_and_b32 v3, 31, v0")
    e("  v_lshlrev_b32 v3, 2, v3")
    e(f"  ds_read_b32 v24, v3 offset:{LDS_C}")
    e("  v_mov_b32 v4, 0")
    for q in range(8):
        e(f"  ds_read_b128 {vr(56+4*q,4)}, v4 offset:{LDS_C+16*q}")
    e("  v_mov_b32 v25, 0")
    e("  s_waitcnt lgkmcnt(0)")
    sp = [60, 62, 64, 66]
    for i in range(32 + 3):
        if i < 32:
            e(f"  v_cmp_gt_u32 s[{sp[i%4]}:{sp[i%4]+1}], v{56+i}, v24")
        if i >= 3:
            j = i - 3
            e(f"  v_addc_co_u32 v25, vcc, 0, v25, s[{sp[j%4]}:{sp[j%4]+1}]")
    e("  v_cmp_gt_u32 vcc, 8, v25")
    e("  v_cmp_gt_u32 s[42:43], 32, v0")
    e("  s_and_b64 vcc, vcc, s[42:43]")
    e("  v_lshlrev_b32 v3, 2, v25")
    e("  s_and_saveexec_b64 s[40:41], vcc")
    e(f"  ds_write_b32 v3, v24 offset:{LDS_C+128}")
    e("  s_mov_b64 exec, s[40:41]")
    e("  s_waitcnt lgkmcnt(0)")
    e("  s_barrier")
    stamp(2)
    e("  s_cmp_ge_u32 s2, 224")
    e("  s_cbranch_scc1 t4_f2")
    e("  v_lshrrev_b32 v4, 5, v40")
    e("  v_and_b32 v5, 31, v40")
    e("  v_lshlrev_b32 v3, 2, v4")
    e(f"  ds_read_b32 v6, v3 offset:{LDS_C+128}")
    e("  s_waitcnt lgkmcnt(0)")
    e("  v_and_b32 v6, 0xffff, v6")
    e("  v_sub_u32 v6, 0xffff, v6")
    e("  v_lshlrev_b32 v7, 10, v6")
    e("  v_lshl_add_u32 v7, v5, 4, v7")
    e(f"  s_mov_b32 s14, {WS_Y}")
    e(f"  s_mov_b32 s15, {WS_Y + (2<<20)}")
    YR, YI, XX = 24, 32, 44
    for j in range(2):
        e(f"  buffer_load_dwordx4 {vr(YR+4*j,4)}, v7, s[20:23], s14 offen offset:{512*j}")
        e(f"  buffer_load_dwordx4 {vr(YI+4*j,4)}, v7, s[20:23], s15 offen offset:{512*j}")
        e(f"  buffer_load_dwordx4 {vr(XX+4*j,4)}, v7, s[16:19], 0 offen offset:{512*j}")
    e("  v_lshlrev_b32 v3, 3, v6")
    e(f"  s_mov_b32 s14, {WS_STAT}")
    e("  buffer_load_dwordx2 v[52:53], v3, s[20:23], s14 offen")
    e("  s_waitcnt vmcnt(0)")
    stamp(3)
    e("  v_sub_f32 v54, 0, v52")
    e("  v_mov_b32 v55, v54")
    e("  v_mov_b32 v52, v53")
    recompute(YR, YI, XX, 8, 54, 52, 64, 80, 56)
    e(f"  v_mul_u32_u24 v3, {XS_STRIDE}, v4")
    e("  v_lshl_add_u32 v3, v5, 4, v3")
    e(f"  ds_write_b128 v3, v[80:83] offset:{LDS_XS}")
    e(f"  ds_write_b128 v3, v[84:87] offset:{LDS_XS+512}")
    e("  s_waitcnt lgkmcnt(0)")
    e("  s_barrier")
    e("  s_cmp_lg_u32 s13, 0")
    e("  s_cbranch_scc1 t4_done")
    e("  v_and_b32 v3, 7, v0")
    e(f"  v_mul_u32_u24 v3, {XS_STRIDE}, v3")
    e("  v_lshrrev_b32 v4, 4, v0")
    e("  v_lshl_add_u32 v3, v4, 4, v3")
    e("  v_and_b32 v5, 15, v0")
    e("  v_lshrrev_b32 v5, 2, v5")
    e("  v_lshl_add_u32 v5, v4, 3, v5")
    e("  v_lshlrev_b32 v5, 4, v5")
    e("  v_and_b32 v6, 1, v0")
    e("  v_lshl_add_u32 v5, v6, 3, v5")
    e("  v_and_b32 v6, 2, v0")
    e("  v_lshl_add_u32 v5, v6, 12, v5")
    for i in range(4):
        e(f"  v_mov_b32 v{8+i}, 0")
    FA, FB = 64, 128
    for st in range(16):
        e(f"  ds_read_b128 {vr(FA+4*st,4)}, v3 offset:{LDS_XS + 64*st}")
        e(f"  ds_read_b64_tr_b16 {vr(FB+4*st,2)}, v5 offset:{LDS_G+512*st}")
        e(f"  ds_read_b64_tr_b16 {vr(FB+4*st+2,2)}, v5 offset:{LDS_G+512*st+64}")
        if st % 4 == 3:
            e("  s_waitcnt lgkmcnt(0)")
            for s2 in range(st-3, st+1):
                e(f"  v_mfma_f32_16x16x32_bf16 v[8:11], {vr(FA+4*s2,4)}, {vr(FB+4*s2,4)}, v[8:11]")
    e("  s_nop 15")
    for i in range(4):
        e(f"  v_cvt_pk_bf16_f32 v{8+i}, v{8+i}, v{8+i}")
        e(f"  v_lshlrev_b32 v{8+i}, 16, v{8+i}")
    e("  s_nop 1")
    for i in range(4):
        e(f"  v_mov_b32_dpp v{12+i}, v{8+i} row_ror:8 row_mask:0xf bank_mask:0xf")
    for i in range(4):
        e(f"  v_mul_f32 v16, 0xbfb8aa3b, v{8+i}")
        e("  v_exp_f32 v16, v16")
        e("  s_nop 0")
        e("  v_add_f32 v16, 1.0, v16")
        e("  v_rcp_f32 v16, v16")
        e("  s_nop 0")
        e(f"  v_mul_f32 v16, v{8+i}, v16")
        e("  v_cvt_pk_bf16_f32 v16, v16, v16")
        e("  v_lshlrev_b32 v16, 16, v16")
        e(f"  v_mul_f32 v16, v16, v{12+i}")
        e(f"  v_cvt_pk_bf16_f32 v{20+i}, v16, v16")
    e("  s_nop 1")
    for i in range(4):
        e(f"  v_mov_b32_dpp v{24+i}, v{20+i} quad_perm:[1,0,3,2] row_mask:0xf bank_mask:0xf")
    for i in range(4):
        e(f"  v_and_b32 v{20+i}, 0xffff, v{20+i}")
        e(f"  v_and_b32 v{24+i}, 0xffff0000, v{24+i}")
        e(f"  v_or_b32 v{20+i}, v{20+i}, v{24+i}")
    for i in range(4):
        e(f"  v_min_u32 v{20+i}, 0xfffeffff, v{20+i}")
    stamp(4)
    e("  v_and_b32 v5, 15, v0")
    e("  v_lshlrev_b32 v4, 6, v4")
    e("  v_lshl_add_u32 v4, v5, 1, v4")
    e("  v_lshlrev_b32 v7, 4, v0")
    e("  v_and_b32 v6, 9, v0")
    e("  v_cmp_eq_u32 vcc, 0, v6")
    e("  v_cmp_gt_u32 s[42:43], 32, v0")
    e("  s_and_b64 vcc, vcc, s[42:43]")
    e("  s_and_saveexec_b64 s[40:41], vcc")
    for i in range(4):
        e(f"  ds_write_b32 v4, v{20+i} offset:{LDS_R+16*i}")
    e("  s_mov_b64 exec, 0xff")
    e("  s_waitcnt lgkmcnt(0)")
    e(f"  ds_read_b128 v[24:27], v7 offset:{LDS_R}")
    e("  s_lshl_b32 s15, s3, 7")
    e(f"  s_add_u32 s15, s15, {WS_GU}")
    e("  s_waitcnt lgkmcnt(0)")
    e("  buffer_store_dwordx4 v[24:27], v7, s[20:23], s15 offen sc1")
    e("  s_branch t4_done")
    lab("t4_f2")
    e("  v_lshrrev_b32 v5, 4, v0")
    e("  v_and_b32 v6, 1, v5")
    e("  v_lshlrev_b32 v6, 4, v6")
    e(f"  ds_read_b128 v[24:27], v6 offset:{LDS_C+128}")
    e("  v_and_b32 v6, 15, v0")
    e("  s_lshl_b32 s15, s46, 6")
    e("  s_waitcnt lgkmcnt(0)")
    for i in range(4):
        e(f"  v_and_b32 v{28+i}, 0xffff, v{24+i}")
        e(f"  v_sub_u32 v{28+i}, 0xffff, v{28+i}")
        e(f"  v_lshlrev_b32 v{32+i}, 3, v{28+i}")
        e(f"  v_lshlrev_b32 v{28+i}, 10, v{28+i}")
        e(f"  v_lshl_add_u32 v{28+i}, v6, 1, v{28+i}")
        e(f"  v_add_u32 v{28+i}, s15, v{28+i}")
    e("  s_cmp_lg_u32 s13, 0")
    e("  s_cbranch_scc1 t4_noepi")
    e(f"  s_mov_b32 s36, {WS_Y}")
    e(f"  s_mov_b32 s37, {WS_Y + (2<<20)}")
    e(f"  s_mov_b32 s38, {WS_STAT}")
    for a in range(2):
        for i in range(4):
            e(f"  buffer_load_ushort v{192+12*a+i}, v{28+i}, s[20:23], s36 offen offset:{32*a}")
            e(f"  buffer_load_ushort v{196+12*a+i}, v{28+i}, s[20:23], s37 offen offset:{32*a}")
            e(f"  buffer_load_ushort v{200+12*a+i}, v{28+i}, s[16:19], 0 offen offset:{32*a}")
    for i in range(4):
        e(f"  buffer_load_dwordx2 {vr(48+2*i,2)}, v{32+i}, s[20:23], s38 offen")
    lab("t4_noepi")
    e("  v_lshrrev_b32 v7, 2, v6")
    e("  v_lshl_add_u32 v7, v5, 3, v7")
    e("  v_lshlrev_b32 v7, 4, v7")
    e("  v_and_b32 v60, 1, v0")
    e("  v_lshl_add_u32 v7, v60, 3, v7")
    e("  v_and_b32 v60, 2, v0")
    e("  v_mul_u32_u24 v60, 14336, v60")
    e("  v_add_u32 v7, v60, v7")
    e("  v_add_u32 v7, s34, v7")
    e(f"  v_add_u32 v61, {2*28672}, v7")
    e("  s_waitcnt vmcnt(0)")
    FB0, FB1 = 72, 128
    for st in range(14):
        e(f"  ds_read_b64_tr_b16 {vr(FB0+4*st,2)}, v7 offset:{LDS_WD+512*st}")
        e(f"  ds_read_b64_tr_b16 {vr(FB0+4*st+2,2)}, v7 offset:{LDS_WD+512*st+64}")
        e(f"  ds_read_b64_tr_b16 {vr(FB1+4*st,2)}, v61 offset:{LDS_WD+512*st}")
        e(f"  ds_read_b64_tr_b16 {vr(FB1+4*st+2,2)}, v61 offset:{LDS_WD+512*st+64}")
        if st % 3 == 2: e("  s_waitcnt lgkmcnt(0)")
    for i in range(8):
        e(f"  v_mov_b32 v{8+i}, 0")
    for i in range(4):
        e(f"  v_and_b32 v60, 0xffff0000, v{24+i}")
        e("  v_ashrrev_i32 v62, 31, v60")
        e("  v_not_b32 v62, v62")
        e("  v_or_b32 v62, 0x80000000, v62")
        e("  v_xor_b32 v60, v60, v62")
        e("  v_and_b32 v60, 0xffff0000, v60")
        e("  v_mul_f32 v60, 0xbfb8aa3b, v60")
        e("  v_exp_f32 v60, v60")
        e("  s_nop 0")
        e("  v_add_f32 v60, 1.0, v60")
        e("  v_rcp_f32 v60, v60")
        e("  s_nop 0")
        e("  v_cvt_pk_bf16_f32 v60, v60, v60")
        e(f"  v_lshlrev_b32 v{24+i}, 16, v60")
    for a in range(2):
        for i in range(4):
            r0, r1, r2 = 192+12*a+i, 196+12*a+i, 200+12*a+i
            e(f"  v_lshlrev_b32 v{r0}, 16, v{r0}")
            e(f"  v_lshlrev_b32 v{r1}, 16, v{r1}")
            e(f"  v_lshlrev_b32 v{r2}, 16, v{r2}")
            e(f"  v_sub_f32 v60, v{r0}, v{r1}")
            e("  v_cvt_pk_bf16_f32 v60, v60, v60")
            e("  v_lshlrev_b32 v60, 16, v60")
            e(f"  v_add_f32 v60, v{r2}, v60")
            e("  v_cvt_pk_bf16_f32 v60, v60, v60")
            e(f"  v_lshlrev_b32 v{r0}, 16, v60")
            e(f"  v_sub_f32 v62, v{r0}, v{48+2*i}")
            e("  v_cvt_pk_bf16_f32 v62, v62, v62")
            e("  v_lshlrev_b32 v62, 16, v62")
            e(f"  v_mul_f32 v62, v62, v{49+2*i}")
            e("  v_cvt_pk_bf16_f32 v62, v62, v62")
            e(f"  v_lshlrev_b32 v{r1}, 16, v62")
    stamp(3)
    e("  v_and_b32 v4, 7, v0")
    e("  v_lshlrev_b32 v4, 4, v4")
    e("  v_lshl_add_u32 v4, v5, 7, v4")
    e("  s_mul_i32 s14, s13, 7168")
    e(f"  s_add_u32 s14, s14, {WS_GU}")
    regs = [216+4*i for i in range(9)] + [36, 40, 44, 56, 64]
    e("  v_add_u32 v62, 4096, v4")
    e("  s_mov_b32 s53, 0")
    lab("t4_poll")
    for st in range(14):
        e(f"  buffer_load_dwordx4 {vr(regs[st],4)}, v4, s[20:23], s14 offen offset:{512*st if st < 8 else 0} sc1") if st < 8 else e(f"  buffer_load_dwordx4 {vr(regs[st],4)}, v62, s[20:23], s14 offen offset:{512*(st-8)} sc1")
    e("  v_mov_b32 v3, 0")
    for st in range(14):
        e(f"  s_waitcnt vmcnt({13-st})")
        e(f"  v_max3_u32 v3, v3, v{regs[st]}, v{regs[st]+1}")
        e(f"  v_max3_u32 v3, v3, v{regs[st]+2}, v{regs[st]+3}")
    e("  v_cmp_eq_u32 s[54:55], -1, v3")
    e("  s_nop 3")
    e("  s_cmp_eq_u64 s[54:55], 0")
    e("  s_cbranch_scc1 t4_poll_ok")
    e("  s_add_u32 s53, s53, 1")
    e(f"  s_cmp_gt_u32 s53, {SPIN}")
    e("  s_cbranch_scc1 t4_poll_ok")
    e("  s_branch t4_poll")
    lab("t4_poll_ok")
    stamp(5)
    e("  s_waitcnt lgkmcnt(0)")
    for st in range(14):
        e(f"  v_mfma_f32_16x16x32_bf16 v[8:11], {vr(regs[st],4)}, {vr(FB0+4*st,4)}, v[8:11]")
        e(f"  v_mfma_f32_16x16x32_bf16 v[12:15], {vr(regs[st],4)}, {vr(FB1+4*st,4)}, v[12:15]")
    e("  s_nop 15")
    stamp(6)
    e("  v_lshlrev_b32 v3, 4, v0")
    e("  s_lshl_b32 s33, s13, 11")
    e("  v_add_u32 v3, s33, v3")
    e(f"  ds_write_b128 v3, v[8:11] offset:{LDS_R}")
    e(f"  ds_write_b128 v3, v[12:15] offset:{LDS_R+1024}")
    e("  s_waitcnt lgkmcnt(0)")
    e("  s_barrier")
    e("  s_cmp_lg_u32 s13, 0")
    e("  s_cbranch_scc1 t4_done")
    e("  v_lshlrev_b32 v3, 4, v0")
    for w in range(1, 4):
        for a in range(2):
            e(f"  ds_read_b128 {vr(72+8*(w-1)+4*a,4)}, v3 offset:{LDS_R+2048*w+1024*a}")
    e("  v_cmp_gt_u32 vcc, 32, v0")
    e("  s_and_saveexec_b64 s[40:41], vcc")
    e("  s_waitcnt lgkmcnt(0)")
    for a in range(2):
        for i in range(4):
            y = 8 + 4*a + i
            e(f"  v_add_f32 v{y}, v{y}, v{72+4*a+i}")
            e(f"  v_add_f32 v60, v{80+4*a+i}, v{88+4*a+i}")
            e(f"  v_add_f32 v{y}, v{y}, v60")
            e(f"  v_cvt_pk_bf16_f32 v{y}, v{y}, v{y}")
            e(f"  v_lshlrev_b32 v{y}, 16, v{y}")
            e(f"  v_mul_f32 v{y}, v{y}, v{24+i}")
            e(f"  v_cvt_pk_bf16_f32 v{y}, v{y}, v{y}")
            e(f"  v_lshlrev_b32 v{y}, 16, v{y}")
            e(f"  v_add_f32 v61, v{196+12*a+i}, v{y}")
            e("  v_cvt_pk_bf16_f32 v61, v61, v61")
            e("  v_lshlrev_b32 v61, 16, v61")
            e(f"  v_add_f32 v61, v{192+12*a+i}, v61")
            e("  v_cvt_pk_bf16_f32 v61, v61, v61")
            e(f"  buffer_store_short v61, v{28+i}, s[48:51], 0 offen offset:{32*a}")
    lab("t4_done")
    kernel_end()
    e("  s_endpgm")
    kernel_desc(name, 252)

ROW_O = 48
def rowmac(first, O=148, sc1=False):
    YR, YI, XX, WR, H, T, D = 16, 32, 48, 64, 80, 112, 116
    if sc1: O = ROW_O
    SC = " sc1" if sc1 else ""
    e("  v_lshlrev_b32 v3, 10, v1")
    e("  v_lshl_add_u32 v3, v2, 4, v3")
    e(f"  s_mov_b32 s52, {WS_Y}")
    e(f"  s_mov_b32 s53, {WS_Y + (2<<20)}")
    for j in range(4):
        e(f"  buffer_load_dwordx4 {vr(YR+4*j,4)}, v3, s[24:27], s52 offen offset:{256*j}{SC}")
        e(f"  buffer_load_dwordx4 {vr(YI+4*j,4)}, v3, s[24:27], s53 offen offset:{256*j}{SC}")
        e(f"  buffer_load_dwordx4 {vr(XX+4*j,4)}, v3, s[20:23], 0 offen offset:{256*j}")
    nextra = 0
    if first:
        e("  v_lshlrev_b32 v4, 4, v2")
        for j in range(4):
            e(f"  buffer_load_dwordx4 {vr(WR+4*j,4)}, v4, s[28:31], 0 offen offset:{256*j}")
        nextra = 4
    e("  v_mov_b32 v14, 0")
    e("  v_mov_b32 v15, 0")
    for j in range(4):
        e(f"  s_waitcnt vmcnt({nextra + 3*(3-j)})")
        for q in range(4):
            i = 4*j + q
            e(f"  v_lshlrev_b32 v{T}, 16, v{YR+i}")
            e(f"  v_and_b32 v{T+1}, 0xffff0000, v{YR+i}")
            e(f"  v_lshlrev_b32 v{T+2}, 16, v{YI+i}")
            e(f"  v_and_b32 v{T+3}, 0xffff0000, v{YI+i}")
            e(f"  v_pk_add_f32 {vr(T,2)}, {vr(T,2)}, {vr(T+2,2)} neg_lo:[0,1] neg_hi:[0,1]")
            e(f"  v_cvt_pk_bf16_f32 v{T}, v{T}, v{T+1}")
            e(f"  v_and_b32 v{T+1}, 0xffff0000, v{T}")
            e(f"  v_lshlrev_b32 v{T}, 16, v{T}")
            e(f"  v_lshlrev_b32 v{T+2}, 16, v{XX+i}")
            e(f"  v_and_b32 v{T+3}, 0xffff0000, v{XX+i}")
            e(f"  v_pk_add_f32 {vr(T,2)}, {vr(T,2)}, {vr(T+2,2)}")
            e(f"  v_cvt_pk_bf16_f32 v{YI+i}, v{T}, v{T+1}")
            e(f"  v_lshlrev_b32 v{H+2*i}, 16, v{YI+i}")
            e(f"  v_and_b32 v{H+2*i+1}, 0xffff0000, v{YI+i}")
            e(f"  v_pk_add_f32 v[14:15], v[14:15], {vr(H+2*i,2)}")
    e("  v_add_f32 v5, v14, v15")
    reduce16(5)
    e("  v_mul_f32 v5, 0x3b000000, v5")
    e("  v_cvt_pk_bf16_f32 v6, v5, v5")
    e("  v_lshlrev_b32 v6, 16, v6")
    e("  v_sub_f32 v8, 0, v6")
    e("  v_mov_b32 v9, v8")
    e("  v_mov_b32 v10, 0")
    e("  v_mov_b32 v11, 0")
    for i in range(16):
        e(f"  v_pk_add_f32 {vr(D+2*i,2)}, {vr(H+2*i,2)}, v[8:9]")
        e(f"  v_pk_fma_f32 v[10:11], {vr(D+2*i,2)}, {vr(D+2*i,2)}, v[10:11]")
    e("  v_add_f32 v10, v10, v11")
    reduce16(10)
    e("  v_sub_f32 v11, v5, v6")
    e("  v_mul_f32 v11, v11, v11")
    e("  v_mul_f32 v10, 0x3b000000, v10")
    e("  v_sub_f32 v10, v10, v11")
    e("  v_max_f32 v10, 0, v10")
    e("  v_cvt_pk_bf16_f32 v10, v10, v10")
    e("  v_lshlrev_b32 v10, 16, v10")
    e("  v_add_f32 v10, 0x3727c5ac, v10")
    e("  v_cvt_pk_bf16_f32 v10, v10, v10")
    e("  v_lshlrev_b32 v10, 16, v10")
    e("  v_sqrt_f32 v10, v10")
    e("  s_nop 0")
    e("  v_cvt_pk_bf16_f32 v10, v10, v10")
    e("  v_lshlrev_b32 v10, 16, v10")
    e("  v_rcp_f32 v10, v10")
    e("  s_nop 0")
    e("  v_mov_b32 v11, v10")
    if first:
        e("  v_mov_b32 v12, 0")
        e("  s_waitcnt vmcnt(0)")
    for i in range(16):
        e(f"  v_cvt_pk_bf16_f32 v{T}, v{D+2*i}, v{D+2*i+1}")
        e(f"  v_lshlrev_b32 v{D+2*i}, 16, v{T}")
        e(f"  v_and_b32 v{D+2*i+1}, 0xffff0000, v{T}")
        e(f"  v_pk_mul_f32 {vr(D+2*i,2)}, {vr(D+2*i,2)}, v[10:11]")
        e(f"  v_cvt_pk_bf16_f32 v{YR+i}, v{D+2*i}, v{D+2*i+1}")
        if first:
            e(f"  v_dot2_f32_bf16 v12, v{YR+i}, v{WR+i}, v12")
            e(f"  v_lshlrev_b32 v{D+2*i}, 16, v{YR+i}")
            e(f"  v_and_b32 v{D+2*i+1}, 0xffff0000, v{YR+i}")
            e(f"  v_pk_add_f32 {vr(D+2*i,2)}, {vr(D+2*i,2)}, {vr(H+2*i,2)}")
            e(f"  v_cvt_pk_bf16_f32 v{O+i}, v{D+2*i}, v{D+2*i+1}")
    if first:
        e("  s_nop 3")
        reduce16(12)
        e("  v_cvt_pk_bf16_f32 v12, v12, v12")
        e("  v_lshlrev_b32 v12, 16, v12")
        e("  v_ashrrev_i32 v13, 31, v12")
        e("  v_or_b32 v13, 0x80000000, v13")
        e("  v_xor_b32 v12, v12, v13")
        e("  v_and_b32 v12, 0xffff0000, v12")
        e("  v_sub_u32 v13, 0xffff, v1")
        e("  v_or_b32 v12, v12, v13")

def gen_tf():
    name = "tf_kernel"
    kernel_begin(name)
    LDS_G, LDS_U, LDS_WD = 0, 8192, 16384
    LDS_XS = 45056
    LDS_HS = LDS_XS + 8 * XS_STRIDE
    LDS_C = LDS_HS + 8192
    LDS_R = LDS_C + 256
    SPIN = 1 << 22
    e("  s_cmp_ge_u32 s2, 256")
    e("  s_cbranch_scc1 tf_done")
    e(f"  s_load_dwordx2 s[4:5], s[0:1], {KA_X}")
    e(f"  s_load_dwordx2 s[6:7], s[0:1], {KA_WS}")
    e(f"  s_load_dwordx8 s[8:15], s[0:1], {KA_WR}")
    e(f"  s_load_dwordx2 s[16:17], s[0:1], {KA_OUT}")
    e("  s_and_b32 s3, s2, 7")
    e("  s_mul_i32 s49, s3, 28")
    e("  s_lshr_b32 s50, s2, 3")
    e("  s_add_u32 s49, s49, s50")
    e("  s_sub_u32 s50, s50, 24")
    e("  s_lshl_b32 s51, s3, 3")
    e("  s_add_u32 s50, s50, s51")
    e("  v_mov_b32 v180, v0")
    e("  v_lshrrev_b32 v1, 6, v0")
    e("  v_and_b32 v0, 63, v0")
    e("  v_readfirstlane_b32 s48, v1")
    e("  s_waitcnt lgkmcnt(0)")
    srd(20, 4, 5, 2 << 20)
    srd(24, 6, 7, 9 << 20)
    srd(28, 8, 9, 1024)
    srd(32, 10, 11, 512*1792*2)
    srd(36, 12, 13, 512*1792*2)
    srd(40, 14, 15, 1792*512*2)
    srd(44, 16, 17, 2 << 20)
    e("  s_cmp_lt_u32 s48, 2")
    e("  s_cbranch_scc1 tf_p1")
    e("  s_cmp_ge_u32 s2, 224")
    e("  s_cbranch_scc1 tf_nof1")
    e("  s_movk_i32 s52, 3584")
    e("  v_mul_lo_u32 v3, v0, s52")
    e("  s_lshl_b32 s53, s49, 4")
    e("  s_cmp_eq_u32 s48, 2")
    e("  s_cbranch_scc0 tf_dma_u")
    for i in range(8):
        e(f"  s_mov_b32 m0, {LDS_G + 1024*i}")
        e("  s_nop 0")
        e("  buffer_load_dwordx4 v3, s[32:35], s53 offen lds")
        e(f"  s_add_u32 s53, s53, {64*3584}")
    e("  s_branch tf_nof1")
    lab("tf_dma_u")
    for i in range(8):
        e(f"  s_mov_b32 m0, {LDS_U + 1024*i}")
        e("  s_nop 0")
        e("  buffer_load_dwordx4 v3, s[36:39], s53 offen lds")
        e(f"  s_add_u32 s53, s53, {64*3584}")
    lab("tf_nof1")
    e("  s_cmp_lt_u32 s2, 192")
    e("  s_cbranch_scc1 tf_poll1")
    e("  v_lshlrev_b32 v3, 10, v0")
    e("  s_sub_u32 s52, s48, 2")
    e(f"  s_mul_i32 s53, s52, {896*1024}")
    e("  s_lshl_b32 s54, s50, 4")
    e("  s_add_u32 s53, s53, s54")
    e(f"  s_mul_i32 s54, s52, {896*16}")
    for i in range(14):
        e(f"  s_add_u32 m0, s54, {LDS_WD + 1024*i}")
        e("  s_nop 0")
        e("  buffer_load_dwordx4 v3, s[40:43], s53 offen lds")
        e("  s_add_u32 s53, s53, 0x10000")
    e("  s_branch tf_poll1")
    lab("tf_p1")
    e("  v_lshrrev_b32 v1, 4, v180")
    e("  v_and_b32 v2, 15, v0")
    e("  s_lshl_b32 s52, s2, 3")
    e("  v_add_u32 v1, s52, v1")
    e("  v_mov_b32 v181, v1")
    rowmac(True)
    e("  v_cmp_eq_u32 vcc, 0, v2")
    e("  s_and_saveexec_b64 s[56:57], vcc")
    e("  v_lshlrev_b32 v13, 2, v1")
    e(f"  s_mov_b32 s52, {WS_KEY}")
    e("  buffer_store_dword v12, v13, s[24:27], s52 offen sc1")
    e("  s_mov_b64 exec, s[56:57]")
    stamp(1)
    lab("tf_poll1")
    K = 164
    e("  v_lshlrev_b32 v172, 5, v180")
    e(f"  s_mov_b32 s52, {WS_KEY}")
    e("  s_mov_b32 s60, 0")
    lab("tf_poll1_loop")
    e(f"  buffer_load_dwordx4 {vr(K,4)}, v172, s[24:27], s52 offen sc1")
    e(f"  buffer_load_dwordx4 {vr(K+4,4)}, v172, s[24:27], s52 offen offset:16 sc1")
    e("  s_waitcnt vmcnt(0)")
    e(f"  v_min3_u32 v173, v{K}, v{K+1}, v{K+2}")
    e(f"  v_min3_u32 v174, v{K+3}, v{K+4}, v{K+5}")
    e(f"  v_min3_u32 v173, v173, v{K+6}, v{K+7}")
    e("  v_min_u32 v173, v173, v174")
    e("  v_cmp_eq_u32 s[62:63], 0, v173")
    e("  s_nop 3")
    e("  s_cmp_eq_u64 s[62:63], 0")
    e("  s_cbranch_scc1 tf_poll1_ok")
    e("  s_add_u32 s60, s60, 1")
    e(f"  s_cmp_gt_u32 s60, {SPIN}")
    e("  s_cbranch_scc1 tf_poll1_ok")
    e("  s_sleep 1")
    e("  s_branch tf_poll1_loop")
    lab("tf_poll1_ok")
    stamp(2)
    e("  v_mov_b32 v176, 0")
    for rnd in range(8):
        e(f"  v_max3_u32 v173, v{K}, v{K+1}, v{K+2}")
        e(f"  v_max3_u32 v174, v{K+3}, v{K+4}, v{K+5}")
        e(f"  v_max3_u32 v173, v173, v{K+6}, v{K+7}")
        e("  v_max_u32 v173, v173, v174")
        e("  s_nop 1")
        e("  v_max_u32_dpp v173, v173, v173 quad_perm:[1,0,3,2] row_mask:0xf bank_mask:0xf")
        e("  s_nop 1")
        e("  v_max_u32_dpp v173, v173, v173 quad_perm:[2,3,0,1] row_mask:0xf bank_mask:0xf")
        e("  s_nop 1")
        e("  v_max_u32_dpp v173, v173, v173 row_half_mirror row_mask:0xf bank_mask:0xf")
        e("  s_nop 1")
        e("  v_max_u32_dpp v173, v173, v173 row_mirror row_mask:0xf bank_mask:0xf")
        e("  s_nop 1")
        e("  v_readlane_b32 s64, v173, 0")
        e("  v_readlane_b32 s65, v173, 16")
        e("  v_readlane_b32 s66, v173, 32")
        e("  v_readlane_b32 s67, v173, 48")
        e("  s_max_u32 s64, s64, s65")
        e("  s_max_u32 s66, s66, s67")
        e("  s_max_u32 s64, s64, s66")
        e(f"  v_writelane_b32 v176, s64, {rnd}")
        if rnd < 7:
            for k in range(8):
                e(f"  v_cmp_ne_u32 vcc, s64, v{K+k}")
                e("  s_nop 1")
                e(f"  v_cndmask_b32 v{K+k}, 0, v{K+k}, vcc")
    e("  s_lshl_b32 s52, s48, 5")
    e(f"  s_add_u32 s52, s52, {LDS_C}")
    e("  v_lshlrev_b32 v172, 2, v0")
    e("  v_add_u32 v172, s52, v172")
    e("  v_cmp_gt_u32 vcc, 8, v0")
    e("  s_and_saveexec_b64 s[56:57], vcc")
    e("  ds_write_b32 v172, v176")
    e("  s_mov_b64 exec, s[56:57]")
    e("  s_waitcnt lgkmcnt(0)")
    e("  s_barrier")
    e("  v_and_b32 v172, 31, v0")
    e("  v_lshlrev_b32 v172, 2, v172")
    e(f"  ds_read_b32 v177, v172 offset:{LDS_C}")
    e("  v_mov_b32 v178, 0")
    e("  s_waitcnt lgkmcnt(0)")
    for i in range(32):
        e(f"  v_readlane_b32 s64, v177, {i}")
        e("  s_nop 1")
        e("  v_cmp_gt_u32 vcc, s64, v177")
        e("  s_nop 1")
        e("  v_addc_co_u32 v178, vcc, 0, v178, vcc")
    e("  v_cmp_gt_u32 vcc, 8, v178")
    e("  v_cmp_gt_u32 s[58:59], 32, v0")
    e("  s_and_b64 vcc, vcc, s[58:59]")
    e("  v_lshlrev_b32 v172, 2, v178")
    e("  s_and_saveexec_b64 s[56:57], vcc")
    e(f"  ds_write_b32 v172, v177 offset:{LDS_C+128}")
    e("  s_mov_b64 exec, s[56:57]")
    e("  s_waitcnt lgkmcnt(0)")
    e("  s_barrier")
    stamp(3)
    e("  s_cmp_lt_u32 s48, 2")
    e("  s_cbranch_scc1 tf_p2")
    e("  s_waitcnt vmcnt(0)")
    e("  s_branch tf_p2_end")
    lab("tf_p2")
    e("  v_mov_b32 v172, 0")
    e(f"  ds_read_b128 {vr(K,4)}, v172 offset:{LDS_C+128}")
    e(f"  ds_read_b128 {vr(K+4,4)}, v172 offset:{LDS_C+144}")
    e("  v_lshrrev_b32 v173, 4, v180")
    e("  v_lshlrev_b32 v173, 2, v173")
    e(f"  ds_read_b32 v174, v173 offset:{LDS_C+128}")
    e("  v_sub_u32 v175, 0xffff, v181")
    e("  s_waitcnt lgkmcnt(0)")
    e("  s_mov_b64 s[58:59], exec")
    for k in range(8):
        e(f"  v_and_b32 v{K+k}, 0xffff, v{K+k}")
        e(f"  v_cmp_ne_u32 vcc, v{K+k}, v175")
        e("  s_and_b64 s[58:59], s[58:59], vcc")
    e("  v_lshlrev_b32 v3, 10, v181")
    e("  v_lshl_add_u32 v3, v2, 4, v3")
    e("  s_and_saveexec_b64 s[56:57], s[58:59]")
    e("  s_cbranch_execz tf_nostore")
    for j in range(4):
        e(f"  buffer_store_dwordx4 {vr(148+4*j,4)}, v3, s[44:47], 0 offen offset:{256*j}")
    lab("tf_nostore")
    e("  s_mov_b64 exec, s[56:57]")
    e("  v_and_b32 v1, 0xffff, v174")
    e("  v_sub_u32 v1, 0xffff, v1")
    rowmac(False)
    e("  v_lshrrev_b32 v173, 4, v180")
    e(f"  v_mul_u32_u24 v4, {XS_STRIDE}, v173")
    e("  v_lshl_add_u32 v4, v2, 4, v4")
    e("  v_lshlrev_b32 v5, 10, v173")
    e("  v_lshl_add_u32 v5, v2, 4, v5")
    for j in range(4):
        e(f"  ds_write_b128 v4, {vr(16+4*j,4)} offset:{LDS_XS+256*j}")
        e(f"  ds_write_b128 v5, {vr(32+4*j,4)} offset:{LDS_HS+256*j}")
    e("  s_waitcnt lgkmcnt(0)")
    lab("tf_p2_end")
    e("  s_barrier")
    stamp(4)
    e("  s_cmp_lg_u32 s48, 0")
    e("  s_cbranch_scc1 tf_f2")
    e("  s_cmp_ge_u32 s2, 224")
    e("  s_cbranch_scc1 tf_f2")
    e("  v_and_b32 v3, 7, v0")
    e(f"  v_mul_u32_u24 v3, {XS_STRIDE}, v3")
    e("  v_lshrrev_b32 v4, 4, v0")
    e("  v_lshl_add_u32 v3, v4, 4, v3")
    e("  v_and_b32 v5, 15, v0")
    e("  v_lshrrev_b32 v5, 2, v5")
    e("  v_lshl_add_u32 v5, v4, 3, v5")
    e("  v_lshlrev_b32 v5, 4, v5")
    e("  v_and_b32 v6, 1, v0")
    e("  v_lshl_add_u32 v5, v6, 3, v5")
    e("  v_and_b32 v6, 2, v0")
    e("  v_lshl_add_u32 v5, v6, 12, v5")
    for i in range(4):
        e(f"  v_mov_b32 v{8+i}, 0")
    FA, FB = 16, 80
    for st in range(16):
        e(f"  ds_read_b128 {vr(FA+4*st,4)}, v3 offset:{LDS_XS + 64*st}")
        e(f"  ds_read_b64_tr_b16 {vr(FB+4*st,2)}, v5 offset:{512*st}")
        e(f"  ds_read_b64_tr_b16 {vr(FB+4*st+2,2)}, v5 offset:{512*st+64}")
        if st % 4 == 3:
            e("  s_waitcnt lgkmcnt(0)")
            for s2 in range(st-3, st+1):
                e(f"  v_mfma_f32_16x16x32_bf16 v[8:11], {vr(FA+4*s2,4)}, {vr(FB+4*s2,4)}, v[8:11]")
    e("  s_nop 15")
    for i in range(4):
        e(f"  v_cvt_pk_bf16_f32 v{8+i}, v{8+i}, v{8+i}")
        e(f"  v_lshlrev_b32 v{8+i}, 16, v{8+i}")
    e("  s_nop 1")
    for i in range(4):
        e(f"  v_mov_b32_dpp v{12+i}, v{8+i} row_ror:8 row_mask:0xf bank_mask:0xf")
    for i in range(4):
        e(f"  v_mul_f32 v16, 0xbfb8aa3b, v{8+i}")
        e("  v_exp_f32 v16, v16")
        e("  s_nop 0")
        e("  v_add_f32 v16, 1.0, v16")
        e("  v_rcp_f32 v16, v16")
        e("  s_nop 0")
        e(f"  v_mul_f32 v16, v{8+i}, v16")
        e("  v_cvt_pk_bf16_f32 v16, v16, v16")
        e("  v_lshlrev_b32 v16, 16, v16")
        e(f"  v_mul_f32 v16, v16, v{12+i}")
        e(f"  v_cvt_pk_bf16_f32 v{20+i}, v16, v16")
    e("  s_nop 1")
    for i in range(4):
        e(f"  v_mov_b32_dpp v{24+i}, v{20+i} quad_perm:[1,0,3,2] row_mask:0xf bank_mask:0xf")
    for i in range(4):
        e(f"  v_and_b32 v{20+i}, 0xffff, v{20+i}")
        e(f"  v_and_b32 v{24+i}, 0xffff0000, v{24+i}")
        e(f"  v_or_b32 v{20+i}, v{20+i}, v{24+i}")
    e("  v_and_b32 v5, 15, v0")
    e("  v_and_b32 v6, 9, v0")
    e("  v_cmp_eq_u32 vcc, 0, v6")
    e("  v_cmp_gt_u32 s[58:59], 32, v0")
    e("  s_and_b64 vcc, vcc, s[58:59]")
    e("  s_and_saveexec_b64 s[56:57], vcc")
    e("  v_lshlrev_b32 v4, 2, v4")
    e("  v_mul_u32_u24 v4, 3584, v4")
    e("  v_lshl_add_u32 v4, v5, 1, v4")
    e("  s_lshl_b32 s52, s49, 4")
    e(f"  s_add_u32 s52, s52, {WS_GU}")
    for i in range(4):
        e(f"  buffer_store_dword v{20+i}, v4, s[24:27], s52 offen sc1")
        if i < 3:
            e("  v_add_u32 v4, 3584, v4")
    e("  s_waitcnt vmcnt(0)")
    e("  s_mov_b64 exec, 1")
    e("  v_mov_b32 v4, 1")
    e("  v_mov_b32 v5, 0")
    e("  s_lshl_b32 s52, s49, 2")
    e(f"  s_add_u32 s52, s52, {WS_FLAG}")
    e("  buffer_store_dword v4, v5, s[24:27], s52 offen sc1")
    e("  s_mov_b64 exec, s[56:57]")
    stamp(5)
    lab("tf_f2")
    e("  s_cmp_lt_u32 s2, 192")
    e("  s_cbranch_scc1 tf_done")
    e("  v_min_u32 v3, 55, v0")
    e("  v_lshlrev_b32 v3, 2, v3")
    e("  s_mul_i32 s52, s48, 224")
    e(f"  s_add_u32 s52, s52, {WS_FLAG}")
    e("  s_mov_b32 s60, 0")
    lab("tf_poll2_loop")
    e("  buffer_load_dword v4, v3, s[24:27], s52 offen sc1")
    e("  s_waitcnt vmcnt(0)")
    e("  v_cmp_eq_u32 s[62:63], 0, v4")
    e("  s_nop 3")
    e("  s_cmp_eq_u64 s[62:63], 0")
    e("  s_cbranch_scc1 tf_poll2_ok")
    e("  s_add_u32 s60, s60, 1")
    e(f"  s_cmp_gt_u32 s60, {SPIN}")
    e("  s_cbranch_scc1 tf_poll2_ok")
    e("  s_sleep 1")
    e("  s_branch tf_poll2_loop")
    lab("tf_poll2_ok")
    stamp(6)
    e("  v_and_b32 v4, 7, v0")
    e("  v_mul_u32_u24 v4, 3584, v4")
    e("  v_lshrrev_b32 v5, 4, v0")
    e("  v_lshl_add_u32 v4, v5, 4, v4")
    e("  s_mul_i32 s52, s48, 896")
    e(f"  s_add_u32 s52, s52, {WS_GU}")
    FA, FB = 16, 72
    for st in range(14):
        e(f"  buffer_load_dwordx4 {vr(FA+4*st,4)}, v4, s[24:27], s52 offen offset:{64*st} sc1")
    e("  v_and_b32 v7, 15, v0")
    e("  v_lshrrev_b32 v7, 2, v7")
    e("  v_lshl_add_u32 v7, v5, 3, v7")
    e("  v_lshlrev_b32 v7, 4, v7")
    e("  v_and_b32 v6, 1, v0")
    e("  v_lshl_add_u32 v7, v6, 3, v7")
    e("  s_mul_i32 s54, s48, 7168")
    e(f"  s_add_u32 s54, s54, {LDS_WD}")
    e("  v_add_u32 v7, s54, v7")
    for st in range(14):
        e(f"  ds_read_b64_tr_b16 {vr(FB+4*st,2)}, v7 offset:{512*st}")
        e(f"  ds_read_b64_tr_b16 {vr(FB+4*st+2,2)}, v7 offset:{512*st+64}")
    for i in range(4):
        e(f"  v_mov_b32 v{8+i}, 0")
    e("  s_waitcnt vmcnt(0) lgkmcnt(0)")
    for st in range(14):
        e(f"  v_mfma_f32_16x16x32_bf16 v[8:11], {vr(FA+4*st,4)}, {vr(FB+4*st,4)}, v[8:11]")
    e("  s_nop 15")
    e("  v_lshlrev_b32 v3, 4, v0")
    e("  s_lshl_b32 s52, s48, 10")
    e("  v_add_u32 v3, s52, v3")
    e(f"  ds_write_b128 v3, v[8:11] offset:{LDS_R}")
    e("  s_waitcnt lgkmcnt(0)")
    e("  s_barrier")
    e("  s_cmp_lg_u32 s48, 0")
    e("  s_cbranch_scc1 tf_done")
    e("  v_lshlrev_b32 v3, 4, v0")
    for w in range(1, 4):
        e(f"  ds_read_b128 {vr(12+4*(w-1),4)}, v3 offset:{LDS_R+1024*w}")
    e("  v_and_b32 v6, 1, v5")
    e("  v_lshlrev_b32 v6, 4, v6")
    e(f"  ds_read_b128 v[24:27], v6 offset:{LDS_C+128}")
    e("  v_and_b32 v6, 7, v0")
    e("  s_lshl_b32 s52, s50, 4")
    e("  v_lshl_add_u32 v6, v6, 1, s52")
    e("  v_and_b32 v7, 1, v5")
    e("  v_lshlrev_b32 v7, 2, v7")
    for i in range(4):
        e(f"  v_add_u32 v28, {i}, v7")
        e(f"  v_mul_u32_u24 v29, {XS_STRIDE}, v28")
        e("  v_add_u32 v29, v29, v6")
        e(f"  ds_read_u16 v{36+i}, v29 offset:{LDS_XS}")
        e("  v_lshl_add_u32 v29, v28, 10, v6")
        e(f"  ds_read_u16 v{40+i}, v29 offset:{LDS_HS}")
    e("  v_and_b32 v30, 15, v0")
    e("  v_cmp_gt_u32 vcc, 8, v30")
    e("  v_cmp_gt_u32 s[58:59], 32, v0")
    e("  s_and_b64 vcc, vcc, s[58:59]")
    e("  s_waitcnt lgkmcnt(0)")
    e("  s_and_saveexec_b64 s[56:57], vcc")
    for i in range(4):
        e(f"  v_add_f32 v{8+i}, v{8+i}, v{12+i}")
        e(f"  v_add_f32 v{16+i}, v{16+i}, v{20+i}")
        e(f"  v_add_f32 v{8+i}, v{8+i}, v{16+i}")
        e(f"  v_cvt_pk_bf16_f32 v{8+i}, v{8+i}, v{8+i}")
        e(f"  v_lshlrev_b32 v{8+i}, 16, v{8+i}")
        e(f"  v_and_b32 v60, 0xffff0000, v{24+i}")
        e("  v_ashrrev_i32 v61, 31, v60")
        e("  v_not_b32 v61, v61")
        e("  v_or_b32 v61, 0x80000000, v61")
        e("  v_xor_b32 v60, v60, v61")
        e("  v_and_b32 v60, 0xffff0000, v60")
        e("  v_mul_f32 v60, 0xbfb8aa3b, v60")
        e("  v_exp_f32 v60, v60")
        e("  s_nop 0")
        e("  v_add_f32 v60, 1.0, v60")
        e("  v_rcp_f32 v60, v60")
        e("  s_nop 0")
        e("  v_cvt_pk_bf16_f32 v60, v60, v60")
        e("  v_lshlrev_b32 v60, 16, v60")
        e(f"  v_mul_f32 v{8+i}, v{8+i}, v60")
        e(f"  v_cvt_pk_bf16_f32 v{8+i}, v{8+i}, v{8+i}")
        e(f"  v_lshlrev_b32 v{8+i}, 16, v{8+i}")
        e(f"  v_lshlrev_b32 v{36+i}, 16, v{36+i}")
        e(f"  v_lshlrev_b32 v{40+i}, 16, v{40+i}")
        e(f"  v_add_f32 v61, v{36+i}, v{8+i}")
        e("  v_cvt_pk_bf16_f32 v61, v61, v61")
        e("  v_lshlrev_b32 v61, 16, v61")
        e(f"  v_add_f32 v61, v{40+i}, v61")
        e("  v_cvt_pk_bf16_f32 v61, v61, v61")
        e(f"  v_and_b32 v62, 0xffff, v{24+i}")
        e("  v_sub_u32 v62, 0xffff, v62")
        e("  v_lshl_add_u32 v62, v62, 10, v6")
        e("  buffer_store_short v61, v62, s[44:47], 0 offen")
    lab("tf_done")
    kernel_end()
    e("  s_endpgm")
    kernel_desc(name, 184)

def main():
    hdr = open("cdna_kernels/" + NAME + ".s.ref").read().splitlines()
    out = []
    for ln in hdr:
        if ln.startswith("; @launch"):
            if FUSE:
                out.append("; @launch kernel=f_kernel grid=(256,1,1) block=(576,1,1) lds=%d" % (K2_NS*24576 + 256))
            else:
                out.append("; @launch kernel=k1_kernel grid=(256,1,1) block=(%d,1,1) lds=131072" % (576 if OPT('K1_PF', 0) else 512))
                out.append("; @launch kernel=k2_kernel grid=(256,1,1) block=(%d,1,1) lds=%d" % (576, K2_NS*24576))
            if OPT('TF'):
                out.append("; @launch kernel=tf_kernel grid=(256,1,1) block=(256,1,1) lds=66048")
            else:
                if not OPT('K2T1', 1):
                    out.append("; @launch kernel=t1_kernel grid=(256,1,1) block=(%d,1,1) lds=0" % (192 if OPT('T1_PF', 1) else 128))
                if MEGA:
                    pass
                elif OPT('T4', 1):
                    out.append("; @launch kernel=t4_kernel grid=(240,1,1) block=(256,1,1) lds=123392")
                else:
                    out.append("; @launch kernel=t2_kernel grid=(224,1,1) block=(256,1,1) lds=25600")
                    out.append("; @launch kernel=t3_kernel grid=(64,1,1) block=(256,1,1) lds=32768")
            break
        out.append(ln)
    out.append('.amdgcn_target "amdgcn-amd-amdhsa--gfx950"')
    out.append(".text")
    gen_k1(); gen_k2()
    if OPT('TF'): gen_tf()
    elif OPT('T4', 1):
        if not OPT('K2T1', 1): gen_t1()
        if not MEGA: gen_t4()
    else: gen_t1(); gen_t2(); gen_t3()
    out += L
    out.append('.section .rodata,"a"')
    out += KD
    dst = sys.argv[1] if len(sys.argv) > 1 else "cdna_kernels/" + NAME + ".s"
    open(dst, "w").write("\n".join(out) + "\n")

main()
```

```python
import sys, os
OPT = lambda k, d=0: int(os.environ.get(k, d))

NAME = "sequential_preLN__spectral_fnet__moe_arch_mod__prompt"
L = []
def e(s=""):
    L.append(s)
def lab(s):
    L.append(s + ":")

KA_X, KA_WSRE, KA_WSIM, KA_WDRE, KA_WDIM = 0, 8, 16, 24, 32
KA_WR, KA_WG, KA_WU, KA_WDN, KA_OUT, KA_DBG, KA_WS = 48, 56, 64, 72, 80, 88, 96
WS_YB = 0
WS_Y = 4 << 20
WS_KEY = 8 << 20
WS_STAT = (8 << 20) + 8192
WS_GU = (8 << 20) + 65536
WS_IDX = (8 << 20) + 131072
WS_FLAG = (8 << 20) + 196608
WS_FA = WS_FLAG + 4096
WS_REC = (9 << 20)
WS_SEL = (9 << 20) + 65536
WS_WDB = 10 << 20
WS_SIZE = 268435456

KIDX = [0]
NV = {"k1_kernel": 160, "k2_kernel": 160, "t1_kernel": 148, "t2_kernel": 192, "t3_kernel": 192, "tf_kernel": 184, "t4_kernel": 252, "f_kernel": 164}
FUSE = OPT("FUSE", 1)
K2_NS = OPT("K2_NS", 6)
MEGA = OPT("MEGA", 1) and FUSE
CUR = [0]
def kernel_begin(name):
    CUR[0] = NV[name]
    e(f".globl {name}")
    e(".p2align 8")
    e(f".type {name},@function")
    lab(name)
    if OPT('DIAG'):
        e("  s_memrealtime s[72:73]")
        for i in range(1, 7):
            e(f"  s_mov_b64 s[{72+2*i}:{73+2*i}], 0")
        e(f"  s_load_dwordx2 s[94:95], s[0:1], {KA_WS}")
        e(f"  v_mov_b32 v{CUR[0]}, v0")

HS = [0]
def hstamp(k, wg=0):
    if not OPT('HSTAMP'): return
    if OPT('HSTAMP') == 2 and k in (7, 8, 9, 10) and wg in (0, 224) and not hasattr(hstamp, "x"):
        if k != 7: return
        k = 15
    HS[0] += 1
    e(f"  s_cmp_lg_u32 s2, {wg}")
    e(f"  s_cbranch_scc1 hs_{HS[0]}")
    e("  s_cmp_lg_u32 s15, 0")
    e(f"  s_cbranch_scc1 hs_{HS[0]}")
    e("  s_memrealtime s[72:73]")
    e("  s_waitcnt lgkmcnt(0)")
    e("  v_mov_b32 v162, s72")
    e(f"  v_mov_b32 v163, {4*k}")
    e("  s_mov_b64 s[74:75], exec")
    e("  s_mov_b64 exec, 1")
    e("  buffer_store_dword v162, v163, s[96:99], 0 offen")
    e("  s_mov_b64 exec, s[74:75]")
    lab(f"hs_{HS[0]}")

def stamp(i):
    if OPT('DIAG'):
        e(f"  s_memrealtime s[{72+2*i}:{73+2*i}]")
    if OPT('HSTAMP') == 1 and CUR[0] == 164: hstamp(i)
    if OPT('HSTAMP') == 2 and CUR[0] == 164 and i == 6:
        for w in range(8): hstamp(1 + w, w)
    if OPT('HSTAMP') == 2 and CUR[0] == 164 and i == 2:
        for w in range(0, 8, 2): hstamp(11 + w // 2, w + 1)

def kernel_end():
    if OPT('DIAG'):
        e("  s_waitcnt vmcnt(0) lgkmcnt(0)")
        e("  s_memrealtime s[86:87]")
        e("  s_mov_b32 s88, s94")
        e("  s_mov_b32 s89, s95")
        e("  s_mov_b32 s90, 0x4000000")
        e("  s_mov_b32 s91, 0x00020000")
        e("  s_waitcnt lgkmcnt(0)")
        e("  s_mov_b64 exec, 1")
        for i in range(16):
            e(f"  v_mov_b32 v{i}, s{72+i}")
        e(f"  v_lshrrev_b32 v{CUR[0]+1}, 6, v{CUR[0]}")
        e(f"  v_lshlrev_b32 v{CUR[0]+1}, 6, v{CUR[0]+1}")
        e("  s_lshl_b32 s92, s2, 10")
        e(f"  s_add_u32 s92, s92, {(16 << 20) + KIDX[0] * 0x100000}")
        for i in range(4):
            e(f"  buffer_store_dwordx4 v[{4*i}:{3+4*i}], v{CUR[0]+1}, s[88:91], s92 offen offset:{16*i}")
    KIDX[0] += 1

KD = []
def kernel_desc(name, vgpr, sgpr=102):
    assert vgpr == CUR[0]
    if OPT('DIAG'): vgpr += 2
    acc = (vgpr + 3) // 4 * 4
    KD.append(f""".p2align 6
.amdhsa_kernel {name}
  .amdhsa_next_free_vgpr {vgpr}
  .amdhsa_next_free_sgpr {sgpr}
  .amdhsa_accum_offset {acc}
  .amdhsa_group_segment_fixed_size 0
  .amdhsa_kernarg_size 104
  .amdhsa_user_sgpr_count 2
  .amdhsa_user_sgpr_kernarg_segment_ptr 1
  .amdhsa_system_sgpr_workgroup_id_x 1
.end_amdhsa_kernel""")

def srd(d, lo, hi, size):
    e(f"  s_mov_b32 s{d}, s{lo}")
    e(f"  s_mov_b32 s{d+1}, s{hi}")
    e(f"  s_mov_b32 s{d+2}, {size}")
    e(f"  s_mov_b32 s{d+3}, 0x00020000")

def vr(a, n):
    return f"v[{a}:{a+n-1}]"

def reduce8(v):
    e("  s_nop 1")
    e(f"  v_add_f32_dpp v{v}, v{v}, v{v} quad_perm:[1,0,3,2] row_mask:0xf bank_mask:0xf")
    e("  s_nop 1")
    e(f"  v_add_f32_dpp v{v}, v{v}, v{v} quad_perm:[2,3,0,1] row_mask:0xf bank_mask:0xf")
    e("  s_nop 1")
    e(f"  v_add_f32_dpp v{v}, v{v}, v{v} row_half_mirror row_mask:0xf bank_mask:0xf")

def reduce16(v):
    reduce8(v)
    e("  s_nop 1")
    e(f"  v_add_f32_dpp v{v}, v{v}, v{v} row_mirror row_mask:0xf bank_mask:0xf")

def helper_wave():
    srd(36, 34, 35, 1792*512*2)
    srd(40, 6, 7, 12 << 20)
    e("  v_lshlrev_b32 v2, 4, v0")
    e("  s_mul_i32 s44, s2, 7168")
    for q in range(7):
        e(f"  buffer_load_dwordx4 {vr(8+4*q,4)}, v2, s[36:39], s44 offen")
        e("  s_add_u32 s44, s44, 1024")
    e("  s_cmp_ge_u32 s2, 28")
    e("  s_cbranch_scc1 k2_nomark")
    for q in range(4):
        e(f"  v_mov_b32 v{4+q}, -1")
    e("  s_lshl_b32 s44, s2, 10")
    e(f"  s_add_u32 s44, s44, {WS_GU}")
    e("  buffer_store_dwordx4 v[4:7], v2, s[40:43], s44 offen" + (" sc1" if MEGA else ""))
    lab("k2_nomark")
    e("  v_mul_u32_u24 v3, 28672, v0")
    e("  s_mul_i32 s44, s2, 112")
    e(f"  s_add_u32 s44, s44, {WS_WDB}")
    e("  s_waitcnt vmcnt(0)")
    for q in range(7):
        e(f"  buffer_store_dwordx4 {vr(8+4*q,4)}, v3, s[40:43], s44 offen offset:{16*q}" + (" sc1" if MEGA else ""))
    if MEGA: e("  s_waitcnt vmcnt(0)")
    e("  s_branch k2_done")

def get_epoch(tag):
    e("  v_mov_b32 v158, 0")
    e("  s_mov_b32 s69, 0")
    lab(f"ep_{tag}")
    e("  buffer_load_dword v159, v158, s[96:99], 0 offen sc1")
    e("  s_waitcnt vmcnt(0)")
    e("  v_readfirstlane_b32 s68, v159")
    e("  s_add_u32 s69, s69, 1")
    e(f"  s_cmp_gt_u32 s69, {1 << 22}")
    e(f"  s_cbranch_scc1 ep_{tag}_ok")
    e("  s_cmp_eq_u32 s68, 0")
    e(f"  s_cbranch_scc1 ep_{tag}")
    lab(f"ep_{tag}_ok")

def gen_k1():
    name = "f_kernel" if FUSE else "k1_kernel"
    kernel_begin(name)
    e("  s_cmp_ge_u32 s2, 256")
    e(f"  s_cbranch_scc1 {'k2_done' if FUSE else 'k1_done'}")
    e(f"  s_load_dwordx2 s[4:5], s[0:1], {KA_X}")
    e(f"  s_load_dwordx4 s[8:11], s[0:1], {KA_WDRE}")
    e(f"  s_load_dwordx2 s[6:7], s[0:1], {KA_WS}")
    if FUSE:
        e(f"  s_load_dwordx4 s[52:55], s[0:1], {KA_WSRE}")
        e(f"  s_load_dwordx2 s[66:67], s[0:1], {KA_DBG}")
        e(f"  s_load_dwordx2 s[34:35], s[0:1], {KA_WDN}")
    e("  s_and_b32 s12, s2, 7")
    e("  s_lshr_b32 s13, s2, 3")
    e("  s_and_b32 s14, s13, 3")
    e("  s_lshl_b32 s12, s12, 2")
    e("  s_add_u32 s12, s12, s14")
    e("  s_lshr_b32 s13, s13, 2")
    e("  v_lshrrev_b32 v1, 6, v0")
    e("  v_and_b32 v0, 63, v0")
    e("  v_readfirstlane_b32 s15, v1")
    e("  v_lshrrev_b32 v2, 3, v0")
    e("  v_and_b32 v3, 7, v0")
    if OPT('K1_PF', 0) or OPT('K1_PFEND', 0):
        e(f"  s_load_dwordx4 s[40:43], s[0:1], {KA_WSRE}")
    e("  s_waitcnt lgkmcnt(0)")
    if OPT('K1_PF', 0):
        e("  s_cmp_lg_u32 s15, 8")
        e("  s_cbranch_scc1 k1_main")
        e("  s_and_b32 s44, s2, 7")
        e("  s_cmp_lt_u32 s44, 4")
        e("  s_cselect_b32 s48, s40, s42")
        e("  s_cselect_b32 s49, s41, s43")
        e(f"  s_mov_b32 s50, {2048*2048*2}")
        e("  s_mov_b32 s51, 0x00020000")
        e("  s_and_b32 s44, s44, 3")
        e("  s_lshl_b32 s44, s44, 21")
        e("  s_lshr_b32 s45, s2, 3")
        e("  s_lshl_b32 s45, s45, 16")
        e("  s_add_u32 s44, s44, s45")
        e("  v_lshlrev_b32 v1, 4, v0")
        e("  s_cmp_lt_u32 s13, 4")
        e("  s_cselect_b32 s56, s8, s10")
        e("  s_cselect_b32 s57, s9, s11")
        e(f"  s_mov_b32 s58, {512*512*2}")
        e("  s_mov_b32 s59, 0x00020000")
        e("  s_and_b32 s46, s13, 3")
        e("  s_lshl_b32 s46, s46, 17")
        for q in range(OPT('K1_CAN', 0)):
            e(f"  buffer_load_dwordx4 v[8:11], v1, s[56:59], s46 offen offset:{q*1024}")
            e("  s_waitcnt vmcnt(0)")
        for q in range(64):
            e(f"  buffer_load_dwordx4 {vr(8+4*(q%32),4)}, v1, s[48:51], s44 offen")
            e("  s_add_u32 s44, s44, 1024")
        e("  s_branch k1_done")
        lab("k1_main")
    if FUSE:
        srd(96, 66, 67, 256)
        e("  s_cmp_lg_u32 s15, 8")
        e("  s_cbranch_scc1 f_main")
        e("  s_cmp_lg_u32 s2, 0")
        e("  s_cbranch_scc1 f_noepoch")
        e("  s_memrealtime s[40:41]")
        e("  s_waitcnt lgkmcnt(0)")
        e("  s_or_b32 s40, s40, 1")
        e("  v_mov_b32 v4, s40")
        e("  v_mov_b32 v5, 0")
        e("  s_mov_b64 s[42:43], exec")
        e("  s_mov_b64 exec, 1")
        e("  buffer_store_dword v4, v5, s[96:99], 0 offen sc1")
        e("  s_mov_b64 exec, s[42:43]")
        lab("f_noepoch")
        if OPT('F_PF', 0):
            e(f"  s_load_dwordx4 s[40:43], s[0:1], {KA_WSRE}")
            e("  s_and_b32 s44, s2, 7")
            e("  s_waitcnt lgkmcnt(0)")
            e("  s_cmp_lt_u32 s44, 4")
            e("  s_cselect_b32 s48, s40, s42")
            e("  s_cselect_b32 s49, s41, s43")
            e(f"  s_mov_b32 s50, {2048*2048*2}")
            e("  s_mov_b32 s51, 0x00020000")
            e("  s_and_b32 s44, s44, 3")
            e("  s_lshl_b32 s44, s44, 21")
            e("  s_lshr_b32 s45, s2, 3")
            e("  s_lshl_b32 s45, s45, 16")
            e("  s_add_u32 s44, s44, s45")
            e("  v_lshlrev_b32 v1, 4, v0")
            for q in range(64):
                e(f"  buffer_load_dwordx4 {vr(40+4*(q%24),4)}, v1, s[48:51], s44 offen")
                e("  s_add_u32 s44, s44, 1024")
        helper_wave()
        lab("f_main")
        hstamp(7)
    srd(16, 4, 5, 2048*512*2)
    e("  s_cmp_lt_u32 s13, 4")
    e("  s_cselect_b32 s20, s8, s10")
    e("  s_cselect_b32 s21, s9, s11")
    e(f"  s_mov_b32 s22, {512*512*2}")
    e("  s_mov_b32 s23, 0x00020000")
    srd(24, 6, 7, 9 << 20)
    if not FUSE:
        e("  s_or_b32 s46, s2, s15")
        e("  s_cmp_lg_u32 s46, 0")
        e("  s_cbranch_scc1 k1_nozero")
        for q in range(4):
            e(f"  v_mov_b32 v{4+q}, 0")
        e("  v_lshlrev_b32 v8, 4, v0")
        e(f"  s_mov_b32 s46, {WS_FLAG}")
        e("  buffer_store_dwordx4 v[4:7], v8, s[24:27], s46 offen")
        lab("k1_nozero")
    e("  s_lshl_b32 s28, s12, 6")
    e("  s_lshl_b32 s29, s15, 3")
    e("  s_add_u32 s28, s28, s29")
    e("  v_add_u32 v4, s28, v2")
    e("  v_lshlrev_b32 v4, 10, v4")
    e("  v_lshl_add_u32 v4, v3, 4, v4")
    X = 32
    for j in range(8):
        e(f"  buffer_load_dwordx4 {vr(X+4*j,4)}, v4, s[16:19], 0 offen offset:{128*j}")
    e("  s_and_b32 s30, s13, 3")
    e("  s_lshl_b32 s30, s30, 7")
    for ii in range(2):
        e(f"  s_lshl_b32 s31, s15, 4")
        e(f"  s_add_u32 s31, s31, {8*ii}")
        e(f"  v_add_u32 v7, s31, v2")
        e(f"  v_lshrrev_b32 v8, 1, v7")
        e(f"  v_and_b32 v8, 7, v8")
        e(f"  v_xor_b32 v8, v8, v3")
        e(f"  v_add_u32 v7, s30, v7")
        e(f"  v_lshlrev_b32 v7, 10, v7")
        e(f"  v_lshl_add_u32 v{5+ii}, v8, 4, v7")
    e("  s_lshl_b32 s32, s15, 11")
    def wdma(kb):
        slot = kb % 4
        e(f"  s_mov_b32 s33, {128*kb}")
        for ii in range(2):
            e(f"  s_add_u32 m0, s32, {slot*16384 + ii*1024}")
            e("  s_nop 0")
            e(f"  buffer_load_dwordx4 v{5+ii}, s[20:23], s33 offen lds")
    for kb in range(4):
        wdma(kb)
    PFM = OPT('F_PFM', 0)
    STG = 128
    if PFM:
        for kb in range(4, 8):
            e(f"  s_mov_b32 s33, {128*kb}")
            for ii in range(2):
                e(f"  buffer_load_dwordx4 {vr(STG+8*(kb-4)+4*ii,4)}, v{5+ii}, s[20:23], s33 offen")
        e("  s_and_b32 s44, s2, 7")
        e("  s_cmp_lt_u32 s44, 4")
        e("  s_cselect_b32 s48, s52, s54")
        e("  s_cselect_b32 s49, s53, s55")
        e(f"  s_mov_b32 s50, {2048*2048*2}")
        e("  s_mov_b32 s51, 0x00020000")
        e("  s_and_b32 s44, s44, 3")
        e("  s_lshl_b32 s44, s44, 21")
        e("  s_lshr_b32 s45, s2, 3")
        e("  s_lshl_b32 s45, s45, 16")
        e("  s_add_u32 s44, s44, s45")
        e("  s_lshl_b32 s45, s15, 13")
        e("  s_add_u32 s44, s44, s45")
        e("  v_lshlrev_b32 v7, 4, v0")
        for q in range(8):
            e(f"  buffer_load_dwordx4 v[160:163], v7, s[48:51], s44 offen")
            e("  s_add_u32 s44, s44, 1024")
    e("  s_mov_b32 s34, 0x3f803f80")
    for a in range(4):
        e(f"  v_mov_b32 v{8+a}, 0")
    e(f"  s_waitcnt vmcnt({24 if PFM else 8})")
    for i in range(32):
        e(f"  v_dot2_f32_bf16 v{8+i%4}, v{X+i}, s34, v{8+i%4}")
    e("  s_nop 3")
    e("  v_add_f32 v8, v8, v9")
    e("  v_add_f32 v10, v10, v11")
    e("  v_add_f32 v8, v8, v10")
    reduce8(8)
    e("  v_mul_f32 v8, 0x3b000000, v8")
    e("  v_cvt_pk_bf16_f32 v9, v8, v8")
    e("  v_lshlrev_b32 v9, 16, v9")
    e("  v_sub_f32 v10, 0, v9")
    e("  v_mov_b32 v11, v10")
    D = 64
    for a in range(4):
        e(f"  v_mov_b32 v{12+a}, 0")
    for i in range(32):
        e(f"  v_lshlrev_b32 v{D+2*i}, 16, v{X+i}")
        e(f"  v_and_b32 v{D+2*i+1}, 0xffff0000, v{X+i}")
        e(f"  v_pk_add_f32 {vr(D+2*i,2)}, {vr(D+2*i,2)}, v[10:11]")
        q = 12 + 2*(i % 2)
        e(f"  v_pk_fma_f32 {vr(q,2)}, {vr(D+2*i,2)}, {vr(D+2*i,2)}, {vr(q,2)}")
    e("  v_add_f32 v12, v12, v13")
    e("  v_add_f32 v14, v14, v15")
    e("  v_add_f32 v12, v12, v14")
    reduce8(12)
    e("  v_sub_f32 v13, v8, v9")
    e("  v_mul_f32 v13, v13, v13")
    e("  v_mul_f32 v12, 0x3b000000, v12")
    e("  v_sub_f32 v12, v12, v13")
    e("  v_max_f32 v12, 0, v12")
    e("  v_cvt_pk_bf16_f32 v12, v12, v12")
    e("  v_lshlrev_b32 v12, 16, v12")
    e("  v_add_f32 v12, 0x3727c5ac, v12")
    e("  v_cvt_pk_bf16_f32 v12, v12, v12")
    e("  v_lshlrev_b32 v12, 16, v12")
    e("  v_sqrt_f32 v12, v12")
    e("  s_nop 0")
    e("  v_cvt_pk_bf16_f32 v12, v12, v12")
    e("  v_lshlrev_b32 v12, 16, v12")
    e("  v_rcp_f32 v12, v12")
    e("  s_nop 0")
    e("  v_mov_b32 v13, v12")
    for i in range(32):
        e(f"  v_cvt_pk_bf16_f32 v{X+i}, v{D+2*i}, v{D+2*i+1}")
        e(f"  v_lshlrev_b32 v{D+2*i}, 16, v{X+i}")
        e(f"  v_and_b32 v{D+2*i+1}, 0xffff0000, v{X+i}")
        e(f"  v_pk_mul_f32 {vr(D+2*i,2)}, {vr(D+2*i,2)}, v[12:13]")
        e(f"  v_cvt_pk_bf16_f32 v{X+i}, v{D+2*i}, v{D+2*i+1}")
    e("  v_add_u32 v14, s29, v2")
    e("  v_lshrrev_b32 v15, 1, v14")
    e("  v_and_b32 v15, 7, v15")
    e("  v_xor_b32 v15, v15, v3")
    e("  v_lshlrev_b32 v14, 7, v14")
    e("  v_lshl_add_u32 v14, v15, 4, v14")
    e("  v_add_u32 v14, 0x10000, v14")
    for j in range(8):
        e(f"  ds_write_b128 v14, {vr(X+4*j,4)} offset:{8192*j}")
    e("  s_and_b32 s35, s15, 1")
    e("  s_lshr_b32 s36, s15, 1")
    e("  v_and_b32 v16, 31, v0")
    e("  v_lshrrev_b32 v17, 5, v0")
    def fragaddr(dst, sblk, base):
        e(f"  s_lshl_b32 s37, s{sblk}, 5")
        e(f"  v_add_u32 v18, s37, v16")
        e(f"  v_lshrrev_b32 v19, 1, v18")
        e(f"  v_and_b32 v19, 7, v19")
        e(f"  v_xor_b32 v19, v19, v17")
        e(f"  v_lshlrev_b32 v18, 7, v18")
        e(f"  v_lshl_add_u32 v{dst}, v19, 4, v18")
        if base:
            e(f"  v_add_u32 v{dst}, {base}, v{dst}")
        for kk in range(1, 4):
            e(f"  v_xor_b32 v{dst+kk}, {32*kk}, v{dst}")
    fragaddr(20, 35, 0x10000)
    fragaddr(24, 36, 0)
    ACC = 96
    for i in range(16):
        e(f"  v_mov_b32 v{ACC+i}, 0")
    FA, FB = 64, 80
    waits = [22, 14, 12, 10, 8, 8, 8, 8] if PFM else [6, 4, 4, 4, 4, 4, 2, 0]
    if PFM:
        e("  v_lshlrev_b32 v28, 4, v0")
        e("  v_add_u32 v28, s32, v28")
    for kb in range(8):
        e(f"  s_waitcnt vmcnt({waits[kb]}) lgkmcnt(0)")
        e("  s_barrier")
        if 1 <= kb <= 4 and PFM:
            for ii in range(2):
                e(f"  ds_write_b128 v28, {vr(STG+8*(kb-1)+4*ii,4)} offset:{((kb+3)%4)*16384 + ii*1024}")
        elif 1 <= kb <= 4:
            wdma(kb + 3)
        slot = kb % 4
        for kk in range(4):
            e(f"  ds_read_b128 {vr(FA+4*kk,4)}, v{20+kk} offset:{8192*kb}")
            e(f"  ds_read_b128 {vr(FB+4*kk,4)}, v{24+kk} offset:{16384*slot}")
        for kk in range(4):
            e(f"  s_waitcnt lgkmcnt({6-2*kk})")
            e(f"  v_mfma_f32_32x32x16_bf16 {vr(ACC,16)}, {vr(FA+4*kk,4)}, {vr(FB+4*kk,4)}, {vr(ACC,16)}")
    stamp(5)
    e("  s_lshl_b32 s37, s13, 1")
    e("  s_lshr_b32 s38, s36, 1")
    e("  s_add_u32 s37, s37, s38")
    e("  s_lshl_b32 s37, s37, 5")
    e("  s_add_u32 s37, s37, s12")
    e("  s_lshl_b32 s37, s37, 13")
    e("  s_and_b32 s38, s36, 1")
    e("  s_lshl_b32 s38, s38, 5")
    e("  v_add_u32 v18, s38, v16")
    e("  v_lshrrev_b32 v19, 1, v18")
    e("  v_and_b32 v19, 7, v19")
    e("  s_lshl_b32 s38, s35, 2")
    e("  v_add_u32 v29, s38, v17")
    e("  v_xor_b32 v29, v29, v19")
    e("  v_lshlrev_b32 v18, 7, v18")
    e("  v_lshl_add_u32 v30, v29, 4, v18")
    e("  v_xor_b32 v31, 32, v30")
    e("  s_nop 7")
    P = 112
    for g in range(4):
        e(f"  v_cvt_pk_bf16_f32 v{P+2*g}, v{ACC+4*g}, v{ACC+4*g+1}")
        e(f"  v_cvt_pk_bf16_f32 v{P+2*g+1}, v{ACC+4*g+2}, v{ACC+4*g+3}")
    e("  s_nop 1")
    for p in range(2):
        e(f"  v_permlane32_swap_b32 v{P+4*p}, v{P+4*p+2}")
        e(f"  v_permlane32_swap_b32 v{P+4*p+1}, v{P+4*p+3}")
    if not FUSE:
        e(f"  buffer_store_dwordx4 {vr(P,4)}, v30, s[24:27], s37 offen")
        e(f"  buffer_store_dwordx4 {vr(P+4,4)}, v31, s[24:27], s37 offen")
        lab("k1_done")
        kernel_end()
        e("  s_endpgm")
        kernel_desc(name, 160)
        return
    TR = 131072
    e(f"  s_load_dwordx4 s[8:11], s[0:1], {KA_WSRE}")
    e("  s_lshr_b32 s38, s36, 1")
    e("  s_lshl_b32 s38, s38, 13")
    e(f"  s_add_u32 s38, s38, {TR}")
    e("  v_add_u32 v30, s38, v30")
    e("  v_add_u32 v31, s38, v31")
    e(f"  ds_write_b128 v30, {vr(P,4)}")
    e(f"  ds_write_b128 v31, {vr(P+4,4)}")
    e("  v_lshlrev_b32 v29, 4, v0")
    e("  s_lshl_b32 s38, s15, 11")
    e(f"  s_add_u32 s39, s38, {TR}")
    e("  v_add_u32 v28, s39, v29")
    e("  s_waitcnt lgkmcnt(0)")
    e("  s_barrier")
    e("  ds_read_b128 v[64:67], v28")
    e("  ds_read_b128 v[68:71], v28 offset:1024")
    e("  s_lshl_b32 s37, s13, 1")
    e("  s_lshr_b32 s39, s15, 2")
    e("  s_add_u32 s37, s37, s39")
    e("  s_lshl_b32 s37, s37, 5")
    e("  s_add_u32 s37, s37, s12")
    e("  s_lshl_b32 s37, s37, 13")
    e("  s_and_b32 s39, s15, 3")
    e("  s_lshl_b32 s39, s39, 11")
    e("  s_add_u32 s37, s37, s39")
    e("  s_waitcnt lgkmcnt(1)")
    e("  buffer_store_dwordx4 v[64:67], v29, s[24:27], s37 offen sc1")
    e("  s_waitcnt lgkmcnt(0)")
    e("  buffer_store_dwordx4 v[68:71], v29, s[24:27], s37 offen offset:1024 sc1")
    e("  s_lshl_b32 s70, s13, 5")
    e("  s_add_u32 s70, s70, s12")
    e("  s_lshl_b32 s70, s70, 2")
    e(f"  s_add_u32 s70, s70, {WS_FA}")

def k2_epilogue_plain(ACC):
    e("  s_lshl_b32 s24, s14, 21")
    e(f"  s_add_u32 s24, s24, {WS_Y}")
    e("  s_lshl_b32 s30, s13, 7")
    e("  s_add_u32 s24, s24, s30")
    e("  s_lshl_b32 s30, s12, 7")
    e("  s_lshl_b32 s31, s15, 5")
    e("  s_add_u32 s30, s30, s31")
    e("  v_add_u32 v18, s30, v16")
    e("  v_lshlrev_b32 v18, 10, v18")
    e("  v_lshl_add_u32 v18, v17, 4, v18")
    e("  s_nop 7")
    P = 64
    for g in range(8):
        e(f"  v_cvt_pk_bf16_f32 v{P+2*g}, v{ACC+4*g}, v{ACC+4*g+1}")
        e(f"  v_cvt_pk_bf16_f32 v{P+2*g+1}, v{ACC+4*g+2}, v{ACC+4*g+3}")
    e("  s_nop 1")
    for p in range(4):
        e(f"  v_permlane32_swap_b32 v{P+4*p}, v{P+4*p+2}")
        e(f"  v_permlane32_swap_b32 v{P+4*p+1}, v{P+4*p+3}")
    for p in range(4):
        e(f"  buffer_store_dwordx4 {vr(P+4*p,4)}, v18, s[20:23], s24 offen offset:{32*p}")

ROW_O = 48
def reduce32(v, t):
    reduce16(v)
    e("  s_nop 1")
    e(f"  ds_swizzle_b32 v{t}, v{v} offset:0x401F")
    e("  s_waitcnt lgkmcnt(0)")
    e(f"  v_add_f32 v{v}, v{v}, v{t}")

def rowmac32_pre():
    XX, WR = 48, 64
    e("  v_lshlrev_b32 v3, 10, v1")
    e("  v_lshl_add_u32 v3, v2, 4, v3")
    e("  v_lshlrev_b32 v4, 4, v2")
    for j in range(2):
        e(f"  buffer_load_dwordx4 {vr(XX+4*j,4)}, v3, s[20:23], 0 offen offset:{512*j}")
        e(f"  buffer_load_dwordx4 {vr(WR+4*j,4)}, v4, s[28:31], 0 offen offset:{512*j}")

def rowmac32():
    YR, YI, XX, WR, H, T, D = 16, 32, 48, 64, 80, 112, 116
    O = ROW_O
    e(f"  s_mov_b32 s52, {WS_Y}")
    e(f"  s_mov_b32 s53, {WS_Y + (2<<20)}")
    for j in range(2):
        e(f"  buffer_load_dwordx4 {vr(YR+4*j,4)}, v3, s[24:27], s52 offen offset:{512*j} sc1")
        e(f"  buffer_load_dwordx4 {vr(YI+4*j,4)}, v3, s[24:27], s53 offen offset:{512*j} sc1")
    e("  v_mov_b32 v14, 0")
    e("  v_mov_b32 v15, 0")
    for j in range(2):
        e(f"  s_waitcnt vmcnt({2*(1-j)})")
        for q in range(4):
            i = 4*j + q
            e(f"  v_lshlrev_b32 v{T}, 16, v{YR+i}")
            e(f"  v_and_b32 v{T+1}, 0xffff0000, v{YR+i}")
            e(f"  v_lshlrev_b32 v{T+2}, 16, v{YI+i}")
            e(f"  v_and_b32 v{T+3}, 0xffff0000, v{YI+i}")
            e(f"  v_pk_add_f32 {vr(T,2)}, {vr(T,2)}, {vr(T+2,2)} neg_lo:[0,1] neg_hi:[0,1]")
            e(f"  v_cvt_pk_bf16_f32 v{T}, v{T}, v{T+1}")
            e(f"  v_and_b32 v{T+1}, 0xffff0000, v{T}")
            e(f"  v_lshlrev_b32 v{T}, 16, v{T}")
            e(f"  v_lshlrev_b32 v{T+2}, 16, v{XX+i}")
            e(f"  v_and_b32 v{T+3}, 0xffff0000, v{XX+i}")
            e(f"  v_pk_add_f32 {vr(T,2)}, {vr(T,2)}, {vr(T+2,2)}")
            e(f"  v_cvt_pk_bf16_f32 v{T}, v{T}, v{T+1}")
            e(f"  v_lshlrev_b32 v{H+2*i}, 16, v{T}")
            e(f"  v_and_b32 v{H+2*i+1}, 0xffff0000, v{T}")
            e(f"  v_pk_add_f32 v[14:15], v[14:15], {vr(H+2*i,2)}")
    e("  v_add_f32 v5, v14, v15")
    reduce32(5, 13)
    e("  v_mul_f32 v5, 0x3b000000, v5")
    e("  v_cvt_pk_bf16_f32 v6, v5, v5")
    e("  v_lshlrev_b32 v6, 16, v6")
    e("  v_sub_f32 v8, 0, v6")
    e("  v_mov_b32 v9, v8")
    e("  v_mov_b32 v10, 0")
    e("  v_mov_b32 v11, 0")
    for i in range(8):
        e(f"  v_pk_add_f32 {vr(D+2*i,2)}, {vr(H+2*i,2)}, v[8:9]")
        e(f"  v_pk_fma_f32 v[10:11], {vr(D+2*i,2)}, {vr(D+2*i,2)}, v[10:11]")
    e("  v_add_f32 v10, v10, v11")
    reduce32(10, 13)
    e("  v_sub_f32 v11, v5, v6")
    e("  v_mul_f32 v11, v11, v11")
    e("  v_mul_f32 v10, 0x3b000000, v10")
    e("  v_sub_f32 v10, v10, v11")
    e("  v_max_f32 v10, 0, v10")
    e("  v_cvt_pk_bf16_f32 v10, v10, v10")
    e("  v_lshlrev_b32 v10, 16, v10")
    e("  v_add_f32 v10, 0x3727c5ac, v10")
    e("  v_cvt_pk_bf16_f32 v10, v10, v10")
    e("  v_lshlrev_b32 v10, 16, v10")
    e("  v_sqrt_f32 v10, v10")
    e("  s_nop 0")
    e("  v_cvt_pk_bf16_f32 v10, v10, v10")
    e("  v_lshlrev_b32 v10, 16, v10")
    e("  v_rcp_f32 v10, v10")
    e("  s_nop 0")
    e("  v_mov_b32 v11, v10")
    e("  v_mov_b32 v12, 0")
    for i in range(8):
        e(f"  v_cvt_pk_bf16_f32 v{T}, v{D+2*i}, v{D+2*i+1}")
        e(f"  v_lshlrev_b32 v{D+2*i}, 16, v{T}")
        e(f"  v_and_b32 v{D+2*i+1}, 0xffff0000, v{T}")
        e(f"  v_pk_mul_f32 {vr(D+2*i,2)}, {vr(D+2*i,2)}, v[10:11]")
        e(f"  v_cvt_pk_bf16_f32 v{T}, v{D+2*i}, v{D+2*i+1}")
        e(f"  v_dot2_f32_bf16 v12, v{T}, v{WR+i}, v12")
        e(f"  v_lshlrev_b32 v{D+2*i}, 16, v{T}")
        e(f"  v_and_b32 v{D+2*i+1}, 0xffff0000, v{T}")
        e(f"  v_pk_add_f32 {vr(D+2*i,2)}, {vr(D+2*i,2)}, {vr(H+2*i,2)}")
        e(f"  v_cvt_pk_bf16_f32 v{O+i}, v{D+2*i}, v{D+2*i+1}")
    if not MEGA:
        for j in range(2):
            e(f"  buffer_store_dwordx4 {vr(O+4*j,4)}, v3, s[44:47], 0 offen offset:{512*j}")
    e("  s_nop 3")
    reduce32(12, 13)
    e("  v_cvt_pk_bf16_f32 v12, v12, v12")
    e("  v_lshlrev_b32 v12, 16, v12")
    e("  v_ashrrev_i32 v13, 31, v12")
    e("  v_or_b32 v13, 0x80000000, v13")
    e("  v_xor_b32 v12, v12, v13")
    e("  v_and_b32 v12, 0xffff0000, v12")
    e("  v_sub_u32 v13, 0xffff, v1")
    e("  v_or_b32 v12, v12, v13")

MT_C, MT_R, MT_WD = 0, 256, 8704
MT_G, MT_U, MT_XS = 8704, 8704 + 8192, 8704 + 16384
def poll_end(lbl):
    e("  s_nop 3")
    e("  s_cmp_eq_u64 s[54:55], 0")
    e(f"  s_cbranch_scc1 {lbl}_ok")
    e("  s_add_u32 s53, s53, 1")
    e(f"  s_cmp_gt_u32 s53, {1 << 22}")
    e(f"  s_cbranch_scc1 {lbl}_ok")
    e(f"  s_branch {lbl}")
    lab(f"{lbl}_ok")

def mega_gu_dma():
    e("  s_and_b32 s3, s2, 7")
    e("  s_mul_i32 s3, s3, 28")
    e("  s_lshr_b32 s32, s2, 3")
    e("  s_add_u32 s3, s3, s32")
    e("  s_cmp_ge_u32 s2, 224")
    e("  s_cbranch_scc1 mt_nogu")
    srd(16, 58, 59, 512*1792*2)
    srd(8, 60, 61, 512*1792*2)
    e("  s_lshl_b32 s35, s3, 4")
    e("  s_movk_i32 s32, 3584")
    for ii in range(2):
        e(f"  s_lshl_b32 s33, s15, 7")
        e(f"  s_add_u32 s33, s33, {64*ii}")
        e(f"  v_add_u32 v8, s33, v0")
        e(f"  v_mul_lo_u32 v8, v8, s32")
        e(f"  s_lshl_b32 s34, s15, 11")
        e(f"  s_add_u32 m0, s34, {MT_G + 1024*ii}")
        e("  s_nop 0")
        e(f"  buffer_load_dwordx4 v8, s[16:19], s35 offen lds")
        e(f"  s_add_u32 m0, s34, {MT_U + 1024*ii}")
        e("  s_nop 0")
        e(f"  buffer_load_dwordx4 v8, s[8:11], s35 offen lds")
    lab("mt_nogu")

def mega_tail():
    C = MT_C
    for i in range(8):
        e(f"  v_mov_b32 v{152+i}, v{48+i}")
    e("  v_mov_b32 v151, v1")
    e("  v_mov_b32 v150, v3")
    e("  v_lshl_add_u32 v40, s15, 6, v0")
    e("  v_mov_b32 v16, v12")
    e("  v_mov_b32 v17, v6")
    e("  v_mov_b32 v18, v10")
    e("  v_mov_b32 v19, s68")
    e("  v_lshlrev_b32 v13, 4, v1")
    e("  v_cmp_eq_u32 vcc, 0, v2")
    e("  s_and_saveexec_b64 s[50:51], vcc")
    e(f"  s_mov_b32 s52, {WS_REC}")
    e("  buffer_store_dwordx4 v[16:19], v13, s[24:27], s52 offen sc1")
    e("  s_mov_b64 exec, s[50:51]")
    e("  s_cmp_lg_u32 s2, 255")
    e("  s_cbranch_scc1 mt_nosel")
    e("  v_lshlrev_b32 v13, 4, v40")
    e("  s_mov_b32 s53, 0")
    lab("mt_prec")
    for i in range(8):
        e(f"  s_mov_b32 s52, {WS_REC + 4096*i}")
        e(f"  buffer_load_dwordx4 {vr(64+4*i,4)}, v13, s[24:27], s52 offen sc1")
    e("  v_mov_b32 v14, 0")
    for i in range(8):
        e(f"  s_waitcnt vmcnt({7-i})")
        e(f"  v_xor_b32 v15, s68, v{67+4*i}")
        e("  v_or_b32 v14, v14, v15")
    e("  v_cmp_ne_u32 s[54:55], 0, v14")
    poll_end("mt_prec")
    top8([64+4*i for i in range(8)], range(16, 24), C, "s15")
    e("  v_and_b32 v3, 31, v0")
    e("  v_lshlrev_b32 v3, 2, v3")
    e(f"  ds_read_b32 v24, v3 offset:{C}")
    e("  v_mov_b32 v4, 0")
    for q in range(8):
        e(f"  ds_read_b128 {vr(96+4*q,4)}, v4 offset:{C+16*q}")
    e("  v_mov_b32 v25, 0")
    e("  s_waitcnt lgkmcnt(0)")
    sp = [32, 34, 36, 38]
    for i in range(32 + 3):
        if i < 32:
            e(f"  v_cmp_gt_u32 s[{sp[i%4]}:{sp[i%4]+1}], v{96+i}, v24")
        if i >= 3:
            j = i - 3
            e(f"  v_addc_co_u32 v25, vcc, 0, v25, s[{sp[j%4]}:{sp[j%4]+1}]")
    e("  s_cmp_lg_u32 s15, 0")
    e("  s_cbranch_scc1 mt_nosel")
    e("  v_lshlrev_b32 v3, 3, v25")
    e("  v_mov_b32 v26, v24")
    e("  v_mov_b32 v27, s68")
    e("  v_cmp_gt_u32 vcc, 8, v25")
    e("  v_cmp_gt_u32 s[42:43], 32, v0")
    e("  s_and_b64 vcc, vcc, s[42:43]")
    e("  s_and_saveexec_b64 s[50:51], vcc")
    e(f"  s_mov_b32 s52, {WS_SEL}")
    e("  buffer_store_dwordx2 v[26:27], v3, s[24:27], s52 offen sc1")
    e("  s_mov_b64 exec, s[50:51]")
    lab("mt_nosel")
    e("  s_cmp_lg_u32 s15, 0")
    e("  s_cbranch_scc1 mt_selbar")
    e("  v_and_b32 v3, 7, v0")
    e("  v_lshlrev_b32 v4, 3, v3")
    e("  v_lshlrev_b32 v3, 2, v3")
    e(f"  s_mov_b32 s52, {WS_SEL}")
    e("  s_mov_b32 s53, 0")
    lab("mt_psel")
    e("  buffer_load_dwordx2 v[26:27], v4, s[24:27], s52 offen sc1")
    e("  s_waitcnt vmcnt(0)")
    e("  v_cmp_ne_u32 s[54:55], s68, v27")
    poll_end("mt_psel")
    e(f"  ds_write_b32 v3, v26 offset:{C+128}")
    e("  s_waitcnt lgkmcnt(0)")
    lab("mt_selbar")
    e("  s_barrier")
    stamp(5)
    e("  v_mov_b32 v4, 0")
    e(f"  ds_read_b128 v[16:19], v4 offset:{C+128}")
    e(f"  ds_read_b128 v[20:23], v4 offset:{C+144}")
    e("  v_sub_u32 v5, 0xffff, v151")
    e("  s_waitcnt lgkmcnt(0)")
    e("  s_mov_b64 s[42:43], exec")
    for k in range(8):
        e(f"  v_and_b32 v{16+k}, 0xffff, v{16+k}")
        e(f"  v_cmp_ne_u32 vcc, v{16+k}, v5")
        e("  s_and_b64 s[42:43], s[42:43], vcc")
    e("  s_and_saveexec_b64 s[50:51], s[42:43]")
    e("  s_cbranch_execz mt_nostore")
    for j in range(2):
        e(f"  buffer_store_dwordx4 {vr(152+4*j,4)}, v150, s[44:47], 0 offen offset:{512*j}")
    lab("mt_nostore")
    e("  s_mov_b64 exec, s[50:51]")
    e("  s_cmp_ge_u32 s2, 240")
    e("  s_cbranch_scc1 k2_done")
    e("  s_cmp_ge_u32 s2, 224")
    e("  s_cbranch_scc1 mt_f2")
    e("  v_lshrrev_b32 v4, 5, v40")
    e("  v_and_b32 v5, 31, v40")
    e("  v_lshlrev_b32 v3, 2, v4")
    e(f"  ds_read_b32 v6, v3 offset:{C+128}")
    e("  s_waitcnt lgkmcnt(0)")
    e("  v_and_b32 v6, 0xffff, v6")
    e("  v_sub_u32 v6, 0xffff, v6")
    e("  v_lshlrev_b32 v7, 10, v6")
    e("  v_lshl_add_u32 v7, v5, 4, v7")
    e(f"  s_mov_b32 s52, {WS_Y}")
    e(f"  s_mov_b32 s53, {WS_Y + (2<<20)}")
    YR, YI, XX = 16, 24, 32
    for j in range(2):
        e(f"  buffer_load_dwordx4 {vr(YR+4*j,4)}, v7, s[24:27], s52 offen offset:{512*j} sc1")
        e(f"  buffer_load_dwordx4 {vr(YI+4*j,4)}, v7, s[24:27], s53 offen offset:{512*j} sc1")
        e(f"  buffer_load_dwordx4 {vr(XX+4*j,4)}, v7, s[20:23], 0 offen offset:{512*j}")
    e("  v_lshlrev_b32 v3, 4, v6")
    e(f"  s_mov_b32 s52, {WS_REC}")
    e("  buffer_load_dwordx4 v[44:47], v3, s[24:27], s52 offen sc1")
    e("  s_waitcnt vmcnt(0)")
    e("  v_sub_f32 v54, 0, v45")
    e("  v_mov_b32 v55, v54")
    e("  v_mov_b32 v52, v46")
    e("  v_mov_b32 v53, v46")
    recompute(YR, YI, XX, 8, 54, 52, 64, 80, 56)
    e(f"  v_mul_u32_u24 v3, {XS_STRIDE}, v4")
    e("  v_lshl_add_u32 v3, v5, 4, v3")
    e(f"  ds_write_b128 v3, v[80:83] offset:{MT_XS}")
    e(f"  ds_write_b128 v3, v[84:87] offset:{MT_XS+512}")
    e("  s_waitcnt lgkmcnt(0)")
    e("  s_barrier")
    e("  s_cmp_lg_u32 s15, 0")
    e("  s_cbranch_scc1 k2_done")
    e("  v_and_b32 v3, 7, v0")
    e(f"  v_mul_u32_u24 v3, {XS_STRIDE}, v3")
    e("  v_lshrrev_b32 v4, 4, v0")
    e("  v_lshl_add_u32 v3, v4, 4, v3")
    e("  v_and_b32 v5, 15, v0")
    e("  v_lshrrev_b32 v5, 2, v5")
    e("  v_lshl_add_u32 v5, v4, 3, v5")
    e("  v_lshlrev_b32 v5, 4, v5")
    e("  v_and_b32 v6, 1, v0")
    e("  v_lshl_add_u32 v5, v6, 3, v5")
    e("  v_and_b32 v6, 2, v0")
    e("  v_lshl_add_u32 v5, v6, 12, v5")
    for i in range(4):
        e(f"  v_mov_b32 v{8+i}, 0")
    FA, FB = 16, 80
    for st in range(16):
        e(f"  ds_read_b128 {vr(FA+4*st,4)}, v3 offset:{MT_XS + 64*st}")
        e(f"  ds_read_b64_tr_b16 {vr(FB+4*st,2)}, v5 offset:{MT_G+512*st}")
        e(f"  ds_read_b64_tr_b16 {vr(FB+4*st+2,2)}, v5 offset:{MT_G+512*st+64}")
        if st % 4 == 3:
            e("  s_waitcnt lgkmcnt(0)")
            for s2 in range(st-3, st+1):
                e(f"  v_mfma_f32_16x16x32_bf16 v[8:11], {vr(FA+4*s2,4)}, {vr(FB+4*s2,4)}, v[8:11]")
    e("  s_nop 15")
    for i in range(4):
        e(f"  v_cvt_pk_bf16_f32 v{8+i}, v{8+i}, v{8+i}")
        e(f"  v_lshlrev_b32 v{8+i}, 16, v{8+i}")
    e("  s_nop 1")
    for i in range(4):
        e(f"  v_mov_b32_dpp v{12+i}, v{8+i} row_ror:8 row_mask:0xf bank_mask:0xf")
    for i in range(4):
        e(f"  v_mul_f32 v16, 0xbfb8aa3b, v{8+i}")
        e("  v_exp_f32 v16, v16")
        e("  s_nop 0")
        e("  v_add_f32 v16, 1.0, v16")
        e("  v_rcp_f32 v16, v16")
        e("  s_nop 0")
        e(f"  v_mul_f32 v16, v{8+i}, v16")
        e("  v_cvt_pk_bf16_f32 v16, v16, v16")
        e("  v_lshlrev_b32 v16, 16, v16")
        e(f"  v_mul_f32 v16, v16, v{12+i}")
        e(f"  v_cvt_pk_bf16_f32 v{20+i}, v16, v16")
    e("  s_nop 1")
    for i in range(4):
        e(f"  v_mov_b32_dpp v{24+i}, v{20+i} quad_perm:[1,0,3,2] row_mask:0xf bank_mask:0xf")
    for i in range(4):
        e(f"  v_and_b32 v{20+i}, 0xffff, v{20+i}")
        e(f"  v_and_b32 v{24+i}, 0xffff0000, v{24+i}")
        e(f"  v_or_b32 v{20+i}, v{20+i}, v{24+i}")
        e(f"  v_min_u32 v{20+i}, 0xfffeffff, v{20+i}")
    e("  v_and_b32 v5, 15, v0")
    e("  v_lshlrev_b32 v4, 6, v4")
    e("  v_lshl_add_u32 v4, v5, 1, v4")
    e("  v_lshlrev_b32 v7, 4, v0")
    e("  v_and_b32 v6, 9, v0")
    e("  v_cmp_eq_u32 vcc, 0, v6")
    e("  v_cmp_gt_u32 s[42:43], 32, v0")
    e("  s_and_b64 vcc, vcc, s[42:43]")
    e("  s_and_saveexec_b64 s[50:51], vcc")
    for i in range(4):
        e(f"  ds_write_b32 v4, v{20+i} offset:{MT_R+16*i}")
    e("  s_mov_b64 exec, 0xff")
    e("  s_waitcnt lgkmcnt(0)")
    e(f"  ds_read_b128 v[24:27], v7 offset:{MT_R}")
    e("  s_lshl_b32 s35, s3, 7")
    e(f"  s_add_u32 s35, s35, {WS_GU}")
    e("  s_waitcnt lgkmcnt(0)")
    e("  buffer_store_dwordx4 v[24:27], v7, s[24:27], s35 offen sc1")
    e("  s_mov_b64 exec, -1")
    hstamp(8)
    e("  s_branch k2_done")
    lab("mt_f2")
    e("  s_sub_u32 s49, s2, 224")
    e("  v_lshlrev_b32 v3, 4, v0")
    e("  s_mul_i32 s34, s15, 7168")
    e(f"  s_mul_i32 s33, s49, {4*28672}")
    e("  s_add_u32 s33, s33, s34")
    e(f"  s_add_u32 s33, s33, {WS_WDB}")
    for dsl in range(4):
        for i in range(7):
            e(f"  s_add_u32 m0, s34, {MT_WD + dsl*28672 + 1024*i}")
            e("  s_nop 0")
            e(f"  buffer_load_dwordx4 v3, s[24:27], s33 offen sc1 lds")
            e(f"  s_add_u32 s33, s33, {1024 if i < 6 else 28672 - 6*1024}")
    e("  v_lshrrev_b32 v5, 4, v0")
    e("  v_and_b32 v6, 1, v5")
    e("  v_lshlrev_b32 v6, 4, v6")
    e(f"  ds_read_b128 v[24:27], v6 offset:{C+128}")
    e("  v_and_b32 v6, 15, v0")
    e("  s_lshl_b32 s35, s49, 6")
    e("  s_waitcnt lgkmcnt(0)")
    for i in range(4):
        e(f"  v_and_b32 v{28+i}, 0xffff, v{24+i}")
        e(f"  v_sub_u32 v{28+i}, 0xffff, v{28+i}")
        e(f"  v_lshlrev_b32 v{32+i}, 4, v{28+i}")
        e(f"  v_lshlrev_b32 v{28+i}, 10, v{28+i}")
        e(f"  v_lshl_add_u32 v{28+i}, v6, 1, v{28+i}")
        e(f"  v_add_u32 v{28+i}, s35, v{28+i}")
    E0 = 136
    e("  s_cmp_lg_u32 s15, 0")
    e("  s_cbranch_scc1 mt_noepi")
    e(f"  s_mov_b32 s36, {WS_Y}")
    e(f"  s_mov_b32 s37, {WS_Y + (2<<20)}")
    e(f"  s_mov_b32 s38, {WS_REC}")
    for a in range(2):
        for i in range(4):
            e(f"  buffer_load_ushort v{E0+12*a+i}, v{28+i}, s[24:27], s36 offen offset:{32*a} sc1")
            e(f"  buffer_load_ushort v{E0+4+12*a+i}, v{28+i}, s[24:27], s37 offen offset:{32*a} sc1")
            e(f"  buffer_load_ushort v{E0+8+12*a+i}, v{28+i}, s[20:23], 0 offen offset:{32*a}")
    for i in range(4):
        e(f"  buffer_load_dwordx4 {vr(36+4*i,4)}, v{32+i}, s[24:27], s38 offen sc1")
    lab("mt_noepi")
    e("  v_lshrrev_b32 v7, 2, v6")
    e("  v_lshl_add_u32 v7, v5, 3, v7")
    e("  v_lshlrev_b32 v7, 4, v7")
    e("  v_and_b32 v60, 1, v0")
    e("  v_lshl_add_u32 v7, v60, 3, v7")
    e("  v_and_b32 v60, 2, v0")
    e("  v_mul_u32_u24 v60, 14336, v60")
    e("  v_add_u32 v7, v60, v7")
    e("  v_add_u32 v7, s34, v7")
    e(f"  v_add_u32 v61, {2*28672}, v7")
    for i in range(8):
        e(f"  v_mov_b32 v{8+i}, 0")
    e("  s_waitcnt vmcnt(0)")
    for i in range(4):
        e(f"  v_and_b32 v60, 0xffff0000, v{24+i}")
        e("  v_ashrrev_i32 v62, 31, v60")
        e("  v_not_b32 v62, v62")
        e("  v_or_b32 v62, 0x80000000, v62")
        e("  v_xor_b32 v60, v60, v62")
        e("  v_and_b32 v60, 0xffff0000, v60")
        e("  v_mul_f32 v60, 0xbfb8aa3b, v60")
        e("  v_exp_f32 v60, v60")
        e("  s_nop 0")
        e("  v_add_f32 v60, 1.0, v60")
        e("  v_rcp_f32 v60, v60")
        e("  s_nop 0")
        e("  v_cvt_pk_bf16_f32 v60, v60, v60")
        e(f"  v_lshlrev_b32 v{24+i}, 16, v60")
    for a in range(2):
        for i in range(4):
            r0, r1, r2 = E0+12*a+i, E0+4+12*a+i, E0+8+12*a+i
            e(f"  v_lshlrev_b32 v{r0}, 16, v{r0}")
            e(f"  v_lshlrev_b32 v{r1}, 16, v{r1}")
            e(f"  v_lshlrev_b32 v{r2}, 16, v{r2}")
            e(f"  v_sub_f32 v60, v{r0}, v{r1}")
            e("  v_cvt_pk_bf16_f32 v60, v60, v60")
            e("  v_lshlrev_b32 v60, 16, v60")
            e(f"  v_add_f32 v60, v{r2}, v60")
            e("  v_cvt_pk_bf16_f32 v60, v60, v60")
            e(f"  v_lshlrev_b32 v{r0}, 16, v60")
            e(f"  v_sub_f32 v62, v{r0}, v{37+4*i}")
            e("  v_cvt_pk_bf16_f32 v62, v62, v62")
            e("  v_lshlrev_b32 v62, 16, v62")
            e(f"  v_mul_f32 v62, v62, v{38+4*i}")
            e("  v_cvt_pk_bf16_f32 v62, v62, v62")
            e(f"  v_lshlrev_b32 v{r1}, 16, v62")
    e("  v_and_b32 v4, 7, v0")
    e("  v_lshlrev_b32 v4, 4, v4")
    e("  v_lshl_add_u32 v4, v5, 7, v4")
    e("  v_add_u32 v62, 4096, v4")
    e("  s_mul_i32 s52, s15, 7168")
    e(f"  s_add_u32 s52, s52, {WS_GU}")
    FA = 64
    e("  s_mov_b32 s53, 0")
    lab("mt_pgu")
    for st in range(14):
        if st < 8:
            e(f"  buffer_load_dwordx4 {vr(FA+4*st,4)}, v4, s[24:27], s52 offen offset:{512*st} sc1")
        else:
            e(f"  buffer_load_dwordx4 {vr(FA+4*st,4)}, v62, s[24:27], s52 offen offset:{512*(st-8)} sc1")
    e("  v_mov_b32 v3, 0")
    for st in range(14):
        e(f"  s_waitcnt vmcnt({13-st})")
        e(f"  v_max3_u32 v3, v3, v{FA+4*st}, v{FA+4*st+1}")
        e(f"  v_max3_u32 v3, v3, v{FA+4*st+2}, v{FA+4*st+3}")
    e("  v_cmp_eq_u32 s[54:55], -1, v3")
    poll_end("mt_pgu")
    hstamp(9, 224)
    def rdB(st):
        b = 120 + 8 * (st % 2)
        e(f"  ds_read_b64_tr_b16 {vr(b,2)}, v7 offset:{MT_WD+512*st}")
        e(f"  ds_read_b64_tr_b16 {vr(b+2,2)}, v7 offset:{MT_WD+512*st+64}")
        e(f"  ds_read_b64_tr_b16 {vr(b+4,2)}, v61 offset:{MT_WD+512*st}")
        e(f"  ds_read_b64_tr_b16 {vr(b+6,2)}, v61 offset:{MT_WD+512*st+64}")
    rdB(0)
    for st in range(14):
        b = 120 + 8 * (st % 2)
        if st < 13:
            rdB(st + 1)
            e("  s_waitcnt lgkmcnt(4)")
        else:
            e("  s_waitcnt lgkmcnt(0)")
        e(f"  v_mfma_f32_16x16x32_bf16 v[8:11], {vr(FA+4*st,4)}, {vr(b,4)}, v[8:11]")
        e(f"  v_mfma_f32_16x16x32_bf16 v[12:15], {vr(FA+4*st,4)}, {vr(b+4,4)}, v[12:15]")
        e("  s_nop 3")
    e("  s_nop 15")
    e("  v_lshlrev_b32 v3, 4, v0")
    e("  s_lshl_b32 s33, s15, 11")
    e("  v_add_u32 v3, s33, v3")
    e(f"  ds_write_b128 v3, v[8:11] offset:{MT_R}")
    e(f"  ds_write_b128 v3, v[12:15] offset:{MT_R+1024}")
    e("  s_waitcnt lgkmcnt(0)")
    e("  s_barrier")
    e("  s_cmp_lg_u32 s15, 0")
    e("  s_cbranch_scc1 k2_done")
    e("  v_lshlrev_b32 v3, 4, v0")
    for w in range(1, 4):
        for a in range(2):
            e(f"  ds_read_b128 {vr(72+8*(w-1)+4*a,4)}, v3 offset:{MT_R+2048*w+1024*a}")
    e("  v_cmp_gt_u32 vcc, 32, v0")
    e("  s_and_saveexec_b64 s[50:51], vcc")
    e("  s_waitcnt lgkmcnt(0)")
    for a in range(2):
        for i in range(4):
            y = 8 + 4*a + i
            e(f"  v_add_f32 v{y}, v{y}, v{72+4*a+i}")
            e(f"  v_add_f32 v60, v{80+4*a+i}, v{88+4*a+i}")
            e(f"  v_add_f32 v{y}, v{y}, v60")
            e(f"  v_cvt_pk_bf16_f32 v{y}, v{y}, v{y}")
            e(f"  v_lshlrev_b32 v{y}, 16, v{y}")
            e(f"  v_mul_f32 v{y}, v{y}, v{24+i}")
            e(f"  v_cvt_pk_bf16_f32 v{y}, v{y}, v{y}")
            e(f"  v_lshlrev_b32 v{y}, 16, v{y}")
            e(f"  v_add_f32 v61, v{E0+4+12*a+i}, v{y}")
            e("  v_cvt_pk_bf16_f32 v61, v61, v61")
            e("  v_lshlrev_b32 v61, 16, v61")
            e(f"  v_add_f32 v61, v{E0+12*a+i}, v61")
            e("  v_cvt_pk_bf16_f32 v61, v61, v61")
            e(f"  buffer_store_short v61, v{28+i}, s[44:47], 0 offen offset:{32*a}")
    e("  s_mov_b64 exec, -1")
    hstamp(10, 224)

def k2_epilogue_fused(ACC):
    TB = 49152
    e("  s_nop 7")
    P = 64
    for g in range(8):
        e(f"  v_cvt_pk_bf16_f32 v{P+2*g}, v{ACC+4*g}, v{ACC+4*g+1}")
        e(f"  v_cvt_pk_bf16_f32 v{P+2*g+1}, v{ACC+4*g+2}, v{ACC+4*g+3}")
    e("  s_mul_i32 s30, s15, 4608")
    e(f"  s_add_u32 s30, s30, {TB}")
    e("  v_mul_u32_u24 v18, 144, v16")
    e("  v_lshl_add_u32 v18, v17, 3, v18")
    e("  v_add_u32 v18, s30, v18")
    for g in range(8):
        e(f"  ds_write_b64 v18, {vr(P+2*g,2)} offset:{16*g}")
    e("  v_lshrrev_b32 v19, 3, v0")
    e("  v_and_b32 v22, 7, v0")
    e("  v_mul_u32_u24 v20, 144, v19")
    e("  v_lshl_add_u32 v20, v22, 4, v20")
    e("  v_add_u32 v20, s30, v20")
    e("  s_waitcnt lgkmcnt(0)")
    for q in range(4):
        e(f"  ds_read_b128 {vr(80+4*q,4)}, v20 offset:{8*144*q}")
    e("  s_lshl_b32 s24, s14, 21")
    e(f"  s_add_u32 s24, s24, {WS_Y}")
    e("  s_lshl_b32 s30, s13, 7")
    e("  s_add_u32 s24, s24, s30")
    e("  s_lshl_b32 s30, s12, 7")
    e("  s_lshl_b32 s31, s15, 5")
    e("  s_add_u32 s30, s30, s31")
    e("  v_add_u32 v21, s30, v19")
    e("  v_lshlrev_b32 v21, 10, v21")
    e("  v_lshl_add_u32 v21, v22, 4, v21")
    for q in range(4):
        e(f"  s_waitcnt lgkmcnt({3-q})")
        e(f"  buffer_store_dwordx4 {vr(80+4*q,4)}, v21, s[20:23], s24 offen sc1")
        if q < 3: e("  v_add_u32 v21, 0x2000, v21")
    e("  s_waitcnt vmcnt(0)")
    e("  s_barrier")
    e(f"  s_load_dwordx2 s[4:5], s[0:1], {KA_X}")
    e(f"  s_load_dwordx8 s[56:63], s[0:1], {KA_WR}")
    e(f"  s_load_dwordx2 s[64:65], s[0:1], {KA_OUT}")
    srd(24, 6, 7, 12 << 20)
    e("  s_lshl_b32 s48, s14, 3")
    e("  s_add_u32 s48, s48, s13")
    e("  s_cmp_lg_u32 s15, 0")
    e("  s_cbranch_scc1 k2_noflag")
    e("  s_lshl_b32 s49, s12, 6")
    e("  s_lshl_b32 s50, s48, 2")
    e("  s_add_u32 s49, s49, s50")
    e(f"  s_add_u32 s49, s49, {WS_FLAG}")
    e("  v_mov_b32 v4, s68" if FUSE else "  v_mov_b32 v4, 1")
    e("  v_mov_b32 v5, 0")
    e("  s_mov_b64 s[50:51], exec")
    e("  s_mov_b64 exec, 1")
    e("  buffer_store_dword v4, v5, s[24:27], s49 offen sc1")
    e("  s_mov_b64 exec, s[50:51]")
    lab("k2_noflag")
    e("  s_waitcnt lgkmcnt(0)")
    srd(20, 4, 5, 2 << 20)
    srd(28, 56, 57, 1024)
    srd(44, 64, 65, 2 << 20)
    e("  v_lshrrev_b32 v1, 5, v0")
    e("  v_and_b32 v2, 31, v0")
    e("  s_lshl_b32 s52, s12, 7")
    e("  s_lshl_b32 s53, s48, 3")
    e("  s_add_u32 s52, s52, s53")
    e("  s_lshl_b32 s53, s15, 1")
    e("  s_add_u32 s52, s52, s53")
    e("  v_add_u32 v1, s52, v1")
    rowmac32_pre()
    if MEGA: mega_gu_dma()
    e("  v_and_b32 v7, 15, v0")
    e("  v_lshlrev_b32 v7, 2, v7")
    e("  s_lshl_b32 s49, s12, 6")
    e(f"  s_add_u32 s49, s49, {WS_FLAG}")
    e("  s_mov_b32 s53, 0")
    lab("k2_poll")
    e("  buffer_load_dword v4, v7, s[24:27], s49 offen sc1")
    e("  s_waitcnt vmcnt(0)")
    e("  v_cmp_ne_u32 s[54:55], s68, v4" if FUSE else "  v_cmp_eq_u32 s[54:55], 0, v4")
    e("  s_nop 3")
    e("  s_cmp_eq_u64 s[54:55], 0")
    e("  s_cbranch_scc1 k2_poll_ok")
    e("  s_add_u32 s53, s53, 1")
    e(f"  s_cmp_gt_u32 s53, {1 << 22}")
    e("  s_cbranch_scc1 k2_poll_ok")
    e("  s_branch k2_poll")
    lab("k2_poll_ok")
    stamp(3)
    rowmac32()
    stamp(4)
    if MEGA:
        mega_tail()
        return
    e("  v_lshlrev_b32 v13, 2, v1")
    e("  v_lshlrev_b32 v14, 3, v1")
    e("  v_mov_b32 v7, v10")
    e("  v_cmp_eq_u32 vcc, 0, v2")
    e("  s_and_saveexec_b64 s[50:51], vcc")
    e(f"  s_mov_b32 s52, {WS_KEY}")
    e("  buffer_store_dword v12, v13, s[24:27], s52 offen")
    e(f"  s_mov_b32 s52, {WS_STAT}")
    e("  buffer_store_dwordx2 v[6:7], v14, s[24:27], s52 offen")
    e("  s_mov_b64 exec, s[50:51]")
    if OPT('K2_NOGU'): return
    e("  s_cmp_ge_u32 s15, 2")
    e("  s_cbranch_scc1 k2_done")
    e("  s_cmp_eq_u32 s15, 0")
    e("  s_cselect_b32 s40, s58, s60")
    e("  s_cselect_b32 s41, s59, s61")
    e(f"  s_mov_b32 s42, {512*1792*2}")
    e("  s_mov_b32 s43, 0x00020000")
    e("  s_and_b32 s52, s2, 7")
    e("  s_lshr_b32 s53, s2, 3")
    e("  v_min_u32 v1, 55, v0")
    e("  v_cmp_lt_u32 vcc, 27, v1")
    e("  s_nop 1")
    e("  v_cndmask_b32 v2, 0, 1, vcc")
    e("  v_mul_u32_u24 v3, 28, v2")
    e("  v_sub_u32 v3, v1, v3")
    e("  v_mul_u32_u24 v2, 3584, v2")
    e("  v_lshl_add_u32 v2, v3, 4, v2")
    e("  s_mul_i32 s54, s52, 448")
    e(f"  s_mul_i32 s55, s53, {16*3584}")
    e("  s_add_u32 s54, s54, s55")
    for q in range(8):
        e(f"  buffer_load_dwordx4 {vr(80+4*q,4)}, v2, s[40:43], s54 offen")
        e(f"  s_add_u32 s54, s54, {2*3584}")

def gen_k2():
    NS = K2_NS
    name = "f_kernel" if FUSE else "k2_kernel"
    YBASE = NS * 16384
    if not FUSE:
        kernel_begin(name)
        e("  s_cmp_ge_u32 s2, 256")
        e("  s_cbranch_scc1 k2_done")
        e(f"  s_load_dwordx4 s[8:11], s[0:1], {KA_WSRE}")
        e(f"  s_load_dwordx2 s[6:7], s[0:1], {KA_WS}")
        e(f"  s_load_dwordx2 s[34:35], s[0:1], {KA_WDN}")
    else:
        e("  s_mov_b32 s71, s15")
    e("  s_and_b32 s12, s2, 7")
    e("  s_lshr_b32 s13, s2, 3")
    e("  s_lshr_b32 s14, s12, 2")
    e("  s_and_b32 s12, s12, 3")
    e("  s_lshl_b32 s12, s12, 2")
    e("  s_lshr_b32 s15, s13, 3")
    e("  s_add_u32 s12, s12, s15")
    e("  s_and_b32 s13, s13, 7")
    if FUSE:
        e("  s_mov_b32 s15, s71")
    else:
        e("  v_lshrrev_b32 v1, 6, v0")
        e("  v_and_b32 v0, 63, v0")
        e("  v_readfirstlane_b32 s15, v1")
    e("  v_lshrrev_b32 v2, 3, v0")
    e("  v_and_b32 v3, 7, v0")
    e("  s_waitcnt lgkmcnt(0)")
    e("  s_cmp_eq_u32 s14, 0")
    e("  s_cselect_b32 s16, s8, s10")
    e("  s_cselect_b32 s17, s9, s11")
    e(f"  s_mov_b32 s18, {2048*2048*2}")
    e("  s_mov_b32 s19, 0x00020000")
    srd(20, 6, 7, 9 << 20)
    e("  s_cmp_lt_u32 s15, 4")
    e("  s_cbranch_scc1 k2_consumer")
    if not FUSE:
        e("  s_cmp_lt_u32 s15, 8")
        e("  s_cbranch_scc1 k2_loader")
    if not FUSE: helper_wave()
    lab("k2_loader")
    e("  s_sub_u32 s15, s15, 4")
    for ii in range(4):
        e(f"  s_lshl_b32 s24, s15, 5")
        e(f"  s_add_u32 s24, s24, {8*ii}")
        e(f"  v_add_u32 v10, s24, v2")
        e(f"  v_lshrrev_b32 v11, 1, v10")
        e(f"  v_and_b32 v11, 7, v11")
        e(f"  v_xor_b32 v11, v11, v3")
        e(f"  s_lshl_b32 s24, s12, 7")
        e(f"  v_add_u32 v10, s24, v10")
        e(f"  v_lshlrev_b32 v10, 12, v10")
        e(f"  v_lshl_add_u32 v{4+ii}, v11, 4, v10")
    e("  s_lshl_b32 s24, s15, 11")
    e("  v_lshlrev_b32 v8, 4, v0")
    e("  v_add_u32 v8, s24, v8")
    e("  v_add_u32 v9, 1024, v8")
    e("  s_mov_b32 s25, 0")
    e("  s_lshl_b32 s26, s14, 3")
    e("  s_add_u32 s26, s26, s13")
    e("  s_lshl_b32 s26, s26, 18")
    e("  s_lshl_b32 s27, s15, 12")
    e("  s_lshl_b32 s28, s15, 11")
    e(f"  s_add_u32 s28, s28, {YBASE}")
    YSC = " sc1" if FUSE else ""
    def dmaY(slot, so="s26"):
        for i in range(2):
            e(f"  s_add_u32 m0, s28, {slot*8192 + i*1024}")
            e("  s_nop 0")
            e(f"  buffer_load_dwordx4 v{8+i}, s[20:23], {so} offen{YSC} lds")
    def dmaW(slot):
        for i in range(4):
            e(f"  s_add_u32 m0, s27, {slot*16384 + i*1024}")
            e("  s_nop 0")
            e(f"  buffer_load_dwordx4 v{4+i}, s[16:19], s25 offen lds")
    def adv():
        e("  s_add_u32 s25, s25, 128")
        e("  s_and_b32 s25, s25, 4095")
        e("  s_lshl_b32 s29, s25, 6")
        e("  s_add_u32 s26, s33, s29")
    def dma(slot):
        dmaY(slot); dmaW(slot); adv()
    e("  s_mov_b32 s33, s26")
    e(f"  s_mul_i32 s25, s13, {128*OPT('K2_ROT', 4)}")
    e("  s_and_b32 s25, s25, 4095")
    e("  s_lshl_b32 s29, s25, 6")
    e("  s_add_u32 s26, s33, s29")
    if not FUSE:
        for st in range(NS):
            dma(st)
        e(f"  s_waitcnt vmcnt({6*(NS-1)})")
        e("  s_barrier")
        for ks in range(31):
            ahead = min(ks + NS - 1, 31) - (ks + 1)
            e(f"  s_waitcnt vmcnt({6*ahead})")
            e("  s_barrier")
            if ks + NS < 32:
                dma(ks % NS)
    else:
        e("  s_mov_b32 s30, s25")
        e("  s_waitcnt vmcnt(0)")
        e("  s_barrier")
        for st in range(NS):
            dmaW(st); adv()
        e("  s_barrier")
        for st in range(NS):
            e("  s_lshl_b32 s29, s30, 6")
            e("  s_add_u32 s31, s33, s29")
            dmaY(st, "s31")
            e("  s_add_u32 s30, s30, 128")
            e("  s_and_b32 s30, s30, 4095")
        e(f"  s_waitcnt vmcnt({2*(NS-1)})")
        e("  s_barrier")
        for ks in range(31):
            if ks + 1 <= NS - 1:
                allowed = 2 * (NS - 1 - (ks + 1)) + 6 * ks
            else:
                allowed = 6 * (min(ks + NS - 1, 31) - (ks + 1))
            e(f"  s_waitcnt vmcnt({allowed})")
            e("  s_barrier")
            if ks + NS < 32:
                dma(ks % NS)
    e("  s_branch k2_done")
    lab("k2_consumer")
    if FUSE:
        e("  s_cmp_lg_u32 s15, 0")
        e("  s_cbranch_scc1 f_noep")
        get_epoch("co")
        e("  v_mov_b32 v4, s68")
        e(f"  v_mov_b32 v5, {K2_NS*24576}")
        e("  ds_write_b32 v5, v4")
        e("  s_waitcnt lgkmcnt(0)")
        lab("f_noep")
        e("  s_waitcnt vmcnt(0)")
        e("  s_barrier")
        e("  s_cmp_lg_u32 s15, 0")
        e("  s_cbranch_scc1 f_noflagA")
        e("  v_mov_b32 v4, s68")
        e("  v_mov_b32 v5, 0")
        e("  s_mov_b64 s[36:37], exec")
        e("  s_mov_b64 exec, 1")
        e("  buffer_store_dword v4, v5, s[20:23], s70 offen sc1")
        e("  s_mov_b64 exec, s[36:37]")
        lab("f_noflagA")
        e(f"  v_mov_b32 v158, {K2_NS*24576}")
        e("  ds_read_b32 v159, v158")
        e("  s_waitcnt lgkmcnt(0)")
        e("  v_readfirstlane_b32 s68, v159")
        e("  s_cmp_lg_u32 s15, 1")
        e("  s_cbranch_scc1 f_pollA_ok")
        e("  s_lshl_b32 s31, s14, 2")
        e("  s_lshr_b32 s32, s13, 1")
        e("  s_add_u32 s31, s31, s32")
        e("  s_lshl_b32 s31, s31, 7")
        e(f"  s_add_u32 s31, s31, {WS_FA}")
        e("  v_and_b32 v10, 31, v0")
        e("  v_lshlrev_b32 v10, 2, v10")
        e("  s_mov_b32 s69, 0")
        lab("f_pollA")
        e("  buffer_load_dword v11, v10, s[20:23], s31 offen sc1")
        e("  s_waitcnt vmcnt(0)")
        e("  v_cmp_ne_u32 s[36:37], s68, v11")
        e("  s_nop 3")
        e("  s_cmp_eq_u64 s[36:37], 0")
        e("  s_cbranch_scc1 f_pollA_ok")
        e("  s_add_u32 s69, s69, 1")
        e(f"  s_cmp_gt_u32 s69, {1 << 22}")
        e("  s_cbranch_scc1 f_pollA_ok")
        e("  s_branch f_pollA")
        lab("f_pollA_ok")
        stamp(1)
        e("  s_barrier")
    e("  v_and_b32 v16, 31, v0")
    e("  v_lshrrev_b32 v17, 5, v0")
    e("  s_lshl_b32 s24, s15, 5")
    e("  v_add_u32 v18, s24, v16")
    e("  v_lshrrev_b32 v19, 1, v18")
    e("  v_and_b32 v19, 7, v19")
    e("  v_xor_b32 v19, v19, v17")
    e("  v_lshlrev_b32 v18, 7, v18")
    e("  v_lshl_add_u32 v20, v19, 4, v18")
    for kk in range(1, 4):
        e(f"  v_xor_b32 v{20+kk}, {32*kk}, v20")
    for kk in range(4):
        e(f"  v_add_u32 v{28+kk}, 0x10000, v{20+kk}")
    e("  v_lshrrev_b32 v19, 1, v16")
    e("  v_and_b32 v19, 7, v19")
    e("  v_xor_b32 v19, v19, v17")
    e("  v_lshlrev_b32 v18, 7, v16")
    e("  v_lshl_add_u32 v24, v19, 4, v18")
    e(f"  v_add_u32 v24, {YBASE}, v24")
    for kk in range(1, 4):
        e(f"  v_xor_b32 v{24+kk}, {32*kk}, v24")
    ACC = 32
    for i in range(32):
        e(f"  v_mov_b32 v{ACC+i}, 0")
    def FW(st): return 64 + 48 * (st % 2)
    def FY(st): return 80 + 48 * (st % 2)
    def rd(st, kk):
        slot = st % NS
        wb = 20 if slot < 4 else 28
        e(f"  ds_read_b128 {vr(FW(st)+4*kk,4)}, v{wb+kk} offset:{16384*(slot%4)}")
        e(f"  ds_read_b128 {vr(FY(st)+8*kk,4)}, v{24+kk} offset:{8192*slot}")
        e(f"  ds_read_b128 {vr(FY(st)+8*kk+4,4)}, v{24+kk} offset:{8192*slot+4096}")
    e("  s_barrier")
    stamp(2)
    for kk in range(4):
        rd(0, kk)
    def mf(st, kk, half):
        e(f"  v_mfma_f32_32x32x16_bf16 {vr(ACC+16*half,16)}, {vr(FY(st)+8*kk+4*half,4)}, {vr(FW(st)+4*kk,4)}, {vr(ACC+16*half,16)}")
    for ks in range(32):
        more = ks + 1 < 32
        e("  s_waitcnt lgkmcnt(0)")
        if more and not OPT('K2_NOBAR'):
            e("  s_barrier")
        if OPT('K2_NOBAR') == 2: continue
        r = (lambda kk: rd(ks + 1, kk)) if more else (lambda kk: None)
        mf(ks, 0, 0); r(0); mf(ks, 0, 1); r(1)
        mf(ks, 1, 0); r(2); mf(ks, 1, 1); r(3)
        mf(ks, 2, 0); mf(ks, 2, 1)
        mf(ks, 3, 0); mf(ks, 3, 1)
    stamp(6)
    if not OPT('K2T1', 1):
        k2_epilogue_plain(ACC)
    else:
        k2_epilogue_fused(ACC)
    lab("k2_done")
    kernel_end()
    e("  s_endpgm")
    kernel_desc(name, 164 if FUSE else 160)

def gen_t1():
    name = "t1_kernel"
    kernel_begin(name)
    e("  s_cmp_ge_u32 s2, 256")
    e("  s_cbranch_scc1 t1_done")
    e(f"  s_load_dwordx2 s[4:5], s[0:1], {KA_X}")
    e(f"  s_load_dwordx2 s[6:7], s[0:1], {KA_WS}")
    e(f"  s_load_dwordx2 s[8:9], s[0:1], {KA_WR}")
    e(f"  s_load_dwordx2 s[10:11], s[0:1], {KA_OUT}")
    if OPT('T1_PF', 1):
        e(f"  s_load_dwordx4 s[32:35], s[0:1], {KA_WG}")
        e("  v_lshrrev_b32 v1, 6, v0")
        e("  s_nop 0")
        e("  v_readfirstlane_b32 s3, v1")
        e("  s_cmp_lg_u32 s3, 2")
        e("  s_cbranch_scc1 t1_main")
        e("  s_waitcnt lgkmcnt(0)")
        srd(40, 32, 33, 512*1792*2)
        srd(44, 34, 35, 512*1792*2)
        e("  v_and_b32 v0, 63, v0")
        e("  s_and_b32 s52, s2, 7")
        e("  s_lshr_b32 s53, s2, 3")
        e("  v_min_u32 v1, 55, v0")
        e("  v_cmp_lt_u32 vcc, 27, v1")
        e("  v_cndmask_b32 v2, 0, 1, vcc")
        e("  v_mul_u32_u24 v3, 28, v2")
        e("  v_sub_u32 v3, v1, v3")
        e("  v_mul_u32_u24 v2, 3584, v2")
        e("  v_lshl_add_u32 v2, v3, 4, v2")
        e("  s_mul_i32 s54, s52, 448")
        e(f"  s_mul_i32 s55, s53, {16*3584}")
        e("  s_add_u32 s54, s54, s55")
        for q in range(8):
            e(f"  buffer_load_dwordx4 {vr(8+8*q,4)}, v2, s[40:43], s54 offen")
            e(f"  buffer_load_dwordx4 {vr(12+8*q,4)}, v2, s[44:47], s54 offen")
            e(f"  s_add_u32 s54, s54, {2*3584}")
        e("  s_branch t1_done")
        lab("t1_main")
    e("  v_lshrrev_b32 v1, 4, v0")
    e("  v_and_b32 v2, 15, v0")
    e("  s_lshl_b32 s3, s2, 3")
    e("  v_add_u32 v1, s3, v1")
    e("  v_lshlrev_b32 v3, 10, v1")
    e("  v_lshl_add_u32 v3, v2, 4, v3")
    e("  v_lshlrev_b32 v4, 4, v2")
    e("  s_waitcnt lgkmcnt(0)")
    srd(12, 4, 5, 2 << 20)
    srd(16, 6, 7, 9 << 20)
    srd(20, 8, 9, 1024)
    srd(24, 10, 11, 2 << 20)
    e(f"  s_mov_b32 s28, {WS_Y}")
    e(f"  s_mov_b32 s29, {WS_Y + (2<<20)}")
    YR, YI, XX, WR = 16, 32, 48, 64
    for j in range(4):
        e(f"  buffer_load_dwordx4 {vr(YR+4*j,4)}, v3, s[16:19], s28 offen offset:{256*j}")
        e(f"  buffer_load_dwordx4 {vr(YI+4*j,4)}, v3, s[16:19], s29 offen offset:{256*j}")
        e(f"  buffer_load_dwordx4 {vr(XX+4*j,4)}, v3, s[12:15], 0 offen offset:{256*j}")
    for j in range(4):
        e(f"  buffer_load_dwordx4 {vr(WR+4*j,4)}, v4, s[20:23], 0 offen offset:{256*j}")
    H = 80
    T = 112
    e("  v_mov_b32 v14, 0")
    e("  v_mov_b32 v15, 0")
    for j in range(4):
        e(f"  s_waitcnt vmcnt({4 + 3*(3-j)})")
        for q in range(4):
            i = 4*j + q
            e(f"  v_lshlrev_b32 v{T}, 16, v{YR+i}")
            e(f"  v_and_b32 v{T+1}, 0xffff0000, v{YR+i}")
            e(f"  v_lshlrev_b32 v{T+2}, 16, v{YI+i}")
            e(f"  v_and_b32 v{T+3}, 0xffff0000, v{YI+i}")
            e(f"  v_pk_add_f32 {vr(T,2)}, {vr(T,2)}, {vr(T+2,2)} neg_lo:[0,1] neg_hi:[0,1]")
            e(f"  v_cvt_pk_bf16_f32 v{T}, v{T}, v{T+1}")
            e(f"  v_and_b32 v{T+1}, 0xffff0000, v{T}")
            e(f"  v_lshlrev_b32 v{T}, 16, v{T}")
            e(f"  v_lshlrev_b32 v{T+2}, 16, v{XX+i}")
            e(f"  v_and_b32 v{T+3}, 0xffff0000, v{XX+i}")
            e(f"  v_pk_add_f32 {vr(T,2)}, {vr(T,2)}, {vr(T+2,2)}")
            e(f"  v_cvt_pk_bf16_f32 v{T}, v{T}, v{T+1}")
            e(f"  v_lshlrev_b32 v{H+2*i}, 16, v{T}")
            e(f"  v_and_b32 v{H+2*i+1}, 0xffff0000, v{T}")
            e(f"  v_pk_add_f32 v[14:15], v[14:15], {vr(H+2*i,2)}")
    e("  v_add_f32 v5, v14, v15")
    reduce16(5)
    e("  v_mul_f32 v5, 0x3b000000, v5")
    e("  v_cvt_pk_bf16_f32 v6, v5, v5")
    e("  v_lshlrev_b32 v6, 16, v6")
    e("  v_sub_f32 v8, 0, v6")
    e("  v_mov_b32 v9, v8")
    e("  v_mov_b32 v10, 0")
    e("  v_mov_b32 v11, 0")
    D = 116
    for i in range(16):
        e(f"  v_pk_add_f32 {vr(D+2*i,2)}, {vr(H+2*i,2)}, v[8:9]")
        e(f"  v_pk_fma_f32 v[10:11], {vr(D+2*i,2)}, {vr(D+2*i,2)}, v[10:11]")
    e("  v_add_f32 v10, v10, v11")
    reduce16(10)
    e("  v_sub_f32 v11, v5, v6")
    e("  v_mul_f32 v11, v11, v11")
    e("  v_mul_f32 v10, 0x3b000000, v10")
    e("  v_sub_f32 v10, v10, v11")
    e("  v_max_f32 v10, 0, v10")
    e("  v_cvt_pk_bf16_f32 v10, v10, v10")
    e("  v_lshlrev_b32 v10, 16, v10")
    e("  v_add_f32 v10, 0x3727c5ac, v10")
    e("  v_cvt_pk_bf16_f32 v10, v10, v10")
    e("  v_lshlrev_b32 v10, 16, v10")
    e("  v_sqrt_f32 v10, v10")
    e("  s_nop 0")
    e("  v_cvt_pk_bf16_f32 v10, v10, v10")
    e("  v_lshlrev_b32 v10, 16, v10")
    e("  v_rcp_f32 v10, v10")
    e("  s_nop 0")
    e("  v_mov_b32 v11, v10")
    e("  v_mov_b32 v12, 0")
    e("  s_waitcnt vmcnt(0)")
    O = 16
    for i in range(16):
        e(f"  v_cvt_pk_bf16_f32 v{T}, v{D+2*i}, v{D+2*i+1}")
        e(f"  v_lshlrev_b32 v{D+2*i}, 16, v{T}")
        e(f"  v_and_b32 v{D+2*i+1}, 0xffff0000, v{T}")
        e(f"  v_pk_mul_f32 {vr(D+2*i,2)}, {vr(D+2*i,2)}, v[10:11]")
        e(f"  v_cvt_pk_bf16_f32 v{T}, v{D+2*i}, v{D+2*i+1}")
        e(f"  v_dot2_f32_bf16 v12, v{T}, v{WR+i}, v12")
        e(f"  v_lshlrev_b32 v{D+2*i}, 16, v{T}")
        e(f"  v_and_b32 v{D+2*i+1}, 0xffff0000, v{T}")
        e(f"  v_pk_add_f32 {vr(D+2*i,2)}, {vr(D+2*i,2)}, {vr(H+2*i,2)}")
        e(f"  v_cvt_pk_bf16_f32 v{O+i}, v{D+2*i}, v{D+2*i+1}")
    for j in range(4):
        e(f"  buffer_store_dwordx4 {vr(O+4*j,4)}, v3, s[24:27], 0 offen offset:{256*j}")
    e("  s_nop 3")
    reduce16(12)
    e("  v_cvt_pk_bf16_f32 v12, v12, v12")
    e("  v_lshlrev_b32 v12, 16, v12")
    e("  v_ashrrev_i32 v13, 31, v12")
    e("  v_or_b32 v13, 0x80000000, v13")
    e("  v_xor_b32 v12, v12, v13")
    e("  v_and_b32 v12, 0xffff0000, v12")
    e("  v_sub_u32 v13, 0xffff, v1")
    e("  v_or_b32 v12, v12, v13")
    e("  v_cmp_eq_u32 vcc, 0, v2")
    e("  s_and_saveexec_b64 s[30:31], vcc")
    e("  v_lshlrev_b32 v13, 2, v1")
    e(f"  s_mov_b32 s28, {WS_KEY}")
    e("  buffer_store_dword v12, v13, s[16:19], s28 offen")
    e("  v_lshlrev_b32 v13, 3, v1")
    e("  v_mov_b32 v7, v10")
    e(f"  s_mov_b32 s28, {WS_STAT}")
    e("  buffer_store_dwordx2 v[6:7], v13, s[16:19], s28 offen")
    lab("t1_done")
    kernel_end()
    e("  s_endpgm")
    kernel_desc(name, 148)

def recompute(YR, YI, XX, nd, NEGM, RINV, HOUT, XNOUT, T):
    for i in range(nd):
        e(f"  v_lshlrev_b32 v{T}, 16, v{YR+i}")
        e(f"  v_and_b32 v{T+1}, 0xffff0000, v{YR+i}")
        e(f"  v_lshlrev_b32 v{T+2}, 16, v{YI+i}")
        e(f"  v_and_b32 v{T+3}, 0xffff0000, v{YI+i}")
        e(f"  v_pk_add_f32 {vr(T,2)}, {vr(T,2)}, {vr(T+2,2)} neg_lo:[0,1] neg_hi:[0,1]")
        e(f"  v_cvt_pk_bf16_f32 v{T}, v{T}, v{T+1}")
        e(f"  v_and_b32 v{T+1}, 0xffff0000, v{T}")
        e(f"  v_lshlrev_b32 v{T}, 16, v{T}")
        e(f"  v_lshlrev_b32 v{T+2}, 16, v{XX+i}")
        e(f"  v_and_b32 v{T+3}, 0xffff0000, v{XX+i}")
        e(f"  v_pk_add_f32 {vr(T,2)}, {vr(T,2)}, {vr(T+2,2)}")
        e(f"  v_cvt_pk_bf16_f32 v{T}, v{T}, v{T+1}")
        e(f"  v_lshlrev_b32 v{HOUT+2*i}, 16, v{T}")
        e(f"  v_and_b32 v{HOUT+2*i+1}, 0xffff0000, v{T}")
        e(f"  v_pk_add_f32 {vr(T,2)}, {vr(HOUT+2*i,2)}, {vr(NEGM,2)}")
        e(f"  v_cvt_pk_bf16_f32 v{T}, v{T}, v{T+1}")
        e(f"  v_and_b32 v{T+1}, 0xffff0000, v{T}")
        e(f"  v_lshlrev_b32 v{T}, 16, v{T}")
        e(f"  v_pk_mul_f32 {vr(T,2)}, {vr(T,2)}, {vr(RINV,2)}")
        e(f"  v_cvt_pk_bf16_f32 v{XNOUT+i}, v{T}, v{T+1}")

XS_STRIDE = 1040
def gen_t2():
    name = "t2_kernel"
    kernel_begin(name)
    LDS_G, LDS_U, LDS_XS, LDS_C = 0, 8192, 16384, 16384 + 8*XS_STRIDE
    e("  s_cmp_ge_u32 s2, 224")
    e("  s_cbranch_scc1 t2_done")
    e(f"  s_load_dwordx2 s[4:5], s[0:1], {KA_X}")
    e(f"  s_load_dwordx2 s[6:7], s[0:1], {KA_WS}")
    e(f"  s_load_dwordx4 s[8:11], s[0:1], {KA_WG}")
    e("  s_and_b32 s3, s2, 7")
    e("  s_mul_i32 s3, s3, 28")
    e("  s_lshr_b32 s12, s2, 3")
    e("  s_add_u32 s3, s3, s12")
    e("  v_mov_b32 v40, v0")
    e("  v_lshrrev_b32 v1, 6, v0")
    e("  v_and_b32 v0, 63, v0")
    e("  v_readfirstlane_b32 s13, v1")
    e("  s_waitcnt lgkmcnt(0)")
    srd(16, 4, 5, 2 << 20)
    srd(20, 6, 7, 9 << 20)
    srd(24, 8, 9, 512*1792*2)
    srd(28, 10, 11, 512*1792*2)
    e("  v_lshlrev_b32 v2, 5, v40")
    e(f"  s_mov_b32 s14, {WS_KEY}")
    e("  buffer_load_dwordx4 v[8:11], v2, s[20:23], s14 offen")
    e("  buffer_load_dwordx4 v[12:15], v2, s[20:23], s14 offen offset:16")
    e("  s_lshl_b32 s15, s3, 4")
    e("  s_movk_i32 s32, 3584")
    for ii in range(2):
        e(f"  s_lshl_b32 s33, s13, 7")
        e(f"  s_add_u32 s33, s33, {64*ii}")
        e(f"  v_add_u32 v3, s33, v0")
        e(f"  v_mul_lo_u32 v3, v3, s32")
        e(f"  s_lshl_b32 s34, s13, 11")
        e(f"  s_add_u32 m0, s34, {LDS_G + 1024*ii}")
        e("  s_nop 0")
        e(f"  buffer_load_dwordx4 v3, s[24:27], s15 offen lds")
        e(f"  s_add_u32 m0, s34, {LDS_U + 1024*ii}")
        e("  s_nop 0")
        e(f"  buffer_load_dwordx4 v3, s[28:31], s15 offen lds")
    stamp(1)
    e("  s_waitcnt vmcnt(4)")
    stamp(2)
    e("  v_mov_b32 v20, 0")
    for rnd in range(8):
        e("  v_max3_u32 v16, v8, v9, v10")
        e("  v_max3_u32 v17, v11, v12, v13")
        e("  v_max3_u32 v16, v16, v14, v15")
        e("  v_max_u32 v16, v16, v17")
        e("  s_nop 1")
        e("  v_max_u32_dpp v16, v16, v16 quad_perm:[1,0,3,2] row_mask:0xf bank_mask:0xf")
        e("  s_nop 1")
        e("  v_max_u32_dpp v16, v16, v16 quad_perm:[2,3,0,1] row_mask:0xf bank_mask:0xf")
        e("  s_nop 1")
        e("  v_max_u32_dpp v16, v16, v16 row_half_mirror row_mask:0xf bank_mask:0xf")
        e("  s_nop 1")
        e("  v_max_u32_dpp v16, v16, v16 row_mirror row_mask:0xf bank_mask:0xf")
        e("  s_nop 1")
        e("  v_readlane_b32 s36, v16, 0")
        e("  v_readlane_b32 s37, v16, 16")
        e("  v_readlane_b32 s38, v16, 32")
        e("  v_readlane_b32 s39, v16, 48")
        e("  s_max_u32 s36, s36, s37")
        e("  s_max_u32 s38, s38, s39")
        e("  s_max_u32 s36, s36, s38")
        e(f"  v_writelane_b32 v20, s36, {rnd}")
        if rnd < 7:
            for k in range(8):
                e(f"  v_cmp_ne_u32 vcc, s36, v{8+k}")
                e("  s_nop 1")
                e(f"  v_cndmask_b32 v{8+k}, 0, v{8+k}, vcc")
    e("  s_lshl_b32 s33, s13, 5")
    e(f"  s_add_u32 s33, s33, {LDS_C}")
    e("  v_lshlrev_b32 v3, 2, v0")
    e("  v_add_u32 v3, s33, v3")
    e("  v_cmp_gt_u32 vcc, 8, v0")
    e("  s_and_saveexec_b64 s[40:41], vcc")
    e("  ds_write_b32 v3, v20")
    e("  s_mov_b64 exec, s[40:41]")
    e("  s_waitcnt lgkmcnt(0)")
    e("  s_barrier")
    e("  v_and_b32 v3, 31, v0")
    e("  v_lshlrev_b32 v3, 2, v3")
    e(f"  ds_read_b32 v21, v3 offset:{LDS_C}")
    e("  v_mov_b32 v22, 0")
    e("  s_waitcnt lgkmcnt(0)")
    for i in range(32):
        e(f"  v_readlane_b32 s36, v21, {i}")
        e("  s_nop 1")
        e("  v_cmp_gt_u32 vcc, s36, v21")
        e("  s_nop 1")
        e("  v_addc_co_u32 v22, vcc, 0, v22, vcc")
    e("  v_cmp_gt_u32 vcc, 8, v22")
    e("  v_cmp_gt_u32 s[42:43], 32, v0")
    e("  s_and_b64 vcc, vcc, s[42:43]")
    e("  v_lshlrev_b32 v3, 2, v22")
    e("  s_and_saveexec_b64 s[40:41], vcc")
    e(f"  ds_write_b32 v3, v21 offset:{LDS_C+128}")
    e("  s_mov_b64 exec, s[40:41]")
    e("  s_waitcnt lgkmcnt(0)")
    e("  s_barrier")
    stamp(3)
    e("  v_lshrrev_b32 v4, 5, v40")
    e("  v_and_b32 v5, 31, v40")
    e("  v_lshlrev_b32 v3, 2, v4")
    e(f"  ds_read_b32 v6, v3 offset:{LDS_C+128}")
    e("  s_waitcnt lgkmcnt(0)")
    e("  s_cmp_lg_u32 s3, 0")
    e("  s_cbranch_scc1 t2_nopub")
    e("  v_cmp_eq_u32 vcc, 0, v5")
    e("  s_and_saveexec_b64 s[40:41], vcc")
    e(f"  s_mov_b32 s14, {WS_IDX}")
    e("  buffer_store_dword v6, v3, s[20:23], s14 offen")
    e("  s_mov_b64 exec, s[40:41]")
    lab("t2_nopub")
    e("  v_and_b32 v6, 0xffff, v6")
    e("  v_sub_u32 v6, 0xffff, v6")
    e("  v_lshlrev_b32 v7, 10, v6")
    e("  v_lshl_add_u32 v7, v5, 4, v7")
    e(f"  s_mov_b32 s14, {WS_Y}")
    e(f"  s_mov_b32 s15, {WS_Y + (2<<20)}")
    YR, YI, XX = 24, 32, 44
    for j in range(2):
        e(f"  buffer_load_dwordx4 {vr(YR+4*j,4)}, v7, s[20:23], s14 offen offset:{512*j}")
        e(f"  buffer_load_dwordx4 {vr(YI+4*j,4)}, v7, s[20:23], s15 offen offset:{512*j}")
        e(f"  buffer_load_dwordx4 {vr(XX+4*j,4)}, v7, s[16:19], 0 offen offset:{512*j}")
    e("  v_lshlrev_b32 v3, 3, v6")
    e(f"  s_mov_b32 s14, {WS_STAT}")
    e("  buffer_load_dwordx2 v[52:53], v3, s[20:23], s14 offen")
    e("  s_waitcnt vmcnt(0)")
    stamp(4)
    e("  v_sub_f32 v54, 0, v52")
    e("  v_mov_b32 v55, v54")
    e("  v_mov_b32 v52, v53")
    recompute(YR, YI, XX, 8, 54, 52, 64, 80, 56)
    e(f"  v_mul_u32_u24 v3, {XS_STRIDE}, v4")
    e("  v_lshl_add_u32 v3, v5, 4, v3")
    e(f"  ds_write_b128 v3, v[80:83] offset:{LDS_XS}")
    e(f"  ds_write_b128 v3, v[84:87] offset:{LDS_XS+512}")
    e("  s_waitcnt lgkmcnt(0)")
    e("  s_barrier")
    e("  s_cmp_lg_u32 s13, 0")
    e("  s_cbranch_scc1 t2_done")
    stamp(5)
    e("  v_and_b32 v3, 7, v0")
    e(f"  v_mul_u32_u24 v3, {XS_STRIDE}, v3")
    e("  v_lshrrev_b32 v4, 4, v0")
    e("  v_lshl_add_u32 v3, v4, 4, v3")
    e("  v_and_b32 v5, 15, v0")
    e("  v_lshrrev_b32 v5, 2, v5")
    e("  v_lshl_add_u32 v5, v4, 3, v5")
    e("  v_lshlrev_b32 v5, 4, v5")
    e("  v_and_b32 v6, 1, v0")
    e("  v_lshl_add_u32 v5, v6, 3, v5")
    e("  v_and_b32 v6, 2, v0")
    e("  v_lshl_add_u32 v5, v6, 12, v5")
    for i in range(4):
        e(f"  v_mov_b32 v{8+i}, 0")
    FA, FB = 64, 128
    for st in range(16):
        e(f"  ds_read_b128 {vr(FA+4*st,4)}, v3 offset:{LDS_XS + 64*st}")
        e(f"  ds_read_b64_tr_b16 {vr(FB+4*st,2)}, v5 offset:{512*st}")
        e(f"  ds_read_b64_tr_b16 {vr(FB+4*st+2,2)}, v5 offset:{512*st+64}")
        if st % 4 == 3:
            e("  s_waitcnt lgkmcnt(0)")
            for s2 in range(st-3, st+1):
                e(f"  v_mfma_f32_16x16x32_bf16 v[8:11], {vr(FA+4*s2,4)}, {vr(FB+4*s2,4)}, v[8:11]")
    e("  s_nop 15")
    for i in range(4):
        e(f"  v_cvt_pk_bf16_f32 v{8+i}, v{8+i}, v{8+i}")
        e(f"  v_lshlrev_b32 v{8+i}, 16, v{8+i}")
    e("  s_nop 1")
    for i in range(4):
        e(f"  v_mov_b32_dpp v{12+i}, v{8+i} row_ror:8 row_mask:0xf bank_mask:0xf")
    for i in range(4):
        e(f"  v_mul_f32 v16, 0xbfb8aa3b, v{8+i}")
        e("  v_exp_f32 v16, v16")
        e("  s_nop 0")
        e("  v_add_f32 v16, 1.0, v16")
        e("  v_rcp_f32 v16, v16")
        e("  s_nop 0")
        e(f"  v_mul_f32 v16, v{8+i}, v16")
        e("  v_cvt_pk_bf16_f32 v16, v16, v16")
        e("  v_lshlrev_b32 v16, 16, v16")
        e(f"  v_mul_f32 v16, v16, v{12+i}")
        e(f"  v_cvt_pk_bf16_f32 v{20+i}, v16, v16")
    stamp(6)
    e("  v_and_b32 v5, 15, v0")
    e("  v_cmp_gt_u32 vcc, 8, v5")
    e("  v_cmp_gt_u32 s[42:43], 32, v0")
    e("  s_and_b64 vcc, vcc, s[42:43]")
    e("  s_and_saveexec_b64 s[40:41], vcc")
    e("  v_lshlrev_b32 v4, 2, v4")
    e("  v_mul_u32_u24 v4, 3584, v4")
    e("  v_lshl_add_u32 v4, v5, 1, v4")
    e("  s_lshl_b32 s15, s3, 4")
    e(f"  s_add_u32 s15, s15, {WS_GU}")
    for i in range(4):
        e(f"  buffer_store_short v{20+i}, v4, s[20:23], s15 offen offset:{3584*i if 3584*i < 4096 else 0}") if False else None
    for i in range(4):
        e(f"  buffer_store_short v{20+i}, v4, s[20:23], s15 offen")
        if i < 3:
            e("  v_add_u32 v4, 3584, v4")
    lab("t2_done")
    kernel_end()
    e("  s_endpgm")
    kernel_desc(name, 192)

def gen_t3():
    name = "t3_kernel"
    kernel_begin(name)
    LDS_W, LDS_R = 0, 28672
    e("  s_cmp_ge_u32 s2, 64")
    e("  s_cbranch_scc1 t3_done")
    e(f"  s_load_dwordx2 s[4:5], s[0:1], {KA_X}")
    e(f"  s_load_dwordx2 s[6:7], s[0:1], {KA_WS}")
    e(f"  s_load_dwordx2 s[10:11], s[0:1], {KA_OUT}")
    e("  s_mov_b32 s3, s2")
    e("  v_lshrrev_b32 v1, 6, v0")
    e("  v_and_b32 v0, 63, v0")
    e("  v_readfirstlane_b32 s13, v1")
    e("  v_lshrrev_b32 v5, 4, v0")
    e("  s_waitcnt lgkmcnt(0)")
    srd(16, 4, 5, 2 << 20)
    srd(20, 6, 7, 12 << 20)
    srd(28, 10, 11, 2 << 20)
    e("  v_and_b32 v6, 1, v5")
    e("  v_lshlrev_b32 v6, 4, v6")
    e(f"  s_mov_b32 s14, {WS_IDX}")
    e("  buffer_load_dwordx4 v[24:27], v6, s[20:23], s14 offen")
    e("  s_lshl_b32 s15, s3, 4")
    e("  v_lshlrev_b32 v3, 4, v0")
    e("  s_mul_i32 s34, s13, 7168")
    e("  s_mul_i32 s33, s3, 28672")
    e("  s_add_u32 s33, s33, s34")
    e(f"  s_add_u32 s33, s33, {WS_WDB}")
    for i in range(7):
        e(f"  s_add_u32 m0, s34, {LDS_W + 1024*i}")
        e("  s_nop 0")
        e(f"  buffer_load_dwordx4 v3, s[20:23], s33 offen lds")
        e("  s_add_u32 s33, s33, 1024")
    e("  v_and_b32 v4, 7, v0")
    e("  v_mul_u32_u24 v4, 3584, v4")
    e("  v_lshl_add_u32 v4, v5, 4, v4")
    e("  s_mul_i32 s14, s13, 896")
    e(f"  s_add_u32 s14, s14, {WS_GU}")
    FA = 64
    for st in range(14):
        e(f"  buffer_load_dwordx4 {vr(FA+4*st,4)}, v4, s[20:23], s14 offen offset:{64*st}")
    for i in range(4):
        e(f"  v_mov_b32 v{28+i}, 0")
    e("  s_cmp_lg_u32 s13, 0")
    e("  s_cbranch_scc1 t3_noepi")
    e("  s_waitcnt vmcnt(21)")
    e("  v_and_b32 v6, 7, v0")
    e(f"  s_mov_b32 s36, {WS_Y}")
    e(f"  s_mov_b32 s37, {WS_Y + (2<<20)}")
    e(f"  s_mov_b32 s38, {WS_STAT}")
    for i in range(4):
        e(f"  v_and_b32 v{28+i}, 0xffff, v{24+i}")
        e(f"  v_sub_u32 v{28+i}, 0xffff, v{28+i}")
        e(f"  v_lshlrev_b32 v{32+i}, 3, v{28+i}")
        e(f"  v_lshlrev_b32 v{28+i}, 10, v{28+i}")
        e(f"  v_lshl_add_u32 v{28+i}, v6, 1, v{28+i}")
        e(f"  v_add_u32 v{28+i}, s15, v{28+i}")
        e(f"  buffer_load_ushort v{36+i}, v{28+i}, s[20:23], s36 offen")
        e(f"  buffer_load_ushort v{40+i}, v{28+i}, s[20:23], s37 offen")
        e(f"  buffer_load_ushort v{44+i}, v{28+i}, s[16:19], 0 offen")
        e(f"  buffer_load_dwordx2 {vr(48+2*i,2)}, v{32+i}, s[20:23], s38 offen")
    lab("t3_noepi")
    e("  v_and_b32 v7, 15, v0")
    e("  v_lshrrev_b32 v7, 2, v7")
    e("  v_lshl_add_u32 v7, v5, 3, v7")
    e("  v_lshlrev_b32 v7, 4, v7")
    e("  v_and_b32 v60, 1, v0")
    e("  v_lshl_add_u32 v7, v60, 3, v7")
    e("  v_add_u32 v7, s34, v7")
    for i in range(4):
        e(f"  v_mov_b32 v{8+i}, 0")
    stamp(1)
    e("  s_waitcnt vmcnt(0)")
    stamp(2)
    FB = 128
    for st in range(14):
        e(f"  ds_read_b64_tr_b16 {vr(FB+4*st,2)}, v7 offset:{512*st}")
        e(f"  ds_read_b64_tr_b16 {vr(FB+4*st+2,2)}, v7 offset:{512*st+64}")
    e("  s_waitcnt lgkmcnt(0)")
    for st in range(14):
        e(f"  v_mfma_f32_16x16x32_bf16 v[8:11], {vr(FA+4*st,4)}, {vr(FB+4*st,4)}, v[8:11]")
    e("  s_nop 15")
    stamp(3)
    e("  v_lshlrev_b32 v3, 4, v0")
    e("  s_lshl_b32 s33, s13, 10")
    e("  v_add_u32 v3, s33, v3")
    e(f"  ds_write_b128 v3, v[8:11] offset:{LDS_R}")
    e("  s_waitcnt lgkmcnt(0)")
    e("  s_barrier")
    e("  s_cmp_lg_u32 s13, 0")
    e("  s_cbranch_scc1 t3_done")
    e("  v_lshlrev_b32 v3, 4, v0")
    for w in range(1, 4):
        e(f"  ds_read_b128 {vr(12+4*(w-1),4)}, v3 offset:{LDS_R+1024*w}")
    stamp(4)
    e("  v_and_b32 v6, 15, v0")
    e("  v_cmp_gt_u32 vcc, 8, v6")
    e("  v_cmp_gt_u32 s[42:43], 32, v0")
    e("  s_and_b64 vcc, vcc, s[42:43]")
    e("  s_and_saveexec_b64 s[40:41], vcc")
    e("  s_waitcnt lgkmcnt(0)")
    for i in range(4):
        e(f"  v_add_f32 v{8+i}, v{8+i}, v{12+i}")
        e(f"  v_add_f32 v{16+i}, v{16+i}, v{20+i}")
        e(f"  v_add_f32 v{8+i}, v{8+i}, v{16+i}")
        e(f"  v_cvt_pk_bf16_f32 v{8+i}, v{8+i}, v{8+i}")
        e(f"  v_lshlrev_b32 v{8+i}, 16, v{8+i}")
        e(f"  v_and_b32 v60, 0xffff0000, v{24+i}")
        e("  v_ashrrev_i32 v61, 31, v60")
        e("  v_not_b32 v61, v61")
        e("  v_or_b32 v61, 0x80000000, v61")
        e("  v_xor_b32 v60, v60, v61")
        e("  v_and_b32 v60, 0xffff0000, v60")
        e("  v_mul_f32 v60, 0xbfb8aa3b, v60")
        e("  v_exp_f32 v60, v60")
        e("  s_nop 0")
        e("  v_add_f32 v60, 1.0, v60")
        e("  v_rcp_f32 v60, v60")
        e("  s_nop 0")
        e("  v_cvt_pk_bf16_f32 v60, v60, v60")
        e("  v_lshlrev_b32 v60, 16, v60")
        e(f"  v_mul_f32 v{8+i}, v{8+i}, v60")
        e(f"  v_cvt_pk_bf16_f32 v{8+i}, v{8+i}, v{8+i}")
        e(f"  v_lshlrev_b32 v{8+i}, 16, v{8+i}")
        e(f"  v_lshlrev_b32 v{36+i}, 16, v{36+i}")
        e(f"  v_lshlrev_b32 v{40+i}, 16, v{40+i}")
        e(f"  v_lshlrev_b32 v{44+i}, 16, v{44+i}")
        e(f"  v_sub_f32 v60, v{36+i}, v{40+i}")
        e("  v_cvt_pk_bf16_f32 v60, v60, v60")
        e("  v_lshlrev_b32 v60, 16, v60")
        e(f"  v_add_f32 v60, v{44+i}, v60")
        e("  v_cvt_pk_bf16_f32 v60, v60, v60")
        e("  v_lshlrev_b32 v60, 16, v60")
        e(f"  v_sub_f32 v61, v60, v{48+2*i}")
        e("  v_cvt_pk_bf16_f32 v61, v61, v61")
        e("  v_lshlrev_b32 v61, 16, v61")
        e(f"  v_mul_f32 v61, v61, v{49+2*i}")
        e("  v_cvt_pk_bf16_f32 v61, v61, v61")
        e("  v_lshlrev_b32 v61, 16, v61")
        e(f"  v_add_f32 v61, v61, v{8+i}")
        e("  v_cvt_pk_bf16_f32 v61, v61, v61")
        e("  v_lshlrev_b32 v61, 16, v61")
        e("  v_add_f32 v61, v60, v61")
        e("  v_cvt_pk_bf16_f32 v61, v61, v61")
        e(f"  buffer_store_short v61, v{28+i}, s[28:31], 0 offen")
    lab("t3_done")
    kernel_end()
    e("  s_endpgm")
    kernel_desc(name, 192)

SORT8 = [(0,1),(2,3),(4,5),(6,7),(0,2),(1,3),(4,6),(5,7),(1,2),(5,6),(0,4),(1,5),(2,6),(3,7),(2,4),(3,5),(1,2),(3,4),(5,6)]
def top8(keys, free, LDS_C, wreg="s13"):
    K = list(keys); F = list(free)
    for (i, j) in SORT8:
        hi, lo = F.pop(), F.pop()
        e(f"  v_max_u32 v{hi}, v{K[i]}, v{K[j]}")
        e(f"  v_min_u32 v{lo}, v{K[i]}, v{K[j]}")
        F.append(K[i]); F.append(K[j]); K[i] = hi; K[j] = lo
    t, coll = F.pop(), F.pop()
    e(f"  v_mov_b32 v{coll}, 0")
    pend = []
    def fill(n):
        for _ in range(n):
            if pend: e(pend.pop(0))
            else: e("  s_nop 0")
    for rnd in range(8):
        fill(2)
        e(f"  v_max_u32_dpp v{t}, v{K[0]}, v{K[0]} quad_perm:[1,0,3,2] row_mask:0xf bank_mask:0xf")
        fill(2)
        e(f"  v_max_u32_dpp v{t}, v{t}, v{t} quad_perm:[2,3,0,1] row_mask:0xf bank_mask:0xf")
        fill(2)
        e(f"  v_max_u32_dpp v{t}, v{t}, v{t} row_half_mirror row_mask:0xf bank_mask:0xf")
        fill(2)
        e(f"  v_max_u32_dpp v{t}, v{t}, v{t} row_mirror row_mask:0xf bank_mask:0xf")
        while pend: e(pend.pop(0))
        e("  s_nop 0")
        e(f"  v_readlane_b32 s36, v{t}, 0")
        e(f"  v_readlane_b32 s37, v{t}, 16")
        e(f"  v_readlane_b32 s38, v{t}, 32")
        e(f"  v_readlane_b32 s39, v{t}, 48")
        e("  s_max_u32 s36, s36, s37")
        e("  s_max_u32 s38, s38, s39")
        e("  s_max_u32 s36, s36, s38")
        e(f"  v_writelane_b32 v{coll}, s36, {rnd}")
        if rnd < 7:
            e(f"  v_cmp_eq_u32 vcc, s36, v{K[0]}")
            e("  s_nop 1")
            e(f"  v_cndmask_b32 v{K[0]}, v{K[0]}, v{K[1]}, vcc")
            for k in range(1, 7 - rnd):
                pend.append(f"  v_cndmask_b32 v{K[k]}, v{K[k]}, v{K[k+1]}, vcc")
    e(f"  s_lshl_b32 s33, {wreg}, 5")
    e(f"  s_add_u32 s33, s33, {LDS_C}")
    e(f"  v_lshlrev_b32 v{t}, 2, v0")
    e(f"  v_add_u32 v{t}, s33, v{t}")
    e("  v_cmp_gt_u32 vcc, 8, v0")
    e("  s_and_saveexec_b64 s[40:41], vcc")
    e(f"  ds_write_b32 v{t}, v{coll}")
    e("  s_mov_b64 exec, s[40:41]")
    e("  s_waitcnt lgkmcnt(0)")
    e("  s_barrier")
    return t, coll

def gen_t4():
    name = "t4_kernel"
    kernel_begin(name)
    LDS_C, LDS_R, LDS_WD = 0, 256, 8704
    LDS_G, LDS_U, LDS_XS = 8704, 8704 + 8192, 8704 + 16384
    SPIN = 1 << 22
    e("  s_cmp_ge_u32 s2, 240")
    e("  s_cbranch_scc1 t4_done")
    e(f"  s_load_dwordx2 s[4:5], s[0:1], {KA_X}")
    e(f"  s_load_dwordx2 s[6:7], s[0:1], {KA_WS}")
    e(f"  s_load_dwordx4 s[8:11], s[0:1], {KA_WG}")
    e(f"  s_load_dwordx2 s[44:45], s[0:1], {KA_OUT}")
    e("  s_and_b32 s3, s2, 7")
    e("  s_mul_i32 s3, s3, 28")
    e("  s_lshr_b32 s12, s2, 3")
    e("  s_add_u32 s3, s3, s12")
    e("  v_mov_b32 v40, v0")
    e("  v_lshrrev_b32 v1, 6, v0")
    e("  v_and_b32 v0, 63, v0")
    e("  v_readfirstlane_b32 s13, v1")
    e("  s_waitcnt lgkmcnt(0)")
    srd(16, 4, 5, 2 << 20)
    srd(20, 6, 7, 12 << 20)
    srd(24, 8, 9, 512*1792*2)
    srd(28, 10, 11, 512*1792*2)
    srd(48, 44, 45, 2 << 20)
    e("  v_lshlrev_b32 v2, 5, v40")
    e(f"  s_mov_b32 s14, {WS_KEY}")
    e("  buffer_load_dwordx4 v[8:11], v2, s[20:23], s14 offen")
    e("  buffer_load_dwordx4 v[12:15], v2, s[20:23], s14 offen offset:16")
    e("  s_cmp_ge_u32 s2, 224")
    e("  s_cbranch_scc1 t4_dma2")
    e("  s_lshl_b32 s15, s3, 4")
    e("  s_movk_i32 s32, 3584")
    for ii in range(2):
        e(f"  s_lshl_b32 s33, s13, 7")
        e(f"  s_add_u32 s33, s33, {64*ii}")
        e(f"  v_add_u32 v3, s33, v0")
        e(f"  v_mul_lo_u32 v3, v3, s32")
        e(f"  s_lshl_b32 s34, s13, 11")
        e(f"  s_add_u32 m0, s34, {LDS_G + 1024*ii}")
        e("  s_nop 0")
        e(f"  buffer_load_dwordx4 v3, s[24:27], s15 offen lds")
        e(f"  s_add_u32 m0, s34, {LDS_U + 1024*ii}")
        e("  s_nop 0")
        e(f"  buffer_load_dwordx4 v3, s[28:31], s15 offen lds")
    e("  s_waitcnt vmcnt(4)")
    e("  s_branch t4_top")
    lab("t4_dma2")
    e("  s_sub_u32 s46, s2, 224")
    e("  v_lshlrev_b32 v3, 4, v0")
    e("  s_mul_i32 s34, s13, 7168")
    e(f"  s_mul_i32 s33, s46, {4*28672}")
    e("  s_add_u32 s33, s33, s34")
    e(f"  s_add_u32 s33, s33, {WS_WDB}")
    for dsl in range(4):
        for i in range(7):
            e(f"  s_add_u32 m0, s34, {LDS_WD + dsl*28672 + 1024*i}")
            e("  s_nop 0")
            e(f"  buffer_load_dwordx4 v3, s[20:23], s33 offen lds")
            e(f"  s_add_u32 s33, s33, {1024 if i < 6 else 28672 - 6*1024}")
    e("  s_waitcnt vmcnt(28)")
    lab("t4_top")
    stamp(1)
    t, coll = top8(range(8, 16), range(16, 24), LDS_C)
    e("  v_and_b32 v3, 31, v0")
    e("  v_lshlrev_b32 v3, 2, v3")
    e(f"  ds_read_b32 v24, v3 offset:{LDS_C}")
    e("  v_mov_b32 v4, 0")
    for q in range(8):
        e(f"  ds_read_b128 {vr(56+4*q,4)}, v4 offset:{LDS_C+16*q}")
    e("  v_mov_b32 v25, 0")
    e("  s_waitcnt lgkmcnt(0)")
    sp = [60, 62, 64, 66]
    for i in range(32 + 3):
        if i < 32:
            e(f"  v_cmp_gt_u32 s[{sp[i%4]}:{sp[i%4]+1}], v{56+i}, v24")
        if i >= 3:
            j = i - 3
            e(f"  v_addc_co_u32 v25, vcc, 0, v25, s[{sp[j%4]}:{sp[j%4]+1}]")
    e("  v_cmp_gt_u32 vcc, 8, v25")
    e("  v_cmp_gt_u32 s[42:43], 32, v0")
    e("  s_and_b64 vcc, vcc, s[42:43]")
    e("  v_lshlrev_b32 v3, 2, v25")
    e("  s_and_saveexec_b64 s[40:41], vcc")
    e(f"  ds_write_b32 v3, v24 offset:{LDS_C+128}")
    e("  s_mov_b64 exec, s[40:41]")
    e("  s_waitcnt lgkmcnt(0)")
    e("  s_barrier")
    stamp(2)
    e("  s_cmp_ge_u32 s2, 224")
    e("  s_cbranch_scc1 t4_f2")
    e("  v_lshrrev_b32 v4, 5, v40")
    e("  v_and_b32 v5, 31, v40")
    e("  v_lshlrev_b32 v3, 2, v4")
    e(f"  ds_read_b32 v6, v3 offset:{LDS_C+128}")
    e("  s_waitcnt lgkmcnt(0)")
    e("  v_and_b32 v6, 0xffff, v6")
    e("  v_sub_u32 v6, 0xffff, v6")
    e("  v_lshlrev_b32 v7, 10, v6")
    e("  v_lshl_add_u32 v7, v5, 4, v7")
    e(f"  s_mov_b32 s14, {WS_Y}")
    e(f"  s_mov_b32 s15, {WS_Y + (2<<20)}")
    YR, YI, XX = 24, 32, 44
    for j in range(2):
        e(f"  buffer_load_dwordx4 {vr(YR+4*j,4)}, v7, s[20:23], s14 offen offset:{512*j}")
        e(f"  buffer_load_dwordx4 {vr(YI+4*j,4)}, v7, s[20:23], s15 offen offset:{512*j}")
        e(f"  buffer_load_dwordx4 {vr(XX+4*j,4)}, v7, s[16:19], 0 offen offset:{512*j}")
    e("  v_lshlrev_b32 v3, 3, v6")
    e(f"  s_mov_b32 s14, {WS_STAT}")
    e("  buffer_load_dwordx2 v[52:53], v3, s[20:23], s14 offen")
    e("  s_waitcnt vmcnt(0)")
    stamp(3)
    e("  v_sub_f32 v54, 0, v52")
    e("  v_mov_b32 v55, v54")
    e("  v_mov_b32 v52, v53")
    recompute(YR, YI, XX, 8, 54, 52, 64, 80, 56)
    e(f"  v_mul_u32_u24 v3, {XS_STRIDE}, v4")
    e("  v_lshl_add_u32 v3, v5, 4, v3")
    e(f"  ds_write_b128 v3, v[80:83] offset:{LDS_XS}")
    e(f"  ds_write_b128 v3, v[84:87] offset:{LDS_XS+512}")
    e("  s_waitcnt lgkmcnt(0)")
    e("  s_barrier")
    e("  s_cmp_lg_u32 s13, 0")
    e("  s_cbranch_scc1 t4_done")
    e("  v_and_b32 v3, 7, v0")
    e(f"  v_mul_u32_u24 v3, {XS_STRIDE}, v3")
    e("  v_lshrrev_b32 v4, 4, v0")
    e("  v_lshl_add_u32 v3, v4, 4, v3")
    e("  v_and_b32 v5, 15, v0")
    e("  v_lshrrev_b32 v5, 2, v5")
    e("  v_lshl_add_u32 v5, v4, 3, v5")
    e("  v_lshlrev_b32 v5, 4, v5")
    e("  v_and_b32 v6, 1, v0")
    e("  v_lshl_add_u32 v5, v6, 3, v5")
    e("  v_and_b32 v6, 2, v0")
    e("  v_lshl_add_u32 v5, v6, 12, v5")
    for i in range(4):
        e(f"  v_mov_b32 v{8+i}, 0")
    FA, FB = 64, 128
    for st in range(16):
        e(f"  ds_read_b128 {vr(FA+4*st,4)}, v3 offset:{LDS_XS + 64*st}")
        e(f"  ds_read_b64_tr_b16 {vr(FB+4*st,2)}, v5 offset:{LDS_G+512*st}")
        e(f"  ds_read_b64_tr_b16 {vr(FB+4*st+2,2)}, v5 offset:{LDS_G+512*st+64}")
        if st % 4 == 3:
            e("  s_waitcnt lgkmcnt(0)")
            for s2 in range(st-3, st+1):
                e(f"  v_mfma_f32_16x16x32_bf16 v[8:11], {vr(FA+4*s2,4)}, {vr(FB+4*s2,4)}, v[8:11]")
    e("  s_nop 15")
    for i in range(4):
        e(f"  v_cvt_pk_bf16_f32 v{8+i}, v{8+i}, v{8+i}")
        e(f"  v_lshlrev_b32 v{8+i}, 16, v{8+i}")
    e("  s_nop 1")
    for i in range(4):
        e(f"  v_mov_b32_dpp v{12+i}, v{8+i} row_ror:8 row_mask:0xf bank_mask:0xf")
    for i in range(4):
        e(f"  v_mul_f32 v16, 0xbfb8aa3b, v{8+i}")
        e("  v_exp_f32 v16, v16")
        e("  s_nop 0")
        e("  v_add_f32 v16, 1.0, v16")
        e("  v_rcp_f32 v16, v16")
        e("  s_nop 0")
        e(f"  v_mul_f32 v16, v{8+i}, v16")
        e("  v_cvt_pk_bf16_f32 v16, v16, v16")
        e("  v_lshlrev_b32 v16, 16, v16")
        e(f"  v_mul_f32 v16, v16, v{12+i}")
        e(f"  v_cvt_pk_bf16_f32 v{20+i}, v16, v16")
    e("  s_nop 1")
    for i in range(4):
        e(f"  v_mov_b32_dpp v{24+i}, v{20+i} quad_perm:[1,0,3,2] row_mask:0xf bank_mask:0xf")
    for i in range(4):
        e(f"  v_and_b32 v{20+i}, 0xffff, v{20+i}")
        e(f"  v_and_b32 v{24+i}, 0xffff0000, v{24+i}")
        e(f"  v_or_b32 v{20+i}, v{20+i}, v{24+i}")
    for i in range(4):
        e(f"  v_min_u32 v{20+i}, 0xfffeffff, v{20+i}")
    stamp(4)
    e("  v_and_b32 v5, 15, v0")
    e("  v_lshlrev_b32 v4, 6, v4")
    e("  v_lshl_add_u32 v4, v5, 1, v4")
    e("  v_lshlrev_b32 v7, 4, v0")
    e("  v_and_b32 v6, 9, v0")
    e("  v_cmp_eq_u32 vcc, 0, v6")
    e("  v_cmp_gt_u32 s[42:43], 32, v0")
    e("  s_and_b64 vcc, vcc, s[42:43]")
    e("  s_and_saveexec_b64 s[40:41], vcc")
    for i in range(4):
        e(f"  ds_write_b32 v4, v{20+i} offset:{LDS_R+16*i}")
    e("  s_mov_b64 exec, 0xff")
    e("  s_waitcnt lgkmcnt(0)")
    e(f"  ds_read_b128 v[24:27], v7 offset:{LDS_R}")
    e("  s_lshl_b32 s15, s3, 7")
    e(f"  s_add_u32 s15, s15, {WS_GU}")
    e("  s_waitcnt lgkmcnt(0)")
    e("  buffer_store_dwordx4 v[24:27], v7, s[20:23], s15 offen sc1")
    e("  s_branch t4_done")
    lab("t4_f2")
    e("  v_lshrrev_b32 v5, 4, v0")
    e("  v_and_b32 v6, 1, v5")
    e("  v_lshlrev_b32 v6, 4, v6")
    e(f"  ds_read_b128 v[24:27], v6 offset:{LDS_C+128}")
    e("  v_and_b32 v6, 15, v0")
    e("  s_lshl_b32 s15, s46, 6")
    e("  s_waitcnt lgkmcnt(0)")
    for i in range(4):
        e(f"  v_and_b32 v{28+i}, 0xffff, v{24+i}")
        e(f"  v_sub_u32 v{28+i}, 0xffff, v{28+i}")
        e(f"  v_lshlrev_b32 v{32+i}, 3, v{28+i}")
        e(f"  v_lshlrev_b32 v{28+i}, 10, v{28+i}")
        e(f"  v_lshl_add_u32 v{28+i}, v6, 1, v{28+i}")
        e(f"  v_add_u32 v{28+i}, s15, v{28+i}")
    e("  s_cmp_lg_u32 s13, 0")
    e("  s_cbranch_scc1 t4_noepi")
    e(f"  s_mov_b32 s36, {WS_Y}")
    e(f"  s_mov_b32 s37, {WS_Y + (2<<20)}")
    e(f"  s_mov_b32 s38, {WS_STAT}")
    for a in range(2):
        for i in range(4):
            e(f"  buffer_load_ushort v{192+12*a+i}, v{28+i}, s[20:23], s36 offen offset:{32*a}")
            e(f"  buffer_load_ushort v{196+12*a+i}, v{28+i}, s[20:23], s37 offen offset:{32*a}")
            e(f"  buffer_load_ushort v{200+12*a+i}, v{28+i}, s[16:19], 0 offen offset:{32*a}")
    for i in range(4):
        e(f"  buffer_load_dwordx2 {vr(48+2*i,2)}, v{32+i}, s[20:23], s38 offen")
    lab("t4_noepi")
    e("  v_lshrrev_b32 v7, 2, v6")
    e("  v_lshl_add_u32 v7, v5, 3, v7")
    e("  v_lshlrev_b32 v7, 4, v7")
    e("  v_and_b32 v60, 1, v0")
    e("  v_lshl_add_u32 v7, v60, 3, v7")
    e("  v_and_b32 v60, 2, v0")
    e("  v_mul_u32_u24 v60, 14336, v60")
    e("  v_add_u32 v7, v60, v7")
    e("  v_add_u32 v7, s34, v7")
    e(f"  v_add_u32 v61, {2*28672}, v7")
    e("  s_waitcnt vmcnt(0)")
    FB0, FB1 = 72, 128
    for st in range(14):
        e(f"  ds_read_b64_tr_b16 {vr(FB0+4*st,2)}, v7 offset:{LDS_WD+512*st}")
        e(f"  ds_read_b64_tr_b16 {vr(FB0+4*st+2,2)}, v7 offset:{LDS_WD+512*st+64}")
        e(f"  ds_read_b64_tr_b16 {vr(FB1+4*st,2)}, v61 offset:{LDS_WD+512*st}")
        e(f"  ds_read_b64_tr_b16 {vr(FB1+4*st+2,2)}, v61 offset:{LDS_WD+512*st+64}")
        if st % 3 == 2: e("  s_waitcnt lgkmcnt(0)")
    for i in range(8):
        e(f"  v_mov_b32 v{8+i}, 0")
    for i in range(4):
        e(f"  v_and_b32 v60, 0xffff0000, v{24+i}")
        e("  v_ashrrev_i32 v62, 31, v60")
        e("  v_not_b32 v62, v62")
        e("  v_or_b32 v62, 0x80000000, v62")
        e("  v_xor_b32 v60, v60, v62")
        e("  v_and_b32 v60, 0xffff0000, v60")
        e("  v_mul_f32 v60, 0xbfb8aa3b, v60")
        e("  v_exp_f32 v60, v60")
        e("  s_nop 0")
        e("  v_add_f32 v60, 1.0, v60")
        e("  v_rcp_f32 v60, v60")
        e("  s_nop 0")
        e("  v_cvt_pk_bf16_f32 v60, v60, v60")
        e(f"  v_lshlrev_b32 v{24+i}, 16, v60")
    for a in range(2):
        for i in range(4):
            r0, r1, r2 = 192+12*a+i, 196+12*a+i, 200+12*a+i
            e(f"  v_lshlrev_b32 v{r0}, 16, v{r0}")
            e(f"  v_lshlrev_b32 v{r1}, 16, v{r1}")
            e(f"  v_lshlrev_b32 v{r2}, 16, v{r2}")
            e(f"  v_sub_f32 v60, v{r0}, v{r1}")
            e("  v_cvt_pk_bf16_f32 v60, v60, v60")
            e("  v_lshlrev_b32 v60, 16, v60")
            e(f"  v_add_f32 v60, v{r2}, v60")
            e("  v_cvt_pk_bf16_f32 v60, v60, v60")
            e(f"  v_lshlrev_b32 v{r0}, 16, v60")
            e(f"  v_sub_f32 v62, v{r0}, v{48+2*i}")
            e("  v_cvt_pk_bf16_f32 v62, v62, v62")
            e("  v_lshlrev_b32 v62, 16, v62")
            e(f"  v_mul_f32 v62, v62, v{49+2*i}")
            e("  v_cvt_pk_bf16_f32 v62, v62, v62")
            e(f"  v_lshlrev_b32 v{r1}, 16, v62")
    stamp(3)
    e("  v_and_b32 v4, 7, v0")
    e("  v_lshlrev_b32 v4, 4, v4")
    e("  v_lshl_add_u32 v4, v5, 7, v4")
    e("  s_mul_i32 s14, s13, 7168")
    e(f"  s_add_u32 s14, s14, {WS_GU}")
    regs = [216+4*i for i in range(9)] + [36, 40, 44, 56, 64]
    e("  v_add_u32 v62, 4096, v4")
    e("  s_mov_b32 s53, 0")
    lab("t4_poll")
    for st in range(14):
        e(f"  buffer_load_dwordx4 {vr(regs[st],4)}, v4, s[20:23], s14 offen offset:{512*st if st < 8 else 0} sc1") if st < 8 else e(f"  buffer_load_dwordx4 {vr(regs[st],4)}, v62, s[20:23], s14 offen offset:{512*(st-8)} sc1")
    e("  v_mov_b32 v3, 0")
    for st in range(14):
        e(f"  s_waitcnt vmcnt({13-st})")
        e(f"  v_max3_u32 v3, v3, v{regs[st]}, v{regs[st]+1}")
        e(f"  v_max3_u32 v3, v3, v{regs[st]+2}, v{regs[st]+3}")
    e("  v_cmp_eq_u32 s[54:55], -1, v3")
    e("  s_nop 3")
    e("  s_cmp_eq_u64 s[54:55], 0")
    e("  s_cbranch_scc1 t4_poll_ok")
    e("  s_add_u32 s53, s53, 1")
    e(f"  s_cmp_gt_u32 s53, {SPIN}")
    e("  s_cbranch_scc1 t4_poll_ok")
    e("  s_branch t4_poll")
    lab("t4_poll_ok")
    stamp(5)
    e("  s_waitcnt lgkmcnt(0)")
    for st in range(14):
        e(f"  v_mfma_f32_16x16x32_bf16 v[8:11], {vr(regs[st],4)}, {vr(FB0+4*st,4)}, v[8:11]")
        e(f"  v_mfma_f32_16x16x32_bf16 v[12:15], {vr(regs[st],4)}, {vr(FB1+4*st,4)}, v[12:15]")
    e("  s_nop 15")
    stamp(6)
    e("  v_lshlrev_b32 v3, 4, v0")
    e("  s_lshl_b32 s33, s13, 11")
    e("  v_add_u32 v3, s33, v3")
    e(f"  ds_write_b128 v3, v[8:11] offset:{LDS_R}")
    e(f"  ds_write_b128 v3, v[12:15] offset:{LDS_R+1024}")
    e("  s_waitcnt lgkmcnt(0)")
    e("  s_barrier")
    e("  s_cmp_lg_u32 s13, 0")
    e("  s_cbranch_scc1 t4_done")
    e("  v_lshlrev_b32 v3, 4, v0")
    for w in range(1, 4):
        for a in range(2):
            e(f"  ds_read_b128 {vr(72+8*(w-1)+4*a,4)}, v3 offset:{LDS_R+2048*w+1024*a}")
    e("  v_cmp_gt_u32 vcc, 32, v0")
    e("  s_and_saveexec_b64 s[40:41], vcc")
    e("  s_waitcnt lgkmcnt(0)")
    for a in range(2):
        for i in range(4):
            y = 8 + 4*a + i
            e(f"  v_add_f32 v{y}, v{y}, v{72+4*a+i}")
            e(f"  v_add_f32 v60, v{80+4*a+i}, v{88+4*a+i}")
            e(f"  v_add_f32 v{y}, v{y}, v60")
            e(f"  v_cvt_pk_bf16_f32 v{y}, v{y}, v{y}")
            e(f"  v_lshlrev_b32 v{y}, 16, v{y}")
            e(f"  v_mul_f32 v{y}, v{y}, v{24+i}")
            e(f"  v_cvt_pk_bf16_f32 v{y}, v{y}, v{y}")
            e(f"  v_lshlrev_b32 v{y}, 16, v{y}")
            e(f"  v_add_f32 v61, v{196+12*a+i}, v{y}")
            e("  v_cvt_pk_bf16_f32 v61, v61, v61")
            e("  v_lshlrev_b32 v61, 16, v61")
            e(f"  v_add_f32 v61, v{192+12*a+i}, v61")
            e("  v_cvt_pk_bf16_f32 v61, v61, v61")
            e(f"  buffer_store_short v61, v{28+i}, s[48:51], 0 offen offset:{32*a}")
    lab("t4_done")
    kernel_end()
    e("  s_endpgm")
    kernel_desc(name, 252)

ROW_O = 48
def rowmac(first, O=148, sc1=False):
    YR, YI, XX, WR, H, T, D = 16, 32, 48, 64, 80, 112, 116
    if sc1: O = ROW_O
    SC = " sc1" if sc1 else ""
    e("  v_lshlrev_b32 v3, 10, v1")
    e("  v_lshl_add_u32 v3, v2, 4, v3")
    e(f"  s_mov_b32 s52, {WS_Y}")
    e(f"  s_mov_b32 s53, {WS_Y + (2<<20)}")
    for j in range(4):
        e(f"  buffer_load_dwordx4 {vr(YR+4*j,4)}, v3, s[24:27], s52 offen offset:{256*j}{SC}")
        e(f"  buffer_load_dwordx4 {vr(YI+4*j,4)}, v3, s[24:27], s53 offen offset:{256*j}{SC}")
        e(f"  buffer_load_dwordx4 {vr(XX+4*j,4)}, v3, s[20:23], 0 offen offset:{256*j}")
    nextra = 0
    if first:
        e("  v_lshlrev_b32 v4, 4, v2")
        for j in range(4):
            e(f"  buffer_load_dwordx4 {vr(WR+4*j,4)}, v4, s[28:31], 0 offen offset:{256*j}")
        nextra = 4
    e("  v_mov_b32 v14, 0")
    e("  v_mov_b32 v15, 0")
    for j in range(4):
        e(f"  s_waitcnt vmcnt({nextra + 3*(3-j)})")
        for q in range(4):
            i = 4*j + q
            e(f"  v_lshlrev_b32 v{T}, 16, v{YR+i}")
            e(f"  v_and_b32 v{T+1}, 0xffff0000, v{YR+i}")
            e(f"  v_lshlrev_b32 v{T+2}, 16, v{YI+i}")
            e(f"  v_and_b32 v{T+3}, 0xffff0000, v{YI+i}")
            e(f"  v_pk_add_f32 {vr(T,2)}, {vr(T,2)}, {vr(T+2,2)} neg_lo:[0,1] neg_hi:[0,1]")
            e(f"  v_cvt_pk_bf16_f32 v{T}, v{T}, v{T+1}")
            e(f"  v_and_b32 v{T+1}, 0xffff0000, v{T}")
            e(f"  v_lshlrev_b32 v{T}, 16, v{T}")
            e(f"  v_lshlrev_b32 v{T+2}, 16, v{XX+i}")
            e(f"  v_and_b32 v{T+3}, 0xffff0000, v{XX+i}")
            e(f"  v_pk_add_f32 {vr(T,2)}, {vr(T,2)}, {vr(T+2,2)}")
            e(f"  v_cvt_pk_bf16_f32 v{YI+i}, v{T}, v{T+1}")
            e(f"  v_lshlrev_b32 v{H+2*i}, 16, v{YI+i}")
            e(f"  v_and_b32 v{H+2*i+1}, 0xffff0000, v{YI+i}")
            e(f"  v_pk_add_f32 v[14:15], v[14:15], {vr(H+2*i,2)}")
    e("  v_add_f32 v5, v14, v15")
    reduce16(5)
    e("  v_mul_f32 v5, 0x3b000000, v5")
    e("  v_cvt_pk_bf16_f32 v6, v5, v5")
    e("  v_lshlrev_b32 v6, 16, v6")
    e("  v_sub_f32 v8, 0, v6")
    e("  v_mov_b32 v9, v8")
    e("  v_mov_b32 v10, 0")
    e("  v_mov_b32 v11, 0")
    for i in range(16):
        e(f"  v_pk_add_f32 {vr(D+2*i,2)}, {vr(H+2*i,2)}, v[8:9]")
        e(f"  v_pk_fma_f32 v[10:11], {vr(D+2*i,2)}, {vr(D+2*i,2)}, v[10:11]")
    e("  v_add_f32 v10, v10, v11")
    reduce16(10)
    e("  v_sub_f32 v11, v5, v6")
    e("  v_mul_f32 v11, v11, v11")
    e("  v_mul_f32 v10, 0x3b000000, v10")
    e("  v_sub_f32 v10, v10, v11")
    e("  v_max_f32 v10, 0, v10")
    e("  v_cvt_pk_bf16_f32 v10, v10, v10")
    e("  v_lshlrev_b32 v10, 16, v10")
    e("  v_add_f32 v10, 0x3727c5ac, v10")
    e("  v_cvt_pk_bf16_f32 v10, v10, v10")
    e("  v_lshlrev_b32 v10, 16, v10")
    e("  v_sqrt_f32 v10, v10")
    e("  s_nop 0")
    e("  v_cvt_pk_bf16_f32 v10, v10, v10")
    e("  v_lshlrev_b32 v10, 16, v10")
    e("  v_rcp_f32 v10, v10")
    e("  s_nop 0")
    e("  v_mov_b32 v11, v10")
    if first:
        e("  v_mov_b32 v12, 0")
        e("  s_waitcnt vmcnt(0)")
    for i in range(16):
        e(f"  v_cvt_pk_bf16_f32 v{T}, v{D+2*i}, v{D+2*i+1}")
        e(f"  v_lshlrev_b32 v{D+2*i}, 16, v{T}")
        e(f"  v_and_b32 v{D+2*i+1}, 0xffff0000, v{T}")
        e(f"  v_pk_mul_f32 {vr(D+2*i,2)}, {vr(D+2*i,2)}, v[10:11]")
        e(f"  v_cvt_pk_bf16_f32 v{YR+i}, v{D+2*i}, v{D+2*i+1}")
        if first:
            e(f"  v_dot2_f32_bf16 v12, v{YR+i}, v{WR+i}, v12")
            e(f"  v_lshlrev_b32 v{D+2*i}, 16, v{YR+i}")
            e(f"  v_and_b32 v{D+2*i+1}, 0xffff0000, v{YR+i}")
            e(f"  v_pk_add_f32 {vr(D+2*i,2)}, {vr(D+2*i,2)}, {vr(H+2*i,2)}")
            e(f"  v_cvt_pk_bf16_f32 v{O+i}, v{D+2*i}, v{D+2*i+1}")
    if first:
        e("  s_nop 3")
        reduce16(12)
        e("  v_cvt_pk_bf16_f32 v12, v12, v12")
        e("  v_lshlrev_b32 v12, 16, v12")
        e("  v_ashrrev_i32 v13, 31, v12")
        e("  v_or_b32 v13, 0x80000000, v13")
        e("  v_xor_b32 v12, v12, v13")
        e("  v_and_b32 v12, 0xffff0000, v12")
        e("  v_sub_u32 v13, 0xffff, v1")
        e("  v_or_b32 v12, v12, v13")

def gen_tf():
    name = "tf_kernel"
    kernel_begin(name)
    LDS_G, LDS_U, LDS_WD = 0, 8192, 16384
    LDS_XS = 45056
    LDS_HS = LDS_XS + 8 * XS_STRIDE
    LDS_C = LDS_HS + 8192
    LDS_R = LDS_C + 256
    SPIN = 1 << 22
    e("  s_cmp_ge_u32 s2, 256")
    e("  s_cbranch_scc1 tf_done")
    e(f"  s_load_dwordx2 s[4:5], s[0:1], {KA_X}")
    e(f"  s_load_dwordx2 s[6:7], s[0:1], {KA_WS}")
    e(f"  s_load_dwordx8 s[8:15], s[0:1], {KA_WR}")
    e(f"  s_load_dwordx2 s[16:17], s[0:1], {KA_OUT}")
    e("  s_and_b32 s3, s2, 7")
    e("  s_mul_i32 s49, s3, 28")
    e("  s_lshr_b32 s50, s2, 3")
    e("  s_add_u32 s49, s49, s50")
    e("  s_sub_u32 s50, s50, 24")
    e("  s_lshl_b32 s51, s3, 3")
    e("  s_add_u32 s50, s50, s51")
    e("  v_mov_b32 v180, v0")
    e("  v_lshrrev_b32 v1, 6, v0")
    e("  v_and_b32 v0, 63, v0")
    e("  v_readfirstlane_b32 s48, v1")
    e("  s_waitcnt lgkmcnt(0)")
    srd(20, 4, 5, 2 << 20)
    srd(24, 6, 7, 9 << 20)
    srd(28, 8, 9, 1024)
    srd(32, 10, 11, 512*1792*2)
    srd(36, 12, 13, 512*1792*2)
    srd(40, 14, 15, 1792*512*2)
    srd(44, 16, 17, 2 << 20)
    e("  s_cmp_lt_u32 s48, 2")
    e("  s_cbranch_scc1 tf_p1")
    e("  s_cmp_ge_u32 s2, 224")
    e("  s_cbranch_scc1 tf_nof1")
    e("  s_movk_i32 s52, 3584")
    e("  v_mul_lo_u32 v3, v0, s52")
    e("  s_lshl_b32 s53, s49, 4")
    e("  s_cmp_eq_u32 s48, 2")
    e("  s_cbranch_scc0 tf_dma_u")
    for i in range(8):
        e(f"  s_mov_b32 m0, {LDS_G + 1024*i}")
        e("  s_nop 0")
        e("  buffer_load_dwordx4 v3, s[32:35], s53 offen lds")
        e(f"  s_add_u32 s53, s53, {64*3584}")
    e("  s_branch tf_nof1")
    lab("tf_dma_u")
    for i in range(8):
        e(f"  s_mov_b32 m0, {LDS_U + 1024*i}")
        e("  s_nop 0")
        e("  buffer_load_dwordx4 v3, s[36:39], s53 offen lds")
        e(f"  s_add_u32 s53, s53, {64*3584}")
    lab("tf_nof1")
    e("  s_cmp_lt_u32 s2, 192")
    e("  s_cbranch_scc1 tf_poll1")
    e("  v_lshlrev_b32 v3, 10, v0")
    e("  s_sub_u32 s52, s48, 2")
    e(f"  s_mul_i32 s53, s52, {896*1024}")
    e("  s_lshl_b32 s54, s50, 4")
    e("  s_add_u32 s53, s53, s54")
    e(f"  s_mul_i32 s54, s52, {896*16}")
    for i in range(14):
        e(f"  s_add_u32 m0, s54, {LDS_WD + 1024*i}")
        e("  s_nop 0")
        e("  buffer_load_dwordx4 v3, s[40:43], s53 offen lds")
        e("  s_add_u32 s53, s53, 0x10000")
    e("  s_branch tf_poll1")
    lab("tf_p1")
    e("  v_lshrrev_b32 v1, 4, v180")
    e("  v_and_b32 v2, 15, v0")
    e("  s_lshl_b32 s52, s2, 3")
    e("  v_add_u32 v1, s52, v1")
    e("  v_mov_b32 v181, v1")
    rowmac(True)
    e("  v_cmp_eq_u32 vcc, 0, v2")
    e("  s_and_saveexec_b64 s[56:57], vcc")
    e("  v_lshlrev_b32 v13, 2, v1")
    e(f"  s_mov_b32 s52, {WS_KEY}")
    e("  buffer_store_dword v12, v13, s[24:27], s52 offen sc1")
    e("  s_mov_b64 exec, s[56:57]")
    stamp(1)
    lab("tf_poll1")
    K = 164
    e("  v_lshlrev_b32 v172, 5, v180")
    e(f"  s_mov_b32 s52, {WS_KEY}")
    e("  s_mov_b32 s60, 0")
    lab("tf_poll1_loop")
    e(f"  buffer_load_dwordx4 {vr(K,4)}, v172, s[24:27], s52 offen sc1")
    e(f"  buffer_load_dwordx4 {vr(K+4,4)}, v172, s[24:27], s52 offen offset:16 sc1")
    e("  s_waitcnt vmcnt(0)")
    e(f"  v_min3_u32 v173, v{K}, v{K+1}, v{K+2}")
    e(f"  v_min3_u32 v174, v{K+3}, v{K+4}, v{K+5}")
    e(f"  v_min3_u32 v173, v173, v{K+6}, v{K+7}")
    e("  v_min_u32 v173, v173, v174")
    e("  v_cmp_eq_u32 s[62:63], 0, v173")
    e("  s_nop 3")
    e("  s_cmp_eq_u64 s[62:63], 0")
    e("  s_cbranch_scc1 tf_poll1_ok")
    e("  s_add_u32 s60, s60, 1")
    e(f"  s_cmp_gt_u32 s60, {SPIN}")
    e("  s_cbranch_scc1 tf_poll1_ok")
    e("  s_sleep 1")
    e("  s_branch tf_poll1_loop")
    lab("tf_poll1_ok")
    stamp(2)
    e("  v_mov_b32 v176, 0")
    for rnd in range(8):
        e(f"  v_max3_u32 v173, v{K}, v{K+1}, v{K+2}")
        e(f"  v_max3_u32 v174, v{K+3}, v{K+4}, v{K+5}")
        e(f"  v_max3_u32 v173, v173, v{K+6}, v{K+7}")
        e("  v_max_u32 v173, v173, v174")
        e("  s_nop 1")
        e("  v_max_u32_dpp v173, v173, v173 quad_perm:[1,0,3,2] row_mask:0xf bank_mask:0xf")
        e("  s_nop 1")
        e("  v_max_u32_dpp v173, v173, v173 quad_perm:[2,3,0,1] row_mask:0xf bank_mask:0xf")
        e("  s_nop 1")
        e("  v_max_u32_dpp v173, v173, v173 row_half_mirror row_mask:0xf bank_mask:0xf")
        e("  s_nop 1")
        e("  v_max_u32_dpp v173, v173, v173 row_mirror row_mask:0xf bank_mask:0xf")
        e("  s_nop 1")
        e("  v_readlane_b32 s64, v173, 0")
        e("  v_readlane_b32 s65, v173, 16")
        e("  v_readlane_b32 s66, v173, 32")
        e("  v_readlane_b32 s67, v173, 48")
        e("  s_max_u32 s64, s64, s65")
        e("  s_max_u32 s66, s66, s67")
        e("  s_max_u32 s64, s64, s66")
        e(f"  v_writelane_b32 v176, s64, {rnd}")
        if rnd < 7:
            for k in range(8):
                e(f"  v_cmp_ne_u32 vcc, s64, v{K+k}")
                e("  s_nop 1")
                e(f"  v_cndmask_b32 v{K+k}, 0, v{K+k}, vcc")
    e("  s_lshl_b32 s52, s48, 5")
    e(f"  s_add_u32 s52, s52, {LDS_C}")
    e("  v_lshlrev_b32 v172, 2, v0")
    e("  v_add_u32 v172, s52, v172")
    e("  v_cmp_gt_u32 vcc, 8, v0")
    e("  s_and_saveexec_b64 s[56:57], vcc")
    e("  ds_write_b32 v172, v176")
    e("  s_mov_b64 exec, s[56:57]")
    e("  s_waitcnt lgkmcnt(0)")
    e("  s_barrier")
    e("  v_and_b32 v172, 31, v0")
    e("  v_lshlrev_b32 v172, 2, v172")
    e(f"  ds_read_b32 v177, v172 offset:{LDS_C}")
    e("  v_mov_b32 v178, 0")
    e("  s_waitcnt lgkmcnt(0)")
    for i in range(32):
        e(f"  v_readlane_b32 s64, v177, {i}")
        e("  s_nop 1")
        e("  v_cmp_gt_u32 vcc, s64, v177")
        e("  s_nop 1")
        e("  v_addc_co_u32 v178, vcc, 0, v178, vcc")
    e("  v_cmp_gt_u32 vcc, 8, v178")
    e("  v_cmp_gt_u32 s[58:59], 32, v0")
    e("  s_and_b64 vcc, vcc, s[58:59]")
    e("  v_lshlrev_b32 v172, 2, v178")
    e("  s_and_saveexec_b64 s[56:57], vcc")
    e(f"  ds_write_b32 v172, v177 offset:{LDS_C+128}")
    e("  s_mov_b64 exec, s[56:57]")
    e("  s_waitcnt lgkmcnt(0)")
    e("  s_barrier")
    stamp(3)
    e("  s_cmp_lt_u32 s48, 2")
    e("  s_cbranch_scc1 tf_p2")
    e("  s_waitcnt vmcnt(0)")
    e("  s_branch tf_p2_end")
    lab("tf_p2")
    e("  v_mov_b32 v172, 0")
    e(f"  ds_read_b128 {vr(K,4)}, v172 offset:{LDS_C+128}")
    e(f"  ds_read_b128 {vr(K+4,4)}, v172 offset:{LDS_C+144}")
    e("  v_lshrrev_b32 v173, 4, v180")
    e("  v_lshlrev_b32 v173, 2, v173")
    e(f"  ds_read_b32 v174, v173 offset:{LDS_C+128}")
    e("  v_sub_u32 v175, 0xffff, v181")
    e("  s_waitcnt lgkmcnt(0)")
    e("  s_mov_b64 s[58:59], exec")
    for k in range(8):
        e(f"  v_and_b32 v{K+k}, 0xffff, v{K+k}")
        e(f"  v_cmp_ne_u32 vcc, v{K+k}, v175")
        e("  s_and_b64 s[58:59], s[58:59], vcc")
    e("  v_lshlrev_b32 v3, 10, v181")
    e("  v_lshl_add_u32 v3, v2, 4, v3")
    e("  s_and_saveexec_b64 s[56:57], s[58:59]")
    e("  s_cbranch_execz tf_nostore")
    for j in range(4):
        e(f"  buffer_store_dwordx4 {vr(148+4*j,4)}, v3, s[44:47], 0 offen offset:{256*j}")
    lab("tf_nostore")
    e("  s_mov_b64 exec, s[56:57]")
    e("  v_and_b32 v1, 0xffff, v174")
    e("  v_sub_u32 v1, 0xffff, v1")
    rowmac(False)
    e("  v_lshrrev_b32 v173, 4, v180")
    e(f"  v_mul_u32_u24 v4, {XS_STRIDE}, v173")
    e("  v_lshl_add_u32 v4, v2, 4, v4")
    e("  v_lshlrev_b32 v5, 10, v173")
    e("  v_lshl_add_u32 v5, v2, 4, v5")
    for j in range(4):
        e(f"  ds_write_b128 v4, {vr(16+4*j,4)} offset:{LDS_XS+256*j}")
        e(f"  ds_write_b128 v5, {vr(32+4*j,4)} offset:{LDS_HS+256*j}")
    e("  s_waitcnt lgkmcnt(0)")
    lab("tf_p2_end")
    e("  s_barrier")
    stamp(4)
    e("  s_cmp_lg_u32 s48, 0")
    e("  s_cbranch_scc1 tf_f2")
    e("  s_cmp_ge_u32 s2, 224")
    e("  s_cbranch_scc1 tf_f2")
    e("  v_and_b32 v3, 7, v0")
    e(f"  v_mul_u32_u24 v3, {XS_STRIDE}, v3")
    e("  v_lshrrev_b32 v4, 4, v0")
    e("  v_lshl_add_u32 v3, v4, 4, v3")
    e("  v_and_b32 v5, 15, v0")
    e("  v_lshrrev_b32 v5, 2, v5")
    e("  v_lshl_add_u32 v5, v4, 3, v5")
    e("  v_lshlrev_b32 v5, 4, v5")
    e("  v_and_b32 v6, 1, v0")
    e("  v_lshl_add_u32 v5, v6, 3, v5")
    e("  v_and_b32 v6, 2, v0")
    e("  v_lshl_add_u32 v5, v6, 12, v5")
    for i in range(4):
        e(f"  v_mov_b32 v{8+i}, 0")
    FA, FB = 16, 80
    for st in range(16):
        e(f"  ds_read_b128 {vr(FA+4*st,4)}, v3 offset:{LDS_XS + 64*st}")
        e(f"  ds_read_b64_tr_b16 {vr(FB+4*st,2)}, v5 offset:{512*st}")
        e(f"  ds_read_b64_tr_b16 {vr(FB+4*st+2,2)}, v5 offset:{512*st+64}")
        if st % 4 == 3:
            e("  s_waitcnt lgkmcnt(0)")
            for s2 in range(st-3, st+1):
                e(f"  v_mfma_f32_16x16x32_bf16 v[8:11], {vr(FA+4*s2,4)}, {vr(FB+4*s2,4)}, v[8:11]")
    e("  s_nop 15")
    for i in range(4):
        e(f"  v_cvt_pk_bf16_f32 v{8+i}, v{8+i}, v{8+i}")
        e(f"  v_lshlrev_b32 v{8+i}, 16, v{8+i}")
    e("  s_nop 1")
    for i in range(4):
        e(f"  v_mov_b32_dpp v{12+i}, v{8+i} row_ror:8 row_mask:0xf bank_mask:0xf")
    for i in range(4):
        e(f"  v_mul_f32 v16, 0xbfb8aa3b, v{8+i}")
        e("  v_exp_f32 v16, v16")
        e("  s_nop 0")
        e("  v_add_f32 v16, 1.0, v16")
        e("  v_rcp_f32 v16, v16")
        e("  s_nop 0")
        e(f"  v_mul_f32 v16, v{8+i}, v16")
        e("  v_cvt_pk_bf16_f32 v16, v16, v16")
        e("  v_lshlrev_b32 v16, 16, v16")
        e(f"  v_mul_f32 v16, v16, v{12+i}")
        e(f"  v_cvt_pk_bf16_f32 v{20+i}, v16, v16")
    e("  s_nop 1")
    for i in range(4):
        e(f"  v_mov_b32_dpp v{24+i}, v{20+i} quad_perm:[1,0,3,2] row_mask:0xf bank_mask:0xf")
    for i in range(4):
        e(f"  v_and_b32 v{20+i}, 0xffff, v{20+i}")
        e(f"  v_and_b32 v{24+i}, 0xffff0000, v{24+i}")
        e(f"  v_or_b32 v{20+i}, v{20+i}, v{24+i}")
    e("  v_and_b32 v5, 15, v0")
    e("  v_and_b32 v6, 9, v0")
    e("  v_cmp_eq_u32 vcc, 0, v6")
    e("  v_cmp_gt_u32 s[58:59], 32, v0")
    e("  s_and_b64 vcc, vcc, s[58:59]")
    e("  s_and_saveexec_b64 s[56:57], vcc")
    e("  v_lshlrev_b32 v4, 2, v4")
    e("  v_mul_u32_u24 v4, 3584, v4")
    e("  v_lshl_add_u32 v4, v5, 1, v4")
    e("  s_lshl_b32 s52, s49, 4")
    e(f"  s_add_u32 s52, s52, {WS_GU}")
    for i in range(4):
        e(f"  buffer_store_dword v{20+i}, v4, s[24:27], s52 offen sc1")
        if i < 3:
            e("  v_add_u32 v4, 3584, v4")
    e("  s_waitcnt vmcnt(0)")
    e("  s_mov_b64 exec, 1")
    e("  v_mov_b32 v4, 1")
    e("  v_mov_b32 v5, 0")
    e("  s_lshl_b32 s52, s49, 2")
    e(f"  s_add_u32 s52, s52, {WS_FLAG}")
    e("  buffer_store_dword v4, v5, s[24:27], s52 offen sc1")
    e("  s_mov_b64 exec, s[56:57]")
    stamp(5)
    lab("tf_f2")
    e("  s_cmp_lt_u32 s2, 192")
    e("  s_cbranch_scc1 tf_done")
    e("  v_min_u32 v3, 55, v0")
    e("  v_lshlrev_b32 v3, 2, v3")
    e("  s_mul_i32 s52, s48, 224")
    e(f"  s_add_u32 s52, s52, {WS_FLAG}")
    e("  s_mov_b32 s60, 0")
    lab("tf_poll2_loop")
    e("  buffer_load_dword v4, v3, s[24:27], s52 offen sc1")
    e("  s_waitcnt vmcnt(0)")
    e("  v_cmp_eq_u32 s[62:63], 0, v4")
    e("  s_nop 3")
    e("  s_cmp_eq_u64 s[62:63], 0")
    e("  s_cbranch_scc1 tf_poll2_ok")
    e("  s_add_u32 s60, s60, 1")
    e(f"  s_cmp_gt_u32 s60, {SPIN}")
    e("  s_cbranch_scc1 tf_poll2_ok")
    e("  s_sleep 1")
    e("  s_branch tf_poll2_loop")
    lab("tf_poll2_ok")
    stamp(6)
    e("  v_and_b32 v4, 7, v0")
    e("  v_mul_u32_u24 v4, 3584, v4")
    e("  v_lshrrev_b32 v5, 4, v0")
    e("  v_lshl_add_u32 v4, v5, 4, v4")
    e("  s_mul_i32 s52, s48, 896")
    e(f"  s_add_u32 s52, s52, {WS_GU}")
    FA, FB = 16, 72
    for st in range(14):
        e(f"  buffer_load_dwordx4 {vr(FA+4*st,4)}, v4, s[24:27], s52 offen offset:{64*st} sc1")
    e("  v_and_b32 v7, 15, v0")
    e("  v_lshrrev_b32 v7, 2, v7")
    e("  v_lshl_add_u32 v7, v5, 3, v7")
    e("  v_lshlrev_b32 v7, 4, v7")
    e("  v_and_b32 v6, 1, v0")
    e("  v_lshl_add_u32 v7, v6, 3, v7")
    e("  s_mul_i32 s54, s48, 7168")
    e(f"  s_add_u32 s54, s54, {LDS_WD}")
    e("  v_add_u32 v7, s54, v7")
    for st in range(14):
        e(f"  ds_read_b64_tr_b16 {vr(FB+4*st,2)}, v7 offset:{512*st}")
        e(f"  ds_read_b64_tr_b16 {vr(FB+4*st+2,2)}, v7 offset:{512*st+64}")
    for i in range(4):
        e(f"  v_mov_b32 v{8+i}, 0")
    e("  s_waitcnt vmcnt(0) lgkmcnt(0)")
    for st in range(14):
        e(f"  v_mfma_f32_16x16x32_bf16 v[8:11], {vr(FA+4*st,4)}, {vr(FB+4*st,4)}, v[8:11]")
    e("  s_nop 15")
    e("  v_lshlrev_b32 v3, 4, v0")
    e("  s_lshl_b32 s52, s48, 10")
    e("  v_add_u32 v3, s52, v3")
    e(f"  ds_write_b128 v3, v[8:11] offset:{LDS_R}")
    e("  s_waitcnt lgkmcnt(0)")
    e("  s_barrier")
    e("  s_cmp_lg_u32 s48, 0")
    e("  s_cbranch_scc1 tf_done")
    e("  v_lshlrev_b32 v3, 4, v0")
    for w in range(1, 4):
        e(f"  ds_read_b128 {vr(12+4*(w-1),4)}, v3 offset:{LDS_R+1024*w}")
    e("  v_and_b32 v6, 1, v5")
    e("  v_lshlrev_b32 v6, 4, v6")
    e(f"  ds_read_b128 v[24:27], v6 offset:{LDS_C+128}")
    e("  v_and_b32 v6, 7, v0")
    e("  s_lshl_b32 s52, s50, 4")
    e("  v_lshl_add_u32 v6, v6, 1, s52")
    e("  v_and_b32 v7, 1, v5")
    e("  v_lshlrev_b32 v7, 2, v7")
    for i in range(4):
        e(f"  v_add_u32 v28, {i}, v7")
        e(f"  v_mul_u32_u24 v29, {XS_STRIDE}, v28")
        e("  v_add_u32 v29, v29, v6")
        e(f"  ds_read_u16 v{36+i}, v29 offset:{LDS_XS}")
        e("  v_lshl_add_u32 v29, v28, 10, v6")
        e(f"  ds_read_u16 v{40+i}, v29 offset:{LDS_HS}")
    e("  v_and_b32 v30, 15, v0")
    e("  v_cmp_gt_u32 vcc, 8, v30")
    e("  v_cmp_gt_u32 s[58:59], 32, v0")
    e("  s_and_b64 vcc, vcc, s[58:59]")
    e("  s_waitcnt lgkmcnt(0)")
    e("  s_and_saveexec_b64 s[56:57], vcc")
    for i in range(4):
        e(f"  v_add_f32 v{8+i}, v{8+i}, v{12+i}")
        e(f"  v_add_f32 v{16+i}, v{16+i}, v{20+i}")
        e(f"  v_add_f32 v{8+i}, v{8+i}, v{16+i}")
        e(f"  v_cvt_pk_bf16_f32 v{8+i}, v{8+i}, v{8+i}")
        e(f"  v_lshlrev_b32 v{8+i}, 16, v{8+i}")
        e(f"  v_and_b32 v60, 0xffff0000, v{24+i}")
        e("  v_ashrrev_i32 v61, 31, v60")
        e("  v_not_b32 v61, v61")
        e("  v_or_b32 v61, 0x80000000, v61")
        e("  v_xor_b32 v60, v60, v61")
        e("  v_and_b32 v60, 0xffff0000, v60")
        e("  v_mul_f32 v60, 0xbfb8aa3b, v60")
        e("  v_exp_f32 v60, v60")
        e("  s_nop 0")
        e("  v_add_f32 v60, 1.0, v60")
        e("  v_rcp_f32 v60, v60")
        e("  s_nop 0")
        e("  v_cvt_pk_bf16_f32 v60, v60, v60")
        e("  v_lshlrev_b32 v60, 16, v60")
        e(f"  v_mul_f32 v{8+i}, v{8+i}, v60")
        e(f"  v_cvt_pk_bf16_f32 v{8+i}, v{8+i}, v{8+i}")
        e(f"  v_lshlrev_b32 v{8+i}, 16, v{8+i}")
        e(f"  v_lshlrev_b32 v{36+i}, 16, v{36+i}")
        e(f"  v_lshlrev_b32 v{40+i}, 16, v{40+i}")
        e(f"  v_add_f32 v61, v{36+i}, v{8+i}")
        e("  v_cvt_pk_bf16_f32 v61, v61, v61")
        e("  v_lshlrev_b32 v61, 16, v61")
        e(f"  v_add_f32 v61, v{40+i}, v61")
        e("  v_cvt_pk_bf16_f32 v61, v61, v61")
        e(f"  v_and_b32 v62, 0xffff, v{24+i}")
        e("  v_sub_u32 v62, 0xffff, v62")
        e("  v_lshl_add_u32 v62, v62, 10, v6")
        e("  buffer_store_short v61, v62, s[44:47], 0 offen")
    lab("tf_done")
    kernel_end()
    e("  s_endpgm")
    kernel_desc(name, 184)

def main():
    hdr = open("cdna_kernels/" + NAME + ".s.ref").read().splitlines()
    out = []
    for ln in hdr:
        if ln.startswith("; @launch"):
            if FUSE:
                out.append("; @launch kernel=f_kernel grid=(256,1,1) block=(576,1,1) lds=%d" % (K2_NS*24576 + 256))
            else:
                out.append("; @launch kernel=k1_kernel grid=(256,1,1) block=(%d,1,1) lds=131072" % (576 if OPT('K1_PF', 0) else 512))
                out.append("; @launch kernel=k2_kernel grid=(256,1,1) block=(%d,1,1) lds=%d" % (576, K2_NS*24576))
            if OPT('TF'):
                out.append("; @launch kernel=tf_kernel grid=(256,1,1) block=(256,1,1) lds=66048")
            else:
                if not OPT('K2T1', 1):
                    out.append("; @launch kernel=t1_kernel grid=(256,1,1) block=(%d,1,1) lds=0" % (192 if OPT('T1_PF', 1) else 128))
                if MEGA:
                    pass
                elif OPT('T4', 1):
                    out.append("; @launch kernel=t4_kernel grid=(240,1,1) block=(256,1,1) lds=123392")
                else:
                    out.append("; @launch kernel=t2_kernel grid=(224,1,1) block=(256,1,1) lds=25600")
                    out.append("; @launch kernel=t3_kernel grid=(64,1,1) block=(256,1,1) lds=32768")
            break
        out.append(ln)
    out.append('.amdgcn_target "amdgcn-amd-amdhsa--gfx950"')
    out.append(".text")
    gen_k1(); gen_k2()
    if OPT('TF'): gen_tf()
    elif OPT('T4', 1):
        if not OPT('K2T1', 1): gen_t1()
        if not MEGA: gen_t4()
    else: gen_t1(); gen_t2(); gen_t3()
    out += L
    out.append('.section .rodata,"a"')
    out += KD
    dst = sys.argv[1] if len(sys.argv) > 1 else "cdna_kernels/" + NAME + ".s"
    open(dst, "w").write("\n".join(out) + "\n")

main()
```

```python
import sys, os
OPT = lambda k, d=0: int(os.environ.get(k, d))

NAME = "sequential_preLN__spectral_fnet__moe_arch_mod__prompt"
L = []
def e(s=""):
    L.append(s)
def lab(s):
    L.append(s + ":")

KA_X, KA_WSRE, KA_WSIM, KA_WDRE, KA_WDIM = 0, 8, 16, 24, 32
KA_WR, KA_WG, KA_WU, KA_WDN, KA_OUT, KA_DBG, KA_WS = 48, 56, 64, 72, 80, 88, 96
WS_YB = 0
WS_Y = 4 << 20
WS_KEY = 8 << 20
WS_STAT = (8 << 20) + 8192
WS_GU = (8 << 20) + 65536
WS_IDX = (8 << 20) + 131072
WS_FLAG = (8 << 20) + 196608
WS_FA = WS_FLAG + 4096
WS_REC = (9 << 20)
WS_SEL = (9 << 20) + 65536
WS_WDB = 10 << 20
WS_SIZE = 268435456

KIDX = [0]
NV = {"k1_kernel": 160, "k2_kernel": 160, "t1_kernel": 148, "t2_kernel": 192, "t3_kernel": 192, "tf_kernel": 184, "t4_kernel": 252, "f_kernel": 164}
FUSE = OPT("FUSE", 1)
K2_NS = OPT("K2_NS", 6)
MEGA = OPT("MEGA", 0) and FUSE
CUR = [0]
def kernel_begin(name):
    CUR[0] = NV[name]
    e(f".globl {name}")
    e(".p2align 8")
    e(f".type {name},@function")
    lab(name)
    if OPT('DIAG'):
        e("  s_memrealtime s[72:73]")
        for i in range(1, 7):
            e(f"  s_mov_b64 s[{72+2*i}:{73+2*i}], 0")
        e(f"  s_load_dwordx2 s[94:95], s[0:1], {KA_WS}")
        e(f"  v_mov_b32 v{CUR[0]}, v0")

HS = [0]
def hstamp(k, wg=0):
    if not OPT('HSTAMP'): return
    if OPT('HSTAMP') == 2 and k in (7, 8, 9, 10) and wg in (0, 224) and not hasattr(hstamp, "x"):
        if k != 7: return
        k = 15
    HS[0] += 1
    e(f"  s_cmp_lg_u32 s2, {wg}")
    e(f"  s_cbranch_scc1 hs_{HS[0]}")
    e("  s_cmp_lg_u32 s15, 0")
    e(f"  s_cbranch_scc1 hs_{HS[0]}")
    e("  s_memrealtime s[72:73]")
    e("  s_waitcnt lgkmcnt(0)")
    e("  v_mov_b32 v162, s72")
    e(f"  v_mov_b32 v163, {4*k}")
    e("  s_mov_b64 s[74:75], exec")
    e("  s_mov_b64 exec, 1")
    e("  buffer_store_dword v162, v163, s[96:99], 0 offen")
    e("  s_mov_b64 exec, s[74:75]")
    lab(f"hs_{HS[0]}")

def stamp(i):
    if OPT('DIAG'):
        e(f"  s_memrealtime s[{72+2*i}:{73+2*i}]")
    if OPT('HSTAMP') == 1 and CUR[0] == 164: hstamp(i)
    if OPT('HSTAMP') == 2 and CUR[0] == 164 and i == 6:
        for w in range(8): hstamp(1 + w, w)
    if OPT('HSTAMP') == 2 and CUR[0] == 164 and i == 2:
        for w in range(0, 8, 2): hstamp(11 + w // 2, w + 1)

def kernel_end():
    if OPT('DIAG'):
        e("  s_waitcnt vmcnt(0) lgkmcnt(0)")
        e("  s_memrealtime s[86:87]")
        e("  s_mov_b32 s88, s94")
        e("  s_mov_b32 s89, s95")
        e("  s_mov_b32 s90, 0x4000000")
        e("  s_mov_b32 s91, 0x00020000")
        e("  s_waitcnt lgkmcnt(0)")
        e("  s_mov_b64 exec, 1")
        for i in range(16):
            e(f"  v_mov_b32 v{i}, s{72+i}")
        e(f"  v_lshrrev_b32 v{CUR[0]+1}, 6, v{CUR[0]}")
        e(f"  v_lshlrev_b32 v{CUR[0]+1}, 6, v{CUR[0]+1}")
        e("  s_lshl_b32 s92, s2, 10")
        e(f"  s_add_u32 s92, s92, {(16 << 20) + KIDX[0] * 0x100000}")
        for i in range(4):
            e(f"  buffer_store_dwordx4 v[{4*i}:{3+4*i}], v{CUR[0]+1}, s[88:91], s92 offen offset:{16*i}")
    KIDX[0] += 1

KD = []
def kernel_desc(name, vgpr, sgpr=102):
    assert vgpr == CUR[0]
    if OPT('DIAG'): vgpr += 2
    acc = (vgpr + 3) // 4 * 4
    KD.append(f""".p2align 6
.amdhsa_kernel {name}
  .amdhsa_next_free_vgpr {vgpr}
  .amdhsa_next_free_sgpr {sgpr}
  .amdhsa_accum_offset {acc}
  .amdhsa_group_segment_fixed_size 0
  .amdhsa_kernarg_size 104
  .amdhsa_user_sgpr_count 2
  .amdhsa_user_sgpr_kernarg_segment_ptr 1
  .amdhsa_system_sgpr_workgroup_id_x 1
.end_amdhsa_kernel""")

def srd(d, lo, hi, size):
    e(f"  s_mov_b32 s{d}, s{lo}")
    e(f"  s_mov_b32 s{d+1}, s{hi}")
    e(f"  s_mov_b32 s{d+2}, {size}")
    e(f"  s_mov_b32 s{d+3}, 0x00020000")

def vr(a, n):
    return f"v[{a}:{a+n-1}]"

def reduce8(v):
    e("  s_nop 1")
    e(f"  v_add_f32_dpp v{v}, v{v}, v{v} quad_perm:[1,0,3,2] row_mask:0xf bank_mask:0xf")
    e("  s_nop 1")
    e(f"  v_add_f32_dpp v{v}, v{v}, v{v} quad_perm:[2,3,0,1] row_mask:0xf bank_mask:0xf")
    e("  s_nop 1")
    e(f"  v_add_f32_dpp v{v}, v{v}, v{v} row_half_mirror row_mask:0xf bank_mask:0xf")

def reduce16(v):
    reduce8(v)
    e("  s_nop 1")
    e(f"  v_add_f32_dpp v{v}, v{v}, v{v} row_mirror row_mask:0xf bank_mask:0xf")

def helper_wave():
    srd(36, 34, 35, 1792*512*2)
    srd(40, 6, 7, 12 << 20)
    e("  v_lshlrev_b32 v2, 4, v0")
    e("  s_mul_i32 s44, s2, 7168")
    for q in range(7):
        e(f"  buffer_load_dwordx4 {vr(8+4*q,4)}, v2, s[36:39], s44 offen")
        e("  s_add_u32 s44, s44, 1024")
    e("  s_cmp_ge_u32 s2, 28")
    e("  s_cbranch_scc1 k2_nomark")
    for q in range(4):
        e(f"  v_mov_b32 v{4+q}, -1")
    e("  s_lshl_b32 s44, s2, 10")
    e(f"  s_add_u32 s44, s44, {WS_GU}")
    e("  buffer_store_dwordx4 v[4:7], v2, s[40:43], s44 offen" + (" sc1" if MEGA else ""))
    lab("k2_nomark")
    e("  v_mul_u32_u24 v3, 28672, v0")
    e("  s_mul_i32 s44, s2, 112")
    e(f"  s_add_u32 s44, s44, {WS_WDB}")
    e("  s_waitcnt vmcnt(0)")
    for q in range(7):
        e(f"  buffer_store_dwordx4 {vr(8+4*q,4)}, v3, s[40:43], s44 offen offset:{16*q}" + (" sc1" if MEGA else ""))
    if MEGA: e("  s_waitcnt vmcnt(0)")
    e("  s_branch k2_done")

def get_epoch(tag):
    e("  v_mov_b32 v158, 0")
    e("  s_mov_b32 s69, 0")
    lab(f"ep_{tag}")
    e("  buffer_load_dword v159, v158, s[96:99], 0 offen sc1")
    e("  s_waitcnt vmcnt(0)")
    e("  v_readfirstlane_b32 s68, v159")
    e("  s_add_u32 s69, s69, 1")
    e(f"  s_cmp_gt_u32 s69, {1 << 22}")
    e(f"  s_cbranch_scc1 ep_{tag}_ok")
    e("  s_cmp_eq_u32 s68, 0")
    e(f"  s_cbranch_scc1 ep_{tag}")
    lab(f"ep_{tag}_ok")

def gen_k1():
    name = "f_kernel" if FUSE else "k1_kernel"
    kernel_begin(name)
    e("  s_cmp_ge_u32 s2, 256")
    e(f"  s_cbranch_scc1 {'k2_done' if FUSE else 'k1_done'}")
    e(f"  s_load_dwordx2 s[4:5], s[0:1], {KA_X}")
    e(f"  s_load_dwordx4 s[8:11], s[0:1], {KA_WDRE}")
    e(f"  s_load_dwordx2 s[6:7], s[0:1], {KA_WS}")
    if FUSE:
        e(f"  s_load_dwordx4 s[52:55], s[0:1], {KA_WSRE}")
        e(f"  s_load_dwordx2 s[66:67], s[0:1], {KA_DBG}")
        e(f"  s_load_dwordx2 s[34:35], s[0:1], {KA_WDN}")
    e("  s_and_b32 s12, s2, 7")
    e("  s_lshr_b32 s13, s2, 3")
    e("  s_and_b32 s14, s13, 3")
    e("  s_lshl_b32 s12, s12, 2")
    e("  s_add_u32 s12, s12, s14")
    e("  s_lshr_b32 s13, s13, 2")
    e("  v_lshrrev_b32 v1, 6, v0")
    e("  v_and_b32 v0, 63, v0")
    e("  v_readfirstlane_b32 s15, v1")
    e("  v_lshrrev_b32 v2, 3, v0")
    e("  v_and_b32 v3, 7, v0")
    if OPT('K1_PF', 0) or OPT('K1_PFEND', 0):
        e(f"  s_load_dwordx4 s[40:43], s[0:1], {KA_WSRE}")
    e("  s_waitcnt lgkmcnt(0)")
    if OPT('K1_PF', 0):
        e("  s_cmp_lg_u32 s15, 8")
        e("  s_cbranch_scc1 k1_main")
        e("  s_and_b32 s44, s2, 7")
        e("  s_cmp_lt_u32 s44, 4")
        e("  s_cselect_b32 s48, s40, s42")
        e("  s_cselect_b32 s49, s41, s43")
        e(f"  s_mov_b32 s50, {2048*2048*2}")
        e("  s_mov_b32 s51, 0x00020000")
        e("  s_and_b32 s44, s44, 3")
        e("  s_lshl_b32 s44, s44, 21")
        e("  s_lshr_b32 s45, s2, 3")
        e("  s_lshl_b32 s45, s45, 16")
        e("  s_add_u32 s44, s44, s45")
        e("  v_lshlrev_b32 v1, 4, v0")
        e("  s_cmp_lt_u32 s13, 4")
        e("  s_cselect_b32 s56, s8, s10")
        e("  s_cselect_b32 s57, s9, s11")
        e(f"  s_mov_b32 s58, {512*512*2}")
        e("  s_mov_b32 s59, 0x00020000")
        e("  s_and_b32 s46, s13, 3")
        e("  s_lshl_b32 s46, s46, 17")
        for q in range(OPT('K1_CAN', 0)):
            e(f"  buffer_load_dwordx4 v[8:11], v1, s[56:59], s46 offen offset:{q*1024}")
            e("  s_waitcnt vmcnt(0)")
        for q in range(64):
            e(f"  buffer_load_dwordx4 {vr(8+4*(q%32),4)}, v1, s[48:51], s44 offen")
            e("  s_add_u32 s44, s44, 1024")
        e("  s_branch k1_done")
        lab("k1_main")
    if FUSE:
        srd(96, 66, 67, 256)
        e("  s_cmp_lg_u32 s15, 8")
        e("  s_cbranch_scc1 f_main")
        e("  s_cmp_lg_u32 s2, 0")
        e("  s_cbranch_scc1 f_noepoch")
        e("  s_memrealtime s[40:41]")
        e("  s_waitcnt lgkmcnt(0)")
        e("  s_or_b32 s40, s40, 1")
        e("  v_mov_b32 v4, s40")
        e("  v_mov_b32 v5, 0")
        e("  s_mov_b64 s[42:43], exec")
        e("  s_mov_b64 exec, 1")
        e("  buffer_store_dword v4, v5, s[96:99], 0 offen sc1")
        e("  s_mov_b64 exec, s[42:43]")
        lab("f_noepoch")
        if OPT('F_PF', 0):
            e(f"  s_load_dwordx4 s[40:43], s[0:1], {KA_WSRE}")
            e("  s_and_b32 s44, s2, 7")
            e("  s_waitcnt lgkmcnt(0)")
            e("  s_cmp_lt_u32 s44, 4")
            e("  s_cselect_b32 s48, s40, s42")
            e("  s_cselect_b32 s49, s41, s43")
            e(f"  s_mov_b32 s50, {2048*2048*2}")
            e("  s_mov_b32 s51, 0x00020000")
            e("  s_and_b32 s44, s44, 3")
            e("  s_lshl_b32 s44, s44, 21")
            e("  s_lshr_b32 s45, s2, 3")
            e("  s_lshl_b32 s45, s45, 16")
            e("  s_add_u32 s44, s44, s45")
            e("  v_lshlrev_b32 v1, 4, v0")
            for q in range(64):
                e(f"  buffer_load_dwordx4 {vr(40+4*(q%24),4)}, v1, s[48:51], s44 offen")
                e("  s_add_u32 s44, s44, 1024")
        helper_wave()
        lab("f_main")
        hstamp(7)
    srd(16, 4, 5, 2048*512*2)
    e("  s_cmp_lt_u32 s13, 4")
    e("  s_cselect_b32 s20, s8, s10")
    e("  s_cselect_b32 s21, s9, s11")
    e(f"  s_mov_b32 s22, {512*512*2}")
    e("  s_mov_b32 s23, 0x00020000")
    srd(24, 6, 7, 9 << 20)
    if not FUSE:
        e("  s_or_b32 s46, s2, s15")
        e("  s_cmp_lg_u32 s46, 0")
        e("  s_cbranch_scc1 k1_nozero")
        for q in range(4):
            e(f"  v_mov_b32 v{4+q}, 0")
        e("  v_lshlrev_b32 v8, 4, v0")
        e(f"  s_mov_b32 s46, {WS_FLAG}")
        e("  buffer_store_dwordx4 v[4:7], v8, s[24:27], s46 offen")
        lab("k1_nozero")
    e("  s_lshl_b32 s28, s12, 6")
    e("  s_lshl_b32 s29, s15, 3")
    e("  s_add_u32 s28, s28, s29")
    e("  v_add_u32 v4, s28, v2")
    e("  v_lshlrev_b32 v4, 10, v4")
    e("  v_lshl_add_u32 v4, v3, 4, v4")
    X = 32
    for j in range(8):
        e(f"  buffer_load_dwordx4 {vr(X+4*j,4)}, v4, s[16:19], 0 offen offset:{128*j}")
    e("  s_and_b32 s30, s13, 3")
    e("  s_lshl_b32 s30, s30, 7")
    for ii in range(2):
        e(f"  s_lshl_b32 s31, s15, 4")
        e(f"  s_add_u32 s31, s31, {8*ii}")
        e(f"  v_add_u32 v7, s31, v2")
        e(f"  v_lshrrev_b32 v8, 1, v7")
        e(f"  v_and_b32 v8, 7, v8")
        e(f"  v_xor_b32 v8, v8, v3")
        e(f"  v_add_u32 v7, s30, v7")
        e(f"  v_lshlrev_b32 v7, 10, v7")
        e(f"  v_lshl_add_u32 v{5+ii}, v8, 4, v7")
    e("  s_lshl_b32 s32, s15, 11")
    def wdma(kb):
        slot = kb % 4
        e(f"  s_mov_b32 s33, {128*kb}")
        for ii in range(2):
            e(f"  s_add_u32 m0, s32, {slot*16384 + ii*1024}")
            e("  s_nop 0")
            e(f"  buffer_load_dwordx4 v{5+ii}, s[20:23], s33 offen lds")
    for kb in range(4):
        wdma(kb)
    PFM = OPT('F_PFM', 0)
    STG = 128
    if PFM:
        for kb in range(4, 8):
            e(f"  s_mov_b32 s33, {128*kb}")
            for ii in range(2):
                e(f"  buffer_load_dwordx4 {vr(STG+8*(kb-4)+4*ii,4)}, v{5+ii}, s[20:23], s33 offen")
        e("  s_and_b32 s44, s2, 7")
        e("  s_cmp_lt_u32 s44, 4")
        e("  s_cselect_b32 s48, s52, s54")
        e("  s_cselect_b32 s49, s53, s55")
        e(f"  s_mov_b32 s50, {2048*2048*2}")
        e("  s_mov_b32 s51, 0x00020000")
        e("  s_and_b32 s44, s44, 3")
        e("  s_lshl_b32 s44, s44, 21")
        e("  s_lshr_b32 s45, s2, 3")
        e("  s_lshl_b32 s45, s45, 16")
        e("  s_add_u32 s44, s44, s45")
        e("  s_lshl_b32 s45, s15, 13")
        e("  s_add_u32 s44, s44, s45")
        e("  v_lshlrev_b32 v7, 4, v0")
        for q in range(8):
            e(f"  buffer_load_dwordx4 v[160:163], v7, s[48:51], s44 offen")
            e("  s_add_u32 s44, s44, 1024")
    e("  s_mov_b32 s34, 0x3f803f80")
    for a in range(4):
        e(f"  v_mov_b32 v{8+a}, 0")
    e(f"  s_waitcnt vmcnt({24 if PFM else 8})")
    for i in range(32):
        e(f"  v_dot2_f32_bf16 v{8+i%4}, v{X+i}, s34, v{8+i%4}")
    e("  s_nop 3")
    e("  v_add_f32 v8, v8, v9")
    e("  v_add_f32 v10, v10, v11")
    e("  v_add_f32 v8, v8, v10")
    reduce8(8)
    e("  v_mul_f32 v8, 0x3b000000, v8")
    e("  v_cvt_pk_bf16_f32 v9, v8, v8")
    e("  v_lshlrev_b32 v9, 16, v9")
    e("  v_sub_f32 v10, 0, v9")
    e("  v_mov_b32 v11, v10")
    D = 64
    for a in range(4):
        e(f"  v_mov_b32 v{12+a}, 0")
    for i in range(32):
        e(f"  v_lshlrev_b32 v{D+2*i}, 16, v{X+i}")
        e(f"  v_and_b32 v{D+2*i+1}, 0xffff0000, v{X+i}")
        e(f"  v_pk_add_f32 {vr(D+2*i,2)}, {vr(D+2*i,2)}, v[10:11]")
        q = 12 + 2*(i % 2)
        e(f"  v_pk_fma_f32 {vr(q,2)}, {vr(D+2*i,2)}, {vr(D+2*i,2)}, {vr(q,2)}")
    e("  v_add_f32 v12, v12, v13")
    e("  v_add_f32 v14, v14, v15")
    e("  v_add_f32 v12, v12, v14")
    reduce8(12)
    e("  v_sub_f32 v13, v8, v9")
    e("  v_mul_f32 v13, v13, v13")
    e("  v_mul_f32 v12, 0x3b000000, v12")
    e("  v_sub_f32 v12, v12, v13")
    e("  v_max_f32 v12, 0, v12")
    e("  v_cvt_pk_bf16_f32 v12, v12, v12")
    e("  v_lshlrev_b32 v12, 16, v12")
    e("  v_add_f32 v12, 0x3727c5ac, v12")
    e("  v_cvt_pk_bf16_f32 v12, v12, v12")
    e("  v_lshlrev_b32 v12, 16, v12")
    e("  v_sqrt_f32 v12, v12")
    e("  s_nop 0")
    e("  v_cvt_pk_bf16_f32 v12, v12, v12")
    e("  v_lshlrev_b32 v12, 16, v12")
    e("  v_rcp_f32 v12, v12")
    e("  s_nop 0")
    e("  v_mov_b32 v13, v12")
    for i in range(32):
        e(f"  v_cvt_pk_bf16_f32 v{X+i}, v{D+2*i}, v{D+2*i+1}")
        e(f"  v_lshlrev_b32 v{D+2*i}, 16, v{X+i}")
        e(f"  v_and_b32 v{D+2*i+1}, 0xffff0000, v{X+i}")
        e(f"  v_pk_mul_f32 {vr(D+2*i,2)}, {vr(D+2*i,2)}, v[12:13]")
        e(f"  v_cvt_pk_bf16_f32 v{X+i}, v{D+2*i}, v{D+2*i+1}")
    e("  v_add_u32 v14, s29, v2")
    e("  v_lshrrev_b32 v15, 1, v14")
    e("  v_and_b32 v15, 7, v15")
    e("  v_xor_b32 v15, v15, v3")
    e("  v_lshlrev_b32 v14, 7, v14")
    e("  v_lshl_add_u32 v14, v15, 4, v14")
    e("  v_add_u32 v14, 0x10000, v14")
    for j in range(8):
        e(f"  ds_write_b128 v14, {vr(X+4*j,4)} offset:{8192*j}")
    e("  s_and_b32 s35, s15, 1")
    e("  s_lshr_b32 s36, s15, 1")
    e("  v_and_b32 v16, 31, v0")
    e("  v_lshrrev_b32 v17, 5, v0")
    def fragaddr(dst, sblk, base):
        e(f"  s_lshl_b32 s37, s{sblk}, 5")
        e(f"  v_add_u32 v18, s37, v16")
        e(f"  v_lshrrev_b32 v19, 1, v18")
        e(f"  v_and_b32 v19, 7, v19")
        e(f"  v_xor_b32 v19, v19, v17")
        e(f"  v_lshlrev_b32 v18, 7, v18")
        e(f"  v_lshl_add_u32 v{dst}, v19, 4, v18")
        if base:
            e(f"  v_add_u32 v{dst}, {base}, v{dst}")
        for kk in range(1, 4):
            e(f"  v_xor_b32 v{dst+kk}, {32*kk}, v{dst}")
    fragaddr(20, 35, 0x10000)
    fragaddr(24, 36, 0)
    ACC = 96
    for i in range(16):
        e(f"  v_mov_b32 v{ACC+i}, 0")
    FA, FB = 64, 80
    waits = [22, 14, 12, 10, 8, 8, 8, 8] if PFM else [6, 4, 4, 4, 4, 4, 2, 0]
    if PFM:
        e("  v_lshlrev_b32 v28, 4, v0")
        e("  v_add_u32 v28, s32, v28")
    for kb in range(8):
        e(f"  s_waitcnt vmcnt({waits[kb]}) lgkmcnt(0)")
        e("  s_barrier")
        if 1 <= kb <= 4 and PFM:
            for ii in range(2):
                e(f"  ds_write_b128 v28, {vr(STG+8*(kb-1)+4*ii,4)} offset:{((kb+3)%4)*16384 + ii*1024}")
        elif 1 <= kb <= 4:
            wdma(kb + 3)
        slot = kb % 4
        for kk in range(4):
            e(f"  ds_read_b128 {vr(FA+4*kk,4)}, v{20+kk} offset:{8192*kb}")
            e(f"  ds_read_b128 {vr(FB+4*kk,4)}, v{24+kk} offset:{16384*slot}")
        for kk in range(4):
            e(f"  s_waitcnt lgkmcnt({6-2*kk})")
            e(f"  v_mfma_f32_32x32x16_bf16 {vr(ACC,16)}, {vr(FA+4*kk,4)}, {vr(FB+4*kk,4)}, {vr(ACC,16)}")
    stamp(5)
    e("  s_lshl_b32 s37, s13, 1")
    e("  s_lshr_b32 s38, s36, 1")
    e("  s_add_u32 s37, s37, s38")
    e("  s_lshl_b32 s37, s37, 5")
    e("  s_add_u32 s37, s37, s12")
    e("  s_lshl_b32 s37, s37, 13")
    e("  s_and_b32 s38, s36, 1")
    e("  s_lshl_b32 s38, s38, 5")
    e("  v_add_u32 v18, s38, v16")
    e("  v_lshrrev_b32 v19, 1, v18")
    e("  v_and_b32 v19, 7, v19")
    e("  s_lshl_b32 s38, s35, 2")
    e("  v_add_u32 v29, s38, v17")
    e("  v_xor_b32 v29, v29, v19")
    e("  v_lshlrev_b32 v18, 7, v18")
    e("  v_lshl_add_u32 v30, v29, 4, v18")
    e("  v_xor_b32 v31, 32, v30")
    e("  s_nop 7")
    P = 112
    for g in range(4):
        e(f"  v_cvt_pk_bf16_f32 v{P+2*g}, v{ACC+4*g}, v{ACC+4*g+1}")
        e(f"  v_cvt_pk_bf16_f32 v{P+2*g+1}, v{ACC+4*g+2}, v{ACC+4*g+3}")
    e("  s_nop 1")
    for p in range(2):
        e(f"  v_permlane32_swap_b32 v{P+4*p}, v{P+4*p+2}")
        e(f"  v_permlane32_swap_b32 v{P+4*p+1}, v{P+4*p+3}")
    if not FUSE:
        e(f"  buffer_store_dwordx4 {vr(P,4)}, v30, s[24:27], s37 offen")
        e(f"  buffer_store_dwordx4 {vr(P+4,4)}, v31, s[24:27], s37 offen")
        lab("k1_done")
        kernel_end()
        e("  s_endpgm")
        kernel_desc(name, 160)
        return
    TR = 131072
    e(f"  s_load_dwordx4 s[8:11], s[0:1], {KA_WSRE}")
    e("  s_lshr_b32 s38, s36, 1")
    e("  s_lshl_b32 s38, s38, 13")
    e(f"  s_add_u32 s38, s38, {TR}")
    e("  v_add_u32 v30, s38, v30")
    e("  v_add_u32 v31, s38, v31")
    e(f"  ds_write_b128 v30, {vr(P,4)}")
    e(f"  ds_write_b128 v31, {vr(P+4,4)}")
    e("  v_lshlrev_b32 v29, 4, v0")
    e("  s_lshl_b32 s38, s15, 11")
    e(f"  s_add_u32 s39, s38, {TR}")
    e("  v_add_u32 v28, s39, v29")
    e("  s_waitcnt lgkmcnt(0)")
    e("  s_barrier")
    e("  ds_read_b128 v[64:67], v28")
    e("  ds_read_b128 v[68:71], v28 offset:1024")
    e("  s_lshl_b32 s37, s13, 1")
    e("  s_lshr_b32 s39, s15, 2")
    e("  s_add_u32 s37, s37, s39")
    e("  s_lshl_b32 s37, s37, 5")
    e("  s_add_u32 s37, s37, s12")
    e("  s_lshl_b32 s37, s37, 13")
    e("  s_and_b32 s39, s15, 3")
    e("  s_lshl_b32 s39, s39, 11")
    e("  s_add_u32 s37, s37, s39")
    e("  s_waitcnt lgkmcnt(1)")
    e("  buffer_store_dwordx4 v[64:67], v29, s[24:27], s37 offen sc1")
    e("  s_waitcnt lgkmcnt(0)")
    e("  buffer_store_dwordx4 v[68:71], v29, s[24:27], s37 offen offset:1024 sc1")
    e("  s_lshl_b32 s70, s13, 5")
    e("  s_add_u32 s70, s70, s12")
    e("  s_lshl_b32 s70, s70, 2")
    e(f"  s_add_u32 s70, s70, {WS_FA}")

def k2_epilogue_plain(ACC):
    e("  s_lshl_b32 s24, s14, 21")
    e(f"  s_add_u32 s24, s24, {WS_Y}")
    e("  s_lshl_b32 s30, s13, 7")
    e("  s_add_u32 s24, s24, s30")
    e("  s_lshl_b32 s30, s12, 7")
    e("  s_lshl_b32 s31, s15, 5")
    e("  s_add_u32 s30, s30, s31")
    e("  v_add_u32 v18, s30, v16")
    e("  v_lshlrev_b32 v18, 10, v18")
    e("  v_lshl_add_u32 v18, v17, 4, v18")
    e("  s_nop 7")
    P = 64
    for g in range(8):
        e(f"  v_cvt_pk_bf16_f32 v{P+2*g}, v{ACC+4*g}, v{ACC+4*g+1}")
        e(f"  v_cvt_pk_bf16_f32 v{P+2*g+1}, v{ACC+4*g+2}, v{ACC+4*g+3}")
    e("  s_nop 1")
    for p in range(4):
        e(f"  v_permlane32_swap_b32 v{P+4*p}, v{P+4*p+2}")
        e(f"  v_permlane32_swap_b32 v{P+4*p+1}, v{P+4*p+3}")
    for p in range(4):
        e(f"  buffer_store_dwordx4 {vr(P+4*p,4)}, v18, s[20:23], s24 offen offset:{32*p}")

ROW_O = 48
def reduce32(v, t):
    reduce16(v)
    e("  s_nop 1")
    e(f"  ds_swizzle_b32 v{t}, v{v} offset:0x401F")
    e("  s_waitcnt lgkmcnt(0)")
    e(f"  v_add_f32 v{v}, v{v}, v{t}")

def rowmac32_pre():
    XX, WR = 48, 64
    e("  v_lshlrev_b32 v3, 10, v1")
    e("  v_lshl_add_u32 v3, v2, 4, v3")
    e("  v_lshlrev_b32 v4, 4, v2")
    for j in range(2):
        e(f"  buffer_load_dwordx4 {vr(XX+4*j,4)}, v3, s[20:23], 0 offen offset:{512*j}")
        e(f"  buffer_load_dwordx4 {vr(WR+4*j,4)}, v4, s[28:31], 0 offen offset:{512*j}")

def rowmac32():
    YR, YI, XX, WR, H, T, D = 16, 32, 48, 64, 80, 112, 116
    O = ROW_O
    e(f"  s_mov_b32 s52, {WS_Y}")
    e(f"  s_mov_b32 s53, {WS_Y + (2<<20)}")
    for j in range(2):
        e(f"  buffer_load_dwordx4 {vr(YR+4*j,4)}, v3, s[24:27], s52 offen offset:{512*j} sc1")
        e(f"  buffer_load_dwordx4 {vr(YI+4*j,4)}, v3, s[24:27], s53 offen offset:{512*j} sc1")
    e("  v_mov_b32 v14, 0")
    e("  v_mov_b32 v15, 0")
    for j in range(2):
        e(f"  s_waitcnt vmcnt({2*(1-j)})")
        for q in range(4):
            i = 4*j + q
            e(f"  v_lshlrev_b32 v{T}, 16, v{YR+i}")
            e(f"  v_and_b32 v{T+1}, 0xffff0000, v{YR+i}")
            e(f"  v_lshlrev_b32 v{T+2}, 16, v{YI+i}")
            e(f"  v_and_b32 v{T+3}, 0xffff0000, v{YI+i}")
            e(f"  v_pk_add_f32 {vr(T,2)}, {vr(T,2)}, {vr(T+2,2)} neg_lo:[0,1] neg_hi:[0,1]")
            e(f"  v_cvt_pk_bf16_f32 v{T}, v{T}, v{T+1}")
            e(f"  v_and_b32 v{T+1}, 0xffff0000, v{T}")
            e(f"  v_lshlrev_b32 v{T}, 16, v{T}")
            e(f"  v_lshlrev_b32 v{T+2}, 16, v{XX+i}")
            e(f"  v_and_b32 v{T+3}, 0xffff0000, v{XX+i}")
            e(f"  v_pk_add_f32 {vr(T,2)}, {vr(T,2)}, {vr(T+2,2)}")
            e(f"  v_cvt_pk_bf16_f32 v{T}, v{T}, v{T+1}")
            e(f"  v_lshlrev_b32 v{H+2*i}, 16, v{T}")
            e(f"  v_and_b32 v{H+2*i+1}, 0xffff0000, v{T}")
            e(f"  v_pk_add_f32 v[14:15], v[14:15], {vr(H+2*i,2)}")
    e("  v_add_f32 v5, v14, v15")
    reduce32(5, 13)
    e("  v_mul_f32 v5, 0x3b000000, v5")
    e("  v_cvt_pk_bf16_f32 v6, v5, v5")
    e("  v_lshlrev_b32 v6, 16, v6")
    e("  v_sub_f32 v8, 0, v6")
    e("  v_mov_b32 v9, v8")
    e("  v_mov_b32 v10, 0")
    e("  v_mov_b32 v11, 0")
    for i in range(8):
        e(f"  v_pk_add_f32 {vr(D+2*i,2)}, {vr(H+2*i,2)}, v[8:9]")
        e(f"  v_pk_fma_f32 v[10:11], {vr(D+2*i,2)}, {vr(D+2*i,2)}, v[10:11]")
    e("  v_add_f32 v10, v10, v11")
    reduce32(10, 13)
    e("  v_sub_f32 v11, v5, v6")
    e("  v_mul_f32 v11, v11, v11")
    e("  v_mul_f32 v10, 0x3b000000, v10")
    e("  v_sub_f32 v10, v10, v11")
    e("  v_max_f32 v10, 0, v10")
    e("  v_cvt_pk_bf16_f32 v10, v10, v10")
    e("  v_lshlrev_b32 v10, 16, v10")
    e("  v_add_f32 v10, 0x3727c5ac, v10")
    e("  v_cvt_pk_bf16_f32 v10, v10, v10")
    e("  v_lshlrev_b32 v10, 16, v10")
    e("  v_sqrt_f32 v10, v10")
    e("  s_nop 0")
    e("  v_cvt_pk_bf16_f32 v10, v10, v10")
    e("  v_lshlrev_b32 v10, 16, v10")
    e("  v_rcp_f32 v10, v10")
    e("  s_nop 0")
    e("  v_mov_b32 v11, v10")
    e("  v_mov_b32 v12, 0")
    for i in range(8):
        e(f"  v_cvt_pk_bf16_f32 v{T}, v{D+2*i}, v{D+2*i+1}")
        e(f"  v_lshlrev_b32 v{D+2*i}, 16, v{T}")
        e(f"  v_and_b32 v{D+2*i+1}, 0xffff0000, v{T}")
        e(f"  v_pk_mul_f32 {vr(D+2*i,2)}, {vr(D+2*i,2)}, v[10:11]")
        e(f"  v_cvt_pk_bf16_f32 v{T}, v{D+2*i}, v{D+2*i+1}")
        e(f"  v_dot2_f32_bf16 v12, v{T}, v{WR+i}, v12")
        e(f"  v_lshlrev_b32 v{D+2*i}, 16, v{T}")
        e(f"  v_and_b32 v{D+2*i+1}, 0xffff0000, v{T}")
        e(f"  v_pk_add_f32 {vr(D+2*i,2)}, {vr(D+2*i,2)}, {vr(H+2*i,2)}")
        e(f"  v_cvt_pk_bf16_f32 v{O+i}, v{D+2*i}, v{D+2*i+1}")
    if not MEGA:
        for j in range(2):
            e(f"  buffer_store_dwordx4 {vr(O+4*j,4)}, v3, s[44:47], 0 offen offset:{512*j}")
    e("  s_nop 3")
    reduce32(12, 13)
    e("  v_cvt_pk_bf16_f32 v12, v12, v12")
    e("  v_lshlrev_b32 v12, 16, v12")
    e("  v_ashrrev_i32 v13, 31, v12")
    e("  v_or_b32 v13, 0x80000000, v13")
    e("  v_xor_b32 v12, v12, v13")
    e("  v_and_b32 v12, 0xffff0000, v12")
    e("  v_sub_u32 v13, 0xffff, v1")
    e("  v_or_b32 v12, v12, v13")

MT_C, MT_R, MT_WD = 0, 256, 8704
MT_G, MT_U, MT_XS = 8704, 8704 + 8192, 8704 + 16384
def poll_end(lbl):
    e("  s_nop 3")
    e("  s_cmp_eq_u64 s[54:55], 0")
    e(f"  s_cbranch_scc1 {lbl}_ok")
    e("  s_add_u32 s53, s53, 1")
    e(f"  s_cmp_gt_u32 s53, {1 << 22}")
    e(f"  s_cbranch_scc1 {lbl}_ok")
    e(f"  s_branch {lbl}")
    lab(f"{lbl}_ok")

def mega_gu_dma():
    e("  s_and_b32 s3, s2, 7")
    e("  s_mul_i32 s3, s3, 28")
    e("  s_lshr_b32 s32, s2, 3")
    e("  s_add_u32 s3, s3, s32")
    e("  s_cmp_ge_u32 s2, 224")
    e("  s_cbranch_scc1 mt_nogu")
    srd(16, 58, 59, 512*1792*2)
    srd(8, 60, 61, 512*1792*2)
    e("  s_lshl_b32 s35, s3, 4")
    e("  s_movk_i32 s32, 3584")
    for ii in range(2):
        e(f"  s_lshl_b32 s33, s15, 7")
        e(f"  s_add_u32 s33, s33, {64*ii}")
        e(f"  v_add_u32 v8, s33, v0")
        e(f"  v_mul_lo_u32 v8, v8, s32")
        e(f"  s_lshl_b32 s34, s15, 11")
        e(f"  s_add_u32 m0, s34, {MT_G + 1024*ii}")
        e("  s_nop 0")
        e(f"  buffer_load_dwordx4 v8, s[16:19], s35 offen lds")
        e(f"  s_add_u32 m0, s34, {MT_U + 1024*ii}")
        e("  s_nop 0")
        e(f"  buffer_load_dwordx4 v8, s[8:11], s35 offen lds")
    lab("mt_nogu")

def mega_tail():
    C = MT_C
    for i in range(8):
        e(f"  v_mov_b32 v{152+i}, v{48+i}")
    e("  v_mov_b32 v151, v1")
    e("  v_mov_b32 v150, v3")
    e("  v_lshl_add_u32 v40, s15, 6, v0")
    e("  v_mov_b32 v16, v12")
    e("  v_mov_b32 v17, v6")
    e("  v_mov_b32 v18, v10")
    e("  v_mov_b32 v19, s68")
    e("  v_lshlrev_b32 v13, 4, v1")
    e("  v_cmp_eq_u32 vcc, 0, v2")
    e("  s_and_saveexec_b64 s[50:51], vcc")
    e(f"  s_mov_b32 s52, {WS_REC}")
    e("  buffer_store_dwordx4 v[16:19], v13, s[24:27], s52 offen sc1")
    e("  s_mov_b64 exec, s[50:51]")
    e("  s_cmp_lg_u32 s2, 255")
    e("  s_cbranch_scc1 mt_nosel")
    e("  v_lshlrev_b32 v13, 4, v40")
    e("  s_mov_b32 s53, 0")
    lab("mt_prec")
    for i in range(8):
        e(f"  s_mov_b32 s52, {WS_REC + 4096*i}")
        e(f"  buffer_load_dwordx4 {vr(64+4*i,4)}, v13, s[24:27], s52 offen sc1")
    e("  v_mov_b32 v14, 0")
    for i in range(8):
        e(f"  s_waitcnt vmcnt({7-i})")
        e(f"  v_xor_b32 v15, s68, v{67+4*i}")
        e("  v_or_b32 v14, v14, v15")
    e("  v_cmp_ne_u32 s[54:55], 0, v14")
    poll_end("mt_prec")
    top8([64+4*i for i in range(8)], range(16, 24), C, "s15")
    e("  v_and_b32 v3, 31, v0")
    e("  v_lshlrev_b32 v3, 2, v3")
    e(f"  ds_read_b32 v24, v3 offset:{C}")
    e("  v_mov_b32 v4, 0")
    for q in range(8):
        e(f"  ds_read_b128 {vr(96+4*q,4)}, v4 offset:{C+16*q}")
    e("  v_mov_b32 v25, 0")
    e("  s_waitcnt lgkmcnt(0)")
    sp = [32, 34, 36, 38]
    for i in range(32 + 3):
        if i < 32:
            e(f"  v_cmp_gt_u32 s[{sp[i%4]}:{sp[i%4]+1}], v{96+i}, v24")
        if i >= 3:
            j = i - 3
            e(f"  v_addc_co_u32 v25, vcc, 0, v25, s[{sp[j%4]}:{sp[j%4]+1}]")
    e("  s_cmp_lg_u32 s15, 0")
    e("  s_cbranch_scc1 mt_nosel")
    e("  v_lshlrev_b32 v3, 3, v25")
    e("  v_mov_b32 v26, v24")
    e("  v_mov_b32 v27, s68")
    e("  v_cmp_gt_u32 vcc, 8, v25")
    e("  v_cmp_gt_u32 s[42:43], 32, v0")
    e("  s_and_b64 vcc, vcc, s[42:43]")
    e("  s_and_saveexec_b64 s[50:51], vcc")
    e(f"  s_mov_b32 s52, {WS_SEL}")
    e("  buffer_store_dwordx2 v[26:27], v3, s[24:27], s52 offen sc1")
    e("  s_mov_b64 exec, s[50:51]")
    lab("mt_nosel")
    e("  s_cmp_lg_u32 s15, 0")
    e("  s_cbranch_scc1 mt_selbar")
    e("  v_and_b32 v3, 7, v0")
    e("  v_lshlrev_b32 v4, 3, v3")
    e("  v_lshlrev_b32 v3, 2, v3")
    e(f"  s_mov_b32 s52, {WS_SEL}")
    e("  s_mov_b32 s53, 0")
    lab("mt_psel")
    e("  buffer_load_dwordx2 v[26:27], v4, s[24:27], s52 offen sc1")
    e("  s_waitcnt vmcnt(0)")
    e("  v_cmp_ne_u32 s[54:55], s68, v27")
    poll_end("mt_psel")
    e(f"  ds_write_b32 v3, v26 offset:{C+128}")
    e("  s_waitcnt lgkmcnt(0)")
    lab("mt_selbar")
    e("  s_barrier")
    stamp(5)
    e("  v_mov_b32 v4, 0")
    e(f"  ds_read_b128 v[16:19], v4 offset:{C+128}")
    e(f"  ds_read_b128 v[20:23], v4 offset:{C+144}")
    e("  v_sub_u32 v5, 0xffff, v151")
    e("  s_waitcnt lgkmcnt(0)")
    e("  s_mov_b64 s[42:43], exec")
    for k in range(8):
        e(f"  v_and_b32 v{16+k}, 0xffff, v{16+k}")
        e(f"  v_cmp_ne_u32 vcc, v{16+k}, v5")
        e("  s_and_b64 s[42:43], s[42:43], vcc")
    e("  s_and_saveexec_b64 s[50:51], s[42:43]")
    e("  s_cbranch_execz mt_nostore")
    for j in range(2):
        e(f"  buffer_store_dwordx4 {vr(152+4*j,4)}, v150, s[44:47], 0 offen offset:{512*j}")
    lab("mt_nostore")
    e("  s_mov_b64 exec, s[50:51]")
    e("  s_cmp_ge_u32 s2, 240")
    e("  s_cbranch_scc1 k2_done")
    e("  s_cmp_ge_u32 s2, 224")
    e("  s_cbranch_scc1 mt_f2")
    e("  v_lshrrev_b32 v4, 5, v40")
    e("  v_and_b32 v5, 31, v40")
    e("  v_lshlrev_b32 v3, 2, v4")
    e(f"  ds_read_b32 v6, v3 offset:{C+128}")
    e("  s_waitcnt lgkmcnt(0)")
    e("  v_and_b32 v6, 0xffff, v6")
    e("  v_sub_u32 v6, 0xffff, v6")
    e("  v_lshlrev_b32 v7, 10, v6")
    e("  v_lshl_add_u32 v7, v5, 4, v7")
    e(f"  s_mov_b32 s52, {WS_Y}")
    e(f"  s_mov_b32 s53, {WS_Y + (2<<20)}")
    YR, YI, XX = 16, 24, 32
    for j in range(2):
        e(f"  buffer_load_dwordx4 {vr(YR+4*j,4)}, v7, s[24:27], s52 offen offset:{512*j} sc1")
        e(f"  buffer_load_dwordx4 {vr(YI+4*j,4)}, v7, s[24:27], s53 offen offset:{512*j} sc1")
        e(f"  buffer_load_dwordx4 {vr(XX+4*j,4)}, v7, s[20:23], 0 offen offset:{512*j}")
    e("  v_lshlrev_b32 v3, 4, v6")
    e(f"  s_mov_b32 s52, {WS_REC}")
    e("  buffer_load_dwordx4 v[44:47], v3, s[24:27], s52 offen sc1")
    e("  s_waitcnt vmcnt(0)")
    e("  v_sub_f32 v54, 0, v45")
    e("  v_mov_b32 v55, v54")
    e("  v_mov_b32 v52, v46")
    e("  v_mov_b32 v53, v46")
    recompute(YR, YI, XX, 8, 54, 52, 64, 80, 56)
    e(f"  v_mul_u32_u24 v3, {XS_STRIDE}, v4")
    e("  v_lshl_add_u32 v3, v5, 4, v3")
    e(f"  ds_write_b128 v3, v[80:83] offset:{MT_XS}")
    e(f"  ds_write_b128 v3, v[84:87] offset:{MT_XS+512}")
    e("  s_waitcnt lgkmcnt(0)")
    e("  s_barrier")
    e("  s_cmp_lg_u32 s15, 0")
    e("  s_cbranch_scc1 k2_done")
    e("  v_and_b32 v3, 7, v0")
    e(f"  v_mul_u32_u24 v3, {XS_STRIDE}, v3")
    e("  v_lshrrev_b32 v4, 4, v0")
    e("  v_lshl_add_u32 v3, v4, 4, v3")
    e("  v_and_b32 v5, 15, v0")
    e("  v_lshrrev_b32 v5, 2, v5")
    e("  v_lshl_add_u32 v5, v4, 3, v5")
    e("  v_lshlrev_b32 v5, 4, v5")
    e("  v_and_b32 v6, 1, v0")
    e("  v_lshl_add_u32 v5, v6, 3, v5")
    e("  v_and_b32 v6, 2, v0")
    e("  v_lshl_add_u32 v5, v6, 12, v5")
    for i in range(4):
        e(f"  v_mov_b32 v{8+i}, 0")
    FA, FB = 16, 80
    for st in range(16):
        e(f"  ds_read_b128 {vr(FA+4*st,4)}, v3 offset:{MT_XS + 64*st}")
        e(f"  ds_read_b64_tr_b16 {vr(FB+4*st,2)}, v5 offset:{MT_G+512*st}")
        e(f"  ds_read_b64_tr_b16 {vr(FB+4*st+2,2)}, v5 offset:{MT_G+512*st+64}")
        if st % 4 == 3:
            e("  s_waitcnt lgkmcnt(0)")
            for s2 in range(st-3, st+1):
                e(f"  v_mfma_f32_16x16x32_bf16 v[8:11], {vr(FA+4*s2,4)}, {vr(FB+4*s2,4)}, v[8:11]")
    e("  s_nop 15")
    for i in range(4):
        e(f"  v_cvt_pk_bf16_f32 v{8+i}, v{8+i}, v{8+i}")
        e(f"  v_lshlrev_b32 v{8+i}, 16, v{8+i}")
    e("  s_nop 1")
    for i in range(4):
        e(f"  v_mov_b32_dpp v{12+i}, v{8+i} row_ror:8 row_mask:0xf bank_mask:0xf")
    for i in range(4):
        e(f"  v_mul_f32 v16, 0xbfb8aa3b, v{8+i}")
        e("  v_exp_f32 v16, v16")
        e("  s_nop 0")
        e("  v_add_f32 v16, 1.0, v16")
        e("  v_rcp_f32 v16, v16")
        e("  s_nop 0")
        e(f"  v_mul_f32 v16, v{8+i}, v16")
        e("  v_cvt_pk_bf16_f32 v16, v16, v16")
        e("  v_lshlrev_b32 v16, 16, v16")
        e(f"  v_mul_f32 v16, v16, v{12+i}")
        e(f"  v_cvt_pk_bf16_f32 v{20+i}, v16, v16")
    e("  s_nop 1")
    for i in range(4):
        e(f"  v_mov_b32_dpp v{24+i}, v{20+i} quad_perm:[1,0,3,2] row_mask:0xf bank_mask:0xf")
    for i in range(4):
        e(f"  v_and_b32 v{20+i}, 0xffff, v{20+i}")
        e(f"  v_and_b32 v{24+i}, 0xffff0000, v{24+i}")
        e(f"  v_or_b32 v{20+i}, v{20+i}, v{24+i}")
        e(f"  v_min_u32 v{20+i}, 0xfffeffff, v{20+i}")
    e("  v_and_b32 v5, 15, v0")
    e("  v_lshlrev_b32 v4, 6, v4")
    e("  v_lshl_add_u32 v4, v5, 1, v4")
    e("  v_lshlrev_b32 v7, 4, v0")
    e("  v_and_b32 v6, 9, v0")
    e("  v_cmp_eq_u32 vcc, 0, v6")
    e("  v_cmp_gt_u32 s[42:43], 32, v0")
    e("  s_and_b64 vcc, vcc, s[42:43]")
    e("  s_and_saveexec_b64 s[50:51], vcc")
    for i in range(4):
        e(f"  ds_write_b32 v4, v{20+i} offset:{MT_R+16*i}")
    e("  s_mov_b64 exec, 0xff")
    e("  s_waitcnt lgkmcnt(0)")
    e(f"  ds_read_b128 v[24:27], v7 offset:{MT_R}")
    e("  s_lshl_b32 s35, s3, 7")
    e(f"  s_add_u32 s35, s35, {WS_GU}")
    e("  s_waitcnt lgkmcnt(0)")
    e("  buffer_store_dwordx4 v[24:27], v7, s[24:27], s35 offen sc1")
    e("  s_mov_b64 exec, -1")
    hstamp(8)
    e("  s_branch k2_done")
    lab("mt_f2")
    e("  s_sub_u32 s49, s2, 224")
    e("  v_lshlrev_b32 v3, 4, v0")
    e("  s_mul_i32 s34, s15, 7168")
    e(f"  s_mul_i32 s33, s49, {4*28672}")
    e("  s_add_u32 s33, s33, s34")
    e(f"  s_add_u32 s33, s33, {WS_WDB}")
    for dsl in range(4):
        for i in range(7):
            e(f"  s_add_u32 m0, s34, {MT_WD + dsl*28672 + 1024*i}")
            e("  s_nop 0")
            e(f"  buffer_load_dwordx4 v3, s[24:27], s33 offen sc1 lds")
            e(f"  s_add_u32 s33, s33, {1024 if i < 6 else 28672 - 6*1024}")
    e("  v_lshrrev_b32 v5, 4, v0")
    e("  v_and_b32 v6, 1, v5")
    e("  v_lshlrev_b32 v6, 4, v6")
    e(f"  ds_read_b128 v[24:27], v6 offset:{C+128}")
    e("  v_and_b32 v6, 15, v0")
    e("  s_lshl_b32 s35, s49, 6")
    e("  s_waitcnt lgkmcnt(0)")
    for i in range(4):
        e(f"  v_and_b32 v{28+i}, 0xffff, v{24+i}")
        e(f"  v_sub_u32 v{28+i}, 0xffff, v{28+i}")
        e(f"  v_lshlrev_b32 v{32+i}, 4, v{28+i}")
        e(f"  v_lshlrev_b32 v{28+i}, 10, v{28+i}")
        e(f"  v_lshl_add_u32 v{28+i}, v6, 1, v{28+i}")
        e(f"  v_add_u32 v{28+i}, s35, v{28+i}")
    E0 = 136
    e("  s_cmp_lg_u32 s15, 0")
    e("  s_cbranch_scc1 mt_noepi")
    e(f"  s_mov_b32 s36, {WS_Y}")
    e(f"  s_mov_b32 s37, {WS_Y + (2<<20)}")
    e(f"  s_mov_b32 s38, {WS_REC}")
    for a in range(2):
        for i in range(4):
            e(f"  buffer_load_ushort v{E0+12*a+i}, v{28+i}, s[24:27], s36 offen offset:{32*a} sc1")
            e(f"  buffer_load_ushort v{E0+4+12*a+i}, v{28+i}, s[24:27], s37 offen offset:{32*a} sc1")
            e(f"  buffer_load_ushort v{E0+8+12*a+i}, v{28+i}, s[20:23], 0 offen offset:{32*a}")
    for i in range(4):
        e(f"  buffer_load_dwordx4 {vr(36+4*i,4)}, v{32+i}, s[24:27], s38 offen sc1")
    lab("mt_noepi")
    e("  v_lshrrev_b32 v7, 2, v6")
    e("  v_lshl_add_u32 v7, v5, 3, v7")
    e("  v_lshlrev_b32 v7, 4, v7")
    e("  v_and_b32 v60, 1, v0")
    e("  v_lshl_add_u32 v7, v60, 3, v7")
    e("  v_and_b32 v60, 2, v0")
    e("  v_mul_u32_u24 v60, 14336, v60")
    e("  v_add_u32 v7, v60, v7")
    e("  v_add_u32 v7, s34, v7")
    e(f"  v_add_u32 v61, {2*28672}, v7")
    for i in range(8):
        e(f"  v_mov_b32 v{8+i}, 0")
    e("  s_waitcnt vmcnt(0)")
    for i in range(4):
        e(f"  v_and_b32 v60, 0xffff0000, v{24+i}")
        e("  v_ashrrev_i32 v62, 31, v60")
        e("  v_not_b32 v62, v62")
        e("  v_or_b32 v62, 0x80000000, v62")
        e("  v_xor_b32 v60, v60, v62")
        e("  v_and_b32 v60, 0xffff0000, v60")
        e("  v_mul_f32 v60, 0xbfb8aa3b, v60")
        e("  v_exp_f32 v60, v60")
        e("  s_nop 0")
        e("  v_add_f32 v60, 1.0, v60")
        e("  v_rcp_f32 v60, v60")
        e("  s_nop 0")
        e("  v_cvt_pk_bf16_f32 v60, v60, v60")
        e(f"  v_lshlrev_b32 v{24+i}, 16, v60")
    for a in range(2):
        for i in range(4):
            r0, r1, r2 = E0+12*a+i, E0+4+12*a+i, E0+8+12*a+i
            e(f"  v_lshlrev_b32 v{r0}, 16, v{r0}")
            e(f"  v_lshlrev_b32 v{r1}, 16, v{r1}")
            e(f"  v_lshlrev_b32 v{r2}, 16, v{r2}")
            e(f"  v_sub_f32 v60, v{r0}, v{r1}")
            e("  v_cvt_pk_bf16_f32 v60, v60, v60")
            e("  v_lshlrev_b32 v60, 16, v60")
            e(f"  v_add_f32 v60, v{r2}, v60")
            e("  v_cvt_pk_bf16_f32 v60, v60, v60")
            e(f"  v_lshlrev_b32 v{r0}, 16, v60")
            e(f"  v_sub_f32 v62, v{r0}, v{37+4*i}")
            e("  v_cvt_pk_bf16_f32 v62, v62, v62")
            e("  v_lshlrev_b32 v62, 16, v62")
            e(f"  v_mul_f32 v62, v62, v{38+4*i}")
            e("  v_cvt_pk_bf16_f32 v62, v62, v62")
            e(f"  v_lshlrev_b32 v{r1}, 16, v62")
    e("  v_and_b32 v4, 7, v0")
    e("  v_lshlrev_b32 v4, 4, v4")
    e("  v_lshl_add_u32 v4, v5, 7, v4")
    e("  v_add_u32 v62, 4096, v4")
    e("  s_mul_i32 s52, s15, 7168")
    e(f"  s_add_u32 s52, s52, {WS_GU}")
    FA = 64
    e("  s_mov_b32 s53, 0")
    lab("mt_pgu")
    for st in range(14):
        if st < 8:
            e(f"  buffer_load_dwordx4 {vr(FA+4*st,4)}, v4, s[24:27], s52 offen offset:{512*st} sc1")
        else:
            e(f"  buffer_load_dwordx4 {vr(FA+4*st,4)}, v62, s[24:27], s52 offen offset:{512*(st-8)} sc1")
    e("  v_mov_b32 v3, 0")
    for st in range(14):
        e(f"  s_waitcnt vmcnt({13-st})")
        e(f"  v_max3_u32 v3, v3, v{FA+4*st}, v{FA+4*st+1}")
        e(f"  v_max3_u32 v3, v3, v{FA+4*st+2}, v{FA+4*st+3}")
    e("  v_cmp_eq_u32 s[54:55], -1, v3")
    poll_end("mt_pgu")
    hstamp(9, 224)
    def rdB(st):
        b = 120 + 8 * (st % 2)
        e(f"  ds_read_b64_tr_b16 {vr(b,2)}, v7 offset:{MT_WD+512*st}")
        e(f"  ds_read_b64_tr_b16 {vr(b+2,2)}, v7 offset:{MT_WD+512*st+64}")
        e(f"  ds_read_b64_tr_b16 {vr(b+4,2)}, v61 offset:{MT_WD+512*st}")
        e(f"  ds_read_b64_tr_b16 {vr(b+6,2)}, v61 offset:{MT_WD+512*st+64}")
    rdB(0)
    for st in range(14):
        b = 120 + 8 * (st % 2)
        if st < 13:
            rdB(st + 1)
            e("  s_waitcnt lgkmcnt(4)")
        else:
            e("  s_waitcnt lgkmcnt(0)")
        e(f"  v_mfma_f32_16x16x32_bf16 v[8:11], {vr(FA+4*st,4)}, {vr(b,4)}, v[8:11]")
        e(f"  v_mfma_f32_16x16x32_bf16 v[12:15], {vr(FA+4*st,4)}, {vr(b+4,4)}, v[12:15]")
        e("  s_nop 3")
    e("  s_nop 15")
    e("  v_lshlrev_b32 v3, 4, v0")
    e("  s_lshl_b32 s33, s15, 11")
    e("  v_add_u32 v3, s33, v3")
    e(f"  ds_write_b128 v3, v[8:11] offset:{MT_R}")
    e(f"  ds_write_b128 v3, v[12:15] offset:{MT_R+1024}")
    e("  s_waitcnt lgkmcnt(0)")
    e("  s_barrier")
    e("  s_cmp_lg_u32 s15, 0")
    e("  s_cbranch_scc1 k2_done")
    e("  v_lshlrev_b32 v3, 4, v0")
    for w in range(1, 4):
        for a in range(2):
            e(f"  ds_read_b128 {vr(72+8*(w-1)+4*a,4)}, v3 offset:{MT_R+2048*w+1024*a}")
    e("  v_cmp_gt_u32 vcc, 32, v0")
    e("  s_and_saveexec_b64 s[50:51], vcc")
    e("  s_waitcnt lgkmcnt(0)")
    for a in range(2):
        for i in range(4):
            y = 8 + 4*a + i
            e(f"  v_add_f32 v{y}, v{y}, v{72+4*a+i}")
            e(f"  v_add_f32 v60, v{80+4*a+i}, v{88+4*a+i}")
            e(f"  v_add_f32 v{y}, v{y}, v60")
            e(f"  v_cvt_pk_bf16_f32 v{y}, v{y}, v{y}")
            e(f"  v_lshlrev_b32 v{y}, 16, v{y}")
            e(f"  v_mul_f32 v{y}, v{y}, v{24+i}")
            e(f"  v_cvt_pk_bf16_f32 v{y}, v{y}, v{y}")
            e(f"  v_lshlrev_b32 v{y}, 16, v{y}")
            e(f"  v_add_f32 v61, v{E0+4+12*a+i}, v{y}")
            e("  v_cvt_pk_bf16_f32 v61, v61, v61")
            e("  v_lshlrev_b32 v61, 16, v61")
            e(f"  v_add_f32 v61, v{E0+12*a+i}, v61")
            e("  v_cvt_pk_bf16_f32 v61, v61, v61")
            e(f"  buffer_store_short v61, v{28+i}, s[44:47], 0 offen offset:{32*a}")
    e("  s_mov_b64 exec, -1")
    hstamp(10, 224)

def k2_epilogue_fused(ACC):
    TB = 49152
    e("  s_nop 15")
    P = 64
    for g in range(8):
        e(f"  v_cvt_pk_bf16_f32 v{P+2*g}, v{ACC+4*g}, v{ACC+4*g+1}")
        e(f"  v_cvt_pk_bf16_f32 v{P+2*g+1}, v{ACC+4*g+2}, v{ACC+4*g+3}")
    e("  s_mul_i32 s30, s15, 4608")
    e(f"  s_add_u32 s30, s30, {TB}")
    e("  v_mul_u32_u24 v18, 144, v16")
    e("  v_lshl_add_u32 v18, v17, 3, v18")
    e("  v_add_u32 v18, s30, v18")
    for g in range(8):
        e(f"  ds_write_b64 v18, {vr(P+2*g,2)} offset:{16*g}")
    e("  v_lshrrev_b32 v19, 3, v0")
    e("  v_and_b32 v22, 7, v0")
    e("  v_mul_u32_u24 v20, 144, v19")
    e("  v_lshl_add_u32 v20, v22, 4, v20")
    e("  v_add_u32 v20, s30, v20")
    e("  s_waitcnt lgkmcnt(0)")
    for q in range(4):
        e(f"  ds_read_b128 {vr(80+4*q,4)}, v20 offset:{8*144*q}")
    e("  s_lshl_b32 s24, s14, 21")
    e(f"  s_add_u32 s24, s24, {WS_Y}")
    e("  s_lshl_b32 s30, s13, 7")
    e("  s_add_u32 s24, s24, s30")
    e("  s_lshl_b32 s30, s12, 7")
    e("  s_lshl_b32 s31, s15, 5")
    e("  s_add_u32 s30, s30, s31")
    e("  v_add_u32 v21, s30, v19")
    e("  v_lshlrev_b32 v21, 10, v21")
    e("  v_lshl_add_u32 v21, v22, 4, v21")
    for q in range(4):
        e(f"  s_waitcnt lgkmcnt({3-q})")
        e(f"  buffer_store_dwordx4 {vr(80+4*q,4)}, v21, s[20:23], s24 offen sc1")
        if q < 3: e("  v_add_u32 v21, 0x2000, v21")
    e("  s_waitcnt vmcnt(0)")
    e("  s_barrier")
    e(f"  s_load_dwordx2 s[4:5], s[0:1], {KA_X}")
    e(f"  s_load_dwordx8 s[56:63], s[0:1], {KA_WR}")
    e(f"  s_load_dwordx2 s[64:65], s[0:1], {KA_OUT}")
    srd(24, 6, 7, 12 << 20)
    e("  s_lshl_b32 s48, s14, 3")
    e("  s_add_u32 s48, s48, s13")
    e("  s_cmp_lg_u32 s15, 0")
    e("  s_cbranch_scc1 k2_noflag")
    e("  s_lshl_b32 s49, s12, 6")
    e("  s_lshl_b32 s50, s48, 2")
    e("  s_add_u32 s49, s49, s50")
    e(f"  s_add_u32 s49, s49, {WS_FLAG}")
    e("  v_mov_b32 v4, s68" if FUSE else "  v_mov_b32 v4, 1")
    e("  v_mov_b32 v5, 0")
    e("  s_mov_b64 s[50:51], exec")
    e("  s_mov_b64 exec, 1")
    e("  buffer_store_dword v4, v5, s[24:27], s49 offen sc1")
    e("  s_mov_b64 exec, s[50:51]")
    lab("k2_noflag")
    e("  s_waitcnt lgkmcnt(0)")
    srd(20, 4, 5, 2 << 20)
    srd(28, 56, 57, 1024)
    srd(44, 64, 65, 2 << 20)
    e("  v_lshrrev_b32 v1, 5, v0")
    e("  v_and_b32 v2, 31, v0")
    e("  s_lshl_b32 s52, s12, 7")
    e("  s_lshl_b32 s53, s48, 3")
    e("  s_add_u32 s52, s52, s53")
    e("  s_lshl_b32 s53, s15, 1")
    e("  s_add_u32 s52, s52, s53")
    e("  v_add_u32 v1, s52, v1")
    rowmac32_pre()
    if MEGA: mega_gu_dma()
    e("  v_and_b32 v7, 15, v0")
    e("  v_lshlrev_b32 v7, 2, v7")
    e("  s_lshl_b32 s49, s12, 6")
    e(f"  s_add_u32 s49, s49, {WS_FLAG}")
    e("  s_mov_b32 s53, 0")
    lab("k2_poll")
    e("  buffer_load_dword v4, v7, s[24:27], s49 offen sc1")
    e("  s_waitcnt vmcnt(0)")
    e("  v_cmp_ne_u32 s[54:55], s68, v4" if FUSE else "  v_cmp_eq_u32 s[54:55], 0, v4")
    e("  s_nop 3")
    e("  s_cmp_eq_u64 s[54:55], 0")
    e("  s_cbranch_scc1 k2_poll_ok")
    e("  s_add_u32 s53, s53, 1")
    e(f"  s_cmp_gt_u32 s53, {1 << 22}")
    e("  s_cbranch_scc1 k2_poll_ok")
    e("  s_branch k2_poll")
    lab("k2_poll_ok")
    stamp(3)
    rowmac32()
    stamp(4)
    if MEGA:
        mega_tail()
        return
    e("  v_lshlrev_b32 v13, 2, v1")
    e("  v_lshlrev_b32 v14, 3, v1")
    e("  v_mov_b32 v7, v10")
    e("  v_cmp_eq_u32 vcc, 0, v2")
    e("  s_and_saveexec_b64 s[50:51], vcc")
    e(f"  s_mov_b32 s52, {WS_KEY}")
    e("  buffer_store_dword v12, v13, s[24:27], s52 offen")
    e(f"  s_mov_b32 s52, {WS_STAT}")
    e("  buffer_store_dwordx2 v[6:7], v14, s[24:27], s52 offen")
    e("  s_mov_b64 exec, s[50:51]")
    if OPT('K2_NOGU'): return
    e("  s_cmp_ge_u32 s15, 2")
    e("  s_cbranch_scc1 k2_done")
    e("  s_cmp_eq_u32 s15, 0")
    e("  s_cselect_b32 s40, s58, s60")
    e("  s_cselect_b32 s41, s59, s61")
    e(f"  s_mov_b32 s42, {512*1792*2}")
    e("  s_mov_b32 s43, 0x00020000")
    e("  s_and_b32 s52, s2, 7")
    e("  s_lshr_b32 s53, s2, 3")
    e("  v_min_u32 v1, 55, v0")
    e("  v_cmp_lt_u32 vcc, 27, v1")
    e("  s_nop 1")
    e("  v_cndmask_b32 v2, 0, 1, vcc")
    e("  v_mul_u32_u24 v3, 28, v2")
    e("  v_sub_u32 v3, v1, v3")
    e("  v_mul_u32_u24 v2, 3584, v2")
    e("  v_lshl_add_u32 v2, v3, 4, v2")
    e("  s_mul_i32 s54, s52, 448")
    e(f"  s_mul_i32 s55, s53, {16*3584}")
    e("  s_add_u32 s54, s54, s55")
    for q in range(8):
        e(f"  buffer_load_dwordx4 {vr(80+4*q,4)}, v2, s[40:43], s54 offen")
        e(f"  s_add_u32 s54, s54, {2*3584}")

def gen_k2():
    NS = K2_NS
    name = "f_kernel" if FUSE else "k2_kernel"
    YBASE = NS * 16384
    if not FUSE:
        kernel_begin(name)
        e("  s_cmp_ge_u32 s2, 256")
        e("  s_cbranch_scc1 k2_done")
        e(f"  s_load_dwordx4 s[8:11], s[0:1], {KA_WSRE}")
        e(f"  s_load_dwordx2 s[6:7], s[0:1], {KA_WS}")
        e(f"  s_load_dwordx2 s[34:35], s[0:1], {KA_WDN}")
    else:
        e("  s_mov_b32 s71, s15")
    e("  s_and_b32 s12, s2, 7")
    e("  s_lshr_b32 s13, s2, 3")
    e("  s_lshr_b32 s14, s12, 2")
    e("  s_and_b32 s12, s12, 3")
    e("  s_lshl_b32 s12, s12, 2")
    e("  s_lshr_b32 s15, s13, 3")
    e("  s_add_u32 s12, s12, s15")
    e("  s_and_b32 s13, s13, 7")
    if FUSE:
        e("  s_mov_b32 s15, s71")
    else:
        e("  v_lshrrev_b32 v1, 6, v0")
        e("  v_and_b32 v0, 63, v0")
        e("  v_readfirstlane_b32 s15, v1")
    e("  v_lshrrev_b32 v2, 3, v0")
    e("  v_and_b32 v3, 7, v0")
    e("  s_waitcnt lgkmcnt(0)")
    e("  s_cmp_eq_u32 s14, 0")
    e("  s_cselect_b32 s16, s8, s10")
    e("  s_cselect_b32 s17, s9, s11")
    e(f"  s_mov_b32 s18, {2048*2048*2}")
    e("  s_mov_b32 s19, 0x00020000")
    srd(20, 6, 7, 9 << 20)
    e("  s_cmp_lt_u32 s15, 4")
    e("  s_cbranch_scc1 k2_consumer")
    if not FUSE:
        e("  s_cmp_lt_u32 s15, 8")
        e("  s_cbranch_scc1 k2_loader")
    if not FUSE: helper_wave()
    lab("k2_loader")
    e("  s_sub_u32 s15, s15, 4")
    for ii in range(4):
        e(f"  s_lshl_b32 s24, s15, 5")
        e(f"  s_add_u32 s24, s24, {8*ii}")
        e(f"  v_add_u32 v10, s24, v2")
        e(f"  v_lshrrev_b32 v11, 1, v10")
        e(f"  v_and_b32 v11, 7, v11")
        e(f"  v_xor_b32 v11, v11, v3")
        e(f"  s_lshl_b32 s24, s12, 7")
        e(f"  v_add_u32 v10, s24, v10")
        e(f"  v_lshlrev_b32 v10, 12, v10")
        e(f"  v_lshl_add_u32 v{4+ii}, v11, 4, v10")
    e("  s_lshl_b32 s24, s15, 11")
    e("  v_lshlrev_b32 v8, 4, v0")
    e("  v_add_u32 v8, s24, v8")
    e("  v_add_u32 v9, 1024, v8")
    e("  s_mov_b32 s25, 0")
    e("  s_lshl_b32 s26, s14, 3")
    e("  s_add_u32 s26, s26, s13")
    e("  s_lshl_b32 s26, s26, 18")
    e("  s_lshl_b32 s27, s15, 12")
    e("  s_lshl_b32 s28, s15, 11")
    e(f"  s_add_u32 s28, s28, {YBASE}")
    YSC = " sc1" if FUSE else ""
    def dmaY(slot, so="s26"):
        for i in range(2):
            e(f"  s_add_u32 m0, s28, {slot*8192 + i*1024}")
            e("  s_nop 0")
            e(f"  buffer_load_dwordx4 v{8+i}, s[20:23], {so} offen{YSC} lds")
    def dmaW(slot):
        for i in range(4):
            e(f"  s_add_u32 m0, s27, {slot*16384 + i*1024}")
            e("  s_nop 0")
            e(f"  buffer_load_dwordx4 v{4+i}, s[16:19], s25 offen lds")
    def adv():
        e("  s_add_u32 s25, s25, 128")
        e("  s_and_b32 s25, s25, 4095")
        e("  s_lshl_b32 s29, s25, 6")
        e("  s_add_u32 s26, s33, s29")
    def dma(slot):
        dmaY(slot); dmaW(slot); adv()
    e("  s_mov_b32 s33, s26")
    e(f"  s_mul_i32 s25, s13, {128*OPT('K2_ROT', 4)}")
    e("  s_and_b32 s25, s25, 4095")
    e("  s_lshl_b32 s29, s25, 6")
    e("  s_add_u32 s26, s33, s29")
    if not FUSE:
        for st in range(NS):
            dma(st)
        e(f"  s_waitcnt vmcnt({6*(NS-1)})")
        e("  s_barrier")
        for ks in range(31):
            ahead = min(ks + NS - 1, 31) - (ks + 1)
            e(f"  s_waitcnt vmcnt({6*ahead})")
            e("  s_barrier")
            if ks + NS < 32:
                dma(ks % NS)
    else:
        e("  s_mov_b32 s30, s25")
        e("  s_waitcnt vmcnt(0)")
        e("  s_barrier")
        PRE = OPT('F_PRE', 2)
        for st in range(PRE):
            dmaW(st); adv()
        e("  s_barrier")
        for st in range(PRE):
            e("  s_lshl_b32 s29, s30, 6")
            e("  s_add_u32 s31, s33, s29")
            dmaY(st, "s31")
            e("  s_add_u32 s30, s30, 128")
            e("  s_and_b32 s30, s30, 4095")
        for st in range(PRE, NS):
            dma(st)
        e(f"  s_waitcnt vmcnt({2*(PRE-1) + 6*(NS-PRE)})")
        e("  s_barrier")
        for ks in range(31):
            if ks + 1 <= PRE - 1:
                allowed = 2 * (PRE - 1 - (ks + 1)) + 6 * (NS - PRE) + 6 * ks
            else:
                allowed = 6 * (min(ks + NS - 1, 31) - (ks + 1))
            e(f"  s_waitcnt vmcnt({allowed})")
            e("  s_barrier")
            if ks + NS < 32:
                dma(ks % NS)
    e("  s_branch k2_done")
    lab("k2_consumer")
    if FUSE:
        e("  s_cmp_lg_u32 s15, 0")
        e("  s_cbranch_scc1 f_noep")
        get_epoch("co")
        e("  v_mov_b32 v4, s68")
        e(f"  v_mov_b32 v5, {K2_NS*24576}")
        e("  ds_write_b32 v5, v4")
        e("  s_waitcnt lgkmcnt(0)")
        lab("f_noep")
        e("  s_waitcnt vmcnt(0)")
        e("  s_barrier")
        e("  s_cmp_lg_u32 s15, 0")
        e("  s_cbranch_scc1 f_noflagA")
        e("  v_mov_b32 v4, s68")
        e("  v_mov_b32 v5, 0")
        e("  s_mov_b64 s[36:37], exec")
        e("  s_mov_b64 exec, 1")
        e("  buffer_store_dword v4, v5, s[20:23], s70 offen sc1")
        e("  s_mov_b64 exec, s[36:37]")
        lab("f_noflagA")
        e(f"  v_mov_b32 v158, {K2_NS*24576}")
        e("  ds_read_b32 v159, v158")
        e("  s_waitcnt lgkmcnt(0)")
        e("  v_readfirstlane_b32 s68, v159")
        e("  s_cmp_lg_u32 s15, 1")
        e("  s_cbranch_scc1 f_pollA_ok")
        e("  s_lshl_b32 s31, s14, 2")
        e("  s_lshr_b32 s32, s13, 1")
        e("  s_add_u32 s31, s31, s32")
        e("  s_lshl_b32 s31, s31, 7")
        e(f"  s_add_u32 s31, s31, {WS_FA}")
        e("  v_and_b32 v10, 31, v0")
        e("  v_lshlrev_b32 v10, 2, v10")
        e("  s_mov_b32 s69, 0")
        lab("f_pollA")
        e("  buffer_load_dword v11, v10, s[20:23], s31 offen sc1")
        e("  s_waitcnt vmcnt(0)")
        e("  v_cmp_ne_u32 s[36:37], s68, v11")
        e("  s_nop 3")
        e("  s_cmp_eq_u64 s[36:37], 0")
        e("  s_cbranch_scc1 f_pollA_ok")
        e("  s_add_u32 s69, s69, 1")
        e(f"  s_cmp_gt_u32 s69, {1 << 22}")
        e("  s_cbranch_scc1 f_pollA_ok")
        e("  s_branch f_pollA")
        lab("f_pollA_ok")
        stamp(1)
        e("  s_barrier")
    e("  v_and_b32 v16, 31, v0")
    e("  v_lshrrev_b32 v17, 5, v0")
    e("  s_lshl_b32 s24, s15, 5")
    e("  v_add_u32 v18, s24, v16")
    e("  v_lshrrev_b32 v19, 1, v18")
    e("  v_and_b32 v19, 7, v19")
    e("  v_xor_b32 v19, v19, v17")
    e("  v_lshlrev_b32 v18, 7, v18")
    e("  v_lshl_add_u32 v20, v19, 4, v18")
    for kk in range(1, 4):
        e(f"  v_xor_b32 v{20+kk}, {32*kk}, v20")
    for kk in range(4):
        e(f"  v_add_u32 v{28+kk}, 0x10000, v{20+kk}")
    e("  v_lshrrev_b32 v19, 1, v16")
    e("  v_and_b32 v19, 7, v19")
    e("  v_xor_b32 v19, v19, v17")
    e("  v_lshlrev_b32 v18, 7, v16")
    e("  v_lshl_add_u32 v24, v19, 4, v18")
    e(f"  v_add_u32 v24, {YBASE}, v24")
    for kk in range(1, 4):
        e(f"  v_xor_b32 v{24+kk}, {32*kk}, v24")
    ACC = 32
    for i in range(32):
        e(f"  v_mov_b32 v{ACC+i}, 0")
    def FW(st): return 64 + 48 * (st % 2)
    def FY(st): return 80 + 48 * (st % 2)
    def rd(st, kk):
        slot = st % NS
        wb = 20 if slot < 4 else 28
        e(f"  ds_read_b128 {vr(FW(st)+4*kk,4)}, v{wb+kk} offset:{16384*(slot%4)}")
        e(f"  ds_read_b128 {vr(FY(st)+8*kk,4)}, v{24+kk} offset:{8192*slot}")
        e(f"  ds_read_b128 {vr(FY(st)+8*kk+4,4)}, v{24+kk} offset:{8192*slot+4096}")
    e("  s_barrier")
    stamp(2)
    for kk in range(4):
        rd(0, kk)
    def mf(st, kk, half):
        e(f"  v_mfma_f32_32x32x16_bf16 {vr(ACC+16*half,16)}, {vr(FY(st)+8*kk+4*half,4)}, {vr(FW(st)+4*kk,4)}, {vr(ACC+16*half,16)}")
    for ks in range(32):
        more = ks + 1 < 32
        e("  s_waitcnt lgkmcnt(0)")
        if more and not OPT('K2_NOBAR'):
            e("  s_barrier")
        if OPT('K2_NOBAR') == 2: continue
        r = (lambda kk: rd(ks + 1, kk)) if more else (lambda kk: None)
        mf(ks, 0, 0); r(0); mf(ks, 0, 1); r(1)
        mf(ks, 1, 0); r(2); mf(ks, 1, 1); r(3)
        mf(ks, 2, 0); mf(ks, 2, 1)
        mf(ks, 3, 0); mf(ks, 3, 1)
    stamp(6)
    if not OPT('K2T1', 1):
        k2_epilogue_plain(ACC)
    else:
        k2_epilogue_fused(ACC)
    lab("k2_done")
    kernel_end()
    e("  s_endpgm")
    kernel_desc(name, 164 if FUSE else 160)

def gen_t1():
    name = "t1_kernel"
    kernel_begin(name)
    e("  s_cmp_ge_u32 s2, 256")
    e("  s_cbranch_scc1 t1_done")
    e(f"  s_load_dwordx2 s[4:5], s[0:1], {KA_X}")
    e(f"  s_load_dwordx2 s[6:7], s[0:1], {KA_WS}")
    e(f"  s_load_dwordx2 s[8:9], s[0:1], {KA_WR}")
    e(f"  s_load_dwordx2 s[10:11], s[0:1], {KA_OUT}")
    if OPT('T1_PF', 1):
        e(f"  s_load_dwordx4 s[32:35], s[0:1], {KA_WG}")
        e("  v_lshrrev_b32 v1, 6, v0")
        e("  s_nop 0")
        e("  v_readfirstlane_b32 s3, v1")
        e("  s_cmp_lg_u32 s3, 2")
        e("  s_cbranch_scc1 t1_main")
        e("  s_waitcnt lgkmcnt(0)")
        srd(40, 32, 33, 512*1792*2)
        srd(44, 34, 35, 512*1792*2)
        e("  v_and_b32 v0, 63, v0")
        e("  s_and_b32 s52, s2, 7")
        e("  s_lshr_b32 s53, s2, 3")
        e("  v_min_u32 v1, 55, v0")
        e("  v_cmp_lt_u32 vcc, 27, v1")
        e("  v_cndmask_b32 v2, 0, 1, vcc")
        e("  v_mul_u32_u24 v3, 28, v2")
        e("  v_sub_u32 v3, v1, v3")
        e("  v_mul_u32_u24 v2, 3584, v2")
        e("  v_lshl_add_u32 v2, v3, 4, v2")
        e("  s_mul_i32 s54, s52, 448")
        e(f"  s_mul_i32 s55, s53, {16*3584}")
        e("  s_add_u32 s54, s54, s55")
        for q in range(8):
            e(f"  buffer_load_dwordx4 {vr(8+8*q,4)}, v2, s[40:43], s54 offen")
            e(f"  buffer_load_dwordx4 {vr(12+8*q,4)}, v2, s[44:47], s54 offen")
            e(f"  s_add_u32 s54, s54, {2*3584}")
        e("  s_branch t1_done")
        lab("t1_main")
    e("  v_lshrrev_b32 v1, 4, v0")
    e("  v_and_b32 v2, 15, v0")
    e("  s_lshl_b32 s3, s2, 3")
    e("  v_add_u32 v1, s3, v1")
    e("  v_lshlrev_b32 v3, 10, v1")
    e("  v_lshl_add_u32 v3, v2, 4, v3")
    e("  v_lshlrev_b32 v4, 4, v2")
    e("  s_waitcnt lgkmcnt(0)")
    srd(12, 4, 5, 2 << 20)
    srd(16, 6, 7, 9 << 20)
    srd(20, 8, 9, 1024)
    srd(24, 10, 11, 2 << 20)
    e(f"  s_mov_b32 s28, {WS_Y}")
    e(f"  s_mov_b32 s29, {WS_Y + (2<<20)}")
    YR, YI, XX, WR = 16, 32, 48, 64
    for j in range(4):
        e(f"  buffer_load_dwordx4 {vr(YR+4*j,4)}, v3, s[16:19], s28 offen offset:{256*j}")
        e(f"  buffer_load_dwordx4 {vr(YI+4*j,4)}, v3, s[16:19], s29 offen offset:{256*j}")
        e(f"  buffer_load_dwordx4 {vr(XX+4*j,4)}, v3, s[12:15], 0 offen offset:{256*j}")
    for j in range(4):
        e(f"  buffer_load_dwordx4 {vr(WR+4*j,4)}, v4, s[20:23], 0 offen offset:{256*j}")
    H = 80
    T = 112
    e("  v_mov_b32 v14, 0")
    e("  v_mov_b32 v15, 0")
    for j in range(4):
        e(f"  s_waitcnt vmcnt({4 + 3*(3-j)})")
        for q in range(4):
            i = 4*j + q
            e(f"  v_lshlrev_b32 v{T}, 16, v{YR+i}")
            e(f"  v_and_b32 v{T+1}, 0xffff0000, v{YR+i}")
            e(f"  v_lshlrev_b32 v{T+2}, 16, v{YI+i}")
            e(f"  v_and_b32 v{T+3}, 0xffff0000, v{YI+i}")
            e(f"  v_pk_add_f32 {vr(T,2)}, {vr(T,2)}, {vr(T+2,2)} neg_lo:[0,1] neg_hi:[0,1]")
            e(f"  v_cvt_pk_bf16_f32 v{T}, v{T}, v{T+1}")
            e(f"  v_and_b32 v{T+1}, 0xffff0000, v{T}")
            e(f"  v_lshlrev_b32 v{T}, 16, v{T}")
            e(f"  v_lshlrev_b32 v{T+2}, 16, v{XX+i}")
            e(f"  v_and_b32 v{T+3}, 0xffff0000, v{XX+i}")
            e(f"  v_pk_add_f32 {vr(T,2)}, {vr(T,2)}, {vr(T+2,2)}")
            e(f"  v_cvt_pk_bf16_f32 v{T}, v{T}, v{T+1}")
            e(f"  v_lshlrev_b32 v{H+2*i}, 16, v{T}")
            e(f"  v_and_b32 v{H+2*i+1}, 0xffff0000, v{T}")
            e(f"  v_pk_add_f32 v[14:15], v[14:15], {vr(H+2*i,2)}")
    e("  v_add_f32 v5, v14, v15")
    reduce16(5)
    e("  v_mul_f32 v5, 0x3b000000, v5")
    e("  v_cvt_pk_bf16_f32 v6, v5, v5")
    e("  v_lshlrev_b32 v6, 16, v6")
    e("  v_sub_f32 v8, 0, v6")
    e("  v_mov_b32 v9, v8")
    e("  v_mov_b32 v10, 0")
    e("  v_mov_b32 v11, 0")
    D = 116
    for i in range(16):
        e(f"  v_pk_add_f32 {vr(D+2*i,2)}, {vr(H+2*i,2)}, v[8:9]")
        e(f"  v_pk_fma_f32 v[10:11], {vr(D+2*i,2)}, {vr(D+2*i,2)}, v[10:11]")
    e("  v_add_f32 v10, v10, v11")
    reduce16(10)
    e("  v_sub_f32 v11, v5, v6")
    e("  v_mul_f32 v11, v11, v11")
    e("  v_mul_f32 v10, 0x3b000000, v10")
    e("  v_sub_f32 v10, v10, v11")
    e("  v_max_f32 v10, 0, v10")
    e("  v_cvt_pk_bf16_f32 v10, v10, v10")
    e("  v_lshlrev_b32 v10, 16, v10")
    e("  v_add_f32 v10, 0x3727c5ac, v10")
    e("  v_cvt_pk_bf16_f32 v10, v10, v10")
    e("  v_lshlrev_b32 v10, 16, v10")
    e("  v_sqrt_f32 v10, v10")
    e("  s_nop 0")
    e("  v_cvt_pk_bf16_f32 v10, v10, v10")
    e("  v_lshlrev_b32 v10, 16, v10")
    e("  v_rcp_f32 v10, v10")
    e("  s_nop 0")
    e("  v_mov_b32 v11, v10")
    e("  v_mov_b32 v12, 0")
    e("  s_waitcnt vmcnt(0)")
    O = 16
    for i in range(16):
        e(f"  v_cvt_pk_bf16_f32 v{T}, v{D+2*i}, v{D+2*i+1}")
        e(f"  v_lshlrev_b32 v{D+2*i}, 16, v{T}")
        e(f"  v_and_b32 v{D+2*i+1}, 0xffff0000, v{T}")
        e(f"  v_pk_mul_f32 {vr(D+2*i,2)}, {vr(D+2*i,2)}, v[10:11]")
        e(f"  v_cvt_pk_bf16_f32 v{T}, v{D+2*i}, v{D+2*i+1}")
        e(f"  v_dot2_f32_bf16 v12, v{T}, v{WR+i}, v12")
        e(f"  v_lshlrev_b32 v{D+2*i}, 16, v{T}")
        e(f"  v_and_b32 v{D+2*i+1}, 0xffff0000, v{T}")
        e(f"  v_pk_add_f32 {vr(D+2*i,2)}, {vr(D+2*i,2)}, {vr(H+2*i,2)}")
        e(f"  v_cvt_pk_bf16_f32 v{O+i}, v{D+2*i}, v{D+2*i+1}")
    for j in range(4):
        e(f"  buffer_store_dwordx4 {vr(O+4*j,4)}, v3, s[24:27], 0 offen offset:{256*j}")
    e("  s_nop 3")
    reduce16(12)
    e("  v_cvt_pk_bf16_f32 v12, v12, v12")
    e("  v_lshlrev_b32 v12, 16, v12")
    e("  v_ashrrev_i32 v13, 31, v12")
    e("  v_or_b32 v13, 0x80000000, v13")
    e("  v_xor_b32 v12, v12, v13")
    e("  v_and_b32 v12, 0xffff0000, v12")
    e("  v_sub_u32 v13, 0xffff, v1")
    e("  v_or_b32 v12, v12, v13")
    e("  v_cmp_eq_u32 vcc, 0, v2")
    e("  s_and_saveexec_b64 s[30:31], vcc")
    e("  v_lshlrev_b32 v13, 2, v1")
    e(f"  s_mov_b32 s28, {WS_KEY}")
    e("  buffer_store_dword v12, v13, s[16:19], s28 offen")
    e("  v_lshlrev_b32 v13, 3, v1")
    e("  v_mov_b32 v7, v10")
    e(f"  s_mov_b32 s28, {WS_STAT}")
    e("  buffer_store_dwordx2 v[6:7], v13, s[16:19], s28 offen")
    lab("t1_done")
    kernel_end()
    e("  s_endpgm")
    kernel_desc(name, 148)

def recompute(YR, YI, XX, nd, NEGM, RINV, HOUT, XNOUT, T):
    for i in range(nd):
        e(f"  v_lshlrev_b32 v{T}, 16, v{YR+i}")
        e(f"  v_and_b32 v{T+1}, 0xffff0000, v{YR+i}")
        e(f"  v_lshlrev_b32 v{T+2}, 16, v{YI+i}")
        e(f"  v_and_b32 v{T+3}, 0xffff0000, v{YI+i}")
        e(f"  v_pk_add_f32 {vr(T,2)}, {vr(T,2)}, {vr(T+2,2)} neg_lo:[0,1] neg_hi:[0,1]")
        e(f"  v_cvt_pk_bf16_f32 v{T}, v{T}, v{T+1}")
        e(f"  v_and_b32 v{T+1}, 0xffff0000, v{T}")
        e(f"  v_lshlrev_b32 v{T}, 16, v{T}")
        e(f"  v_lshlrev_b32 v{T+2}, 16, v{XX+i}")
        e(f"  v_and_b32 v{T+3}, 0xffff0000, v{XX+i}")
        e(f"  v_pk_add_f32 {vr(T,2)}, {vr(T,2)}, {vr(T+2,2)}")
        e(f"  v_cvt_pk_bf16_f32 v{T}, v{T}, v{T+1}")
        e(f"  v_lshlrev_b32 v{HOUT+2*i}, 16, v{T}")
        e(f"  v_and_b32 v{HOUT+2*i+1}, 0xffff0000, v{T}")
        e(f"  v_pk_add_f32 {vr(T,2)}, {vr(HOUT+2*i,2)}, {vr(NEGM,2)}")
        e(f"  v_cvt_pk_bf16_f32 v{T}, v{T}, v{T+1}")
        e(f"  v_and_b32 v{T+1}, 0xffff0000, v{T}")
        e(f"  v_lshlrev_b32 v{T}, 16, v{T}")
        e(f"  v_pk_mul_f32 {vr(T,2)}, {vr(T,2)}, {vr(RINV,2)}")
        e(f"  v_cvt_pk_bf16_f32 v{XNOUT+i}, v{T}, v{T+1}")

XS_STRIDE = 1040
def gen_t2():
    name = "t2_kernel"
    kernel_begin(name)
    LDS_G, LDS_U, LDS_XS, LDS_C = 0, 8192, 16384, 16384 + 8*XS_STRIDE
    e("  s_cmp_ge_u32 s2, 224")
    e("  s_cbranch_scc1 t2_done")
    e(f"  s_load_dwordx2 s[4:5], s[0:1], {KA_X}")
    e(f"  s_load_dwordx2 s[6:7], s[0:1], {KA_WS}")
    e(f"  s_load_dwordx4 s[8:11], s[0:1], {KA_WG}")
    e("  s_and_b32 s3, s2, 7")
    e("  s_mul_i32 s3, s3, 28")
    e("  s_lshr_b32 s12, s2, 3")
    e("  s_add_u32 s3, s3, s12")
    e("  v_mov_b32 v40, v0")
    e("  v_lshrrev_b32 v1, 6, v0")
    e("  v_and_b32 v0, 63, v0")
    e("  v_readfirstlane_b32 s13, v1")
    e("  s_waitcnt lgkmcnt(0)")
    srd(16, 4, 5, 2 << 20)
    srd(20, 6, 7, 9 << 20)
    srd(24, 8, 9, 512*1792*2)
    srd(28, 10, 11, 512*1792*2)
    e("  v_lshlrev_b32 v2, 5, v40")
    e(f"  s_mov_b32 s14, {WS_KEY}")
    e("  buffer_load_dwordx4 v[8:11], v2, s[20:23], s14 offen")
    e("  buffer_load_dwordx4 v[12:15], v2, s[20:23], s14 offen offset:16")
    e("  s_lshl_b32 s15, s3, 4")
    e("  s_movk_i32 s32, 3584")
    for ii in range(2):
        e(f"  s_lshl_b32 s33, s13, 7")
        e(f"  s_add_u32 s33, s33, {64*ii}")
        e(f"  v_add_u32 v3, s33, v0")
        e(f"  v_mul_lo_u32 v3, v3, s32")
        e(f"  s_lshl_b32 s34, s13, 11")
        e(f"  s_add_u32 m0, s34, {LDS_G + 1024*ii}")
        e("  s_nop 0")
        e(f"  buffer_load_dwordx4 v3, s[24:27], s15 offen lds")
        e(f"  s_add_u32 m0, s34, {LDS_U + 1024*ii}")
        e("  s_nop 0")
        e(f"  buffer_load_dwordx4 v3, s[28:31], s15 offen lds")
    stamp(1)
    e("  s_waitcnt vmcnt(4)")
    stamp(2)
    e("  v_mov_b32 v20, 0")
    for rnd in range(8):
        e("  v_max3_u32 v16, v8, v9, v10")
        e("  v_max3_u32 v17, v11, v12, v13")
        e("  v_max3_u32 v16, v16, v14, v15")
        e("  v_max_u32 v16, v16, v17")
        e("  s_nop 1")
        e("  v_max_u32_dpp v16, v16, v16 quad_perm:[1,0,3,2] row_mask:0xf bank_mask:0xf")
        e("  s_nop 1")
        e("  v_max_u32_dpp v16, v16, v16 quad_perm:[2,3,0,1] row_mask:0xf bank_mask:0xf")
        e("  s_nop 1")
        e("  v_max_u32_dpp v16, v16, v16 row_half_mirror row_mask:0xf bank_mask:0xf")
        e("  s_nop 1")
        e("  v_max_u32_dpp v16, v16, v16 row_mirror row_mask:0xf bank_mask:0xf")
        e("  s_nop 1")
        e("  v_readlane_b32 s36, v16, 0")
        e("  v_readlane_b32 s37, v16, 16")
        e("  v_readlane_b32 s38, v16, 32")
        e("  v_readlane_b32 s39, v16, 48")
        e("  s_max_u32 s36, s36, s37")
        e("  s_max_u32 s38, s38, s39")
        e("  s_max_u32 s36, s36, s38")
        e(f"  v_writelane_b32 v20, s36, {rnd}")
        if rnd < 7:
            for k in range(8):
                e(f"  v_cmp_ne_u32 vcc, s36, v{8+k}")
                e("  s_nop 1")
                e(f"  v_cndmask_b32 v{8+k}, 0, v{8+k}, vcc")
    e("  s_lshl_b32 s33, s13, 5")
    e(f"  s_add_u32 s33, s33, {LDS_C}")
    e("  v_lshlrev_b32 v3, 2, v0")
    e("  v_add_u32 v3, s33, v3")
    e("  v_cmp_gt_u32 vcc, 8, v0")
    e("  s_and_saveexec_b64 s[40:41], vcc")
    e("  ds_write_b32 v3, v20")
    e("  s_mov_b64 exec, s[40:41]")
    e("  s_waitcnt lgkmcnt(0)")
    e("  s_barrier")
    e("  v_and_b32 v3, 31, v0")
    e("  v_lshlrev_b32 v3, 2, v3")
    e(f"  ds_read_b32 v21, v3 offset:{LDS_C}")
    e("  v_mov_b32 v22, 0")
    e("  s_waitcnt lgkmcnt(0)")
    for i in range(32):
        e(f"  v_readlane_b32 s36, v21, {i}")
        e("  s_nop 1")
        e("  v_cmp_gt_u32 vcc, s36, v21")
        e("  s_nop 1")
        e("  v_addc_co_u32 v22, vcc, 0, v22, vcc")
    e("  v_cmp_gt_u32 vcc, 8, v22")
    e("  v_cmp_gt_u32 s[42:43], 32, v0")
    e("  s_and_b64 vcc, vcc, s[42:43]")
    e("  v_lshlrev_b32 v3, 2, v22")
    e("  s_and_saveexec_b64 s[40:41], vcc")
    e(f"  ds_write_b32 v3, v21 offset:{LDS_C+128}")
    e("  s_mov_b64 exec, s[40:41]")
    e("  s_waitcnt lgkmcnt(0)")
    e("  s_barrier")
    stamp(3)
    e("  v_lshrrev_b32 v4, 5, v40")
    e("  v_and_b32 v5, 31, v40")
    e("  v_lshlrev_b32 v3, 2, v4")
    e(f"  ds_read_b32 v6, v3 offset:{LDS_C+128}")
    e("  s_waitcnt lgkmcnt(0)")
    e("  s_cmp_lg_u32 s3, 0")
    e("  s_cbranch_scc1 t2_nopub")
    e("  v_cmp_eq_u32 vcc, 0, v5")
    e("  s_and_saveexec_b64 s[40:41], vcc")
    e(f"  s_mov_b32 s14, {WS_IDX}")
    e("  buffer_store_dword v6, v3, s[20:23], s14 offen")
    e("  s_mov_b64 exec, s[40:41]")
    lab("t2_nopub")
    e("  v_and_b32 v6, 0xffff, v6")
    e("  v_sub_u32 v6, 0xffff, v6")
    e("  v_lshlrev_b32 v7, 10, v6")
    e("  v_lshl_add_u32 v7, v5, 4, v7")
    e(f"  s_mov_b32 s14, {WS_Y}")
    e(f"  s_mov_b32 s15, {WS_Y + (2<<20)}")
    YR, YI, XX = 24, 32, 44
    for j in range(2):
        e(f"  buffer_load_dwordx4 {vr(YR+4*j,4)}, v7, s[20:23], s14 offen offset:{512*j}")
        e(f"  buffer_load_dwordx4 {vr(YI+4*j,4)}, v7, s[20:23], s15 offen offset:{512*j}")
        e(f"  buffer_load_dwordx4 {vr(XX+4*j,4)}, v7, s[16:19], 0 offen offset:{512*j}")
    e("  v_lshlrev_b32 v3, 3, v6")
    e(f"  s_mov_b32 s14, {WS_STAT}")
    e("  buffer_load_dwordx2 v[52:53], v3, s[20:23], s14 offen")
    e("  s_waitcnt vmcnt(0)")
    stamp(4)
    e("  v_sub_f32 v54, 0, v52")
    e("  v_mov_b32 v55, v54")
    e("  v_mov_b32 v52, v53")
    recompute(YR, YI, XX, 8, 54, 52, 64, 80, 56)
    e(f"  v_mul_u32_u24 v3, {XS_STRIDE}, v4")
    e("  v_lshl_add_u32 v3, v5, 4, v3")
    e(f"  ds_write_b128 v3, v[80:83] offset:{LDS_XS}")
    e(f"  ds_write_b128 v3, v[84:87] offset:{LDS_XS+512}")
    e("  s_waitcnt lgkmcnt(0)")
    e("  s_barrier")
    e("  s_cmp_lg_u32 s13, 0")
    e("  s_cbranch_scc1 t2_done")
    stamp(5)
    e("  v_and_b32 v3, 7, v0")
    e(f"  v_mul_u32_u24 v3, {XS_STRIDE}, v3")
    e("  v_lshrrev_b32 v4, 4, v0")
    e("  v_lshl_add_u32 v3, v4, 4, v3")
    e("  v_and_b32 v5, 15, v0")
    e("  v_lshrrev_b32 v5, 2, v5")
    e("  v_lshl_add_u32 v5, v4, 3, v5")
    e("  v_lshlrev_b32 v5, 4, v5")
    e("  v_and_b32 v6, 1, v0")
    e("  v_lshl_add_u32 v5, v6, 3, v5")
    e("  v_and_b32 v6, 2, v0")
    e("  v_lshl_add_u32 v5, v6, 12, v5")
    for i in range(4):
        e(f"  v_mov_b32 v{8+i}, 0")
    FA, FB = 64, 128
    for st in range(16):
        e(f"  ds_read_b128 {vr(FA+4*st,4)}, v3 offset:{LDS_XS + 64*st}")
        e(f"  ds_read_b64_tr_b16 {vr(FB+4*st,2)}, v5 offset:{512*st}")
        e(f"  ds_read_b64_tr_b16 {vr(FB+4*st+2,2)}, v5 offset:{512*st+64}")
        if st % 4 == 3:
            e("  s_waitcnt lgkmcnt(0)")
            for s2 in range(st-3, st+1):
                e(f"  v_mfma_f32_16x16x32_bf16 v[8:11], {vr(FA+4*s2,4)}, {vr(FB+4*s2,4)}, v[8:11]")
    e("  s_nop 15")
    for i in range(4):
        e(f"  v_cvt_pk_bf16_f32 v{8+i}, v{8+i}, v{8+i}")
        e(f"  v_lshlrev_b32 v{8+i}, 16, v{8+i}")
    e("  s_nop 1")
    for i in range(4):
        e(f"  v_mov_b32_dpp v{12+i}, v{8+i} row_ror:8 row_mask:0xf bank_mask:0xf")
    for i in range(4):
        e(f"  v_mul_f32 v16, 0xbfb8aa3b, v{8+i}")
        e("  v_exp_f32 v16, v16")
        e("  s_nop 0")
        e("  v_add_f32 v16, 1.0, v16")
        e("  v_rcp_f32 v16, v16")
        e("  s_nop 0")
        e(f"  v_mul_f32 v16, v{8+i}, v16")
        e("  v_cvt_pk_bf16_f32 v16, v16, v16")
        e("  v_lshlrev_b32 v16, 16, v16")
        e(f"  v_mul_f32 v16, v16, v{12+i}")
        e(f"  v_cvt_pk_bf16_f32 v{20+i}, v16, v16")
    stamp(6)
    e("  v_and_b32 v5, 15, v0")
    e("  v_cmp_gt_u32 vcc, 8, v5")
    e("  v_cmp_gt_u32 s[42:43], 32, v0")
    e("  s_and_b64 vcc, vcc, s[42:43]")
    e("  s_and_saveexec_b64 s[40:41], vcc")
    e("  v_lshlrev_b32 v4, 2, v4")
    e("  v_mul_u32_u24 v4, 3584, v4")
    e("  v_lshl_add_u32 v4, v5, 1, v4")
    e("  s_lshl_b32 s15, s3, 4")
    e(f"  s_add_u32 s15, s15, {WS_GU}")
    for i in range(4):
        e(f"  buffer_store_short v{20+i}, v4, s[20:23], s15 offen offset:{3584*i if 3584*i < 4096 else 0}") if False else None
    for i in range(4):
        e(f"  buffer_store_short v{20+i}, v4, s[20:23], s15 offen")
        if i < 3:
            e("  v_add_u32 v4, 3584, v4")
    lab("t2_done")
    kernel_end()
    e("  s_endpgm")
    kernel_desc(name, 192)

def gen_t3():
    name = "t3_kernel"
    kernel_begin(name)
    LDS_W, LDS_R = 0, 28672
    e("  s_cmp_ge_u32 s2, 64")
    e("  s_cbranch_scc1 t3_done")
    e(f"  s_load_dwordx2 s[4:5], s[0:1], {KA_X}")
    e(f"  s_load_dwordx2 s[6:7], s[0:1], {KA_WS}")
    e(f"  s_load_dwordx2 s[10:11], s[0:1], {KA_OUT}")
    e("  s_mov_b32 s3, s2")
    e("  v_lshrrev_b32 v1, 6, v0")
    e("  v_and_b32 v0, 63, v0")
    e("  v_readfirstlane_b32 s13, v1")
    e("  v_lshrrev_b32 v5, 4, v0")
    e("  s_waitcnt lgkmcnt(0)")
    srd(16, 4, 5, 2 << 20)
    srd(20, 6, 7, 12 << 20)
    srd(28, 10, 11, 2 << 20)
    e("  v_and_b32 v6, 1, v5")
    e("  v_lshlrev_b32 v6, 4, v6")
    e(f"  s_mov_b32 s14, {WS_IDX}")
    e("  buffer_load_dwordx4 v[24:27], v6, s[20:23], s14 offen")
    e("  s_lshl_b32 s15, s3, 4")
    e("  v_lshlrev_b32 v3, 4, v0")
    e("  s_mul_i32 s34, s13, 7168")
    e("  s_mul_i32 s33, s3, 28672")
    e("  s_add_u32 s33, s33, s34")
    e(f"  s_add_u32 s33, s33, {WS_WDB}")
    for i in range(7):
        e(f"  s_add_u32 m0, s34, {LDS_W + 1024*i}")
        e("  s_nop 0")
        e(f"  buffer_load_dwordx4 v3, s[20:23], s33 offen lds")
        e("  s_add_u32 s33, s33, 1024")
    e("  v_and_b32 v4, 7, v0")
    e("  v_mul_u32_u24 v4, 3584, v4")
    e("  v_lshl_add_u32 v4, v5, 4, v4")
    e("  s_mul_i32 s14, s13, 896")
    e(f"  s_add_u32 s14, s14, {WS_GU}")
    FA = 64
    for st in range(14):
        e(f"  buffer_load_dwordx4 {vr(FA+4*st,4)}, v4, s[20:23], s14 offen offset:{64*st}")
    for i in range(4):
        e(f"  v_mov_b32 v{28+i}, 0")
    e("  s_cmp_lg_u32 s13, 0")
    e("  s_cbranch_scc1 t3_noepi")
    e("  s_waitcnt vmcnt(21)")
    e("  v_and_b32 v6, 7, v0")
    e(f"  s_mov_b32 s36, {WS_Y}")
    e(f"  s_mov_b32 s37, {WS_Y + (2<<20)}")
    e(f"  s_mov_b32 s38, {WS_STAT}")
    for i in range(4):
        e(f"  v_and_b32 v{28+i}, 0xffff, v{24+i}")
        e(f"  v_sub_u32 v{28+i}, 0xffff, v{28+i}")
        e(f"  v_lshlrev_b32 v{32+i}, 3, v{28+i}")
        e(f"  v_lshlrev_b32 v{28+i}, 10, v{28+i}")
        e(f"  v_lshl_add_u32 v{28+i}, v6, 1, v{28+i}")
        e(f"  v_add_u32 v{28+i}, s15, v{28+i}")
        e(f"  buffer_load_ushort v{36+i}, v{28+i}, s[20:23], s36 offen")
        e(f"  buffer_load_ushort v{40+i}, v{28+i}, s[20:23], s37 offen")
        e(f"  buffer_load_ushort v{44+i}, v{28+i}, s[16:19], 0 offen")
        e(f"  buffer_load_dwordx2 {vr(48+2*i,2)}, v{32+i}, s[20:23], s38 offen")
    lab("t3_noepi")
    e("  v_and_b32 v7, 15, v0")
    e("  v_lshrrev_b32 v7, 2, v7")
    e("  v_lshl_add_u32 v7, v5, 3, v7")
    e("  v_lshlrev_b32 v7, 4, v7")
    e("  v_and_b32 v60, 1, v0")
    e("  v_lshl_add_u32 v7, v60, 3, v7")
    e("  v_add_u32 v7, s34, v7")
    for i in range(4):
        e(f"  v_mov_b32 v{8+i}, 0")
    stamp(1)
    e("  s_waitcnt vmcnt(0)")
    stamp(2)
    FB = 128
    for st in range(14):
        e(f"  ds_read_b64_tr_b16 {vr(FB+4*st,2)}, v7 offset:{512*st}")
        e(f"  ds_read_b64_tr_b16 {vr(FB+4*st+2,2)}, v7 offset:{512*st+64}")
    e("  s_waitcnt lgkmcnt(0)")
    for st in range(14):
        e(f"  v_mfma_f32_16x16x32_bf16 v[8:11], {vr(FA+4*st,4)}, {vr(FB+4*st,4)}, v[8:11]")
    e("  s_nop 15")
    stamp(3)
    e("  v_lshlrev_b32 v3, 4, v0")
    e("  s_lshl_b32 s33, s13, 10")
    e("  v_add_u32 v3, s33, v3")
    e(f"  ds_write_b128 v3, v[8:11] offset:{LDS_R}")
    e("  s_waitcnt lgkmcnt(0)")
    e("  s_barrier")
    e("  s_cmp_lg_u32 s13, 0")
    e("  s_cbranch_scc1 t3_done")
    e("  v_lshlrev_b32 v3, 4, v0")
    for w in range(1, 4):
        e(f"  ds_read_b128 {vr(12+4*(w-1),4)}, v3 offset:{LDS_R+1024*w}")
    stamp(4)
    e("  v_and_b32 v6, 15, v0")
    e("  v_cmp_gt_u32 vcc, 8, v6")
    e("  v_cmp_gt_u32 s[42:43], 32, v0")
    e("  s_and_b64 vcc, vcc, s[42:43]")
    e("  s_and_saveexec_b64 s[40:41], vcc")
    e("  s_waitcnt lgkmcnt(0)")
    for i in range(4):
        e(f"  v_add_f32 v{8+i}, v{8+i}, v{12+i}")
        e(f"  v_add_f32 v{16+i}, v{16+i}, v{20+i}")
        e(f"  v_add_f32 v{8+i}, v{8+i}, v{16+i}")
        e(f"  v_cvt_pk_bf16_f32 v{8+i}, v{8+i}, v{8+i}")
        e(f"  v_lshlrev_b32 v{8+i}, 16, v{8+i}")
        e(f"  v_and_b32 v60, 0xffff0000, v{24+i}")
        e("  v_ashrrev_i32 v61, 31, v60")
        e("  v_not_b32 v61, v61")
        e("  v_or_b32 v61, 0x80000000, v61")
        e("  v_xor_b32 v60, v60, v61")
        e("  v_and_b32 v60, 0xffff0000, v60")
        e("  v_mul_f32 v60, 0xbfb8aa3b, v60")
        e("  v_exp_f32 v60, v60")
        e("  s_nop 0")
        e("  v_add_f32 v60, 1.0, v60")
        e("  v_rcp_f32 v60, v60")
        e("  s_nop 0")
        e("  v_cvt_pk_bf16_f32 v60, v60, v60")
        e("  v_lshlrev_b32 v60, 16, v60")
        e(f"  v_mul_f32 v{8+i}, v{8+i}, v60")
        e(f"  v_cvt_pk_bf16_f32 v{8+i}, v{8+i}, v{8+i}")
        e(f"  v_lshlrev_b32 v{8+i}, 16, v{8+i}")
        e(f"  v_lshlrev_b32 v{36+i}, 16, v{36+i}")
        e(f"  v_lshlrev_b32 v{40+i}, 16, v{40+i}")
        e(f"  v_lshlrev_b32 v{44+i}, 16, v{44+i}")
        e(f"  v_sub_f32 v60, v{36+i}, v{40+i}")
        e("  v_cvt_pk_bf16_f32 v60, v60, v60")
        e("  v_lshlrev_b32 v60, 16, v60")
        e(f"  v_add_f32 v60, v{44+i}, v60")
        e("  v_cvt_pk_bf16_f32 v60, v60, v60")
        e("  v_lshlrev_b32 v60, 16, v60")
        e(f"  v_sub_f32 v61, v60, v{48+2*i}")
        e("  v_cvt_pk_bf16_f32 v61, v61, v61")
        e("  v_lshlrev_b32 v61, 16, v61")
        e(f"  v_mul_f32 v61, v61, v{49+2*i}")
        e("  v_cvt_pk_bf16_f32 v61, v61, v61")
        e("  v_lshlrev_b32 v61, 16, v61")
        e(f"  v_add_f32 v61, v61, v{8+i}")
        e("  v_cvt_pk_bf16_f32 v61, v61, v61")
        e("  v_lshlrev_b32 v61, 16, v61")
        e("  v_add_f32 v61, v60, v61")
        e("  v_cvt_pk_bf16_f32 v61, v61, v61")
        e(f"  buffer_store_short v61, v{28+i}, s[28:31], 0 offen")
    lab("t3_done")
    kernel_end()
    e("  s_endpgm")
    kernel_desc(name, 192)

SORT8 = [(0,1),(2,3),(4,5),(6,7),(0,2),(1,3),(4,6),(5,7),(1,2),(5,6),(0,4),(1,5),(2,6),(3,7),(2,4),(3,5),(1,2),(3,4),(5,6)]
def top8(keys, free, LDS_C, wreg="s13"):
    K = list(keys); F = list(free)
    for (i, j) in SORT8:
        hi, lo = F.pop(), F.pop()
        e(f"  v_max_u32 v{hi}, v{K[i]}, v{K[j]}")
        e(f"  v_min_u32 v{lo}, v{K[i]}, v{K[j]}")
        F.append(K[i]); F.append(K[j]); K[i] = hi; K[j] = lo
    t, coll = F.pop(), F.pop()
    e(f"  v_mov_b32 v{coll}, 0")
    pend = []
    def fill(n):
        for _ in range(n):
            if pend: e(pend.pop(0))
            else: e("  s_nop 0")
    for rnd in range(8):
        fill(2)
        e(f"  v_max_u32_dpp v{t}, v{K[0]}, v{K[0]} quad_perm:[1,0,3,2] row_mask:0xf bank_mask:0xf")
        fill(2)
        e(f"  v_max_u32_dpp v{t}, v{t}, v{t} quad_perm:[2,3,0,1] row_mask:0xf bank_mask:0xf")
        fill(2)
        e(f"  v_max_u32_dpp v{t}, v{t}, v{t} row_half_mirror row_mask:0xf bank_mask:0xf")
        fill(2)
        e(f"  v_max_u32_dpp v{t}, v{t}, v{t} row_mirror row_mask:0xf bank_mask:0xf")
        while pend: e(pend.pop(0))
        e("  s_nop 0")
        e(f"  v_readlane_b32 s36, v{t}, 0")
        e(f"  v_readlane_b32 s37, v{t}, 16")
        e(f"  v_readlane_b32 s38, v{t}, 32")
        e(f"  v_readlane_b32 s39, v{t}, 48")
        e("  s_max_u32 s36, s36, s37")
        e("  s_max_u32 s38, s38, s39")
        e("  s_max_u32 s36, s36, s38")
        e(f"  v_writelane_b32 v{coll}, s36, {rnd}")
        if rnd < 7:
            e(f"  v_cmp_eq_u32 vcc, s36, v{K[0]}")
            e("  s_nop 1")
            e(f"  v_cndmask_b32 v{K[0]}, v{K[0]}, v{K[1]}, vcc")
            for k in range(1, 7 - rnd):
                pend.append(f"  v_cndmask_b32 v{K[k]}, v{K[k]}, v{K[k+1]}, vcc")
    e(f"  s_lshl_b32 s33, {wreg}, 5")
    e(f"  s_add_u32 s33, s33, {LDS_C}")
    e(f"  v_lshlrev_b32 v{t}, 2, v0")
    e(f"  v_add_u32 v{t}, s33, v{t}")
    e("  v_cmp_gt_u32 vcc, 8, v0")
    e("  s_and_saveexec_b64 s[40:41], vcc")
    e(f"  ds_write_b32 v{t}, v{coll}")
    e("  s_mov_b64 exec, s[40:41]")
    e("  s_waitcnt lgkmcnt(0)")
    e("  s_barrier")
    return t, coll

def gen_t4():
    name = "t4_kernel"
    kernel_begin(name)
    LDS_C, LDS_R, LDS_WD = 0, 256, 8704
    LDS_G, LDS_U, LDS_XS = 8704, 8704 + 8192, 8704 + 16384
    SPIN = 1 << 22
    e("  s_cmp_ge_u32 s2, 240")
    e("  s_cbranch_scc1 t4_done")
    e(f"  s_load_dwordx2 s[4:5], s[0:1], {KA_X}")
    e(f"  s_load_dwordx2 s[6:7], s[0:1], {KA_WS}")
    e(f"  s_load_dwordx4 s[8:11], s[0:1], {KA_WG}")
    e(f"  s_load_dwordx2 s[44:45], s[0:1], {KA_OUT}")
    e("  s_and_b32 s3, s2, 7")
    e("  s_mul_i32 s3, s3, 28")
    e("  s_lshr_b32 s12, s2, 3")
    e("  s_add_u32 s3, s3, s12")
    e("  v_mov_b32 v40, v0")
    e("  v_lshrrev_b32 v1, 6, v0")
    e("  v_and_b32 v0, 63, v0")
    e("  v_readfirstlane_b32 s13, v1")
    e("  s_waitcnt lgkmcnt(0)")
    srd(16, 4, 5, 2 << 20)
    srd(20, 6, 7, 12 << 20)
    srd(24, 8, 9, 512*1792*2)
    srd(28, 10, 11, 512*1792*2)
    srd(48, 44, 45, 2 << 20)
    e("  v_lshlrev_b32 v2, 5, v40")
    e(f"  s_mov_b32 s14, {WS_KEY}")
    e("  buffer_load_dwordx4 v[8:11], v2, s[20:23], s14 offen")
    e("  buffer_load_dwordx4 v[12:15], v2, s[20:23], s14 offen offset:16")
    e("  s_cmp_ge_u32 s2, 224")
    e("  s_cbranch_scc1 t4_dma2")
    e("  s_lshl_b32 s15, s3, 4")
    e("  s_movk_i32 s32, 3584")
    for ii in range(2):
        e(f"  s_lshl_b32 s33, s13, 7")
        e(f"  s_add_u32 s33, s33, {64*ii}")
        e(f"  v_add_u32 v3, s33, v0")
        e(f"  v_mul_lo_u32 v3, v3, s32")
        e(f"  s_lshl_b32 s34, s13, 11")
        e(f"  s_add_u32 m0, s34, {LDS_G + 1024*ii}")
        e("  s_nop 0")
        e(f"  buffer_load_dwordx4 v3, s[24:27], s15 offen lds")
        e(f"  s_add_u32 m0, s34, {LDS_U + 1024*ii}")
        e("  s_nop 0")
        e(f"  buffer_load_dwordx4 v3, s[28:31], s15 offen lds")
    e("  s_waitcnt vmcnt(4)")
    e("  s_branch t4_top")
    lab("t4_dma2")
    e("  s_sub_u32 s46, s2, 224")
    e("  v_lshlrev_b32 v3, 4, v0")
    e("  s_mul_i32 s34, s13, 7168")
    e(f"  s_mul_i32 s33, s46, {4*28672}")
    e("  s_add_u32 s33, s33, s34")
    e(f"  s_add_u32 s33, s33, {WS_WDB}")
    for dsl in range(4):
        for i in range(7):
            e(f"  s_add_u32 m0, s34, {LDS_WD + dsl*28672 + 1024*i}")
            e("  s_nop 0")
            e(f"  buffer_load_dwordx4 v3, s[20:23], s33 offen lds")
            e(f"  s_add_u32 s33, s33, {1024 if i < 6 else 28672 - 6*1024}")
    e("  s_waitcnt vmcnt(28)")
    lab("t4_top")
    stamp(1)
    t, coll = top8(range(8, 16), range(16, 24), LDS_C)
    e("  v_and_b32 v3, 31, v0")
    e("  v_lshlrev_b32 v3, 2, v3")
    e(f"  ds_read_b32 v24, v3 offset:{LDS_C}")
    e("  v_mov_b32 v4, 0")
    for q in range(8):
        e(f"  ds_read_b128 {vr(56+4*q,4)}, v4 offset:{LDS_C+16*q}")
    e("  v_mov_b32 v25, 0")
    e("  s_waitcnt lgkmcnt(0)")
    sp = [60, 62, 64, 66]
    for i in range(32 + 3):
        if i < 32:
            e(f"  v_cmp_gt_u32 s[{sp[i%4]}:{sp[i%4]+1}], v{56+i}, v24")
        if i >= 3:
            j = i - 3
            e(f"  v_addc_co_u32 v25, vcc, 0, v25, s[{sp[j%4]}:{sp[j%4]+1}]")
    e("  v_cmp_gt_u32 vcc, 8, v25")
    e("  v_cmp_gt_u32 s[42:43], 32, v0")
    e("  s_and_b64 vcc, vcc, s[42:43]")
    e("  v_lshlrev_b32 v3, 2, v25")
    e("  s_and_saveexec_b64 s[40:41], vcc")
    e(f"  ds_write_b32 v3, v24 offset:{LDS_C+128}")
    e("  s_mov_b64 exec, s[40:41]")
    e("  s_waitcnt lgkmcnt(0)")
    e("  s_barrier")
    stamp(2)
    e("  s_cmp_ge_u32 s2, 224")
    e("  s_cbranch_scc1 t4_f2")
    e("  v_lshrrev_b32 v4, 5, v40")
    e("  v_and_b32 v5, 31, v40")
    e("  v_lshlrev_b32 v3, 2, v4")
    e(f"  ds_read_b32 v6, v3 offset:{LDS_C+128}")
    e("  s_waitcnt lgkmcnt(0)")
    e("  v_and_b32 v6, 0xffff, v6")
    e("  v_sub_u32 v6, 0xffff, v6")
    e("  v_lshlrev_b32 v7, 10, v6")
    e("  v_lshl_add_u32 v7, v5, 4, v7")
    e(f"  s_mov_b32 s14, {WS_Y}")
    e(f"  s_mov_b32 s15, {WS_Y + (2<<20)}")
    YR, YI, XX = 24, 32, 44
    for j in range(2):
        e(f"  buffer_load_dwordx4 {vr(YR+4*j,4)}, v7, s[20:23], s14 offen offset:{512*j}")
        e(f"  buffer_load_dwordx4 {vr(YI+4*j,4)}, v7, s[20:23], s15 offen offset:{512*j}")
        e(f"  buffer_load_dwordx4 {vr(XX+4*j,4)}, v7, s[16:19], 0 offen offset:{512*j}")
    e("  v_lshlrev_b32 v3, 3, v6")
    e(f"  s_mov_b32 s14, {WS_STAT}")
    e("  buffer_load_dwordx2 v[52:53], v3, s[20:23], s14 offen")
    e("  s_waitcnt vmcnt(0)")
    stamp(3)
    e("  v_sub_f32 v54, 0, v52")
    e("  v_mov_b32 v55, v54")
    e("  v_mov_b32 v52, v53")
    recompute(YR, YI, XX, 8, 54, 52, 64, 80, 56)
    e(f"  v_mul_u32_u24 v3, {XS_STRIDE}, v4")
    e("  v_lshl_add_u32 v3, v5, 4, v3")
    e(f"  ds_write_b128 v3, v[80:83] offset:{LDS_XS}")
    e(f"  ds_write_b128 v3, v[84:87] offset:{LDS_XS+512}")
    e("  s_waitcnt lgkmcnt(0)")
    e("  s_barrier")
    e("  s_cmp_lg_u32 s13, 0")
    e("  s_cbranch_scc1 t4_done")
    e("  v_and_b32 v3, 7, v0")
    e(f"  v_mul_u32_u24 v3, {XS_STRIDE}, v3")
    e("  v_lshrrev_b32 v4, 4, v0")
    e("  v_lshl_add_u32 v3, v4, 4, v3")
    e("  v_and_b32 v5, 15, v0")
    e("  v_lshrrev_b32 v5, 2, v5")
    e("  v_lshl_add_u32 v5, v4, 3, v5")
    e("  v_lshlrev_b32 v5, 4, v5")
    e("  v_and_b32 v6, 1, v0")
    e("  v_lshl_add_u32 v5, v6, 3, v5")
    e("  v_and_b32 v6, 2, v0")
    e("  v_lshl_add_u32 v5, v6, 12, v5")
    for i in range(4):
        e(f"  v_mov_b32 v{8+i}, 0")
    FA, FB = 64, 128
    for st in range(16):
        e(f"  ds_read_b128 {vr(FA+4*st,4)}, v3 offset:{LDS_XS + 64*st}")
        e(f"  ds_read_b64_tr_b16 {vr(FB+4*st,2)}, v5 offset:{LDS_G+512*st}")
        e(f"  ds_read_b64_tr_b16 {vr(FB+4*st+2,2)}, v5 offset:{LDS_G+512*st+64}")
        if st % 4 == 3:
            e("  s_waitcnt lgkmcnt(0)")
            for s2 in range(st-3, st+1):
                e(f"  v_mfma_f32_16x16x32_bf16 v[8:11], {vr(FA+4*s2,4)}, {vr(FB+4*s2,4)}, v[8:11]")
    e("  s_nop 15")
    for i in range(4):
        e(f"  v_cvt_pk_bf16_f32 v{8+i}, v{8+i}, v{8+i}")
        e(f"  v_lshlrev_b32 v{8+i}, 16, v{8+i}")
    e("  s_nop 1")
    for i in range(4):
        e(f"  v_mov_b32_dpp v{12+i}, v{8+i} row_ror:8 row_mask:0xf bank_mask:0xf")
    for i in range(4):
        e(f"  v_mul_f32 v16, 0xbfb8aa3b, v{8+i}")
        e("  v_exp_f32 v16, v16")
        e("  s_nop 0")
        e("  v_add_f32 v16, 1.0, v16")
        e("  v_rcp_f32 v16, v16")
        e("  s_nop 0")
        e(f"  v_mul_f32 v16, v{8+i}, v16")
        e("  v_cvt_pk_bf16_f32 v16, v16, v16")
        e("  v_lshlrev_b32 v16, 16, v16")
        e(f"  v_mul_f32 v16, v16, v{12+i}")
        e(f"  v_cvt_pk_bf16_f32 v{20+i}, v16, v16")
    e("  s_nop 1")
    for i in range(4):
        e(f"  v_mov_b32_dpp v{24+i}, v{20+i} quad_perm:[1,0,3,2] row_mask:0xf bank_mask:0xf")
    for i in range(4):
        e(f"  v_and_b32 v{20+i}, 0xffff, v{20+i}")
        e(f"  v_and_b32 v{24+i}, 0xffff0000, v{24+i}")
        e(f"  v_or_b32 v{20+i}, v{20+i}, v{24+i}")
    for i in range(4):
        e(f"  v_min_u32 v{20+i}, 0xfffeffff, v{20+i}")
    stamp(4)
    e("  v_and_b32 v5, 15, v0")
    e("  v_lshlrev_b32 v4, 6, v4")
    e("  v_lshl_add_u32 v4, v5, 1, v4")
    e("  v_lshlrev_b32 v7, 4, v0")
    e("  v_and_b32 v6, 9, v0")
    e("  v_cmp_eq_u32 vcc, 0, v6")
    e("  v_cmp_gt_u32 s[42:43], 32, v0")
    e("  s_and_b64 vcc, vcc, s[42:43]")
    e("  s_and_saveexec_b64 s[40:41], vcc")
    for i in range(4):
        e(f"  ds_write_b32 v4, v{20+i} offset:{LDS_R+16*i}")
    e("  s_mov_b64 exec, 0xff")
    e("  s_waitcnt lgkmcnt(0)")
    e(f"  ds_read_b128 v[24:27], v7 offset:{LDS_R}")
    e("  s_lshl_b32 s15, s3, 7")
    e(f"  s_add_u32 s15, s15, {WS_GU}")
    e("  s_waitcnt lgkmcnt(0)")
    e("  buffer_store_dwordx4 v[24:27], v7, s[20:23], s15 offen sc1")
    e("  s_branch t4_done")
    lab("t4_f2")
    e("  v_lshrrev_b32 v5, 4, v0")
    e("  v_and_b32 v6, 1, v5")
    e("  v_lshlrev_b32 v6, 4, v6")
    e(f"  ds_read_b128 v[24:27], v6 offset:{LDS_C+128}")
    e("  v_and_b32 v6, 15, v0")
    e("  s_lshl_b32 s15, s46, 6")
    e("  s_waitcnt lgkmcnt(0)")
    for i in range(4):
        e(f"  v_and_b32 v{28+i}, 0xffff, v{24+i}")
        e(f"  v_sub_u32 v{28+i}, 0xffff, v{28+i}")
        e(f"  v_lshlrev_b32 v{32+i}, 3, v{28+i}")
        e(f"  v_lshlrev_b32 v{28+i}, 10, v{28+i}")
        e(f"  v_lshl_add_u32 v{28+i}, v6, 1, v{28+i}")
        e(f"  v_add_u32 v{28+i}, s15, v{28+i}")
    e("  s_cmp_lg_u32 s13, 0")
    e("  s_cbranch_scc1 t4_noepi")
    e(f"  s_mov_b32 s36, {WS_Y}")
    e(f"  s_mov_b32 s37, {WS_Y + (2<<20)}")
    e(f"  s_mov_b32 s38, {WS_STAT}")
    for a in range(2):
        for i in range(4):
            e(f"  buffer_load_ushort v{192+12*a+i}, v{28+i}, s[20:23], s36 offen offset:{32*a}")
            e(f"  buffer_load_ushort v{196+12*a+i}, v{28+i}, s[20:23], s37 offen offset:{32*a}")
            e(f"  buffer_load_ushort v{200+12*a+i}, v{28+i}, s[16:19], 0 offen offset:{32*a}")
    for i in range(4):
        e(f"  buffer_load_dwordx2 {vr(48+2*i,2)}, v{32+i}, s[20:23], s38 offen")
    lab("t4_noepi")
    e("  v_lshrrev_b32 v7, 2, v6")
    e("  v_lshl_add_u32 v7, v5, 3, v7")
    e("  v_lshlrev_b32 v7, 4, v7")
    e("  v_and_b32 v60, 1, v0")
    e("  v_lshl_add_u32 v7, v60, 3, v7")
    e("  v_and_b32 v60, 2, v0")
    e("  v_mul_u32_u24 v60, 14336, v60")
    e("  v_add_u32 v7, v60, v7")
    e("  v_add_u32 v7, s34, v7")
    e(f"  v_add_u32 v61, {2*28672}, v7")
    e("  s_waitcnt vmcnt(0)")
    FB0, FB1 = 72, 128
    for st in range(14):
        e(f"  ds_read_b64_tr_b16 {vr(FB0+4*st,2)}, v7 offset:{LDS_WD+512*st}")
        e(f"  ds_read_b64_tr_b16 {vr(FB0+4*st+2,2)}, v7 offset:{LDS_WD+512*st+64}")
        e(f"  ds_read_b64_tr_b16 {vr(FB1+4*st,2)}, v61 offset:{LDS_WD+512*st}")
        e(f"  ds_read_b64_tr_b16 {vr(FB1+4*st+2,2)}, v61 offset:{LDS_WD+512*st+64}")
        if st % 3 == 2: e("  s_waitcnt lgkmcnt(0)")
    for i in range(8):
        e(f"  v_mov_b32 v{8+i}, 0")
    for i in range(4):
        e(f"  v_and_b32 v60, 0xffff0000, v{24+i}")
        e("  v_ashrrev_i32 v62, 31, v60")
        e("  v_not_b32 v62, v62")
        e("  v_or_b32 v62, 0x80000000, v62")
        e("  v_xor_b32 v60, v60, v62")
        e("  v_and_b32 v60, 0xffff0000, v60")
        e("  v_mul_f32 v60, 0xbfb8aa3b, v60")
        e("  v_exp_f32 v60, v60")
        e("  s_nop 0")
        e("  v_add_f32 v60, 1.0, v60")
        e("  v_rcp_f32 v60, v60")
        e("  s_nop 0")
        e("  v_cvt_pk_bf16_f32 v60, v60, v60")
        e(f"  v_lshlrev_b32 v{24+i}, 16, v60")
    for a in range(2):
        for i in range(4):
            r0, r1, r2 = 192+12*a+i, 196+12*a+i, 200+12*a+i
            e(f"  v_lshlrev_b32 v{r0}, 16, v{r0}")
            e(f"  v_lshlrev_b32 v{r1}, 16, v{r1}")
            e(f"  v_lshlrev_b32 v{r2}, 16, v{r2}")
            e(f"  v_sub_f32 v60, v{r0}, v{r1}")
            e("  v_cvt_pk_bf16_f32 v60, v60, v60")
            e("  v_lshlrev_b32 v60, 16, v60")
            e(f"  v_add_f32 v60, v{r2}, v60")
            e("  v_cvt_pk_bf16_f32 v60, v60, v60")
            e(f"  v_lshlrev_b32 v{r0}, 16, v60")
            e(f"  v_sub_f32 v62, v{r0}, v{48+2*i}")
            e("  v_cvt_pk_bf16_f32 v62, v62, v62")
            e("  v_lshlrev_b32 v62, 16, v62")
            e(f"  v_mul_f32 v62, v62, v{49+2*i}")
            e("  v_cvt_pk_bf16_f32 v62, v62, v62")
            e(f"  v_lshlrev_b32 v{r1}, 16, v62")
    stamp(3)
    e("  v_and_b32 v4, 7, v0")
    e("  v_lshlrev_b32 v4, 4, v4")
    e("  v_lshl_add_u32 v4, v5, 7, v4")
    e("  s_mul_i32 s14, s13, 7168")
    e(f"  s_add_u32 s14, s14, {WS_GU}")
    regs = [216+4*i for i in range(9)] + [36, 40, 44, 56, 64]
    e("  v_add_u32 v62, 4096, v4")
    e("  s_mov_b32 s53, 0")
    lab("t4_poll")
    for st in range(14):
        e(f"  buffer_load_dwordx4 {vr(regs[st],4)}, v4, s[20:23], s14 offen offset:{512*st if st < 8 else 0} sc1") if st < 8 else e(f"  buffer_load_dwordx4 {vr(regs[st],4)}, v62, s[20:23], s14 offen offset:{512*(st-8)} sc1")
    e("  v_mov_b32 v3, 0")
    for st in range(14):
        e(f"  s_waitcnt vmcnt({13-st})")
        e(f"  v_max3_u32 v3, v3, v{regs[st]}, v{regs[st]+1}")
        e(f"  v_max3_u32 v3, v3, v{regs[st]+2}, v{regs[st]+3}")
    e("  v_cmp_eq_u32 s[54:55], -1, v3")
    e("  s_nop 3")
    e("  s_cmp_eq_u64 s[54:55], 0")
    e("  s_cbranch_scc1 t4_poll_ok")
    e("  s_add_u32 s53, s53, 1")
    e(f"  s_cmp_gt_u32 s53, {SPIN}")
    e("  s_cbranch_scc1 t4_poll_ok")
    e("  s_branch t4_poll")
    lab("t4_poll_ok")
    stamp(5)
    e("  s_waitcnt lgkmcnt(0)")
    for st in range(14):
        e(f"  v_mfma_f32_16x16x32_bf16 v[8:11], {vr(regs[st],4)}, {vr(FB0+4*st,4)}, v[8:11]")
        e(f"  v_mfma_f32_16x16x32_bf16 v[12:15], {vr(regs[st],4)}, {vr(FB1+4*st,4)}, v[12:15]")
    e("  s_nop 15")
    stamp(6)
    e("  v_lshlrev_b32 v3, 4, v0")
    e("  s_lshl_b32 s33, s13, 11")
    e("  v_add_u32 v3, s33, v3")
    e(f"  ds_write_b128 v3, v[8:11] offset:{LDS_R}")
    e(f"  ds_write_b128 v3, v[12:15] offset:{LDS_R+1024}")
    e("  s_waitcnt lgkmcnt(0)")
    e("  s_barrier")
    e("  s_cmp_lg_u32 s13, 0")
    e("  s_cbranch_scc1 t4_done")
    e("  v_lshlrev_b32 v3, 4, v0")
    for w in range(1, 4):
        for a in range(2):
            e(f"  ds_read_b128 {vr(72+8*(w-1)+4*a,4)}, v3 offset:{LDS_R+2048*w+1024*a}")
    e("  v_cmp_gt_u32 vcc, 32, v0")
    e("  s_and_saveexec_b64 s[40:41], vcc")
    e("  s_waitcnt lgkmcnt(0)")
    for a in range(2):
        for i in range(4):
            y = 8 + 4*a + i
            e(f"  v_add_f32 v{y}, v{y}, v{72+4*a+i}")
            e(f"  v_add_f32 v60, v{80+4*a+i}, v{88+4*a+i}")
            e(f"  v_add_f32 v{y}, v{y}, v60")
            e(f"  v_cvt_pk_bf16_f32 v{y}, v{y}, v{y}")
            e(f"  v_lshlrev_b32 v{y}, 16, v{y}")
            e(f"  v_mul_f32 v{y}, v{y}, v{24+i}")
            e(f"  v_cvt_pk_bf16_f32 v{y}, v{y}, v{y}")
            e(f"  v_lshlrev_b32 v{y}, 16, v{y}")
            e(f"  v_add_f32 v61, v{196+12*a+i}, v{y}")
            e("  v_cvt_pk_bf16_f32 v61, v61, v61")
            e("  v_lshlrev_b32 v61, 16, v61")
            e(f"  v_add_f32 v61, v{192+12*a+i}, v61")
            e("  v_cvt_pk_bf16_f32 v61, v61, v61")
            e(f"  buffer_store_short v61, v{28+i}, s[48:51], 0 offen offset:{32*a}")
    lab("t4_done")
    kernel_end()
    e("  s_endpgm")
    kernel_desc(name, 252)

ROW_O = 48
def rowmac(first, O=148, sc1=False):
    YR, YI, XX, WR, H, T, D = 16, 32, 48, 64, 80, 112, 116
    if sc1: O = ROW_O
    SC = " sc1" if sc1 else ""
    e("  v_lshlrev_b32 v3, 10, v1")
    e("  v_lshl_add_u32 v3, v2, 4, v3")
    e(f"  s_mov_b32 s52, {WS_Y}")
    e(f"  s_mov_b32 s53, {WS_Y + (2<<20)}")
    for j in range(4):
        e(f"  buffer_load_dwordx4 {vr(YR+4*j,4)}, v3, s[24:27], s52 offen offset:{256*j}{SC}")
        e(f"  buffer_load_dwordx4 {vr(YI+4*j,4)}, v3, s[24:27], s53 offen offset:{256*j}{SC}")
        e(f"  buffer_load_dwordx4 {vr(XX+4*j,4)}, v3, s[20:23], 0 offen offset:{256*j}")
    nextra = 0
    if first:
        e("  v_lshlrev_b32 v4, 4, v2")
        for j in range(4):
            e(f"  buffer_load_dwordx4 {vr(WR+4*j,4)}, v4, s[28:31], 0 offen offset:{256*j}")
        nextra = 4
    e("  v_mov_b32 v14, 0")
    e("  v_mov_b32 v15, 0")
    for j in range(4):
        e(f"  s_waitcnt vmcnt({nextra + 3*(3-j)})")
        for q in range(4):
            i = 4*j + q
            e(f"  v_lshlrev_b32 v{T}, 16, v{YR+i}")
            e(f"  v_and_b32 v{T+1}, 0xffff0000, v{YR+i}")
            e(f"  v_lshlrev_b32 v{T+2}, 16, v{YI+i}")
            e(f"  v_and_b32 v{T+3}, 0xffff0000, v{YI+i}")
            e(f"  v_pk_add_f32 {vr(T,2)}, {vr(T,2)}, {vr(T+2,2)} neg_lo:[0,1] neg_hi:[0,1]")
            e(f"  v_cvt_pk_bf16_f32 v{T}, v{T}, v{T+1}")
            e(f"  v_and_b32 v{T+1}, 0xffff0000, v{T}")
            e(f"  v_lshlrev_b32 v{T}, 16, v{T}")
            e(f"  v_lshlrev_b32 v{T+2}, 16, v{XX+i}")
            e(f"  v_and_b32 v{T+3}, 0xffff0000, v{XX+i}")
            e(f"  v_pk_add_f32 {vr(T,2)}, {vr(T,2)}, {vr(T+2,2)}")
            e(f"  v_cvt_pk_bf16_f32 v{YI+i}, v{T}, v{T+1}")
            e(f"  v_lshlrev_b32 v{H+2*i}, 16, v{YI+i}")
            e(f"  v_and_b32 v{H+2*i+1}, 0xffff0000, v{YI+i}")
            e(f"  v_pk_add_f32 v[14:15], v[14:15], {vr(H+2*i,2)}")
    e("  v_add_f32 v5, v14, v15")
    reduce16(5)
    e("  v_mul_f32 v5, 0x3b000000, v5")
    e("  v_cvt_pk_bf16_f32 v6, v5, v5")
    e("  v_lshlrev_b32 v6, 16, v6")
    e("  v_sub_f32 v8, 0, v6")
    e("  v_mov_b32 v9, v8")
    e("  v_mov_b32 v10, 0")
    e("  v_mov_b32 v11, 0")
    for i in range(16):
        e(f"  v_pk_add_f32 {vr(D+2*i,2)}, {vr(H+2*i,2)}, v[8:9]")
        e(f"  v_pk_fma_f32 v[10:11], {vr(D+2*i,2)}, {vr(D+2*i,2)}, v[10:11]")
    e("  v_add_f32 v10, v10, v11")
    reduce16(10)
    e("  v_sub_f32 v11, v5, v6")
    e("  v_mul_f32 v11, v11, v11")
    e("  v_mul_f32 v10, 0x3b000000, v10")
    e("  v_sub_f32 v10, v10, v11")
    e("  v_max_f32 v10, 0, v10")
    e("  v_cvt_pk_bf16_f32 v10, v10, v10")
    e("  v_lshlrev_b32 v10, 16, v10")
    e("  v_add_f32 v10, 0x3727c5ac, v10")
    e("  v_cvt_pk_bf16_f32 v10, v10, v10")
    e("  v_lshlrev_b32 v10, 16, v10")
    e("  v_sqrt_f32 v10, v10")
    e("  s_nop 0")
    e("  v_cvt_pk_bf16_f32 v10, v10, v10")
    e("  v_lshlrev_b32 v10, 16, v10")
    e("  v_rcp_f32 v10, v10")
    e("  s_nop 0")
    e("  v_mov_b32 v11, v10")
    if first:
        e("  v_mov_b32 v12, 0")
        e("  s_waitcnt vmcnt(0)")
    for i in range(16):
        e(f"  v_cvt_pk_bf16_f32 v{T}, v{D+2*i}, v{D+2*i+1}")
        e(f"  v_lshlrev_b32 v{D+2*i}, 16, v{T}")
        e(f"  v_and_b32 v{D+2*i+1}, 0xffff0000, v{T}")
        e(f"  v_pk_mul_f32 {vr(D+2*i,2)}, {vr(D+2*i,2)}, v[10:11]")
        e(f"  v_cvt_pk_bf16_f32 v{YR+i}, v{D+2*i}, v{D+2*i+1}")
        if first:
            e(f"  v_dot2_f32_bf16 v12, v{YR+i}, v{WR+i}, v12")
            e(f"  v_lshlrev_b32 v{D+2*i}, 16, v{YR+i}")
            e(f"  v_and_b32 v{D+2*i+1}, 0xffff0000, v{YR+i}")
            e(f"  v_pk_add_f32 {vr(D+2*i,2)}, {vr(D+2*i,2)}, {vr(H+2*i,2)}")
            e(f"  v_cvt_pk_bf16_f32 v{O+i}, v{D+2*i}, v{D+2*i+1}")
    if first:
        e("  s_nop 3")
        reduce16(12)
        e("  v_cvt_pk_bf16_f32 v12, v12, v12")
        e("  v_lshlrev_b32 v12, 16, v12")
        e("  v_ashrrev_i32 v13, 31, v12")
        e("  v_or_b32 v13, 0x80000000, v13")
        e("  v_xor_b32 v12, v12, v13")
        e("  v_and_b32 v12, 0xffff0000, v12")
        e("  v_sub_u32 v13, 0xffff, v1")
        e("  v_or_b32 v12, v12, v13")

def gen_tf():
    name = "tf_kernel"
    kernel_begin(name)
    LDS_G, LDS_U, LDS_WD = 0, 8192, 16384
    LDS_XS = 45056
    LDS_HS = LDS_XS + 8 * XS_STRIDE
    LDS_C = LDS_HS + 8192
    LDS_R = LDS_C + 256
    SPIN = 1 << 22
    e("  s_cmp_ge_u32 s2, 256")
    e("  s_cbranch_scc1 tf_done")
    e(f"  s_load_dwordx2 s[4:5], s[0:1], {KA_X}")
    e(f"  s_load_dwordx2 s[6:7], s[0:1], {KA_WS}")
    e(f"  s_load_dwordx8 s[8:15], s[0:1], {KA_WR}")
    e(f"  s_load_dwordx2 s[16:17], s[0:1], {KA_OUT}")
    e("  s_and_b32 s3, s2, 7")
    e("  s_mul_i32 s49, s3, 28")
    e("  s_lshr_b32 s50, s2, 3")
    e("  s_add_u32 s49, s49, s50")
    e("  s_sub_u32 s50, s50, 24")
    e("  s_lshl_b32 s51, s3, 3")
    e("  s_add_u32 s50, s50, s51")
    e("  v_mov_b32 v180, v0")
    e("  v_lshrrev_b32 v1, 6, v0")
    e("  v_and_b32 v0, 63, v0")
    e("  v_readfirstlane_b32 s48, v1")
    e("  s_waitcnt lgkmcnt(0)")
    srd(20, 4, 5, 2 << 20)
    srd(24, 6, 7, 9 << 20)
    srd(28, 8, 9, 1024)
    srd(32, 10, 11, 512*1792*2)
    srd(36, 12, 13, 512*1792*2)
    srd(40, 14, 15, 1792*512*2)
    srd(44, 16, 17, 2 << 20)
    e("  s_cmp_lt_u32 s48, 2")
    e("  s_cbranch_scc1 tf_p1")
    e("  s_cmp_ge_u32 s2, 224")
    e("  s_cbranch_scc1 tf_nof1")
    e("  s_movk_i32 s52, 3584")
    e("  v_mul_lo_u32 v3, v0, s52")
    e("  s_lshl_b32 s53, s49, 4")
    e("  s_cmp_eq_u32 s48, 2")
    e("  s_cbranch_scc0 tf_dma_u")
    for i in range(8):
        e(f"  s_mov_b32 m0, {LDS_G + 1024*i}")
        e("  s_nop 0")
        e("  buffer_load_dwordx4 v3, s[32:35], s53 offen lds")
        e(f"  s_add_u32 s53, s53, {64*3584}")
    e("  s_branch tf_nof1")
    lab("tf_dma_u")
    for i in range(8):
        e(f"  s_mov_b32 m0, {LDS_U + 1024*i}")
        e("  s_nop 0")
        e("  buffer_load_dwordx4 v3, s[36:39], s53 offen lds")
        e(f"  s_add_u32 s53, s53, {64*3584}")
    lab("tf_nof1")
    e("  s_cmp_lt_u32 s2, 192")
    e("  s_cbranch_scc1 tf_poll1")
    e("  v_lshlrev_b32 v3, 10, v0")
    e("  s_sub_u32 s52, s48, 2")
    e(f"  s_mul_i32 s53, s52, {896*1024}")
    e("  s_lshl_b32 s54, s50, 4")
    e("  s_add_u32 s53, s53, s54")
    e(f"  s_mul_i32 s54, s52, {896*16}")
    for i in range(14):
        e(f"  s_add_u32 m0, s54, {LDS_WD + 1024*i}")
        e("  s_nop 0")
        e("  buffer_load_dwordx4 v3, s[40:43], s53 offen lds")
        e("  s_add_u32 s53, s53, 0x10000")
    e("  s_branch tf_poll1")
    lab("tf_p1")
    e("  v_lshrrev_b32 v1, 4, v180")
    e("  v_and_b32 v2, 15, v0")
    e("  s_lshl_b32 s52, s2, 3")
    e("  v_add_u32 v1, s52, v1")
    e("  v_mov_b32 v181, v1")
    rowmac(True)
    e("  v_cmp_eq_u32 vcc, 0, v2")
    e("  s_and_saveexec_b64 s[56:57], vcc")
    e("  v_lshlrev_b32 v13, 2, v1")
    e(f"  s_mov_b32 s52, {WS_KEY}")
    e("  buffer_store_dword v12, v13, s[24:27], s52 offen sc1")
    e("  s_mov_b64 exec, s[56:57]")
    stamp(1)
    lab("tf_poll1")
    K = 164
    e("  v_lshlrev_b32 v172, 5, v180")
    e(f"  s_mov_b32 s52, {WS_KEY}")
    e("  s_mov_b32 s60, 0")
    lab("tf_poll1_loop")
    e(f"  buffer_load_dwordx4 {vr(K,4)}, v172, s[24:27], s52 offen sc1")
    e(f"  buffer_load_dwordx4 {vr(K+4,4)}, v172, s[24:27], s52 offen offset:16 sc1")
    e("  s_waitcnt vmcnt(0)")
    e(f"  v_min3_u32 v173, v{K}, v{K+1}, v{K+2}")
    e(f"  v_min3_u32 v174, v{K+3}, v{K+4}, v{K+5}")
    e(f"  v_min3_u32 v173, v173, v{K+6}, v{K+7}")
    e("  v_min_u32 v173, v173, v174")
    e("  v_cmp_eq_u32 s[62:63], 0, v173")
    e("  s_nop 3")
    e("  s_cmp_eq_u64 s[62:63], 0")
    e("  s_cbranch_scc1 tf_poll1_ok")
    e("  s_add_u32 s60, s60, 1")
    e(f"  s_cmp_gt_u32 s60, {SPIN}")
    e("  s_cbranch_scc1 tf_poll1_ok")
    e("  s_sleep 1")
    e("  s_branch tf_poll1_loop")
    lab("tf_poll1_ok")
    stamp(2)
    e("  v_mov_b32 v176, 0")
    for rnd in range(8):
        e(f"  v_max3_u32 v173, v{K}, v{K+1}, v{K+2}")
        e(f"  v_max3_u32 v174, v{K+3}, v{K+4}, v{K+5}")
        e(f"  v_max3_u32 v173, v173, v{K+6}, v{K+7}")
        e("  v_max_u32 v173, v173, v174")
        e("  s_nop 1")
        e("  v_max_u32_dpp v173, v173, v173 quad_perm:[1,0,3,2] row_mask:0xf bank_mask:0xf")
        e("  s_nop 1")
        e("  v_max_u32_dpp v173, v173, v173 quad_perm:[2,3,0,1] row_mask:0xf bank_mask:0xf")
        e("  s_nop 1")
        e("  v_max_u32_dpp v173, v173, v173 row_half_mirror row_mask:0xf bank_mask:0xf")
        e("  s_nop 1")
        e("  v_max_u32_dpp v173, v173, v173 row_mirror row_mask:0xf bank_mask:0xf")
        e("  s_nop 1")
        e("  v_readlane_b32 s64, v173, 0")
        e("  v_readlane_b32 s65, v173, 16")
        e("  v_readlane_b32 s66, v173, 32")
        e("  v_readlane_b32 s67, v173, 48")
        e("  s_max_u32 s64, s64, s65")
        e("  s_max_u32 s66, s66, s67")
        e("  s_max_u32 s64, s64, s66")
        e(f"  v_writelane_b32 v176, s64, {rnd}")
        if rnd < 7:
            for k in range(8):
                e(f"  v_cmp_ne_u32 vcc, s64, v{K+k}")
                e("  s_nop 1")
                e(f"  v_cndmask_b32 v{K+k}, 0, v{K+k}, vcc")
    e("  s_lshl_b32 s52, s48, 5")
    e(f"  s_add_u32 s52, s52, {LDS_C}")
    e("  v_lshlrev_b32 v172, 2, v0")
    e("  v_add_u32 v172, s52, v172")
    e("  v_cmp_gt_u32 vcc, 8, v0")
    e("  s_and_saveexec_b64 s[56:57], vcc")
    e("  ds_write_b32 v172, v176")
    e("  s_mov_b64 exec, s[56:57]")
    e("  s_waitcnt lgkmcnt(0)")
    e("  s_barrier")
    e("  v_and_b32 v172, 31, v0")
    e("  v_lshlrev_b32 v172, 2, v172")
    e(f"  ds_read_b32 v177, v172 offset:{LDS_C}")
    e("  v_mov_b32 v178, 0")
    e("  s_waitcnt lgkmcnt(0)")
    for i in range(32):
        e(f"  v_readlane_b32 s64, v177, {i}")
        e("  s_nop 1")
        e("  v_cmp_gt_u32 vcc, s64, v177")
        e("  s_nop 1")
        e("  v_addc_co_u32 v178, vcc, 0, v178, vcc")
    e("  v_cmp_gt_u32 vcc, 8, v178")
    e("  v_cmp_gt_u32 s[58:59], 32, v0")
    e("  s_and_b64 vcc, vcc, s[58:59]")
    e("  v_lshlrev_b32 v172, 2, v178")
    e("  s_and_saveexec_b64 s[56:57], vcc")
    e(f"  ds_write_b32 v172, v177 offset:{LDS_C+128}")
    e("  s_mov_b64 exec, s[56:57]")
    e("  s_waitcnt lgkmcnt(0)")
    e("  s_barrier")
    stamp(3)
    e("  s_cmp_lt_u32 s48, 2")
    e("  s_cbranch_scc1 tf_p2")
    e("  s_waitcnt vmcnt(0)")
    e("  s_branch tf_p2_end")
    lab("tf_p2")
    e("  v_mov_b32 v172, 0")
    e(f"  ds_read_b128 {vr(K,4)}, v172 offset:{LDS_C+128}")
    e(f"  ds_read_b128 {vr(K+4,4)}, v172 offset:{LDS_C+144}")
    e("  v_lshrrev_b32 v173, 4, v180")
    e("  v_lshlrev_b32 v173, 2, v173")
    e(f"  ds_read_b32 v174, v173 offset:{LDS_C+128}")
    e("  v_sub_u32 v175, 0xffff, v181")
    e("  s_waitcnt lgkmcnt(0)")
    e("  s_mov_b64 s[58:59], exec")
    for k in range(8):
        e(f"  v_and_b32 v{K+k}, 0xffff, v{K+k}")
        e(f"  v_cmp_ne_u32 vcc, v{K+k}, v175")
        e("  s_and_b64 s[58:59], s[58:59], vcc")
    e("  v_lshlrev_b32 v3, 10, v181")
    e("  v_lshl_add_u32 v3, v2, 4, v3")
    e("  s_and_saveexec_b64 s[56:57], s[58:59]")
    e("  s_cbranch_execz tf_nostore")
    for j in range(4):
        e(f"  buffer_store_dwordx4 {vr(148+4*j,4)}, v3, s[44:47], 0 offen offset:{256*j}")
    lab("tf_nostore")
    e("  s_mov_b64 exec, s[56:57]")
    e("  v_and_b32 v1, 0xffff, v174")
    e("  v_sub_u32 v1, 0xffff, v1")
    rowmac(False)
    e("  v_lshrrev_b32 v173, 4, v180")
    e(f"  v_mul_u32_u24 v4, {XS_STRIDE}, v173")
    e("  v_lshl_add_u32 v4, v2, 4, v4")
    e("  v_lshlrev_b32 v5, 10, v173")
    e("  v_lshl_add_u32 v5, v2, 4, v5")
    for j in range(4):
        e(f"  ds_write_b128 v4, {vr(16+4*j,4)} offset:{LDS_XS+256*j}")
        e(f"  ds_write_b128 v5, {vr(32+4*j,4)} offset:{LDS_HS+256*j}")
    e("  s_waitcnt lgkmcnt(0)")
    lab("tf_p2_end")
    e("  s_barrier")
    stamp(4)
    e("  s_cmp_lg_u32 s48, 0")
    e("  s_cbranch_scc1 tf_f2")
    e("  s_cmp_ge_u32 s2, 224")
    e("  s_cbranch_scc1 tf_f2")
    e("  v_and_b32 v3, 7, v0")
    e(f"  v_mul_u32_u24 v3, {XS_STRIDE}, v3")
    e("  v_lshrrev_b32 v4, 4, v0")
    e("  v_lshl_add_u32 v3, v4, 4, v3")
    e("  v_and_b32 v5, 15, v0")
    e("  v_lshrrev_b32 v5, 2, v5")
    e("  v_lshl_add_u32 v5, v4, 3, v5")
    e("  v_lshlrev_b32 v5, 4, v5")
    e("  v_and_b32 v6, 1, v0")
    e("  v_lshl_add_u32 v5, v6, 3, v5")
    e("  v_and_b32 v6, 2, v0")
    e("  v_lshl_add_u32 v5, v6, 12, v5")
    for i in range(4):
        e(f"  v_mov_b32 v{8+i}, 0")
    FA, FB = 16, 80
    for st in range(16):
        e(f"  ds_read_b128 {vr(FA+4*st,4)}, v3 offset:{LDS_XS + 64*st}")
        e(f"  ds_read_b64_tr_b16 {vr(FB+4*st,2)}, v5 offset:{512*st}")
        e(f"  ds_read_b64_tr_b16 {vr(FB+4*st+2,2)}, v5 offset:{512*st+64}")
        if st % 4 == 3:
            e("  s_waitcnt lgkmcnt(0)")
            for s2 in range(st-3, st+1):
                e(f"  v_mfma_f32_16x16x32_bf16 v[8:11], {vr(FA+4*s2,4)}, {vr(FB+4*s2,4)}, v[8:11]")
    e("  s_nop 15")
    for i in range(4):
        e(f"  v_cvt_pk_bf16_f32 v{8+i}, v{8+i}, v{8+i}")
        e(f"  v_lshlrev_b32 v{8+i}, 16, v{8+i}")
    e("  s_nop 1")
    for i in range(4):
        e(f"  v_mov_b32_dpp v{12+i}, v{8+i} row_ror:8 row_mask:0xf bank_mask:0xf")
    for i in range(4):
        e(f"  v_mul_f32 v16, 0xbfb8aa3b, v{8+i}")
        e("  v_exp_f32 v16, v16")
        e("  s_nop 0")
        e("  v_add_f32 v16, 1.0, v16")
        e("  v_rcp_f32 v16, v16")
        e("  s_nop 0")
        e(f"  v_mul_f32 v16, v{8+i}, v16")
        e("  v_cvt_pk_bf16_f32 v16, v16, v16")
        e("  v_lshlrev_b32 v16, 16, v16")
        e(f"  v_mul_f32 v16, v16, v{12+i}")
        e(f"  v_cvt_pk_bf16_f32 v{20+i}, v16, v16")
    e("  s_nop 1")
    for i in range(4):
        e(f"  v_mov_b32_dpp v{24+i}, v{20+i} quad_perm:[1,0,3,2] row_mask:0xf bank_mask:0xf")
    for i in range(4):
        e(f"  v_and_b32 v{20+i}, 0xffff, v{20+i}")
        e(f"  v_and_b32 v{24+i}, 0xffff0000, v{24+i}")
        e(f"  v_or_b32 v{20+i}, v{20+i}, v{24+i}")
    e("  v_and_b32 v5, 15, v0")
    e("  v_and_b32 v6, 9, v0")
    e("  v_cmp_eq_u32 vcc, 0, v6")
    e("  v_cmp_gt_u32 s[58:59], 32, v0")
    e("  s_and_b64 vcc, vcc, s[58:59]")
    e("  s_and_saveexec_b64 s[56:57], vcc")
    e("  v_lshlrev_b32 v4, 2, v4")
    e("  v_mul_u32_u24 v4, 3584, v4")
    e("  v_lshl_add_u32 v4, v5, 1, v4")
    e("  s_lshl_b32 s52, s49, 4")
    e(f"  s_add_u32 s52, s52, {WS_GU}")
    for i in range(4):
        e(f"  buffer_store_dword v{20+i}, v4, s[24:27], s52 offen sc1")
        if i < 3:
            e("  v_add_u32 v4, 3584, v4")
    e("  s_waitcnt vmcnt(0)")
    e("  s_mov_b64 exec, 1")
    e("  v_mov_b32 v4, 1")
    e("  v_mov_b32 v5, 0")
    e("  s_lshl_b32 s52, s49, 2")
    e(f"  s_add_u32 s52, s52, {WS_FLAG}")
    e("  buffer_store_dword v4, v5, s[24:27], s52 offen sc1")
    e("  s_mov_b64 exec, s[56:57]")
    stamp(5)
    lab("tf_f2")
    e("  s_cmp_lt_u32 s2, 192")
    e("  s_cbranch_scc1 tf_done")
    e("  v_min_u32 v3, 55, v0")
    e("  v_lshlrev_b32 v3, 2, v3")
    e("  s_mul_i32 s52, s48, 224")
    e(f"  s_add_u32 s52, s52, {WS_FLAG}")
    e("  s_mov_b32 s60, 0")
    lab("tf_poll2_loop")
    e("  buffer_load_dword v4, v3, s[24:27], s52 offen sc1")
    e("  s_waitcnt vmcnt(0)")
    e("  v_cmp_eq_u32 s[62:63], 0, v4")
    e("  s_nop 3")
    e("  s_cmp_eq_u64 s[62:63], 0")
    e("  s_cbranch_scc1 tf_poll2_ok")
    e("  s_add_u32 s60, s60, 1")
    e(f"  s_cmp_gt_u32 s60, {SPIN}")
    e("  s_cbranch_scc1 tf_poll2_ok")
    e("  s_sleep 1")
    e("  s_branch tf_poll2_loop")
    lab("tf_poll2_ok")
    stamp(6)
    e("  v_and_b32 v4, 7, v0")
    e("  v_mul_u32_u24 v4, 3584, v4")
    e("  v_lshrrev_b32 v5, 4, v0")
    e("  v_lshl_add_u32 v4, v5, 4, v4")
    e("  s_mul_i32 s52, s48, 896")
    e(f"  s_add_u32 s52, s52, {WS_GU}")
    FA, FB = 16, 72
    for st in range(14):
        e(f"  buffer_load_dwordx4 {vr(FA+4*st,4)}, v4, s[24:27], s52 offen offset:{64*st} sc1")
    e("  v_and_b32 v7, 15, v0")
    e("  v_lshrrev_b32 v7, 2, v7")
    e("  v_lshl_add_u32 v7, v5, 3, v7")
    e("  v_lshlrev_b32 v7, 4, v7")
    e("  v_and_b32 v6, 1, v0")
    e("  v_lshl_add_u32 v7, v6, 3, v7")
    e("  s_mul_i32 s54, s48, 7168")
    e(f"  s_add_u32 s54, s54, {LDS_WD}")
    e("  v_add_u32 v7, s54, v7")
    for st in range(14):
        e(f"  ds_read_b64_tr_b16 {vr(FB+4*st,2)}, v7 offset:{512*st}")
        e(f"  ds_read_b64_tr_b16 {vr(FB+4*st+2,2)}, v7 offset:{512*st+64}")
    for i in range(4):
        e(f"  v_mov_b32 v{8+i}, 0")
    e("  s_waitcnt vmcnt(0) lgkmcnt(0)")
    for st in range(14):
        e(f"  v_mfma_f32_16x16x32_bf16 v[8:11], {vr(FA+4*st,4)}, {vr(FB+4*st,4)}, v[8:11]")
    e("  s_nop 15")
    e("  v_lshlrev_b32 v3, 4, v0")
    e("  s_lshl_b32 s52, s48, 10")
    e("  v_add_u32 v3, s52, v3")
    e(f"  ds_write_b128 v3, v[8:11] offset:{LDS_R}")
    e("  s_waitcnt lgkmcnt(0)")
    e("  s_barrier")
    e("  s_cmp_lg_u32 s48, 0")
    e("  s_cbranch_scc1 tf_done")
    e("  v_lshlrev_b32 v3, 4, v0")
    for w in range(1, 4):
        e(f"  ds_read_b128 {vr(12+4*(w-1),4)}, v3 offset:{LDS_R+1024*w}")
    e("  v_and_b32 v6, 1, v5")
    e("  v_lshlrev_b32 v6, 4, v6")
    e(f"  ds_read_b128 v[24:27], v6 offset:{LDS_C+128}")
    e("  v_and_b32 v6, 7, v0")
    e("  s_lshl_b32 s52, s50, 4")
    e("  v_lshl_add_u32 v6, v6, 1, s52")
    e("  v_and_b32 v7, 1, v5")
    e("  v_lshlrev_b32 v7, 2, v7")
    for i in range(4):
        e(f"  v_add_u32 v28, {i}, v7")
        e(f"  v_mul_u32_u24 v29, {XS_STRIDE}, v28")
        e("  v_add_u32 v29, v29, v6")
        e(f"  ds_read_u16 v{36+i}, v29 offset:{LDS_XS}")
        e("  v_lshl_add_u32 v29, v28, 10, v6")
        e(f"  ds_read_u16 v{40+i}, v29 offset:{LDS_HS}")
    e("  v_and_b32 v30, 15, v0")
    e("  v_cmp_gt_u32 vcc, 8, v30")
    e("  v_cmp_gt_u32 s[58:59], 32, v0")
    e("  s_and_b64 vcc, vcc, s[58:59]")
    e("  s_waitcnt lgkmcnt(0)")
    e("  s_and_saveexec_b64 s[56:57], vcc")
    for i in range(4):
        e(f"  v_add_f32 v{8+i}, v{8+i}, v{12+i}")
        e(f"  v_add_f32 v{16+i}, v{16+i}, v{20+i}")
        e(f"  v_add_f32 v{8+i}, v{8+i}, v{16+i}")
        e(f"  v_cvt_pk_bf16_f32 v{8+i}, v{8+i}, v{8+i}")
        e(f"  v_lshlrev_b32 v{8+i}, 16, v{8+i}")
        e(f"  v_and_b32 v60, 0xffff0000, v{24+i}")
        e("  v_ashrrev_i32 v61, 31, v60")
        e("  v_not_b32 v61, v61")
        e("  v_or_b32 v61, 0x80000000, v61")
        e("  v_xor_b32 v60, v60, v61")
        e("  v_and_b32 v60, 0xffff0000, v60")
        e("  v_mul_f32 v60, 0xbfb8aa3b, v60")
        e("  v_exp_f32 v60, v60")
        e("  s_nop 0")
        e("  v_add_f32 v60, 1.0, v60")
        e("  v_rcp_f32 v60, v60")
        e("  s_nop 0")
        e("  v_cvt_pk_bf16_f32 v60, v60, v60")
        e("  v_lshlrev_b32 v60, 16, v60")
        e(f"  v_mul_f32 v{8+i}, v{8+i}, v60")
        e(f"  v_cvt_pk_bf16_f32 v{8+i}, v{8+i}, v{8+i}")
        e(f"  v_lshlrev_b32 v{8+i}, 16, v{8+i}")
        e(f"  v_lshlrev_b32 v{36+i}, 16, v{36+i}")
        e(f"  v_lshlrev_b32 v{40+i}, 16, v{40+i}")
        e(f"  v_add_f32 v61, v{36+i}, v{8+i}")
        e("  v_cvt_pk_bf16_f32 v61, v61, v61")
        e("  v_lshlrev_b32 v61, 16, v61")
        e(f"  v_add_f32 v61, v{40+i}, v61")
        e("  v_cvt_pk_bf16_f32 v61, v61, v61")
        e(f"  v_and_b32 v62, 0xffff, v{24+i}")
        e("  v_sub_u32 v62, 0xffff, v62")
        e("  v_lshl_add_u32 v62, v62, 10, v6")
        e("  buffer_store_short v61, v62, s[44:47], 0 offen")
    lab("tf_done")
    kernel_end()
    e("  s_endpgm")
    kernel_desc(name, 184)

def main():
    hdr = open("cdna_kernels/" + NAME + ".s.ref").read().splitlines()
    out = []
    for ln in hdr:
        if ln.startswith("; @launch"):
            if FUSE:
                out.append("; @launch kernel=f_kernel grid=(256,1,1) block=(576,1,1) lds=%d" % (K2_NS*24576 + 256))
            else:
                out.append("; @launch kernel=k1_kernel grid=(256,1,1) block=(%d,1,1) lds=131072" % (576 if OPT('K1_PF', 0) else 512))
                out.append("; @launch kernel=k2_kernel grid=(256,1,1) block=(%d,1,1) lds=%d" % (576, K2_NS*24576))
            if OPT('TF'):
                out.append("; @launch kernel=tf_kernel grid=(256,1,1) block=(256,1,1) lds=66048")
            else:
                if not OPT('K2T1', 1):
                    out.append("; @launch kernel=t1_kernel grid=(256,1,1) block=(%d,1,1) lds=0" % (192 if OPT('T1_PF', 1) else 128))
                if MEGA:
                    pass
                elif OPT('T4', 1):
                    out.append("; @launch kernel=t4_kernel grid=(240,1,1) block=(256,1,1) lds=123392")
                else:
                    out.append("; @launch kernel=t2_kernel grid=(224,1,1) block=(256,1,1) lds=25600")
                    out.append("; @launch kernel=t3_kernel grid=(64,1,1) block=(256,1,1) lds=32768")
            break
        out.append(ln)
    out.append('.amdgcn_target "amdgcn-amd-amdhsa--gfx950"')
    out.append(".text")
    gen_k1(); gen_k2()
    if OPT('TF'): gen_tf()
    elif OPT('T4', 1):
        if not OPT('K2T1', 1): gen_t1()
        if not MEGA: gen_t4()
    else: gen_t1(); gen_t2(); gen_t3()
    out += L
    out.append('.section .rodata,"a"')
    out += KD
    dst = sys.argv[1] if len(sys.argv) > 1 else "cdna_kernels/" + NAME + ".s"
    open(dst, "w").write("\n".join(out) + "\n")

main()
```

```python
import sys, os
OPT = lambda k, d=0: int(os.environ.get(k, d))

NAME = "sequential_preLN__spectral_fnet__moe_arch_mod__prompt"
L = []
def e(s=""):
    L.append(s)
def lab(s):
    L.append(s + ":")

KA_X, KA_WSRE, KA_WSIM, KA_WDRE, KA_WDIM = 0, 8, 16, 24, 32
KA_WR, KA_WG, KA_WU, KA_WDN, KA_OUT, KA_DBG, KA_WS = 48, 56, 64, 72, 80, 88, 96
WS_YB = 0
WS_Y = 4 << 20
WS_KEY = 8 << 20
WS_STAT = (8 << 20) + 8192
WS_GU = (8 << 20) + 65536
WS_IDX = (8 << 20) + 131072
WS_FLAG = (8 << 20) + 196608
WS_FA = WS_FLAG + 4096
WS_REC = (9 << 20)
WS_SEL = (9 << 20) + 65536
WS_WDB = 10 << 20
WS_SIZE = 268435456

KIDX = [0]
NV = {"k1_kernel": 160, "k2_kernel": 160, "t1_kernel": 148, "t2_kernel": 192, "t3_kernel": 192, "tf_kernel": 184, "t4_kernel": 252, "f_kernel": 164}
FUSE = OPT("FUSE", 1)
K2_NS = OPT("K2_NS", 6)
MEGA = OPT("MEGA", 0) and FUSE
CUR = [0]
def kernel_begin(name):
    CUR[0] = NV[name]
    e(f".globl {name}")
    e(".p2align 8")
    e(f".type {name},@function")
    lab(name)
    if OPT('DIAG'):
        e("  s_memrealtime s[72:73]")
        for i in range(1, 7):
            e(f"  s_mov_b64 s[{72+2*i}:{73+2*i}], 0")
        e(f"  s_load_dwordx2 s[94:95], s[0:1], {KA_WS}")
        e(f"  v_mov_b32 v{CUR[0]}, v0")

HS = [0]
def hstamp(k, wg=0):
    if not OPT('HSTAMP'): return
    if OPT('HSTAMP') == 2 and k in (7, 8, 9, 10) and wg in (0, 224) and not hasattr(hstamp, "x"):
        if k != 7: return
        k = 15
    HS[0] += 1
    e(f"  s_cmp_lg_u32 s2, {wg}")
    e(f"  s_cbranch_scc1 hs_{HS[0]}")
    e("  s_cmp_lg_u32 s15, 0")
    e(f"  s_cbranch_scc1 hs_{HS[0]}")
    e("  s_memrealtime s[72:73]")
    e("  s_waitcnt lgkmcnt(0)")
    e("  v_mov_b32 v162, s72")
    e(f"  v_mov_b32 v163, {4*k}")
    e("  s_mov_b64 s[74:75], exec")
    e("  s_mov_b64 exec, 1")
    e("  buffer_store_dword v162, v163, s[96:99], 0 offen")
    e("  s_mov_b64 exec, s[74:75]")
    lab(f"hs_{HS[0]}")

def stamp(i):
    if OPT('DIAG'):
        e(f"  s_memrealtime s[{72+2*i}:{73+2*i}]")
    if OPT('HSTAMP') == 1 and CUR[0] == 164: hstamp(i)
    if OPT('HSTAMP') == 2 and CUR[0] == 164 and i == 6:
        for w in range(8): hstamp(1 + w, w)
    if OPT('HSTAMP') == 2 and CUR[0] == 164 and i == 2:
        for w in range(0, 8, 2): hstamp(11 + w // 2, w + 1)

def kernel_end():
    if OPT('DIAG'):
        e("  s_waitcnt vmcnt(0) lgkmcnt(0)")
        e("  s_memrealtime s[86:87]")
        e("  s_mov_b32 s88, s94")
        e("  s_mov_b32 s89, s95")
        e("  s_mov_b32 s90, 0x4000000")
        e("  s_mov_b32 s91, 0x00020000")
        e("  s_waitcnt lgkmcnt(0)")
        e("  s_mov_b64 exec, 1")
        for i in range(16):
            e(f"  v_mov_b32 v{i}, s{72+i}")
        e(f"  v_lshrrev_b32 v{CUR[0]+1}, 6, v{CUR[0]}")
        e(f"  v_lshlrev_b32 v{CUR[0]+1}, 6, v{CUR[0]+1}")
        e("  s_lshl_b32 s92, s2, 10")
        e(f"  s_add_u32 s92, s92, {(16 << 20) + KIDX[0] * 0x100000}")
        for i in range(4):
            e(f"  buffer_store_dwordx4 v[{4*i}:{3+4*i}], v{CUR[0]+1}, s[88:91], s92 offen offset:{16*i}")
    KIDX[0] += 1

KD = []
def kernel_desc(name, vgpr, sgpr=102):
    assert vgpr == CUR[0]
    if OPT('DIAG'): vgpr += 2
    acc = (vgpr + 3) // 4 * 4
    KD.append(f""".p2align 6
.amdhsa_kernel {name}
  .amdhsa_next_free_vgpr {vgpr}
  .amdhsa_next_free_sgpr {sgpr}
  .amdhsa_accum_offset {acc}
  .amdhsa_group_segment_fixed_size 0
  .amdhsa_kernarg_size 104
  .amdhsa_user_sgpr_count 2
  .amdhsa_user_sgpr_kernarg_segment_ptr 1
  .amdhsa_system_sgpr_workgroup_id_x 1
.end_amdhsa_kernel""")

def srd(d, lo, hi, size):
    e(f"  s_mov_b32 s{d}, s{lo}")
    e(f"  s_mov_b32 s{d+1}, s{hi}")
    e(f"  s_mov_b32 s{d+2}, {size}")
    e(f"  s_mov_b32 s{d+3}, 0x00020000")

def vr(a, n):
    return f"v[{a}:{a+n-1}]"

def reduce8(v):
    e("  s_nop 1")
    e(f"  v_add_f32_dpp v{v}, v{v}, v{v} quad_perm:[1,0,3,2] row_mask:0xf bank_mask:0xf")
    e("  s_nop 1")
    e(f"  v_add_f32_dpp v{v}, v{v}, v{v} quad_perm:[2,3,0,1] row_mask:0xf bank_mask:0xf")
    e("  s_nop 1")
    e(f"  v_add_f32_dpp v{v}, v{v}, v{v} row_half_mirror row_mask:0xf bank_mask:0xf")

def reduce16(v):
    reduce8(v)
    e("  s_nop 1")
    e(f"  v_add_f32_dpp v{v}, v{v}, v{v} row_mirror row_mask:0xf bank_mask:0xf")

def helper_wave():
    srd(36, 34, 35, 1792*512*2)
    srd(40, 6, 7, 12 << 20)
    e("  v_lshlrev_b32 v2, 4, v0")
    e("  s_mul_i32 s44, s2, 7168")
    for q in range(7):
        e(f"  buffer_load_dwordx4 {vr(8+4*q,4)}, v2, s[36:39], s44 offen")
        e("  s_add_u32 s44, s44, 1024")
    e("  s_cmp_ge_u32 s2, 28")
    e("  s_cbranch_scc1 k2_nomark")
    for q in range(4):
        e(f"  v_mov_b32 v{4+q}, -1")
    e("  s_lshl_b32 s44, s2, 10")
    e(f"  s_add_u32 s44, s44, {WS_GU}")
    e("  buffer_store_dwordx4 v[4:7], v2, s[40:43], s44 offen" + (" sc1" if MEGA else ""))
    lab("k2_nomark")
    e("  v_mul_u32_u24 v3, 28672, v0")
    e("  s_mul_i32 s44, s2, 112")
    e(f"  s_add_u32 s44, s44, {WS_WDB}")
    e("  s_waitcnt vmcnt(0)")
    for q in range(7):
        e(f"  buffer_store_dwordx4 {vr(8+4*q,4)}, v3, s[40:43], s44 offen offset:{16*q}" + (" sc1" if MEGA else ""))
    if MEGA: e("  s_waitcnt vmcnt(0)")
    e("  s_branch k2_done")

def get_epoch(tag):
    e("  v_mov_b32 v158, 0")
    e("  s_mov_b32 s69, 0")
    lab(f"ep_{tag}")
    e("  buffer_load_dword v159, v158, s[96:99], 0 offen sc1")
    e("  s_waitcnt vmcnt(0)")
    e("  v_readfirstlane_b32 s68, v159")
    e("  s_add_u32 s69, s69, 1")
    e(f"  s_cmp_gt_u32 s69, {1 << 22}")
    e(f"  s_cbranch_scc1 ep_{tag}_ok")
    e("  s_cmp_eq_u32 s68, 0")
    e(f"  s_cbranch_scc1 ep_{tag}")
    lab(f"ep_{tag}_ok")

def gen_k1():
    name = "f_kernel" if FUSE else "k1_kernel"
    kernel_begin(name)
    e("  s_cmp_ge_u32 s2, 256")
    e(f"  s_cbranch_scc1 {'k2_done' if FUSE else 'k1_done'}")
    e(f"  s_load_dwordx2 s[4:5], s[0:1], {KA_X}")
    e(f"  s_load_dwordx4 s[8:11], s[0:1], {KA_WDRE}")
    e(f"  s_load_dwordx2 s[6:7], s[0:1], {KA_WS}")
    if FUSE:
        e(f"  s_load_dwordx4 s[52:55], s[0:1], {KA_WSRE}")
        e(f"  s_load_dwordx2 s[66:67], s[0:1], {KA_DBG}")
        e(f"  s_load_dwordx2 s[34:35], s[0:1], {KA_WDN}")
    e("  s_and_b32 s12, s2, 7")
    e("  s_lshr_b32 s13, s2, 3")
    e("  s_and_b32 s14, s13, 3")
    e("  s_lshl_b32 s12, s12, 2")
    e("  s_add_u32 s12, s12, s14")
    e("  s_lshr_b32 s13, s13, 2")
    e("  v_lshrrev_b32 v1, 6, v0")
    e("  v_and_b32 v0, 63, v0")
    e("  v_readfirstlane_b32 s15, v1")
    e("  v_lshrrev_b32 v2, 3, v0")
    e("  v_and_b32 v3, 7, v0")
    if OPT('K1_PF', 0) or OPT('K1_PFEND', 0):
        e(f"  s_load_dwordx4 s[40:43], s[0:1], {KA_WSRE}")
    e("  s_waitcnt lgkmcnt(0)")
    if OPT('K1_PF', 0):
        e("  s_cmp_lg_u32 s15, 8")
        e("  s_cbranch_scc1 k1_main")
        e("  s_and_b32 s44, s2, 7")
        e("  s_cmp_lt_u32 s44, 4")
        e("  s_cselect_b32 s48, s40, s42")
        e("  s_cselect_b32 s49, s41, s43")
        e(f"  s_mov_b32 s50, {2048*2048*2}")
        e("  s_mov_b32 s51, 0x00020000")
        e("  s_and_b32 s44, s44, 3")
        e("  s_lshl_b32 s44, s44, 21")
        e("  s_lshr_b32 s45, s2, 3")
        e("  s_lshl_b32 s45, s45, 16")
        e("  s_add_u32 s44, s44, s45")
        e("  v_lshlrev_b32 v1, 4, v0")
        e("  s_cmp_lt_u32 s13, 4")
        e("  s_cselect_b32 s56, s8, s10")
        e("  s_cselect_b32 s57, s9, s11")
        e(f"  s_mov_b32 s58, {512*512*2}")
        e("  s_mov_b32 s59, 0x00020000")
        e("  s_and_b32 s46, s13, 3")
        e("  s_lshl_b32 s46, s46, 17")
        for q in range(OPT('K1_CAN', 0)):
            e(f"  buffer_load_dwordx4 v[8:11], v1, s[56:59], s46 offen offset:{q*1024}")
            e("  s_waitcnt vmcnt(0)")
        for q in range(64):
            e(f"  buffer_load_dwordx4 {vr(8+4*(q%32),4)}, v1, s[48:51], s44 offen")
            e("  s_add_u32 s44, s44, 1024")
        e("  s_branch k1_done")
        lab("k1_main")
    if FUSE:
        srd(96, 66, 67, 256)
        e("  s_cmp_lg_u32 s15, 8")
        e("  s_cbranch_scc1 f_main")
        e("  s_cmp_lg_u32 s2, 0")
        e("  s_cbranch_scc1 f_noepoch")
        e("  s_memrealtime s[40:41]")
        e("  s_waitcnt lgkmcnt(0)")
        e("  s_or_b32 s40, s40, 1")
        e("  v_mov_b32 v4, s40")
        e("  v_mov_b32 v5, 0")
        e("  s_mov_b64 s[42:43], exec")
        e("  s_mov_b64 exec, 1")
        e("  buffer_store_dword v4, v5, s[96:99], 0 offen sc1")
        e("  s_mov_b64 exec, s[42:43]")
        lab("f_noepoch")
        if OPT('F_PF', 0):
            e(f"  s_load_dwordx4 s[40:43], s[0:1], {KA_WSRE}")
            e("  s_and_b32 s44, s2, 7")
            e("  s_waitcnt lgkmcnt(0)")
            e("  s_cmp_lt_u32 s44, 4")
            e("  s_cselect_b32 s48, s40, s42")
            e("  s_cselect_b32 s49, s41, s43")
            e(f"  s_mov_b32 s50, {2048*2048*2}")
            e("  s_mov_b32 s51, 0x00020000")
            e("  s_and_b32 s44, s44, 3")
            e("  s_lshl_b32 s44, s44, 21")
            e("  s_lshr_b32 s45, s2, 3")
            e("  s_lshl_b32 s45, s45, 16")
            e("  s_add_u32 s44, s44, s45")
            e("  v_lshlrev_b32 v1, 4, v0")
            for q in range(64):
                e(f"  buffer_load_dwordx4 {vr(40+4*(q%24),4)}, v1, s[48:51], s44 offen")
                e("  s_add_u32 s44, s44, 1024")
        helper_wave()
        lab("f_main")
        hstamp(7)
    srd(16, 4, 5, 2048*512*2)
    e("  s_cmp_lt_u32 s13, 4")
    e("  s_cselect_b32 s20, s8, s10")
    e("  s_cselect_b32 s21, s9, s11")
    e(f"  s_mov_b32 s22, {512*512*2}")
    e("  s_mov_b32 s23, 0x00020000")
    srd(24, 6, 7, 9 << 20)
    if not FUSE:
        e("  s_or_b32 s46, s2, s15")
        e("  s_cmp_lg_u32 s46, 0")
        e("  s_cbranch_scc1 k1_nozero")
        for q in range(4):
            e(f"  v_mov_b32 v{4+q}, 0")
        e("  v_lshlrev_b32 v8, 4, v0")
        e(f"  s_mov_b32 s46, {WS_FLAG}")
        e("  buffer_store_dwordx4 v[4:7], v8, s[24:27], s46 offen")
        lab("k1_nozero")
    e("  s_lshl_b32 s28, s12, 6")
    e("  s_lshl_b32 s29, s15, 3")
    e("  s_add_u32 s28, s28, s29")
    e("  v_add_u32 v4, s28, v2")
    e("  v_lshlrev_b32 v4, 10, v4")
    e("  v_lshl_add_u32 v4, v3, 4, v4")
    X = 32
    for j in range(8):
        e(f"  buffer_load_dwordx4 {vr(X+4*j,4)}, v4, s[16:19], 0 offen offset:{128*j}")
    e("  s_and_b32 s30, s13, 3")
    e("  s_lshl_b32 s30, s30, 7")
    for ii in range(2):
        e(f"  s_lshl_b32 s31, s15, 4")
        e(f"  s_add_u32 s31, s31, {8*ii}")
        e(f"  v_add_u32 v7, s31, v2")
        e(f"  v_lshrrev_b32 v8, 1, v7")
        e(f"  v_and_b32 v8, 7, v8")
        e(f"  v_xor_b32 v8, v8, v3")
        e(f"  v_add_u32 v7, s30, v7")
        e(f"  v_lshlrev_b32 v7, 10, v7")
        e(f"  v_lshl_add_u32 v{5+ii}, v8, 4, v7")
    e("  s_lshl_b32 s32, s15, 11")
    def wdma(kb):
        slot = kb % 4
        e(f"  s_mov_b32 s33, {128*kb}")
        for ii in range(2):
            e(f"  s_add_u32 m0, s32, {slot*16384 + ii*1024}")
            e("  s_nop 0")
            e(f"  buffer_load_dwordx4 v{5+ii}, s[20:23], s33 offen lds")
    for kb in range(4):
        wdma(kb)
    PFM = OPT('F_PFM', 0)
    STG = 128
    if PFM:
        for kb in range(4, 8):
            e(f"  s_mov_b32 s33, {128*kb}")
            for ii in range(2):
                e(f"  buffer_load_dwordx4 {vr(STG+8*(kb-4)+4*ii,4)}, v{5+ii}, s[20:23], s33 offen")
        e("  s_and_b32 s44, s2, 7")
        e("  s_cmp_lt_u32 s44, 4")
        e("  s_cselect_b32 s48, s52, s54")
        e("  s_cselect_b32 s49, s53, s55")
        e(f"  s_mov_b32 s50, {2048*2048*2}")
        e("  s_mov_b32 s51, 0x00020000")
        e("  s_and_b32 s44, s44, 3")
        e("  s_lshl_b32 s44, s44, 21")
        e("  s_lshr_b32 s45, s2, 3")
        e("  s_lshl_b32 s45, s45, 16")
        e("  s_add_u32 s44, s44, s45")
        e("  s_lshl_b32 s45, s15, 13")
        e("  s_add_u32 s44, s44, s45")
        e("  v_lshlrev_b32 v7, 4, v0")
        for q in range(8):
            e(f"  buffer_load_dwordx4 v[160:163], v7, s[48:51], s44 offen")
            e("  s_add_u32 s44, s44, 1024")
    e("  s_mov_b32 s34, 0x3f803f80")
    for a in range(4):
        e(f"  v_mov_b32 v{8+a}, 0")
    e(f"  s_waitcnt vmcnt({24 if PFM else 8})")
    for i in range(32):
        e(f"  v_dot2_f32_bf16 v{8+i%4}, v{X+i}, s34, v{8+i%4}")
    e("  s_nop 3")
    e("  v_add_f32 v8, v8, v9")
    e("  v_add_f32 v10, v10, v11")
    e("  v_add_f32 v8, v8, v10")
    reduce8(8)
    e("  v_mul_f32 v8, 0x3b000000, v8")
    e("  v_cvt_pk_bf16_f32 v9, v8, v8")
    e("  v_lshlrev_b32 v9, 16, v9")
    e("  v_sub_f32 v10, 0, v9")
    e("  v_mov_b32 v11, v10")
    D = 64
    for a in range(4):
        e(f"  v_mov_b32 v{12+a}, 0")
    for i in range(32):
        e(f"  v_lshlrev_b32 v{D+2*i}, 16, v{X+i}")
        e(f"  v_and_b32 v{D+2*i+1}, 0xffff0000, v{X+i}")
        e(f"  v_pk_add_f32 {vr(D+2*i,2)}, {vr(D+2*i,2)}, v[10:11]")
        q = 12 + 2*(i % 2)
        e(f"  v_pk_fma_f32 {vr(q,2)}, {vr(D+2*i,2)}, {vr(D+2*i,2)}, {vr(q,2)}")
    e("  v_add_f32 v12, v12, v13")
    e("  v_add_f32 v14, v14, v15")
    e("  v_add_f32 v12, v12, v14")
    reduce8(12)
    e("  v_sub_f32 v13, v8, v9")
    e("  v_mul_f32 v13, v13, v13")
    e("  v_mul_f32 v12, 0x3b000000, v12")
    e("  v_sub_f32 v12, v12, v13")
    e("  v_max_f32 v12, 0, v12")
    e("  v_cvt_pk_bf16_f32 v12, v12, v12")
    e("  v_lshlrev_b32 v12, 16, v12")
    e("  v_add_f32 v12, 0x3727c5ac, v12")
    e("  v_cvt_pk_bf16_f32 v12, v12, v12")
    e("  v_lshlrev_b32 v12, 16, v12")
    e("  v_sqrt_f32 v12, v12")
    e("  s_nop 0")
    e("  v_cvt_pk_bf16_f32 v12, v12, v12")
    e("  v_lshlrev_b32 v12, 16, v12")
    e("  v_rcp_f32 v12, v12")
    e("  s_nop 0")
    e("  v_mov_b32 v13, v12")
    for i in range(32):
        e(f"  v_cvt_pk_bf16_f32 v{X+i}, v{D+2*i}, v{D+2*i+1}")
        e(f"  v_lshlrev_b32 v{D+2*i}, 16, v{X+i}")
        e(f"  v_and_b32 v{D+2*i+1}, 0xffff0000, v{X+i}")
        e(f"  v_pk_mul_f32 {vr(D+2*i,2)}, {vr(D+2*i,2)}, v[12:13]")
        e(f"  v_cvt_pk_bf16_f32 v{X+i}, v{D+2*i}, v{D+2*i+1}")
    e("  v_add_u32 v14, s29, v2")
    e("  v_lshrrev_b32 v15, 1, v14")
    e("  v_and_b32 v15, 7, v15")
    e("  v_xor_b32 v15, v15, v3")
    e("  v_lshlrev_b32 v14, 7, v14")
    e("  v_lshl_add_u32 v14, v15, 4, v14")
    e("  v_add_u32 v14, 0x10000, v14")
    for j in range(8):
        e(f"  ds_write_b128 v14, {vr(X+4*j,4)} offset:{8192*j}")
    e("  s_and_b32 s35, s15, 1")
    e("  s_lshr_b32 s36, s15, 1")
    e("  v_and_b32 v16, 31, v0")
    e("  v_lshrrev_b32 v17, 5, v0")
    def fragaddr(dst, sblk, base):
        e(f"  s_lshl_b32 s37, s{sblk}, 5")
        e(f"  v_add_u32 v18, s37, v16")
        e(f"  v_lshrrev_b32 v19, 1, v18")
        e(f"  v_and_b32 v19, 7, v19")
        e(f"  v_xor_b32 v19, v19, v17")
        e(f"  v_lshlrev_b32 v18, 7, v18")
        e(f"  v_lshl_add_u32 v{dst}, v19, 4, v18")
        if base:
            e(f"  v_add_u32 v{dst}, {base}, v{dst}")
        for kk in range(1, 4):
            e(f"  v_xor_b32 v{dst+kk}, {32*kk}, v{dst}")
    fragaddr(20, 35, 0x10000)
    fragaddr(24, 36, 0)
    ACC = 96
    for i in range(16):
        e(f"  v_mov_b32 v{ACC+i}, 0")
    FA, FB = 64, 80
    waits = [22, 14, 12, 10, 8, 8, 8, 8] if PFM else [6, 4, 4, 4, 4, 4, 2, 0]
    if PFM:
        e("  v_lshlrev_b32 v28, 4, v0")
        e("  v_add_u32 v28, s32, v28")
    for kb in range(8):
        e(f"  s_waitcnt vmcnt({waits[kb]}) lgkmcnt(0)")
        e("  s_barrier")
        if 1 <= kb <= 4 and PFM:
            for ii in range(2):
                e(f"  ds_write_b128 v28, {vr(STG+8*(kb-1)+4*ii,4)} offset:{((kb+3)%4)*16384 + ii*1024}")
        elif 1 <= kb <= 4:
            wdma(kb + 3)
        slot = kb % 4
        for kk in range(4):
            e(f"  ds_read_b128 {vr(FA+4*kk,4)}, v{20+kk} offset:{8192*kb}")
            e(f"  ds_read_b128 {vr(FB+4*kk,4)}, v{24+kk} offset:{16384*slot}")
        for kk in range(4):
            e(f"  s_waitcnt lgkmcnt({6-2*kk})")
            e(f"  v_mfma_f32_32x32x16_bf16 {vr(ACC,16)}, {vr(FA+4*kk,4)}, {vr(FB+4*kk,4)}, {vr(ACC,16)}")
    stamp(5)
    e("  s_lshl_b32 s37, s13, 1")
    e("  s_lshr_b32 s38, s36, 1")
    e("  s_add_u32 s37, s37, s38")
    e("  s_lshl_b32 s37, s37, 5")
    e("  s_add_u32 s37, s37, s12")
    e("  s_lshl_b32 s37, s37, 13")
    e("  s_and_b32 s38, s36, 1")
    e("  s_lshl_b32 s38, s38, 5")
    e("  v_add_u32 v18, s38, v16")
    e("  v_lshrrev_b32 v19, 1, v18")
    e("  v_and_b32 v19, 7, v19")
    e("  s_lshl_b32 s38, s35, 2")
    e("  v_add_u32 v29, s38, v17")
    e("  v_xor_b32 v29, v29, v19")
    e("  v_lshlrev_b32 v18, 7, v18")
    e("  v_lshl_add_u32 v30, v29, 4, v18")
    e("  v_xor_b32 v31, 32, v30")
    e("  s_nop 7")
    P = 112
    for g in range(4):
        e(f"  v_cvt_pk_bf16_f32 v{P+2*g}, v{ACC+4*g}, v{ACC+4*g+1}")
        e(f"  v_cvt_pk_bf16_f32 v{P+2*g+1}, v{ACC+4*g+2}, v{ACC+4*g+3}")
    e("  s_nop 1")
    for p in range(2):
        e(f"  v_permlane32_swap_b32 v{P+4*p}, v{P+4*p+2}")
        e(f"  v_permlane32_swap_b32 v{P+4*p+1}, v{P+4*p+3}")
    if not FUSE:
        e(f"  buffer_store_dwordx4 {vr(P,4)}, v30, s[24:27], s37 offen")
        e(f"  buffer_store_dwordx4 {vr(P+4,4)}, v31, s[24:27], s37 offen")
        lab("k1_done")
        kernel_end()
        e("  s_endpgm")
        kernel_desc(name, 160)
        return
    TR = 131072
    e(f"  s_load_dwordx4 s[8:11], s[0:1], {KA_WSRE}")
    e("  s_lshr_b32 s38, s36, 1")
    e("  s_lshl_b32 s38, s38, 13")
    e(f"  s_add_u32 s38, s38, {TR}")
    e("  v_add_u32 v30, s38, v30")
    e("  v_add_u32 v31, s38, v31")
    e(f"  ds_write_b128 v30, {vr(P,4)}")
    e(f"  ds_write_b128 v31, {vr(P+4,4)}")
    e("  v_lshlrev_b32 v29, 4, v0")
    e("  s_lshl_b32 s38, s15, 11")
    e(f"  s_add_u32 s39, s38, {TR}")
    e("  v_add_u32 v28, s39, v29")
    e("  s_waitcnt lgkmcnt(0)")
    e("  s_barrier")
    e("  ds_read_b128 v[64:67], v28")
    e("  ds_read_b128 v[68:71], v28 offset:1024")
    e("  s_lshl_b32 s37, s13, 1")
    e("  s_lshr_b32 s39, s15, 2")
    e("  s_add_u32 s37, s37, s39")
    e("  s_lshl_b32 s37, s37, 5")
    e("  s_add_u32 s37, s37, s12")
    e("  s_lshl_b32 s37, s37, 13")
    e("  s_and_b32 s39, s15, 3")
    e("  s_lshl_b32 s39, s39, 11")
    e("  s_add_u32 s37, s37, s39")
    e("  s_waitcnt lgkmcnt(1)")
    e("  buffer_store_dwordx4 v[64:67], v29, s[24:27], s37 offen sc1")
    e("  s_waitcnt lgkmcnt(0)")
    e("  buffer_store_dwordx4 v[68:71], v29, s[24:27], s37 offen offset:1024 sc1")
    e("  s_lshl_b32 s70, s13, 5")
    e("  s_add_u32 s70, s70, s12")
    e("  s_lshl_b32 s70, s70, 2")
    e(f"  s_add_u32 s70, s70, {WS_FA}")

def k2_epilogue_plain(ACC):
    e("  s_lshl_b32 s24, s14, 21")
    e(f"  s_add_u32 s24, s24, {WS_Y}")
    e("  s_lshl_b32 s30, s13, 7")
    e("  s_add_u32 s24, s24, s30")
    e("  s_lshl_b32 s30, s12, 7")
    e("  s_lshl_b32 s31, s15, 5")
    e("  s_add_u32 s30, s30, s31")
    e("  v_add_u32 v18, s30, v16")
    e("  v_lshlrev_b32 v18, 10, v18")
    e("  v_lshl_add_u32 v18, v17, 4, v18")
    e("  s_nop 7")
    P = 64
    for g in range(8):
        e(f"  v_cvt_pk_bf16_f32 v{P+2*g}, v{ACC+4*g}, v{ACC+4*g+1}")
        e(f"  v_cvt_pk_bf16_f32 v{P+2*g+1}, v{ACC+4*g+2}, v{ACC+4*g+3}")
    e("  s_nop 1")
    for p in range(4):
        e(f"  v_permlane32_swap_b32 v{P+4*p}, v{P+4*p+2}")
        e(f"  v_permlane32_swap_b32 v{P+4*p+1}, v{P+4*p+3}")
    for p in range(4):
        e(f"  buffer_store_dwordx4 {vr(P+4*p,4)}, v18, s[20:23], s24 offen offset:{32*p}")

ROW_O = 48
def reduce32(v, t):
    reduce16(v)
    e("  s_nop 1")
    e(f"  ds_swizzle_b32 v{t}, v{v} offset:0x401F")
    e("  s_waitcnt lgkmcnt(0)")
    e(f"  v_add_f32 v{v}, v{v}, v{t}")

def rowmac32_pre():
    XX, WR = 48, 64
    e("  v_lshlrev_b32 v3, 10, v1")
    e("  v_lshl_add_u32 v3, v2, 4, v3")
    e("  v_lshlrev_b32 v4, 4, v2")
    for j in range(2):
        e(f"  buffer_load_dwordx4 {vr(XX+4*j,4)}, v3, s[20:23], 0 offen offset:{512*j}")
        e(f"  buffer_load_dwordx4 {vr(WR+4*j,4)}, v4, s[28:31], 0 offen offset:{512*j}")

def rowmac32():
    YR, YI, XX, WR, H, T, D = 16, 32, 48, 64, 80, 112, 116
    O = ROW_O
    e(f"  s_mov_b32 s52, {WS_Y}")
    e(f"  s_mov_b32 s53, {WS_Y + (2<<20)}")
    for j in range(2):
        e(f"  buffer_load_dwordx4 {vr(YR+4*j,4)}, v3, s[24:27], s52 offen offset:{512*j} sc1")
        e(f"  buffer_load_dwordx4 {vr(YI+4*j,4)}, v3, s[24:27], s53 offen offset:{512*j} sc1")
    e("  v_mov_b32 v14, 0")
    e("  v_mov_b32 v15, 0")
    for j in range(2):
        e(f"  s_waitcnt vmcnt({2*(1-j)})")
        for q in range(4):
            i = 4*j + q
            e(f"  v_lshlrev_b32 v{T}, 16, v{YR+i}")
            e(f"  v_and_b32 v{T+1}, 0xffff0000, v{YR+i}")
            e(f"  v_lshlrev_b32 v{T+2}, 16, v{YI+i}")
            e(f"  v_and_b32 v{T+3}, 0xffff0000, v{YI+i}")
            e(f"  v_pk_add_f32 {vr(T,2)}, {vr(T,2)}, {vr(T+2,2)} neg_lo:[0,1] neg_hi:[0,1]")
            e(f"  v_cvt_pk_bf16_f32 v{T}, v{T}, v{T+1}")
            e(f"  v_and_b32 v{T+1}, 0xffff0000, v{T}")
            e(f"  v_lshlrev_b32 v{T}, 16, v{T}")
            e(f"  v_lshlrev_b32 v{T+2}, 16, v{XX+i}")
            e(f"  v_and_b32 v{T+3}, 0xffff0000, v{XX+i}")
            e(f"  v_pk_add_f32 {vr(T,2)}, {vr(T,2)}, {vr(T+2,2)}")
            e(f"  v_cvt_pk_bf16_f32 v{T}, v{T}, v{T+1}")
            e(f"  v_lshlrev_b32 v{H+2*i}, 16, v{T}")
            e(f"  v_and_b32 v{H+2*i+1}, 0xffff0000, v{T}")
            e(f"  v_pk_add_f32 v[14:15], v[14:15], {vr(H+2*i,2)}")
    e("  v_add_f32 v5, v14, v15")
    reduce32(5, 13)
    e("  v_mul_f32 v5, 0x3b000000, v5")
    e("  v_cvt_pk_bf16_f32 v6, v5, v5")
    e("  v_lshlrev_b32 v6, 16, v6")
    e("  v_sub_f32 v8, 0, v6")
    e("  v_mov_b32 v9, v8")
    e("  v_mov_b32 v10, 0")
    e("  v_mov_b32 v11, 0")
    for i in range(8):
        e(f"  v_pk_add_f32 {vr(D+2*i,2)}, {vr(H+2*i,2)}, v[8:9]")
        e(f"  v_pk_fma_f32 v[10:11], {vr(D+2*i,2)}, {vr(D+2*i,2)}, v[10:11]")
    e("  v_add_f32 v10, v10, v11")
    reduce32(10, 13)
    e("  v_sub_f32 v11, v5, v6")
    e("  v_mul_f32 v11, v11, v11")
    e("  v_mul_f32 v10, 0x3b000000, v10")
    e("  v_sub_f32 v10, v10, v11")
    e("  v_max_f32 v10, 0, v10")
    e("  v_cvt_pk_bf16_f32 v10, v10, v10")
    e("  v_lshlrev_b32 v10, 16, v10")
    e("  v_add_f32 v10, 0x3727c5ac, v10")
    e("  v_cvt_pk_bf16_f32 v10, v10, v10")
    e("  v_lshlrev_b32 v10, 16, v10")
    e("  v_sqrt_f32 v10, v10")
    e("  s_nop 0")
    e("  v_cvt_pk_bf16_f32 v10, v10, v10")
    e("  v_lshlrev_b32 v10, 16, v10")
    e("  v_rcp_f32 v10, v10")
    e("  s_nop 0")
    e("  v_mov_b32 v11, v10")
    e("  v_mov_b32 v12, 0")
    for i in range(8):
        e(f"  v_cvt_pk_bf16_f32 v{T}, v{D+2*i}, v{D+2*i+1}")
        e(f"  v_lshlrev_b32 v{D+2*i}, 16, v{T}")
        e(f"  v_and_b32 v{D+2*i+1}, 0xffff0000, v{T}")
        e(f"  v_pk_mul_f32 {vr(D+2*i,2)}, {vr(D+2*i,2)}, v[10:11]")
        e(f"  v_cvt_pk_bf16_f32 v{T}, v{D+2*i}, v{D+2*i+1}")
        e(f"  v_dot2_f32_bf16 v12, v{T}, v{WR+i}, v12")
        e(f"  v_lshlrev_b32 v{D+2*i}, 16, v{T}")
        e(f"  v_and_b32 v{D+2*i+1}, 0xffff0000, v{T}")
        e(f"  v_pk_add_f32 {vr(D+2*i,2)}, {vr(D+2*i,2)}, {vr(H+2*i,2)}")
        e(f"  v_cvt_pk_bf16_f32 v{O+i}, v{D+2*i}, v{D+2*i+1}")
    if not MEGA:
        for j in range(2):
            e(f"  buffer_store_dwordx4 {vr(O+4*j,4)}, v3, s[44:47], 0 offen offset:{512*j}")
    e("  s_nop 3")
    reduce32(12, 13)
    e("  v_cvt_pk_bf16_f32 v12, v12, v12")
    e("  v_lshlrev_b32 v12, 16, v12")
    e("  v_ashrrev_i32 v13, 31, v12")
    e("  v_or_b32 v13, 0x80000000, v13")
    e("  v_xor_b32 v12, v12, v13")
    e("  v_and_b32 v12, 0xffff0000, v12")
    e("  v_sub_u32 v13, 0xffff, v1")
    e("  v_or_b32 v12, v12, v13")

MT_C, MT_R, MT_WD = 0, 256, 8704
MT_G, MT_U, MT_XS = 8704, 8704 + 8192, 8704 + 16384
def poll_end(lbl):
    e("  s_nop 3")
    e("  s_cmp_eq_u64 s[54:55], 0")
    e(f"  s_cbranch_scc1 {lbl}_ok")
    e("  s_add_u32 s53, s53, 1")
    e(f"  s_cmp_gt_u32 s53, {1 << 22}")
    e(f"  s_cbranch_scc1 {lbl}_ok")
    e(f"  s_branch {lbl}")
    lab(f"{lbl}_ok")

def mega_gu_dma():
    e("  s_and_b32 s3, s2, 7")
    e("  s_mul_i32 s3, s3, 28")
    e("  s_lshr_b32 s32, s2, 3")
    e("  s_add_u32 s3, s3, s32")
    e("  s_cmp_ge_u32 s2, 224")
    e("  s_cbranch_scc1 mt_nogu")
    srd(16, 58, 59, 512*1792*2)
    srd(8, 60, 61, 512*1792*2)
    e("  s_lshl_b32 s35, s3, 4")
    e("  s_movk_i32 s32, 3584")
    for ii in range(2):
        e(f"  s_lshl_b32 s33, s15, 7")
        e(f"  s_add_u32 s33, s33, {64*ii}")
        e(f"  v_add_u32 v8, s33, v0")
        e(f"  v_mul_lo_u32 v8, v8, s32")
        e(f"  s_lshl_b32 s34, s15, 11")
        e(f"  s_add_u32 m0, s34, {MT_G + 1024*ii}")
        e("  s_nop 0")
        e(f"  buffer_load_dwordx4 v8, s[16:19], s35 offen lds")
        e(f"  s_add_u32 m0, s34, {MT_U + 1024*ii}")
        e("  s_nop 0")
        e(f"  buffer_load_dwordx4 v8, s[8:11], s35 offen lds")
    lab("mt_nogu")

def mega_tail():
    C = MT_C
    for i in range(8):
        e(f"  v_mov_b32 v{152+i}, v{48+i}")
    e("  v_mov_b32 v151, v1")
    e("  v_mov_b32 v150, v3")
    e("  v_lshl_add_u32 v40, s15, 6, v0")
    e("  v_mov_b32 v16, v12")
    e("  v_mov_b32 v17, v6")
    e("  v_mov_b32 v18, v10")
    e("  v_mov_b32 v19, s68")
    e("  v_lshlrev_b32 v13, 4, v1")
    e("  v_cmp_eq_u32 vcc, 0, v2")
    e("  s_and_saveexec_b64 s[50:51], vcc")
    e(f"  s_mov_b32 s52, {WS_REC}")
    e("  buffer_store_dwordx4 v[16:19], v13, s[24:27], s52 offen sc1")
    e("  s_mov_b64 exec, s[50:51]")
    e("  s_cmp_lg_u32 s2, 255")
    e("  s_cbranch_scc1 mt_nosel")
    e("  v_lshlrev_b32 v13, 4, v40")
    e("  s_mov_b32 s53, 0")
    lab("mt_prec")
    for i in range(8):
        e(f"  s_mov_b32 s52, {WS_REC + 4096*i}")
        e(f"  buffer_load_dwordx4 {vr(64+4*i,4)}, v13, s[24:27], s52 offen sc1")
    e("  v_mov_b32 v14, 0")
    for i in range(8):
        e(f"  s_waitcnt vmcnt({7-i})")
        e(f"  v_xor_b32 v15, s68, v{67+4*i}")
        e("  v_or_b32 v14, v14, v15")
    e("  v_cmp_ne_u32 s[54:55], 0, v14")
    poll_end("mt_prec")
    top8([64+4*i for i in range(8)], range(16, 24), C, "s15")
    e("  v_and_b32 v3, 31, v0")
    e("  v_lshlrev_b32 v3, 2, v3")
    e(f"  ds_read_b32 v24, v3 offset:{C}")
    e("  v_mov_b32 v4, 0")
    for q in range(8):
        e(f"  ds_read_b128 {vr(96+4*q,4)}, v4 offset:{C+16*q}")
    e("  v_mov_b32 v25, 0")
    e("  s_waitcnt lgkmcnt(0)")
    sp = [32, 34, 36, 38]
    for i in range(32 + 3):
        if i < 32:
            e(f"  v_cmp_gt_u32 s[{sp[i%4]}:{sp[i%4]+1}], v{96+i}, v24")
        if i >= 3:
            j = i - 3
            e(f"  v_addc_co_u32 v25, vcc, 0, v25, s[{sp[j%4]}:{sp[j%4]+1}]")
    e("  s_cmp_lg_u32 s15, 0")
    e("  s_cbranch_scc1 mt_nosel")
    e("  v_lshlrev_b32 v3, 3, v25")
    e("  v_mov_b32 v26, v24")
    e("  v_mov_b32 v27, s68")
    e("  v_cmp_gt_u32 vcc, 8, v25")
    e("  v_cmp_gt_u32 s[42:43], 32, v0")
    e("  s_and_b64 vcc, vcc, s[42:43]")
    e("  s_and_saveexec_b64 s[50:51], vcc")
    e(f"  s_mov_b32 s52, {WS_SEL}")
    e("  buffer_store_dwordx2 v[26:27], v3, s[24:27], s52 offen sc1")
    e("  s_mov_b64 exec, s[50:51]")
    lab("mt_nosel")
    e("  s_cmp_lg_u32 s15, 0")
    e("  s_cbranch_scc1 mt_selbar")
    e("  v_and_b32 v3, 7, v0")
    e("  v_lshlrev_b32 v4, 3, v3")
    e("  v_lshlrev_b32 v3, 2, v3")
    e(f"  s_mov_b32 s52, {WS_SEL}")
    e("  s_mov_b32 s53, 0")
    lab("mt_psel")
    e("  buffer_load_dwordx2 v[26:27], v4, s[24:27], s52 offen sc1")
    e("  s_waitcnt vmcnt(0)")
    e("  v_cmp_ne_u32 s[54:55], s68, v27")
    poll_end("mt_psel")
    e(f"  ds_write_b32 v3, v26 offset:{C+128}")
    e("  s_waitcnt lgkmcnt(0)")
    lab("mt_selbar")
    e("  s_barrier")
    stamp(5)
    e("  v_mov_b32 v4, 0")
    e(f"  ds_read_b128 v[16:19], v4 offset:{C+128}")
    e(f"  ds_read_b128 v[20:23], v4 offset:{C+144}")
    e("  v_sub_u32 v5, 0xffff, v151")
    e("  s_waitcnt lgkmcnt(0)")
    e("  s_mov_b64 s[42:43], exec")
    for k in range(8):
        e(f"  v_and_b32 v{16+k}, 0xffff, v{16+k}")
        e(f"  v_cmp_ne_u32 vcc, v{16+k}, v5")
        e("  s_and_b64 s[42:43], s[42:43], vcc")
    e("  s_and_saveexec_b64 s[50:51], s[42:43]")
    e("  s_cbranch_execz mt_nostore")
    for j in range(2):
        e(f"  buffer_store_dwordx4 {vr(152+4*j,4)}, v150, s[44:47], 0 offen offset:{512*j}")
    lab("mt_nostore")
    e("  s_mov_b64 exec, s[50:51]")
    e("  s_cmp_ge_u32 s2, 240")
    e("  s_cbranch_scc1 k2_done")
    e("  s_cmp_ge_u32 s2, 224")
    e("  s_cbranch_scc1 mt_f2")
    e("  v_lshrrev_b32 v4, 5, v40")
    e("  v_and_b32 v5, 31, v40")
    e("  v_lshlrev_b32 v3, 2, v4")
    e(f"  ds_read_b32 v6, v3 offset:{C+128}")
    e("  s_waitcnt lgkmcnt(0)")
    e("  v_and_b32 v6, 0xffff, v6")
    e("  v_sub_u32 v6, 0xffff, v6")
    e("  v_lshlrev_b32 v7, 10, v6")
    e("  v_lshl_add_u32 v7, v5, 4, v7")
    e(f"  s_mov_b32 s52, {WS_Y}")
    e(f"  s_mov_b32 s53, {WS_Y + (2<<20)}")
    YR, YI, XX = 16, 24, 32
    for j in range(2):
        e(f"  buffer_load_dwordx4 {vr(YR+4*j,4)}, v7, s[24:27], s52 offen offset:{512*j} sc1")
        e(f"  buffer_load_dwordx4 {vr(YI+4*j,4)}, v7, s[24:27], s53 offen offset:{512*j} sc1")
        e(f"  buffer_load_dwordx4 {vr(XX+4*j,4)}, v7, s[20:23], 0 offen offset:{512*j}")
    e("  v_lshlrev_b32 v3, 4, v6")
    e(f"  s_mov_b32 s52, {WS_REC}")
    e("  buffer_load_dwordx4 v[44:47], v3, s[24:27], s52 offen sc1")
    e("  s_waitcnt vmcnt(0)")
    e("  v_sub_f32 v54, 0, v45")
    e("  v_mov_b32 v55, v54")
    e("  v_mov_b32 v52, v46")
    e("  v_mov_b32 v53, v46")
    recompute(YR, YI, XX, 8, 54, 52, 64, 80, 56)
    e(f"  v_mul_u32_u24 v3, {XS_STRIDE}, v4")
    e("  v_lshl_add_u32 v3, v5, 4, v3")
    e(f"  ds_write_b128 v3, v[80:83] offset:{MT_XS}")
    e(f"  ds_write_b128 v3, v[84:87] offset:{MT_XS+512}")
    e("  s_waitcnt lgkmcnt(0)")
    e("  s_barrier")
    e("  s_cmp_lg_u32 s15, 0")
    e("  s_cbranch_scc1 k2_done")
    e("  v_and_b32 v3, 7, v0")
    e(f"  v_mul_u32_u24 v3, {XS_STRIDE}, v3")
    e("  v_lshrrev_b32 v4, 4, v0")
    e("  v_lshl_add_u32 v3, v4, 4, v3")
    e("  v_and_b32 v5, 15, v0")
    e("  v_lshrrev_b32 v5, 2, v5")
    e("  v_lshl_add_u32 v5, v4, 3, v5")
    e("  v_lshlrev_b32 v5, 4, v5")
    e("  v_and_b32 v6, 1, v0")
    e("  v_lshl_add_u32 v5, v6, 3, v5")
    e("  v_and_b32 v6, 2, v0")
    e("  v_lshl_add_u32 v5, v6, 12, v5")
    for i in range(4):
        e(f"  v_mov_b32 v{8+i}, 0")
    FA, FB = 16, 80
    for st in range(16):
        e(f"  ds_read_b128 {vr(FA+4*st,4)}, v3 offset:{MT_XS + 64*st}")
        e(f"  ds_read_b64_tr_b16 {vr(FB+4*st,2)}, v5 offset:{MT_G+512*st}")
        e(f"  ds_read_b64_tr_b16 {vr(FB+4*st+2,2)}, v5 offset:{MT_G+512*st+64}")
        if st % 4 == 3:
            e("  s_waitcnt lgkmcnt(0)")
            for s2 in range(st-3, st+1):
                e(f"  v_mfma_f32_16x16x32_bf16 v[8:11], {vr(FA+4*s2,4)}, {vr(FB+4*s2,4)}, v[8:11]")
    e("  s_nop 15")
    for i in range(4):
        e(f"  v_cvt_pk_bf16_f32 v{8+i}, v{8+i}, v{8+i}")
        e(f"  v_lshlrev_b32 v{8+i}, 16, v{8+i}")
    e("  s_nop 1")
    for i in range(4):
        e(f"  v_mov_b32_dpp v{12+i}, v{8+i} row_ror:8 row_mask:0xf bank_mask:0xf")
    for i in range(4):
        e(f"  v_mul_f32 v16, 0xbfb8aa3b, v{8+i}")
        e("  v_exp_f32 v16, v16")
        e("  s_nop 0")
        e("  v_add_f32 v16, 1.0, v16")
        e("  v_rcp_f32 v16, v16")
        e("  s_nop 0")
        e(f"  v_mul_f32 v16, v{8+i}, v16")
        e("  v_cvt_pk_bf16_f32 v16, v16, v16")
        e("  v_lshlrev_b32 v16, 16, v16")
        e(f"  v_mul_f32 v16, v16, v{12+i}")
        e(f"  v_cvt_pk_bf16_f32 v{20+i}, v16, v16")
    e("  s_nop 1")
    for i in range(4):
        e(f"  v_mov_b32_dpp v{24+i}, v{20+i} quad_perm:[1,0,3,2] row_mask:0xf bank_mask:0xf")
    for i in range(4):
        e(f"  v_and_b32 v{20+i}, 0xffff, v{20+i}")
        e(f"  v_and_b32 v{24+i}, 0xffff0000, v{24+i}")
        e(f"  v_or_b32 v{20+i}, v{20+i}, v{24+i}")
        e(f"  v_min_u32 v{20+i}, 0xfffeffff, v{20+i}")
    e("  v_and_b32 v5, 15, v0")
    e("  v_lshlrev_b32 v4, 6, v4")
    e("  v_lshl_add_u32 v4, v5, 1, v4")
    e("  v_lshlrev_b32 v7, 4, v0")
    e("  v_and_b32 v6, 9, v0")
    e("  v_cmp_eq_u32 vcc, 0, v6")
    e("  v_cmp_gt_u32 s[42:43], 32, v0")
    e("  s_and_b64 vcc, vcc, s[42:43]")
    e("  s_and_saveexec_b64 s[50:51], vcc")
    for i in range(4):
        e(f"  ds_write_b32 v4, v{20+i} offset:{MT_R+16*i}")
    e("  s_mov_b64 exec, 0xff")
    e("  s_waitcnt lgkmcnt(0)")
    e(f"  ds_read_b128 v[24:27], v7 offset:{MT_R}")
    e("  s_lshl_b32 s35, s3, 7")
    e(f"  s_add_u32 s35, s35, {WS_GU}")
    e("  s_waitcnt lgkmcnt(0)")
    e("  buffer_store_dwordx4 v[24:27], v7, s[24:27], s35 offen sc1")
    e("  s_mov_b64 exec, -1")
    hstamp(8)
    e("  s_branch k2_done")
    lab("mt_f2")
    e("  s_sub_u32 s49, s2, 224")
    e("  v_lshlrev_b32 v3, 4, v0")
    e("  s_mul_i32 s34, s15, 7168")
    e(f"  s_mul_i32 s33, s49, {4*28672}")
    e("  s_add_u32 s33, s33, s34")
    e(f"  s_add_u32 s33, s33, {WS_WDB}")
    for dsl in range(4):
        for i in range(7):
            e(f"  s_add_u32 m0, s34, {MT_WD + dsl*28672 + 1024*i}")
            e("  s_nop 0")
            e(f"  buffer_load_dwordx4 v3, s[24:27], s33 offen sc1 lds")
            e(f"  s_add_u32 s33, s33, {1024 if i < 6 else 28672 - 6*1024}")
    e("  v_lshrrev_b32 v5, 4, v0")
    e("  v_and_b32 v6, 1, v5")
    e("  v_lshlrev_b32 v6, 4, v6")
    e(f"  ds_read_b128 v[24:27], v6 offset:{C+128}")
    e("  v_and_b32 v6, 15, v0")
    e("  s_lshl_b32 s35, s49, 6")
    e("  s_waitcnt lgkmcnt(0)")
    for i in range(4):
        e(f"  v_and_b32 v{28+i}, 0xffff, v{24+i}")
        e(f"  v_sub_u32 v{28+i}, 0xffff, v{28+i}")
        e(f"  v_lshlrev_b32 v{32+i}, 4, v{28+i}")
        e(f"  v_lshlrev_b32 v{28+i}, 10, v{28+i}")
        e(f"  v_lshl_add_u32 v{28+i}, v6, 1, v{28+i}")
        e(f"  v_add_u32 v{28+i}, s35, v{28+i}")
    E0 = 136
    e("  s_cmp_lg_u32 s15, 0")
    e("  s_cbranch_scc1 mt_noepi")
    e(f"  s_mov_b32 s36, {WS_Y}")
    e(f"  s_mov_b32 s37, {WS_Y + (2<<20)}")
    e(f"  s_mov_b32 s38, {WS_REC}")
    for a in range(2):
        for i in range(4):
            e(f"  buffer_load_ushort v{E0+12*a+i}, v{28+i}, s[24:27], s36 offen offset:{32*a} sc1")
            e(f"  buffer_load_ushort v{E0+4+12*a+i}, v{28+i}, s[24:27], s37 offen offset:{32*a} sc1")
            e(f"  buffer_load_ushort v{E0+8+12*a+i}, v{28+i}, s[20:23], 0 offen offset:{32*a}")
    for i in range(4):
        e(f"  buffer_load_dwordx4 {vr(36+4*i,4)}, v{32+i}, s[24:27], s38 offen sc1")
    lab("mt_noepi")
    e("  v_lshrrev_b32 v7, 2, v6")
    e("  v_lshl_add_u32 v7, v5, 3, v7")
    e("  v_lshlrev_b32 v7, 4, v7")
    e("  v_and_b32 v60, 1, v0")
    e("  v_lshl_add_u32 v7, v60, 3, v7")
    e("  v_and_b32 v60, 2, v0")
    e("  v_mul_u32_u24 v60, 14336, v60")
    e("  v_add_u32 v7, v60, v7")
    e("  v_add_u32 v7, s34, v7")
    e(f"  v_add_u32 v61, {2*28672}, v7")
    for i in range(8):
        e(f"  v_mov_b32 v{8+i}, 0")
    e("  s_waitcnt vmcnt(0)")
    for i in range(4):
        e(f"  v_and_b32 v60, 0xffff0000, v{24+i}")
        e("  v_ashrrev_i32 v62, 31, v60")
        e("  v_not_b32 v62, v62")
        e("  v_or_b32 v62, 0x80000000, v62")
        e("  v_xor_b32 v60, v60, v62")
        e("  v_and_b32 v60, 0xffff0000, v60")
        e("  v_mul_f32 v60, 0xbfb8aa3b, v60")
        e("  v_exp_f32 v60, v60")
        e("  s_nop 0")
        e("  v_add_f32 v60, 1.0, v60")
        e("  v_rcp_f32 v60, v60")
        e("  s_nop 0")
        e("  v_cvt_pk_bf16_f32 v60, v60, v60")
        e(f"  v_lshlrev_b32 v{24+i}, 16, v60")
    for a in range(2):
        for i in range(4):
            r0, r1, r2 = E0+12*a+i, E0+4+12*a+i, E0+8+12*a+i
            e(f"  v_lshlrev_b32 v{r0}, 16, v{r0}")
            e(f"  v_lshlrev_b32 v{r1}, 16, v{r1}")
            e(f"  v_lshlrev_b32 v{r2}, 16, v{r2}")
            e(f"  v_sub_f32 v60, v{r0}, v{r1}")
            e("  v_cvt_pk_bf16_f32 v60, v60, v60")
            e("  v_lshlrev_b32 v60, 16, v60")
            e(f"  v_add_f32 v60, v{r2}, v60")
            e("  v_cvt_pk_bf16_f32 v60, v60, v60")
            e(f"  v_lshlrev_b32 v{r0}, 16, v60")
            e(f"  v_sub_f32 v62, v{r0}, v{37+4*i}")
            e("  v_cvt_pk_bf16_f32 v62, v62, v62")
            e("  v_lshlrev_b32 v62, 16, v62")
            e(f"  v_mul_f32 v62, v62, v{38+4*i}")
            e("  v_cvt_pk_bf16_f32 v62, v62, v62")
            e(f"  v_lshlrev_b32 v{r1}, 16, v62")
    e("  v_and_b32 v4, 7, v0")
    e("  v_lshlrev_b32 v4, 4, v4")
    e("  v_lshl_add_u32 v4, v5, 7, v4")
    e("  v_add_u32 v62, 4096, v4")
    e("  s_mul_i32 s52, s15, 7168")
    e(f"  s_add_u32 s52, s52, {WS_GU}")
    FA = 64
    e("  s_mov_b32 s53, 0")
    lab("mt_pgu")
    for st in range(14):
        if st < 8:
            e(f"  buffer_load_dwordx4 {vr(FA+4*st,4)}, v4, s[24:27], s52 offen offset:{512*st} sc1")
        else:
            e(f"  buffer_load_dwordx4 {vr(FA+4*st,4)}, v62, s[24:27], s52 offen offset:{512*(st-8)} sc1")
    e("  v_mov_b32 v3, 0")
    for st in range(14):
        e(f"  s_waitcnt vmcnt({13-st})")
        e(f"  v_max3_u32 v3, v3, v{FA+4*st}, v{FA+4*st+1}")
        e(f"  v_max3_u32 v3, v3, v{FA+4*st+2}, v{FA+4*st+3}")
    e("  v_cmp_eq_u32 s[54:55], -1, v3")
    poll_end("mt_pgu")
    hstamp(9, 224)
    def rdB(st):
        b = 120 + 8 * (st % 2)
        e(f"  ds_read_b64_tr_b16 {vr(b,2)}, v7 offset:{MT_WD+512*st}")
        e(f"  ds_read_b64_tr_b16 {vr(b+2,2)}, v7 offset:{MT_WD+512*st+64}")
        e(f"  ds_read_b64_tr_b16 {vr(b+4,2)}, v61 offset:{MT_WD+512*st}")
        e(f"  ds_read_b64_tr_b16 {vr(b+6,2)}, v61 offset:{MT_WD+512*st+64}")
    rdB(0)
    for st in range(14):
        b = 120 + 8 * (st % 2)
        if st < 13:
            rdB(st + 1)
            e("  s_waitcnt lgkmcnt(4)")
        else:
            e("  s_waitcnt lgkmcnt(0)")
        e(f"  v_mfma_f32_16x16x32_bf16 v[8:11], {vr(FA+4*st,4)}, {vr(b,4)}, v[8:11]")
        e(f"  v_mfma_f32_16x16x32_bf16 v[12:15], {vr(FA+4*st,4)}, {vr(b+4,4)}, v[12:15]")
        e("  s_nop 3")
    e("  s_nop 15")
    e("  v_lshlrev_b32 v3, 4, v0")
    e("  s_lshl_b32 s33, s15, 11")
    e("  v_add_u32 v3, s33, v3")
    e(f"  ds_write_b128 v3, v[8:11] offset:{MT_R}")
    e(f"  ds_write_b128 v3, v[12:15] offset:{MT_R+1024}")
    e("  s_waitcnt lgkmcnt(0)")
    e("  s_barrier")
    e("  s_cmp_lg_u32 s15, 0")
    e("  s_cbranch_scc1 k2_done")
    e("  v_lshlrev_b32 v3, 4, v0")
    for w in range(1, 4):
        for a in range(2):
            e(f"  ds_read_b128 {vr(72+8*(w-1)+4*a,4)}, v3 offset:{MT_R+2048*w+1024*a}")
    e("  v_cmp_gt_u32 vcc, 32, v0")
    e("  s_and_saveexec_b64 s[50:51], vcc")
    e("  s_waitcnt lgkmcnt(0)")
    for a in range(2):
        for i in range(4):
            y = 8 + 4*a + i
            e(f"  v_add_f32 v{y}, v{y}, v{72+4*a+i}")
            e(f"  v_add_f32 v60, v{80+4*a+i}, v{88+4*a+i}")
            e(f"  v_add_f32 v{y}, v{y}, v60")
            e(f"  v_cvt_pk_bf16_f32 v{y}, v{y}, v{y}")
            e(f"  v_lshlrev_b32 v{y}, 16, v{y}")
            e(f"  v_mul_f32 v{y}, v{y}, v{24+i}")
            e(f"  v_cvt_pk_bf16_f32 v{y}, v{y}, v{y}")
            e(f"  v_lshlrev_b32 v{y}, 16, v{y}")
            e(f"  v_add_f32 v61, v{E0+4+12*a+i}, v{y}")
            e("  v_cvt_pk_bf16_f32 v61, v61, v61")
            e("  v_lshlrev_b32 v61, 16, v61")
            e(f"  v_add_f32 v61, v{E0+12*a+i}, v61")
            e("  v_cvt_pk_bf16_f32 v61, v61, v61")
            e(f"  buffer_store_short v61, v{28+i}, s[44:47], 0 offen offset:{32*a}")
    e("  s_mov_b64 exec, -1")
    hstamp(10, 224)

def k2_epilogue_fused(ACC):
    TB = 49152
    e("  s_nop 15")
    P = 64
    for g in range(8):
        e(f"  v_cvt_pk_bf16_f32 v{P+2*g}, v{ACC+4*g}, v{ACC+4*g+1}")
        e(f"  v_cvt_pk_bf16_f32 v{P+2*g+1}, v{ACC+4*g+2}, v{ACC+4*g+3}")
    e("  s_mul_i32 s30, s15, 4608")
    e(f"  s_add_u32 s30, s30, {TB}")
    e("  v_mul_u32_u24 v18, 144, v16")
    e("  v_lshl_add_u32 v18, v17, 3, v18")
    e("  v_add_u32 v18, s30, v18")
    for g in range(8):
        e(f"  ds_write_b64 v18, {vr(P+2*g,2)} offset:{16*g}")
    e("  v_lshrrev_b32 v19, 3, v0")
    e("  v_and_b32 v22, 7, v0")
    e("  v_mul_u32_u24 v20, 144, v19")
    e("  v_lshl_add_u32 v20, v22, 4, v20")
    e("  v_add_u32 v20, s30, v20")
    e("  s_waitcnt lgkmcnt(0)")
    for q in range(4):
        e(f"  ds_read_b128 {vr(80+4*q,4)}, v20 offset:{8*144*q}")
    e("  s_lshl_b32 s24, s14, 21")
    e(f"  s_add_u32 s24, s24, {WS_Y}")
    e("  s_lshl_b32 s30, s13, 7")
    e("  s_add_u32 s24, s24, s30")
    e("  s_lshl_b32 s30, s12, 7")
    e("  s_lshl_b32 s31, s15, 5")
    e("  s_add_u32 s30, s30, s31")
    e("  v_add_u32 v21, s30, v19")
    e("  v_lshlrev_b32 v21, 10, v21")
    e("  v_lshl_add_u32 v21, v22, 4, v21")
    for q in range(4):
        e(f"  s_waitcnt lgkmcnt({3-q})")
        e(f"  buffer_store_dwordx4 {vr(80+4*q,4)}, v21, s[20:23], s24 offen sc1")
        if q < 3: e("  v_add_u32 v21, 0x2000, v21")
    e("  s_waitcnt vmcnt(0)")
    e("  s_barrier")
    e(f"  s_load_dwordx2 s[4:5], s[0:1], {KA_X}")
    e(f"  s_load_dwordx8 s[56:63], s[0:1], {KA_WR}")
    e(f"  s_load_dwordx2 s[64:65], s[0:1], {KA_OUT}")
    srd(24, 6, 7, 12 << 20)
    e("  s_lshl_b32 s48, s14, 3")
    e("  s_add_u32 s48, s48, s13")
    e("  s_cmp_lg_u32 s15, 0")
    e("  s_cbranch_scc1 k2_noflag")
    e("  s_lshl_b32 s49, s12, 6")
    e("  s_lshl_b32 s50, s48, 2")
    e("  s_add_u32 s49, s49, s50")
    e(f"  s_add_u32 s49, s49, {WS_FLAG}")
    e("  v_mov_b32 v4, s68" if FUSE else "  v_mov_b32 v4, 1")
    e("  v_mov_b32 v5, 0")
    e("  s_mov_b64 s[50:51], exec")
    e("  s_mov_b64 exec, 1")
    e("  buffer_store_dword v4, v5, s[24:27], s49 offen sc1")
    e("  s_mov_b64 exec, s[50:51]")
    lab("k2_noflag")
    e("  s_waitcnt lgkmcnt(0)")
    srd(20, 4, 5, 2 << 20)
    srd(28, 56, 57, 1024)
    srd(44, 64, 65, 2 << 20)
    e("  v_lshrrev_b32 v1, 5, v0")
    e("  v_and_b32 v2, 31, v0")
    e("  s_lshl_b32 s52, s12, 7")
    e("  s_lshl_b32 s53, s48, 3")
    e("  s_add_u32 s52, s52, s53")
    e("  s_lshl_b32 s53, s15, 1")
    e("  s_add_u32 s52, s52, s53")
    e("  v_add_u32 v1, s52, v1")
    rowmac32_pre()
    if MEGA: mega_gu_dma()
    e("  v_and_b32 v7, 15, v0")
    e("  v_lshlrev_b32 v7, 2, v7")
    e("  s_lshl_b32 s49, s12, 6")
    e(f"  s_add_u32 s49, s49, {WS_FLAG}")
    e("  s_mov_b32 s53, 0")
    lab("k2_poll")
    e("  buffer_load_dword v4, v7, s[24:27], s49 offen sc1")
    e("  s_waitcnt vmcnt(0)")
    e("  v_cmp_ne_u32 s[54:55], s68, v4" if FUSE else "  v_cmp_eq_u32 s[54:55], 0, v4")
    e("  s_nop 3")
    e("  s_cmp_eq_u64 s[54:55], 0")
    e("  s_cbranch_scc1 k2_poll_ok")
    e("  s_add_u32 s53, s53, 1")
    e(f"  s_cmp_gt_u32 s53, {1 << 22}")
    e("  s_cbranch_scc1 k2_poll_ok")
    e("  s_branch k2_poll")
    lab("k2_poll_ok")
    stamp(3)
    rowmac32()
    stamp(4)
    if MEGA:
        mega_tail()
        return
    e("  v_lshlrev_b32 v13, 2, v1")
    e("  v_lshlrev_b32 v14, 3, v1")
    e("  v_mov_b32 v7, v10")
    e("  v_cmp_eq_u32 vcc, 0, v2")
    e("  s_and_saveexec_b64 s[50:51], vcc")
    e(f"  s_mov_b32 s52, {WS_KEY}")
    e("  buffer_store_dword v12, v13, s[24:27], s52 offen")
    e(f"  s_mov_b32 s52, {WS_STAT}")
    e("  buffer_store_dwordx2 v[6:7], v14, s[24:27], s52 offen")
    e("  s_mov_b64 exec, s[50:51]")
    if OPT('K2_NOGU'): return
    e("  s_cmp_ge_u32 s15, 2")
    e("  s_cbranch_scc1 k2_done")
    e("  s_cmp_eq_u32 s15, 0")
    e("  s_cselect_b32 s40, s58, s60")
    e("  s_cselect_b32 s41, s59, s61")
    e(f"  s_mov_b32 s42, {512*1792*2}")
    e("  s_mov_b32 s43, 0x00020000")
    e("  s_and_b32 s52, s2, 7")
    e("  s_lshr_b32 s53, s2, 3")
    e("  v_min_u32 v1, 55, v0")
    e("  v_cmp_lt_u32 vcc, 27, v1")
    e("  s_nop 1")
    e("  v_cndmask_b32 v2, 0, 1, vcc")
    e("  v_mul_u32_u24 v3, 28, v2")
    e("  v_sub_u32 v3, v1, v3")
    e("  v_mul_u32_u24 v2, 3584, v2")
    e("  v_lshl_add_u32 v2, v3, 4, v2")
    e("  s_mul_i32 s54, s52, 448")
    e(f"  s_mul_i32 s55, s53, {16*3584}")
    e("  s_add_u32 s54, s54, s55")
    for q in range(8):
        e(f"  buffer_load_dwordx4 {vr(80+4*q,4)}, v2, s[40:43], s54 offen")
        e(f"  s_add_u32 s54, s54, {2*3584}")

def gen_k2():
    NS = K2_NS
    name = "f_kernel" if FUSE else "k2_kernel"
    YBASE = NS * 16384
    if not FUSE:
        kernel_begin(name)
        e("  s_cmp_ge_u32 s2, 256")
        e("  s_cbranch_scc1 k2_done")
        e(f"  s_load_dwordx4 s[8:11], s[0:1], {KA_WSRE}")
        e(f"  s_load_dwordx2 s[6:7], s[0:1], {KA_WS}")
        e(f"  s_load_dwordx2 s[34:35], s[0:1], {KA_WDN}")
    else:
        e("  s_mov_b32 s71, s15")
    e("  s_and_b32 s12, s2, 7")
    e("  s_lshr_b32 s13, s2, 3")
    e("  s_lshr_b32 s14, s12, 2")
    e("  s_and_b32 s12, s12, 3")
    e("  s_lshl_b32 s12, s12, 2")
    e("  s_lshr_b32 s15, s13, 3")
    e("  s_add_u32 s12, s12, s15")
    e("  s_and_b32 s13, s13, 7")
    if FUSE:
        e("  s_mov_b32 s15, s71")
    else:
        e("  v_lshrrev_b32 v1, 6, v0")
        e("  v_and_b32 v0, 63, v0")
        e("  v_readfirstlane_b32 s15, v1")
    e("  v_lshrrev_b32 v2, 3, v0")
    e("  v_and_b32 v3, 7, v0")
    e("  s_waitcnt lgkmcnt(0)")
    e("  s_cmp_eq_u32 s14, 0")
    e("  s_cselect_b32 s16, s8, s10")
    e("  s_cselect_b32 s17, s9, s11")
    e(f"  s_mov_b32 s18, {2048*2048*2}")
    e("  s_mov_b32 s19, 0x00020000")
    srd(20, 6, 7, 9 << 20)
    e("  s_cmp_lt_u32 s15, 4")
    e("  s_cbranch_scc1 k2_consumer")
    if not FUSE:
        e("  s_cmp_lt_u32 s15, 8")
        e("  s_cbranch_scc1 k2_loader")
    if not FUSE: helper_wave()
    lab("k2_loader")
    e("  s_sub_u32 s15, s15, 4")
    for ii in range(4):
        e(f"  s_lshl_b32 s24, s15, 5")
        e(f"  s_add_u32 s24, s24, {8*ii}")
        e(f"  v_add_u32 v10, s24, v2")
        e(f"  v_lshrrev_b32 v11, 1, v10")
        e(f"  v_and_b32 v11, 7, v11")
        e(f"  v_xor_b32 v11, v11, v3")
        e(f"  s_lshl_b32 s24, s12, 7")
        e(f"  v_add_u32 v10, s24, v10")
        e(f"  v_lshlrev_b32 v10, 12, v10")
        e(f"  v_lshl_add_u32 v{4+ii}, v11, 4, v10")
    e("  s_lshl_b32 s24, s15, 11")
    e("  v_lshlrev_b32 v8, 4, v0")
    e("  v_add_u32 v8, s24, v8")
    e("  v_add_u32 v9, 1024, v8")
    e("  s_mov_b32 s25, 0")
    e("  s_lshl_b32 s26, s14, 3")
    e("  s_add_u32 s26, s26, s13")
    e("  s_lshl_b32 s26, s26, 18")
    e("  s_lshl_b32 s27, s15, 12")
    e("  s_lshl_b32 s28, s15, 11")
    e(f"  s_add_u32 s28, s28, {YBASE}")
    YSC = " sc1" if FUSE else ""
    def dmaY(slot, so="s26"):
        for i in range(2):
            e(f"  s_add_u32 m0, s28, {slot*8192 + i*1024}")
            e("  s_nop 0")
            e(f"  buffer_load_dwordx4 v{8+i}, s[20:23], {so} offen{YSC} lds")
    def dmaW(slot):
        for i in range(4):
            e(f"  s_add_u32 m0, s27, {slot*16384 + i*1024}")
            e("  s_nop 0")
            e(f"  buffer_load_dwordx4 v{4+i}, s[16:19], s25 offen lds")
    def adv():
        e("  s_add_u32 s25, s25, 128")
        e("  s_and_b32 s25, s25, 4095")
        e("  s_lshl_b32 s29, s25, 6")
        e("  s_add_u32 s26, s33, s29")
    def dma(slot):
        dmaY(slot); dmaW(slot); adv()
    e("  s_mov_b32 s33, s26")
    e(f"  s_mul_i32 s25, s13, {128*OPT('K2_ROT', 4)}")
    e("  s_and_b32 s25, s25, 4095")
    e("  s_lshl_b32 s29, s25, 6")
    e("  s_add_u32 s26, s33, s29")
    if not FUSE:
        for st in range(NS):
            dma(st)
        e(f"  s_waitcnt vmcnt({6*(NS-1)})")
        e("  s_barrier")
        for ks in range(31):
            ahead = min(ks + NS - 1, 31) - (ks + 1)
            e(f"  s_waitcnt vmcnt({6*ahead})")
            e("  s_barrier")
            if ks + NS < 32:
                dma(ks % NS)
    else:
        e("  s_mov_b32 s30, s25")
        e("  s_waitcnt vmcnt(0)")
        e("  s_barrier")
        PRE = OPT('F_PRE', 6)
        for st in range(PRE):
            dmaW(st); adv()
        e("  s_barrier")
        for st in range(PRE):
            e("  s_lshl_b32 s29, s30, 6")
            e("  s_add_u32 s31, s33, s29")
            dmaY(st, "s31")
            e("  s_add_u32 s30, s30, 128")
            e("  s_and_b32 s30, s30, 4095")
        for st in range(PRE, NS):
            dma(st)
        e(f"  s_waitcnt vmcnt({2*(PRE-1) + 6*(NS-PRE)})")
        e("  s_barrier")
        for ks in range(31):
            if ks + 1 <= PRE - 1:
                allowed = 2 * (PRE - 1 - (ks + 1)) + 6 * (NS - PRE) + 6 * ks
            else:
                allowed = 6 * (min(ks + NS - 1, 31) - (ks + 1))
            e(f"  s_waitcnt vmcnt({allowed})")
            e("  s_barrier")
            if ks + NS < 32:
                dma(ks % NS)
    e("  s_branch k2_done")
    lab("k2_consumer")
    if FUSE:
        e("  s_cmp_lg_u32 s15, 0")
        e("  s_cbranch_scc1 f_noep")
        get_epoch("co")
        e("  v_mov_b32 v4, s68")
        e(f"  v_mov_b32 v5, {K2_NS*24576}")
        e("  ds_write_b32 v5, v4")
        e("  s_waitcnt lgkmcnt(0)")
        lab("f_noep")
        e("  s_waitcnt vmcnt(0)")
        e("  s_barrier")
        e("  s_cmp_lg_u32 s15, 0")
        e("  s_cbranch_scc1 f_noflagA")
        e("  v_mov_b32 v4, s68")
        e("  v_mov_b32 v5, 0")
        e("  s_mov_b64 s[36:37], exec")
        e("  s_mov_b64 exec, 1")
        e("  buffer_store_dword v4, v5, s[20:23], s70 offen sc1")
        e("  s_mov_b64 exec, s[36:37]")
        lab("f_noflagA")
        e(f"  v_mov_b32 v158, {K2_NS*24576}")
        e("  ds_read_b32 v159, v158")
        e("  s_waitcnt lgkmcnt(0)")
        e("  v_readfirstlane_b32 s68, v159")
        if OPT('F_LPF', 0):
            e("  s_cmp_lt_u32 s15, 2")
            e("  s_cbranch_scc1 f_nolpf")
            e("  s_and_b32 s36, s2, 3")
            e("  s_lshl_b32 s36, s36, 21")
            e("  s_lshr_b32 s37, s2, 3")
            e("  s_lshl_b32 s37, s37, 16")
            e("  s_add_u32 s36, s36, s37")
            e("  s_and_b32 s37, s15, 1")
            e("  s_lshl_b32 s37, s37, 15")
            e("  s_add_u32 s36, s36, s37")
            e("  v_lshlrev_b32 v10, 4, v0")
            for q in range(32):
                e(f"  buffer_load_dwordx4 v[160:163], v10, s[16:19], s36 offen")
                e("  s_add_u32 s36, s36, 1024")
            lab("f_nolpf")
        e("  s_cmp_lg_u32 s15, 1")
        e("  s_cbranch_scc1 f_pollA_ok")
        e("  s_lshl_b32 s31, s14, 2")
        e("  s_lshr_b32 s32, s13, 1")
        e("  s_add_u32 s31, s31, s32")
        e("  s_lshl_b32 s31, s31, 7")
        e(f"  s_add_u32 s31, s31, {WS_FA}")
        e("  v_and_b32 v10, 31, v0")
        e("  v_lshlrev_b32 v10, 2, v10")
        e("  s_mov_b32 s69, 0")
        lab("f_pollA")
        e("  buffer_load_dword v11, v10, s[20:23], s31 offen sc1")
        e("  s_waitcnt vmcnt(0)")
        e("  v_cmp_ne_u32 s[36:37], s68, v11")
        e("  s_nop 3")
        e("  s_cmp_eq_u64 s[36:37], 0")
        e("  s_cbranch_scc1 f_pollA_ok")
        e("  s_add_u32 s69, s69, 1")
        e(f"  s_cmp_gt_u32 s69, {1 << 22}")
        e("  s_cbranch_scc1 f_pollA_ok")
        e("  s_branch f_pollA")
        lab("f_pollA_ok")
        stamp(1)
        e("  s_barrier")
    e("  v_and_b32 v16, 31, v0")
    e("  v_lshrrev_b32 v17, 5, v0")
    e("  s_lshl_b32 s24, s15, 5")
    e("  v_add_u32 v18, s24, v16")
    e("  v_lshrrev_b32 v19, 1, v18")
    e("  v_and_b32 v19, 7, v19")
    e("  v_xor_b32 v19, v19, v17")
    e("  v_lshlrev_b32 v18, 7, v18")
    e("  v_lshl_add_u32 v20, v19, 4, v18")
    for kk in range(1, 4):
        e(f"  v_xor_b32 v{20+kk}, {32*kk}, v20")
    for kk in range(4):
        e(f"  v_add_u32 v{28+kk}, 0x10000, v{20+kk}")
    e("  v_lshrrev_b32 v19, 1, v16")
    e("  v_and_b32 v19, 7, v19")
    e("  v_xor_b32 v19, v19, v17")
    e("  v_lshlrev_b32 v18, 7, v16")
    e("  v_lshl_add_u32 v24, v19, 4, v18")
    e(f"  v_add_u32 v24, {YBASE}, v24")
    for kk in range(1, 4):
        e(f"  v_xor_b32 v{24+kk}, {32*kk}, v24")
    ACC = 32
    for i in range(32):
        e(f"  v_mov_b32 v{ACC+i}, 0")
    def FW(st): return 64 + 48 * (st % 2)
    def FY(st): return 80 + 48 * (st % 2)
    def rd(st, kk):
        slot = st % NS
        wb = 20 if slot < 4 else 28
        e(f"  ds_read_b128 {vr(FW(st)+4*kk,4)}, v{wb+kk} offset:{16384*(slot%4)}")
        e(f"  ds_read_b128 {vr(FY(st)+8*kk,4)}, v{24+kk} offset:{8192*slot}")
        e(f"  ds_read_b128 {vr(FY(st)+8*kk+4,4)}, v{24+kk} offset:{8192*slot+4096}")
    e("  s_barrier")
    stamp(2)
    for kk in range(4):
        rd(0, kk)
    def mf(st, kk, half):
        e(f"  v_mfma_f32_32x32x16_bf16 {vr(ACC+16*half,16)}, {vr(FY(st)+8*kk+4*half,4)}, {vr(FW(st)+4*kk,4)}, {vr(ACC+16*half,16)}")
    for ks in range(32):
        more = ks + 1 < 32
        e("  s_waitcnt lgkmcnt(0)")
        if more and not OPT('K2_NOBAR'):
            e("  s_barrier")
        if OPT('K2_NOBAR') == 2: continue
        r = (lambda kk: rd(ks + 1, kk)) if more else (lambda kk: None)
        mf(ks, 0, 0); r(0); mf(ks, 0, 1); r(1)
        mf(ks, 1, 0); r(2); mf(ks, 1, 1); r(3)
        mf(ks, 2, 0); mf(ks, 2, 1)
        mf(ks, 3, 0); mf(ks, 3, 1)
    stamp(6)
    if not OPT('K2T1', 1):
        k2_epilogue_plain(ACC)
    else:
        k2_epilogue_fused(ACC)
    lab("k2_done")
    kernel_end()
    e("  s_endpgm")
    kernel_desc(name, 164 if FUSE else 160)

def gen_t1():
    name = "t1_kernel"
    kernel_begin(name)
    e("  s_cmp_ge_u32 s2, 256")
    e("  s_cbranch_scc1 t1_done")
    e(f"  s_load_dwordx2 s[4:5], s[0:1], {KA_X}")
    e(f"  s_load_dwordx2 s[6:7], s[0:1], {KA_WS}")
    e(f"  s_load_dwordx2 s[8:9], s[0:1], {KA_WR}")
    e(f"  s_load_dwordx2 s[10:11], s[0:1], {KA_OUT}")
    if OPT('T1_PF', 1):
        e(f"  s_load_dwordx4 s[32:35], s[0:1], {KA_WG}")
        e("  v_lshrrev_b32 v1, 6, v0")
        e("  s_nop 0")
        e("  v_readfirstlane_b32 s3, v1")
        e("  s_cmp_lg_u32 s3, 2")
        e("  s_cbranch_scc1 t1_main")
        e("  s_waitcnt lgkmcnt(0)")
        srd(40, 32, 33, 512*1792*2)
        srd(44, 34, 35, 512*1792*2)
        e("  v_and_b32 v0, 63, v0")
        e("  s_and_b32 s52, s2, 7")
        e("  s_lshr_b32 s53, s2, 3")
        e("  v_min_u32 v1, 55, v0")
        e("  v_cmp_lt_u32 vcc, 27, v1")
        e("  v_cndmask_b32 v2, 0, 1, vcc")
        e("  v_mul_u32_u24 v3, 28, v2")
        e("  v_sub_u32 v3, v1, v3")
        e("  v_mul_u32_u24 v2, 3584, v2")
        e("  v_lshl_add_u32 v2, v3, 4, v2")
        e("  s_mul_i32 s54, s52, 448")
        e(f"  s_mul_i32 s55, s53, {16*3584}")
        e("  s_add_u32 s54, s54, s55")
        for q in range(8):
            e(f"  buffer_load_dwordx4 {vr(8+8*q,4)}, v2, s[40:43], s54 offen")
            e(f"  buffer_load_dwordx4 {vr(12+8*q,4)}, v2, s[44:47], s54 offen")
            e(f"  s_add_u32 s54, s54, {2*3584}")
        e("  s_branch t1_done")
        lab("t1_main")
    e("  v_lshrrev_b32 v1, 4, v0")
    e("  v_and_b32 v2, 15, v0")
    e("  s_lshl_b32 s3, s2, 3")
    e("  v_add_u32 v1, s3, v1")
    e("  v_lshlrev_b32 v3, 10, v1")
    e("  v_lshl_add_u32 v3, v2, 4, v3")
    e("  v_lshlrev_b32 v4, 4, v2")
    e("  s_waitcnt lgkmcnt(0)")
    srd(12, 4, 5, 2 << 20)
    srd(16, 6, 7, 9 << 20)
    srd(20, 8, 9, 1024)
    srd(24, 10, 11, 2 << 20)
    e(f"  s_mov_b32 s28, {WS_Y}")
    e(f"  s_mov_b32 s29, {WS_Y + (2<<20)}")
    YR, YI, XX, WR = 16, 32, 48, 64
    for j in range(4):
        e(f"  buffer_load_dwordx4 {vr(YR+4*j,4)}, v3, s[16:19], s28 offen offset:{256*j}")
        e(f"  buffer_load_dwordx4 {vr(YI+4*j,4)}, v3, s[16:19], s29 offen offset:{256*j}")
        e(f"  buffer_load_dwordx4 {vr(XX+4*j,4)}, v3, s[12:15], 0 offen offset:{256*j}")
    for j in range(4):
        e(f"  buffer_load_dwordx4 {vr(WR+4*j,4)}, v4, s[20:23], 0 offen offset:{256*j}")
    H = 80
    T = 112
    e("  v_mov_b32 v14, 0")
    e("  v_mov_b32 v15, 0")
    for j in range(4):
        e(f"  s_waitcnt vmcnt({4 + 3*(3-j)})")
        for q in range(4):
            i = 4*j + q
            e(f"  v_lshlrev_b32 v{T}, 16, v{YR+i}")
            e(f"  v_and_b32 v{T+1}, 0xffff0000, v{YR+i}")
            e(f"  v_lshlrev_b32 v{T+2}, 16, v{YI+i}")
            e(f"  v_and_b32 v{T+3}, 0xffff0000, v{YI+i}")
            e(f"  v_pk_add_f32 {vr(T,2)}, {vr(T,2)}, {vr(T+2,2)} neg_lo:[0,1] neg_hi:[0,1]")
            e(f"  v_cvt_pk_bf16_f32 v{T}, v{T}, v{T+1}")
            e(f"  v_and_b32 v{T+1}, 0xffff0000, v{T}")
            e(f"  v_lshlrev_b32 v{T}, 16, v{T}")
            e(f"  v_lshlrev_b32 v{T+2}, 16, v{XX+i}")
            e(f"  v_and_b32 v{T+3}, 0xffff0000, v{XX+i}")
            e(f"  v_pk_add_f32 {vr(T,2)}, {vr(T,2)}, {vr(T+2,2)}")
            e(f"  v_cvt_pk_bf16_f32 v{T}, v{T}, v{T+1}")
            e(f"  v_lshlrev_b32 v{H+2*i}, 16, v{T}")
            e(f"  v_and_b32 v{H+2*i+1}, 0xffff0000, v{T}")
            e(f"  v_pk_add_f32 v[14:15], v[14:15], {vr(H+2*i,2)}")
    e("  v_add_f32 v5, v14, v15")
    reduce16(5)
    e("  v_mul_f32 v5, 0x3b000000, v5")
    e("  v_cvt_pk_bf16_f32 v6, v5, v5")
    e("  v_lshlrev_b32 v6, 16, v6")
    e("  v_sub_f32 v8, 0, v6")
    e("  v_mov_b32 v9, v8")
    e("  v_mov_b32 v10, 0")
    e("  v_mov_b32 v11, 0")
    D = 116
    for i in range(16):
        e(f"  v_pk_add_f32 {vr(D+2*i,2)}, {vr(H+2*i,2)}, v[8:9]")
        e(f"  v_pk_fma_f32 v[10:11], {vr(D+2*i,2)}, {vr(D+2*i,2)}, v[10:11]")
    e("  v_add_f32 v10, v10, v11")
    reduce16(10)
    e("  v_sub_f32 v11, v5, v6")
    e("  v_mul_f32 v11, v11, v11")
    e("  v_mul_f32 v10, 0x3b000000, v10")
    e("  v_sub_f32 v10, v10, v11")
    e("  v_max_f32 v10, 0, v10")
    e("  v_cvt_pk_bf16_f32 v10, v10, v10")
    e("  v_lshlrev_b32 v10, 16, v10")
    e("  v_add_f32 v10, 0x3727c5ac, v10")
    e("  v_cvt_pk_bf16_f32 v10, v10, v10")
    e("  v_lshlrev_b32 v10, 16, v10")
    e("  v_sqrt_f32 v10, v10")
    e("  s_nop 0")
    e("  v_cvt_pk_bf16_f32 v10, v10, v10")
    e("  v_lshlrev_b32 v10, 16, v10")
    e("  v_rcp_f32 v10, v10")
    e("  s_nop 0")
    e("  v_mov_b32 v11, v10")
    e("  v_mov_b32 v12, 0")
    e("  s_waitcnt vmcnt(0)")
    O = 16
    for i in range(16):
        e(f"  v_cvt_pk_bf16_f32 v{T}, v{D+2*i}, v{D+2*i+1}")
        e(f"  v_lshlrev_b32 v{D+2*i}, 16, v{T}")
        e(f"  v_and_b32 v{D+2*i+1}, 0xffff0000, v{T}")
        e(f"  v_pk_mul_f32 {vr(D+2*i,2)}, {vr(D+2*i,2)}, v[10:11]")
        e(f"  v_cvt_pk_bf16_f32 v{T}, v{D+2*i}, v{D+2*i+1}")
        e(f"  v_dot2_f32_bf16 v12, v{T}, v{WR+i}, v12")
        e(f"  v_lshlrev_b32 v{D+2*i}, 16, v{T}")
        e(f"  v_and_b32 v{D+2*i+1}, 0xffff0000, v{T}")
        e(f"  v_pk_add_f32 {vr(D+2*i,2)}, {vr(D+2*i,2)}, {vr(H+2*i,2)}")
        e(f"  v_cvt_pk_bf16_f32 v{O+i}, v{D+2*i}, v{D+2*i+1}")
    for j in range(4):
        e(f"  buffer_store_dwordx4 {vr(O+4*j,4)}, v3, s[24:27], 0 offen offset:{256*j}")
    e("  s_nop 3")
    reduce16(12)
    e("  v_cvt_pk_bf16_f32 v12, v12, v12")
    e("  v_lshlrev_b32 v12, 16, v12")
    e("  v_ashrrev_i32 v13, 31, v12")
    e("  v_or_b32 v13, 0x80000000, v13")
    e("  v_xor_b32 v12, v12, v13")
    e("  v_and_b32 v12, 0xffff0000, v12")
    e("  v_sub_u32 v13, 0xffff, v1")
    e("  v_or_b32 v12, v12, v13")
    e("  v_cmp_eq_u32 vcc, 0, v2")
    e("  s_and_saveexec_b64 s[30:31], vcc")
    e("  v_lshlrev_b32 v13, 2, v1")
    e(f"  s_mov_b32 s28, {WS_KEY}")
    e("  buffer_store_dword v12, v13, s[16:19], s28 offen")
    e("  v_lshlrev_b32 v13, 3, v1")
    e("  v_mov_b32 v7, v10")
    e(f"  s_mov_b32 s28, {WS_STAT}")
    e("  buffer_store_dwordx2 v[6:7], v13, s[16:19], s28 offen")
    lab("t1_done")
    kernel_end()
    e("  s_endpgm")
    kernel_desc(name, 148)

def recompute(YR, YI, XX, nd, NEGM, RINV, HOUT, XNOUT, T):
    for i in range(nd):
        e(f"  v_lshlrev_b32 v{T}, 16, v{YR+i}")
        e(f"  v_and_b32 v{T+1}, 0xffff0000, v{YR+i}")
        e(f"  v_lshlrev_b32 v{T+2}, 16, v{YI+i}")
        e(f"  v_and_b32 v{T+3}, 0xffff0000, v{YI+i}")
        e(f"  v_pk_add_f32 {vr(T,2)}, {vr(T,2)}, {vr(T+2,2)} neg_lo:[0,1] neg_hi:[0,1]")
        e(f"  v_cvt_pk_bf16_f32 v{T}, v{T}, v{T+1}")
        e(f"  v_and_b32 v{T+1}, 0xffff0000, v{T}")
        e(f"  v_lshlrev_b32 v{T}, 16, v{T}")
        e(f"  v_lshlrev_b32 v{T+2}, 16, v{XX+i}")
        e(f"  v_and_b32 v{T+3}, 0xffff0000, v{XX+i}")
        e(f"  v_pk_add_f32 {vr(T,2)}, {vr(T,2)}, {vr(T+2,2)}")
        e(f"  v_cvt_pk_bf16_f32 v{T}, v{T}, v{T+1}")
        e(f"  v_lshlrev_b32 v{HOUT+2*i}, 16, v{T}")
        e(f"  v_and_b32 v{HOUT+2*i+1}, 0xffff0000, v{T}")
        e(f"  v_pk_add_f32 {vr(T,2)}, {vr(HOUT+2*i,2)}, {vr(NEGM,2)}")
        e(f"  v_cvt_pk_bf16_f32 v{T}, v{T}, v{T+1}")
        e(f"  v_and_b32 v{T+1}, 0xffff0000, v{T}")
        e(f"  v_lshlrev_b32 v{T}, 16, v{T}")
        e(f"  v_pk_mul_f32 {vr(T,2)}, {vr(T,2)}, {vr(RINV,2)}")
        e(f"  v_cvt_pk_bf16_f32 v{XNOUT+i}, v{T}, v{T+1}")

XS_STRIDE = 1040
def gen_t2():
    name = "t2_kernel"
    kernel_begin(name)
    LDS_G, LDS_U, LDS_XS, LDS_C = 0, 8192, 16384, 16384 + 8*XS_STRIDE
    e("  s_cmp_ge_u32 s2, 224")
    e("  s_cbranch_scc1 t2_done")
    e(f"  s_load_dwordx2 s[4:5], s[0:1], {KA_X}")
    e(f"  s_load_dwordx2 s[6:7], s[0:1], {KA_WS}")
    e(f"  s_load_dwordx4 s[8:11], s[0:1], {KA_WG}")
    e("  s_and_b32 s3, s2, 7")
    e("  s_mul_i32 s3, s3, 28")
    e("  s_lshr_b32 s12, s2, 3")
    e("  s_add_u32 s3, s3, s12")
    e("  v_mov_b32 v40, v0")
    e("  v_lshrrev_b32 v1, 6, v0")
    e("  v_and_b32 v0, 63, v0")
    e("  v_readfirstlane_b32 s13, v1")
    e("  s_waitcnt lgkmcnt(0)")
    srd(16, 4, 5, 2 << 20)
    srd(20, 6, 7, 9 << 20)
    srd(24, 8, 9, 512*1792*2)
    srd(28, 10, 11, 512*1792*2)
    e("  v_lshlrev_b32 v2, 5, v40")
    e(f"  s_mov_b32 s14, {WS_KEY}")
    e("  buffer_load_dwordx4 v[8:11], v2, s[20:23], s14 offen")
    e("  buffer_load_dwordx4 v[12:15], v2, s[20:23], s14 offen offset:16")
    e("  s_lshl_b32 s15, s3, 4")
    e("  s_movk_i32 s32, 3584")
    for ii in range(2):
        e(f"  s_lshl_b32 s33, s13, 7")
        e(f"  s_add_u32 s33, s33, {64*ii}")
        e(f"  v_add_u32 v3, s33, v0")
        e(f"  v_mul_lo_u32 v3, v3, s32")
        e(f"  s_lshl_b32 s34, s13, 11")
        e(f"  s_add_u32 m0, s34, {LDS_G + 1024*ii}")
        e("  s_nop 0")
        e(f"  buffer_load_dwordx4 v3, s[24:27], s15 offen lds")
        e(f"  s_add_u32 m0, s34, {LDS_U + 1024*ii}")
        e("  s_nop 0")
        e(f"  buffer_load_dwordx4 v3, s[28:31], s15 offen lds")
    stamp(1)
    e("  s_waitcnt vmcnt(4)")
    stamp(2)
    e("  v_mov_b32 v20, 0")
    for rnd in range(8):
        e("  v_max3_u32 v16, v8, v9, v10")
        e("  v_max3_u32 v17, v11, v12, v13")
        e("  v_max3_u32 v16, v16, v14, v15")
        e("  v_max_u32 v16, v16, v17")
        e("  s_nop 1")
        e("  v_max_u32_dpp v16, v16, v16 quad_perm:[1,0,3,2] row_mask:0xf bank_mask:0xf")
        e("  s_nop 1")
        e("  v_max_u32_dpp v16, v16, v16 quad_perm:[2,3,0,1] row_mask:0xf bank_mask:0xf")
        e("  s_nop 1")
        e("  v_max_u32_dpp v16, v16, v16 row_half_mirror row_mask:0xf bank_mask:0xf")
        e("  s_nop 1")
        e("  v_max_u32_dpp v16, v16, v16 row_mirror row_mask:0xf bank_mask:0xf")
        e("  s_nop 1")
        e("  v_readlane_b32 s36, v16, 0")
        e("  v_readlane_b32 s37, v16, 16")
        e("  v_readlane_b32 s38, v16, 32")
        e("  v_readlane_b32 s39, v16, 48")
        e("  s_max_u32 s36, s36, s37")
        e("  s_max_u32 s38, s38, s39")
        e("  s_max_u32 s36, s36, s38")
        e(f"  v_writelane_b32 v20, s36, {rnd}")
        if rnd < 7:
            for k in range(8):
                e(f"  v_cmp_ne_u32 vcc, s36, v{8+k}")
                e("  s_nop 1")
                e(f"  v_cndmask_b32 v{8+k}, 0, v{8+k}, vcc")
    e("  s_lshl_b32 s33, s13, 5")
    e(f"  s_add_u32 s33, s33, {LDS_C}")
    e("  v_lshlrev_b32 v3, 2, v0")
    e("  v_add_u32 v3, s33, v3")
    e("  v_cmp_gt_u32 vcc, 8, v0")
    e("  s_and_saveexec_b64 s[40:41], vcc")
    e("  ds_write_b32 v3, v20")
    e("  s_mov_b64 exec, s[40:41]")
    e("  s_waitcnt lgkmcnt(0)")
    e("  s_barrier")
    e("  v_and_b32 v3, 31, v0")
    e("  v_lshlrev_b32 v3, 2, v3")
    e(f"  ds_read_b32 v21, v3 offset:{LDS_C}")
    e("  v_mov_b32 v22, 0")
    e("  s_waitcnt lgkmcnt(0)")
    for i in range(32):
        e(f"  v_readlane_b32 s36, v21, {i}")
        e("  s_nop 1")
        e("  v_cmp_gt_u32 vcc, s36, v21")
        e("  s_nop 1")
        e("  v_addc_co_u32 v22, vcc, 0, v22, vcc")
    e("  v_cmp_gt_u32 vcc, 8, v22")
    e("  v_cmp_gt_u32 s[42:43], 32, v0")
    e("  s_and_b64 vcc, vcc, s[42:43]")
    e("  v_lshlrev_b32 v3, 2, v22")
    e("  s_and_saveexec_b64 s[40:41], vcc")
    e(f"  ds_write_b32 v3, v21 offset:{LDS_C+128}")
    e("  s_mov_b64 exec, s[40:41]")
    e("  s_waitcnt lgkmcnt(0)")
    e("  s_barrier")
    stamp(3)
    e("  v_lshrrev_b32 v4, 5, v40")
    e("  v_and_b32 v5, 31, v40")
    e("  v_lshlrev_b32 v3, 2, v4")
    e(f"  ds_read_b32 v6, v3 offset:{LDS_C+128}")
    e("  s_waitcnt lgkmcnt(0)")
    e("  s_cmp_lg_u32 s3, 0")
    e("  s_cbranch_scc1 t2_nopub")
    e("  v_cmp_eq_u32 vcc, 0, v5")
    e("  s_and_saveexec_b64 s[40:41], vcc")
    e(f"  s_mov_b32 s14, {WS_IDX}")
    e("  buffer_store_dword v6, v3, s[20:23], s14 offen")
    e("  s_mov_b64 exec, s[40:41]")
    lab("t2_nopub")
    e("  v_and_b32 v6, 0xffff, v6")
    e("  v_sub_u32 v6, 0xffff, v6")
    e("  v_lshlrev_b32 v7, 10, v6")
    e("  v_lshl_add_u32 v7, v5, 4, v7")
    e(f"  s_mov_b32 s14, {WS_Y}")
    e(f"  s_mov_b32 s15, {WS_Y + (2<<20)}")
    YR, YI, XX = 24, 32, 44
    for j in range(2):
        e(f"  buffer_load_dwordx4 {vr(YR+4*j,4)}, v7, s[20:23], s14 offen offset:{512*j}")
        e(f"  buffer_load_dwordx4 {vr(YI+4*j,4)}, v7, s[20:23], s15 offen offset:{512*j}")
        e(f"  buffer_load_dwordx4 {vr(XX+4*j,4)}, v7, s[16:19], 0 offen offset:{512*j}")
    e("  v_lshlrev_b32 v3, 3, v6")
    e(f"  s_mov_b32 s14, {WS_STAT}")
    e("  buffer_load_dwordx2 v[52:53], v3, s[20:23], s14 offen")
    e("  s_waitcnt vmcnt(0)")
    stamp(4)
    e("  v_sub_f32 v54, 0, v52")
    e("  v_mov_b32 v55, v54")
    e("  v_mov_b32 v52, v53")
    recompute(YR, YI, XX, 8, 54, 52, 64, 80, 56)
    e(f"  v_mul_u32_u24 v3, {XS_STRIDE}, v4")
    e("  v_lshl_add_u32 v3, v5, 4, v3")
    e(f"  ds_write_b128 v3, v[80:83] offset:{LDS_XS}")
    e(f"  ds_write_b128 v3, v[84:87] offset:{LDS_XS+512}")
    e("  s_waitcnt lgkmcnt(0)")
    e("  s_barrier")
    e("  s_cmp_lg_u32 s13, 0")
    e("  s_cbranch_scc1 t2_done")
    stamp(5)
    e("  v_and_b32 v3, 7, v0")
    e(f"  v_mul_u32_u24 v3, {XS_STRIDE}, v3")
    e("  v_lshrrev_b32 v4, 4, v0")
    e("  v_lshl_add_u32 v3, v4, 4, v3")
    e("  v_and_b32 v5, 15, v0")
    e("  v_lshrrev_b32 v5, 2, v5")
    e("  v_lshl_add_u32 v5, v4, 3, v5")
    e("  v_lshlrev_b32 v5, 4, v5")
    e("  v_and_b32 v6, 1, v0")
    e("  v_lshl_add_u32 v5, v6, 3, v5")
    e("  v_and_b32 v6, 2, v0")
    e("  v_lshl_add_u32 v5, v6, 12, v5")
    for i in range(4):
        e(f"  v_mov_b32 v{8+i}, 0")
    FA, FB = 64, 128
    for st in range(16):
        e(f"  ds_read_b128 {vr(FA+4*st,4)}, v3 offset:{LDS_XS + 64*st}")
        e(f"  ds_read_b64_tr_b16 {vr(FB+4*st,2)}, v5 offset:{512*st}")
        e(f"  ds_read_b64_tr_b16 {vr(FB+4*st+2,2)}, v5 offset:{512*st+64}")
        if st % 4 == 3:
            e("  s_waitcnt lgkmcnt(0)")
            for s2 in range(st-3, st+1):
                e(f"  v_mfma_f32_16x16x32_bf16 v[8:11], {vr(FA+4*s2,4)}, {vr(FB+4*s2,4)}, v[8:11]")
    e("  s_nop 15")
    for i in range(4):
        e(f"  v_cvt_pk_bf16_f32 v{8+i}, v{8+i}, v{8+i}")
        e(f"  v_lshlrev_b32 v{8+i}, 16, v{8+i}")
    e("  s_nop 1")
    for i in range(4):
        e(f"  v_mov_b32_dpp v{12+i}, v{8+i} row_ror:8 row_mask:0xf bank_mask:0xf")
    for i in range(4):
        e(f"  v_mul_f32 v16, 0xbfb8aa3b, v{8+i}")
        e("  v_exp_f32 v16, v16")
        e("  s_nop 0")
        e("  v_add_f32 v16, 1.0, v16")
        e("  v_rcp_f32 v16, v16")
        e("  s_nop 0")
        e(f"  v_mul_f32 v16, v{8+i}, v16")
        e("  v_cvt_pk_bf16_f32 v16, v16, v16")
        e("  v_lshlrev_b32 v16, 16, v16")
        e(f"  v_mul_f32 v16, v16, v{12+i}")
        e(f"  v_cvt_pk_bf16_f32 v{20+i}, v16, v16")
    stamp(6)
    e("  v_and_b32 v5, 15, v0")
    e("  v_cmp_gt_u32 vcc, 8, v5")
    e("  v_cmp_gt_u32 s[42:43], 32, v0")
    e("  s_and_b64 vcc, vcc, s[42:43]")
    e("  s_and_saveexec_b64 s[40:41], vcc")
    e("  v_lshlrev_b32 v4, 2, v4")
    e("  v_mul_u32_u24 v4, 3584, v4")
    e("  v_lshl_add_u32 v4, v5, 1, v4")
    e("  s_lshl_b32 s15, s3, 4")
    e(f"  s_add_u32 s15, s15, {WS_GU}")
    for i in range(4):
        e(f"  buffer_store_short v{20+i}, v4, s[20:23], s15 offen offset:{3584*i if 3584*i < 4096 else 0}") if False else None
    for i in range(4):
        e(f"  buffer_store_short v{20+i}, v4, s[20:23], s15 offen")
        if i < 3:
            e("  v_add_u32 v4, 3584, v4")
    lab("t2_done")
    kernel_end()
    e("  s_endpgm")
    kernel_desc(name, 192)

def gen_t3():
    name = "t3_kernel"
    kernel_begin(name)
    LDS_W, LDS_R = 0, 28672
    e("  s_cmp_ge_u32 s2, 64")
    e("  s_cbranch_scc1 t3_done")
    e(f"  s_load_dwordx2 s[4:5], s[0:1], {KA_X}")
    e(f"  s_load_dwordx2 s[6:7], s[0:1], {KA_WS}")
    e(f"  s_load_dwordx2 s[10:11], s[0:1], {KA_OUT}")
    e("  s_mov_b32 s3, s2")
    e("  v_lshrrev_b32 v1, 6, v0")
    e("  v_and_b32 v0, 63, v0")
    e("  v_readfirstlane_b32 s13, v1")
    e("  v_lshrrev_b32 v5, 4, v0")
    e("  s_waitcnt lgkmcnt(0)")
    srd(16, 4, 5, 2 << 20)
    srd(20, 6, 7, 12 << 20)
    srd(28, 10, 11, 2 << 20)
    e("  v_and_b32 v6, 1, v5")
    e("  v_lshlrev_b32 v6, 4, v6")
    e(f"  s_mov_b32 s14, {WS_IDX}")
    e("  buffer_load_dwordx4 v[24:27], v6, s[20:23], s14 offen")
    e("  s_lshl_b32 s15, s3, 4")
    e("  v_lshlrev_b32 v3, 4, v0")
    e("  s_mul_i32 s34, s13, 7168")
    e("  s_mul_i32 s33, s3, 28672")
    e("  s_add_u32 s33, s33, s34")
    e(f"  s_add_u32 s33, s33, {WS_WDB}")
    for i in range(7):
        e(f"  s_add_u32 m0, s34, {LDS_W + 1024*i}")
        e("  s_nop 0")
        e(f"  buffer_load_dwordx4 v3, s[20:23], s33 offen lds")
        e("  s_add_u32 s33, s33, 1024")
    e("  v_and_b32 v4, 7, v0")
    e("  v_mul_u32_u24 v4, 3584, v4")
    e("  v_lshl_add_u32 v4, v5, 4, v4")
    e("  s_mul_i32 s14, s13, 896")
    e(f"  s_add_u32 s14, s14, {WS_GU}")
    FA = 64
    for st in range(14):
        e(f"  buffer_load_dwordx4 {vr(FA+4*st,4)}, v4, s[20:23], s14 offen offset:{64*st}")
    for i in range(4):
        e(f"  v_mov_b32 v{28+i}, 0")
    e("  s_cmp_lg_u32 s13, 0")
    e("  s_cbranch_scc1 t3_noepi")
    e("  s_waitcnt vmcnt(21)")
    e("  v_and_b32 v6, 7, v0")
    e(f"  s_mov_b32 s36, {WS_Y}")
    e(f"  s_mov_b32 s37, {WS_Y + (2<<20)}")
    e(f"  s_mov_b32 s38, {WS_STAT}")
    for i in range(4):
        e(f"  v_and_b32 v{28+i}, 0xffff, v{24+i}")
        e(f"  v_sub_u32 v{28+i}, 0xffff, v{28+i}")
        e(f"  v_lshlrev_b32 v{32+i}, 3, v{28+i}")
        e(f"  v_lshlrev_b32 v{28+i}, 10, v{28+i}")
        e(f"  v_lshl_add_u32 v{28+i}, v6, 1, v{28+i}")
        e(f"  v_add_u32 v{28+i}, s15, v{28+i}")
        e(f"  buffer_load_ushort v{36+i}, v{28+i}, s[20:23], s36 offen")
        e(f"  buffer_load_ushort v{40+i}, v{28+i}, s[20:23], s37 offen")
        e(f"  buffer_load_ushort v{44+i}, v{28+i}, s[16:19], 0 offen")
        e(f"  buffer_load_dwordx2 {vr(48+2*i,2)}, v{32+i}, s[20:23], s38 offen")
    lab("t3_noepi")
    e("  v_and_b32 v7, 15, v0")
    e("  v_lshrrev_b32 v7, 2, v7")
    e("  v_lshl_add_u32 v7, v5, 3, v7")
    e("  v_lshlrev_b32 v7, 4, v7")
    e("  v_and_b32 v60, 1, v0")
    e("  v_lshl_add_u32 v7, v60, 3, v7")
    e("  v_add_u32 v7, s34, v7")
    for i in range(4):
        e(f"  v_mov_b32 v{8+i}, 0")
    stamp(1)
    e("  s_waitcnt vmcnt(0)")
    stamp(2)
    FB = 128
    for st in range(14):
        e(f"  ds_read_b64_tr_b16 {vr(FB+4*st,2)}, v7 offset:{512*st}")
        e(f"  ds_read_b64_tr_b16 {vr(FB+4*st+2,2)}, v7 offset:{512*st+64}")
    e("  s_waitcnt lgkmcnt(0)")
    for st in range(14):
        e(f"  v_mfma_f32_16x16x32_bf16 v[8:11], {vr(FA+4*st,4)}, {vr(FB+4*st,4)}, v[8:11]")
    e("  s_nop 15")
    stamp(3)
    e("  v_lshlrev_b32 v3, 4, v0")
    e("  s_lshl_b32 s33, s13, 10")
    e("  v_add_u32 v3, s33, v3")
    e(f"  ds_write_b128 v3, v[8:11] offset:{LDS_R}")
    e("  s_waitcnt lgkmcnt(0)")
    e("  s_barrier")
    e("  s_cmp_lg_u32 s13, 0")
    e("  s_cbranch_scc1 t3_done")
    e("  v_lshlrev_b32 v3, 4, v0")
    for w in range(1, 4):
        e(f"  ds_read_b128 {vr(12+4*(w-1),4)}, v3 offset:{LDS_R+1024*w}")
    stamp(4)
    e("  v_and_b32 v6, 15, v0")
    e("  v_cmp_gt_u32 vcc, 8, v6")
    e("  v_cmp_gt_u32 s[42:43], 32, v0")
    e("  s_and_b64 vcc, vcc, s[42:43]")
    e("  s_and_saveexec_b64 s[40:41], vcc")
    e("  s_waitcnt lgkmcnt(0)")
    for i in range(4):
        e(f"  v_add_f32 v{8+i}, v{8+i}, v{12+i}")
        e(f"  v_add_f32 v{16+i}, v{16+i}, v{20+i}")
        e(f"  v_add_f32 v{8+i}, v{8+i}, v{16+i}")
        e(f"  v_cvt_pk_bf16_f32 v{8+i}, v{8+i}, v{8+i}")
        e(f"  v_lshlrev_b32 v{8+i}, 16, v{8+i}")
        e(f"  v_and_b32 v60, 0xffff0000, v{24+i}")
        e("  v_ashrrev_i32 v61, 31, v60")
        e("  v_not_b32 v61, v61")
        e("  v_or_b32 v61, 0x80000000, v61")
        e("  v_xor_b32 v60, v60, v61")
        e("  v_and_b32 v60, 0xffff0000, v60")
        e("  v_mul_f32 v60, 0xbfb8aa3b, v60")
        e("  v_exp_f32 v60, v60")
        e("  s_nop 0")
        e("  v_add_f32 v60, 1.0, v60")
        e("  v_rcp_f32 v60, v60")
        e("  s_nop 0")
        e("  v_cvt_pk_bf16_f32 v60, v60, v60")
        e("  v_lshlrev_b32 v60, 16, v60")
        e(f"  v_mul_f32 v{8+i}, v{8+i}, v60")
        e(f"  v_cvt_pk_bf16_f32 v{8+i}, v{8+i}, v{8+i}")
        e(f"  v_lshlrev_b32 v{8+i}, 16, v{8+i}")
        e(f"  v_lshlrev_b32 v{36+i}, 16, v{36+i}")
        e(f"  v_lshlrev_b32 v{40+i}, 16, v{40+i}")
        e(f"  v_lshlrev_b32 v{44+i}, 16, v{44+i}")
        e(f"  v_sub_f32 v60, v{36+i}, v{40+i}")
        e("  v_cvt_pk_bf16_f32 v60, v60, v60")
        e("  v_lshlrev_b32 v60, 16, v60")
        e(f"  v_add_f32 v60, v{44+i}, v60")
        e("  v_cvt_pk_bf16_f32 v60, v60, v60")
        e("  v_lshlrev_b32 v60, 16, v60")
        e(f"  v_sub_f32 v61, v60, v{48+2*i}")
        e("  v_cvt_pk_bf16_f32 v61, v61, v61")
        e("  v_lshlrev_b32 v61, 16, v61")
        e(f"  v_mul_f32 v61, v61, v{49+2*i}")
        e("  v_cvt_pk_bf16_f32 v61, v61, v61")
        e("  v_lshlrev_b32 v61, 16, v61")
        e(f"  v_add_f32 v61, v61, v{8+i}")
        e("  v_cvt_pk_bf16_f32 v61, v61, v61")
        e("  v_lshlrev_b32 v61, 16, v61")
        e("  v_add_f32 v61, v60, v61")
        e("  v_cvt_pk_bf16_f32 v61, v61, v61")
        e(f"  buffer_store_short v61, v{28+i}, s[28:31], 0 offen")
    lab("t3_done")
    kernel_end()
    e("  s_endpgm")
    kernel_desc(name, 192)

SORT8 = [(0,1),(2,3),(4,5),(6,7),(0,2),(1,3),(4,6),(5,7),(1,2),(5,6),(0,4),(1,5),(2,6),(3,7),(2,4),(3,5),(1,2),(3,4),(5,6)]
def top8(keys, free, LDS_C, wreg="s13"):
    K = list(keys); F = list(free)
    for (i, j) in SORT8:
        hi, lo = F.pop(), F.pop()
        e(f"  v_max_u32 v{hi}, v{K[i]}, v{K[j]}")
        e(f"  v_min_u32 v{lo}, v{K[i]}, v{K[j]}")
        F.append(K[i]); F.append(K[j]); K[i] = hi; K[j] = lo
    t, coll = F.pop(), F.pop()
    e(f"  v_mov_b32 v{coll}, 0")
    pend = []
    def fill(n):
        for _ in range(n):
            if pend: e(pend.pop(0))
            else: e("  s_nop 0")
    for rnd in range(8):
        fill(2)
        e(f"  v_max_u32_dpp v{t}, v{K[0]}, v{K[0]} quad_perm:[1,0,3,2] row_mask:0xf bank_mask:0xf")
        fill(2)
        e(f"  v_max_u32_dpp v{t}, v{t}, v{t} quad_perm:[2,3,0,1] row_mask:0xf bank_mask:0xf")
        fill(2)
        e(f"  v_max_u32_dpp v{t}, v{t}, v{t} row_half_mirror row_mask:0xf bank_mask:0xf")
        fill(2)
        e(f"  v_max_u32_dpp v{t}, v{t}, v{t} row_mirror row_mask:0xf bank_mask:0xf")
        while pend: e(pend.pop(0))
        e("  s_nop 0")
        e(f"  v_readlane_b32 s36, v{t}, 0")
        e(f"  v_readlane_b32 s37, v{t}, 16")
        e(f"  v_readlane_b32 s38, v{t}, 32")
        e(f"  v_readlane_b32 s39, v{t}, 48")
        e("  s_max_u32 s36, s36, s37")
        e("  s_max_u32 s38, s38, s39")
        e("  s_max_u32 s36, s36, s38")
        e(f"  v_writelane_b32 v{coll}, s36, {rnd}")
        if rnd < 7:
            e(f"  v_cmp_eq_u32 vcc, s36, v{K[0]}")
            e("  s_nop 1")
            e(f"  v_cndmask_b32 v{K[0]}, v{K[0]}, v{K[1]}, vcc")
            for k in range(1, 7 - rnd):
                pend.append(f"  v_cndmask_b32 v{K[k]}, v{K[k]}, v{K[k+1]}, vcc")
    e(f"  s_lshl_b32 s33, {wreg}, 5")
    e(f"  s_add_u32 s33, s33, {LDS_C}")
    e(f"  v_lshlrev_b32 v{t}, 2, v0")
    e(f"  v_add_u32 v{t}, s33, v{t}")
    e("  v_cmp_gt_u32 vcc, 8, v0")
    e("  s_and_saveexec_b64 s[40:41], vcc")
    e(f"  ds_write_b32 v{t}, v{coll}")
    e("  s_mov_b64 exec, s[40:41]")
    e("  s_waitcnt lgkmcnt(0)")
    e("  s_barrier")
    return t, coll

def gen_t4():
    name = "t4_kernel"
    kernel_begin(name)
    LDS_C, LDS_R, LDS_WD = 0, 256, 8704
    LDS_G, LDS_U, LDS_XS = 8704, 8704 + 8192, 8704 + 16384
    SPIN = 1 << 22
    e("  s_cmp_ge_u32 s2, 240")
    e("  s_cbranch_scc1 t4_done")
    e(f"  s_load_dwordx2 s[4:5], s[0:1], {KA_X}")
    e(f"  s_load_dwordx2 s[6:7], s[0:1], {KA_WS}")
    e(f"  s_load_dwordx4 s[8:11], s[0:1], {KA_WG}")
    e(f"  s_load_dwordx2 s[44:45], s[0:1], {KA_OUT}")
    e("  s_and_b32 s3, s2, 7")
    e("  s_mul_i32 s3, s3, 28")
    e("  s_lshr_b32 s12, s2, 3")
    e("  s_add_u32 s3, s3, s12")
    e("  v_mov_b32 v40, v0")
    e("  v_lshrrev_b32 v1, 6, v0")
    e("  v_and_b32 v0, 63, v0")
    e("  v_readfirstlane_b32 s13, v1")
    e("  s_waitcnt lgkmcnt(0)")
    srd(16, 4, 5, 2 << 20)
    srd(20, 6, 7, 12 << 20)
    srd(24, 8, 9, 512*1792*2)
    srd(28, 10, 11, 512*1792*2)
    srd(48, 44, 45, 2 << 20)
    e("  v_lshlrev_b32 v2, 5, v40")
    e(f"  s_mov_b32 s14, {WS_KEY}")
    e("  buffer_load_dwordx4 v[8:11], v2, s[20:23], s14 offen")
    e("  buffer_load_dwordx4 v[12:15], v2, s[20:23], s14 offen offset:16")
    e("  s_cmp_ge_u32 s2, 224")
    e("  s_cbranch_scc1 t4_dma2")
    e("  s_lshl_b32 s15, s3, 4")
    e("  s_movk_i32 s32, 3584")
    for ii in range(2):
        e(f"  s_lshl_b32 s33, s13, 7")
        e(f"  s_add_u32 s33, s33, {64*ii}")
        e(f"  v_add_u32 v3, s33, v0")
        e(f"  v_mul_lo_u32 v3, v3, s32")
        e(f"  s_lshl_b32 s34, s13, 11")
        e(f"  s_add_u32 m0, s34, {LDS_G + 1024*ii}")
        e("  s_nop 0")
        e(f"  buffer_load_dwordx4 v3, s[24:27], s15 offen lds")
        e(f"  s_add_u32 m0, s34, {LDS_U + 1024*ii}")
        e("  s_nop 0")
        e(f"  buffer_load_dwordx4 v3, s[28:31], s15 offen lds")
    e("  s_waitcnt vmcnt(4)")
    e("  s_branch t4_top")
    lab("t4_dma2")
    e("  s_sub_u32 s46, s2, 224")
    e("  v_lshlrev_b32 v3, 4, v0")
    e("  s_mul_i32 s34, s13, 7168")
    e(f"  s_mul_i32 s33, s46, {4*28672}")
    e("  s_add_u32 s33, s33, s34")
    e(f"  s_add_u32 s33, s33, {WS_WDB}")
    for dsl in range(4):
        for i in range(7):
            e(f"  s_add_u32 m0, s34, {LDS_WD + dsl*28672 + 1024*i}")
            e("  s_nop 0")
            e(f"  buffer_load_dwordx4 v3, s[20:23], s33 offen lds")
            e(f"  s_add_u32 s33, s33, {1024 if i < 6 else 28672 - 6*1024}")
    e("  s_waitcnt vmcnt(28)")
    lab("t4_top")
    stamp(1)
    t, coll = top8(range(8, 16), range(16, 24), LDS_C)
    e("  v_and_b32 v3, 31, v0")
    e("  v_lshlrev_b32 v3, 2, v3")
    e(f"  ds_read_b32 v24, v3 offset:{LDS_C}")
    e("  v_mov_b32 v4, 0")
    for q in range(8):
        e(f"  ds_read_b128 {vr(56+4*q,4)}, v4 offset:{LDS_C+16*q}")
    e("  v_mov_b32 v25, 0")
    e("  s_waitcnt lgkmcnt(0)")
    sp = [60, 62, 64, 66]
    for i in range(32 + 3):
        if i < 32:
            e(f"  v_cmp_gt_u32 s[{sp[i%4]}:{sp[i%4]+1}], v{56+i}, v24")
        if i >= 3:
            j = i - 3
            e(f"  v_addc_co_u32 v25, vcc, 0, v25, s[{sp[j%4]}:{sp[j%4]+1}]")
    e("  v_cmp_gt_u32 vcc, 8, v25")
    e("  v_cmp_gt_u32 s[42:43], 32, v0")
    e("  s_and_b64 vcc, vcc, s[42:43]")
    e("  v_lshlrev_b32 v3, 2, v25")
    e("  s_and_saveexec_b64 s[40:41], vcc")
    e(f"  ds_write_b32 v3, v24 offset:{LDS_C+128}")
    e("  s_mov_b64 exec, s[40:41]")
    e("  s_waitcnt lgkmcnt(0)")
    e("  s_barrier")
    stamp(2)
    e("  s_cmp_ge_u32 s2, 224")
    e("  s_cbranch_scc1 t4_f2")
    e("  v_lshrrev_b32 v4, 5, v40")
    e("  v_and_b32 v5, 31, v40")
    e("  v_lshlrev_b32 v3, 2, v4")
    e(f"  ds_read_b32 v6, v3 offset:{LDS_C+128}")
    e("  s_waitcnt lgkmcnt(0)")
    e("  v_and_b32 v6, 0xffff, v6")
    e("  v_sub_u32 v6, 0xffff, v6")
    e("  v_lshlrev_b32 v7, 10, v6")
    e("  v_lshl_add_u32 v7, v5, 4, v7")
    e(f"  s_mov_b32 s14, {WS_Y}")
    e(f"  s_mov_b32 s15, {WS_Y + (2<<20)}")
    YR, YI, XX = 24, 32, 44
    for j in range(2):
        e(f"  buffer_load_dwordx4 {vr(YR+4*j,4)}, v7, s[20:23], s14 offen offset:{512*j}")
        e(f"  buffer_load_dwordx4 {vr(YI+4*j,4)}, v7, s[20:23], s15 offen offset:{512*j}")
        e(f"  buffer_load_dwordx4 {vr(XX+4*j,4)}, v7, s[16:19], 0 offen offset:{512*j}")
    e("  v_lshlrev_b32 v3, 3, v6")
    e(f"  s_mov_b32 s14, {WS_STAT}")
    e("  buffer_load_dwordx2 v[52:53], v3, s[20:23], s14 offen")
    e("  s_waitcnt vmcnt(0)")
    stamp(3)
    e("  v_sub_f32 v54, 0, v52")
    e("  v_mov_b32 v55, v54")
    e("  v_mov_b32 v52, v53")
    recompute(YR, YI, XX, 8, 54, 52, 64, 80, 56)
    e(f"  v_mul_u32_u24 v3, {XS_STRIDE}, v4")
    e("  v_lshl_add_u32 v3, v5, 4, v3")
    e(f"  ds_write_b128 v3, v[80:83] offset:{LDS_XS}")
    e(f"  ds_write_b128 v3, v[84:87] offset:{LDS_XS+512}")
    e("  s_waitcnt lgkmcnt(0)")
    e("  s_barrier")
    e("  s_cmp_lg_u32 s13, 0")
    e("  s_cbranch_scc1 t4_done")
    e("  v_and_b32 v3, 7, v0")
    e(f"  v_mul_u32_u24 v3, {XS_STRIDE}, v3")
    e("  v_lshrrev_b32 v4, 4, v0")
    e("  v_lshl_add_u32 v3, v4, 4, v3")
    e("  v_and_b32 v5, 15, v0")
    e("  v_lshrrev_b32 v5, 2, v5")
    e("  v_lshl_add_u32 v5, v4, 3, v5")
    e("  v_lshlrev_b32 v5, 4, v5")
    e("  v_and_b32 v6, 1, v0")
    e("  v_lshl_add_u32 v5, v6, 3, v5")
    e("  v_and_b32 v6, 2, v0")
    e("  v_lshl_add_u32 v5, v6, 12, v5")
    for i in range(4):
        e(f"  v_mov_b32 v{8+i}, 0")
    FA, FB = 64, 128
    for st in range(16):
        e(f"  ds_read_b128 {vr(FA+4*st,4)}, v3 offset:{LDS_XS + 64*st}")
        e(f"  ds_read_b64_tr_b16 {vr(FB+4*st,2)}, v5 offset:{LDS_G+512*st}")
        e(f"  ds_read_b64_tr_b16 {vr(FB+4*st+2,2)}, v5 offset:{LDS_G+512*st+64}")
        if st % 4 == 3:
            e("  s_waitcnt lgkmcnt(0)")
            for s2 in range(st-3, st+1):
                e(f"  v_mfma_f32_16x16x32_bf16 v[8:11], {vr(FA+4*s2,4)}, {vr(FB+4*s2,4)}, v[8:11]")
    e("  s_nop 15")
    for i in range(4):
        e(f"  v_cvt_pk_bf16_f32 v{8+i}, v{8+i}, v{8+i}")
        e(f"  v_lshlrev_b32 v{8+i}, 16, v{8+i}")
    e("  s_nop 1")
    for i in range(4):
        e(f"  v_mov_b32_dpp v{12+i}, v{8+i} row_ror:8 row_mask:0xf bank_mask:0xf")
    for i in range(4):
        e(f"  v_mul_f32 v16, 0xbfb8aa3b, v{8+i}")
        e("  v_exp_f32 v16, v16")
        e("  s_nop 0")
        e("  v_add_f32 v16, 1.0, v16")
        e("  v_rcp_f32 v16, v16")
        e("  s_nop 0")
        e(f"  v_mul_f32 v16, v{8+i}, v16")
        e("  v_cvt_pk_bf16_f32 v16, v16, v16")
        e("  v_lshlrev_b32 v16, 16, v16")
        e(f"  v_mul_f32 v16, v16, v{12+i}")
        e(f"  v_cvt_pk_bf16_f32 v{20+i}, v16, v16")
    e("  s_nop 1")
    for i in range(4):
        e(f"  v_mov_b32_dpp v{24+i}, v{20+i} quad_perm:[1,0,3,2] row_mask:0xf bank_mask:0xf")
    for i in range(4):
        e(f"  v_and_b32 v{20+i}, 0xffff, v{20+i}")
        e(f"  v_and_b32 v{24+i}, 0xffff0000, v{24+i}")
        e(f"  v_or_b32 v{20+i}, v{20+i}, v{24+i}")
    for i in range(4):
        e(f"  v_min_u32 v{20+i}, 0xfffeffff, v{20+i}")
    stamp(4)
    e("  v_and_b32 v5, 15, v0")
    e("  v_lshlrev_b32 v4, 6, v4")
    e("  v_lshl_add_u32 v4, v5, 1, v4")
    e("  v_lshlrev_b32 v7, 4, v0")
    e("  v_and_b32 v6, 9, v0")
    e("  v_cmp_eq_u32 vcc, 0, v6")
    e("  v_cmp_gt_u32 s[42:43], 32, v0")
    e("  s_and_b64 vcc, vcc, s[42:43]")
    e("  s_and_saveexec_b64 s[40:41], vcc")
    for i in range(4):
        e(f"  ds_write_b32 v4, v{20+i} offset:{LDS_R+16*i}")
    e("  s_mov_b64 exec, 0xff")
    e("  s_waitcnt lgkmcnt(0)")
    e(f"  ds_read_b128 v[24:27], v7 offset:{LDS_R}")
    e("  s_lshl_b32 s15, s3, 7")
    e(f"  s_add_u32 s15, s15, {WS_GU}")
    e("  s_waitcnt lgkmcnt(0)")
    e("  buffer_store_dwordx4 v[24:27], v7, s[20:23], s15 offen sc1")
    e("  s_branch t4_done")
    lab("t4_f2")
    e("  v_lshrrev_b32 v5, 4, v0")
    e("  v_and_b32 v6, 1, v5")
    e("  v_lshlrev_b32 v6, 4, v6")
    e(f"  ds_read_b128 v[24:27], v6 offset:{LDS_C+128}")
    e("  v_and_b32 v6, 15, v0")
    e("  s_lshl_b32 s15, s46, 6")
    e("  s_waitcnt lgkmcnt(0)")
    for i in range(4):
        e(f"  v_and_b32 v{28+i}, 0xffff, v{24+i}")
        e(f"  v_sub_u32 v{28+i}, 0xffff, v{28+i}")
        e(f"  v_lshlrev_b32 v{32+i}, 3, v{28+i}")
        e(f"  v_lshlrev_b32 v{28+i}, 10, v{28+i}")
        e(f"  v_lshl_add_u32 v{28+i}, v6, 1, v{28+i}")
        e(f"  v_add_u32 v{28+i}, s15, v{28+i}")
    e("  s_cmp_lg_u32 s13, 0")
    e("  s_cbranch_scc1 t4_noepi")
    e(f"  s_mov_b32 s36, {WS_Y}")
    e(f"  s_mov_b32 s37, {WS_Y + (2<<20)}")
    e(f"  s_mov_b32 s38, {WS_STAT}")
    for a in range(2):
        for i in range(4):
            e(f"  buffer_load_ushort v{192+12*a+i}, v{28+i}, s[20:23], s36 offen offset:{32*a}")
            e(f"  buffer_load_ushort v{196+12*a+i}, v{28+i}, s[20:23], s37 offen offset:{32*a}")
            e(f"  buffer_load_ushort v{200+12*a+i}, v{28+i}, s[16:19], 0 offen offset:{32*a}")
    for i in range(4):
        e(f"  buffer_load_dwordx2 {vr(48+2*i,2)}, v{32+i}, s[20:23], s38 offen")
    lab("t4_noepi")
    e("  v_lshrrev_b32 v7, 2, v6")
    e("  v_lshl_add_u32 v7, v5, 3, v7")
    e("  v_lshlrev_b32 v7, 4, v7")
    e("  v_and_b32 v60, 1, v0")
    e("  v_lshl_add_u32 v7, v60, 3, v7")
    e("  v_and_b32 v60, 2, v0")
    e("  v_mul_u32_u24 v60, 14336, v60")
    e("  v_add_u32 v7, v60, v7")
    e("  v_add_u32 v7, s34, v7")
    e(f"  v_add_u32 v61, {2*28672}, v7")
    e("  s_waitcnt vmcnt(0)")
    FB0, FB1 = 72, 128
    for st in range(14):
        e(f"  ds_read_b64_tr_b16 {vr(FB0+4*st,2)}, v7 offset:{LDS_WD+512*st}")
        e(f"  ds_read_b64_tr_b16 {vr(FB0+4*st+2,2)}, v7 offset:{LDS_WD+512*st+64}")
        e(f"  ds_read_b64_tr_b16 {vr(FB1+4*st,2)}, v61 offset:{LDS_WD+512*st}")
        e(f"  ds_read_b64_tr_b16 {vr(FB1+4*st+2,2)}, v61 offset:{LDS_WD+512*st+64}")
        if st % 3 == 2: e("  s_waitcnt lgkmcnt(0)")
    for i in range(8):
        e(f"  v_mov_b32 v{8+i}, 0")
    for i in range(4):
        e(f"  v_and_b32 v60, 0xffff0000, v{24+i}")
        e("  v_ashrrev_i32 v62, 31, v60")
        e("  v_not_b32 v62, v62")
        e("  v_or_b32 v62, 0x80000000, v62")
        e("  v_xor_b32 v60, v60, v62")
        e("  v_and_b32 v60, 0xffff0000, v60")
        e("  v_mul_f32 v60, 0xbfb8aa3b, v60")
        e("  v_exp_f32 v60, v60")
        e("  s_nop 0")
        e("  v_add_f32 v60, 1.0, v60")
        e("  v_rcp_f32 v60, v60")
        e("  s_nop 0")
        e("  v_cvt_pk_bf16_f32 v60, v60, v60")
        e(f"  v_lshlrev_b32 v{24+i}, 16, v60")
    for a in range(2):
        for i in range(4):
            r0, r1, r2 = 192+12*a+i, 196+12*a+i, 200+12*a+i
            e(f"  v_lshlrev_b32 v{r0}, 16, v{r0}")
            e(f"  v_lshlrev_b32 v{r1}, 16, v{r1}")
            e(f"  v_lshlrev_b32 v{r2}, 16, v{r2}")
            e(f"  v_sub_f32 v60, v{r0}, v{r1}")
            e("  v_cvt_pk_bf16_f32 v60, v60, v60")
            e("  v_lshlrev_b32 v60, 16, v60")
            e(f"  v_add_f32 v60, v{r2}, v60")
            e("  v_cvt_pk_bf16_f32 v60, v60, v60")
            e(f"  v_lshlrev_b32 v{r0}, 16, v60")
            e(f"  v_sub_f32 v62, v{r0}, v{48+2*i}")
            e("  v_cvt_pk_bf16_f32 v62, v62, v62")
            e("  v_lshlrev_b32 v62, 16, v62")
            e(f"  v_mul_f32 v62, v62, v{49+2*i}")
            e("  v_cvt_pk_bf16_f32 v62, v62, v62")
            e(f"  v_lshlrev_b32 v{r1}, 16, v62")
    stamp(3)
    e("  v_and_b32 v4, 7, v0")
    e("  v_lshlrev_b32 v4, 4, v4")
    e("  v_lshl_add_u32 v4, v5, 7, v4")
    e("  s_mul_i32 s14, s13, 7168")
    e(f"  s_add_u32 s14, s14, {WS_GU}")
    regs = [216+4*i for i in range(9)] + [36, 40, 44, 56, 64]
    e("  v_add_u32 v62, 4096, v4")
    e("  s_mov_b32 s53, 0")
    lab("t4_poll")
    for st in range(14):
        e(f"  buffer_load_dwordx4 {vr(regs[st],4)}, v4, s[20:23], s14 offen offset:{512*st if st < 8 else 0} sc1") if st < 8 else e(f"  buffer_load_dwordx4 {vr(regs[st],4)}, v62, s[20:23], s14 offen offset:{512*(st-8)} sc1")
    e("  v_mov_b32 v3, 0")
    for st in range(14):
        e(f"  s_waitcnt vmcnt({13-st})")
        e(f"  v_max3_u32 v3, v3, v{regs[st]}, v{regs[st]+1}")
        e(f"  v_max3_u32 v3, v3, v{regs[st]+2}, v{regs[st]+3}")
    e("  v_cmp_eq_u32 s[54:55], -1, v3")
    e("  s_nop 3")
    e("  s_cmp_eq_u64 s[54:55], 0")
    e("  s_cbranch_scc1 t4_poll_ok")
    e("  s_add_u32 s53, s53, 1")
    e(f"  s_cmp_gt_u32 s53, {SPIN}")
    e("  s_cbranch_scc1 t4_poll_ok")
    e("  s_branch t4_poll")
    lab("t4_poll_ok")
    stamp(5)
    e("  s_waitcnt lgkmcnt(0)")
    for st in range(14):
        e(f"  v_mfma_f32_16x16x32_bf16 v[8:11], {vr(regs[st],4)}, {vr(FB0+4*st,4)}, v[8:11]")
        e(f"  v_mfma_f32_16x16x32_bf16 v[12:15], {vr(regs[st],4)}, {vr(FB1+4*st,4)}, v[12:15]")
    e("  s_nop 15")
    stamp(6)
    e("  v_lshlrev_b32 v3, 4, v0")
    e("  s_lshl_b32 s33, s13, 11")
    e("  v_add_u32 v3, s33, v3")
    e(f"  ds_write_b128 v3, v[8:11] offset:{LDS_R}")
    e(f"  ds_write_b128 v3, v[12:15] offset:{LDS_R+1024}")
    e("  s_waitcnt lgkmcnt(0)")
    e("  s_barrier")
    e("  s_cmp_lg_u32 s13, 0")
    e("  s_cbranch_scc1 t4_done")
    e("  v_lshlrev_b32 v3, 4, v0")
    for w in range(1, 4):
        for a in range(2):
            e(f"  ds_read_b128 {vr(72+8*(w-1)+4*a,4)}, v3 offset:{LDS_R+2048*w+1024*a}")
    e("  v_cmp_gt_u32 vcc, 32, v0")
    e("  s_and_saveexec_b64 s[40:41], vcc")
    e("  s_waitcnt lgkmcnt(0)")
    for a in range(2):
        for i in range(4):
            y = 8 + 4*a + i
            e(f"  v_add_f32 v{y}, v{y}, v{72+4*a+i}")
            e(f"  v_add_f32 v60, v{80+4*a+i}, v{88+4*a+i}")
            e(f"  v_add_f32 v{y}, v{y}, v60")
            e(f"  v_cvt_pk_bf16_f32 v{y}, v{y}, v{y}")
            e(f"  v_lshlrev_b32 v{y}, 16, v{y}")
            e(f"  v_mul_f32 v{y}, v{y}, v{24+i}")
            e(f"  v_cvt_pk_bf16_f32 v{y}, v{y}, v{y}")
            e(f"  v_lshlrev_b32 v{y}, 16, v{y}")
            e(f"  v_add_f32 v61, v{196+12*a+i}, v{y}")
            e("  v_cvt_pk_bf16_f32 v61, v61, v61")
            e("  v_lshlrev_b32 v61, 16, v61")
            e(f"  v_add_f32 v61, v{192+12*a+i}, v61")
            e("  v_cvt_pk_bf16_f32 v61, v61, v61")
            e(f"  buffer_store_short v61, v{28+i}, s[48:51], 0 offen offset:{32*a}")
    lab("t4_done")
    kernel_end()
    e("  s_endpgm")
    kernel_desc(name, 252)

ROW_O = 48
def rowmac(first, O=148, sc1=False):
    YR, YI, XX, WR, H, T, D = 16, 32, 48, 64, 80, 112, 116
    if sc1: O = ROW_O
    SC = " sc1" if sc1 else ""
    e("  v_lshlrev_b32 v3, 10, v1")
    e("  v_lshl_add_u32 v3, v2, 4, v3")
    e(f"  s_mov_b32 s52, {WS_Y}")
    e(f"  s_mov_b32 s53, {WS_Y + (2<<20)}")
    for j in range(4):
        e(f"  buffer_load_dwordx4 {vr(YR+4*j,4)}, v3, s[24:27], s52 offen offset:{256*j}{SC}")
        e(f"  buffer_load_dwordx4 {vr(YI+4*j,4)}, v3, s[24:27], s53 offen offset:{256*j}{SC}")
        e(f"  buffer_load_dwordx4 {vr(XX+4*j,4)}, v3, s[20:23], 0 offen offset:{256*j}")
    nextra = 0
    if first:
        e("  v_lshlrev_b32 v4, 4, v2")
        for j in range(4):
            e(f"  buffer_load_dwordx4 {vr(WR+4*j,4)}, v4, s[28:31], 0 offen offset:{256*j}")
        nextra = 4
    e("  v_mov_b32 v14, 0")
    e("  v_mov_b32 v15, 0")
    for j in range(4):
        e(f"  s_waitcnt vmcnt({nextra + 3*(3-j)})")
        for q in range(4):
            i = 4*j + q
            e(f"  v_lshlrev_b32 v{T}, 16, v{YR+i}")
            e(f"  v_and_b32 v{T+1}, 0xffff0000, v{YR+i}")
            e(f"  v_lshlrev_b32 v{T+2}, 16, v{YI+i}")
            e(f"  v_and_b32 v{T+3}, 0xffff0000, v{YI+i}")
            e(f"  v_pk_add_f32 {vr(T,2)}, {vr(T,2)}, {vr(T+2,2)} neg_lo:[0,1] neg_hi:[0,1]")
            e(f"  v_cvt_pk_bf16_f32 v{T}, v{T}, v{T+1}")
            e(f"  v_and_b32 v{T+1}, 0xffff0000, v{T}")
            e(f"  v_lshlrev_b32 v{T}, 16, v{T}")
            e(f"  v_lshlrev_b32 v{T+2}, 16, v{XX+i}")
            e(f"  v_and_b32 v{T+3}, 0xffff0000, v{XX+i}")
            e(f"  v_pk_add_f32 {vr(T,2)}, {vr(T,2)}, {vr(T+2,2)}")
            e(f"  v_cvt_pk_bf16_f32 v{YI+i}, v{T}, v{T+1}")
            e(f"  v_lshlrev_b32 v{H+2*i}, 16, v{YI+i}")
            e(f"  v_and_b32 v{H+2*i+1}, 0xffff0000, v{YI+i}")
            e(f"  v_pk_add_f32 v[14:15], v[14:15], {vr(H+2*i,2)}")
    e("  v_add_f32 v5, v14, v15")
    reduce16(5)
    e("  v_mul_f32 v5, 0x3b000000, v5")
    e("  v_cvt_pk_bf16_f32 v6, v5, v5")
    e("  v_lshlrev_b32 v6, 16, v6")
    e("  v_sub_f32 v8, 0, v6")
    e("  v_mov_b32 v9, v8")
    e("  v_mov_b32 v10, 0")
    e("  v_mov_b32 v11, 0")
    for i in range(16):
        e(f"  v_pk_add_f32 {vr(D+2*i,2)}, {vr(H+2*i,2)}, v[8:9]")
        e(f"  v_pk_fma_f32 v[10:11], {vr(D+2*i,2)}, {vr(D+2*i,2)}, v[10:11]")
    e("  v_add_f32 v10, v10, v11")
    reduce16(10)
    e("  v_sub_f32 v11, v5, v6")
    e("  v_mul_f32 v11, v11, v11")
    e("  v_mul_f32 v10, 0x3b000000, v10")
    e("  v_sub_f32 v10, v10, v11")
    e("  v_max_f32 v10, 0, v10")
    e("  v_cvt_pk_bf16_f32 v10, v10, v10")
    e("  v_lshlrev_b32 v10, 16, v10")
    e("  v_add_f32 v10, 0x3727c5ac, v10")
    e("  v_cvt_pk_bf16_f32 v10, v10, v10")
    e("  v_lshlrev_b32 v10, 16, v10")
    e("  v_sqrt_f32 v10, v10")
    e("  s_nop 0")
    e("  v_cvt_pk_bf16_f32 v10, v10, v10")
    e("  v_lshlrev_b32 v10, 16, v10")
    e("  v_rcp_f32 v10, v10")
    e("  s_nop 0")
    e("  v_mov_b32 v11, v10")
    if first:
        e("  v_mov_b32 v12, 0")
        e("  s_waitcnt vmcnt(0)")
    for i in range(16):
        e(f"  v_cvt_pk_bf16_f32 v{T}, v{D+2*i}, v{D+2*i+1}")
        e(f"  v_lshlrev_b32 v{D+2*i}, 16, v{T}")
        e(f"  v_and_b32 v{D+2*i+1}, 0xffff0000, v{T}")
        e(f"  v_pk_mul_f32 {vr(D+2*i,2)}, {vr(D+2*i,2)}, v[10:11]")
        e(f"  v_cvt_pk_bf16_f32 v{YR+i}, v{D+2*i}, v{D+2*i+1}")
        if first:
            e(f"  v_dot2_f32_bf16 v12, v{YR+i}, v{WR+i}, v12")
            e(f"  v_lshlrev_b32 v{D+2*i}, 16, v{YR+i}")
            e(f"  v_and_b32 v{D+2*i+1}, 0xffff0000, v{YR+i}")
            e(f"  v_pk_add_f32 {vr(D+2*i,2)}, {vr(D+2*i,2)}, {vr(H+2*i,2)}")
            e(f"  v_cvt_pk_bf16_f32 v{O+i}, v{D+2*i}, v{D+2*i+1}")
    if first:
        e("  s_nop 3")
        reduce16(12)
        e("  v_cvt_pk_bf16_f32 v12, v12, v12")
        e("  v_lshlrev_b32 v12, 16, v12")
        e("  v_ashrrev_i32 v13, 31, v12")
        e("  v_or_b32 v13, 0x80000000, v13")
        e("  v_xor_b32 v12, v12, v13")
        e("  v_and_b32 v12, 0xffff0000, v12")
        e("  v_sub_u32 v13, 0xffff, v1")
        e("  v_or_b32 v12, v12, v13")

def gen_tf():
    name = "tf_kernel"
    kernel_begin(name)
    LDS_G, LDS_U, LDS_WD = 0, 8192, 16384
    LDS_XS = 45056
    LDS_HS = LDS_XS + 8 * XS_STRIDE
    LDS_C = LDS_HS + 8192
    LDS_R = LDS_C + 256
    SPIN = 1 << 22
    e("  s_cmp_ge_u32 s2, 256")
    e("  s_cbranch_scc1 tf_done")
    e(f"  s_load_dwordx2 s[4:5], s[0:1], {KA_X}")
    e(f"  s_load_dwordx2 s[6:7], s[0:1], {KA_WS}")
    e(f"  s_load_dwordx8 s[8:15], s[0:1], {KA_WR}")
    e(f"  s_load_dwordx2 s[16:17], s[0:1], {KA_OUT}")
    e("  s_and_b32 s3, s2, 7")
    e("  s_mul_i32 s49, s3, 28")
    e("  s_lshr_b32 s50, s2, 3")
    e("  s_add_u32 s49, s49, s50")
    e("  s_sub_u32 s50, s50, 24")
    e("  s_lshl_b32 s51, s3, 3")
    e("  s_add_u32 s50, s50, s51")
    e("  v_mov_b32 v180, v0")
    e("  v_lshrrev_b32 v1, 6, v0")
    e("  v_and_b32 v0, 63, v0")
    e("  v_readfirstlane_b32 s48, v1")
    e("  s_waitcnt lgkmcnt(0)")
    srd(20, 4, 5, 2 << 20)
    srd(24, 6, 7, 9 << 20)
    srd(28, 8, 9, 1024)
    srd(32, 10, 11, 512*1792*2)
    srd(36, 12, 13, 512*1792*2)
    srd(40, 14, 15, 1792*512*2)
    srd(44, 16, 17, 2 << 20)
    e("  s_cmp_lt_u32 s48, 2")
    e("  s_cbranch_scc1 tf_p1")
    e("  s_cmp_ge_u32 s2, 224")
    e("  s_cbranch_scc1 tf_nof1")
    e("  s_movk_i32 s52, 3584")
    e("  v_mul_lo_u32 v3, v0, s52")
    e("  s_lshl_b32 s53, s49, 4")
    e("  s_cmp_eq_u32 s48, 2")
    e("  s_cbranch_scc0 tf_dma_u")
    for i in range(8):
        e(f"  s_mov_b32 m0, {LDS_G + 1024*i}")
        e("  s_nop 0")
        e("  buffer_load_dwordx4 v3, s[32:35], s53 offen lds")
        e(f"  s_add_u32 s53, s53, {64*3584}")
    e("  s_branch tf_nof1")
    lab("tf_dma_u")
    for i in range(8):
        e(f"  s_mov_b32 m0, {LDS_U + 1024*i}")
        e("  s_nop 0")
        e("  buffer_load_dwordx4 v3, s[36:39], s53 offen lds")
        e(f"  s_add_u32 s53, s53, {64*3584}")
    lab("tf_nof1")
    e("  s_cmp_lt_u32 s2, 192")
    e("  s_cbranch_scc1 tf_poll1")
    e("  v_lshlrev_b32 v3, 10, v0")
    e("  s_sub_u32 s52, s48, 2")
    e(f"  s_mul_i32 s53, s52, {896*1024}")
    e("  s_lshl_b32 s54, s50, 4")
    e("  s_add_u32 s53, s53, s54")
    e(f"  s_mul_i32 s54, s52, {896*16}")
    for i in range(14):
        e(f"  s_add_u32 m0, s54, {LDS_WD + 1024*i}")
        e("  s_nop 0")
        e("  buffer_load_dwordx4 v3, s[40:43], s53 offen lds")
        e("  s_add_u32 s53, s53, 0x10000")
    e("  s_branch tf_poll1")
    lab("tf_p1")
    e("  v_lshrrev_b32 v1, 4, v180")
    e("  v_and_b32 v2, 15, v0")
    e("  s_lshl_b32 s52, s2, 3")
    e("  v_add_u32 v1, s52, v1")
    e("  v_mov_b32 v181, v1")
    rowmac(True)
    e("  v_cmp_eq_u32 vcc, 0, v2")
    e("  s_and_saveexec_b64 s[56:57], vcc")
    e("  v_lshlrev_b32 v13, 2, v1")
    e(f"  s_mov_b32 s52, {WS_KEY}")
    e("  buffer_store_dword v12, v13, s[24:27], s52 offen sc1")
    e("  s_mov_b64 exec, s[56:57]")
    stamp(1)
    lab("tf_poll1")
    K = 164
    e("  v_lshlrev_b32 v172, 5, v180")
    e(f"  s_mov_b32 s52, {WS_KEY}")
    e("  s_mov_b32 s60, 0")
    lab("tf_poll1_loop")
    e(f"  buffer_load_dwordx4 {vr(K,4)}, v172, s[24:27], s52 offen sc1")
    e(f"  buffer_load_dwordx4 {vr(K+4,4)}, v172, s[24:27], s52 offen offset:16 sc1")
    e("  s_waitcnt vmcnt(0)")
    e(f"  v_min3_u32 v173, v{K}, v{K+1}, v{K+2}")
    e(f"  v_min3_u32 v174, v{K+3}, v{K+4}, v{K+5}")
    e(f"  v_min3_u32 v173, v173, v{K+6}, v{K+7}")
    e("  v_min_u32 v173, v173, v174")
    e("  v_cmp_eq_u32 s[62:63], 0, v173")
    e("  s_nop 3")
    e("  s_cmp_eq_u64 s[62:63], 0")
    e("  s_cbranch_scc1 tf_poll1_ok")
    e("  s_add_u32 s60, s60, 1")
    e(f"  s_cmp_gt_u32 s60, {SPIN}")
    e("  s_cbranch_scc1 tf_poll1_ok")
    e("  s_sleep 1")
    e("  s_branch tf_poll1_loop")
    lab("tf_poll1_ok")
    stamp(2)
    e("  v_mov_b32 v176, 0")
    for rnd in range(8):
        e(f"  v_max3_u32 v173, v{K}, v{K+1}, v{K+2}")
        e(f"  v_max3_u32 v174, v{K+3}, v{K+4}, v{K+5}")
        e(f"  v_max3_u32 v173, v173, v{K+6}, v{K+7}")
        e("  v_max_u32 v173, v173, v174")
        e("  s_nop 1")
        e("  v_max_u32_dpp v173, v173, v173 quad_perm:[1,0,3,2] row_mask:0xf bank_mask:0xf")
        e("  s_nop 1")
        e("  v_max_u32_dpp v173, v173, v173 quad_perm:[2,3,0,1] row_mask:0xf bank_mask:0xf")
        e("  s_nop 1")
        e("  v_max_u32_dpp v173, v173, v173 row_half_mirror row_mask:0xf bank_mask:0xf")
        e("  s_nop 1")
        e("  v_max_u32_dpp v173, v173, v173 row_mirror row_mask:0xf bank_mask:0xf")
        e("  s_nop 1")
        e("  v_readlane_b32 s64, v173, 0")
        e("  v_readlane_b32 s65, v173, 16")
        e("  v_readlane_b32 s66, v173, 32")
        e("  v_readlane_b32 s67, v173, 48")
        e("  s_max_u32 s64, s64, s65")
        e("  s_max_u32 s66, s66, s67")
        e("  s_max_u32 s64, s64, s66")
        e(f"  v_writelane_b32 v176, s64, {rnd}")
        if rnd < 7:
            for k in range(8):
                e(f"  v_cmp_ne_u32 vcc, s64, v{K+k}")
                e("  s_nop 1")
                e(f"  v_cndmask_b32 v{K+k}, 0, v{K+k}, vcc")
    e("  s_lshl_b32 s52, s48, 5")
    e(f"  s_add_u32 s52, s52, {LDS_C}")
    e("  v_lshlrev_b32 v172, 2, v0")
    e("  v_add_u32 v172, s52, v172")
    e("  v_cmp_gt_u32 vcc, 8, v0")
    e("  s_and_saveexec_b64 s[56:57], vcc")
    e("  ds_write_b32 v172, v176")
    e("  s_mov_b64 exec, s[56:57]")
    e("  s_waitcnt lgkmcnt(0)")
    e("  s_barrier")
    e("  v_and_b32 v172, 31, v0")
    e("  v_lshlrev_b32 v172, 2, v172")
    e(f"  ds_read_b32 v177, v172 offset:{LDS_C}")
    e("  v_mov_b32 v178, 0")
    e("  s_waitcnt lgkmcnt(0)")
    for i in range(32):
        e(f"  v_readlane_b32 s64, v177, {i}")
        e("  s_nop 1")
        e("  v_cmp_gt_u32 vcc, s64, v177")
        e("  s_nop 1")
        e("  v_addc_co_u32 v178, vcc, 0, v178, vcc")
    e("  v_cmp_gt_u32 vcc, 8, v178")
    e("  v_cmp_gt_u32 s[58:59], 32, v0")
    e("  s_and_b64 vcc, vcc, s[58:59]")
    e("  v_lshlrev_b32 v172, 2, v178")
    e("  s_and_saveexec_b64 s[56:57], vcc")
    e(f"  ds_write_b32 v172, v177 offset:{LDS_C+128}")
    e("  s_mov_b64 exec, s[56:57]")
    e("  s_waitcnt lgkmcnt(0)")
    e("  s_barrier")
    stamp(3)
    e("  s_cmp_lt_u32 s48, 2")
    e("  s_cbranch_scc1 tf_p2")
    e("  s_waitcnt vmcnt(0)")
    e("  s_branch tf_p2_end")
    lab("tf_p2")
    e("  v_mov_b32 v172, 0")
    e(f"  ds_read_b128 {vr(K,4)}, v172 offset:{LDS_C+128}")
    e(f"  ds_read_b128 {vr(K+4,4)}, v172 offset:{LDS_C+144}")
    e("  v_lshrrev_b32 v173, 4, v180")
    e("  v_lshlrev_b32 v173, 2, v173")
    e(f"  ds_read_b32 v174, v173 offset:{LDS_C+128}")
    e("  v_sub_u32 v175, 0xffff, v181")
    e("  s_waitcnt lgkmcnt(0)")
    e("  s_mov_b64 s[58:59], exec")
    for k in range(8):
        e(f"  v_and_b32 v{K+k}, 0xffff, v{K+k}")
        e(f"  v_cmp_ne_u32 vcc, v{K+k}, v175")
        e("  s_and_b64 s[58:59], s[58:59], vcc")
    e("  v_lshlrev_b32 v3, 10, v181")
    e("  v_lshl_add_u32 v3, v2, 4, v3")
    e("  s_and_saveexec_b64 s[56:57], s[58:59]")
    e("  s_cbranch_execz tf_nostore")
    for j in range(4):
        e(f"  buffer_store_dwordx4 {vr(148+4*j,4)}, v3, s[44:47], 0 offen offset:{256*j}")
    lab("tf_nostore")
    e("  s_mov_b64 exec, s[56:57]")
    e("  v_and_b32 v1, 0xffff, v174")
    e("  v_sub_u32 v1, 0xffff, v1")
    rowmac(False)
    e("  v_lshrrev_b32 v173, 4, v180")
    e(f"  v_mul_u32_u24 v4, {XS_STRIDE}, v173")
    e("  v_lshl_add_u32 v4, v2, 4, v4")
    e("  v_lshlrev_b32 v5, 10, v173")
    e("  v_lshl_add_u32 v5, v2, 4, v5")
    for j in range(4):
        e(f"  ds_write_b128 v4, {vr(16+4*j,4)} offset:{LDS_XS+256*j}")
        e(f"  ds_write_b128 v5, {vr(32+4*j,4)} offset:{LDS_HS+256*j}")
    e("  s_waitcnt lgkmcnt(0)")
    lab("tf_p2_end")
    e("  s_barrier")
    stamp(4)
    e("  s_cmp_lg_u32 s48, 0")
    e("  s_cbranch_scc1 tf_f2")
    e("  s_cmp_ge_u32 s2, 224")
    e("  s_cbranch_scc1 tf_f2")
    e("  v_and_b32 v3, 7, v0")
    e(f"  v_mul_u32_u24 v3, {XS_STRIDE}, v3")
    e("  v_lshrrev_b32 v4, 4, v0")
    e("  v_lshl_add_u32 v3, v4, 4, v3")
    e("  v_and_b32 v5, 15, v0")
    e("  v_lshrrev_b32 v5, 2, v5")
    e("  v_lshl_add_u32 v5, v4, 3, v5")
    e("  v_lshlrev_b32 v5, 4, v5")
    e("  v_and_b32 v6, 1, v0")
    e("  v_lshl_add_u32 v5, v6, 3, v5")
    e("  v_and_b32 v6, 2, v0")
    e("  v_lshl_add_u32 v5, v6, 12, v5")
    for i in range(4):
        e(f"  v_mov_b32 v{8+i}, 0")
    FA, FB = 16, 80
    for st in range(16):
        e(f"  ds_read_b128 {vr(FA+4*st,4)}, v3 offset:{LDS_XS + 64*st}")
        e(f"  ds_read_b64_tr_b16 {vr(FB+4*st,2)}, v5 offset:{512*st}")
        e(f"  ds_read_b64_tr_b16 {vr(FB+4*st+2,2)}, v5 offset:{512*st+64}")
        if st % 4 == 3:
            e("  s_waitcnt lgkmcnt(0)")
            for s2 in range(st-3, st+1):
                e(f"  v_mfma_f32_16x16x32_bf16 v[8:11], {vr(FA+4*s2,4)}, {vr(FB+4*s2,4)}, v[8:11]")
    e("  s_nop 15")
    for i in range(4):
        e(f"  v_cvt_pk_bf16_f32 v{8+i}, v{8+i}, v{8+i}")
        e(f"  v_lshlrev_b32 v{8+i}, 16, v{8+i}")
    e("  s_nop 1")
    for i in range(4):
        e(f"  v_mov_b32_dpp v{12+i}, v{8+i} row_ror:8 row_mask:0xf bank_mask:0xf")
    for i in range(4):
        e(f"  v_mul_f32 v16, 0xbfb8aa3b, v{8+i}")
        e("  v_exp_f32 v16, v16")
        e("  s_nop 0")
        e("  v_add_f32 v16, 1.0, v16")
        e("  v_rcp_f32 v16, v16")
        e("  s_nop 0")
        e(f"  v_mul_f32 v16, v{8+i}, v16")
        e("  v_cvt_pk_bf16_f32 v16, v16, v16")
        e("  v_lshlrev_b32 v16, 16, v16")
        e(f"  v_mul_f32 v16, v16, v{12+i}")
        e(f"  v_cvt_pk_bf16_f32 v{20+i}, v16, v16")
    e("  s_nop 1")
    for i in range(4):
        e(f"  v_mov_b32_dpp v{24+i}, v{20+i} quad_perm:[1,0,3,2] row_mask:0xf bank_mask:0xf")
    for i in range(4):
        e(f"  v_and_b32 v{20+i}, 0xffff, v{20+i}")
        e(f"  v_and_b32 v{24+i}, 0xffff0000, v{24+i}")
        e(f"  v_or_b32 v{20+i}, v{20+i}, v{24+i}")
    e("  v_and_b32 v5, 15, v0")
    e("  v_and_b32 v6, 9, v0")
    e("  v_cmp_eq_u32 vcc, 0, v6")
    e("  v_cmp_gt_u32 s[58:59], 32, v0")
    e("  s_and_b64 vcc, vcc, s[58:59]")
    e("  s_and_saveexec_b64 s[56:57], vcc")
    e("  v_lshlrev_b32 v4, 2, v4")
    e("  v_mul_u32_u24 v4, 3584, v4")
    e("  v_lshl_add_u32 v4, v5, 1, v4")
    e("  s_lshl_b32 s52, s49, 4")
    e(f"  s_add_u32 s52, s52, {WS_GU}")
    for i in range(4):
        e(f"  buffer_store_dword v{20+i}, v4, s[24:27], s52 offen sc1")
        if i < 3:
            e("  v_add_u32 v4, 3584, v4")
    e("  s_waitcnt vmcnt(0)")
    e("  s_mov_b64 exec, 1")
    e("  v_mov_b32 v4, 1")
    e("  v_mov_b32 v5, 0")
    e("  s_lshl_b32 s52, s49, 2")
    e(f"  s_add_u32 s52, s52, {WS_FLAG}")
    e("  buffer_store_dword v4, v5, s[24:27], s52 offen sc1")
    e("  s_mov_b64 exec, s[56:57]")
    stamp(5)
    lab("tf_f2")
    e("  s_cmp_lt_u32 s2, 192")
    e("  s_cbranch_scc1 tf_done")
    e("  v_min_u32 v3, 55, v0")
    e("  v_lshlrev_b32 v3, 2, v3")
    e("  s_mul_i32 s52, s48, 224")
    e(f"  s_add_u32 s52, s52, {WS_FLAG}")
    e("  s_mov_b32 s60, 0")
    lab("tf_poll2_loop")
    e("  buffer_load_dword v4, v3, s[24:27], s52 offen sc1")
    e("  s_waitcnt vmcnt(0)")
    e("  v_cmp_eq_u32 s[62:63], 0, v4")
    e("  s_nop 3")
    e("  s_cmp_eq_u64 s[62:63], 0")
    e("  s_cbranch_scc1 tf_poll2_ok")
    e("  s_add_u32 s60, s60, 1")
    e(f"  s_cmp_gt_u32 s60, {SPIN}")
    e("  s_cbranch_scc1 tf_poll2_ok")
    e("  s_sleep 1")
    e("  s_branch tf_poll2_loop")
    lab("tf_poll2_ok")
    stamp(6)
    e("  v_and_b32 v4, 7, v0")
    e("  v_mul_u32_u24 v4, 3584, v4")
    e("  v_lshrrev_b32 v5, 4, v0")
    e("  v_lshl_add_u32 v4, v5, 4, v4")
    e("  s_mul_i32 s52, s48, 896")
    e(f"  s_add_u32 s52, s52, {WS_GU}")
    FA, FB = 16, 72
    for st in range(14):
        e(f"  buffer_load_dwordx4 {vr(FA+4*st,4)}, v4, s[24:27], s52 offen offset:{64*st} sc1")
    e("  v_and_b32 v7, 15, v0")
    e("  v_lshrrev_b32 v7, 2, v7")
    e("  v_lshl_add_u32 v7, v5, 3, v7")
    e("  v_lshlrev_b32 v7, 4, v7")
    e("  v_and_b32 v6, 1, v0")
    e("  v_lshl_add_u32 v7, v6, 3, v7")
    e("  s_mul_i32 s54, s48, 7168")
    e(f"  s_add_u32 s54, s54, {LDS_WD}")
    e("  v_add_u32 v7, s54, v7")
    for st in range(14):
        e(f"  ds_read_b64_tr_b16 {vr(FB+4*st,2)}, v7 offset:{512*st}")
        e(f"  ds_read_b64_tr_b16 {vr(FB+4*st+2,2)}, v7 offset:{512*st+64}")
    for i in range(4):
        e(f"  v_mov_b32 v{8+i}, 0")
    e("  s_waitcnt vmcnt(0) lgkmcnt(0)")
    for st in range(14):
        e(f"  v_mfma_f32_16x16x32_bf16 v[8:11], {vr(FA+4*st,4)}, {vr(FB+4*st,4)}, v[8:11]")
    e("  s_nop 15")
    e("  v_lshlrev_b32 v3, 4, v0")
    e("  s_lshl_b32 s52, s48, 10")
    e("  v_add_u32 v3, s52, v3")
    e(f"  ds_write_b128 v3, v[8:11] offset:{LDS_R}")
    e("  s_waitcnt lgkmcnt(0)")
    e("  s_barrier")
    e("  s_cmp_lg_u32 s48, 0")
    e("  s_cbranch_scc1 tf_done")
    e("  v_lshlrev_b32 v3, 4, v0")
    for w in range(1, 4):
        e(f"  ds_read_b128 {vr(12+4*(w-1),4)}, v3 offset:{LDS_R+1024*w}")
    e("  v_and_b32 v6, 1, v5")
    e("  v_lshlrev_b32 v6, 4, v6")
    e(f"  ds_read_b128 v[24:27], v6 offset:{LDS_C+128}")
    e("  v_and_b32 v6, 7, v0")
    e("  s_lshl_b32 s52, s50, 4")
    e("  v_lshl_add_u32 v6, v6, 1, s52")
    e("  v_and_b32 v7, 1, v5")
    e("  v_lshlrev_b32 v7, 2, v7")
    for i in range(4):
        e(f"  v_add_u32 v28, {i}, v7")
        e(f"  v_mul_u32_u24 v29, {XS_STRIDE}, v28")
        e("  v_add_u32 v29, v29, v6")
        e(f"  ds_read_u16 v{36+i}, v29 offset:{LDS_XS}")
        e("  v_lshl_add_u32 v29, v28, 10, v6")
        e(f"  ds_read_u16 v{40+i}, v29 offset:{LDS_HS}")
    e("  v_and_b32 v30, 15, v0")
    e("  v_cmp_gt_u32 vcc, 8, v30")
    e("  v_cmp_gt_u32 s[58:59], 32, v0")
    e("  s_and_b64 vcc, vcc, s[58:59]")
    e("  s_waitcnt lgkmcnt(0)")
    e("  s_and_saveexec_b64 s[56:57], vcc")
    for i in range(4):
        e(f"  v_add_f32 v{8+i}, v{8+i}, v{12+i}")
        e(f"  v_add_f32 v{16+i}, v{16+i}, v{20+i}")
        e(f"  v_add_f32 v{8+i}, v{8+i}, v{16+i}")
        e(f"  v_cvt_pk_bf16_f32 v{8+i}, v{8+i}, v{8+i}")
        e(f"  v_lshlrev_b32 v{8+i}, 16, v{8+i}")
        e(f"  v_and_b32 v60, 0xffff0000, v{24+i}")
        e("  v_ashrrev_i32 v61, 31, v60")
        e("  v_not_b32 v61, v61")
        e("  v_or_b32 v61, 0x80000000, v61")
        e("  v_xor_b32 v60, v60, v61")
        e("  v_and_b32 v60, 0xffff0000, v60")
        e("  v_mul_f32 v60, 0xbfb8aa3b, v60")
        e("  v_exp_f32 v60, v60")
        e("  s_nop 0")
        e("  v_add_f32 v60, 1.0, v60")
        e("  v_rcp_f32 v60, v60")
        e("  s_nop 0")
        e("  v_cvt_pk_bf16_f32 v60, v60, v60")
        e("  v_lshlrev_b32 v60, 16, v60")
        e(f"  v_mul_f32 v{8+i}, v{8+i}, v60")
        e(f"  v_cvt_pk_bf16_f32 v{8+i}, v{8+i}, v{8+i}")
        e(f"  v_lshlrev_b32 v{8+i}, 16, v{8+i}")
        e(f"  v_lshlrev_b32 v{36+i}, 16, v{36+i}")
        e(f"  v_lshlrev_b32 v{40+i}, 16, v{40+i}")
        e(f"  v_add_f32 v61, v{36+i}, v{8+i}")
        e("  v_cvt_pk_bf16_f32 v61, v61, v61")
        e("  v_lshlrev_b32 v61, 16, v61")
        e(f"  v_add_f32 v61, v{40+i}, v61")
        e("  v_cvt_pk_bf16_f32 v61, v61, v61")
        e(f"  v_and_b32 v62, 0xffff, v{24+i}")
        e("  v_sub_u32 v62, 0xffff, v62")
        e("  v_lshl_add_u32 v62, v62, 10, v6")
        e("  buffer_store_short v61, v62, s[44:47], 0 offen")
    lab("tf_done")
    kernel_end()
    e("  s_endpgm")
    kernel_desc(name, 184)

def main():
    hdr = open("cdna_kernels/" + NAME + ".s.ref").read().splitlines()
    out = []
    for ln in hdr:
        if ln.startswith("; @launch"):
            if FUSE:
                out.append("; @launch kernel=f_kernel grid=(256,1,1) block=(576,1,1) lds=%d" % (K2_NS*24576 + 256))
            else:
                out.append("; @launch kernel=k1_kernel grid=(256,1,1) block=(%d,1,1) lds=131072" % (576 if OPT('K1_PF', 0) else 512))
                out.append("; @launch kernel=k2_kernel grid=(256,1,1) block=(%d,1,1) lds=%d" % (576, K2_NS*24576))
            if OPT('TF'):
                out.append("; @launch kernel=tf_kernel grid=(256,1,1) block=(256,1,1) lds=66048")
            else:
                if not OPT('K2T1', 1):
                    out.append("; @launch kernel=t1_kernel grid=(256,1,1) block=(%d,1,1) lds=0" % (192 if OPT('T1_PF', 1) else 128))
                if MEGA:
                    pass
                elif OPT('T4', 1):
                    out.append("; @launch kernel=t4_kernel grid=(240,1,1) block=(256,1,1) lds=123392")
                else:
                    out.append("; @launch kernel=t2_kernel grid=(224,1,1) block=(256,1,1) lds=25600")
                    out.append("; @launch kernel=t3_kernel grid=(64,1,1) block=(256,1,1) lds=32768")
            break
        out.append(ln)
    out.append('.amdgcn_target "amdgcn-amd-amdhsa--gfx950"')
    out.append(".text")
    gen_k1(); gen_k2()
    if OPT('TF'): gen_tf()
    elif OPT('T4', 1):
        if not OPT('K2T1', 1): gen_t1()
        if not MEGA: gen_t4()
    else: gen_t1(); gen_t2(); gen_t3()
    out += L
    out.append('.section .rodata,"a"')
    out += KD
    dst = sys.argv[1] if len(sys.argv) > 1 else "cdna_kernels/" + NAME + ".s"
    open(dst, "w").write("\n".join(out) + "\n")

main()
```

```python
import sys, os
OPT = lambda k, d=0: int(os.environ.get(k, d))

NAME = "sequential_preLN__spectral_fnet__moe_arch_mod__prompt"
L = []
def e(s=""):
    L.append(s)
def lab(s):
    L.append(s + ":")

KA_X, KA_WSRE, KA_WSIM, KA_WDRE, KA_WDIM = 0, 8, 16, 24, 32
KA_WR, KA_WG, KA_WU, KA_WDN, KA_OUT, KA_DBG, KA_WS = 48, 56, 64, 72, 80, 88, 96
WS_YB = 0
WS_Y = 4 << 20
WS_KEY = 8 << 20
WS_STAT = (8 << 20) + 8192
WS_GU = (8 << 20) + 65536
WS_IDX = (8 << 20) + 131072
WS_FLAG = (8 << 20) + 196608
WS_FA = WS_FLAG + 4096
WS_REC = (9 << 20)
WS_SEL = (9 << 20) + 65536
WS_WDB = 10 << 20
WS_SIZE = 268435456

KIDX = [0]
NV = {"k1_kernel": 160, "k2_kernel": 160, "t1_kernel": 148, "t2_kernel": 192, "t3_kernel": 192, "tf_kernel": 184, "t4_kernel": 252, "f_kernel": 164}
FUSE = OPT("FUSE", 1)
K2_NS = OPT("K2_NS", 6)
MEGA = OPT("MEGA", 0) and FUSE
CUR = [0]
def kernel_begin(name):
    CUR[0] = NV[name]
    e(f".globl {name}")
    e(".p2align 8")
    e(f".type {name},@function")
    lab(name)
    if OPT('DIAG'):
        e("  s_memrealtime s[72:73]")
        for i in range(1, 7):
            e(f"  s_mov_b64 s[{72+2*i}:{73+2*i}], 0")
        e(f"  s_load_dwordx2 s[94:95], s[0:1], {KA_WS}")
        e(f"  v_mov_b32 v{CUR[0]}, v0")

HS = [0]
def hstamp(k, wg=0):
    if not OPT('HSTAMP'): return
    if OPT('HSTAMP') == 2 and k in (7, 8, 9, 10) and wg in (0, 224) and not hasattr(hstamp, "x"):
        if k != 7: return
        k = 15
    HS[0] += 1
    e(f"  s_cmp_lg_u32 s2, {wg}")
    e(f"  s_cbranch_scc1 hs_{HS[0]}")
    e("  s_cmp_lg_u32 s15, 0")
    e(f"  s_cbranch_scc1 hs_{HS[0]}")
    e("  s_memrealtime s[72:73]")
    e("  s_waitcnt lgkmcnt(0)")
    e("  v_mov_b32 v162, s72")
    e(f"  v_mov_b32 v163, {4*k}")
    e("  s_mov_b64 s[74:75], exec")
    e("  s_mov_b64 exec, 1")
    e("  buffer_store_dword v162, v163, s[96:99], 0 offen")
    e("  s_mov_b64 exec, s[74:75]")
    lab(f"hs_{HS[0]}")

def stamp(i):
    if OPT('DIAG'):
        e(f"  s_memrealtime s[{72+2*i}:{73+2*i}]")
    if OPT('HSTAMP') == 1 and CUR[0] == 164: hstamp(i)
    if OPT('HSTAMP') == 2 and CUR[0] == 164 and i == 6:
        for w in range(8): hstamp(1 + w, w)
    if OPT('HSTAMP') == 2 and CUR[0] == 164 and i == 2:
        for w in range(0, 8, 2): hstamp(11 + w // 2, w + 1)

def kernel_end():
    if OPT('DIAG'):
        e("  s_waitcnt vmcnt(0) lgkmcnt(0)")
        e("  s_memrealtime s[86:87]")
        e("  s_mov_b32 s88, s94")
        e("  s_mov_b32 s89, s95")
        e("  s_mov_b32 s90, 0x4000000")
        e("  s_mov_b32 s91, 0x00020000")
        e("  s_waitcnt lgkmcnt(0)")
        e("  s_mov_b64 exec, 1")
        for i in range(16):
            e(f"  v_mov_b32 v{i}, s{72+i}")
        e(f"  v_lshrrev_b32 v{CUR[0]+1}, 6, v{CUR[0]}")
        e(f"  v_lshlrev_b32 v{CUR[0]+1}, 6, v{CUR[0]+1}")
        e("  s_lshl_b32 s92, s2, 10")
        e(f"  s_add_u32 s92, s92, {(16 << 20) + KIDX[0] * 0x100000}")
        for i in range(4):
            e(f"  buffer_store_dwordx4 v[{4*i}:{3+4*i}], v{CUR[0]+1}, s[88:91], s92 offen offset:{16*i}")
    KIDX[0] += 1

KD = []
def kernel_desc(name, vgpr, sgpr=102):
    assert vgpr == CUR[0]
    if OPT('DIAG'): vgpr += 2
    acc = (vgpr + 3) // 4 * 4
    KD.append(f""".p2align 6
.amdhsa_kernel {name}
  .amdhsa_next_free_vgpr {vgpr}
  .amdhsa_next_free_sgpr {sgpr}
  .amdhsa_accum_offset {acc}
  .amdhsa_group_segment_fixed_size 0
  .amdhsa_kernarg_size 104
  .amdhsa_user_sgpr_count 2
  .amdhsa_user_sgpr_kernarg_segment_ptr 1
  .amdhsa_system_sgpr_workgroup_id_x 1
.end_amdhsa_kernel""")

def srd(d, lo, hi, size):
    e(f"  s_mov_b32 s{d}, s{lo}")
    e(f"  s_mov_b32 s{d+1}, s{hi}")
    e(f"  s_mov_b32 s{d+2}, {size}")
    e(f"  s_mov_b32 s{d+3}, 0x00020000")

def vr(a, n):
    return f"v[{a}:{a+n-1}]"

def reduce8(v):
    e("  s_nop 1")
    e(f"  v_add_f32_dpp v{v}, v{v}, v{v} quad_perm:[1,0,3,2] row_mask:0xf bank_mask:0xf")
    e("  s_nop 1")
    e(f"  v_add_f32_dpp v{v}, v{v}, v{v} quad_perm:[2,3,0,1] row_mask:0xf bank_mask:0xf")
    e("  s_nop 1")
    e(f"  v_add_f32_dpp v{v}, v{v}, v{v} row_half_mirror row_mask:0xf bank_mask:0xf")

def reduce16(v):
    reduce8(v)
    e("  s_nop 1")
    e(f"  v_add_f32_dpp v{v}, v{v}, v{v} row_mirror row_mask:0xf bank_mask:0xf")

def helper_wave():
    srd(36, 34, 35, 1792*512*2)
    srd(40, 6, 7, 12 << 20)
    e("  v_lshlrev_b32 v2, 4, v0")
    e("  s_mul_i32 s44, s2, 7168")
    for q in range(7):
        e(f"  buffer_load_dwordx4 {vr(8+4*q,4)}, v2, s[36:39], s44 offen")
        e("  s_add_u32 s44, s44, 1024")
    e("  s_cmp_ge_u32 s2, 28")
    e("  s_cbranch_scc1 k2_nomark")
    for q in range(4):
        e(f"  v_mov_b32 v{4+q}, -1")
    e("  s_lshl_b32 s44, s2, 10")
    e(f"  s_add_u32 s44, s44, {WS_GU}")
    e("  buffer_store_dwordx4 v[4:7], v2, s[40:43], s44 offen" + (" sc1" if MEGA else ""))
    lab("k2_nomark")
    e("  v_mul_u32_u24 v3, 28672, v0")
    e("  s_mul_i32 s44, s2, 112")
    e(f"  s_add_u32 s44, s44, {WS_WDB}")
    e("  s_waitcnt vmcnt(0)")
    for q in range(7):
        e(f"  buffer_store_dwordx4 {vr(8+4*q,4)}, v3, s[40:43], s44 offen offset:{16*q}" + (" sc1" if MEGA else ""))
    if MEGA: e("  s_waitcnt vmcnt(0)")
    e("  s_branch k2_done")

def get_epoch(tag):
    e("  v_mov_b32 v158, 0")
    e("  s_mov_b32 s69, 0")
    lab(f"ep_{tag}")
    e("  buffer_load_dword v159, v158, s[96:99], 0 offen sc1")
    e("  s_waitcnt vmcnt(0)")
    e("  v_readfirstlane_b32 s68, v159")
    e("  s_add_u32 s69, s69, 1")
    e(f"  s_cmp_gt_u32 s69, {1 << 22}")
    e(f"  s_cbranch_scc1 ep_{tag}_ok")
    e("  s_cmp_eq_u32 s68, 0")
    e(f"  s_cbranch_scc1 ep_{tag}")
    lab(f"ep_{tag}_ok")

def gen_k1():
    name = "f_kernel" if FUSE else "k1_kernel"
    kernel_begin(name)
    e("  s_cmp_ge_u32 s2, 256")
    e(f"  s_cbranch_scc1 {'k2_done' if FUSE else 'k1_done'}")
    e(f"  s_load_dwordx2 s[4:5], s[0:1], {KA_X}")
    e(f"  s_load_dwordx4 s[8:11], s[0:1], {KA_WDRE}")
    e(f"  s_load_dwordx2 s[6:7], s[0:1], {KA_WS}")
    if FUSE:
        e(f"  s_load_dwordx4 s[52:55], s[0:1], {KA_WSRE}")
        e(f"  s_load_dwordx2 s[66:67], s[0:1], {KA_DBG}")
        e(f"  s_load_dwordx2 s[34:35], s[0:1], {KA_WDN}")
    e("  s_and_b32 s12, s2, 7")
    e("  s_lshr_b32 s13, s2, 3")
    e("  s_and_b32 s14, s13, 3")
    e("  s_lshl_b32 s12, s12, 2")
    e("  s_add_u32 s12, s12, s14")
    e("  s_lshr_b32 s13, s13, 2")
    e("  v_lshrrev_b32 v1, 6, v0")
    e("  v_and_b32 v0, 63, v0")
    e("  v_readfirstlane_b32 s15, v1")
    e("  v_lshrrev_b32 v2, 3, v0")
    e("  v_and_b32 v3, 7, v0")
    if OPT('K1_PF', 0) or OPT('K1_PFEND', 0):
        e(f"  s_load_dwordx4 s[40:43], s[0:1], {KA_WSRE}")
    e("  s_waitcnt lgkmcnt(0)")
    if OPT('K1_PF', 0):
        e("  s_cmp_lg_u32 s15, 8")
        e("  s_cbranch_scc1 k1_main")
        e("  s_and_b32 s44, s2, 7")
        e("  s_cmp_lt_u32 s44, 4")
        e("  s_cselect_b32 s48, s40, s42")
        e("  s_cselect_b32 s49, s41, s43")
        e(f"  s_mov_b32 s50, {2048*2048*2}")
        e("  s_mov_b32 s51, 0x00020000")
        e("  s_and_b32 s44, s44, 3")
        e("  s_lshl_b32 s44, s44, 21")
        e("  s_lshr_b32 s45, s2, 3")
        e("  s_lshl_b32 s45, s45, 16")
        e("  s_add_u32 s44, s44, s45")
        e("  v_lshlrev_b32 v1, 4, v0")
        e("  s_cmp_lt_u32 s13, 4")
        e("  s_cselect_b32 s56, s8, s10")
        e("  s_cselect_b32 s57, s9, s11")
        e(f"  s_mov_b32 s58, {512*512*2}")
        e("  s_mov_b32 s59, 0x00020000")
        e("  s_and_b32 s46, s13, 3")
        e("  s_lshl_b32 s46, s46, 17")
        for q in range(OPT('K1_CAN', 0)):
            e(f"  buffer_load_dwordx4 v[8:11], v1, s[56:59], s46 offen offset:{q*1024}")
            e("  s_waitcnt vmcnt(0)")
        for q in range(64):
            e(f"  buffer_load_dwordx4 {vr(8+4*(q%32),4)}, v1, s[48:51], s44 offen")
            e("  s_add_u32 s44, s44, 1024")
        e("  s_branch k1_done")
        lab("k1_main")
    if FUSE:
        srd(96, 66, 67, 256)
        e("  s_cmp_lg_u32 s15, 8")
        e("  s_cbranch_scc1 f_main")
        e("  s_cmp_lg_u32 s2, 0")
        e("  s_cbranch_scc1 f_noepoch")
        e("  s_memrealtime s[40:41]")
        e("  s_waitcnt lgkmcnt(0)")
        e("  s_or_b32 s40, s40, 1")
        e("  v_mov_b32 v4, s40")
        e("  v_mov_b32 v5, 0")
        e("  s_mov_b64 s[42:43], exec")
        e("  s_mov_b64 exec, 1")
        e("  buffer_store_dword v4, v5, s[96:99], 0 offen sc1")
        e("  s_mov_b64 exec, s[42:43]")
        lab("f_noepoch")
        if OPT('F_PF', 0):
            e(f"  s_load_dwordx4 s[40:43], s[0:1], {KA_WSRE}")
            e("  s_and_b32 s44, s2, 7")
            e("  s_waitcnt lgkmcnt(0)")
            e("  s_cmp_lt_u32 s44, 4")
            e("  s_cselect_b32 s48, s40, s42")
            e("  s_cselect_b32 s49, s41, s43")
            e(f"  s_mov_b32 s50, {2048*2048*2}")
            e("  s_mov_b32 s51, 0x00020000")
            e("  s_and_b32 s44, s44, 3")
            e("  s_lshl_b32 s44, s44, 21")
            e("  s_lshr_b32 s45, s2, 3")
            e("  s_lshl_b32 s45, s45, 16")
            e("  s_add_u32 s44, s44, s45")
            e("  v_lshlrev_b32 v1, 4, v0")
            for q in range(64):
                e(f"  buffer_load_dwordx4 {vr(40+4*(q%24),4)}, v1, s[48:51], s44 offen")
                e("  s_add_u32 s44, s44, 1024")
        helper_wave()
        lab("f_main")
        hstamp(7)
    srd(16, 4, 5, 2048*512*2)
    e("  s_cmp_lt_u32 s13, 4")
    e("  s_cselect_b32 s20, s8, s10")
    e("  s_cselect_b32 s21, s9, s11")
    e(f"  s_mov_b32 s22, {512*512*2}")
    e("  s_mov_b32 s23, 0x00020000")
    srd(24, 6, 7, 9 << 20)
    if not FUSE:
        e("  s_or_b32 s46, s2, s15")
        e("  s_cmp_lg_u32 s46, 0")
        e("  s_cbranch_scc1 k1_nozero")
        for q in range(4):
            e(f"  v_mov_b32 v{4+q}, 0")
        e("  v_lshlrev_b32 v8, 4, v0")
        e(f"  s_mov_b32 s46, {WS_FLAG}")
        e("  buffer_store_dwordx4 v[4:7], v8, s[24:27], s46 offen")
        lab("k1_nozero")
    e("  s_lshl_b32 s28, s12, 6")
    e("  s_lshl_b32 s29, s15, 3")
    e("  s_add_u32 s28, s28, s29")
    e("  v_add_u32 v4, s28, v2")
    e("  v_lshlrev_b32 v4, 10, v4")
    e("  v_lshl_add_u32 v4, v3, 4, v4")
    X = 32
    for j in range(8):
        e(f"  buffer_load_dwordx4 {vr(X+4*j,4)}, v4, s[16:19], 0 offen offset:{128*j}")
    e("  s_and_b32 s30, s13, 3")
    e("  s_lshl_b32 s30, s30, 7")
    for ii in range(2):
        e(f"  s_lshl_b32 s31, s15, 4")
        e(f"  s_add_u32 s31, s31, {8*ii}")
        e(f"  v_add_u32 v7, s31, v2")
        e(f"  v_lshrrev_b32 v8, 1, v7")
        e(f"  v_and_b32 v8, 7, v8")
        e(f"  v_xor_b32 v8, v8, v3")
        e(f"  v_add_u32 v7, s30, v7")
        e(f"  v_lshlrev_b32 v7, 10, v7")
        e(f"  v_lshl_add_u32 v{5+ii}, v8, 4, v7")
    e("  s_lshl_b32 s32, s15, 11")
    def wdma(kb):
        slot = kb % 4
        e(f"  s_mov_b32 s33, {128*kb}")
        for ii in range(2):
            e(f"  s_add_u32 m0, s32, {slot*16384 + ii*1024}")
            e("  s_nop 0")
            e(f"  buffer_load_dwordx4 v{5+ii}, s[20:23], s33 offen lds")
    for kb in range(4):
        wdma(kb)
    PFM = OPT('F_PFM', 0)
    STG = 128
    if PFM:
        for kb in range(4, 8):
            e(f"  s_mov_b32 s33, {128*kb}")
            for ii in range(2):
                e(f"  buffer_load_dwordx4 {vr(STG+8*(kb-4)+4*ii,4)}, v{5+ii}, s[20:23], s33 offen")
        e("  s_and_b32 s44, s2, 7")
        e("  s_cmp_lt_u32 s44, 4")
        e("  s_cselect_b32 s48, s52, s54")
        e("  s_cselect_b32 s49, s53, s55")
        e(f"  s_mov_b32 s50, {2048*2048*2}")
        e("  s_mov_b32 s51, 0x00020000")
        e("  s_and_b32 s44, s44, 3")
        e("  s_lshl_b32 s44, s44, 21")
        e("  s_lshr_b32 s45, s2, 3")
        e("  s_lshl_b32 s45, s45, 16")
        e("  s_add_u32 s44, s44, s45")
        e("  s_lshl_b32 s45, s15, 13")
        e("  s_add_u32 s44, s44, s45")
        e("  v_lshlrev_b32 v7, 4, v0")
        for q in range(8):
            e(f"  buffer_load_dwordx4 v[160:163], v7, s[48:51], s44 offen")
            e("  s_add_u32 s44, s44, 1024")
    e("  s_mov_b32 s34, 0x3f803f80")
    for a in range(4):
        e(f"  v_mov_b32 v{8+a}, 0")
    e(f"  s_waitcnt vmcnt({24 if PFM else 8})")
    for i in range(32):
        e(f"  v_dot2_f32_bf16 v{8+i%4}, v{X+i}, s34, v{8+i%4}")
    e("  s_nop 3")
    e("  v_add_f32 v8, v8, v9")
    e("  v_add_f32 v10, v10, v11")
    e("  v_add_f32 v8, v8, v10")
    reduce8(8)
    e("  v_mul_f32 v8, 0x3b000000, v8")
    e("  v_cvt_pk_bf16_f32 v9, v8, v8")
    e("  v_lshlrev_b32 v9, 16, v9")
    e("  v_sub_f32 v10, 0, v9")
    e("  v_mov_b32 v11, v10")
    D = 64
    for a in range(4):
        e(f"  v_mov_b32 v{12+a}, 0")
    for i in range(32):
        e(f"  v_lshlrev_b32 v{D+2*i}, 16, v{X+i}")
        e(f"  v_and_b32 v{D+2*i+1}, 0xffff0000, v{X+i}")
        e(f"  v_pk_add_f32 {vr(D+2*i,2)}, {vr(D+2*i,2)}, v[10:11]")
        q = 12 + 2*(i % 2)
        e(f"  v_pk_fma_f32 {vr(q,2)}, {vr(D+2*i,2)}, {vr(D+2*i,2)}, {vr(q,2)}")
    e("  v_add_f32 v12, v12, v13")
    e("  v_add_f32 v14, v14, v15")
    e("  v_add_f32 v12, v12, v14")
    reduce8(12)
    e("  v_sub_f32 v13, v8, v9")
    e("  v_mul_f32 v13, v13, v13")
    e("  v_mul_f32 v12, 0x3b000000, v12")
    e("  v_sub_f32 v12, v12, v13")
    e("  v_max_f32 v12, 0, v12")
    e("  v_cvt_pk_bf16_f32 v12, v12, v12")
    e("  v_lshlrev_b32 v12, 16, v12")
    e("  v_add_f32 v12, 0x3727c5ac, v12")
    e("  v_cvt_pk_bf16_f32 v12, v12, v12")
    e("  v_lshlrev_b32 v12, 16, v12")
    e("  v_sqrt_f32 v12, v12")
    e("  s_nop 0")
    e("  v_cvt_pk_bf16_f32 v12, v12, v12")
    e("  v_lshlrev_b32 v12, 16, v12")
    e("  v_rcp_f32 v12, v12")
    e("  s_nop 0")
    e("  v_mov_b32 v13, v12")
    for i in range(32):
        e(f"  v_cvt_pk_bf16_f32 v{X+i}, v{D+2*i}, v{D+2*i+1}")
        e(f"  v_lshlrev_b32 v{D+2*i}, 16, v{X+i}")
        e(f"  v_and_b32 v{D+2*i+1}, 0xffff0000, v{X+i}")
        e(f"  v_pk_mul_f32 {vr(D+2*i,2)}, {vr(D+2*i,2)}, v[12:13]")
        e(f"  v_cvt_pk_bf16_f32 v{X+i}, v{D+2*i}, v{D+2*i+1}")
    e("  v_add_u32 v14, s29, v2")
    e("  v_lshrrev_b32 v15, 1, v14")
    e("  v_and_b32 v15, 7, v15")
    e("  v_xor_b32 v15, v15, v3")
    e("  v_lshlrev_b32 v14, 7, v14")
    e("  v_lshl_add_u32 v14, v15, 4, v14")
    e("  v_add_u32 v14, 0x10000, v14")
    for j in range(8):
        e(f"  ds_write_b128 v14, {vr(X+4*j,4)} offset:{8192*j}")
    e("  s_and_b32 s35, s15, 1")
    e("  s_lshr_b32 s36, s15, 1")
    e("  v_and_b32 v16, 31, v0")
    e("  v_lshrrev_b32 v17, 5, v0")
    def fragaddr(dst, sblk, base):
        e(f"  s_lshl_b32 s37, s{sblk}, 5")
        e(f"  v_add_u32 v18, s37, v16")
        e(f"  v_lshrrev_b32 v19, 1, v18")
        e(f"  v_and_b32 v19, 7, v19")
        e(f"  v_xor_b32 v19, v19, v17")
        e(f"  v_lshlrev_b32 v18, 7, v18")
        e(f"  v_lshl_add_u32 v{dst}, v19, 4, v18")
        if base:
            e(f"  v_add_u32 v{dst}, {base}, v{dst}")
        for kk in range(1, 4):
            e(f"  v_xor_b32 v{dst+kk}, {32*kk}, v{dst}")
    fragaddr(20, 35, 0x10000)
    fragaddr(24, 36, 0)
    ACC = 96
    for i in range(16):
        e(f"  v_mov_b32 v{ACC+i}, 0")
    FA, FB = 64, 80
    waits = [22, 14, 12, 10, 8, 8, 8, 8] if PFM else [6, 4, 4, 4, 4, 4, 2, 0]
    if PFM:
        e("  v_lshlrev_b32 v28, 4, v0")
        e("  v_add_u32 v28, s32, v28")
    for kb in range(8):
        e(f"  s_waitcnt vmcnt({waits[kb]}) lgkmcnt(0)")
        e("  s_barrier")
        if 1 <= kb <= 4 and PFM:
            for ii in range(2):
                e(f"  ds_write_b128 v28, {vr(STG+8*(kb-1)+4*ii,4)} offset:{((kb+3)%4)*16384 + ii*1024}")
        elif 1 <= kb <= 4:
            wdma(kb + 3)
        slot = kb % 4
        for kk in range(4):
            e(f"  ds_read_b128 {vr(FA+4*kk,4)}, v{20+kk} offset:{8192*kb}")
            e(f"  ds_read_b128 {vr(FB+4*kk,4)}, v{24+kk} offset:{16384*slot}")
        for kk in range(4):
            e(f"  s_waitcnt lgkmcnt({6-2*kk})")
            e(f"  v_mfma_f32_32x32x16_bf16 {vr(ACC,16)}, {vr(FA+4*kk,4)}, {vr(FB+4*kk,4)}, {vr(ACC,16)}")
    stamp(5)
    e("  s_lshl_b32 s37, s13, 1")
    e("  s_lshr_b32 s38, s36, 1")
    e("  s_add_u32 s37, s37, s38")
    e("  s_lshl_b32 s37, s37, 5")
    e("  s_add_u32 s37, s37, s12")
    e("  s_lshl_b32 s37, s37, 13")
    e("  s_and_b32 s38, s36, 1")
    e("  s_lshl_b32 s38, s38, 5")
    e("  v_add_u32 v18, s38, v16")
    e("  v_lshrrev_b32 v19, 1, v18")
    e("  v_and_b32 v19, 7, v19")
    e("  s_lshl_b32 s38, s35, 2")
    e("  v_add_u32 v29, s38, v17")
    e("  v_xor_b32 v29, v29, v19")
    e("  v_lshlrev_b32 v18, 7, v18")
    e("  v_lshl_add_u32 v30, v29, 4, v18")
    e("  v_xor_b32 v31, 32, v30")
    e("  s_nop 7")
    P = 112
    for g in range(4):
        e(f"  v_cvt_pk_bf16_f32 v{P+2*g}, v{ACC+4*g}, v{ACC+4*g+1}")
        e(f"  v_cvt_pk_bf16_f32 v{P+2*g+1}, v{ACC+4*g+2}, v{ACC+4*g+3}")
    e("  s_nop 1")
    for p in range(2):
        e(f"  v_permlane32_swap_b32 v{P+4*p}, v{P+4*p+2}")
        e(f"  v_permlane32_swap_b32 v{P+4*p+1}, v{P+4*p+3}")
    if not FUSE:
        e(f"  buffer_store_dwordx4 {vr(P,4)}, v30, s[24:27], s37 offen")
        e(f"  buffer_store_dwordx4 {vr(P+4,4)}, v31, s[24:27], s37 offen")
        lab("k1_done")
        kernel_end()
        e("  s_endpgm")
        kernel_desc(name, 160)
        return
    TR = 131072
    e(f"  s_load_dwordx4 s[8:11], s[0:1], {KA_WSRE}")
    e("  s_lshr_b32 s38, s36, 1")
    e("  s_lshl_b32 s38, s38, 13")
    e(f"  s_add_u32 s38, s38, {TR}")
    e("  v_add_u32 v30, s38, v30")
    e("  v_add_u32 v31, s38, v31")
    e(f"  ds_write_b128 v30, {vr(P,4)}")
    e(f"  ds_write_b128 v31, {vr(P+4,4)}")
    e("  v_lshlrev_b32 v29, 4, v0")
    e("  s_lshl_b32 s38, s15, 11")
    e(f"  s_add_u32 s39, s38, {TR}")
    e("  v_add_u32 v28, s39, v29")
    e("  s_waitcnt lgkmcnt(0)")
    e("  s_barrier")
    e("  ds_read_b128 v[64:67], v28")
    e("  ds_read_b128 v[68:71], v28 offset:1024")
    e("  s_lshl_b32 s37, s13, 1")
    e("  s_lshr_b32 s39, s15, 2")
    e("  s_add_u32 s37, s37, s39")
    e("  s_lshl_b32 s37, s37, 5")
    e("  s_add_u32 s37, s37, s12")
    e("  s_lshl_b32 s37, s37, 13")
    e("  s_and_b32 s39, s15, 3")
    e("  s_lshl_b32 s39, s39, 11")
    e("  s_add_u32 s37, s37, s39")
    e("  s_waitcnt lgkmcnt(1)")
    e("  buffer_store_dwordx4 v[64:67], v29, s[24:27], s37 offen sc1")
    e("  s_waitcnt lgkmcnt(0)")
    e("  buffer_store_dwordx4 v[68:71], v29, s[24:27], s37 offen offset:1024 sc1")
    e("  s_lshl_b32 s70, s13, 5")
    e("  s_add_u32 s70, s70, s12")
    e("  s_lshl_b32 s70, s70, 2")
    e(f"  s_add_u32 s70, s70, {WS_FA}")

def k2_epilogue_plain(ACC):
    e("  s_lshl_b32 s24, s14, 21")
    e(f"  s_add_u32 s24, s24, {WS_Y}")
    e("  s_lshl_b32 s30, s13, 7")
    e("  s_add_u32 s24, s24, s30")
    e("  s_lshl_b32 s30, s12, 7")
    e("  s_lshl_b32 s31, s15, 5")
    e("  s_add_u32 s30, s30, s31")
    e("  v_add_u32 v18, s30, v16")
    e("  v_lshlrev_b32 v18, 10, v18")
    e("  v_lshl_add_u32 v18, v17, 4, v18")
    e("  s_nop 7")
    P = 64
    for g in range(8):
        e(f"  v_cvt_pk_bf16_f32 v{P+2*g}, v{ACC+4*g}, v{ACC+4*g+1}")
        e(f"  v_cvt_pk_bf16_f32 v{P+2*g+1}, v{ACC+4*g+2}, v{ACC+4*g+3}")
    e("  s_nop 1")
    for p in range(4):
        e(f"  v_permlane32_swap_b32 v{P+4*p}, v{P+4*p+2}")
        e(f"  v_permlane32_swap_b32 v{P+4*p+1}, v{P+4*p+3}")
    for p in range(4):
        e(f"  buffer_store_dwordx4 {vr(P+4*p,4)}, v18, s[20:23], s24 offen offset:{32*p}")

ROW_O = 48
def reduce32(v, t):
    reduce16(v)
    e("  s_nop 1")
    e(f"  ds_swizzle_b32 v{t}, v{v} offset:0x401F")
    e("  s_waitcnt lgkmcnt(0)")
    e(f"  v_add_f32 v{v}, v{v}, v{t}")

def rowmac32_pre():
    XX, WR = 48, 64
    e("  v_lshlrev_b32 v3, 10, v1")
    e("  v_lshl_add_u32 v3, v2, 4, v3")
    e("  v_lshlrev_b32 v4, 4, v2")
    for j in range(2):
        e(f"  buffer_load_dwordx4 {vr(XX+4*j,4)}, v3, s[20:23], 0 offen offset:{512*j}")
        e(f"  buffer_load_dwordx4 {vr(WR+4*j,4)}, v4, s[28:31], 0 offen offset:{512*j}")

def rowmac32():
    YR, YI, XX, WR, H, T, D = 16, 32, 48, 64, 80, 112, 116
    O = ROW_O
    e(f"  s_mov_b32 s52, {WS_Y}")
    e(f"  s_mov_b32 s53, {WS_Y + (2<<20)}")
    for j in range(2):
        e(f"  buffer_load_dwordx4 {vr(YR+4*j,4)}, v3, s[24:27], s52 offen offset:{512*j} sc1")
        e(f"  buffer_load_dwordx4 {vr(YI+4*j,4)}, v3, s[24:27], s53 offen offset:{512*j} sc1")
    e("  v_mov_b32 v14, 0")
    e("  v_mov_b32 v15, 0")
    for j in range(2):
        e(f"  s_waitcnt vmcnt({2*(1-j)})")
        for q in range(4):
            i = 4*j + q
            e(f"  v_lshlrev_b32 v{T}, 16, v{YR+i}")
            e(f"  v_and_b32 v{T+1}, 0xffff0000, v{YR+i}")
            e(f"  v_lshlrev_b32 v{T+2}, 16, v{YI+i}")
            e(f"  v_and_b32 v{T+3}, 0xffff0000, v{YI+i}")
            e(f"  v_pk_add_f32 {vr(T,2)}, {vr(T,2)}, {vr(T+2,2)} neg_lo:[0,1] neg_hi:[0,1]")
            e(f"  v_cvt_pk_bf16_f32 v{T}, v{T}, v{T+1}")
            e(f"  v_and_b32 v{T+1}, 0xffff0000, v{T}")
            e(f"  v_lshlrev_b32 v{T}, 16, v{T}")
            e(f"  v_lshlrev_b32 v{T+2}, 16, v{XX+i}")
            e(f"  v_and_b32 v{T+3}, 0xffff0000, v{XX+i}")
            e(f"  v_pk_add_f32 {vr(T,2)}, {vr(T,2)}, {vr(T+2,2)}")
            e(f"  v_cvt_pk_bf16_f32 v{T}, v{T}, v{T+1}")
            e(f"  v_lshlrev_b32 v{H+2*i}, 16, v{T}")
            e(f"  v_and_b32 v{H+2*i+1}, 0xffff0000, v{T}")
            e(f"  v_pk_add_f32 v[14:15], v[14:15], {vr(H+2*i,2)}")
    e("  v_add_f32 v5, v14, v15")
    reduce32(5, 13)
    e("  v_mul_f32 v5, 0x3b000000, v5")
    e("  v_cvt_pk_bf16_f32 v6, v5, v5")
    e("  v_lshlrev_b32 v6, 16, v6")
    e("  v_sub_f32 v8, 0, v6")
    e("  v_mov_b32 v9, v8")
    e("  v_mov_b32 v10, 0")
    e("  v_mov_b32 v11, 0")
    for i in range(8):
        e(f"  v_pk_add_f32 {vr(D+2*i,2)}, {vr(H+2*i,2)}, v[8:9]")
        e(f"  v_pk_fma_f32 v[10:11], {vr(D+2*i,2)}, {vr(D+2*i,2)}, v[10:11]")
    e("  v_add_f32 v10, v10, v11")
    reduce32(10, 13)
    e("  v_sub_f32 v11, v5, v6")
    e("  v_mul_f32 v11, v11, v11")
    e("  v_mul_f32 v10, 0x3b000000, v10")
    e("  v_sub_f32 v10, v10, v11")
    e("  v_max_f32 v10, 0, v10")
    e("  v_cvt_pk_bf16_f32 v10, v10, v10")
    e("  v_lshlrev_b32 v10, 16, v10")
    e("  v_add_f32 v10, 0x3727c5ac, v10")
    e("  v_cvt_pk_bf16_f32 v10, v10, v10")
    e("  v_lshlrev_b32 v10, 16, v10")
    e("  v_sqrt_f32 v10, v10")
    e("  s_nop 0")
    e("  v_cvt_pk_bf16_f32 v10, v10, v10")
    e("  v_lshlrev_b32 v10, 16, v10")
    e("  v_rcp_f32 v10, v10")
    e("  s_nop 0")
    e("  v_mov_b32 v11, v10")
    e("  v_mov_b32 v12, 0")
    for i in range(8):
        e(f"  v_cvt_pk_bf16_f32 v{T}, v{D+2*i}, v{D+2*i+1}")
        e(f"  v_lshlrev_b32 v{D+2*i}, 16, v{T}")
        e(f"  v_and_b32 v{D+2*i+1}, 0xffff0000, v{T}")
        e(f"  v_pk_mul_f32 {vr(D+2*i,2)}, {vr(D+2*i,2)}, v[10:11]")
        e(f"  v_cvt_pk_bf16_f32 v{T}, v{D+2*i}, v{D+2*i+1}")
        e(f"  v_dot2_f32_bf16 v12, v{T}, v{WR+i}, v12")
        e(f"  v_lshlrev_b32 v{D+2*i}, 16, v{T}")
        e(f"  v_and_b32 v{D+2*i+1}, 0xffff0000, v{T}")
        e(f"  v_pk_add_f32 {vr(D+2*i,2)}, {vr(D+2*i,2)}, {vr(H+2*i,2)}")
        e(f"  v_cvt_pk_bf16_f32 v{O+i}, v{D+2*i}, v{D+2*i+1}")
    if not MEGA:
        for j in range(2):
            e(f"  buffer_store_dwordx4 {vr(O+4*j,4)}, v3, s[44:47], 0 offen offset:{512*j}")
    e("  s_nop 3")
    reduce32(12, 13)
    e("  v_cvt_pk_bf16_f32 v12, v12, v12")
    e("  v_lshlrev_b32 v12, 16, v12")
    e("  v_ashrrev_i32 v13, 31, v12")
    e("  v_or_b32 v13, 0x80000000, v13")
    e("  v_xor_b32 v12, v12, v13")
    e("  v_and_b32 v12, 0xffff0000, v12")
    e("  v_sub_u32 v13, 0xffff, v1")
    e("  v_or_b32 v12, v12, v13")

MT_C, MT_R, MT_WD = 0, 256, 8704
MT_G, MT_U, MT_XS = 8704, 8704 + 8192, 8704 + 16384
def poll_end(lbl):
    e("  s_nop 3")
    e("  s_cmp_eq_u64 s[54:55], 0")
    e(f"  s_cbranch_scc1 {lbl}_ok")
    e("  s_add_u32 s53, s53, 1")
    e(f"  s_cmp_gt_u32 s53, {1 << 22}")
    e(f"  s_cbranch_scc1 {lbl}_ok")
    e(f"  s_branch {lbl}")
    lab(f"{lbl}_ok")

def mega_gu_dma():
    e("  s_and_b32 s3, s2, 7")
    e("  s_mul_i32 s3, s3, 28")
    e("  s_lshr_b32 s32, s2, 3")
    e("  s_add_u32 s3, s3, s32")
    e("  s_cmp_ge_u32 s2, 224")
    e("  s_cbranch_scc1 mt_nogu")
    srd(16, 58, 59, 512*1792*2)
    srd(8, 60, 61, 512*1792*2)
    e("  s_lshl_b32 s35, s3, 4")
    e("  s_movk_i32 s32, 3584")
    for ii in range(2):
        e(f"  s_lshl_b32 s33, s15, 7")
        e(f"  s_add_u32 s33, s33, {64*ii}")
        e(f"  v_add_u32 v8, s33, v0")
        e(f"  v_mul_lo_u32 v8, v8, s32")
        e(f"  s_lshl_b32 s34, s15, 11")
        e(f"  s_add_u32 m0, s34, {MT_G + 1024*ii}")
        e("  s_nop 0")
        e(f"  buffer_load_dwordx4 v8, s[16:19], s35 offen lds")
        e(f"  s_add_u32 m0, s34, {MT_U + 1024*ii}")
        e("  s_nop 0")
        e(f"  buffer_load_dwordx4 v8, s[8:11], s35 offen lds")
    lab("mt_nogu")

def mega_tail():
    C = MT_C
    for i in range(8):
        e(f"  v_mov_b32 v{152+i}, v{48+i}")
    e("  v_mov_b32 v151, v1")
    e("  v_mov_b32 v150, v3")
    e("  v_lshl_add_u32 v40, s15, 6, v0")
    e("  v_mov_b32 v16, v12")
    e("  v_mov_b32 v17, v6")
    e("  v_mov_b32 v18, v10")
    e("  v_mov_b32 v19, s68")
    e("  v_lshlrev_b32 v13, 4, v1")
    e("  v_cmp_eq_u32 vcc, 0, v2")
    e("  s_and_saveexec_b64 s[50:51], vcc")
    e(f"  s_mov_b32 s52, {WS_REC}")
    e("  buffer_store_dwordx4 v[16:19], v13, s[24:27], s52 offen sc1")
    e("  s_mov_b64 exec, s[50:51]")
    e("  s_cmp_lg_u32 s2, 255")
    e("  s_cbranch_scc1 mt_nosel")
    e("  v_lshlrev_b32 v13, 4, v40")
    e("  s_mov_b32 s53, 0")
    lab("mt_prec")
    for i in range(8):
        e(f"  s_mov_b32 s52, {WS_REC + 4096*i}")
        e(f"  buffer_load_dwordx4 {vr(64+4*i,4)}, v13, s[24:27], s52 offen sc1")
    e("  v_mov_b32 v14, 0")
    for i in range(8):
        e(f"  s_waitcnt vmcnt({7-i})")
        e(f"  v_xor_b32 v15, s68, v{67+4*i}")
        e("  v_or_b32 v14, v14, v15")
    e("  v_cmp_ne_u32 s[54:55], 0, v14")
    poll_end("mt_prec")
    top8([64+4*i for i in range(8)], range(16, 24), C, "s15")
    e("  v_and_b32 v3, 31, v0")
    e("  v_lshlrev_b32 v3, 2, v3")
    e(f"  ds_read_b32 v24, v3 offset:{C}")
    e("  v_mov_b32 v4, 0")
    for q in range(8):
        e(f"  ds_read_b128 {vr(96+4*q,4)}, v4 offset:{C+16*q}")
    e("  v_mov_b32 v25, 0")
    e("  s_waitcnt lgkmcnt(0)")
    sp = [32, 34, 36, 38]
    for i in range(32 + 3):
        if i < 32:
            e(f"  v_cmp_gt_u32 s[{sp[i%4]}:{sp[i%4]+1}], v{96+i}, v24")
        if i >= 3:
            j = i - 3
            e(f"  v_addc_co_u32 v25, vcc, 0, v25, s[{sp[j%4]}:{sp[j%4]+1}]")
    e("  s_cmp_lg_u32 s15, 0")
    e("  s_cbranch_scc1 mt_nosel")
    e("  v_lshlrev_b32 v3, 3, v25")
    e("  v_mov_b32 v26, v24")
    e("  v_mov_b32 v27, s68")
    e("  v_cmp_gt_u32 vcc, 8, v25")
    e("  v_cmp_gt_u32 s[42:43], 32, v0")
    e("  s_and_b64 vcc, vcc, s[42:43]")
    e("  s_and_saveexec_b64 s[50:51], vcc")
    e(f"  s_mov_b32 s52, {WS_SEL}")
    e("  buffer_store_dwordx2 v[26:27], v3, s[24:27], s52 offen sc1")
    e("  s_mov_b64 exec, s[50:51]")
    lab("mt_nosel")
    e("  s_cmp_lg_u32 s15, 0")
    e("  s_cbranch_scc1 mt_selbar")
    e("  v_and_b32 v3, 7, v0")
    e("  v_lshlrev_b32 v4, 3, v3")
    e("  v_lshlrev_b32 v3, 2, v3")
    e(f"  s_mov_b32 s52, {WS_SEL}")
    e("  s_mov_b32 s53, 0")
    lab("mt_psel")
    e("  buffer_load_dwordx2 v[26:27], v4, s[24:27], s52 offen sc1")
    e("  s_waitcnt vmcnt(0)")
    e("  v_cmp_ne_u32 s[54:55], s68, v27")
    poll_end("mt_psel")
    e(f"  ds_write_b32 v3, v26 offset:{C+128}")
    e("  s_waitcnt lgkmcnt(0)")
    lab("mt_selbar")
    e("  s_barrier")
    stamp(5)
    e("  v_mov_b32 v4, 0")
    e(f"  ds_read_b128 v[16:19], v4 offset:{C+128}")
    e(f"  ds_read_b128 v[20:23], v4 offset:{C+144}")
    e("  v_sub_u32 v5, 0xffff, v151")
    e("  s_waitcnt lgkmcnt(0)")
    e("  s_mov_b64 s[42:43], exec")
    for k in range(8):
        e(f"  v_and_b32 v{16+k}, 0xffff, v{16+k}")
        e(f"  v_cmp_ne_u32 vcc, v{16+k}, v5")
        e("  s_and_b64 s[42:43], s[42:43], vcc")
    e("  s_and_saveexec_b64 s[50:51], s[42:43]")
    e("  s_cbranch_execz mt_nostore")
    for j in range(2):
        e(f"  buffer_store_dwordx4 {vr(152+4*j,4)}, v150, s[44:47], 0 offen offset:{512*j}")
    lab("mt_nostore")
    e("  s_mov_b64 exec, s[50:51]")
    e("  s_cmp_ge_u32 s2, 240")
    e("  s_cbranch_scc1 k2_done")
    e("  s_cmp_ge_u32 s2, 224")
    e("  s_cbranch_scc1 mt_f2")
    e("  v_lshrrev_b32 v4, 5, v40")
    e("  v_and_b32 v5, 31, v40")
    e("  v_lshlrev_b32 v3, 2, v4")
    e(f"  ds_read_b32 v6, v3 offset:{C+128}")
    e("  s_waitcnt lgkmcnt(0)")
    e("  v_and_b32 v6, 0xffff, v6")
    e("  v_sub_u32 v6, 0xffff, v6")
    e("  v_lshlrev_b32 v7, 10, v6")
    e("  v_lshl_add_u32 v7, v5, 4, v7")
    e(f"  s_mov_b32 s52, {WS_Y}")
    e(f"  s_mov_b32 s53, {WS_Y + (2<<20)}")
    YR, YI, XX = 16, 24, 32
    for j in range(2):
        e(f"  buffer_load_dwordx4 {vr(YR+4*j,4)}, v7, s[24:27], s52 offen offset:{512*j} sc1")
        e(f"  buffer_load_dwordx4 {vr(YI+4*j,4)}, v7, s[24:27], s53 offen offset:{512*j} sc1")
        e(f"  buffer_load_dwordx4 {vr(XX+4*j,4)}, v7, s[20:23], 0 offen offset:{512*j}")
    e("  v_lshlrev_b32 v3, 4, v6")
    e(f"  s_mov_b32 s52, {WS_REC}")
    e("  buffer_load_dwordx4 v[44:47], v3, s[24:27], s52 offen sc1")
    e("  s_waitcnt vmcnt(0)")
    e("  v_sub_f32 v54, 0, v45")
    e("  v_mov_b32 v55, v54")
    e("  v_mov_b32 v52, v46")
    e("  v_mov_b32 v53, v46")
    recompute(YR, YI, XX, 8, 54, 52, 64, 80, 56)
    e(f"  v_mul_u32_u24 v3, {XS_STRIDE}, v4")
    e("  v_lshl_add_u32 v3, v5, 4, v3")
    e(f"  ds_write_b128 v3, v[80:83] offset:{MT_XS}")
    e(f"  ds_write_b128 v3, v[84:87] offset:{MT_XS+512}")
    e("  s_waitcnt lgkmcnt(0)")
    e("  s_barrier")
    e("  s_cmp_lg_u32 s15, 0")
    e("  s_cbranch_scc1 k2_done")
    e("  v_and_b32 v3, 7, v0")
    e(f"  v_mul_u32_u24 v3, {XS_STRIDE}, v3")
    e("  v_lshrrev_b32 v4, 4, v0")
    e("  v_lshl_add_u32 v3, v4, 4, v3")
    e("  v_and_b32 v5, 15, v0")
    e("  v_lshrrev_b32 v5, 2, v5")
    e("  v_lshl_add_u32 v5, v4, 3, v5")
    e("  v_lshlrev_b32 v5, 4, v5")
    e("  v_and_b32 v6, 1, v0")
    e("  v_lshl_add_u32 v5, v6, 3, v5")
    e("  v_and_b32 v6, 2, v0")
    e("  v_lshl_add_u32 v5, v6, 12, v5")
    for i in range(4):
        e(f"  v_mov_b32 v{8+i}, 0")
    FA, FB = 16, 80
    for st in range(16):
        e(f"  ds_read_b128 {vr(FA+4*st,4)}, v3 offset:{MT_XS + 64*st}")
        e(f"  ds_read_b64_tr_b16 {vr(FB+4*st,2)}, v5 offset:{MT_G+512*st}")
        e(f"  ds_read_b64_tr_b16 {vr(FB+4*st+2,2)}, v5 offset:{MT_G+512*st+64}")
        if st % 4 == 3:
            e("  s_waitcnt lgkmcnt(0)")
            for s2 in range(st-3, st+1):
                e(f"  v_mfma_f32_16x16x32_bf16 v[8:11], {vr(FA+4*s2,4)}, {vr(FB+4*s2,4)}, v[8:11]")
    e("  s_nop 15")
    for i in range(4):
        e(f"  v_cvt_pk_bf16_f32 v{8+i}, v{8+i}, v{8+i}")
        e(f"  v_lshlrev_b32 v{8+i}, 16, v{8+i}")
    e("  s_nop 1")
    for i in range(4):
        e(f"  v_mov_b32_dpp v{12+i}, v{8+i} row_ror:8 row_mask:0xf bank_mask:0xf")
    for i in range(4):
        e(f"  v_mul_f32 v16, 0xbfb8aa3b, v{8+i}")
        e("  v_exp_f32 v16, v16")
        e("  s_nop 0")
        e("  v_add_f32 v16, 1.0, v16")
        e("  v_rcp_f32 v16, v16")
        e("  s_nop 0")
        e(f"  v_mul_f32 v16, v{8+i}, v16")
        e("  v_cvt_pk_bf16_f32 v16, v16, v16")
        e("  v_lshlrev_b32 v16, 16, v16")
        e(f"  v_mul_f32 v16, v16, v{12+i}")
        e(f"  v_cvt_pk_bf16_f32 v{20+i}, v16, v16")
    e("  s_nop 1")
    for i in range(4):
        e(f"  v_mov_b32_dpp v{24+i}, v{20+i} quad_perm:[1,0,3,2] row_mask:0xf bank_mask:0xf")
    for i in range(4):
        e(f"  v_and_b32 v{20+i}, 0xffff, v{20+i}")
        e(f"  v_and_b32 v{24+i}, 0xffff0000, v{24+i}")
        e(f"  v_or_b32 v{20+i}, v{20+i}, v{24+i}")
        e(f"  v_min_u32 v{20+i}, 0xfffeffff, v{20+i}")
    e("  v_and_b32 v5, 15, v0")
    e("  v_lshlrev_b32 v4, 6, v4")
    e("  v_lshl_add_u32 v4, v5, 1, v4")
    e("  v_lshlrev_b32 v7, 4, v0")
    e("  v_and_b32 v6, 9, v0")
    e("  v_cmp_eq_u32 vcc, 0, v6")
    e("  v_cmp_gt_u32 s[42:43], 32, v0")
    e("  s_and_b64 vcc, vcc, s[42:43]")
    e("  s_and_saveexec_b64 s[50:51], vcc")
    for i in range(4):
        e(f"  ds_write_b32 v4, v{20+i} offset:{MT_R+16*i}")
    e("  s_mov_b64 exec, 0xff")
    e("  s_waitcnt lgkmcnt(0)")
    e(f"  ds_read_b128 v[24:27], v7 offset:{MT_R}")
    e("  s_lshl_b32 s35, s3, 7")
    e(f"  s_add_u32 s35, s35, {WS_GU}")
    e("  s_waitcnt lgkmcnt(0)")
    e("  buffer_store_dwordx4 v[24:27], v7, s[24:27], s35 offen sc1")
    e("  s_mov_b64 exec, -1")
    hstamp(8)
    e("  s_branch k2_done")
    lab("mt_f2")
    e("  s_sub_u32 s49, s2, 224")
    e("  v_lshlrev_b32 v3, 4, v0")
    e("  s_mul_i32 s34, s15, 7168")
    e(f"  s_mul_i32 s33, s49, {4*28672}")
    e("  s_add_u32 s33, s33, s34")
    e(f"  s_add_u32 s33, s33, {WS_WDB}")
    for dsl in range(4):
        for i in range(7):
            e(f"  s_add_u32 m0, s34, {MT_WD + dsl*28672 + 1024*i}")
            e("  s_nop 0")
            e(f"  buffer_load_dwordx4 v3, s[24:27], s33 offen sc1 lds")
            e(f"  s_add_u32 s33, s33, {1024 if i < 6 else 28672 - 6*1024}")
    e("  v_lshrrev_b32 v5, 4, v0")
    e("  v_and_b32 v6, 1, v5")
    e("  v_lshlrev_b32 v6, 4, v6")
    e(f"  ds_read_b128 v[24:27], v6 offset:{C+128}")
    e("  v_and_b32 v6, 15, v0")
    e("  s_lshl_b32 s35, s49, 6")
    e("  s_waitcnt lgkmcnt(0)")
    for i in range(4):
        e(f"  v_and_b32 v{28+i}, 0xffff, v{24+i}")
        e(f"  v_sub_u32 v{28+i}, 0xffff, v{28+i}")
        e(f"  v_lshlrev_b32 v{32+i}, 4, v{28+i}")
        e(f"  v_lshlrev_b32 v{28+i}, 10, v{28+i}")
        e(f"  v_lshl_add_u32 v{28+i}, v6, 1, v{28+i}")
        e(f"  v_add_u32 v{28+i}, s35, v{28+i}")
    E0 = 136
    e("  s_cmp_lg_u32 s15, 0")
    e("  s_cbranch_scc1 mt_noepi")
    e(f"  s_mov_b32 s36, {WS_Y}")
    e(f"  s_mov_b32 s37, {WS_Y + (2<<20)}")
    e(f"  s_mov_b32 s38, {WS_REC}")
    for a in range(2):
        for i in range(4):
            e(f"  buffer_load_ushort v{E0+12*a+i}, v{28+i}, s[24:27], s36 offen offset:{32*a} sc1")
            e(f"  buffer_load_ushort v{E0+4+12*a+i}, v{28+i}, s[24:27], s37 offen offset:{32*a} sc1")
            e(f"  buffer_load_ushort v{E0+8+12*a+i}, v{28+i}, s[20:23], 0 offen offset:{32*a}")
    for i in range(4):
        e(f"  buffer_load_dwordx4 {vr(36+4*i,4)}, v{32+i}, s[24:27], s38 offen sc1")
    lab("mt_noepi")
    e("  v_lshrrev_b32 v7, 2, v6")
    e("  v_lshl_add_u32 v7, v5, 3, v7")
    e("  v_lshlrev_b32 v7, 4, v7")
    e("  v_and_b32 v60, 1, v0")
    e("  v_lshl_add_u32 v7, v60, 3, v7")
    e("  v_and_b32 v60, 2, v0")
    e("  v_mul_u32_u24 v60, 14336, v60")
    e("  v_add_u32 v7, v60, v7")
    e("  v_add_u32 v7, s34, v7")
    e(f"  v_add_u32 v61, {2*28672}, v7")
    for i in range(8):
        e(f"  v_mov_b32 v{8+i}, 0")
    e("  s_waitcnt vmcnt(0)")
    for i in range(4):
        e(f"  v_and_b32 v60, 0xffff0000, v{24+i}")
        e("  v_ashrrev_i32 v62, 31, v60")
        e("  v_not_b32 v62, v62")
        e("  v_or_b32 v62, 0x80000000, v62")
        e("  v_xor_b32 v60, v60, v62")
        e("  v_and_b32 v60, 0xffff0000, v60")
        e("  v_mul_f32 v60, 0xbfb8aa3b, v60")
        e("  v_exp_f32 v60, v60")
        e("  s_nop 0")
        e("  v_add_f32 v60, 1.0, v60")
        e("  v_rcp_f32 v60, v60")
        e("  s_nop 0")
        e("  v_cvt_pk_bf16_f32 v60, v60, v60")
        e(f"  v_lshlrev_b32 v{24+i}, 16, v60")
    for a in range(2):
        for i in range(4):
            r0, r1, r2 = E0+12*a+i, E0+4+12*a+i, E0+8+12*a+i
            e(f"  v_lshlrev_b32 v{r0}, 16, v{r0}")
            e(f"  v_lshlrev_b32 v{r1}, 16, v{r1}")
            e(f"  v_lshlrev_b32 v{r2}, 16, v{r2}")
            e(f"  v_sub_f32 v60, v{r0}, v{r1}")
            e("  v_cvt_pk_bf16_f32 v60, v60, v60")
            e("  v_lshlrev_b32 v60, 16, v60")
            e(f"  v_add_f32 v60, v{r2}, v60")
            e("  v_cvt_pk_bf16_f32 v60, v60, v60")
            e(f"  v_lshlrev_b32 v{r0}, 16, v60")
            e(f"  v_sub_f32 v62, v{r0}, v{37+4*i}")
            e("  v_cvt_pk_bf16_f32 v62, v62, v62")
            e("  v_lshlrev_b32 v62, 16, v62")
            e(f"  v_mul_f32 v62, v62, v{38+4*i}")
            e("  v_cvt_pk_bf16_f32 v62, v62, v62")
            e(f"  v_lshlrev_b32 v{r1}, 16, v62")
    e("  v_and_b32 v4, 7, v0")
    e("  v_lshlrev_b32 v4, 4, v4")
    e("  v_lshl_add_u32 v4, v5, 7, v4")
    e("  v_add_u32 v62, 4096, v4")
    e("  s_mul_i32 s52, s15, 7168")
    e(f"  s_add_u32 s52, s52, {WS_GU}")
    FA = 64
    e("  s_mov_b32 s53, 0")
    lab("mt_pgu")
    for st in range(14):
        if st < 8:
            e(f"  buffer_load_dwordx4 {vr(FA+4*st,4)}, v4, s[24:27], s52 offen offset:{512*st} sc1")
        else:
            e(f"  buffer_load_dwordx4 {vr(FA+4*st,4)}, v62, s[24:27], s52 offen offset:{512*(st-8)} sc1")
    e("  v_mov_b32 v3, 0")
    for st in range(14):
        e(f"  s_waitcnt vmcnt({13-st})")
        e(f"  v_max3_u32 v3, v3, v{FA+4*st}, v{FA+4*st+1}")
        e(f"  v_max3_u32 v3, v3, v{FA+4*st+2}, v{FA+4*st+3}")
    e("  v_cmp_eq_u32 s[54:55], -1, v3")
    poll_end("mt_pgu")
    hstamp(9, 224)
    def rdB(st):
        b = 120 + 8 * (st % 2)
        e(f"  ds_read_b64_tr_b16 {vr(b,2)}, v7 offset:{MT_WD+512*st}")
        e(f"  ds_read_b64_tr_b16 {vr(b+2,2)}, v7 offset:{MT_WD+512*st+64}")
        e(f"  ds_read_b64_tr_b16 {vr(b+4,2)}, v61 offset:{MT_WD+512*st}")
        e(f"  ds_read_b64_tr_b16 {vr(b+6,2)}, v61 offset:{MT_WD+512*st+64}")
    rdB(0)
    for st in range(14):
        b = 120 + 8 * (st % 2)
        if st < 13:
            rdB(st + 1)
            e("  s_waitcnt lgkmcnt(4)")
        else:
            e("  s_waitcnt lgkmcnt(0)")
        e(f"  v_mfma_f32_16x16x32_bf16 v[8:11], {vr(FA+4*st,4)}, {vr(b,4)}, v[8:11]")
        e(f"  v_mfma_f32_16x16x32_bf16 v[12:15], {vr(FA+4*st,4)}, {vr(b+4,4)}, v[12:15]")
        e("  s_nop 3")
    e("  s_nop 15")
    e("  v_lshlrev_b32 v3, 4, v0")
    e("  s_lshl_b32 s33, s15, 11")
    e("  v_add_u32 v3, s33, v3")
    e(f"  ds_write_b128 v3, v[8:11] offset:{MT_R}")
    e(f"  ds_write_b128 v3, v[12:15] offset:{MT_R+1024}")
    e("  s_waitcnt lgkmcnt(0)")
    e("  s_barrier")
    e("  s_cmp_lg_u32 s15, 0")
    e("  s_cbranch_scc1 k2_done")
    e("  v_lshlrev_b32 v3, 4, v0")
    for w in range(1, 4):
        for a in range(2):
            e(f"  ds_read_b128 {vr(72+8*(w-1)+4*a,4)}, v3 offset:{MT_R+2048*w+1024*a}")
    e("  v_cmp_gt_u32 vcc, 32, v0")
    e("  s_and_saveexec_b64 s[50:51], vcc")
    e("  s_waitcnt lgkmcnt(0)")
    for a in range(2):
        for i in range(4):
            y = 8 + 4*a + i
            e(f"  v_add_f32 v{y}, v{y}, v{72+4*a+i}")
            e(f"  v_add_f32 v60, v{80+4*a+i}, v{88+4*a+i}")
            e(f"  v_add_f32 v{y}, v{y}, v60")
            e(f"  v_cvt_pk_bf16_f32 v{y}, v{y}, v{y}")
            e(f"  v_lshlrev_b32 v{y}, 16, v{y}")
            e(f"  v_mul_f32 v{y}, v{y}, v{24+i}")
            e(f"  v_cvt_pk_bf16_f32 v{y}, v{y}, v{y}")
            e(f"  v_lshlrev_b32 v{y}, 16, v{y}")
            e(f"  v_add_f32 v61, v{E0+4+12*a+i}, v{y}")
            e("  v_cvt_pk_bf16_f32 v61, v61, v61")
            e("  v_lshlrev_b32 v61, 16, v61")
            e(f"  v_add_f32 v61, v{E0+12*a+i}, v61")
            e("  v_cvt_pk_bf16_f32 v61, v61, v61")
            e(f"  buffer_store_short v61, v{28+i}, s[44:47], 0 offen offset:{32*a}")
    e("  s_mov_b64 exec, -1")
    hstamp(10, 224)

def k2_epilogue_fused(ACC):
    TB = 49152
    e("  s_nop 15")
    P = 64
    for g in range(8):
        e(f"  v_cvt_pk_bf16_f32 v{P+2*g}, v{ACC+4*g}, v{ACC+4*g+1}")
        e(f"  v_cvt_pk_bf16_f32 v{P+2*g+1}, v{ACC+4*g+2}, v{ACC+4*g+3}")
    e("  s_mul_i32 s30, s15, 4608")
    e(f"  s_add_u32 s30, s30, {TB}")
    e("  v_mul_u32_u24 v18, 144, v16")
    e("  v_lshl_add_u32 v18, v17, 3, v18")
    e("  v_add_u32 v18, s30, v18")
    for g in range(8):
        e(f"  ds_write_b64 v18, {vr(P+2*g,2)} offset:{16*g}")
    e("  v_lshrrev_b32 v19, 3, v0")
    e("  v_and_b32 v22, 7, v0")
    e("  v_mul_u32_u24 v20, 144, v19")
    e("  v_lshl_add_u32 v20, v22, 4, v20")
    e("  v_add_u32 v20, s30, v20")
    e("  s_waitcnt lgkmcnt(0)")
    for q in range(4):
        e(f"  ds_read_b128 {vr(80+4*q,4)}, v20 offset:{8*144*q}")
    e("  s_lshl_b32 s24, s14, 21")
    e(f"  s_add_u32 s24, s24, {WS_Y}")
    e("  s_lshl_b32 s30, s13, 7")
    e("  s_add_u32 s24, s24, s30")
    e("  s_lshl_b32 s30, s12, 7")
    e("  s_lshl_b32 s31, s15, 5")
    e("  s_add_u32 s30, s30, s31")
    e("  v_add_u32 v21, s30, v19")
    e("  v_lshlrev_b32 v21, 10, v21")
    e("  v_lshl_add_u32 v21, v22, 4, v21")
    for q in range(4):
        e(f"  s_waitcnt lgkmcnt({3-q})")
        e(f"  buffer_store_dwordx4 {vr(80+4*q,4)}, v21, s[20:23], s24 offen sc1")
        if q < 3: e("  v_add_u32 v21, 0x2000, v21")
    e("  s_waitcnt vmcnt(0)")
    e("  s_barrier")
    e(f"  s_load_dwordx2 s[4:5], s[0:1], {KA_X}")
    e(f"  s_load_dwordx8 s[56:63], s[0:1], {KA_WR}")
    e(f"  s_load_dwordx2 s[64:65], s[0:1], {KA_OUT}")
    srd(24, 6, 7, 12 << 20)
    e("  s_lshl_b32 s48, s14, 3")
    e("  s_add_u32 s48, s48, s13")
    e("  s_cmp_lg_u32 s15, 0")
    e("  s_cbranch_scc1 k2_noflag")
    e("  s_lshl_b32 s49, s12, 6")
    e("  s_lshl_b32 s50, s48, 2")
    e("  s_add_u32 s49, s49, s50")
    e(f"  s_add_u32 s49, s49, {WS_FLAG}")
    e("  v_mov_b32 v4, s68" if FUSE else "  v_mov_b32 v4, 1")
    e("  v_mov_b32 v5, 0")
    e("  s_mov_b64 s[50:51], exec")
    e("  s_mov_b64 exec, 1")
    e("  buffer_store_dword v4, v5, s[24:27], s49 offen sc1")
    e("  s_mov_b64 exec, s[50:51]")
    lab("k2_noflag")
    e("  s_waitcnt lgkmcnt(0)")
    srd(20, 4, 5, 2 << 20)
    srd(28, 56, 57, 1024)
    srd(44, 64, 65, 2 << 20)
    e("  v_lshrrev_b32 v1, 5, v0")
    e("  v_and_b32 v2, 31, v0")
    e("  s_lshl_b32 s52, s12, 7")
    e("  s_lshl_b32 s53, s48, 3")
    e("  s_add_u32 s52, s52, s53")
    e("  s_lshl_b32 s53, s15, 1")
    e("  s_add_u32 s52, s52, s53")
    e("  v_add_u32 v1, s52, v1")
    rowmac32_pre()
    if MEGA: mega_gu_dma()
    e("  v_and_b32 v7, 15, v0")
    e("  v_lshlrev_b32 v7, 2, v7")
    e("  s_lshl_b32 s49, s12, 6")
    e(f"  s_add_u32 s49, s49, {WS_FLAG}")
    e("  s_mov_b32 s53, 0")
    lab("k2_poll")
    e("  buffer_load_dword v4, v7, s[24:27], s49 offen sc1")
    e("  s_waitcnt vmcnt(0)")
    e("  v_cmp_ne_u32 s[54:55], s68, v4" if FUSE else "  v_cmp_eq_u32 s[54:55], 0, v4")
    e("  s_nop 3")
    e("  s_cmp_eq_u64 s[54:55], 0")
    e("  s_cbranch_scc1 k2_poll_ok")
    e("  s_add_u32 s53, s53, 1")
    e(f"  s_cmp_gt_u32 s53, {1 << 22}")
    e("  s_cbranch_scc1 k2_poll_ok")
    e("  s_branch k2_poll")
    lab("k2_poll_ok")
    stamp(3)
    rowmac32()
    stamp(4)
    if MEGA:
        mega_tail()
        return
    e("  v_lshlrev_b32 v13, 2, v1")
    e("  v_lshlrev_b32 v14, 3, v1")
    e("  v_mov_b32 v7, v10")
    e("  v_cmp_eq_u32 vcc, 0, v2")
    e("  s_and_saveexec_b64 s[50:51], vcc")
    e(f"  s_mov_b32 s52, {WS_KEY}")
    e("  buffer_store_dword v12, v13, s[24:27], s52 offen")
    e(f"  s_mov_b32 s52, {WS_STAT}")
    e("  buffer_store_dwordx2 v[6:7], v14, s[24:27], s52 offen")
    e("  s_mov_b64 exec, s[50:51]")
    if OPT('K2_NOGU'): return
    e("  s_cmp_ge_u32 s15, 2")
    e("  s_cbranch_scc1 k2_done")
    e("  s_cmp_eq_u32 s15, 0")
    e("  s_cselect_b32 s40, s58, s60")
    e("  s_cselect_b32 s41, s59, s61")
    e(f"  s_mov_b32 s42, {512*1792*2}")
    e("  s_mov_b32 s43, 0x00020000")
    e("  s_and_b32 s52, s2, 7")
    e("  s_lshr_b32 s53, s2, 3")
    e("  v_min_u32 v1, 55, v0")
    e("  v_cmp_lt_u32 vcc, 27, v1")
    e("  s_nop 1")
    e("  v_cndmask_b32 v2, 0, 1, vcc")
    e("  v_mul_u32_u24 v3, 28, v2")
    e("  v_sub_u32 v3, v1, v3")
    e("  v_mul_u32_u24 v2, 3584, v2")
    e("  v_lshl_add_u32 v2, v3, 4, v2")
    e("  s_mul_i32 s54, s52, 448")
    e(f"  s_mul_i32 s55, s53, {16*3584}")
    e("  s_add_u32 s54, s54, s55")
    for q in range(8):
        e(f"  buffer_load_dwordx4 {vr(80+4*q,4)}, v2, s[40:43], s54 offen")
        e(f"  s_add_u32 s54, s54, {2*3584}")

def gen_k2():
    NS = K2_NS
    name = "f_kernel" if FUSE else "k2_kernel"
    YBASE = NS * 16384
    if not FUSE:
        kernel_begin(name)
        e("  s_cmp_ge_u32 s2, 256")
        e("  s_cbranch_scc1 k2_done")
        e(f"  s_load_dwordx4 s[8:11], s[0:1], {KA_WSRE}")
        e(f"  s_load_dwordx2 s[6:7], s[0:1], {KA_WS}")
        e(f"  s_load_dwordx2 s[34:35], s[0:1], {KA_WDN}")
    else:
        e("  s_mov_b32 s71, s15")
    e("  s_and_b32 s12, s2, 7")
    e("  s_lshr_b32 s13, s2, 3")
    e("  s_lshr_b32 s14, s12, 2")
    e("  s_and_b32 s12, s12, 3")
    e("  s_lshl_b32 s12, s12, 2")
    e("  s_lshr_b32 s15, s13, 3")
    e("  s_add_u32 s12, s12, s15")
    e("  s_and_b32 s13, s13, 7")
    if FUSE:
        e("  s_mov_b32 s15, s71")
    else:
        e("  v_lshrrev_b32 v1, 6, v0")
        e("  v_and_b32 v0, 63, v0")
        e("  v_readfirstlane_b32 s15, v1")
    e("  v_lshrrev_b32 v2, 3, v0")
    e("  v_and_b32 v3, 7, v0")
    e("  s_waitcnt lgkmcnt(0)")
    e("  s_cmp_eq_u32 s14, 0")
    e("  s_cselect_b32 s16, s8, s10")
    e("  s_cselect_b32 s17, s9, s11")
    e(f"  s_mov_b32 s18, {2048*2048*2}")
    e("  s_mov_b32 s19, 0x00020000")
    srd(20, 6, 7, 9 << 20)
    e("  s_cmp_lt_u32 s15, 4")
    e("  s_cbranch_scc1 k2_consumer")
    if not FUSE:
        e("  s_cmp_lt_u32 s15, 8")
        e("  s_cbranch_scc1 k2_loader")
    if not FUSE: helper_wave()
    lab("k2_loader")
    e("  s_sub_u32 s15, s15, 4")
    for ii in range(4):
        e(f"  s_lshl_b32 s24, s15, 5")
        e(f"  s_add_u32 s24, s24, {8*ii}")
        e(f"  v_add_u32 v10, s24, v2")
        e(f"  v_lshrrev_b32 v11, 1, v10")
        e(f"  v_and_b32 v11, 7, v11")
        e(f"  v_xor_b32 v11, v11, v3")
        e(f"  s_lshl_b32 s24, s12, 7")
        e(f"  v_add_u32 v10, s24, v10")
        e(f"  v_lshlrev_b32 v10, 12, v10")
        e(f"  v_lshl_add_u32 v{4+ii}, v11, 4, v10")
    e("  s_lshl_b32 s24, s15, 11")
    e("  v_lshlrev_b32 v8, 4, v0")
    e("  v_add_u32 v8, s24, v8")
    e("  v_add_u32 v9, 1024, v8")
    e("  s_mov_b32 s25, 0")
    e("  s_lshl_b32 s26, s14, 3")
    e("  s_add_u32 s26, s26, s13")
    e("  s_lshl_b32 s26, s26, 18")
    e("  s_lshl_b32 s27, s15, 12")
    e("  s_lshl_b32 s28, s15, 11")
    e(f"  s_add_u32 s28, s28, {YBASE}")
    YSC = " sc1" if FUSE else ""
    def dmaY(slot, so="s26"):
        for i in range(2):
            e(f"  s_add_u32 m0, s28, {slot*8192 + i*1024}")
            e("  s_nop 0")
            e(f"  buffer_load_dwordx4 v{8+i}, s[20:23], {so} offen{YSC} lds")
    def dmaW(slot):
        for i in range(4):
            e(f"  s_add_u32 m0, s27, {slot*16384 + i*1024}")
            e("  s_nop 0")
            e(f"  buffer_load_dwordx4 v{4+i}, s[16:19], s25 offen lds")
    def adv():
        e("  s_add_u32 s25, s25, 128")
        e("  s_and_b32 s25, s25, 4095")
        e("  s_lshl_b32 s29, s25, 6")
        e("  s_add_u32 s26, s33, s29")
    def dma(slot):
        dmaY(slot); dmaW(slot); adv()
    e("  s_mov_b32 s33, s26")
    e(f"  s_mul_i32 s25, s13, {128*OPT('K2_ROT', 4)}")
    if OPT('K2_ROTT', 0):
        e("  s_and_b32 s29, s12, 3")
        e(f"  s_mul_i32 s29, s29, {128*OPT('K2_ROTT', 0)}")
        e("  s_add_u32 s25, s25, s29")
    if OPT('K2_ROTX', 0):
        e("  s_and_b32 s29, s2, 7")
        e(f"  s_mul_i32 s29, s29, {64*OPT('K2_ROTX', 0)}")
        e("  s_and_b32 s29, s29, 0xf80")
        e("  s_add_u32 s25, s25, s29")
    e("  s_and_b32 s25, s25, 4095")
    e("  s_lshl_b32 s29, s25, 6")
    e("  s_add_u32 s26, s33, s29")
    if not FUSE:
        for st in range(NS):
            dma(st)
        e(f"  s_waitcnt vmcnt({6*(NS-1)})")
        e("  s_barrier")
        for ks in range(31):
            ahead = min(ks + NS - 1, 31) - (ks + 1)
            e(f"  s_waitcnt vmcnt({6*ahead})")
            e("  s_barrier")
            if ks + NS < 32:
                dma(ks % NS)
    else:
        e("  s_mov_b32 s30, s25")
        e("  s_waitcnt vmcnt(0)")
        e("  s_barrier")
        PRE = OPT('F_PRE', 6)
        for st in range(PRE):
            dmaW(st); adv()
        e("  s_barrier")
        for st in range(PRE):
            e("  s_lshl_b32 s29, s30, 6")
            e("  s_add_u32 s31, s33, s29")
            dmaY(st, "s31")
            e("  s_add_u32 s30, s30, 128")
            e("  s_and_b32 s30, s30, 4095")
        for st in range(PRE, NS):
            dma(st)
        e(f"  s_waitcnt vmcnt({2*(PRE-1) + 6*(NS-PRE)})")
        e("  s_barrier")
        for ks in range(31):
            if ks + 1 <= PRE - 1:
                allowed = 2 * (PRE - 1 - (ks + 1)) + 6 * (NS - PRE) + 6 * ks
            else:
                allowed = 6 * (min(ks + NS - 1, 31) - (ks + 1))
            e(f"  s_waitcnt vmcnt({allowed})")
            e("  s_barrier")
            if ks + NS < 32:
                dma(ks % NS)
    e("  s_branch k2_done")
    lab("k2_consumer")
    if FUSE:
        e("  s_cmp_lg_u32 s15, 0")
        e("  s_cbranch_scc1 f_noep")
        get_epoch("co")
        e("  v_mov_b32 v4, s68")
        e(f"  v_mov_b32 v5, {K2_NS*24576}")
        e("  ds_write_b32 v5, v4")
        e("  s_waitcnt lgkmcnt(0)")
        lab("f_noep")
        e("  s_waitcnt vmcnt(0)")
        e("  s_barrier")
        e("  s_cmp_lg_u32 s15, 0")
        e("  s_cbranch_scc1 f_noflagA")
        e("  v_mov_b32 v4, s68")
        e("  v_mov_b32 v5, 0")
        e("  s_mov_b64 s[36:37], exec")
        e("  s_mov_b64 exec, 1")
        e("  buffer_store_dword v4, v5, s[20:23], s70 offen sc1")
        e("  s_mov_b64 exec, s[36:37]")
        lab("f_noflagA")
        e(f"  v_mov_b32 v158, {K2_NS*24576}")
        e("  ds_read_b32 v159, v158")
        e("  s_waitcnt lgkmcnt(0)")
        e("  v_readfirstlane_b32 s68, v159")
        if OPT('F_LPF', 0):
            e("  s_cmp_lt_u32 s15, 2")
            e("  s_cbranch_scc1 f_nolpf")
            e("  s_and_b32 s36, s2, 3")
            e("  s_lshl_b32 s36, s36, 21")
            e("  s_lshr_b32 s37, s2, 3")
            e("  s_lshl_b32 s37, s37, 16")
            e("  s_add_u32 s36, s36, s37")
            e("  s_and_b32 s37, s15, 1")
            e("  s_lshl_b32 s37, s37, 15")
            e("  s_add_u32 s36, s36, s37")
            e("  v_lshlrev_b32 v10, 4, v0")
            for q in range(32):
                e(f"  buffer_load_dwordx4 v[160:163], v10, s[16:19], s36 offen")
                e("  s_add_u32 s36, s36, 1024")
            lab("f_nolpf")
        e("  s_cmp_lg_u32 s15, 1")
        e("  s_cbranch_scc1 f_pollA_ok")
        e("  s_lshl_b32 s31, s14, 2")
        e("  s_lshr_b32 s32, s13, 1")
        e("  s_add_u32 s31, s31, s32")
        e("  s_lshl_b32 s31, s31, 7")
        e(f"  s_add_u32 s31, s31, {WS_FA}")
        e("  v_and_b32 v10, 31, v0")
        e("  v_lshlrev_b32 v10, 2, v10")
        e("  s_mov_b32 s69, 0")
        lab("f_pollA")
        e("  buffer_load_dword v11, v10, s[20:23], s31 offen sc1")
        e("  s_waitcnt vmcnt(0)")
        e("  v_cmp_ne_u32 s[36:37], s68, v11")
        e("  s_nop 3")
        e("  s_cmp_eq_u64 s[36:37], 0")
        e("  s_cbranch_scc1 f_pollA_ok")
        e("  s_add_u32 s69, s69, 1")
        e(f"  s_cmp_gt_u32 s69, {1 << 22}")
        e("  s_cbranch_scc1 f_pollA_ok")
        e("  s_branch f_pollA")
        lab("f_pollA_ok")
        stamp(1)
        e("  s_barrier")
    e("  v_and_b32 v16, 31, v0")
    e("  v_lshrrev_b32 v17, 5, v0")
    e("  s_lshl_b32 s24, s15, 5")
    e("  v_add_u32 v18, s24, v16")
    e("  v_lshrrev_b32 v19, 1, v18")
    e("  v_and_b32 v19, 7, v19")
    e("  v_xor_b32 v19, v19, v17")
    e("  v_lshlrev_b32 v18, 7, v18")
    e("  v_lshl_add_u32 v20, v19, 4, v18")
    for kk in range(1, 4):
        e(f"  v_xor_b32 v{20+kk}, {32*kk}, v20")
    for kk in range(4):
        e(f"  v_add_u32 v{28+kk}, 0x10000, v{20+kk}")
    e("  v_lshrrev_b32 v19, 1, v16")
    e("  v_and_b32 v19, 7, v19")
    e("  v_xor_b32 v19, v19, v17")
    e("  v_lshlrev_b32 v18, 7, v16")
    e("  v_lshl_add_u32 v24, v19, 4, v18")
    e(f"  v_add_u32 v24, {YBASE}, v24")
    for kk in range(1, 4):
        e(f"  v_xor_b32 v{24+kk}, {32*kk}, v24")
    ACC = 32
    for i in range(32):
        e(f"  v_mov_b32 v{ACC+i}, 0")
    def FW(st): return 64 + 48 * (st % 2)
    def FY(st): return 80 + 48 * (st % 2)
    def rd(st, kk):
        slot = st % NS
        wb = 20 if slot < 4 else 28
        e(f"  ds_read_b128 {vr(FW(st)+4*kk,4)}, v{wb+kk} offset:{16384*(slot%4)}")
        e(f"  ds_read_b128 {vr(FY(st)+8*kk,4)}, v{24+kk} offset:{8192*slot}")
        e(f"  ds_read_b128 {vr(FY(st)+8*kk+4,4)}, v{24+kk} offset:{8192*slot+4096}")
    e("  s_barrier")
    stamp(2)
    for kk in range(4):
        rd(0, kk)
    def mf(st, kk, half):
        e(f"  v_mfma_f32_32x32x16_bf16 {vr(ACC+16*half,16)}, {vr(FY(st)+8*kk+4*half,4)}, {vr(FW(st)+4*kk,4)}, {vr(ACC+16*half,16)}")
    for ks in range(32):
        more = ks + 1 < 32
        e("  s_waitcnt lgkmcnt(0)")
        if more and not OPT('K2_NOBAR'):
            e("  s_barrier")
        if OPT('K2_NOBAR') == 2: continue
        r = (lambda kk: rd(ks + 1, kk)) if more else (lambda kk: None)
        mf(ks, 0, 0); r(0); mf(ks, 0, 1); r(1)
        mf(ks, 1, 0); r(2); mf(ks, 1, 1); r(3)
        mf(ks, 2, 0); mf(ks, 2, 1)
        mf(ks, 3, 0); mf(ks, 3, 1)
    stamp(6)
    if not OPT('K2T1', 1):
        k2_epilogue_plain(ACC)
    else:
        k2_epilogue_fused(ACC)
    lab("k2_done")
    kernel_end()
    e("  s_endpgm")
    kernel_desc(name, 164 if FUSE else 160)

def gen_t1():
    name = "t1_kernel"
    kernel_begin(name)
    e("  s_cmp_ge_u32 s2, 256")
    e("  s_cbranch_scc1 t1_done")
    e(f"  s_load_dwordx2 s[4:5], s[0:1], {KA_X}")
    e(f"  s_load_dwordx2 s[6:7], s[0:1], {KA_WS}")
    e(f"  s_load_dwordx2 s[8:9], s[0:1], {KA_WR}")
    e(f"  s_load_dwordx2 s[10:11], s[0:1], {KA_OUT}")
    if OPT('T1_PF', 1):
        e(f"  s_load_dwordx4 s[32:35], s[0:1], {KA_WG}")
        e("  v_lshrrev_b32 v1, 6, v0")
        e("  s_nop 0")
        e("  v_readfirstlane_b32 s3, v1")
        e("  s_cmp_lg_u32 s3, 2")
        e("  s_cbranch_scc1 t1_main")
        e("  s_waitcnt lgkmcnt(0)")
        srd(40, 32, 33, 512*1792*2)
        srd(44, 34, 35, 512*1792*2)
        e("  v_and_b32 v0, 63, v0")
        e("  s_and_b32 s52, s2, 7")
        e("  s_lshr_b32 s53, s2, 3")
        e("  v_min_u32 v1, 55, v0")
        e("  v_cmp_lt_u32 vcc, 27, v1")
        e("  v_cndmask_b32 v2, 0, 1, vcc")
        e("  v_mul_u32_u24 v3, 28, v2")
        e("  v_sub_u32 v3, v1, v3")
        e("  v_mul_u32_u24 v2, 3584, v2")
        e("  v_lshl_add_u32 v2, v3, 4, v2")
        e("  s_mul_i32 s54, s52, 448")
        e(f"  s_mul_i32 s55, s53, {16*3584}")
        e("  s_add_u32 s54, s54, s55")
        for q in range(8):
            e(f"  buffer_load_dwordx4 {vr(8+8*q,4)}, v2, s[40:43], s54 offen")
            e(f"  buffer_load_dwordx4 {vr(12+8*q,4)}, v2, s[44:47], s54 offen")
            e(f"  s_add_u32 s54, s54, {2*3584}")
        e("  s_branch t1_done")
        lab("t1_main")
    e("  v_lshrrev_b32 v1, 4, v0")
    e("  v_and_b32 v2, 15, v0")
    e("  s_lshl_b32 s3, s2, 3")
    e("  v_add_u32 v1, s3, v1")
    e("  v_lshlrev_b32 v3, 10, v1")
    e("  v_lshl_add_u32 v3, v2, 4, v3")
    e("  v_lshlrev_b32 v4, 4, v2")
    e("  s_waitcnt lgkmcnt(0)")
    srd(12, 4, 5, 2 << 20)
    srd(16, 6, 7, 9 << 20)
    srd(20, 8, 9, 1024)
    srd(24, 10, 11, 2 << 20)
    e(f"  s_mov_b32 s28, {WS_Y}")
    e(f"  s_mov_b32 s29, {WS_Y + (2<<20)}")
    YR, YI, XX, WR = 16, 32, 48, 64
    for j in range(4):
        e(f"  buffer_load_dwordx4 {vr(YR+4*j,4)}, v3, s[16:19], s28 offen offset:{256*j}")
        e(f"  buffer_load_dwordx4 {vr(YI+4*j,4)}, v3, s[16:19], s29 offen offset:{256*j}")
        e(f"  buffer_load_dwordx4 {vr(XX+4*j,4)}, v3, s[12:15], 0 offen offset:{256*j}")
    for j in range(4):
        e(f"  buffer_load_dwordx4 {vr(WR+4*j,4)}, v4, s[20:23], 0 offen offset:{256*j}")
    H = 80
    T = 112
    e("  v_mov_b32 v14, 0")
    e("  v_mov_b32 v15, 0")
    for j in range(4):
        e(f"  s_waitcnt vmcnt({4 + 3*(3-j)})")
        for q in range(4):
            i = 4*j + q
            e(f"  v_lshlrev_b32 v{T}, 16, v{YR+i}")
            e(f"  v_and_b32 v{T+1}, 0xffff0000, v{YR+i}")
            e(f"  v_lshlrev_b32 v{T+2}, 16, v{YI+i}")
            e(f"  v_and_b32 v{T+3}, 0xffff0000, v{YI+i}")
            e(f"  v_pk_add_f32 {vr(T,2)}, {vr(T,2)}, {vr(T+2,2)} neg_lo:[0,1] neg_hi:[0,1]")
            e(f"  v_cvt_pk_bf16_f32 v{T}, v{T}, v{T+1}")
            e(f"  v_and_b32 v{T+1}, 0xffff0000, v{T}")
            e(f"  v_lshlrev_b32 v{T}, 16, v{T}")
            e(f"  v_lshlrev_b32 v{T+2}, 16, v{XX+i}")
            e(f"  v_and_b32 v{T+3}, 0xffff0000, v{XX+i}")
            e(f"  v_pk_add_f32 {vr(T,2)}, {vr(T,2)}, {vr(T+2,2)}")
            e(f"  v_cvt_pk_bf16_f32 v{T}, v{T}, v{T+1}")
            e(f"  v_lshlrev_b32 v{H+2*i}, 16, v{T}")
            e(f"  v_and_b32 v{H+2*i+1}, 0xffff0000, v{T}")
            e(f"  v_pk_add_f32 v[14:15], v[14:15], {vr(H+2*i,2)}")
    e("  v_add_f32 v5, v14, v15")
    reduce16(5)
    e("  v_mul_f32 v5, 0x3b000000, v5")
    e("  v_cvt_pk_bf16_f32 v6, v5, v5")
    e("  v_lshlrev_b32 v6, 16, v6")
    e("  v_sub_f32 v8, 0, v6")
    e("  v_mov_b32 v9, v8")
    e("  v_mov_b32 v10, 0")
    e("  v_mov_b32 v11, 0")
    D = 116
    for i in range(16):
        e(f"  v_pk_add_f32 {vr(D+2*i,2)}, {vr(H+2*i,2)}, v[8:9]")
        e(f"  v_pk_fma_f32 v[10:11], {vr(D+2*i,2)}, {vr(D+2*i,2)}, v[10:11]")
    e("  v_add_f32 v10, v10, v11")
    reduce16(10)
    e("  v_sub_f32 v11, v5, v6")
    e("  v_mul_f32 v11, v11, v11")
    e("  v_mul_f32 v10, 0x3b000000, v10")
    e("  v_sub_f32 v10, v10, v11")
    e("  v_max_f32 v10, 0, v10")
    e("  v_cvt_pk_bf16_f32 v10, v10, v10")
    e("  v_lshlrev_b32 v10, 16, v10")
    e("  v_add_f32 v10, 0x3727c5ac, v10")
    e("  v_cvt_pk_bf16_f32 v10, v10, v10")
    e("  v_lshlrev_b32 v10, 16, v10")
    e("  v_sqrt_f32 v10, v10")
    e("  s_nop 0")
    e("  v_cvt_pk_bf16_f32 v10, v10, v10")
    e("  v_lshlrev_b32 v10, 16, v10")
    e("  v_rcp_f32 v10, v10")
    e("  s_nop 0")
    e("  v_mov_b32 v11, v10")
    e("  v_mov_b32 v12, 0")
    e("  s_waitcnt vmcnt(0)")
    O = 16
    for i in range(16):
        e(f"  v_cvt_pk_bf16_f32 v{T}, v{D+2*i}, v{D+2*i+1}")
        e(f"  v_lshlrev_b32 v{D+2*i}, 16, v{T}")
        e(f"  v_and_b32 v{D+2*i+1}, 0xffff0000, v{T}")
        e(f"  v_pk_mul_f32 {vr(D+2*i,2)}, {vr(D+2*i,2)}, v[10:11]")
        e(f"  v_cvt_pk_bf16_f32 v{T}, v{D+2*i}, v{D+2*i+1}")
        e(f"  v_dot2_f32_bf16 v12, v{T}, v{WR+i}, v12")
        e(f"  v_lshlrev_b32 v{D+2*i}, 16, v{T}")
        e(f"  v_and_b32 v{D+2*i+1}, 0xffff0000, v{T}")
        e(f"  v_pk_add_f32 {vr(D+2*i,2)}, {vr(D+2*i,2)}, {vr(H+2*i,2)}")
        e(f"  v_cvt_pk_bf16_f32 v{O+i}, v{D+2*i}, v{D+2*i+1}")
    for j in range(4):
        e(f"  buffer_store_dwordx4 {vr(O+4*j,4)}, v3, s[24:27], 0 offen offset:{256*j}")
    e("  s_nop 3")
    reduce16(12)
    e("  v_cvt_pk_bf16_f32 v12, v12, v12")
    e("  v_lshlrev_b32 v12, 16, v12")
    e("  v_ashrrev_i32 v13, 31, v12")
    e("  v_or_b32 v13, 0x80000000, v13")
    e("  v_xor_b32 v12, v12, v13")
    e("  v_and_b32 v12, 0xffff0000, v12")
    e("  v_sub_u32 v13, 0xffff, v1")
    e("  v_or_b32 v12, v12, v13")
    e("  v_cmp_eq_u32 vcc, 0, v2")
    e("  s_and_saveexec_b64 s[30:31], vcc")
    e("  v_lshlrev_b32 v13, 2, v1")
    e(f"  s_mov_b32 s28, {WS_KEY}")
    e("  buffer_store_dword v12, v13, s[16:19], s28 offen")
    e("  v_lshlrev_b32 v13, 3, v1")
    e("  v_mov_b32 v7, v10")
    e(f"  s_mov_b32 s28, {WS_STAT}")
    e("  buffer_store_dwordx2 v[6:7], v13, s[16:19], s28 offen")
    lab("t1_done")
    kernel_end()
    e("  s_endpgm")
    kernel_desc(name, 148)

def recompute(YR, YI, XX, nd, NEGM, RINV, HOUT, XNOUT, T):
    for i in range(nd):
        e(f"  v_lshlrev_b32 v{T}, 16, v{YR+i}")
        e(f"  v_and_b32 v{T+1}, 0xffff0000, v{YR+i}")
        e(f"  v_lshlrev_b32 v{T+2}, 16, v{YI+i}")
        e(f"  v_and_b32 v{T+3}, 0xffff0000, v{YI+i}")
        e(f"  v_pk_add_f32 {vr(T,2)}, {vr(T,2)}, {vr(T+2,2)} neg_lo:[0,1] neg_hi:[0,1]")
        e(f"  v_cvt_pk_bf16_f32 v{T}, v{T}, v{T+1}")
        e(f"  v_and_b32 v{T+1}, 0xffff0000, v{T}")
        e(f"  v_lshlrev_b32 v{T}, 16, v{T}")
        e(f"  v_lshlrev_b32 v{T+2}, 16, v{XX+i}")
        e(f"  v_and_b32 v{T+3}, 0xffff0000, v{XX+i}")
        e(f"  v_pk_add_f32 {vr(T,2)}, {vr(T,2)}, {vr(T+2,2)}")
        e(f"  v_cvt_pk_bf16_f32 v{T}, v{T}, v{T+1}")
        e(f"  v_lshlrev_b32 v{HOUT+2*i}, 16, v{T}")
        e(f"  v_and_b32 v{HOUT+2*i+1}, 0xffff0000, v{T}")
        e(f"  v_pk_add_f32 {vr(T,2)}, {vr(HOUT+2*i,2)}, {vr(NEGM,2)}")
        e(f"  v_cvt_pk_bf16_f32 v{T}, v{T}, v{T+1}")
        e(f"  v_and_b32 v{T+1}, 0xffff0000, v{T}")
        e(f"  v_lshlrev_b32 v{T}, 16, v{T}")
        e(f"  v_pk_mul_f32 {vr(T,2)}, {vr(T,2)}, {vr(RINV,2)}")
        e(f"  v_cvt_pk_bf16_f32 v{XNOUT+i}, v{T}, v{T+1}")

XS_STRIDE = 1040
def gen_t2():
    name = "t2_kernel"
    kernel_begin(name)
    LDS_G, LDS_U, LDS_XS, LDS_C = 0, 8192, 16384, 16384 + 8*XS_STRIDE
    e("  s_cmp_ge_u32 s2, 224")
    e("  s_cbranch_scc1 t2_done")
    e(f"  s_load_dwordx2 s[4:5], s[0:1], {KA_X}")
    e(f"  s_load_dwordx2 s[6:7], s[0:1], {KA_WS}")
    e(f"  s_load_dwordx4 s[8:11], s[0:1], {KA_WG}")
    e("  s_and_b32 s3, s2, 7")
    e("  s_mul_i32 s3, s3, 28")
    e("  s_lshr_b32 s12, s2, 3")
    e("  s_add_u32 s3, s3, s12")
    e("  v_mov_b32 v40, v0")
    e("  v_lshrrev_b32 v1, 6, v0")
    e("  v_and_b32 v0, 63, v0")
    e("  v_readfirstlane_b32 s13, v1")
    e("  s_waitcnt lgkmcnt(0)")
    srd(16, 4, 5, 2 << 20)
    srd(20, 6, 7, 9 << 20)
    srd(24, 8, 9, 512*1792*2)
    srd(28, 10, 11, 512*1792*2)
    e("  v_lshlrev_b32 v2, 5, v40")
    e(f"  s_mov_b32 s14, {WS_KEY}")
    e("  buffer_load_dwordx4 v[8:11], v2, s[20:23], s14 offen")
    e("  buffer_load_dwordx4 v[12:15], v2, s[20:23], s14 offen offset:16")
    e("  s_lshl_b32 s15, s3, 4")
    e("  s_movk_i32 s32, 3584")
    for ii in range(2):
        e(f"  s_lshl_b32 s33, s13, 7")
        e(f"  s_add_u32 s33, s33, {64*ii}")
        e(f"  v_add_u32 v3, s33, v0")
        e(f"  v_mul_lo_u32 v3, v3, s32")
        e(f"  s_lshl_b32 s34, s13, 11")
        e(f"  s_add_u32 m0, s34, {LDS_G + 1024*ii}")
        e("  s_nop 0")
        e(f"  buffer_load_dwordx4 v3, s[24:27], s15 offen lds")
        e(f"  s_add_u32 m0, s34, {LDS_U + 1024*ii}")
        e("  s_nop 0")
        e(f"  buffer_load_dwordx4 v3, s[28:31], s15 offen lds")
    stamp(1)
    e("  s_waitcnt vmcnt(4)")
    stamp(2)
    e("  v_mov_b32 v20, 0")
    for rnd in range(8):
        e("  v_max3_u32 v16, v8, v9, v10")
        e("  v_max3_u32 v17, v11, v12, v13")
        e("  v_max3_u32 v16, v16, v14, v15")
        e("  v_max_u32 v16, v16, v17")
        e("  s_nop 1")
        e("  v_max_u32_dpp v16, v16, v16 quad_perm:[1,0,3,2] row_mask:0xf bank_mask:0xf")
        e("  s_nop 1")
        e("  v_max_u32_dpp v16, v16, v16 quad_perm:[2,3,0,1] row_mask:0xf bank_mask:0xf")
        e("  s_nop 1")
        e("  v_max_u32_dpp v16, v16, v16 row_half_mirror row_mask:0xf bank_mask:0xf")
        e("  s_nop 1")
        e("  v_max_u32_dpp v16, v16, v16 row_mirror row_mask:0xf bank_mask:0xf")
        e("  s_nop 1")
        e("  v_readlane_b32 s36, v16, 0")
        e("  v_readlane_b32 s37, v16, 16")
        e("  v_readlane_b32 s38, v16, 32")
        e("  v_readlane_b32 s39, v16, 48")
        e("  s_max_u32 s36, s36, s37")
        e("  s_max_u32 s38, s38, s39")
        e("  s_max_u32 s36, s36, s38")
        e(f"  v_writelane_b32 v20, s36, {rnd}")
        if rnd < 7:
            for k in range(8):
                e(f"  v_cmp_ne_u32 vcc, s36, v{8+k}")
                e("  s_nop 1")
                e(f"  v_cndmask_b32 v{8+k}, 0, v{8+k}, vcc")
    e("  s_lshl_b32 s33, s13, 5")
    e(f"  s_add_u32 s33, s33, {LDS_C}")
    e("  v_lshlrev_b32 v3, 2, v0")
    e("  v_add_u32 v3, s33, v3")
    e("  v_cmp_gt_u32 vcc, 8, v0")
    e("  s_and_saveexec_b64 s[40:41], vcc")
    e("  ds_write_b32 v3, v20")
    e("  s_mov_b64 exec, s[40:41]")
    e("  s_waitcnt lgkmcnt(0)")
    e("  s_barrier")
    e("  v_and_b32 v3, 31, v0")
    e("  v_lshlrev_b32 v3, 2, v3")
    e(f"  ds_read_b32 v21, v3 offset:{LDS_C}")
    e("  v_mov_b32 v22, 0")
    e("  s_waitcnt lgkmcnt(0)")
    for i in range(32):
        e(f"  v_readlane_b32 s36, v21, {i}")
        e("  s_nop 1")
        e("  v_cmp_gt_u32 vcc, s36, v21")
        e("  s_nop 1")
        e("  v_addc_co_u32 v22, vcc, 0, v22, vcc")
    e("  v_cmp_gt_u32 vcc, 8, v22")
    e("  v_cmp_gt_u32 s[42:43], 32, v0")
    e("  s_and_b64 vcc, vcc, s[42:43]")
    e("  v_lshlrev_b32 v3, 2, v22")
    e("  s_and_saveexec_b64 s[40:41], vcc")
    e(f"  ds_write_b32 v3, v21 offset:{LDS_C+128}")
    e("  s_mov_b64 exec, s[40:41]")
    e("  s_waitcnt lgkmcnt(0)")
    e("  s_barrier")
    stamp(3)
    e("  v_lshrrev_b32 v4, 5, v40")
    e("  v_and_b32 v5, 31, v40")
    e("  v_lshlrev_b32 v3, 2, v4")
    e(f"  ds_read_b32 v6, v3 offset:{LDS_C+128}")
    e("  s_waitcnt lgkmcnt(0)")
    e("  s_cmp_lg_u32 s3, 0")
    e("  s_cbranch_scc1 t2_nopub")
    e("  v_cmp_eq_u32 vcc, 0, v5")
    e("  s_and_saveexec_b64 s[40:41], vcc")
    e(f"  s_mov_b32 s14, {WS_IDX}")
    e("  buffer_store_dword v6, v3, s[20:23], s14 offen")
    e("  s_mov_b64 exec, s[40:41]")
    lab("t2_nopub")
    e("  v_and_b32 v6, 0xffff, v6")
    e("  v_sub_u32 v6, 0xffff, v6")
    e("  v_lshlrev_b32 v7, 10, v6")
    e("  v_lshl_add_u32 v7, v5, 4, v7")
    e(f"  s_mov_b32 s14, {WS_Y}")
    e(f"  s_mov_b32 s15, {WS_Y + (2<<20)}")
    YR, YI, XX = 24, 32, 44
    for j in range(2):
        e(f"  buffer_load_dwordx4 {vr(YR+4*j,4)}, v7, s[20:23], s14 offen offset:{512*j}")
        e(f"  buffer_load_dwordx4 {vr(YI+4*j,4)}, v7, s[20:23], s15 offen offset:{512*j}")
        e(f"  buffer_load_dwordx4 {vr(XX+4*j,4)}, v7, s[16:19], 0 offen offset:{512*j}")
    e("  v_lshlrev_b32 v3, 3, v6")
    e(f"  s_mov_b32 s14, {WS_STAT}")
    e("  buffer_load_dwordx2 v[52:53], v3, s[20:23], s14 offen")
    e("  s_waitcnt vmcnt(0)")
    stamp(4)
    e("  v_sub_f32 v54, 0, v52")
    e("  v_mov_b32 v55, v54")
    e("  v_mov_b32 v52, v53")
    recompute(YR, YI, XX, 8, 54, 52, 64, 80, 56)
    e(f"  v_mul_u32_u24 v3, {XS_STRIDE}, v4")
    e("  v_lshl_add_u32 v3, v5, 4, v3")
    e(f"  ds_write_b128 v3, v[80:83] offset:{LDS_XS}")
    e(f"  ds_write_b128 v3, v[84:87] offset:{LDS_XS+512}")
    e("  s_waitcnt lgkmcnt(0)")
    e("  s_barrier")
    e("  s_cmp_lg_u32 s13, 0")
    e("  s_cbranch_scc1 t2_done")
    stamp(5)
    e("  v_and_b32 v3, 7, v0")
    e(f"  v_mul_u32_u24 v3, {XS_STRIDE}, v3")
    e("  v_lshrrev_b32 v4, 4, v0")
    e("  v_lshl_add_u32 v3, v4, 4, v3")
    e("  v_and_b32 v5, 15, v0")
    e("  v_lshrrev_b32 v5, 2, v5")
    e("  v_lshl_add_u32 v5, v4, 3, v5")
    e("  v_lshlrev_b32 v5, 4, v5")
    e("  v_and_b32 v6, 1, v0")
    e("  v_lshl_add_u32 v5, v6, 3, v5")
    e("  v_and_b32 v6, 2, v0")
    e("  v_lshl_add_u32 v5, v6, 12, v5")
    for i in range(4):
        e(f"  v_mov_b32 v{8+i}, 0")
    FA, FB = 64, 128
    for st in range(16):
        e(f"  ds_read_b128 {vr(FA+4*st,4)}, v3 offset:{LDS_XS + 64*st}")
        e(f"  ds_read_b64_tr_b16 {vr(FB+4*st,2)}, v5 offset:{512*st}")
        e(f"  ds_read_b64_tr_b16 {vr(FB+4*st+2,2)}, v5 offset:{512*st+64}")
        if st % 4 == 3:
            e("  s_waitcnt lgkmcnt(0)")
            for s2 in range(st-3, st+1):
                e(f"  v_mfma_f32_16x16x32_bf16 v[8:11], {vr(FA+4*s2,4)}, {vr(FB+4*s2,4)}, v[8:11]")
    e("  s_nop 15")
    for i in range(4):
        e(f"  v_cvt_pk_bf16_f32 v{8+i}, v{8+i}, v{8+i}")
        e(f"  v_lshlrev_b32 v{8+i}, 16, v{8+i}")
    e("  s_nop 1")
    for i in range(4):
        e(f"  v_mov_b32_dpp v{12+i}, v{8+i} row_ror:8 row_mask:0xf bank_mask:0xf")
    for i in range(4):
        e(f"  v_mul_f32 v16, 0xbfb8aa3b, v{8+i}")
        e("  v_exp_f32 v16, v16")
        e("  s_nop 0")
        e("  v_add_f32 v16, 1.0, v16")
        e("  v_rcp_f32 v16, v16")
        e("  s_nop 0")
        e(f"  v_mul_f32 v16, v{8+i}, v16")
        e("  v_cvt_pk_bf16_f32 v16, v16, v16")
        e("  v_lshlrev_b32 v16, 16, v16")
        e(f"  v_mul_f32 v16, v16, v{12+i}")
        e(f"  v_cvt_pk_bf16_f32 v{20+i}, v16, v16")
    stamp(6)
    e("  v_and_b32 v5, 15, v0")
    e("  v_cmp_gt_u32 vcc, 8, v5")
    e("  v_cmp_gt_u32 s[42:43], 32, v0")
    e("  s_and_b64 vcc, vcc, s[42:43]")
    e("  s_and_saveexec_b64 s[40:41], vcc")
    e("  v_lshlrev_b32 v4, 2, v4")
    e("  v_mul_u32_u24 v4, 3584, v4")
    e("  v_lshl_add_u32 v4, v5, 1, v4")
    e("  s_lshl_b32 s15, s3, 4")
    e(f"  s_add_u32 s15, s15, {WS_GU}")
    for i in range(4):
        e(f"  buffer_store_short v{20+i}, v4, s[20:23], s15 offen offset:{3584*i if 3584*i < 4096 else 0}") if False else None
    for i in range(4):
        e(f"  buffer_store_short v{20+i}, v4, s[20:23], s15 offen")
        if i < 3:
            e("  v_add_u32 v4, 3584, v4")
    lab("t2_done")
    kernel_end()
    e("  s_endpgm")
    kernel_desc(name, 192)

def gen_t3():
    name = "t3_kernel"
    kernel_begin(name)
    LDS_W, LDS_R = 0, 28672
    e("  s_cmp_ge_u32 s2, 64")
    e("  s_cbranch_scc1 t3_done")
    e(f"  s_load_dwordx2 s[4:5], s[0:1], {KA_X}")
    e(f"  s_load_dwordx2 s[6:7], s[0:1], {KA_WS}")
    e(f"  s_load_dwordx2 s[10:11], s[0:1], {KA_OUT}")
    e("  s_mov_b32 s3, s2")
    e("  v_lshrrev_b32 v1, 6, v0")
    e("  v_and_b32 v0, 63, v0")
    e("  v_readfirstlane_b32 s13, v1")
    e("  v_lshrrev_b32 v5, 4, v0")
    e("  s_waitcnt lgkmcnt(0)")
    srd(16, 4, 5, 2 << 20)
    srd(20, 6, 7, 12 << 20)
    srd(28, 10, 11, 2 << 20)
    e("  v_and_b32 v6, 1, v5")
    e("  v_lshlrev_b32 v6, 4, v6")
    e(f"  s_mov_b32 s14, {WS_IDX}")
    e("  buffer_load_dwordx4 v[24:27], v6, s[20:23], s14 offen")
    e("  s_lshl_b32 s15, s3, 4")
    e("  v_lshlrev_b32 v3, 4, v0")
    e("  s_mul_i32 s34, s13, 7168")
    e("  s_mul_i32 s33, s3, 28672")
    e("  s_add_u32 s33, s33, s34")
    e(f"  s_add_u32 s33, s33, {WS_WDB}")
    for i in range(7):
        e(f"  s_add_u32 m0, s34, {LDS_W + 1024*i}")
        e("  s_nop 0")
        e(f"  buffer_load_dwordx4 v3, s[20:23], s33 offen lds")
        e("  s_add_u32 s33, s33, 1024")
    e("  v_and_b32 v4, 7, v0")
    e("  v_mul_u32_u24 v4, 3584, v4")
    e("  v_lshl_add_u32 v4, v5, 4, v4")
    e("  s_mul_i32 s14, s13, 896")
    e(f"  s_add_u32 s14, s14, {WS_GU}")
    FA = 64
    for st in range(14):
        e(f"  buffer_load_dwordx4 {vr(FA+4*st,4)}, v4, s[20:23], s14 offen offset:{64*st}")
    for i in range(4):
        e(f"  v_mov_b32 v{28+i}, 0")
    e("  s_cmp_lg_u32 s13, 0")
    e("  s_cbranch_scc1 t3_noepi")
    e("  s_waitcnt vmcnt(21)")
    e("  v_and_b32 v6, 7, v0")
    e(f"  s_mov_b32 s36, {WS_Y}")
    e(f"  s_mov_b32 s37, {WS_Y + (2<<20)}")
    e(f"  s_mov_b32 s38, {WS_STAT}")
    for i in range(4):
        e(f"  v_and_b32 v{28+i}, 0xffff, v{24+i}")
        e(f"  v_sub_u32 v{28+i}, 0xffff, v{28+i}")
        e(f"  v_lshlrev_b32 v{32+i}, 3, v{28+i}")
        e(f"  v_lshlrev_b32 v{28+i}, 10, v{28+i}")
        e(f"  v_lshl_add_u32 v{28+i}, v6, 1, v{28+i}")
        e(f"  v_add_u32 v{28+i}, s15, v{28+i}")
        e(f"  buffer_load_ushort v{36+i}, v{28+i}, s[20:23], s36 offen")
        e(f"  buffer_load_ushort v{40+i}, v{28+i}, s[20:23], s37 offen")
        e(f"  buffer_load_ushort v{44+i}, v{28+i}, s[16:19], 0 offen")
        e(f"  buffer_load_dwordx2 {vr(48+2*i,2)}, v{32+i}, s[20:23], s38 offen")
    lab("t3_noepi")
    e("  v_and_b32 v7, 15, v0")
    e("  v_lshrrev_b32 v7, 2, v7")
    e("  v_lshl_add_u32 v7, v5, 3, v7")
    e("  v_lshlrev_b32 v7, 4, v7")
    e("  v_and_b32 v60, 1, v0")
    e("  v_lshl_add_u32 v7, v60, 3, v7")
    e("  v_add_u32 v7, s34, v7")
    for i in range(4):
        e(f"  v_mov_b32 v{8+i}, 0")
    stamp(1)
    e("  s_waitcnt vmcnt(0)")
    stamp(2)
    FB = 128
    for st in range(14):
        e(f"  ds_read_b64_tr_b16 {vr(FB+4*st,2)}, v7 offset:{512*st}")
        e(f"  ds_read_b64_tr_b16 {vr(FB+4*st+2,2)}, v7 offset:{512*st+64}")
    e("  s_waitcnt lgkmcnt(0)")
    for st in range(14):
        e(f"  v_mfma_f32_16x16x32_bf16 v[8:11], {vr(FA+4*st,4)}, {vr(FB+4*st,4)}, v[8:11]")
    e("  s_nop 15")
    stamp(3)
    e("  v_lshlrev_b32 v3, 4, v0")
    e("  s_lshl_b32 s33, s13, 10")
    e("  v_add_u32 v3, s33, v3")
    e(f"  ds_write_b128 v3, v[8:11] offset:{LDS_R}")
    e("  s_waitcnt lgkmcnt(0)")
    e("  s_barrier")
    e("  s_cmp_lg_u32 s13, 0")
    e("  s_cbranch_scc1 t3_done")
    e("  v_lshlrev_b32 v3, 4, v0")
    for w in range(1, 4):
        e(f"  ds_read_b128 {vr(12+4*(w-1),4)}, v3 offset:{LDS_R+1024*w}")
    stamp(4)
    e("  v_and_b32 v6, 15, v0")
    e("  v_cmp_gt_u32 vcc, 8, v6")
    e("  v_cmp_gt_u32 s[42:43], 32, v0")
    e("  s_and_b64 vcc, vcc, s[42:43]")
    e("  s_and_saveexec_b64 s[40:41], vcc")
    e("  s_waitcnt lgkmcnt(0)")
    for i in range(4):
        e(f"  v_add_f32 v{8+i}, v{8+i}, v{12+i}")
        e(f"  v_add_f32 v{16+i}, v{16+i}, v{20+i}")
        e(f"  v_add_f32 v{8+i}, v{8+i}, v{16+i}")
        e(f"  v_cvt_pk_bf16_f32 v{8+i}, v{8+i}, v{8+i}")
        e(f"  v_lshlrev_b32 v{8+i}, 16, v{8+i}")
        e(f"  v_and_b32 v60, 0xffff0000, v{24+i}")
        e("  v_ashrrev_i32 v61, 31, v60")
        e("  v_not_b32 v61, v61")
        e("  v_or_b32 v61, 0x80000000, v61")
        e("  v_xor_b32 v60, v60, v61")
        e("  v_and_b32 v60, 0xffff0000, v60")
        e("  v_mul_f32 v60, 0xbfb8aa3b, v60")
        e("  v_exp_f32 v60, v60")
        e("  s_nop 0")
        e("  v_add_f32 v60, 1.0, v60")
        e("  v_rcp_f32 v60, v60")
        e("  s_nop 0")
        e("  v_cvt_pk_bf16_f32 v60, v60, v60")
        e("  v_lshlrev_b32 v60, 16, v60")
        e(f"  v_mul_f32 v{8+i}, v{8+i}, v60")
        e(f"  v_cvt_pk_bf16_f32 v{8+i}, v{8+i}, v{8+i}")
        e(f"  v_lshlrev_b32 v{8+i}, 16, v{8+i}")
        e(f"  v_lshlrev_b32 v{36+i}, 16, v{36+i}")
        e(f"  v_lshlrev_b32 v{40+i}, 16, v{40+i}")
        e(f"  v_lshlrev_b32 v{44+i}, 16, v{44+i}")
        e(f"  v_sub_f32 v60, v{36+i}, v{40+i}")
        e("  v_cvt_pk_bf16_f32 v60, v60, v60")
        e("  v_lshlrev_b32 v60, 16, v60")
        e(f"  v_add_f32 v60, v{44+i}, v60")
        e("  v_cvt_pk_bf16_f32 v60, v60, v60")
        e("  v_lshlrev_b32 v60, 16, v60")
        e(f"  v_sub_f32 v61, v60, v{48+2*i}")
        e("  v_cvt_pk_bf16_f32 v61, v61, v61")
        e("  v_lshlrev_b32 v61, 16, v61")
        e(f"  v_mul_f32 v61, v61, v{49+2*i}")
        e("  v_cvt_pk_bf16_f32 v61, v61, v61")
        e("  v_lshlrev_b32 v61, 16, v61")
        e(f"  v_add_f32 v61, v61, v{8+i}")
        e("  v_cvt_pk_bf16_f32 v61, v61, v61")
        e("  v_lshlrev_b32 v61, 16, v61")
        e("  v_add_f32 v61, v60, v61")
        e("  v_cvt_pk_bf16_f32 v61, v61, v61")
        e(f"  buffer_store_short v61, v{28+i}, s[28:31], 0 offen")
    lab("t3_done")
    kernel_end()
    e("  s_endpgm")
    kernel_desc(name, 192)

SORT8 = [(0,1),(2,3),(4,5),(6,7),(0,2),(1,3),(4,6),(5,7),(1,2),(5,6),(0,4),(1,5),(2,6),(3,7),(2,4),(3,5),(1,2),(3,4),(5,6)]
def top8(keys, free, LDS_C, wreg="s13"):
    K = list(keys); F = list(free)
    for (i, j) in SORT8:
        hi, lo = F.pop(), F.pop()
        e(f"  v_max_u32 v{hi}, v{K[i]}, v{K[j]}")
        e(f"  v_min_u32 v{lo}, v{K[i]}, v{K[j]}")
        F.append(K[i]); F.append(K[j]); K[i] = hi; K[j] = lo
    t, coll = F.pop(), F.pop()
    e(f"  v_mov_b32 v{coll}, 0")
    pend = []
    def fill(n):
        for _ in range(n):
            if pend: e(pend.pop(0))
            else: e("  s_nop 0")
    for rnd in range(8):
        fill(2)
        e(f"  v_max_u32_dpp v{t}, v{K[0]}, v{K[0]} quad_perm:[1,0,3,2] row_mask:0xf bank_mask:0xf")
        fill(2)
        e(f"  v_max_u32_dpp v{t}, v{t}, v{t} quad_perm:[2,3,0,1] row_mask:0xf bank_mask:0xf")
        fill(2)
        e(f"  v_max_u32_dpp v{t}, v{t}, v{t} row_half_mirror row_mask:0xf bank_mask:0xf")
        fill(2)
        e(f"  v_max_u32_dpp v{t}, v{t}, v{t} row_mirror row_mask:0xf bank_mask:0xf")
        while pend: e(pend.pop(0))
        e("  s_nop 0")
        e(f"  v_readlane_b32 s36, v{t}, 0")
        e(f"  v_readlane_b32 s37, v{t}, 16")
        e(f"  v_readlane_b32 s38, v{t}, 32")
        e(f"  v_readlane_b32 s39, v{t}, 48")
        e("  s_max_u32 s36, s36, s37")
        e("  s_max_u32 s38, s38, s39")
        e("  s_max_u32 s36, s36, s38")
        e(f"  v_writelane_b32 v{coll}, s36, {rnd}")
        if rnd < 7:
            e(f"  v_cmp_eq_u32 vcc, s36, v{K[0]}")
            e("  s_nop 1")
            e(f"  v_cndmask_b32 v{K[0]}, v{K[0]}, v{K[1]}, vcc")
            for k in range(1, 7 - rnd):
                pend.append(f"  v_cndmask_b32 v{K[k]}, v{K[k]}, v{K[k+1]}, vcc")
    e(f"  s_lshl_b32 s33, {wreg}, 5")
    e(f"  s_add_u32 s33, s33, {LDS_C}")
    e(f"  v_lshlrev_b32 v{t}, 2, v0")
    e(f"  v_add_u32 v{t}, s33, v{t}")
    e("  v_cmp_gt_u32 vcc, 8, v0")
    e("  s_and_saveexec_b64 s[40:41], vcc")
    e(f"  ds_write_b32 v{t}, v{coll}")
    e("  s_mov_b64 exec, s[40:41]")
    e("  s_waitcnt lgkmcnt(0)")
    e("  s_barrier")
    return t, coll

def gen_t4():
    name = "t4_kernel"
    kernel_begin(name)
    LDS_C, LDS_R, LDS_WD = 0, 256, 8704
    LDS_G, LDS_U, LDS_XS = 8704, 8704 + 8192, 8704 + 16384
    SPIN = 1 << 22
    e("  s_cmp_ge_u32 s2, 240")
    e("  s_cbranch_scc1 t4_done")
    e(f"  s_load_dwordx2 s[4:5], s[0:1], {KA_X}")
    e(f"  s_load_dwordx2 s[6:7], s[0:1], {KA_WS}")
    e(f"  s_load_dwordx4 s[8:11], s[0:1], {KA_WG}")
    e(f"  s_load_dwordx2 s[44:45], s[0:1], {KA_OUT}")
    e("  s_and_b32 s3, s2, 7")
    e("  s_mul_i32 s3, s3, 28")
    e("  s_lshr_b32 s12, s2, 3")
    e("  s_add_u32 s3, s3, s12")
    e("  v_mov_b32 v40, v0")
    e("  v_lshrrev_b32 v1, 6, v0")
    e("  v_and_b32 v0, 63, v0")
    e("  v_readfirstlane_b32 s13, v1")
    e("  s_waitcnt lgkmcnt(0)")
    srd(16, 4, 5, 2 << 20)
    srd(20, 6, 7, 12 << 20)
    srd(24, 8, 9, 512*1792*2)
    srd(28, 10, 11, 512*1792*2)
    srd(48, 44, 45, 2 << 20)
    e("  v_lshlrev_b32 v2, 5, v40")
    e(f"  s_mov_b32 s14, {WS_KEY}")
    e("  buffer_load_dwordx4 v[8:11], v2, s[20:23], s14 offen")
    e("  buffer_load_dwordx4 v[12:15], v2, s[20:23], s14 offen offset:16")
    e("  s_cmp_ge_u32 s2, 224")
    e("  s_cbranch_scc1 t4_dma2")
    e("  s_lshl_b32 s15, s3, 4")
    e("  s_movk_i32 s32, 3584")
    for ii in range(2):
        e(f"  s_lshl_b32 s33, s13, 7")
        e(f"  s_add_u32 s33, s33, {64*ii}")
        e(f"  v_add_u32 v3, s33, v0")
        e(f"  v_mul_lo_u32 v3, v3, s32")
        e(f"  s_lshl_b32 s34, s13, 11")
        e(f"  s_add_u32 m0, s34, {LDS_G + 1024*ii}")
        e("  s_nop 0")
        e(f"  buffer_load_dwordx4 v3, s[24:27], s15 offen lds")
        e(f"  s_add_u32 m0, s34, {LDS_U + 1024*ii}")
        e("  s_nop 0")
        e(f"  buffer_load_dwordx4 v3, s[28:31], s15 offen lds")
    e("  s_waitcnt vmcnt(4)")
    e("  s_branch t4_top")
    lab("t4_dma2")
    e("  s_sub_u32 s46, s2, 224")
    e("  v_lshlrev_b32 v3, 4, v0")
    e("  s_mul_i32 s34, s13, 7168")
    e(f"  s_mul_i32 s33, s46, {4*28672}")
    e("  s_add_u32 s33, s33, s34")
    e(f"  s_add_u32 s33, s33, {WS_WDB}")
    for dsl in range(4):
        for i in range(7):
            e(f"  s_add_u32 m0, s34, {LDS_WD + dsl*28672 + 1024*i}")
            e("  s_nop 0")
            e(f"  buffer_load_dwordx4 v3, s[20:23], s33 offen lds")
            e(f"  s_add_u32 s33, s33, {1024 if i < 6 else 28672 - 6*1024}")
    e("  s_waitcnt vmcnt(28)")
    lab("t4_top")
    stamp(1)
    t, coll = top8(range(8, 16), range(16, 24), LDS_C)
    e("  v_and_b32 v3, 31, v0")
    e("  v_lshlrev_b32 v3, 2, v3")
    e(f"  ds_read_b32 v24, v3 offset:{LDS_C}")
    e("  v_mov_b32 v4, 0")
    for q in range(8):
        e(f"  ds_read_b128 {vr(56+4*q,4)}, v4 offset:{LDS_C+16*q}")
    e("  v_mov_b32 v25, 0")
    e("  s_waitcnt lgkmcnt(0)")
    sp = [60, 62, 64, 66]
    for i in range(32 + 3):
        if i < 32:
            e(f"  v_cmp_gt_u32 s[{sp[i%4]}:{sp[i%4]+1}], v{56+i}, v24")
        if i >= 3:
            j = i - 3
            e(f"  v_addc_co_u32 v25, vcc, 0, v25, s[{sp[j%4]}:{sp[j%4]+1}]")
    e("  v_cmp_gt_u32 vcc, 8, v25")
    e("  v_cmp_gt_u32 s[42:43], 32, v0")
    e("  s_and_b64 vcc, vcc, s[42:43]")
    e("  v_lshlrev_b32 v3, 2, v25")
    e("  s_and_saveexec_b64 s[40:41], vcc")
    e(f"  ds_write_b32 v3, v24 offset:{LDS_C+128}")
    e("  s_mov_b64 exec, s[40:41]")
    e("  s_waitcnt lgkmcnt(0)")
    e("  s_barrier")
    stamp(2)
    e("  s_cmp_ge_u32 s2, 224")
    e("  s_cbranch_scc1 t4_f2")
    e("  v_lshrrev_b32 v4, 5, v40")
    e("  v_and_b32 v5, 31, v40")
    e("  v_lshlrev_b32 v3, 2, v4")
    e(f"  ds_read_b32 v6, v3 offset:{LDS_C+128}")
    e("  s_waitcnt lgkmcnt(0)")
    e("  v_and_b32 v6, 0xffff, v6")
    e("  v_sub_u32 v6, 0xffff, v6")
    e("  v_lshlrev_b32 v7, 10, v6")
    e("  v_lshl_add_u32 v7, v5, 4, v7")
    e(f"  s_mov_b32 s14, {WS_Y}")
    e(f"  s_mov_b32 s15, {WS_Y + (2<<20)}")
    YR, YI, XX = 24, 32, 44
    for j in range(2):
        e(f"  buffer_load_dwordx4 {vr(YR+4*j,4)}, v7, s[20:23], s14 offen offset:{512*j}")
        e(f"  buffer_load_dwordx4 {vr(YI+4*j,4)}, v7, s[20:23], s15 offen offset:{512*j}")
        e(f"  buffer_load_dwordx4 {vr(XX+4*j,4)}, v7, s[16:19], 0 offen offset:{512*j}")
    e("  v_lshlrev_b32 v3, 3, v6")
    e(f"  s_mov_b32 s14, {WS_STAT}")
    e("  buffer_load_dwordx2 v[52:53], v3, s[20:23], s14 offen")
    e("  s_waitcnt vmcnt(0)")
    stamp(3)
    e("  v_sub_f32 v54, 0, v52")
    e("  v_mov_b32 v55, v54")
    e("  v_mov_b32 v52, v53")
    recompute(YR, YI, XX, 8, 54, 52, 64, 80, 56)
    e(f"  v_mul_u32_u24 v3, {XS_STRIDE}, v4")
    e("  v_lshl_add_u32 v3, v5, 4, v3")
    e(f"  ds_write_b128 v3, v[80:83] offset:{LDS_XS}")
    e(f"  ds_write_b128 v3, v[84:87] offset:{LDS_XS+512}")
    e("  s_waitcnt lgkmcnt(0)")
    e("  s_barrier")
    e("  s_cmp_lg_u32 s13, 0")
    e("  s_cbranch_scc1 t4_done")
    e("  v_and_b32 v3, 7, v0")
    e(f"  v_mul_u32_u24 v3, {XS_STRIDE}, v3")
    e("  v_lshrrev_b32 v4, 4, v0")
    e("  v_lshl_add_u32 v3, v4, 4, v3")
    e("  v_and_b32 v5, 15, v0")
    e("  v_lshrrev_b32 v5, 2, v5")
    e("  v_lshl_add_u32 v5, v4, 3, v5")
    e("  v_lshlrev_b32 v5, 4, v5")
    e("  v_and_b32 v6, 1, v0")
    e("  v_lshl_add_u32 v5, v6, 3, v5")
    e("  v_and_b32 v6, 2, v0")
    e("  v_lshl_add_u32 v5, v6, 12, v5")
    for i in range(4):
        e(f"  v_mov_b32 v{8+i}, 0")
    FA, FB = 64, 128
    for st in range(16):
        e(f"  ds_read_b128 {vr(FA+4*st,4)}, v3 offset:{LDS_XS + 64*st}")
        e(f"  ds_read_b64_tr_b16 {vr(FB+4*st,2)}, v5 offset:{LDS_G+512*st}")
        e(f"  ds_read_b64_tr_b16 {vr(FB+4*st+2,2)}, v5 offset:{LDS_G+512*st+64}")
        if st % 4 == 3:
            e("  s_waitcnt lgkmcnt(0)")
            for s2 in range(st-3, st+1):
                e(f"  v_mfma_f32_16x16x32_bf16 v[8:11], {vr(FA+4*s2,4)}, {vr(FB+4*s2,4)}, v[8:11]")
    e("  s_nop 15")
    for i in range(4):
        e(f"  v_cvt_pk_bf16_f32 v{8+i}, v{8+i}, v{8+i}")
        e(f"  v_lshlrev_b32 v{8+i}, 16, v{8+i}")
    e("  s_nop 1")
    for i in range(4):
        e(f"  v_mov_b32_dpp v{12+i}, v{8+i} row_ror:8 row_mask:0xf bank_mask:0xf")
    for i in range(4):
        e(f"  v_mul_f32 v16, 0xbfb8aa3b, v{8+i}")
        e("  v_exp_f32 v16, v16")
        e("  s_nop 0")
        e("  v_add_f32 v16, 1.0, v16")
        e("  v_rcp_f32 v16, v16")
        e("  s_nop 0")
        e(f"  v_mul_f32 v16, v{8+i}, v16")
        e("  v_cvt_pk_bf16_f32 v16, v16, v16")
        e("  v_lshlrev_b32 v16, 16, v16")
        e(f"  v_mul_f32 v16, v16, v{12+i}")
        e(f"  v_cvt_pk_bf16_f32 v{20+i}, v16, v16")
    e("  s_nop 1")
    for i in range(4):
        e(f"  v_mov_b32_dpp v{24+i}, v{20+i} quad_perm:[1,0,3,2] row_mask:0xf bank_mask:0xf")
    for i in range(4):
        e(f"  v_and_b32 v{20+i}, 0xffff, v{20+i}")
        e(f"  v_and_b32 v{24+i}, 0xffff0000, v{24+i}")
        e(f"  v_or_b32 v{20+i}, v{20+i}, v{24+i}")
    for i in range(4):
        e(f"  v_min_u32 v{20+i}, 0xfffeffff, v{20+i}")
    stamp(4)
    e("  v_and_b32 v5, 15, v0")
    e("  v_lshlrev_b32 v4, 6, v4")
    e("  v_lshl_add_u32 v4, v5, 1, v4")
    e("  v_lshlrev_b32 v7, 4, v0")
    e("  v_and_b32 v6, 9, v0")
    e("  v_cmp_eq_u32 vcc, 0, v6")
    e("  v_cmp_gt_u32 s[42:43], 32, v0")
    e("  s_and_b64 vcc, vcc, s[42:43]")
    e("  s_and_saveexec_b64 s[40:41], vcc")
    for i in range(4):
        e(f"  ds_write_b32 v4, v{20+i} offset:{LDS_R+16*i}")
    e("  s_mov_b64 exec, 0xff")
    e("  s_waitcnt lgkmcnt(0)")
    e(f"  ds_read_b128 v[24:27], v7 offset:{LDS_R}")
    e("  s_lshl_b32 s15, s3, 7")
    e(f"  s_add_u32 s15, s15, {WS_GU}")
    e("  s_waitcnt lgkmcnt(0)")
    e("  buffer_store_dwordx4 v[24:27], v7, s[20:23], s15 offen sc1")
    e("  s_branch t4_done")
    lab("t4_f2")
    e("  v_lshrrev_b32 v5, 4, v0")
    e("  v_and_b32 v6, 1, v5")
    e("  v_lshlrev_b32 v6, 4, v6")
    e(f"  ds_read_b128 v[24:27], v6 offset:{LDS_C+128}")
    e("  v_and_b32 v6, 15, v0")
    e("  s_lshl_b32 s15, s46, 6")
    e("  s_waitcnt lgkmcnt(0)")
    for i in range(4):
        e(f"  v_and_b32 v{28+i}, 0xffff, v{24+i}")
        e(f"  v_sub_u32 v{28+i}, 0xffff, v{28+i}")
        e(f"  v_lshlrev_b32 v{32+i}, 3, v{28+i}")
        e(f"  v_lshlrev_b32 v{28+i}, 10, v{28+i}")
        e(f"  v_lshl_add_u32 v{28+i}, v6, 1, v{28+i}")
        e(f"  v_add_u32 v{28+i}, s15, v{28+i}")
    e("  s_cmp_lg_u32 s13, 0")
    e("  s_cbranch_scc1 t4_noepi")
    e(f"  s_mov_b32 s36, {WS_Y}")
    e(f"  s_mov_b32 s37, {WS_Y + (2<<20)}")
    e(f"  s_mov_b32 s38, {WS_STAT}")
    for a in range(2):
        for i in range(4):
            e(f"  buffer_load_ushort v{192+12*a+i}, v{28+i}, s[20:23], s36 offen offset:{32*a}")
            e(f"  buffer_load_ushort v{196+12*a+i}, v{28+i}, s[20:23], s37 offen offset:{32*a}")
            e(f"  buffer_load_ushort v{200+12*a+i}, v{28+i}, s[16:19], 0 offen offset:{32*a}")
    for i in range(4):
        e(f"  buffer_load_dwordx2 {vr(48+2*i,2)}, v{32+i}, s[20:23], s38 offen")
    lab("t4_noepi")
    e("  v_lshrrev_b32 v7, 2, v6")
    e("  v_lshl_add_u32 v7, v5, 3, v7")
    e("  v_lshlrev_b32 v7, 4, v7")
    e("  v_and_b32 v60, 1, v0")
    e("  v_lshl_add_u32 v7, v60, 3, v7")
    e("  v_and_b32 v60, 2, v0")
    e("  v_mul_u32_u24 v60, 14336, v60")
    e("  v_add_u32 v7, v60, v7")
    e("  v_add_u32 v7, s34, v7")
    e(f"  v_add_u32 v61, {2*28672}, v7")
    e("  s_waitcnt vmcnt(0)")
    FB0, FB1 = 72, 128
    for st in range(14):
        e(f"  ds_read_b64_tr_b16 {vr(FB0+4*st,2)}, v7 offset:{LDS_WD+512*st}")
        e(f"  ds_read_b64_tr_b16 {vr(FB0+4*st+2,2)}, v7 offset:{LDS_WD+512*st+64}")
        e(f"  ds_read_b64_tr_b16 {vr(FB1+4*st,2)}, v61 offset:{LDS_WD+512*st}")
        e(f"  ds_read_b64_tr_b16 {vr(FB1+4*st+2,2)}, v61 offset:{LDS_WD+512*st+64}")
        if st % 3 == 2: e("  s_waitcnt lgkmcnt(0)")
    for i in range(8):
        e(f"  v_mov_b32 v{8+i}, 0")
    for i in range(4):
        e(f"  v_and_b32 v60, 0xffff0000, v{24+i}")
        e("  v_ashrrev_i32 v62, 31, v60")
        e("  v_not_b32 v62, v62")
        e("  v_or_b32 v62, 0x80000000, v62")
        e("  v_xor_b32 v60, v60, v62")
        e("  v_and_b32 v60, 0xffff0000, v60")
        e("  v_mul_f32 v60, 0xbfb8aa3b, v60")
        e("  v_exp_f32 v60, v60")
        e("  s_nop 0")
        e("  v_add_f32 v60, 1.0, v60")
        e("  v_rcp_f32 v60, v60")
        e("  s_nop 0")
        e("  v_cvt_pk_bf16_f32 v60, v60, v60")
        e(f"  v_lshlrev_b32 v{24+i}, 16, v60")
    for a in range(2):
        for i in range(4):
            r0, r1, r2 = 192+12*a+i, 196+12*a+i, 200+12*a+i
            e(f"  v_lshlrev_b32 v{r0}, 16, v{r0}")
            e(f"  v_lshlrev_b32 v{r1}, 16, v{r1}")
            e(f"  v_lshlrev_b32 v{r2}, 16, v{r2}")
            e(f"  v_sub_f32 v60, v{r0}, v{r1}")
            e("  v_cvt_pk_bf16_f32 v60, v60, v60")
            e("  v_lshlrev_b32 v60, 16, v60")
            e(f"  v_add_f32 v60, v{r2}, v60")
            e("  v_cvt_pk_bf16_f32 v60, v60, v60")
            e(f"  v_lshlrev_b32 v{r0}, 16, v60")
            e(f"  v_sub_f32 v62, v{r0}, v{48+2*i}")
            e("  v_cvt_pk_bf16_f32 v62, v62, v62")
            e("  v_lshlrev_b32 v62, 16, v62")
            e(f"  v_mul_f32 v62, v62, v{49+2*i}")
            e("  v_cvt_pk_bf16_f32 v62, v62, v62")
            e(f"  v_lshlrev_b32 v{r1}, 16, v62")
    stamp(3)
    e("  v_and_b32 v4, 7, v0")
    e("  v_lshlrev_b32 v4, 4, v4")
    e("  v_lshl_add_u32 v4, v5, 7, v4")
    e("  s_mul_i32 s14, s13, 7168")
    e(f"  s_add_u32 s14, s14, {WS_GU}")
    regs = [216+4*i for i in range(9)] + [36, 40, 44, 56, 64]
    e("  v_add_u32 v62, 4096, v4")
    e("  s_mov_b32 s53, 0")
    lab("t4_poll")
    for st in range(14):
        e(f"  buffer_load_dwordx4 {vr(regs[st],4)}, v4, s[20:23], s14 offen offset:{512*st if st < 8 else 0} sc1") if st < 8 else e(f"  buffer_load_dwordx4 {vr(regs[st],4)}, v62, s[20:23], s14 offen offset:{512*(st-8)} sc1")
    e("  v_mov_b32 v3, 0")
    for st in range(14):
        e(f"  s_waitcnt vmcnt({13-st})")
        e(f"  v_max3_u32 v3, v3, v{regs[st]}, v{regs[st]+1}")
        e(f"  v_max3_u32 v3, v3, v{regs[st]+2}, v{regs[st]+3}")
    e("  v_cmp_eq_u32 s[54:55], -1, v3")
    e("  s_nop 3")
    e("  s_cmp_eq_u64 s[54:55], 0")
    e("  s_cbranch_scc1 t4_poll_ok")
    e("  s_add_u32 s53, s53, 1")
    e(f"  s_cmp_gt_u32 s53, {SPIN}")
    e("  s_cbranch_scc1 t4_poll_ok")
    e("  s_branch t4_poll")
    lab("t4_poll_ok")
    stamp(5)
    e("  s_waitcnt lgkmcnt(0)")
    for st in range(14):
        e(f"  v_mfma_f32_16x16x32_bf16 v[8:11], {vr(regs[st],4)}, {vr(FB0+4*st,4)}, v[8:11]")
        e(f"  v_mfma_f32_16x16x32_bf16 v[12:15], {vr(regs[st],4)}, {vr(FB1+4*st,4)}, v[12:15]")
    e("  s_nop 15")
    stamp(6)
    e("  v_lshlrev_b32 v3, 4, v0")
    e("  s_lshl_b32 s33, s13, 11")
    e("  v_add_u32 v3, s33, v3")
    e(f"  ds_write_b128 v3, v[8:11] offset:{LDS_R}")
    e(f"  ds_write_b128 v3, v[12:15] offset:{LDS_R+1024}")
    e("  s_waitcnt lgkmcnt(0)")
    e("  s_barrier")
    e("  s_cmp_lg_u32 s13, 0")
    e("  s_cbranch_scc1 t4_done")
    e("  v_lshlrev_b32 v3, 4, v0")
    for w in range(1, 4):
        for a in range(2):
            e(f"  ds_read_b128 {vr(72+8*(w-1)+4*a,4)}, v3 offset:{LDS_R+2048*w+1024*a}")
    e("  v_cmp_gt_u32 vcc, 32, v0")
    e("  s_and_saveexec_b64 s[40:41], vcc")
    e("  s_waitcnt lgkmcnt(0)")
    for a in range(2):
        for i in range(4):
            y = 8 + 4*a + i
            e(f"  v_add_f32 v{y}, v{y}, v{72+4*a+i}")
            e(f"  v_add_f32 v60, v{80+4*a+i}, v{88+4*a+i}")
            e(f"  v_add_f32 v{y}, v{y}, v60")
            e(f"  v_cvt_pk_bf16_f32 v{y}, v{y}, v{y}")
            e(f"  v_lshlrev_b32 v{y}, 16, v{y}")
            e(f"  v_mul_f32 v{y}, v{y}, v{24+i}")
            e(f"  v_cvt_pk_bf16_f32 v{y}, v{y}, v{y}")
            e(f"  v_lshlrev_b32 v{y}, 16, v{y}")
            e(f"  v_add_f32 v61, v{196+12*a+i}, v{y}")
            e("  v_cvt_pk_bf16_f32 v61, v61, v61")
            e("  v_lshlrev_b32 v61, 16, v61")
            e(f"  v_add_f32 v61, v{192+12*a+i}, v61")
            e("  v_cvt_pk_bf16_f32 v61, v61, v61")
            e(f"  buffer_store_short v61, v{28+i}, s[48:51], 0 offen offset:{32*a}")
    lab("t4_done")
    kernel_end()
    e("  s_endpgm")
    kernel_desc(name, 252)

ROW_O = 48
def rowmac(first, O=148, sc1=False):
    YR, YI, XX, WR, H, T, D = 16, 32, 48, 64, 80, 112, 116
    if sc1: O = ROW_O
    SC = " sc1" if sc1 else ""
    e("  v_lshlrev_b32 v3, 10, v1")
    e("  v_lshl_add_u32 v3, v2, 4, v3")
    e(f"  s_mov_b32 s52, {WS_Y}")
    e(f"  s_mov_b32 s53, {WS_Y + (2<<20)}")
    for j in range(4):
        e(f"  buffer_load_dwordx4 {vr(YR+4*j,4)}, v3, s[24:27], s52 offen offset:{256*j}{SC}")
        e(f"  buffer_load_dwordx4 {vr(YI+4*j,4)}, v3, s[24:27], s53 offen offset:{256*j}{SC}")
        e(f"  buffer_load_dwordx4 {vr(XX+4*j,4)}, v3, s[20:23], 0 offen offset:{256*j}")
    nextra = 0
    if first:
        e("  v_lshlrev_b32 v4, 4, v2")
        for j in range(4):
            e(f"  buffer_load_dwordx4 {vr(WR+4*j,4)}, v4, s[28:31], 0 offen offset:{256*j}")
        nextra = 4
    e("  v_mov_b32 v14, 0")
    e("  v_mov_b32 v15, 0")
    for j in range(4):
        e(f"  s_waitcnt vmcnt({nextra + 3*(3-j)})")
        for q in range(4):
            i = 4*j + q
            e(f"  v_lshlrev_b32 v{T}, 16, v{YR+i}")
            e(f"  v_and_b32 v{T+1}, 0xffff0000, v{YR+i}")
            e(f"  v_lshlrev_b32 v{T+2}, 16, v{YI+i}")
            e(f"  v_and_b32 v{T+3}, 0xffff0000, v{YI+i}")
            e(f"  v_pk_add_f32 {vr(T,2)}, {vr(T,2)}, {vr(T+2,2)} neg_lo:[0,1] neg_hi:[0,1]")
            e(f"  v_cvt_pk_bf16_f32 v{T}, v{T}, v{T+1}")
            e(f"  v_and_b32 v{T+1}, 0xffff0000, v{T}")
            e(f"  v_lshlrev_b32 v{T}, 16, v{T}")
            e(f"  v_lshlrev_b32 v{T+2}, 16, v{XX+i}")
            e(f"  v_and_b32 v{T+3}, 0xffff0000, v{XX+i}")
            e(f"  v_pk_add_f32 {vr(T,2)}, {vr(T,2)}, {vr(T+2,2)}")
            e(f"  v_cvt_pk_bf16_f32 v{YI+i}, v{T}, v{T+1}")
            e(f"  v_lshlrev_b32 v{H+2*i}, 16, v{YI+i}")
            e(f"  v_and_b32 v{H+2*i+1}, 0xffff0000, v{YI+i}")
            e(f"  v_pk_add_f32 v[14:15], v[14:15], {vr(H+2*i,2)}")
    e("  v_add_f32 v5, v14, v15")
    reduce16(5)
    e("  v_mul_f32 v5, 0x3b000000, v5")
    e("  v_cvt_pk_bf16_f32 v6, v5, v5")
    e("  v_lshlrev_b32 v6, 16, v6")
    e("  v_sub_f32 v8, 0, v6")
    e("  v_mov_b32 v9, v8")
    e("  v_mov_b32 v10, 0")
    e("  v_mov_b32 v11, 0")
    for i in range(16):
        e(f"  v_pk_add_f32 {vr(D+2*i,2)}, {vr(H+2*i,2)}, v[8:9]")
        e(f"  v_pk_fma_f32 v[10:11], {vr(D+2*i,2)}, {vr(D+2*i,2)}, v[10:11]")
    e("  v_add_f32 v10, v10, v11")
    reduce16(10)
    e("  v_sub_f32 v11, v5, v6")
    e("  v_mul_f32 v11, v11, v11")
    e("  v_mul_f32 v10, 0x3b000000, v10")
    e("  v_sub_f32 v10, v10, v11")
    e("  v_max_f32 v10, 0, v10")
    e("  v_cvt_pk_bf16_f32 v10, v10, v10")
    e("  v_lshlrev_b32 v10, 16, v10")
    e("  v_add_f32 v10, 0x3727c5ac, v10")
    e("  v_cvt_pk_bf16_f32 v10, v10, v10")
    e("  v_lshlrev_b32 v10, 16, v10")
    e("  v_sqrt_f32 v10, v10")
    e("  s_nop 0")
    e("  v_cvt_pk_bf16_f32 v10, v10, v10")
    e("  v_lshlrev_b32 v10, 16, v10")
    e("  v_rcp_f32 v10, v10")
    e("  s_nop 0")
    e("  v_mov_b32 v11, v10")
    if first:
        e("  v_mov_b32 v12, 0")
        e("  s_waitcnt vmcnt(0)")
    for i in range(16):
        e(f"  v_cvt_pk_bf16_f32 v{T}, v{D+2*i}, v{D+2*i+1}")
        e(f"  v_lshlrev_b32 v{D+2*i}, 16, v{T}")
        e(f"  v_and_b32 v{D+2*i+1}, 0xffff0000, v{T}")
        e(f"  v_pk_mul_f32 {vr(D+2*i,2)}, {vr(D+2*i,2)}, v[10:11]")
        e(f"  v_cvt_pk_bf16_f32 v{YR+i}, v{D+2*i}, v{D+2*i+1}")
        if first:
            e(f"  v_dot2_f32_bf16 v12, v{YR+i}, v{WR+i}, v12")
            e(f"  v_lshlrev_b32 v{D+2*i}, 16, v{YR+i}")
            e(f"  v_and_b32 v{D+2*i+1}, 0xffff0000, v{YR+i}")
            e(f"  v_pk_add_f32 {vr(D+2*i,2)}, {vr(D+2*i,2)}, {vr(H+2*i,2)}")
            e(f"  v_cvt_pk_bf16_f32 v{O+i}, v{D+2*i}, v{D+2*i+1}")
    if first:
        e("  s_nop 3")
        reduce16(12)
        e("  v_cvt_pk_bf16_f32 v12, v12, v12")
        e("  v_lshlrev_b32 v12, 16, v12")
        e("  v_ashrrev_i32 v13, 31, v12")
        e("  v_or_b32 v13, 0x80000000, v13")
        e("  v_xor_b32 v12, v12, v13")
        e("  v_and_b32 v12, 0xffff0000, v12")
        e("  v_sub_u32 v13, 0xffff, v1")
        e("  v_or_b32 v12, v12, v13")

def gen_tf():
    name = "tf_kernel"
    kernel_begin(name)
    LDS_G, LDS_U, LDS_WD = 0, 8192, 16384
    LDS_XS = 45056
    LDS_HS = LDS_XS + 8 * XS_STRIDE
    LDS_C = LDS_HS + 8192
    LDS_R = LDS_C + 256
    SPIN = 1 << 22
    e("  s_cmp_ge_u32 s2, 256")
    e("  s_cbranch_scc1 tf_done")
    e(f"  s_load_dwordx2 s[4:5], s[0:1], {KA_X}")
    e(f"  s_load_dwordx2 s[6:7], s[0:1], {KA_WS}")
    e(f"  s_load_dwordx8 s[8:15], s[0:1], {KA_WR}")
    e(f"  s_load_dwordx2 s[16:17], s[0:1], {KA_OUT}")
    e("  s_and_b32 s3, s2, 7")
    e("  s_mul_i32 s49, s3, 28")
    e("  s_lshr_b32 s50, s2, 3")
    e("  s_add_u32 s49, s49, s50")
    e("  s_sub_u32 s50, s50, 24")
    e("  s_lshl_b32 s51, s3, 3")
    e("  s_add_u32 s50, s50, s51")
    e("  v_mov_b32 v180, v0")
    e("  v_lshrrev_b32 v1, 6, v0")
    e("  v_and_b32 v0, 63, v0")
    e("  v_readfirstlane_b32 s48, v1")
    e("  s_waitcnt lgkmcnt(0)")
    srd(20, 4, 5, 2 << 20)
    srd(24, 6, 7, 9 << 20)
    srd(28, 8, 9, 1024)
    srd(32, 10, 11, 512*1792*2)
    srd(36, 12, 13, 512*1792*2)
    srd(40, 14, 15, 1792*512*2)
    srd(44, 16, 17, 2 << 20)
    e("  s_cmp_lt_u32 s48, 2")
    e("  s_cbranch_scc1 tf_p1")
    e("  s_cmp_ge_u32 s2, 224")
    e("  s_cbranch_scc1 tf_nof1")
    e("  s_movk_i32 s52, 3584")
    e("  v_mul_lo_u32 v3, v0, s52")
    e("  s_lshl_b32 s53, s49, 4")
    e("  s_cmp_eq_u32 s48, 2")
    e("  s_cbranch_scc0 tf_dma_u")
    for i in range(8):
        e(f"  s_mov_b32 m0, {LDS_G + 1024*i}")
        e("  s_nop 0")
        e("  buffer_load_dwordx4 v3, s[32:35], s53 offen lds")
        e(f"  s_add_u32 s53, s53, {64*3584}")
    e("  s_branch tf_nof1")
    lab("tf_dma_u")
    for i in range(8):
        e(f"  s_mov_b32 m0, {LDS_U + 1024*i}")
        e("  s_nop 0")
        e("  buffer_load_dwordx4 v3, s[36:39], s53 offen lds")
        e(f"  s_add_u32 s53, s53, {64*3584}")
    lab("tf_nof1")
    e("  s_cmp_lt_u32 s2, 192")
    e("  s_cbranch_scc1 tf_poll1")
    e("  v_lshlrev_b32 v3, 10, v0")
    e("  s_sub_u32 s52, s48, 2")
    e(f"  s_mul_i32 s53, s52, {896*1024}")
    e("  s_lshl_b32 s54, s50, 4")
    e("  s_add_u32 s53, s53, s54")
    e(f"  s_mul_i32 s54, s52, {896*16}")
    for i in range(14):
        e(f"  s_add_u32 m0, s54, {LDS_WD + 1024*i}")
        e("  s_nop 0")
        e("  buffer_load_dwordx4 v3, s[40:43], s53 offen lds")
        e("  s_add_u32 s53, s53, 0x10000")
    e("  s_branch tf_poll1")
    lab("tf_p1")
    e("  v_lshrrev_b32 v1, 4, v180")
    e("  v_and_b32 v2, 15, v0")
    e("  s_lshl_b32 s52, s2, 3")
    e("  v_add_u32 v1, s52, v1")
    e("  v_mov_b32 v181, v1")
    rowmac(True)
    e("  v_cmp_eq_u32 vcc, 0, v2")
    e("  s_and_saveexec_b64 s[56:57], vcc")
    e("  v_lshlrev_b32 v13, 2, v1")
    e(f"  s_mov_b32 s52, {WS_KEY}")
    e("  buffer_store_dword v12, v13, s[24:27], s52 offen sc1")
    e("  s_mov_b64 exec, s[56:57]")
    stamp(1)
    lab("tf_poll1")
    K = 164
    e("  v_lshlrev_b32 v172, 5, v180")
    e(f"  s_mov_b32 s52, {WS_KEY}")
    e("  s_mov_b32 s60, 0")
    lab("tf_poll1_loop")
    e(f"  buffer_load_dwordx4 {vr(K,4)}, v172, s[24:27], s52 offen sc1")
    e(f"  buffer_load_dwordx4 {vr(K+4,4)}, v172, s[24:27], s52 offen offset:16 sc1")
    e("  s_waitcnt vmcnt(0)")
    e(f"  v_min3_u32 v173, v{K}, v{K+1}, v{K+2}")
    e(f"  v_min3_u32 v174, v{K+3}, v{K+4}, v{K+5}")
    e(f"  v_min3_u32 v173, v173, v{K+6}, v{K+7}")
    e("  v_min_u32 v173, v173, v174")
    e("  v_cmp_eq_u32 s[62:63], 0, v173")
    e("  s_nop 3")
    e("  s_cmp_eq_u64 s[62:63], 0")
    e("  s_cbranch_scc1 tf_poll1_ok")
    e("  s_add_u32 s60, s60, 1")
    e(f"  s_cmp_gt_u32 s60, {SPIN}")
    e("  s_cbranch_scc1 tf_poll1_ok")
    e("  s_sleep 1")
    e("  s_branch tf_poll1_loop")
    lab("tf_poll1_ok")
    stamp(2)
    e("  v_mov_b32 v176, 0")
    for rnd in range(8):
        e(f"  v_max3_u32 v173, v{K}, v{K+1}, v{K+2}")
        e(f"  v_max3_u32 v174, v{K+3}, v{K+4}, v{K+5}")
        e(f"  v_max3_u32 v173, v173, v{K+6}, v{K+7}")
        e("  v_max_u32 v173, v173, v174")
        e("  s_nop 1")
        e("  v_max_u32_dpp v173, v173, v173 quad_perm:[1,0,3,2] row_mask:0xf bank_mask:0xf")
        e("  s_nop 1")
        e("  v_max_u32_dpp v173, v173, v173 quad_perm:[2,3,0,1] row_mask:0xf bank_mask:0xf")
        e("  s_nop 1")
        e("  v_max_u32_dpp v173, v173, v173 row_half_mirror row_mask:0xf bank_mask:0xf")
        e("  s_nop 1")
        e("  v_max_u32_dpp v173, v173, v173 row_mirror row_mask:0xf bank_mask:0xf")
        e("  s_nop 1")
        e("  v_readlane_b32 s64, v173, 0")
        e("  v_readlane_b32 s65, v173, 16")
        e("  v_readlane_b32 s66, v173, 32")
        e("  v_readlane_b32 s67, v173, 48")
        e("  s_max_u32 s64, s64, s65")
        e("  s_max_u32 s66, s66, s67")
        e("  s_max_u32 s64, s64, s66")
        e(f"  v_writelane_b32 v176, s64, {rnd}")
        if rnd < 7:
            for k in range(8):
                e(f"  v_cmp_ne_u32 vcc, s64, v{K+k}")
                e("  s_nop 1")
                e(f"  v_cndmask_b32 v{K+k}, 0, v{K+k}, vcc")
    e("  s_lshl_b32 s52, s48, 5")
    e(f"  s_add_u32 s52, s52, {LDS_C}")
    e("  v_lshlrev_b32 v172, 2, v0")
    e("  v_add_u32 v172, s52, v172")
    e("  v_cmp_gt_u32 vcc, 8, v0")
    e("  s_and_saveexec_b64 s[56:57], vcc")
    e("  ds_write_b32 v172, v176")
    e("  s_mov_b64 exec, s[56:57]")
    e("  s_waitcnt lgkmcnt(0)")
    e("  s_barrier")
    e("  v_and_b32 v172, 31, v0")
    e("  v_lshlrev_b32 v172, 2, v172")
    e(f"  ds_read_b32 v177, v172 offset:{LDS_C}")
    e("  v_mov_b32 v178, 0")
    e("  s_waitcnt lgkmcnt(0)")
    for i in range(32):
        e(f"  v_readlane_b32 s64, v177, {i}")
        e("  s_nop 1")
        e("  v_cmp_gt_u32 vcc, s64, v177")
        e("  s_nop 1")
        e("  v_addc_co_u32 v178, vcc, 0, v178, vcc")
    e("  v_cmp_gt_u32 vcc, 8, v178")
    e("  v_cmp_gt_u32 s[58:59], 32, v0")
    e("  s_and_b64 vcc, vcc, s[58:59]")
    e("  v_lshlrev_b32 v172, 2, v178")
    e("  s_and_saveexec_b64 s[56:57], vcc")
    e(f"  ds_write_b32 v172, v177 offset:{LDS_C+128}")
    e("  s_mov_b64 exec, s[56:57]")
    e("  s_waitcnt lgkmcnt(0)")
    e("  s_barrier")
    stamp(3)
    e("  s_cmp_lt_u32 s48, 2")
    e("  s_cbranch_scc1 tf_p2")
    e("  s_waitcnt vmcnt(0)")
    e("  s_branch tf_p2_end")
    lab("tf_p2")
    e("  v_mov_b32 v172, 0")
    e(f"  ds_read_b128 {vr(K,4)}, v172 offset:{LDS_C+128}")
    e(f"  ds_read_b128 {vr(K+4,4)}, v172 offset:{LDS_C+144}")
    e("  v_lshrrev_b32 v173, 4, v180")
    e("  v_lshlrev_b32 v173, 2, v173")
    e(f"  ds_read_b32 v174, v173 offset:{LDS_C+128}")
    e("  v_sub_u32 v175, 0xffff, v181")
    e("  s_waitcnt lgkmcnt(0)")
    e("  s_mov_b64 s[58:59], exec")
    for k in range(8):
        e(f"  v_and_b32 v{K+k}, 0xffff, v{K+k}")
        e(f"  v_cmp_ne_u32 vcc, v{K+k}, v175")
        e("  s_and_b64 s[58:59], s[58:59], vcc")
    e("  v_lshlrev_b32 v3, 10, v181")
    e("  v_lshl_add_u32 v3, v2, 4, v3")
    e("  s_and_saveexec_b64 s[56:57], s[58:59]")
    e("  s_cbranch_execz tf_nostore")
    for j in range(4):
        e(f"  buffer_store_dwordx4 {vr(148+4*j,4)}, v3, s[44:47], 0 offen offset:{256*j}")
    lab("tf_nostore")
    e("  s_mov_b64 exec, s[56:57]")
    e("  v_and_b32 v1, 0xffff, v174")
    e("  v_sub_u32 v1, 0xffff, v1")
    rowmac(False)
    e("  v_lshrrev_b32 v173, 4, v180")
    e(f"  v_mul_u32_u24 v4, {XS_STRIDE}, v173")
    e("  v_lshl_add_u32 v4, v2, 4, v4")
    e("  v_lshlrev_b32 v5, 10, v173")
    e("  v_lshl_add_u32 v5, v2, 4, v5")
    for j in range(4):
        e(f"  ds_write_b128 v4, {vr(16+4*j,4)} offset:{LDS_XS+256*j}")
        e(f"  ds_write_b128 v5, {vr(32+4*j,4)} offset:{LDS_HS+256*j}")
    e("  s_waitcnt lgkmcnt(0)")
    lab("tf_p2_end")
    e("  s_barrier")
    stamp(4)
    e("  s_cmp_lg_u32 s48, 0")
    e("  s_cbranch_scc1 tf_f2")
    e("  s_cmp_ge_u32 s2, 224")
    e("  s_cbranch_scc1 tf_f2")
    e("  v_and_b32 v3, 7, v0")
    e(f"  v_mul_u32_u24 v3, {XS_STRIDE}, v3")
    e("  v_lshrrev_b32 v4, 4, v0")
    e("  v_lshl_add_u32 v3, v4, 4, v3")
    e("  v_and_b32 v5, 15, v0")
    e("  v_lshrrev_b32 v5, 2, v5")
    e("  v_lshl_add_u32 v5, v4, 3, v5")
    e("  v_lshlrev_b32 v5, 4, v5")
    e("  v_and_b32 v6, 1, v0")
    e("  v_lshl_add_u32 v5, v6, 3, v5")
    e("  v_and_b32 v6, 2, v0")
    e("  v_lshl_add_u32 v5, v6, 12, v5")
    for i in range(4):
        e(f"  v_mov_b32 v{8+i}, 0")
    FA, FB = 16, 80
    for st in range(16):
        e(f"  ds_read_b128 {vr(FA+4*st,4)}, v3 offset:{LDS_XS + 64*st}")
        e(f"  ds_read_b64_tr_b16 {vr(FB+4*st,2)}, v5 offset:{512*st}")
        e(f"  ds_read_b64_tr_b16 {vr(FB+4*st+2,2)}, v5 offset:{512*st+64}")
        if st % 4 == 3:
            e("  s_waitcnt lgkmcnt(0)")
            for s2 in range(st-3, st+1):
                e(f"  v_mfma_f32_16x16x32_bf16 v[8:11], {vr(FA+4*s2,4)}, {vr(FB+4*s2,4)}, v[8:11]")
    e("  s_nop 15")
    for i in range(4):
        e(f"  v_cvt_pk_bf16_f32 v{8+i}, v{8+i}, v{8+i}")
        e(f"  v_lshlrev_b32 v{8+i}, 16, v{8+i}")
    e("  s_nop 1")
    for i in range(4):
        e(f"  v_mov_b32_dpp v{12+i}, v{8+i} row_ror:8 row_mask:0xf bank_mask:0xf")
    for i in range(4):
        e(f"  v_mul_f32 v16, 0xbfb8aa3b, v{8+i}")
        e("  v_exp_f32 v16, v16")
        e("  s_nop 0")
        e("  v_add_f32 v16, 1.0, v16")
        e("  v_rcp_f32 v16, v16")
        e("  s_nop 0")
        e(f"  v_mul_f32 v16, v{8+i}, v16")
        e("  v_cvt_pk_bf16_f32 v16, v16, v16")
        e("  v_lshlrev_b32 v16, 16, v16")
        e(f"  v_mul_f32 v16, v16, v{12+i}")
        e(f"  v_cvt_pk_bf16_f32 v{20+i}, v16, v16")
    e("  s_nop 1")
    for i in range(4):
        e(f"  v_mov_b32_dpp v{24+i}, v{20+i} quad_perm:[1,0,3,2] row_mask:0xf bank_mask:0xf")
    for i in range(4):
        e(f"  v_and_b32 v{20+i}, 0xffff, v{20+i}")
        e(f"  v_and_b32 v{24+i}, 0xffff0000, v{24+i}")
        e(f"  v_or_b32 v{20+i}, v{20+i}, v{24+i}")
    e("  v_and_b32 v5, 15, v0")
    e("  v_and_b32 v6, 9, v0")
    e("  v_cmp_eq_u32 vcc, 0, v6")
    e("  v_cmp_gt_u32 s[58:59], 32, v0")
    e("  s_and_b64 vcc, vcc, s[58:59]")
    e("  s_and_saveexec_b64 s[56:57], vcc")
    e("  v_lshlrev_b32 v4, 2, v4")
    e("  v_mul_u32_u24 v4, 3584, v4")
    e("  v_lshl_add_u32 v4, v5, 1, v4")
    e("  s_lshl_b32 s52, s49, 4")
    e(f"  s_add_u32 s52, s52, {WS_GU}")
    for i in range(4):
        e(f"  buffer_store_dword v{20+i}, v4, s[24:27], s52 offen sc1")
        if i < 3:
            e("  v_add_u32 v4, 3584, v4")
    e("  s_waitcnt vmcnt(0)")
    e("  s_mov_b64 exec, 1")
    e("  v_mov_b32 v4, 1")
    e("  v_mov_b32 v5, 0")
    e("  s_lshl_b32 s52, s49, 2")
    e(f"  s_add_u32 s52, s52, {WS_FLAG}")
    e("  buffer_store_dword v4, v5, s[24:27], s52 offen sc1")
    e("  s_mov_b64 exec, s[56:57]")
    stamp(5)
    lab("tf_f2")
    e("  s_cmp_lt_u32 s2, 192")
    e("  s_cbranch_scc1 tf_done")
    e("  v_min_u32 v3, 55, v0")
    e("  v_lshlrev_b32 v3, 2, v3")
    e("  s_mul_i32 s52, s48, 224")
    e(f"  s_add_u32 s52, s52, {WS_FLAG}")
    e("  s_mov_b32 s60, 0")
    lab("tf_poll2_loop")
    e("  buffer_load_dword v4, v3, s[24:27], s52 offen sc1")
    e("  s_waitcnt vmcnt(0)")
    e("  v_cmp_eq_u32 s[62:63], 0, v4")
    e("  s_nop 3")
    e("  s_cmp_eq_u64 s[62:63], 0")
    e("  s_cbranch_scc1 tf_poll2_ok")
    e("  s_add_u32 s60, s60, 1")
    e(f"  s_cmp_gt_u32 s60, {SPIN}")
    e("  s_cbranch_scc1 tf_poll2_ok")
    e("  s_sleep 1")
    e("  s_branch tf_poll2_loop")
    lab("tf_poll2_ok")
    stamp(6)
    e("  v_and_b32 v4, 7, v0")
    e("  v_mul_u32_u24 v4, 3584, v4")
    e("  v_lshrrev_b32 v5, 4, v0")
    e("  v_lshl_add_u32 v4, v5, 4, v4")
    e("  s_mul_i32 s52, s48, 896")
    e(f"  s_add_u32 s52, s52, {WS_GU}")
    FA, FB = 16, 72
    for st in range(14):
        e(f"  buffer_load_dwordx4 {vr(FA+4*st,4)}, v4, s[24:27], s52 offen offset:{64*st} sc1")
    e("  v_and_b32 v7, 15, v0")
    e("  v_lshrrev_b32 v7, 2, v7")
    e("  v_lshl_add_u32 v7, v5, 3, v7")
    e("  v_lshlrev_b32 v7, 4, v7")
    e("  v_and_b32 v6, 1, v0")
    e("  v_lshl_add_u32 v7, v6, 3, v7")
    e("  s_mul_i32 s54, s48, 7168")
    e(f"  s_add_u32 s54, s54, {LDS_WD}")
    e("  v_add_u32 v7, s54, v7")
    for st in range(14):
        e(f"  ds_read_b64_tr_b16 {vr(FB+4*st,2)}, v7 offset:{512*st}")
        e(f"  ds_read_b64_tr_b16 {vr(FB+4*st+2,2)}, v7 offset:{512*st+64}")
    for i in range(4):
        e(f"  v_mov_b32 v{8+i}, 0")
    e("  s_waitcnt vmcnt(0) lgkmcnt(0)")
    for st in range(14):
        e(f"  v_mfma_f32_16x16x32_bf16 v[8:11], {vr(FA+4*st,4)}, {vr(FB+4*st,4)}, v[8:11]")
    e("  s_nop 15")
    e("  v_lshlrev_b32 v3, 4, v0")
    e("  s_lshl_b32 s52, s48, 10")
    e("  v_add_u32 v3, s52, v3")
    e(f"  ds_write_b128 v3, v[8:11] offset:{LDS_R}")
    e("  s_waitcnt lgkmcnt(0)")
    e("  s_barrier")
    e("  s_cmp_lg_u32 s48, 0")
    e("  s_cbranch_scc1 tf_done")
    e("  v_lshlrev_b32 v3, 4, v0")
    for w in range(1, 4):
        e(f"  ds_read_b128 {vr(12+4*(w-1),4)}, v3 offset:{LDS_R+1024*w}")
    e("  v_and_b32 v6, 1, v5")
    e("  v_lshlrev_b32 v6, 4, v6")
    e(f"  ds_read_b128 v[24:27], v6 offset:{LDS_C+128}")
    e("  v_and_b32 v6, 7, v0")
    e("  s_lshl_b32 s52, s50, 4")
    e("  v_lshl_add_u32 v6, v6, 1, s52")
    e("  v_and_b32 v7, 1, v5")
    e("  v_lshlrev_b32 v7, 2, v7")
    for i in range(4):
        e(f"  v_add_u32 v28, {i}, v7")
        e(f"  v_mul_u32_u24 v29, {XS_STRIDE}, v28")
        e("  v_add_u32 v29, v29, v6")
        e(f"  ds_read_u16 v{36+i}, v29 offset:{LDS_XS}")
        e("  v_lshl_add_u32 v29, v28, 10, v6")
        e(f"  ds_read_u16 v{40+i}, v29 offset:{LDS_HS}")
    e("  v_and_b32 v30, 15, v0")
    e("  v_cmp_gt_u32 vcc, 8, v30")
    e("  v_cmp_gt_u32 s[58:59], 32, v0")
    e("  s_and_b64 vcc, vcc, s[58:59]")
    e("  s_waitcnt lgkmcnt(0)")
    e("  s_and_saveexec_b64 s[56:57], vcc")
    for i in range(4):
        e(f"  v_add_f32 v{8+i}, v{8+i}, v{12+i}")
        e(f"  v_add_f32 v{16+i}, v{16+i}, v{20+i}")
        e(f"  v_add_f32 v{8+i}, v{8+i}, v{16+i}")
        e(f"  v_cvt_pk_bf16_f32 v{8+i}, v{8+i}, v{8+i}")
        e(f"  v_lshlrev_b32 v{8+i}, 16, v{8+i}")
        e(f"  v_and_b32 v60, 0xffff0000, v{24+i}")
        e("  v_ashrrev_i32 v61, 31, v60")
        e("  v_not_b32 v61, v61")
        e("  v_or_b32 v61, 0x80000000, v61")
        e("  v_xor_b32 v60, v60, v61")
        e("  v_and_b32 v60, 0xffff0000, v60")
        e("  v_mul_f32 v60, 0xbfb8aa3b, v60")
        e("  v_exp_f32 v60, v60")
        e("  s_nop 0")
        e("  v_add_f32 v60, 1.0, v60")
        e("  v_rcp_f32 v60, v60")
        e("  s_nop 0")
        e("  v_cvt_pk_bf16_f32 v60, v60, v60")
        e("  v_lshlrev_b32 v60, 16, v60")
        e(f"  v_mul_f32 v{8+i}, v{8+i}, v60")
        e(f"  v_cvt_pk_bf16_f32 v{8+i}, v{8+i}, v{8+i}")
        e(f"  v_lshlrev_b32 v{8+i}, 16, v{8+i}")
        e(f"  v_lshlrev_b32 v{36+i}, 16, v{36+i}")
        e(f"  v_lshlrev_b32 v{40+i}, 16, v{40+i}")
        e(f"  v_add_f32 v61, v{36+i}, v{8+i}")
        e("  v_cvt_pk_bf16_f32 v61, v61, v61")
        e("  v_lshlrev_b32 v61, 16, v61")
        e(f"  v_add_f32 v61, v{40+i}, v61")
        e("  v_cvt_pk_bf16_f32 v61, v61, v61")
        e(f"  v_and_b32 v62, 0xffff, v{24+i}")
        e("  v_sub_u32 v62, 0xffff, v62")
        e("  v_lshl_add_u32 v62, v62, 10, v6")
        e("  buffer_store_short v61, v62, s[44:47], 0 offen")
    lab("tf_done")
    kernel_end()
    e("  s_endpgm")
    kernel_desc(name, 184)

def main():
    hdr = open("cdna_kernels/" + NAME + ".s.ref").read().splitlines()
    out = []
    for ln in hdr:
        if ln.startswith("; @launch"):
            if FUSE:
                out.append("; @launch kernel=f_kernel grid=(256,1,1) block=(576,1,1) lds=%d" % (K2_NS*24576 + 256))
            else:
                out.append("; @launch kernel=k1_kernel grid=(256,1,1) block=(%d,1,1) lds=131072" % (576 if OPT('K1_PF', 0) else 512))
                out.append("; @launch kernel=k2_kernel grid=(256,1,1) block=(%d,1,1) lds=%d" % (576, K2_NS*24576))
            if OPT('TF'):
                out.append("; @launch kernel=tf_kernel grid=(256,1,1) block=(256,1,1) lds=66048")
            else:
                if not OPT('K2T1', 1):
                    out.append("; @launch kernel=t1_kernel grid=(256,1,1) block=(%d,1,1) lds=0" % (192 if OPT('T1_PF', 1) else 128))
                if MEGA:
                    pass
                elif OPT('T4', 1):
                    out.append("; @launch kernel=t4_kernel grid=(240,1,1) block=(256,1,1) lds=123392")
                else:
                    out.append("; @launch kernel=t2_kernel grid=(224,1,1) block=(256,1,1) lds=25600")
                    out.append("; @launch kernel=t3_kernel grid=(64,1,1) block=(256,1,1) lds=32768")
            break
        out.append(ln)
    out.append('.amdgcn_target "amdgcn-amd-amdhsa--gfx950"')
    out.append(".text")
    gen_k1(); gen_k2()
    if OPT('TF'): gen_tf()
    elif OPT('T4', 1):
        if not OPT('K2T1', 1): gen_t1()
        if not MEGA: gen_t4()
    else: gen_t1(); gen_t2(); gen_t3()
    out += L
    out.append('.section .rodata,"a"')
    out += KD
    dst = sys.argv[1] if len(sys.argv) > 1 else "cdna_kernels/" + NAME + ".s"
    open(dst, "w").write("\n".join(out) + "\n")

main()
```

```python
import sys, os
OPT = lambda k, d=0: int(os.environ.get(k, d))

NAME = "sequential_preLN__spectral_fnet__moe_arch_mod__prompt"
L = []
def e(s=""):
    L.append(s)
def lab(s):
    L.append(s + ":")

KA_X, KA_WSRE, KA_WSIM, KA_WDRE, KA_WDIM = 0, 8, 16, 24, 32
KA_WR, KA_WG, KA_WU, KA_WDN, KA_OUT, KA_DBG, KA_WS = 48, 56, 64, 72, 80, 88, 96
WS_YB = 0
WS_Y = 4 << 20
WS_KEY = 8 << 20
WS_STAT = (8 << 20) + 8192
WS_GU = (8 << 20) + 65536
WS_IDX = (8 << 20) + 131072
WS_FLAG = (8 << 20) + 196608
WS_FA = WS_FLAG + 4096
WS_REC = (9 << 20)
WS_SEL = (9 << 20) + 65536
WS_WDB = 10 << 20
WS_SIZE = 268435456

KIDX = [0]
NV = {"k1_kernel": 160, "k2_kernel": 160, "t1_kernel": 148, "t2_kernel": 192, "t3_kernel": 192, "tf_kernel": 184, "t4_kernel": 252, "f_kernel": 164}
FUSE = OPT("FUSE", 1)
K2_NS = OPT("K2_NS", 6)
MEGA = OPT("MEGA", 0) and FUSE
CUR = [0]
def kernel_begin(name):
    CUR[0] = NV[name]
    e(f".globl {name}")
    e(".p2align 8")
    e(f".type {name},@function")
    lab(name)
    if OPT('DIAG'):
        e("  s_memrealtime s[72:73]")
        for i in range(1, 7):
            e(f"  s_mov_b64 s[{72+2*i}:{73+2*i}], 0")
        e(f"  s_load_dwordx2 s[94:95], s[0:1], {KA_WS}")
        e(f"  v_mov_b32 v{CUR[0]}, v0")

HS = [0]
def hstamp(k, wg=0):
    if not OPT('HSTAMP'): return
    if OPT('HSTAMP') == 2 and k in (7, 8, 9, 10) and wg in (0, 224) and not hasattr(hstamp, "x"):
        if k != 7: return
        k = 15
    HS[0] += 1
    e(f"  s_cmp_lg_u32 s2, {wg}")
    e(f"  s_cbranch_scc1 hs_{HS[0]}")
    e("  s_cmp_lg_u32 s15, 0")
    e(f"  s_cbranch_scc1 hs_{HS[0]}")
    e("  s_memrealtime s[72:73]")
    e("  s_waitcnt lgkmcnt(0)")
    e("  v_mov_b32 v162, s72")
    e(f"  v_mov_b32 v163, {4*k}")
    e("  s_mov_b64 s[74:75], exec")
    e("  s_mov_b64 exec, 1")
    e("  buffer_store_dword v162, v163, s[96:99], 0 offen")
    e("  s_mov_b64 exec, s[74:75]")
    lab(f"hs_{HS[0]}")

def stamp(i):
    if OPT('DIAG'):
        e(f"  s_memrealtime s[{72+2*i}:{73+2*i}]")
    if OPT('HSTAMP') == 1 and CUR[0] == 164: hstamp(i)
    if OPT('HSTAMP') == 2 and CUR[0] == 164 and i == 6:
        for w in range(8): hstamp(1 + w, w)
    if OPT('HSTAMP') == 2 and CUR[0] == 164 and i == 2:
        for w in range(0, 8, 2): hstamp(11 + w // 2, w + 1)

def kernel_end():
    if OPT('DIAG'):
        e("  s_waitcnt vmcnt(0) lgkmcnt(0)")
        e("  s_memrealtime s[86:87]")
        e("  s_mov_b32 s88, s94")
        e("  s_mov_b32 s89, s95")
        e("  s_mov_b32 s90, 0x4000000")
        e("  s_mov_b32 s91, 0x00020000")
        e("  s_waitcnt lgkmcnt(0)")
        e("  s_mov_b64 exec, 1")
        for i in range(16):
            e(f"  v_mov_b32 v{i}, s{72+i}")
        e(f"  v_lshrrev_b32 v{CUR[0]+1}, 6, v{CUR[0]}")
        e(f"  v_lshlrev_b32 v{CUR[0]+1}, 6, v{CUR[0]+1}")
        e("  s_lshl_b32 s92, s2, 10")
        e(f"  s_add_u32 s92, s92, {(16 << 20) + KIDX[0] * 0x100000}")
        for i in range(4):
            e(f"  buffer_store_dwordx4 v[{4*i}:{3+4*i}], v{CUR[0]+1}, s[88:91], s92 offen offset:{16*i}")
    KIDX[0] += 1

KD = []
def kernel_desc(name, vgpr, sgpr=102):
    assert vgpr == CUR[0]
    if OPT('DIAG'): vgpr += 2
    acc = (vgpr + 3) // 4 * 4
    KD.append(f""".p2align 6
.amdhsa_kernel {name}
  .amdhsa_next_free_vgpr {vgpr}
  .amdhsa_next_free_sgpr {sgpr}
  .amdhsa_accum_offset {acc}
  .amdhsa_group_segment_fixed_size 0
  .amdhsa_kernarg_size 104
  .amdhsa_user_sgpr_count 2
  .amdhsa_user_sgpr_kernarg_segment_ptr 1
  .amdhsa_system_sgpr_workgroup_id_x 1
.end_amdhsa_kernel""")

def srd(d, lo, hi, size):
    e(f"  s_mov_b32 s{d}, s{lo}")
    e(f"  s_mov_b32 s{d+1}, s{hi}")
    e(f"  s_mov_b32 s{d+2}, {size}")
    e(f"  s_mov_b32 s{d+3}, 0x00020000")

def vr(a, n):
    return f"v[{a}:{a+n-1}]"

def reduce8(v):
    e("  s_nop 1")
    e(f"  v_add_f32_dpp v{v}, v{v}, v{v} quad_perm:[1,0,3,2] row_mask:0xf bank_mask:0xf")
    e("  s_nop 1")
    e(f"  v_add_f32_dpp v{v}, v{v}, v{v} quad_perm:[2,3,0,1] row_mask:0xf bank_mask:0xf")
    e("  s_nop 1")
    e(f"  v_add_f32_dpp v{v}, v{v}, v{v} row_half_mirror row_mask:0xf bank_mask:0xf")

def reduce16(v):
    reduce8(v)
    e("  s_nop 1")
    e(f"  v_add_f32_dpp v{v}, v{v}, v{v} row_mirror row_mask:0xf bank_mask:0xf")

def helper_wave():
    srd(36, 34, 35, 1792*512*2)
    srd(40, 6, 7, 12 << 20)
    e("  v_lshlrev_b32 v2, 4, v0")
    e("  s_mul_i32 s44, s2, 7168")
    for q in range(7):
        e(f"  buffer_load_dwordx4 {vr(8+4*q,4)}, v2, s[36:39], s44 offen")
        e("  s_add_u32 s44, s44, 1024")
    e("  s_cmp_ge_u32 s2, 28")
    e("  s_cbranch_scc1 k2_nomark")
    for q in range(4):
        e(f"  v_mov_b32 v{4+q}, -1")
    e("  s_lshl_b32 s44, s2, 10")
    e(f"  s_add_u32 s44, s44, {WS_GU}")
    e("  buffer_store_dwordx4 v[4:7], v2, s[40:43], s44 offen" + (" sc1" if MEGA else ""))
    lab("k2_nomark")
    e("  v_mul_u32_u24 v3, 28672, v0")
    e("  s_mul_i32 s44, s2, 112")
    e(f"  s_add_u32 s44, s44, {WS_WDB}")
    e("  s_waitcnt vmcnt(0)")
    for q in range(7):
        e(f"  buffer_store_dwordx4 {vr(8+4*q,4)}, v3, s[40:43], s44 offen offset:{16*q}" + (" sc1" if MEGA else ""))
    if MEGA: e("  s_waitcnt vmcnt(0)")
    if FUSE and OPT('F_PFM', 0) == 2:
        e("  s_and_b32 s44, s2, 7")
        e("  s_cmp_lt_u32 s44, 4")
        e("  s_cselect_b32 s48, s52, s54")
        e("  s_cselect_b32 s49, s53, s55")
        e(f"  s_mov_b32 s50, {2048*2048*2}")
        e("  s_mov_b32 s51, 0x00020000")
        e("  s_and_b32 s44, s44, 3")
        e("  s_lshl_b32 s44, s44, 21")
        e("  s_lshr_b32 s45, s2, 3")
        e("  s_lshl_b32 s45, s45, 16")
        e("  s_add_u32 s44, s44, s45")
        e("  v_lshlrev_b32 v1, 4, v0")
        e("  s_barrier")
        for q in range(64):
            e(f"  buffer_load_dwordx4 v[160:163], v1, s[48:51], s44 offen")
            e("  s_add_u32 s44, s44, 1024")
    e("  s_branch k2_done")

def get_epoch(tag):
    e("  v_mov_b32 v158, 0")
    e("  s_mov_b32 s69, 0")
    lab(f"ep_{tag}")
    e("  buffer_load_dword v159, v158, s[96:99], 0 offen sc1")
    e("  s_waitcnt vmcnt(0)")
    e("  v_readfirstlane_b32 s68, v159")
    e("  s_add_u32 s69, s69, 1")
    e(f"  s_cmp_gt_u32 s69, {1 << 22}")
    e(f"  s_cbranch_scc1 ep_{tag}_ok")
    e("  s_cmp_eq_u32 s68, 0")
    e(f"  s_cbranch_scc1 ep_{tag}")
    lab(f"ep_{tag}_ok")

def gen_k1():
    name = "f_kernel" if FUSE else "k1_kernel"
    kernel_begin(name)
    e("  s_cmp_ge_u32 s2, 256")
    e(f"  s_cbranch_scc1 {'k2_done' if FUSE else 'k1_done'}")
    e(f"  s_load_dwordx2 s[4:5], s[0:1], {KA_X}")
    e(f"  s_load_dwordx4 s[8:11], s[0:1], {KA_WDRE}")
    e(f"  s_load_dwordx2 s[6:7], s[0:1], {KA_WS}")
    if FUSE:
        e(f"  s_load_dwordx4 s[52:55], s[0:1], {KA_WSRE}")
        e(f"  s_load_dwordx2 s[66:67], s[0:1], {KA_DBG}")
        e(f"  s_load_dwordx2 s[34:35], s[0:1], {KA_WDN}")
    e("  s_and_b32 s12, s2, 7")
    e("  s_lshr_b32 s13, s2, 3")
    e("  s_and_b32 s14, s13, 3")
    e("  s_lshl_b32 s12, s12, 2")
    e("  s_add_u32 s12, s12, s14")
    e("  s_lshr_b32 s13, s13, 2")
    e("  v_lshrrev_b32 v1, 6, v0")
    e("  v_and_b32 v0, 63, v0")
    e("  v_readfirstlane_b32 s15, v1")
    e("  v_lshrrev_b32 v2, 3, v0")
    e("  v_and_b32 v3, 7, v0")
    if OPT('K1_PF', 0) or OPT('K1_PFEND', 0):
        e(f"  s_load_dwordx4 s[40:43], s[0:1], {KA_WSRE}")
    e("  s_waitcnt lgkmcnt(0)")
    if OPT('K1_PF', 0):
        e("  s_cmp_lg_u32 s15, 8")
        e("  s_cbranch_scc1 k1_main")
        e("  s_and_b32 s44, s2, 7")
        e("  s_cmp_lt_u32 s44, 4")
        e("  s_cselect_b32 s48, s40, s42")
        e("  s_cselect_b32 s49, s41, s43")
        e(f"  s_mov_b32 s50, {2048*2048*2}")
        e("  s_mov_b32 s51, 0x00020000")
        e("  s_and_b32 s44, s44, 3")
        e("  s_lshl_b32 s44, s44, 21")
        e("  s_lshr_b32 s45, s2, 3")
        e("  s_lshl_b32 s45, s45, 16")
        e("  s_add_u32 s44, s44, s45")
        e("  v_lshlrev_b32 v1, 4, v0")
        e("  s_cmp_lt_u32 s13, 4")
        e("  s_cselect_b32 s56, s8, s10")
        e("  s_cselect_b32 s57, s9, s11")
        e(f"  s_mov_b32 s58, {512*512*2}")
        e("  s_mov_b32 s59, 0x00020000")
        e("  s_and_b32 s46, s13, 3")
        e("  s_lshl_b32 s46, s46, 17")
        for q in range(OPT('K1_CAN', 0)):
            e(f"  buffer_load_dwordx4 v[8:11], v1, s[56:59], s46 offen offset:{q*1024}")
            e("  s_waitcnt vmcnt(0)")
        for q in range(64):
            e(f"  buffer_load_dwordx4 {vr(8+4*(q%32),4)}, v1, s[48:51], s44 offen")
            e("  s_add_u32 s44, s44, 1024")
        e("  s_branch k1_done")
        lab("k1_main")
    if FUSE:
        srd(96, 66, 67, 256)
        e("  s_cmp_lg_u32 s15, 8")
        e("  s_cbranch_scc1 f_main")
        e("  s_cmp_lg_u32 s2, 0")
        e("  s_cbranch_scc1 f_noepoch")
        e("  s_memrealtime s[40:41]")
        e("  s_waitcnt lgkmcnt(0)")
        e("  s_or_b32 s40, s40, 1")
        e("  v_mov_b32 v4, s40")
        e("  v_mov_b32 v5, 0")
        e("  s_mov_b64 s[42:43], exec")
        e("  s_mov_b64 exec, 1")
        e("  buffer_store_dword v4, v5, s[96:99], 0 offen sc1")
        e("  s_mov_b64 exec, s[42:43]")
        lab("f_noepoch")
        if OPT('F_PF', 0):
            e(f"  s_load_dwordx4 s[40:43], s[0:1], {KA_WSRE}")
            e("  s_and_b32 s44, s2, 7")
            e("  s_waitcnt lgkmcnt(0)")
            e("  s_cmp_lt_u32 s44, 4")
            e("  s_cselect_b32 s48, s40, s42")
            e("  s_cselect_b32 s49, s41, s43")
            e(f"  s_mov_b32 s50, {2048*2048*2}")
            e("  s_mov_b32 s51, 0x00020000")
            e("  s_and_b32 s44, s44, 3")
            e("  s_lshl_b32 s44, s44, 21")
            e("  s_lshr_b32 s45, s2, 3")
            e("  s_lshl_b32 s45, s45, 16")
            e("  s_add_u32 s44, s44, s45")
            e("  v_lshlrev_b32 v1, 4, v0")
            for q in range(64):
                e(f"  buffer_load_dwordx4 {vr(40+4*(q%24),4)}, v1, s[48:51], s44 offen")
                e("  s_add_u32 s44, s44, 1024")
        helper_wave()
        lab("f_main")
        hstamp(7)
    srd(16, 4, 5, 2048*512*2)
    e("  s_cmp_lt_u32 s13, 4")
    e("  s_cselect_b32 s20, s8, s10")
    e("  s_cselect_b32 s21, s9, s11")
    e(f"  s_mov_b32 s22, {512*512*2}")
    e("  s_mov_b32 s23, 0x00020000")
    srd(24, 6, 7, 9 << 20)
    if not FUSE:
        e("  s_or_b32 s46, s2, s15")
        e("  s_cmp_lg_u32 s46, 0")
        e("  s_cbranch_scc1 k1_nozero")
        for q in range(4):
            e(f"  v_mov_b32 v{4+q}, 0")
        e("  v_lshlrev_b32 v8, 4, v0")
        e(f"  s_mov_b32 s46, {WS_FLAG}")
        e("  buffer_store_dwordx4 v[4:7], v8, s[24:27], s46 offen")
        lab("k1_nozero")
    e("  s_lshl_b32 s28, s12, 6")
    e("  s_lshl_b32 s29, s15, 3")
    e("  s_add_u32 s28, s28, s29")
    e("  v_add_u32 v4, s28, v2")
    e("  v_lshlrev_b32 v4, 10, v4")
    e("  v_lshl_add_u32 v4, v3, 4, v4")
    X = 32
    for j in range(8):
        e(f"  buffer_load_dwordx4 {vr(X+4*j,4)}, v4, s[16:19], 0 offen offset:{128*j}")
    e("  s_and_b32 s30, s13, 3")
    e("  s_lshl_b32 s30, s30, 7")
    for ii in range(2):
        e(f"  s_lshl_b32 s31, s15, 4")
        e(f"  s_add_u32 s31, s31, {8*ii}")
        e(f"  v_add_u32 v7, s31, v2")
        e(f"  v_lshrrev_b32 v8, 1, v7")
        e(f"  v_and_b32 v8, 7, v8")
        e(f"  v_xor_b32 v8, v8, v3")
        e(f"  v_add_u32 v7, s30, v7")
        e(f"  v_lshlrev_b32 v7, 10, v7")
        e(f"  v_lshl_add_u32 v{5+ii}, v8, 4, v7")
    e("  s_lshl_b32 s32, s15, 11")
    def wdma(kb):
        slot = kb % 4
        e(f"  s_mov_b32 s33, {128*kb}")
        for ii in range(2):
            e(f"  s_add_u32 m0, s32, {slot*16384 + ii*1024}")
            e("  s_nop 0")
            e(f"  buffer_load_dwordx4 v{5+ii}, s[20:23], s33 offen lds")
    for kb in range(4):
        wdma(kb)
    PFM = OPT('F_PFM', 0)
    STG = 128
    if PFM:
        for kb in range(4, 8):
            e(f"  s_mov_b32 s33, {128*kb}")
            for ii in range(2):
                e(f"  buffer_load_dwordx4 {vr(STG+8*(kb-4)+4*ii,4)}, v{5+ii}, s[20:23], s33 offen")
    if PFM == 1:
        e("  s_and_b32 s44, s2, 7")
        e("  s_cmp_lt_u32 s44, 4")
        e("  s_cselect_b32 s48, s52, s54")
        e("  s_cselect_b32 s49, s53, s55")
        e(f"  s_mov_b32 s50, {2048*2048*2}")
        e("  s_mov_b32 s51, 0x00020000")
        e("  s_and_b32 s44, s44, 3")
        e("  s_lshl_b32 s44, s44, 21")
        e("  s_lshr_b32 s45, s2, 3")
        e("  s_lshl_b32 s45, s45, 16")
        e("  s_add_u32 s44, s44, s45")
        e("  s_lshl_b32 s45, s15, 13")
        e("  s_add_u32 s44, s44, s45")
        e("  v_lshlrev_b32 v7, 4, v0")
        for q in range(8):
            e(f"  buffer_load_dwordx4 v[160:163], v7, s[48:51], s44 offen")
            e("  s_add_u32 s44, s44, 1024")
    e("  s_mov_b32 s34, 0x3f803f80")
    for a in range(4):
        e(f"  v_mov_b32 v{8+a}, 0")
    e(f"  s_waitcnt vmcnt({24 if PFM == 1 else 16 if PFM else 8})")
    for i in range(32):
        e(f"  v_dot2_f32_bf16 v{8+i%4}, v{X+i}, s34, v{8+i%4}")
    e("  s_nop 3")
    e("  v_add_f32 v8, v8, v9")
    e("  v_add_f32 v10, v10, v11")
    e("  v_add_f32 v8, v8, v10")
    reduce8(8)
    e("  v_mul_f32 v8, 0x3b000000, v8")
    e("  v_cvt_pk_bf16_f32 v9, v8, v8")
    e("  v_lshlrev_b32 v9, 16, v9")
    e("  v_sub_f32 v10, 0, v9")
    e("  v_mov_b32 v11, v10")
    D = 64
    for a in range(4):
        e(f"  v_mov_b32 v{12+a}, 0")
    for i in range(32):
        e(f"  v_lshlrev_b32 v{D+2*i}, 16, v{X+i}")
        e(f"  v_and_b32 v{D+2*i+1}, 0xffff0000, v{X+i}")
        e(f"  v_pk_add_f32 {vr(D+2*i,2)}, {vr(D+2*i,2)}, v[10:11]")
        q = 12 + 2*(i % 2)
        e(f"  v_pk_fma_f32 {vr(q,2)}, {vr(D+2*i,2)}, {vr(D+2*i,2)}, {vr(q,2)}")
    e("  v_add_f32 v12, v12, v13")
    e("  v_add_f32 v14, v14, v15")
    e("  v_add_f32 v12, v12, v14")
    reduce8(12)
    e("  v_sub_f32 v13, v8, v9")
    e("  v_mul_f32 v13, v13, v13")
    e("  v_mul_f32 v12, 0x3b000000, v12")
    e("  v_sub_f32 v12, v12, v13")
    e("  v_max_f32 v12, 0, v12")
    e("  v_cvt_pk_bf16_f32 v12, v12, v12")
    e("  v_lshlrev_b32 v12, 16, v12")
    e("  v_add_f32 v12, 0x3727c5ac, v12")
    e("  v_cvt_pk_bf16_f32 v12, v12, v12")
    e("  v_lshlrev_b32 v12, 16, v12")
    e("  v_sqrt_f32 v12, v12")
    e("  s_nop 0")
    e("  v_cvt_pk_bf16_f32 v12, v12, v12")
    e("  v_lshlrev_b32 v12, 16, v12")
    e("  v_rcp_f32 v12, v12")
    e("  s_nop 0")
    e("  v_mov_b32 v13, v12")
    for i in range(32):
        e(f"  v_cvt_pk_bf16_f32 v{X+i}, v{D+2*i}, v{D+2*i+1}")
        e(f"  v_lshlrev_b32 v{D+2*i}, 16, v{X+i}")
        e(f"  v_and_b32 v{D+2*i+1}, 0xffff0000, v{X+i}")
        e(f"  v_pk_mul_f32 {vr(D+2*i,2)}, {vr(D+2*i,2)}, v[12:13]")
        e(f"  v_cvt_pk_bf16_f32 v{X+i}, v{D+2*i}, v{D+2*i+1}")
    e("  v_add_u32 v14, s29, v2")
    e("  v_lshrrev_b32 v15, 1, v14")
    e("  v_and_b32 v15, 7, v15")
    e("  v_xor_b32 v15, v15, v3")
    e("  v_lshlrev_b32 v14, 7, v14")
    e("  v_lshl_add_u32 v14, v15, 4, v14")
    e("  v_add_u32 v14, 0x10000, v14")
    for j in range(8):
        e(f"  ds_write_b128 v14, {vr(X+4*j,4)} offset:{8192*j}")
    e("  s_and_b32 s35, s15, 1")
    e("  s_lshr_b32 s36, s15, 1")
    e("  v_and_b32 v16, 31, v0")
    e("  v_lshrrev_b32 v17, 5, v0")
    def fragaddr(dst, sblk, base):
        e(f"  s_lshl_b32 s37, s{sblk}, 5")
        e(f"  v_add_u32 v18, s37, v16")
        e(f"  v_lshrrev_b32 v19, 1, v18")
        e(f"  v_and_b32 v19, 7, v19")
        e(f"  v_xor_b32 v19, v19, v17")
        e(f"  v_lshlrev_b32 v18, 7, v18")
        e(f"  v_lshl_add_u32 v{dst}, v19, 4, v18")
        if base:
            e(f"  v_add_u32 v{dst}, {base}, v{dst}")
        for kk in range(1, 4):
            e(f"  v_xor_b32 v{dst+kk}, {32*kk}, v{dst}")
    fragaddr(20, 35, 0x10000)
    fragaddr(24, 36, 0)
    ACC = 96
    for i in range(16):
        e(f"  v_mov_b32 v{ACC+i}, 0")
    FA, FB = 64, 80
    waits = [22, 14, 12, 10, 8, 8, 8, 8] if PFM == 1 else [14, 6, 4, 2, 0, 0, 0, 0] if PFM else [6, 4, 4, 4, 4, 4, 2, 0]
    if PFM:
        e("  v_lshlrev_b32 v28, 4, v0")
        e("  v_add_u32 v28, s32, v28")
    for kb in range(8):
        e(f"  s_waitcnt vmcnt({waits[kb]}) lgkmcnt(0)")
        e("  s_barrier")
        if 1 <= kb <= 4 and PFM:
            for ii in range(2):
                e(f"  ds_write_b128 v28, {vr(STG+8*(kb-1)+4*ii,4)} offset:{((kb+3)%4)*16384 + ii*1024}")
        elif 1 <= kb <= 4:
            wdma(kb + 3)
        slot = kb % 4
        for kk in range(4):
            e(f"  ds_read_b128 {vr(FA+4*kk,4)}, v{20+kk} offset:{8192*kb}")
            e(f"  ds_read_b128 {vr(FB+4*kk,4)}, v{24+kk} offset:{16384*slot}")
        for kk in range(4):
            e(f"  s_waitcnt lgkmcnt({6-2*kk})")
            e(f"  v_mfma_f32_32x32x16_bf16 {vr(ACC,16)}, {vr(FA+4*kk,4)}, {vr(FB+4*kk,4)}, {vr(ACC,16)}")
    stamp(5)
    e("  s_lshl_b32 s37, s13, 1")
    e("  s_lshr_b32 s38, s36, 1")
    e("  s_add_u32 s37, s37, s38")
    e("  s_lshl_b32 s37, s37, 5")
    e("  s_add_u32 s37, s37, s12")
    e("  s_lshl_b32 s37, s37, 13")
    e("  s_and_b32 s38, s36, 1")
    e("  s_lshl_b32 s38, s38, 5")
    e("  v_add_u32 v18, s38, v16")
    e("  v_lshrrev_b32 v19, 1, v18")
    e("  v_and_b32 v19, 7, v19")
    e("  s_lshl_b32 s38, s35, 2")
    e("  v_add_u32 v29, s38, v17")
    e("  v_xor_b32 v29, v29, v19")
    e("  v_lshlrev_b32 v18, 7, v18")
    e("  v_lshl_add_u32 v30, v29, 4, v18")
    e("  v_xor_b32 v31, 32, v30")
    e("  s_nop 7")
    P = 112
    for g in range(4):
        e(f"  v_cvt_pk_bf16_f32 v{P+2*g}, v{ACC+4*g}, v{ACC+4*g+1}")
        e(f"  v_cvt_pk_bf16_f32 v{P+2*g+1}, v{ACC+4*g+2}, v{ACC+4*g+3}")
    e("  s_nop 1")
    for p in range(2):
        e(f"  v_permlane32_swap_b32 v{P+4*p}, v{P+4*p+2}")
        e(f"  v_permlane32_swap_b32 v{P+4*p+1}, v{P+4*p+3}")
    if not FUSE:
        e(f"  buffer_store_dwordx4 {vr(P,4)}, v30, s[24:27], s37 offen")
        e(f"  buffer_store_dwordx4 {vr(P+4,4)}, v31, s[24:27], s37 offen")
        lab("k1_done")
        kernel_end()
        e("  s_endpgm")
        kernel_desc(name, 160)
        return
    TR = 131072
    e(f"  s_load_dwordx4 s[8:11], s[0:1], {KA_WSRE}")
    e("  s_lshr_b32 s38, s36, 1")
    e("  s_lshl_b32 s38, s38, 13")
    e(f"  s_add_u32 s38, s38, {TR}")
    e("  v_add_u32 v30, s38, v30")
    e("  v_add_u32 v31, s38, v31")
    e(f"  ds_write_b128 v30, {vr(P,4)}")
    e(f"  ds_write_b128 v31, {vr(P+4,4)}")
    e("  v_lshlrev_b32 v29, 4, v0")
    e("  s_lshl_b32 s38, s15, 11")
    e(f"  s_add_u32 s39, s38, {TR}")
    e("  v_add_u32 v28, s39, v29")
    e("  s_waitcnt lgkmcnt(0)")
    e("  s_barrier")
    e("  ds_read_b128 v[64:67], v28")
    e("  ds_read_b128 v[68:71], v28 offset:1024")
    e("  s_lshl_b32 s37, s13, 1")
    e("  s_lshr_b32 s39, s15, 2")
    e("  s_add_u32 s37, s37, s39")
    e("  s_lshl_b32 s37, s37, 5")
    e("  s_add_u32 s37, s37, s12")
    e("  s_lshl_b32 s37, s37, 13")
    e("  s_and_b32 s39, s15, 3")
    e("  s_lshl_b32 s39, s39, 11")
    e("  s_add_u32 s37, s37, s39")
    e("  s_waitcnt lgkmcnt(1)")
    e("  buffer_store_dwordx4 v[64:67], v29, s[24:27], s37 offen sc1")
    e("  s_waitcnt lgkmcnt(0)")
    e("  buffer_store_dwordx4 v[68:71], v29, s[24:27], s37 offen offset:1024 sc1")
    e("  s_lshl_b32 s70, s13, 5")
    e("  s_add_u32 s70, s70, s12")
    e("  s_lshl_b32 s70, s70, 2")
    e(f"  s_add_u32 s70, s70, {WS_FA}")

def k2_epilogue_plain(ACC):
    e("  s_lshl_b32 s24, s14, 21")
    e(f"  s_add_u32 s24, s24, {WS_Y}")
    e("  s_lshl_b32 s30, s13, 7")
    e("  s_add_u32 s24, s24, s30")
    e("  s_lshl_b32 s30, s12, 7")
    e("  s_lshl_b32 s31, s15, 5")
    e("  s_add_u32 s30, s30, s31")
    e("  v_add_u32 v18, s30, v16")
    e("  v_lshlrev_b32 v18, 10, v18")
    e("  v_lshl_add_u32 v18, v17, 4, v18")
    e("  s_nop 7")
    P = 64
    for g in range(8):
        e(f"  v_cvt_pk_bf16_f32 v{P+2*g}, v{ACC+4*g}, v{ACC+4*g+1}")
        e(f"  v_cvt_pk_bf16_f32 v{P+2*g+1}, v{ACC+4*g+2}, v{ACC+4*g+3}")
    e("  s_nop 1")
    for p in range(4):
        e(f"  v_permlane32_swap_b32 v{P+4*p}, v{P+4*p+2}")
        e(f"  v_permlane32_swap_b32 v{P+4*p+1}, v{P+4*p+3}")
    for p in range(4):
        e(f"  buffer_store_dwordx4 {vr(P+4*p,4)}, v18, s[20:23], s24 offen offset:{32*p}")

ROW_O = 48
def reduce32(v, t):
    reduce16(v)
    e("  s_nop 1")
    e(f"  ds_swizzle_b32 v{t}, v{v} offset:0x401F")
    e("  s_waitcnt lgkmcnt(0)")
    e(f"  v_add_f32 v{v}, v{v}, v{t}")

def rowmac32_pre():
    XX, WR = 48, 64
    e("  v_lshlrev_b32 v3, 10, v1")
    e("  v_lshl_add_u32 v3, v2, 4, v3")
    e("  v_lshlrev_b32 v4, 4, v2")
    for j in range(2):
        e(f"  buffer_load_dwordx4 {vr(XX+4*j,4)}, v3, s[20:23], 0 offen offset:{512*j}")
        e(f"  buffer_load_dwordx4 {vr(WR+4*j,4)}, v4, s[28:31], 0 offen offset:{512*j}")

def rowmac32():
    YR, YI, XX, WR, H, T, D = 16, 32, 48, 64, 80, 112, 116
    O = ROW_O
    e(f"  s_mov_b32 s52, {WS_Y}")
    e(f"  s_mov_b32 s53, {WS_Y + (2<<20)}")
    for j in range(2):
        e(f"  buffer_load_dwordx4 {vr(YR+4*j,4)}, v3, s[24:27], s52 offen offset:{512*j} sc1")
        e(f"  buffer_load_dwordx4 {vr(YI+4*j,4)}, v3, s[24:27], s53 offen offset:{512*j} sc1")
    e("  v_mov_b32 v14, 0")
    e("  v_mov_b32 v15, 0")
    for j in range(2):
        e(f"  s_waitcnt vmcnt({2*(1-j)})")
        for q in range(4):
            i = 4*j + q
            e(f"  v_lshlrev_b32 v{T}, 16, v{YR+i}")
            e(f"  v_and_b32 v{T+1}, 0xffff0000, v{YR+i}")
            e(f"  v_lshlrev_b32 v{T+2}, 16, v{YI+i}")
            e(f"  v_and_b32 v{T+3}, 0xffff0000, v{YI+i}")
            e(f"  v_pk_add_f32 {vr(T,2)}, {vr(T,2)}, {vr(T+2,2)} neg_lo:[0,1] neg_hi:[0,1]")
            e(f"  v_cvt_pk_bf16_f32 v{T}, v{T}, v{T+1}")
            e(f"  v_and_b32 v{T+1}, 0xffff0000, v{T}")
            e(f"  v_lshlrev_b32 v{T}, 16, v{T}")
            e(f"  v_lshlrev_b32 v{T+2}, 16, v{XX+i}")
            e(f"  v_and_b32 v{T+3}, 0xffff0000, v{XX+i}")
            e(f"  v_pk_add_f32 {vr(T,2)}, {vr(T,2)}, {vr(T+2,2)}")
            e(f"  v_cvt_pk_bf16_f32 v{T}, v{T}, v{T+1}")
            e(f"  v_lshlrev_b32 v{H+2*i}, 16, v{T}")
            e(f"  v_and_b32 v{H+2*i+1}, 0xffff0000, v{T}")
            e(f"  v_pk_add_f32 v[14:15], v[14:15], {vr(H+2*i,2)}")
    e("  v_add_f32 v5, v14, v15")
    reduce32(5, 13)
    e("  v_mul_f32 v5, 0x3b000000, v5")
    e("  v_cvt_pk_bf16_f32 v6, v5, v5")
    e("  v_lshlrev_b32 v6, 16, v6")
    e("  v_sub_f32 v8, 0, v6")
    e("  v_mov_b32 v9, v8")
    e("  v_mov_b32 v10, 0")
    e("  v_mov_b32 v11, 0")
    for i in range(8):
        e(f"  v_pk_add_f32 {vr(D+2*i,2)}, {vr(H+2*i,2)}, v[8:9]")
        e(f"  v_pk_fma_f32 v[10:11], {vr(D+2*i,2)}, {vr(D+2*i,2)}, v[10:11]")
    e("  v_add_f32 v10, v10, v11")
    reduce32(10, 13)
    e("  v_sub_f32 v11, v5, v6")
    e("  v_mul_f32 v11, v11, v11")
    e("  v_mul_f32 v10, 0x3b000000, v10")
    e("  v_sub_f32 v10, v10, v11")
    e("  v_max_f32 v10, 0, v10")
    e("  v_cvt_pk_bf16_f32 v10, v10, v10")
    e("  v_lshlrev_b32 v10, 16, v10")
    e("  v_add_f32 v10, 0x3727c5ac, v10")
    e("  v_cvt_pk_bf16_f32 v10, v10, v10")
    e("  v_lshlrev_b32 v10, 16, v10")
    e("  v_sqrt_f32 v10, v10")
    e("  s_nop 0")
    e("  v_cvt_pk_bf16_f32 v10, v10, v10")
    e("  v_lshlrev_b32 v10, 16, v10")
    e("  v_rcp_f32 v10, v10")
    e("  s_nop 0")
    e("  v_mov_b32 v11, v10")
    e("  v_mov_b32 v12, 0")
    for i in range(8):
        e(f"  v_cvt_pk_bf16_f32 v{T}, v{D+2*i}, v{D+2*i+1}")
        e(f"  v_lshlrev_b32 v{D+2*i}, 16, v{T}")
        e(f"  v_and_b32 v{D+2*i+1}, 0xffff0000, v{T}")
        e(f"  v_pk_mul_f32 {vr(D+2*i,2)}, {vr(D+2*i,2)}, v[10:11]")
        e(f"  v_cvt_pk_bf16_f32 v{T}, v{D+2*i}, v{D+2*i+1}")
        e(f"  v_dot2_f32_bf16 v12, v{T}, v{WR+i}, v12")
        e(f"  v_lshlrev_b32 v{D+2*i}, 16, v{T}")
        e(f"  v_and_b32 v{D+2*i+1}, 0xffff0000, v{T}")
        e(f"  v_pk_add_f32 {vr(D+2*i,2)}, {vr(D+2*i,2)}, {vr(H+2*i,2)}")
        e(f"  v_cvt_pk_bf16_f32 v{O+i}, v{D+2*i}, v{D+2*i+1}")
    if not MEGA:
        for j in range(2):
            e(f"  buffer_store_dwordx4 {vr(O+4*j,4)}, v3, s[44:47], 0 offen offset:{512*j}")
    e("  s_nop 3")
    reduce32(12, 13)
    e("  v_cvt_pk_bf16_f32 v12, v12, v12")
    e("  v_lshlrev_b32 v12, 16, v12")
    e("  v_ashrrev_i32 v13, 31, v12")
    e("  v_or_b32 v13, 0x80000000, v13")
    e("  v_xor_b32 v12, v12, v13")
    e("  v_and_b32 v12, 0xffff0000, v12")
    e("  v_sub_u32 v13, 0xffff, v1")
    e("  v_or_b32 v12, v12, v13")

MT_C, MT_R, MT_WD = 0, 256, 8704
MT_G, MT_U, MT_XS = 8704, 8704 + 8192, 8704 + 16384
def poll_end(lbl):
    e("  s_nop 3")
    e("  s_cmp_eq_u64 s[54:55], 0")
    e(f"  s_cbranch_scc1 {lbl}_ok")
    e("  s_add_u32 s53, s53, 1")
    e(f"  s_cmp_gt_u32 s53, {1 << 22}")
    e(f"  s_cbranch_scc1 {lbl}_ok")
    e(f"  s_branch {lbl}")
    lab(f"{lbl}_ok")

def mega_gu_dma():
    e("  s_and_b32 s3, s2, 7")
    e("  s_mul_i32 s3, s3, 28")
    e("  s_lshr_b32 s32, s2, 3")
    e("  s_add_u32 s3, s3, s32")
    e("  s_cmp_ge_u32 s2, 224")
    e("  s_cbranch_scc1 mt_nogu")
    srd(16, 58, 59, 512*1792*2)
    srd(8, 60, 61, 512*1792*2)
    e("  s_lshl_b32 s35, s3, 4")
    e("  s_movk_i32 s32, 3584")
    for ii in range(2):
        e(f"  s_lshl_b32 s33, s15, 7")
        e(f"  s_add_u32 s33, s33, {64*ii}")
        e(f"  v_add_u32 v8, s33, v0")
        e(f"  v_mul_lo_u32 v8, v8, s32")
        e(f"  s_lshl_b32 s34, s15, 11")
        e(f"  s_add_u32 m0, s34, {MT_G + 1024*ii}")
        e("  s_nop 0")
        e(f"  buffer_load_dwordx4 v8, s[16:19], s35 offen lds")
        e(f"  s_add_u32 m0, s34, {MT_U + 1024*ii}")
        e("  s_nop 0")
        e(f"  buffer_load_dwordx4 v8, s[8:11], s35 offen lds")
    lab("mt_nogu")

def mega_tail():
    C = MT_C
    for i in range(8):
        e(f"  v_mov_b32 v{152+i}, v{48+i}")
    e("  v_mov_b32 v151, v1")
    e("  v_mov_b32 v150, v3")
    e("  v_lshl_add_u32 v40, s15, 6, v0")
    e("  v_mov_b32 v16, v12")
    e("  v_mov_b32 v17, v6")
    e("  v_mov_b32 v18, v10")
    e("  v_mov_b32 v19, s68")
    e("  v_lshlrev_b32 v13, 4, v1")
    e("  v_cmp_eq_u32 vcc, 0, v2")
    e("  s_and_saveexec_b64 s[50:51], vcc")
    e(f"  s_mov_b32 s52, {WS_REC}")
    e("  buffer_store_dwordx4 v[16:19], v13, s[24:27], s52 offen sc1")
    e("  s_mov_b64 exec, s[50:51]")
    e("  s_cmp_lg_u32 s2, 255")
    e("  s_cbranch_scc1 mt_nosel")
    e("  v_lshlrev_b32 v13, 4, v40")
    e("  s_mov_b32 s53, 0")
    lab("mt_prec")
    for i in range(8):
        e(f"  s_mov_b32 s52, {WS_REC + 4096*i}")
        e(f"  buffer_load_dwordx4 {vr(64+4*i,4)}, v13, s[24:27], s52 offen sc1")
    e("  v_mov_b32 v14, 0")
    for i in range(8):
        e(f"  s_waitcnt vmcnt({7-i})")
        e(f"  v_xor_b32 v15, s68, v{67+4*i}")
        e("  v_or_b32 v14, v14, v15")
    e("  v_cmp_ne_u32 s[54:55], 0, v14")
    poll_end("mt_prec")
    top8([64+4*i for i in range(8)], range(16, 24), C, "s15")
    e("  v_and_b32 v3, 31, v0")
    e("  v_lshlrev_b32 v3, 2, v3")
    e(f"  ds_read_b32 v24, v3 offset:{C}")
    e("  v_mov_b32 v4, 0")
    for q in range(8):
        e(f"  ds_read_b128 {vr(96+4*q,4)}, v4 offset:{C+16*q}")
    e("  v_mov_b32 v25, 0")
    e("  s_waitcnt lgkmcnt(0)")
    sp = [32, 34, 36, 38]
    for i in range(32 + 3):
        if i < 32:
            e(f"  v_cmp_gt_u32 s[{sp[i%4]}:{sp[i%4]+1}], v{96+i}, v24")
        if i >= 3:
            j = i - 3
            e(f"  v_addc_co_u32 v25, vcc, 0, v25, s[{sp[j%4]}:{sp[j%4]+1}]")
    e("  s_cmp_lg_u32 s15, 0")
    e("  s_cbranch_scc1 mt_nosel")
    e("  v_lshlrev_b32 v3, 3, v25")
    e("  v_mov_b32 v26, v24")
    e("  v_mov_b32 v27, s68")
    e("  v_cmp_gt_u32 vcc, 8, v25")
    e("  v_cmp_gt_u32 s[42:43], 32, v0")
    e("  s_and_b64 vcc, vcc, s[42:43]")
    e("  s_and_saveexec_b64 s[50:51], vcc")
    e(f"  s_mov_b32 s52, {WS_SEL}")
    e("  buffer_store_dwordx2 v[26:27], v3, s[24:27], s52 offen sc1")
    e("  s_mov_b64 exec, s[50:51]")
    lab("mt_nosel")
    e("  s_cmp_lg_u32 s15, 0")
    e("  s_cbranch_scc1 mt_selbar")
    e("  v_and_b32 v3, 7, v0")
    e("  v_lshlrev_b32 v4, 3, v3")
    e("  v_lshlrev_b32 v3, 2, v3")
    e(f"  s_mov_b32 s52, {WS_SEL}")
    e("  s_mov_b32 s53, 0")
    lab("mt_psel")
    e("  buffer_load_dwordx2 v[26:27], v4, s[24:27], s52 offen sc1")
    e("  s_waitcnt vmcnt(0)")
    e("  v_cmp_ne_u32 s[54:55], s68, v27")
    poll_end("mt_psel")
    e(f"  ds_write_b32 v3, v26 offset:{C+128}")
    e("  s_waitcnt lgkmcnt(0)")
    lab("mt_selbar")
    e("  s_barrier")
    stamp(5)
    e("  v_mov_b32 v4, 0")
    e(f"  ds_read_b128 v[16:19], v4 offset:{C+128}")
    e(f"  ds_read_b128 v[20:23], v4 offset:{C+144}")
    e("  v_sub_u32 v5, 0xffff, v151")
    e("  s_waitcnt lgkmcnt(0)")
    e("  s_mov_b64 s[42:43], exec")
    for k in range(8):
        e(f"  v_and_b32 v{16+k}, 0xffff, v{16+k}")
        e(f"  v_cmp_ne_u32 vcc, v{16+k}, v5")
        e("  s_and_b64 s[42:43], s[42:43], vcc")
    e("  s_and_saveexec_b64 s[50:51], s[42:43]")
    e("  s_cbranch_execz mt_nostore")
    for j in range(2):
        e(f"  buffer_store_dwordx4 {vr(152+4*j,4)}, v150, s[44:47], 0 offen offset:{512*j}")
    lab("mt_nostore")
    e("  s_mov_b64 exec, s[50:51]")
    e("  s_cmp_ge_u32 s2, 240")
    e("  s_cbranch_scc1 k2_done")
    e("  s_cmp_ge_u32 s2, 224")
    e("  s_cbranch_scc1 mt_f2")
    e("  v_lshrrev_b32 v4, 5, v40")
    e("  v_and_b32 v5, 31, v40")
    e("  v_lshlrev_b32 v3, 2, v4")
    e(f"  ds_read_b32 v6, v3 offset:{C+128}")
    e("  s_waitcnt lgkmcnt(0)")
    e("  v_and_b32 v6, 0xffff, v6")
    e("  v_sub_u32 v6, 0xffff, v6")
    e("  v_lshlrev_b32 v7, 10, v6")
    e("  v_lshl_add_u32 v7, v5, 4, v7")
    e(f"  s_mov_b32 s52, {WS_Y}")
    e(f"  s_mov_b32 s53, {WS_Y + (2<<20)}")
    YR, YI, XX = 16, 24, 32
    for j in range(2):
        e(f"  buffer_load_dwordx4 {vr(YR+4*j,4)}, v7, s[24:27], s52 offen offset:{512*j} sc1")
        e(f"  buffer_load_dwordx4 {vr(YI+4*j,4)}, v7, s[24:27], s53 offen offset:{512*j} sc1")
        e(f"  buffer_load_dwordx4 {vr(XX+4*j,4)}, v7, s[20:23], 0 offen offset:{512*j}")
    e("  v_lshlrev_b32 v3, 4, v6")
    e(f"  s_mov_b32 s52, {WS_REC}")
    e("  buffer_load_dwordx4 v[44:47], v3, s[24:27], s52 offen sc1")
    e("  s_waitcnt vmcnt(0)")
    e("  v_sub_f32 v54, 0, v45")
    e("  v_mov_b32 v55, v54")
    e("  v_mov_b32 v52, v46")
    e("  v_mov_b32 v53, v46")
    recompute(YR, YI, XX, 8, 54, 52, 64, 80, 56)
    e(f"  v_mul_u32_u24 v3, {XS_STRIDE}, v4")
    e("  v_lshl_add_u32 v3, v5, 4, v3")
    e(f"  ds_write_b128 v3, v[80:83] offset:{MT_XS}")
    e(f"  ds_write_b128 v3, v[84:87] offset:{MT_XS+512}")
    e("  s_waitcnt lgkmcnt(0)")
    e("  s_barrier")
    e("  s_cmp_lg_u32 s15, 0")
    e("  s_cbranch_scc1 k2_done")
    e("  v_and_b32 v3, 7, v0")
    e(f"  v_mul_u32_u24 v3, {XS_STRIDE}, v3")
    e("  v_lshrrev_b32 v4, 4, v0")
    e("  v_lshl_add_u32 v3, v4, 4, v3")
    e("  v_and_b32 v5, 15, v0")
    e("  v_lshrrev_b32 v5, 2, v5")
    e("  v_lshl_add_u32 v5, v4, 3, v5")
    e("  v_lshlrev_b32 v5, 4, v5")
    e("  v_and_b32 v6, 1, v0")
    e("  v_lshl_add_u32 v5, v6, 3, v5")
    e("  v_and_b32 v6, 2, v0")
    e("  v_lshl_add_u32 v5, v6, 12, v5")
    for i in range(4):
        e(f"  v_mov_b32 v{8+i}, 0")
    FA, FB = 16, 80
    for st in range(16):
        e(f"  ds_read_b128 {vr(FA+4*st,4)}, v3 offset:{MT_XS + 64*st}")
        e(f"  ds_read_b64_tr_b16 {vr(FB+4*st,2)}, v5 offset:{MT_G+512*st}")
        e(f"  ds_read_b64_tr_b16 {vr(FB+4*st+2,2)}, v5 offset:{MT_G+512*st+64}")
        if st % 4 == 3:
            e("  s_waitcnt lgkmcnt(0)")
            for s2 in range(st-3, st+1):
                e(f"  v_mfma_f32_16x16x32_bf16 v[8:11], {vr(FA+4*s2,4)}, {vr(FB+4*s2,4)}, v[8:11]")
    e("  s_nop 15")
    for i in range(4):
        e(f"  v_cvt_pk_bf16_f32 v{8+i}, v{8+i}, v{8+i}")
        e(f"  v_lshlrev_b32 v{8+i}, 16, v{8+i}")
    e("  s_nop 1")
    for i in range(4):
        e(f"  v_mov_b32_dpp v{12+i}, v{8+i} row_ror:8 row_mask:0xf bank_mask:0xf")
    for i in range(4):
        e(f"  v_mul_f32 v16, 0xbfb8aa3b, v{8+i}")
        e("  v_exp_f32 v16, v16")
        e("  s_nop 0")
        e("  v_add_f32 v16, 1.0, v16")
        e("  v_rcp_f32 v16, v16")
        e("  s_nop 0")
        e(f"  v_mul_f32 v16, v{8+i}, v16")
        e("  v_cvt_pk_bf16_f32 v16, v16, v16")
        e("  v_lshlrev_b32 v16, 16, v16")
        e(f"  v_mul_f32 v16, v16, v{12+i}")
        e(f"  v_cvt_pk_bf16_f32 v{20+i}, v16, v16")
    e("  s_nop 1")
    for i in range(4):
        e(f"  v_mov_b32_dpp v{24+i}, v{20+i} quad_perm:[1,0,3,2] row_mask:0xf bank_mask:0xf")
    for i in range(4):
        e(f"  v_and_b32 v{20+i}, 0xffff, v{20+i}")
        e(f"  v_and_b32 v{24+i}, 0xffff0000, v{24+i}")
        e(f"  v_or_b32 v{20+i}, v{20+i}, v{24+i}")
        e(f"  v_min_u32 v{20+i}, 0xfffeffff, v{20+i}")
    e("  v_and_b32 v5, 15, v0")
    e("  v_lshlrev_b32 v4, 6, v4")
    e("  v_lshl_add_u32 v4, v5, 1, v4")
    e("  v_lshlrev_b32 v7, 4, v0")
    e("  v_and_b32 v6, 9, v0")
    e("  v_cmp_eq_u32 vcc, 0, v6")
    e("  v_cmp_gt_u32 s[42:43], 32, v0")
    e("  s_and_b64 vcc, vcc, s[42:43]")
    e("  s_and_saveexec_b64 s[50:51], vcc")
    for i in range(4):
        e(f"  ds_write_b32 v4, v{20+i} offset:{MT_R+16*i}")
    e("  s_mov_b64 exec, 0xff")
    e("  s_waitcnt lgkmcnt(0)")
    e(f"  ds_read_b128 v[24:27], v7 offset:{MT_R}")
    e("  s_lshl_b32 s35, s3, 7")
    e(f"  s_add_u32 s35, s35, {WS_GU}")
    e("  s_waitcnt lgkmcnt(0)")
    e("  buffer_store_dwordx4 v[24:27], v7, s[24:27], s35 offen sc1")
    e("  s_mov_b64 exec, -1")
    hstamp(8)
    e("  s_branch k2_done")
    lab("mt_f2")
    e("  s_sub_u32 s49, s2, 224")
    e("  v_lshlrev_b32 v3, 4, v0")
    e("  s_mul_i32 s34, s15, 7168")
    e(f"  s_mul_i32 s33, s49, {4*28672}")
    e("  s_add_u32 s33, s33, s34")
    e(f"  s_add_u32 s33, s33, {WS_WDB}")
    for dsl in range(4):
        for i in range(7):
            e(f"  s_add_u32 m0, s34, {MT_WD + dsl*28672 + 1024*i}")
            e("  s_nop 0")
            e(f"  buffer_load_dwordx4 v3, s[24:27], s33 offen sc1 lds")
            e(f"  s_add_u32 s33, s33, {1024 if i < 6 else 28672 - 6*1024}")
    e("  v_lshrrev_b32 v5, 4, v0")
    e("  v_and_b32 v6, 1, v5")
    e("  v_lshlrev_b32 v6, 4, v6")
    e(f"  ds_read_b128 v[24:27], v6 offset:{C+128}")
    e("  v_and_b32 v6, 15, v0")
    e("  s_lshl_b32 s35, s49, 6")
    e("  s_waitcnt lgkmcnt(0)")
    for i in range(4):
        e(f"  v_and_b32 v{28+i}, 0xffff, v{24+i}")
        e(f"  v_sub_u32 v{28+i}, 0xffff, v{28+i}")
        e(f"  v_lshlrev_b32 v{32+i}, 4, v{28+i}")
        e(f"  v_lshlrev_b32 v{28+i}, 10, v{28+i}")
        e(f"  v_lshl_add_u32 v{28+i}, v6, 1, v{28+i}")
        e(f"  v_add_u32 v{28+i}, s35, v{28+i}")
    E0 = 136
    e("  s_cmp_lg_u32 s15, 0")
    e("  s_cbranch_scc1 mt_noepi")
    e(f"  s_mov_b32 s36, {WS_Y}")
    e(f"  s_mov_b32 s37, {WS_Y + (2<<20)}")
    e(f"  s_mov_b32 s38, {WS_REC}")
    for a in range(2):
        for i in range(4):
            e(f"  buffer_load_ushort v{E0+12*a+i}, v{28+i}, s[24:27], s36 offen offset:{32*a} sc1")
            e(f"  buffer_load_ushort v{E0+4+12*a+i}, v{28+i}, s[24:27], s37 offen offset:{32*a} sc1")
            e(f"  buffer_load_ushort v{E0+8+12*a+i}, v{28+i}, s[20:23], 0 offen offset:{32*a}")
    for i in range(4):
        e(f"  buffer_load_dwordx4 {vr(36+4*i,4)}, v{32+i}, s[24:27], s38 offen sc1")
    lab("mt_noepi")
    e("  v_lshrrev_b32 v7, 2, v6")
    e("  v_lshl_add_u32 v7, v5, 3, v7")
    e("  v_lshlrev_b32 v7, 4, v7")
    e("  v_and_b32 v60, 1, v0")
    e("  v_lshl_add_u32 v7, v60, 3, v7")
    e("  v_and_b32 v60, 2, v0")
    e("  v_mul_u32_u24 v60, 14336, v60")
    e("  v_add_u32 v7, v60, v7")
    e("  v_add_u32 v7, s34, v7")
    e(f"  v_add_u32 v61, {2*28672}, v7")
    for i in range(8):
        e(f"  v_mov_b32 v{8+i}, 0")
    e("  s_waitcnt vmcnt(0)")
    for i in range(4):
        e(f"  v_and_b32 v60, 0xffff0000, v{24+i}")
        e("  v_ashrrev_i32 v62, 31, v60")
        e("  v_not_b32 v62, v62")
        e("  v_or_b32 v62, 0x80000000, v62")
        e("  v_xor_b32 v60, v60, v62")
        e("  v_and_b32 v60, 0xffff0000, v60")
        e("  v_mul_f32 v60, 0xbfb8aa3b, v60")
        e("  v_exp_f32 v60, v60")
        e("  s_nop 0")
        e("  v_add_f32 v60, 1.0, v60")
        e("  v_rcp_f32 v60, v60")
        e("  s_nop 0")
        e("  v_cvt_pk_bf16_f32 v60, v60, v60")
        e(f"  v_lshlrev_b32 v{24+i}, 16, v60")
    for a in range(2):
        for i in range(4):
            r0, r1, r2 = E0+12*a+i, E0+4+12*a+i, E0+8+12*a+i
            e(f"  v_lshlrev_b32 v{r0}, 16, v{r0}")
            e(f"  v_lshlrev_b32 v{r1}, 16, v{r1}")
            e(f"  v_lshlrev_b32 v{r2}, 16, v{r2}")
            e(f"  v_sub_f32 v60, v{r0}, v{r1}")
            e("  v_cvt_pk_bf16_f32 v60, v60, v60")
            e("  v_lshlrev_b32 v60, 16, v60")
            e(f"  v_add_f32 v60, v{r2}, v60")
            e("  v_cvt_pk_bf16_f32 v60, v60, v60")
            e(f"  v_lshlrev_b32 v{r0}, 16, v60")
            e(f"  v_sub_f32 v62, v{r0}, v{37+4*i}")
            e("  v_cvt_pk_bf16_f32 v62, v62, v62")
            e("  v_lshlrev_b32 v62, 16, v62")
            e(f"  v_mul_f32 v62, v62, v{38+4*i}")
            e("  v_cvt_pk_bf16_f32 v62, v62, v62")
            e(f"  v_lshlrev_b32 v{r1}, 16, v62")
    e("  v_and_b32 v4, 7, v0")
    e("  v_lshlrev_b32 v4, 4, v4")
    e("  v_lshl_add_u32 v4, v5, 7, v4")
    e("  v_add_u32 v62, 4096, v4")
    e("  s_mul_i32 s52, s15, 7168")
    e(f"  s_add_u32 s52, s52, {WS_GU}")
    FA = 64
    e("  s_mov_b32 s53, 0")
    lab("mt_pgu")
    for st in range(14):
        if st < 8:
            e(f"  buffer_load_dwordx4 {vr(FA+4*st,4)}, v4, s[24:27], s52 offen offset:{512*st} sc1")
        else:
            e(f"  buffer_load_dwordx4 {vr(FA+4*st,4)}, v62, s[24:27], s52 offen offset:{512*(st-8)} sc1")
    e("  v_mov_b32 v3, 0")
    for st in range(14):
        e(f"  s_waitcnt vmcnt({13-st})")
        e(f"  v_max3_u32 v3, v3, v{FA+4*st}, v{FA+4*st+1}")
        e(f"  v_max3_u32 v3, v3, v{FA+4*st+2}, v{FA+4*st+3}")
    e("  v_cmp_eq_u32 s[54:55], -1, v3")
    poll_end("mt_pgu")
    hstamp(9, 224)
    def rdB(st):
        b = 120 + 8 * (st % 2)
        e(f"  ds_read_b64_tr_b16 {vr(b,2)}, v7 offset:{MT_WD+512*st}")
        e(f"  ds_read_b64_tr_b16 {vr(b+2,2)}, v7 offset:{MT_WD+512*st+64}")
        e(f"  ds_read_b64_tr_b16 {vr(b+4,2)}, v61 offset:{MT_WD+512*st}")
        e(f"  ds_read_b64_tr_b16 {vr(b+6,2)}, v61 offset:{MT_WD+512*st+64}")
    rdB(0)
    for st in range(14):
        b = 120 + 8 * (st % 2)
        if st < 13:
            rdB(st + 1)
            e("  s_waitcnt lgkmcnt(4)")
        else:
            e("  s_waitcnt lgkmcnt(0)")
        e(f"  v_mfma_f32_16x16x32_bf16 v[8:11], {vr(FA+4*st,4)}, {vr(b,4)}, v[8:11]")
        e(f"  v_mfma_f32_16x16x32_bf16 v[12:15], {vr(FA+4*st,4)}, {vr(b+4,4)}, v[12:15]")
        e("  s_nop 3")
    e("  s_nop 15")
    e("  v_lshlrev_b32 v3, 4, v0")
    e("  s_lshl_b32 s33, s15, 11")
    e("  v_add_u32 v3, s33, v3")
    e(f"  ds_write_b128 v3, v[8:11] offset:{MT_R}")
    e(f"  ds_write_b128 v3, v[12:15] offset:{MT_R+1024}")
    e("  s_waitcnt lgkmcnt(0)")
    e("  s_barrier")
    e("  s_cmp_lg_u32 s15, 0")
    e("  s_cbranch_scc1 k2_done")
    e("  v_lshlrev_b32 v3, 4, v0")
    for w in range(1, 4):
        for a in range(2):
            e(f"  ds_read_b128 {vr(72+8*(w-1)+4*a,4)}, v3 offset:{MT_R+2048*w+1024*a}")
    e("  v_cmp_gt_u32 vcc, 32, v0")
    e("  s_and_saveexec_b64 s[50:51], vcc")
    e("  s_waitcnt lgkmcnt(0)")
    for a in range(2):
        for i in range(4):
            y = 8 + 4*a + i
            e(f"  v_add_f32 v{y}, v{y}, v{72+4*a+i}")
            e(f"  v_add_f32 v60, v{80+4*a+i}, v{88+4*a+i}")
            e(f"  v_add_f32 v{y}, v{y}, v60")
            e(f"  v_cvt_pk_bf16_f32 v{y}, v{y}, v{y}")
            e(f"  v_lshlrev_b32 v{y}, 16, v{y}")
            e(f"  v_mul_f32 v{y}, v{y}, v{24+i}")
            e(f"  v_cvt_pk_bf16_f32 v{y}, v{y}, v{y}")
            e(f"  v_lshlrev_b32 v{y}, 16, v{y}")
            e(f"  v_add_f32 v61, v{E0+4+12*a+i}, v{y}")
            e("  v_cvt_pk_bf16_f32 v61, v61, v61")
            e("  v_lshlrev_b32 v61, 16, v61")
            e(f"  v_add_f32 v61, v{E0+12*a+i}, v61")
            e("  v_cvt_pk_bf16_f32 v61, v61, v61")
            e(f"  buffer_store_short v61, v{28+i}, s[44:47], 0 offen offset:{32*a}")
    e("  s_mov_b64 exec, -1")
    hstamp(10, 224)

def k2_epilogue_fused(ACC):
    TB = 49152
    e("  s_nop 15")
    P = 64
    for g in range(8):
        e(f"  v_cvt_pk_bf16_f32 v{P+2*g}, v{ACC+4*g}, v{ACC+4*g+1}")
        e(f"  v_cvt_pk_bf16_f32 v{P+2*g+1}, v{ACC+4*g+2}, v{ACC+4*g+3}")
    e("  s_mul_i32 s30, s15, 4608")
    e(f"  s_add_u32 s30, s30, {TB}")
    e("  v_mul_u32_u24 v18, 144, v16")
    e("  v_lshl_add_u32 v18, v17, 3, v18")
    e("  v_add_u32 v18, s30, v18")
    for g in range(8):
        e(f"  ds_write_b64 v18, {vr(P+2*g,2)} offset:{16*g}")
    e("  v_lshrrev_b32 v19, 3, v0")
    e("  v_and_b32 v22, 7, v0")
    e("  v_mul_u32_u24 v20, 144, v19")
    e("  v_lshl_add_u32 v20, v22, 4, v20")
    e("  v_add_u32 v20, s30, v20")
    e("  s_waitcnt lgkmcnt(0)")
    for q in range(4):
        e(f"  ds_read_b128 {vr(80+4*q,4)}, v20 offset:{8*144*q}")
    e("  s_lshl_b32 s24, s14, 21")
    e(f"  s_add_u32 s24, s24, {WS_Y}")
    e("  s_lshl_b32 s30, s13, 7")
    e("  s_add_u32 s24, s24, s30")
    e("  s_lshl_b32 s30, s12, 7")
    e("  s_lshl_b32 s31, s15, 5")
    e("  s_add_u32 s30, s30, s31")
    e("  v_add_u32 v21, s30, v19")
    e("  v_lshlrev_b32 v21, 10, v21")
    e("  v_lshl_add_u32 v21, v22, 4, v21")
    for q in range(4):
        e(f"  s_waitcnt lgkmcnt({3-q})")
        e(f"  buffer_store_dwordx4 {vr(80+4*q,4)}, v21, s[20:23], s24 offen sc1")
        if q < 3: e("  v_add_u32 v21, 0x2000, v21")
    e("  s_waitcnt vmcnt(0)")
    e("  s_barrier")
    e(f"  s_load_dwordx2 s[4:5], s[0:1], {KA_X}")
    e(f"  s_load_dwordx8 s[56:63], s[0:1], {KA_WR}")
    e(f"  s_load_dwordx2 s[64:65], s[0:1], {KA_OUT}")
    srd(24, 6, 7, 12 << 20)
    e("  s_lshl_b32 s48, s14, 3")
    e("  s_add_u32 s48, s48, s13")
    e("  s_cmp_lg_u32 s15, 0")
    e("  s_cbranch_scc1 k2_noflag")
    e("  s_lshl_b32 s49, s12, 6")
    e("  s_lshl_b32 s50, s48, 2")
    e("  s_add_u32 s49, s49, s50")
    e(f"  s_add_u32 s49, s49, {WS_FLAG}")
    e("  v_mov_b32 v4, s68" if FUSE else "  v_mov_b32 v4, 1")
    e("  v_mov_b32 v5, 0")
    e("  s_mov_b64 s[50:51], exec")
    e("  s_mov_b64 exec, 1")
    e("  buffer_store_dword v4, v5, s[24:27], s49 offen sc1")
    e("  s_mov_b64 exec, s[50:51]")
    lab("k2_noflag")
    e("  s_waitcnt lgkmcnt(0)")
    srd(20, 4, 5, 2 << 20)
    srd(28, 56, 57, 1024)
    srd(44, 64, 65, 2 << 20)
    e("  v_lshrrev_b32 v1, 5, v0")
    e("  v_and_b32 v2, 31, v0")
    e("  s_lshl_b32 s52, s12, 7")
    e("  s_lshl_b32 s53, s48, 3")
    e("  s_add_u32 s52, s52, s53")
    e("  s_lshl_b32 s53, s15, 1")
    e("  s_add_u32 s52, s52, s53")
    e("  v_add_u32 v1, s52, v1")
    rowmac32_pre()
    if MEGA: mega_gu_dma()
    e("  v_and_b32 v7, 15, v0")
    e("  v_lshlrev_b32 v7, 2, v7")
    e("  s_lshl_b32 s49, s12, 6")
    e(f"  s_add_u32 s49, s49, {WS_FLAG}")
    e("  s_mov_b32 s53, 0")
    lab("k2_poll")
    e("  buffer_load_dword v4, v7, s[24:27], s49 offen sc1")
    e("  s_waitcnt vmcnt(0)")
    e("  v_cmp_ne_u32 s[54:55], s68, v4" if FUSE else "  v_cmp_eq_u32 s[54:55], 0, v4")
    e("  s_nop 3")
    e("  s_cmp_eq_u64 s[54:55], 0")
    e("  s_cbranch_scc1 k2_poll_ok")
    e("  s_add_u32 s53, s53, 1")
    e(f"  s_cmp_gt_u32 s53, {1 << 22}")
    e("  s_cbranch_scc1 k2_poll_ok")
    e("  s_branch k2_poll")
    lab("k2_poll_ok")
    stamp(3)
    rowmac32()
    stamp(4)
    if MEGA:
        mega_tail()
        return
    e("  v_lshlrev_b32 v13, 2, v1")
    e("  v_lshlrev_b32 v14, 3, v1")
    e("  v_mov_b32 v7, v10")
    e("  v_cmp_eq_u32 vcc, 0, v2")
    e("  s_and_saveexec_b64 s[50:51], vcc")
    e(f"  s_mov_b32 s52, {WS_KEY}")
    e("  buffer_store_dword v12, v13, s[24:27], s52 offen")
    e(f"  s_mov_b32 s52, {WS_STAT}")
    e("  buffer_store_dwordx2 v[6:7], v14, s[24:27], s52 offen")
    e("  s_mov_b64 exec, s[50:51]")
    if OPT('K2_NOGU'): return
    e("  s_cmp_ge_u32 s15, 2")
    e("  s_cbranch_scc1 k2_done")
    e("  s_cmp_eq_u32 s15, 0")
    e("  s_cselect_b32 s40, s58, s60")
    e("  s_cselect_b32 s41, s59, s61")
    e(f"  s_mov_b32 s42, {512*1792*2}")
    e("  s_mov_b32 s43, 0x00020000")
    e("  s_and_b32 s52, s2, 7")
    e("  s_lshr_b32 s53, s2, 3")
    e("  v_min_u32 v1, 55, v0")
    e("  v_cmp_lt_u32 vcc, 27, v1")
    e("  s_nop 1")
    e("  v_cndmask_b32 v2, 0, 1, vcc")
    e("  v_mul_u32_u24 v3, 28, v2")
    e("  v_sub_u32 v3, v1, v3")
    e("  v_mul_u32_u24 v2, 3584, v2")
    e("  v_lshl_add_u32 v2, v3, 4, v2")
    e("  s_mul_i32 s54, s52, 448")
    e(f"  s_mul_i32 s55, s53, {16*3584}")
    e("  s_add_u32 s54, s54, s55")
    for q in range(8):
        e(f"  buffer_load_dwordx4 {vr(80+4*q,4)}, v2, s[40:43], s54 offen")
        e(f"  s_add_u32 s54, s54, {2*3584}")

def gen_k2():
    NS = K2_NS
    name = "f_kernel" if FUSE else "k2_kernel"
    YBASE = NS * 16384
    if not FUSE:
        kernel_begin(name)
        e("  s_cmp_ge_u32 s2, 256")
        e("  s_cbranch_scc1 k2_done")
        e(f"  s_load_dwordx4 s[8:11], s[0:1], {KA_WSRE}")
        e(f"  s_load_dwordx2 s[6:7], s[0:1], {KA_WS}")
        e(f"  s_load_dwordx2 s[34:35], s[0:1], {KA_WDN}")
    else:
        e("  s_mov_b32 s71, s15")
    e("  s_and_b32 s12, s2, 7")
    e("  s_lshr_b32 s13, s2, 3")
    e("  s_lshr_b32 s14, s12, 2")
    e("  s_and_b32 s12, s12, 3")
    e("  s_lshl_b32 s12, s12, 2")
    e("  s_lshr_b32 s15, s13, 3")
    e("  s_add_u32 s12, s12, s15")
    e("  s_and_b32 s13, s13, 7")
    if FUSE:
        e("  s_mov_b32 s15, s71")
    else:
        e("  v_lshrrev_b32 v1, 6, v0")
        e("  v_and_b32 v0, 63, v0")
        e("  v_readfirstlane_b32 s15, v1")
    e("  v_lshrrev_b32 v2, 3, v0")
    e("  v_and_b32 v3, 7, v0")
    e("  s_waitcnt lgkmcnt(0)")
    e("  s_cmp_eq_u32 s14, 0")
    e("  s_cselect_b32 s16, s8, s10")
    e("  s_cselect_b32 s17, s9, s11")
    e(f"  s_mov_b32 s18, {2048*2048*2}")
    e("  s_mov_b32 s19, 0x00020000")
    srd(20, 6, 7, 9 << 20)
    e("  s_cmp_lt_u32 s15, 4")
    e("  s_cbranch_scc1 k2_consumer")
    if not FUSE:
        e("  s_cmp_lt_u32 s15, 8")
        e("  s_cbranch_scc1 k2_loader")
    if not FUSE: helper_wave()
    lab("k2_loader")
    e("  s_sub_u32 s15, s15, 4")
    for ii in range(4):
        e(f"  s_lshl_b32 s24, s15, 5")
        e(f"  s_add_u32 s24, s24, {8*ii}")
        e(f"  v_add_u32 v10, s24, v2")
        e(f"  v_lshrrev_b32 v11, 1, v10")
        e(f"  v_and_b32 v11, 7, v11")
        e(f"  v_xor_b32 v11, v11, v3")
        e(f"  s_lshl_b32 s24, s12, 7")
        e(f"  v_add_u32 v10, s24, v10")
        e(f"  v_lshlrev_b32 v10, 12, v10")
        e(f"  v_lshl_add_u32 v{4+ii}, v11, 4, v10")
    e("  s_lshl_b32 s24, s15, 11")
    e("  v_lshlrev_b32 v8, 4, v0")
    e("  v_add_u32 v8, s24, v8")
    e("  v_add_u32 v9, 1024, v8")
    e("  s_mov_b32 s25, 0")
    e("  s_lshl_b32 s26, s14, 3")
    e("  s_add_u32 s26, s26, s13")
    e("  s_lshl_b32 s26, s26, 18")
    e("  s_lshl_b32 s27, s15, 12")
    e("  s_lshl_b32 s28, s15, 11")
    e(f"  s_add_u32 s28, s28, {YBASE}")
    YSC = " sc1" if FUSE else ""
    def dmaY(slot, so="s26"):
        for i in range(2):
            e(f"  s_add_u32 m0, s28, {slot*8192 + i*1024}")
            e("  s_nop 0")
            e(f"  buffer_load_dwordx4 v{8+i}, s[20:23], {so} offen{YSC} lds")
    def dmaW(slot):
        for i in range(4):
            e(f"  s_add_u32 m0, s27, {slot*16384 + i*1024}")
            e("  s_nop 0")
            e(f"  buffer_load_dwordx4 v{4+i}, s[16:19], s25 offen lds")
    def adv():
        e("  s_add_u32 s25, s25, 128")
        e("  s_and_b32 s25, s25, 4095")
        e("  s_lshl_b32 s29, s25, 6")
        e("  s_add_u32 s26, s33, s29")
    def dma(slot):
        dmaY(slot); dmaW(slot); adv()
    e("  s_mov_b32 s33, s26")
    e(f"  s_mul_i32 s25, s13, {128*OPT('K2_ROT', 4)}")
    if OPT('K2_ROTT', 0):
        e("  s_and_b32 s29, s12, 3")
        e(f"  s_mul_i32 s29, s29, {128*OPT('K2_ROTT', 0)}")
        e("  s_add_u32 s25, s25, s29")
    if OPT('K2_ROTX', 0):
        e("  s_and_b32 s29, s2, 7")
        e(f"  s_mul_i32 s29, s29, {64*OPT('K2_ROTX', 0)}")
        e("  s_and_b32 s29, s29, 0xf80")
        e("  s_add_u32 s25, s25, s29")
    e("  s_and_b32 s25, s25, 4095")
    e("  s_lshl_b32 s29, s25, 6")
    e("  s_add_u32 s26, s33, s29")
    if not FUSE:
        for st in range(NS):
            dma(st)
        e(f"  s_waitcnt vmcnt({6*(NS-1)})")
        e("  s_barrier")
        for ks in range(31):
            ahead = min(ks + NS - 1, 31) - (ks + 1)
            e(f"  s_waitcnt vmcnt({6*ahead})")
            e("  s_barrier")
            if ks + NS < 32:
                dma(ks % NS)
    else:
        e("  s_mov_b32 s30, s25")
        e("  s_waitcnt vmcnt(0)")
        e("  s_barrier")
        PRE = OPT('F_PRE', 6)
        for st in range(PRE):
            dmaW(st); adv()
        e("  s_barrier")
        for st in range(PRE):
            e("  s_lshl_b32 s29, s30, 6")
            e("  s_add_u32 s31, s33, s29")
            dmaY(st, "s31")
            e("  s_add_u32 s30, s30, 128")
            e("  s_and_b32 s30, s30, 4095")
        for st in range(PRE, NS):
            dma(st)
        e(f"  s_waitcnt vmcnt({2*(PRE-1) + 6*(NS-PRE)})")
        e("  s_barrier")
        for ks in range(31):
            if ks + 1 <= PRE - 1:
                allowed = 2 * (PRE - 1 - (ks + 1)) + 6 * (NS - PRE) + 6 * ks
            else:
                allowed = 6 * (min(ks + NS - 1, 31) - (ks + 1))
            e(f"  s_waitcnt vmcnt({allowed})")
            e("  s_barrier")
            if ks + NS < 32:
                dma(ks % NS)
    e("  s_branch k2_done")
    lab("k2_consumer")
    if FUSE:
        e("  s_cmp_lg_u32 s15, 0")
        e("  s_cbranch_scc1 f_noep")
        get_epoch("co")
        e("  v_mov_b32 v4, s68")
        e(f"  v_mov_b32 v5, {K2_NS*24576}")
        e("  ds_write_b32 v5, v4")
        e("  s_waitcnt lgkmcnt(0)")
        lab("f_noep")
        e("  s_waitcnt vmcnt(0)")
        e("  s_barrier")
        e("  s_cmp_lg_u32 s15, 0")
        e("  s_cbranch_scc1 f_noflagA")
        e("  v_mov_b32 v4, s68")
        e("  v_mov_b32 v5, 0")
        e("  s_mov_b64 s[36:37], exec")
        e("  s_mov_b64 exec, 1")
        e("  buffer_store_dword v4, v5, s[20:23], s70 offen sc1")
        e("  s_mov_b64 exec, s[36:37]")
        lab("f_noflagA")
        e(f"  v_mov_b32 v158, {K2_NS*24576}")
        e("  ds_read_b32 v159, v158")
        e("  s_waitcnt lgkmcnt(0)")
        e("  v_readfirstlane_b32 s68, v159")
        if OPT('F_LPF', 0):
            e("  s_cmp_lt_u32 s15, 2")
            e("  s_cbranch_scc1 f_nolpf")
            e("  s_and_b32 s36, s2, 3")
            e("  s_lshl_b32 s36, s36, 21")
            e("  s_lshr_b32 s37, s2, 3")
            e("  s_lshl_b32 s37, s37, 16")
            e("  s_add_u32 s36, s36, s37")
            e("  s_and_b32 s37, s15, 1")
            e("  s_lshl_b32 s37, s37, 15")
            e("  s_add_u32 s36, s36, s37")
            e("  v_lshlrev_b32 v10, 4, v0")
            for q in range(32):
                e(f"  buffer_load_dwordx4 v[160:163], v10, s[16:19], s36 offen")
                e("  s_add_u32 s36, s36, 1024")
            lab("f_nolpf")
        e("  s_cmp_lg_u32 s15, 1")
        e("  s_cbranch_scc1 f_pollA_ok")
        e("  s_lshl_b32 s31, s14, 2")
        e("  s_lshr_b32 s32, s13, 1")
        e("  s_add_u32 s31, s31, s32")
        e("  s_lshl_b32 s31, s31, 7")
        e(f"  s_add_u32 s31, s31, {WS_FA}")
        e("  v_and_b32 v10, 31, v0")
        e("  v_lshlrev_b32 v10, 2, v10")
        e("  s_mov_b32 s69, 0")
        lab("f_pollA")
        e("  buffer_load_dword v11, v10, s[20:23], s31 offen sc1")
        e("  s_waitcnt vmcnt(0)")
        e("  v_cmp_ne_u32 s[36:37], s68, v11")
        e("  s_nop 3")
        e("  s_cmp_eq_u64 s[36:37], 0")
        e("  s_cbranch_scc1 f_pollA_ok")
        e("  s_add_u32 s69, s69, 1")
        e(f"  s_cmp_gt_u32 s69, {1 << 22}")
        e("  s_cbranch_scc1 f_pollA_ok")
        e("  s_branch f_pollA")
        lab("f_pollA_ok")
        stamp(1)
        e("  s_barrier")
    e("  v_and_b32 v16, 31, v0")
    e("  v_lshrrev_b32 v17, 5, v0")
    e("  s_lshl_b32 s24, s15, 5")
    e("  v_add_u32 v18, s24, v16")
    e("  v_lshrrev_b32 v19, 1, v18")
    e("  v_and_b32 v19, 7, v19")
    e("  v_xor_b32 v19, v19, v17")
    e("  v_lshlrev_b32 v18, 7, v18")
    e("  v_lshl_add_u32 v20, v19, 4, v18")
    for kk in range(1, 4):
        e(f"  v_xor_b32 v{20+kk}, {32*kk}, v20")
    for kk in range(4):
        e(f"  v_add_u32 v{28+kk}, 0x10000, v{20+kk}")
    e("  v_lshrrev_b32 v19, 1, v16")
    e("  v_and_b32 v19, 7, v19")
    e("  v_xor_b32 v19, v19, v17")
    e("  v_lshlrev_b32 v18, 7, v16")
    e("  v_lshl_add_u32 v24, v19, 4, v18")
    e(f"  v_add_u32 v24, {YBASE}, v24")
    for kk in range(1, 4):
        e(f"  v_xor_b32 v{24+kk}, {32*kk}, v24")
    ACC = 32
    for i in range(32):
        e(f"  v_mov_b32 v{ACC+i}, 0")
    def FW(st): return 64 + 48 * (st % 2)
    def FY(st): return 80 + 48 * (st % 2)
    def rd(st, kk):
        slot = st % NS
        wb = 20 if slot < 4 else 28
        e(f"  ds_read_b128 {vr(FW(st)+4*kk,4)}, v{wb+kk} offset:{16384*(slot%4)}")
        e(f"  ds_read_b128 {vr(FY(st)+8*kk,4)}, v{24+kk} offset:{8192*slot}")
        e(f"  ds_read_b128 {vr(FY(st)+8*kk+4,4)}, v{24+kk} offset:{8192*slot+4096}")
    e("  s_barrier")
    stamp(2)
    for kk in range(4):
        rd(0, kk)
    def mf(st, kk, half):
        e(f"  v_mfma_f32_32x32x16_bf16 {vr(ACC+16*half,16)}, {vr(FY(st)+8*kk+4*half,4)}, {vr(FW(st)+4*kk,4)}, {vr(ACC+16*half,16)}")
    for ks in range(32):
        more = ks + 1 < 32
        e("  s_waitcnt lgkmcnt(0)")
        if more and not OPT('K2_NOBAR'):
            e("  s_barrier")
        if OPT('K2_NOBAR') == 2: continue
        r = (lambda kk: rd(ks + 1, kk)) if more else (lambda kk: None)
        mf(ks, 0, 0); r(0); mf(ks, 0, 1); r(1)
        mf(ks, 1, 0); r(2); mf(ks, 1, 1); r(3)
        mf(ks, 2, 0); mf(ks, 2, 1)
        mf(ks, 3, 0); mf(ks, 3, 1)
    stamp(6)
    if not OPT('K2T1', 1):
        k2_epilogue_plain(ACC)
    else:
        k2_epilogue_fused(ACC)
    lab("k2_done")
    kernel_end()
    e("  s_endpgm")
    kernel_desc(name, 164 if FUSE else 160)

def gen_t1():
    name = "t1_kernel"
    kernel_begin(name)
    e("  s_cmp_ge_u32 s2, 256")
    e("  s_cbranch_scc1 t1_done")
    e(f"  s_load_dwordx2 s[4:5], s[0:1], {KA_X}")
    e(f"  s_load_dwordx2 s[6:7], s[0:1], {KA_WS}")
    e(f"  s_load_dwordx2 s[8:9], s[0:1], {KA_WR}")
    e(f"  s_load_dwordx2 s[10:11], s[0:1], {KA_OUT}")
    if OPT('T1_PF', 1):
        e(f"  s_load_dwordx4 s[32:35], s[0:1], {KA_WG}")
        e("  v_lshrrev_b32 v1, 6, v0")
        e("  s_nop 0")
        e("  v_readfirstlane_b32 s3, v1")
        e("  s_cmp_lg_u32 s3, 2")
        e("  s_cbranch_scc1 t1_main")
        e("  s_waitcnt lgkmcnt(0)")
        srd(40, 32, 33, 512*1792*2)
        srd(44, 34, 35, 512*1792*2)
        e("  v_and_b32 v0, 63, v0")
        e("  s_and_b32 s52, s2, 7")
        e("  s_lshr_b32 s53, s2, 3")
        e("  v_min_u32 v1, 55, v0")
        e("  v_cmp_lt_u32 vcc, 27, v1")
        e("  v_cndmask_b32 v2, 0, 1, vcc")
        e("  v_mul_u32_u24 v3, 28, v2")
        e("  v_sub_u32 v3, v1, v3")
        e("  v_mul_u32_u24 v2, 3584, v2")
        e("  v_lshl_add_u32 v2, v3, 4, v2")
        e("  s_mul_i32 s54, s52, 448")
        e(f"  s_mul_i32 s55, s53, {16*3584}")
        e("  s_add_u32 s54, s54, s55")
        for q in range(8):
            e(f"  buffer_load_dwordx4 {vr(8+8*q,4)}, v2, s[40:43], s54 offen")
            e(f"  buffer_load_dwordx4 {vr(12+8*q,4)}, v2, s[44:47], s54 offen")
            e(f"  s_add_u32 s54, s54, {2*3584}")
        e("  s_branch t1_done")
        lab("t1_main")
    e("  v_lshrrev_b32 v1, 4, v0")
    e("  v_and_b32 v2, 15, v0")
    e("  s_lshl_b32 s3, s2, 3")
    e("  v_add_u32 v1, s3, v1")
    e("  v_lshlrev_b32 v3, 10, v1")
    e("  v_lshl_add_u32 v3, v2, 4, v3")
    e("  v_lshlrev_b32 v4, 4, v2")
    e("  s_waitcnt lgkmcnt(0)")
    srd(12, 4, 5, 2 << 20)
    srd(16, 6, 7, 9 << 20)
    srd(20, 8, 9, 1024)
    srd(24, 10, 11, 2 << 20)
    e(f"  s_mov_b32 s28, {WS_Y}")
    e(f"  s_mov_b32 s29, {WS_Y + (2<<20)}")
    YR, YI, XX, WR = 16, 32, 48, 64
    for j in range(4):
        e(f"  buffer_load_dwordx4 {vr(YR+4*j,4)}, v3, s[16:19], s28 offen offset:{256*j}")
        e(f"  buffer_load_dwordx4 {vr(YI+4*j,4)}, v3, s[16:19], s29 offen offset:{256*j}")
        e(f"  buffer_load_dwordx4 {vr(XX+4*j,4)}, v3, s[12:15], 0 offen offset:{256*j}")
    for j in range(4):
        e(f"  buffer_load_dwordx4 {vr(WR+4*j,4)}, v4, s[20:23], 0 offen offset:{256*j}")
    H = 80
    T = 112
    e("  v_mov_b32 v14, 0")
    e("  v_mov_b32 v15, 0")
    for j in range(4):
        e(f"  s_waitcnt vmcnt({4 + 3*(3-j)})")
        for q in range(4):
            i = 4*j + q
            e(f"  v_lshlrev_b32 v{T}, 16, v{YR+i}")
            e(f"  v_and_b32 v{T+1}, 0xffff0000, v{YR+i}")
            e(f"  v_lshlrev_b32 v{T+2}, 16, v{YI+i}")
            e(f"  v_and_b32 v{T+3}, 0xffff0000, v{YI+i}")
            e(f"  v_pk_add_f32 {vr(T,2)}, {vr(T,2)}, {vr(T+2,2)} neg_lo:[0,1] neg_hi:[0,1]")
            e(f"  v_cvt_pk_bf16_f32 v{T}, v{T}, v{T+1}")
            e(f"  v_and_b32 v{T+1}, 0xffff0000, v{T}")
            e(f"  v_lshlrev_b32 v{T}, 16, v{T}")
            e(f"  v_lshlrev_b32 v{T+2}, 16, v{XX+i}")
            e(f"  v_and_b32 v{T+3}, 0xffff0000, v{XX+i}")
            e(f"  v_pk_add_f32 {vr(T,2)}, {vr(T,2)}, {vr(T+2,2)}")
            e(f"  v_cvt_pk_bf16_f32 v{T}, v{T}, v{T+1}")
            e(f"  v_lshlrev_b32 v{H+2*i}, 16, v{T}")
            e(f"  v_and_b32 v{H+2*i+1}, 0xffff0000, v{T}")
            e(f"  v_pk_add_f32 v[14:15], v[14:15], {vr(H+2*i,2)}")
    e("  v_add_f32 v5, v14, v15")
    reduce16(5)
    e("  v_mul_f32 v5, 0x3b000000, v5")
    e("  v_cvt_pk_bf16_f32 v6, v5, v5")
    e("  v_lshlrev_b32 v6, 16, v6")
    e("  v_sub_f32 v8, 0, v6")
    e("  v_mov_b32 v9, v8")
    e("  v_mov_b32 v10, 0")
    e("  v_mov_b32 v11, 0")
    D = 116
    for i in range(16):
        e(f"  v_pk_add_f32 {vr(D+2*i,2)}, {vr(H+2*i,2)}, v[8:9]")
        e(f"  v_pk_fma_f32 v[10:11], {vr(D+2*i,2)}, {vr(D+2*i,2)}, v[10:11]")
    e("  v_add_f32 v10, v10, v11")
    reduce16(10)
    e("  v_sub_f32 v11, v5, v6")
    e("  v_mul_f32 v11, v11, v11")
    e("  v_mul_f32 v10, 0x3b000000, v10")
    e("  v_sub_f32 v10, v10, v11")
    e("  v_max_f32 v10, 0, v10")
    e("  v_cvt_pk_bf16_f32 v10, v10, v10")
    e("  v_lshlrev_b32 v10, 16, v10")
    e("  v_add_f32 v10, 0x3727c5ac, v10")
    e("  v_cvt_pk_bf16_f32 v10, v10, v10")
    e("  v_lshlrev_b32 v10, 16, v10")
    e("  v_sqrt_f32 v10, v10")
    e("  s_nop 0")
    e("  v_cvt_pk_bf16_f32 v10, v10, v10")
    e("  v_lshlrev_b32 v10, 16, v10")
    e("  v_rcp_f32 v10, v10")
    e("  s_nop 0")
    e("  v_mov_b32 v11, v10")
    e("  v_mov_b32 v12, 0")
    e("  s_waitcnt vmcnt(0)")
    O = 16
    for i in range(16):
        e(f"  v_cvt_pk_bf16_f32 v{T}, v{D+2*i}, v{D+2*i+1}")
        e(f"  v_lshlrev_b32 v{D+2*i}, 16, v{T}")
        e(f"  v_and_b32 v{D+2*i+1}, 0xffff0000, v{T}")
        e(f"  v_pk_mul_f32 {vr(D+2*i,2)}, {vr(D+2*i,2)}, v[10:11]")
        e(f"  v_cvt_pk_bf16_f32 v{T}, v{D+2*i}, v{D+2*i+1}")
        e(f"  v_dot2_f32_bf16 v12, v{T}, v{WR+i}, v12")
        e(f"  v_lshlrev_b32 v{D+2*i}, 16, v{T}")
        e(f"  v_and_b32 v{D+2*i+1}, 0xffff0000, v{T}")
        e(f"  v_pk_add_f32 {vr(D+2*i,2)}, {vr(D+2*i,2)}, {vr(H+2*i,2)}")
        e(f"  v_cvt_pk_bf16_f32 v{O+i}, v{D+2*i}, v{D+2*i+1}")
    for j in range(4):
        e(f"  buffer_store_dwordx4 {vr(O+4*j,4)}, v3, s[24:27], 0 offen offset:{256*j}")
    e("  s_nop 3")
    reduce16(12)
    e("  v_cvt_pk_bf16_f32 v12, v12, v12")
    e("  v_lshlrev_b32 v12, 16, v12")
    e("  v_ashrrev_i32 v13, 31, v12")
    e("  v_or_b32 v13, 0x80000000, v13")
    e("  v_xor_b32 v12, v12, v13")
    e("  v_and_b32 v12, 0xffff0000, v12")
    e("  v_sub_u32 v13, 0xffff, v1")
    e("  v_or_b32 v12, v12, v13")
    e("  v_cmp_eq_u32 vcc, 0, v2")
    e("  s_and_saveexec_b64 s[30:31], vcc")
    e("  v_lshlrev_b32 v13, 2, v1")
    e(f"  s_mov_b32 s28, {WS_KEY}")
    e("  buffer_store_dword v12, v13, s[16:19], s28 offen")
    e("  v_lshlrev_b32 v13, 3, v1")
    e("  v_mov_b32 v7, v10")
    e(f"  s_mov_b32 s28, {WS_STAT}")
    e("  buffer_store_dwordx2 v[6:7], v13, s[16:19], s28 offen")
    lab("t1_done")
    kernel_end()
    e("  s_endpgm")
    kernel_desc(name, 148)

def recompute(YR, YI, XX, nd, NEGM, RINV, HOUT, XNOUT, T):
    for i in range(nd):
        e(f"  v_lshlrev_b32 v{T}, 16, v{YR+i}")
        e(f"  v_and_b32 v{T+1}, 0xffff0000, v{YR+i}")
        e(f"  v_lshlrev_b32 v{T+2}, 16, v{YI+i}")
        e(f"  v_and_b32 v{T+3}, 0xffff0000, v{YI+i}")
        e(f"  v_pk_add_f32 {vr(T,2)}, {vr(T,2)}, {vr(T+2,2)} neg_lo:[0,1] neg_hi:[0,1]")
        e(f"  v_cvt_pk_bf16_f32 v{T}, v{T}, v{T+1}")
        e(f"  v_and_b32 v{T+1}, 0xffff0000, v{T}")
        e(f"  v_lshlrev_b32 v{T}, 16, v{T}")
        e(f"  v_lshlrev_b32 v{T+2}, 16, v{XX+i}")
        e(f"  v_and_b32 v{T+3}, 0xffff0000, v{XX+i}")
        e(f"  v_pk_add_f32 {vr(T,2)}, {vr(T,2)}, {vr(T+2,2)}")
        e(f"  v_cvt_pk_bf16_f32 v{T}, v{T}, v{T+1}")
        e(f"  v_lshlrev_b32 v{HOUT+2*i}, 16, v{T}")
        e(f"  v_and_b32 v{HOUT+2*i+1}, 0xffff0000, v{T}")
        e(f"  v_pk_add_f32 {vr(T,2)}, {vr(HOUT+2*i,2)}, {vr(NEGM,2)}")
        e(f"  v_cvt_pk_bf16_f32 v{T}, v{T}, v{T+1}")
        e(f"  v_and_b32 v{T+1}, 0xffff0000, v{T}")
        e(f"  v_lshlrev_b32 v{T}, 16, v{T}")
        e(f"  v_pk_mul_f32 {vr(T,2)}, {vr(T,2)}, {vr(RINV,2)}")
        e(f"  v_cvt_pk_bf16_f32 v{XNOUT+i}, v{T}, v{T+1}")

XS_STRIDE = 1040
def gen_t2():
    name = "t2_kernel"
    kernel_begin(name)
    LDS_G, LDS_U, LDS_XS, LDS_C = 0, 8192, 16384, 16384 + 8*XS_STRIDE
    e("  s_cmp_ge_u32 s2, 224")
    e("  s_cbranch_scc1 t2_done")
    e(f"  s_load_dwordx2 s[4:5], s[0:1], {KA_X}")
    e(f"  s_load_dwordx2 s[6:7], s[0:1], {KA_WS}")
    e(f"  s_load_dwordx4 s[8:11], s[0:1], {KA_WG}")
    e("  s_and_b32 s3, s2, 7")
    e("  s_mul_i32 s3, s3, 28")
    e("  s_lshr_b32 s12, s2, 3")
    e("  s_add_u32 s3, s3, s12")
    e("  v_mov_b32 v40, v0")
    e("  v_lshrrev_b32 v1, 6, v0")
    e("  v_and_b32 v0, 63, v0")
    e("  v_readfirstlane_b32 s13, v1")
    e("  s_waitcnt lgkmcnt(0)")
    srd(16, 4, 5, 2 << 20)
    srd(20, 6, 7, 9 << 20)
    srd(24, 8, 9, 512*1792*2)
    srd(28, 10, 11, 512*1792*2)
    e("  v_lshlrev_b32 v2, 5, v40")
    e(f"  s_mov_b32 s14, {WS_KEY}")
    e("  buffer_load_dwordx4 v[8:11], v2, s[20:23], s14 offen")
    e("  buffer_load_dwordx4 v[12:15], v2, s[20:23], s14 offen offset:16")
    e("  s_lshl_b32 s15, s3, 4")
    e("  s_movk_i32 s32, 3584")
    for ii in range(2):
        e(f"  s_lshl_b32 s33, s13, 7")
        e(f"  s_add_u32 s33, s33, {64*ii}")
        e(f"  v_add_u32 v3, s33, v0")
        e(f"  v_mul_lo_u32 v3, v3, s32")
        e(f"  s_lshl_b32 s34, s13, 11")
        e(f"  s_add_u32 m0, s34, {LDS_G + 1024*ii}")
        e("  s_nop 0")
        e(f"  buffer_load_dwordx4 v3, s[24:27], s15 offen lds")
        e(f"  s_add_u32 m0, s34, {LDS_U + 1024*ii}")
        e("  s_nop 0")
        e(f"  buffer_load_dwordx4 v3, s[28:31], s15 offen lds")
    stamp(1)
    e("  s_waitcnt vmcnt(4)")
    stamp(2)
    e("  v_mov_b32 v20, 0")
    for rnd in range(8):
        e("  v_max3_u32 v16, v8, v9, v10")
        e("  v_max3_u32 v17, v11, v12, v13")
        e("  v_max3_u32 v16, v16, v14, v15")
        e("  v_max_u32 v16, v16, v17")
        e("  s_nop 1")
        e("  v_max_u32_dpp v16, v16, v16 quad_perm:[1,0,3,2] row_mask:0xf bank_mask:0xf")
        e("  s_nop 1")
        e("  v_max_u32_dpp v16, v16, v16 quad_perm:[2,3,0,1] row_mask:0xf bank_mask:0xf")
        e("  s_nop 1")
        e("  v_max_u32_dpp v16, v16, v16 row_half_mirror row_mask:0xf bank_mask:0xf")
        e("  s_nop 1")
        e("  v_max_u32_dpp v16, v16, v16 row_mirror row_mask:0xf bank_mask:0xf")
        e("  s_nop 1")
        e("  v_readlane_b32 s36, v16, 0")
        e("  v_readlane_b32 s37, v16, 16")
        e("  v_readlane_b32 s38, v16, 32")
        e("  v_readlane_b32 s39, v16, 48")
        e("  s_max_u32 s36, s36, s37")
        e("  s_max_u32 s38, s38, s39")
        e("  s_max_u32 s36, s36, s38")
        e(f"  v_writelane_b32 v20, s36, {rnd}")
        if rnd < 7:
            for k in range(8):
                e(f"  v_cmp_ne_u32 vcc, s36, v{8+k}")
                e("  s_nop 1")
                e(f"  v_cndmask_b32 v{8+k}, 0, v{8+k}, vcc")
    e("  s_lshl_b32 s33, s13, 5")
    e(f"  s_add_u32 s33, s33, {LDS_C}")
    e("  v_lshlrev_b32 v3, 2, v0")
    e("  v_add_u32 v3, s33, v3")
    e("  v_cmp_gt_u32 vcc, 8, v0")
    e("  s_and_saveexec_b64 s[40:41], vcc")
    e("  ds_write_b32 v3, v20")
    e("  s_mov_b64 exec, s[40:41]")
    e("  s_waitcnt lgkmcnt(0)")
    e("  s_barrier")
    e("  v_and_b32 v3, 31, v0")
    e("  v_lshlrev_b32 v3, 2, v3")
    e(f"  ds_read_b32 v21, v3 offset:{LDS_C}")
    e("  v_mov_b32 v22, 0")
    e("  s_waitcnt lgkmcnt(0)")
    for i in range(32):
        e(f"  v_readlane_b32 s36, v21, {i}")
        e("  s_nop 1")
        e("  v_cmp_gt_u32 vcc, s36, v21")
        e("  s_nop 1")
        e("  v_addc_co_u32 v22, vcc, 0, v22, vcc")
    e("  v_cmp_gt_u32 vcc, 8, v22")
    e("  v_cmp_gt_u32 s[42:43], 32, v0")
    e("  s_and_b64 vcc, vcc, s[42:43]")
    e("  v_lshlrev_b32 v3, 2, v22")
    e("  s_and_saveexec_b64 s[40:41], vcc")
    e(f"  ds_write_b32 v3, v21 offset:{LDS_C+128}")
    e("  s_mov_b64 exec, s[40:41]")
    e("  s_waitcnt lgkmcnt(0)")
    e("  s_barrier")
    stamp(3)
    e("  v_lshrrev_b32 v4, 5, v40")
    e("  v_and_b32 v5, 31, v40")
    e("  v_lshlrev_b32 v3, 2, v4")
    e(f"  ds_read_b32 v6, v3 offset:{LDS_C+128}")
    e("  s_waitcnt lgkmcnt(0)")
    e("  s_cmp_lg_u32 s3, 0")
    e("  s_cbranch_scc1 t2_nopub")
    e("  v_cmp_eq_u32 vcc, 0, v5")
    e("  s_and_saveexec_b64 s[40:41], vcc")
    e(f"  s_mov_b32 s14, {WS_IDX}")
    e("  buffer_store_dword v6, v3, s[20:23], s14 offen")
    e("  s_mov_b64 exec, s[40:41]")
    lab("t2_nopub")
    e("  v_and_b32 v6, 0xffff, v6")
    e("  v_sub_u32 v6, 0xffff, v6")
    e("  v_lshlrev_b32 v7, 10, v6")
    e("  v_lshl_add_u32 v7, v5, 4, v7")
    e(f"  s_mov_b32 s14, {WS_Y}")
    e(f"  s_mov_b32 s15, {WS_Y + (2<<20)}")
    YR, YI, XX = 24, 32, 44
    for j in range(2):
        e(f"  buffer_load_dwordx4 {vr(YR+4*j,4)}, v7, s[20:23], s14 offen offset:{512*j}")
        e(f"  buffer_load_dwordx4 {vr(YI+4*j,4)}, v7, s[20:23], s15 offen offset:{512*j}")
        e(f"  buffer_load_dwordx4 {vr(XX+4*j,4)}, v7, s[16:19], 0 offen offset:{512*j}")
    e("  v_lshlrev_b32 v3, 3, v6")
    e(f"  s_mov_b32 s14, {WS_STAT}")
    e("  buffer_load_dwordx2 v[52:53], v3, s[20:23], s14 offen")
    e("  s_waitcnt vmcnt(0)")
    stamp(4)
    e("  v_sub_f32 v54, 0, v52")
    e("  v_mov_b32 v55, v54")
    e("  v_mov_b32 v52, v53")
    recompute(YR, YI, XX, 8, 54, 52, 64, 80, 56)
    e(f"  v_mul_u32_u24 v3, {XS_STRIDE}, v4")
    e("  v_lshl_add_u32 v3, v5, 4, v3")
    e(f"  ds_write_b128 v3, v[80:83] offset:{LDS_XS}")
    e(f"  ds_write_b128 v3, v[84:87] offset:{LDS_XS+512}")
    e("  s_waitcnt lgkmcnt(0)")
    e("  s_barrier")
    e("  s_cmp_lg_u32 s13, 0")
    e("  s_cbranch_scc1 t2_done")
    stamp(5)
    e("  v_and_b32 v3, 7, v0")
    e(f"  v_mul_u32_u24 v3, {XS_STRIDE}, v3")
    e("  v_lshrrev_b32 v4, 4, v0")
    e("  v_lshl_add_u32 v3, v4, 4, v3")
    e("  v_and_b32 v5, 15, v0")
    e("  v_lshrrev_b32 v5, 2, v5")
    e("  v_lshl_add_u32 v5, v4, 3, v5")
    e("  v_lshlrev_b32 v5, 4, v5")
    e("  v_and_b32 v6, 1, v0")
    e("  v_lshl_add_u32 v5, v6, 3, v5")
    e("  v_and_b32 v6, 2, v0")
    e("  v_lshl_add_u32 v5, v6, 12, v5")
    for i in range(4):
        e(f"  v_mov_b32 v{8+i}, 0")
    FA, FB = 64, 128
    for st in range(16):
        e(f"  ds_read_b128 {vr(FA+4*st,4)}, v3 offset:{LDS_XS + 64*st}")
        e(f"  ds_read_b64_tr_b16 {vr(FB+4*st,2)}, v5 offset:{512*st}")
        e(f"  ds_read_b64_tr_b16 {vr(FB+4*st+2,2)}, v5 offset:{512*st+64}")
        if st % 4 == 3:
            e("  s_waitcnt lgkmcnt(0)")
            for s2 in range(st-3, st+1):
                e(f"  v_mfma_f32_16x16x32_bf16 v[8:11], {vr(FA+4*s2,4)}, {vr(FB+4*s2,4)}, v[8:11]")
    e("  s_nop 15")
    for i in range(4):
        e(f"  v_cvt_pk_bf16_f32 v{8+i}, v{8+i}, v{8+i}")
        e(f"  v_lshlrev_b32 v{8+i}, 16, v{8+i}")
    e("  s_nop 1")
    for i in range(4):
        e(f"  v_mov_b32_dpp v{12+i}, v{8+i} row_ror:8 row_mask:0xf bank_mask:0xf")
    for i in range(4):
        e(f"  v_mul_f32 v16, 0xbfb8aa3b, v{8+i}")
        e("  v_exp_f32 v16, v16")
        e("  s_nop 0")
        e("  v_add_f32 v16, 1.0, v16")
        e("  v_rcp_f32 v16, v16")
        e("  s_nop 0")
        e(f"  v_mul_f32 v16, v{8+i}, v16")
        e("  v_cvt_pk_bf16_f32 v16, v16, v16")
        e("  v_lshlrev_b32 v16, 16, v16")
        e(f"  v_mul_f32 v16, v16, v{12+i}")
        e(f"  v_cvt_pk_bf16_f32 v{20+i}, v16, v16")
    stamp(6)
    e("  v_and_b32 v5, 15, v0")
    e("  v_cmp_gt_u32 vcc, 8, v5")
    e("  v_cmp_gt_u32 s[42:43], 32, v0")
    e("  s_and_b64 vcc, vcc, s[42:43]")
    e("  s_and_saveexec_b64 s[40:41], vcc")
    e("  v_lshlrev_b32 v4, 2, v4")
    e("  v_mul_u32_u24 v4, 3584, v4")
    e("  v_lshl_add_u32 v4, v5, 1, v4")
    e("  s_lshl_b32 s15, s3, 4")
    e(f"  s_add_u32 s15, s15, {WS_GU}")
    for i in range(4):
        e(f"  buffer_store_short v{20+i}, v4, s[20:23], s15 offen offset:{3584*i if 3584*i < 4096 else 0}") if False else None
    for i in range(4):
        e(f"  buffer_store_short v{20+i}, v4, s[20:23], s15 offen")
        if i < 3:
            e("  v_add_u32 v4, 3584, v4")
    lab("t2_done")
    kernel_end()
    e("  s_endpgm")
    kernel_desc(name, 192)

def gen_t3():
    name = "t3_kernel"
    kernel_begin(name)
    LDS_W, LDS_R = 0, 28672
    e("  s_cmp_ge_u32 s2, 64")
    e("  s_cbranch_scc1 t3_done")
    e(f"  s_load_dwordx2 s[4:5], s[0:1], {KA_X}")
    e(f"  s_load_dwordx2 s[6:7], s[0:1], {KA_WS}")
    e(f"  s_load_dwordx2 s[10:11], s[0:1], {KA_OUT}")
    e("  s_mov_b32 s3, s2")
    e("  v_lshrrev_b32 v1, 6, v0")
    e("  v_and_b32 v0, 63, v0")
    e("  v_readfirstlane_b32 s13, v1")
    e("  v_lshrrev_b32 v5, 4, v0")
    e("  s_waitcnt lgkmcnt(0)")
    srd(16, 4, 5, 2 << 20)
    srd(20, 6, 7, 12 << 20)
    srd(28, 10, 11, 2 << 20)
    e("  v_and_b32 v6, 1, v5")
    e("  v_lshlrev_b32 v6, 4, v6")
    e(f"  s_mov_b32 s14, {WS_IDX}")
    e("  buffer_load_dwordx4 v[24:27], v6, s[20:23], s14 offen")
    e("  s_lshl_b32 s15, s3, 4")
    e("  v_lshlrev_b32 v3, 4, v0")
    e("  s_mul_i32 s34, s13, 7168")
    e("  s_mul_i32 s33, s3, 28672")
    e("  s_add_u32 s33, s33, s34")
    e(f"  s_add_u32 s33, s33, {WS_WDB}")
    for i in range(7):
        e(f"  s_add_u32 m0, s34, {LDS_W + 1024*i}")
        e("  s_nop 0")
        e(f"  buffer_load_dwordx4 v3, s[20:23], s33 offen lds")
        e("  s_add_u32 s33, s33, 1024")
    e("  v_and_b32 v4, 7, v0")
    e("  v_mul_u32_u24 v4, 3584, v4")
    e("  v_lshl_add_u32 v4, v5, 4, v4")
    e("  s_mul_i32 s14, s13, 896")
    e(f"  s_add_u32 s14, s14, {WS_GU}")
    FA = 64
    for st in range(14):
        e(f"  buffer_load_dwordx4 {vr(FA+4*st,4)}, v4, s[20:23], s14 offen offset:{64*st}")
    for i in range(4):
        e(f"  v_mov_b32 v{28+i}, 0")
    e("  s_cmp_lg_u32 s13, 0")
    e("  s_cbranch_scc1 t3_noepi")
    e("  s_waitcnt vmcnt(21)")
    e("  v_and_b32 v6, 7, v0")
    e(f"  s_mov_b32 s36, {WS_Y}")
    e(f"  s_mov_b32 s37, {WS_Y + (2<<20)}")
    e(f"  s_mov_b32 s38, {WS_STAT}")
    for i in range(4):
        e(f"  v_and_b32 v{28+i}, 0xffff, v{24+i}")
        e(f"  v_sub_u32 v{28+i}, 0xffff, v{28+i}")
        e(f"  v_lshlrev_b32 v{32+i}, 3, v{28+i}")
        e(f"  v_lshlrev_b32 v{28+i}, 10, v{28+i}")
        e(f"  v_lshl_add_u32 v{28+i}, v6, 1, v{28+i}")
        e(f"  v_add_u32 v{28+i}, s15, v{28+i}")
        e(f"  buffer_load_ushort v{36+i}, v{28+i}, s[20:23], s36 offen")
        e(f"  buffer_load_ushort v{40+i}, v{28+i}, s[20:23], s37 offen")
        e(f"  buffer_load_ushort v{44+i}, v{28+i}, s[16:19], 0 offen")
        e(f"  buffer_load_dwordx2 {vr(48+2*i,2)}, v{32+i}, s[20:23], s38 offen")
    lab("t3_noepi")
    e("  v_and_b32 v7, 15, v0")
    e("  v_lshrrev_b32 v7, 2, v7")
    e("  v_lshl_add_u32 v7, v5, 3, v7")
    e("  v_lshlrev_b32 v7, 4, v7")
    e("  v_and_b32 v60, 1, v0")
    e("  v_lshl_add_u32 v7, v60, 3, v7")
    e("  v_add_u32 v7, s34, v7")
    for i in range(4):
        e(f"  v_mov_b32 v{8+i}, 0")
    stamp(1)
    e("  s_waitcnt vmcnt(0)")
    stamp(2)
    FB = 128
    for st in range(14):
        e(f"  ds_read_b64_tr_b16 {vr(FB+4*st,2)}, v7 offset:{512*st}")
        e(f"  ds_read_b64_tr_b16 {vr(FB+4*st+2,2)}, v7 offset:{512*st+64}")
    e("  s_waitcnt lgkmcnt(0)")
    for st in range(14):
        e(f"  v_mfma_f32_16x16x32_bf16 v[8:11], {vr(FA+4*st,4)}, {vr(FB+4*st,4)}, v[8:11]")
    e("  s_nop 15")
    stamp(3)
    e("  v_lshlrev_b32 v3, 4, v0")
    e("  s_lshl_b32 s33, s13, 10")
    e("  v_add_u32 v3, s33, v3")
    e(f"  ds_write_b128 v3, v[8:11] offset:{LDS_R}")
    e("  s_waitcnt lgkmcnt(0)")
    e("  s_barrier")
    e("  s_cmp_lg_u32 s13, 0")
    e("  s_cbranch_scc1 t3_done")
    e("  v_lshlrev_b32 v3, 4, v0")
    for w in range(1, 4):
        e(f"  ds_read_b128 {vr(12+4*(w-1),4)}, v3 offset:{LDS_R+1024*w}")
    stamp(4)
    e("  v_and_b32 v6, 15, v0")
    e("  v_cmp_gt_u32 vcc, 8, v6")
    e("  v_cmp_gt_u32 s[42:43], 32, v0")
    e("  s_and_b64 vcc, vcc, s[42:43]")
    e("  s_and_saveexec_b64 s[40:41], vcc")
    e("  s_waitcnt lgkmcnt(0)")
    for i in range(4):
        e(f"  v_add_f32 v{8+i}, v{8+i}, v{12+i}")
        e(f"  v_add_f32 v{16+i}, v{16+i}, v{20+i}")
        e(f"  v_add_f32 v{8+i}, v{8+i}, v{16+i}")
        e(f"  v_cvt_pk_bf16_f32 v{8+i}, v{8+i}, v{8+i}")
        e(f"  v_lshlrev_b32 v{8+i}, 16, v{8+i}")
        e(f"  v_and_b32 v60, 0xffff0000, v{24+i}")
        e("  v_ashrrev_i32 v61, 31, v60")
        e("  v_not_b32 v61, v61")
        e("  v_or_b32 v61, 0x80000000, v61")
        e("  v_xor_b32 v60, v60, v61")
        e("  v_and_b32 v60, 0xffff0000, v60")
        e("  v_mul_f32 v60, 0xbfb8aa3b, v60")
        e("  v_exp_f32 v60, v60")
        e("  s_nop 0")
        e("  v_add_f32 v60, 1.0, v60")
        e("  v_rcp_f32 v60, v60")
        e("  s_nop 0")
        e("  v_cvt_pk_bf16_f32 v60, v60, v60")
        e("  v_lshlrev_b32 v60, 16, v60")
        e(f"  v_mul_f32 v{8+i}, v{8+i}, v60")
        e(f"  v_cvt_pk_bf16_f32 v{8+i}, v{8+i}, v{8+i}")
        e(f"  v_lshlrev_b32 v{8+i}, 16, v{8+i}")
        e(f"  v_lshlrev_b32 v{36+i}, 16, v{36+i}")
        e(f"  v_lshlrev_b32 v{40+i}, 16, v{40+i}")
        e(f"  v_lshlrev_b32 v{44+i}, 16, v{44+i}")
        e(f"  v_sub_f32 v60, v{36+i}, v{40+i}")
        e("  v_cvt_pk_bf16_f32 v60, v60, v60")
        e("  v_lshlrev_b32 v60, 16, v60")
        e(f"  v_add_f32 v60, v{44+i}, v60")
        e("  v_cvt_pk_bf16_f32 v60, v60, v60")
        e("  v_lshlrev_b32 v60, 16, v60")
        e(f"  v_sub_f32 v61, v60, v{48+2*i}")
        e("  v_cvt_pk_bf16_f32 v61, v61, v61")
        e("  v_lshlrev_b32 v61, 16, v61")
        e(f"  v_mul_f32 v61, v61, v{49+2*i}")
        e("  v_cvt_pk_bf16_f32 v61, v61, v61")
        e("  v_lshlrev_b32 v61, 16, v61")
        e(f"  v_add_f32 v61, v61, v{8+i}")
        e("  v_cvt_pk_bf16_f32 v61, v61, v61")
        e("  v_lshlrev_b32 v61, 16, v61")
        e("  v_add_f32 v61, v60, v61")
        e("  v_cvt_pk_bf16_f32 v61, v61, v61")
        e(f"  buffer_store_short v61, v{28+i}, s[28:31], 0 offen")
    lab("t3_done")
    kernel_end()
    e("  s_endpgm")
    kernel_desc(name, 192)

SORT8 = [(0,1),(2,3),(4,5),(6,7),(0,2),(1,3),(4,6),(5,7),(1,2),(5,6),(0,4),(1,5),(2,6),(3,7),(2,4),(3,5),(1,2),(3,4),(5,6)]
def top8(keys, free, LDS_C, wreg="s13"):
    K = list(keys); F = list(free)
    for (i, j) in SORT8:
        hi, lo = F.pop(), F.pop()
        e(f"  v_max_u32 v{hi}, v{K[i]}, v{K[j]}")
        e(f"  v_min_u32 v{lo}, v{K[i]}, v{K[j]}")
        F.append(K[i]); F.append(K[j]); K[i] = hi; K[j] = lo
    t, coll = F.pop(), F.pop()
    e(f"  v_mov_b32 v{coll}, 0")
    pend = []
    def fill(n):
        for _ in range(n):
            if pend: e(pend.pop(0))
            else: e("  s_nop 0")
    for rnd in range(8):
        fill(2)
        e(f"  v_max_u32_dpp v{t}, v{K[0]}, v{K[0]} quad_perm:[1,0,3,2] row_mask:0xf bank_mask:0xf")
        fill(2)
        e(f"  v_max_u32_dpp v{t}, v{t}, v{t} quad_perm:[2,3,0,1] row_mask:0xf bank_mask:0xf")
        fill(2)
        e(f"  v_max_u32_dpp v{t}, v{t}, v{t} row_half_mirror row_mask:0xf bank_mask:0xf")
        fill(2)
        e(f"  v_max_u32_dpp v{t}, v{t}, v{t} row_mirror row_mask:0xf bank_mask:0xf")
        while pend: e(pend.pop(0))
        e("  s_nop 0")
        e(f"  v_readlane_b32 s36, v{t}, 0")
        e(f"  v_readlane_b32 s37, v{t}, 16")
        e(f"  v_readlane_b32 s38, v{t}, 32")
        e(f"  v_readlane_b32 s39, v{t}, 48")
        e("  s_max_u32 s36, s36, s37")
        e("  s_max_u32 s38, s38, s39")
        e("  s_max_u32 s36, s36, s38")
        e(f"  v_writelane_b32 v{coll}, s36, {rnd}")
        if rnd < 7:
            e(f"  v_cmp_eq_u32 vcc, s36, v{K[0]}")
            e("  s_nop 1")
            e(f"  v_cndmask_b32 v{K[0]}, v{K[0]}, v{K[1]}, vcc")
            for k in range(1, 7 - rnd):
                pend.append(f"  v_cndmask_b32 v{K[k]}, v{K[k]}, v{K[k+1]}, vcc")
    e(f"  s_lshl_b32 s33, {wreg}, 5")
    e(f"  s_add_u32 s33, s33, {LDS_C}")
    e(f"  v_lshlrev_b32 v{t}, 2, v0")
    e(f"  v_add_u32 v{t}, s33, v{t}")
    e("  v_cmp_gt_u32 vcc, 8, v0")
    e("  s_and_saveexec_b64 s[40:41], vcc")
    e(f"  ds_write_b32 v{t}, v{coll}")
    e("  s_mov_b64 exec, s[40:41]")
    e("  s_waitcnt lgkmcnt(0)")
    e("  s_barrier")
    return t, coll

def gen_t4():
    name = "t4_kernel"
    kernel_begin(name)
    LDS_C, LDS_R, LDS_WD = 0, 256, 8704
    LDS_G, LDS_U, LDS_XS = 8704, 8704 + 8192, 8704 + 16384
    SPIN = 1 << 22
    e("  s_cmp_ge_u32 s2, 240")
    e("  s_cbranch_scc1 t4_done")
    e(f"  s_load_dwordx2 s[4:5], s[0:1], {KA_X}")
    e(f"  s_load_dwordx2 s[6:7], s[0:1], {KA_WS}")
    e(f"  s_load_dwordx4 s[8:11], s[0:1], {KA_WG}")
    e(f"  s_load_dwordx2 s[44:45], s[0:1], {KA_OUT}")
    e("  s_and_b32 s3, s2, 7")
    e("  s_mul_i32 s3, s3, 28")
    e("  s_lshr_b32 s12, s2, 3")
    e("  s_add_u32 s3, s3, s12")
    e("  v_mov_b32 v40, v0")
    e("  v_lshrrev_b32 v1, 6, v0")
    e("  v_and_b32 v0, 63, v0")
    e("  v_readfirstlane_b32 s13, v1")
    e("  s_waitcnt lgkmcnt(0)")
    srd(16, 4, 5, 2 << 20)
    srd(20, 6, 7, 12 << 20)
    srd(24, 8, 9, 512*1792*2)
    srd(28, 10, 11, 512*1792*2)
    srd(48, 44, 45, 2 << 20)
    e("  v_lshlrev_b32 v2, 5, v40")
    e(f"  s_mov_b32 s14, {WS_KEY}")
    e("  buffer_load_dwordx4 v[8:11], v2, s[20:23], s14 offen")
    e("  buffer_load_dwordx4 v[12:15], v2, s[20:23], s14 offen offset:16")
    e("  s_cmp_ge_u32 s2, 224")
    e("  s_cbranch_scc1 t4_dma2")
    e("  s_lshl_b32 s15, s3, 4")
    e("  s_movk_i32 s32, 3584")
    for ii in range(2):
        e(f"  s_lshl_b32 s33, s13, 7")
        e(f"  s_add_u32 s33, s33, {64*ii}")
        e(f"  v_add_u32 v3, s33, v0")
        e(f"  v_mul_lo_u32 v3, v3, s32")
        e(f"  s_lshl_b32 s34, s13, 11")
        e(f"  s_add_u32 m0, s34, {LDS_G + 1024*ii}")
        e("  s_nop 0")
        e(f"  buffer_load_dwordx4 v3, s[24:27], s15 offen lds")
        e(f"  s_add_u32 m0, s34, {LDS_U + 1024*ii}")
        e("  s_nop 0")
        e(f"  buffer_load_dwordx4 v3, s[28:31], s15 offen lds")
    e("  s_waitcnt vmcnt(4)")
    e("  s_branch t4_top")
    lab("t4_dma2")
    e("  s_sub_u32 s46, s2, 224")
    e("  v_lshlrev_b32 v3, 4, v0")
    e("  s_mul_i32 s34, s13, 7168")
    e(f"  s_mul_i32 s33, s46, {4*28672}")
    e("  s_add_u32 s33, s33, s34")
    e(f"  s_add_u32 s33, s33, {WS_WDB}")
    for dsl in range(4):
        for i in range(7):
            e(f"  s_add_u32 m0, s34, {LDS_WD + dsl*28672 + 1024*i}")
            e("  s_nop 0")
            e(f"  buffer_load_dwordx4 v3, s[20:23], s33 offen lds")
            e(f"  s_add_u32 s33, s33, {1024 if i < 6 else 28672 - 6*1024}")
    e("  s_waitcnt vmcnt(28)")
    lab("t4_top")
    stamp(1)
    t, coll = top8(range(8, 16), range(16, 24), LDS_C)
    e("  v_and_b32 v3, 31, v0")
    e("  v_lshlrev_b32 v3, 2, v3")
    e(f"  ds_read_b32 v24, v3 offset:{LDS_C}")
    e("  v_mov_b32 v4, 0")
    for q in range(8):
        e(f"  ds_read_b128 {vr(56+4*q,4)}, v4 offset:{LDS_C+16*q}")
    e("  v_mov_b32 v25, 0")
    e("  s_waitcnt lgkmcnt(0)")
    sp = [60, 62, 64, 66]
    for i in range(32 + 3):
        if i < 32:
            e(f"  v_cmp_gt_u32 s[{sp[i%4]}:{sp[i%4]+1}], v{56+i}, v24")
        if i >= 3:
            j = i - 3
            e(f"  v_addc_co_u32 v25, vcc, 0, v25, s[{sp[j%4]}:{sp[j%4]+1}]")
    e("  v_cmp_gt_u32 vcc, 8, v25")
    e("  v_cmp_gt_u32 s[42:43], 32, v0")
    e("  s_and_b64 vcc, vcc, s[42:43]")
    e("  v_lshlrev_b32 v3, 2, v25")
    e("  s_and_saveexec_b64 s[40:41], vcc")
    e(f"  ds_write_b32 v3, v24 offset:{LDS_C+128}")
    e("  s_mov_b64 exec, s[40:41]")
    e("  s_waitcnt lgkmcnt(0)")
    e("  s_barrier")
    stamp(2)
    e("  s_cmp_ge_u32 s2, 224")
    e("  s_cbranch_scc1 t4_f2")
    e("  v_lshrrev_b32 v4, 5, v40")
    e("  v_and_b32 v5, 31, v40")
    e("  v_lshlrev_b32 v3, 2, v4")
    e(f"  ds_read_b32 v6, v3 offset:{LDS_C+128}")
    e("  s_waitcnt lgkmcnt(0)")
    e("  v_and_b32 v6, 0xffff, v6")
    e("  v_sub_u32 v6, 0xffff, v6")
    e("  v_lshlrev_b32 v7, 10, v6")
    e("  v_lshl_add_u32 v7, v5, 4, v7")
    e(f"  s_mov_b32 s14, {WS_Y}")
    e(f"  s_mov_b32 s15, {WS_Y + (2<<20)}")
    YR, YI, XX = 24, 32, 44
    for j in range(2):
        e(f"  buffer_load_dwordx4 {vr(YR+4*j,4)}, v7, s[20:23], s14 offen offset:{512*j}")
        e(f"  buffer_load_dwordx4 {vr(YI+4*j,4)}, v7, s[20:23], s15 offen offset:{512*j}")
        e(f"  buffer_load_dwordx4 {vr(XX+4*j,4)}, v7, s[16:19], 0 offen offset:{512*j}")
    e("  v_lshlrev_b32 v3, 3, v6")
    e(f"  s_mov_b32 s14, {WS_STAT}")
    e("  buffer_load_dwordx2 v[52:53], v3, s[20:23], s14 offen")
    e("  s_waitcnt vmcnt(0)")
    stamp(3)
    e("  v_sub_f32 v54, 0, v52")
    e("  v_mov_b32 v55, v54")
    e("  v_mov_b32 v52, v53")
    recompute(YR, YI, XX, 8, 54, 52, 64, 80, 56)
    e(f"  v_mul_u32_u24 v3, {XS_STRIDE}, v4")
    e("  v_lshl_add_u32 v3, v5, 4, v3")
    e(f"  ds_write_b128 v3, v[80:83] offset:{LDS_XS}")
    e(f"  ds_write_b128 v3, v[84:87] offset:{LDS_XS+512}")
    e("  s_waitcnt lgkmcnt(0)")
    e("  s_barrier")
    e("  s_cmp_lg_u32 s13, 0")
    e("  s_cbranch_scc1 t4_done")
    e("  v_and_b32 v3, 7, v0")
    e(f"  v_mul_u32_u24 v3, {XS_STRIDE}, v3")
    e("  v_lshrrev_b32 v4, 4, v0")
    e("  v_lshl_add_u32 v3, v4, 4, v3")
    e("  v_and_b32 v5, 15, v0")
    e("  v_lshrrev_b32 v5, 2, v5")
    e("  v_lshl_add_u32 v5, v4, 3, v5")
    e("  v_lshlrev_b32 v5, 4, v5")
    e("  v_and_b32 v6, 1, v0")
    e("  v_lshl_add_u32 v5, v6, 3, v5")
    e("  v_and_b32 v6, 2, v0")
    e("  v_lshl_add_u32 v5, v6, 12, v5")
    for i in range(4):
        e(f"  v_mov_b32 v{8+i}, 0")
    FA, FB = 64, 128
    for st in range(16):
        e(f"  ds_read_b128 {vr(FA+4*st,4)}, v3 offset:{LDS_XS + 64*st}")
        e(f"  ds_read_b64_tr_b16 {vr(FB+4*st,2)}, v5 offset:{LDS_G+512*st}")
        e(f"  ds_read_b64_tr_b16 {vr(FB+4*st+2,2)}, v5 offset:{LDS_G+512*st+64}")
        if st % 4 == 3:
            e("  s_waitcnt lgkmcnt(0)")
            for s2 in range(st-3, st+1):
                e(f"  v_mfma_f32_16x16x32_bf16 v[8:11], {vr(FA+4*s2,4)}, {vr(FB+4*s2,4)}, v[8:11]")
    e("  s_nop 15")
    for i in range(4):
        e(f"  v_cvt_pk_bf16_f32 v{8+i}, v{8+i}, v{8+i}")
        e(f"  v_lshlrev_b32 v{8+i}, 16, v{8+i}")
    e("  s_nop 1")
    for i in range(4):
        e(f"  v_mov_b32_dpp v{12+i}, v{8+i} row_ror:8 row_mask:0xf bank_mask:0xf")
    for i in range(4):
        e(f"  v_mul_f32 v16, 0xbfb8aa3b, v{8+i}")
        e("  v_exp_f32 v16, v16")
        e("  s_nop 0")
        e("  v_add_f32 v16, 1.0, v16")
        e("  v_rcp_f32 v16, v16")
        e("  s_nop 0")
        e(f"  v_mul_f32 v16, v{8+i}, v16")
        e("  v_cvt_pk_bf16_f32 v16, v16, v16")
        e("  v_lshlrev_b32 v16, 16, v16")
        e(f"  v_mul_f32 v16, v16, v{12+i}")
        e(f"  v_cvt_pk_bf16_f32 v{20+i}, v16, v16")
    e("  s_nop 1")
    for i in range(4):
        e(f"  v_mov_b32_dpp v{24+i}, v{20+i} quad_perm:[1,0,3,2] row_mask:0xf bank_mask:0xf")
    for i in range(4):
        e(f"  v_and_b32 v{20+i}, 0xffff, v{20+i}")
        e(f"  v_and_b32 v{24+i}, 0xffff0000, v{24+i}")
        e(f"  v_or_b32 v{20+i}, v{20+i}, v{24+i}")
    for i in range(4):
        e(f"  v_min_u32 v{20+i}, 0xfffeffff, v{20+i}")
    stamp(4)
    e("  v_and_b32 v5, 15, v0")
    e("  v_lshlrev_b32 v4, 6, v4")
    e("  v_lshl_add_u32 v4, v5, 1, v4")
    e("  v_lshlrev_b32 v7, 4, v0")
    e("  v_and_b32 v6, 9, v0")
    e("  v_cmp_eq_u32 vcc, 0, v6")
    e("  v_cmp_gt_u32 s[42:43], 32, v0")
    e("  s_and_b64 vcc, vcc, s[42:43]")
    e("  s_and_saveexec_b64 s[40:41], vcc")
    for i in range(4):
        e(f"  ds_write_b32 v4, v{20+i} offset:{LDS_R+16*i}")
    e("  s_mov_b64 exec, 0xff")
    e("  s_waitcnt lgkmcnt(0)")
    e(f"  ds_read_b128 v[24:27], v7 offset:{LDS_R}")
    e("  s_lshl_b32 s15, s3, 7")
    e(f"  s_add_u32 s15, s15, {WS_GU}")
    e("  s_waitcnt lgkmcnt(0)")
    e("  buffer_store_dwordx4 v[24:27], v7, s[20:23], s15 offen sc1")
    e("  s_branch t4_done")
    lab("t4_f2")
    e("  v_lshrrev_b32 v5, 4, v0")
    e("  v_and_b32 v6, 1, v5")
    e("  v_lshlrev_b32 v6, 4, v6")
    e(f"  ds_read_b128 v[24:27], v6 offset:{LDS_C+128}")
    e("  v_and_b32 v6, 15, v0")
    e("  s_lshl_b32 s15, s46, 6")
    e("  s_waitcnt lgkmcnt(0)")
    for i in range(4):
        e(f"  v_and_b32 v{28+i}, 0xffff, v{24+i}")
        e(f"  v_sub_u32 v{28+i}, 0xffff, v{28+i}")
        e(f"  v_lshlrev_b32 v{32+i}, 3, v{28+i}")
        e(f"  v_lshlrev_b32 v{28+i}, 10, v{28+i}")
        e(f"  v_lshl_add_u32 v{28+i}, v6, 1, v{28+i}")
        e(f"  v_add_u32 v{28+i}, s15, v{28+i}")
    e("  s_cmp_lg_u32 s13, 0")
    e("  s_cbranch_scc1 t4_noepi")
    e(f"  s_mov_b32 s36, {WS_Y}")
    e(f"  s_mov_b32 s37, {WS_Y + (2<<20)}")
    e(f"  s_mov_b32 s38, {WS_STAT}")
    for a in range(2):
        for i in range(4):
            e(f"  buffer_load_ushort v{192+12*a+i}, v{28+i}, s[20:23], s36 offen offset:{32*a}")
            e(f"  buffer_load_ushort v{196+12*a+i}, v{28+i}, s[20:23], s37 offen offset:{32*a}")
            e(f"  buffer_load_ushort v{200+12*a+i}, v{28+i}, s[16:19], 0 offen offset:{32*a}")
    for i in range(4):
        e(f"  buffer_load_dwordx2 {vr(48+2*i,2)}, v{32+i}, s[20:23], s38 offen")
    lab("t4_noepi")
    e("  v_lshrrev_b32 v7, 2, v6")
    e("  v_lshl_add_u32 v7, v5, 3, v7")
    e("  v_lshlrev_b32 v7, 4, v7")
    e("  v_and_b32 v60, 1, v0")
    e("  v_lshl_add_u32 v7, v60, 3, v7")
    e("  v_and_b32 v60, 2, v0")
    e("  v_mul_u32_u24 v60, 14336, v60")
    e("  v_add_u32 v7, v60, v7")
    e("  v_add_u32 v7, s34, v7")
    e(f"  v_add_u32 v61, {2*28672}, v7")
    e("  s_waitcnt vmcnt(0)")
    FB0, FB1 = 72, 128
    for st in range(14):
        e(f"  ds_read_b64_tr_b16 {vr(FB0+4*st,2)}, v7 offset:{LDS_WD+512*st}")
        e(f"  ds_read_b64_tr_b16 {vr(FB0+4*st+2,2)}, v7 offset:{LDS_WD+512*st+64}")
        e(f"  ds_read_b64_tr_b16 {vr(FB1+4*st,2)}, v61 offset:{LDS_WD+512*st}")
        e(f"  ds_read_b64_tr_b16 {vr(FB1+4*st+2,2)}, v61 offset:{LDS_WD+512*st+64}")
        if st % 3 == 2: e("  s_waitcnt lgkmcnt(0)")
    for i in range(8):
        e(f"  v_mov_b32 v{8+i}, 0")
    for i in range(4):
        e(f"  v_and_b32 v60, 0xffff0000, v{24+i}")
        e("  v_ashrrev_i32 v62, 31, v60")
        e("  v_not_b32 v62, v62")
        e("  v_or_b32 v62, 0x80000000, v62")
        e("  v_xor_b32 v60, v60, v62")
        e("  v_and_b32 v60, 0xffff0000, v60")
        e("  v_mul_f32 v60, 0xbfb8aa3b, v60")
        e("  v_exp_f32 v60, v60")
        e("  s_nop 0")
        e("  v_add_f32 v60, 1.0, v60")
        e("  v_rcp_f32 v60, v60")
        e("  s_nop 0")
        e("  v_cvt_pk_bf16_f32 v60, v60, v60")
        e(f"  v_lshlrev_b32 v{24+i}, 16, v60")
    for a in range(2):
        for i in range(4):
            r0, r1, r2 = 192+12*a+i, 196+12*a+i, 200+12*a+i
            e(f"  v_lshlrev_b32 v{r0}, 16, v{r0}")
            e(f"  v_lshlrev_b32 v{r1}, 16, v{r1}")
            e(f"  v_lshlrev_b32 v{r2}, 16, v{r2}")
            e(f"  v_sub_f32 v60, v{r0}, v{r1}")
            e("  v_cvt_pk_bf16_f32 v60, v60, v60")
            e("  v_lshlrev_b32 v60, 16, v60")
            e(f"  v_add_f32 v60, v{r2}, v60")
            e("  v_cvt_pk_bf16_f32 v60, v60, v60")
            e(f"  v_lshlrev_b32 v{r0}, 16, v60")
            e(f"  v_sub_f32 v62, v{r0}, v{48+2*i}")
            e("  v_cvt_pk_bf16_f32 v62, v62, v62")
            e("  v_lshlrev_b32 v62, 16, v62")
            e(f"  v_mul_f32 v62, v62, v{49+2*i}")
            e("  v_cvt_pk_bf16_f32 v62, v62, v62")
            e(f"  v_lshlrev_b32 v{r1}, 16, v62")
    stamp(3)
    e("  v_and_b32 v4, 7, v0")
    e("  v_lshlrev_b32 v4, 4, v4")
    e("  v_lshl_add_u32 v4, v5, 7, v4")
    e("  s_mul_i32 s14, s13, 7168")
    e(f"  s_add_u32 s14, s14, {WS_GU}")
    regs = [216+4*i for i in range(9)] + [36, 40, 44, 56, 64]
    e("  v_add_u32 v62, 4096, v4")
    e("  s_mov_b32 s53, 0")
    lab("t4_poll")
    for st in range(14):
        e(f"  buffer_load_dwordx4 {vr(regs[st],4)}, v4, s[20:23], s14 offen offset:{512*st if st < 8 else 0} sc1") if st < 8 else e(f"  buffer_load_dwordx4 {vr(regs[st],4)}, v62, s[20:23], s14 offen offset:{512*(st-8)} sc1")
    e("  v_mov_b32 v3, 0")
    for st in range(14):
        e(f"  s_waitcnt vmcnt({13-st})")
        e(f"  v_max3_u32 v3, v3, v{regs[st]}, v{regs[st]+1}")
        e(f"  v_max3_u32 v3, v3, v{regs[st]+2}, v{regs[st]+3}")
    e("  v_cmp_eq_u32 s[54:55], -1, v3")
    e("  s_nop 3")
    e("  s_cmp_eq_u64 s[54:55], 0")
    e("  s_cbranch_scc1 t4_poll_ok")
    e("  s_add_u32 s53, s53, 1")
    e(f"  s_cmp_gt_u32 s53, {SPIN}")
    e("  s_cbranch_scc1 t4_poll_ok")
    e("  s_branch t4_poll")
    lab("t4_poll_ok")
    stamp(5)
    e("  s_waitcnt lgkmcnt(0)")
    for st in range(14):
        e(f"  v_mfma_f32_16x16x32_bf16 v[8:11], {vr(regs[st],4)}, {vr(FB0+4*st,4)}, v[8:11]")
        e(f"  v_mfma_f32_16x16x32_bf16 v[12:15], {vr(regs[st],4)}, {vr(FB1+4*st,4)}, v[12:15]")
    e("  s_nop 15")
    stamp(6)
    e("  v_lshlrev_b32 v3, 4, v0")
    e("  s_lshl_b32 s33, s13, 11")
    e("  v_add_u32 v3, s33, v3")
    e(f"  ds_write_b128 v3, v[8:11] offset:{LDS_R}")
    e(f"  ds_write_b128 v3, v[12:15] offset:{LDS_R+1024}")
    e("  s_waitcnt lgkmcnt(0)")
    e("  s_barrier")
    e("  s_cmp_lg_u32 s13, 0")
    e("  s_cbranch_scc1 t4_done")
    e("  v_lshlrev_b32 v3, 4, v0")
    for w in range(1, 4):
        for a in range(2):
            e(f"  ds_read_b128 {vr(72+8*(w-1)+4*a,4)}, v3 offset:{LDS_R+2048*w+1024*a}")
    e("  v_cmp_gt_u32 vcc, 32, v0")
    e("  s_and_saveexec_b64 s[40:41], vcc")
    e("  s_waitcnt lgkmcnt(0)")
    for a in range(2):
        for i in range(4):
            y = 8 + 4*a + i
            e(f"  v_add_f32 v{y}, v{y}, v{72+4*a+i}")
            e(f"  v_add_f32 v60, v{80+4*a+i}, v{88+4*a+i}")
            e(f"  v_add_f32 v{y}, v{y}, v60")
            e(f"  v_cvt_pk_bf16_f32 v{y}, v{y}, v{y}")
            e(f"  v_lshlrev_b32 v{y}, 16, v{y}")
            e(f"  v_mul_f32 v{y}, v{y}, v{24+i}")
            e(f"  v_cvt_pk_bf16_f32 v{y}, v{y}, v{y}")
            e(f"  v_lshlrev_b32 v{y}, 16, v{y}")
            e(f"  v_add_f32 v61, v{196+12*a+i}, v{y}")
            e("  v_cvt_pk_bf16_f32 v61, v61, v61")
            e("  v_lshlrev_b32 v61, 16, v61")
            e(f"  v_add_f32 v61, v{192+12*a+i}, v61")
            e("  v_cvt_pk_bf16_f32 v61, v61, v61")
            e(f"  buffer_store_short v61, v{28+i}, s[48:51], 0 offen offset:{32*a}")
    lab("t4_done")
    kernel_end()
    e("  s_endpgm")
    kernel_desc(name, 252)

ROW_O = 48
def rowmac(first, O=148, sc1=False):
    YR, YI, XX, WR, H, T, D = 16, 32, 48, 64, 80, 112, 116
    if sc1: O = ROW_O
    SC = " sc1" if sc1 else ""
    e("  v_lshlrev_b32 v3, 10, v1")
    e("  v_lshl_add_u32 v3, v2, 4, v3")
    e(f"  s_mov_b32 s52, {WS_Y}")
    e(f"  s_mov_b32 s53, {WS_Y + (2<<20)}")
    for j in range(4):
        e(f"  buffer_load_dwordx4 {vr(YR+4*j,4)}, v3, s[24:27], s52 offen offset:{256*j}{SC}")
        e(f"  buffer_load_dwordx4 {vr(YI+4*j,4)}, v3, s[24:27], s53 offen offset:{256*j}{SC}")
        e(f"  buffer_load_dwordx4 {vr(XX+4*j,4)}, v3, s[20:23], 0 offen offset:{256*j}")
    nextra = 0
    if first:
        e("  v_lshlrev_b32 v4, 4, v2")
        for j in range(4):
            e(f"  buffer_load_dwordx4 {vr(WR+4*j,4)}, v4, s[28:31], 0 offen offset:{256*j}")
        nextra = 4
    e("  v_mov_b32 v14, 0")
    e("  v_mov_b32 v15, 0")
    for j in range(4):
        e(f"  s_waitcnt vmcnt({nextra + 3*(3-j)})")
        for q in range(4):
            i = 4*j + q
            e(f"  v_lshlrev_b32 v{T}, 16, v{YR+i}")
            e(f"  v_and_b32 v{T+1}, 0xffff0000, v{YR+i}")
            e(f"  v_lshlrev_b32 v{T+2}, 16, v{YI+i}")
            e(f"  v_and_b32 v{T+3}, 0xffff0000, v{YI+i}")
            e(f"  v_pk_add_f32 {vr(T,2)}, {vr(T,2)}, {vr(T+2,2)} neg_lo:[0,1] neg_hi:[0,1]")
            e(f"  v_cvt_pk_bf16_f32 v{T}, v{T}, v{T+1}")
            e(f"  v_and_b32 v{T+1}, 0xffff0000, v{T}")
            e(f"  v_lshlrev_b32 v{T}, 16, v{T}")
            e(f"  v_lshlrev_b32 v{T+2}, 16, v{XX+i}")
            e(f"  v_and_b32 v{T+3}, 0xffff0000, v{XX+i}")
            e(f"  v_pk_add_f32 {vr(T,2)}, {vr(T,2)}, {vr(T+2,2)}")
            e(f"  v_cvt_pk_bf16_f32 v{YI+i}, v{T}, v{T+1}")
            e(f"  v_lshlrev_b32 v{H+2*i}, 16, v{YI+i}")
            e(f"  v_and_b32 v{H+2*i+1}, 0xffff0000, v{YI+i}")
            e(f"  v_pk_add_f32 v[14:15], v[14:15], {vr(H+2*i,2)}")
    e("  v_add_f32 v5, v14, v15")
    reduce16(5)
    e("  v_mul_f32 v5, 0x3b000000, v5")
    e("  v_cvt_pk_bf16_f32 v6, v5, v5")
    e("  v_lshlrev_b32 v6, 16, v6")
    e("  v_sub_f32 v8, 0, v6")
    e("  v_mov_b32 v9, v8")
    e("  v_mov_b32 v10, 0")
    e("  v_mov_b32 v11, 0")
    for i in range(16):
        e(f"  v_pk_add_f32 {vr(D+2*i,2)}, {vr(H+2*i,2)}, v[8:9]")
        e(f"  v_pk_fma_f32 v[10:11], {vr(D+2*i,2)}, {vr(D+2*i,2)}, v[10:11]")
    e("  v_add_f32 v10, v10, v11")
    reduce16(10)
    e("  v_sub_f32 v11, v5, v6")
    e("  v_mul_f32 v11, v11, v11")
    e("  v_mul_f32 v10, 0x3b000000, v10")
    e("  v_sub_f32 v10, v10, v11")
    e("  v_max_f32 v10, 0, v10")
    e("  v_cvt_pk_bf16_f32 v10, v10, v10")
    e("  v_lshlrev_b32 v10, 16, v10")
    e("  v_add_f32 v10, 0x3727c5ac, v10")
    e("  v_cvt_pk_bf16_f32 v10, v10, v10")
    e("  v_lshlrev_b32 v10, 16, v10")
    e("  v_sqrt_f32 v10, v10")
    e("  s_nop 0")
    e("  v_cvt_pk_bf16_f32 v10, v10, v10")
    e("  v_lshlrev_b32 v10, 16, v10")
    e("  v_rcp_f32 v10, v10")
    e("  s_nop 0")
    e("  v_mov_b32 v11, v10")
    if first:
        e("  v_mov_b32 v12, 0")
        e("  s_waitcnt vmcnt(0)")
    for i in range(16):
        e(f"  v_cvt_pk_bf16_f32 v{T}, v{D+2*i}, v{D+2*i+1}")
        e(f"  v_lshlrev_b32 v{D+2*i}, 16, v{T}")
        e(f"  v_and_b32 v{D+2*i+1}, 0xffff0000, v{T}")
        e(f"  v_pk_mul_f32 {vr(D+2*i,2)}, {vr(D+2*i,2)}, v[10:11]")
        e(f"  v_cvt_pk_bf16_f32 v{YR+i}, v{D+2*i}, v{D+2*i+1}")
        if first:
            e(f"  v_dot2_f32_bf16 v12, v{YR+i}, v{WR+i}, v12")
            e(f"  v_lshlrev_b32 v{D+2*i}, 16, v{YR+i}")
            e(f"  v_and_b32 v{D+2*i+1}, 0xffff0000, v{YR+i}")
            e(f"  v_pk_add_f32 {vr(D+2*i,2)}, {vr(D+2*i,2)}, {vr(H+2*i,2)}")
            e(f"  v_cvt_pk_bf16_f32 v{O+i}, v{D+2*i}, v{D+2*i+1}")
    if first:
        e("  s_nop 3")
        reduce16(12)
        e("  v_cvt_pk_bf16_f32 v12, v12, v12")
        e("  v_lshlrev_b32 v12, 16, v12")
        e("  v_ashrrev_i32 v13, 31, v12")
        e("  v_or_b32 v13, 0x80000000, v13")
        e("  v_xor_b32 v12, v12, v13")
        e("  v_and_b32 v12, 0xffff0000, v12")
        e("  v_sub_u32 v13, 0xffff, v1")
        e("  v_or_b32 v12, v12, v13")

def gen_tf():
    name = "tf_kernel"
    kernel_begin(name)
    LDS_G, LDS_U, LDS_WD = 0, 8192, 16384
    LDS_XS = 45056
    LDS_HS = LDS_XS + 8 * XS_STRIDE
    LDS_C = LDS_HS + 8192
    LDS_R = LDS_C + 256
    SPIN = 1 << 22
    e("  s_cmp_ge_u32 s2, 256")
    e("  s_cbranch_scc1 tf_done")
    e(f"  s_load_dwordx2 s[4:5], s[0:1], {KA_X}")
    e(f"  s_load_dwordx2 s[6:7], s[0:1], {KA_WS}")
    e(f"  s_load_dwordx8 s[8:15], s[0:1], {KA_WR}")
    e(f"  s_load_dwordx2 s[16:17], s[0:1], {KA_OUT}")
    e("  s_and_b32 s3, s2, 7")
    e("  s_mul_i32 s49, s3, 28")
    e("  s_lshr_b32 s50, s2, 3")
    e("  s_add_u32 s49, s49, s50")
    e("  s_sub_u32 s50, s50, 24")
    e("  s_lshl_b32 s51, s3, 3")
    e("  s_add_u32 s50, s50, s51")
    e("  v_mov_b32 v180, v0")
    e("  v_lshrrev_b32 v1, 6, v0")
    e("  v_and_b32 v0, 63, v0")
    e("  v_readfirstlane_b32 s48, v1")
    e("  s_waitcnt lgkmcnt(0)")
    srd(20, 4, 5, 2 << 20)
    srd(24, 6, 7, 9 << 20)
    srd(28, 8, 9, 1024)
    srd(32, 10, 11, 512*1792*2)
    srd(36, 12, 13, 512*1792*2)
    srd(40, 14, 15, 1792*512*2)
    srd(44, 16, 17, 2 << 20)
    e("  s_cmp_lt_u32 s48, 2")
    e("  s_cbranch_scc1 tf_p1")
    e("  s_cmp_ge_u32 s2, 224")
    e("  s_cbranch_scc1 tf_nof1")
    e("  s_movk_i32 s52, 3584")
    e("  v_mul_lo_u32 v3, v0, s52")
    e("  s_lshl_b32 s53, s49, 4")
    e("  s_cmp_eq_u32 s48, 2")
    e("  s_cbranch_scc0 tf_dma_u")
    for i in range(8):
        e(f"  s_mov_b32 m0, {LDS_G + 1024*i}")
        e("  s_nop 0")
        e("  buffer_load_dwordx4 v3, s[32:35], s53 offen lds")
        e(f"  s_add_u32 s53, s53, {64*3584}")
    e("  s_branch tf_nof1")
    lab("tf_dma_u")
    for i in range(8):
        e(f"  s_mov_b32 m0, {LDS_U + 1024*i}")
        e("  s_nop 0")
        e("  buffer_load_dwordx4 v3, s[36:39], s53 offen lds")
        e(f"  s_add_u32 s53, s53, {64*3584}")
    lab("tf_nof1")
    e("  s_cmp_lt_u32 s2, 192")
    e("  s_cbranch_scc1 tf_poll1")
    e("  v_lshlrev_b32 v3, 10, v0")
    e("  s_sub_u32 s52, s48, 2")
    e(f"  s_mul_i32 s53, s52, {896*1024}")
    e("  s_lshl_b32 s54, s50, 4")
    e("  s_add_u32 s53, s53, s54")
    e(f"  s_mul_i32 s54, s52, {896*16}")
    for i in range(14):
        e(f"  s_add_u32 m0, s54, {LDS_WD + 1024*i}")
        e("  s_nop 0")
        e("  buffer_load_dwordx4 v3, s[40:43], s53 offen lds")
        e("  s_add_u32 s53, s53, 0x10000")
    e("  s_branch tf_poll1")
    lab("tf_p1")
    e("  v_lshrrev_b32 v1, 4, v180")
    e("  v_and_b32 v2, 15, v0")
    e("  s_lshl_b32 s52, s2, 3")
    e("  v_add_u32 v1, s52, v1")
    e("  v_mov_b32 v181, v1")
    rowmac(True)
    e("  v_cmp_eq_u32 vcc, 0, v2")
    e("  s_and_saveexec_b64 s[56:57], vcc")
    e("  v_lshlrev_b32 v13, 2, v1")
    e(f"  s_mov_b32 s52, {WS_KEY}")
    e("  buffer_store_dword v12, v13, s[24:27], s52 offen sc1")
    e("  s_mov_b64 exec, s[56:57]")
    stamp(1)
    lab("tf_poll1")
    K = 164
    e("  v_lshlrev_b32 v172, 5, v180")
    e(f"  s_mov_b32 s52, {WS_KEY}")
    e("  s_mov_b32 s60, 0")
    lab("tf_poll1_loop")
    e(f"  buffer_load_dwordx4 {vr(K,4)}, v172, s[24:27], s52 offen sc1")
    e(f"  buffer_load_dwordx4 {vr(K+4,4)}, v172, s[24:27], s52 offen offset:16 sc1")
    e("  s_waitcnt vmcnt(0)")
    e(f"  v_min3_u32 v173, v{K}, v{K+1}, v{K+2}")
    e(f"  v_min3_u32 v174, v{K+3}, v{K+4}, v{K+5}")
    e(f"  v_min3_u32 v173, v173, v{K+6}, v{K+7}")
    e("  v_min_u32 v173, v173, v174")
    e("  v_cmp_eq_u32 s[62:63], 0, v173")
    e("  s_nop 3")
    e("  s_cmp_eq_u64 s[62:63], 0")
    e("  s_cbranch_scc1 tf_poll1_ok")
    e("  s_add_u32 s60, s60, 1")
    e(f"  s_cmp_gt_u32 s60, {SPIN}")
    e("  s_cbranch_scc1 tf_poll1_ok")
    e("  s_sleep 1")
    e("  s_branch tf_poll1_loop")
    lab("tf_poll1_ok")
    stamp(2)
    e("  v_mov_b32 v176, 0")
    for rnd in range(8):
        e(f"  v_max3_u32 v173, v{K}, v{K+1}, v{K+2}")
        e(f"  v_max3_u32 v174, v{K+3}, v{K+4}, v{K+5}")
        e(f"  v_max3_u32 v173, v173, v{K+6}, v{K+7}")
        e("  v_max_u32 v173, v173, v174")
        e("  s_nop 1")
        e("  v_max_u32_dpp v173, v173, v173 quad_perm:[1,0,3,2] row_mask:0xf bank_mask:0xf")
        e("  s_nop 1")
        e("  v_max_u32_dpp v173, v173, v173 quad_perm:[2,3,0,1] row_mask:0xf bank_mask:0xf")
        e("  s_nop 1")
        e("  v_max_u32_dpp v173, v173, v173 row_half_mirror row_mask:0xf bank_mask:0xf")
        e("  s_nop 1")
        e("  v_max_u32_dpp v173, v173, v173 row_mirror row_mask:0xf bank_mask:0xf")
        e("  s_nop 1")
        e("  v_readlane_b32 s64, v173, 0")
        e("  v_readlane_b32 s65, v173, 16")
        e("  v_readlane_b32 s66, v173, 32")
        e("  v_readlane_b32 s67, v173, 48")
        e("  s_max_u32 s64, s64, s65")
        e("  s_max_u32 s66, s66, s67")
        e("  s_max_u32 s64, s64, s66")
        e(f"  v_writelane_b32 v176, s64, {rnd}")
        if rnd < 7:
            for k in range(8):
                e(f"  v_cmp_ne_u32 vcc, s64, v{K+k}")
                e("  s_nop 1")
                e(f"  v_cndmask_b32 v{K+k}, 0, v{K+k}, vcc")
    e("  s_lshl_b32 s52, s48, 5")
    e(f"  s_add_u32 s52, s52, {LDS_C}")
    e("  v_lshlrev_b32 v172, 2, v0")
    e("  v_add_u32 v172, s52, v172")
    e("  v_cmp_gt_u32 vcc, 8, v0")
    e("  s_and_saveexec_b64 s[56:57], vcc")
    e("  ds_write_b32 v172, v176")
    e("  s_mov_b64 exec, s[56:57]")
    e("  s_waitcnt lgkmcnt(0)")
    e("  s_barrier")
    e("  v_and_b32 v172, 31, v0")
    e("  v_lshlrev_b32 v172, 2, v172")
    e(f"  ds_read_b32 v177, v172 offset:{LDS_C}")
    e("  v_mov_b32 v178, 0")
    e("  s_waitcnt lgkmcnt(0)")
    for i in range(32):
        e(f"  v_readlane_b32 s64, v177, {i}")
        e("  s_nop 1")
        e("  v_cmp_gt_u32 vcc, s64, v177")
        e("  s_nop 1")
        e("  v_addc_co_u32 v178, vcc, 0, v178, vcc")
    e("  v_cmp_gt_u32 vcc, 8, v178")
    e("  v_cmp_gt_u32 s[58:59], 32, v0")
    e("  s_and_b64 vcc, vcc, s[58:59]")
    e("  v_lshlrev_b32 v172, 2, v178")
    e("  s_and_saveexec_b64 s[56:57], vcc")
    e(f"  ds_write_b32 v172, v177 offset:{LDS_C+128}")
    e("  s_mov_b64 exec, s[56:57]")
    e("  s_waitcnt lgkmcnt(0)")
    e("  s_barrier")
    stamp(3)
    e("  s_cmp_lt_u32 s48, 2")
    e("  s_cbranch_scc1 tf_p2")
    e("  s_waitcnt vmcnt(0)")
    e("  s_branch tf_p2_end")
    lab("tf_p2")
    e("  v_mov_b32 v172, 0")
    e(f"  ds_read_b128 {vr(K,4)}, v172 offset:{LDS_C+128}")
    e(f"  ds_read_b128 {vr(K+4,4)}, v172 offset:{LDS_C+144}")
    e("  v_lshrrev_b32 v173, 4, v180")
    e("  v_lshlrev_b32 v173, 2, v173")
    e(f"  ds_read_b32 v174, v173 offset:{LDS_C+128}")
    e("  v_sub_u32 v175, 0xffff, v181")
    e("  s_waitcnt lgkmcnt(0)")
    e("  s_mov_b64 s[58:59], exec")
    for k in range(8):
        e(f"  v_and_b32 v{K+k}, 0xffff, v{K+k}")
        e(f"  v_cmp_ne_u32 vcc, v{K+k}, v175")
        e("  s_and_b64 s[58:59], s[58:59], vcc")
    e("  v_lshlrev_b32 v3, 10, v181")
    e("  v_lshl_add_u32 v3, v2, 4, v3")
    e("  s_and_saveexec_b64 s[56:57], s[58:59]")
    e("  s_cbranch_execz tf_nostore")
    for j in range(4):
        e(f"  buffer_store_dwordx4 {vr(148+4*j,4)}, v3, s[44:47], 0 offen offset:{256*j}")
    lab("tf_nostore")
    e("  s_mov_b64 exec, s[56:57]")
    e("  v_and_b32 v1, 0xffff, v174")
    e("  v_sub_u32 v1, 0xffff, v1")
    rowmac(False)
    e("  v_lshrrev_b32 v173, 4, v180")
    e(f"  v_mul_u32_u24 v4, {XS_STRIDE}, v173")
    e("  v_lshl_add_u32 v4, v2, 4, v4")
    e("  v_lshlrev_b32 v5, 10, v173")
    e("  v_lshl_add_u32 v5, v2, 4, v5")
    for j in range(4):
        e(f"  ds_write_b128 v4, {vr(16+4*j,4)} offset:{LDS_XS+256*j}")
        e(f"  ds_write_b128 v5, {vr(32+4*j,4)} offset:{LDS_HS+256*j}")
    e("  s_waitcnt lgkmcnt(0)")
    lab("tf_p2_end")
    e("  s_barrier")
    stamp(4)
    e("  s_cmp_lg_u32 s48, 0")
    e("  s_cbranch_scc1 tf_f2")
    e("  s_cmp_ge_u32 s2, 224")
    e("  s_cbranch_scc1 tf_f2")
    e("  v_and_b32 v3, 7, v0")
    e(f"  v_mul_u32_u24 v3, {XS_STRIDE}, v3")
    e("  v_lshrrev_b32 v4, 4, v0")
    e("  v_lshl_add_u32 v3, v4, 4, v3")
    e("  v_and_b32 v5, 15, v0")
    e("  v_lshrrev_b32 v5, 2, v5")
    e("  v_lshl_add_u32 v5, v4, 3, v5")
    e("  v_lshlrev_b32 v5, 4, v5")
    e("  v_and_b32 v6, 1, v0")
    e("  v_lshl_add_u32 v5, v6, 3, v5")
    e("  v_and_b32 v6, 2, v0")
    e("  v_lshl_add_u32 v5, v6, 12, v5")
    for i in range(4):
        e(f"  v_mov_b32 v{8+i}, 0")
    FA, FB = 16, 80
    for st in range(16):
        e(f"  ds_read_b128 {vr(FA+4*st,4)}, v3 offset:{LDS_XS + 64*st}")
        e(f"  ds_read_b64_tr_b16 {vr(FB+4*st,2)}, v5 offset:{512*st}")
        e(f"  ds_read_b64_tr_b16 {vr(FB+4*st+2,2)}, v5 offset:{512*st+64}")
        if st % 4 == 3:
            e("  s_waitcnt lgkmcnt(0)")
            for s2 in range(st-3, st+1):
                e(f"  v_mfma_f32_16x16x32_bf16 v[8:11], {vr(FA+4*s2,4)}, {vr(FB+4*s2,4)}, v[8:11]")
    e("  s_nop 15")
    for i in range(4):
        e(f"  v_cvt_pk_bf16_f32 v{8+i}, v{8+i}, v{8+i}")
        e(f"  v_lshlrev_b32 v{8+i}, 16, v{8+i}")
    e("  s_nop 1")
    for i in range(4):
        e(f"  v_mov_b32_dpp v{12+i}, v{8+i} row_ror:8 row_mask:0xf bank_mask:0xf")
    for i in range(4):
        e(f"  v_mul_f32 v16, 0xbfb8aa3b, v{8+i}")
        e("  v_exp_f32 v16, v16")
        e("  s_nop 0")
        e("  v_add_f32 v16, 1.0, v16")
        e("  v_rcp_f32 v16, v16")
        e("  s_nop 0")
        e(f"  v_mul_f32 v16, v{8+i}, v16")
        e("  v_cvt_pk_bf16_f32 v16, v16, v16")
        e("  v_lshlrev_b32 v16, 16, v16")
        e(f"  v_mul_f32 v16, v16, v{12+i}")
        e(f"  v_cvt_pk_bf16_f32 v{20+i}, v16, v16")
    e("  s_nop 1")
    for i in range(4):
        e(f"  v_mov_b32_dpp v{24+i}, v{20+i} quad_perm:[1,0,3,2] row_mask:0xf bank_mask:0xf")
    for i in range(4):
        e(f"  v_and_b32 v{20+i}, 0xffff, v{20+i}")
        e(f"  v_and_b32 v{24+i}, 0xffff0000, v{24+i}")
        e(f"  v_or_b32 v{20+i}, v{20+i}, v{24+i}")
    e("  v_and_b32 v5, 15, v0")
    e("  v_and_b32 v6, 9, v0")
    e("  v_cmp_eq_u32 vcc, 0, v6")
    e("  v_cmp_gt_u32 s[58:59], 32, v0")
    e("  s_and_b64 vcc, vcc, s[58:59]")
    e("  s_and_saveexec_b64 s[56:57], vcc")
    e("  v_lshlrev_b32 v4, 2, v4")
    e("  v_mul_u32_u24 v4, 3584, v4")
    e("  v_lshl_add_u32 v4, v5, 1, v4")
    e("  s_lshl_b32 s52, s49, 4")
    e(f"  s_add_u32 s52, s52, {WS_GU}")
    for i in range(4):
        e(f"  buffer_store_dword v{20+i}, v4, s[24:27], s52 offen sc1")
        if i < 3:
            e("  v_add_u32 v4, 3584, v4")
    e("  s_waitcnt vmcnt(0)")
    e("  s_mov_b64 exec, 1")
    e("  v_mov_b32 v4, 1")
    e("  v_mov_b32 v5, 0")
    e("  s_lshl_b32 s52, s49, 2")
    e(f"  s_add_u32 s52, s52, {WS_FLAG}")
    e("  buffer_store_dword v4, v5, s[24:27], s52 offen sc1")
    e("  s_mov_b64 exec, s[56:57]")
    stamp(5)
    lab("tf_f2")
    e("  s_cmp_lt_u32 s2, 192")
    e("  s_cbranch_scc1 tf_done")
    e("  v_min_u32 v3, 55, v0")
    e("  v_lshlrev_b32 v3, 2, v3")
    e("  s_mul_i32 s52, s48, 224")
    e(f"  s_add_u32 s52, s52, {WS_FLAG}")
    e("  s_mov_b32 s60, 0")
    lab("tf_poll2_loop")
    e("  buffer_load_dword v4, v3, s[24:27], s52 offen sc1")
    e("  s_waitcnt vmcnt(0)")
    e("  v_cmp_eq_u32 s[62:63], 0, v4")
    e("  s_nop 3")
    e("  s_cmp_eq_u64 s[62:63], 0")
    e("  s_cbranch_scc1 tf_poll2_ok")
    e("  s_add_u32 s60, s60, 1")
    e(f"  s_cmp_gt_u32 s60, {SPIN}")
    e("  s_cbranch_scc1 tf_poll2_ok")
    e("  s_sleep 1")
    e("  s_branch tf_poll2_loop")
    lab("tf_poll2_ok")
    stamp(6)
    e("  v_and_b32 v4, 7, v0")
    e("  v_mul_u32_u24 v4, 3584, v4")
    e("  v_lshrrev_b32 v5, 4, v0")
    e("  v_lshl_add_u32 v4, v5, 4, v4")
    e("  s_mul_i32 s52, s48, 896")
    e(f"  s_add_u32 s52, s52, {WS_GU}")
    FA, FB = 16, 72
    for st in range(14):
        e(f"  buffer_load_dwordx4 {vr(FA+4*st,4)}, v4, s[24:27], s52 offen offset:{64*st} sc1")
    e("  v_and_b32 v7, 15, v0")
    e("  v_lshrrev_b32 v7, 2, v7")
    e("  v_lshl_add_u32 v7, v5, 3, v7")
    e("  v_lshlrev_b32 v7, 4, v7")
    e("  v_and_b32 v6, 1, v0")
    e("  v_lshl_add_u32 v7, v6, 3, v7")
    e("  s_mul_i32 s54, s48, 7168")
    e(f"  s_add_u32 s54, s54, {LDS_WD}")
    e("  v_add_u32 v7, s54, v7")
    for st in range(14):
        e(f"  ds_read_b64_tr_b16 {vr(FB+4*st,2)}, v7 offset:{512*st}")
        e(f"  ds_read_b64_tr_b16 {vr(FB+4*st+2,2)}, v7 offset:{512*st+64}")
    for i in range(4):
        e(f"  v_mov_b32 v{8+i}, 0")
    e("  s_waitcnt vmcnt(0) lgkmcnt(0)")
    for st in range(14):
        e(f"  v_mfma_f32_16x16x32_bf16 v[8:11], {vr(FA+4*st,4)}, {vr(FB+4*st,4)}, v[8:11]")
    e("  s_nop 15")
    e("  v_lshlrev_b32 v3, 4, v0")
    e("  s_lshl_b32 s52, s48, 10")
    e("  v_add_u32 v3, s52, v3")
    e(f"  ds_write_b128 v3, v[8:11] offset:{LDS_R}")
    e("  s_waitcnt lgkmcnt(0)")
    e("  s_barrier")
    e("  s_cmp_lg_u32 s48, 0")
    e("  s_cbranch_scc1 tf_done")
    e("  v_lshlrev_b32 v3, 4, v0")
    for w in range(1, 4):
        e(f"  ds_read_b128 {vr(12+4*(w-1),4)}, v3 offset:{LDS_R+1024*w}")
    e("  v_and_b32 v6, 1, v5")
    e("  v_lshlrev_b32 v6, 4, v6")
    e(f"  ds_read_b128 v[24:27], v6 offset:{LDS_C+128}")
    e("  v_and_b32 v6, 7, v0")
    e("  s_lshl_b32 s52, s50, 4")
    e("  v_lshl_add_u32 v6, v6, 1, s52")
    e("  v_and_b32 v7, 1, v5")
    e("  v_lshlrev_b32 v7, 2, v7")
    for i in range(4):
        e(f"  v_add_u32 v28, {i}, v7")
        e(f"  v_mul_u32_u24 v29, {XS_STRIDE}, v28")
        e("  v_add_u32 v29, v29, v6")
        e(f"  ds_read_u16 v{36+i}, v29 offset:{LDS_XS}")
        e("  v_lshl_add_u32 v29, v28, 10, v6")
        e(f"  ds_read_u16 v{40+i}, v29 offset:{LDS_HS}")
    e("  v_and_b32 v30, 15, v0")
    e("  v_cmp_gt_u32 vcc, 8, v30")
    e("  v_cmp_gt_u32 s[58:59], 32, v0")
    e("  s_and_b64 vcc, vcc, s[58:59]")
    e("  s_waitcnt lgkmcnt(0)")
    e("  s_and_saveexec_b64 s[56:57], vcc")
    for i in range(4):
        e(f"  v_add_f32 v{8+i}, v{8+i}, v{12+i}")
        e(f"  v_add_f32 v{16+i}, v{16+i}, v{20+i}")
        e(f"  v_add_f32 v{8+i}, v{8+i}, v{16+i}")
        e(f"  v_cvt_pk_bf16_f32 v{8+i}, v{8+i}, v{8+i}")
        e(f"  v_lshlrev_b32 v{8+i}, 16, v{8+i}")
        e(f"  v_and_b32 v60, 0xffff0000, v{24+i}")
        e("  v_ashrrev_i32 v61, 31, v60")
        e("  v_not_b32 v61, v61")
        e("  v_or_b32 v61, 0x80000000, v61")
        e("  v_xor_b32 v60, v60, v61")
        e("  v_and_b32 v60, 0xffff0000, v60")
        e("  v_mul_f32 v60, 0xbfb8aa3b, v60")
        e("  v_exp_f32 v60, v60")
        e("  s_nop 0")
        e("  v_add_f32 v60, 1.0, v60")
        e("  v_rcp_f32 v60, v60")
        e("  s_nop 0")
        e("  v_cvt_pk_bf16_f32 v60, v60, v60")
        e("  v_lshlrev_b32 v60, 16, v60")
        e(f"  v_mul_f32 v{8+i}, v{8+i}, v60")
        e(f"  v_cvt_pk_bf16_f32 v{8+i}, v{8+i}, v{8+i}")
        e(f"  v_lshlrev_b32 v{8+i}, 16, v{8+i}")
        e(f"  v_lshlrev_b32 v{36+i}, 16, v{36+i}")
        e(f"  v_lshlrev_b32 v{40+i}, 16, v{40+i}")
        e(f"  v_add_f32 v61, v{36+i}, v{8+i}")
        e("  v_cvt_pk_bf16_f32 v61, v61, v61")
        e("  v_lshlrev_b32 v61, 16, v61")
        e(f"  v_add_f32 v61, v{40+i}, v61")
        e("  v_cvt_pk_bf16_f32 v61, v61, v61")
        e(f"  v_and_b32 v62, 0xffff, v{24+i}")
        e("  v_sub_u32 v62, 0xffff, v62")
        e("  v_lshl_add_u32 v62, v62, 10, v6")
        e("  buffer_store_short v61, v62, s[44:47], 0 offen")
    lab("tf_done")
    kernel_end()
    e("  s_endpgm")
    kernel_desc(name, 184)

def main():
    hdr = open("cdna_kernels/" + NAME + ".s.ref").read().splitlines()
    out = []
    for ln in hdr:
        if ln.startswith("; @launch"):
            if FUSE:
                out.append("; @launch kernel=f_kernel grid=(256,1,1) block=(576,1,1) lds=%d" % (K2_NS*24576 + 256))
            else:
                out.append("; @launch kernel=k1_kernel grid=(256,1,1) block=(%d,1,1) lds=131072" % (576 if OPT('K1_PF', 0) else 512))
                out.append("; @launch kernel=k2_kernel grid=(256,1,1) block=(%d,1,1) lds=%d" % (576, K2_NS*24576))
            if OPT('TF'):
                out.append("; @launch kernel=tf_kernel grid=(256,1,1) block=(256,1,1) lds=66048")
            else:
                if not OPT('K2T1', 1):
                    out.append("; @launch kernel=t1_kernel grid=(256,1,1) block=(%d,1,1) lds=0" % (192 if OPT('T1_PF', 1) else 128))
                if MEGA:
                    pass
                elif OPT('T4', 1):
                    out.append("; @launch kernel=t4_kernel grid=(240,1,1) block=(256,1,1) lds=123392")
                else:
                    out.append("; @launch kernel=t2_kernel grid=(224,1,1) block=(256,1,1) lds=25600")
                    out.append("; @launch kernel=t3_kernel grid=(64,1,1) block=(256,1,1) lds=32768")
            break
        out.append(ln)
    out.append('.amdgcn_target "amdgcn-amd-amdhsa--gfx950"')
    out.append(".text")
    gen_k1(); gen_k2()
    if OPT('TF'): gen_tf()
    elif OPT('T4', 1):
        if not OPT('K2T1', 1): gen_t1()
        if not MEGA: gen_t4()
    else: gen_t1(); gen_t2(); gen_t3()
    out += L
    out.append('.section .rodata,"a"')
    out += KD
    dst = sys.argv[1] if len(sys.argv) > 1 else "cdna_kernels/" + NAME + ".s"
    open(dst, "w").write("\n".join(out) + "\n")

main()
```

```python
import sys, os
OPT = lambda k, d=0: int(os.environ.get(k, d))

NAME = "sequential_preLN__spectral_fnet__moe_arch_mod__prompt"
L = []
def e(s=""):
    L.append(s)
def lab(s):
    L.append(s + ":")

KA_X, KA_WSRE, KA_WSIM, KA_WDRE, KA_WDIM = 0, 8, 16, 24, 32
KA_WR, KA_WG, KA_WU, KA_WDN, KA_OUT, KA_DBG, KA_WS = 48, 56, 64, 72, 80, 88, 96
WS_YB = 0
WS_Y = 4 << 20
WS_KEY = 8 << 20
WS_STAT = (8 << 20) + 8192
WS_GU = (8 << 20) + 65536
WS_IDX = (8 << 20) + 131072
WS_FLAG = (8 << 20) + 196608
WS_FA = WS_FLAG + 4096
WS_REC = (9 << 20)
WS_SEL = (9 << 20) + 65536
WS_WDB = 10 << 20
WS_SIZE = 268435456

KIDX = [0]
NV = {"k1_kernel": 160, "k2_kernel": 160, "t1_kernel": 148, "t2_kernel": 192, "t3_kernel": 192, "tf_kernel": 184, "t4_kernel": 252, "f_kernel": 164}
FUSE = OPT("FUSE", 1)
K2_NS = OPT("K2_NS", 6)
MEGA = OPT("MEGA", 0) and FUSE
CUR = [0]
def kernel_begin(name):
    CUR[0] = NV[name]
    e(f".globl {name}")
    e(".p2align 8")
    e(f".type {name},@function")
    lab(name)
    if OPT('DIAG'):
        e("  s_memrealtime s[72:73]")
        for i in range(1, 7):
            e(f"  s_mov_b64 s[{72+2*i}:{73+2*i}], 0")
        e(f"  s_load_dwordx2 s[94:95], s[0:1], {KA_WS}")
        e(f"  v_mov_b32 v{CUR[0]}, v0")

HS = [0]
def hstamp(k, wg=0):
    if not OPT('HSTAMP'): return
    if OPT('HSTAMP') == 2 and k in (7, 8, 9, 10) and wg in (0, 224) and not hasattr(hstamp, "x"):
        if k != 7: return
        k = 15
    HS[0] += 1
    e(f"  s_cmp_lg_u32 s2, {wg}")
    e(f"  s_cbranch_scc1 hs_{HS[0]}")
    e("  s_cmp_lg_u32 s15, 0")
    e(f"  s_cbranch_scc1 hs_{HS[0]}")
    e("  s_memrealtime s[72:73]")
    e("  s_waitcnt lgkmcnt(0)")
    e("  v_mov_b32 v162, s72")
    e(f"  v_mov_b32 v163, {4*k}")
    e("  s_mov_b64 s[74:75], exec")
    e("  s_mov_b64 exec, 1")
    e("  buffer_store_dword v162, v163, s[96:99], 0 offen")
    e("  s_mov_b64 exec, s[74:75]")
    lab(f"hs_{HS[0]}")

def stamp(i):
    if OPT('DIAG'):
        e(f"  s_memrealtime s[{72+2*i}:{73+2*i}]")
    if OPT('HSTAMP') == 1 and CUR[0] == 164: hstamp(i)
    if OPT('HSTAMP') == 2 and CUR[0] == 164 and i == 6:
        for w in range(8): hstamp(1 + w, w)
    if OPT('HSTAMP') == 2 and CUR[0] == 164 and i == 2:
        for w in range(0, 8, 2): hstamp(11 + w // 2, w + 1)

def kernel_end():
    if OPT('DIAG'):
        e("  s_waitcnt vmcnt(0) lgkmcnt(0)")
        e("  s_memrealtime s[86:87]")
        e("  s_mov_b32 s88, s94")
        e("  s_mov_b32 s89, s95")
        e("  s_mov_b32 s90, 0x4000000")
        e("  s_mov_b32 s91, 0x00020000")
        e("  s_waitcnt lgkmcnt(0)")
        e("  s_mov_b64 exec, 1")
        for i in range(16):
            e(f"  v_mov_b32 v{i}, s{72+i}")
        e(f"  v_lshrrev_b32 v{CUR[0]+1}, 6, v{CUR[0]}")
        e(f"  v_lshlrev_b32 v{CUR[0]+1}, 6, v{CUR[0]+1}")
        e("  s_lshl_b32 s92, s2, 10")
        e(f"  s_add_u32 s92, s92, {(16 << 20) + KIDX[0] * 0x100000}")
        for i in range(4):
            e(f"  buffer_store_dwordx4 v[{4*i}:{3+4*i}], v{CUR[0]+1}, s[88:91], s92 offen offset:{16*i}")
    KIDX[0] += 1

KD = []
def kernel_desc(name, vgpr, sgpr=102):
    assert vgpr == CUR[0]
    if OPT('DIAG'): vgpr += 2
    acc = (vgpr + 3) // 4 * 4
    KD.append(f""".p2align 6
.amdhsa_kernel {name}
  .amdhsa_next_free_vgpr {vgpr}
  .amdhsa_next_free_sgpr {sgpr}
  .amdhsa_accum_offset {acc}
  .amdhsa_group_segment_fixed_size 0
  .amdhsa_kernarg_size 104
  .amdhsa_user_sgpr_count 2
  .amdhsa_user_sgpr_kernarg_segment_ptr 1
  .amdhsa_system_sgpr_workgroup_id_x 1
.end_amdhsa_kernel""")

def srd(d, lo, hi, size):
    e(f"  s_mov_b32 s{d}, s{lo}")
    e(f"  s_mov_b32 s{d+1}, s{hi}")
    e(f"  s_mov_b32 s{d+2}, {size}")
    e(f"  s_mov_b32 s{d+3}, 0x00020000")

def vr(a, n):
    return f"v[{a}:{a+n-1}]"

def reduce8(v):
    e("  s_nop 1")
    e(f"  v_add_f32_dpp v{v}, v{v}, v{v} quad_perm:[1,0,3,2] row_mask:0xf bank_mask:0xf")
    e("  s_nop 1")
    e(f"  v_add_f32_dpp v{v}, v{v}, v{v} quad_perm:[2,3,0,1] row_mask:0xf bank_mask:0xf")
    e("  s_nop 1")
    e(f"  v_add_f32_dpp v{v}, v{v}, v{v} row_half_mirror row_mask:0xf bank_mask:0xf")

def reduce16(v):
    reduce8(v)
    e("  s_nop 1")
    e(f"  v_add_f32_dpp v{v}, v{v}, v{v} row_mirror row_mask:0xf bank_mask:0xf")

def helper_wave():
    srd(36, 34, 35, 1792*512*2)
    srd(40, 6, 7, 12 << 20)
    e("  v_lshlrev_b32 v2, 4, v0")
    e("  s_mul_i32 s44, s2, 7168")
    for q in range(7):
        e(f"  buffer_load_dwordx4 {vr(8+4*q,4)}, v2, s[36:39], s44 offen")
        e("  s_add_u32 s44, s44, 1024")
    e("  s_cmp_ge_u32 s2, 28")
    e("  s_cbranch_scc1 k2_nomark")
    for q in range(4):
        e(f"  v_mov_b32 v{4+q}, -1")
    e("  s_lshl_b32 s44, s2, 10")
    e(f"  s_add_u32 s44, s44, {WS_GU}")
    e("  buffer_store_dwordx4 v[4:7], v2, s[40:43], s44 offen" + (" sc1" if MEGA else ""))
    lab("k2_nomark")
    e("  v_mul_u32_u24 v3, 28672, v0")
    e("  s_mul_i32 s44, s2, 112")
    e(f"  s_add_u32 s44, s44, {WS_WDB}")
    e("  s_waitcnt vmcnt(0)")
    for q in range(7):
        e(f"  buffer_store_dwordx4 {vr(8+4*q,4)}, v3, s[40:43], s44 offen offset:{16*q}" + (" sc1" if MEGA else ""))
    if MEGA: e("  s_waitcnt vmcnt(0)")
    if FUSE and OPT('F_PFM', 0) == 2:
        e("  s_and_b32 s44, s2, 7")
        e("  s_cmp_lt_u32 s44, 4")
        e("  s_cselect_b32 s48, s52, s54")
        e("  s_cselect_b32 s49, s53, s55")
        e(f"  s_mov_b32 s50, {2048*2048*2}")
        e("  s_mov_b32 s51, 0x00020000")
        e("  s_and_b32 s44, s44, 3")
        e("  s_lshl_b32 s44, s44, 21")
        e("  s_lshr_b32 s45, s2, 3")
        e("  s_lshl_b32 s45, s45, 16")
        e("  s_add_u32 s44, s44, s45")
        e("  v_lshlrev_b32 v1, 4, v0")
        e("  s_barrier")
        for q in range(64):
            e(f"  buffer_load_dwordx4 v[160:163], v1, s[48:51], s44 offen")
            e("  s_add_u32 s44, s44, 1024")
    e("  s_branch k2_done")

def get_epoch(tag):
    e("  v_mov_b32 v158, 0")
    e("  s_mov_b32 s69, 0")
    lab(f"ep_{tag}")
    e("  buffer_load_dword v159, v158, s[96:99], 0 offen sc1")
    e("  s_waitcnt vmcnt(0)")
    e("  v_readfirstlane_b32 s68, v159")
    e("  s_add_u32 s69, s69, 1")
    e(f"  s_cmp_gt_u32 s69, {1 << 22}")
    e(f"  s_cbranch_scc1 ep_{tag}_ok")
    e("  s_cmp_eq_u32 s68, 0")
    e(f"  s_cbranch_scc1 ep_{tag}")
    lab(f"ep_{tag}_ok")

def gen_k1():
    name = "f_kernel" if FUSE else "k1_kernel"
    kernel_begin(name)
    e("  s_cmp_ge_u32 s2, 256")
    e(f"  s_cbranch_scc1 {'k2_done' if FUSE else 'k1_done'}")
    e(f"  s_load_dwordx2 s[4:5], s[0:1], {KA_X}")
    e(f"  s_load_dwordx4 s[8:11], s[0:1], {KA_WDRE}")
    e(f"  s_load_dwordx2 s[6:7], s[0:1], {KA_WS}")
    if FUSE:
        e(f"  s_load_dwordx4 s[52:55], s[0:1], {KA_WSRE}")
        e(f"  s_load_dwordx2 s[66:67], s[0:1], {KA_DBG}")
        e(f"  s_load_dwordx2 s[34:35], s[0:1], {KA_WDN}")
    e("  s_and_b32 s12, s2, 7")
    e("  s_lshr_b32 s13, s2, 3")
    e("  s_and_b32 s14, s13, 3")
    e("  s_lshl_b32 s12, s12, 2")
    e("  s_add_u32 s12, s12, s14")
    e("  s_lshr_b32 s13, s13, 2")
    e("  v_lshrrev_b32 v1, 6, v0")
    e("  v_and_b32 v0, 63, v0")
    e("  v_readfirstlane_b32 s15, v1")
    e("  v_lshrrev_b32 v2, 3, v0")
    e("  v_and_b32 v3, 7, v0")
    if OPT('K1_PF', 0) or OPT('K1_PFEND', 0):
        e(f"  s_load_dwordx4 s[40:43], s[0:1], {KA_WSRE}")
    e("  s_waitcnt lgkmcnt(0)")
    if OPT('K1_PF', 0):
        e("  s_cmp_lg_u32 s15, 8")
        e("  s_cbranch_scc1 k1_main")
        e("  s_and_b32 s44, s2, 7")
        e("  s_cmp_lt_u32 s44, 4")
        e("  s_cselect_b32 s48, s40, s42")
        e("  s_cselect_b32 s49, s41, s43")
        e(f"  s_mov_b32 s50, {2048*2048*2}")
        e("  s_mov_b32 s51, 0x00020000")
        e("  s_and_b32 s44, s44, 3")
        e("  s_lshl_b32 s44, s44, 21")
        e("  s_lshr_b32 s45, s2, 3")
        e("  s_lshl_b32 s45, s45, 16")
        e("  s_add_u32 s44, s44, s45")
        e("  v_lshlrev_b32 v1, 4, v0")
        e("  s_cmp_lt_u32 s13, 4")
        e("  s_cselect_b32 s56, s8, s10")
        e("  s_cselect_b32 s57, s9, s11")
        e(f"  s_mov_b32 s58, {512*512*2}")
        e("  s_mov_b32 s59, 0x00020000")
        e("  s_and_b32 s46, s13, 3")
        e("  s_lshl_b32 s46, s46, 17")
        for q in range(OPT('K1_CAN', 0)):
            e(f"  buffer_load_dwordx4 v[8:11], v1, s[56:59], s46 offen offset:{q*1024}")
            e("  s_waitcnt vmcnt(0)")
        for q in range(64):
            e(f"  buffer_load_dwordx4 {vr(8+4*(q%32),4)}, v1, s[48:51], s44 offen")
            e("  s_add_u32 s44, s44, 1024")
        e("  s_branch k1_done")
        lab("k1_main")
    if FUSE:
        srd(96, 66, 67, 256)
        e("  s_cmp_lg_u32 s15, 8")
        e("  s_cbranch_scc1 f_main")
        e("  s_cmp_lg_u32 s2, 0")
        e("  s_cbranch_scc1 f_noepoch")
        e("  s_memrealtime s[40:41]")
        e("  s_waitcnt lgkmcnt(0)")
        e("  s_or_b32 s40, s40, 1")
        e("  v_mov_b32 v4, s40")
        e("  v_mov_b32 v5, 0")
        e("  s_mov_b64 s[42:43], exec")
        e("  s_mov_b64 exec, 1")
        e("  buffer_store_dword v4, v5, s[96:99], 0 offen sc1")
        e("  s_mov_b64 exec, s[42:43]")
        lab("f_noepoch")
        if OPT('F_PF', 0):
            e(f"  s_load_dwordx4 s[40:43], s[0:1], {KA_WSRE}")
            e("  s_and_b32 s44, s2, 7")
            e("  s_waitcnt lgkmcnt(0)")
            e("  s_cmp_lt_u32 s44, 4")
            e("  s_cselect_b32 s48, s40, s42")
            e("  s_cselect_b32 s49, s41, s43")
            e(f"  s_mov_b32 s50, {2048*2048*2}")
            e("  s_mov_b32 s51, 0x00020000")
            e("  s_and_b32 s44, s44, 3")
            e("  s_lshl_b32 s44, s44, 21")
            e("  s_lshr_b32 s45, s2, 3")
            e("  s_lshl_b32 s45, s45, 16")
            e("  s_add_u32 s44, s44, s45")
            e("  v_lshlrev_b32 v1, 4, v0")
            for q in range(64):
                e(f"  buffer_load_dwordx4 {vr(40+4*(q%24),4)}, v1, s[48:51], s44 offen")
                e("  s_add_u32 s44, s44, 1024")
        helper_wave()
        lab("f_main")
        hstamp(7)
    srd(16, 4, 5, 2048*512*2)
    e("  s_cmp_lt_u32 s13, 4")
    e("  s_cselect_b32 s20, s8, s10")
    e("  s_cselect_b32 s21, s9, s11")
    e(f"  s_mov_b32 s22, {512*512*2}")
    e("  s_mov_b32 s23, 0x00020000")
    srd(24, 6, 7, 9 << 20)
    if not FUSE:
        e("  s_or_b32 s46, s2, s15")
        e("  s_cmp_lg_u32 s46, 0")
        e("  s_cbranch_scc1 k1_nozero")
        for q in range(4):
            e(f"  v_mov_b32 v{4+q}, 0")
        e("  v_lshlrev_b32 v8, 4, v0")
        e(f"  s_mov_b32 s46, {WS_FLAG}")
        e("  buffer_store_dwordx4 v[4:7], v8, s[24:27], s46 offen")
        lab("k1_nozero")
    e("  s_lshl_b32 s28, s12, 6")
    e("  s_lshl_b32 s29, s15, 3")
    e("  s_add_u32 s28, s28, s29")
    e("  v_add_u32 v4, s28, v2")
    e("  v_lshlrev_b32 v4, 10, v4")
    e("  v_lshl_add_u32 v4, v3, 4, v4")
    X = 32
    for j in range(8):
        e(f"  buffer_load_dwordx4 {vr(X+4*j,4)}, v4, s[16:19], 0 offen offset:{128*j}")
    e("  s_and_b32 s30, s13, 3")
    e("  s_lshl_b32 s30, s30, 7")
    for ii in range(2):
        e(f"  s_lshl_b32 s31, s15, 4")
        e(f"  s_add_u32 s31, s31, {8*ii}")
        e(f"  v_add_u32 v7, s31, v2")
        e(f"  v_lshrrev_b32 v8, 1, v7")
        e(f"  v_and_b32 v8, 7, v8")
        e(f"  v_xor_b32 v8, v8, v3")
        e(f"  v_add_u32 v7, s30, v7")
        e(f"  v_lshlrev_b32 v7, 10, v7")
        e(f"  v_lshl_add_u32 v{5+ii}, v8, 4, v7")
    e("  s_lshl_b32 s32, s15, 11")
    def wdma(kb):
        slot = kb % 4
        e(f"  s_mov_b32 s33, {128*kb}")
        for ii in range(2):
            e(f"  s_add_u32 m0, s32, {slot*16384 + ii*1024}")
            e("  s_nop 0")
            e(f"  buffer_load_dwordx4 v{5+ii}, s[20:23], s33 offen lds")
    for kb in range(4):
        wdma(kb)
    PFM = OPT('F_PFM', 0)
    STG = 128
    if PFM:
        for kb in range(4, 8):
            e(f"  s_mov_b32 s33, {128*kb}")
            for ii in range(2):
                e(f"  buffer_load_dwordx4 {vr(STG+8*(kb-4)+4*ii,4)}, v{5+ii}, s[20:23], s33 offen")
    if PFM == 1:
        e("  s_and_b32 s44, s2, 7")
        e("  s_cmp_lt_u32 s44, 4")
        e("  s_cselect_b32 s48, s52, s54")
        e("  s_cselect_b32 s49, s53, s55")
        e(f"  s_mov_b32 s50, {2048*2048*2}")
        e("  s_mov_b32 s51, 0x00020000")
        e("  s_and_b32 s44, s44, 3")
        e("  s_lshl_b32 s44, s44, 21")
        e("  s_lshr_b32 s45, s2, 3")
        e("  s_lshl_b32 s45, s45, 16")
        e("  s_add_u32 s44, s44, s45")
        e("  s_lshl_b32 s45, s15, 13")
        e("  s_add_u32 s44, s44, s45")
        e("  v_lshlrev_b32 v7, 4, v0")
        for q in range(8):
            e(f"  buffer_load_dwordx4 v[160:163], v7, s[48:51], s44 offen")
            e("  s_add_u32 s44, s44, 1024")
    e("  s_mov_b32 s34, 0x3f803f80")
    for a in range(4):
        e(f"  v_mov_b32 v{8+a}, 0")
    e(f"  s_waitcnt vmcnt({24 if PFM == 1 else 16 if PFM else 8})")
    for i in range(32):
        e(f"  v_dot2_f32_bf16 v{8+i%4}, v{X+i}, s34, v{8+i%4}")
    e("  s_nop 3")
    e("  v_add_f32 v8, v8, v9")
    e("  v_add_f32 v10, v10, v11")
    e("  v_add_f32 v8, v8, v10")
    reduce8(8)
    e("  v_mul_f32 v8, 0x3b000000, v8")
    e("  v_cvt_pk_bf16_f32 v9, v8, v8")
    e("  v_lshlrev_b32 v9, 16, v9")
    e("  v_sub_f32 v10, 0, v9")
    e("  v_mov_b32 v11, v10")
    D = 64
    for a in range(4):
        e(f"  v_mov_b32 v{12+a}, 0")
    for i in range(32):
        e(f"  v_lshlrev_b32 v{D+2*i}, 16, v{X+i}")
        e(f"  v_and_b32 v{D+2*i+1}, 0xffff0000, v{X+i}")
        e(f"  v_pk_add_f32 {vr(D+2*i,2)}, {vr(D+2*i,2)}, v[10:11]")
        q = 12 + 2*(i % 2)
        e(f"  v_pk_fma_f32 {vr(q,2)}, {vr(D+2*i,2)}, {vr(D+2*i,2)}, {vr(q,2)}")
    e("  v_add_f32 v12, v12, v13")
    e("  v_add_f32 v14, v14, v15")
    e("  v_add_f32 v12, v12, v14")
    reduce8(12)
    e("  v_sub_f32 v13, v8, v9")
    e("  v_mul_f32 v13, v13, v13")
    e("  v_mul_f32 v12, 0x3b000000, v12")
    e("  v_sub_f32 v12, v12, v13")
    e("  v_max_f32 v12, 0, v12")
    e("  v_cvt_pk_bf16_f32 v12, v12, v12")
    e("  v_lshlrev_b32 v12, 16, v12")
    e("  v_add_f32 v12, 0x3727c5ac, v12")
    e("  v_cvt_pk_bf16_f32 v12, v12, v12")
    e("  v_lshlrev_b32 v12, 16, v12")
    e("  v_sqrt_f32 v12, v12")
    e("  s_nop 0")
    e("  v_cvt_pk_bf16_f32 v12, v12, v12")
    e("  v_lshlrev_b32 v12, 16, v12")
    e("  v_rcp_f32 v12, v12")
    e("  s_nop 0")
    e("  v_mov_b32 v13, v12")
    for i in range(32):
        e(f"  v_cvt_pk_bf16_f32 v{X+i}, v{D+2*i}, v{D+2*i+1}")
        e(f"  v_lshlrev_b32 v{D+2*i}, 16, v{X+i}")
        e(f"  v_and_b32 v{D+2*i+1}, 0xffff0000, v{X+i}")
        e(f"  v_pk_mul_f32 {vr(D+2*i,2)}, {vr(D+2*i,2)}, v[12:13]")
        e(f"  v_cvt_pk_bf16_f32 v{X+i}, v{D+2*i}, v{D+2*i+1}")
    e("  v_add_u32 v14, s29, v2")
    e("  v_lshrrev_b32 v15, 1, v14")
    e("  v_and_b32 v15, 7, v15")
    e("  v_xor_b32 v15, v15, v3")
    e("  v_lshlrev_b32 v14, 7, v14")
    e("  v_lshl_add_u32 v14, v15, 4, v14")
    e("  v_add_u32 v14, 0x10000, v14")
    for j in range(8):
        e(f"  ds_write_b128 v14, {vr(X+4*j,4)} offset:{8192*j}")
    e("  s_and_b32 s35, s15, 1")
    e("  s_lshr_b32 s36, s15, 1")
    e("  v_and_b32 v16, 31, v0")
    e("  v_lshrrev_b32 v17, 5, v0")
    def fragaddr(dst, sblk, base):
        e(f"  s_lshl_b32 s37, s{sblk}, 5")
        e(f"  v_add_u32 v18, s37, v16")
        e(f"  v_lshrrev_b32 v19, 1, v18")
        e(f"  v_and_b32 v19, 7, v19")
        e(f"  v_xor_b32 v19, v19, v17")
        e(f"  v_lshlrev_b32 v18, 7, v18")
        e(f"  v_lshl_add_u32 v{dst}, v19, 4, v18")
        if base:
            e(f"  v_add_u32 v{dst}, {base}, v{dst}")
        for kk in range(1, 4):
            e(f"  v_xor_b32 v{dst+kk}, {32*kk}, v{dst}")
    fragaddr(20, 35, 0x10000)
    fragaddr(24, 36, 0)
    ACC = 96
    for i in range(16):
        e(f"  v_mov_b32 v{ACC+i}, 0")
    FA, FB = 64, 80
    waits = [22, 14, 12, 10, 8, 8, 8, 8] if PFM == 1 else [14, 6, 4, 2, 0, 0, 0, 0] if PFM else [6, 4, 4, 4, 4, 4, 2, 0]
    if PFM:
        e("  v_lshlrev_b32 v28, 4, v0")
        e("  v_add_u32 v28, s32, v28")
    for kb in range(8):
        e(f"  s_waitcnt vmcnt({waits[kb]}) lgkmcnt(0)")
        e("  s_barrier")
        if 1 <= kb <= 4 and PFM:
            for ii in range(2):
                e(f"  ds_write_b128 v28, {vr(STG+8*(kb-1)+4*ii,4)} offset:{((kb+3)%4)*16384 + ii*1024}")
        elif 1 <= kb <= 4:
            wdma(kb + 3)
        slot = kb % 4
        for kk in range(4):
            e(f"  ds_read_b128 {vr(FA+4*kk,4)}, v{20+kk} offset:{8192*kb}")
            e(f"  ds_read_b128 {vr(FB+4*kk,4)}, v{24+kk} offset:{16384*slot}")
        for kk in range(4):
            e(f"  s_waitcnt lgkmcnt({6-2*kk})")
            e(f"  v_mfma_f32_32x32x16_bf16 {vr(ACC,16)}, {vr(FA+4*kk,4)}, {vr(FB+4*kk,4)}, {vr(ACC,16)}")
    stamp(5)
    e("  s_lshl_b32 s37, s13, 1")
    e("  s_lshr_b32 s38, s36, 1")
    e("  s_add_u32 s37, s37, s38")
    e("  s_lshl_b32 s37, s37, 5")
    e("  s_add_u32 s37, s37, s12")
    e("  s_lshl_b32 s37, s37, 13")
    e("  s_and_b32 s38, s36, 1")
    e("  s_lshl_b32 s38, s38, 5")
    e("  v_add_u32 v18, s38, v16")
    e("  v_lshrrev_b32 v19, 1, v18")
    e("  v_and_b32 v19, 7, v19")
    e("  s_lshl_b32 s38, s35, 2")
    e("  v_add_u32 v29, s38, v17")
    e("  v_xor_b32 v29, v29, v19")
    e("  v_lshlrev_b32 v18, 7, v18")
    e("  v_lshl_add_u32 v30, v29, 4, v18")
    e("  v_xor_b32 v31, 32, v30")
    e("  s_nop 7")
    P = 112
    for g in range(4):
        e(f"  v_cvt_pk_bf16_f32 v{P+2*g}, v{ACC+4*g}, v{ACC+4*g+1}")
        e(f"  v_cvt_pk_bf16_f32 v{P+2*g+1}, v{ACC+4*g+2}, v{ACC+4*g+3}")
    e("  s_nop 1")
    for p in range(2):
        e(f"  v_permlane32_swap_b32 v{P+4*p}, v{P+4*p+2}")
        e(f"  v_permlane32_swap_b32 v{P+4*p+1}, v{P+4*p+3}")
    if not FUSE:
        e(f"  buffer_store_dwordx4 {vr(P,4)}, v30, s[24:27], s37 offen")
        e(f"  buffer_store_dwordx4 {vr(P+4,4)}, v31, s[24:27], s37 offen")
        lab("k1_done")
        kernel_end()
        e("  s_endpgm")
        kernel_desc(name, 160)
        return
    TR = 131072
    e(f"  s_load_dwordx4 s[8:11], s[0:1], {KA_WSRE}")
    e("  s_lshr_b32 s38, s36, 1")
    e("  s_lshl_b32 s38, s38, 13")
    e(f"  s_add_u32 s38, s38, {TR}")
    e("  v_add_u32 v30, s38, v30")
    e("  v_add_u32 v31, s38, v31")
    e(f"  ds_write_b128 v30, {vr(P,4)}")
    e(f"  ds_write_b128 v31, {vr(P+4,4)}")
    e("  v_lshlrev_b32 v29, 4, v0")
    e("  s_lshl_b32 s38, s15, 11")
    e(f"  s_add_u32 s39, s38, {TR}")
    e("  v_add_u32 v28, s39, v29")
    e("  s_waitcnt lgkmcnt(0)")
    e("  s_barrier")
    e("  ds_read_b128 v[64:67], v28")
    e("  ds_read_b128 v[68:71], v28 offset:1024")
    e("  s_lshl_b32 s37, s13, 1")
    e("  s_lshr_b32 s39, s15, 2")
    e("  s_add_u32 s37, s37, s39")
    e("  s_lshl_b32 s37, s37, 5")
    e("  s_add_u32 s37, s37, s12")
    e("  s_lshl_b32 s37, s37, 13")
    e("  s_and_b32 s39, s15, 3")
    e("  s_lshl_b32 s39, s39, 11")
    e("  s_add_u32 s37, s37, s39")
    e("  s_waitcnt lgkmcnt(1)")
    e("  buffer_store_dwordx4 v[64:67], v29, s[24:27], s37 offen sc1")
    e("  s_waitcnt lgkmcnt(0)")
    e("  buffer_store_dwordx4 v[68:71], v29, s[24:27], s37 offen offset:1024 sc1")
    e("  s_lshl_b32 s70, s13, 5")
    e("  s_add_u32 s70, s70, s12")
    e("  s_lshl_b32 s70, s70, 2")
    e(f"  s_add_u32 s70, s70, {WS_FA}")

def k2_epilogue_plain(ACC):
    e("  s_lshl_b32 s24, s14, 21")
    e(f"  s_add_u32 s24, s24, {WS_Y}")
    e("  s_lshl_b32 s30, s13, 7")
    e("  s_add_u32 s24, s24, s30")
    e("  s_lshl_b32 s30, s12, 7")
    e("  s_lshl_b32 s31, s15, 5")
    e("  s_add_u32 s30, s30, s31")
    e("  v_add_u32 v18, s30, v16")
    e("  v_lshlrev_b32 v18, 10, v18")
    e("  v_lshl_add_u32 v18, v17, 4, v18")
    e("  s_nop 7")
    P = 64
    for g in range(8):
        e(f"  v_cvt_pk_bf16_f32 v{P+2*g}, v{ACC+4*g}, v{ACC+4*g+1}")
        e(f"  v_cvt_pk_bf16_f32 v{P+2*g+1}, v{ACC+4*g+2}, v{ACC+4*g+3}")
    e("  s_nop 1")
    for p in range(4):
        e(f"  v_permlane32_swap_b32 v{P+4*p}, v{P+4*p+2}")
        e(f"  v_permlane32_swap_b32 v{P+4*p+1}, v{P+4*p+3}")
    for p in range(4):
        e(f"  buffer_store_dwordx4 {vr(P+4*p,4)}, v18, s[20:23], s24 offen offset:{32*p}")

ROW_O = 48
def reduce32(v, t):
    reduce16(v)
    e("  s_nop 1")
    e(f"  ds_swizzle_b32 v{t}, v{v} offset:0x401F")
    e("  s_waitcnt lgkmcnt(0)")
    e(f"  v_add_f32 v{v}, v{v}, v{t}")

def rowmac32_pre():
    XX, WR = 48, 64
    e("  v_lshlrev_b32 v3, 10, v1")
    e("  v_lshl_add_u32 v3, v2, 4, v3")
    e("  v_lshlrev_b32 v4, 4, v2")
    for j in range(2):
        e(f"  buffer_load_dwordx4 {vr(XX+4*j,4)}, v3, s[20:23], 0 offen offset:{512*j}")
        e(f"  buffer_load_dwordx4 {vr(WR+4*j,4)}, v4, s[28:31], 0 offen offset:{512*j}")

def rowmac32():
    YR, YI, XX, WR, H, T, D = 16, 32, 48, 64, 80, 112, 116
    O = ROW_O
    e(f"  s_mov_b32 s52, {WS_Y}")
    e(f"  s_mov_b32 s53, {WS_Y + (2<<20)}")
    for j in range(2):
        e(f"  buffer_load_dwordx4 {vr(YR+4*j,4)}, v3, s[24:27], s52 offen offset:{512*j} sc1")
        e(f"  buffer_load_dwordx4 {vr(YI+4*j,4)}, v3, s[24:27], s53 offen offset:{512*j} sc1")
    e("  v_mov_b32 v14, 0")
    e("  v_mov_b32 v15, 0")
    for j in range(2):
        e(f"  s_waitcnt vmcnt({2*(1-j)})")
        for q in range(4):
            i = 4*j + q
            e(f"  v_lshlrev_b32 v{T}, 16, v{YR+i}")
            e(f"  v_and_b32 v{T+1}, 0xffff0000, v{YR+i}")
            e(f"  v_lshlrev_b32 v{T+2}, 16, v{YI+i}")
            e(f"  v_and_b32 v{T+3}, 0xffff0000, v{YI+i}")
            e(f"  v_pk_add_f32 {vr(T,2)}, {vr(T,2)}, {vr(T+2,2)} neg_lo:[0,1] neg_hi:[0,1]")
            e(f"  v_cvt_pk_bf16_f32 v{T}, v{T}, v{T+1}")
            e(f"  v_and_b32 v{T+1}, 0xffff0000, v{T}")
            e(f"  v_lshlrev_b32 v{T}, 16, v{T}")
            e(f"  v_lshlrev_b32 v{T+2}, 16, v{XX+i}")
            e(f"  v_and_b32 v{T+3}, 0xffff0000, v{XX+i}")
            e(f"  v_pk_add_f32 {vr(T,2)}, {vr(T,2)}, {vr(T+2,2)}")
            e(f"  v_cvt_pk_bf16_f32 v{T}, v{T}, v{T+1}")
            e(f"  v_lshlrev_b32 v{H+2*i}, 16, v{T}")
            e(f"  v_and_b32 v{H+2*i+1}, 0xffff0000, v{T}")
            e(f"  v_pk_add_f32 v[14:15], v[14:15], {vr(H+2*i,2)}")
    e("  v_add_f32 v5, v14, v15")
    reduce32(5, 13)
    e("  v_mul_f32 v5, 0x3b000000, v5")
    e("  v_cvt_pk_bf16_f32 v6, v5, v5")
    e("  v_lshlrev_b32 v6, 16, v6")
    e("  v_sub_f32 v8, 0, v6")
    e("  v_mov_b32 v9, v8")
    e("  v_mov_b32 v10, 0")
    e("  v_mov_b32 v11, 0")
    for i in range(8):
        e(f"  v_pk_add_f32 {vr(D+2*i,2)}, {vr(H+2*i,2)}, v[8:9]")
        e(f"  v_pk_fma_f32 v[10:11], {vr(D+2*i,2)}, {vr(D+2*i,2)}, v[10:11]")
    e("  v_add_f32 v10, v10, v11")
    reduce32(10, 13)
    e("  v_sub_f32 v11, v5, v6")
    e("  v_mul_f32 v11, v11, v11")
    e("  v_mul_f32 v10, 0x3b000000, v10")
    e("  v_sub_f32 v10, v10, v11")
    e("  v_max_f32 v10, 0, v10")
    e("  v_cvt_pk_bf16_f32 v10, v10, v10")
    e("  v_lshlrev_b32 v10, 16, v10")
    e("  v_add_f32 v10, 0x3727c5ac, v10")
    e("  v_cvt_pk_bf16_f32 v10, v10, v10")
    e("  v_lshlrev_b32 v10, 16, v10")
    e("  v_sqrt_f32 v10, v10")
    e("  s_nop 0")
    e("  v_cvt_pk_bf16_f32 v10, v10, v10")
    e("  v_lshlrev_b32 v10, 16, v10")
    e("  v_rcp_f32 v10, v10")
    e("  s_nop 0")
    e("  v_mov_b32 v11, v10")
    e("  v_mov_b32 v12, 0")
    for i in range(8):
        e(f"  v_cvt_pk_bf16_f32 v{T}, v{D+2*i}, v{D+2*i+1}")
        e(f"  v_lshlrev_b32 v{D+2*i}, 16, v{T}")
        e(f"  v_and_b32 v{D+2*i+1}, 0xffff0000, v{T}")
        e(f"  v_pk_mul_f32 {vr(D+2*i,2)}, {vr(D+2*i,2)}, v[10:11]")
        e(f"  v_cvt_pk_bf16_f32 v{T}, v{D+2*i}, v{D+2*i+1}")
        e(f"  v_dot2_f32_bf16 v12, v{T}, v{WR+i}, v12")
        e(f"  v_lshlrev_b32 v{D+2*i}, 16, v{T}")
        e(f"  v_and_b32 v{D+2*i+1}, 0xffff0000, v{T}")
        e(f"  v_pk_add_f32 {vr(D+2*i,2)}, {vr(D+2*i,2)}, {vr(H+2*i,2)}")
        e(f"  v_cvt_pk_bf16_f32 v{O+i}, v{D+2*i}, v{D+2*i+1}")
    if not MEGA:
        for j in range(2):
            e(f"  buffer_store_dwordx4 {vr(O+4*j,4)}, v3, s[44:47], 0 offen offset:{512*j}")
    e("  s_nop 3")
    reduce32(12, 13)
    e("  v_cvt_pk_bf16_f32 v12, v12, v12")
    e("  v_lshlrev_b32 v12, 16, v12")
    e("  v_ashrrev_i32 v13, 31, v12")
    e("  v_or_b32 v13, 0x80000000, v13")
    e("  v_xor_b32 v12, v12, v13")
    e("  v_and_b32 v12, 0xffff0000, v12")
    e("  v_sub_u32 v13, 0xffff, v1")
    e("  v_or_b32 v12, v12, v13")

MT_C, MT_R, MT_WD = 0, 256, 8704
MT_G, MT_U, MT_XS = 8704, 8704 + 8192, 8704 + 16384
def poll_end(lbl):
    e("  s_nop 3")
    e("  s_cmp_eq_u64 s[54:55], 0")
    e(f"  s_cbranch_scc1 {lbl}_ok")
    e("  s_add_u32 s53, s53, 1")
    e(f"  s_cmp_gt_u32 s53, {1 << 22}")
    e(f"  s_cbranch_scc1 {lbl}_ok")
    e(f"  s_branch {lbl}")
    lab(f"{lbl}_ok")

def mega_gu_dma():
    e("  s_and_b32 s3, s2, 7")
    e("  s_mul_i32 s3, s3, 28")
    e("  s_lshr_b32 s32, s2, 3")
    e("  s_add_u32 s3, s3, s32")
    e("  s_cmp_ge_u32 s2, 224")
    e("  s_cbranch_scc1 mt_nogu")
    srd(16, 58, 59, 512*1792*2)
    srd(8, 60, 61, 512*1792*2)
    e("  s_lshl_b32 s35, s3, 4")
    e("  s_movk_i32 s32, 3584")
    for ii in range(2):
        e(f"  s_lshl_b32 s33, s15, 7")
        e(f"  s_add_u32 s33, s33, {64*ii}")
        e(f"  v_add_u32 v8, s33, v0")
        e(f"  v_mul_lo_u32 v8, v8, s32")
        e(f"  s_lshl_b32 s34, s15, 11")
        e(f"  s_add_u32 m0, s34, {MT_G + 1024*ii}")
        e("  s_nop 0")
        e(f"  buffer_load_dwordx4 v8, s[16:19], s35 offen lds")
        e(f"  s_add_u32 m0, s34, {MT_U + 1024*ii}")
        e("  s_nop 0")
        e(f"  buffer_load_dwordx4 v8, s[8:11], s35 offen lds")
    lab("mt_nogu")

def mega_tail():
    C = MT_C
    for i in range(8):
        e(f"  v_mov_b32 v{152+i}, v{48+i}")
    e("  v_mov_b32 v151, v1")
    e("  v_mov_b32 v150, v3")
    e("  v_lshl_add_u32 v40, s15, 6, v0")
    e("  v_mov_b32 v16, v12")
    e("  v_mov_b32 v17, v6")
    e("  v_mov_b32 v18, v10")
    e("  v_mov_b32 v19, s68")
    e("  v_lshlrev_b32 v13, 4, v1")
    e("  v_cmp_eq_u32 vcc, 0, v2")
    e("  s_and_saveexec_b64 s[50:51], vcc")
    e(f"  s_mov_b32 s52, {WS_REC}")
    e("  buffer_store_dwordx4 v[16:19], v13, s[24:27], s52 offen sc1")
    e("  s_mov_b64 exec, s[50:51]")
    e("  s_cmp_lg_u32 s2, 255")
    e("  s_cbranch_scc1 mt_nosel")
    e("  v_lshlrev_b32 v13, 4, v40")
    e("  s_mov_b32 s53, 0")
    lab("mt_prec")
    for i in range(8):
        e(f"  s_mov_b32 s52, {WS_REC + 4096*i}")
        e(f"  buffer_load_dwordx4 {vr(64+4*i,4)}, v13, s[24:27], s52 offen sc1")
    e("  v_mov_b32 v14, 0")
    for i in range(8):
        e(f"  s_waitcnt vmcnt({7-i})")
        e(f"  v_xor_b32 v15, s68, v{67+4*i}")
        e("  v_or_b32 v14, v14, v15")
    e("  v_cmp_ne_u32 s[54:55], 0, v14")
    poll_end("mt_prec")
    top8([64+4*i for i in range(8)], range(16, 24), C, "s15")
    e("  v_and_b32 v3, 31, v0")
    e("  v_lshlrev_b32 v3, 2, v3")
    e(f"  ds_read_b32 v24, v3 offset:{C}")
    e("  v_mov_b32 v4, 0")
    for q in range(8):
        e(f"  ds_read_b128 {vr(96+4*q,4)}, v4 offset:{C+16*q}")
    e("  v_mov_b32 v25, 0")
    e("  s_waitcnt lgkmcnt(0)")
    sp = [32, 34, 36, 38]
    for i in range(32 + 3):
        if i < 32:
            e(f"  v_cmp_gt_u32 s[{sp[i%4]}:{sp[i%4]+1}], v{96+i}, v24")
        if i >= 3:
            j = i - 3
            e(f"  v_addc_co_u32 v25, vcc, 0, v25, s[{sp[j%4]}:{sp[j%4]+1}]")
    e("  s_cmp_lg_u32 s15, 0")
    e("  s_cbranch_scc1 mt_nosel")
    e("  v_lshlrev_b32 v3, 3, v25")
    e("  v_mov_b32 v26, v24")
    e("  v_mov_b32 v27, s68")
    e("  v_cmp_gt_u32 vcc, 8, v25")
    e("  v_cmp_gt_u32 s[42:43], 32, v0")
    e("  s_and_b64 vcc, vcc, s[42:43]")
    e("  s_and_saveexec_b64 s[50:51], vcc")
    e(f"  s_mov_b32 s52, {WS_SEL}")
    e("  buffer_store_dwordx2 v[26:27], v3, s[24:27], s52 offen sc1")
    e("  s_mov_b64 exec, s[50:51]")
    lab("mt_nosel")
    e("  s_cmp_lg_u32 s15, 0")
    e("  s_cbranch_scc1 mt_selbar")
    e("  v_and_b32 v3, 7, v0")
    e("  v_lshlrev_b32 v4, 3, v3")
    e("  v_lshlrev_b32 v3, 2, v3")
    e(f"  s_mov_b32 s52, {WS_SEL}")
    e("  s_mov_b32 s53, 0")
    lab("mt_psel")
    e("  buffer_load_dwordx2 v[26:27], v4, s[24:27], s52 offen sc1")
    e("  s_waitcnt vmcnt(0)")
    e("  v_cmp_ne_u32 s[54:55], s68, v27")
    poll_end("mt_psel")
    e(f"  ds_write_b32 v3, v26 offset:{C+128}")
    e("  s_waitcnt lgkmcnt(0)")
    lab("mt_selbar")
    e("  s_barrier")
    stamp(5)
    e("  v_mov_b32 v4, 0")
    e(f"  ds_read_b128 v[16:19], v4 offset:{C+128}")
    e(f"  ds_read_b128 v[20:23], v4 offset:{C+144}")
    e("  v_sub_u32 v5, 0xffff, v151")
    e("  s_waitcnt lgkmcnt(0)")
    e("  s_mov_b64 s[42:43], exec")
    for k in range(8):
        e(f"  v_and_b32 v{16+k}, 0xffff, v{16+k}")
        e(f"  v_cmp_ne_u32 vcc, v{16+k}, v5")
        e("  s_and_b64 s[42:43], s[42:43], vcc")
    e("  s_and_saveexec_b64 s[50:51], s[42:43]")
    e("  s_cbranch_execz mt_nostore")
    for j in range(2):
        e(f"  buffer_store_dwordx4 {vr(152+4*j,4)}, v150, s[44:47], 0 offen offset:{512*j}")
    lab("mt_nostore")
    e("  s_mov_b64 exec, s[50:51]")
    e("  s_cmp_ge_u32 s2, 240")
    e("  s_cbranch_scc1 k2_done")
    e("  s_cmp_ge_u32 s2, 224")
    e("  s_cbranch_scc1 mt_f2")
    e("  v_lshrrev_b32 v4, 5, v40")
    e("  v_and_b32 v5, 31, v40")
    e("  v_lshlrev_b32 v3, 2, v4")
    e(f"  ds_read_b32 v6, v3 offset:{C+128}")
    e("  s_waitcnt lgkmcnt(0)")
    e("  v_and_b32 v6, 0xffff, v6")
    e("  v_sub_u32 v6, 0xffff, v6")
    e("  v_lshlrev_b32 v7, 10, v6")
    e("  v_lshl_add_u32 v7, v5, 4, v7")
    e(f"  s_mov_b32 s52, {WS_Y}")
    e(f"  s_mov_b32 s53, {WS_Y + (2<<20)}")
    YR, YI, XX = 16, 24, 32
    for j in range(2):
        e(f"  buffer_load_dwordx4 {vr(YR+4*j,4)}, v7, s[24:27], s52 offen offset:{512*j} sc1")
        e(f"  buffer_load_dwordx4 {vr(YI+4*j,4)}, v7, s[24:27], s53 offen offset:{512*j} sc1")
        e(f"  buffer_load_dwordx4 {vr(XX+4*j,4)}, v7, s[20:23], 0 offen offset:{512*j}")
    e("  v_lshlrev_b32 v3, 4, v6")
    e(f"  s_mov_b32 s52, {WS_REC}")
    e("  buffer_load_dwordx4 v[44:47], v3, s[24:27], s52 offen sc1")
    e("  s_waitcnt vmcnt(0)")
    e("  v_sub_f32 v54, 0, v45")
    e("  v_mov_b32 v55, v54")
    e("  v_mov_b32 v52, v46")
    e("  v_mov_b32 v53, v46")
    recompute(YR, YI, XX, 8, 54, 52, 64, 80, 56)
    e(f"  v_mul_u32_u24 v3, {XS_STRIDE}, v4")
    e("  v_lshl_add_u32 v3, v5, 4, v3")
    e(f"  ds_write_b128 v3, v[80:83] offset:{MT_XS}")
    e(f"  ds_write_b128 v3, v[84:87] offset:{MT_XS+512}")
    e("  s_waitcnt lgkmcnt(0)")
    e("  s_barrier")
    e("  s_cmp_lg_u32 s15, 0")
    e("  s_cbranch_scc1 k2_done")
    e("  v_and_b32 v3, 7, v0")
    e(f"  v_mul_u32_u24 v3, {XS_STRIDE}, v3")
    e("  v_lshrrev_b32 v4, 4, v0")
    e("  v_lshl_add_u32 v3, v4, 4, v3")
    e("  v_and_b32 v5, 15, v0")
    e("  v_lshrrev_b32 v5, 2, v5")
    e("  v_lshl_add_u32 v5, v4, 3, v5")
    e("  v_lshlrev_b32 v5, 4, v5")
    e("  v_and_b32 v6, 1, v0")
    e("  v_lshl_add_u32 v5, v6, 3, v5")
    e("  v_and_b32 v6, 2, v0")
    e("  v_lshl_add_u32 v5, v6, 12, v5")
    for i in range(4):
        e(f"  v_mov_b32 v{8+i}, 0")
    FA, FB = 16, 80
    for st in range(16):
        e(f"  ds_read_b128 {vr(FA+4*st,4)}, v3 offset:{MT_XS + 64*st}")
        e(f"  ds_read_b64_tr_b16 {vr(FB+4*st,2)}, v5 offset:{MT_G+512*st}")
        e(f"  ds_read_b64_tr_b16 {vr(FB+4*st+2,2)}, v5 offset:{MT_G+512*st+64}")
        if st % 4 == 3:
            e("  s_waitcnt lgkmcnt(0)")
            for s2 in range(st-3, st+1):
                e(f"  v_mfma_f32_16x16x32_bf16 v[8:11], {vr(FA+4*s2,4)}, {vr(FB+4*s2,4)}, v[8:11]")
    e("  s_nop 15")
    for i in range(4):
        e(f"  v_cvt_pk_bf16_f32 v{8+i}, v{8+i}, v{8+i}")
        e(f"  v_lshlrev_b32 v{8+i}, 16, v{8+i}")
    e("  s_nop 1")
    for i in range(4):
        e(f"  v_mov_b32_dpp v{12+i}, v{8+i} row_ror:8 row_mask:0xf bank_mask:0xf")
    for i in range(4):
        e(f"  v_mul_f32 v16, 0xbfb8aa3b, v{8+i}")
        e("  v_exp_f32 v16, v16")
        e("  s_nop 0")
        e("  v_add_f32 v16, 1.0, v16")
        e("  v_rcp_f32 v16, v16")
        e("  s_nop 0")
        e(f"  v_mul_f32 v16, v{8+i}, v16")
        e("  v_cvt_pk_bf16_f32 v16, v16, v16")
        e("  v_lshlrev_b32 v16, 16, v16")
        e(f"  v_mul_f32 v16, v16, v{12+i}")
        e(f"  v_cvt_pk_bf16_f32 v{20+i}, v16, v16")
    e("  s_nop 1")
    for i in range(4):
        e(f"  v_mov_b32_dpp v{24+i}, v{20+i} quad_perm:[1,0,3,2] row_mask:0xf bank_mask:0xf")
    for i in range(4):
        e(f"  v_and_b32 v{20+i}, 0xffff, v{20+i}")
        e(f"  v_and_b32 v{24+i}, 0xffff0000, v{24+i}")
        e(f"  v_or_b32 v{20+i}, v{20+i}, v{24+i}")
        e(f"  v_min_u32 v{20+i}, 0xfffeffff, v{20+i}")
    e("  v_and_b32 v5, 15, v0")
    e("  v_lshlrev_b32 v4, 6, v4")
    e("  v_lshl_add_u32 v4, v5, 1, v4")
    e("  v_lshlrev_b32 v7, 4, v0")
    e("  v_and_b32 v6, 9, v0")
    e("  v_cmp_eq_u32 vcc, 0, v6")
    e("  v_cmp_gt_u32 s[42:43], 32, v0")
    e("  s_and_b64 vcc, vcc, s[42:43]")
    e("  s_and_saveexec_b64 s[50:51], vcc")
    for i in range(4):
        e(f"  ds_write_b32 v4, v{20+i} offset:{MT_R+16*i}")
    e("  s_mov_b64 exec, 0xff")
    e("  s_waitcnt lgkmcnt(0)")
    e(f"  ds_read_b128 v[24:27], v7 offset:{MT_R}")
    e("  s_lshl_b32 s35, s3, 7")
    e(f"  s_add_u32 s35, s35, {WS_GU}")
    e("  s_waitcnt lgkmcnt(0)")
    e("  buffer_store_dwordx4 v[24:27], v7, s[24:27], s35 offen sc1")
    e("  s_mov_b64 exec, -1")
    hstamp(8)
    e("  s_branch k2_done")
    lab("mt_f2")
    e("  s_sub_u32 s49, s2, 224")
    e("  v_lshlrev_b32 v3, 4, v0")
    e("  s_mul_i32 s34, s15, 7168")
    e(f"  s_mul_i32 s33, s49, {4*28672}")
    e("  s_add_u32 s33, s33, s34")
    e(f"  s_add_u32 s33, s33, {WS_WDB}")
    for dsl in range(4):
        for i in range(7):
            e(f"  s_add_u32 m0, s34, {MT_WD + dsl*28672 + 1024*i}")
            e("  s_nop 0")
            e(f"  buffer_load_dwordx4 v3, s[24:27], s33 offen sc1 lds")
            e(f"  s_add_u32 s33, s33, {1024 if i < 6 else 28672 - 6*1024}")
    e("  v_lshrrev_b32 v5, 4, v0")
    e("  v_and_b32 v6, 1, v5")
    e("  v_lshlrev_b32 v6, 4, v6")
    e(f"  ds_read_b128 v[24:27], v6 offset:{C+128}")
    e("  v_and_b32 v6, 15, v0")
    e("  s_lshl_b32 s35, s49, 6")
    e("  s_waitcnt lgkmcnt(0)")
    for i in range(4):
        e(f"  v_and_b32 v{28+i}, 0xffff, v{24+i}")
        e(f"  v_sub_u32 v{28+i}, 0xffff, v{28+i}")
        e(f"  v_lshlrev_b32 v{32+i}, 4, v{28+i}")
        e(f"  v_lshlrev_b32 v{28+i}, 10, v{28+i}")
        e(f"  v_lshl_add_u32 v{28+i}, v6, 1, v{28+i}")
        e(f"  v_add_u32 v{28+i}, s35, v{28+i}")
    E0 = 136
    e("  s_cmp_lg_u32 s15, 0")
    e("  s_cbranch_scc1 mt_noepi")
    e(f"  s_mov_b32 s36, {WS_Y}")
    e(f"  s_mov_b32 s37, {WS_Y + (2<<20)}")
    e(f"  s_mov_b32 s38, {WS_REC}")
    for a in range(2):
        for i in range(4):
            e(f"  buffer_load_ushort v{E0+12*a+i}, v{28+i}, s[24:27], s36 offen offset:{32*a} sc1")
            e(f"  buffer_load_ushort v{E0+4+12*a+i}, v{28+i}, s[24:27], s37 offen offset:{32*a} sc1")
            e(f"  buffer_load_ushort v{E0+8+12*a+i}, v{28+i}, s[20:23], 0 offen offset:{32*a}")
    for i in range(4):
        e(f"  buffer_load_dwordx4 {vr(36+4*i,4)}, v{32+i}, s[24:27], s38 offen sc1")
    lab("mt_noepi")
    e("  v_lshrrev_b32 v7, 2, v6")
    e("  v_lshl_add_u32 v7, v5, 3, v7")
    e("  v_lshlrev_b32 v7, 4, v7")
    e("  v_and_b32 v60, 1, v0")
    e("  v_lshl_add_u32 v7, v60, 3, v7")
    e("  v_and_b32 v60, 2, v0")
    e("  v_mul_u32_u24 v60, 14336, v60")
    e("  v_add_u32 v7, v60, v7")
    e("  v_add_u32 v7, s34, v7")
    e(f"  v_add_u32 v61, {2*28672}, v7")
    for i in range(8):
        e(f"  v_mov_b32 v{8+i}, 0")
    e("  s_waitcnt vmcnt(0)")
    for i in range(4):
        e(f"  v_and_b32 v60, 0xffff0000, v{24+i}")
        e("  v_ashrrev_i32 v62, 31, v60")
        e("  v_not_b32 v62, v62")
        e("  v_or_b32 v62, 0x80000000, v62")
        e("  v_xor_b32 v60, v60, v62")
        e("  v_and_b32 v60, 0xffff0000, v60")
        e("  v_mul_f32 v60, 0xbfb8aa3b, v60")
        e("  v_exp_f32 v60, v60")
        e("  s_nop 0")
        e("  v_add_f32 v60, 1.0, v60")
        e("  v_rcp_f32 v60, v60")
        e("  s_nop 0")
        e("  v_cvt_pk_bf16_f32 v60, v60, v60")
        e(f"  v_lshlrev_b32 v{24+i}, 16, v60")
    for a in range(2):
        for i in range(4):
            r0, r1, r2 = E0+12*a+i, E0+4+12*a+i, E0+8+12*a+i
            e(f"  v_lshlrev_b32 v{r0}, 16, v{r0}")
            e(f"  v_lshlrev_b32 v{r1}, 16, v{r1}")
            e(f"  v_lshlrev_b32 v{r2}, 16, v{r2}")
            e(f"  v_sub_f32 v60, v{r0}, v{r1}")
            e("  v_cvt_pk_bf16_f32 v60, v60, v60")
            e("  v_lshlrev_b32 v60, 16, v60")
            e(f"  v_add_f32 v60, v{r2}, v60")
            e("  v_cvt_pk_bf16_f32 v60, v60, v60")
            e(f"  v_lshlrev_b32 v{r0}, 16, v60")
            e(f"  v_sub_f32 v62, v{r0}, v{37+4*i}")
            e("  v_cvt_pk_bf16_f32 v62, v62, v62")
            e("  v_lshlrev_b32 v62, 16, v62")
            e(f"  v_mul_f32 v62, v62, v{38+4*i}")
            e("  v_cvt_pk_bf16_f32 v62, v62, v62")
            e(f"  v_lshlrev_b32 v{r1}, 16, v62")
    e("  v_and_b32 v4, 7, v0")
    e("  v_lshlrev_b32 v4, 4, v4")
    e("  v_lshl_add_u32 v4, v5, 7, v4")
    e("  v_add_u32 v62, 4096, v4")
    e("  s_mul_i32 s52, s15, 7168")
    e(f"  s_add_u32 s52, s52, {WS_GU}")
    FA = 64
    e("  s_mov_b32 s53, 0")
    lab("mt_pgu")
    for st in range(14):
        if st < 8:
            e(f"  buffer_load_dwordx4 {vr(FA+4*st,4)}, v4, s[24:27], s52 offen offset:{512*st} sc1")
        else:
            e(f"  buffer_load_dwordx4 {vr(FA+4*st,4)}, v62, s[24:27], s52 offen offset:{512*(st-8)} sc1")
    e("  v_mov_b32 v3, 0")
    for st in range(14):
        e(f"  s_waitcnt vmcnt({13-st})")
        e(f"  v_max3_u32 v3, v3, v{FA+4*st}, v{FA+4*st+1}")
        e(f"  v_max3_u32 v3, v3, v{FA+4*st+2}, v{FA+4*st+3}")
    e("  v_cmp_eq_u32 s[54:55], -1, v3")
    poll_end("mt_pgu")
    hstamp(9, 224)
    def rdB(st):
        b = 120 + 8 * (st % 2)
        e(f"  ds_read_b64_tr_b16 {vr(b,2)}, v7 offset:{MT_WD+512*st}")
        e(f"  ds_read_b64_tr_b16 {vr(b+2,2)}, v7 offset:{MT_WD+512*st+64}")
        e(f"  ds_read_b64_tr_b16 {vr(b+4,2)}, v61 offset:{MT_WD+512*st}")
        e(f"  ds_read_b64_tr_b16 {vr(b+6,2)}, v61 offset:{MT_WD+512*st+64}")
    rdB(0)
    for st in range(14):
        b = 120 + 8 * (st % 2)
        if st < 13:
            rdB(st + 1)
            e("  s_waitcnt lgkmcnt(4)")
        else:
            e("  s_waitcnt lgkmcnt(0)")
        e(f"  v_mfma_f32_16x16x32_bf16 v[8:11], {vr(FA+4*st,4)}, {vr(b,4)}, v[8:11]")
        e(f"  v_mfma_f32_16x16x32_bf16 v[12:15], {vr(FA+4*st,4)}, {vr(b+4,4)}, v[12:15]")
        e("  s_nop 3")
    e("  s_nop 15")
    e("  v_lshlrev_b32 v3, 4, v0")
    e("  s_lshl_b32 s33, s15, 11")
    e("  v_add_u32 v3, s33, v3")
    e(f"  ds_write_b128 v3, v[8:11] offset:{MT_R}")
    e(f"  ds_write_b128 v3, v[12:15] offset:{MT_R+1024}")
    e("  s_waitcnt lgkmcnt(0)")
    e("  s_barrier")
    e("  s_cmp_lg_u32 s15, 0")
    e("  s_cbranch_scc1 k2_done")
    e("  v_lshlrev_b32 v3, 4, v0")
    for w in range(1, 4):
        for a in range(2):
            e(f"  ds_read_b128 {vr(72+8*(w-1)+4*a,4)}, v3 offset:{MT_R+2048*w+1024*a}")
    e("  v_cmp_gt_u32 vcc, 32, v0")
    e("  s_and_saveexec_b64 s[50:51], vcc")
    e("  s_waitcnt lgkmcnt(0)")
    for a in range(2):
        for i in range(4):
            y = 8 + 4*a + i
            e(f"  v_add_f32 v{y}, v{y}, v{72+4*a+i}")
            e(f"  v_add_f32 v60, v{80+4*a+i}, v{88+4*a+i}")
            e(f"  v_add_f32 v{y}, v{y}, v60")
            e(f"  v_cvt_pk_bf16_f32 v{y}, v{y}, v{y}")
            e(f"  v_lshlrev_b32 v{y}, 16, v{y}")
            e(f"  v_mul_f32 v{y}, v{y}, v{24+i}")
            e(f"  v_cvt_pk_bf16_f32 v{y}, v{y}, v{y}")
            e(f"  v_lshlrev_b32 v{y}, 16, v{y}")
            e(f"  v_add_f32 v61, v{E0+4+12*a+i}, v{y}")
            e("  v_cvt_pk_bf16_f32 v61, v61, v61")
            e("  v_lshlrev_b32 v61, 16, v61")
            e(f"  v_add_f32 v61, v{E0+12*a+i}, v61")
            e("  v_cvt_pk_bf16_f32 v61, v61, v61")
            e(f"  buffer_store_short v61, v{28+i}, s[44:47], 0 offen offset:{32*a}")
    e("  s_mov_b64 exec, -1")
    hstamp(10, 224)

def k2_epilogue_fused(ACC):
    TB = 49152
    e("  s_nop 15")
    P = 64
    for g in range(8):
        e(f"  v_cvt_pk_bf16_f32 v{P+2*g}, v{ACC+4*g}, v{ACC+4*g+1}")
        e(f"  v_cvt_pk_bf16_f32 v{P+2*g+1}, v{ACC+4*g+2}, v{ACC+4*g+3}")
    e("  s_mul_i32 s30, s15, 4608")
    e(f"  s_add_u32 s30, s30, {TB}")
    e("  v_mul_u32_u24 v18, 144, v16")
    e("  v_lshl_add_u32 v18, v17, 3, v18")
    e("  v_add_u32 v18, s30, v18")
    for g in range(8):
        e(f"  ds_write_b64 v18, {vr(P+2*g,2)} offset:{16*g}")
    e("  v_lshrrev_b32 v19, 3, v0")
    e("  v_and_b32 v22, 7, v0")
    e("  v_mul_u32_u24 v20, 144, v19")
    e("  v_lshl_add_u32 v20, v22, 4, v20")
    e("  v_add_u32 v20, s30, v20")
    e("  s_waitcnt lgkmcnt(0)")
    for q in range(4):
        e(f"  ds_read_b128 {vr(80+4*q,4)}, v20 offset:{8*144*q}")
    e("  s_lshl_b32 s24, s14, 21")
    e(f"  s_add_u32 s24, s24, {WS_Y}")
    e("  s_lshl_b32 s30, s13, 7")
    e("  s_add_u32 s24, s24, s30")
    e("  s_lshl_b32 s30, s12, 7")
    e("  s_lshl_b32 s31, s15, 5")
    e("  s_add_u32 s30, s30, s31")
    e("  v_add_u32 v21, s30, v19")
    e("  v_lshlrev_b32 v21, 10, v21")
    e("  v_lshl_add_u32 v21, v22, 4, v21")
    for q in range(4):
        e(f"  s_waitcnt lgkmcnt({3-q})")
        e(f"  buffer_store_dwordx4 {vr(80+4*q,4)}, v21, s[20:23], s24 offen sc1")
        if q < 3: e("  v_add_u32 v21, 0x2000, v21")
    e("  s_waitcnt vmcnt(0)")
    e("  s_barrier")
    e(f"  s_load_dwordx2 s[4:5], s[0:1], {KA_X}")
    e(f"  s_load_dwordx8 s[56:63], s[0:1], {KA_WR}")
    e(f"  s_load_dwordx2 s[64:65], s[0:1], {KA_OUT}")
    srd(24, 6, 7, 12 << 20)
    e("  s_lshl_b32 s48, s14, 3")
    e("  s_add_u32 s48, s48, s13")
    e("  s_cmp_lg_u32 s15, 0")
    e("  s_cbranch_scc1 k2_noflag")
    e("  s_lshl_b32 s49, s12, 6")
    e("  s_lshl_b32 s50, s48, 2")
    e("  s_add_u32 s49, s49, s50")
    e(f"  s_add_u32 s49, s49, {WS_FLAG}")
    e("  v_mov_b32 v4, s68" if FUSE else "  v_mov_b32 v4, 1")
    e("  v_mov_b32 v5, 0")
    e("  s_mov_b64 s[50:51], exec")
    e("  s_mov_b64 exec, 1")
    e("  buffer_store_dword v4, v5, s[24:27], s49 offen sc1")
    e("  s_mov_b64 exec, s[50:51]")
    lab("k2_noflag")
    e("  s_waitcnt lgkmcnt(0)")
    srd(20, 4, 5, 2 << 20)
    srd(28, 56, 57, 1024)
    srd(44, 64, 65, 2 << 20)
    e("  v_lshrrev_b32 v1, 5, v0")
    e("  v_and_b32 v2, 31, v0")
    e("  s_lshl_b32 s52, s12, 7")
    e("  s_lshl_b32 s53, s48, 3")
    e("  s_add_u32 s52, s52, s53")
    e("  s_lshl_b32 s53, s15, 1")
    e("  s_add_u32 s52, s52, s53")
    e("  v_add_u32 v1, s52, v1")
    rowmac32_pre()
    if MEGA: mega_gu_dma()
    e("  v_and_b32 v7, 15, v0")
    e("  v_lshlrev_b32 v7, 2, v7")
    e("  s_lshl_b32 s49, s12, 6")
    e(f"  s_add_u32 s49, s49, {WS_FLAG}")
    e("  s_mov_b32 s53, 0")
    lab("k2_poll")
    e("  buffer_load_dword v4, v7, s[24:27], s49 offen sc1")
    e("  s_waitcnt vmcnt(0)")
    e("  v_cmp_ne_u32 s[54:55], s68, v4" if FUSE else "  v_cmp_eq_u32 s[54:55], 0, v4")
    e("  s_nop 3")
    e("  s_cmp_eq_u64 s[54:55], 0")
    e("  s_cbranch_scc1 k2_poll_ok")
    e("  s_add_u32 s53, s53, 1")
    e(f"  s_cmp_gt_u32 s53, {1 << 22}")
    e("  s_cbranch_scc1 k2_poll_ok")
    e("  s_branch k2_poll")
    lab("k2_poll_ok")
    stamp(3)
    rowmac32()
    stamp(4)
    if MEGA:
        mega_tail()
        return
    e("  v_lshlrev_b32 v13, 2, v1")
    e("  v_lshlrev_b32 v14, 3, v1")
    e("  v_mov_b32 v7, v10")
    e("  v_cmp_eq_u32 vcc, 0, v2")
    e("  s_and_saveexec_b64 s[50:51], vcc")
    e(f"  s_mov_b32 s52, {WS_KEY}")
    e("  buffer_store_dword v12, v13, s[24:27], s52 offen")
    e(f"  s_mov_b32 s52, {WS_STAT}")
    e("  buffer_store_dwordx2 v[6:7], v14, s[24:27], s52 offen")
    e("  s_mov_b64 exec, s[50:51]")
    if OPT('K2_NOGU'): return
    e("  s_cmp_ge_u32 s15, 2")
    e("  s_cbranch_scc1 k2_done")
    e("  s_cmp_eq_u32 s15, 0")
    e("  s_cselect_b32 s40, s58, s60")
    e("  s_cselect_b32 s41, s59, s61")
    e(f"  s_mov_b32 s42, {512*1792*2}")
    e("  s_mov_b32 s43, 0x00020000")
    e("  s_and_b32 s52, s2, 7")
    e("  s_lshr_b32 s53, s2, 3")
    e("  v_min_u32 v1, 55, v0")
    e("  v_cmp_lt_u32 vcc, 27, v1")
    e("  s_nop 1")
    e("  v_cndmask_b32 v2, 0, 1, vcc")
    e("  v_mul_u32_u24 v3, 28, v2")
    e("  v_sub_u32 v3, v1, v3")
    e("  v_mul_u32_u24 v2, 3584, v2")
    e("  v_lshl_add_u32 v2, v3, 4, v2")
    e("  s_mul_i32 s54, s52, 448")
    e(f"  s_mul_i32 s55, s53, {16*3584}")
    e("  s_add_u32 s54, s54, s55")
    for q in range(8):
        e(f"  buffer_load_dwordx4 {vr(80+4*q,4)}, v2, s[40:43], s54 offen")
        e(f"  s_add_u32 s54, s54, {2*3584}")

def gen_k2():
    NS = K2_NS
    name = "f_kernel" if FUSE else "k2_kernel"
    YBASE = NS * 16384
    if not FUSE:
        kernel_begin(name)
        e("  s_cmp_ge_u32 s2, 256")
        e("  s_cbranch_scc1 k2_done")
        e(f"  s_load_dwordx4 s[8:11], s[0:1], {KA_WSRE}")
        e(f"  s_load_dwordx2 s[6:7], s[0:1], {KA_WS}")
        e(f"  s_load_dwordx2 s[34:35], s[0:1], {KA_WDN}")
    else:
        e("  s_mov_b32 s71, s15")
    e("  s_and_b32 s12, s2, 7")
    e("  s_lshr_b32 s13, s2, 3")
    e("  s_lshr_b32 s14, s12, 2")
    e("  s_and_b32 s12, s12, 3")
    e("  s_lshl_b32 s12, s12, 2")
    e("  s_lshr_b32 s15, s13, 3")
    e("  s_add_u32 s12, s12, s15")
    e("  s_and_b32 s13, s13, 7")
    if FUSE:
        e("  s_mov_b32 s15, s71")
    else:
        e("  v_lshrrev_b32 v1, 6, v0")
        e("  v_and_b32 v0, 63, v0")
        e("  v_readfirstlane_b32 s15, v1")
    e("  v_lshrrev_b32 v2, 3, v0")
    e("  v_and_b32 v3, 7, v0")
    e("  s_waitcnt lgkmcnt(0)")
    e("  s_cmp_eq_u32 s14, 0")
    e("  s_cselect_b32 s16, s8, s10")
    e("  s_cselect_b32 s17, s9, s11")
    e(f"  s_mov_b32 s18, {2048*2048*2}")
    e("  s_mov_b32 s19, 0x00020000")
    srd(20, 6, 7, 9 << 20)
    e("  s_cmp_lt_u32 s15, 4")
    e("  s_cbranch_scc1 k2_consumer")
    if not FUSE:
        e("  s_cmp_lt_u32 s15, 8")
        e("  s_cbranch_scc1 k2_loader")
    if not FUSE: helper_wave()
    lab("k2_loader")
    e("  s_sub_u32 s15, s15, 4")
    for ii in range(4):
        e(f"  s_lshl_b32 s24, s15, 5")
        e(f"  s_add_u32 s24, s24, {8*ii}")
        e(f"  v_add_u32 v10, s24, v2")
        e(f"  v_lshrrev_b32 v11, 1, v10")
        e(f"  v_and_b32 v11, 7, v11")
        e(f"  v_xor_b32 v11, v11, v3")
        e(f"  s_lshl_b32 s24, s12, 7")
        e(f"  v_add_u32 v10, s24, v10")
        e(f"  v_lshlrev_b32 v10, 12, v10")
        e(f"  v_lshl_add_u32 v{4+ii}, v11, 4, v10")
    e("  s_lshl_b32 s24, s15, 11")
    e("  v_lshlrev_b32 v8, 4, v0")
    e("  v_add_u32 v8, s24, v8")
    e("  v_add_u32 v9, 1024, v8")
    e("  s_mov_b32 s25, 0")
    e("  s_lshl_b32 s26, s14, 3")
    e("  s_add_u32 s26, s26, s13")
    e("  s_lshl_b32 s26, s26, 18")
    e("  s_lshl_b32 s27, s15, 12")
    e("  s_lshl_b32 s28, s15, 11")
    e(f"  s_add_u32 s28, s28, {YBASE}")
    YSC = " sc1" if FUSE else ""
    def dmaY(slot, so="s26"):
        for i in range(2):
            e(f"  s_add_u32 m0, s28, {slot*8192 + i*1024}")
            e("  s_nop 0")
            e(f"  buffer_load_dwordx4 v{8+i}, s[20:23], {so} offen{YSC} lds")
    def dmaW(slot):
        for i in range(4):
            e(f"  s_add_u32 m0, s27, {slot*16384 + i*1024}")
            e("  s_nop 0")
            e(f"  buffer_load_dwordx4 v{4+i}, s[16:19], s25 offen lds")
    def adv():
        e("  s_add_u32 s25, s25, 128")
        e("  s_and_b32 s25, s25, 4095")
        e("  s_lshl_b32 s29, s25, 6")
        e("  s_add_u32 s26, s33, s29")
    def dma(slot):
        dmaY(slot); dmaW(slot); adv()
    e("  s_mov_b32 s33, s26")
    e(f"  s_mul_i32 s25, s13, {128*OPT('K2_ROT', 4)}")
    if OPT('K2_ROTT', 0):
        e("  s_and_b32 s29, s12, 3")
        e(f"  s_mul_i32 s29, s29, {128*OPT('K2_ROTT', 0)}")
        e("  s_add_u32 s25, s25, s29")
    if OPT('K2_ROTX', 0):
        e("  s_and_b32 s29, s2, 7")
        e(f"  s_mul_i32 s29, s29, {64*OPT('K2_ROTX', 0)}")
        e("  s_and_b32 s29, s29, 0xf80")
        e("  s_add_u32 s25, s25, s29")
    e("  s_and_b32 s25, s25, 4095")
    e("  s_lshl_b32 s29, s25, 6")
    e("  s_add_u32 s26, s33, s29")
    if not FUSE:
        for st in range(NS):
            dma(st)
        e(f"  s_waitcnt vmcnt({6*(NS-1)})")
        e("  s_barrier")
        for ks in range(31):
            ahead = min(ks + NS - 1, 31) - (ks + 1)
            e(f"  s_waitcnt vmcnt({6*ahead})")
            e("  s_barrier")
            if ks + NS < 32:
                dma(ks % NS)
    else:
        e("  s_mov_b32 s30, s25")
        e("  s_waitcnt vmcnt(0)")
        e("  s_barrier")
        PRE = OPT('F_PRE', 6)
        for st in range(PRE):
            dmaW(st); adv()
        e("  s_barrier")
        for st in range(PRE):
            e("  s_lshl_b32 s29, s30, 6")
            e("  s_add_u32 s31, s33, s29")
            dmaY(st, "s31")
            e("  s_add_u32 s30, s30, 128")
            e("  s_and_b32 s30, s30, 4095")
        for st in range(PRE, NS):
            dma(st)
        e(f"  s_waitcnt vmcnt({2*(PRE-1) + 6*(NS-PRE)})")
        e("  s_barrier")
        for ks in range(31):
            if ks + 1 <= PRE - 1:
                allowed = 2 * (PRE - 1 - (ks + 1)) + 6 * (NS - PRE) + 6 * ks
            else:
                allowed = 6 * (min(ks + NS - 1, 31) - (ks + 1))
            e(f"  s_waitcnt vmcnt({allowed})")
            e("  s_barrier")
            if ks + NS < 32:
                dma(ks % NS)
    e("  s_branch k2_done")
    lab("k2_consumer")
    if FUSE:
        e("  s_cmp_lg_u32 s15, 0")
        e("  s_cbranch_scc1 f_noep")
        get_epoch("co")
        e("  v_mov_b32 v4, s68")
        e(f"  v_mov_b32 v5, {K2_NS*24576}")
        e("  ds_write_b32 v5, v4")
        e("  s_waitcnt lgkmcnt(0)")
        lab("f_noep")
        e("  s_waitcnt vmcnt(0)")
        e("  s_barrier")
        e("  s_cmp_lg_u32 s15, 0")
        e("  s_cbranch_scc1 f_noflagA")
        e("  v_mov_b32 v4, s68")
        e("  v_mov_b32 v5, 0")
        e("  s_mov_b64 s[36:37], exec")
        e("  s_mov_b64 exec, 1")
        e("  buffer_store_dword v4, v5, s[20:23], s70 offen sc1")
        e("  s_mov_b64 exec, s[36:37]")
        lab("f_noflagA")
        e(f"  v_mov_b32 v158, {K2_NS*24576}")
        e("  ds_read_b32 v159, v158")
        e("  s_waitcnt lgkmcnt(0)")
        e("  v_readfirstlane_b32 s68, v159")
        if OPT('F_LPF', 0):
            e("  s_cmp_lt_u32 s15, 2")
            e("  s_cbranch_scc1 f_nolpf")
            e("  s_and_b32 s36, s2, 3")
            e("  s_lshl_b32 s36, s36, 21")
            e("  s_lshr_b32 s37, s2, 3")
            e("  s_lshl_b32 s37, s37, 16")
            e("  s_add_u32 s36, s36, s37")
            e("  s_and_b32 s37, s15, 1")
            e("  s_lshl_b32 s37, s37, 15")
            e("  s_add_u32 s36, s36, s37")
            e("  v_lshlrev_b32 v10, 4, v0")
            for q in range(32):
                e(f"  buffer_load_dwordx4 v[160:163], v10, s[16:19], s36 offen")
                e("  s_add_u32 s36, s36, 1024")
            lab("f_nolpf")
        e("  s_cmp_lg_u32 s15, 1")
        e("  s_cbranch_scc1 f_pollA_ok")
        e("  s_lshl_b32 s31, s14, 2")
        e("  s_lshr_b32 s32, s13, 1")
        e("  s_add_u32 s31, s31, s32")
        e("  s_lshl_b32 s31, s31, 7")
        e(f"  s_add_u32 s31, s31, {WS_FA}")
        e("  v_and_b32 v10, 31, v0")
        e("  v_lshlrev_b32 v10, 2, v10")
        e("  s_mov_b32 s69, 0")
        lab("f_pollA")
        e("  buffer_load_dword v11, v10, s[20:23], s31 offen sc1")
        e("  s_waitcnt vmcnt(0)")
        e("  v_cmp_ne_u32 s[36:37], s68, v11")
        e("  s_nop 3")
        e("  s_cmp_eq_u64 s[36:37], 0")
        e("  s_cbranch_scc1 f_pollA_ok")
        e("  s_add_u32 s69, s69, 1")
        e(f"  s_cmp_gt_u32 s69, {1 << 22}")
        e("  s_cbranch_scc1 f_pollA_ok")
        e("  s_branch f_pollA")
        lab("f_pollA_ok")
        stamp(1)
        e("  s_barrier")
        hstamp(11)
    e("  v_and_b32 v16, 31, v0")
    e("  v_lshrrev_b32 v17, 5, v0")
    e("  s_lshl_b32 s24, s15, 5")
    e("  v_add_u32 v18, s24, v16")
    e("  v_lshrrev_b32 v19, 1, v18")
    e("  v_and_b32 v19, 7, v19")
    e("  v_xor_b32 v19, v19, v17")
    e("  v_lshlrev_b32 v18, 7, v18")
    e("  v_lshl_add_u32 v20, v19, 4, v18")
    for kk in range(1, 4):
        e(f"  v_xor_b32 v{20+kk}, {32*kk}, v20")
    for kk in range(4):
        e(f"  v_add_u32 v{28+kk}, 0x10000, v{20+kk}")
    e("  v_lshrrev_b32 v19, 1, v16")
    e("  v_and_b32 v19, 7, v19")
    e("  v_xor_b32 v19, v19, v17")
    e("  v_lshlrev_b32 v18, 7, v16")
    e("  v_lshl_add_u32 v24, v19, 4, v18")
    e(f"  v_add_u32 v24, {YBASE}, v24")
    for kk in range(1, 4):
        e(f"  v_xor_b32 v{24+kk}, {32*kk}, v24")
    ACC = 32
    for i in range(32):
        e(f"  v_mov_b32 v{ACC+i}, 0")
    def FW(st): return 64 + 48 * (st % 2)
    def FY(st): return 80 + 48 * (st % 2)
    def rd(st, kk):
        slot = st % NS
        wb = 20 if slot < 4 else 28
        e(f"  ds_read_b128 {vr(FW(st)+4*kk,4)}, v{wb+kk} offset:{16384*(slot%4)}")
        e(f"  ds_read_b128 {vr(FY(st)+8*kk,4)}, v{24+kk} offset:{8192*slot}")
        e(f"  ds_read_b128 {vr(FY(st)+8*kk+4,4)}, v{24+kk} offset:{8192*slot+4096}")
    e("  s_barrier")
    stamp(2)
    for kk in range(4):
        rd(0, kk)
    def mf(st, kk, half):
        e(f"  v_mfma_f32_32x32x16_bf16 {vr(ACC+16*half,16)}, {vr(FY(st)+8*kk+4*half,4)}, {vr(FW(st)+4*kk,4)}, {vr(ACC+16*half,16)}")
    for ks in range(32):
        more = ks + 1 < 32
        e("  s_waitcnt lgkmcnt(0)")
        if more and not OPT('K2_NOBAR'):
            e("  s_barrier")
        if ks == 4: hstamp(12)
        if ks == 12: hstamp(13)
        if ks == 20: hstamp(14)
        if OPT('K2_NOBAR') == 2: continue
        r = (lambda kk: rd(ks + 1, kk)) if more else (lambda kk: None)
        mf(ks, 0, 0); r(0); mf(ks, 0, 1); r(1)
        mf(ks, 1, 0); r(2); mf(ks, 1, 1); r(3)
        mf(ks, 2, 0); mf(ks, 2, 1)
        mf(ks, 3, 0); mf(ks, 3, 1)
    stamp(6)
    if not OPT('K2T1', 1):
        k2_epilogue_plain(ACC)
    else:
        k2_epilogue_fused(ACC)
    lab("k2_done")
    kernel_end()
    e("  s_endpgm")
    kernel_desc(name, 164 if FUSE else 160)

def gen_t1():
    name = "t1_kernel"
    kernel_begin(name)
    e("  s_cmp_ge_u32 s2, 256")
    e("  s_cbranch_scc1 t1_done")
    e(f"  s_load_dwordx2 s[4:5], s[0:1], {KA_X}")
    e(f"  s_load_dwordx2 s[6:7], s[0:1], {KA_WS}")
    e(f"  s_load_dwordx2 s[8:9], s[0:1], {KA_WR}")
    e(f"  s_load_dwordx2 s[10:11], s[0:1], {KA_OUT}")
    if OPT('T1_PF', 1):
        e(f"  s_load_dwordx4 s[32:35], s[0:1], {KA_WG}")
        e("  v_lshrrev_b32 v1, 6, v0")
        e("  s_nop 0")
        e("  v_readfirstlane_b32 s3, v1")
        e("  s_cmp_lg_u32 s3, 2")
        e("  s_cbranch_scc1 t1_main")
        e("  s_waitcnt lgkmcnt(0)")
        srd(40, 32, 33, 512*1792*2)
        srd(44, 34, 35, 512*1792*2)
        e("  v_and_b32 v0, 63, v0")
        e("  s_and_b32 s52, s2, 7")
        e("  s_lshr_b32 s53, s2, 3")
        e("  v_min_u32 v1, 55, v0")
        e("  v_cmp_lt_u32 vcc, 27, v1")
        e("  v_cndmask_b32 v2, 0, 1, vcc")
        e("  v_mul_u32_u24 v3, 28, v2")
        e("  v_sub_u32 v3, v1, v3")
        e("  v_mul_u32_u24 v2, 3584, v2")
        e("  v_lshl_add_u32 v2, v3, 4, v2")
        e("  s_mul_i32 s54, s52, 448")
        e(f"  s_mul_i32 s55, s53, {16*3584}")
        e("  s_add_u32 s54, s54, s55")
        for q in range(8):
            e(f"  buffer_load_dwordx4 {vr(8+8*q,4)}, v2, s[40:43], s54 offen")
            e(f"  buffer_load_dwordx4 {vr(12+8*q,4)}, v2, s[44:47], s54 offen")
            e(f"  s_add_u32 s54, s54, {2*3584}")
        e("  s_branch t1_done")
        lab("t1_main")
    e("  v_lshrrev_b32 v1, 4, v0")
    e("  v_and_b32 v2, 15, v0")
    e("  s_lshl_b32 s3, s2, 3")
    e("  v_add_u32 v1, s3, v1")
    e("  v_lshlrev_b32 v3, 10, v1")
    e("  v_lshl_add_u32 v3, v2, 4, v3")
    e("  v_lshlrev_b32 v4, 4, v2")
    e("  s_waitcnt lgkmcnt(0)")
    srd(12, 4, 5, 2 << 20)
    srd(16, 6, 7, 9 << 20)
    srd(20, 8, 9, 1024)
    srd(24, 10, 11, 2 << 20)
    e(f"  s_mov_b32 s28, {WS_Y}")
    e(f"  s_mov_b32 s29, {WS_Y + (2<<20)}")
    YR, YI, XX, WR = 16, 32, 48, 64
    for j in range(4):
        e(f"  buffer_load_dwordx4 {vr(YR+4*j,4)}, v3, s[16:19], s28 offen offset:{256*j}")
        e(f"  buffer_load_dwordx4 {vr(YI+4*j,4)}, v3, s[16:19], s29 offen offset:{256*j}")
        e(f"  buffer_load_dwordx4 {vr(XX+4*j,4)}, v3, s[12:15], 0 offen offset:{256*j}")
    for j in range(4):
        e(f"  buffer_load_dwordx4 {vr(WR+4*j,4)}, v4, s[20:23], 0 offen offset:{256*j}")
    H = 80
    T = 112
    e("  v_mov_b32 v14, 0")
    e("  v_mov_b32 v15, 0")
    for j in range(4):
        e(f"  s_waitcnt vmcnt({4 + 3*(3-j)})")
        for q in range(4):
            i = 4*j + q
            e(f"  v_lshlrev_b32 v{T}, 16, v{YR+i}")
            e(f"  v_and_b32 v{T+1}, 0xffff0000, v{YR+i}")
            e(f"  v_lshlrev_b32 v{T+2}, 16, v{YI+i}")
            e(f"  v_and_b32 v{T+3}, 0xffff0000, v{YI+i}")
            e(f"  v_pk_add_f32 {vr(T,2)}, {vr(T,2)}, {vr(T+2,2)} neg_lo:[0,1] neg_hi:[0,1]")
            e(f"  v_cvt_pk_bf16_f32 v{T}, v{T}, v{T+1}")
            e(f"  v_and_b32 v{T+1}, 0xffff0000, v{T}")
            e(f"  v_lshlrev_b32 v{T}, 16, v{T}")
            e(f"  v_lshlrev_b32 v{T+2}, 16, v{XX+i}")
            e(f"  v_and_b32 v{T+3}, 0xffff0000, v{XX+i}")
            e(f"  v_pk_add_f32 {vr(T,2)}, {vr(T,2)}, {vr(T+2,2)}")
            e(f"  v_cvt_pk_bf16_f32 v{T}, v{T}, v{T+1}")
            e(f"  v_lshlrev_b32 v{H+2*i}, 16, v{T}")
            e(f"  v_and_b32 v{H+2*i+1}, 0xffff0000, v{T}")
            e(f"  v_pk_add_f32 v[14:15], v[14:15], {vr(H+2*i,2)}")
    e("  v_add_f32 v5, v14, v15")
    reduce16(5)
    e("  v_mul_f32 v5, 0x3b000000, v5")
    e("  v_cvt_pk_bf16_f32 v6, v5, v5")
    e("  v_lshlrev_b32 v6, 16, v6")
    e("  v_sub_f32 v8, 0, v6")
    e("  v_mov_b32 v9, v8")
    e("  v_mov_b32 v10, 0")
    e("  v_mov_b32 v11, 0")
    D = 116
    for i in range(16):
        e(f"  v_pk_add_f32 {vr(D+2*i,2)}, {vr(H+2*i,2)}, v[8:9]")
        e(f"  v_pk_fma_f32 v[10:11], {vr(D+2*i,2)}, {vr(D+2*i,2)}, v[10:11]")
    e("  v_add_f32 v10, v10, v11")
    reduce16(10)
    e("  v_sub_f32 v11, v5, v6")
    e("  v_mul_f32 v11, v11, v11")
    e("  v_mul_f32 v10, 0x3b000000, v10")
    e("  v_sub_f32 v10, v10, v11")
    e("  v_max_f32 v10, 0, v10")
    e("  v_cvt_pk_bf16_f32 v10, v10, v10")
    e("  v_lshlrev_b32 v10, 16, v10")
    e("  v_add_f32 v10, 0x3727c5ac, v10")
    e("  v_cvt_pk_bf16_f32 v10, v10, v10")
    e("  v_lshlrev_b32 v10, 16, v10")
    e("  v_sqrt_f32 v10, v10")
    e("  s_nop 0")
    e("  v_cvt_pk_bf16_f32 v10, v10, v10")
    e("  v_lshlrev_b32 v10, 16, v10")
    e("  v_rcp_f32 v10, v10")
    e("  s_nop 0")
    e("  v_mov_b32 v11, v10")
    e("  v_mov_b32 v12, 0")
    e("  s_waitcnt vmcnt(0)")
    O = 16
    for i in range(16):
        e(f"  v_cvt_pk_bf16_f32 v{T}, v{D+2*i}, v{D+2*i+1}")
        e(f"  v_lshlrev_b32 v{D+2*i}, 16, v{T}")
        e(f"  v_and_b32 v{D+2*i+1}, 0xffff0000, v{T}")
        e(f"  v_pk_mul_f32 {vr(D+2*i,2)}, {vr(D+2*i,2)}, v[10:11]")
        e(f"  v_cvt_pk_bf16_f32 v{T}, v{D+2*i}, v{D+2*i+1}")
        e(f"  v_dot2_f32_bf16 v12, v{T}, v{WR+i}, v12")
        e(f"  v_lshlrev_b32 v{D+2*i}, 16, v{T}")
        e(f"  v_and_b32 v{D+2*i+1}, 0xffff0000, v{T}")
        e(f"  v_pk_add_f32 {vr(D+2*i,2)}, {vr(D+2*i,2)}, {vr(H+2*i,2)}")
        e(f"  v_cvt_pk_bf16_f32 v{O+i}, v{D+2*i}, v{D+2*i+1}")
    for j in range(4):
        e(f"  buffer_store_dwordx4 {vr(O+4*j,4)}, v3, s[24:27], 0 offen offset:{256*j}")
    e("  s_nop 3")
    reduce16(12)
    e("  v_cvt_pk_bf16_f32 v12, v12, v12")
    e("  v_lshlrev_b32 v12, 16, v12")
    e("  v_ashrrev_i32 v13, 31, v12")
    e("  v_or_b32 v13, 0x80000000, v13")
    e("  v_xor_b32 v12, v12, v13")
    e("  v_and_b32 v12, 0xffff0000, v12")
    e("  v_sub_u32 v13, 0xffff, v1")
    e("  v_or_b32 v12, v12, v13")
    e("  v_cmp_eq_u32 vcc, 0, v2")
    e("  s_and_saveexec_b64 s[30:31], vcc")
    e("  v_lshlrev_b32 v13, 2, v1")
    e(f"  s_mov_b32 s28, {WS_KEY}")
    e("  buffer_store_dword v12, v13, s[16:19], s28 offen")
    e("  v_lshlrev_b32 v13, 3, v1")
    e("  v_mov_b32 v7, v10")
    e(f"  s_mov_b32 s28, {WS_STAT}")
    e("  buffer_store_dwordx2 v[6:7], v13, s[16:19], s28 offen")
    lab("t1_done")
    kernel_end()
    e("  s_endpgm")
    kernel_desc(name, 148)

def recompute(YR, YI, XX, nd, NEGM, RINV, HOUT, XNOUT, T):
    for i in range(nd):
        e(f"  v_lshlrev_b32 v{T}, 16, v{YR+i}")
        e(f"  v_and_b32 v{T+1}, 0xffff0000, v{YR+i}")
        e(f"  v_lshlrev_b32 v{T+2}, 16, v{YI+i}")
        e(f"  v_and_b32 v{T+3}, 0xffff0000, v{YI+i}")
        e(f"  v_pk_add_f32 {vr(T,2)}, {vr(T,2)}, {vr(T+2,2)} neg_lo:[0,1] neg_hi:[0,1]")
        e(f"  v_cvt_pk_bf16_f32 v{T}, v{T}, v{T+1}")
        e(f"  v_and_b32 v{T+1}, 0xffff0000, v{T}")
        e(f"  v_lshlrev_b32 v{T}, 16, v{T}")
        e(f"  v_lshlrev_b32 v{T+2}, 16, v{XX+i}")
        e(f"  v_and_b32 v{T+3}, 0xffff0000, v{XX+i}")
        e(f"  v_pk_add_f32 {vr(T,2)}, {vr(T,2)}, {vr(T+2,2)}")
        e(f"  v_cvt_pk_bf16_f32 v{T}, v{T}, v{T+1}")
        e(f"  v_lshlrev_b32 v{HOUT+2*i}, 16, v{T}")
        e(f"  v_and_b32 v{HOUT+2*i+1}, 0xffff0000, v{T}")
        e(f"  v_pk_add_f32 {vr(T,2)}, {vr(HOUT+2*i,2)}, {vr(NEGM,2)}")
        e(f"  v_cvt_pk_bf16_f32 v{T}, v{T}, v{T+1}")
        e(f"  v_and_b32 v{T+1}, 0xffff0000, v{T}")
        e(f"  v_lshlrev_b32 v{T}, 16, v{T}")
        e(f"  v_pk_mul_f32 {vr(T,2)}, {vr(T,2)}, {vr(RINV,2)}")
        e(f"  v_cvt_pk_bf16_f32 v{XNOUT+i}, v{T}, v{T+1}")

XS_STRIDE = 1040
def gen_t2():
    name = "t2_kernel"
    kernel_begin(name)
    LDS_G, LDS_U, LDS_XS, LDS_C = 0, 8192, 16384, 16384 + 8*XS_STRIDE
    e("  s_cmp_ge_u32 s2, 224")
    e("  s_cbranch_scc1 t2_done")
    e(f"  s_load_dwordx2 s[4:5], s[0:1], {KA_X}")
    e(f"  s_load_dwordx2 s[6:7], s[0:1], {KA_WS}")
    e(f"  s_load_dwordx4 s[8:11], s[0:1], {KA_WG}")
    e("  s_and_b32 s3, s2, 7")
    e("  s_mul_i32 s3, s3, 28")
    e("  s_lshr_b32 s12, s2, 3")
    e("  s_add_u32 s3, s3, s12")
    e("  v_mov_b32 v40, v0")
    e("  v_lshrrev_b32 v1, 6, v0")
    e("  v_and_b32 v0, 63, v0")
    e("  v_readfirstlane_b32 s13, v1")
    e("  s_waitcnt lgkmcnt(0)")
    srd(16, 4, 5, 2 << 20)
    srd(20, 6, 7, 9 << 20)
    srd(24, 8, 9, 512*1792*2)
    srd(28, 10, 11, 512*1792*2)
    e("  v_lshlrev_b32 v2, 5, v40")
    e(f"  s_mov_b32 s14, {WS_KEY}")
    e("  buffer_load_dwordx4 v[8:11], v2, s[20:23], s14 offen")
    e("  buffer_load_dwordx4 v[12:15], v2, s[20:23], s14 offen offset:16")
    e("  s_lshl_b32 s15, s3, 4")
    e("  s_movk_i32 s32, 3584")
    for ii in range(2):
        e(f"  s_lshl_b32 s33, s13, 7")
        e(f"  s_add_u32 s33, s33, {64*ii}")
        e(f"  v_add_u32 v3, s33, v0")
        e(f"  v_mul_lo_u32 v3, v3, s32")
        e(f"  s_lshl_b32 s34, s13, 11")
        e(f"  s_add_u32 m0, s34, {LDS_G + 1024*ii}")
        e("  s_nop 0")
        e(f"  buffer_load_dwordx4 v3, s[24:27], s15 offen lds")
        e(f"  s_add_u32 m0, s34, {LDS_U + 1024*ii}")
        e("  s_nop 0")
        e(f"  buffer_load_dwordx4 v3, s[28:31], s15 offen lds")
    stamp(1)
    e("  s_waitcnt vmcnt(4)")
    stamp(2)
    e("  v_mov_b32 v20, 0")
    for rnd in range(8):
        e("  v_max3_u32 v16, v8, v9, v10")
        e("  v_max3_u32 v17, v11, v12, v13")
        e("  v_max3_u32 v16, v16, v14, v15")
        e("  v_max_u32 v16, v16, v17")
        e("  s_nop 1")
        e("  v_max_u32_dpp v16, v16, v16 quad_perm:[1,0,3,2] row_mask:0xf bank_mask:0xf")
        e("  s_nop 1")
        e("  v_max_u32_dpp v16, v16, v16 quad_perm:[2,3,0,1] row_mask:0xf bank_mask:0xf")
        e("  s_nop 1")
        e("  v_max_u32_dpp v16, v16, v16 row_half_mirror row_mask:0xf bank_mask:0xf")
        e("  s_nop 1")
        e("  v_max_u32_dpp v16, v16, v16 row_mirror row_mask:0xf bank_mask:0xf")
        e("  s_nop 1")
        e("  v_readlane_b32 s36, v16, 0")
        e("  v_readlane_b32 s37, v16, 16")
        e("  v_readlane_b32 s38, v16, 32")
        e("  v_readlane_b32 s39, v16, 48")
        e("  s_max_u32 s36, s36, s37")
        e("  s_max_u32 s38, s38, s39")
        e("  s_max_u32 s36, s36, s38")
        e(f"  v_writelane_b32 v20, s36, {rnd}")
        if rnd < 7:
            for k in range(8):
                e(f"  v_cmp_ne_u32 vcc, s36, v{8+k}")
                e("  s_nop 1")
                e(f"  v_cndmask_b32 v{8+k}, 0, v{8+k}, vcc")
    e("  s_lshl_b32 s33, s13, 5")
    e(f"  s_add_u32 s33, s33, {LDS_C}")
    e("  v_lshlrev_b32 v3, 2, v0")
    e("  v_add_u32 v3, s33, v3")
    e("  v_cmp_gt_u32 vcc, 8, v0")
    e("  s_and_saveexec_b64 s[40:41], vcc")
    e("  ds_write_b32 v3, v20")
    e("  s_mov_b64 exec, s[40:41]")
    e("  s_waitcnt lgkmcnt(0)")
    e("  s_barrier")
    e("  v_and_b32 v3, 31, v0")
    e("  v_lshlrev_b32 v3, 2, v3")
    e(f"  ds_read_b32 v21, v3 offset:{LDS_C}")
    e("  v_mov_b32 v22, 0")
    e("  s_waitcnt lgkmcnt(0)")
    for i in range(32):
        e(f"  v_readlane_b32 s36, v21, {i}")
        e("  s_nop 1")
        e("  v_cmp_gt_u32 vcc, s36, v21")
        e("  s_nop 1")
        e("  v_addc_co_u32 v22, vcc, 0, v22, vcc")
    e("  v_cmp_gt_u32 vcc, 8, v22")
    e("  v_cmp_gt_u32 s[42:43], 32, v0")
    e("  s_and_b64 vcc, vcc, s[42:43]")
    e("  v_lshlrev_b32 v3, 2, v22")
    e("  s_and_saveexec_b64 s[40:41], vcc")
    e(f"  ds_write_b32 v3, v21 offset:{LDS_C+128}")
    e("  s_mov_b64 exec, s[40:41]")
    e("  s_waitcnt lgkmcnt(0)")
    e("  s_barrier")
    stamp(3)
    e("  v_lshrrev_b32 v4, 5, v40")
    e("  v_and_b32 v5, 31, v40")
    e("  v_lshlrev_b32 v3, 2, v4")
    e(f"  ds_read_b32 v6, v3 offset:{LDS_C+128}")
    e("  s_waitcnt lgkmcnt(0)")
    e("  s_cmp_lg_u32 s3, 0")
    e("  s_cbranch_scc1 t2_nopub")
    e("  v_cmp_eq_u32 vcc, 0, v5")
    e("  s_and_saveexec_b64 s[40:41], vcc")
    e(f"  s_mov_b32 s14, {WS_IDX}")
    e("  buffer_store_dword v6, v3, s[20:23], s14 offen")
    e("  s_mov_b64 exec, s[40:41]")
    lab("t2_nopub")
    e("  v_and_b32 v6, 0xffff, v6")
    e("  v_sub_u32 v6, 0xffff, v6")
    e("  v_lshlrev_b32 v7, 10, v6")
    e("  v_lshl_add_u32 v7, v5, 4, v7")
    e(f"  s_mov_b32 s14, {WS_Y}")
    e(f"  s_mov_b32 s15, {WS_Y + (2<<20)}")
    YR, YI, XX = 24, 32, 44
    for j in range(2):
        e(f"  buffer_load_dwordx4 {vr(YR+4*j,4)}, v7, s[20:23], s14 offen offset:{512*j}")
        e(f"  buffer_load_dwordx4 {vr(YI+4*j,4)}, v7, s[20:23], s15 offen offset:{512*j}")
        e(f"  buffer_load_dwordx4 {vr(XX+4*j,4)}, v7, s[16:19], 0 offen offset:{512*j}")
    e("  v_lshlrev_b32 v3, 3, v6")
    e(f"  s_mov_b32 s14, {WS_STAT}")
    e("  buffer_load_dwordx2 v[52:53], v3, s[20:23], s14 offen")
    e("  s_waitcnt vmcnt(0)")
    stamp(4)
    e("  v_sub_f32 v54, 0, v52")
    e("  v_mov_b32 v55, v54")
    e("  v_mov_b32 v52, v53")
    recompute(YR, YI, XX, 8, 54, 52, 64, 80, 56)
    e(f"  v_mul_u32_u24 v3, {XS_STRIDE}, v4")
    e("  v_lshl_add_u32 v3, v5, 4, v3")
    e(f"  ds_write_b128 v3, v[80:83] offset:{LDS_XS}")
    e(f"  ds_write_b128 v3, v[84:87] offset:{LDS_XS+512}")
    e("  s_waitcnt lgkmcnt(0)")
    e("  s_barrier")
    e("  s_cmp_lg_u32 s13, 0")
    e("  s_cbranch_scc1 t2_done")
    stamp(5)
    e("  v_and_b32 v3, 7, v0")
    e(f"  v_mul_u32_u24 v3, {XS_STRIDE}, v3")
    e("  v_lshrrev_b32 v4, 4, v0")
    e("  v_lshl_add_u32 v3, v4, 4, v3")
    e("  v_and_b32 v5, 15, v0")
    e("  v_lshrrev_b32 v5, 2, v5")
    e("  v_lshl_add_u32 v5, v4, 3, v5")
    e("  v_lshlrev_b32 v5, 4, v5")
    e("  v_and_b32 v6, 1, v0")
    e("  v_lshl_add_u32 v5, v6, 3, v5")
    e("  v_and_b32 v6, 2, v0")
    e("  v_lshl_add_u32 v5, v6, 12, v5")
    for i in range(4):
        e(f"  v_mov_b32 v{8+i}, 0")
    FA, FB = 64, 128
    for st in range(16):
        e(f"  ds_read_b128 {vr(FA+4*st,4)}, v3 offset:{LDS_XS + 64*st}")
        e(f"  ds_read_b64_tr_b16 {vr(FB+4*st,2)}, v5 offset:{512*st}")
        e(f"  ds_read_b64_tr_b16 {vr(FB+4*st+2,2)}, v5 offset:{512*st+64}")
        if st % 4 == 3:
            e("  s_waitcnt lgkmcnt(0)")
            for s2 in range(st-3, st+1):
                e(f"  v_mfma_f32_16x16x32_bf16 v[8:11], {vr(FA+4*s2,4)}, {vr(FB+4*s2,4)}, v[8:11]")
    e("  s_nop 15")
    for i in range(4):
        e(f"  v_cvt_pk_bf16_f32 v{8+i}, v{8+i}, v{8+i}")
        e(f"  v_lshlrev_b32 v{8+i}, 16, v{8+i}")
    e("  s_nop 1")
    for i in range(4):
        e(f"  v_mov_b32_dpp v{12+i}, v{8+i} row_ror:8 row_mask:0xf bank_mask:0xf")
    for i in range(4):
        e(f"  v_mul_f32 v16, 0xbfb8aa3b, v{8+i}")
        e("  v_exp_f32 v16, v16")
        e("  s_nop 0")
        e("  v_add_f32 v16, 1.0, v16")
        e("  v_rcp_f32 v16, v16")
        e("  s_nop 0")
        e(f"  v_mul_f32 v16, v{8+i}, v16")
        e("  v_cvt_pk_bf16_f32 v16, v16, v16")
        e("  v_lshlrev_b32 v16, 16, v16")
        e(f"  v_mul_f32 v16, v16, v{12+i}")
        e(f"  v_cvt_pk_bf16_f32 v{20+i}, v16, v16")
    stamp(6)
    e("  v_and_b32 v5, 15, v0")
    e("  v_cmp_gt_u32 vcc, 8, v5")
    e("  v_cmp_gt_u32 s[42:43], 32, v0")
    e("  s_and_b64 vcc, vcc, s[42:43]")
    e("  s_and_saveexec_b64 s[40:41], vcc")
    e("  v_lshlrev_b32 v4, 2, v4")
    e("  v_mul_u32_u24 v4, 3584, v4")
    e("  v_lshl_add_u32 v4, v5, 1, v4")
    e("  s_lshl_b32 s15, s3, 4")
    e(f"  s_add_u32 s15, s15, {WS_GU}")
    for i in range(4):
        e(f"  buffer_store_short v{20+i}, v4, s[20:23], s15 offen offset:{3584*i if 3584*i < 4096 else 0}") if False else None
    for i in range(4):
        e(f"  buffer_store_short v{20+i}, v4, s[20:23], s15 offen")
        if i < 3:
            e("  v_add_u32 v4, 3584, v4")
    lab("t2_done")
    kernel_end()
    e("  s_endpgm")
    kernel_desc(name, 192)

def gen_t3():
    name = "t3_kernel"
    kernel_begin(name)
    LDS_W, LDS_R = 0, 28672
    e("  s_cmp_ge_u32 s2, 64")
    e("  s_cbranch_scc1 t3_done")
    e(f"  s_load_dwordx2 s[4:5], s[0:1], {KA_X}")
    e(f"  s_load_dwordx2 s[6:7], s[0:1], {KA_WS}")
    e(f"  s_load_dwordx2 s[10:11], s[0:1], {KA_OUT}")
    e("  s_mov_b32 s3, s2")
    e("  v_lshrrev_b32 v1, 6, v0")
    e("  v_and_b32 v0, 63, v0")
    e("  v_readfirstlane_b32 s13, v1")
    e("  v_lshrrev_b32 v5, 4, v0")
    e("  s_waitcnt lgkmcnt(0)")
    srd(16, 4, 5, 2 << 20)
    srd(20, 6, 7, 12 << 20)
    srd(28, 10, 11, 2 << 20)
    e("  v_and_b32 v6, 1, v5")
    e("  v_lshlrev_b32 v6, 4, v6")
    e(f"  s_mov_b32 s14, {WS_IDX}")
    e("  buffer_load_dwordx4 v[24:27], v6, s[20:23], s14 offen")
    e("  s_lshl_b32 s15, s3, 4")
    e("  v_lshlrev_b32 v3, 4, v0")
    e("  s_mul_i32 s34, s13, 7168")
    e("  s_mul_i32 s33, s3, 28672")
    e("  s_add_u32 s33, s33, s34")
    e(f"  s_add_u32 s33, s33, {WS_WDB}")
    for i in range(7):
        e(f"  s_add_u32 m0, s34, {LDS_W + 1024*i}")
        e("  s_nop 0")
        e(f"  buffer_load_dwordx4 v3, s[20:23], s33 offen lds")
        e("  s_add_u32 s33, s33, 1024")
    e("  v_and_b32 v4, 7, v0")
    e("  v_mul_u32_u24 v4, 3584, v4")
    e("  v_lshl_add_u32 v4, v5, 4, v4")
    e("  s_mul_i32 s14, s13, 896")
    e(f"  s_add_u32 s14, s14, {WS_GU}")
    FA = 64
    for st in range(14):
        e(f"  buffer_load_dwordx4 {vr(FA+4*st,4)}, v4, s[20:23], s14 offen offset:{64*st}")
    for i in range(4):
        e(f"  v_mov_b32 v{28+i}, 0")
    e("  s_cmp_lg_u32 s13, 0")
    e("  s_cbranch_scc1 t3_noepi")
    e("  s_waitcnt vmcnt(21)")
    e("  v_and_b32 v6, 7, v0")
    e(f"  s_mov_b32 s36, {WS_Y}")
    e(f"  s_mov_b32 s37, {WS_Y + (2<<20)}")
    e(f"  s_mov_b32 s38, {WS_STAT}")
    for i in range(4):
        e(f"  v_and_b32 v{28+i}, 0xffff, v{24+i}")
        e(f"  v_sub_u32 v{28+i}, 0xffff, v{28+i}")
        e(f"  v_lshlrev_b32 v{32+i}, 3, v{28+i}")
        e(f"  v_lshlrev_b32 v{28+i}, 10, v{28+i}")
        e(f"  v_lshl_add_u32 v{28+i}, v6, 1, v{28+i}")
        e(f"  v_add_u32 v{28+i}, s15, v{28+i}")
        e(f"  buffer_load_ushort v{36+i}, v{28+i}, s[20:23], s36 offen")
        e(f"  buffer_load_ushort v{40+i}, v{28+i}, s[20:23], s37 offen")
        e(f"  buffer_load_ushort v{44+i}, v{28+i}, s[16:19], 0 offen")
        e(f"  buffer_load_dwordx2 {vr(48+2*i,2)}, v{32+i}, s[20:23], s38 offen")
    lab("t3_noepi")
    e("  v_and_b32 v7, 15, v0")
    e("  v_lshrrev_b32 v7, 2, v7")
    e("  v_lshl_add_u32 v7, v5, 3, v7")
    e("  v_lshlrev_b32 v7, 4, v7")
    e("  v_and_b32 v60, 1, v0")
    e("  v_lshl_add_u32 v7, v60, 3, v7")
    e("  v_add_u32 v7, s34, v7")
    for i in range(4):
        e(f"  v_mov_b32 v{8+i}, 0")
    stamp(1)
    e("  s_waitcnt vmcnt(0)")
    stamp(2)
    FB = 128
    for st in range(14):
        e(f"  ds_read_b64_tr_b16 {vr(FB+4*st,2)}, v7 offset:{512*st}")
        e(f"  ds_read_b64_tr_b16 {vr(FB+4*st+2,2)}, v7 offset:{512*st+64}")
    e("  s_waitcnt lgkmcnt(0)")
    for st in range(14):
        e(f"  v_mfma_f32_16x16x32_bf16 v[8:11], {vr(FA+4*st,4)}, {vr(FB+4*st,4)}, v[8:11]")
    e("  s_nop 15")
    stamp(3)
    e("  v_lshlrev_b32 v3, 4, v0")
    e("  s_lshl_b32 s33, s13, 10")
    e("  v_add_u32 v3, s33, v3")
    e(f"  ds_write_b128 v3, v[8:11] offset:{LDS_R}")
    e("  s_waitcnt lgkmcnt(0)")
    e("  s_barrier")
    e("  s_cmp_lg_u32 s13, 0")
    e("  s_cbranch_scc1 t3_done")
    e("  v_lshlrev_b32 v3, 4, v0")
    for w in range(1, 4):
        e(f"  ds_read_b128 {vr(12+4*(w-1),4)}, v3 offset:{LDS_R+1024*w}")
    stamp(4)
    e("  v_and_b32 v6, 15, v0")
    e("  v_cmp_gt_u32 vcc, 8, v6")
    e("  v_cmp_gt_u32 s[42:43], 32, v0")
    e("  s_and_b64 vcc, vcc, s[42:43]")
    e("  s_and_saveexec_b64 s[40:41], vcc")
    e("  s_waitcnt lgkmcnt(0)")
    for i in range(4):
        e(f"  v_add_f32 v{8+i}, v{8+i}, v{12+i}")
        e(f"  v_add_f32 v{16+i}, v{16+i}, v{20+i}")
        e(f"  v_add_f32 v{8+i}, v{8+i}, v{16+i}")
        e(f"  v_cvt_pk_bf16_f32 v{8+i}, v{8+i}, v{8+i}")
        e(f"  v_lshlrev_b32 v{8+i}, 16, v{8+i}")
        e(f"  v_and_b32 v60, 0xffff0000, v{24+i}")
        e("  v_ashrrev_i32 v61, 31, v60")
        e("  v_not_b32 v61, v61")
        e("  v_or_b32 v61, 0x80000000, v61")
        e("  v_xor_b32 v60, v60, v61")
        e("  v_and_b32 v60, 0xffff0000, v60")
        e("  v_mul_f32 v60, 0xbfb8aa3b, v60")
        e("  v_exp_f32 v60, v60")
        e("  s_nop 0")
        e("  v_add_f32 v60, 1.0, v60")
        e("  v_rcp_f32 v60, v60")
        e("  s_nop 0")
        e("  v_cvt_pk_bf16_f32 v60, v60, v60")
        e("  v_lshlrev_b32 v60, 16, v60")
        e(f"  v_mul_f32 v{8+i}, v{8+i}, v60")
        e(f"  v_cvt_pk_bf16_f32 v{8+i}, v{8+i}, v{8+i}")
        e(f"  v_lshlrev_b32 v{8+i}, 16, v{8+i}")
        e(f"  v_lshlrev_b32 v{36+i}, 16, v{36+i}")
        e(f"  v_lshlrev_b32 v{40+i}, 16, v{40+i}")
        e(f"  v_lshlrev_b32 v{44+i}, 16, v{44+i}")
        e(f"  v_sub_f32 v60, v{36+i}, v{40+i}")
        e("  v_cvt_pk_bf16_f32 v60, v60, v60")
        e("  v_lshlrev_b32 v60, 16, v60")
        e(f"  v_add_f32 v60, v{44+i}, v60")
        e("  v_cvt_pk_bf16_f32 v60, v60, v60")
        e("  v_lshlrev_b32 v60, 16, v60")
        e(f"  v_sub_f32 v61, v60, v{48+2*i}")
        e("  v_cvt_pk_bf16_f32 v61, v61, v61")
        e("  v_lshlrev_b32 v61, 16, v61")
        e(f"  v_mul_f32 v61, v61, v{49+2*i}")
        e("  v_cvt_pk_bf16_f32 v61, v61, v61")
        e("  v_lshlrev_b32 v61, 16, v61")
        e(f"  v_add_f32 v61, v61, v{8+i}")
        e("  v_cvt_pk_bf16_f32 v61, v61, v61")
        e("  v_lshlrev_b32 v61, 16, v61")
        e("  v_add_f32 v61, v60, v61")
        e("  v_cvt_pk_bf16_f32 v61, v61, v61")
        e(f"  buffer_store_short v61, v{28+i}, s[28:31], 0 offen")
    lab("t3_done")
    kernel_end()
    e("  s_endpgm")
    kernel_desc(name, 192)

SORT8 = [(0,1),(2,3),(4,5),(6,7),(0,2),(1,3),(4,6),(5,7),(1,2),(5,6),(0,4),(1,5),(2,6),(3,7),(2,4),(3,5),(1,2),(3,4),(5,6)]
def top8(keys, free, LDS_C, wreg="s13"):
    K = list(keys); F = list(free)
    for (i, j) in SORT8:
        hi, lo = F.pop(), F.pop()
        e(f"  v_max_u32 v{hi}, v{K[i]}, v{K[j]}")
        e(f"  v_min_u32 v{lo}, v{K[i]}, v{K[j]}")
        F.append(K[i]); F.append(K[j]); K[i] = hi; K[j] = lo
    t, coll = F.pop(), F.pop()
    e(f"  v_mov_b32 v{coll}, 0")
    pend = []
    def fill(n):
        for _ in range(n):
            if pend: e(pend.pop(0))
            else: e("  s_nop 0")
    for rnd in range(8):
        fill(2)
        e(f"  v_max_u32_dpp v{t}, v{K[0]}, v{K[0]} quad_perm:[1,0,3,2] row_mask:0xf bank_mask:0xf")
        fill(2)
        e(f"  v_max_u32_dpp v{t}, v{t}, v{t} quad_perm:[2,3,0,1] row_mask:0xf bank_mask:0xf")
        fill(2)
        e(f"  v_max_u32_dpp v{t}, v{t}, v{t} row_half_mirror row_mask:0xf bank_mask:0xf")
        fill(2)
        e(f"  v_max_u32_dpp v{t}, v{t}, v{t} row_mirror row_mask:0xf bank_mask:0xf")
        while pend: e(pend.pop(0))
        e("  s_nop 0")
        e(f"  v_readlane_b32 s36, v{t}, 0")
        e(f"  v_readlane_b32 s37, v{t}, 16")
        e(f"  v_readlane_b32 s38, v{t}, 32")
        e(f"  v_readlane_b32 s39, v{t}, 48")
        e("  s_max_u32 s36, s36, s37")
        e("  s_max_u32 s38, s38, s39")
        e("  s_max_u32 s36, s36, s38")
        e(f"  v_writelane_b32 v{coll}, s36, {rnd}")
        if rnd < 7:
            e(f"  v_cmp_eq_u32 vcc, s36, v{K[0]}")
            e("  s_nop 1")
            e(f"  v_cndmask_b32 v{K[0]}, v{K[0]}, v{K[1]}, vcc")
            for k in range(1, 7 - rnd):
                pend.append(f"  v_cndmask_b32 v{K[k]}, v{K[k]}, v{K[k+1]}, vcc")
    e(f"  s_lshl_b32 s33, {wreg}, 5")
    e(f"  s_add_u32 s33, s33, {LDS_C}")
    e(f"  v_lshlrev_b32 v{t}, 2, v0")
    e(f"  v_add_u32 v{t}, s33, v{t}")
    e("  v_cmp_gt_u32 vcc, 8, v0")
    e("  s_and_saveexec_b64 s[40:41], vcc")
    e(f"  ds_write_b32 v{t}, v{coll}")
    e("  s_mov_b64 exec, s[40:41]")
    e("  s_waitcnt lgkmcnt(0)")
    e("  s_barrier")
    return t, coll

def gen_t4():
    name = "t4_kernel"
    kernel_begin(name)
    LDS_C, LDS_R, LDS_WD = 0, 256, 8704
    LDS_G, LDS_U, LDS_XS = 8704, 8704 + 8192, 8704 + 16384
    SPIN = 1 << 22
    e("  s_cmp_ge_u32 s2, 240")
    e("  s_cbranch_scc1 t4_done")
    e(f"  s_load_dwordx2 s[4:5], s[0:1], {KA_X}")
    e(f"  s_load_dwordx2 s[6:7], s[0:1], {KA_WS}")
    e(f"  s_load_dwordx4 s[8:11], s[0:1], {KA_WG}")
    e(f"  s_load_dwordx2 s[44:45], s[0:1], {KA_OUT}")
    e("  s_and_b32 s3, s2, 7")
    e("  s_mul_i32 s3, s3, 28")
    e("  s_lshr_b32 s12, s2, 3")
    e("  s_add_u32 s3, s3, s12")
    e("  v_mov_b32 v40, v0")
    e("  v_lshrrev_b32 v1, 6, v0")
    e("  v_and_b32 v0, 63, v0")
    e("  v_readfirstlane_b32 s13, v1")
    e("  s_waitcnt lgkmcnt(0)")
    srd(16, 4, 5, 2 << 20)
    srd(20, 6, 7, 12 << 20)
    srd(24, 8, 9, 512*1792*2)
    srd(28, 10, 11, 512*1792*2)
    srd(48, 44, 45, 2 << 20)
    e("  v_lshlrev_b32 v2, 5, v40")
    e(f"  s_mov_b32 s14, {WS_KEY}")
    e("  buffer_load_dwordx4 v[8:11], v2, s[20:23], s14 offen")
    e("  buffer_load_dwordx4 v[12:15], v2, s[20:23], s14 offen offset:16")
    e("  s_cmp_ge_u32 s2, 224")
    e("  s_cbranch_scc1 t4_dma2")
    e("  s_lshl_b32 s15, s3, 4")
    e("  s_movk_i32 s32, 3584")
    for ii in range(2):
        e(f"  s_lshl_b32 s33, s13, 7")
        e(f"  s_add_u32 s33, s33, {64*ii}")
        e(f"  v_add_u32 v3, s33, v0")
        e(f"  v_mul_lo_u32 v3, v3, s32")
        e(f"  s_lshl_b32 s34, s13, 11")
        e(f"  s_add_u32 m0, s34, {LDS_G + 1024*ii}")
        e("  s_nop 0")
        e(f"  buffer_load_dwordx4 v3, s[24:27], s15 offen lds")
        e(f"  s_add_u32 m0, s34, {LDS_U + 1024*ii}")
        e("  s_nop 0")
        e(f"  buffer_load_dwordx4 v3, s[28:31], s15 offen lds")
    e("  s_waitcnt vmcnt(4)")
    e("  s_branch t4_top")
    lab("t4_dma2")
    e("  s_sub_u32 s46, s2, 224")
    e("  v_lshlrev_b32 v3, 4, v0")
    e("  s_mul_i32 s34, s13, 7168")
    e(f"  s_mul_i32 s33, s46, {4*28672}")
    e("  s_add_u32 s33, s33, s34")
    e(f"  s_add_u32 s33, s33, {WS_WDB}")
    for dsl in range(4):
        for i in range(7):
            e(f"  s_add_u32 m0, s34, {LDS_WD + dsl*28672 + 1024*i}")
            e("  s_nop 0")
            e(f"  buffer_load_dwordx4 v3, s[20:23], s33 offen lds")
            e(f"  s_add_u32 s33, s33, {1024 if i < 6 else 28672 - 6*1024}")
    e("  s_waitcnt vmcnt(28)")
    lab("t4_top")
    stamp(1)
    t, coll = top8(range(8, 16), range(16, 24), LDS_C)
    e("  v_and_b32 v3, 31, v0")
    e("  v_lshlrev_b32 v3, 2, v3")
    e(f"  ds_read_b32 v24, v3 offset:{LDS_C}")
    e("  v_mov_b32 v4, 0")
    for q in range(8):
        e(f"  ds_read_b128 {vr(56+4*q,4)}, v4 offset:{LDS_C+16*q}")
    e("  v_mov_b32 v25, 0")
    e("  s_waitcnt lgkmcnt(0)")
    sp = [60, 62, 64, 66]
    for i in range(32 + 3):
        if i < 32:
            e(f"  v_cmp_gt_u32 s[{sp[i%4]}:{sp[i%4]+1}], v{56+i}, v24")
        if i >= 3:
            j = i - 3
            e(f"  v_addc_co_u32 v25, vcc, 0, v25, s[{sp[j%4]}:{sp[j%4]+1}]")
    e("  v_cmp_gt_u32 vcc, 8, v25")
    e("  v_cmp_gt_u32 s[42:43], 32, v0")
    e("  s_and_b64 vcc, vcc, s[42:43]")
    e("  v_lshlrev_b32 v3, 2, v25")
    e("  s_and_saveexec_b64 s[40:41], vcc")
    e(f"  ds_write_b32 v3, v24 offset:{LDS_C+128}")
    e("  s_mov_b64 exec, s[40:41]")
    e("  s_waitcnt lgkmcnt(0)")
    e("  s_barrier")
    stamp(2)
    e("  s_cmp_ge_u32 s2, 224")
    e("  s_cbranch_scc1 t4_f2")
    e("  v_lshrrev_b32 v4, 5, v40")
    e("  v_and_b32 v5, 31, v40")
    e("  v_lshlrev_b32 v3, 2, v4")
    e(f"  ds_read_b32 v6, v3 offset:{LDS_C+128}")
    e("  s_waitcnt lgkmcnt(0)")
    e("  v_and_b32 v6, 0xffff, v6")
    e("  v_sub_u32 v6, 0xffff, v6")
    e("  v_lshlrev_b32 v7, 10, v6")
    e("  v_lshl_add_u32 v7, v5, 4, v7")
    e(f"  s_mov_b32 s14, {WS_Y}")
    e(f"  s_mov_b32 s15, {WS_Y + (2<<20)}")
    YR, YI, XX = 24, 32, 44
    for j in range(2):
        e(f"  buffer_load_dwordx4 {vr(YR+4*j,4)}, v7, s[20:23], s14 offen offset:{512*j}")
        e(f"  buffer_load_dwordx4 {vr(YI+4*j,4)}, v7, s[20:23], s15 offen offset:{512*j}")
        e(f"  buffer_load_dwordx4 {vr(XX+4*j,4)}, v7, s[16:19], 0 offen offset:{512*j}")
    e("  v_lshlrev_b32 v3, 3, v6")
    e(f"  s_mov_b32 s14, {WS_STAT}")
    e("  buffer_load_dwordx2 v[52:53], v3, s[20:23], s14 offen")
    e("  s_waitcnt vmcnt(0)")
    stamp(3)
    e("  v_sub_f32 v54, 0, v52")
    e("  v_mov_b32 v55, v54")
    e("  v_mov_b32 v52, v53")
    recompute(YR, YI, XX, 8, 54, 52, 64, 80, 56)
    e(f"  v_mul_u32_u24 v3, {XS_STRIDE}, v4")
    e("  v_lshl_add_u32 v3, v5, 4, v3")
    e(f"  ds_write_b128 v3, v[80:83] offset:{LDS_XS}")
    e(f"  ds_write_b128 v3, v[84:87] offset:{LDS_XS+512}")
    e("  s_waitcnt lgkmcnt(0)")
    e("  s_barrier")
    e("  s_cmp_lg_u32 s13, 0")
    e("  s_cbranch_scc1 t4_done")
    e("  v_and_b32 v3, 7, v0")
    e(f"  v_mul_u32_u24 v3, {XS_STRIDE}, v3")
    e("  v_lshrrev_b32 v4, 4, v0")
    e("  v_lshl_add_u32 v3, v4, 4, v3")
    e("  v_and_b32 v5, 15, v0")
    e("  v_lshrrev_b32 v5, 2, v5")
    e("  v_lshl_add_u32 v5, v4, 3, v5")
    e("  v_lshlrev_b32 v5, 4, v5")
    e("  v_and_b32 v6, 1, v0")
    e("  v_lshl_add_u32 v5, v6, 3, v5")
    e("  v_and_b32 v6, 2, v0")
    e("  v_lshl_add_u32 v5, v6, 12, v5")
    for i in range(4):
        e(f"  v_mov_b32 v{8+i}, 0")
    FA, FB = 64, 128
    for st in range(16):
        e(f"  ds_read_b128 {vr(FA+4*st,4)}, v3 offset:{LDS_XS + 64*st}")
        e(f"  ds_read_b64_tr_b16 {vr(FB+4*st,2)}, v5 offset:{LDS_G+512*st}")
        e(f"  ds_read_b64_tr_b16 {vr(FB+4*st+2,2)}, v5 offset:{LDS_G+512*st+64}")
        if st % 4 == 3:
            e("  s_waitcnt lgkmcnt(0)")
            for s2 in range(st-3, st+1):
                e(f"  v_mfma_f32_16x16x32_bf16 v[8:11], {vr(FA+4*s2,4)}, {vr(FB+4*s2,4)}, v[8:11]")
    e("  s_nop 15")
    for i in range(4):
        e(f"  v_cvt_pk_bf16_f32 v{8+i}, v{8+i}, v{8+i}")
        e(f"  v_lshlrev_b32 v{8+i}, 16, v{8+i}")
    e("  s_nop 1")
    for i in range(4):
        e(f"  v_mov_b32_dpp v{12+i}, v{8+i} row_ror:8 row_mask:0xf bank_mask:0xf")
    for i in range(4):
        e(f"  v_mul_f32 v16, 0xbfb8aa3b, v{8+i}")
        e("  v_exp_f32 v16, v16")
        e("  s_nop 0")
        e("  v_add_f32 v16, 1.0, v16")
        e("  v_rcp_f32 v16, v16")
        e("  s_nop 0")
        e(f"  v_mul_f32 v16, v{8+i}, v16")
        e("  v_cvt_pk_bf16_f32 v16, v16, v16")
        e("  v_lshlrev_b32 v16, 16, v16")
        e(f"  v_mul_f32 v16, v16, v{12+i}")
        e(f"  v_cvt_pk_bf16_f32 v{20+i}, v16, v16")
    e("  s_nop 1")
    for i in range(4):
        e(f"  v_mov_b32_dpp v{24+i}, v{20+i} quad_perm:[1,0,3,2] row_mask:0xf bank_mask:0xf")
    for i in range(4):
        e(f"  v_and_b32 v{20+i}, 0xffff, v{20+i}")
        e(f"  v_and_b32 v{24+i}, 0xffff0000, v{24+i}")
        e(f"  v_or_b32 v{20+i}, v{20+i}, v{24+i}")
    for i in range(4):
        e(f"  v_min_u32 v{20+i}, 0xfffeffff, v{20+i}")
    stamp(4)
    e("  v_and_b32 v5, 15, v0")
    e("  v_lshlrev_b32 v4, 6, v4")
    e("  v_lshl_add_u32 v4, v5, 1, v4")
    e("  v_lshlrev_b32 v7, 4, v0")
    e("  v_and_b32 v6, 9, v0")
    e("  v_cmp_eq_u32 vcc, 0, v6")
    e("  v_cmp_gt_u32 s[42:43], 32, v0")
    e("  s_and_b64 vcc, vcc, s[42:43]")
    e("  s_and_saveexec_b64 s[40:41], vcc")
    for i in range(4):
        e(f"  ds_write_b32 v4, v{20+i} offset:{LDS_R+16*i}")
    e("  s_mov_b64 exec, 0xff")
    e("  s_waitcnt lgkmcnt(0)")
    e(f"  ds_read_b128 v[24:27], v7 offset:{LDS_R}")
    e("  s_lshl_b32 s15, s3, 7")
    e(f"  s_add_u32 s15, s15, {WS_GU}")
    e("  s_waitcnt lgkmcnt(0)")
    e("  buffer_store_dwordx4 v[24:27], v7, s[20:23], s15 offen sc1")
    e("  s_branch t4_done")
    lab("t4_f2")
    e("  v_lshrrev_b32 v5, 4, v0")
    e("  v_and_b32 v6, 1, v5")
    e("  v_lshlrev_b32 v6, 4, v6")
    e(f"  ds_read_b128 v[24:27], v6 offset:{LDS_C+128}")
    e("  v_and_b32 v6, 15, v0")
    e("  s_lshl_b32 s15, s46, 6")
    e("  s_waitcnt lgkmcnt(0)")
    for i in range(4):
        e(f"  v_and_b32 v{28+i}, 0xffff, v{24+i}")
        e(f"  v_sub_u32 v{28+i}, 0xffff, v{28+i}")
        e(f"  v_lshlrev_b32 v{32+i}, 3, v{28+i}")
        e(f"  v_lshlrev_b32 v{28+i}, 10, v{28+i}")
        e(f"  v_lshl_add_u32 v{28+i}, v6, 1, v{28+i}")
        e(f"  v_add_u32 v{28+i}, s15, v{28+i}")
    e("  s_cmp_lg_u32 s13, 0")
    e("  s_cbranch_scc1 t4_noepi")
    e(f"  s_mov_b32 s36, {WS_Y}")
    e(f"  s_mov_b32 s37, {WS_Y + (2<<20)}")
    e(f"  s_mov_b32 s38, {WS_STAT}")
    for a in range(2):
        for i in range(4):
            e(f"  buffer_load_ushort v{192+12*a+i}, v{28+i}, s[20:23], s36 offen offset:{32*a}")
            e(f"  buffer_load_ushort v{196+12*a+i}, v{28+i}, s[20:23], s37 offen offset:{32*a}")
            e(f"  buffer_load_ushort v{200+12*a+i}, v{28+i}, s[16:19], 0 offen offset:{32*a}")
    for i in range(4):
        e(f"  buffer_load_dwordx2 {vr(48+2*i,2)}, v{32+i}, s[20:23], s38 offen")
    lab("t4_noepi")
    e("  v_lshrrev_b32 v7, 2, v6")
    e("  v_lshl_add_u32 v7, v5, 3, v7")
    e("  v_lshlrev_b32 v7, 4, v7")
    e("  v_and_b32 v60, 1, v0")
    e("  v_lshl_add_u32 v7, v60, 3, v7")
    e("  v_and_b32 v60, 2, v0")
    e("  v_mul_u32_u24 v60, 14336, v60")
    e("  v_add_u32 v7, v60, v7")
    e("  v_add_u32 v7, s34, v7")
    e(f"  v_add_u32 v61, {2*28672}, v7")
    e("  s_waitcnt vmcnt(0)")
    FB0, FB1 = 72, 128
    for st in range(14):
        e(f"  ds_read_b64_tr_b16 {vr(FB0+4*st,2)}, v7 offset:{LDS_WD+512*st}")
        e(f"  ds_read_b64_tr_b16 {vr(FB0+4*st+2,2)}, v7 offset:{LDS_WD+512*st+64}")
        e(f"  ds_read_b64_tr_b16 {vr(FB1+4*st,2)}, v61 offset:{LDS_WD+512*st}")
        e(f"  ds_read_b64_tr_b16 {vr(FB1+4*st+2,2)}, v61 offset:{LDS_WD+512*st+64}")
        if st % 3 == 2: e("  s_waitcnt lgkmcnt(0)")
    for i in range(8):
        e(f"  v_mov_b32 v{8+i}, 0")
    for i in range(4):
        e(f"  v_and_b32 v60, 0xffff0000, v{24+i}")
        e("  v_ashrrev_i32 v62, 31, v60")
        e("  v_not_b32 v62, v62")
        e("  v_or_b32 v62, 0x80000000, v62")
        e("  v_xor_b32 v60, v60, v62")
        e("  v_and_b32 v60, 0xffff0000, v60")
        e("  v_mul_f32 v60, 0xbfb8aa3b, v60")
        e("  v_exp_f32 v60, v60")
        e("  s_nop 0")
        e("  v_add_f32 v60, 1.0, v60")
        e("  v_rcp_f32 v60, v60")
        e("  s_nop 0")
        e("  v_cvt_pk_bf16_f32 v60, v60, v60")
        e(f"  v_lshlrev_b32 v{24+i}, 16, v60")
    for a in range(2):
        for i in range(4):
            r0, r1, r2 = 192+12*a+i, 196+12*a+i, 200+12*a+i
            e(f"  v_lshlrev_b32 v{r0}, 16, v{r0}")
            e(f"  v_lshlrev_b32 v{r1}, 16, v{r1}")
            e(f"  v_lshlrev_b32 v{r2}, 16, v{r2}")
            e(f"  v_sub_f32 v60, v{r0}, v{r1}")
            e("  v_cvt_pk_bf16_f32 v60, v60, v60")
            e("  v_lshlrev_b32 v60, 16, v60")
            e(f"  v_add_f32 v60, v{r2}, v60")
            e("  v_cvt_pk_bf16_f32 v60, v60, v60")
            e(f"  v_lshlrev_b32 v{r0}, 16, v60")
            e(f"  v_sub_f32 v62, v{r0}, v{48+2*i}")
            e("  v_cvt_pk_bf16_f32 v62, v62, v62")
            e("  v_lshlrev_b32 v62, 16, v62")
            e(f"  v_mul_f32 v62, v62, v{49+2*i}")
            e("  v_cvt_pk_bf16_f32 v62, v62, v62")
            e(f"  v_lshlrev_b32 v{r1}, 16, v62")
    stamp(3)
    e("  v_and_b32 v4, 7, v0")
    e("  v_lshlrev_b32 v4, 4, v4")
    e("  v_lshl_add_u32 v4, v5, 7, v4")
    e("  s_mul_i32 s14, s13, 7168")
    e(f"  s_add_u32 s14, s14, {WS_GU}")
    regs = [216+4*i for i in range(9)] + [36, 40, 44, 56, 64]
    e("  v_add_u32 v62, 4096, v4")
    e("  s_mov_b32 s53, 0")
    lab("t4_poll")
    for st in range(14):
        e(f"  buffer_load_dwordx4 {vr(regs[st],4)}, v4, s[20:23], s14 offen offset:{512*st if st < 8 else 0} sc1") if st < 8 else e(f"  buffer_load_dwordx4 {vr(regs[st],4)}, v62, s[20:23], s14 offen offset:{512*(st-8)} sc1")
    e("  v_mov_b32 v3, 0")
    for st in range(14):
        e(f"  s_waitcnt vmcnt({13-st})")
        e(f"  v_max3_u32 v3, v3, v{regs[st]}, v{regs[st]+1}")
        e(f"  v_max3_u32 v3, v3, v{regs[st]+2}, v{regs[st]+3}")
    e("  v_cmp_eq_u32 s[54:55], -1, v3")
    e("  s_nop 3")
    e("  s_cmp_eq_u64 s[54:55], 0")
    e("  s_cbranch_scc1 t4_poll_ok")
    e("  s_add_u32 s53, s53, 1")
    e(f"  s_cmp_gt_u32 s53, {SPIN}")
    e("  s_cbranch_scc1 t4_poll_ok")
    e("  s_branch t4_poll")
    lab("t4_poll_ok")
    stamp(5)
    e("  s_waitcnt lgkmcnt(0)")
    for st in range(14):
        e(f"  v_mfma_f32_16x16x32_bf16 v[8:11], {vr(regs[st],4)}, {vr(FB0+4*st,4)}, v[8:11]")
        e(f"  v_mfma_f32_16x16x32_bf16 v[12:15], {vr(regs[st],4)}, {vr(FB1+4*st,4)}, v[12:15]")
    e("  s_nop 15")
    stamp(6)
    e("  v_lshlrev_b32 v3, 4, v0")
    e("  s_lshl_b32 s33, s13, 11")
    e("  v_add_u32 v3, s33, v3")
    e(f"  ds_write_b128 v3, v[8:11] offset:{LDS_R}")
    e(f"  ds_write_b128 v3, v[12:15] offset:{LDS_R+1024}")
    e("  s_waitcnt lgkmcnt(0)")
    e("  s_barrier")
    e("  s_cmp_lg_u32 s13, 0")
    e("  s_cbranch_scc1 t4_done")
    e("  v_lshlrev_b32 v3, 4, v0")
    for w in range(1, 4):
        for a in range(2):
            e(f"  ds_read_b128 {vr(72+8*(w-1)+4*a,4)}, v3 offset:{LDS_R+2048*w+1024*a}")
    e("  v_cmp_gt_u32 vcc, 32, v0")
    e("  s_and_saveexec_b64 s[40:41], vcc")
    e("  s_waitcnt lgkmcnt(0)")
    for a in range(2):
        for i in range(4):
            y = 8 + 4*a + i
            e(f"  v_add_f32 v{y}, v{y}, v{72+4*a+i}")
            e(f"  v_add_f32 v60, v{80+4*a+i}, v{88+4*a+i}")
            e(f"  v_add_f32 v{y}, v{y}, v60")
            e(f"  v_cvt_pk_bf16_f32 v{y}, v{y}, v{y}")
            e(f"  v_lshlrev_b32 v{y}, 16, v{y}")
            e(f"  v_mul_f32 v{y}, v{y}, v{24+i}")
            e(f"  v_cvt_pk_bf16_f32 v{y}, v{y}, v{y}")
            e(f"  v_lshlrev_b32 v{y}, 16, v{y}")
            e(f"  v_add_f32 v61, v{196+12*a+i}, v{y}")
            e("  v_cvt_pk_bf16_f32 v61, v61, v61")
            e("  v_lshlrev_b32 v61, 16, v61")
            e(f"  v_add_f32 v61, v{192+12*a+i}, v61")
            e("  v_cvt_pk_bf16_f32 v61, v61, v61")
            e(f"  buffer_store_short v61, v{28+i}, s[48:51], 0 offen offset:{32*a}")
    lab("t4_done")
    kernel_end()
    e("  s_endpgm")
    kernel_desc(name, 252)

ROW_O = 48
def rowmac(first, O=148, sc1=False):
    YR, YI, XX, WR, H, T, D = 16, 32, 48, 64, 80, 112, 116
    if sc1: O = ROW_O
    SC = " sc1" if sc1 else ""
    e("  v_lshlrev_b32 v3, 10, v1")
    e("  v_lshl_add_u32 v3, v2, 4, v3")
    e(f"  s_mov_b32 s52, {WS_Y}")
    e(f"  s_mov_b32 s53, {WS_Y + (2<<20)}")
    for j in range(4):
        e(f"  buffer_load_dwordx4 {vr(YR+4*j,4)}, v3, s[24:27], s52 offen offset:{256*j}{SC}")
        e(f"  buffer_load_dwordx4 {vr(YI+4*j,4)}, v3, s[24:27], s53 offen offset:{256*j}{SC}")
        e(f"  buffer_load_dwordx4 {vr(XX+4*j,4)}, v3, s[20:23], 0 offen offset:{256*j}")
    nextra = 0
    if first:
        e("  v_lshlrev_b32 v4, 4, v2")
        for j in range(4):
            e(f"  buffer_load_dwordx4 {vr(WR+4*j,4)}, v4, s[28:31], 0 offen offset:{256*j}")
        nextra = 4
    e("  v_mov_b32 v14, 0")
    e("  v_mov_b32 v15, 0")
    for j in range(4):
        e(f"  s_waitcnt vmcnt({nextra + 3*(3-j)})")
        for q in range(4):
            i = 4*j + q
            e(f"  v_lshlrev_b32 v{T}, 16, v{YR+i}")
            e(f"  v_and_b32 v{T+1}, 0xffff0000, v{YR+i}")
            e(f"  v_lshlrev_b32 v{T+2}, 16, v{YI+i}")
            e(f"  v_and_b32 v{T+3}, 0xffff0000, v{YI+i}")
            e(f"  v_pk_add_f32 {vr(T,2)}, {vr(T,2)}, {vr(T+2,2)} neg_lo:[0,1] neg_hi:[0,1]")
            e(f"  v_cvt_pk_bf16_f32 v{T}, v{T}, v{T+1}")
            e(f"  v_and_b32 v{T+1}, 0xffff0000, v{T}")
            e(f"  v_lshlrev_b32 v{T}, 16, v{T}")
            e(f"  v_lshlrev_b32 v{T+2}, 16, v{XX+i}")
            e(f"  v_and_b32 v{T+3}, 0xffff0000, v{XX+i}")
            e(f"  v_pk_add_f32 {vr(T,2)}, {vr(T,2)}, {vr(T+2,2)}")
            e(f"  v_cvt_pk_bf16_f32 v{YI+i}, v{T}, v{T+1}")
            e(f"  v_lshlrev_b32 v{H+2*i}, 16, v{YI+i}")
            e(f"  v_and_b32 v{H+2*i+1}, 0xffff0000, v{YI+i}")
            e(f"  v_pk_add_f32 v[14:15], v[14:15], {vr(H+2*i,2)}")
    e("  v_add_f32 v5, v14, v15")
    reduce16(5)
    e("  v_mul_f32 v5, 0x3b000000, v5")
    e("  v_cvt_pk_bf16_f32 v6, v5, v5")
    e("  v_lshlrev_b32 v6, 16, v6")
    e("  v_sub_f32 v8, 0, v6")
    e("  v_mov_b32 v9, v8")
    e("  v_mov_b32 v10, 0")
    e("  v_mov_b32 v11, 0")
    for i in range(16):
        e(f"  v_pk_add_f32 {vr(D+2*i,2)}, {vr(H+2*i,2)}, v[8:9]")
        e(f"  v_pk_fma_f32 v[10:11], {vr(D+2*i,2)}, {vr(D+2*i,2)}, v[10:11]")
    e("  v_add_f32 v10, v10, v11")
    reduce16(10)
    e("  v_sub_f32 v11, v5, v6")
    e("  v_mul_f32 v11, v11, v11")
    e("  v_mul_f32 v10, 0x3b000000, v10")
    e("  v_sub_f32 v10, v10, v11")
    e("  v_max_f32 v10, 0, v10")
    e("  v_cvt_pk_bf16_f32 v10, v10, v10")
    e("  v_lshlrev_b32 v10, 16, v10")
    e("  v_add_f32 v10, 0x3727c5ac, v10")
    e("  v_cvt_pk_bf16_f32 v10, v10, v10")
    e("  v_lshlrev_b32 v10, 16, v10")
    e("  v_sqrt_f32 v10, v10")
    e("  s_nop 0")
    e("  v_cvt_pk_bf16_f32 v10, v10, v10")
    e("  v_lshlrev_b32 v10, 16, v10")
    e("  v_rcp_f32 v10, v10")
    e("  s_nop 0")
    e("  v_mov_b32 v11, v10")
    if first:
        e("  v_mov_b32 v12, 0")
        e("  s_waitcnt vmcnt(0)")
    for i in range(16):
        e(f"  v_cvt_pk_bf16_f32 v{T}, v{D+2*i}, v{D+2*i+1}")
        e(f"  v_lshlrev_b32 v{D+2*i}, 16, v{T}")
        e(f"  v_and_b32 v{D+2*i+1}, 0xffff0000, v{T}")
        e(f"  v_pk_mul_f32 {vr(D+2*i,2)}, {vr(D+2*i,2)}, v[10:11]")
        e(f"  v_cvt_pk_bf16_f32 v{YR+i}, v{D+2*i}, v{D+2*i+1}")
        if first:
            e(f"  v_dot2_f32_bf16 v12, v{YR+i}, v{WR+i}, v12")
            e(f"  v_lshlrev_b32 v{D+2*i}, 16, v{YR+i}")
            e(f"  v_and_b32 v{D+2*i+1}, 0xffff0000, v{YR+i}")
            e(f"  v_pk_add_f32 {vr(D+2*i,2)}, {vr(D+2*i,2)}, {vr(H+2*i,2)}")
            e(f"  v_cvt_pk_bf16_f32 v{O+i}, v{D+2*i}, v{D+2*i+1}")
    if first:
        e("  s_nop 3")
        reduce16(12)
        e("  v_cvt_pk_bf16_f32 v12, v12, v12")
        e("  v_lshlrev_b32 v12, 16, v12")
        e("  v_ashrrev_i32 v13, 31, v12")
        e("  v_or_b32 v13, 0x80000000, v13")
        e("  v_xor_b32 v12, v12, v13")
        e("  v_and_b32 v12, 0xffff0000, v12")
        e("  v_sub_u32 v13, 0xffff, v1")
        e("  v_or_b32 v12, v12, v13")

def gen_tf():
    name = "tf_kernel"
    kernel_begin(name)
    LDS_G, LDS_U, LDS_WD = 0, 8192, 16384
    LDS_XS = 45056
    LDS_HS = LDS_XS + 8 * XS_STRIDE
    LDS_C = LDS_HS + 8192
    LDS_R = LDS_C + 256
    SPIN = 1 << 22
    e("  s_cmp_ge_u32 s2, 256")
    e("  s_cbranch_scc1 tf_done")
    e(f"  s_load_dwordx2 s[4:5], s[0:1], {KA_X}")
    e(f"  s_load_dwordx2 s[6:7], s[0:1], {KA_WS}")
    e(f"  s_load_dwordx8 s[8:15], s[0:1], {KA_WR}")
    e(f"  s_load_dwordx2 s[16:17], s[0:1], {KA_OUT}")
    e("  s_and_b32 s3, s2, 7")
    e("  s_mul_i32 s49, s3, 28")
    e("  s_lshr_b32 s50, s2, 3")
    e("  s_add_u32 s49, s49, s50")
    e("  s_sub_u32 s50, s50, 24")
    e("  s_lshl_b32 s51, s3, 3")
    e("  s_add_u32 s50, s50, s51")
    e("  v_mov_b32 v180, v0")
    e("  v_lshrrev_b32 v1, 6, v0")
    e("  v_and_b32 v0, 63, v0")
    e("  v_readfirstlane_b32 s48, v1")
    e("  s_waitcnt lgkmcnt(0)")
    srd(20, 4, 5, 2 << 20)
    srd(24, 6, 7, 9 << 20)
    srd(28, 8, 9, 1024)
    srd(32, 10, 11, 512*1792*2)
    srd(36, 12, 13, 512*1792*2)
    srd(40, 14, 15, 1792*512*2)
    srd(44, 16, 17, 2 << 20)
    e("  s_cmp_lt_u32 s48, 2")
    e("  s_cbranch_scc1 tf_p1")
    e("  s_cmp_ge_u32 s2, 224")
    e("  s_cbranch_scc1 tf_nof1")
    e("  s_movk_i32 s52, 3584")
    e("  v_mul_lo_u32 v3, v0, s52")
    e("  s_lshl_b32 s53, s49, 4")
    e("  s_cmp_eq_u32 s48, 2")
    e("  s_cbranch_scc0 tf_dma_u")
    for i in range(8):
        e(f"  s_mov_b32 m0, {LDS_G + 1024*i}")
        e("  s_nop 0")
        e("  buffer_load_dwordx4 v3, s[32:35], s53 offen lds")
        e(f"  s_add_u32 s53, s53, {64*3584}")
    e("  s_branch tf_nof1")
    lab("tf_dma_u")
    for i in range(8):
        e(f"  s_mov_b32 m0, {LDS_U + 1024*i}")
        e("  s_nop 0")
        e("  buffer_load_dwordx4 v3, s[36:39], s53 offen lds")
        e(f"  s_add_u32 s53, s53, {64*3584}")
    lab("tf_nof1")
    e("  s_cmp_lt_u32 s2, 192")
    e("  s_cbranch_scc1 tf_poll1")
    e("  v_lshlrev_b32 v3, 10, v0")
    e("  s_sub_u32 s52, s48, 2")
    e(f"  s_mul_i32 s53, s52, {896*1024}")
    e("  s_lshl_b32 s54, s50, 4")
    e("  s_add_u32 s53, s53, s54")
    e(f"  s_mul_i32 s54, s52, {896*16}")
    for i in range(14):
        e(f"  s_add_u32 m0, s54, {LDS_WD + 1024*i}")
        e("  s_nop 0")
        e("  buffer_load_dwordx4 v3, s[40:43], s53 offen lds")
        e("  s_add_u32 s53, s53, 0x10000")
    e("  s_branch tf_poll1")
    lab("tf_p1")
    e("  v_lshrrev_b32 v1, 4, v180")
    e("  v_and_b32 v2, 15, v0")
    e("  s_lshl_b32 s52, s2, 3")
    e("  v_add_u32 v1, s52, v1")
    e("  v_mov_b32 v181, v1")
    rowmac(True)
    e("  v_cmp_eq_u32 vcc, 0, v2")
    e("  s_and_saveexec_b64 s[56:57], vcc")
    e("  v_lshlrev_b32 v13, 2, v1")
    e(f"  s_mov_b32 s52, {WS_KEY}")
    e("  buffer_store_dword v12, v13, s[24:27], s52 offen sc1")
    e("  s_mov_b64 exec, s[56:57]")
    stamp(1)
    lab("tf_poll1")
    K = 164
    e("  v_lshlrev_b32 v172, 5, v180")
    e(f"  s_mov_b32 s52, {WS_KEY}")
    e("  s_mov_b32 s60, 0")
    lab("tf_poll1_loop")
    e(f"  buffer_load_dwordx4 {vr(K,4)}, v172, s[24:27], s52 offen sc1")
    e(f"  buffer_load_dwordx4 {vr(K+4,4)}, v172, s[24:27], s52 offen offset:16 sc1")
    e("  s_waitcnt vmcnt(0)")
    e(f"  v_min3_u32 v173, v{K}, v{K+1}, v{K+2}")
    e(f"  v_min3_u32 v174, v{K+3}, v{K+4}, v{K+5}")
    e(f"  v_min3_u32 v173, v173, v{K+6}, v{K+7}")
    e("  v_min_u32 v173, v173, v174")
    e("  v_cmp_eq_u32 s[62:63], 0, v173")
    e("  s_nop 3")
    e("  s_cmp_eq_u64 s[62:63], 0")
    e("  s_cbranch_scc1 tf_poll1_ok")
    e("  s_add_u32 s60, s60, 1")
    e(f"  s_cmp_gt_u32 s60, {SPIN}")
    e("  s_cbranch_scc1 tf_poll1_ok")
    e("  s_sleep 1")
    e("  s_branch tf_poll1_loop")
    lab("tf_poll1_ok")
    stamp(2)
    e("  v_mov_b32 v176, 0")
    for rnd in range(8):
        e(f"  v_max3_u32 v173, v{K}, v{K+1}, v{K+2}")
        e(f"  v_max3_u32 v174, v{K+3}, v{K+4}, v{K+5}")
        e(f"  v_max3_u32 v173, v173, v{K+6}, v{K+7}")
        e("  v_max_u32 v173, v173, v174")
        e("  s_nop 1")
        e("  v_max_u32_dpp v173, v173, v173 quad_perm:[1,0,3,2] row_mask:0xf bank_mask:0xf")
        e("  s_nop 1")
        e("  v_max_u32_dpp v173, v173, v173 quad_perm:[2,3,0,1] row_mask:0xf bank_mask:0xf")
        e("  s_nop 1")
        e("  v_max_u32_dpp v173, v173, v173 row_half_mirror row_mask:0xf bank_mask:0xf")
        e("  s_nop 1")
        e("  v_max_u32_dpp v173, v173, v173 row_mirror row_mask:0xf bank_mask:0xf")
        e("  s_nop 1")
        e("  v_readlane_b32 s64, v173, 0")
        e("  v_readlane_b32 s65, v173, 16")
        e("  v_readlane_b32 s66, v173, 32")
        e("  v_readlane_b32 s67, v173, 48")
        e("  s_max_u32 s64, s64, s65")
        e("  s_max_u32 s66, s66, s67")
        e("  s_max_u32 s64, s64, s66")
        e(f"  v_writelane_b32 v176, s64, {rnd}")
        if rnd < 7:
            for k in range(8):
                e(f"  v_cmp_ne_u32 vcc, s64, v{K+k}")
                e("  s_nop 1")
                e(f"  v_cndmask_b32 v{K+k}, 0, v{K+k}, vcc")
    e("  s_lshl_b32 s52, s48, 5")
    e(f"  s_add_u32 s52, s52, {LDS_C}")
    e("  v_lshlrev_b32 v172, 2, v0")
    e("  v_add_u32 v172, s52, v172")
    e("  v_cmp_gt_u32 vcc, 8, v0")
    e("  s_and_saveexec_b64 s[56:57], vcc")
    e("  ds_write_b32 v172, v176")
    e("  s_mov_b64 exec, s[56:57]")
    e("  s_waitcnt lgkmcnt(0)")
    e("  s_barrier")
    e("  v_and_b32 v172, 31, v0")
    e("  v_lshlrev_b32 v172, 2, v172")
    e(f"  ds_read_b32 v177, v172 offset:{LDS_C}")
    e("  v_mov_b32 v178, 0")
    e("  s_waitcnt lgkmcnt(0)")
    for i in range(32):
        e(f"  v_readlane_b32 s64, v177, {i}")
        e("  s_nop 1")
        e("  v_cmp_gt_u32 vcc, s64, v177")
        e("  s_nop 1")
        e("  v_addc_co_u32 v178, vcc, 0, v178, vcc")
    e("  v_cmp_gt_u32 vcc, 8, v178")
    e("  v_cmp_gt_u32 s[58:59], 32, v0")
    e("  s_and_b64 vcc, vcc, s[58:59]")
    e("  v_lshlrev_b32 v172, 2, v178")
    e("  s_and_saveexec_b64 s[56:57], vcc")
    e(f"  ds_write_b32 v172, v177 offset:{LDS_C+128}")
    e("  s_mov_b64 exec, s[56:57]")
    e("  s_waitcnt lgkmcnt(0)")
    e("  s_barrier")
    stamp(3)
    e("  s_cmp_lt_u32 s48, 2")
    e("  s_cbranch_scc1 tf_p2")
    e("  s_waitcnt vmcnt(0)")
    e("  s_branch tf_p2_end")
    lab("tf_p2")
    e("  v_mov_b32 v172, 0")
    e(f"  ds_read_b128 {vr(K,4)}, v172 offset:{LDS_C+128}")
    e(f"  ds_read_b128 {vr(K+4,4)}, v172 offset:{LDS_C+144}")
    e("  v_lshrrev_b32 v173, 4, v180")
    e("  v_lshlrev_b32 v173, 2, v173")
    e(f"  ds_read_b32 v174, v173 offset:{LDS_C+128}")
    e("  v_sub_u32 v175, 0xffff, v181")
    e("  s_waitcnt lgkmcnt(0)")
    e("  s_mov_b64 s[58:59], exec")
    for k in range(8):
        e(f"  v_and_b32 v{K+k}, 0xffff, v{K+k}")
        e(f"  v_cmp_ne_u32 vcc, v{K+k}, v175")
        e("  s_and_b64 s[58:59], s[58:59], vcc")
    e("  v_lshlrev_b32 v3, 10, v181")
    e("  v_lshl_add_u32 v3, v2, 4, v3")
    e("  s_and_saveexec_b64 s[56:57], s[58:59]")
    e("  s_cbranch_execz tf_nostore")
    for j in range(4):
        e(f"  buffer_store_dwordx4 {vr(148+4*j,4)}, v3, s[44:47], 0 offen offset:{256*j}")
    lab("tf_nostore")
    e("  s_mov_b64 exec, s[56:57]")
    e("  v_and_b32 v1, 0xffff, v174")
    e("  v_sub_u32 v1, 0xffff, v1")
    rowmac(False)
    e("  v_lshrrev_b32 v173, 4, v180")
    e(f"  v_mul_u32_u24 v4, {XS_STRIDE}, v173")
    e("  v_lshl_add_u32 v4, v2, 4, v4")
    e("  v_lshlrev_b32 v5, 10, v173")
    e("  v_lshl_add_u32 v5, v2, 4, v5")
    for j in range(4):
        e(f"  ds_write_b128 v4, {vr(16+4*j,4)} offset:{LDS_XS+256*j}")
        e(f"  ds_write_b128 v5, {vr(32+4*j,4)} offset:{LDS_HS+256*j}")
    e("  s_waitcnt lgkmcnt(0)")
    lab("tf_p2_end")
    e("  s_barrier")
    stamp(4)
    e("  s_cmp_lg_u32 s48, 0")
    e("  s_cbranch_scc1 tf_f2")
    e("  s_cmp_ge_u32 s2, 224")
    e("  s_cbranch_scc1 tf_f2")
    e("  v_and_b32 v3, 7, v0")
    e(f"  v_mul_u32_u24 v3, {XS_STRIDE}, v3")
    e("  v_lshrrev_b32 v4, 4, v0")
    e("  v_lshl_add_u32 v3, v4, 4, v3")
    e("  v_and_b32 v5, 15, v0")
    e("  v_lshrrev_b32 v5, 2, v5")
    e("  v_lshl_add_u32 v5, v4, 3, v5")
    e("  v_lshlrev_b32 v5, 4, v5")
    e("  v_and_b32 v6, 1, v0")
    e("  v_lshl_add_u32 v5, v6, 3, v5")
    e("  v_and_b32 v6, 2, v0")
    e("  v_lshl_add_u32 v5, v6, 12, v5")
    for i in range(4):
        e(f"  v_mov_b32 v{8+i}, 0")
    FA, FB = 16, 80
    for st in range(16):
        e(f"  ds_read_b128 {vr(FA+4*st,4)}, v3 offset:{LDS_XS + 64*st}")
        e(f"  ds_read_b64_tr_b16 {vr(FB+4*st,2)}, v5 offset:{512*st}")
        e(f"  ds_read_b64_tr_b16 {vr(FB+4*st+2,2)}, v5 offset:{512*st+64}")
        if st % 4 == 3:
            e("  s_waitcnt lgkmcnt(0)")
            for s2 in range(st-3, st+1):
                e(f"  v_mfma_f32_16x16x32_bf16 v[8:11], {vr(FA+4*s2,4)}, {vr(FB+4*s2,4)}, v[8:11]")
    e("  s_nop 15")
    for i in range(4):
        e(f"  v_cvt_pk_bf16_f32 v{8+i}, v{8+i}, v{8+i}")
        e(f"  v_lshlrev_b32 v{8+i}, 16, v{8+i}")
    e("  s_nop 1")
    for i in range(4):
        e(f"  v_mov_b32_dpp v{12+i}, v{8+i} row_ror:8 row_mask:0xf bank_mask:0xf")
    for i in range(4):
        e(f"  v_mul_f32 v16, 0xbfb8aa3b, v{8+i}")
        e("  v_exp_f32 v16, v16")
        e("  s_nop 0")
        e("  v_add_f32 v16, 1.0, v16")
        e("  v_rcp_f32 v16, v16")
        e("  s_nop 0")
        e(f"  v_mul_f32 v16, v{8+i}, v16")
        e("  v_cvt_pk_bf16_f32 v16, v16, v16")
        e("  v_lshlrev_b32 v16, 16, v16")
        e(f"  v_mul_f32 v16, v16, v{12+i}")
        e(f"  v_cvt_pk_bf16_f32 v{20+i}, v16, v16")
    e("  s_nop 1")
    for i in range(4):
        e(f"  v_mov_b32_dpp v{24+i}, v{20+i} quad_perm:[1,0,3,2] row_mask:0xf bank_mask:0xf")
    for i in range(4):
        e(f"  v_and_b32 v{20+i}, 0xffff, v{20+i}")
        e(f"  v_and_b32 v{24+i}, 0xffff0000, v{24+i}")
        e(f"  v_or_b32 v{20+i}, v{20+i}, v{24+i}")
    e("  v_and_b32 v5, 15, v0")
    e("  v_and_b32 v6, 9, v0")
    e("  v_cmp_eq_u32 vcc, 0, v6")
    e("  v_cmp_gt_u32 s[58:59], 32, v0")
    e("  s_and_b64 vcc, vcc, s[58:59]")
    e("  s_and_saveexec_b64 s[56:57], vcc")
    e("  v_lshlrev_b32 v4, 2, v4")
    e("  v_mul_u32_u24 v4, 3584, v4")
    e("  v_lshl_add_u32 v4, v5, 1, v4")
    e("  s_lshl_b32 s52, s49, 4")
    e(f"  s_add_u32 s52, s52, {WS_GU}")
    for i in range(4):
        e(f"  buffer_store_dword v{20+i}, v4, s[24:27], s52 offen sc1")
        if i < 3:
            e("  v_add_u32 v4, 3584, v4")
    e("  s_waitcnt vmcnt(0)")
    e("  s_mov_b64 exec, 1")
    e("  v_mov_b32 v4, 1")
    e("  v_mov_b32 v5, 0")
    e("  s_lshl_b32 s52, s49, 2")
    e(f"  s_add_u32 s52, s52, {WS_FLAG}")
    e("  buffer_store_dword v4, v5, s[24:27], s52 offen sc1")
    e("  s_mov_b64 exec, s[56:57]")
    stamp(5)
    lab("tf_f2")
    e("  s_cmp_lt_u32 s2, 192")
    e("  s_cbranch_scc1 tf_done")
    e("  v_min_u32 v3, 55, v0")
    e("  v_lshlrev_b32 v3, 2, v3")
    e("  s_mul_i32 s52, s48, 224")
    e(f"  s_add_u32 s52, s52, {WS_FLAG}")
    e("  s_mov_b32 s60, 0")
    lab("tf_poll2_loop")
    e("  buffer_load_dword v4, v3, s[24:27], s52 offen sc1")
    e("  s_waitcnt vmcnt(0)")
    e("  v_cmp_eq_u32 s[62:63], 0, v4")
    e("  s_nop 3")
    e("  s_cmp_eq_u64 s[62:63], 0")
    e("  s_cbranch_scc1 tf_poll2_ok")
    e("  s_add_u32 s60, s60, 1")
    e(f"  s_cmp_gt_u32 s60, {SPIN}")
    e("  s_cbranch_scc1 tf_poll2_ok")
    e("  s_sleep 1")
    e("  s_branch tf_poll2_loop")
    lab("tf_poll2_ok")
    stamp(6)
    e("  v_and_b32 v4, 7, v0")
    e("  v_mul_u32_u24 v4, 3584, v4")
    e("  v_lshrrev_b32 v5, 4, v0")
    e("  v_lshl_add_u32 v4, v5, 4, v4")
    e("  s_mul_i32 s52, s48, 896")
    e(f"  s_add_u32 s52, s52, {WS_GU}")
    FA, FB = 16, 72
    for st in range(14):
        e(f"  buffer_load_dwordx4 {vr(FA+4*st,4)}, v4, s[24:27], s52 offen offset:{64*st} sc1")
    e("  v_and_b32 v7, 15, v0")
    e("  v_lshrrev_b32 v7, 2, v7")
    e("  v_lshl_add_u32 v7, v5, 3, v7")
    e("  v_lshlrev_b32 v7, 4, v7")
    e("  v_and_b32 v6, 1, v0")
    e("  v_lshl_add_u32 v7, v6, 3, v7")
    e("  s_mul_i32 s54, s48, 7168")
    e(f"  s_add_u32 s54, s54, {LDS_WD}")
    e("  v_add_u32 v7, s54, v7")
    for st in range(14):
        e(f"  ds_read_b64_tr_b16 {vr(FB+4*st,2)}, v7 offset:{512*st}")
        e(f"  ds_read_b64_tr_b16 {vr(FB+4*st+2,2)}, v7 offset:{512*st+64}")
    for i in range(4):
        e(f"  v_mov_b32 v{8+i}, 0")
    e("  s_waitcnt vmcnt(0) lgkmcnt(0)")
    for st in range(14):
        e(f"  v_mfma_f32_16x16x32_bf16 v[8:11], {vr(FA+4*st,4)}, {vr(FB+4*st,4)}, v[8:11]")
    e("  s_nop 15")
    e("  v_lshlrev_b32 v3, 4, v0")
    e("  s_lshl_b32 s52, s48, 10")
    e("  v_add_u32 v3, s52, v3")
    e(f"  ds_write_b128 v3, v[8:11] offset:{LDS_R}")
    e("  s_waitcnt lgkmcnt(0)")
    e("  s_barrier")
    e("  s_cmp_lg_u32 s48, 0")
    e("  s_cbranch_scc1 tf_done")
    e("  v_lshlrev_b32 v3, 4, v0")
    for w in range(1, 4):
        e(f"  ds_read_b128 {vr(12+4*(w-1),4)}, v3 offset:{LDS_R+1024*w}")
    e("  v_and_b32 v6, 1, v5")
    e("  v_lshlrev_b32 v6, 4, v6")
    e(f"  ds_read_b128 v[24:27], v6 offset:{LDS_C+128}")
    e("  v_and_b32 v6, 7, v0")
    e("  s_lshl_b32 s52, s50, 4")
    e("  v_lshl_add_u32 v6, v6, 1, s52")
    e("  v_and_b32 v7, 1, v5")
    e("  v_lshlrev_b32 v7, 2, v7")
    for i in range(4):
        e(f"  v_add_u32 v28, {i}, v7")
        e(f"  v_mul_u32_u24 v29, {XS_STRIDE}, v28")
        e("  v_add_u32 v29, v29, v6")
        e(f"  ds_read_u16 v{36+i}, v29 offset:{LDS_XS}")
        e("  v_lshl_add_u32 v29, v28, 10, v6")
        e(f"  ds_read_u16 v{40+i}, v29 offset:{LDS_HS}")
    e("  v_and_b32 v30, 15, v0")
    e("  v_cmp_gt_u32 vcc, 8, v30")
    e("  v_cmp_gt_u32 s[58:59], 32, v0")
    e("  s_and_b64 vcc, vcc, s[58:59]")
    e("  s_waitcnt lgkmcnt(0)")
    e("  s_and_saveexec_b64 s[56:57], vcc")
    for i in range(4):
        e(f"  v_add_f32 v{8+i}, v{8+i}, v{12+i}")
        e(f"  v_add_f32 v{16+i}, v{16+i}, v{20+i}")
        e(f"  v_add_f32 v{8+i}, v{8+i}, v{16+i}")
        e(f"  v_cvt_pk_bf16_f32 v{8+i}, v{8+i}, v{8+i}")
        e(f"  v_lshlrev_b32 v{8+i}, 16, v{8+i}")
        e(f"  v_and_b32 v60, 0xffff0000, v{24+i}")
        e("  v_ashrrev_i32 v61, 31, v60")
        e("  v_not_b32 v61, v61")
        e("  v_or_b32 v61, 0x80000000, v61")
        e("  v_xor_b32 v60, v60, v61")
        e("  v_and_b32 v60, 0xffff0000, v60")
        e("  v_mul_f32 v60, 0xbfb8aa3b, v60")
        e("  v_exp_f32 v60, v60")
        e("  s_nop 0")
        e("  v_add_f32 v60, 1.0, v60")
        e("  v_rcp_f32 v60, v60")
        e("  s_nop 0")
        e("  v_cvt_pk_bf16_f32 v60, v60, v60")
        e("  v_lshlrev_b32 v60, 16, v60")
        e(f"  v_mul_f32 v{8+i}, v{8+i}, v60")
        e(f"  v_cvt_pk_bf16_f32 v{8+i}, v{8+i}, v{8+i}")
        e(f"  v_lshlrev_b32 v{8+i}, 16, v{8+i}")
        e(f"  v_lshlrev_b32 v{36+i}, 16, v{36+i}")
        e(f"  v_lshlrev_b32 v{40+i}, 16, v{40+i}")
        e(f"  v_add_f32 v61, v{36+i}, v{8+i}")
        e("  v_cvt_pk_bf16_f32 v61, v61, v61")
        e("  v_lshlrev_b32 v61, 16, v61")
        e(f"  v_add_f32 v61, v{40+i}, v61")
        e("  v_cvt_pk_bf16_f32 v61, v61, v61")
        e(f"  v_and_b32 v62, 0xffff, v{24+i}")
        e("  v_sub_u32 v62, 0xffff, v62")
        e("  v_lshl_add_u32 v62, v62, 10, v6")
        e("  buffer_store_short v61, v62, s[44:47], 0 offen")
    lab("tf_done")
    kernel_end()
    e("  s_endpgm")
    kernel_desc(name, 184)

def main():
    hdr = open("cdna_kernels/" + NAME + ".s.ref").read().splitlines()
    out = []
    for ln in hdr:
        if ln.startswith("; @launch"):
            if FUSE:
                out.append("; @launch kernel=f_kernel grid=(256,1,1) block=(576,1,1) lds=%d" % (K2_NS*24576 + 256))
            else:
                out.append("; @launch kernel=k1_kernel grid=(256,1,1) block=(%d,1,1) lds=131072" % (576 if OPT('K1_PF', 0) else 512))
                out.append("; @launch kernel=k2_kernel grid=(256,1,1) block=(%d,1,1) lds=%d" % (576, K2_NS*24576))
            if OPT('TF'):
                out.append("; @launch kernel=tf_kernel grid=(256,1,1) block=(256,1,1) lds=66048")
            else:
                if not OPT('K2T1', 1):
                    out.append("; @launch kernel=t1_kernel grid=(256,1,1) block=(%d,1,1) lds=0" % (192 if OPT('T1_PF', 1) else 128))
                if MEGA:
                    pass
                elif OPT('T4', 1):
                    out.append("; @launch kernel=t4_kernel grid=(240,1,1) block=(256,1,1) lds=123392")
                else:
                    out.append("; @launch kernel=t2_kernel grid=(224,1,1) block=(256,1,1) lds=25600")
                    out.append("; @launch kernel=t3_kernel grid=(64,1,1) block=(256,1,1) lds=32768")
            break
        out.append(ln)
    out.append('.amdgcn_target "amdgcn-amd-amdhsa--gfx950"')
    out.append(".text")
    gen_k1(); gen_k2()
    if OPT('TF'): gen_tf()
    elif OPT('T4', 1):
        if not OPT('K2T1', 1): gen_t1()
        if not MEGA: gen_t4()
    else: gen_t1(); gen_t2(); gen_t3()
    out += L
    out.append('.section .rodata,"a"')
    out += KD
    dst = sys.argv[1] if len(sys.argv) > 1 else "cdna_kernels/" + NAME + ".s"
    open(dst, "w").write("\n".join(out) + "\n")

main()
```

```python
import sys, os
OPT = lambda k, d=0: int(os.environ.get(k, d))

NAME = "sequential_preLN__spectral_fnet__moe_arch_mod__prompt"
L = []
def e(s=""):
    L.append(s)
def lab(s):
    L.append(s + ":")

KA_X, KA_WSRE, KA_WSIM, KA_WDRE, KA_WDIM = 0, 8, 16, 24, 32
KA_WR, KA_WG, KA_WU, KA_WDN, KA_OUT, KA_DBG, KA_WS = 48, 56, 64, 72, 80, 88, 96
WS_YB = 0
WS_Y = 4 << 20
WS_KEY = 8 << 20
WS_STAT = (8 << 20) + 8192
WS_GU = (8 << 20) + 65536
WS_IDX = (8 << 20) + 131072
WS_FLAG = (8 << 20) + 196608
WS_FA = WS_FLAG + 4096
WS_REC = (9 << 20)
WS_SEL = (9 << 20) + 65536
WS_WDB = 10 << 20
WS_SIZE = 268435456

KIDX = [0]
NV = {"k1_kernel": 160, "k2_kernel": 160, "t1_kernel": 148, "t2_kernel": 192, "t3_kernel": 192, "tf_kernel": 184, "t4_kernel": 252, "f_kernel": 164}
FUSE = OPT("FUSE", 1)
K2_NS = OPT("K2_NS", 6)
MEGA = OPT("MEGA", 0) and FUSE
CUR = [0]
def kernel_begin(name):
    CUR[0] = NV[name]
    e(f".globl {name}")
    e(".p2align 8")
    e(f".type {name},@function")
    lab(name)
    if OPT('DIAG'):
        e("  s_memrealtime s[72:73]")
        for i in range(1, 7):
            e(f"  s_mov_b64 s[{72+2*i}:{73+2*i}], 0")
        e(f"  s_load_dwordx2 s[94:95], s[0:1], {KA_WS}")
        e(f"  v_mov_b32 v{CUR[0]}, v0")

HS = [0]
def hstamp(k, wg=0):
    if not OPT('HSTAMP'): return
    if OPT('HSTAMP') == 3 and wg in (0, 224) and k in (7, 8, 9, 10, 11, 12, 13, 14) and HS[0] > 0 and not (k <= 12 and getattr(hstamp, "on", 0)):
        return
    if OPT('HSTAMP') == 3 and k == 7 and HS[0] == 0: k = 15
    if OPT('HSTAMP') == 2 and k in (7, 8, 9, 10) and wg in (0, 224) and not hasattr(hstamp, "x"):
        if k != 7: return
        k = 15
    HS[0] += 1
    e(f"  s_cmp_lg_u32 s2, {wg}")
    e(f"  s_cbranch_scc1 hs_{HS[0]}")
    e("  s_cmp_lg_u32 s15, 0")
    e(f"  s_cbranch_scc1 hs_{HS[0]}")
    e("  s_memrealtime s[72:73]")
    e("  s_waitcnt lgkmcnt(0)")
    e("  v_mov_b32 v162, s72")
    e(f"  v_mov_b32 v163, {4*k}")
    e("  s_mov_b64 s[74:75], exec")
    e("  s_mov_b64 exec, 1")
    e("  buffer_store_dword v162, v163, s[96:99], 0 offen")
    e("  s_mov_b64 exec, s[74:75]")
    lab(f"hs_{HS[0]}")

def stamp(i):
    if OPT('DIAG'):
        e(f"  s_memrealtime s[{72+2*i}:{73+2*i}]")
    if OPT('HSTAMP') == 1 and CUR[0] == 164: hstamp(i)
    if OPT('HSTAMP') == 3 and CUR[0] == 164 and i == 1:
        hstamp.on = 1
        for n, w in enumerate((0, 9, 34, 67, 100, 133, 166, 199, 232, 250, 255, 128)): hstamp(1 + n, w)
        hstamp.on = 0
    if OPT('HSTAMP') == 2 and CUR[0] == 164 and i == 6:
        for w in range(8): hstamp(1 + w, w)
    if OPT('HSTAMP') == 2 and CUR[0] == 164 and i == 2:
        for w in range(0, 8, 2): hstamp(11 + w // 2, w + 1)

def kernel_end():
    if OPT('DIAG'):
        e("  s_waitcnt vmcnt(0) lgkmcnt(0)")
        e("  s_memrealtime s[86:87]")
        e("  s_mov_b32 s88, s94")
        e("  s_mov_b32 s89, s95")
        e("  s_mov_b32 s90, 0x4000000")
        e("  s_mov_b32 s91, 0x00020000")
        e("  s_waitcnt lgkmcnt(0)")
        e("  s_mov_b64 exec, 1")
        for i in range(16):
            e(f"  v_mov_b32 v{i}, s{72+i}")
        e(f"  v_lshrrev_b32 v{CUR[0]+1}, 6, v{CUR[0]}")
        e(f"  v_lshlrev_b32 v{CUR[0]+1}, 6, v{CUR[0]+1}")
        e("  s_lshl_b32 s92, s2, 10")
        e(f"  s_add_u32 s92, s92, {(16 << 20) + KIDX[0] * 0x100000}")
        for i in range(4):
            e(f"  buffer_store_dwordx4 v[{4*i}:{3+4*i}], v{CUR[0]+1}, s[88:91], s92 offen offset:{16*i}")
    KIDX[0] += 1

KD = []
def kernel_desc(name, vgpr, sgpr=102):
    assert vgpr == CUR[0]
    if OPT('DIAG'): vgpr += 2
    acc = (vgpr + 3) // 4 * 4
    KD.append(f""".p2align 6
.amdhsa_kernel {name}
  .amdhsa_next_free_vgpr {vgpr}
  .amdhsa_next_free_sgpr {sgpr}
  .amdhsa_accum_offset {acc}
  .amdhsa_group_segment_fixed_size 0
  .amdhsa_kernarg_size 104
  .amdhsa_user_sgpr_count 2
  .amdhsa_user_sgpr_kernarg_segment_ptr 1
  .amdhsa_system_sgpr_workgroup_id_x 1
.end_amdhsa_kernel""")

def srd(d, lo, hi, size):
    e(f"  s_mov_b32 s{d}, s{lo}")
    e(f"  s_mov_b32 s{d+1}, s{hi}")
    e(f"  s_mov_b32 s{d+2}, {size}")
    e(f"  s_mov_b32 s{d+3}, 0x00020000")

def vr(a, n):
    return f"v[{a}:{a+n-1}]"

def reduce8(v):
    e("  s_nop 1")
    e(f"  v_add_f32_dpp v{v}, v{v}, v{v} quad_perm:[1,0,3,2] row_mask:0xf bank_mask:0xf")
    e("  s_nop 1")
    e(f"  v_add_f32_dpp v{v}, v{v}, v{v} quad_perm:[2,3,0,1] row_mask:0xf bank_mask:0xf")
    e("  s_nop 1")
    e(f"  v_add_f32_dpp v{v}, v{v}, v{v} row_half_mirror row_mask:0xf bank_mask:0xf")

def reduce16(v):
    reduce8(v)
    e("  s_nop 1")
    e(f"  v_add_f32_dpp v{v}, v{v}, v{v} row_mirror row_mask:0xf bank_mask:0xf")

def helper_wave():
    srd(36, 34, 35, 1792*512*2)
    srd(40, 6, 7, 12 << 20)
    e("  v_lshlrev_b32 v2, 4, v0")
    e("  s_mul_i32 s44, s2, 7168")
    for q in range(7):
        e(f"  buffer_load_dwordx4 {vr(8+4*q,4)}, v2, s[36:39], s44 offen")
        e("  s_add_u32 s44, s44, 1024")
    e("  s_cmp_ge_u32 s2, 28")
    e("  s_cbranch_scc1 k2_nomark")
    for q in range(4):
        e(f"  v_mov_b32 v{4+q}, -1")
    e("  s_lshl_b32 s44, s2, 10")
    e(f"  s_add_u32 s44, s44, {WS_GU}")
    e("  buffer_store_dwordx4 v[4:7], v2, s[40:43], s44 offen" + (" sc1" if MEGA else ""))
    lab("k2_nomark")
    e("  v_mul_u32_u24 v3, 28672, v0")
    e("  s_mul_i32 s44, s2, 112")
    e(f"  s_add_u32 s44, s44, {WS_WDB}")
    e("  s_waitcnt vmcnt(0)")
    for q in range(7):
        e(f"  buffer_store_dwordx4 {vr(8+4*q,4)}, v3, s[40:43], s44 offen offset:{16*q}" + (" sc1" if MEGA else ""))
    if MEGA: e("  s_waitcnt vmcnt(0)")
    if FUSE and OPT('F_PFM', 0) == 2:
        e("  s_and_b32 s44, s2, 7")
        e("  s_cmp_lt_u32 s44, 4")
        e("  s_cselect_b32 s48, s52, s54")
        e("  s_cselect_b32 s49, s53, s55")
        e(f"  s_mov_b32 s50, {2048*2048*2}")
        e("  s_mov_b32 s51, 0x00020000")
        e("  s_and_b32 s44, s44, 3")
        e("  s_lshl_b32 s44, s44, 21")
        e("  s_lshr_b32 s45, s2, 3")
        e("  s_lshl_b32 s45, s45, 16")
        e("  s_add_u32 s44, s44, s45")
        e("  v_lshlrev_b32 v1, 4, v0")
        e("  s_barrier")
        for q in range(64):
            e(f"  buffer_load_dwordx4 v[160:163], v1, s[48:51], s44 offen")
            e("  s_add_u32 s44, s44, 1024")
    e("  s_branch k2_done")

def get_epoch(tag):
    e("  v_mov_b32 v158, 0")
    e("  s_mov_b32 s69, 0")
    lab(f"ep_{tag}")
    e("  buffer_load_dword v159, v158, s[96:99], 0 offen sc1")
    e("  s_waitcnt vmcnt(0)")
    e("  v_readfirstlane_b32 s68, v159")
    e("  s_add_u32 s69, s69, 1")
    e(f"  s_cmp_gt_u32 s69, {1 << 22}")
    e(f"  s_cbranch_scc1 ep_{tag}_ok")
    e("  s_cmp_eq_u32 s68, 0")
    e(f"  s_cbranch_scc1 ep_{tag}")
    lab(f"ep_{tag}_ok")

def gen_k1():
    name = "f_kernel" if FUSE else "k1_kernel"
    kernel_begin(name)
    e("  s_cmp_ge_u32 s2, 256")
    e(f"  s_cbranch_scc1 {'k2_done' if FUSE else 'k1_done'}")
    e(f"  s_load_dwordx2 s[4:5], s[0:1], {KA_X}")
    e(f"  s_load_dwordx4 s[8:11], s[0:1], {KA_WDRE}")
    e(f"  s_load_dwordx2 s[6:7], s[0:1], {KA_WS}")
    if FUSE:
        e(f"  s_load_dwordx4 s[52:55], s[0:1], {KA_WSRE}")
        e(f"  s_load_dwordx2 s[66:67], s[0:1], {KA_DBG}")
        e(f"  s_load_dwordx2 s[34:35], s[0:1], {KA_WDN}")
    e("  s_and_b32 s12, s2, 7")
    e("  s_lshr_b32 s13, s2, 3")
    e("  s_and_b32 s14, s13, 3")
    e("  s_lshl_b32 s12, s12, 2")
    e("  s_add_u32 s12, s12, s14")
    e("  s_lshr_b32 s13, s13, 2")
    e("  v_lshrrev_b32 v1, 6, v0")
    e("  v_and_b32 v0, 63, v0")
    e("  v_readfirstlane_b32 s15, v1")
    e("  v_lshrrev_b32 v2, 3, v0")
    e("  v_and_b32 v3, 7, v0")
    if OPT('K1_PF', 0) or OPT('K1_PFEND', 0):
        e(f"  s_load_dwordx4 s[40:43], s[0:1], {KA_WSRE}")
    e("  s_waitcnt lgkmcnt(0)")
    if OPT('K1_PF', 0):
        e("  s_cmp_lg_u32 s15, 8")
        e("  s_cbranch_scc1 k1_main")
        e("  s_and_b32 s44, s2, 7")
        e("  s_cmp_lt_u32 s44, 4")
        e("  s_cselect_b32 s48, s40, s42")
        e("  s_cselect_b32 s49, s41, s43")
        e(f"  s_mov_b32 s50, {2048*2048*2}")
        e("  s_mov_b32 s51, 0x00020000")
        e("  s_and_b32 s44, s44, 3")
        e("  s_lshl_b32 s44, s44, 21")
        e("  s_lshr_b32 s45, s2, 3")
        e("  s_lshl_b32 s45, s45, 16")
        e("  s_add_u32 s44, s44, s45")
        e("  v_lshlrev_b32 v1, 4, v0")
        e("  s_cmp_lt_u32 s13, 4")
        e("  s_cselect_b32 s56, s8, s10")
        e("  s_cselect_b32 s57, s9, s11")
        e(f"  s_mov_b32 s58, {512*512*2}")
        e("  s_mov_b32 s59, 0x00020000")
        e("  s_and_b32 s46, s13, 3")
        e("  s_lshl_b32 s46, s46, 17")
        for q in range(OPT('K1_CAN', 0)):
            e(f"  buffer_load_dwordx4 v[8:11], v1, s[56:59], s46 offen offset:{q*1024}")
            e("  s_waitcnt vmcnt(0)")
        for q in range(64):
            e(f"  buffer_load_dwordx4 {vr(8+4*(q%32),4)}, v1, s[48:51], s44 offen")
            e("  s_add_u32 s44, s44, 1024")
        e("  s_branch k1_done")
        lab("k1_main")
    if FUSE:
        srd(96, 66, 67, 256)
        e("  s_cmp_lg_u32 s15, 8")
        e("  s_cbranch_scc1 f_main")
        e("  s_cmp_lg_u32 s2, 0")
        e("  s_cbranch_scc1 f_noepoch")
        e("  s_memrealtime s[40:41]")
        e("  s_waitcnt lgkmcnt(0)")
        e("  s_or_b32 s40, s40, 1")
        e("  v_mov_b32 v4, s40")
        e("  v_mov_b32 v5, 0")
        e("  s_mov_b64 s[42:43], exec")
        e("  s_mov_b64 exec, 1")
        e("  buffer_store_dword v4, v5, s[96:99], 0 offen sc1")
        e("  s_mov_b64 exec, s[42:43]")
        lab("f_noepoch")
        if OPT('F_PF', 0):
            e(f"  s_load_dwordx4 s[40:43], s[0:1], {KA_WSRE}")
            e("  s_and_b32 s44, s2, 7")
            e("  s_waitcnt lgkmcnt(0)")
            e("  s_cmp_lt_u32 s44, 4")
            e("  s_cselect_b32 s48, s40, s42")
            e("  s_cselect_b32 s49, s41, s43")
            e(f"  s_mov_b32 s50, {2048*2048*2}")
            e("  s_mov_b32 s51, 0x00020000")
            e("  s_and_b32 s44, s44, 3")
            e("  s_lshl_b32 s44, s44, 21")
            e("  s_lshr_b32 s45, s2, 3")
            e("  s_lshl_b32 s45, s45, 16")
            e("  s_add_u32 s44, s44, s45")
            e("  v_lshlrev_b32 v1, 4, v0")
            for q in range(64):
                e(f"  buffer_load_dwordx4 {vr(40+4*(q%24),4)}, v1, s[48:51], s44 offen")
                e("  s_add_u32 s44, s44, 1024")
        helper_wave()
        lab("f_main")
        hstamp(7)
    srd(16, 4, 5, 2048*512*2)
    e("  s_cmp_lt_u32 s13, 4")
    e("  s_cselect_b32 s20, s8, s10")
    e("  s_cselect_b32 s21, s9, s11")
    e(f"  s_mov_b32 s22, {512*512*2}")
    e("  s_mov_b32 s23, 0x00020000")
    srd(24, 6, 7, 9 << 20)
    if not FUSE:
        e("  s_or_b32 s46, s2, s15")
        e("  s_cmp_lg_u32 s46, 0")
        e("  s_cbranch_scc1 k1_nozero")
        for q in range(4):
            e(f"  v_mov_b32 v{4+q}, 0")
        e("  v_lshlrev_b32 v8, 4, v0")
        e(f"  s_mov_b32 s46, {WS_FLAG}")
        e("  buffer_store_dwordx4 v[4:7], v8, s[24:27], s46 offen")
        lab("k1_nozero")
    e("  s_lshl_b32 s28, s12, 6")
    e("  s_lshl_b32 s29, s15, 3")
    e("  s_add_u32 s28, s28, s29")
    e("  v_add_u32 v4, s28, v2")
    e("  v_lshlrev_b32 v4, 10, v4")
    e("  v_lshl_add_u32 v4, v3, 4, v4")
    X = 32
    for j in range(8):
        e(f"  buffer_load_dwordx4 {vr(X+4*j,4)}, v4, s[16:19], 0 offen offset:{128*j}")
    e("  s_and_b32 s30, s13, 3")
    e("  s_lshl_b32 s30, s30, 7")
    for ii in range(2):
        e(f"  s_lshl_b32 s31, s15, 4")
        e(f"  s_add_u32 s31, s31, {8*ii}")
        e(f"  v_add_u32 v7, s31, v2")
        e(f"  v_lshrrev_b32 v8, 1, v7")
        e(f"  v_and_b32 v8, 7, v8")
        e(f"  v_xor_b32 v8, v8, v3")
        e(f"  v_add_u32 v7, s30, v7")
        e(f"  v_lshlrev_b32 v7, 10, v7")
        e(f"  v_lshl_add_u32 v{5+ii}, v8, 4, v7")
    e("  s_lshl_b32 s32, s15, 11")
    def wdma(kb):
        slot = kb % 4
        e(f"  s_mov_b32 s33, {128*kb}")
        for ii in range(2):
            e(f"  s_add_u32 m0, s32, {slot*16384 + ii*1024}")
            e("  s_nop 0")
            e(f"  buffer_load_dwordx4 v{5+ii}, s[20:23], s33 offen lds")
    for kb in range(4):
        wdma(kb)
    PFM = OPT('F_PFM', 0)
    STG = 128
    if PFM:
        for kb in range(4, 8):
            e(f"  s_mov_b32 s33, {128*kb}")
            for ii in range(2):
                e(f"  buffer_load_dwordx4 {vr(STG+8*(kb-4)+4*ii,4)}, v{5+ii}, s[20:23], s33 offen")
    if PFM == 1:
        e("  s_and_b32 s44, s2, 7")
        e("  s_cmp_lt_u32 s44, 4")
        e("  s_cselect_b32 s48, s52, s54")
        e("  s_cselect_b32 s49, s53, s55")
        e(f"  s_mov_b32 s50, {2048*2048*2}")
        e("  s_mov_b32 s51, 0x00020000")
        e("  s_and_b32 s44, s44, 3")
        e("  s_lshl_b32 s44, s44, 21")
        e("  s_lshr_b32 s45, s2, 3")
        e("  s_lshl_b32 s45, s45, 16")
        e("  s_add_u32 s44, s44, s45")
        e("  s_lshl_b32 s45, s15, 13")
        e("  s_add_u32 s44, s44, s45")
        e("  v_lshlrev_b32 v7, 4, v0")
        for q in range(8):
            e(f"  buffer_load_dwordx4 v[160:163], v7, s[48:51], s44 offen")
            e("  s_add_u32 s44, s44, 1024")
    e("  s_mov_b32 s34, 0x3f803f80")
    for a in range(4):
        e(f"  v_mov_b32 v{8+a}, 0")
    e(f"  s_waitcnt vmcnt({24 if PFM == 1 else 16 if PFM else 8})")
    for i in range(32):
        e(f"  v_dot2_f32_bf16 v{8+i%4}, v{X+i}, s34, v{8+i%4}")
    e("  s_nop 3")
    e("  v_add_f32 v8, v8, v9")
    e("  v_add_f32 v10, v10, v11")
    e("  v_add_f32 v8, v8, v10")
    reduce8(8)
    e("  v_mul_f32 v8, 0x3b000000, v8")
    e("  v_cvt_pk_bf16_f32 v9, v8, v8")
    e("  v_lshlrev_b32 v9, 16, v9")
    e("  v_sub_f32 v10, 0, v9")
    e("  v_mov_b32 v11, v10")
    D = 64
    for a in range(4):
        e(f"  v_mov_b32 v{12+a}, 0")
    for i in range(32):
        e(f"  v_lshlrev_b32 v{D+2*i}, 16, v{X+i}")
        e(f"  v_and_b32 v{D+2*i+1}, 0xffff0000, v{X+i}")
        e(f"  v_pk_add_f32 {vr(D+2*i,2)}, {vr(D+2*i,2)}, v[10:11]")
        q = 12 + 2*(i % 2)
        e(f"  v_pk_fma_f32 {vr(q,2)}, {vr(D+2*i,2)}, {vr(D+2*i,2)}, {vr(q,2)}")
    e("  v_add_f32 v12, v12, v13")
    e("  v_add_f32 v14, v14, v15")
    e("  v_add_f32 v12, v12, v14")
    reduce8(12)
    e("  v_sub_f32 v13, v8, v9")
    e("  v_mul_f32 v13, v13, v13")
    e("  v_mul_f32 v12, 0x3b000000, v12")
    e("  v_sub_f32 v12, v12, v13")
    e("  v_max_f32 v12, 0, v12")
    e("  v_cvt_pk_bf16_f32 v12, v12, v12")
    e("  v_lshlrev_b32 v12, 16, v12")
    e("  v_add_f32 v12, 0x3727c5ac, v12")
    e("  v_cvt_pk_bf16_f32 v12, v12, v12")
    e("  v_lshlrev_b32 v12, 16, v12")
    e("  v_sqrt_f32 v12, v12")
    e("  s_nop 0")
    e("  v_cvt_pk_bf16_f32 v12, v12, v12")
    e("  v_lshlrev_b32 v12, 16, v12")
    e("  v_rcp_f32 v12, v12")
    e("  s_nop 0")
    e("  v_mov_b32 v13, v12")
    for i in range(32):
        e(f"  v_cvt_pk_bf16_f32 v{X+i}, v{D+2*i}, v{D+2*i+1}")
        e(f"  v_lshlrev_b32 v{D+2*i}, 16, v{X+i}")
        e(f"  v_and_b32 v{D+2*i+1}, 0xffff0000, v{X+i}")
        e(f"  v_pk_mul_f32 {vr(D+2*i,2)}, {vr(D+2*i,2)}, v[12:13]")
        e(f"  v_cvt_pk_bf16_f32 v{X+i}, v{D+2*i}, v{D+2*i+1}")
    e("  v_add_u32 v14, s29, v2")
    e("  v_lshrrev_b32 v15, 1, v14")
    e("  v_and_b32 v15, 7, v15")
    e("  v_xor_b32 v15, v15, v3")
    e("  v_lshlrev_b32 v14, 7, v14")
    e("  v_lshl_add_u32 v14, v15, 4, v14")
    e("  v_add_u32 v14, 0x10000, v14")
    for j in range(8):
        e(f"  ds_write_b128 v14, {vr(X+4*j,4)} offset:{8192*j}")
    e("  s_and_b32 s35, s15, 1")
    e("  s_lshr_b32 s36, s15, 1")
    e("  v_and_b32 v16, 31, v0")
    e("  v_lshrrev_b32 v17, 5, v0")
    def fragaddr(dst, sblk, base):
        e(f"  s_lshl_b32 s37, s{sblk}, 5")
        e(f"  v_add_u32 v18, s37, v16")
        e(f"  v_lshrrev_b32 v19, 1, v18")
        e(f"  v_and_b32 v19, 7, v19")
        e(f"  v_xor_b32 v19, v19, v17")
        e(f"  v_lshlrev_b32 v18, 7, v18")
        e(f"  v_lshl_add_u32 v{dst}, v19, 4, v18")
        if base:
            e(f"  v_add_u32 v{dst}, {base}, v{dst}")
        for kk in range(1, 4):
            e(f"  v_xor_b32 v{dst+kk}, {32*kk}, v{dst}")
    fragaddr(20, 35, 0x10000)
    fragaddr(24, 36, 0)
    ACC = 96
    for i in range(16):
        e(f"  v_mov_b32 v{ACC+i}, 0")
    FA, FB = 64, 80
    waits = [22, 14, 12, 10, 8, 8, 8, 8] if PFM == 1 else [14, 6, 4, 2, 0, 0, 0, 0] if PFM else [6, 4, 4, 4, 4, 4, 2, 0]
    if PFM:
        e("  v_lshlrev_b32 v28, 4, v0")
        e("  v_add_u32 v28, s32, v28")
    for kb in range(8):
        e(f"  s_waitcnt vmcnt({waits[kb]}) lgkmcnt(0)")
        e("  s_barrier")
        if 1 <= kb <= 4 and PFM:
            for ii in range(2):
                e(f"  ds_write_b128 v28, {vr(STG+8*(kb-1)+4*ii,4)} offset:{((kb+3)%4)*16384 + ii*1024}")
        elif 1 <= kb <= 4:
            wdma(kb + 3)
        slot = kb % 4
        for kk in range(4):
            e(f"  ds_read_b128 {vr(FA+4*kk,4)}, v{20+kk} offset:{8192*kb}")
            e(f"  ds_read_b128 {vr(FB+4*kk,4)}, v{24+kk} offset:{16384*slot}")
        for kk in range(4):
            e(f"  s_waitcnt lgkmcnt({6-2*kk})")
            e(f"  v_mfma_f32_32x32x16_bf16 {vr(ACC,16)}, {vr(FA+4*kk,4)}, {vr(FB+4*kk,4)}, {vr(ACC,16)}")
    stamp(5)
    e("  s_lshl_b32 s37, s13, 1")
    e("  s_lshr_b32 s38, s36, 1")
    e("  s_add_u32 s37, s37, s38")
    e("  s_lshl_b32 s37, s37, 5")
    e("  s_add_u32 s37, s37, s12")
    e("  s_lshl_b32 s37, s37, 13")
    e("  s_and_b32 s38, s36, 1")
    e("  s_lshl_b32 s38, s38, 5")
    e("  v_add_u32 v18, s38, v16")
    e("  v_lshrrev_b32 v19, 1, v18")
    e("  v_and_b32 v19, 7, v19")
    e("  s_lshl_b32 s38, s35, 2")
    e("  v_add_u32 v29, s38, v17")
    e("  v_xor_b32 v29, v29, v19")
    e("  v_lshlrev_b32 v18, 7, v18")
    e("  v_lshl_add_u32 v30, v29, 4, v18")
    e("  v_xor_b32 v31, 32, v30")
    e("  s_nop 7")
    P = 112
    for g in range(4):
        e(f"  v_cvt_pk_bf16_f32 v{P+2*g}, v{ACC+4*g}, v{ACC+4*g+1}")
        e(f"  v_cvt_pk_bf16_f32 v{P+2*g+1}, v{ACC+4*g+2}, v{ACC+4*g+3}")
    e("  s_nop 1")
    for p in range(2):
        e(f"  v_permlane32_swap_b32 v{P+4*p}, v{P+4*p+2}")
        e(f"  v_permlane32_swap_b32 v{P+4*p+1}, v{P+4*p+3}")
    if not FUSE:
        e(f"  buffer_store_dwordx4 {vr(P,4)}, v30, s[24:27], s37 offen")
        e(f"  buffer_store_dwordx4 {vr(P+4,4)}, v31, s[24:27], s37 offen")
        lab("k1_done")
        kernel_end()
        e("  s_endpgm")
        kernel_desc(name, 160)
        return
    TR = 131072
    e(f"  s_load_dwordx4 s[8:11], s[0:1], {KA_WSRE}")
    e("  s_lshr_b32 s38, s36, 1")
    e("  s_lshl_b32 s38, s38, 13")
    e(f"  s_add_u32 s38, s38, {TR}")
    e("  v_add_u32 v30, s38, v30")
    e("  v_add_u32 v31, s38, v31")
    e(f"  ds_write_b128 v30, {vr(P,4)}")
    e(f"  ds_write_b128 v31, {vr(P+4,4)}")
    e("  v_lshlrev_b32 v29, 4, v0")
    e("  s_lshl_b32 s38, s15, 11")
    e(f"  s_add_u32 s39, s38, {TR}")
    e("  v_add_u32 v28, s39, v29")
    e("  s_waitcnt lgkmcnt(0)")
    e("  s_barrier")
    e("  ds_read_b128 v[64:67], v28")
    e("  ds_read_b128 v[68:71], v28 offset:1024")
    e("  s_lshl_b32 s37, s13, 1")
    e("  s_lshr_b32 s39, s15, 2")
    e("  s_add_u32 s37, s37, s39")
    e("  s_lshl_b32 s37, s37, 5")
    e("  s_add_u32 s37, s37, s12")
    e("  s_lshl_b32 s37, s37, 13")
    e("  s_and_b32 s39, s15, 3")
    e("  s_lshl_b32 s39, s39, 11")
    e("  s_add_u32 s37, s37, s39")
    e("  s_waitcnt lgkmcnt(1)")
    e("  buffer_store_dwordx4 v[64:67], v29, s[24:27], s37 offen sc1")
    e("  s_waitcnt lgkmcnt(0)")
    e("  buffer_store_dwordx4 v[68:71], v29, s[24:27], s37 offen offset:1024 sc1")
    e("  s_lshl_b32 s70, s13, 5")
    e("  s_add_u32 s70, s70, s12")
    e("  s_lshl_b32 s70, s70, 2")
    e(f"  s_add_u32 s70, s70, {WS_FA}")

def k2_epilogue_plain(ACC):
    e("  s_lshl_b32 s24, s14, 21")
    e(f"  s_add_u32 s24, s24, {WS_Y}")
    e("  s_lshl_b32 s30, s13, 7")
    e("  s_add_u32 s24, s24, s30")
    e("  s_lshl_b32 s30, s12, 7")
    e("  s_lshl_b32 s31, s15, 5")
    e("  s_add_u32 s30, s30, s31")
    e("  v_add_u32 v18, s30, v16")
    e("  v_lshlrev_b32 v18, 10, v18")
    e("  v_lshl_add_u32 v18, v17, 4, v18")
    e("  s_nop 7")
    P = 64
    for g in range(8):
        e(f"  v_cvt_pk_bf16_f32 v{P+2*g}, v{ACC+4*g}, v{ACC+4*g+1}")
        e(f"  v_cvt_pk_bf16_f32 v{P+2*g+1}, v{ACC+4*g+2}, v{ACC+4*g+3}")
    e("  s_nop 1")
    for p in range(4):
        e(f"  v_permlane32_swap_b32 v{P+4*p}, v{P+4*p+2}")
        e(f"  v_permlane32_swap_b32 v{P+4*p+1}, v{P+4*p+3}")
    for p in range(4):
        e(f"  buffer_store_dwordx4 {vr(P+4*p,4)}, v18, s[20:23], s24 offen offset:{32*p}")

ROW_O = 48
def reduce32(v, t):
    reduce16(v)
    e("  s_nop 1")
    e(f"  ds_swizzle_b32 v{t}, v{v} offset:0x401F")
    e("  s_waitcnt lgkmcnt(0)")
    e(f"  v_add_f32 v{v}, v{v}, v{t}")

def rowmac32_pre():
    XX, WR = 48, 64
    e("  v_lshlrev_b32 v3, 10, v1")
    e("  v_lshl_add_u32 v3, v2, 4, v3")
    e("  v_lshlrev_b32 v4, 4, v2")
    for j in range(2):
        e(f"  buffer_load_dwordx4 {vr(XX+4*j,4)}, v3, s[20:23], 0 offen offset:{512*j}")
        e(f"  buffer_load_dwordx4 {vr(WR+4*j,4)}, v4, s[28:31], 0 offen offset:{512*j}")

def rowmac32():
    YR, YI, XX, WR, H, T, D = 16, 32, 48, 64, 80, 112, 116
    O = ROW_O
    e(f"  s_mov_b32 s52, {WS_Y}")
    e(f"  s_mov_b32 s53, {WS_Y + (2<<20)}")
    for j in range(2):
        e(f"  buffer_load_dwordx4 {vr(YR+4*j,4)}, v3, s[24:27], s52 offen offset:{512*j} sc1")
        e(f"  buffer_load_dwordx4 {vr(YI+4*j,4)}, v3, s[24:27], s53 offen offset:{512*j} sc1")
    e("  v_mov_b32 v14, 0")
    e("  v_mov_b32 v15, 0")
    for j in range(2):
        e(f"  s_waitcnt vmcnt({2*(1-j)})")
        for q in range(4):
            i = 4*j + q
            e(f"  v_lshlrev_b32 v{T}, 16, v{YR+i}")
            e(f"  v_and_b32 v{T+1}, 0xffff0000, v{YR+i}")
            e(f"  v_lshlrev_b32 v{T+2}, 16, v{YI+i}")
            e(f"  v_and_b32 v{T+3}, 0xffff0000, v{YI+i}")
            e(f"  v_pk_add_f32 {vr(T,2)}, {vr(T,2)}, {vr(T+2,2)} neg_lo:[0,1] neg_hi:[0,1]")
            e(f"  v_cvt_pk_bf16_f32 v{T}, v{T}, v{T+1}")
            e(f"  v_and_b32 v{T+1}, 0xffff0000, v{T}")
            e(f"  v_lshlrev_b32 v{T}, 16, v{T}")
            e(f"  v_lshlrev_b32 v{T+2}, 16, v{XX+i}")
            e(f"  v_and_b32 v{T+3}, 0xffff0000, v{XX+i}")
            e(f"  v_pk_add_f32 {vr(T,2)}, {vr(T,2)}, {vr(T+2,2)}")
            e(f"  v_cvt_pk_bf16_f32 v{T}, v{T}, v{T+1}")
            e(f"  v_lshlrev_b32 v{H+2*i}, 16, v{T}")
            e(f"  v_and_b32 v{H+2*i+1}, 0xffff0000, v{T}")
            e(f"  v_pk_add_f32 v[14:15], v[14:15], {vr(H+2*i,2)}")
    e("  v_add_f32 v5, v14, v15")
    reduce32(5, 13)
    e("  v_mul_f32 v5, 0x3b000000, v5")
    e("  v_cvt_pk_bf16_f32 v6, v5, v5")
    e("  v_lshlrev_b32 v6, 16, v6")
    e("  v_sub_f32 v8, 0, v6")
    e("  v_mov_b32 v9, v8")
    e("  v_mov_b32 v10, 0")
    e("  v_mov_b32 v11, 0")
    for i in range(8):
        e(f"  v_pk_add_f32 {vr(D+2*i,2)}, {vr(H+2*i,2)}, v[8:9]")
        e(f"  v_pk_fma_f32 v[10:11], {vr(D+2*i,2)}, {vr(D+2*i,2)}, v[10:11]")
    e("  v_add_f32 v10, v10, v11")
    reduce32(10, 13)
    e("  v_sub_f32 v11, v5, v6")
    e("  v_mul_f32 v11, v11, v11")
    e("  v_mul_f32 v10, 0x3b000000, v10")
    e("  v_sub_f32 v10, v10, v11")
    e("  v_max_f32 v10, 0, v10")
    e("  v_cvt_pk_bf16_f32 v10, v10, v10")
    e("  v_lshlrev_b32 v10, 16, v10")
    e("  v_add_f32 v10, 0x3727c5ac, v10")
    e("  v_cvt_pk_bf16_f32 v10, v10, v10")
    e("  v_lshlrev_b32 v10, 16, v10")
    e("  v_sqrt_f32 v10, v10")
    e("  s_nop 0")
    e("  v_cvt_pk_bf16_f32 v10, v10, v10")
    e("  v_lshlrev_b32 v10, 16, v10")
    e("  v_rcp_f32 v10, v10")
    e("  s_nop 0")
    e("  v_mov_b32 v11, v10")
    e("  v_mov_b32 v12, 0")
    for i in range(8):
        e(f"  v_cvt_pk_bf16_f32 v{T}, v{D+2*i}, v{D+2*i+1}")
        e(f"  v_lshlrev_b32 v{D+2*i}, 16, v{T}")
        e(f"  v_and_b32 v{D+2*i+1}, 0xffff0000, v{T}")
        e(f"  v_pk_mul_f32 {vr(D+2*i,2)}, {vr(D+2*i,2)}, v[10:11]")
        e(f"  v_cvt_pk_bf16_f32 v{T}, v{D+2*i}, v{D+2*i+1}")
        e(f"  v_dot2_f32_bf16 v12, v{T}, v{WR+i}, v12")
        e(f"  v_lshlrev_b32 v{D+2*i}, 16, v{T}")
        e(f"  v_and_b32 v{D+2*i+1}, 0xffff0000, v{T}")
        e(f"  v_pk_add_f32 {vr(D+2*i,2)}, {vr(D+2*i,2)}, {vr(H+2*i,2)}")
        e(f"  v_cvt_pk_bf16_f32 v{O+i}, v{D+2*i}, v{D+2*i+1}")
    if not MEGA:
        for j in range(2):
            e(f"  buffer_store_dwordx4 {vr(O+4*j,4)}, v3, s[44:47], 0 offen offset:{512*j}")
    e("  s_nop 3")
    reduce32(12, 13)
    e("  v_cvt_pk_bf16_f32 v12, v12, v12")
    e("  v_lshlrev_b32 v12, 16, v12")
    e("  v_ashrrev_i32 v13, 31, v12")
    e("  v_or_b32 v13, 0x80000000, v13")
    e("  v_xor_b32 v12, v12, v13")
    e("  v_and_b32 v12, 0xffff0000, v12")
    e("  v_sub_u32 v13, 0xffff, v1")
    e("  v_or_b32 v12, v12, v13")

MT_C, MT_R, MT_WD = 0, 256, 8704
MT_G, MT_U, MT_XS = 8704, 8704 + 8192, 8704 + 16384
def poll_end(lbl):
    e("  s_nop 3")
    e("  s_cmp_eq_u64 s[54:55], 0")
    e(f"  s_cbranch_scc1 {lbl}_ok")
    e("  s_add_u32 s53, s53, 1")
    e(f"  s_cmp_gt_u32 s53, {1 << 22}")
    e(f"  s_cbranch_scc1 {lbl}_ok")
    e(f"  s_branch {lbl}")
    lab(f"{lbl}_ok")

def mega_gu_dma():
    e("  s_and_b32 s3, s2, 7")
    e("  s_mul_i32 s3, s3, 28")
    e("  s_lshr_b32 s32, s2, 3")
    e("  s_add_u32 s3, s3, s32")
    e("  s_cmp_ge_u32 s2, 224")
    e("  s_cbranch_scc1 mt_nogu")
    srd(16, 58, 59, 512*1792*2)
    srd(8, 60, 61, 512*1792*2)
    e("  s_lshl_b32 s35, s3, 4")
    e("  s_movk_i32 s32, 3584")
    for ii in range(2):
        e(f"  s_lshl_b32 s33, s15, 7")
        e(f"  s_add_u32 s33, s33, {64*ii}")
        e(f"  v_add_u32 v8, s33, v0")
        e(f"  v_mul_lo_u32 v8, v8, s32")
        e(f"  s_lshl_b32 s34, s15, 11")
        e(f"  s_add_u32 m0, s34, {MT_G + 1024*ii}")
        e("  s_nop 0")
        e(f"  buffer_load_dwordx4 v8, s[16:19], s35 offen lds")
        e(f"  s_add_u32 m0, s34, {MT_U + 1024*ii}")
        e("  s_nop 0")
        e(f"  buffer_load_dwordx4 v8, s[8:11], s35 offen lds")
    lab("mt_nogu")

def mega_tail():
    C = MT_C
    for i in range(8):
        e(f"  v_mov_b32 v{152+i}, v{48+i}")
    e("  v_mov_b32 v151, v1")
    e("  v_mov_b32 v150, v3")
    e("  v_lshl_add_u32 v40, s15, 6, v0")
    e("  v_mov_b32 v16, v12")
    e("  v_mov_b32 v17, v6")
    e("  v_mov_b32 v18, v10")
    e("  v_mov_b32 v19, s68")
    e("  v_lshlrev_b32 v13, 4, v1")
    e("  v_cmp_eq_u32 vcc, 0, v2")
    e("  s_and_saveexec_b64 s[50:51], vcc")
    e(f"  s_mov_b32 s52, {WS_REC}")
    e("  buffer_store_dwordx4 v[16:19], v13, s[24:27], s52 offen sc1")
    e("  s_mov_b64 exec, s[50:51]")
    e("  s_cmp_lg_u32 s2, 255")
    e("  s_cbranch_scc1 mt_nosel")
    e("  v_lshlrev_b32 v13, 4, v40")
    e("  s_mov_b32 s53, 0")
    lab("mt_prec")
    for i in range(8):
        e(f"  s_mov_b32 s52, {WS_REC + 4096*i}")
        e(f"  buffer_load_dwordx4 {vr(64+4*i,4)}, v13, s[24:27], s52 offen sc1")
    e("  v_mov_b32 v14, 0")
    for i in range(8):
        e(f"  s_waitcnt vmcnt({7-i})")
        e(f"  v_xor_b32 v15, s68, v{67+4*i}")
        e("  v_or_b32 v14, v14, v15")
    e("  v_cmp_ne_u32 s[54:55], 0, v14")
    poll_end("mt_prec")
    top8([64+4*i for i in range(8)], range(16, 24), C, "s15")
    e("  v_and_b32 v3, 31, v0")
    e("  v_lshlrev_b32 v3, 2, v3")
    e(f"  ds_read_b32 v24, v3 offset:{C}")
    e("  v_mov_b32 v4, 0")
    for q in range(8):
        e(f"  ds_read_b128 {vr(96+4*q,4)}, v4 offset:{C+16*q}")
    e("  v_mov_b32 v25, 0")
    e("  s_waitcnt lgkmcnt(0)")
    sp = [32, 34, 36, 38]
    for i in range(32 + 3):
        if i < 32:
            e(f"  v_cmp_gt_u32 s[{sp[i%4]}:{sp[i%4]+1}], v{96+i}, v24")
        if i >= 3:
            j = i - 3
            e(f"  v_addc_co_u32 v25, vcc, 0, v25, s[{sp[j%4]}:{sp[j%4]+1}]")
    e("  s_cmp_lg_u32 s15, 0")
    e("  s_cbranch_scc1 mt_nosel")
    e("  v_lshlrev_b32 v3, 3, v25")
    e("  v_mov_b32 v26, v24")
    e("  v_mov_b32 v27, s68")
    e("  v_cmp_gt_u32 vcc, 8, v25")
    e("  v_cmp_gt_u32 s[42:43], 32, v0")
    e("  s_and_b64 vcc, vcc, s[42:43]")
    e("  s_and_saveexec_b64 s[50:51], vcc")
    e(f"  s_mov_b32 s52, {WS_SEL}")
    e("  buffer_store_dwordx2 v[26:27], v3, s[24:27], s52 offen sc1")
    e("  s_mov_b64 exec, s[50:51]")
    lab("mt_nosel")
    e("  s_cmp_lg_u32 s15, 0")
    e("  s_cbranch_scc1 mt_selbar")
    e("  v_and_b32 v3, 7, v0")
    e("  v_lshlrev_b32 v4, 3, v3")
    e("  v_lshlrev_b32 v3, 2, v3")
    e(f"  s_mov_b32 s52, {WS_SEL}")
    e("  s_mov_b32 s53, 0")
    lab("mt_psel")
    e("  buffer_load_dwordx2 v[26:27], v4, s[24:27], s52 offen sc1")
    e("  s_waitcnt vmcnt(0)")
    e("  v_cmp_ne_u32 s[54:55], s68, v27")
    poll_end("mt_psel")
    e(f"  ds_write_b32 v3, v26 offset:{C+128}")
    e("  s_waitcnt lgkmcnt(0)")
    lab("mt_selbar")
    e("  s_barrier")
    stamp(5)
    e("  v_mov_b32 v4, 0")
    e(f"  ds_read_b128 v[16:19], v4 offset:{C+128}")
    e(f"  ds_read_b128 v[20:23], v4 offset:{C+144}")
    e("  v_sub_u32 v5, 0xffff, v151")
    e("  s_waitcnt lgkmcnt(0)")
    e("  s_mov_b64 s[42:43], exec")
    for k in range(8):
        e(f"  v_and_b32 v{16+k}, 0xffff, v{16+k}")
        e(f"  v_cmp_ne_u32 vcc, v{16+k}, v5")
        e("  s_and_b64 s[42:43], s[42:43], vcc")
    e("  s_and_saveexec_b64 s[50:51], s[42:43]")
    e("  s_cbranch_execz mt_nostore")
    for j in range(2):
        e(f"  buffer_store_dwordx4 {vr(152+4*j,4)}, v150, s[44:47], 0 offen offset:{512*j}")
    lab("mt_nostore")
    e("  s_mov_b64 exec, s[50:51]")
    e("  s_cmp_ge_u32 s2, 240")
    e("  s_cbranch_scc1 k2_done")
    e("  s_cmp_ge_u32 s2, 224")
    e("  s_cbranch_scc1 mt_f2")
    e("  v_lshrrev_b32 v4, 5, v40")
    e("  v_and_b32 v5, 31, v40")
    e("  v_lshlrev_b32 v3, 2, v4")
    e(f"  ds_read_b32 v6, v3 offset:{C+128}")
    e("  s_waitcnt lgkmcnt(0)")
    e("  v_and_b32 v6, 0xffff, v6")
    e("  v_sub_u32 v6, 0xffff, v6")
    e("  v_lshlrev_b32 v7, 10, v6")
    e("  v_lshl_add_u32 v7, v5, 4, v7")
    e(f"  s_mov_b32 s52, {WS_Y}")
    e(f"  s_mov_b32 s53, {WS_Y + (2<<20)}")
    YR, YI, XX = 16, 24, 32
    for j in range(2):
        e(f"  buffer_load_dwordx4 {vr(YR+4*j,4)}, v7, s[24:27], s52 offen offset:{512*j} sc1")
        e(f"  buffer_load_dwordx4 {vr(YI+4*j,4)}, v7, s[24:27], s53 offen offset:{512*j} sc1")
        e(f"  buffer_load_dwordx4 {vr(XX+4*j,4)}, v7, s[20:23], 0 offen offset:{512*j}")
    e("  v_lshlrev_b32 v3, 4, v6")
    e(f"  s_mov_b32 s52, {WS_REC}")
    e("  buffer_load_dwordx4 v[44:47], v3, s[24:27], s52 offen sc1")
    e("  s_waitcnt vmcnt(0)")
    e("  v_sub_f32 v54, 0, v45")
    e("  v_mov_b32 v55, v54")
    e("  v_mov_b32 v52, v46")
    e("  v_mov_b32 v53, v46")
    recompute(YR, YI, XX, 8, 54, 52, 64, 80, 56)
    e(f"  v_mul_u32_u24 v3, {XS_STRIDE}, v4")
    e("  v_lshl_add_u32 v3, v5, 4, v3")
    e(f"  ds_write_b128 v3, v[80:83] offset:{MT_XS}")
    e(f"  ds_write_b128 v3, v[84:87] offset:{MT_XS+512}")
    e("  s_waitcnt lgkmcnt(0)")
    e("  s_barrier")
    e("  s_cmp_lg_u32 s15, 0")
    e("  s_cbranch_scc1 k2_done")
    e("  v_and_b32 v3, 7, v0")
    e(f"  v_mul_u32_u24 v3, {XS_STRIDE}, v3")
    e("  v_lshrrev_b32 v4, 4, v0")
    e("  v_lshl_add_u32 v3, v4, 4, v3")
    e("  v_and_b32 v5, 15, v0")
    e("  v_lshrrev_b32 v5, 2, v5")
    e("  v_lshl_add_u32 v5, v4, 3, v5")
    e("  v_lshlrev_b32 v5, 4, v5")
    e("  v_and_b32 v6, 1, v0")
    e("  v_lshl_add_u32 v5, v6, 3, v5")
    e("  v_and_b32 v6, 2, v0")
    e("  v_lshl_add_u32 v5, v6, 12, v5")
    for i in range(4):
        e(f"  v_mov_b32 v{8+i}, 0")
    FA, FB = 16, 80
    for st in range(16):
        e(f"  ds_read_b128 {vr(FA+4*st,4)}, v3 offset:{MT_XS + 64*st}")
        e(f"  ds_read_b64_tr_b16 {vr(FB+4*st,2)}, v5 offset:{MT_G+512*st}")
        e(f"  ds_read_b64_tr_b16 {vr(FB+4*st+2,2)}, v5 offset:{MT_G+512*st+64}")
        if st % 4 == 3:
            e("  s_waitcnt lgkmcnt(0)")
            for s2 in range(st-3, st+1):
                e(f"  v_mfma_f32_16x16x32_bf16 v[8:11], {vr(FA+4*s2,4)}, {vr(FB+4*s2,4)}, v[8:11]")
    e("  s_nop 15")
    for i in range(4):
        e(f"  v_cvt_pk_bf16_f32 v{8+i}, v{8+i}, v{8+i}")
        e(f"  v_lshlrev_b32 v{8+i}, 16, v{8+i}")
    e("  s_nop 1")
    for i in range(4):
        e(f"  v_mov_b32_dpp v{12+i}, v{8+i} row_ror:8 row_mask:0xf bank_mask:0xf")
    for i in range(4):
        e(f"  v_mul_f32 v16, 0xbfb8aa3b, v{8+i}")
        e("  v_exp_f32 v16, v16")
        e("  s_nop 0")
        e("  v_add_f32 v16, 1.0, v16")
        e("  v_rcp_f32 v16, v16")
        e("  s_nop 0")
        e(f"  v_mul_f32 v16, v{8+i}, v16")
        e("  v_cvt_pk_bf16_f32 v16, v16, v16")
        e("  v_lshlrev_b32 v16, 16, v16")
        e(f"  v_mul_f32 v16, v16, v{12+i}")
        e(f"  v_cvt_pk_bf16_f32 v{20+i}, v16, v16")
    e("  s_nop 1")
    for i in range(4):
        e(f"  v_mov_b32_dpp v{24+i}, v{20+i} quad_perm:[1,0,3,2] row_mask:0xf bank_mask:0xf")
    for i in range(4):
        e(f"  v_and_b32 v{20+i}, 0xffff, v{20+i}")
        e(f"  v_and_b32 v{24+i}, 0xffff0000, v{24+i}")
        e(f"  v_or_b32 v{20+i}, v{20+i}, v{24+i}")
        e(f"  v_min_u32 v{20+i}, 0xfffeffff, v{20+i}")
    e("  v_and_b32 v5, 15, v0")
    e("  v_lshlrev_b32 v4, 6, v4")
    e("  v_lshl_add_u32 v4, v5, 1, v4")
    e("  v_lshlrev_b32 v7, 4, v0")
    e("  v_and_b32 v6, 9, v0")
    e("  v_cmp_eq_u32 vcc, 0, v6")
    e("  v_cmp_gt_u32 s[42:43], 32, v0")
    e("  s_and_b64 vcc, vcc, s[42:43]")
    e("  s_and_saveexec_b64 s[50:51], vcc")
    for i in range(4):
        e(f"  ds_write_b32 v4, v{20+i} offset:{MT_R+16*i}")
    e("  s_mov_b64 exec, 0xff")
    e("  s_waitcnt lgkmcnt(0)")
    e(f"  ds_read_b128 v[24:27], v7 offset:{MT_R}")
    e("  s_lshl_b32 s35, s3, 7")
    e(f"  s_add_u32 s35, s35, {WS_GU}")
    e("  s_waitcnt lgkmcnt(0)")
    e("  buffer_store_dwordx4 v[24:27], v7, s[24:27], s35 offen sc1")
    e("  s_mov_b64 exec, -1")
    hstamp(8)
    e("  s_branch k2_done")
    lab("mt_f2")
    e("  s_sub_u32 s49, s2, 224")
    e("  v_lshlrev_b32 v3, 4, v0")
    e("  s_mul_i32 s34, s15, 7168")
    e(f"  s_mul_i32 s33, s49, {4*28672}")
    e("  s_add_u32 s33, s33, s34")
    e(f"  s_add_u32 s33, s33, {WS_WDB}")
    for dsl in range(4):
        for i in range(7):
            e(f"  s_add_u32 m0, s34, {MT_WD + dsl*28672 + 1024*i}")
            e("  s_nop 0")
            e(f"  buffer_load_dwordx4 v3, s[24:27], s33 offen sc1 lds")
            e(f"  s_add_u32 s33, s33, {1024 if i < 6 else 28672 - 6*1024}")
    e("  v_lshrrev_b32 v5, 4, v0")
    e("  v_and_b32 v6, 1, v5")
    e("  v_lshlrev_b32 v6, 4, v6")
    e(f"  ds_read_b128 v[24:27], v6 offset:{C+128}")
    e("  v_and_b32 v6, 15, v0")
    e("  s_lshl_b32 s35, s49, 6")
    e("  s_waitcnt lgkmcnt(0)")
    for i in range(4):
        e(f"  v_and_b32 v{28+i}, 0xffff, v{24+i}")
        e(f"  v_sub_u32 v{28+i}, 0xffff, v{28+i}")
        e(f"  v_lshlrev_b32 v{32+i}, 4, v{28+i}")
        e(f"  v_lshlrev_b32 v{28+i}, 10, v{28+i}")
        e(f"  v_lshl_add_u32 v{28+i}, v6, 1, v{28+i}")
        e(f"  v_add_u32 v{28+i}, s35, v{28+i}")
    E0 = 136
    e("  s_cmp_lg_u32 s15, 0")
    e("  s_cbranch_scc1 mt_noepi")
    e(f"  s_mov_b32 s36, {WS_Y}")
    e(f"  s_mov_b32 s37, {WS_Y + (2<<20)}")
    e(f"  s_mov_b32 s38, {WS_REC}")
    for a in range(2):
        for i in range(4):
            e(f"  buffer_load_ushort v{E0+12*a+i}, v{28+i}, s[24:27], s36 offen offset:{32*a} sc1")
            e(f"  buffer_load_ushort v{E0+4+12*a+i}, v{28+i}, s[24:27], s37 offen offset:{32*a} sc1")
            e(f"  buffer_load_ushort v{E0+8+12*a+i}, v{28+i}, s[20:23], 0 offen offset:{32*a}")
    for i in range(4):
        e(f"  buffer_load_dwordx4 {vr(36+4*i,4)}, v{32+i}, s[24:27], s38 offen sc1")
    lab("mt_noepi")
    e("  v_lshrrev_b32 v7, 2, v6")
    e("  v_lshl_add_u32 v7, v5, 3, v7")
    e("  v_lshlrev_b32 v7, 4, v7")
    e("  v_and_b32 v60, 1, v0")
    e("  v_lshl_add_u32 v7, v60, 3, v7")
    e("  v_and_b32 v60, 2, v0")
    e("  v_mul_u32_u24 v60, 14336, v60")
    e("  v_add_u32 v7, v60, v7")
    e("  v_add_u32 v7, s34, v7")
    e(f"  v_add_u32 v61, {2*28672}, v7")
    for i in range(8):
        e(f"  v_mov_b32 v{8+i}, 0")
    e("  s_waitcnt vmcnt(0)")
    for i in range(4):
        e(f"  v_and_b32 v60, 0xffff0000, v{24+i}")
        e("  v_ashrrev_i32 v62, 31, v60")
        e("  v_not_b32 v62, v62")
        e("  v_or_b32 v62, 0x80000000, v62")
        e("  v_xor_b32 v60, v60, v62")
        e("  v_and_b32 v60, 0xffff0000, v60")
        e("  v_mul_f32 v60, 0xbfb8aa3b, v60")
        e("  v_exp_f32 v60, v60")
        e("  s_nop 0")
        e("  v_add_f32 v60, 1.0, v60")
        e("  v_rcp_f32 v60, v60")
        e("  s_nop 0")
        e("  v_cvt_pk_bf16_f32 v60, v60, v60")
        e(f"  v_lshlrev_b32 v{24+i}, 16, v60")
    for a in range(2):
        for i in range(4):
            r0, r1, r2 = E0+12*a+i, E0+4+12*a+i, E0+8+12*a+i
            e(f"  v_lshlrev_b32 v{r0}, 16, v{r0}")
            e(f"  v_lshlrev_b32 v{r1}, 16, v{r1}")
            e(f"  v_lshlrev_b32 v{r2}, 16, v{r2}")
            e(f"  v_sub_f32 v60, v{r0}, v{r1}")
            e("  v_cvt_pk_bf16_f32 v60, v60, v60")
            e("  v_lshlrev_b32 v60, 16, v60")
            e(f"  v_add_f32 v60, v{r2}, v60")
            e("  v_cvt_pk_bf16_f32 v60, v60, v60")
            e(f"  v_lshlrev_b32 v{r0}, 16, v60")
            e(f"  v_sub_f32 v62, v{r0}, v{37+4*i}")
            e("  v_cvt_pk_bf16_f32 v62, v62, v62")
            e("  v_lshlrev_b32 v62, 16, v62")
            e(f"  v_mul_f32 v62, v62, v{38+4*i}")
            e("  v_cvt_pk_bf16_f32 v62, v62, v62")
            e(f"  v_lshlrev_b32 v{r1}, 16, v62")
    e("  v_and_b32 v4, 7, v0")
    e("  v_lshlrev_b32 v4, 4, v4")
    e("  v_lshl_add_u32 v4, v5, 7, v4")
    e("  v_add_u32 v62, 4096, v4")
    e("  s_mul_i32 s52, s15, 7168")
    e(f"  s_add_u32 s52, s52, {WS_GU}")
    FA = 64
    e("  s_mov_b32 s53, 0")
    lab("mt_pgu")
    for st in range(14):
        if st < 8:
            e(f"  buffer_load_dwordx4 {vr(FA+4*st,4)}, v4, s[24:27], s52 offen offset:{512*st} sc1")
        else:
            e(f"  buffer_load_dwordx4 {vr(FA+4*st,4)}, v62, s[24:27], s52 offen offset:{512*(st-8)} sc1")
    e("  v_mov_b32 v3, 0")
    for st in range(14):
        e(f"  s_waitcnt vmcnt({13-st})")
        e(f"  v_max3_u32 v3, v3, v{FA+4*st}, v{FA+4*st+1}")
        e(f"  v_max3_u32 v3, v3, v{FA+4*st+2}, v{FA+4*st+3}")
    e("  v_cmp_eq_u32 s[54:55], -1, v3")
    poll_end("mt_pgu")
    hstamp(9, 224)
    def rdB(st):
        b = 120 + 8 * (st % 2)
        e(f"  ds_read_b64_tr_b16 {vr(b,2)}, v7 offset:{MT_WD+512*st}")
        e(f"  ds_read_b64_tr_b16 {vr(b+2,2)}, v7 offset:{MT_WD+512*st+64}")
        e(f"  ds_read_b64_tr_b16 {vr(b+4,2)}, v61 offset:{MT_WD+512*st}")
        e(f"  ds_read_b64_tr_b16 {vr(b+6,2)}, v61 offset:{MT_WD+512*st+64}")
    rdB(0)
    for st in range(14):
        b = 120 + 8 * (st % 2)
        if st < 13:
            rdB(st + 1)
            e("  s_waitcnt lgkmcnt(4)")
        else:
            e("  s_waitcnt lgkmcnt(0)")
        e(f"  v_mfma_f32_16x16x32_bf16 v[8:11], {vr(FA+4*st,4)}, {vr(b,4)}, v[8:11]")
        e(f"  v_mfma_f32_16x16x32_bf16 v[12:15], {vr(FA+4*st,4)}, {vr(b+4,4)}, v[12:15]")
        e("  s_nop 3")
    e("  s_nop 15")
    e("  v_lshlrev_b32 v3, 4, v0")
    e("  s_lshl_b32 s33, s15, 11")
    e("  v_add_u32 v3, s33, v3")
    e(f"  ds_write_b128 v3, v[8:11] offset:{MT_R}")
    e(f"  ds_write_b128 v3, v[12:15] offset:{MT_R+1024}")
    e("  s_waitcnt lgkmcnt(0)")
    e("  s_barrier")
    e("  s_cmp_lg_u32 s15, 0")
    e("  s_cbranch_scc1 k2_done")
    e("  v_lshlrev_b32 v3, 4, v0")
    for w in range(1, 4):
        for a in range(2):
            e(f"  ds_read_b128 {vr(72+8*(w-1)+4*a,4)}, v3 offset:{MT_R+2048*w+1024*a}")
    e("  v_cmp_gt_u32 vcc, 32, v0")
    e("  s_and_saveexec_b64 s[50:51], vcc")
    e("  s_waitcnt lgkmcnt(0)")
    for a in range(2):
        for i in range(4):
            y = 8 + 4*a + i
            e(f"  v_add_f32 v{y}, v{y}, v{72+4*a+i}")
            e(f"  v_add_f32 v60, v{80+4*a+i}, v{88+4*a+i}")
            e(f"  v_add_f32 v{y}, v{y}, v60")
            e(f"  v_cvt_pk_bf16_f32 v{y}, v{y}, v{y}")
            e(f"  v_lshlrev_b32 v{y}, 16, v{y}")
            e(f"  v_mul_f32 v{y}, v{y}, v{24+i}")
            e(f"  v_cvt_pk_bf16_f32 v{y}, v{y}, v{y}")
            e(f"  v_lshlrev_b32 v{y}, 16, v{y}")
            e(f"  v_add_f32 v61, v{E0+4+12*a+i}, v{y}")
            e("  v_cvt_pk_bf16_f32 v61, v61, v61")
            e("  v_lshlrev_b32 v61, 16, v61")
            e(f"  v_add_f32 v61, v{E0+12*a+i}, v61")
            e("  v_cvt_pk_bf16_f32 v61, v61, v61")
            e(f"  buffer_store_short v61, v{28+i}, s[44:47], 0 offen offset:{32*a}")
    e("  s_mov_b64 exec, -1")
    hstamp(10, 224)

def k2_epilogue_fused(ACC):
    TB = 49152
    e("  s_nop 15")
    P = 64
    for g in range(8):
        e(f"  v_cvt_pk_bf16_f32 v{P+2*g}, v{ACC+4*g}, v{ACC+4*g+1}")
        e(f"  v_cvt_pk_bf16_f32 v{P+2*g+1}, v{ACC+4*g+2}, v{ACC+4*g+3}")
    e("  s_mul_i32 s30, s15, 4608")
    e(f"  s_add_u32 s30, s30, {TB}")
    e("  v_mul_u32_u24 v18, 144, v16")
    e("  v_lshl_add_u32 v18, v17, 3, v18")
    e("  v_add_u32 v18, s30, v18")
    for g in range(8):
        e(f"  ds_write_b64 v18, {vr(P+2*g,2)} offset:{16*g}")
    e("  v_lshrrev_b32 v19, 3, v0")
    e("  v_and_b32 v22, 7, v0")
    e("  v_mul_u32_u24 v20, 144, v19")
    e("  v_lshl_add_u32 v20, v22, 4, v20")
    e("  v_add_u32 v20, s30, v20")
    e("  s_waitcnt lgkmcnt(0)")
    for q in range(4):
        e(f"  ds_read_b128 {vr(80+4*q,4)}, v20 offset:{8*144*q}")
    e("  s_lshl_b32 s24, s14, 21")
    e(f"  s_add_u32 s24, s24, {WS_Y}")
    e("  s_lshl_b32 s30, s13, 7")
    e("  s_add_u32 s24, s24, s30")
    e("  s_lshl_b32 s30, s12, 7")
    e("  s_lshl_b32 s31, s15, 5")
    e("  s_add_u32 s30, s30, s31")
    e("  v_add_u32 v21, s30, v19")
    e("  v_lshlrev_b32 v21, 10, v21")
    e("  v_lshl_add_u32 v21, v22, 4, v21")
    for q in range(4):
        e(f"  s_waitcnt lgkmcnt({3-q})")
        e(f"  buffer_store_dwordx4 {vr(80+4*q,4)}, v21, s[20:23], s24 offen sc1")
        if q < 3: e("  v_add_u32 v21, 0x2000, v21")
    e("  s_waitcnt vmcnt(0)")
    e("  s_barrier")
    e(f"  s_load_dwordx2 s[4:5], s[0:1], {KA_X}")
    e(f"  s_load_dwordx8 s[56:63], s[0:1], {KA_WR}")
    e(f"  s_load_dwordx2 s[64:65], s[0:1], {KA_OUT}")
    srd(24, 6, 7, 12 << 20)
    e("  s_lshl_b32 s48, s14, 3")
    e("  s_add_u32 s48, s48, s13")
    e("  s_cmp_lg_u32 s15, 0")
    e("  s_cbranch_scc1 k2_noflag")
    e("  s_lshl_b32 s49, s12, 6")
    e("  s_lshl_b32 s50, s48, 2")
    e("  s_add_u32 s49, s49, s50")
    e(f"  s_add_u32 s49, s49, {WS_FLAG}")
    e("  v_mov_b32 v4, s68" if FUSE else "  v_mov_b32 v4, 1")
    e("  v_mov_b32 v5, 0")
    e("  s_mov_b64 s[50:51], exec")
    e("  s_mov_b64 exec, 1")
    e("  buffer_store_dword v4, v5, s[24:27], s49 offen sc1")
    e("  s_mov_b64 exec, s[50:51]")
    lab("k2_noflag")
    e("  s_waitcnt lgkmcnt(0)")
    srd(20, 4, 5, 2 << 20)
    srd(28, 56, 57, 1024)
    srd(44, 64, 65, 2 << 20)
    e("  v_lshrrev_b32 v1, 5, v0")
    e("  v_and_b32 v2, 31, v0")
    e("  s_lshl_b32 s52, s12, 7")
    e("  s_lshl_b32 s53, s48, 3")
    e("  s_add_u32 s52, s52, s53")
    e("  s_lshl_b32 s53, s15, 1")
    e("  s_add_u32 s52, s52, s53")
    e("  v_add_u32 v1, s52, v1")
    rowmac32_pre()
    if MEGA: mega_gu_dma()
    e("  v_and_b32 v7, 15, v0")
    e("  v_lshlrev_b32 v7, 2, v7")
    e("  s_lshl_b32 s49, s12, 6")
    e(f"  s_add_u32 s49, s49, {WS_FLAG}")
    e("  s_mov_b32 s53, 0")
    lab("k2_poll")
    e("  buffer_load_dword v4, v7, s[24:27], s49 offen sc1")
    e("  s_waitcnt vmcnt(0)")
    e("  v_cmp_ne_u32 s[54:55], s68, v4" if FUSE else "  v_cmp_eq_u32 s[54:55], 0, v4")
    e("  s_nop 3")
    e("  s_cmp_eq_u64 s[54:55], 0")
    e("  s_cbranch_scc1 k2_poll_ok")
    e("  s_add_u32 s53, s53, 1")
    e(f"  s_cmp_gt_u32 s53, {1 << 22}")
    e("  s_cbranch_scc1 k2_poll_ok")
    e("  s_branch k2_poll")
    lab("k2_poll_ok")
    stamp(3)
    rowmac32()
    stamp(4)
    if MEGA:
        mega_tail()
        return
    e("  v_lshlrev_b32 v13, 2, v1")
    e("  v_lshlrev_b32 v14, 3, v1")
    e("  v_mov_b32 v7, v10")
    e("  v_cmp_eq_u32 vcc, 0, v2")
    e("  s_and_saveexec_b64 s[50:51], vcc")
    e(f"  s_mov_b32 s52, {WS_KEY}")
    e("  buffer_store_dword v12, v13, s[24:27], s52 offen")
    e(f"  s_mov_b32 s52, {WS_STAT}")
    e("  buffer_store_dwordx2 v[6:7], v14, s[24:27], s52 offen")
    e("  s_mov_b64 exec, s[50:51]")
    if OPT('K2_NOGU'): return
    e("  s_cmp_ge_u32 s15, 2")
    e("  s_cbranch_scc1 k2_done")
    e("  s_cmp_eq_u32 s15, 0")
    e("  s_cselect_b32 s40, s58, s60")
    e("  s_cselect_b32 s41, s59, s61")
    e(f"  s_mov_b32 s42, {512*1792*2}")
    e("  s_mov_b32 s43, 0x00020000")
    e("  s_and_b32 s52, s2, 7")
    e("  s_lshr_b32 s53, s2, 3")
    e("  v_min_u32 v1, 55, v0")
    e("  v_cmp_lt_u32 vcc, 27, v1")
    e("  s_nop 1")
    e("  v_cndmask_b32 v2, 0, 1, vcc")
    e("  v_mul_u32_u24 v3, 28, v2")
    e("  v_sub_u32 v3, v1, v3")
    e("  v_mul_u32_u24 v2, 3584, v2")
    e("  v_lshl_add_u32 v2, v3, 4, v2")
    e("  s_mul_i32 s54, s52, 448")
    e(f"  s_mul_i32 s55, s53, {16*3584}")
    e("  s_add_u32 s54, s54, s55")
    for q in range(8):
        e(f"  buffer_load_dwordx4 {vr(80+4*q,4)}, v2, s[40:43], s54 offen")
        e(f"  s_add_u32 s54, s54, {2*3584}")

def gen_k2():
    NS = K2_NS
    name = "f_kernel" if FUSE else "k2_kernel"
    YBASE = NS * 16384
    if not FUSE:
        kernel_begin(name)
        e("  s_cmp_ge_u32 s2, 256")
        e("  s_cbranch_scc1 k2_done")
        e(f"  s_load_dwordx4 s[8:11], s[0:1], {KA_WSRE}")
        e(f"  s_load_dwordx2 s[6:7], s[0:1], {KA_WS}")
        e(f"  s_load_dwordx2 s[34:35], s[0:1], {KA_WDN}")
    else:
        e("  s_mov_b32 s71, s15")
    e("  s_and_b32 s12, s2, 7")
    e("  s_lshr_b32 s13, s2, 3")
    e("  s_lshr_b32 s14, s12, 2")
    e("  s_and_b32 s12, s12, 3")
    e("  s_lshl_b32 s12, s12, 2")
    e("  s_lshr_b32 s15, s13, 3")
    e("  s_add_u32 s12, s12, s15")
    e("  s_and_b32 s13, s13, 7")
    if FUSE:
        e("  s_mov_b32 s15, s71")
    else:
        e("  v_lshrrev_b32 v1, 6, v0")
        e("  v_and_b32 v0, 63, v0")
        e("  v_readfirstlane_b32 s15, v1")
    e("  v_lshrrev_b32 v2, 3, v0")
    e("  v_and_b32 v3, 7, v0")
    e("  s_waitcnt lgkmcnt(0)")
    e("  s_cmp_eq_u32 s14, 0")
    e("  s_cselect_b32 s16, s8, s10")
    e("  s_cselect_b32 s17, s9, s11")
    e(f"  s_mov_b32 s18, {2048*2048*2}")
    e("  s_mov_b32 s19, 0x00020000")
    srd(20, 6, 7, 9 << 20)
    e("  s_cmp_lt_u32 s15, 4")
    e("  s_cbranch_scc1 k2_consumer")
    if not FUSE:
        e("  s_cmp_lt_u32 s15, 8")
        e("  s_cbranch_scc1 k2_loader")
    if not FUSE: helper_wave()
    lab("k2_loader")
    e("  s_sub_u32 s15, s15, 4")
    for ii in range(4):
        e(f"  s_lshl_b32 s24, s15, 5")
        e(f"  s_add_u32 s24, s24, {8*ii}")
        e(f"  v_add_u32 v10, s24, v2")
        e(f"  v_lshrrev_b32 v11, 1, v10")
        e(f"  v_and_b32 v11, 7, v11")
        e(f"  v_xor_b32 v11, v11, v3")
        e(f"  s_lshl_b32 s24, s12, 7")
        e(f"  v_add_u32 v10, s24, v10")
        e(f"  v_lshlrev_b32 v10, 12, v10")
        e(f"  v_lshl_add_u32 v{4+ii}, v11, 4, v10")
    e("  s_lshl_b32 s24, s15, 11")
    e("  v_lshlrev_b32 v8, 4, v0")
    e("  v_add_u32 v8, s24, v8")
    e("  v_add_u32 v9, 1024, v8")
    e("  s_mov_b32 s25, 0")
    e("  s_lshl_b32 s26, s14, 3")
    e("  s_add_u32 s26, s26, s13")
    e("  s_lshl_b32 s26, s26, 18")
    e("  s_lshl_b32 s27, s15, 12")
    e("  s_lshl_b32 s28, s15, 11")
    e(f"  s_add_u32 s28, s28, {YBASE}")
    YSC = " sc1" if FUSE else ""
    def dmaY(slot, so="s26"):
        for i in range(2):
            e(f"  s_add_u32 m0, s28, {slot*8192 + i*1024}")
            e("  s_nop 0")
            e(f"  buffer_load_dwordx4 v{8+i}, s[20:23], {so} offen{YSC} lds")
    def dmaW(slot):
        for i in range(4):
            e(f"  s_add_u32 m0, s27, {slot*16384 + i*1024}")
            e("  s_nop 0")
            e(f"  buffer_load_dwordx4 v{4+i}, s[16:19], s25 offen lds")
    def adv():
        e("  s_add_u32 s25, s25, 128")
        e("  s_and_b32 s25, s25, 4095")
        e("  s_lshl_b32 s29, s25, 6")
        e("  s_add_u32 s26, s33, s29")
    def dma(slot):
        dmaY(slot); dmaW(slot); adv()
    e("  s_mov_b32 s33, s26")
    e(f"  s_mul_i32 s25, s13, {128*OPT('K2_ROT', 4)}")
    if OPT('K2_ROTT', 0):
        e("  s_and_b32 s29, s12, 3")
        e(f"  s_mul_i32 s29, s29, {128*OPT('K2_ROTT', 0)}")
        e("  s_add_u32 s25, s25, s29")
    if OPT('K2_ROTX', 0):
        e("  s_and_b32 s29, s2, 7")
        e(f"  s_mul_i32 s29, s29, {64*OPT('K2_ROTX', 0)}")
        e("  s_and_b32 s29, s29, 0xf80")
        e("  s_add_u32 s25, s25, s29")
    e("  s_and_b32 s25, s25, 4095")
    e("  s_lshl_b32 s29, s25, 6")
    e("  s_add_u32 s26, s33, s29")
    if not FUSE:
        for st in range(NS):
            dma(st)
        e(f"  s_waitcnt vmcnt({6*(NS-1)})")
        e("  s_barrier")
        for ks in range(31):
            ahead = min(ks + NS - 1, 31) - (ks + 1)
            e(f"  s_waitcnt vmcnt({6*ahead})")
            e("  s_barrier")
            if ks + NS < 32:
                dma(ks % NS)
    else:
        e("  s_mov_b32 s30, s25")
        e("  s_waitcnt vmcnt(0)")
        e("  s_barrier")
        PRE = OPT('F_PRE', 6)
        for st in range(PRE):
            dmaW(st); adv()
        e("  s_barrier")
        for st in range(PRE):
            e("  s_lshl_b32 s29, s30, 6")
            e("  s_add_u32 s31, s33, s29")
            dmaY(st, "s31")
            e("  s_add_u32 s30, s30, 128")
            e("  s_and_b32 s30, s30, 4095")
        for st in range(PRE, NS):
            dma(st)
        e(f"  s_waitcnt vmcnt({2*(PRE-1) + 6*(NS-PRE)})")
        e("  s_barrier")
        for ks in range(31):
            if ks + 1 <= PRE - 1:
                allowed = 2 * (PRE - 1 - (ks + 1)) + 6 * (NS - PRE) + 6 * ks
            else:
                allowed = 6 * (min(ks + NS - 1, 31) - (ks + 1))
            e(f"  s_waitcnt vmcnt({allowed})")
            e("  s_barrier")
            if ks + NS < 32:
                dma(ks % NS)
    e("  s_branch k2_done")
    lab("k2_consumer")
    if FUSE:
        e("  s_cmp_lg_u32 s15, 0")
        e("  s_cbranch_scc1 f_noep")
        get_epoch("co")
        e("  v_mov_b32 v4, s68")
        e(f"  v_mov_b32 v5, {K2_NS*24576}")
        e("  ds_write_b32 v5, v4")
        e("  s_waitcnt lgkmcnt(0)")
        lab("f_noep")
        e("  s_waitcnt vmcnt(0)")
        e("  s_barrier")
        e("  s_cmp_lg_u32 s15, 0")
        e("  s_cbranch_scc1 f_noflagA")
        e("  v_mov_b32 v4, s68")
        e("  v_mov_b32 v5, 0")
        e("  s_mov_b64 s[36:37], exec")
        e("  s_mov_b64 exec, 1")
        e("  buffer_store_dword v4, v5, s[20:23], s70 offen sc1")
        e("  s_mov_b64 exec, s[36:37]")
        lab("f_noflagA")
        e(f"  v_mov_b32 v158, {K2_NS*24576}")
        e("  ds_read_b32 v159, v158")
        e("  s_waitcnt lgkmcnt(0)")
        e("  v_readfirstlane_b32 s68, v159")
        if OPT('F_LPF', 0):
            e("  s_cmp_lt_u32 s15, 2")
            e("  s_cbranch_scc1 f_nolpf")
            e("  s_and_b32 s36, s2, 3")
            e("  s_lshl_b32 s36, s36, 21")
            e("  s_lshr_b32 s37, s2, 3")
            e("  s_lshl_b32 s37, s37, 16")
            e("  s_add_u32 s36, s36, s37")
            e("  s_and_b32 s37, s15, 1")
            e("  s_lshl_b32 s37, s37, 15")
            e("  s_add_u32 s36, s36, s37")
            e("  v_lshlrev_b32 v10, 4, v0")
            for q in range(32):
                e(f"  buffer_load_dwordx4 v[160:163], v10, s[16:19], s36 offen")
                e("  s_add_u32 s36, s36, 1024")
            lab("f_nolpf")
        e("  s_cmp_lg_u32 s15, 1")
        e("  s_cbranch_scc1 f_pollA_ok")
        e("  s_lshl_b32 s31, s14, 2")
        e("  s_lshr_b32 s32, s13, 1")
        e("  s_add_u32 s31, s31, s32")
        e("  s_lshl_b32 s31, s31, 7")
        e(f"  s_add_u32 s31, s31, {WS_FA}")
        e("  v_and_b32 v10, 31, v0")
        e("  v_lshlrev_b32 v10, 2, v10")
        e("  s_mov_b32 s69, 0")
        lab("f_pollA")
        e("  buffer_load_dword v11, v10, s[20:23], s31 offen sc1")
        e("  s_waitcnt vmcnt(0)")
        e("  v_cmp_ne_u32 s[36:37], s68, v11")
        e("  s_nop 3")
        e("  s_cmp_eq_u64 s[36:37], 0")
        e("  s_cbranch_scc1 f_pollA_ok")
        e("  s_add_u32 s69, s69, 1")
        e(f"  s_cmp_gt_u32 s69, {1 << 22}")
        e("  s_cbranch_scc1 f_pollA_ok")
        e("  s_branch f_pollA")
        lab("f_pollA_ok")
        stamp(1)
        e("  s_barrier")
        hstamp(11)
    e("  v_and_b32 v16, 31, v0")
    e("  v_lshrrev_b32 v17, 5, v0")
    e("  s_lshl_b32 s24, s15, 5")
    e("  v_add_u32 v18, s24, v16")
    e("  v_lshrrev_b32 v19, 1, v18")
    e("  v_and_b32 v19, 7, v19")
    e("  v_xor_b32 v19, v19, v17")
    e("  v_lshlrev_b32 v18, 7, v18")
    e("  v_lshl_add_u32 v20, v19, 4, v18")
    for kk in range(1, 4):
        e(f"  v_xor_b32 v{20+kk}, {32*kk}, v20")
    for kk in range(4):
        e(f"  v_add_u32 v{28+kk}, 0x10000, v{20+kk}")
    e("  v_lshrrev_b32 v19, 1, v16")
    e("  v_and_b32 v19, 7, v19")
    e("  v_xor_b32 v19, v19, v17")
    e("  v_lshlrev_b32 v18, 7, v16")
    e("  v_lshl_add_u32 v24, v19, 4, v18")
    e(f"  v_add_u32 v24, {YBASE}, v24")
    for kk in range(1, 4):
        e(f"  v_xor_b32 v{24+kk}, {32*kk}, v24")
    ACC = 32
    for i in range(32):
        e(f"  v_mov_b32 v{ACC+i}, 0")
    def FW(st): return 64 + 48 * (st % 2)
    def FY(st): return 80 + 48 * (st % 2)
    def rd(st, kk):
        slot = st % NS
        wb = 20 if slot < 4 else 28
        e(f"  ds_read_b128 {vr(FW(st)+4*kk,4)}, v{wb+kk} offset:{16384*(slot%4)}")
        e(f"  ds_read_b128 {vr(FY(st)+8*kk,4)}, v{24+kk} offset:{8192*slot}")
        e(f"  ds_read_b128 {vr(FY(st)+8*kk+4,4)}, v{24+kk} offset:{8192*slot+4096}")
    e("  s_barrier")
    stamp(2)
    for kk in range(4):
        rd(0, kk)
    def mf(st, kk, half):
        e(f"  v_mfma_f32_32x32x16_bf16 {vr(ACC+16*half,16)}, {vr(FY(st)+8*kk+4*half,4)}, {vr(FW(st)+4*kk,4)}, {vr(ACC+16*half,16)}")
    for ks in range(32):
        more = ks + 1 < 32
        e("  s_waitcnt lgkmcnt(0)")
        if more and not OPT('K2_NOBAR'):
            e("  s_barrier")
        if ks == 4: hstamp(12)
        if ks == 12: hstamp(13)
        if ks == 20: hstamp(14)
        if OPT('K2_NOBAR') == 2: continue
        r = (lambda kk: rd(ks + 1, kk)) if more else (lambda kk: None)
        mf(ks, 0, 0); r(0); mf(ks, 0, 1); r(1)
        mf(ks, 1, 0); r(2); mf(ks, 1, 1); r(3)
        mf(ks, 2, 0); mf(ks, 2, 1)
        mf(ks, 3, 0); mf(ks, 3, 1)
    stamp(6)
    if not OPT('K2T1', 1):
        k2_epilogue_plain(ACC)
    else:
        k2_epilogue_fused(ACC)
    lab("k2_done")
    kernel_end()
    e("  s_endpgm")
    kernel_desc(name, 164 if FUSE else 160)

def gen_t1():
    name = "t1_kernel"
    kernel_begin(name)
    e("  s_cmp_ge_u32 s2, 256")
    e("  s_cbranch_scc1 t1_done")
    e(f"  s_load_dwordx2 s[4:5], s[0:1], {KA_X}")
    e(f"  s_load_dwordx2 s[6:7], s[0:1], {KA_WS}")
    e(f"  s_load_dwordx2 s[8:9], s[0:1], {KA_WR}")
    e(f"  s_load_dwordx2 s[10:11], s[0:1], {KA_OUT}")
    if OPT('T1_PF', 1):
        e(f"  s_load_dwordx4 s[32:35], s[0:1], {KA_WG}")
        e("  v_lshrrev_b32 v1, 6, v0")
        e("  s_nop 0")
        e("  v_readfirstlane_b32 s3, v1")
        e("  s_cmp_lg_u32 s3, 2")
        e("  s_cbranch_scc1 t1_main")
        e("  s_waitcnt lgkmcnt(0)")
        srd(40, 32, 33, 512*1792*2)
        srd(44, 34, 35, 512*1792*2)
        e("  v_and_b32 v0, 63, v0")
        e("  s_and_b32 s52, s2, 7")
        e("  s_lshr_b32 s53, s2, 3")
        e("  v_min_u32 v1, 55, v0")
        e("  v_cmp_lt_u32 vcc, 27, v1")
        e("  v_cndmask_b32 v2, 0, 1, vcc")
        e("  v_mul_u32_u24 v3, 28, v2")
        e("  v_sub_u32 v3, v1, v3")
        e("  v_mul_u32_u24 v2, 3584, v2")
        e("  v_lshl_add_u32 v2, v3, 4, v2")
        e("  s_mul_i32 s54, s52, 448")
        e(f"  s_mul_i32 s55, s53, {16*3584}")
        e("  s_add_u32 s54, s54, s55")
        for q in range(8):
            e(f"  buffer_load_dwordx4 {vr(8+8*q,4)}, v2, s[40:43], s54 offen")
            e(f"  buffer_load_dwordx4 {vr(12+8*q,4)}, v2, s[44:47], s54 offen")
            e(f"  s_add_u32 s54, s54, {2*3584}")
        e("  s_branch t1_done")
        lab("t1_main")
    e("  v_lshrrev_b32 v1, 4, v0")
    e("  v_and_b32 v2, 15, v0")
    e("  s_lshl_b32 s3, s2, 3")
    e("  v_add_u32 v1, s3, v1")
    e("  v_lshlrev_b32 v3, 10, v1")
    e("  v_lshl_add_u32 v3, v2, 4, v3")
    e("  v_lshlrev_b32 v4, 4, v2")
    e("  s_waitcnt lgkmcnt(0)")
    srd(12, 4, 5, 2 << 20)
    srd(16, 6, 7, 9 << 20)
    srd(20, 8, 9, 1024)
    srd(24, 10, 11, 2 << 20)
    e(f"  s_mov_b32 s28, {WS_Y}")
    e(f"  s_mov_b32 s29, {WS_Y + (2<<20)}")
    YR, YI, XX, WR = 16, 32, 48, 64
    for j in range(4):
        e(f"  buffer_load_dwordx4 {vr(YR+4*j,4)}, v3, s[16:19], s28 offen offset:{256*j}")
        e(f"  buffer_load_dwordx4 {vr(YI+4*j,4)}, v3, s[16:19], s29 offen offset:{256*j}")
        e(f"  buffer_load_dwordx4 {vr(XX+4*j,4)}, v3, s[12:15], 0 offen offset:{256*j}")
    for j in range(4):
        e(f"  buffer_load_dwordx4 {vr(WR+4*j,4)}, v4, s[20:23], 0 offen offset:{256*j}")
    H = 80
    T = 112
    e("  v_mov_b32 v14, 0")
    e("  v_mov_b32 v15, 0")
    for j in range(4):
        e(f"  s_waitcnt vmcnt({4 + 3*(3-j)})")
        for q in range(4):
            i = 4*j + q
            e(f"  v_lshlrev_b32 v{T}, 16, v{YR+i}")
            e(f"  v_and_b32 v{T+1}, 0xffff0000, v{YR+i}")
            e(f"  v_lshlrev_b32 v{T+2}, 16, v{YI+i}")
            e(f"  v_and_b32 v{T+3}, 0xffff0000, v{YI+i}")
            e(f"  v_pk_add_f32 {vr(T,2)}, {vr(T,2)}, {vr(T+2,2)} neg_lo:[0,1] neg_hi:[0,1]")
            e(f"  v_cvt_pk_bf16_f32 v{T}, v{T}, v{T+1}")
            e(f"  v_and_b32 v{T+1}, 0xffff0000, v{T}")
            e(f"  v_lshlrev_b32 v{T}, 16, v{T}")
            e(f"  v_lshlrev_b32 v{T+2}, 16, v{XX+i}")
            e(f"  v_and_b32 v{T+3}, 0xffff0000, v{XX+i}")
            e(f"  v_pk_add_f32 {vr(T,2)}, {vr(T,2)}, {vr(T+2,2)}")
            e(f"  v_cvt_pk_bf16_f32 v{T}, v{T}, v{T+1}")
            e(f"  v_lshlrev_b32 v{H+2*i}, 16, v{T}")
            e(f"  v_and_b32 v{H+2*i+1}, 0xffff0000, v{T}")
            e(f"  v_pk_add_f32 v[14:15], v[14:15], {vr(H+2*i,2)}")
    e("  v_add_f32 v5, v14, v15")
    reduce16(5)
    e("  v_mul_f32 v5, 0x3b000000, v5")
    e("  v_cvt_pk_bf16_f32 v6, v5, v5")
    e("  v_lshlrev_b32 v6, 16, v6")
    e("  v_sub_f32 v8, 0, v6")
    e("  v_mov_b32 v9, v8")
    e("  v_mov_b32 v10, 0")
    e("  v_mov_b32 v11, 0")
    D = 116
    for i in range(16):
        e(f"  v_pk_add_f32 {vr(D+2*i,2)}, {vr(H+2*i,2)}, v[8:9]")
        e(f"  v_pk_fma_f32 v[10:11], {vr(D+2*i,2)}, {vr(D+2*i,2)}, v[10:11]")
    e("  v_add_f32 v10, v10, v11")
    reduce16(10)
    e("  v_sub_f32 v11, v5, v6")
    e("  v_mul_f32 v11, v11, v11")
    e("  v_mul_f32 v10, 0x3b000000, v10")
    e("  v_sub_f32 v10, v10, v11")
    e("  v_max_f32 v10, 0, v10")
    e("  v_cvt_pk_bf16_f32 v10, v10, v10")
    e("  v_lshlrev_b32 v10, 16, v10")
    e("  v_add_f32 v10, 0x3727c5ac, v10")
    e("  v_cvt_pk_bf16_f32 v10, v10, v10")
    e("  v_lshlrev_b32 v10, 16, v10")
    e("  v_sqrt_f32 v10, v10")
    e("  s_nop 0")
    e("  v_cvt_pk_bf16_f32 v10, v10, v10")
    e("  v_lshlrev_b32 v10, 16, v10")
    e("  v_rcp_f32 v10, v10")
    e("  s_nop 0")
    e("  v_mov_b32 v11, v10")
    e("  v_mov_b32 v12, 0")
    e("  s_waitcnt vmcnt(0)")
    O = 16
    for i in range(16):
        e(f"  v_cvt_pk_bf16_f32 v{T}, v{D+2*i}, v{D+2*i+1}")
        e(f"  v_lshlrev_b32 v{D+2*i}, 16, v{T}")
        e(f"  v_and_b32 v{D+2*i+1}, 0xffff0000, v{T}")
        e(f"  v_pk_mul_f32 {vr(D+2*i,2)}, {vr(D+2*i,2)}, v[10:11]")
        e(f"  v_cvt_pk_bf16_f32 v{T}, v{D+2*i}, v{D+2*i+1}")
        e(f"  v_dot2_f32_bf16 v12, v{T}, v{WR+i}, v12")
        e(f"  v_lshlrev_b32 v{D+2*i}, 16, v{T}")
        e(f"  v_and_b32 v{D+2*i+1}, 0xffff0000, v{T}")
        e(f"  v_pk_add_f32 {vr(D+2*i,2)}, {vr(D+2*i,2)}, {vr(H+2*i,2)}")
        e(f"  v_cvt_pk_bf16_f32 v{O+i}, v{D+2*i}, v{D+2*i+1}")
    for j in range(4):
        e(f"  buffer_store_dwordx4 {vr(O+4*j,4)}, v3, s[24:27], 0 offen offset:{256*j}")
    e("  s_nop 3")
    reduce16(12)
    e("  v_cvt_pk_bf16_f32 v12, v12, v12")
    e("  v_lshlrev_b32 v12, 16, v12")
    e("  v_ashrrev_i32 v13, 31, v12")
    e("  v_or_b32 v13, 0x80000000, v13")
    e("  v_xor_b32 v12, v12, v13")
    e("  v_and_b32 v12, 0xffff0000, v12")
    e("  v_sub_u32 v13, 0xffff, v1")
    e("  v_or_b32 v12, v12, v13")
    e("  v_cmp_eq_u32 vcc, 0, v2")
    e("  s_and_saveexec_b64 s[30:31], vcc")
    e("  v_lshlrev_b32 v13, 2, v1")
    e(f"  s_mov_b32 s28, {WS_KEY}")
    e("  buffer_store_dword v12, v13, s[16:19], s28 offen")
    e("  v_lshlrev_b32 v13, 3, v1")
    e("  v_mov_b32 v7, v10")
    e(f"  s_mov_b32 s28, {WS_STAT}")
    e("  buffer_store_dwordx2 v[6:7], v13, s[16:19], s28 offen")
    lab("t1_done")
    kernel_end()
    e("  s_endpgm")
    kernel_desc(name, 148)

def recompute(YR, YI, XX, nd, NEGM, RINV, HOUT, XNOUT, T):
    for i in range(nd):
        e(f"  v_lshlrev_b32 v{T}, 16, v{YR+i}")
        e(f"  v_and_b32 v{T+1}, 0xffff0000, v{YR+i}")
        e(f"  v_lshlrev_b32 v{T+2}, 16, v{YI+i}")
        e(f"  v_and_b32 v{T+3}, 0xffff0000, v{YI+i}")
        e(f"  v_pk_add_f32 {vr(T,2)}, {vr(T,2)}, {vr(T+2,2)} neg_lo:[0,1] neg_hi:[0,1]")
        e(f"  v_cvt_pk_bf16_f32 v{T}, v{T}, v{T+1}")
        e(f"  v_and_b32 v{T+1}, 0xffff0000, v{T}")
        e(f"  v_lshlrev_b32 v{T}, 16, v{T}")
        e(f"  v_lshlrev_b32 v{T+2}, 16, v{XX+i}")
        e(f"  v_and_b32 v{T+3}, 0xffff0000, v{XX+i}")
        e(f"  v_pk_add_f32 {vr(T,2)}, {vr(T,2)}, {vr(T+2,2)}")
        e(f"  v_cvt_pk_bf16_f32 v{T}, v{T}, v{T+1}")
        e(f"  v_lshlrev_b32 v{HOUT+2*i}, 16, v{T}")
        e(f"  v_and_b32 v{HOUT+2*i+1}, 0xffff0000, v{T}")
        e(f"  v_pk_add_f32 {vr(T,2)}, {vr(HOUT+2*i,2)}, {vr(NEGM,2)}")
        e(f"  v_cvt_pk_bf16_f32 v{T}, v{T}, v{T+1}")
        e(f"  v_and_b32 v{T+1}, 0xffff0000, v{T}")
        e(f"  v_lshlrev_b32 v{T}, 16, v{T}")
        e(f"  v_pk_mul_f32 {vr(T,2)}, {vr(T,2)}, {vr(RINV,2)}")
        e(f"  v_cvt_pk_bf16_f32 v{XNOUT+i}, v{T}, v{T+1}")

XS_STRIDE = 1040
def gen_t2():
    name = "t2_kernel"
    kernel_begin(name)
    LDS_G, LDS_U, LDS_XS, LDS_C = 0, 8192, 16384, 16384 + 8*XS_STRIDE
    e("  s_cmp_ge_u32 s2, 224")
    e("  s_cbranch_scc1 t2_done")
    e(f"  s_load_dwordx2 s[4:5], s[0:1], {KA_X}")
    e(f"  s_load_dwordx2 s[6:7], s[0:1], {KA_WS}")
    e(f"  s_load_dwordx4 s[8:11], s[0:1], {KA_WG}")
    e("  s_and_b32 s3, s2, 7")
    e("  s_mul_i32 s3, s3, 28")
    e("  s_lshr_b32 s12, s2, 3")
    e("  s_add_u32 s3, s3, s12")
    e("  v_mov_b32 v40, v0")
    e("  v_lshrrev_b32 v1, 6, v0")
    e("  v_and_b32 v0, 63, v0")
    e("  v_readfirstlane_b32 s13, v1")
    e("  s_waitcnt lgkmcnt(0)")
    srd(16, 4, 5, 2 << 20)
    srd(20, 6, 7, 9 << 20)
    srd(24, 8, 9, 512*1792*2)
    srd(28, 10, 11, 512*1792*2)
    e("  v_lshlrev_b32 v2, 5, v40")
    e(f"  s_mov_b32 s14, {WS_KEY}")
    e("  buffer_load_dwordx4 v[8:11], v2, s[20:23], s14 offen")
    e("  buffer_load_dwordx4 v[12:15], v2, s[20:23], s14 offen offset:16")
    e("  s_lshl_b32 s15, s3, 4")
    e("  s_movk_i32 s32, 3584")
    for ii in range(2):
        e(f"  s_lshl_b32 s33, s13, 7")
        e(f"  s_add_u32 s33, s33, {64*ii}")
        e(f"  v_add_u32 v3, s33, v0")
        e(f"  v_mul_lo_u32 v3, v3, s32")
        e(f"  s_lshl_b32 s34, s13, 11")
        e(f"  s_add_u32 m0, s34, {LDS_G + 1024*ii}")
        e("  s_nop 0")
        e(f"  buffer_load_dwordx4 v3, s[24:27], s15 offen lds")
        e(f"  s_add_u32 m0, s34, {LDS_U + 1024*ii}")
        e("  s_nop 0")
        e(f"  buffer_load_dwordx4 v3, s[28:31], s15 offen lds")
    stamp(1)
    e("  s_waitcnt vmcnt(4)")
    stamp(2)
    e("  v_mov_b32 v20, 0")
    for rnd in range(8):
        e("  v_max3_u32 v16, v8, v9, v10")
        e("  v_max3_u32 v17, v11, v12, v13")
        e("  v_max3_u32 v16, v16, v14, v15")
        e("  v_max_u32 v16, v16, v17")
        e("  s_nop 1")
        e("  v_max_u32_dpp v16, v16, v16 quad_perm:[1,0,3,2] row_mask:0xf bank_mask:0xf")
        e("  s_nop 1")
        e("  v_max_u32_dpp v16, v16, v16 quad_perm:[2,3,0,1] row_mask:0xf bank_mask:0xf")
        e("  s_nop 1")
        e("  v_max_u32_dpp v16, v16, v16 row_half_mirror row_mask:0xf bank_mask:0xf")
        e("  s_nop 1")
        e("  v_max_u32_dpp v16, v16, v16 row_mirror row_mask:0xf bank_mask:0xf")
        e("  s_nop 1")
        e("  v_readlane_b32 s36, v16, 0")
        e("  v_readlane_b32 s37, v16, 16")
        e("  v_readlane_b32 s38, v16, 32")
        e("  v_readlane_b32 s39, v16, 48")
        e("  s_max_u32 s36, s36, s37")
        e("  s_max_u32 s38, s38, s39")
        e("  s_max_u32 s36, s36, s38")
        e(f"  v_writelane_b32 v20, s36, {rnd}")
        if rnd < 7:
            for k in range(8):
                e(f"  v_cmp_ne_u32 vcc, s36, v{8+k}")
                e("  s_nop 1")
                e(f"  v_cndmask_b32 v{8+k}, 0, v{8+k}, vcc")
    e("  s_lshl_b32 s33, s13, 5")
    e(f"  s_add_u32 s33, s33, {LDS_C}")
    e("  v_lshlrev_b32 v3, 2, v0")
    e("  v_add_u32 v3, s33, v3")
    e("  v_cmp_gt_u32 vcc, 8, v0")
    e("  s_and_saveexec_b64 s[40:41], vcc")
    e("  ds_write_b32 v3, v20")
    e("  s_mov_b64 exec, s[40:41]")
    e("  s_waitcnt lgkmcnt(0)")
    e("  s_barrier")
    e("  v_and_b32 v3, 31, v0")
    e("  v_lshlrev_b32 v3, 2, v3")
    e(f"  ds_read_b32 v21, v3 offset:{LDS_C}")
    e("  v_mov_b32 v22, 0")
    e("  s_waitcnt lgkmcnt(0)")
    for i in range(32):
        e(f"  v_readlane_b32 s36, v21, {i}")
        e("  s_nop 1")
        e("  v_cmp_gt_u32 vcc, s36, v21")
        e("  s_nop 1")
        e("  v_addc_co_u32 v22, vcc, 0, v22, vcc")
    e("  v_cmp_gt_u32 vcc, 8, v22")
    e("  v_cmp_gt_u32 s[42:43], 32, v0")
    e("  s_and_b64 vcc, vcc, s[42:43]")
    e("  v_lshlrev_b32 v3, 2, v22")
    e("  s_and_saveexec_b64 s[40:41], vcc")
    e(f"  ds_write_b32 v3, v21 offset:{LDS_C+128}")
    e("  s_mov_b64 exec, s[40:41]")
    e("  s_waitcnt lgkmcnt(0)")
    e("  s_barrier")
    stamp(3)
    e("  v_lshrrev_b32 v4, 5, v40")
    e("  v_and_b32 v5, 31, v40")
    e("  v_lshlrev_b32 v3, 2, v4")
    e(f"  ds_read_b32 v6, v3 offset:{LDS_C+128}")
    e("  s_waitcnt lgkmcnt(0)")
    e("  s_cmp_lg_u32 s3, 0")
    e("  s_cbranch_scc1 t2_nopub")
    e("  v_cmp_eq_u32 vcc, 0, v5")
    e("  s_and_saveexec_b64 s[40:41], vcc")
    e(f"  s_mov_b32 s14, {WS_IDX}")
    e("  buffer_store_dword v6, v3, s[20:23], s14 offen")
    e("  s_mov_b64 exec, s[40:41]")
    lab("t2_nopub")
    e("  v_and_b32 v6, 0xffff, v6")
    e("  v_sub_u32 v6, 0xffff, v6")
    e("  v_lshlrev_b32 v7, 10, v6")
    e("  v_lshl_add_u32 v7, v5, 4, v7")
    e(f"  s_mov_b32 s14, {WS_Y}")
    e(f"  s_mov_b32 s15, {WS_Y + (2<<20)}")
    YR, YI, XX = 24, 32, 44
    for j in range(2):
        e(f"  buffer_load_dwordx4 {vr(YR+4*j,4)}, v7, s[20:23], s14 offen offset:{512*j}")
        e(f"  buffer_load_dwordx4 {vr(YI+4*j,4)}, v7, s[20:23], s15 offen offset:{512*j}")
        e(f"  buffer_load_dwordx4 {vr(XX+4*j,4)}, v7, s[16:19], 0 offen offset:{512*j}")
    e("  v_lshlrev_b32 v3, 3, v6")
    e(f"  s_mov_b32 s14, {WS_STAT}")
    e("  buffer_load_dwordx2 v[52:53], v3, s[20:23], s14 offen")
    e("  s_waitcnt vmcnt(0)")
    stamp(4)
    e("  v_sub_f32 v54, 0, v52")
    e("  v_mov_b32 v55, v54")
    e("  v_mov_b32 v52, v53")
    recompute(YR, YI, XX, 8, 54, 52, 64, 80, 56)
    e(f"  v_mul_u32_u24 v3, {XS_STRIDE}, v4")
    e("  v_lshl_add_u32 v3, v5, 4, v3")
    e(f"  ds_write_b128 v3, v[80:83] offset:{LDS_XS}")
    e(f"  ds_write_b128 v3, v[84:87] offset:{LDS_XS+512}")
    e("  s_waitcnt lgkmcnt(0)")
    e("  s_barrier")
    e("  s_cmp_lg_u32 s13, 0")
    e("  s_cbranch_scc1 t2_done")
    stamp(5)
    e("  v_and_b32 v3, 7, v0")
    e(f"  v_mul_u32_u24 v3, {XS_STRIDE}, v3")
    e("  v_lshrrev_b32 v4, 4, v0")
    e("  v_lshl_add_u32 v3, v4, 4, v3")
    e("  v_and_b32 v5, 15, v0")
    e("  v_lshrrev_b32 v5, 2, v5")
    e("  v_lshl_add_u32 v5, v4, 3, v5")
    e("  v_lshlrev_b32 v5, 4, v5")
    e("  v_and_b32 v6, 1, v0")
    e("  v_lshl_add_u32 v5, v6, 3, v5")
    e("  v_and_b32 v6, 2, v0")
    e("  v_lshl_add_u32 v5, v6, 12, v5")
    for i in range(4):
        e(f"  v_mov_b32 v{8+i}, 0")
    FA, FB = 64, 128
    for st in range(16):
        e(f"  ds_read_b128 {vr(FA+4*st,4)}, v3 offset:{LDS_XS + 64*st}")
        e(f"  ds_read_b64_tr_b16 {vr(FB+4*st,2)}, v5 offset:{512*st}")
        e(f"  ds_read_b64_tr_b16 {vr(FB+4*st+2,2)}, v5 offset:{512*st+64}")
        if st % 4 == 3:
            e("  s_waitcnt lgkmcnt(0)")
            for s2 in range(st-3, st+1):
                e(f"  v_mfma_f32_16x16x32_bf16 v[8:11], {vr(FA+4*s2,4)}, {vr(FB+4*s2,4)}, v[8:11]")
    e("  s_nop 15")
    for i in range(4):
        e(f"  v_cvt_pk_bf16_f32 v{8+i}, v{8+i}, v{8+i}")
        e(f"  v_lshlrev_b32 v{8+i}, 16, v{8+i}")
    e("  s_nop 1")
    for i in range(4):
        e(f"  v_mov_b32_dpp v{12+i}, v{8+i} row_ror:8 row_mask:0xf bank_mask:0xf")
    for i in range(4):
        e(f"  v_mul_f32 v16, 0xbfb8aa3b, v{8+i}")
        e("  v_exp_f32 v16, v16")
        e("  s_nop 0")
        e("  v_add_f32 v16, 1.0, v16")
        e("  v_rcp_f32 v16, v16")
        e("  s_nop 0")
        e(f"  v_mul_f32 v16, v{8+i}, v16")
        e("  v_cvt_pk_bf16_f32 v16, v16, v16")
        e("  v_lshlrev_b32 v16, 16, v16")
        e(f"  v_mul_f32 v16, v16, v{12+i}")
        e(f"  v_cvt_pk_bf16_f32 v{20+i}, v16, v16")
    stamp(6)
    e("  v_and_b32 v5, 15, v0")
    e("  v_cmp_gt_u32 vcc, 8, v5")
    e("  v_cmp_gt_u32 s[42:43], 32, v0")
    e("  s_and_b64 vcc, vcc, s[42:43]")
    e("  s_and_saveexec_b64 s[40:41], vcc")
    e("  v_lshlrev_b32 v4, 2, v4")
    e("  v_mul_u32_u24 v4, 3584, v4")
    e("  v_lshl_add_u32 v4, v5, 1, v4")
    e("  s_lshl_b32 s15, s3, 4")
    e(f"  s_add_u32 s15, s15, {WS_GU}")
    for i in range(4):
        e(f"  buffer_store_short v{20+i}, v4, s[20:23], s15 offen offset:{3584*i if 3584*i < 4096 else 0}") if False else None
    for i in range(4):
        e(f"  buffer_store_short v{20+i}, v4, s[20:23], s15 offen")
        if i < 3:
            e("  v_add_u32 v4, 3584, v4")
    lab("t2_done")
    kernel_end()
    e("  s_endpgm")
    kernel_desc(name, 192)

def gen_t3():
    name = "t3_kernel"
    kernel_begin(name)
    LDS_W, LDS_R = 0, 28672
    e("  s_cmp_ge_u32 s2, 64")
    e("  s_cbranch_scc1 t3_done")
    e(f"  s_load_dwordx2 s[4:5], s[0:1], {KA_X}")
    e(f"  s_load_dwordx2 s[6:7], s[0:1], {KA_WS}")
    e(f"  s_load_dwordx2 s[10:11], s[0:1], {KA_OUT}")
    e("  s_mov_b32 s3, s2")
    e("  v_lshrrev_b32 v1, 6, v0")
    e("  v_and_b32 v0, 63, v0")
    e("  v_readfirstlane_b32 s13, v1")
    e("  v_lshrrev_b32 v5, 4, v0")
    e("  s_waitcnt lgkmcnt(0)")
    srd(16, 4, 5, 2 << 20)
    srd(20, 6, 7, 12 << 20)
    srd(28, 10, 11, 2 << 20)
    e("  v_and_b32 v6, 1, v5")
    e("  v_lshlrev_b32 v6, 4, v6")
    e(f"  s_mov_b32 s14, {WS_IDX}")
    e("  buffer_load_dwordx4 v[24:27], v6, s[20:23], s14 offen")
    e("  s_lshl_b32 s15, s3, 4")
    e("  v_lshlrev_b32 v3, 4, v0")
    e("  s_mul_i32 s34, s13, 7168")
    e("  s_mul_i32 s33, s3, 28672")
    e("  s_add_u32 s33, s33, s34")
    e(f"  s_add_u32 s33, s33, {WS_WDB}")
    for i in range(7):
        e(f"  s_add_u32 m0, s34, {LDS_W + 1024*i}")
        e("  s_nop 0")
        e(f"  buffer_load_dwordx4 v3, s[20:23], s33 offen lds")
        e("  s_add_u32 s33, s33, 1024")
    e("  v_and_b32 v4, 7, v0")
    e("  v_mul_u32_u24 v4, 3584, v4")
    e("  v_lshl_add_u32 v4, v5, 4, v4")
    e("  s_mul_i32 s14, s13, 896")
    e(f"  s_add_u32 s14, s14, {WS_GU}")
    FA = 64
    for st in range(14):
        e(f"  buffer_load_dwordx4 {vr(FA+4*st,4)}, v4, s[20:23], s14 offen offset:{64*st}")
    for i in range(4):
        e(f"  v_mov_b32 v{28+i}, 0")
    e("  s_cmp_lg_u32 s13, 0")
    e("  s_cbranch_scc1 t3_noepi")
    e("  s_waitcnt vmcnt(21)")
    e("  v_and_b32 v6, 7, v0")
    e(f"  s_mov_b32 s36, {WS_Y}")
    e(f"  s_mov_b32 s37, {WS_Y + (2<<20)}")
    e(f"  s_mov_b32 s38, {WS_STAT}")
    for i in range(4):
        e(f"  v_and_b32 v{28+i}, 0xffff, v{24+i}")
        e(f"  v_sub_u32 v{28+i}, 0xffff, v{28+i}")
        e(f"  v_lshlrev_b32 v{32+i}, 3, v{28+i}")
        e(f"  v_lshlrev_b32 v{28+i}, 10, v{28+i}")
        e(f"  v_lshl_add_u32 v{28+i}, v6, 1, v{28+i}")
        e(f"  v_add_u32 v{28+i}, s15, v{28+i}")
        e(f"  buffer_load_ushort v{36+i}, v{28+i}, s[20:23], s36 offen")
        e(f"  buffer_load_ushort v{40+i}, v{28+i}, s[20:23], s37 offen")
        e(f"  buffer_load_ushort v{44+i}, v{28+i}, s[16:19], 0 offen")
        e(f"  buffer_load_dwordx2 {vr(48+2*i,2)}, v{32+i}, s[20:23], s38 offen")
    lab("t3_noepi")
    e("  v_and_b32 v7, 15, v0")
    e("  v_lshrrev_b32 v7, 2, v7")
    e("  v_lshl_add_u32 v7, v5, 3, v7")
    e("  v_lshlrev_b32 v7, 4, v7")
    e("  v_and_b32 v60, 1, v0")
    e("  v_lshl_add_u32 v7, v60, 3, v7")
    e("  v_add_u32 v7, s34, v7")
    for i in range(4):
        e(f"  v_mov_b32 v{8+i}, 0")
    stamp(1)
    e("  s_waitcnt vmcnt(0)")
    stamp(2)
    FB = 128
    for st in range(14):
        e(f"  ds_read_b64_tr_b16 {vr(FB+4*st,2)}, v7 offset:{512*st}")
        e(f"  ds_read_b64_tr_b16 {vr(FB+4*st+2,2)}, v7 offset:{512*st+64}")
    e("  s_waitcnt lgkmcnt(0)")
    for st in range(14):
        e(f"  v_mfma_f32_16x16x32_bf16 v[8:11], {vr(FA+4*st,4)}, {vr(FB+4*st,4)}, v[8:11]")
    e("  s_nop 15")
    stamp(3)
    e("  v_lshlrev_b32 v3, 4, v0")
    e("  s_lshl_b32 s33, s13, 10")
    e("  v_add_u32 v3, s33, v3")
    e(f"  ds_write_b128 v3, v[8:11] offset:{LDS_R}")
    e("  s_waitcnt lgkmcnt(0)")
    e("  s_barrier")
    e("  s_cmp_lg_u32 s13, 0")
    e("  s_cbranch_scc1 t3_done")
    e("  v_lshlrev_b32 v3, 4, v0")
    for w in range(1, 4):
        e(f"  ds_read_b128 {vr(12+4*(w-1),4)}, v3 offset:{LDS_R+1024*w}")
    stamp(4)
    e("  v_and_b32 v6, 15, v0")
    e("  v_cmp_gt_u32 vcc, 8, v6")
    e("  v_cmp_gt_u32 s[42:43], 32, v0")
    e("  s_and_b64 vcc, vcc, s[42:43]")
    e("  s_and_saveexec_b64 s[40:41], vcc")
    e("  s_waitcnt lgkmcnt(0)")
    for i in range(4):
        e(f"  v_add_f32 v{8+i}, v{8+i}, v{12+i}")
        e(f"  v_add_f32 v{16+i}, v{16+i}, v{20+i}")
        e(f"  v_add_f32 v{8+i}, v{8+i}, v{16+i}")
        e(f"  v_cvt_pk_bf16_f32 v{8+i}, v{8+i}, v{8+i}")
        e(f"  v_lshlrev_b32 v{8+i}, 16, v{8+i}")
        e(f"  v_and_b32 v60, 0xffff0000, v{24+i}")
        e("  v_ashrrev_i32 v61, 31, v60")
        e("  v_not_b32 v61, v61")
        e("  v_or_b32 v61, 0x80000000, v61")
        e("  v_xor_b32 v60, v60, v61")
        e("  v_and_b32 v60, 0xffff0000, v60")
        e("  v_mul_f32 v60, 0xbfb8aa3b, v60")
        e("  v_exp_f32 v60, v60")
        e("  s_nop 0")
        e("  v_add_f32 v60, 1.0, v60")
        e("  v_rcp_f32 v60, v60")
        e("  s_nop 0")
        e("  v_cvt_pk_bf16_f32 v60, v60, v60")
        e("  v_lshlrev_b32 v60, 16, v60")
        e(f"  v_mul_f32 v{8+i}, v{8+i}, v60")
        e(f"  v_cvt_pk_bf16_f32 v{8+i}, v{8+i}, v{8+i}")
        e(f"  v_lshlrev_b32 v{8+i}, 16, v{8+i}")
        e(f"  v_lshlrev_b32 v{36+i}, 16, v{36+i}")
        e(f"  v_lshlrev_b32 v{40+i}, 16, v{40+i}")
        e(f"  v_lshlrev_b32 v{44+i}, 16, v{44+i}")
        e(f"  v_sub_f32 v60, v{36+i}, v{40+i}")
        e("  v_cvt_pk_bf16_f32 v60, v60, v60")
        e("  v_lshlrev_b32 v60, 16, v60")
        e(f"  v_add_f32 v60, v{44+i}, v60")
        e("  v_cvt_pk_bf16_f32 v60, v60, v60")
        e("  v_lshlrev_b32 v60, 16, v60")
        e(f"  v_sub_f32 v61, v60, v{48+2*i}")
        e("  v_cvt_pk_bf16_f32 v61, v61, v61")
        e("  v_lshlrev_b32 v61, 16, v61")
        e(f"  v_mul_f32 v61, v61, v{49+2*i}")
        e("  v_cvt_pk_bf16_f32 v61, v61, v61")
        e("  v_lshlrev_b32 v61, 16, v61")
        e(f"  v_add_f32 v61, v61, v{8+i}")
        e("  v_cvt_pk_bf16_f32 v61, v61, v61")
        e("  v_lshlrev_b32 v61, 16, v61")
        e("  v_add_f32 v61, v60, v61")
        e("  v_cvt_pk_bf16_f32 v61, v61, v61")
        e(f"  buffer_store_short v61, v{28+i}, s[28:31], 0 offen")
    lab("t3_done")
    kernel_end()
    e("  s_endpgm")
    kernel_desc(name, 192)

SORT8 = [(0,1),(2,3),(4,5),(6,7),(0,2),(1,3),(4,6),(5,7),(1,2),(5,6),(0,4),(1,5),(2,6),(3,7),(2,4),(3,5),(1,2),(3,4),(5,6)]
def top8(keys, free, LDS_C, wreg="s13"):
    K = list(keys); F = list(free)
    for (i, j) in SORT8:
        hi, lo = F.pop(), F.pop()
        e(f"  v_max_u32 v{hi}, v{K[i]}, v{K[j]}")
        e(f"  v_min_u32 v{lo}, v{K[i]}, v{K[j]}")
        F.append(K[i]); F.append(K[j]); K[i] = hi; K[j] = lo
    t, coll = F.pop(), F.pop()
    e(f"  v_mov_b32 v{coll}, 0")
    pend = []
    def fill(n):
        for _ in range(n):
            if pend: e(pend.pop(0))
            else: e("  s_nop 0")
    for rnd in range(8):
        fill(2)
        e(f"  v_max_u32_dpp v{t}, v{K[0]}, v{K[0]} quad_perm:[1,0,3,2] row_mask:0xf bank_mask:0xf")
        fill(2)
        e(f"  v_max_u32_dpp v{t}, v{t}, v{t} quad_perm:[2,3,0,1] row_mask:0xf bank_mask:0xf")
        fill(2)
        e(f"  v_max_u32_dpp v{t}, v{t}, v{t} row_half_mirror row_mask:0xf bank_mask:0xf")
        fill(2)
        e(f"  v_max_u32_dpp v{t}, v{t}, v{t} row_mirror row_mask:0xf bank_mask:0xf")
        while pend: e(pend.pop(0))
        e("  s_nop 0")
        e(f"  v_readlane_b32 s36, v{t}, 0")
        e(f"  v_readlane_b32 s37, v{t}, 16")
        e(f"  v_readlane_b32 s38, v{t}, 32")
        e(f"  v_readlane_b32 s39, v{t}, 48")
        e("  s_max_u32 s36, s36, s37")
        e("  s_max_u32 s38, s38, s39")
        e("  s_max_u32 s36, s36, s38")
        e(f"  v_writelane_b32 v{coll}, s36, {rnd}")
        if rnd < 7:
            e(f"  v_cmp_eq_u32 vcc, s36, v{K[0]}")
            e("  s_nop 1")
            e(f"  v_cndmask_b32 v{K[0]}, v{K[0]}, v{K[1]}, vcc")
            for k in range(1, 7 - rnd):
                pend.append(f"  v_cndmask_b32 v{K[k]}, v{K[k]}, v{K[k+1]}, vcc")
    e(f"  s_lshl_b32 s33, {wreg}, 5")
    e(f"  s_add_u32 s33, s33, {LDS_C}")
    e(f"  v_lshlrev_b32 v{t}, 2, v0")
    e(f"  v_add_u32 v{t}, s33, v{t}")
    e("  v_cmp_gt_u32 vcc, 8, v0")
    e("  s_and_saveexec_b64 s[40:41], vcc")
    e(f"  ds_write_b32 v{t}, v{coll}")
    e("  s_mov_b64 exec, s[40:41]")
    e("  s_waitcnt lgkmcnt(0)")
    e("  s_barrier")
    return t, coll

def gen_t4():
    name = "t4_kernel"
    kernel_begin(name)
    LDS_C, LDS_R, LDS_WD = 0, 256, 8704
    LDS_G, LDS_U, LDS_XS = 8704, 8704 + 8192, 8704 + 16384
    SPIN = 1 << 22
    e("  s_cmp_ge_u32 s2, 240")
    e("  s_cbranch_scc1 t4_done")
    e(f"  s_load_dwordx2 s[4:5], s[0:1], {KA_X}")
    e(f"  s_load_dwordx2 s[6:7], s[0:1], {KA_WS}")
    e(f"  s_load_dwordx4 s[8:11], s[0:1], {KA_WG}")
    e(f"  s_load_dwordx2 s[44:45], s[0:1], {KA_OUT}")
    e("  s_and_b32 s3, s2, 7")
    e("  s_mul_i32 s3, s3, 28")
    e("  s_lshr_b32 s12, s2, 3")
    e("  s_add_u32 s3, s3, s12")
    e("  v_mov_b32 v40, v0")
    e("  v_lshrrev_b32 v1, 6, v0")
    e("  v_and_b32 v0, 63, v0")
    e("  v_readfirstlane_b32 s13, v1")
    e("  s_waitcnt lgkmcnt(0)")
    srd(16, 4, 5, 2 << 20)
    srd(20, 6, 7, 12 << 20)
    srd(24, 8, 9, 512*1792*2)
    srd(28, 10, 11, 512*1792*2)
    srd(48, 44, 45, 2 << 20)
    e("  v_lshlrev_b32 v2, 5, v40")
    e(f"  s_mov_b32 s14, {WS_KEY}")
    e("  buffer_load_dwordx4 v[8:11], v2, s[20:23], s14 offen")
    e("  buffer_load_dwordx4 v[12:15], v2, s[20:23], s14 offen offset:16")
    e("  s_cmp_ge_u32 s2, 224")
    e("  s_cbranch_scc1 t4_dma2")
    e("  s_lshl_b32 s15, s3, 4")
    e("  s_movk_i32 s32, 3584")
    for ii in range(2):
        e(f"  s_lshl_b32 s33, s13, 7")
        e(f"  s_add_u32 s33, s33, {64*ii}")
        e(f"  v_add_u32 v3, s33, v0")
        e(f"  v_mul_lo_u32 v3, v3, s32")
        e(f"  s_lshl_b32 s34, s13, 11")
        e(f"  s_add_u32 m0, s34, {LDS_G + 1024*ii}")
        e("  s_nop 0")
        e(f"  buffer_load_dwordx4 v3, s[24:27], s15 offen lds")
        e(f"  s_add_u32 m0, s34, {LDS_U + 1024*ii}")
        e("  s_nop 0")
        e(f"  buffer_load_dwordx4 v3, s[28:31], s15 offen lds")
    e("  s_waitcnt vmcnt(4)")
    e("  s_branch t4_top")
    lab("t4_dma2")
    e("  s_sub_u32 s46, s2, 224")
    e("  v_lshlrev_b32 v3, 4, v0")
    e("  s_mul_i32 s34, s13, 7168")
    e(f"  s_mul_i32 s33, s46, {4*28672}")
    e("  s_add_u32 s33, s33, s34")
    e(f"  s_add_u32 s33, s33, {WS_WDB}")
    for dsl in range(4):
        for i in range(7):
            e(f"  s_add_u32 m0, s34, {LDS_WD + dsl*28672 + 1024*i}")
            e("  s_nop 0")
            e(f"  buffer_load_dwordx4 v3, s[20:23], s33 offen lds")
            e(f"  s_add_u32 s33, s33, {1024 if i < 6 else 28672 - 6*1024}")
    e("  s_waitcnt vmcnt(28)")
    lab("t4_top")
    stamp(1)
    t, coll = top8(range(8, 16), range(16, 24), LDS_C)
    e("  v_and_b32 v3, 31, v0")
    e("  v_lshlrev_b32 v3, 2, v3")
    e(f"  ds_read_b32 v24, v3 offset:{LDS_C}")
    e("  v_mov_b32 v4, 0")
    for q in range(8):
        e(f"  ds_read_b128 {vr(56+4*q,4)}, v4 offset:{LDS_C+16*q}")
    e("  v_mov_b32 v25, 0")
    e("  s_waitcnt lgkmcnt(0)")
    sp = [60, 62, 64, 66]
    for i in range(32 + 3):
        if i < 32:
            e(f"  v_cmp_gt_u32 s[{sp[i%4]}:{sp[i%4]+1}], v{56+i}, v24")
        if i >= 3:
            j = i - 3
            e(f"  v_addc_co_u32 v25, vcc, 0, v25, s[{sp[j%4]}:{sp[j%4]+1}]")
    e("  v_cmp_gt_u32 vcc, 8, v25")
    e("  v_cmp_gt_u32 s[42:43], 32, v0")
    e("  s_and_b64 vcc, vcc, s[42:43]")
    e("  v_lshlrev_b32 v3, 2, v25")
    e("  s_and_saveexec_b64 s[40:41], vcc")
    e(f"  ds_write_b32 v3, v24 offset:{LDS_C+128}")
    e("  s_mov_b64 exec, s[40:41]")
    e("  s_waitcnt lgkmcnt(0)")
    e("  s_barrier")
    stamp(2)
    e("  s_cmp_ge_u32 s2, 224")
    e("  s_cbranch_scc1 t4_f2")
    e("  v_lshrrev_b32 v4, 5, v40")
    e("  v_and_b32 v5, 31, v40")
    e("  v_lshlrev_b32 v3, 2, v4")
    e(f"  ds_read_b32 v6, v3 offset:{LDS_C+128}")
    e("  s_waitcnt lgkmcnt(0)")
    e("  v_and_b32 v6, 0xffff, v6")
    e("  v_sub_u32 v6, 0xffff, v6")
    e("  v_lshlrev_b32 v7, 10, v6")
    e("  v_lshl_add_u32 v7, v5, 4, v7")
    e(f"  s_mov_b32 s14, {WS_Y}")
    e(f"  s_mov_b32 s15, {WS_Y + (2<<20)}")
    YR, YI, XX = 24, 32, 44
    for j in range(2):
        e(f"  buffer_load_dwordx4 {vr(YR+4*j,4)}, v7, s[20:23], s14 offen offset:{512*j}")
        e(f"  buffer_load_dwordx4 {vr(YI+4*j,4)}, v7, s[20:23], s15 offen offset:{512*j}")
        e(f"  buffer_load_dwordx4 {vr(XX+4*j,4)}, v7, s[16:19], 0 offen offset:{512*j}")
    e("  v_lshlrev_b32 v3, 3, v6")
    e(f"  s_mov_b32 s14, {WS_STAT}")
    e("  buffer_load_dwordx2 v[52:53], v3, s[20:23], s14 offen")
    e("  s_waitcnt vmcnt(0)")
    stamp(3)
    e("  v_sub_f32 v54, 0, v52")
    e("  v_mov_b32 v55, v54")
    e("  v_mov_b32 v52, v53")
    recompute(YR, YI, XX, 8, 54, 52, 64, 80, 56)
    e(f"  v_mul_u32_u24 v3, {XS_STRIDE}, v4")
    e("  v_lshl_add_u32 v3, v5, 4, v3")
    e(f"  ds_write_b128 v3, v[80:83] offset:{LDS_XS}")
    e(f"  ds_write_b128 v3, v[84:87] offset:{LDS_XS+512}")
    e("  s_waitcnt lgkmcnt(0)")
    e("  s_barrier")
    e("  s_cmp_lg_u32 s13, 0")
    e("  s_cbranch_scc1 t4_done")
    e("  v_and_b32 v3, 7, v0")
    e(f"  v_mul_u32_u24 v3, {XS_STRIDE}, v3")
    e("  v_lshrrev_b32 v4, 4, v0")
    e("  v_lshl_add_u32 v3, v4, 4, v3")
    e("  v_and_b32 v5, 15, v0")
    e("  v_lshrrev_b32 v5, 2, v5")
    e("  v_lshl_add_u32 v5, v4, 3, v5")
    e("  v_lshlrev_b32 v5, 4, v5")
    e("  v_and_b32 v6, 1, v0")
    e("  v_lshl_add_u32 v5, v6, 3, v5")
    e("  v_and_b32 v6, 2, v0")
    e("  v_lshl_add_u32 v5, v6, 12, v5")
    for i in range(4):
        e(f"  v_mov_b32 v{8+i}, 0")
    FA, FB = 64, 128
    for st in range(16):
        e(f"  ds_read_b128 {vr(FA+4*st,4)}, v3 offset:{LDS_XS + 64*st}")
        e(f"  ds_read_b64_tr_b16 {vr(FB+4*st,2)}, v5 offset:{LDS_G+512*st}")
        e(f"  ds_read_b64_tr_b16 {vr(FB+4*st+2,2)}, v5 offset:{LDS_G+512*st+64}")
        if st % 4 == 3:
            e("  s_waitcnt lgkmcnt(0)")
            for s2 in range(st-3, st+1):
                e(f"  v_mfma_f32_16x16x32_bf16 v[8:11], {vr(FA+4*s2,4)}, {vr(FB+4*s2,4)}, v[8:11]")
    e("  s_nop 15")
    for i in range(4):
        e(f"  v_cvt_pk_bf16_f32 v{8+i}, v{8+i}, v{8+i}")
        e(f"  v_lshlrev_b32 v{8+i}, 16, v{8+i}")
    e("  s_nop 1")
    for i in range(4):
        e(f"  v_mov_b32_dpp v{12+i}, v{8+i} row_ror:8 row_mask:0xf bank_mask:0xf")
    for i in range(4):
        e(f"  v_mul_f32 v16, 0xbfb8aa3b, v{8+i}")
        e("  v_exp_f32 v16, v16")
        e("  s_nop 0")
        e("  v_add_f32 v16, 1.0, v16")
        e("  v_rcp_f32 v16, v16")
        e("  s_nop 0")
        e(f"  v_mul_f32 v16, v{8+i}, v16")
        e("  v_cvt_pk_bf16_f32 v16, v16, v16")
        e("  v_lshlrev_b32 v16, 16, v16")
        e(f"  v_mul_f32 v16, v16, v{12+i}")
        e(f"  v_cvt_pk_bf16_f32 v{20+i}, v16, v16")
    e("  s_nop 1")
    for i in range(4):
        e(f"  v_mov_b32_dpp v{24+i}, v{20+i} quad_perm:[1,0,3,2] row_mask:0xf bank_mask:0xf")
    for i in range(4):
        e(f"  v_and_b32 v{20+i}, 0xffff, v{20+i}")
        e(f"  v_and_b32 v{24+i}, 0xffff0000, v{24+i}")
        e(f"  v_or_b32 v{20+i}, v{20+i}, v{24+i}")
    for i in range(4):
        e(f"  v_min_u32 v{20+i}, 0xfffeffff, v{20+i}")
    stamp(4)
    e("  v_and_b32 v5, 15, v0")
    e("  v_lshlrev_b32 v4, 6, v4")
    e("  v_lshl_add_u32 v4, v5, 1, v4")
    e("  v_lshlrev_b32 v7, 4, v0")
    e("  v_and_b32 v6, 9, v0")
    e("  v_cmp_eq_u32 vcc, 0, v6")
    e("  v_cmp_gt_u32 s[42:43], 32, v0")
    e("  s_and_b64 vcc, vcc, s[42:43]")
    e("  s_and_saveexec_b64 s[40:41], vcc")
    for i in range(4):
        e(f"  ds_write_b32 v4, v{20+i} offset:{LDS_R+16*i}")
    e("  s_mov_b64 exec, 0xff")
    e("  s_waitcnt lgkmcnt(0)")
    e(f"  ds_read_b128 v[24:27], v7 offset:{LDS_R}")
    e("  s_lshl_b32 s15, s3, 7")
    e(f"  s_add_u32 s15, s15, {WS_GU}")
    e("  s_waitcnt lgkmcnt(0)")
    e("  buffer_store_dwordx4 v[24:27], v7, s[20:23], s15 offen sc1")
    e("  s_branch t4_done")
    lab("t4_f2")
    e("  v_lshrrev_b32 v5, 4, v0")
    e("  v_and_b32 v6, 1, v5")
    e("  v_lshlrev_b32 v6, 4, v6")
    e(f"  ds_read_b128 v[24:27], v6 offset:{LDS_C+128}")
    e("  v_and_b32 v6, 15, v0")
    e("  s_lshl_b32 s15, s46, 6")
    e("  s_waitcnt lgkmcnt(0)")
    for i in range(4):
        e(f"  v_and_b32 v{28+i}, 0xffff, v{24+i}")
        e(f"  v_sub_u32 v{28+i}, 0xffff, v{28+i}")
        e(f"  v_lshlrev_b32 v{32+i}, 3, v{28+i}")
        e(f"  v_lshlrev_b32 v{28+i}, 10, v{28+i}")
        e(f"  v_lshl_add_u32 v{28+i}, v6, 1, v{28+i}")
        e(f"  v_add_u32 v{28+i}, s15, v{28+i}")
    e("  s_cmp_lg_u32 s13, 0")
    e("  s_cbranch_scc1 t4_noepi")
    e(f"  s_mov_b32 s36, {WS_Y}")
    e(f"  s_mov_b32 s37, {WS_Y + (2<<20)}")
    e(f"  s_mov_b32 s38, {WS_STAT}")
    for a in range(2):
        for i in range(4):
            e(f"  buffer_load_ushort v{192+12*a+i}, v{28+i}, s[20:23], s36 offen offset:{32*a}")
            e(f"  buffer_load_ushort v{196+12*a+i}, v{28+i}, s[20:23], s37 offen offset:{32*a}")
            e(f"  buffer_load_ushort v{200+12*a+i}, v{28+i}, s[16:19], 0 offen offset:{32*a}")
    for i in range(4):
        e(f"  buffer_load_dwordx2 {vr(48+2*i,2)}, v{32+i}, s[20:23], s38 offen")
    lab("t4_noepi")
    e("  v_lshrrev_b32 v7, 2, v6")
    e("  v_lshl_add_u32 v7, v5, 3, v7")
    e("  v_lshlrev_b32 v7, 4, v7")
    e("  v_and_b32 v60, 1, v0")
    e("  v_lshl_add_u32 v7, v60, 3, v7")
    e("  v_and_b32 v60, 2, v0")
    e("  v_mul_u32_u24 v60, 14336, v60")
    e("  v_add_u32 v7, v60, v7")
    e("  v_add_u32 v7, s34, v7")
    e(f"  v_add_u32 v61, {2*28672}, v7")
    e("  s_waitcnt vmcnt(0)")
    FB0, FB1 = 72, 128
    for st in range(14):
        e(f"  ds_read_b64_tr_b16 {vr(FB0+4*st,2)}, v7 offset:{LDS_WD+512*st}")
        e(f"  ds_read_b64_tr_b16 {vr(FB0+4*st+2,2)}, v7 offset:{LDS_WD+512*st+64}")
        e(f"  ds_read_b64_tr_b16 {vr(FB1+4*st,2)}, v61 offset:{LDS_WD+512*st}")
        e(f"  ds_read_b64_tr_b16 {vr(FB1+4*st+2,2)}, v61 offset:{LDS_WD+512*st+64}")
        if st % 3 == 2: e("  s_waitcnt lgkmcnt(0)")
    for i in range(8):
        e(f"  v_mov_b32 v{8+i}, 0")
    for i in range(4):
        e(f"  v_and_b32 v60, 0xffff0000, v{24+i}")
        e("  v_ashrrev_i32 v62, 31, v60")
        e("  v_not_b32 v62, v62")
        e("  v_or_b32 v62, 0x80000000, v62")
        e("  v_xor_b32 v60, v60, v62")
        e("  v_and_b32 v60, 0xffff0000, v60")
        e("  v_mul_f32 v60, 0xbfb8aa3b, v60")
        e("  v_exp_f32 v60, v60")
        e("  s_nop 0")
        e("  v_add_f32 v60, 1.0, v60")
        e("  v_rcp_f32 v60, v60")
        e("  s_nop 0")
        e("  v_cvt_pk_bf16_f32 v60, v60, v60")
        e(f"  v_lshlrev_b32 v{24+i}, 16, v60")
    for a in range(2):
        for i in range(4):
            r0, r1, r2 = 192+12*a+i, 196+12*a+i, 200+12*a+i
            e(f"  v_lshlrev_b32 v{r0}, 16, v{r0}")
            e(f"  v_lshlrev_b32 v{r1}, 16, v{r1}")
            e(f"  v_lshlrev_b32 v{r2}, 16, v{r2}")
            e(f"  v_sub_f32 v60, v{r0}, v{r1}")
            e("  v_cvt_pk_bf16_f32 v60, v60, v60")
            e("  v_lshlrev_b32 v60, 16, v60")
            e(f"  v_add_f32 v60, v{r2}, v60")
            e("  v_cvt_pk_bf16_f32 v60, v60, v60")
            e(f"  v_lshlrev_b32 v{r0}, 16, v60")
            e(f"  v_sub_f32 v62, v{r0}, v{48+2*i}")
            e("  v_cvt_pk_bf16_f32 v62, v62, v62")
            e("  v_lshlrev_b32 v62, 16, v62")
            e(f"  v_mul_f32 v62, v62, v{49+2*i}")
            e("  v_cvt_pk_bf16_f32 v62, v62, v62")
            e(f"  v_lshlrev_b32 v{r1}, 16, v62")
    stamp(3)
    e("  v_and_b32 v4, 7, v0")
    e("  v_lshlrev_b32 v4, 4, v4")
    e("  v_lshl_add_u32 v4, v5, 7, v4")
    e("  s_mul_i32 s14, s13, 7168")
    e(f"  s_add_u32 s14, s14, {WS_GU}")
    regs = [216+4*i for i in range(9)] + [36, 40, 44, 56, 64]
    e("  v_add_u32 v62, 4096, v4")
    e("  s_mov_b32 s53, 0")
    lab("t4_poll")
    for st in range(14):
        e(f"  buffer_load_dwordx4 {vr(regs[st],4)}, v4, s[20:23], s14 offen offset:{512*st if st < 8 else 0} sc1") if st < 8 else e(f"  buffer_load_dwordx4 {vr(regs[st],4)}, v62, s[20:23], s14 offen offset:{512*(st-8)} sc1")
    e("  v_mov_b32 v3, 0")
    for st in range(14):
        e(f"  s_waitcnt vmcnt({13-st})")
        e(f"  v_max3_u32 v3, v3, v{regs[st]}, v{regs[st]+1}")
        e(f"  v_max3_u32 v3, v3, v{regs[st]+2}, v{regs[st]+3}")
    e("  v_cmp_eq_u32 s[54:55], -1, v3")
    e("  s_nop 3")
    e("  s_cmp_eq_u64 s[54:55], 0")
    e("  s_cbranch_scc1 t4_poll_ok")
    e("  s_add_u32 s53, s53, 1")
    e(f"  s_cmp_gt_u32 s53, {SPIN}")
    e("  s_cbranch_scc1 t4_poll_ok")
    e("  s_branch t4_poll")
    lab("t4_poll_ok")
    stamp(5)
    e("  s_waitcnt lgkmcnt(0)")
    for st in range(14):
        e(f"  v_mfma_f32_16x16x32_bf16 v[8:11], {vr(regs[st],4)}, {vr(FB0+4*st,4)}, v[8:11]")
        e(f"  v_mfma_f32_16x16x32_bf16 v[12:15], {vr(regs[st],4)}, {vr(FB1+4*st,4)}, v[12:15]")
    e("  s_nop 15")
    stamp(6)
    e("  v_lshlrev_b32 v3, 4, v0")
    e("  s_lshl_b32 s33, s13, 11")
    e("  v_add_u32 v3, s33, v3")
    e(f"  ds_write_b128 v3, v[8:11] offset:{LDS_R}")
    e(f"  ds_write_b128 v3, v[12:15] offset:{LDS_R+1024}")
    e("  s_waitcnt lgkmcnt(0)")
    e("  s_barrier")
    e("  s_cmp_lg_u32 s13, 0")
    e("  s_cbranch_scc1 t4_done")
    e("  v_lshlrev_b32 v3, 4, v0")
    for w in range(1, 4):
        for a in range(2):
            e(f"  ds_read_b128 {vr(72+8*(w-1)+4*a,4)}, v3 offset:{LDS_R+2048*w+1024*a}")
    e("  v_cmp_gt_u32 vcc, 32, v0")
    e("  s_and_saveexec_b64 s[40:41], vcc")
    e("  s_waitcnt lgkmcnt(0)")
    for a in range(2):
        for i in range(4):
            y = 8 + 4*a + i
            e(f"  v_add_f32 v{y}, v{y}, v{72+4*a+i}")
            e(f"  v_add_f32 v60, v{80+4*a+i}, v{88+4*a+i}")
            e(f"  v_add_f32 v{y}, v{y}, v60")
            e(f"  v_cvt_pk_bf16_f32 v{y}, v{y}, v{y}")
            e(f"  v_lshlrev_b32 v{y}, 16, v{y}")
            e(f"  v_mul_f32 v{y}, v{y}, v{24+i}")
            e(f"  v_cvt_pk_bf16_f32 v{y}, v{y}, v{y}")
            e(f"  v_lshlrev_b32 v{y}, 16, v{y}")
            e(f"  v_add_f32 v61, v{196+12*a+i}, v{y}")
            e("  v_cvt_pk_bf16_f32 v61, v61, v61")
            e("  v_lshlrev_b32 v61, 16, v61")
            e(f"  v_add_f32 v61, v{192+12*a+i}, v61")
            e("  v_cvt_pk_bf16_f32 v61, v61, v61")
            e(f"  buffer_store_short v61, v{28+i}, s[48:51], 0 offen offset:{32*a}")
    lab("t4_done")
    kernel_end()
    e("  s_endpgm")
    kernel_desc(name, 252)

ROW_O = 48
def rowmac(first, O=148, sc1=False):
    YR, YI, XX, WR, H, T, D = 16, 32, 48, 64, 80, 112, 116
    if sc1: O = ROW_O
    SC = " sc1" if sc1 else ""
    e("  v_lshlrev_b32 v3, 10, v1")
    e("  v_lshl_add_u32 v3, v2, 4, v3")
    e(f"  s_mov_b32 s52, {WS_Y}")
    e(f"  s_mov_b32 s53, {WS_Y + (2<<20)}")
    for j in range(4):
        e(f"  buffer_load_dwordx4 {vr(YR+4*j,4)}, v3, s[24:27], s52 offen offset:{256*j}{SC}")
        e(f"  buffer_load_dwordx4 {vr(YI+4*j,4)}, v3, s[24:27], s53 offen offset:{256*j}{SC}")
        e(f"  buffer_load_dwordx4 {vr(XX+4*j,4)}, v3, s[20:23], 0 offen offset:{256*j}")
    nextra = 0
    if first:
        e("  v_lshlrev_b32 v4, 4, v2")
        for j in range(4):
            e(f"  buffer_load_dwordx4 {vr(WR+4*j,4)}, v4, s[28:31], 0 offen offset:{256*j}")
        nextra = 4
    e("  v_mov_b32 v14, 0")
    e("  v_mov_b32 v15, 0")
    for j in range(4):
        e(f"  s_waitcnt vmcnt({nextra + 3*(3-j)})")
        for q in range(4):
            i = 4*j + q
            e(f"  v_lshlrev_b32 v{T}, 16, v{YR+i}")
            e(f"  v_and_b32 v{T+1}, 0xffff0000, v{YR+i}")
            e(f"  v_lshlrev_b32 v{T+2}, 16, v{YI+i}")
            e(f"  v_and_b32 v{T+3}, 0xffff0000, v{YI+i}")
            e(f"  v_pk_add_f32 {vr(T,2)}, {vr(T,2)}, {vr(T+2,2)} neg_lo:[0,1] neg_hi:[0,1]")
            e(f"  v_cvt_pk_bf16_f32 v{T}, v{T}, v{T+1}")
            e(f"  v_and_b32 v{T+1}, 0xffff0000, v{T}")
            e(f"  v_lshlrev_b32 v{T}, 16, v{T}")
            e(f"  v_lshlrev_b32 v{T+2}, 16, v{XX+i}")
            e(f"  v_and_b32 v{T+3}, 0xffff0000, v{XX+i}")
            e(f"  v_pk_add_f32 {vr(T,2)}, {vr(T,2)}, {vr(T+2,2)}")
            e(f"  v_cvt_pk_bf16_f32 v{YI+i}, v{T}, v{T+1}")
            e(f"  v_lshlrev_b32 v{H+2*i}, 16, v{YI+i}")
            e(f"  v_and_b32 v{H+2*i+1}, 0xffff0000, v{YI+i}")
            e(f"  v_pk_add_f32 v[14:15], v[14:15], {vr(H+2*i,2)}")
    e("  v_add_f32 v5, v14, v15")
    reduce16(5)
    e("  v_mul_f32 v5, 0x3b000000, v5")
    e("  v_cvt_pk_bf16_f32 v6, v5, v5")
    e("  v_lshlrev_b32 v6, 16, v6")
    e("  v_sub_f32 v8, 0, v6")
    e("  v_mov_b32 v9, v8")
    e("  v_mov_b32 v10, 0")
    e("  v_mov_b32 v11, 0")
    for i in range(16):
        e(f"  v_pk_add_f32 {vr(D+2*i,2)}, {vr(H+2*i,2)}, v[8:9]")
        e(f"  v_pk_fma_f32 v[10:11], {vr(D+2*i,2)}, {vr(D+2*i,2)}, v[10:11]")
    e("  v_add_f32 v10, v10, v11")
    reduce16(10)
    e("  v_sub_f32 v11, v5, v6")
    e("  v_mul_f32 v11, v11, v11")
    e("  v_mul_f32 v10, 0x3b000000, v10")
    e("  v_sub_f32 v10, v10, v11")
    e("  v_max_f32 v10, 0, v10")
    e("  v_cvt_pk_bf16_f32 v10, v10, v10")
    e("  v_lshlrev_b32 v10, 16, v10")
    e("  v_add_f32 v10, 0x3727c5ac, v10")
    e("  v_cvt_pk_bf16_f32 v10, v10, v10")
    e("  v_lshlrev_b32 v10, 16, v10")
    e("  v_sqrt_f32 v10, v10")
    e("  s_nop 0")
    e("  v_cvt_pk_bf16_f32 v10, v10, v10")
    e("  v_lshlrev_b32 v10, 16, v10")
    e("  v_rcp_f32 v10, v10")
    e("  s_nop 0")
    e("  v_mov_b32 v11, v10")
    if first:
        e("  v_mov_b32 v12, 0")
        e("  s_waitcnt vmcnt(0)")
    for i in range(16):
        e(f"  v_cvt_pk_bf16_f32 v{T}, v{D+2*i}, v{D+2*i+1}")
        e(f"  v_lshlrev_b32 v{D+2*i}, 16, v{T}")
        e(f"  v_and_b32 v{D+2*i+1}, 0xffff0000, v{T}")
        e(f"  v_pk_mul_f32 {vr(D+2*i,2)}, {vr(D+2*i,2)}, v[10:11]")
        e(f"  v_cvt_pk_bf16_f32 v{YR+i}, v{D+2*i}, v{D+2*i+1}")
        if first:
            e(f"  v_dot2_f32_bf16 v12, v{YR+i}, v{WR+i}, v12")
            e(f"  v_lshlrev_b32 v{D+2*i}, 16, v{YR+i}")
            e(f"  v_and_b32 v{D+2*i+1}, 0xffff0000, v{YR+i}")
            e(f"  v_pk_add_f32 {vr(D+2*i,2)}, {vr(D+2*i,2)}, {vr(H+2*i,2)}")
            e(f"  v_cvt_pk_bf16_f32 v{O+i}, v{D+2*i}, v{D+2*i+1}")
    if first:
        e("  s_nop 3")
        reduce16(12)
        e("  v_cvt_pk_bf16_f32 v12, v12, v12")
        e("  v_lshlrev_b32 v12, 16, v12")
        e("  v_ashrrev_i32 v13, 31, v12")
        e("  v_or_b32 v13, 0x80000000, v13")
        e("  v_xor_b32 v12, v12, v13")
        e("  v_and_b32 v12, 0xffff0000, v12")
        e("  v_sub_u32 v13, 0xffff, v1")
        e("  v_or_b32 v12, v12, v13")

def gen_tf():
    name = "tf_kernel"
    kernel_begin(name)
    LDS_G, LDS_U, LDS_WD = 0, 8192, 16384
    LDS_XS = 45056
    LDS_HS = LDS_XS + 8 * XS_STRIDE
    LDS_C = LDS_HS + 8192
    LDS_R = LDS_C + 256
    SPIN = 1 << 22
    e("  s_cmp_ge_u32 s2, 256")
    e("  s_cbranch_scc1 tf_done")
    e(f"  s_load_dwordx2 s[4:5], s[0:1], {KA_X}")
    e(f"  s_load_dwordx2 s[6:7], s[0:1], {KA_WS}")
    e(f"  s_load_dwordx8 s[8:15], s[0:1], {KA_WR}")
    e(f"  s_load_dwordx2 s[16:17], s[0:1], {KA_OUT}")
    e("  s_and_b32 s3, s2, 7")
    e("  s_mul_i32 s49, s3, 28")
    e("  s_lshr_b32 s50, s2, 3")
    e("  s_add_u32 s49, s49, s50")
    e("  s_sub_u32 s50, s50, 24")
    e("  s_lshl_b32 s51, s3, 3")
    e("  s_add_u32 s50, s50, s51")
    e("  v_mov_b32 v180, v0")
    e("  v_lshrrev_b32 v1, 6, v0")
    e("  v_and_b32 v0, 63, v0")
    e("  v_readfirstlane_b32 s48, v1")
    e("  s_waitcnt lgkmcnt(0)")
    srd(20, 4, 5, 2 << 20)
    srd(24, 6, 7, 9 << 20)
    srd(28, 8, 9, 1024)
    srd(32, 10, 11, 512*1792*2)
    srd(36, 12, 13, 512*1792*2)
    srd(40, 14, 15, 1792*512*2)
    srd(44, 16, 17, 2 << 20)
    e("  s_cmp_lt_u32 s48, 2")
    e("  s_cbranch_scc1 tf_p1")
    e("  s_cmp_ge_u32 s2, 224")
    e("  s_cbranch_scc1 tf_nof1")
    e("  s_movk_i32 s52, 3584")
    e("  v_mul_lo_u32 v3, v0, s52")
    e("  s_lshl_b32 s53, s49, 4")
    e("  s_cmp_eq_u32 s48, 2")
    e("  s_cbranch_scc0 tf_dma_u")
    for i in range(8):
        e(f"  s_mov_b32 m0, {LDS_G + 1024*i}")
        e("  s_nop 0")
        e("  buffer_load_dwordx4 v3, s[32:35], s53 offen lds")
        e(f"  s_add_u32 s53, s53, {64*3584}")
    e("  s_branch tf_nof1")
    lab("tf_dma_u")
    for i in range(8):
        e(f"  s_mov_b32 m0, {LDS_U + 1024*i}")
        e("  s_nop 0")
        e("  buffer_load_dwordx4 v3, s[36:39], s53 offen lds")
        e(f"  s_add_u32 s53, s53, {64*3584}")
    lab("tf_nof1")
    e("  s_cmp_lt_u32 s2, 192")
    e("  s_cbranch_scc1 tf_poll1")
    e("  v_lshlrev_b32 v3, 10, v0")
    e("  s_sub_u32 s52, s48, 2")
    e(f"  s_mul_i32 s53, s52, {896*1024}")
    e("  s_lshl_b32 s54, s50, 4")
    e("  s_add_u32 s53, s53, s54")
    e(f"  s_mul_i32 s54, s52, {896*16}")
    for i in range(14):
        e(f"  s_add_u32 m0, s54, {LDS_WD + 1024*i}")
        e("  s_nop 0")
        e("  buffer_load_dwordx4 v3, s[40:43], s53 offen lds")
        e("  s_add_u32 s53, s53, 0x10000")
    e("  s_branch tf_poll1")
    lab("tf_p1")
    e("  v_lshrrev_b32 v1, 4, v180")
    e("  v_and_b32 v2, 15, v0")
    e("  s_lshl_b32 s52, s2, 3")
    e("  v_add_u32 v1, s52, v1")
    e("  v_mov_b32 v181, v1")
    rowmac(True)
    e("  v_cmp_eq_u32 vcc, 0, v2")
    e("  s_and_saveexec_b64 s[56:57], vcc")
    e("  v_lshlrev_b32 v13, 2, v1")
    e(f"  s_mov_b32 s52, {WS_KEY}")
    e("  buffer_store_dword v12, v13, s[24:27], s52 offen sc1")
    e("  s_mov_b64 exec, s[56:57]")
    stamp(1)
    lab("tf_poll1")
    K = 164
    e("  v_lshlrev_b32 v172, 5, v180")
    e(f"  s_mov_b32 s52, {WS_KEY}")
    e("  s_mov_b32 s60, 0")
    lab("tf_poll1_loop")
    e(f"  buffer_load_dwordx4 {vr(K,4)}, v172, s[24:27], s52 offen sc1")
    e(f"  buffer_load_dwordx4 {vr(K+4,4)}, v172, s[24:27], s52 offen offset:16 sc1")
    e("  s_waitcnt vmcnt(0)")
    e(f"  v_min3_u32 v173, v{K}, v{K+1}, v{K+2}")
    e(f"  v_min3_u32 v174, v{K+3}, v{K+4}, v{K+5}")
    e(f"  v_min3_u32 v173, v173, v{K+6}, v{K+7}")
    e("  v_min_u32 v173, v173, v174")
    e("  v_cmp_eq_u32 s[62:63], 0, v173")
    e("  s_nop 3")
    e("  s_cmp_eq_u64 s[62:63], 0")
    e("  s_cbranch_scc1 tf_poll1_ok")
    e("  s_add_u32 s60, s60, 1")
    e(f"  s_cmp_gt_u32 s60, {SPIN}")
    e("  s_cbranch_scc1 tf_poll1_ok")
    e("  s_sleep 1")
    e("  s_branch tf_poll1_loop")
    lab("tf_poll1_ok")
    stamp(2)
    e("  v_mov_b32 v176, 0")
    for rnd in range(8):
        e(f"  v_max3_u32 v173, v{K}, v{K+1}, v{K+2}")
        e(f"  v_max3_u32 v174, v{K+3}, v{K+4}, v{K+5}")
        e(f"  v_max3_u32 v173, v173, v{K+6}, v{K+7}")
        e("  v_max_u32 v173, v173, v174")
        e("  s_nop 1")
        e("  v_max_u32_dpp v173, v173, v173 quad_perm:[1,0,3,2] row_mask:0xf bank_mask:0xf")
        e("  s_nop 1")
        e("  v_max_u32_dpp v173, v173, v173 quad_perm:[2,3,0,1] row_mask:0xf bank_mask:0xf")
        e("  s_nop 1")
        e("  v_max_u32_dpp v173, v173, v173 row_half_mirror row_mask:0xf bank_mask:0xf")
        e("  s_nop 1")
        e("  v_max_u32_dpp v173, v173, v173 row_mirror row_mask:0xf bank_mask:0xf")
        e("  s_nop 1")
        e("  v_readlane_b32 s64, v173, 0")
        e("  v_readlane_b32 s65, v173, 16")
        e("  v_readlane_b32 s66, v173, 32")
        e("  v_readlane_b32 s67, v173, 48")
        e("  s_max_u32 s64, s64, s65")
        e("  s_max_u32 s66, s66, s67")
        e("  s_max_u32 s64, s64, s66")
        e(f"  v_writelane_b32 v176, s64, {rnd}")
        if rnd < 7:
            for k in range(8):
                e(f"  v_cmp_ne_u32 vcc, s64, v{K+k}")
                e("  s_nop 1")
                e(f"  v_cndmask_b32 v{K+k}, 0, v{K+k}, vcc")
    e("  s_lshl_b32 s52, s48, 5")
    e(f"  s_add_u32 s52, s52, {LDS_C}")
    e("  v_lshlrev_b32 v172, 2, v0")
    e("  v_add_u32 v172, s52, v172")
    e("  v_cmp_gt_u32 vcc, 8, v0")
    e("  s_and_saveexec_b64 s[56:57], vcc")
    e("  ds_write_b32 v172, v176")
    e("  s_mov_b64 exec, s[56:57]")
    e("  s_waitcnt lgkmcnt(0)")
    e("  s_barrier")
    e("  v_and_b32 v172, 31, v0")
    e("  v_lshlrev_b32 v172, 2, v172")
    e(f"  ds_read_b32 v177, v172 offset:{LDS_C}")
    e("  v_mov_b32 v178, 0")
    e("  s_waitcnt lgkmcnt(0)")
    for i in range(32):
        e(f"  v_readlane_b32 s64, v177, {i}")
        e("  s_nop 1")
        e("  v_cmp_gt_u32 vcc, s64, v177")
        e("  s_nop 1")
        e("  v_addc_co_u32 v178, vcc, 0, v178, vcc")
    e("  v_cmp_gt_u32 vcc, 8, v178")
    e("  v_cmp_gt_u32 s[58:59], 32, v0")
    e("  s_and_b64 vcc, vcc, s[58:59]")
    e("  v_lshlrev_b32 v172, 2, v178")
    e("  s_and_saveexec_b64 s[56:57], vcc")
    e(f"  ds_write_b32 v172, v177 offset:{LDS_C+128}")
    e("  s_mov_b64 exec, s[56:57]")
    e("  s_waitcnt lgkmcnt(0)")
    e("  s_barrier")
    stamp(3)
    e("  s_cmp_lt_u32 s48, 2")
    e("  s_cbranch_scc1 tf_p2")
    e("  s_waitcnt vmcnt(0)")
    e("  s_branch tf_p2_end")
    lab("tf_p2")
    e("  v_mov_b32 v172, 0")
    e(f"  ds_read_b128 {vr(K,4)}, v172 offset:{LDS_C+128}")
    e(f"  ds_read_b128 {vr(K+4,4)}, v172 offset:{LDS_C+144}")
    e("  v_lshrrev_b32 v173, 4, v180")
    e("  v_lshlrev_b32 v173, 2, v173")
    e(f"  ds_read_b32 v174, v173 offset:{LDS_C+128}")
    e("  v_sub_u32 v175, 0xffff, v181")
    e("  s_waitcnt lgkmcnt(0)")
    e("  s_mov_b64 s[58:59], exec")
    for k in range(8):
        e(f"  v_and_b32 v{K+k}, 0xffff, v{K+k}")
        e(f"  v_cmp_ne_u32 vcc, v{K+k}, v175")
        e("  s_and_b64 s[58:59], s[58:59], vcc")
    e("  v_lshlrev_b32 v3, 10, v181")
    e("  v_lshl_add_u32 v3, v2, 4, v3")
    e("  s_and_saveexec_b64 s[56:57], s[58:59]")
    e("  s_cbranch_execz tf_nostore")
    for j in range(4):
        e(f"  buffer_store_dwordx4 {vr(148+4*j,4)}, v3, s[44:47], 0 offen offset:{256*j}")
    lab("tf_nostore")
    e("  s_mov_b64 exec, s[56:57]")
    e("  v_and_b32 v1, 0xffff, v174")
    e("  v_sub_u32 v1, 0xffff, v1")
    rowmac(False)
    e("  v_lshrrev_b32 v173, 4, v180")
    e(f"  v_mul_u32_u24 v4, {XS_STRIDE}, v173")
    e("  v_lshl_add_u32 v4, v2, 4, v4")
    e("  v_lshlrev_b32 v5, 10, v173")
    e("  v_lshl_add_u32 v5, v2, 4, v5")
    for j in range(4):
        e(f"  ds_write_b128 v4, {vr(16+4*j,4)} offset:{LDS_XS+256*j}")
        e(f"  ds_write_b128 v5, {vr(32+4*j,4)} offset:{LDS_HS+256*j}")
    e("  s_waitcnt lgkmcnt(0)")
    lab("tf_p2_end")
    e("  s_barrier")
    stamp(4)
    e("  s_cmp_lg_u32 s48, 0")
    e("  s_cbranch_scc1 tf_f2")
    e("  s_cmp_ge_u32 s2, 224")
    e("  s_cbranch_scc1 tf_f2")
    e("  v_and_b32 v3, 7, v0")
    e(f"  v_mul_u32_u24 v3, {XS_STRIDE}, v3")
    e("  v_lshrrev_b32 v4, 4, v0")
    e("  v_lshl_add_u32 v3, v4, 4, v3")
    e("  v_and_b32 v5, 15, v0")
    e("  v_lshrrev_b32 v5, 2, v5")
    e("  v_lshl_add_u32 v5, v4, 3, v5")
    e("  v_lshlrev_b32 v5, 4, v5")
    e("  v_and_b32 v6, 1, v0")
    e("  v_lshl_add_u32 v5, v6, 3, v5")
    e("  v_and_b32 v6, 2, v0")
    e("  v_lshl_add_u32 v5, v6, 12, v5")
    for i in range(4):
        e(f"  v_mov_b32 v{8+i}, 0")
    FA, FB = 16, 80
    for st in range(16):
        e(f"  ds_read_b128 {vr(FA+4*st,4)}, v3 offset:{LDS_XS + 64*st}")
        e(f"  ds_read_b64_tr_b16 {vr(FB+4*st,2)}, v5 offset:{512*st}")
        e(f"  ds_read_b64_tr_b16 {vr(FB+4*st+2,2)}, v5 offset:{512*st+64}")
        if st % 4 == 3:
            e("  s_waitcnt lgkmcnt(0)")
            for s2 in range(st-3, st+1):
                e(f"  v_mfma_f32_16x16x32_bf16 v[8:11], {vr(FA+4*s2,4)}, {vr(FB+4*s2,4)}, v[8:11]")
    e("  s_nop 15")
    for i in range(4):
        e(f"  v_cvt_pk_bf16_f32 v{8+i}, v{8+i}, v{8+i}")
        e(f"  v_lshlrev_b32 v{8+i}, 16, v{8+i}")
    e("  s_nop 1")
    for i in range(4):
        e(f"  v_mov_b32_dpp v{12+i}, v{8+i} row_ror:8 row_mask:0xf bank_mask:0xf")
    for i in range(4):
        e(f"  v_mul_f32 v16, 0xbfb8aa3b, v{8+i}")
        e("  v_exp_f32 v16, v16")
        e("  s_nop 0")
        e("  v_add_f32 v16, 1.0, v16")
        e("  v_rcp_f32 v16, v16")
        e("  s_nop 0")
        e(f"  v_mul_f32 v16, v{8+i}, v16")
        e("  v_cvt_pk_bf16_f32 v16, v16, v16")
        e("  v_lshlrev_b32 v16, 16, v16")
        e(f"  v_mul_f32 v16, v16, v{12+i}")
        e(f"  v_cvt_pk_bf16_f32 v{20+i}, v16, v16")
    e("  s_nop 1")
    for i in range(4):
        e(f"  v_mov_b32_dpp v{24+i}, v{20+i} quad_perm:[1,0,3,2] row_mask:0xf bank_mask:0xf")
    for i in range(4):
        e(f"  v_and_b32 v{20+i}, 0xffff, v{20+i}")
        e(f"  v_and_b32 v{24+i}, 0xffff0000, v{24+i}")
        e(f"  v_or_b32 v{20+i}, v{20+i}, v{24+i}")
    e("  v_and_b32 v5, 15, v0")
    e("  v_and_b32 v6, 9, v0")
    e("  v_cmp_eq_u32 vcc, 0, v6")
    e("  v_cmp_gt_u32 s[58:59], 32, v0")
    e("  s_and_b64 vcc, vcc, s[58:59]")
    e("  s_and_saveexec_b64 s[56:57], vcc")
    e("  v_lshlrev_b32 v4, 2, v4")
    e("  v_mul_u32_u24 v4, 3584, v4")
    e("  v_lshl_add_u32 v4, v5, 1, v4")
    e("  s_lshl_b32 s52, s49, 4")
    e(f"  s_add_u32 s52, s52, {WS_GU}")
    for i in range(4):
        e(f"  buffer_store_dword v{20+i}, v4, s[24:27], s52 offen sc1")
        if i < 3:
            e("  v_add_u32 v4, 3584, v4")
    e("  s_waitcnt vmcnt(0)")
    e("  s_mov_b64 exec, 1")
    e("  v_mov_b32 v4, 1")
    e("  v_mov_b32 v5, 0")
    e("  s_lshl_b32 s52, s49, 2")
    e(f"  s_add_u32 s52, s52, {WS_FLAG}")
    e("  buffer_store_dword v4, v5, s[24:27], s52 offen sc1")
    e("  s_mov_b64 exec, s[56:57]")
    stamp(5)
    lab("tf_f2")
    e("  s_cmp_lt_u32 s2, 192")
    e("  s_cbranch_scc1 tf_done")
    e("  v_min_u32 v3, 55, v0")
    e("  v_lshlrev_b32 v3, 2, v3")
    e("  s_mul_i32 s52, s48, 224")
    e(f"  s_add_u32 s52, s52, {WS_FLAG}")
    e("  s_mov_b32 s60, 0")
    lab("tf_poll2_loop")
    e("  buffer_load_dword v4, v3, s[24:27], s52 offen sc1")
    e("  s_waitcnt vmcnt(0)")
    e("  v_cmp_eq_u32 s[62:63], 0, v4")
    e("  s_nop 3")
    e("  s_cmp_eq_u64 s[62:63], 0")
    e("  s_cbranch_scc1 tf_poll2_ok")
    e("  s_add_u32 s60, s60, 1")
    e(f"  s_cmp_gt_u32 s60, {SPIN}")
    e("  s_cbranch_scc1 tf_poll2_ok")
    e("  s_sleep 1")
    e("  s_branch tf_poll2_loop")
    lab("tf_poll2_ok")
    stamp(6)
    e("  v_and_b32 v4, 7, v0")
    e("  v_mul_u32_u24 v4, 3584, v4")
    e("  v_lshrrev_b32 v5, 4, v0")
    e("  v_lshl_add_u32 v4, v5, 4, v4")
    e("  s_mul_i32 s52, s48, 896")
    e(f"  s_add_u32 s52, s52, {WS_GU}")
    FA, FB = 16, 72
    for st in range(14):
        e(f"  buffer_load_dwordx4 {vr(FA+4*st,4)}, v4, s[24:27], s52 offen offset:{64*st} sc1")
    e("  v_and_b32 v7, 15, v0")
    e("  v_lshrrev_b32 v7, 2, v7")
    e("  v_lshl_add_u32 v7, v5, 3, v7")
    e("  v_lshlrev_b32 v7, 4, v7")
    e("  v_and_b32 v6, 1, v0")
    e("  v_lshl_add_u32 v7, v6, 3, v7")
    e("  s_mul_i32 s54, s48, 7168")
    e(f"  s_add_u32 s54, s54, {LDS_WD}")
    e("  v_add_u32 v7, s54, v7")
    for st in range(14):
        e(f"  ds_read_b64_tr_b16 {vr(FB+4*st,2)}, v7 offset:{512*st}")
        e(f"  ds_read_b64_tr_b16 {vr(FB+4*st+2,2)}, v7 offset:{512*st+64}")
    for i in range(4):
        e(f"  v_mov_b32 v{8+i}, 0")
    e("  s_waitcnt vmcnt(0) lgkmcnt(0)")
    for st in range(14):
        e(f"  v_mfma_f32_16x16x32_bf16 v[8:11], {vr(FA+4*st,4)}, {vr(FB+4*st,4)}, v[8:11]")
    e("  s_nop 15")
    e("  v_lshlrev_b32 v3, 4, v0")
    e("  s_lshl_b32 s52, s48, 10")
    e("  v_add_u32 v3, s52, v3")
    e(f"  ds_write_b128 v3, v[8:11] offset:{LDS_R}")
    e("  s_waitcnt lgkmcnt(0)")
    e("  s_barrier")
    e("  s_cmp_lg_u32 s48, 0")
    e("  s_cbranch_scc1 tf_done")
    e("  v_lshlrev_b32 v3, 4, v0")
    for w in range(1, 4):
        e(f"  ds_read_b128 {vr(12+4*(w-1),4)}, v3 offset:{LDS_R+1024*w}")
    e("  v_and_b32 v6, 1, v5")
    e("  v_lshlrev_b32 v6, 4, v6")
    e(f"  ds_read_b128 v[24:27], v6 offset:{LDS_C+128}")
    e("  v_and_b32 v6, 7, v0")
    e("  s_lshl_b32 s52, s50, 4")
    e("  v_lshl_add_u32 v6, v6, 1, s52")
    e("  v_and_b32 v7, 1, v5")
    e("  v_lshlrev_b32 v7, 2, v7")
    for i in range(4):
        e(f"  v_add_u32 v28, {i}, v7")
        e(f"  v_mul_u32_u24 v29, {XS_STRIDE}, v28")
        e("  v_add_u32 v29, v29, v6")
        e(f"  ds_read_u16 v{36+i}, v29 offset:{LDS_XS}")
        e("  v_lshl_add_u32 v29, v28, 10, v6")
        e(f"  ds_read_u16 v{40+i}, v29 offset:{LDS_HS}")
    e("  v_and_b32 v30, 15, v0")
    e("  v_cmp_gt_u32 vcc, 8, v30")
    e("  v_cmp_gt_u32 s[58:59], 32, v0")
    e("  s_and_b64 vcc, vcc, s[58:59]")
    e("  s_waitcnt lgkmcnt(0)")
    e("  s_and_saveexec_b64 s[56:57], vcc")
    for i in range(4):
        e(f"  v_add_f32 v{8+i}, v{8+i}, v{12+i}")
        e(f"  v_add_f32 v{16+i}, v{16+i}, v{20+i}")
        e(f"  v_add_f32 v{8+i}, v{8+i}, v{16+i}")
        e(f"  v_cvt_pk_bf16_f32 v{8+i}, v{8+i}, v{8+i}")
        e(f"  v_lshlrev_b32 v{8+i}, 16, v{8+i}")
        e(f"  v_and_b32 v60, 0xffff0000, v{24+i}")
        e("  v_ashrrev_i32 v61, 31, v60")
        e("  v_not_b32 v61, v61")
        e("  v_or_b32 v61, 0x80000000, v61")
        e("  v_xor_b32 v60, v60, v61")
        e("  v_and_b32 v60, 0xffff0000, v60")
        e("  v_mul_f32 v60, 0xbfb8aa3b, v60")
        e("  v_exp_f32 v60, v60")
        e("  s_nop 0")
        e("  v_add_f32 v60, 1.0, v60")
        e("  v_rcp_f32 v60, v60")
        e("  s_nop 0")
        e("  v_cvt_pk_bf16_f32 v60, v60, v60")
        e("  v_lshlrev_b32 v60, 16, v60")
        e(f"  v_mul_f32 v{8+i}, v{8+i}, v60")
        e(f"  v_cvt_pk_bf16_f32 v{8+i}, v{8+i}, v{8+i}")
        e(f"  v_lshlrev_b32 v{8+i}, 16, v{8+i}")
        e(f"  v_lshlrev_b32 v{36+i}, 16, v{36+i}")
        e(f"  v_lshlrev_b32 v{40+i}, 16, v{40+i}")
        e(f"  v_add_f32 v61, v{36+i}, v{8+i}")
        e("  v_cvt_pk_bf16_f32 v61, v61, v61")
        e("  v_lshlrev_b32 v61, 16, v61")
        e(f"  v_add_f32 v61, v{40+i}, v61")
        e("  v_cvt_pk_bf16_f32 v61, v61, v61")
        e(f"  v_and_b32 v62, 0xffff, v{24+i}")
        e("  v_sub_u32 v62, 0xffff, v62")
        e("  v_lshl_add_u32 v62, v62, 10, v6")
        e("  buffer_store_short v61, v62, s[44:47], 0 offen")
    lab("tf_done")
    kernel_end()
    e("  s_endpgm")
    kernel_desc(name, 184)

def main():
    hdr = open("cdna_kernels/" + NAME + ".s.ref").read().splitlines()
    out = []
    for ln in hdr:
        if ln.startswith("; @launch"):
            if FUSE:
                out.append("; @launch kernel=f_kernel grid=(256,1,1) block=(576,1,1) lds=%d" % (K2_NS*24576 + 256))
            else:
                out.append("; @launch kernel=k1_kernel grid=(256,1,1) block=(%d,1,1) lds=131072" % (576 if OPT('K1_PF', 0) else 512))
                out.append("; @launch kernel=k2_kernel grid=(256,1,1) block=(%d,1,1) lds=%d" % (576, K2_NS*24576))
            if OPT('TF'):
                out.append("; @launch kernel=tf_kernel grid=(256,1,1) block=(256,1,1) lds=66048")
            else:
                if not OPT('K2T1', 1):
                    out.append("; @launch kernel=t1_kernel grid=(256,1,1) block=(%d,1,1) lds=0" % (192 if OPT('T1_PF', 1) else 128))
                if MEGA:
                    pass
                elif OPT('T4', 1):
                    out.append("; @launch kernel=t4_kernel grid=(240,1,1) block=(256,1,1) lds=123392")
                else:
                    out.append("; @launch kernel=t2_kernel grid=(224,1,1) block=(256,1,1) lds=25600")
                    out.append("; @launch kernel=t3_kernel grid=(64,1,1) block=(256,1,1) lds=32768")
            break
        out.append(ln)
    out.append('.amdgcn_target "amdgcn-amd-amdhsa--gfx950"')
    out.append(".text")
    gen_k1(); gen_k2()
    if OPT('TF'): gen_tf()
    elif OPT('T4', 1):
        if not OPT('K2T1', 1): gen_t1()
        if not MEGA: gen_t4()
    else: gen_t1(); gen_t2(); gen_t3()
    out += L
    out.append('.section .rodata,"a"')
    out += KD
    dst = sys.argv[1] if len(sys.argv) > 1 else "cdna_kernels/" + NAME + ".s"
    open(dst, "w").write("\n".join(out) + "\n")

main()
```
